```python
import torch

def _softmax(x, axis=-1):
    return torch.softmax(x, dim=axis)

def _gelu(x):
    return torch.nn.functional.gelu(x, approximate='tanh')

def _silu(x):
    return torch.nn.functional.silu(x)

def _sigmoid(x):
    return torch.sigmoid(x)

def _layernorm(x, axis=-1, eps=1e-05):
    m = x.mean(dim=axis, keepdim=True)
    v = x.var(dim=axis, keepdim=True, unbiased=False)
    return (x - m) / torch.sqrt(v + eps)

def _scatter_add(tgt, idx, src, axis=0):
    return tgt.clone().index_add_(axis, idx, src)

def _segment_sum(src, seg, n):
    out = torch.zeros((n,) + src.shape[1:], dtype=src.dtype)
    return out.index_add_(0, seg, src)

def _pad(x, pw):
    flat = tuple((v for pair in reversed(pw) for v in pair))
    return torch.nn.functional.pad(x, flat)
kernel_name = 'adaLN_cond__ssm_conv_s4d__mixer_s_mlp__prompt'

def setup_inputs():

    _w = lambda a: (lambda t: t.to(torch.bfloat16) if t.is_floating_point() else t)(torch.as_tensor(a))

    def _A_setup():
        Bsz, L, D, N = (1, 2048, 576, 128)
        return {'u': _w((lambda *s: torch.randn(*s, dtype=torch.bfloat16) * 0.05)(Bsz, L, D)), 'log_A_real': _w((lambda *s: torch.randn(*s, dtype=torch.bfloat16) * 3.2)(D, N) * 0.5), 'A_imag': _w((lambda *s: torch.randn(*s, dtype=torch.bfloat16) * 0.1)(D, N) * 3.14), 'C_real': _w((lambda *s: torch.randn(*s, dtype=torch.bfloat16) * 0.4)(D, N) / N ** 0.5), 'C_imag': _w((lambda *s: torch.randn(*s, dtype=torch.bfloat16) * 0.4)(D, N) / N ** 0.5), 'log_dt': _w((lambda *s: torch.randn(*s, dtype=torch.bfloat16) * 0.1)(D) * 0.5 - 4.0), 'D_skip': _w((lambda *s: torch.randn(*s, dtype=torch.bfloat16) * 0.1)(D))}
    _A_in = _A_setup()

    def _B_setup():
        B, S, D, F = (1, 2048, 576, 4608)
        return {'x': _w((lambda *s: torch.randn(*s, dtype=torch.bfloat16) * 0.05)(B, S, D)), 'w1': _w((lambda *s: torch.randn(*s, dtype=torch.bfloat16) * 3.2)(D, D) * D ** (-0.5)), 'w2': _w((lambda *s: torch.randn(*s, dtype=torch.bfloat16) * 3.2)(D, D) * D ** (-0.5)), 'w3': _w((lambda *s: torch.randn(*s, dtype=torch.bfloat16) * 3.2)(D, F) * D ** (-0.5)), 'w4': _w((lambda *s: torch.randn(*s, dtype=torch.bfloat16) * 3.2)(F, D) * F ** (-0.5))}
    _B_in = _B_setup()
    return {'A_u': _A_in['u'], 'A_log_A_real': _A_in['log_A_real'], 'A_A_imag': _A_in['A_imag'], 'A_C_real': _A_in['C_real'], 'A_C_imag': _A_in['C_imag'], 'A_log_dt': _A_in['log_dt'], 'A_D_skip': _A_in['D_skip'], 'B_x': _B_in['x'], 'B_w1': _B_in['w1'], 'B_w2': _B_in['w2'], 'B_w3': _B_in['w3'], 'B_w4': _B_in['w4'], 'c': _w((lambda *s: torch.randn(*s, dtype=torch.bfloat16) * 0.2)(1, 576) * 8.0), 'w_mod': _w((lambda *s: torch.randn(*s, dtype=torch.bfloat16) * 0.2)(576, 6 * 576) * 576 ** (-0.5) * 8.0)}

def reference(A_u, A_log_A_real, A_A_imag, A_C_real, A_C_imag, A_log_dt, A_D_skip, B_x, B_w1, B_w2, B_w3, B_w4, c, w_mod):

    def _A_ref(u, log_A_real, A_imag, C_real, C_imag, log_dt, D_skip):
        L = u.shape[1]
        dt = torch.exp(log_dt)
        A = -torch.exp(log_A_real) + 1j * A_imag
        C = (C_real + 1j * C_imag) * dt[:, None]
        pos = (lambda x, dt: x.to(dt))(torch.arange(L), log_dt.dtype)
        P = torch.exp((A * dt[:, None])[:, :, None] * pos[None, None, :])
        K = 2.0 * torch.einsum('dn,dnl->dl', C, P).real
        L2 = 2 * L
        u_t = (lambda x, *d: x.permute(*d))(u, 0, 2, 1)
        Kf = (lambda x, *a, **k: torch.fft.rfft(x.float(), *a, **k))(K, L2)
        Uf = (lambda x, *a, **k: torch.fft.rfft(x.float(), *a, **k))(u_t, L2)
        y = (lambda x, *a, **k: torch.fft.irfft(x, *a, **k).to(torch.bfloat16))(Uf * Kf[None, :, :], L2)[:, :, :L]
        y = (lambda x, *d: x.permute(*d))(y, 0, 2, 1)
        return y + u * D_skip[None, None, :]

    def _B_ref(x, w1, w2, w3, w4):
        B, S, D = x.shape
        h = _gelu(_layernorm(x, axis=-1) @ w1)
        c = D // 4
        g0 = _pad(h[:, :, 0 * c:1 * c], ((0, 0), (1, 0), (0, 0)))[:, :S, :]
        g1 = _pad(h[:, :, 1 * c:2 * c], ((0, 0), (0, 1), (0, 0)))[:, 1:, :]
        g2 = _pad(h[:, :, 2 * c:3 * c], ((0, 0), (2, 0), (0, 0)))[:, :S, :]
        g3 = _pad(h[:, :, 3 * c:], ((0, 0), (0, 2), (0, 0)))[:, 2:, :]
        hs = torch.concatenate([g0, g1, g2, g3], axis=-1) @ w2
        x1 = x + hs
        h2 = _gelu(_layernorm(x1, axis=-1) @ w3) @ w4
        return x1 + h2
    x = A_u
    mod = (_silu(c) @ w_mod).reshape(c.shape[0], 6, 1, -1)
    sa, ca, ga, sb, cb, gb = (mod[:, 0].clone(), mod[:, 1].clone(), mod[:, 2].clone(), mod[:, 3].clone(), mod[:, 4].clone(), mod[:, 5].clone())
    h = _layernorm(x, axis=-1) * (1 + ca) + sa
    x = x + ga * _A_ref(h, A_log_A_real, A_A_imag, A_C_real, A_C_imag, A_log_dt, A_D_skip)
    h = _layernorm(x, axis=-1) * (1 + cb) + sb
    x = x + gb * _B_ref(h, B_w1, B_w2, B_w3, B_w4)
    return x
```

```python
from dsl import Kern, Reg, module
import struct

L, D, F = 2048, 576, 4608
NAME = 'adaLN_cond__ssm_conv_s4d__mixer_s_mlp__prompt'

O_FC    = 0x0000
O_FD    = 0x4000
O_FP    = 0x8000
O_FW    = 0x18000
FLAG_BYTES = 0x18400
O_STATS = 0x20000
O_MODG  = 0x24000
O_MOD2  = 0x28000
O_PST   = 0x30000
O_X2    = 0x100000
O_G     = 0x400000
O_X1F   = 0x700000
O_RES   = 0xA00000
O_W1F   = 0xF00000
O_W2F   = 0x1000000
O_W3F   = 0x1100000
O_W4F   = 0x1700000
O_PART  = 0x2000000
O_DBG   = 0x3800000
WS_USED = 0x4000000

def f2u(x): return struct.unpack('<I', struct.pack('<f', x))[0]
def fl(x): return '0x%08x' % f2u(x)
LOG2E = 1.4426950408889634

class Trk:
    def __init__(self, k, cnt, mx): self.k = k; self.cnt = cnt; self.mx = mx; self.n = 0; self.done = 0
    def op(self, s):
        self.k(s); self.n += 1; return self.n
    def wait(self, idx):
        if idx <= self.done: return
        left = min(self.n - idx, self.mx)
        self.k('s_waitcnt %s(%d)' % (self.cnt, left)); self.done = self.n - left
    def all(self): self.wait(self.n)
    def reset(self): self.done = self.n

def trackers(k): return Trk(k, 'vmcnt', 63), Trk(k, 'lgkmcnt', 15)

def srd(k, dst, ptr, nbytes, off=0):
    if off:
        k(f's_add_u32 {dst[0]}, {ptr[0]}, {off}\ns_addc_u32 {dst[1]}, {ptr[1]}, 0')
    else:
        k(f's_mov_b32 {dst[0]}, {ptr[0]}\ns_mov_b32 {dst[1]}, {ptr[1]}')
    k(f's_mov_b32 {dst[2]}, {nbytes}\ns_mov_b32 {dst[3]}, 0x20000')

def kernargs(k):
    a = k.s(16, 4); b = k.s(16, 4); c = k.s(2)
    k(f's_load_dwordx16 {a}, s[0:1], 0\ns_load_dwordx16 {b}, s[0:1], 64\ns_load_dwordx2 {c}, s[0:1], 128')
    names = ['u', 'logA', 'Aim', 'Cr', 'Ci', 'logdt', 'Dskip', 'Bx']
    P = {n: a.sub(2 * i, 2) for i, n in enumerate(names)}
    names = ['w1', 'w2', 'w3', 'w4', 'c', 'wmod', 'out', 'dbg']
    P.update({n: b.sub(2 * i, 2) for i, n in enumerate(names)})
    P['ws'] = c
    return P

def code_prefetch(k, vm, lo, hi, nbytes, lane, tmp, sp):
    here = k.label('pc')
    k(f's_getpc_b64 {sp}\n{here}:')
    k(f's_add_u32 {sp[0]}, {sp[0]}, {lo}-{here}\ns_addc_u32 {sp[1]}, {sp[1]}, 0')
    k(f'v_lshlrev_b32 {tmp[0]}, 7, {lane}')
    k(f'v_min_u32 {tmp[0]}, {hi}-{lo}-4, {tmp[0]}')
    n = (nbytes + 8191) // 8192
    for i in range(n):
        vm.op(f'global_load_dword {tmp[1]}, {tmp[0]}, {sp}')
        if i + 1 < n:
            k(f'v_add_u32 {tmp[0]}, 0x2000, {tmp[0]}\nv_min_u32 {tmp[0]}, {hi}-{lo}-4, {tmp[0]}')

def interleave(*streams):
    out = []; n = max(len(s) for s in streams)
    for i in range(n):
        for s in streams:
            if i < len(s): out.append(s[i])
    return out

class ColJob:
    def __init__(self, k, vm, lg, lane, s_w):
        self.k, self.vm, self.lg, self.lane, self.s_w = k, vm, lg, lane, s_w
        k_ = k
        self.row = k.v(); self.chunk = k.v(); t = k.v(2)
        k_(f'v_lshrrev_b32 {self.row}, 3, {lane}')
        k_(f'v_bfe_u32 {t[0]}, {lane}, 5, 1\ns_and_b32 vcc_lo, {s_w}, 1\nv_xor_b32 {t[0]}, vcc_lo, {t[0]}')
        k_(f'v_bfe_u32 {t[1]}, {lane}, 4, 1\nv_lshl_or_b32 {t[0]}, {t[0]}, 1, {t[1]}')
        k_(f'v_lshlrev_b32 {t[0]}, 1, {t[0]}\nv_and_b32 {t[1]}, 7, {lane}\nv_xor_b32 {t[0]}, {t[0]}, {t[1]}')
        k_(f'v_lshlrev_b32 {self.chunk}, 4, {t[0]}')
        t.release()
    def dma(self, R, s_src, s_stride, buf):
        k = self.k
        va = k.v(); so = k.s(); st = k.s(); sm = k.s()
        k(f'v_mad_u32_u24 {va}, {self.row}, {s_stride}, {self.chunk}')
        k(f's_lshl_b32 {st}, {s_stride}, 3\ns_mul_i32 {so}, {st}, {self.s_w}\ns_add_u32 {so}, {so}, {s_src}\ns_lshl_b32 {st}, {st}, 2')
        k(f's_lshl_b32 {sm}, {self.s_w}, 10')
        last = None
        for i in range(18):
            k(f's_add_u32 m0, {sm}, {buf + i * 4096}')
            last = self.vm.op(f'buffer_load_dwordx4 {va}, {R}, {so} offen lds')
            if i < 17: k(f's_add_u32 {so}, {so}, {st}')
        va.release(); so.release(); st.release(); sm.release()
        return last
    def read(self, buf, fr, w4order=False, s_il=None):
        k, lane = self.k, self.lane
        ad = k.v(4); q = k.v(); r = k.v(); c = k.v(); un = k.v(); wi = k.v(); t = k.v(2)
        k(f'v_lshrrev_b32 {q}, 4, {lane}\nv_bfe_u32 {r}, {lane}, 2, 2\nv_and_b32 {c}, 3, {lane}')
        k(f'v_mov_b32 {un}, {self.s_w}\nv_lshlrev_b32 {wi}, 3, {c}')
        if s_il is not None:
            st = k.s()
            k(f's_and_b32 {st}, {self.s_w}, 2\nv_lshrrev_b32 {t[0]}, 1, {c}\nv_add_u32 {t[0]}, {st}, {t[0]}')
            k(f's_and_b32 {st}, {self.s_w}, 1\ns_lshl_b32 {st}, {st}, 3\nv_and_b32 {t[1]}, 1, {c}\nv_lshl_add_u32 {t[1]}, {t[1]}, 4, {st}')
            k(f's_cmp_lg_u32 {s_il}, 0\ns_cselect_b64 vcc, -1, 0')
            k(f'v_cndmask_b32 {un}, {un}, {t[0]}, vcc\nv_cndmask_b32 {wi}, {wi}, {t[1]}, vcc')
            st.release()
        for h in range(2):
            kl = ad[h]
            if w4order: k(f'v_lshl_add_u32 {kl}, {q}, 2, {r}\nv_add_u32 {kl}, {16 * h}, {kl}')
            else: k(f'v_lshl_add_u32 {kl}, {q}, 3, {r}\nv_add_u32 {kl}, {4 * h}, {kl}')
            k(f'v_lshrrev_b32 {t[0]}, 1, {kl}\nv_xor_b32 {t[0]}, {t[0]}, {kl}\nv_bfe_u32 {t[0]}, {t[0]}, 2, 1')
            k(f'v_bfe_u32 {t[1]}, {kl}, 1, 1\nv_lshl_or_b32 {t[0]}, {t[0]}, 1, {t[1]}\nv_xor_b32 {t[0]}, {t[0]}, {un}')
            k(f'v_lshl_add_u32 {t[0]}, {t[0]}, 5, {wi}\nv_lshl_add_u32 {kl}, {kl}, 7, {t[0]}')
            k(f'v_add_u32 {kl}, {buf}, {kl}\nv_add_u32 {ad[2 + h]}, 0x9000, {kl}')
        ids = []
        for s in range(18):
            for h in range(2):
                a = ad[h] if s < 9 else ad[2 + h]
                i = self.lg.op(f'ds_read_b64_tr_b16 {fr.sub(4 * s + 2 * h, 2)}, {a} offset:{(s % 9) * 4096}')
            ids.append(i)
        for x in (ad, q, r, c, un, wi, t): x.release()
        return ids
    def store(self, fr, ids, Rws, s_dst, s_step, s_rot=None, flags='sc1'):
        k = self.k
        va = k.v(); so = k.s(); sl = k.s()
        k(f'v_lshlrev_b32 {va}, 4, {self.lane}')
        if s_rot is not None: k(f's_mov_b32 {sl}, {s_rot}')
        else: k(f's_mov_b32 {so}, {s_dst}')
        for s in range(18):
            if s_rot is not None:
                k(f's_mul_i32 {so}, {sl}, {s_step}\ns_add_u32 {so}, {so}, {s_dst}')
                k(f's_add_u32 {sl}, {sl}, 1\ns_cmp_eq_u32 {sl}, 18\ns_cselect_b32 {sl}, 0, {sl}')
            if ids: self.lg.wait(ids[s])
            self.vm.op(f'buffer_store_dwordx4 {fr.sub(4 * s, 4)}, {va}, {Rws}, {so} offen {flags}')
            if s_rot is None and s < 17: k(f's_add_u32 {so}, {so}, {s_step}')
        va.release(); so.release(); sl.release()
```

```python
import re

TRANS = ('v_exp_f32', 'v_log_f32', 'v_rcp_f32', 'v_rsq_f32', 'v_sqrt_f32', 'v_sin_f32', 'v_cos_f32', 'v_rcp_iflag_f32')
NOREG_S = ('s_waitcnt', 's_barrier', 's_nop', 's_sleep', 's_setprio', 's_endpgm', 's_branch', 's_cbranch')

def regs_of(tok):
    tok = tok.strip()
    if tok.startswith('-'): tok = tok[1:]
    m = re.fullmatch(r'abs\((.*)\)|\|(.*)\|', tok)
    if m: tok = m.group(1) or m.group(2)
    m = re.fullmatch(r'([vas])(\d+)', tok)
    if m: return [(m.group(1), int(m.group(2)))]
    m = re.fullmatch(r'([vas])\[(\d+):(\d+)\]', tok)
    if m: return [(m.group(1), i) for i in range(int(m.group(2)), int(m.group(3)) + 1)]
    if tok == 'vcc': return [('x', 'vcc')]
    if tok == 'exec': return [('x', 'exec')]
    if tok == 'm0': return [('x', 'm0')]
    return []

class Ins:
    def __init__(self, text):
        self.text = text
        self.label = text[:-1] if text.endswith(':') else None
        self.directive = text.startswith('.')
        self.w = []; self.r = []; self.cls = 'other'; self.op = ''
        if self.label or self.directive: return
        body = text.split(';')[0].strip()
        parts = body.split(None, 1)
        op = self.op = parts[0]
        rest = parts[1] if len(parts) > 1 else ''
        toks = [t.strip() for t in re.split(r',(?![^\[]*\])', rest)] if rest else []
        mods = ''
        if toks:
            last = toks[-1].split(None, 1)
            if len(last) > 1 and not toks[-1].startswith('vmcnt') and not toks[-1].startswith('lgkmcnt'):
                toks[-1] = last[0]; mods = last[1]
        self.mods = mods; self.toks = toks
        R = [regs_of(t) for t in toks]
        flat = lambda L: [x for l in L for x in l]
        self.srcA = self.srcC = []
        if op.startswith('v_mfma'):
            self.cls = 'mfma'; self.w = R[0]; self.r = flat(R[1:]); self.srcAB = R[1] + R[2]; self.srcC = R[3]
            self.passes = 8 if '32x32' in op else 4
        elif op.startswith('v_'):
            self.cls = 'valu'
            self.trans = any(op.startswith(t) for t in TRANS)
            self.dpp = ('dpp' in op) or any(k in mods for k in ('quad_perm', 'row_', 'wave_'))
            self.dot = op.startswith('v_dot')
            if 'permlane' in op and 'swap' in op:
                self.w = R[0] + R[1]; self.r = R[0] + R[1]
            elif op.startswith('v_add_co') or op.startswith('v_sub_co') or op.startswith('v_addc_co'):
                self.w = R[0] + R[1]; self.r = flat(R[2:])
            else:
                self.w = R[0]; self.r = flat(R[1:])
                if op.startswith(('v_fmac', 'v_dot2c', 'v_pk_fmac', 'v_writelane')) or self.dpp: self.r = self.r + R[0]
        elif op.startswith('ds_'):
            self.cls = 'ds'
            if op.startswith(('ds_read', 'ds_bpermute', 'ds_swizzle', 'ds_permute')):
                self.w = R[0]; self.r = flat(R[1:])
            else: self.r = flat(R)
        elif op.startswith(('buffer_', 'global_')):
            self.cls = 'vmem'
            self.lds = bool(re.search(r'\blds\b', mods))
            if op in ('buffer_inv', 'buffer_wbl2'): pass
            elif 'load' in op and not self.lds:
                self.w = R[0]; self.r = flat(R[1:])
            elif 'atomic' in op and 'sc0' in mods:
                self.w = R[0]; self.r = flat(R)
            else:
                self.r = flat(R)
                if self.lds: self.r = self.r + [('x', 'm0')]
            self.wide_data = []
            if 'store' in op and ('x4' in op or 'x3' in op):
                self.wide_data = R[0] if op.startswith('buffer_') else R[1]
        elif op.startswith(('s_load', 's_memtime', 's_memrealtime', 's_buffer_load')):
            self.cls = 'smem'; self.w = R[0]; self.r = flat(R[1:])
        elif op.startswith('s_'):
            self.cls = 'salu'
            if op.startswith(NOREG_S): pass
            elif op.startswith(('s_cmp', 's_bitcmp')): self.r = flat(R)
            elif 'saveexec' in op: self.w = R[0] + [('x', 'exec')]; self.r = flat(R[1:]) + [('x', 'exec')]
            else: self.w = R[0]; self.r = flat(R[1:])
    def states(self):
        if self.label or self.directive: return 0
        if self.op == 's_nop': return int(self.toks[0], 0) + 1
        return 1
    def target(self):
        if self.op.startswith(('s_branch', 's_cbranch')): return self.toks[0]
        return None

def need(p, c):
    n = 0
    W = set(p.w); cr = set(c.r); cw = set(c.w)
    isv = lambda x: x[0] in 'va'
    if p.cls == 'valu':
        vw = {x for x in W if isv(x)}; sw = W - vw
        if c.cls == 'mfma' and vw & cr: n = max(n, 2)
        if c.cls == 'valu':
            if p.trans and not c.trans and vw & cr: n = max(n, 1)
            if c.dpp and vw & cr: n = max(n, 2)
            if 'permlane' in c.op and vw & cr: n = max(n, 2)
            if c.op.startswith(('v_readlane', 'v_readfirstlane')) and vw & cr: n = max(n, 1)
            if sw & cr: n = max(n, 4 if c.op.startswith(('v_readlane', 'v_writelane')) else 2)
            if p.dot and vw & (cr | cw):
                same_c = c.op == p.op and not (vw & set(regs_of(c.toks[1]) + regs_of(c.toks[2])))
                if not same_c: n = max(n, 3)
            if ('op_sel' in p.mods and not p.op.startswith('v_pk_')) and vw & (cr | cw): n = max(n, 1)
        if p.dot and c.cls != 'valu' and vw & (cr | cw): n = max(n, 3)
        if c.cls == 'vmem' and sw & cr: n = max(n, 5)
        if c.cls in ('salu', 'smem') and sw & cr: n = max(n, 1)
    if p.cls == 'mfma':
        P = p.passes
        if c.cls == 'mfma':
            if W & set(c.srcAB): n = max(n, P + 4)
            if W & set(c.srcC):
                if not (list(p.w) == list(c.srcC) and p.passes == c.passes): n = max(n, P + 2)
            elif W & cw: n = max(n, P + 4)
        elif W & (cr | cw): n = max(n, P + 4)
        if c.cls == 'valu' and set(p.srcC) & cw: n = max(n, P - 1)
    if p.cls == 'salu' and ('x', 'm0') in W and c.cls in ('vmem', 'ds') and ('x', 'm0') in cr: n = max(n, 1)
    if p.cls == 'vmem' and p.wide_data and set(p.wide_data) & cw: n = max(n, 2 if c.cls == 'valu' else 1)
    return n

def insert_nops(lines):
    ins = [Ins(x) for x in lines]
    total = 0
    i = 0
    while i < len(ins):
        c = ins[i]
        if c.label or c.directive or c.cls == 'other': i += 1; continue
        worst = 0
        labels = None
        stack = [(i - 1, 0)]; seen = {}
        while stack:
            j, d = stack.pop()
            while j >= 0 and d < 20:
                if seen.get(j, 99) <= d: break
                seen[j] = d
                p = ins[j]
                if p.label:
                    if labels is None:
                        labels = {}
                        for t, x in enumerate(ins):
                            tg = x.target() if not (x.label or x.directive) else None
                            if tg: labels.setdefault(tg, []).append(t)
                    for t in labels.get(p.label, []): stack.append((t, d))
                    k = j - 1
                    while k >= 0 and (ins[k].directive): k -= 1
                    if k >= 0 and not ins[k].label and ins[k].op in ('s_branch', 's_endpgm'): break
                    j -= 1; continue
                if p.directive: j -= 1; continue
                worst = max(worst, need(p, c) - d)
                d += p.states(); j -= 1
        if worst > 0:
            ins.insert(i, Ins('s_nop %d' % (worst - 1))); total += worst; i += 1
        i += 1
    return [x.text for x in ins], total

def lint_waits(lines, name=''):
    ins = [Ins(x) for x in lines]
    pos = {x.label: i for i, x in enumerate(ins) if x.label}
    errs = []
    def run(seq, vm, lg):
        for i in seq:
            c = ins[i]
            if c.label or c.directive: continue
            if c.op == 's_waitcnt':
                m = re.search(r'vmcnt\((\d+)\)', c.text)
                if m:
                    n = int(m.group(1)); assert n <= 63, c.text
                    if len(vm) > n: del vm[:len(vm) - n]
                m = re.search(r'lgkmcnt\((\d+)\)', c.text)
                if m:
                    n = int(m.group(1)); assert n <= 15, c.text
                    if n == 0: lg.clear()
                    elif not any(k == 'smem' for k, _ in lg) and len(lg) > n: del lg[:len(lg) - n]
                continue
            touched = set(c.r) | set(c.w)
            d16 = c.cls in ('ds', 'vmem') and 'd16' in c.op
            for q in (vm, lg):
                for kind, dst in q:
                    hit = touched & dst
                    if hit and d16 and kind == c.cls and not (set(c.r) & dst): continue
                    if hit and kind == c.cls and not (set(c.r) & dst): continue
                    if hit: errs.append('%s: line %d "%s" touches pending %s %s' % (name, i, c.text, kind, sorted(hit)[:2]))
            if c.cls == 'vmem': vm.append(('vmem', set(c.w)))
            elif c.cls == 'ds': lg.append(('ds', set(c.w)))
            elif c.cls == 'smem': lg.append(('smem', set(c.w)))
    vm, lg = [], []
    i = 0
    for i, c in enumerate(ins):
        if c.label and i > 0 and not ins[i - 1].label and not ins[i - 1].directive and ins[i - 1].op in ('s_branch', 's_endpgm'):
            vm.clear(); lg.clear()
        run([i], vm, lg)
        tg = None if (c.label or c.directive) else c.target()
        if tg in pos and pos[tg] < i:
            run(range(pos[tg], i), list(vm), list(lg))
    return sorted(set(errs))

class Pool:
    def __init__(self, kind, lo, hi):
        self.kind = kind; self.free = [True] * hi; self.lo = lo; self.hi = hi; self.top = lo
        for i in range(lo): self.free[i] = False
    def get(self, n=1, align=None):
        align = align or (1 if n == 1 else (2 if self.kind != 's' or n == 2 else 4))
        i = (self.lo + align - 1) // align * align
        while i + n <= self.hi:
            if all(self.free[i:i + n]):
                for j in range(i, i + n): self.free[j] = False
                self.top = max(self.top, i + n)
                return Reg(self.kind, i, n, self)
            i += align
        raise RuntimeError('out of %s registers (%d)' % (self.kind, n))

class Reg:
    def __init__(self, kind, i, n, pool=None):
        self.kind = kind; self.i = i; self.n = n; self.pool = pool
    def __str__(self):
        return '%s%d' % (self.kind, self.i) if self.n == 1 else '%s[%d:%d]' % (self.kind, self.i, self.i + self.n - 1)
    __repr__ = __str__
    def __format__(self, spec): return str(self)
    def __getitem__(self, k):
        if isinstance(k, slice):
            a = k.start or 0; b = self.n if k.stop is None else k.stop
            assert 0 <= a < b <= self.n, (a, b, self.n)
            return Reg(self.kind, self.i + a, b - a)
        assert 0 <= k < self.n, (k, self.n)
        return Reg(self.kind, self.i + k, 1)
    def sub(self, k, n): return self[k:k + n]
    def release(self):
        for j in range(self.i, self.i + self.n):
            assert not self.pool.free[j]
            self.pool.free[j] = True

class Kern:
    def __init__(self, name, nv=256, na=0):
        self.name = name; self.l = []; self._lab = 0
        self.V = Pool('v', 1, nv); self.A = Pool('a', 0, max(na, 1)); self.S = Pool('s', 3, 100)
        self.na = na
    def __call__(self, s=''):
        for x in s.split('\n'):
            x = x.strip()
            if x: self.l.append(x)
    def v(self, n=1, align=None): return self.V.get(n, align)
    def a(self, n=1, align=None): return self.A.get(n, align)
    def s(self, n=1, align=None): return self.S.get(n, align)
    def label(self, base='L'):
        self._lab += 1
        return '%s_%s_%d' % (base, self.name.replace('_kernel', ''), self._lab)
    def finish(self):
        self.l, nn = insert_nops(self.l)
        errs = lint_waits(self.l, self.name)
        for e in errs[:30]: print('LINT', e)
        self.nops = nn
        return errs
    def body(self):
        o = ['.globl %s' % self.name, '.p2align 8', '.type %s,@function' % self.name, '%s:' % self.name]
        for x in self.l: o.append(x if x.endswith(':') else '    ' + x)
        return '\n'.join(o) + '\n'
    def counts(self):
        acc = max(4, (self.V.top + 3) // 4 * 4)
        nfv = acc + self.A.top if self.na else self.V.top
        return acc, nfv
    def desc(self, ka):
        acc, nfv = self.counts()
        o = ['.p2align 6', '.amdhsa_kernel %s' % self.name,
             '  .amdhsa_next_free_vgpr %d' % nfv, '  .amdhsa_next_free_sgpr 102',
             '  .amdhsa_accum_offset %d' % acc, '  .amdhsa_group_segment_fixed_size 0',
             '  .amdhsa_kernarg_size %d' % ka, '  .amdhsa_user_sgpr_count 2',
             '  .amdhsa_user_sgpr_kernarg_segment_ptr 1', '  .amdhsa_system_sgpr_workgroup_id_x 1',
             '  .amdhsa_float_denorm_mode_32 3', '.end_amdhsa_kernel']
        return '\n'.join(o) + '\n'

def module(kernels, ka, header=''):
    s = header + '.amdgcn_target "amdgcn-amd-amdhsa--gfx950"\n.text\n'
    for k in kernels: s += k.body()
    s += '.section .rodata,"a"\n'
    for k in kernels: s += k.desc(ka)
    return s
```

```python
from common import *

N_SIG = 64 + 27
BUF0, BUF1, SVEC = 0, 73728, 147456
K1_LDS = 147456 + 2304
SPIN_MAX = 40000

def vmaps():
    maps = [list(range(16))]
    for s in (1, 2, 3):
        m = list(maps[-1]); step = 1 << s
        new = [step * i for i in range(8, 16)]
        for j in range(16):
            if m[j] % step: m[j] = new.pop(0)
        assert not new
        maps.append(m)
    return maps

def service(k, P, lane, s_w, END, w4_here):
    vm, lg = trackers(k)
    Rws = k.s(4); Rdbg = k.s(4); RA = k.s(4); RB = k.s(4)
    srd(k, Rws, P['ws'], WS_USED); srd(k, Rdbg, P['dbg'], 256)
    cj = ColJob(k, vm, lg, lane, s_w)
    jb = k.s(); modeB = k.s(); blkB = k.s(); srcB = k.s(); strB = k.s()
    k(f's_sub_u32 {jb}, s2, 64\ns_add_u32 {blkB}, s2, 48\ns_cmp_ge_u32 s2, 64\ns_cselect_b32 {jb}, {jb}, {blkB}')
    srd(k, RB, P['wmod'], D * 3456 * 2)
    k(f's_mov_b32 {modeB}, 0\ns_add_u32 {blkB}, {jb}, 48\ns_mov_b32 {strB}, 6912')
    for mode, lo, ptr, nb, st in ((1, 6, 'w1', D * D * 2, 1152), (2, 15, 'w2', D * D * 2, 1152), (3, 24, 'w3', D * F * 2, 9216)):
        k(f's_sub_u32 {srcB}, {jb}, {lo}\ns_cmp_ge_u32 {jb}, {lo}')
        k(f's_cselect_b32 {blkB}, {srcB}, {blkB}\ns_cselect_b32 {modeB}, {mode}, {modeB}\ns_cselect_b32 {strB}, {st}, {strB}')
        k(f's_cselect_b32 {RB[0]}, {P[ptr][0]}, {RB[0]}\ns_cselect_b32 {RB[1]}, {P[ptr][1]}, {RB[1]}\ns_cselect_b32 {RB[2]}, {nb}, {RB[2]}')
    k(f's_lshl_b32 {srcB}, {blkB}, 7')
    zero = k.v(2); k(f'v_mov_b32 {zero[0]}, 0\nv_mov_b32 {zero[1]}, 0')
    one = k.v(); k(f'v_mov_b32 {one}, 1')
    fr = k.v(72, 4); sv = k.v(72, 4); acc = k.v(4, 4)
    sav = k.s(2); st = k.s()
    L_mod, L_B, L_C = k.label('mod'), k.label('jobB'), k.label('jobC')

    def dmaB():
        skip = k.label('nodmaB')
        k(f's_cmp_ge_u32 {jb}, 96\ns_cbranch_scc1 {skip}')
        cj.dma(RB, srcB, strB, BUF1)
        k(f'{skip}:')
    def wait2(n_b, n_nob):
        a, b = k.label('w'), k.label('w')
        k(f's_cmp_ge_u32 {jb}, 96\ns_cbranch_scc1 {a}\ns_waitcnt vmcnt({n_b})\ns_branch {b}\n{a}:\ns_waitcnt vmcnt({n_nob})\n{b}:')
    def signal():
        k('s_barrier')
        sk = k.label('nosig')
        k(f's_cmp_lg_u32 {s_w}, 0\ns_cbranch_scc1 {sk}\ns_cmp_ge_u32 s2, {N_SIG}\ns_cbranch_scc1 {sk}')
        k(f's_and_b32 {st}, s2, 1\ns_lshl_b32 {st}, {st}, 7\ns_mov_b64 {sav}, exec\ns_mov_b64 exec, 1')
        k(f'buffer_atomic_add {one}, {zero[0]}, {Rdbg}, {st} offen offset:64 sc1')
        k(f's_mov_b64 exec, {sav}\n{sk}:')

    k(f's_cmp_ge_u32 s2, 64\ns_cbranch_scc1 {L_mod}')
    srd(k, RA, P['u'], L * D * 2)
    va = k.v(); vg = k.v(); t = k.v(4)
    k(f's_lshl_b32 {st}, s2, 2\ns_add_u32 {st}, {st}, {s_w}\ns_lshl_b32 {st}, {st}, 3')
    k(f'v_lshrrev_b32 {t[0]}, 3, {lane}\nv_add_u32 {t[0]}, {st}, {t[0]}\nv_lshlrev_b32 {vg}, 3, {t[0]}\nv_add_u32 {vg}, {O_STATS}, {vg}')
    k(f'v_and_b32 {t[1]}, 7, {lane}\nv_lshlrev_b32 {t[2]}, 4, {t[1]}\nv_mul_u32_u24 {va}, 1152, {t[0]}\nv_add_u32 {va}, {va}, {t[2]}')
    k(f'buffer_store_dwordx2 {zero}, {vg}, {Rws}, 0 offen sc1')
    for i in range(9): k(f'buffer_load_dwordx4 {fr.sub(4 * i, 4)}, {va}, {RA}, 0 offen offset:{128 * i}')
    k(f's_mul_i32 {st}, s2, {FLAG_BYTES // 64}\nv_lshlrev_b32 {t[2]}, 3, v0\nv_cmp_gt_u32 vcc, {FLAG_BYTES // 64}, {t[2]}')
    k(f's_and_saveexec_b64 {sav}, vcc\nbuffer_store_dwordx2 {zero}, {t[2]}, {Rws}, {st} offen\ns_mov_b64 exec, {sav}')
    dmaB()
    wait2(28, 10)
    signal()
    k(f's_mov_b32 {st}, 0x3f803f80')
    for i in range(4): k(f'v_mov_b32 {acc[i]}, 0')
    wait2(19, 1)
    for i in range(36):
        k(f'v_dot2_f32_bf16 {acc[i & 1]}, {fr[i]}, {st}, {acc[i & 1]}')
        k(f'v_dot2_f32_bf16 {acc[2 + (i & 1)]}, {fr[i]}, {fr[i]}, {acc[2 + (i & 1)]}')
    k(f'v_add_f32 {t[0]}, {acc[0]}, {acc[1]}\nv_add_f32 {t[2]}, {acc[2]}, {acc[3]}')
    for m in ('quad_perm:[1,0,3,2]', 'quad_perm:[2,3,0,1]', 'row_half_mirror'):
        k(f'v_add_f32_dpp {t[0]}, {t[0]}, {t[0]} {m} row_mask:0xf bank_mask:0xf')
        k(f'v_add_f32_dpp {t[2]}, {t[2]}, {t[2]} {m} row_mask:0xf bank_mask:0xf')
    k(f'v_mul_f32 {t[0]}, {fl(1 / 576)}, {t[0]}\nv_mul_f32 {t[2]}, {fl(1 / 576)}, {t[2]}')
    k(f'v_fma_f32 {t[2]}, -{t[0]}, {t[0]}, {t[2]}\nv_max_f32 {t[2]}, 0, {t[2]}')
    k(f'v_cvt_pk_bf16_f32 {t[2]}, {t[2]}, {t[2]}\nv_and_b32 {t[2]}, 0xffff0000, {t[2]}\nv_add_f32 {t[2]}, {fl(1e-5)}, {t[2]}')
    k(f'v_cvt_pk_bf16_f32 {t[2]}, {t[2]}, {t[2]}\nv_and_b32 {t[2]}, 0xffff0000, {t[2]}\nv_sqrt_f32 {t[2]}, {t[2]}')
    k(f'v_cvt_pk_bf16_f32 {t[2]}, {t[0]}, {t[2]}\nv_mov_b32 {t[3]}, 1')
    k(f'v_cmp_eq_u32 vcc, 0, {t[1]}\ns_and_saveexec_b64 {sav}, vcc')
    k(f'buffer_store_dwordx2 {t[2:4]}, {vg}, {Rws}, 0 offen sc1\ns_mov_b64 exec, {sav}')
    k(f's_branch {L_B}')
    va.release(); vg.release(); t.release()

    def mod_tail(ids, s_blk):
        t = k.v(2); vg = k.v(); s1 = k.s()
        for s in range(18):
            lg.wait(ids[s])
            k(f'v_mfma_f32_16x16x32_bf16 {acc}, {sv.sub(4 * s, 4)}, {fr.sub(4 * s, 4)}, {"0" if s == 0 else acc}')
        k(f's_lshl_b32 {s1}, {s_blk}, 2\ns_add_u32 {s1}, {s1}, {s_w}\ns_lshl_b32 {s1}, {s1}, 4\nv_add_u32 {vg}, {s1}, {lane}')
        k(f'v_cvt_pk_bf16_f32 {t[0]}, {acc[0]}, {acc[0]}\nv_and_b32 {t[0]}, 0xffff0000, {t[0]}')
        k(f'v_add_f32 {t[1]}, 1.0, {t[0]}\nv_cvt_pk_bf16_f32 {t[1]}, {t[1]}, {t[1]}\nv_and_b32 {t[1]}, 0xffff0000, {t[1]}')
        k(f's_mov_b64 vcc, 0\ns_sub_u32 {s1}, {s_blk}, 9\ns_cmp_lt_u32 {s1}, 9\ns_cselect_b64 vcc, -1, vcc')
        k(f's_sub_u32 {s1}, {s_blk}, 36\ns_cmp_lt_u32 {s1}, 9\ns_cselect_b64 vcc, -1, vcc')
        k(f'v_cndmask_b32 {t[0]}, {t[0]}, {t[1]}, vcc\nv_mov_b32 {t[1]}, 1')
        a, b = k.label('plain'), k.label('stored')
        k(f's_mov_b64 {sav}, exec\ns_mov_b64 exec, 0xffff\ns_cmp_ge_u32 {s_blk}, 27\ns_cbranch_scc1 {a}')
        k(f'v_lshlrev_b32 {vg}, 3, {vg}\ns_mov_b32 {s1}, {O_MODG}\nbuffer_store_dwordx2 {t}, {vg}, {Rws}, {s1} offen sc1\ns_branch {b}')
        k(f'{a}:\nv_lshlrev_b32 {vg}, 2, {vg}\ns_mov_b32 {s1}, {O_MOD2 - 1728 * 4}\nbuffer_store_dword {t[0]}, {vg}, {Rws}, {s1} offen')
        k(f'{b}:\ns_mov_b64 exec, {sav}')
        t.release(); vg.release(); s1.release()

    k(f'{L_mod}:')
    vm, lg = trackers(k); cj.vm, cj.lg = vm, lg
    blkA = k.s(); srcA = k.s(); strA = k.s(); Rc = k.s(4)
    srd(k, RA, P['wmod'], D * 3456 * 2); srd(k, Rc, P['c'], D * 2)
    k(f's_sub_u32 {blkA}, s2, 64\ns_lshl_b32 {srcA}, {blkA}, 7\ns_mov_b32 {strA}, 6912')
    t = k.v(8); vg = k.v()
    k(f's_lshl_b32 {st}, {blkA}, 2\ns_add_u32 {st}, {st}, {s_w}\ns_lshl_b32 {st}, {st}, 7\ns_add_u32 {st}, {st}, {O_MODG}')
    k(f's_cmp_ge_u32 {blkA}, 27\ns_cselect_b32 {st}, {O_DBG}, {st}')
    k(f'v_and_b32 {vg}, 15, {lane}\nv_lshlrev_b32 {vg}, 3, {vg}')
    vm.op(f'buffer_store_dwordx2 {zero}, {vg}, {Rws}, {st} offen sc1')
    k(f'v_lshlrev_b32 {vg}, 3, v0')
    ic = vm.op(f'buffer_load_dwordx2 {t[0:2]}, {vg}, {Rc}, 0 offen')
    ia = cj.dma(RA, srcA, strA, BUF0)
    cj.dma(RB, srcB, strB, BUF1)
    k('s_waitcnt vmcnt(37)')
    signal()
    k('s_waitcnt vmcnt(36)')
    k(f'v_lshlrev_b32 {t[2]}, 16, {t[0]}\nv_and_b32 {t[3]}, 0xffff0000, {t[0]}\nv_lshlrev_b32 {t[4]}, 16, {t[1]}\nv_and_b32 {t[5]}, 0xffff0000, {t[1]}')
    e = k.v(4)
    for i in range(4): k(f'v_mul_f32 {e[i]}, {fl(-LOG2E)}, {t[2 + i]}')
    for i in range(4): k(f'v_exp_f32 {e[i]}, {e[i]}')
    for i in range(4): k(f'v_add_f32 {e[i]}, 1.0, {e[i]}')
    for i in range(4): k(f'v_rcp_f32 {e[i]}, {e[i]}')
    for i in range(4): k(f'v_mul_f32 {e[i]}, {e[i]}, {t[2 + i]}')
    k(f'v_cvt_pk_bf16_f32 {t[0]}, {e[0]}, {e[1]}\nv_cvt_pk_bf16_f32 {t[1]}, {e[2]}, {e[3]}\nv_add_u32 {vg}, {SVEC}, {vg}')
    k(f'ds_write_b64 {vg}, {t[0:2]}\ns_waitcnt vmcnt(18) lgkmcnt(0)\ns_barrier')
    k(f'v_lshrrev_b32 {vg}, 4, {lane}\nv_lshlrev_b32 {vg}, 4, {vg}\nv_add_u32 {vg}, {SVEC}, {vg}')
    for s in range(18): lg.op(f'ds_read_b128 {sv.sub(4 * s, 4)}, {vg} offset:{64 * s}')
    ids = cj.read(BUF0, fr)
    mod_tail(ids, blkA)
    e.release(); t.release(); vg.release()

    k(f'{L_B}:')
    vm, lg = trackers(k); cj.vm, cj.lg = vm, lg
    k(f's_waitcnt vmcnt(0) lgkmcnt(0)\ns_barrier')
    RC = RA; srcC = srcA; strC = strA; dstC = blkA
    if w4_here:
        sk = k.label('nodmaC')
        k(f's_cmp_ge_u32 s2, 72\ns_cbranch_scc1 {sk}')
        srd(k, RC, P['w4'], D * F * 2)
        k(f's_mul_hi_u32 {st}, s2, {(1 << 32) // 9 + 1}\ns_mul_i32 {srcC}, {st}, 9\ns_sub_u32 {srcC}, s2, {srcC}\ns_lshl_b32 {srcC}, {srcC}, 7')
        k(f's_mul_i32 {st}, {st}, {576 * 1152}\ns_add_u32 {srcC}, {srcC}, {st}\ns_mov_b32 {strC}, 1152')
        cj.dma(RC, srcC, strC, BUF0)
        k(f'{sk}:')
    k(f's_cmp_ge_u32 {jb}, 96\ns_cbranch_scc1 {L_C}')
    il = k.s(); k(f's_sub_u32 {il}, {modeB}, 1\ns_cmp_lt_u32 {il}, 2\ns_cselect_b32 {il}, 1, 0')
    ids = cj.read(BUF1, fr, s_il=il)
    notmod, nocenter = k.label('notmod'), k.label('nocenter')
    k(f's_cmp_lg_u32 {modeB}, 0\ns_cbranch_scc1 {notmod}')
    d0 = lg.done
    mod_tail(ids, blkB)
    k(f's_branch {L_C}\n{notmod}:')
    k('s_waitcnt lgkmcnt(0)'); lg.reset()
    k(f's_cmp_eq_u32 {modeB}, 2\ns_cbranch_scc1 {nocenter}')
    ones = sv.sub(0, 4); t = k.v(4)
    for i in range(4): k(f'v_mov_b32 {ones[i]}, 0x3f803f80')
    for s in range(18): k(f'v_mfma_f32_16x16x32_bf16 {acc}, {ones}, {fr.sub(4 * s, 4)}, {"0" if s == 0 else acc}')
    nm = sv.sub(4, 2)
    k(f'v_mul_f32 {nm[0]}, {fl(-1 / 576)}, {acc[0]}')
    for i in range(0, 72, 2):
        k(f'v_lshlrev_b32 {t[0]}, 16, {fr[i]}\nv_and_b32 {t[1]}, 0xffff0000, {fr[i]}')
        k(f'v_lshlrev_b32 {t[2]}, 16, {fr[i + 1]}\nv_and_b32 {t[3]}, 0xffff0000, {fr[i + 1]}')
        k(f'v_pk_add_f32 {t[0:2]}, {t[0:2]}, {nm} op_sel_hi:[1,0]\nv_pk_add_f32 {t[2:4]}, {t[2:4]}, {nm} op_sel_hi:[1,0]')
        k(f'v_cvt_pk_bf16_f32 {fr[i]}, {t[0]}, {t[1]}\nv_cvt_pk_bf16_f32 {fr[i + 1]}, {t[2]}, {t[3]}')
    t.release()
    k(f'{nocenter}:')
    T = k.s(); j = k.s(); dst = k.s(); step = k.s(); rot = k.s()
    k(f's_lshl_b32 {T}, {blkB}, 2\ns_add_u32 {T}, {T}, {s_w}')
    k(f's_mul_hi_u32 {j}, {T}, {(1 << 32) // 6 + 1}\ns_mul_i32 {dst}, {j}, 6\ns_sub_u32 {dst}, {T}, {dst}\ns_lshl_b32 {dst}, {dst}, 10')
    k(f's_mul_i32 {step}, {j}, 110592\ns_add_u32 {dst}, {dst}, {step}')
    k(f's_mul_i32 {rot}, {j}, 3\ns_sub_u32 {rot}, 18, {rot}\ns_cmp_eq_u32 {rot}, 18\ns_cselect_b32 {rot}, 0, {rot}')
    k(f's_cmp_eq_u32 {modeB}, 1\ns_cselect_b32 {rot}, {rot}, 0\ns_cselect_b32 {step}, 0, {O_W2F - O_W1F}\ns_add_u32 {dst}, {dst}, {step}\ns_add_u32 {dst}, {dst}, {O_W1F}')
    k(f's_mul_i32 {T}, {T}, 18432\ns_add_u32 {T}, {T}, {O_W3F}')
    k(f's_cmp_eq_u32 {modeB}, 3\ns_cselect_b32 {dst}, {T}, {dst}\ns_cselect_b32 {step}, 1, 6\ns_lshl_b32 {step}, {step}, 10')
    cj.store(fr, None, Rws, dst, step, s_rot=rot)
    k(f'{L_C}:')
    if w4_here:
        vm, lg = trackers(k); cj.vm, cj.lg = vm, lg
        k(f's_cmp_ge_u32 s2, 72\ns_cbranch_scc1 {END}')
        k('s_waitcnt vmcnt(0) lgkmcnt(0)\ns_barrier')
        ids = cj.read(BUF0, fr, w4order=True)
        k(f's_lshl_b32 {T}, s2, 2\ns_add_u32 {T}, {T}, {s_w}\ns_mul_i32 {T}, {T}, 18432\ns_add_u32 {T}, {T}, {O_W4F}\ns_mov_b32 {step}, 1024')
        cj.store(fr, ids, Rws, T, step)
    k(f's_branch {END}')

TAB, KD, WSTR = 0, 17408, 19072
HB = 4 * WSTR
HSTR = 4608

def conv(k, P, lane, s_w, END, dump):
    vm, lg = trackers(k)
    cidx = k.s(); s_d = k.s(); st = k.s(); st2 = k.s(); sav = k.s(2)
    k(f's_and_b32 {cidx}, s2, 7\ns_mul_i32 {cidx}, {cidx}, 18\ns_lshr_b32 {st}, s2, 3\ns_add_u32 {cidx}, {cidx}, {st}\ns_sub_u32 {cidx}, {cidx}, 14')
    k(f's_lshl_b32 {s_d}, {cidx}, 2\ns_add_u32 {s_d}, {s_d}, {s_w}\ns_lshl_b32 {st}, {cidx}, 3')
    sdt = k.s(2); sD = k.s(2)
    k(f's_load_dwordx2 {sdt}, {P["logdt"]}, {st}\ns_load_dwordx2 {sD}, {P["Dskip"]}, {st}')
    R = k.s(4); Rws = k.s(4); Rdbg = k.s(4)
    par = k.v(4); t = k.v(8); x = k.v(16)
    k(f'v_lshlrev_b32 {t[0]}, 2, {lane}\ns_lshl_b32 {st2}, {s_d}, 8')
    for i, n in enumerate(('logA', 'Aim', 'Cr', 'Ci')):
        srd(k, R, P[n], D * 128 * 2)
        ipar = vm.op(f'buffer_load_dword {par[i]}, {t[0]}, {R}, {st2} offen')
    code_prefetch(k, vm, 'conv_code_lo', 'conv_code_hi', 12288, lane, k.v(2), k.s(2))
    k('conv_code_lo:')
    srd(k, R, P['u'], L * D * 2); srd(k, Rws, P['ws'], WS_USED); srd(k, Rdbg, P['dbg'], 256)
    k(f'v_mul_u32_u24 {t[0]}, {8 * 1152}, v0\nv_add_u32 {t[1]}, {4 * 1152}, {t[0]}')
    for i in range(8): ix = vm.op(f'buffer_load_dwordx2 {x.sub(2 * i, 2)}, {t[i // 4]}, {R}, {st} offen offset:{(i % 4) * 1152}')
    wb = k.s(); k(f's_mul_i32 {wb}, {s_w}, {WSTR}')
    q = k.v(); m = k.v()
    k(f'v_lshrrev_b32 {q}, 4, {lane}\nv_and_b32 {m}, 15, {lane}')
    ga = k.v(32); cst = k.v()
    k(f's_add_u32 {st2}, {wb}, {KD - 2 * (134 * 128 - 128)}\nv_mov_b32 {cst}, {st2}')
    k(f'v_lshlrev_b32 {t[2]}, 3, {lane}\nv_cvt_f32_u32 {t[2]}, {t[2]}')
    for c in range(4):
        for e in range(0, 8, 2):
            k(f'v_add_f32 {t[4]}, {fl(512 * c + e)}, {t[2]}\nv_add_f32 {t[5]}, {fl(512 * c + e + 1)}, {t[2]}\nv_cvt_pk_bf16_f32 {t[4]}, {t[4]}, {t[5]}')
            k(f'v_mad_u32_u16 {ga[8 * c + e]}, {t[4]}, 2, {cst}\nv_mad_u32_u16 {ga[8 * c + e + 1]}, {t[4]}, 2, {cst} op_sel:[1,0,0,0]')
    k(f's_add_u32 {st2}, {wb}, {KD}\nv_lshl_add_u32 {t[4]}, {lane}, 4, {st2}\nv_cmp_gt_u32 vcc, 16, {lane}')
    for e in range(8): k(f'v_add_u32 {t[5]}, {2 * e}, {t[4]}\nv_cndmask_b32 {ga[e]}, {ga[e]}, {t[5]}, vcc')
    VM = vmaps()
    kda = k.v(4)
    k(f'v_lshlrev_b32 {t[2]}, 2, {m}')
    for s in range(4):
        lut = sum((VM[s][j] >> s) << (4 * j) for j in range(16))
        base = 0 if s == 0 else 128 + 128 * s
        k(f's_mov_b32 {sav[0]}, {lut & 0xffffffff}\ns_mov_b32 {sav[1]}, {lut >> 32}\nv_lshrrev_b64 {t[4:6]}, {t[2]}, {sav}\nv_and_b32 {t[4]}, 15, {t[4]}')
        k(f'v_lshl_add_u32 {t[4]}, {q}, 6, {t[4]}\ns_add_u32 {st2}, {wb}, {KD + 2 * base}\nv_lshl_add_u32 {kda[s]}, {t[4]}, 1, {st2}')
    cst.release()
    atw = k.v(); atr = k.v()
    k(f'v_lshl_add_u32 {atw}, {lane}, 3, {wb}\nv_mul_u32_u24 {atr}, 544, {m}\nv_lshl_add_u32 {atr}, {q}, 4, {atr}\nv_add_u32 {atr}, {wb}, {atr}')
    z4 = k.v(4)
    for i in range(4): k(f'v_mov_b32 {z4[i]}, 0')
    k(f'v_lshrrev_b32 {t[4]}, 5, v0\nv_mul_u32_u24 {t[4]}, {HSTR}, {t[4]}\nv_and_b32 {t[5]}, 31, v0\nv_lshl_add_u32 {t[4]}, {t[5]}, 4, {t[4]}\nv_add_u32 {t[4]}, {HB}, {t[4]}')
    k(f'v_cmp_gt_u32 vcc, 128, v0\ns_and_saveexec_b64 {sav}, vcc\nds_write_b128 {t[4]}, {z4}\ns_mov_b64 exec, {sav}')
    k('s_waitcnt lgkmcnt(0)')
    k(f's_lshl_b32 {st2}, {s_w}, 4\ns_lshr_b64 {sdt}, {sdt}, {st2}\ns_lshl_b32 {sdt[0]}, {sdt[0]}, 16')
    dt = k.v(); ks = k.v()
    k(f'v_mov_b32 {dt}, {fl(LOG2E)}\nv_mul_f32 {dt}, {sdt[0]}, {dt}\nv_exp_f32 {dt}, {dt}\nv_cvt_pk_bf16_f32 {dt}, {dt}, {dt}\nv_and_b32 {dt}, 0xffff0000, {dt}')
    vm.wait(ipar)
    pr = lambda: [k.v(2), k.v(2)]
    w1, w16, U = pr(), pr(), pr()
    er = k.v(2); rev = k.v(2)
    un = lambda d, s_, hi: f'v_and_b32 {d}, 0xffff0000, {s_}' if hi else f'v_lshlrev_b32 {d}, 16, {s_}'
    for md in range(2):
        k(un(er[md], par[0], md)); k(un(rev[md], par[1], md)); k(un(U[md][0], par[2], md)); k(un(U[md][1], par[3], md))
    for md in range(2): k(f'v_mul_f32 {er[md]}, {fl(LOG2E)}, {er[md]}')
    for md in range(2): k(f'v_exp_f32 {er[md]}, {er[md]}')
    k(f'v_max3_f32 {t[0]}, |{U[0][0]}|, |{U[0][1]}|, |{U[1][0]}|\nv_max_f32 {t[0]}, |{U[1][1]}|, {t[0]}')
    k(f'v_cvt_pk_bf16_f32 {t[1]}, {er[0]}, {er[1]}')
    for mm in ('quad_perm:[1,0,3,2]', 'quad_perm:[2,3,0,1]', 'row_half_mirror', 'row_mirror'):
        k(f'v_max_f32_dpp {t[0]}, {t[0]}, {t[0]} {mm} row_mask:0xf bank_mask:0xf')
    for md in range(2):
        k(un(er[md], t[1], md))
        k(f'v_mul_f32 {er[md]}, {er[md]}, {dt}\nv_mul_f32 {rev[md]}, {rev[md]}, {dt}')
        k(f'v_mul_f32 {er[md]}, {fl(-LOG2E)}, {er[md]}\nv_mul_f32 {rev[md]}, 0.15915494, {rev[md]}')
    k(f'v_readlane_b32 {st2}, {t[0]}, 0\nv_readlane_b32 {sav[0]}, {t[0]}, 16\nv_readlane_b32 {sav[1]}, {t[0]}, 32\nv_readlane_b32 {st}, {t[0]}, 48')
    k(f's_max_u32 {st2}, {st2}, {sav[0]}\ns_max_u32 {st}, {st}, {sav[1]}\ns_max_u32 {st2}, {st2}, {st}')
    for w_, mul in ((w1, None), (w16, '16.0')):
        for md in range(2):
            a, b = t[2 + 2 * md], t[3 + 2 * md]
            if mul: k(f'v_mul_f32 {a}, {fl(16.)}, {er[md]}\nv_mul_f32 {b}, {fl(16.)}, {rev[md]}\nv_fract_f32 {b}, {b}\nv_exp_f32 {a}, {a}')
            else: k(f'v_fract_f32 {b}, {rev[md]}\nv_exp_f32 {a}, {er[md]}')
            k(f'v_cos_f32 {w_[md][0]}, {b}\nv_sin_f32 {w_[md][1]}, {b}')
        for md in range(2): k(f'v_pk_mul_f32 {w_[md]}, {w_[md]}, {t.sub(2 + 2 * md, 2)} op_sel_hi:[1,0]')
    k(f'v_frexp_exp_i32_f32 {t[0]}, {st2}\nv_sub_u32 {t[1]}, 8, {t[0]}\nv_add_u32 {t[0]}, -7, {t[0]}\nv_ldexp_f32 {ks}, {dt}, {t[0]}')
    for md in range(2):
        for c in range(2): k(f'v_ldexp_f32 {U[md][c]}, {U[md][c]}, {t[1]}')
    er.release(); rev.release(); dt.release()
    tm = [k.v(2) for _ in range(4)]
    def cmul(d, z, s_, tmp):
        return [f'v_pk_mul_f32 {tmp}, {z}, {s_} op_sel:[0,0] op_sel_hi:[1,0]',
                f'v_pk_fma_f32 {d}, {z}, {s_}, {tmp} op_sel:[1,1,0] op_sel_hi:[0,1,1] neg_lo:[1,0,0]']
    w32, w64, w128, w2, w4, w8, V = pr(), pr(), pr(), pr(), pr(), pr(), pr()
    for d_, s_ in ((w32, w16), (w64, w32), (w128, w64)):
        for x_ in interleave(cmul(d_[0], s_[0], s_[0], tm[0]), cmul(d_[1], s_[1], s_[1], tm[1])): k(x_)
    pv = [k.v(2), k.v(2)]; pu = [k.v(2), k.v(2)]
    fa = k.v(32, 4); fb = k.v(32, 4); kacc = k.v(16, 4)
    state = {'V': None, 'U': U, 'nv': 0, 'nu': 0}
    def v_entry(val, slot):
        out = []
        pk = pv[state['nv'] & 1]; state['nv'] += 1
        if val == 0:
            out += [f'v_mov_b32 {pk[0]}, 0x3c00', f'v_mov_b32 {pk[1]}, 0x3c00']
        else:
            if val == 1: cur = w1
            else:
                step = w1 if val <= 16 else w2 if val <= 32 else w4 if val <= 64 else w8
                cur = {2: w2, 4: w4, 8: w8}.get(val, V)
                out += interleave(cmul(cur[0], state['V'][0], step[0], tm[0]), cmul(cur[1], state['V'][1], step[1], tm[1]))
            state['V'] = cur
            out += [f'v_cvt_pk_f16_f32 {pk[md]}, {cur[md][0]}, {cur[md][1]}' for md in range(2)]
        out.append(('ds', f'ds_write_b64 {atw}, {pk} offset:{TAB + slot * 544}'))
        return out
    def u_entry(val, row):
        out = []
        pk = pu[state['nu'] & 1]; state['nu'] += 1
        if val:
            step = w16 if val <= 256 else w32 if val <= 512 else w64 if val <= 1024 else w128
            out += interleave(cmul(U[0], U[0], step[0], tm[2]), cmul(U[1], U[1], step[1], tm[3]))
        out += [f'v_cvt_pk_f16_f32 {pk[md]}, {U[md][0]}, -{U[md][1]}' for md in range(2)]
        out.append(('ds', f'ds_write_b64 {atw}, {pk} offset:{TAB + (16 + row) * 544}'))
        return out
    def put(x_):
        if isinstance(x_, tuple): return lg.op(x_[1])
        k(x_)
    pend = []
    ifl = None
    fl_v = k.v(2)
    for s in range(4):
        vs = sorted((VM[s][j], j) for j in range(16) if s == 0 or VM[s][j] != VM[s - 1][j])
        us = [16 * u for u in range(16)] if s == 0 else [(128 << s) + (16 << s) * u for u in range(9 if s == 3 else 8)]
        sv_ = [x_ for val, j in vs for x_ in v_entry(val, j)]
        su_ = [x_ for r_, val in enumerate(us) for x_ in u_entry(val, r_)]
        stream = interleave(sv_, su_)
        for n_, x_ in enumerate(stream):
            put(x_)
            if pend and n_ >= 8 and n_ % 4 == 0:
                idr, mf = pend.pop(0); lg.wait(idr); k(mf)
        assert not pend
        for kk in range(8):
            lg.op(f'ds_read_b128 {fa.sub(4 * kk, 4)}, {atr} offset:{TAB + 16 * 544 + 64 * kk}')
            i_ = lg.op(f'ds_read_b128 {fb.sub(4 * kk, 4)}, {atr} offset:{TAB + 64 * kk}')
            ac = kacc.sub(4 * s, 4)
            pend.append((i_, f'v_mfma_f32_16x16x32_f16 {ac}, {fa.sub(4 * kk, 4)}, {fb.sub(4 * kk, 4)}, {"0" if kk == 0 else ac}'))
        if s == 2:
            k(f'v_lshlrev_b32 {t[0]}, 7, {lane}')
            ifl = vm.op(f'buffer_load_dword {fl_v[0]}, {t[0]}, {Rdbg}, 0 offen offset:64 sc1')
    for x_ in (w1, w16, w32, w64, w128, w2, w4, w8, V, U, tm, pv, pu):
        for y_ in x_: y_.release()
    sg = k.v(16, 4); mg = k.v(24, 4); cnt = k.s()
    def kd_out(s):
        ac = kacc.sub(4 * s, 4)
        for e in range(4): k(f'v_mul_f32 {ac[e]}, {ks}, {ac[e]}')
        k(f'v_cvt_pk_bf16_f32 {ac[0]}, {ac[0]}, {ac[1]}\nv_cvt_pk_bf16_f32 {ac[2]}, {ac[2]}, {ac[3]}')
        for e in range(4): lg.op(f'ds_write_b16{"_d16_hi" if e & 1 else ""} {kda[s]}, {ac[e & 2]} offset:{32 * e}')
    for s in range(3): kd_out(s)
    lp, ok = k.label('pollc'), k.label('cleared')
    k(f's_mov_b32 {cnt}, 0')
    vm.wait(ifl)
    k(f'{lp}:\nv_readlane_b32 {st}, {fl_v[0]}, 0\nv_readlane_b32 {st2}, {fl_v[0]}, 1\ns_add_u32 {st}, {st}, {st2}\ns_cmp_ge_u32 {st}, {N_SIG}\ns_cbranch_scc1 {ok}')
    k(f's_add_u32 {cnt}, {cnt}, 1\ns_cmp_ge_u32 {cnt}, {SPIN_MAX}\ns_cbranch_scc1 {END}')
    k(f'buffer_load_dword {fl_v[0]}, {t[0]}, {Rdbg}, 0 offen offset:64 sc1\ns_waitcnt vmcnt(0)\ns_branch {lp}\n{ok}:')
    ag = k.v(); am = k.v(); smg = k.s(3, 1)
    k(f'v_lshlrev_b32 {ag}, 6, v0\nv_add_u32 {ag}, {O_STATS}, {ag}\nv_mov_b32 {am}, 0\ns_lshl_b32 {st}, {cidx}, 5')
    for i in range(3): k(f's_add_u32 {smg[i]}, {st}, {O_MODG + i * 576 * 8}')
    def gran_loads():
        for i in range(4): vm.op(f'buffer_load_dwordx4 {sg.sub(4 * i, 4)}, {ag}, {Rws}, 0 offen offset:{16 * i} sc1')
        for i in range(6): vm.op(f'buffer_load_dwordx4 {mg.sub(4 * i, 4)}, {am}, {Rws}, {smg[i // 2]} offen offset:{16 * (i & 1)} sc1')
    gran_loads()
    while pend:
        idr, mf = pend.pop(0); lg.wait(idr); k(mf)
    kd_out(3)
    kc = fa.sub(0, 16); pvv = fa.sub(16, 8)
    gid = [lg.op(f'ds_read_u16 {ga[e]}, {ga[e]}') for e in range(32)]
    aw = kda[0]; ap = kda[1]
    k(f'v_lshl_add_u32 {aw}, {lane}, 4, {wb}\nv_lshrrev_b32 {ap}, 1, {lane}\nv_mul_u32_u24 {ap}, 4160, {ap}\nv_and_b32 {t[1]}, 1, {lane}')
    k(f'v_lshl_add_u32 {ap}, {t[1]}, 4, {ap}\nv_add_u32 {ap}, {wb}, {ap}')
    k(f's_mov_b64 exec, 0xff'); lg.op(f'ds_write_b128 {ap}, {z4}'); k('s_mov_b64 exec, -1')
    for c in range(4):
        lg.wait(gid[8 * c + 7])
        for e in range(4): k(f'v_lshl_or_b32 {kc[4 * c + e]}, {ga[8 * c + 2 * e + 1]}, 16, {ga[8 * c + 2 * e]}')
        lg.op(f'ds_write_b128 {aw}, {kc.sub(4 * c, 4)} offset:{32 + 1024 * c}')
    ids = [lg.op(f'ds_read_b64 {pvv.sub(2 * c, 2)}, {aw} offset:{24 + 1024 * c}') for c in range(4)]
    for c in range(4):
        lg.wait(ids[c])
        o = fb.sub(12 * (c & 1), 12); d_ = kc.sub(4 * c, 4); p0, p1 = pvv[2 * c], pvv[2 * c + 1]
        seq = [p0, p1, d_[0], d_[1], d_[2], d_[3]]
        o3 = o.sub(0, 4); o1 = o.sub(4, 4); o2 = o.sub(8, 4)
        for i in range(4): k(f'v_alignbit_b32 {o3[i]}, {seq[i + 1]}, {seq[i]}, 16')
        for i in range(3): k(f'v_mov_b32 {o1[i]}, {o3[i + 1]}')
        k(f'v_alignbit_b32 {o1[3]}, {seq[5]}, {seq[4]}, 16')
        for i in range(4): k(f'v_mov_b32 {o2[i]}, {seq[i + 1]}')
        for r_, oo in ((1, o1), (2, o2), (3, o3)): lg.op(f'ds_write_b128 {aw}, {oo} offset:{4160 * r_ + 32 + 1024 * c}')
    if dump:
        k(f's_lshl_b32 {st}, {s_d}, 12\ns_add_u32 {st}, {st}, {O_DBG}\nv_lshlrev_b32 {t[1]}, 4, {lane}')
        for c in range(4): vm.op(f'buffer_store_dwordx4 {kc.sub(4 * c, 4)}, {t[1]}, {Rws}, {st} offen offset:{1024 * c}')
    ga.release(); kacc.release(); fl_v.release(); ks.release(); atw.release(); atr.release()
    lp, ok = k.label('pollg'), k.label('got')
    k(f'{lp}:\ns_waitcnt vmcnt(0)'); vm.reset()
    k(f'v_and_b32 {t[0]}, {sg[1]}, {sg[3]}')
    tags = [sg[i] for i in range(5, 16, 2)] + [mg[i] for i in range(1, 24, 2)]
    for i in range(0, len(tags), 2): k(f'v_bitop3_b32 {t[0]}, {t[0]}, {tags[i]}, {tags[i + 1]} bitop3:0x80')
    k(f'v_cmp_ne_u32 vcc, 1, {t[0]}\ns_cmp_eq_u64 vcc, 0\ns_cbranch_scc1 {ok}')
    k(f's_add_u32 {cnt}, {cnt}, 1\ns_cmp_ge_u32 {cnt}, {SPIN_MAX}\ns_cbranch_scc1 {END}')
    gran_loads(); vm.reset()
    k(f's_branch {lp}\n{ok}:')
    xf = k.v(32); hf = k.v(32); md_ = k.v(12); st_ = k.v(16)
    for sl in range(3):
        for c in range(4): k(f'v_mov_b32 {md_[4 * sl + c]}, {mg[8 * sl + 2 * c]}')
    for i in range(8): k(f'v_and_b32 {st_[2 * i]}, 0xffff0000, {sg[2 * i]}\nv_lshlrev_b32 {st_[2 * i + 1]}, 16, {sg[2 * i]}')
    for i in range(8): k(f'v_rcp_f32 {st_[2 * i]}, {st_[2 * i]}')
    for i in range(16): k(f'v_lshlrev_b32 {xf[2 * i]}, 16, {x[i]}\nv_and_b32 {xf[2 * i + 1]}, 0xffff0000, {x[i]}')
    for i in range(8): k(f'v_mul_f32 {st_[2 * i + 1]}, -{st_[2 * i + 1]}, {st_[2 * i]}')
    for i in range(16): k(f'v_pk_fma_f32 {hf.sub(2 * i, 2)}, {xf.sub(2 * i, 2)}, {st_.sub(2 * (i // 2), 2)}, {st_.sub(2 * (i // 2), 2)} op_sel:[0,0,1] op_sel_hi:[1,0,1]')
    for i in range(16): k(f'v_pk_fma_f32 {hf.sub(2 * i, 2)}, {hf.sub(2 * i, 2)}, {md_.sub(4 + 2 * (i & 1), 2)}, {md_.sub(2 * (i & 1), 2)}')
    k(f'v_lshlrev_b32 {ag}, 4, v0\nv_add_u32 {am}, {HB + 512}, {ag}')
    for c in range(4):
        o = x.sub(4 * c, 4)
        for i in range(4): k(f'v_cvt_pk_bf16_f32 {o[i]}, {hf[8 * i + c]}, {hf[8 * i + 4 + c]}')
        lg.op(f'ds_write_b128 {am}, {o} offset:{HSTR * c}')
    st_.release(); sg.release(); mg.release()
    aA = kda[2]; aB = kda[3]
    k(f'v_bfe_u32 {t[0]}, {lane}, 2, 2\nv_mul_u32_u24 {aA}, 4160, {t[0]}\nv_and_b32 {t[0]}, 3, {lane}\nv_lshl_add_u32 {aA}, {t[0]}, 3, {aA}')
    k(f'v_lshlrev_b32 {t[0]}, 4, {q}\nv_sub_u32 {aA}, {aA}, {t[0]}\ns_add_u32 {st}, {wb}, 56\nv_add_u32 {aA}, {st}, {aA}')
    k(f's_mul_i32 {st}, {s_w}, {HSTR}\ns_add_u32 {st}, {st}, {HB + 480}\nv_lshl_add_u32 {aB}, {m}, 5, {t[0]}\nv_add_u32 {aB}, {st}, {aB}')
    lg.all(); k('s_barrier')
    fa2 = k.a(32, 4); fb2 = k.a(32, 4); acc = k.v(32, 4)
    sets = [(fa, fb), (fa2, fb2)]
    def reads(st_, aoff, boff):
        A_, B_ = sets[st_]; out = []
        for i in range(8):
            out.append(f'ds_read_b128 {B_.sub(4 * i, 4)}, {aB} offset:{boff + 512 * i}')
            out.append(f'ds_read_b64_tr_b16 {A_.sub(4 * i, 2)}, {aA} offset:{aoff + 8 + 512 * i}')
            out.append(f'ds_read_b64_tr_b16 {A_.sub(4 * i + 2, 2)}, {aA} offset:{aoff + 512 * i}')
        return out
    for x_ in reads(0, 0, 0): k(x_)
    for i in range(32): k(f'v_mov_b32 {acc[i]}, 0')
    k(f'v_add_u32 {aB}, -128, {aB}\ns_mov_b32 {cnt}, 4')
    lp = k.label('conv')
    k(f'{lp}:')
    for half in range(2):
        rd = reads(1 - half, 64 * (half + 1), 64 * (1 - half))
        A_, B_ = sets[half]
        k('s_waitcnt lgkmcnt(0)')
        n_ = 0
        for i in range(8):
            for tt in range(i, 8):
                k(f'v_mfma_f32_16x16x32_bf16 {acc.sub(4 * tt, 4)}, {A_.sub(4 * i, 4)}, {B_.sub(4 * (tt - i), 4)}, {acc.sub(4 * tt, 4)}')
                if n_ < 24: k(rd[n_])
                n_ += 1
    k(f'v_add_u32 {aA}, 128, {aA}\nv_add_u32 {aB}, -128, {aB}\ns_sub_u32 {cnt}, {cnt}, 1\ns_cmp_lg_u32 {cnt}, 0\ns_cbranch_scc1 {lp}')
    k('s_waitcnt lgkmcnt(0)')
    k(f'v_lshlrev_b32 {t[0]}, 3, {q}\nv_lshl_add_u32 {t[0]}, {m}, 5, {t[0]}\nv_add_u32 {t[0]}, {wb}, {t[0]}')
    for tt in range(8):
        o = fa.sub(2 * tt, 2)
        k(f'v_cvt_pk_bf16_f32 {o[0]}, {acc[4 * tt]}, {acc[4 * tt + 1]}\nv_cvt_pk_bf16_f32 {o[1]}, {acc[4 * tt + 2]}, {acc[4 * tt + 3]}')
        k(f'ds_write_b64 {t[0]}, {o} offset:{512 * tt}')
    dv = t.sub(4, 4)
    k(f's_lshl_b32 {st}, {sD[0]}, 16\ns_and_b32 {st2}, {sD[0]}, 0xffff0000\nv_mov_b32 {dv[0]}, {st}\nv_mov_b32 {dv[1]}, {st2}')
    k(f's_lshl_b32 {st}, {sD[1]}, 16\ns_and_b32 {st2}, {sD[1]}, 0xffff0000\nv_mov_b32 {dv[2]}, {st}\nv_mov_b32 {dv[3]}, {st2}')
    k('s_waitcnt lgkmcnt(0)\ns_barrier')
    lg.reset()
    yp = fb.sub(0, 16); yf = acc
    ids = [lg.op(f'ds_read_b128 {yp.sub(4 * c, 4)}, {ag} offset:{WSTR * c}') for c in range(4)]
    k(f'v_lshlrev_b32 {am}, 6, v0\ns_lshl_b32 {st}, {cidx}, 14\ns_add_u32 {st}, {st}, {O_X2}')
    for c in range(4):
        lg.wait(ids[c])
        for i in range(4): k(f'v_lshlrev_b32 {yf[8 * i + c]}, 16, {yp[4 * c + i]}\nv_and_b32 {yf[8 * i + 4 + c]}, 0xffff0000, {yp[4 * c + i]}')
    for i in range(4):
        for j in range(4 * i, 4 * i + 4): k(f'v_pk_fma_f32 {yf.sub(2 * j, 2)}, {hf.sub(2 * j, 2)}, {dv.sub(2 * (j & 1), 2)}, {yf.sub(2 * j, 2)}')
        for j in range(4 * i, 4 * i + 4): k(f'v_pk_fma_f32 {yf.sub(2 * j, 2)}, {yf.sub(2 * j, 2)}, {md_.sub(8 + 2 * (j & 1), 2)}, {xf.sub(2 * j, 2)}')
        for j in range(4): k(f'v_cvt_pk_bf16_f32 {x[4 * i + j]}, {yf[8 * i + 2 * j]}, {yf[8 * i + 2 * j + 1]}')
        k(f'buffer_store_dwordx4 {x.sub(4 * i, 4)}, {am}, {Rws}, {st} offen offset:{16 * i}')
    k('conv_code_hi:')

def build_k1(w4_here=True, dump=False):
    k = Kern('k1_kernel', nv=256, na=64)
    END = 'k1_end'
    k(f's_cmp_ge_u32 s2, 256\ns_cbranch_scc1 {END}')
    P = kernargs(k)
    lane = k.v(); s_w = k.s()
    k(f'v_lshrrev_b32 {lane}, 6, v0\nv_readfirstlane_b32 {s_w}, {lane}\nv_and_b32 {lane}, 63, v0')
    k('s_waitcnt lgkmcnt(0)\ns_cmp_ge_u32 s2, 112\ns_cbranch_scc1 k1_conv')
    fv, fs = list(k.V.free), list(k.S.free)
    service(k, P, lane, s_w, END, w4_here)
    k.V.free, k.S.free = fv, fs
    k('k1_conv:')
    conv(k, P, lane, s_w, END, dump)
    k(f'{END}:\ns_endpgm')
    k.finish()
    return k

if __name__ == '__main__':
    k = build_k1(dump=True)
    print('k1 lines', len(k.l), 'nops', k.nops, 'regs', k.counts(), 'sgpr top', k.S.top)
    open('k1.s', 'w').write(module([k], 136))
```

```python
from common import *

K2_LDS = 147456
WBUF, TABS = 0, 110592
T_S, T_G, T_GB = TABS, TABS + 4608, TABS + 9216
XBUF, HBUF = 0, 73728
SPIN_MAX = 40000
GC1 = -2.0 * LOG2E * 0.7978845608028654
GC2 = GC1 * 0.044715
PI = [0, 1, 2, 3, 5, 6, 7, 9, 10, 11, 12, 14, 15, 16, 4, 8, 13, 17]
MF = 'v_mfma_f32_16x16x32_bf16'

def un(d, s_, hi): return f'v_and_b32 {d}, 0xffff0000, {s_}' if hi else f'v_lshlrev_b32 {d}, 16, {s_}'

def sigma_bf16(k, mean, var):
    k(f'v_mul_f32 {mean}, {fl(1 / 576)}, {mean}\nv_mul_f32 {var}, {fl(1 / 576)}, {var}')
    k(f'v_fma_f32 {var}, -{mean}, {mean}, {var}\nv_max_f32 {var}, 0, {var}')
    k(f'v_cvt_pk_bf16_f32 {var}, {var}, {var}\nv_and_b32 {var}, 0xffff0000, {var}\nv_add_f32 {var}, {fl(1e-5)}, {var}')
    k(f'v_cvt_pk_bf16_f32 {var}, {var}, {var}\nv_and_b32 {var}, 0xffff0000, {var}\nv_sqrt_f32 {var}, {var}')

def gelu_consts(k, sig, c):
    k(f'v_mov_b32 {c[2]}, {sig}\nv_rcp_f32 {c[0]}, {sig}')
    k(f'v_mul_f32 {c[1]}, {c[0]}, {c[0]}\nv_mul_f32 {c[1]}, {c[1]}, {c[0]}')
    k(f'v_mul_f32 {c[0]}, {fl(GC1)}, {c[0]}\nv_mul_f32 {c[1]}, {fl(GC2)}, {c[1]}')

def stamp(k, R, slot, st2, tv, on):
    if not on: return
    k(f's_memrealtime {st2}\ns_waitcnt lgkmcnt(0)\nv_mov_b32 {tv[0]}, {st2[0]}\ns_lshl_b32 {st2[0]}, s2, 6\ns_add_u32 {st2[0]}, {st2[0]}, {O_DBG + 0x400000 + 4 * slot}')
    k(f'v_mov_b32 {tv[1]}, 0\nbuffer_store_dword {tv[0]}, {tv[1]}, {R}, {st2[0]} offen')

def build_k2(stamps=False):
    k = Kern('k2_kernel', nv=256, na=256)
    END = 'k2_end'
    k(f's_cmp_ge_u32 s2, 256\ns_cbranch_scc1 {END}')
    P = kernargs(k)
    lane = k.v(); s_w = k.s(); q = k.v(); m = k.v(); l16 = k.v()
    k(f'v_lshrrev_b32 {lane}, 6, v0\nv_readfirstlane_b32 {s_w}, {lane}\nv_and_b32 {lane}, 63, v0')
    k(f'v_lshrrev_b32 {q}, 4, {lane}\nv_and_b32 {m}, 15, {lane}\nv_lshlrev_b32 {l16}, 4, {lane}')
    rb = k.s(); jm = k.s(); mb = k.s(); fs = k.s(); st = k.s(); st1 = k.s(); sav = k.s(2); cnt = k.s(); mt = k.s()
    k(f's_and_b32 {st}, s2, 1\ns_lshl_b32 {mb}, {st}, 4\ns_bfe_u32 {st}, s2, 0x20001\ns_lshl_b32 {fs}, {st}, 1\ns_lshl_b32 {rb}, {st}, 2\ns_add_u32 {rb}, {rb}, {mb}')
    k(f's_bfe_u32 {st}, s2, 0x20003\ns_add_u32 {rb}, {rb}, {st}\ns_lshr_b32 {jm}, s2, 5')
    k(f's_bfe_u32 {st}, s2, 0x40003\ns_add_u32 {mb}, {mb}, {st}\ns_lshr_b32 {st}, s2, 7\ns_add_u32 {fs}, {fs}, {st}')
    k(f's_lshl_b32 {mt}, {rb}, 2\ns_add_u32 {mt}, {mt}, {s_w}\ns_mov_b32 {cnt}, 0')
    Rws = k.s(4); RG = k.s(4); RW = k.s(4)
    one = k.v(); zero = k.v(); k(f'v_mov_b32 {one}, 1\nv_mov_b32 {zero}, 0')
    tv = k.v(2); ts = k.s(2)
    k('s_waitcnt lgkmcnt(0)')
    srd(k, Rws, P['ws'], WS_USED); srd(k, RW, P['ws'], WS_USED); srd(k, RG, P['ws'], L * D * 2, O_G)
    vm, lg = trackers(k)
    def STAMP(i):
        if stamps:
            stamp(k, Rws, i, ts, tv, True); vm.n += 1; lg.reset()
    def flag_add(s_idx, base):
        k(f's_lshl_b32 {st}, {s_idx}, 7\ns_add_u32 {st}, {st}, {base}\ns_mov_b64 exec, 1')
        vm.op(f'buffer_atomic_add {one}, {zero}, {Rws}, {st} offen sc1')
        k('s_mov_b64 exec, -1')
    def poll(vaddr, base, target):
        fv = k.v(); lp, ok = k.label('poll'), k.label('ok')
        k(f's_mov_b32 {st1}, {base}\n{lp}:\nbuffer_load_dword {fv}, {vaddr}, {Rws}, {st1} offen sc1\ns_waitcnt vmcnt(0)')
        k(f'v_cmp_gt_u32 vcc, {target}, {fv}\ns_cmp_eq_u64 vcc, 0\ns_cbranch_scc1 {ok}')
        k(f's_add_u32 {cnt}, {cnt}, 1\ns_cmp_lt_u32 {cnt}, {SPIN_MAX}\ns_cbranch_scc1 {lp}\ns_branch {END}\n{ok}:')
        vm.reset(); fv.release()
    STAMP(0)
    k(f's_cmp_ge_u32 {jm}, 6\ns_cbranch_scc1 k2_phase_e')
    keepV, keepA, keepS = list(k.V.free), list(k.A.free), list(k.S.free)

    X = k.v(72, 4); t = k.v(8); row = k.v()
    k(f's_lshl_b32 {st}, {mt}, 4\nv_add_u32 {row}, {st}, {m}')
    k(f'v_lshlrev_b32 {t[0]}, 15, {q}\nv_lshl_add_u32 {t[0]}, {row}, 3, {t[0]}\nv_add_u32 {t[1]}, 0x4000, {t[0]}')
    k(f's_mul_i32 {st1}, {jm}, 3')
    ix = []
    for i in range(18):
        k(f's_lshl_b32 {st}, {st1}, 17\ns_add_u32 {st}, {st}, {O_X2}')
        vm.op(f'buffer_load_dwordx2 {X.sub(4 * i, 2)}, {t[0]}, {Rws}, {st} offen')
        ix.append(vm.op(f'buffer_load_dwordx2 {X.sub(4 * i + 2, 2)}, {t[1]}, {Rws}, {st} offen'))
        if i < 17: k(f's_add_u32 {st1}, {st1}, 1\ns_cmp_eq_u32 {st1}, 18\ns_cselect_b32 {st1}, 0, {st1}')
    sm = k.s(); so = k.s()
    k(f's_mul_i32 {st}, {s_w}, 192\ns_mul_i32 {sm}, {s_w}, 3072\ns_mov_b32 {so}, {O_MOD2}')
    for i in range(3):
        k(f'v_add_u32 {t[2]}, {st}, {lane}\nv_cmp_le_u32 vcc, 144, {t[2]}\nv_subrev_u32 {t[3]}, 144, {t[2]}\nv_cndmask_b32 {t[3]}, {t[2]}, {t[3]}, vcc')
        k(f'v_cmp_le_u32 vcc, 432, {t[2]}\nv_subrev_u32 {t[4]}, 144, {t[3]}\nv_cndmask_b32 {t[3]}, {t[3]}, {t[4]}, vcc\nv_lshlrev_b32 {t[3]}, 4, {t[3]}')
        k(f's_add_u32 m0, {sm}, {TABS + 1024 * i}\ns_add_u32 {st}, {st}, 64')
        vm.op(f'buffer_load_dwordx4 {t[3]}, {Rws}, {so} offen lds')
    def wdma(base, n0, n1):
        ids = []
        for n in range(n0, n1):
            if n == 0: k(f's_mul_i32 {so}, {jm}, 110592\ns_lshl_b32 {sm}, {s_w}, 10\ns_add_u32 {so}, {so}, {sm}\ns_add_u32 {so}, {so}, {base}')
            else: k(f's_add_u32 {so}, {so}, 4096')
            k(f's_add_u32 m0, {sm}, {WBUF + 4096 * n}')
            ids.append(vm.op(f'buffer_load_dwordx4 {l16}, {Rws}, {so} offen lds'))
        return ids
    iw = wdma(O_W1F, 0, 18)
    ones = k.v(4, 4); sacc = k.v(4, 4); gacc = k.v(4, 4)
    for i in range(4): k(f'v_mov_b32 {ones[i]}, 0x3f803f80')
    msk = [k.s(2) for _ in range(3)]; bidx = k.v()
    k(f'v_and_b32 {t[2]}, 3, {m}')
    for e in range(3): k(f'v_cmp_eq_u32 {msk[e]}, {e + 1}, {t[2]}')
    k(f'v_lshrrev_b32 {t[2]}, 2, {m}\nv_lshl_add_u32 {t[2]}, {t[2]}, 4, {m}\nv_lshlrev_b32 {bidx}, 2, {t[2]}')
    aT = k.v(); aW = k.v(2)
    k(f's_mul_i32 {st}, {jm}, 384\ns_add_u32 {st}, {st}, {TABS}\nv_lshl_add_u32 {aT}, {q}, 5, {st}')
    k(f'v_mov_b32 {aW[0]}, {l16}\nv_add_u32 {aW[1]}, {9 * 6144}, {l16}')
    for i in range(18):
        vm.wait(ix[i])
        xs = X.sub(4 * i, 4)
        k(f'{MF} {sacc}, {ones}, {xs}, {"0" if i == 0 else sacc}\n{MF} {gacc}, {xs}, {xs}, {"0" if i == 0 else gacc}')
        if i == 8: iw += wdma(O_W1F, 18, 27)
    def diag(dst_sum, dst_sq):
        k(f'v_cndmask_b32 {dst_sq}, {gacc[0]}, {gacc[1]}, {msk[0]}\nv_cndmask_b32 {dst_sq}, {dst_sq}, {gacc[2]}, {msk[1]}\nv_cndmask_b32 {dst_sq}, {dst_sq}, {gacc[3]}, {msk[2]}')
        i_ = lg.op(f'ds_bpermute_b32 {dst_sq}, {bidx}, {dst_sq}')
        k(f'v_mov_b32 {dst_sum}, {sacc[0]}')
        lg.wait(i_)
    TB = [k.v(16, 4), k.v(16, 4)]
    WR = [k.a(24, 4), k.a(24, 4)]
    def t_reads(i):
        b = TB[i & 1]
        return [f'ds_read_b128 {b.sub(0, 4)}, {aT} offset:{4608 + 128 * i}', f'ds_read_b128 {b.sub(8, 4)}, {aT} offset:{128 * i}',
                f'ds_read_b128 {b.sub(4, 4)}, {aT} offset:{4608 + 128 * i + 16}', f'ds_read_b128 {b.sub(12, 4)}, {aT} offset:{128 * i + 16}']
    def w_reads(i):
        return [f'ds_read_b128 {WR[i & 1].sub(4 * tt, 4)}, {aW[i // 9]} offset:{WBUF + (i % 9) * 6144 + 1024 * tt}' for tt in range(6)]
    vm.wait(iw[8]); k('s_barrier')
    STAMP(1)
    it = [lg.op(x_) for x_ in t_reads(0)]
    s1 = k.v(2)
    diag(t[0], t[1]); sigma_bf16(k, t[0], t[1])
    k(f'v_cvt_pk_bf16_f32 {t[0]}, {t[0]}, {t[1]}\nv_and_b32 {s1[0]}, 0xffff0000, {t[0]}\nv_lshlrev_b32 {s1[1]}, 16, {t[0]}')
    k(f'v_rcp_f32 {s1[0]}, {s1[0]}\nv_mul_f32 {s1[1]}, -{s1[1]}, {s1[0]}')
    H2 = k.v(12, 4); HT = [k.v(4, 4), k.v(4, 4)]; acc = k.v(24, 4)
    hreg = lambda i: H2.sub(4 * i, 4) if i < 3 else HT[i & 1]
    def mf(i, iw_):
        h = hreg(i)
        out = [(iw_[tt], f'{MF} {acc.sub(4 * tt, 4)}, {WR[i & 1].sub(4 * tt, 4)}, {h}, {"0" if i == 0 else acc.sub(4 * tt, 4)}') for tt in range(6)]
        return [(0, f'{MF} {sacc}, {ones}, {h}, {"0" if i == 0 else sacc}'), (0, f'{MF} {gacc}, {h}, {h}, {"0" if i == 0 else gacc}')] + out
    M = []
    for i in range(18):
        if i in (6, 12): vm.wait(iw[8 + 9 * (i // 6)]); k('s_barrier')
        b = TB[i & 1]; xs = X.sub(4 * i, 4); h = hreg(i)
        V = [un(t[e], xs[e >> 1], e & 1) for e in range(8)]
        V += [f'v_pk_fma_f32 {t.sub(2 * e, 2)}, {t.sub(2 * e, 2)}, {s1}, {s1} op_sel:[0,0,1] op_sel_hi:[1,0,1]' for e in range(4)]
        V += [f'v_pk_fma_f32 {t.sub(2 * e, 2)}, {t.sub(2 * e, 2)}, {b.sub(2 * e, 2)}, {b.sub(8 + 2 * e, 2)}' for e in range(4)]
        V += [f'v_cvt_pk_bf16_f32 {h[e]}, {t[2 * e]}, {t[2 * e + 1]}' for e in range(4)]
        Rd = w_reads(i); Tn = t_reads(i + 1) if i < 17 else []
        iwr = []; itn = []
        for n_, x_ in enumerate(V):
            if n_ == 12: lg.wait(it[3])
            k(x_)
            if M and n_ % 2 == 0:
                idr, mm = M.pop(0); lg.wait(idr); k(mm)
            if n_ >= 16 and Tn: itn.append(lg.op(Tn.pop(0)))
            if n_ % 2 == 1 and Rd: iwr.append(lg.op(Rd.pop(0)))
        assert not M
        while Rd: iwr.append(lg.op(Rd.pop(0)))
        it = itn; M = mf(i, iwr)
    for idr, mm in M: lg.wait(idr); k(mm)
    STAMP(2)
    gc = k.v(4)
    diag(t[0], t[1]); sigma_bf16(k, t[0], t[1])
    k(f'v_cvt_pk_bf16_f32 {t[1]}, {t[1]}, {t[1]}\nv_and_b32 {t[1]}, 0xffff0000, {t[1]}')
    gelu_consts(k, t[1], gc)
    aG = k.v()
    k(f's_mul_i32 {st}, {jm}, 192\nv_mul_u32_u24 {aG}, 1152, {row}\nv_lshl_add_u32 {aG}, {q}, 4, {aG}')
    tt_ = TB[0]; go = TB[1]
    for Pp in range(3):
        a = acc.sub(8 * Pp, 8); u = tt_.sub(0, 8)
        for e in range(4): k(f'v_pk_mul_f32 {u.sub(2 * e, 2)}, {a.sub(2 * e, 2)}, {a.sub(2 * e, 2)}')
        for e in range(4): k(f'v_pk_fma_f32 {u.sub(2 * e, 2)}, {u.sub(2 * e, 2)}, {gc[0:2]}, {gc[0:2]} op_sel:[0,1,0] op_sel_hi:[1,1,0]')
        for e in range(4): k(f'v_pk_mul_f32 {u.sub(2 * e, 2)}, {u.sub(2 * e, 2)}, {a.sub(2 * e, 2)}')
        for e in range(8): k(f'v_exp_f32 {u[e]}, {u[e]}')
        for e in range(4): k(f'v_pk_fma_f32 {u.sub(2 * e, 2)}, {u.sub(2 * e, 2)}, {gc[2:4]}, {gc[2:4]} op_sel_hi:[1,0,0]')
        for e in range(8): k(f'v_rcp_f32 {u[e]}, {u[e]}')
        for e in range(4): k(f'v_pk_mul_f32 {u.sub(2 * e, 2)}, {u.sub(2 * e, 2)}, {a.sub(2 * e, 2)}')
        o = go.sub(4 * Pp, 4)
        for e in range(4): k(f'v_cvt_pk_bf16_f32 {o[e]}, {u[2 * e]}, {u[2 * e + 1]}')
        ig = vm.op(f'buffer_store_dwordx4 {o}, {aG}, {RG}, {st} offen offset:{64 * Pp} sc1')
    k('s_barrier')
    iw = wdma(O_W2F, 0, 27)
    dl = [k.v() for _ in range(6)]
    k(f'v_cmp_gt_u32 vcc, 2, {q}')
    for g, dlt in enumerate((-1, 1, -2, 2)): k(f'v_add_u32 {dl[g]}, {dlt * 1152}, {aG}')
    k(f'v_cndmask_b32 {dl[4]}, {dl[1]}, {dl[0]}, vcc\nv_cndmask_b32 {dl[5]}, {dl[3]}, {dl[2]}, vcc')
    pa = k.v()
    k(f'v_min_u32 {pa}, 2, {lane}\nv_add_u32 {pa}, {mt}, {pa}\nv_add_u32 {pa}, -1, {pa}\nv_max_i32 {pa}, 0, {pa}\nv_min_u32 {pa}, 127, {pa}\nv_lshlrev_b32 {pa}, 7, {pa}')
    vm.wait(ig)
    flag_add(mt, O_FC)
    STAMP(3)
    poll(pa, O_FC, 6)
    STAMP(4)
    GF = k.a(72, 4)
    sel = lambda s: dl[4] if s == 4 else dl[5] if s == 13 else dl[(2 * s) // 9]
    ig = [vm.op(f'buffer_load_dwordx4 {GF.sub(4 * s, 4)}, {sel(s)}, {RG}, 0 offen offset:{64 * s} sc1') for s in range(18)]
    k('s_barrier')
    iwr = [lg.op(x_) for x_ in w_reads(0)]
    gbv = k.v(24, 4); h2f = k.v(24, 4); x2f = X.sub(12, 24)
    k(f's_mul_i32 {st}, {jm}, 384\ns_add_u32 {st}, {st}, {T_GB}\nv_lshl_add_u32 {aT}, {q}, 5, {st}')
    pre = [un(h2f[e], H2[e >> 1], e & 1) for e in range(24)] + [un(x2f[e], X[e >> 1], e & 1) for e in range(24)]
    for x_ in pre: k(x_)
    for s in range(18):
        Rd = w_reads(s + 1) if s < 17 else [f'ds_read_b128 {gbv.sub(4 * e, 4)}, {aT} offset:{128 * (e >> 1) + 16 * (e & 1)}' for e in range(6)]
        nxt = []
        vm.wait(ig[s])
        for tt in range(6):
            lg.wait(iwr[tt])
            k(f'{MF} {acc.sub(4 * tt, 4)}, {WR[s & 1].sub(4 * tt, 4)}, {GF.sub(4 * s, 4)}, {"0" if s == 0 else acc.sub(4 * tt, 4)}')
            nxt.append(lg.op(Rd[tt]))
        iwr = nxt
    lg.all()
    STAMP(5)
    aR = dl[0]; aS = dl[1]
    k(f'v_mul_u32_u24 {aR}, 2304, {row}\nv_lshl_add_u32 {aR}, {q}, 5, {aR}\nv_lshrrev_b32 {t[0]}, 1, {q}\nv_lshlrev_b32 {t[0]}, 2, {t[0]}\nv_lshl_add_u32 {aS}, {row}, 6, {t[0]}')
    k(f's_mul_i32 {st}, {rb}, 18\ns_mul_i32 {so}, {jm}, 3\ns_add_u32 {st}, {st}, {so}\ns_lshl_b32 {st}, {st}, 2\ns_add_u32 {st}, {st}, {s_w}\ns_lshl_b32 {st}, {st}, 10\ns_add_u32 {st}, {st}, {O_X1F}')
    for e in range(12): k(f'v_pk_add_f32 {h2f.sub(2 * e, 2)}, {h2f.sub(2 * e, 2)}, {acc.sub(2 * e, 2)}')
    for Pp in range(3):
        o = go.sub(4 * Pp, 4)
        for e in range(4): k(f'v_cvt_pk_bf16_f32 {o[e]}, {h2f[8 * Pp + 2 * e]}, {h2f[8 * Pp + 2 * e + 1]}')
        vm.op(f'buffer_store_dwordx4 {o}, {l16}, {Rws}, {st} offen sc1')
        if Pp < 2: k(f's_add_u32 {st}, {st}, 4096')
    k(f'v_pk_add_f32 {t[0:2]}, {h2f[0:2]}, {h2f[2:4]}\nv_pk_mul_f32 {t[2:4]}, {h2f[0:2]}, {h2f[0:2]}\nv_pk_fma_f32 {t[2:4]}, {h2f[2:4]}, {h2f[2:4]}, {t[2:4]}')
    for e in range(2, 12): k(f'v_pk_add_f32 {t[0:2]}, {t[0:2]}, {h2f.sub(2 * e, 2)}\nv_pk_fma_f32 {t[2:4]}, {h2f.sub(2 * e, 2)}, {h2f.sub(2 * e, 2)}, {t[2:4]}')
    k(f'v_add_f32 {t[0]}, {t[0]}, {t[1]}\nv_add_f32 {t[2]}, {t[2]}, {t[3]}\nv_permlane32_swap_b32 {t[0]}, {t[2]}\nv_add_f32 {t[0]}, {t[0]}, {t[2]}')
    k(f'v_mov_b32 {t[1]}, {t[0]}\nv_permlane16_swap_b32 {t[0]}, {t[1]}\nv_add_f32 {t[0]}, {t[0]}, {t[1]}')
    k(f's_lshl_b32 {st}, {jm}, 3\ns_add_u32 {st}, {st}, {O_PST}\ns_mov_b32 exec_lo, 0xffff\ns_mov_b32 exec_hi, 0xffff')
    vm.op(f'buffer_store_dword {t[0]}, {aS}, {Rws}, {st} offen sc1')
    k(f's_mov_b64 exec, -1\ns_mul_i32 {st}, {jm}, 384\ns_add_u32 {st}, {st}, {O_RES}')
    for e in range(6):
        for h in range(2): k(f'v_pk_fma_f32 {x2f.sub(4 * e + 2 * h, 2)}, {h2f.sub(4 * e + 2 * h, 2)}, {gbv.sub(4 * e + 2 * h, 2)}, {x2f.sub(4 * e + 2 * h, 2)}')
        vm.op(f'buffer_store_dwordx4 {x2f.sub(4 * e, 4)}, {aR}, {Rws}, {st} offen offset:{128 * (e >> 1) + 16 * (e & 1)} sc1')
    vm.all()
    flag_add(mt, O_FD)
    STAMP(6)

    k('k2_phase_e:')
    k.V.free, k.A.free, k.S.free = keepV, keepA, keepS
    vm, lg = trackers(k)
    vm.n = 2 if stamps else 1
    XA = k.a(256, 4); XV = k.v(32, 4)
    xf = lambda ks, t_: XA.sub(16 * ks + 4 * t_, 4) if ks < 16 else XV.sub(16 * (ks - 16) + 4 * t_, 4)
    W = k.v(72, 4); vo = [l16] + [k.v() for _ in range(4)]
    for g in range(1, 5): k(f'v_add_u32 {vo[g]}, {4096 * g}, {l16}')
    sn = k.s(); s4 = k.s(); sm = k.s(); so = k.s()
    k(f's_lshl_b32 {sn}, {fs}, 2\ns_add_u32 {sn}, {sn}, {s_w}\ns_mul_i32 {sn}, {sn}, {9 * 18432}\ns_add_u32 {s4}, {sn}, {O_W4F}\ns_add_u32 {sn}, {sn}, {O_W3F}')
    wld = lambda ks: f'buffer_load_dwordx4 {W.sub(4 * ks, 4)}, {vo[ks // 4]}, {RW}, {sn} offen offset:{1024 * (ks % 4)}'
    for ks in PI: vm.op(wld(ks))
    k(f's_add_u32 {sn}, {sn}, 18432')
    t = k.v(12, 4); pa = k.v()
    k(f's_lshl_b32 {st}, {mb}, 2\nv_min_u32 {pa}, 3, {lane}\nv_add_u32 {pa}, {st}, {pa}\nv_lshlrev_b32 {pa}, 7, {pa}')
    k(f's_lshl_b32 {sm}, {s_w}, 10\ns_mul_i32 {so}, {mb}, 73728\ns_add_u32 {so}, {so}, {sm}\ns_add_u32 {so}, {so}, {O_X1F}')
    k('s_barrier')
    poll(pa, O_FD, 6)
    STAMP(7)
    k(f's_lshl_b32 {st}, {mb}, 12\ns_add_u32 {st}, {st}, {O_PST}\nv_lshlrev_b32 {pa}, 6, {lane}')
    for i in range(3): ip = vm.op(f'buffer_load_dwordx4 {t.sub(4 * i, 4)}, {pa}, {Rws}, {st} offen offset:{16 * i} sc1')
    ixd = []
    for ks in PI:
        k(f's_add_u32 m0, {sm}, {XBUF + 4096 * ks}\ns_add_u32 {st}, {so}, {4096 * ks}')
        ixd.append(vm.op(f'buffer_load_dwordx4 {l16}, {Rws}, {st} offen sc1 lds'))
    aX = [l16, k.v()]; aHr = [k.v(), k.v()]; aH = [k.v(), k.v()]
    k(f'v_add_u32 {aX[1]}, 0x9000, {l16}\nv_add_u32 {aHr[0]}, {HBUF}, {l16}\nv_add_u32 {aHr[1]}, {HBUF + 0x9000}, {l16}')
    for h in range(2):
        k(f's_mul_i32 {st}, {s_w}, 9\ns_add_u32 {st}, {st}, {h}\ns_and_b32 {st1}, {st}, 1\ns_lshl_b32 {st1}, {st1}, 3\ns_lshr_b32 {st}, {st}, 1\ns_lshl_b32 {st}, {st}, 12')
        k(f's_add_u32 {st}, {st}, {st1}\nv_add_u32 {aH[h]}, {st}, {aHr[0]}')
    vm.wait(ip)
    k(f'v_pk_add_f32 {t[0:2]}, {t[0:2]}, {t[2:4]}\nv_pk_add_f32 {t[4:6]}, {t[4:6]}, {t[6:8]}\nv_pk_add_f32 {t[8:10]}, {t[8:10]}, {t[10:12]}')
    k(f'v_pk_add_f32 {t[0:2]}, {t[0:2]}, {t[4:6]}\nv_pk_add_f32 {t[0:2]}, {t[0:2]}, {t[8:10]}')
    sigma_bf16(k, t[0], t[1])
    k(f'v_cvt_pk_bf16_f32 {t[1]}, {t[1]}, {t[1]}\nv_and_b32 {t[1]}, 0xffff0000, {t[1]}\nv_lshlrev_b32 {t[2]}, 2, {m}')
    GC = [k.v(3, 1) for _ in range(4)]
    ib = [lg.op(f'ds_bpermute_b32 {t[4 + i]}, {t[2]}, {t[1]} offset:{64 * i}') for i in range(4)]
    for i in range(4): lg.wait(ib[i]); gelu_consts(k, t[4 + i], GC[i])
    acc = [k.v(16, 4), k.v(16, 4)]
    gt = k.v(8); hp = [k.v(2), k.v(2)]
    def gelu_ops(a, ah):
        out = []
        for t_ in range(4):
            c = GC[t_]; x = [a[4 * t_ + e] for e in range(4)]; u = [gt[4 * (t_ & 1) + e] for e in range(4)]; o = hp[t_ & 1]
            out += [f'v_mul_f32 {u[e]}, {x[e]}, {x[e]}' for e in range(4)]
            out += [f'v_fma_f32 {u[e]}, {u[e]}, {c[1]}, {c[0]}' for e in range(4)]
            out += [f'v_mul_f32 {u[e]}, {u[e]}, {x[e]}' for e in range(4)]
            out += [f'v_exp_f32 {u[e]}, {u[e]}' for e in range(4)]
            out += [f'v_fma_f32 {u[e]}, {u[e]}, {c[2]}, {c[2]}' for e in range(4)]
            out += [f'v_rcp_f32 {u[e]}, {u[e]}' for e in range(4)]
            out += [f'v_mul_f32 {u[e]}, {u[e]}, {x[e]}' for e in range(4)]
            out += [f'v_cvt_pk_bf16_f32 {o[0]}, {u[0]}, {u[1]}', f'v_cvt_pk_bf16_f32 {o[1]}, {u[2]}, {u[3]}']
            out.append(f'ds_write_b64 {ah}, {o} offset:{1024 * t_}')
        return out
    def tile(a, fill, steps=range(18), lead=3, pre=None, vmw=17):
        steps = list(steps); nm = 4 * len(steps); done = 0; n_ = 0
        for i in steps:
            ks = PI[i]
            if pre: pre(i)
            if vmw is not None and (i % 2 == 0 or i == steps[0]): k(f's_waitcnt vmcnt({vmw - 1})')
            for t_ in range(4):
                k(f'{MF} {a.sub(4 * t_, 4)}, {W.sub(4 * ks, 4)}, {xf(ks, t_)}, {"0" if i == 0 else a.sub(4 * t_, 4)}')
                n_ += 1
                want = 0 if n_ < lead else -(-len(fill) * (n_ - lead + 1) // (nm - lead + 1))
                while done < want: k(fill[done]); done += 1
            k(wld(ks))
    def frag_reads(base, i):
        ks = PI[i]
        return [lg.op(f'ds_read_b128 {xf(ks, t_)}, {base[ks // 9]} offset:{(ks % 9) * 4096 + 1024 * t_}') for t_ in range(4)]
    rd = {}
    def pre0(i):
        if i == 0:
            vm.wait(ixd[5]); k('s_barrier')
            for j in (0, 1): rd[j] = frag_reads(aX, j)
        if i in (4, 10):
            k(f's_waitcnt vmcnt({17 - (i + 7) + i})\ns_barrier')
        if i + 2 < 18: rd[i + 2] = frag_reads(aX, i + 2)
        lg.wait(rd[i][3])
    tile(acc[0], [], pre=pre0, vmw=None)
    STAMP(8)
    if stamps: k('s_waitcnt vmcnt(0)')
    lp = k.label('g3')
    k(f's_mov_b32 {so}, 4\n{lp}:\ns_add_u32 {sn}, {sn}, 18432')
    tile(acc[1], gelu_ops(acc[0], aH[0]))
    k(f's_add_u32 {sn}, {sn}, 18432\ns_cmp_eq_u32 {so}, 1\ns_cselect_b32 {sn}, {s4}, {sn}\nv_add_u32 {aH[0]}, 4096, {aH[0]}')
    tile(acc[0], gelu_ops(acc[1], aH[1]))
    k(f'v_add_u32 {aH[1]}, 4096, {aH[1]}\ns_sub_u32 {so}, {so}, 1\ns_cmp_lg_u32 {so}, 0\ns_cbranch_scc1 {lp}')
    STAMP(9)
    if stamps: k('s_waitcnt vmcnt(0)')
    k(f's_add_u32 {sn}, {sn}, 18432\ns_waitcnt lgkmcnt(0)\ns_barrier')
    lg.reset(); rd = {}
    g8 = gelu_ops(acc[0], aH[0])
    class Fill(list):
        pass
    def pre1(i):
        if i == 0:
            for j in (0, 1): rd[j] = frag_reads(aHr, j)
        if i + 2 < 14: rd[i + 2] = frag_reads(aHr, i + 2)
        k(f's_waitcnt lgkmcnt({min(8, 4 * (13 - i))})')
    tile(acc[1], g8, steps=range(14), pre=pre1, lead=1)
    k('s_waitcnt lgkmcnt(0)\ns_barrier'); lg.reset()
    for j in range(14, 18): rd[j] = frag_reads(aHr, j)
    tile(acc[1], [], steps=range(14, 18), pre=lambda i: lg.wait(rd[i][3]))
    sp = k.s(); po = [k.v(4, 4), k.v(4, 4)]
    k(f's_mul_i32 {sp}, {mb}, {9 * 65536}\ns_lshl_b32 {st}, {s_w}, 14\ns_add_u32 {sp}, {sp}, {st}\ns_lshl_b32 {st}, {fs}, 10\ns_add_u32 {sp}, {sp}, {st}\ns_add_u32 {sp}, {sp}, {O_PART}')
    def part_ops(a):
        out = []
        for p in range(2):
            out += [f'v_cvt_pk_bf16_f32 {po[p][e]}, {a[8 * p + 2 * e]}, {a[8 * p + 2 * e + 1]}' for e in range(4)]
            out.append(f'buffer_store_dwordx4 {po[p]}, {vo[2 * p]}, {Rws}, {sp} offen sc1')
        out.append(f's_add_u32 {sp}, {sp}, 65536')
        return out
    lp = k.label('g4')
    k(f's_mov_b32 {so}, 4\n{lp}:\ns_add_u32 {sn}, {sn}, 18432')
    tile(acc[0], part_ops(acc[1]) + [''] * 40)
    k(f's_add_u32 {sn}, {sn}, 18432\ns_cmp_eq_u32 {so}, 1\ns_cselect_b32 {RW[2]}, 0, {RW[2]}')
    tile(acc[1], part_ops(acc[0]) + [''] * 40)
    k(f's_sub_u32 {so}, {so}, 1\ns_cmp_lg_u32 {so}, 0\ns_cbranch_scc1 {lp}')
    for x_ in part_ops(acc[1]): k(x_)
    STAMP(10)
    aR = k.v(2); aO = k.v(2); aB = k.v(); T0 = k.s()
    for x_ in (W, XV, t, gt, acc[0], acc[1], po[0], po[1]): x_.release()
    Rout = RG; srd(k, Rout, P['out'], L * D * 2)
    rs = [k.v(12, 4) for _ in range(3)]; pt = [k.v(32, 4) for _ in range(3)]
    k(f's_lshl_b32 {st}, {mb}, 2\ns_and_b32 {st1}, {fs}, 1\ns_lshl_b32 {st1}, {st1}, 1\ns_add_u32 {st}, {st}, {st1}\ns_lshl_b32 {st}, {st}, 4')
    k(f'v_add_u32 {aO[0]}, {st}, {m}\nv_mul_u32_u24 {aO[0]}, 1152, {aO[0]}\nv_lshl_add_u32 {aO[0]}, {q}, 3, {aO[0]}\nv_add_u32 {aO[1]}, {16 * 1152}, {aO[0]}')
    k(f'v_lshlrev_b32 {aR[0]}, 1, {aO[0]}\nv_lshlrev_b32 {aR[1]}, 1, {aO[1]}\nv_lshlrev_b32 {aB}, 4, {q}')
    k(f's_lshr_b32 {T0}, {fs}, 1\ns_mul_i32 {T0}, {T0}, 9\ns_add_u32 {T0}, {T0}, {s_w}')
    k('s_waitcnt vmcnt(0)'); vm.reset()
    flag_add(mb, O_FP)
    sk = [k.label('skip') for _ in range(3)]
    def third(i, lab):
        if i == 2: k(f's_cmp_lg_u32 {s_w}, 0\ns_cbranch_scc1 {lab}')
    for i in range(3):
        third(i, sk[0])
        k(f's_add_u32 {st}, {T0}, {4 * i}\ns_lshl_b32 {st}, {st}, 6\ns_add_u32 {st1}, {st}, {O_MOD2 + 4608}\ns_add_u32 {st}, {st}, {O_RES}')
        for h in range(2): k(f'buffer_load_dwordx4 {rs[i].sub(4 * h, 4)}, {aR[h]}, {Rws}, {st} offen sc1')
        k(f'buffer_load_dwordx4 {rs[i].sub(8, 4)}, {aB}, {Rws}, {st1} offen')
    k(f'{sk[0]}:\ns_lshl_b32 {st}, {mb}, 7\nv_mov_b32 {pa}, {st}')
    poll(pa, O_FP, 32)
    STAMP(11)
    k(f's_mul_i32 {sp}, {mb}, 9\ns_add_u32 {sp}, {sp}, {s_w}\ns_lshl_b32 {sp}, {sp}, 3\ns_add_u32 {sp}, {sp}, {fs}\ns_lshl_b32 {sp}, {sp}, 13\ns_add_u32 {sp}, {sp}, {O_PART}')
    for i in range(3):
        third(i, sk[1])
        for s_ in range(8): k(f'buffer_load_dwordx4 {pt[i].sub(4 * s_, 4)}, {vo[s_ // 4]}, {Rws}, {sp} offen offset:{1024 * (s_ % 4)} sc1')
        k(f's_add_u32 {sp}, {sp}, {4 * 65536}')
    k(f'{sk[1]}:')
    sa = k.v(8, 2); u = k.v(8, 2)
    for i in range(3):
        third(i, END)
        k(f's_waitcnt vmcnt({8 if i == 0 else 2})')
        p = pt[i]
        for e in range(8): k(un(sa[e], p[e >> 1], e & 1))
        for s_ in range(1, 8):
            for e in range(8): k(un(u[e], p[4 * s_ + (e >> 1)], e & 1))
            for e in range(4): k(f'v_pk_add_f32 {sa.sub(2 * e, 2)}, {sa.sub(2 * e, 2)}, {u.sub(2 * e, 2)}')
        for e in range(4): k(f'v_pk_fma_f32 {sa.sub(2 * e, 2)}, {sa.sub(2 * e, 2)}, {rs[i].sub(8 + 2 * (e & 1), 2)}, {rs[i].sub(2 * e, 2)}')
        k(f's_add_u32 {st}, {T0}, {4 * i}\ns_lshl_b32 {st}, {st}, 5')
        for h in range(2):
            k(f'v_cvt_pk_bf16_f32 {u[2 * h]}, {sa[4 * h]}, {sa[4 * h + 1]}\nv_cvt_pk_bf16_f32 {u[2 * h + 1]}, {sa[4 * h + 2]}, {sa[4 * h + 3]}')
            k(f'buffer_store_dwordx2 {u.sub(2 * h, 2)}, {aO[h]}, {Rout}, {st} offen')
        if i == 1: STAMP(12)
    k(f'{END}:\ns_endpgm')
    k.finish()
    return k

if __name__ == '__main__':
    k = build_k2()
    print('k2 lines', len(k.l), 'nops', k.nops, 'regs', k.counts(), 'sgpr top', k.S.top)
    open('k2.s', 'w').write(module([k], 136))
```

```python
import sys
from common import *
import k1, k2
def build(stamps=False, dump=False, extra=0):
    a = k1.build_k1(w4_here=True, dump=dump); b = k2.build_k2(stamps=stamps)
    ref = open('cdna_kernels/%s.s.ref' % NAME).read().split('\n')
    hdr = [l for l in ref if l.startswith(';') and '@launch' not in l and 'Override' not in l and 'grid=ceil' not in l and not l.startswith('    ')]
    hdr = '\n'.join(hdr) + '\n'
    hdr += '; @launch kernel=k1_kernel grid=(256,1,1) block=(256,1,1) lds=%d\n' % k1.K1_LDS
    hdr += '; @launch kernel=k2_kernel grid=(256,1,1) block=(256,1,1) lds=%d\n' % k2.K2_LDS
    for k in (a, b): print(k.name, 'lines', len(k.l), 'nops', k.nops, 'regs', k.counts())
    return module([a, b], 136, hdr)
if __name__ == '__main__':
    open('full_dbg.s', 'w').write(build(stamps=True, dump=True))
    s = build()
    open('full.s', 'w').write(s)
    open('cdna_kernels/%s.s' % NAME, 'w').write(s)
```

```python
from dsl import Kern, Reg, module
import struct

L, D, F = 2048, 576, 4608
NAME = 'adaLN_cond__ssm_conv_s4d__mixer_s_mlp__prompt'

O_FC    = 0x0000
O_FD    = 0x4000
O_FP    = 0x8000
O_FW    = 0x18000
O_FT    = 0x19000
FLAG_BYTES = 0x1D000
O_STATS = 0x20000
O_MODF  = 0x24000
O_MOD2  = O_MODF + 3 * 2304
O_MODB  = 0x29000
O_PST   = 0x30000
GPL = 2052 * 64
O_XT    = 0x100000
O_X2    = 0x3200000
O_G     = 0x400000
O_X1F   = 0x700000
O_RES   = 0xA00000
O_W1F   = 0xF00000
O_W2F   = 0x1000000
O_W3F   = 0x1100000
O_W4F   = 0x1700000
O_PART  = 0x2000000
O_DBG   = 0x3800000
WS_USED = 0x4000000

def f2u(x): return struct.unpack('<I', struct.pack('<f', x))[0]
def fl(x): return '0x%08x' % f2u(x)
LOG2E = 1.4426950408889634

class Trk:
    def __init__(self, k, cnt, mx): self.k = k; self.cnt = cnt; self.mx = mx; self.n = 0; self.done = 0
    def op(self, s):
        self.k(s); self.n += 1; return self.n
    def wait(self, idx):
        if idx <= self.done: return
        left = min(self.n - idx, self.mx)
        self.k('s_waitcnt %s(%d)' % (self.cnt, left)); self.done = self.n - left
    def all(self): self.wait(self.n)
    def reset(self): self.done = self.n

def trackers(k): return Trk(k, 'vmcnt', 63), Trk(k, 'lgkmcnt', 15)

def srd(k, dst, ptr, nbytes, off=0):
    if off:
        k(f's_add_u32 {dst[0]}, {ptr[0]}, {off}\ns_addc_u32 {dst[1]}, {ptr[1]}, 0')
    else:
        k(f's_mov_b32 {dst[0]}, {ptr[0]}\ns_mov_b32 {dst[1]}, {ptr[1]}')
    k(f's_mov_b32 {dst[2]}, {nbytes}\ns_mov_b32 {dst[3]}, 0x20000')

def kernargs(k):
    a = k.s(16, 4); b = k.s(16, 4); c = k.s(2)
    k(f's_load_dwordx16 {a}, s[0:1], 0\ns_load_dwordx16 {b}, s[0:1], 64\ns_load_dwordx2 {c}, s[0:1], 128')
    names = ['u', 'logA', 'Aim', 'Cr', 'Ci', 'logdt', 'Dskip', 'Bx']
    P = {n: a.sub(2 * i, 2) for i, n in enumerate(names)}
    names = ['w1', 'w2', 'w3', 'w4', 'c', 'wmod', 'out', 'dbg']
    P.update({n: b.sub(2 * i, 2) for i, n in enumerate(names)})
    P['ws'] = c
    return P

def code_prefetch(k, vm, lo, hi, nbytes, tid, tmp, sp, back=False):
    here = k.label('pc')
    k(f's_getpc_b64 {sp}\n{here}:')
    if back: k(f's_sub_u32 {sp[0]}, {sp[0]}, {here}-{lo}\ns_subb_u32 {sp[1]}, {sp[1]}, 0')
    else: k(f's_add_u32 {sp[0]}, {sp[0]}, {lo}-{here}\ns_addc_u32 {sp[1]}, {sp[1]}, 0')
    k(f'v_lshlrev_b32 {tmp[0]}, 7, {tid}')
    k(f'v_min_u32 {tmp[0]}, {hi}-{lo}-4, {tmp[0]}')
    n = (nbytes + 32767) // 32768
    for i in range(n):
        x = f'global_load_dword {tmp[1]}, {tmp[0]}, {sp} nt'
        vm.op(x) if vm else k(x)
        if i + 1 < n:
            k(f'v_add_u32 {tmp[0]}, 0x8000, {tmp[0]}\nv_min_u32 {tmp[0]}, {hi}-{lo}-4, {tmp[0]}')

def interleave(*streams):
    out = []; n = max(len(s) for s in streams)
    for i in range(n):
        for s in streams:
            if i < len(s): out.append(s[i])
    return out

class ColJob:
    def __init__(self, k, vm, lg, lane, s_w):
        self.k, self.vm, self.lg, self.lane, self.s_w = k, vm, lg, lane, s_w
        k_ = k
        self.row = k.v(); self.chunk = k.v(); t = k.v(2)
        k_(f'v_lshrrev_b32 {self.row}, 3, {lane}')
        k_(f'v_bfe_u32 {t[0]}, {lane}, 5, 1\ns_and_b32 vcc_lo, {s_w}, 1\nv_xor_b32 {t[0]}, vcc_lo, {t[0]}')
        k_(f'v_bfe_u32 {t[1]}, {lane}, 4, 1\nv_lshl_or_b32 {t[0]}, {t[0]}, 1, {t[1]}')
        k_(f'v_lshlrev_b32 {t[0]}, 1, {t[0]}\nv_and_b32 {t[1]}, 7, {lane}\nv_xor_b32 {t[0]}, {t[0]}, {t[1]}')
        k_(f'v_lshlrev_b32 {self.chunk}, 4, {t[0]}')
        t.release()
    def dma(self, R, s_src, s_stride, buf):
        k = self.k
        va = k.v(); so = k.s(); st = k.s(); sm = k.s()
        k(f'v_mad_u32_u24 {va}, {self.row}, {s_stride}, {self.chunk}')
        k(f's_lshl_b32 {st}, {s_stride}, 3\ns_mul_i32 {so}, {st}, {self.s_w}\ns_add_u32 {so}, {so}, {s_src}\ns_lshl_b32 {st}, {st}, 2')
        k(f's_lshl_b32 {sm}, {self.s_w}, 10')
        last = None
        for i in range(18):
            k(f's_add_u32 m0, {sm}, {buf + i * 4096}')
            last = self.vm.op(f'buffer_load_dwordx4 {va}, {R}, {so} offen nt lds')
            if i < 17: k(f's_add_u32 {so}, {so}, {st}')
        va.release(); so.release(); st.release(); sm.release()
        return last
    def read(self, buf, fr, **kw):
        return self.reads(self.addr(buf, **kw), fr)
    def addr(self, buf, w4order=False, s_il=None, s_w4=None):
        k, lane = self.k, self.lane
        ad = k.v(4); q = k.v(); r = k.v(); c = k.v(); un = k.v(); wi = k.v(); t = k.v(2)
        k(f'v_lshrrev_b32 {q}, 4, {lane}\nv_bfe_u32 {r}, {lane}, 2, 2\nv_and_b32 {c}, 3, {lane}')
        k(f'v_mov_b32 {un}, {self.s_w}\nv_lshlrev_b32 {wi}, 3, {c}')
        if s_il is not None:
            st = k.s()
            k(f's_and_b32 {st}, {self.s_w}, 2\nv_lshrrev_b32 {t[0]}, 1, {c}\nv_add_u32 {t[0]}, {st}, {t[0]}')
            k(f's_and_b32 {st}, {self.s_w}, 1\ns_lshl_b32 {st}, {st}, 3\nv_and_b32 {t[1]}, 1, {c}\nv_lshl_add_u32 {t[1]}, {t[1]}, 4, {st}')
            k(f's_cmp_lg_u32 {s_il}, 0\ns_cselect_b64 vcc, -1, 0')
            k(f'v_cndmask_b32 {un}, {un}, {t[0]}, vcc\nv_cndmask_b32 {wi}, {wi}, {t[1]}, vcc')
            st.release()
        for h in range(2):
            kl = ad[h]
            if w4order: k(f'v_lshl_add_u32 {kl}, {q}, 2, {r}\nv_add_u32 {kl}, {16 * h}, {kl}')
            else: k(f'v_lshl_add_u32 {kl}, {q}, 3, {r}\nv_add_u32 {kl}, {4 * h}, {kl}')
            if s_w4 is not None:
                k(f'v_lshl_add_u32 {t[0]}, {q}, 2, {r}\nv_add_u32 {t[0]}, {16 * h}, {t[0]}\ns_cmp_eq_u32 {s_w4}, 4\ns_cselect_b64 vcc, -1, 0\nv_cndmask_b32 {kl}, {kl}, {t[0]}, vcc')
            k(f'v_lshrrev_b32 {t[0]}, 1, {kl}\nv_xor_b32 {t[0]}, {t[0]}, {kl}\nv_bfe_u32 {t[0]}, {t[0]}, 2, 1')
            k(f'v_bfe_u32 {t[1]}, {kl}, 1, 1\nv_lshl_or_b32 {t[0]}, {t[0]}, 1, {t[1]}\nv_xor_b32 {t[0]}, {t[0]}, {un}')
            k(f'v_lshl_add_u32 {t[0]}, {t[0]}, 5, {wi}\nv_lshl_add_u32 {kl}, {kl}, 7, {t[0]}')
            k(f'v_add_u32 {kl}, {buf}, {kl}\nv_add_u32 {ad[2 + h]}, 0x9000, {kl}')
        for x in (q, r, c, un, wi, t): x.release()
        return ad
    def reads(self, ad, fr):
        ids = []
        for s in range(18):
            for h in range(2):
                a = ad[h] if s < 9 else ad[2 + h]
                i = self.lg.op(f'ds_read_b64_tr_b16 {fr.sub(4 * s + 2 * h, 2)}, {a} offset:{(s % 9) * 4096}')
            ids.append(i)
        ad.release()
        return ids
    def store(self, fr, ids, Rws, s_dst, s_step, s_rot=None, flags='sc1'):
        k = self.k
        va = k.v(); so = k.s(); sl = k.s()
        k(f'v_lshlrev_b32 {va}, 4, {self.lane}')
        if s_rot is not None: k(f's_mov_b32 {sl}, {s_rot}')
        else: k(f's_mov_b32 {so}, {s_dst}')
        for s in range(18):
            if s_rot is not None:
                k(f's_mul_i32 {so}, {sl}, {s_step}\ns_add_u32 {so}, {so}, {s_dst}')
                k(f's_add_u32 {sl}, {sl}, 1\ns_cmp_eq_u32 {sl}, 18\ns_cselect_b32 {sl}, 0, {sl}')
            if ids: self.lg.wait(ids[s])
            self.vm.op(f'buffer_store_dwordx4 {fr.sub(4 * s, 4)}, {va}, {Rws}, {so} offen {flags}')
            if s_rot is None and s < 17: k(f's_add_u32 {so}, {so}, {s_step}')
        va.release(); so.release(); sl.release()

class Stamper:
    def __init__(self, k, on, area):
        self.k = k; self.on = on; self.area = area; self.used = []
        if on: self.r = k.s(16, 1); self.t = k.s(2)
    def __call__(self, i):
        if self.on:
            self.k(f'{"s_memtime" if self.on == 2 else "s_memrealtime"} {self.t}\ns_waitcnt lgkmcnt(0)\ns_mov_b32 {self.r[i]}, {self.t[0]}')
    def init(self):
        if self.on:
            for i in range(16): self.k(f's_mov_b32 {self.r[i]}, 0')
    def flush(self, P):
        if not self.on: return
        k = self.k
        k(f's_waitcnt vmcnt(0) lgkmcnt(0)\ns_mov_b64 exec, -1\nv_cmp_eq_u32 vcc, 0, v0\ns_and_saveexec_b64 s[96:97], vcc\ns_cbranch_execz stamp_done_{self.area}')
        k(f's_load_dwordx2 s[92:93], s[0:1], 128\ns_waitcnt lgkmcnt(0)\ns_mov_b32 s94, {WS_USED}\ns_mov_b32 s95, 0x20000')
        k(f's_lshl_b32 s98, s2, 6\ns_add_u32 s98, s98, {O_DBG + 0x400000 + self.area * 256 * 64}\nv_mov_b32 v1, 0')
        for i in range(16): k(f'v_mov_b32 v2, {self.r[i]}\nbuffer_store_dword v2, v1, s[92:95], s98 offen offset:{4 * i}')
        if self.on == 3:
            k(f's_load_dwordx2 s[92:93], s[0:1], 120\ns_waitcnt lgkmcnt(0)\ns_mov_b32 s94, 256')
            for i in range(16): k(f'v_mov_b32 v2, {self.r[i]}\nbuffer_atomic_umax v2, v1, s[92:95], 0 offen offset:{4 * i} sc1')
        k(f'stamp_done_{self.area}:')

def sigma_bf16(k, mean, var):
    k(f'v_mul_f32 {mean}, {fl(1 / 576)}, {mean}\nv_mul_f32 {var}, {fl(1 / 576)}, {var}')
    k(f'v_fma_f32 {var}, -{mean}, {mean}, {var}\nv_max_f32 {var}, 0, {var}')
    k(f'v_cvt_pk_bf16_f32 {var}, {var}, {var}\nv_and_b32 {var}, 0xffff0000, {var}\nv_add_f32 {var}, {fl(1e-5)}, {var}')
    k(f'v_cvt_pk_bf16_f32 {var}, {var}, {var}\nv_and_b32 {var}, 0xffff0000, {var}\nv_sqrt_f32 {var}, {var}')
```

```python
from common import *

N_SIG = 64 + 45
BUF0, BUF1, SVEC = 0, 73728, 147456
K1_LDS = 147456 + 2560
SPIN_MAX = 40000

def vmaps():
    maps = [list(range(16))]
    for s in (1, 2, 3):
        m = list(maps[-1]); step = 1 << s
        new = [step * i for i in range(8, 16)]
        for j in range(16):
            if m[j] % step: m[j] = new.pop(0)
        assert not new
        maps.append(m)
    return maps

def service(k, P, lane, s_w, END, SP):
    vm, lg = trackers(k)
    Rws = k.s(4); Rdbg = k.s(4); RA = k.s(4); RB = k.s(4)
    srd(k, Rws, P['ws'], WS_USED); srd(k, Rdbg, P['dbg'], 256)
    z4 = k.v(4, 4); zero = z4.sub(0, 2); one = k.v(); l16 = k.v(); q = k.v(); m = k.v()
    fr = k.v(72, 4); sv = k.v(72, 4); acc = k.v(4, 4)
    sav = k.s(2); st = k.s(); cnt = k.s()
    jb = k.s(); modeB = k.s(); blkB = k.s(); srcB = k.s(); strB = k.s()
    L_mod, L_B, L_C = k.label('mod'), k.label('jobB'), k.label('jobC')
    k(f'v_lshrrev_b32 {q}, 4, {lane}\nv_and_b32 {m}, 15, {lane}\nv_lshlrev_b32 {l16}, 4, {lane}')
    cjs = {}
    def common():
        for i in range(4): k(f'v_mov_b32 {z4[i]}, 0')
        k(f'v_mov_b32 {one}, 1\ns_mov_b32 {cnt}, 0')
        k(f's_sub_u32 {jb}, s2, 64\ns_add_u32 {blkB}, s2, 40\ns_cmp_ge_u32 s2, 64\ns_cselect_b32 {jb}, {jb}, {blkB}')
        k(f's_sub_u32 {st}, s2, 104\ns_cmp_lt_u32 {st}, 8\ns_cselect_b32 {jb}, 104, {jb}')
        srd(k, RB, P['wmod'], D * 3456 * 2)
        k(f's_mov_b32 {modeB}, 0\ns_add_u32 {blkB}, {jb}, 48\ns_mov_b32 {strB}, 6912')
        for mode, lo, ptr, nb, st_ in ((1, 6, 'w1', D * D * 2, 1152), (2, 15, 'w2', D * D * 2, 1152), (4, 24, 'w4', D * F * 2, 1152), (3, 32, 'w3', D * F * 2, 9216)):
            k(f's_sub_u32 {srcB}, {jb}, {lo}\ns_cmp_ge_u32 {jb}, {lo}')
            k(f's_cselect_b32 {blkB}, {srcB}, {blkB}\ns_cselect_b32 {modeB}, {mode}, {modeB}\ns_cselect_b32 {strB}, {st_}, {strB}')
            k(f's_cselect_b32 {RB[0]}, {P[ptr][0]}, {RB[0]}\ns_cselect_b32 {RB[1]}, {P[ptr][1]}, {RB[1]}\ns_cselect_b32 {RB[2]}, {nb}, {RB[2]}')
        k(f's_lshl_b32 {srcB}, {blkB}, 7\ns_cmp_eq_u32 {modeB}, 4\ns_cselect_b32 {st}, {7 * 576 * 1152 + 128}, 0\ns_add_u32 {srcB}, {srcB}, {st}')
    def signal():
        sk = k.label('notlast')
        k(f's_mov_b64 exec, 1\nv_mov_b32 {acc[0]}, 1\nbuffer_atomic_add {acc[0]}, {zero[0]}, {Rdbg}, 0 offen offset:64 sc0 sc1\ns_waitcnt vmcnt(0)')
        k(f'v_readfirstlane_b32 {st}, {acc[0]}\ns_cmp_lg_u32 {st}, {N_SIG - 1}\ns_cbranch_scc1 {sk}')
        k(f'buffer_store_dword {one}, {zero[0]}, {Rdbg}, 0 offen offset:192 sc1\n{sk}:\ns_mov_b64 exec, -1')
    cj = ColJob(k, vm, lg, lane, s_w)
    k(f's_cmp_ge_u32 s2, 64\ns_cbranch_scc1 {L_mod}')

    srd(k, RA, P['u'], L * D * 2)
    va = k.v(); vx = k.v(2); t = k.v(6); row = k.v(); s1 = k.s()
    k(f's_and_b32 {st}, {s_w}, 1\ns_lshl_b32 {s1}, s2, 1\ns_add_u32 {st}, {st}, {s1}\ns_lshl_b32 {st}, {st}, 4\nv_add_u32 {row}, {st}, {m}')
    k(f's_lshr_b32 {s1}, {s_w}, 1\ns_mul_i32 {st}, {s1}, 576\nv_mul_u32_u24 {va}, 1152, {row}\nv_lshl_add_u32 {va}, {q}, 4, {va}')
    ix = [vm.op(f'buffer_load_dwordx4 {fr.sub(4 * i, 4)}, {va}, {RA}, {st} offen offset:{64 * i} nt') for i in range(9)]
    pf = k.v(2); pfs = k.s(2)
    code_prefetch(k, vm, 'k1_kernel', 'k1_conv', 16384, 'v0', pf, pfs, back=True)
    common()
    k(f'v_and_b32 {t[0]}, 1, {m}\nv_lshl_add_u32 {t[1]}, {q}, 1, {t[0]}\nv_lshlrev_b32 {vx[0]}, 14, {t[1]}\nv_sub_u32 {t[1]}, {row}, {t[0]}\nv_lshl_add_u32 {vx[0]}, {t[1]}, 3, {vx[0]}')
    k(f's_mul_i32 {s1}, {s1}, {9 * 131072}\ns_add_u32 {s1}, {s1}, {O_XT}\ns_mov_b32 {st}, 0x3f803f80\nv_cmp_eq_u32 vcc, 0, {t[0]}')
    for i in range(4): k(f'v_mov_b32 {acc[i]}, 0')
    dp = 'quad_perm:[1,0,3,2] row_mask:0xf bank_mask:0xf'
    for i in range(9):
        vm.wait(ix[i])
        if i == 0: SP(8)
        r_ = fr.sub(4 * i, 4); o = sv.sub(4 * i, 4)
        k(f'v_cndmask_b32_dpp {o[0]}, {r_[2]}, {r_[0]}, vcc {dp}\nv_cndmask_b32_dpp {o[1]}, {r_[3]}, {r_[1]}, vcc {dp}\ns_not_b64 vcc, vcc')
        k(f'v_cndmask_b32_dpp {o[2]}, {r_[0]}, {r_[2]}, vcc {dp}\nv_cndmask_b32_dpp {o[3]}, {r_[1]}, {r_[3]}, vcc {dp}\ns_not_b64 vcc, vcc')
        vm.op(f'buffer_store_dwordx4 {o}, {vx[0]}, {Rws}, {s1} offen sc1')
        if i < 8: k(f's_add_u32 {s1}, {s1}, 131072')
    for i in range(36):
        k(f'v_dot2_f32_bf16 {acc[i & 1]}, {fr[i]}, {st}, {acc[i & 1]}')
        k(f'v_dot2_f32_bf16 {acc[2 + (i & 1)]}, {fr[i]}, {fr[i]}, {acc[2 + (i & 1)]}')
    k(f'v_add_f32 {t[0]}, {acc[0]}, {acc[1]}\nv_add_f32 {t[2]}, {acc[2]}, {acc[3]}\nv_permlane32_swap_b32 {t[0]}, {t[2]}\nv_add_f32 {t[0]}, {t[0]}, {t[2]}')
    k(f'v_mov_b32 {t[1]}, {t[0]}\nv_permlane16_swap_b32 {t[0]}, {t[1]}\nv_add_f32 {t[0]}, {t[0]}, {t[1]}')
    k(f's_lshl_b32 {st}, {s_w}, 8\ns_add_u32 {st}, {st}, {SVEC}\nv_lshl_add_u32 {t[1]}, {lane}, 2, {st}\nds_write_b32 {t[1]}, {t[0]}')
    k('s_waitcnt lgkmcnt(0)\ns_barrier')
    a, b = k.label('notw0'), k.label('sigd')
    k(f's_cmp_lg_u32 {s_w}, 0\ns_cbranch_scc1 {a}')
    k(f'v_and_b32 {t[1]}, 1, {q}\nv_lshlrev_b32 {t[1]}, 8, {t[1]}\nv_lshl_add_u32 {t[1]}, {m}, 2, {t[1]}\nv_add_u32 {t[1]}, {SVEC}, {t[1]}')
    k(f'ds_read2_b32 {t[2:4]}, {t[1]} offset0:0 offset1:32\nds_read2_b32 {t[4:6]}, {t[1]} offset0:128 offset1:160\ns_waitcnt lgkmcnt(0)')
    k(f'v_add_f32 {t[0]}, {t[2]}, {t[4]}\nv_add_f32 {t[2]}, {t[3]}, {t[5]}')
    sigma_bf16(k, t[0], t[2])
    k(f'v_cvt_pk_bf16_f32 {t[2]}, {t[0]}, {t[2]}\nv_lshlrev_b32 {t[1]}, 2, {lane}\ns_lshl_b32 {st}, s2, 7\ns_add_u32 {st}, {st}, {O_STATS}')
    k(f's_mov_b32 exec_hi, 0\nbuffer_store_dword {t[2]}, {t[1]}, {Rws}, {st} offen sc1\ns_mov_b64 exec, -1')
    k(f'{a}:\ns_waitcnt vmcnt(0)\ns_barrier'); vm.reset()
    k(f's_cmp_lg_u32 {s_w}, 0\ns_cbranch_scc1 {b}')
    signal()
    k(f'{b}:'); SP(9)
    cj.dma(RB, srcB, strB, BUF1)
    k(f's_mul_i32 {st}, s2, {FLAG_BYTES // 64}\nv_lshlrev_b32 {t[2]}, 3, v0\nv_cmp_gt_u32 vcc, {FLAG_BYTES // 64}, {t[2]}')
    k(f's_and_saveexec_b64 {sav}, vcc\nbuffer_store_dwordx2 {zero}, {t[2]}, {Rws}, {st} offen\ns_mov_b64 exec, {sav}')
    k(f's_cmp_ge_u32 s2, 36\ns_cbranch_scc1 {L_B}\ns_lshr_b32 {st}, s2, 1\ns_mul_i32 {st}, {st}, {GPL}\ns_bitcmp1_b32 s2, 0\ns_cselect_b32 {sav[0]}, {2050 * 64}, 0')
    k(f's_add_u32 {st}, {st}, {sav[0]}\ns_add_u32 {st}, {st}, {O_G}\ns_mov_b64 exec, 0xff\nbuffer_store_dwordx4 {z4}, {l16}, {Rws}, {st} offen\ns_mov_b64 exec, -1')
    k(f's_branch {L_B}')
    for x_ in (va, vx, t, row, s1): x_.release()

    def mod_tail(ids, s_blk, sig):
        t = k.v(2); vg = k.v(); s1 = k.s()
        for s in range(18):
            if s % 2 == 0: lg.wait(ids[s + 1])
            k(f'v_mfma_f32_16x16x32_bf16 {acc}, {sv.sub(4 * s, 4)}, {fr.sub(4 * s, 4)}, {"0" if s == 0 else acc}')
        k(f's_lshl_b32 {s1}, {s_w}, 6\ns_add_u32 {s1}, {s1}, {SVEC + 2048}\nv_lshl_add_u32 {vg}, {m}, 2, {s1}')
        k(f'v_cvt_pk_bf16_f32 {t[0]}, {acc[0]}, {acc[0]}\nv_and_b32 {t[0]}, 0xffff0000, {t[0]}')
        k(f'v_add_f32 {t[1]}, 1.0, {t[0]}\nv_cvt_pk_bf16_f32 {t[1]}, {t[1]}, {t[1]}\nv_and_b32 {t[1]}, 0xffff0000, {t[1]}')
        k(f's_mov_b64 vcc, 0\ns_sub_u32 {s1}, {s_blk}, 9\ns_cmp_lt_u32 {s1}, 9\ns_cselect_b64 vcc, -1, vcc')
        k(f's_sub_u32 {s1}, {s_blk}, 36\ns_cmp_lt_u32 {s1}, 9\ns_cselect_b64 vcc, -1, vcc')
        k(f'v_cndmask_b32 {t[0]}, {t[0]}, {t[1]}, vcc\nds_write_b32 {vg}, {t[0]}\ns_waitcnt lgkmcnt(0)\ns_barrier'); lg.reset()
        a, b = k.label('notw0'), k.label('nob')
        k(f's_cmp_lg_u32 {s_w}, 0\ns_cbranch_scc1 {a}')
        k(f'v_lshlrev_b32 {vg}, 3, {lane}\nv_add_u32 {t[0]}, {SVEC + 2048}, {vg}\nds_read_b64 {t}, {t[0]}\ns_lshl_b32 {s1}, {s_blk}, 8\ns_add_u32 {s1}, {s1}, {O_MODF}')
        k(f's_mov_b32 exec_hi, 0\ns_waitcnt lgkmcnt(0)\nbuffer_store_dwordx2 {t}, {vg}, {Rws}, {s1} offen sc1')
        if sig:
            k(f's_sub_u32 {s1}, {s_blk}, 27\ns_cmp_ge_u32 {s1}, 18\ns_cbranch_scc1 {b}')
            k(f'v_cvt_pk_bf16_f32 {acc[0]}, {t[0]}, {t[1]}\nv_lshrrev_b32 {vg}, 1, {vg}\ns_lshl_b32 {s1}, {s1}, 7\ns_add_u32 {s1}, {s1}, {O_MODB}')
            k(f'buffer_store_dword {acc[0]}, {vg}, {Rws}, {s1} offen sc1\n{b}:')
            k(f's_cmp_ge_u32 {s_blk}, 45\ns_cbranch_scc1 {a}\ns_waitcnt vmcnt(0)')
            signal()
        k(f'{a}:\ns_mov_b64 exec, -1')
        t.release(); vg.release(); s1.release()

    k(f'{L_mod}:')
    vm, lg = trackers(k); cj.vm, cj.lg = vm, lg
    blkA = k.s(); srcA = k.s(); strA = k.s(); Rc = k.s(4)
    srd(k, RA, P['wmod'], D * 3456 * 2); srd(k, Rc, P['c'], D * 2)
    k(f's_sub_u32 {blkA}, s2, 64\ns_lshl_b32 {srcA}, {blkA}, 7\ns_mov_b32 {strA}, 6912')
    t = k.v(8); vg = k.v()
    k(f'v_lshlrev_b32 {vg}, 3, v0')
    ic = vm.op(f'buffer_load_dwordx2 {t[0:2]}, {vg}, {Rc}, 0 offen nt')
    code_prefetch(k, vm, 'k1_kernel', 'k1_conv', 16384, 'v0', pf, pfs, back=True)
    ia = cj.dma(RA, srcA, strA, BUF0)
    common()
    vm.wait(ic)
    k(f'v_lshlrev_b32 {t[2]}, 16, {t[0]}\nv_and_b32 {t[3]}, 0xffff0000, {t[0]}\nv_lshlrev_b32 {t[4]}, 16, {t[1]}\nv_and_b32 {t[5]}, 0xffff0000, {t[1]}')
    e = k.v(4)
    for i in range(4): k(f'v_mul_f32 {e[i]}, {fl(-LOG2E)}, {t[2 + i]}')
    for i in range(4): k(f'v_exp_f32 {e[i]}, {e[i]}')
    for i in range(4): k(f'v_add_f32 {e[i]}, 1.0, {e[i]}')
    for i in range(4): k(f'v_rcp_f32 {e[i]}, {e[i]}')
    for i in range(4): k(f'v_mul_f32 {e[i]}, {e[i]}, {t[2 + i]}')
    k(f'v_cvt_pk_bf16_f32 {t[0]}, {e[0]}, {e[1]}\nv_cvt_pk_bf16_f32 {t[1]}, {e[2]}, {e[3]}\nv_add_u32 {vg}, {SVEC}, {vg}')
    k(f'ds_write_b64 {vg}, {t[0:2]}\nv_lshlrev_b32 {vg}, 4, {q}\nv_add_u32 {vg}, {SVEC}, {vg}\ns_waitcnt lgkmcnt(0)\ns_barrier')
    for s in range(18): lg.op(f'ds_read_b128 {sv.sub(4 * s, 4)}, {vg} offset:{64 * s}')
    ad = cj.addr(BUF0)
    k('s_waitcnt vmcnt(0) lgkmcnt(0)\ns_barrier'); SP(10); vm.reset(); lg.reset()
    ids = cj.reads(ad, fr)
    mod_tail(ids, blkA, True); SP(11)
    k(f's_cmp_ge_u32 {jb}, 104\ns_cbranch_scc1 {L_C}')
    cj.dma(RB, srcB, strB, BUF1)
    k('s_waitcnt vmcnt(0)')
    e.release(); t.release(); vg.release()

    k(f'{L_B}:')
    vm, lg = trackers(k); cj.vm, cj.lg = vm, lg
    k(f's_waitcnt vmcnt(1) lgkmcnt(0)\ns_barrier')
    SP(12)
    il = k.s(); k(f's_sub_u32 {il}, {modeB}, 1\ns_cmp_lt_u32 {il}, 2\ns_cselect_b32 {il}, 1, 0')
    ids = cj.read(BUF1, fr, s_il=il, s_w4=modeB)
    notmod, nocenter = k.label('notmod'), k.label('nocenter')
    k(f's_cmp_lg_u32 {modeB}, 0\ns_cbranch_scc1 {notmod}')
    mod_tail(ids, blkB, False)
    k(f's_branch {L_C}\n{notmod}:')
    k('s_waitcnt lgkmcnt(0)'); lg.reset()
    k(f's_bitcmp0_b32 {modeB}, 0\ns_cbranch_scc1 {nocenter}')
    ones = sv.sub(0, 4); t = k.v(4)
    for i in range(4): k(f'v_mov_b32 {ones[i]}, 0x3f803f80')
    for s in range(18): k(f'v_mfma_f32_16x16x32_bf16 {acc}, {ones}, {fr.sub(4 * s, 4)}, {"0" if s == 0 else acc}')
    nm = sv.sub(4, 2)
    k(f'v_mul_f32 {nm[0]}, {fl(-1 / 576)}, {acc[0]}')
    for i in range(0, 72, 2):
        k(f'v_lshlrev_b32 {t[0]}, 16, {fr[i]}\nv_and_b32 {t[1]}, 0xffff0000, {fr[i]}')
        k(f'v_lshlrev_b32 {t[2]}, 16, {fr[i + 1]}\nv_and_b32 {t[3]}, 0xffff0000, {fr[i + 1]}')
        k(f'v_pk_add_f32 {t[0:2]}, {t[0:2]}, {nm} op_sel_hi:[1,0]\nv_pk_add_f32 {t[2:4]}, {t[2:4]}, {nm} op_sel_hi:[1,0]')
        k(f'v_cvt_pk_bf16_f32 {fr[i]}, {t[0]}, {t[1]}\nv_cvt_pk_bf16_f32 {fr[i + 1]}, {t[2]}, {t[3]}')
    k(f'{nocenter}:')
    T = k.s(); j = k.s(); dst = k.s(); step = k.s(); rot = k.s()
    k(f's_lshl_b32 {T}, {blkB}, 2\ns_add_u32 {T}, {T}, {s_w}')
    k(f's_mul_hi_u32 {j}, {T}, {(1 << 32) // 6 + 1}\ns_mul_i32 {dst}, {j}, 6\ns_sub_u32 {dst}, {T}, {dst}\ns_lshl_b32 {dst}, {dst}, 10')
    k(f's_mul_i32 {step}, {j}, 110592\ns_add_u32 {dst}, {dst}, {step}')
    k(f's_mul_i32 {rot}, {j}, 3\ns_sub_u32 {rot}, 18, {rot}\ns_cmp_eq_u32 {rot}, 18\ns_cselect_b32 {rot}, 0, {rot}')
    k(f's_cmp_eq_u32 {modeB}, 1\ns_cselect_b32 {rot}, {rot}, 0\ns_cselect_b32 {step}, 0, {O_W2F - O_W1F}\ns_add_u32 {dst}, {dst}, {step}\ns_add_u32 {dst}, {dst}, {O_W1F}')
    k(f's_mul_i32 {j}, {T}, 18432\ns_add_u32 {j}, {j}, {O_W3F}')
    k(f's_cmp_eq_u32 {modeB}, 4\ns_cselect_b32 {step}, {O_W4F - O_W3F + 256 * 18432}, 0\ns_add_u32 {j}, {j}, {step}')
    k(f's_cmp_ge_u32 {modeB}, 3\ns_cselect_b32 {dst}, {j}, {dst}\ns_cselect_b32 {step}, 1, 6\ns_lshl_b32 {step}, {step}, 10')
    cj.store(fr, None, Rws, dst, step, s_rot=rot)
    k(f's_cmp_lg_u32 {modeB}, 1\ns_cbranch_scc1 {L_C}')
    lp, ok = k.label('pollm'), k.label('gotm')
    k(f'{lp}:\nbuffer_load_dword {t[0]}, {zero[0]}, {Rdbg}, 0 offen offset:192 sc1\ns_waitcnt vmcnt(0)\nv_readfirstlane_b32 {st}, {t[0]}')
    k(f's_cmp_ge_u32 {st}, 1\ns_cbranch_scc1 {ok}\ns_sleep 4\ns_add_u32 {cnt}, {cnt}, 1\ns_cmp_lt_u32 {cnt}, {SPIN_MAX}\ns_cbranch_scc1 {lp}\ns_branch {END}\n{ok}:'); vm.reset()
    k(f'v_and_b32 {t[0]}, 1, {m}\nv_xor_b32 {t[0]}, 1, {t[0]}\nv_mul_u32_u24 {t[0]}, 1152, {t[0]}\nv_lshl_add_u32 {t[0]}, {q}, 4, {t[0]}\ns_mov_b32 {st}, {O_MODB}')
    ids = [vm.op(f'buffer_load_dwordx4 {sv.sub(4 * s, 4)}, {t[0]}, {Rws}, {st} offen offset:{64 * s} sc1') for s in range(18)]
    k(f's_lshr_b32 {j}, {T}, 1\ns_lshl_b32 {j}, {j}, 7\ns_and_b32 {st}, {T}, 1\ns_lshl_b32 {st}, {st}, 4\ns_add_u32 {j}, {j}, {st}\ns_add_u32 {j}, {j}, {O_MODF + 6 * 2304}')
    k(f'v_lshrrev_b32 {t[1]}, 2, {m}\nv_and_b32 {t[2]}, 3, {m}\nv_lshlrev_b32 {t[2]}, 2, {t[2]}\nv_lshl_add_u32 {t[1]}, {t[1]}, 5, {t[2]}')
    for s in range(18):
        vm.wait(ids[s])
        k(f'v_mfma_f32_16x16x32_bf16 {acc}, {sv.sub(4 * s, 4)}, {fr.sub(4 * s, 4)}, {"0" if s == 0 else acc}')
    k(f's_mov_b64 exec, 0xffff\nbuffer_store_dword {acc[0]}, {t[1]}, {Rws}, {j} offen\nbuffer_store_dword {acc[1]}, {t[1]}, {Rws}, {j} offen offset:2304\ns_mov_b64 exec, -1')
    k(f'{L_C}:'); SP(13)
    code_prefetch(k, None, 'k2_kernel', 'k2_end', 40000, 'v0', k.v(2), k.s(2))
    k(f's_branch {END}')

TAB, KD, WSTR = 0, 17408, 19072
HB = 4 * WSTR
HSTR = 4608

def conv(k, P, lane, s_w, END, dump, SP):
    vm, lg = trackers(k)
    cidx = k.s(); s_d = k.s(); st = k.s(); st2 = k.s(); sav = k.s(2)
    k(f's_and_b32 {cidx}, s2, 7\ns_mul_i32 {cidx}, {cidx}, 18\ns_lshr_b32 {st}, s2, 3\ns_add_u32 {cidx}, {cidx}, {st}\ns_sub_u32 {cidx}, {cidx}, 14')
    k(f's_lshl_b32 {s_d}, {cidx}, 2\ns_add_u32 {s_d}, {s_d}, {s_w}\ns_lshl_b32 {st}, {cidx}, 3')
    sdt = k.s(2); sD = k.s(2)
    k(f's_load_dwordx2 {sdt}, {P["logdt"]}, {st}\ns_load_dwordx2 {sD}, {P["Dskip"]}, {st}')
    R = k.s(4); Rws = k.s(4); Rdbg = k.s(4)
    par = k.v(4); t = k.v(8); x = k.v(16)
    k(f'v_lshlrev_b32 {t[0]}, 2, {lane}\ns_lshl_b32 {st2}, {s_d}, 8')
    for i, n in enumerate(('logA', 'Aim', 'Cr', 'Ci')):
        srd(k, R, P[n], D * 128 * 2)
        ipar = vm.op(f'buffer_load_dword {par[i]}, {t[0]}, {R}, {st2} offen nt')
    code_prefetch(k, vm, 'k1_conv', 'k1_end', 16384, 'v0', k.v(2), k.s(2), back=True)
    srd(k, Rws, P['ws'], WS_USED); srd(k, Rdbg, P['dbg'], 256)
    wb = k.s(); k(f's_mul_i32 {wb}, {s_w}, {WSTR}')
    q = k.v(); m = k.v(); ag = k.v(); am = k.v(); a4 = k.v(); fl_v = k.v()
    k(f'v_lshrrev_b32 {q}, 4, {lane}\nv_and_b32 {m}, 15, {lane}')
    ga = k.v(32); cst = k.v()
    k(f's_add_u32 {st2}, {wb}, {KD - 2 * (134 * 128 - 128)}\nv_mov_b32 {cst}, {st2}')
    k(f'v_lshlrev_b32 {t[2]}, 3, {lane}\nv_cvt_f32_u32 {t[2]}, {t[2]}')
    for c in range(4):
        for e in range(0, 8, 2):
            k(f'v_add_f32 {t[4]}, {fl(512 * c + e)}, {t[2]}\nv_add_f32 {t[5]}, {fl(512 * c + e + 1)}, {t[2]}\nv_cvt_pk_bf16_f32 {t[4]}, {t[4]}, {t[5]}')
            k(f'v_mad_u32_u16 {ga[8 * c + e]}, {t[4]}, 2, {cst}\nv_mad_u32_u16 {ga[8 * c + e + 1]}, {t[4]}, 2, {cst} op_sel:[1,0,0,0]')
    k(f's_add_u32 {st2}, {wb}, {KD}\nv_lshl_add_u32 {t[4]}, {lane}, 4, {st2}\nv_cmp_gt_u32 vcc, 16, {lane}')
    for e in range(8): k(f'v_add_u32 {t[5]}, {2 * e}, {t[4]}\nv_cndmask_b32 {ga[e]}, {ga[e]}, {t[5]}, vcc')
    VM = vmaps()
    kda = k.v(4)
    k(f'v_lshlrev_b32 {t[2]}, 2, {m}')
    for s in range(4):
        lut = sum((VM[s][j] >> s) << (4 * j) for j in range(16))
        base = 0 if s == 0 else 128 + 128 * s
        k(f's_mov_b32 {sav[0]}, {lut & 0xffffffff}\ns_mov_b32 {sav[1]}, {lut >> 32}\nv_lshrrev_b64 {t[4:6]}, {t[2]}, {sav}\nv_and_b32 {t[4]}, 15, {t[4]}')
        k(f'v_lshl_add_u32 {t[4]}, {q}, 6, {t[4]}\ns_add_u32 {st2}, {wb}, {KD + 2 * base}\nv_lshl_add_u32 {kda[s]}, {t[4]}, 1, {st2}')
    cst.release()
    atw = k.v(); atr = k.v()
    k(f'v_lshl_add_u32 {atw}, {lane}, 3, {wb}\nv_mul_u32_u24 {atr}, 544, {m}\nv_lshl_add_u32 {atr}, {q}, 4, {atr}\nv_add_u32 {atr}, {wb}, {atr}')
    z4 = k.v(4)
    for i in range(4): k(f'v_mov_b32 {z4[i]}, 0')
    k(f'v_lshrrev_b32 {t[4]}, 5, v0\nv_mul_u32_u24 {t[4]}, {HSTR}, {t[4]}\nv_and_b32 {t[5]}, 31, v0\nv_lshl_add_u32 {t[4]}, {t[5]}, 4, {t[4]}\nv_add_u32 {t[4]}, {HB}, {t[4]}')
    k(f'v_cmp_gt_u32 vcc, 128, v0\ns_and_saveexec_b64 {sav}, vcc\nds_write_b128 {t[4]}, {z4}\ns_mov_b64 exec, {sav}')
    k('s_waitcnt lgkmcnt(0)')
    k(f's_lshl_b32 {st2}, {s_w}, 4\ns_lshr_b64 {sdt}, {sdt}, {st2}\ns_lshl_b32 {sdt[0]}, {sdt[0]}, 16')
    dt = k.v(); ks = k.v()
    k(f'v_mov_b32 {dt}, {fl(LOG2E)}\nv_mul_f32 {dt}, {sdt[0]}, {dt}\nv_exp_f32 {dt}, {dt}\nv_cvt_pk_bf16_f32 {dt}, {dt}, {dt}\nv_and_b32 {dt}, 0xffff0000, {dt}')
    SP(1); vm.wait(ipar); SP(2)
    pr = lambda: [k.v(2), k.v(2)]
    w1, w16, U = pr(), pr(), pr()
    er = k.v(2); rev = k.v(2)
    un = lambda d, s_, hi: f'v_and_b32 {d}, 0xffff0000, {s_}' if hi else f'v_lshlrev_b32 {d}, 16, {s_}'
    for md in range(2):
        k(un(er[md], par[0], md)); k(un(rev[md], par[1], md)); k(un(U[0][md], par[2], md)); k(un(U[1][md], par[3], md))
    for md in range(2): k(f'v_mul_f32 {er[md]}, {fl(LOG2E)}, {er[md]}')
    for md in range(2): k(f'v_exp_f32 {er[md]}, {er[md]}')
    k(f'v_max3_f32 {t[0]}, |{U[0][0]}|, |{U[0][1]}|, |{U[1][0]}|\nv_max_f32 {t[0]}, |{U[1][1]}|, {t[0]}')
    k(f'v_cvt_pk_bf16_f32 {t[1]}, {er[0]}, {er[1]}')
    for mm in ('quad_perm:[1,0,3,2]', 'quad_perm:[2,3,0,1]', 'row_half_mirror', 'row_mirror'):
        k(f'v_max_f32_dpp {t[0]}, {t[0]}, {t[0]} {mm} row_mask:0xf bank_mask:0xf')
    for md in range(2):
        k(un(er[md], t[1], md))
        k(f'v_mul_f32 {er[md]}, {er[md]}, {dt}\nv_mul_f32 {rev[md]}, {rev[md]}, {dt}')
        k(f'v_mul_f32 {er[md]}, {fl(-LOG2E)}, {er[md]}\nv_mul_f32 {rev[md]}, 0.15915494, {rev[md]}')
    k(f'v_readlane_b32 {st2}, {t[0]}, 0\nv_readlane_b32 {sav[0]}, {t[0]}, 16\nv_readlane_b32 {sav[1]}, {t[0]}, 32\nv_readlane_b32 {st}, {t[0]}, 48')
    k(f's_max_u32 {st2}, {st2}, {sav[0]}\ns_max_u32 {st}, {st}, {sav[1]}\ns_max_u32 {st2}, {st2}, {st}')
    for w_, mul in ((w1, None), (w16, '16.0')):
        for md in range(2):
            a, b = t[2 + md], t[4 + md]
            if mul: k(f'v_mul_f32 {a}, {fl(16.)}, {er[md]}\nv_mul_f32 {b}, {fl(16.)}, {rev[md]}\nv_fract_f32 {b}, {b}\nv_exp_f32 {a}, {a}')
            else: k(f'v_fract_f32 {b}, {rev[md]}\nv_exp_f32 {a}, {er[md]}')
            k(f'v_cos_f32 {w_[0][md]}, {b}\nv_sin_f32 {w_[1][md]}, {b}')
        for c in range(2): k(f'v_pk_mul_f32 {w_[c]}, {w_[c]}, {t[2:4]}')
    k(f'v_frexp_exp_i32_f32 {t[0]}, {st2}\nv_sub_u32 {t[1]}, 8, {t[0]}\nv_add_u32 {t[0]}, -7, {t[0]}\nv_ldexp_f32 {ks}, {dt}, {t[0]}')
    for md in range(2):
        for c in range(2): k(f'v_ldexp_f32 {U[c][md]}, {U[c][md]}, {t[1]}')
    er.release(); rev.release(); dt.release()
    tm = [k.v(2) for _ in range(4)]
    def cmul(d, z, s_, ta, tb):
        return [f'v_pk_mul_f32 {ta}, {z[1]}, {s_[1]}', f'v_pk_mul_f32 {tb}, {z[0]}, {s_[1]}',
                f'v_pk_fma_f32 {d[0]}, {z[0]}, {s_[0]}, {ta} neg_lo:[0,0,1] neg_hi:[0,0,1]', f'v_pk_fma_f32 {d[1]}, {z[1]}, {s_[0]}, {tb}']
    w32, w64, w128, w2, w4, w8, V = pr(), pr(), pr(), pr(), pr(), pr(), pr()
    for d_, s_ in ((w32, w16), (w64, w32), (w128, w64)):
        for x_ in cmul(d_, s_, s_, tm[0], tm[1]): k(x_)
    pv = [k.v(2), k.v(2)]; pu = [k.v(2), k.v(2)]
    fa = k.v(32, 4); fb = k.v(32, 4); kacc = k.v(16, 4)
    state = {'V': None, 'nv': 0, 'nu': 0}
    def v_entry(val, slot):
        out = []
        pk = pv[state['nv'] & 1]; state['nv'] += 1
        if val == 0:
            out += [f'v_mov_b32 {pk[0]}, 0x3c00', f'v_mov_b32 {pk[1]}, 0x3c00']
        else:
            if val == 1: cur = w1
            else:
                step = w1 if val <= 16 else w2 if val <= 32 else w4 if val <= 64 else w8
                cur = {2: w2, 4: w4, 8: w8}.get(val, V)
                out += cmul(cur, state['V'], step, tm[0], tm[1])
            state['V'] = cur
            out += [f'v_cvt_pk_f16_f32 {pk[md]}, {cur[0][md]}, {cur[1][md]}' for md in range(2)]
        out.append(('ds', f'ds_write_b64 {atw}, {pk} offset:{TAB + slot * 544}'))
        return out
    def u_entry(val, row):
        out = []
        pk = pu[state['nu'] & 1]; state['nu'] += 1
        if val:
            step = w16 if val <= 256 else w32 if val <= 512 else w64 if val <= 1024 else w128
            out += cmul(U, U, step, tm[2], tm[3])
        out += [f'v_cvt_pk_f16_f32 {pk[md]}, {U[0][md]}, -{U[1][md]}' for md in range(2)]
        out.append(('ds', f'ds_write_b64 {atw}, {pk} offset:{TAB + (16 + row) * 544}'))
        return out
    def put(x_):
        if isinstance(x_, tuple): return lg.op(x_[1])
        k(x_)
    pend = []
    ifl = None
    for s in range(4):
        vs = sorted((VM[s][j], j) for j in range(16) if s == 0 or VM[s][j] != VM[s - 1][j])
        us = [16 * u for u in range(16)] if s == 0 else [(128 << s) + (16 << s) * u for u in range(9 if s == 3 else 8)]
        sv_ = [x_ for val, j in vs for x_ in v_entry(val, j)]
        su_ = [x_ for r_, val in enumerate(us) for x_ in u_entry(val, r_)]
        stream = interleave(sv_, su_)
        for n_, x_ in enumerate(stream):
            put(x_)
            if pend and n_ >= 8 and n_ % 4 == 0:
                idr, mf = pend.pop(0); lg.wait(idr); k(mf)
        assert not pend
        for kk in range(8):
            lg.op(f'ds_read_b128 {fa.sub(4 * kk, 4)}, {atr} offset:{TAB + 16 * 544 + 64 * kk}')
            i_ = lg.op(f'ds_read_b128 {fb.sub(4 * kk, 4)}, {atr} offset:{TAB + 64 * kk}')
            ac = kacc.sub(4 * s, 4)
            pend.append((i_, f'v_mfma_f32_16x16x32_f16 {ac}, {fa.sub(4 * kk, 4)}, {fb.sub(4 * kk, 4)}, {"0" if kk == 0 else ac}'))
    for x_ in (w1, w16, w32, w64, w128, w2, w4, w8, V, U, tm, pv, pu):
        for y_ in x_: y_.release()
    sg = k.v(8, 2); md_ = k.v(16, 4); cnt = k.s()
    def kd_out(s):
        ac = kacc.sub(4 * s, 4)
        for e in range(4): k(f'v_mul_f32 {ac[e]}, {ks}, {ac[e]}')
        k(f'v_cvt_pk_bf16_f32 {ac[0]}, {ac[0]}, {ac[1]}\nv_cvt_pk_bf16_f32 {ac[2]}, {ac[2]}, {ac[3]}')
        for e in range(4): lg.op(f'ds_write_b16{"_d16_hi" if e & 1 else ""} {kda[s]}, {ac[e & 2]} offset:{32 * e}')
    for s in range(3): kd_out(s)
    SP(3); lg.reset() if SP.on else None
    while pend:
        idr, mf = pend.pop(0); lg.wait(idr); k(mf)
    kd_out(3)
    kc = fa.sub(0, 16); pvv = fa.sub(16, 8)
    gid = [lg.op(f'ds_read_u16 {ga[e]}, {ga[e]}') for e in range(32)]
    aw = kda[0]; ap = kda[1]
    k(f'v_lshl_add_u32 {aw}, {lane}, 4, {wb}\nv_lshrrev_b32 {ap}, 1, {lane}\nv_mul_u32_u24 {ap}, 4160, {ap}\nv_and_b32 {t[1]}, 1, {lane}')
    k(f'v_lshl_add_u32 {ap}, {t[1]}, 4, {ap}\nv_add_u32 {ap}, {wb}, {ap}')
    k(f's_mov_b64 exec, 0xff'); lg.op(f'ds_write_b128 {ap}, {z4}'); k('s_mov_b64 exec, -1')
    for c in range(4):
        lg.wait(gid[8 * c + 7])
        for e in range(4): k(f'v_lshl_or_b32 {kc[4 * c + e]}, {ga[8 * c + 2 * e + 1]}, 16, {ga[8 * c + 2 * e]}')
        lg.op(f'ds_write_b128 {aw}, {kc.sub(4 * c, 4)} offset:{32 + 1024 * c}')
    ids = [lg.op(f'ds_read_b64 {pvv.sub(2 * c, 2)}, {aw} offset:{24 + 1024 * c}') for c in range(4)]
    for c in range(4):
        lg.wait(ids[c])
        o = fb.sub(12 * (c & 1), 12); d_ = kc.sub(4 * c, 4); p0, p1 = pvv[2 * c], pvv[2 * c + 1]
        seq = [p0, p1, d_[0], d_[1], d_[2], d_[3]]
        o3 = o.sub(0, 4); o1 = o.sub(4, 4); o2 = o.sub(8, 4)
        for i in range(4): k(f'v_alignbit_b32 {o3[i]}, {seq[i + 1]}, {seq[i]}, 16')
        for i in range(3): k(f'v_mov_b32 {o1[i]}, {o3[i + 1]}')
        k(f'v_alignbit_b32 {o1[3]}, {seq[5]}, {seq[4]}, 16')
        for i in range(4): k(f'v_mov_b32 {o2[i]}, {seq[i + 1]}')
        for r_, oo in ((1, o1), (2, o2), (3, o3)): lg.op(f'ds_write_b128 {aw}, {oo} offset:{4160 * r_ + 32 + 1024 * c}')
    if dump:
        k(f's_lshl_b32 {st}, {s_d}, 12\ns_add_u32 {st}, {st}, {O_DBG}\nv_lshlrev_b32 {t[1]}, 4, {lane}')
        for c in range(4): vm.op(f'buffer_store_dwordx4 {kc.sub(4 * c, 4)}, {t[1]}, {Rws}, {st} offen offset:{1024 * c}')
    ga.release(); acc = k.v(32, 4); kacc.release(); ks.release(); atw.release(); atr.release()
    SP(4); lg.reset() if SP.on else None
    lp, ok = k.label('pollc'), k.label('cleared')
    k(f's_mov_b32 {cnt}, 0\ns_cmp_lg_u32 {s_w}, 0\ns_cbranch_scc1 {ok}')
    k(f'{lp}:\nbuffer_load_dword {fl_v}, {z4[0]}, {Rdbg}, 0 offen offset:192 sc1\ns_waitcnt vmcnt(0)\nv_readfirstlane_b32 {st}, {fl_v}')
    k(f's_cmp_ge_u32 {st}, 1\ns_cbranch_scc1 {ok}\ns_add_u32 {cnt}, {cnt}, 1\ns_cmp_lt_u32 {cnt}, {SPIN_MAX}\ns_cbranch_scc1 {lp}\ns_branch {END}')
    k(f'{ok}:\ns_barrier')
    SP(14); lg.reset() if SP.on else None
    k(f'v_lshlrev_b32 {ag}, 4, v0\nv_lshlrev_b32 {am}, 3, v0\nv_lshlrev_b32 {a4}, 2, v0\ns_lshl_b32 {st}, {cidx}, 14\ns_add_u32 {st}, {st}, {O_XT}')
    for i in range(4):
        vm.op(f'buffer_load_dwordx4 {x.sub(4 * i, 4)}, {ag}, {Rws}, {st} offen sc1')
        if i < 3: k(f's_add_u32 {st}, {st}, 4096')
    k(f's_mov_b32 {st}, {O_STATS}\ns_mov_b32 {st2}, {O_STATS + 4096}')
    for i in range(4): vm.op(f'buffer_load_dwordx2 {sg.sub(2 * i, 2)}, {am}, {Rws}, {(st, st2)[i // 2]} offen offset:{2048 * (i & 1)} sc1')
    k(f's_lshl_b32 {st}, {cidx}, 4\ns_add_u32 {st}, {st}, {O_MODF}\ns_add_u32 {st2}, {st}, 4608')
    for i, (sr, off) in enumerate(((st, 0), (st, 2304), (st2, 0))): vm.op(f'buffer_load_dwordx4 {md_.sub(4 * i, 4)}, {z4[0]}, {Rws}, {sr} offen offset:{off} sc1')
    k(f's_add_u32 {st2}, {st2}, 4608')
    vm.op(f'buffer_load_dwordx4 {md_.sub(12, 4)}, {z4[0]}, {Rws}, {st2} offen sc1')
    vm.all()
    SP(5)
    xf = k.v(32); hf = k.v(32); st_ = k.v(16)
    for i in range(8): k(f'v_and_b32 {st_[2 * i]}, 0xffff0000, {sg[i]}\nv_lshlrev_b32 {st_[2 * i + 1]}, 16, {sg[i]}')
    for i in range(8): k(f'v_rcp_f32 {st_[2 * i]}, {st_[2 * i]}')
    for i in range(16): k(f'v_lshlrev_b32 {xf[2 * i]}, 16, {x[i]}\nv_and_b32 {xf[2 * i + 1]}, 0xffff0000, {x[i]}')
    for i in range(8): k(f'v_mul_f32 {st_[2 * i + 1]}, -{st_[2 * i + 1]}, {st_[2 * i]}')
    k(f'v_add_u32 {am}, {HB + 512}, {a4}')
    for i in range(4):
        for j in range(4 * i, 4 * i + 4): k(f'v_pk_fma_f32 {hf.sub(2 * j, 2)}, {xf.sub(2 * j, 2)}, {st_.sub(2 * (j // 2), 2)}, {st_.sub(2 * (j // 2), 2)} op_sel:[0,0,1] op_sel_hi:[1,0,1]')
        for j in range(4 * i, 4 * i + 4): k(f'v_pk_fma_f32 {hf.sub(2 * j, 2)}, {hf.sub(2 * j, 2)}, {md_.sub(4 + 2 * (j & 1), 2)}, {md_.sub(2 * (j & 1), 2)}')
        for c in range(4): k(f'v_cvt_pk_bf16_f32 {x[4 * i + c]}, {hf[8 * i + c]}, {hf[8 * i + 4 + c]}')
        for c in range(4): lg.op(f'ds_write_b32 {am}, {x[4 * i + c]} offset:{HSTR * c + 1024 * i}')
    st_.release(); sg.release()
    aA = kda[2]; aB = kda[3]
    k(f'v_bfe_u32 {t[0]}, {lane}, 2, 2\nv_mul_u32_u24 {aA}, 4160, {t[0]}\nv_and_b32 {t[0]}, 3, {lane}\nv_lshl_add_u32 {aA}, {t[0]}, 3, {aA}')
    k(f'v_lshlrev_b32 {t[0]}, 4, {q}\nv_sub_u32 {aA}, {aA}, {t[0]}\ns_add_u32 {st}, {wb}, 56\nv_add_u32 {aA}, {st}, {aA}')
    k(f's_mul_i32 {st}, {s_w}, {HSTR}\ns_add_u32 {st}, {st}, {HB + 480}\nv_lshl_add_u32 {aB}, {m}, 5, {t[0]}\nv_add_u32 {aB}, {st}, {aB}')
    lg.all(); k('s_barrier'); SP(6)
    fa2 = k.a(32, 4); fb2 = k.a(32, 4)
    sets = [(fa, fb), (fa2, fb2)]
    def reads(st_, aoff, boff):
        A_, B_ = sets[st_]; out = []
        for i in range(8):
            out.append(f'ds_read_b128 {B_.sub(4 * i, 4)}, {aB} offset:{boff + 512 * i}')
            out.append(f'ds_read_b64_tr_b16 {A_.sub(4 * i, 2)}, {aA} offset:{aoff + 8 + 512 * i}')
            out.append(f'ds_read_b64_tr_b16 {A_.sub(4 * i + 2, 2)}, {aA} offset:{aoff + 512 * i}')
        return out
    for x_ in reads(0, 0, 0): k(x_)
    for i in range(32): k(f'v_mov_b32 {acc[i]}, 0')
    k(f'v_add_u32 {aB}, -128, {aB}\ns_mov_b32 {cnt}, 4')
    lp = k.label('conv')
    k(f'{lp}:')
    for half in range(2):
        rd = reads(1 - half, 64 * (half + 1), 64 * (1 - half))
        A_, B_ = sets[half]
        k('s_waitcnt lgkmcnt(0)')
        n_ = 0
        for i in range(8):
            for tt in range(i, 8):
                k(f'v_mfma_f32_16x16x32_bf16 {acc.sub(4 * tt, 4)}, {A_.sub(4 * i, 4)}, {B_.sub(4 * (tt - i), 4)}, {acc.sub(4 * tt, 4)}')
                if n_ < 24: k(rd[n_])
                n_ += 1
    k(f'v_add_u32 {aA}, 128, {aA}\nv_add_u32 {aB}, -128, {aB}\ns_sub_u32 {cnt}, {cnt}, 1\ns_cmp_lg_u32 {cnt}, 0\ns_cbranch_scc1 {lp}')
    k('s_waitcnt lgkmcnt(0)')
    SP(7)
    k(f'v_lshlrev_b32 {t[0]}, 3, {q}\nv_lshl_add_u32 {t[0]}, {m}, 5, {t[0]}\nv_add_u32 {t[0]}, {wb}, {t[0]}')
    for tt in range(8):
        o = fa.sub(2 * tt, 2)
        k(f'v_cvt_pk_bf16_f32 {o[0]}, {acc[4 * tt]}, {acc[4 * tt + 1]}\nv_cvt_pk_bf16_f32 {o[1]}, {acc[4 * tt + 2]}, {acc[4 * tt + 3]}')
        k(f'ds_write_b64 {t[0]}, {o} offset:{512 * tt}')
    dv = t.sub(4, 4)
    k(f's_lshl_b32 {st}, {sD[0]}, 16\ns_and_b32 {st2}, {sD[0]}, 0xffff0000\nv_mov_b32 {dv[0]}, {st}\nv_mov_b32 {dv[1]}, {st2}')
    k(f's_lshl_b32 {st}, {sD[1]}, 16\ns_and_b32 {st2}, {sD[1]}, 0xffff0000\nv_mov_b32 {dv[2]}, {st}\nv_mov_b32 {dv[3]}, {st2}')
    k('s_waitcnt lgkmcnt(0)\ns_barrier')
    lg.reset()
    yp = fb.sub(0, 16); yf = acc; o = fa
    ids = [[lg.op(f'ds_read_b32 {yp[4 * i + c]}, {a4} offset:{WSTR * c + 1024 * i}') for c in range(4)] for i in range(4)]
    k(f's_lshl_b32 {st}, {cidx}, 15\ns_lshl_b32 {st2}, {s_w}, 11\ns_add_u32 {st}, {st}, {st2}\ns_add_u32 {st}, {st}, {O_X2}')
    k(f's_add_u32 {st2}, {wb}, 4096\nv_lshl_add_u32 {am}, {lane}, 5, {st2}\nv_lshl_add_u32 {a4}, {lane}, 4, {st2}\nv_lshlrev_b32 {ag}, 4, {lane}')
    odd, fin = k.label('odd'), k.label('fin')
    for i in range(4):
        lg.wait(ids[i][3])
        for c in range(4): k(f'v_lshlrev_b32 {yf[8 * i + c]}, 16, {yp[4 * i + c]}\nv_and_b32 {yf[8 * i + 4 + c]}, 0xffff0000, {yp[4 * i + c]}')
        for j in range(4 * i, 4 * i + 4): k(f'v_pk_fma_f32 {yf.sub(2 * j, 2)}, {hf.sub(2 * j, 2)}, {dv.sub(2 * (j & 1), 2)}, {yf.sub(2 * j, 2)}')
        for j in range(4 * i, 4 * i + 4): k(f'v_pk_fma_f32 {yf.sub(2 * j, 2)}, {yf.sub(2 * j, 2)}, {md_.sub(8 + 2 * (j & 1), 2)}, {xf.sub(2 * j, 2)}')
        for j in range(4 * i, 4 * i + 4): k(f'v_pk_mul_f32 {xf.sub(2 * j, 2)}, {yf.sub(2 * j, 2)}, {md_.sub(12 + 2 * (j & 1), 2)}')
    k(f's_bitcmp1_b32 {cidx}, 0\ns_cbranch_scc1 {odd}')
    for par_ in range(2):
        A_, B_ = (yf, xf) if par_ == 0 else (xf, yf)
        for r_ in range(8):
            for c in range(2):
                k(f'v_cvt_pk_bf16_f32 {o[4 * r_ + c]}, {A_[4 * r_ + 2 * c]}, {A_[4 * r_ + 2 * c + 1]}')
                k(f'v_cvt_pk_bf16_f32 {o[4 * r_ + 2 + c]}, {B_[4 * r_ + 2 * c]}, {B_[4 * r_ + 2 * c + 1]}')
            k(f'ds_write_b128 {am}, {o.sub(4 * r_, 4)} offset:{2048 * (r_ >> 1) + 16 * (r_ & 1)}')
        if par_ == 0: k(f's_branch {fin}\n{odd}:')
    k(f'{fin}:'); lg.reset()
    ids = [lg.op(f'ds_read_b128 {fb.sub(4 * r_, 4)}, {a4} offset:{1024 * r_}') for r_ in range(8)]
    for r_ in range(8):
        lg.wait(ids[r_])
        k(f'buffer_store_dwordx4 {fb.sub(4 * r_, 4)}, {ag}, {Rws}, {st} offen offset:{1024 * (r_ & 1)} sc1')
        if r_ & 1 and r_ < 7: k(f's_add_u32 {st}, {st}, 8192')

def build_k1(dump=False, stamps=False):
    k = Kern('k1_kernel', nv=256, na=64)
    END = 'k1_end'
    k(f's_cmp_ge_u32 s2, 256\ns_cbranch_scc1 {END}')
    SP = Stamper(k, stamps, 1); SP.init(); SP(0)
    P = kernargs(k)
    lane = k.v(); s_w = k.s()
    k(f'v_lshrrev_b32 {lane}, 6, v0\nv_readfirstlane_b32 {s_w}, {lane}\nv_and_b32 {lane}, 63, v0')
    k('s_waitcnt lgkmcnt(0)\ns_cmp_ge_u32 s2, 112\ns_cbranch_scc1 k1_conv')
    fv, fs = list(k.V.free), list(k.S.free)
    service(k, P, lane, s_w, END, SP)
    k.V.free, k.S.free = fv, fs
    k('k1_conv:')
    conv(k, P, lane, s_w, END, dump, SP)
    k(f'{END}:')
    if stamps:
        k('s_cmp_ge_u32 s2, 256\ns_cbranch_scc1 stamp_done_1\ns_waitcnt vmcnt(0)'); SP(15); SP.flush(P)
    k('s_endpgm')
    k.finish()
    return k

if __name__ == '__main__':
    k = build_k1(dump=True)
    print('k1 lines', len(k.l), 'nops', k.nops, 'regs', k.counts(), 'sgpr top', k.S.top)
    open('k1.s', 'w').write(module([k], 136))
```

```python
from common import *

K2_LDS = 159744
W2X = 122880
WBUF, TABS = 0, 110592
T_B, T_F = TABS, TABS + 7168
XBUF, HBUF = 0, 73728
SPIN_MAX = 40000
GC1 = -2.0 * LOG2E * 0.7978845608028654
GC2 = GC1 * 0.044715
PI = [0, 1, 2, 3, 5, 6, 7, 9, 10, 11, 12, 14, 15, 16, 4, 8, 13, 17]
MF = 'v_mfma_f32_16x16x32_bf16'

def un(d, s_, hi): return f'v_and_b32 {d}, 0xffff0000, {s_}' if hi else f'v_lshlrev_b32 {d}, 16, {s_}'

def gelu_consts(k, sig, c):
    k(f'v_mov_b32 {c[2]}, {sig}\nv_rcp_f32 {c[0]}, {sig}')
    k(f'v_mul_f32 {c[1]}, {c[0]}, {c[0]}\nv_mul_f32 {c[1]}, {c[1]}, {c[0]}')
    k(f'v_mul_f32 {c[0]}, {fl(GC1)}, {c[0]}\nv_mul_f32 {c[1]}, {fl(GC2)}, {c[1]}')

def build_k2(stamps=False, opt=()):
    k = Kern('k2_kernel', nv=256, na=256)
    END = 'k2_end'
    k(f's_cmp_ge_u32 s2, 256\ns_cbranch_scc1 {END}')
    P = kernargs(k)
    code_prefetch(k, None, 'k2_kernel', 'k2_end', 32768, 'v0', k.v(2), k.s(2), back=True)
    lane = k.v(); s_w = k.s(); q = k.v(); m = k.v(); l16 = k.v()
    k(f'v_lshrrev_b32 {lane}, 6, v0\nv_readfirstlane_b32 {s_w}, {lane}\nv_and_b32 {lane}, 63, v0')
    k(f'v_lshrrev_b32 {q}, 4, {lane}\nv_and_b32 {m}, 15, {lane}\nv_lshlrev_b32 {l16}, 4, {lane}')
    rb = k.s(); jm = k.s(); mb = k.s(); fs = k.s(); st = k.s(); st1 = k.s(); sav = k.s(2); cnt = k.s(); mt = k.s()
    k(f's_and_b32 {st}, s2, 1\ns_lshl_b32 {mb}, {st}, 4\ns_bfe_u32 {st}, s2, 0x20001\ns_lshl_b32 {fs}, {st}, 1\ns_lshl_b32 {rb}, {st}, 2\ns_add_u32 {rb}, {rb}, {mb}')
    k(f's_bfe_u32 {st}, s2, 0x20003\ns_add_u32 {rb}, {rb}, {st}\ns_lshr_b32 {jm}, s2, 5')
    k(f's_bfe_u32 {st}, s2, 0x40003\ns_add_u32 {mb}, {mb}, {st}\ns_lshr_b32 {st}, s2, 7\ns_add_u32 {fs}, {fs}, {st}')
    k(f's_lshl_b32 {mt}, {rb}, 2\ns_add_u32 {mt}, {mt}, {s_w}\ns_mov_b32 {cnt}, 0')
    Rws = k.s(4); RG = k.s(4); RW = k.s(4)
    one = k.v(); zero = k.v(); k(f'v_mov_b32 {one}, 1\nv_mov_b32 {zero}, 0')
    SP = Stamper(k, stamps, 0); SP.init()
    k('s_waitcnt lgkmcnt(0)')
    srd(k, Rws, P['ws'], WS_USED); srd(k, RW, P['ws'], WS_USED)
    vm, lg = trackers(k)
    def STAMP(i):
        if stamps: SP(i); lg.reset()
    def flag_add(s_idx, base):
        k(f's_lshl_b32 {st}, {s_idx}, 7\ns_add_u32 {st}, {st}, {base}\ns_mov_b64 exec, 1')
        vm.op(f'buffer_atomic_add {one}, {zero}, {Rws}, {st} offen sc1')
        k('s_mov_b64 exec, -1')
    def poll(vaddr, base, target, sleep=0):
        fv = k.v(); lp, ok = k.label('poll'), k.label('ok')
        k(f's_mov_b32 {st1}, {base}\n{lp}:\nbuffer_load_dword {fv}, {vaddr}, {Rws}, {st1} offen sc1\ns_waitcnt vmcnt(0)')
        k(f'v_cmp_gt_u32 vcc, {target}, {fv}\ns_cmp_eq_u64 vcc, 0\ns_cbranch_scc1 {ok}')
        if sleep: k(f's_sleep {sleep}')
        k(f's_add_u32 {cnt}, {cnt}, 1\ns_cmp_lt_u32 {cnt}, {SPIN_MAX}\ns_cbranch_scc1 {lp}\ns_branch {END}\n{ok}:')
        vm.reset(); fv.release()
    W = [k.a(72, 4), k.a(72, 4)]; vo = [l16] + [k.v() for _ in range(4)]
    for g in range(1, 5): k(f'v_add_u32 {vo[g]}, {4096 * g}, {l16}')
    sn = k.s(); s4 = k.s()
    k(f's_lshl_b32 {sn}, {fs}, 2\ns_add_u32 {sn}, {sn}, {s_w}\ns_mul_i32 {sn}, {sn}, {9 * 18432}\ns_add_u32 {s4}, {sn}, {O_W4F}\ns_add_u32 {sn}, {sn}, {O_W3F}')
    wld = lambda r_, ks: f'buffer_load_dwordx4 {W[r_].sub(4 * ks, 4)}, {vo[ks // 4]}, {RW}, {sn} offen offset:{1024 * (ks % 4)}'
    STAMP(0)
    k(f's_cmp_ge_u32 {jm}, 6\ns_cbranch_scc1 k2_idle')
    keepV, keepA, keepS = list(k.V.free), list(k.A.free), list(k.S.free)

    XX = k.v(146, 2); t = k.v(8); row = k.v()
    sm = k.s(); so = k.s(); so2 = k.s()
    k(f's_lshl_b32 {st}, {s_w}, 6\nv_add_u32 {t[2]}, {st}, {lane}\ns_lshl_b32 {sm}, {s_w}, 10')
    k(f'v_cmp_le_u32 vcc, 72, {t[2]}\nv_subrev_u32 {t[3]}, 72, {t[2]}\nv_cndmask_b32 {t[3]}, {t[2]}, {t[3]}, vcc\nv_add_u32 {t[3]}, 72, {t[3]}')
    k(f'v_cmp_le_u32 vcc, 144, {t[2]}\nv_subrev_u32 {t[4]}, 144, {t[2]}\nv_cndmask_b32 {t[3]}, {t[3]}, {t[4]}, vcc')
    k(f'v_cmp_le_u32 vcc, 216, {t[2]}\nv_subrev_u32 {t[4]}, 216, {t[2]}\nv_cndmask_b32 {t[3]}, {t[3]}, {t[4]}, vcc\nv_lshlrev_b32 {t[3]}, 4, {t[3]}')
    k(f's_add_u32 m0, {sm}, {T_B + 2304}\ns_mov_b32 {so}, {O_MODB}')
    vm.op(f'buffer_load_dwordx4 {t[3]}, {Rws}, {so} offen lds')
    k(f'v_add_u32 {t[4]}, 40, {lane}\nv_mul_u32_u24 {t[5]}, 43691, {t[2]}\nv_lshrrev_b32 {t[5]}, 20, {t[5]}\nv_mul_u32_u24 {t[6]}, 120, {t[5]}\nv_add_u32 {t[6]}, {t[6]}, {t[2]}')
    k(f's_cmp_eq_u32 {s_w}, 3\ns_cselect_b64 vcc, -1, 0\nv_cndmask_b32 {t[6]}, {t[6]}, {t[4]}, vcc\nv_lshlrev_b32 {t[6]}, 4, {t[6]}')
    k(f's_mul_i32 {so}, {jm}, 384\ns_add_u32 {so}, {so}, {O_MOD2}\ns_add_u32 {st}, {sm}, {T_F}\ns_cmp_eq_u32 {s_w}, 3')
    k(f's_cselect_b32 {so}, {O_MODB}, {so}\ns_cselect_b32 m0, {T_B + 2304 + 4096}, {st}')
    k(f's_cselect_b32 exec_hi, 0, -1')
    vm.op(f'buffer_load_dwordx4 {t[6]}, {Rws}, {so} offen lds')
    k('s_mov_b64 exec, -1')
    k(f's_lshl_b32 {st}, {mt}, 4\nv_add_u32 {row}, {st}, {m}')
    k(f'v_lshlrev_b32 {t[0]}, 16, {q}\nv_lshl_add_u32 {t[0]}, {row}, 4, {t[0]}\nv_add_u32 {t[1]}, 0x8000, {t[0]}')
    k(f's_mul_i32 {so}, {jm}, 110592\ns_add_u32 {so}, {so}, {sm}\ns_add_u32 {so2}, {so}, {O_W2F}\ns_add_u32 {so}, {so}, {O_W1F}\ns_mul_i32 {st1}, {jm}, 3')
    def wdma(sreg, lds):
        k(f's_add_u32 m0, {sm}, {lds}')
        i_ = vm.op(f'buffer_load_dwordx4 {l16}, {Rws}, {sreg} offen lds')
        k(f's_add_u32 {sreg}, {sreg}, 4096')
        return i_
    w2lds = lambda n: (W2X + 4096 * n) if n < 9 else (WBUF + 4096 * (n - 9))
    ix = []; iw = []
    def issue(i):
        k(f's_lshl_b32 {st}, {st1}, 18\ns_add_u32 {st}, {st}, {O_X2}')
        vm.op(f'buffer_load_dwordx4 {XX.sub(8 * i, 4)}, {t[0]}, {Rws}, {st} offen')
        ix.append(vm.op(f'buffer_load_dwordx4 {XX.sub(8 * i + 4, 4)}, {t[1]}, {Rws}, {st} offen'))
        if i < 17: k(f's_add_u32 {st1}, {st1}, 1\ns_cmp_eq_u32 {st1}, 18\ns_cselect_b32 {st1}, 0, {st1}')
        while 4 * len(iw) < 6 * (i + 1): iw.append(wdma(so, WBUF + 4096 * len(iw)))
    AHEAD = 6
    for i in range(AHEAD): issue(i)
    ones = k.v(4, 4); sacc = k.v(4, 4); gacc = k.v(4, 4); tacc = k.v(4, 4); qacc = k.v(4, 4); acc = k.v(24, 4)
    for i in range(4): k(f'v_mov_b32 {ones[i]}, 0x3f803f80')
    k(f'v_lshlrev_b32 {t[2]}, 4, v0\nv_add_u32 {t[2]}, {T_B}, {t[2]}\nv_cmp_gt_u32 vcc, 144, v0\ns_and_saveexec_b64 {sav}, vcc')
    k(f'ds_write_b128 {t[2]}, {ones}\ns_mov_b64 exec, {sav}')
    msk = [k.s(2) for _ in range(3)]; bidx = k.v()
    k(f'v_and_b32 {t[2]}, 3, {m}')
    for e in range(3): k(f'v_cmp_eq_u32 {msk[e]}, {e + 1}, {t[2]}')
    aT = k.v(); aW = k.v(2); aW2 = k.v()
    k(f'v_min_u32 {t[2]}, 2, {t[2]}\nv_mul_u32_u24 {aT}, 2304, {t[2]}\nv_lshl_add_u32 {aT}, {q}, 4, {aT}\ns_mul_i32 {st}, {jm}, 192\ns_add_u32 {st}, {st}, {T_B}\nv_add_u32 {aT}, {st}, {aT}')
    k(f'v_lshrrev_b32 {t[2]}, 2, {m}\nv_lshl_add_u32 {t[2]}, {t[2]}, 4, {m}\nv_lshlrev_b32 {bidx}, 2, {t[2]}')
    k(f'v_add_u32 {aW2}, {W2X}, {l16}\nv_mov_b32 {aW[0]}, {l16}\nv_add_u32 {aW[1]}, {9 * 6144}, {l16}')
    TF = W[1]; WR = [k.a(24, 4), k.a(24, 4)]
    def w_reads(i):
        return [f'ds_read_b128 {WR[i & 1].sub(4 * tt, 4)}, {aW[i // 9]} offset:{WBUF + (i % 9) * 6144 + 1024 * tt}' for tt in range(6)]
    def w2_reads(i):
        a_, o_ = (aW2, 6144 * i) if i < 6 else (aW[(i - 6) // 9], WBUF + ((i - 6) % 9) * 6144)
        return [f'ds_read_b128 {WR[i & 1].sub(4 * tt, 4)}, {a_} offset:{o_ + 1024 * tt}' for tt in range(6)]
    BAR = {0: 2, 1: 5, 3: 8, 5: 11, 7: 14, 9: 17, 11: 20, 13: 23, 15: 26}
    k('s_waitcnt lgkmcnt(0)'); vm.wait(iw[BAR[0]]); k('s_barrier')
    STAMP(1)
    iwr = [lg.op(x_) for x_ in w_reads(0)]
    itf = [lg.op(f'ds_read_b128 {TF.sub(4 * i, 4)}, {aT} offset:{64 * i}') for i in range(18)]
    for i in range(18):
        lg.wait(itf[i]); k(f'{MF} {acc[4:8]}, {TF.sub(4 * i, 4)}, {TF.sub(4 * i, 4)}, {"0" if i == 0 else acc[4:8]}')
    cs = k.s(5, 1)
    for n_, (e, j_) in enumerate(((0, 1), (0, 2), (1, 1), (1, 2), (2, 2))): k(f'v_readlane_b32 {cs[n_]}, {acc[4 + e]}, {j_}')
    n2 = 0
    for i in range(18):
        if i in BAR and i: vm.wait(iw[BAR[i]]); k('s_barrier')
        xg = XX.sub(8 * i + 2, 4); xr = XX.sub(8 * i - 2, 4) if i else None
        c_ = lambda r_, first: '0' if first else r_
        M = [(iwr[tt], f'{MF} {acc.sub(4 * tt, 4)}, {WR[i & 1].sub(4 * tt, 4)}, {xg}, {c_(acc.sub(4 * tt, 4), i == 0)}') for tt in range(6)]
        S_ = [f'{MF} {tacc}, {TF.sub(4 * i, 4)}, {xg}, {c_(tacc, i == 0)}', f'{MF} {qacc}, {xg}, {xg}, {c_(qacc, i == 0)}']
        if i: S_ += [f'{MF} {sacc}, {ones}, {xr}, {c_(sacc, i == 1)}', f'{MF} {gacc}, {xr}, {xr}, {c_(gacc, i == 1)}']
        Rd = w_reads(i + 1) if i < 17 else []
        vm.wait(ix[i])
        if i == 0: k(f'v_mov_b32 {XX[144]}, {XX[0]}\nv_mov_b32 {XX[145]}, {XX[1]}')
        nxt = []
        for x_ in S_:
            k(x_)
            if Rd: nxt.append(lg.op(Rd.pop(0)))
        for idr, mm in M:
            lg.wait(idr); k(mm)
            if Rd: nxt.append(lg.op(Rd.pop(0)))
        iwr = nxt
        if i + AHEAD < 18: issue(i + AHEAD)
        else:
            for _ in range(3):
                if n2 < 18: wdma(so2, w2lds(n2)); n2 += 1
    while n2 < 27: wdma(so2, w2lds(n2)); n2 += 1
    sk_ = k.label('notrig')
    k(f's_or_b32 {st}, {jm}, {s_w}\ns_cmp_lg_u32 {st}, 0\ns_cbranch_scc1 {sk_}\ns_lshl_b32 {st}, {rb}, 9\ns_add_u32 {st}, {st}, {O_FT}\ns_mov_b64 exec, 1')
    k(f'buffer_store_dword {one}, {zero}, {Rws}, {st} offen sc1\ns_mov_b64 exec, -1\n{sk_}:')
    xr = XX.sub(142, 4)
    k(f'{MF} {sacc}, {ones}, {xr}, {sacc}\n{MF} {gacc}, {xr}, {xr}, {gacc}')
    STAMP(2)
    TB = [XX.sub(24, 16), XX.sub(40, 16)]; uu = XX.sub(56, 48)
    k(f'v_lshlrev_b32 {aT}, 5, {q}\nv_add_u32 {aT}, {T_F}, {aT}')
    tf_read = lambda dst, r_, e: f'ds_read_b128 {dst}, {aT} offset:{384 * r_ + 128 * (e >> 1) + 16 * (e & 1)}'
    def diag(d, g_):
        k(f'v_cndmask_b32 {d}, {g_[0]}, {g_[1]}, {msk[0]}\nv_cndmask_b32 {d}, {d}, {g_[2]}, {msk[1]}\nv_cndmask_b32 {d}, {d}, {g_[3]}, {msk[2]}')
        return lg.op(f'ds_bpermute_b32 {d}, {bidx}, {d}')
    i2 = diag(t[2], qacc); i1 = diag(t[1], gacc)
    iu = [lg.op(tf_read(uu.sub(24 * r_ + 4 * e, 4), 3 + r_, e)) for e in range(6) for r_ in range(2)]
    s1 = k.v(2); gc = k.v(4)
    k(f'v_mov_b32 {t[0]}, {sacc[0]}'); lg.wait(i1)
    sigma_bf16(k, t[0], t[1])
    k(f'v_cvt_pk_bf16_f32 {t[0]}, {t[0]}, {t[1]}\nv_and_b32 {s1[0]}, 0xffff0000, {t[0]}\nv_lshlrev_b32 {s1[1]}, 16, {t[0]}')
    k(f'v_rcp_f32 {s1[0]}, {s1[0]}\nv_mov_b32 {t[3]}, {cs[1]}\nv_mov_b32 {t[4]}, {cs[3]}\nv_mul_f32 {s1[1]}, -{s1[1]}, {s1[0]}')
    k(f'v_fma_f32 {t[3]}, {s1[1]}, {cs[0]}, {t[3]}\nv_fma_f32 {t[0]}, {s1[0]}, {tacc[0]}, {t[3]}')
    k(f'v_fma_f32 {t[3]}, {s1[1]}, {tacc[1]}, {tacc[2]}\nv_add_f32 {t[3]}, {t[3]}, {t[3]}\nv_fma_f32 {t[3]}, {s1[0]}, {t[2]}, {t[3]}')
    k(f'v_add_f32 {t[4]}, {t[4]}, {t[4]}\nv_fma_f32 {t[4]}, {s1[1]}, {cs[2]}, {t[4]}\nv_mov_b32 {t[5]}, {cs[4]}\nv_fma_f32 {t[4]}, {s1[1]}, {t[4]}, {t[5]}')
    k(f'v_fma_f32 {t[1]}, {s1[0]}, {t[3]}, {t[4]}')
    sigma_bf16(k, t[0], t[1])
    k(f'v_cvt_pk_bf16_f32 {t[1]}, {t[1]}, {t[1]}\nv_and_b32 {t[1]}, 0xffff0000, {t[1]}')
    gelu_consts(k, t[1], gc)
    aG = k.v()
    k(f's_mul_i32 {st}, {jm}, {3 * GPL}\ns_add_u32 {st}, {st}, {O_G}\nv_lshlrev_b32 {aG}, 6, {row}\nv_lshl_add_u32 {aG}, {q}, 4, {aG}\nv_add_u32 {aG}, 128, {aG}')
    lg.all()
    for e in range(12): k(f'v_pk_fma_f32 {uu.sub(2 * e, 2)}, {uu.sub(2 * e, 2)}, {s1}, {uu.sub(24 + 2 * e, 2)} op_sel:[0,1,0] op_sel_hi:[1,1,1]')
    for e in range(12): k(f'v_pk_fma_f32 {acc.sub(2 * e, 2)}, {acc.sub(2 * e, 2)}, {s1}, {uu.sub(2 * e, 2)} op_sel_hi:[1,0,1]')
    tt_ = TB[0]; go = TB[1]
    for Pp in range(3):
        a = acc.sub(8 * Pp, 8); u = tt_.sub(0, 8)
        for e in range(4): k(f'v_pk_mul_f32 {u.sub(2 * e, 2)}, {a.sub(2 * e, 2)}, {a.sub(2 * e, 2)}')
        for e in range(4): k(f'v_pk_fma_f32 {u.sub(2 * e, 2)}, {u.sub(2 * e, 2)}, {gc[0:2]}, {gc[0:2]} op_sel:[0,1,0] op_sel_hi:[1,1,0]')
        for e in range(4): k(f'v_pk_mul_f32 {u.sub(2 * e, 2)}, {u.sub(2 * e, 2)}, {a.sub(2 * e, 2)}')
        for e in range(8): k(f'v_exp_f32 {u[e]}, {u[e]}')
        for e in range(4): k(f'v_pk_fma_f32 {u.sub(2 * e, 2)}, {u.sub(2 * e, 2)}, {gc[2:4]}, {gc[2:4]} op_sel_hi:[1,0,0]')
        for e in range(8): k(f'v_rcp_f32 {u[e]}, {u[e]}')
        for e in range(4): k(f'v_pk_mul_f32 {u.sub(2 * e, 2)}, {u.sub(2 * e, 2)}, {a.sub(2 * e, 2)}')
        o = go.sub(4 * Pp, 4)
        for e in range(4): k(f'v_cvt_pk_bf16_f32 {o[e]}, {u[2 * e]}, {u[2 * e + 1]}')
        ig = vm.op(f'buffer_store_dwordx4 {o}, {aG}, {Rws}, {st} offen sc1')
        if Pp < 2: k(f's_add_u32 {st}, {st}, {GPL}')
    h2f = uu.sub(0, 24); x2f = XX.sub(104, 24); gbv = k.v(24, 4)
    xsrc = lambda e: XX[8 * (e // 8) + (0, 1, 6, 7)[(e % 8) // 2]]
    ig_ = [lg.op(tf_read(gbv.sub(4 * e, 4), 1, e)) for e in range(6)]
    is_ = [lg.op(tf_read(uu.sub(24 + 4 * e, 4), 0, e)) for e in range(6)]
    for e in range(24): k(un(x2f[e], xsrc(e), e & 1))
    dl = [XX[128 + i] for i in range(6)]
    k(f'v_cmp_gt_u32 vcc, 2, {q}')
    for g, dlt in enumerate((-1, 1, -2, 2)): k(f'v_add_u32 {dl[g]}, {dlt * 64}, {aG}')
    k(f'v_cndmask_b32 {dl[4]}, {dl[1]}, {dl[0]}, vcc\nv_cndmask_b32 {dl[5]}, {dl[3]}, {dl[2]}, vcc')
    pa = XX[134]
    k(f'v_min_u32 {pa}, 2, {lane}\nv_add_u32 {pa}, {mt}, {pa}\nv_add_u32 {pa}, -1, {pa}\nv_max_i32 {pa}, 0, {pa}\nv_min_u32 {pa}, 127, {pa}\nv_lshlrev_b32 {pa}, 7, {pa}')
    vm.wait(ig)
    flag_add(mt, O_FC)
    STAMP(3)
    for e in range(12): k(f'v_pk_fma_f32 {h2f.sub(2 * e, 2)}, {x2f.sub(2 * e, 2)}, {s1}, {s1} op_sel:[0,0,1] op_sel_hi:[1,0,1]')
    lg.all()
    for e in range(12): k(f'v_pk_fma_f32 {h2f.sub(2 * e, 2)}, {h2f.sub(2 * e, 2)}, {gbv.sub(2 * e, 2)}, {uu.sub(24 + 2 * e, 2)}')
    for e in range(6): lg.op(tf_read(gbv.sub(4 * e, 4), 2, e))
    NPRE = 5
    k('s_barrier')
    WP = [WR[0], WR[1], k.a(24, 4), k.a(24, 4), XX.sub(0, 24)]
    def w2_addr(i, tt):
        a_, o_ = (aW2, 6144 * i) if i < 6 else (aW[(i - 6) // 9], WBUF + ((i - 6) % 9) * 6144)
        return f'{a_} offset:{o_ + 1024 * tt}'
    for i in range(NPRE):
        for tt in range(6): lg.op(f'ds_read_b128 {WP[i].sub(4 * tt, 4)}, {w2_addr(i, tt)}')
    poll(pa, O_FC, 6)
    STAMP(4)
    GF = TF
    sel = lambda s: dl[4] if s == 4 else dl[5] if s == 13 else dl[(2 * s) // 9]
    ig = []
    for s in range(18):
        k(f's_mov_b32 {st}, {O_G + s * GPL}')
        ig.append(vm.op(f'buffer_load_dwordx4 {GF.sub(4 * s, 4)}, {sel(s)}, {Rws}, {st} offen sc1'))
    lg.all()
    ird = {}
    for s in range(18):
        vm.wait(ig[s])
        wr = WP[s % NPRE]
        for tt in range(6):
            if s >= NPRE: lg.wait(ird[s, tt])
            k(f'{MF} {acc.sub(4 * tt, 4)}, {wr.sub(4 * tt, 4)}, {GF.sub(4 * s, 4)}, {"0" if s == 0 else acc.sub(4 * tt, 4)}')
            if s + NPRE < 18: ird[s + NPRE, tt] = lg.op(f'ds_read_b128 {wr.sub(4 * tt, 4)}, {w2_addr(s + NPRE, tt)}')
        vm.op(wld(0, PI[s]))
    lg.all()
    STAMP(5)
    aR = dl[0]; aS = dl[1]
    k(f'v_lshrrev_b32 {t[0]}, 1, {q}\nv_and_b32 {t[1]}, 1, {q}\nv_lshlrev_b32 {aR}, 12, {t[0]}\nv_lshl_add_u32 {aR}, {t[1]}, 9, {aR}\nv_lshl_add_u32 {aR}, {m}, 4, {aR}')
    k(f'v_lshlrev_b32 {aS}, 6, {t[0]}\nv_lshl_add_u32 {aS}, {m}, 2, {aS}')
    k(f's_mul_i32 {st}, {rb}, 18\ns_mul_i32 {so}, {jm}, 3\ns_add_u32 {st}, {st}, {so}\ns_lshl_b32 {st}, {st}, 2\ns_add_u32 {st}, {st}, {s_w}\ns_lshl_b32 {st}, {st}, 10\ns_add_u32 {st}, {st}, {O_X1F}')
    for e in range(12): k(f'v_pk_add_f32 {h2f.sub(2 * e, 2)}, {h2f.sub(2 * e, 2)}, {acc.sub(2 * e, 2)}')
    for Pp in range(3):
        o = go.sub(4 * Pp, 4)
        for e in range(4): k(f'v_cvt_pk_bf16_f32 {o[e]}, {h2f[8 * Pp + 2 * e]}, {h2f[8 * Pp + 2 * e + 1]}')
        vm.op(f'buffer_store_dwordx4 {o}, {l16}, {Rws}, {st} offen sc1')
        if Pp < 2: k(f's_add_u32 {st}, {st}, 4096')
    k(f'v_pk_add_f32 {t[0:2]}, {h2f[0:2]}, {h2f[2:4]}\nv_pk_mul_f32 {t[2:4]}, {h2f[0:2]}, {h2f[0:2]}\nv_pk_fma_f32 {t[2:4]}, {h2f[2:4]}, {h2f[2:4]}, {t[2:4]}')
    for e in range(2, 12): k(f'v_pk_add_f32 {t[0:2]}, {t[0:2]}, {h2f.sub(2 * e, 2)}\nv_pk_fma_f32 {t[2:4]}, {h2f.sub(2 * e, 2)}, {h2f.sub(2 * e, 2)}, {t[2:4]}')
    k(f'v_add_f32 {t[0]}, {t[0]}, {t[1]}\nv_add_f32 {t[2]}, {t[2]}, {t[3]}\nv_permlane32_swap_b32 {t[0]}, {t[2]}\nv_add_f32 {t[0]}, {t[0]}, {t[2]}')
    k(f'v_mov_b32 {t[1]}, {t[0]}\nv_permlane16_swap_b32 {t[0]}, {t[1]}\nv_add_f32 {t[0]}, {t[0]}, {t[1]}')
    k(f's_mul_i32 {st}, {mt}, 6\ns_add_u32 {st}, {st}, {jm}\ns_lshl_b32 {st}, {st}, 7\ns_add_u32 {st}, {st}, {O_PST}\ns_mov_b32 exec_lo, 0xffff\ns_mov_b32 exec_hi, 0xffff')
    vm.op(f'buffer_store_dword {t[0]}, {aS}, {Rws}, {st} offen sc1')
    k(f's_mov_b64 exec, -1\ns_mul_i32 {st}, {rb}, 6\ns_add_u32 {st}, {st}, {jm}\ns_mul_i32 {st}, {st}, 24\ns_add_u32 {st}, {st}, {s_w}\ns_lshl_b32 {st}, {st}, 10\ns_add_u32 {st}, {st}, {O_RES}')
    for e in range(6):
        for h in range(2): k(f'v_pk_fma_f32 {x2f.sub(4 * e + 2 * h, 2)}, {h2f.sub(4 * e + 2 * h, 2)}, {gbv.sub(4 * e + 2 * h, 2)}, {x2f.sub(4 * e + 2 * h, 2)}')
        vm.op(f'buffer_store_dwordx4 {x2f.sub(4 * e, 4)}, {aR}, {Rws}, {st} offen offset:{256 * (e & 1)} sc1')
        if e in (1, 3): k(f's_add_u32 {st}, {st}, 8192')
    ist = vm.n
    k(f's_add_u32 {sn}, {sn}, 18432')
    for ks in PI: vm.op(wld(1, ks))
    vm.wait(ist)
    flag_add(mt, O_FD)
    STAMP(6)

    k('s_branch k2_phase_e')
    k('k2_idle:')
    k.V.free, k.A.free, k.S.free = list(keepV), list(keepA), list(keepS)
    vm, lg = trackers(k)
    cj = ColJob(k, vm, lg, lane, s_w)
    fr = k.v(72, 4); job = k.s(); src = k.s(); strd = k.s(); sl = k.s(); dst = k.s(); pw = k.v()
    srd(k, RG, P['w4'], D * F * 2)
    k(f's_sub_u32 {job}, s2, 192\ns_mov_b32 {strd}, 1152\ns_lshl_b32 {st}, {rb}, 9\nv_mov_b32 {pw}, {st}')
    k(f's_mul_hi_u32 {sl}, {job}, {(1 << 32) // 9 + 1}\ns_mul_i32 {src}, {sl}, 9\ns_sub_u32 {src}, {job}, {src}\ns_lshl_b32 {src}, {src}, 7')
    k(f's_mul_i32 {st}, {sl}, {576 * 1152}\ns_add_u32 {src}, {src}, {st}')
    ad = cj.addr(0, w4order=True)
    if 'w4now' not in opt:
        sk_ = k.label('nopoll')
        k(f's_cmp_lg_u32 {s_w}, 0\ns_cbranch_scc1 {sk_}')
        poll(pw, O_FT, 1, sleep=8)
        k(f'{sk_}:\ns_barrier')
    cj.dma(RG, src, strd, 0)
    k('s_waitcnt vmcnt(0)\ns_barrier'); vm.reset()
    ids = cj.reads(ad, fr)
    k(f's_lshl_b32 {dst}, {job}, 2\ns_add_u32 {dst}, {dst}, {s_w}\ns_mul_i32 {dst}, {dst}, 18432\ns_add_u32 {dst}, {dst}, {O_W4F}')
    cj.store(fr, ids, Rws, dst, 1024)
    ist = vm.n
    for r_ in range(2):
        for ks in PI: vm.op(wld(r_, ks))
        if r_ == 0: k(f's_add_u32 {sn}, {sn}, 18432')
    vm.wait(ist)
    flag_add(sl, O_FW)
    STAMP(14)
    k('k2_phase_e:')
    k.V.free, k.A.free, k.S.free = keepV, keepA, keepS
    vm, lg = trackers(k)
    vm.n = 1
    XA = k.a(112, 4); XV = k.v(176, 4)
    xf = lambda ks, t_: XA.sub(16 * ks + 4 * t_, 4) if 16 * ks + 4 * t_ < 112 else XV.sub(16 * ks + 4 * t_ - 112, 4)
    sm = k.s(); so = k.s()
    k(f's_add_u32 {sn}, {sn}, 18432')
    acc = [k.v(16, 4), k.v(16, 4)]
    t = acc[1].sub(0, 12); pa = k.v()
    k(f's_lshl_b32 {st}, {mb}, 2\nv_min_u32 {pa}, 3, {lane}\nv_add_u32 {pa}, {st}, {pa}\nv_lshlrev_b32 {pa}, 7, {pa}')
    k(f's_lshl_b32 {sm}, {s_w}, 10\ns_mul_i32 {so}, {mb}, 73728\ns_add_u32 {so}, {so}, {sm}\ns_add_u32 {so}, {so}, {O_X1F}')
    k('s_barrier')
    poll(pa, O_FD, 6)
    STAMP(7)
    k(f's_mul_i32 {st}, {mb}, 3072\ns_add_u32 {st}, {st}, {O_PST}\nv_mul_u32_u24 {pa}, 768, {q}\nv_lshl_add_u32 {pa}, {m}, 2, {pa}')
    for i in range(12): ip = vm.op(f'buffer_load_dword {t[i]}, {pa}, {Rws}, {st} offen offset:{64 * i} sc1')
    ixd = []
    for ks in PI:
        k(f's_add_u32 m0, {sm}, {XBUF + 4096 * ks}\ns_add_u32 {st}, {so}, {4096 * ks}')
        ixd.append(vm.op(f'buffer_load_dwordx4 {l16}, {Rws}, {st} offen sc1 lds'))
    aX = [l16, k.v()]; aHr = [k.v(), k.v()]; aH = [k.v(), k.v()]
    k(f'v_add_u32 {aX[1]}, 0x9000, {l16}\nv_add_u32 {aHr[0]}, {HBUF}, {l16}\nv_add_u32 {aHr[1]}, {HBUF + 0x9000}, {l16}')
    for h in range(2):
        k(f's_mul_i32 {st}, {s_w}, 9\ns_add_u32 {st}, {st}, {h}\ns_and_b32 {st1}, {st}, 1\ns_lshl_b32 {st1}, {st1}, 3\ns_lshr_b32 {st}, {st}, 1\ns_lshl_b32 {st}, {st}, 12')
        k(f's_add_u32 {st}, {st}, {st1}\nv_add_u32 {aH[h]}, {st}, {aHr[0]}')
    vm.wait(ip)
    k(f'v_pk_add_f32 {t[0:2]}, {t[0:2]}, {t[2:4]}\nv_pk_add_f32 {t[4:6]}, {t[4:6]}, {t[6:8]}\nv_pk_add_f32 {t[8:10]}, {t[8:10]}, {t[10:12]}')
    k(f'v_pk_add_f32 {t[0:2]}, {t[0:2]}, {t[4:6]}\nv_pk_add_f32 {t[0:2]}, {t[0:2]}, {t[8:10]}')
    sigma_bf16(k, t[0], t[1])
    k(f'v_cvt_pk_bf16_f32 {t[1]}, {t[1]}, {t[1]}\nv_and_b32 {t[1]}, 0xffff0000, {t[1]}\nv_lshlrev_b32 {t[2]}, 2, {m}')
    GC = [k.v(3, 1) for _ in range(4)]
    ib = [lg.op(f'ds_bpermute_b32 {t[4 + i]}, {t[2]}, {t[1]} offset:{64 * i}') for i in range(4)]
    for i in range(4): lg.wait(ib[i]); gelu_consts(k, t[4 + i], GC[i])
    gt = k.v(8, 4); hp = [k.v(2), k.v(2)]
    def gelu_ops(a, ah):
        out = []
        for t_ in range(4):
            c = GC[t_]; x = [a[4 * t_ + e] for e in range(4)]; u = [gt[4 * (t_ & 1) + e] for e in range(4)]; o = hp[t_ & 1]
            out += [f'v_mul_f32 {u[e]}, {x[e]}, {x[e]}' for e in range(4)]
            out += [f'v_fma_f32 {u[e]}, {u[e]}, {c[1]}, {c[0]}' for e in range(4)]
            out += [f'v_mul_f32 {u[e]}, {u[e]}, {x[e]}' for e in range(4)]
            out += [f'v_exp_f32 {u[e]}, {u[e]}' for e in range(4)]
            out += [f'v_fma_f32 {u[e]}, {u[e]}, {c[2]}, {c[2]}' for e in range(4)]
            out += [f'v_rcp_f32 {u[e]}, {u[e]}' for e in range(4)]
            out += [f'v_mul_f32 {u[e]}, {u[e]}, {x[e]}' for e in range(4)]
            out += [f'v_cvt_pk_bf16_f32 {o[0]}, {u[0]}, {u[1]}', f'v_cvt_pk_bf16_f32 {o[1]}, {u[2]}, {u[3]}']
            out.append(f'ds_write_b64 {ah}, {o} offset:{1024 * t_}')
        return out
    cost = lambda x_: 2 if x_.startswith(('v_exp', 'v_rcp', 'ds_write')) else 1
    def tile(a, r_, fill, steps=range(18), lead=2, pre=None, vmw=35, per_step=0, front=False):
        steps = list(steps); nm = 4 * len(steps); done = 0; n_ = 0
        fixed = len(steps) * (1 + per_step) + (len(steps) // 2 if vmw else 0)
        total = fixed + sum(cost(x_) for x_ in fill)
        rate = 2.0 if front else total / nm
        cum = 0
        for i in steps:
            ks = PI[i]
            if pre: pre(i); cum += per_step
            if vmw is not None and (i % 2 == 0 or i == steps[0]): k(f's_waitcnt vmcnt({vmw - 1})'); cum += 1
            for t_ in range(4):
                k(f'{MF} {a.sub(4 * t_, 4)}, {W[r_].sub(4 * ks, 4)}, {xf(ks, t_)}, {"0" if i == 0 else a.sub(4 * t_, 4)}')
                n_ += 1
                nxt = 0
                if t_ == 3:
                    k(wld(r_, ks)); cum += 1
                    nxt = per_step + (1 if vmw and i % 2 == 1 else 0)
                while n_ >= lead and done < len(fill) and cum + nxt + cost(fill[done]) / 2 <= rate * n_: k(fill[done]); cum += cost(fill[done]); done += 1
        while done < len(fill): k(fill[done]); done += 1
    def frag_reads(base, i):
        ks = PI[i]
        return [lg.op(f'ds_read_b128 {xf(ks, t_)}, {base[ks // 9]} offset:{(ks % 9) * 4096 + 1024 * t_}') for t_ in range(4)]
    rd = {}
    def pre0(i):
        if i == 0:
            vm.wait(ixd[5]); k('s_barrier')
            for j in (0, 1): rd[j] = frag_reads(aX, j)
        if i in (4, 10):
            k(f's_waitcnt vmcnt({17 - (i + 7) + i})\ns_barrier')
        if i + 2 < 18: rd[i + 2] = frag_reads(aX, i + 2)
        lg.wait(rd[i][3])
    tile(acc[0], 0, [], pre=pre0, vmw=None)
    STAMP(8)
    k(f's_lshl_b32 {st}, {fs}, 7\ns_add_u32 {st}, {st}, {O_FW}\nbuffer_load_dword {pa}, {zero}, {Rws}, {st} offen sc1')
    lp = k.label('g3')
    k(f's_mov_b32 {so}, 4\n{lp}:\ns_add_u32 {sn}, {sn}, 18432\ns_cmp_lg_u32 {so}, 1\ns_cbranch_scc1 k2_w4ok')
    k(f's_mov_b32 {sn}, {s4}\ns_cmp_eq_u32 {fs}, 7\ns_cselect_b32 {sm}, 4, 36\nv_readfirstlane_b32 {st}, {pa}\ns_cmp_ge_u32 {st}, {sm}\ns_cbranch_scc1 k2_w4ok')
    k(f's_lshl_b32 {st}, {fs}, 7\nv_mov_b32 {pa}, {st}\nv_mov_b32 {hp[0][0]}, {sm}')
    poll(pa, O_FW, hp[0][0])
    k('k2_w4ok:')
    tile(acc[1], 1, gelu_ops(acc[0], aH[0]))
    k(f's_add_u32 {sn}, {sn}, 18432\nv_add_u32 {aH[0]}, 4096, {aH[0]}')
    tile(acc[0], 0, gelu_ops(acc[1], aH[1]))
    k(f'v_add_u32 {aH[1]}, 4096, {aH[1]}\ns_sub_u32 {so}, {so}, 1\ns_cmp_lg_u32 {so}, 0\ns_cbranch_scc1 {lp}')
    STAMP(9)
    k(f's_add_u32 {sn}, {sn}, 18432\ns_waitcnt lgkmcnt(0)\ns_barrier')
    lg.reset(); rd = {}
    g8 = gelu_ops(acc[0], aH[0])
    class Fill(list):
        pass
    def pre1(i):
        if i == 0:
            for j in (0, 1): rd[j] = frag_reads(aHr, j)
        if i + 2 < 14: rd[i + 2] = frag_reads(aHr, i + 2)
        k(f's_waitcnt lgkmcnt({min(8, 4 * (13 - i))})')
    tile(acc[1], 1, g8, steps=range(14), pre=pre1, lead=1, per_step=5)
    k('s_waitcnt lgkmcnt(0)\ns_barrier'); lg.reset()
    for j in range(14, 18): rd[j] = frag_reads(aHr, j)
    tile(acc[1], 1, [], steps=range(14, 18), pre=lambda i: lg.wait(rd[i][3]))
    sp = k.s(); po = [gt.sub(0, 4), gt.sub(4, 4)]
    k(f's_mul_i32 {sp}, {mb}, {9 * 65536}\ns_lshl_b32 {st}, {s_w}, 14\ns_add_u32 {sp}, {sp}, {st}\ns_lshl_b32 {st}, {fs}, 10\ns_add_u32 {sp}, {sp}, {st}\ns_add_u32 {sp}, {sp}, {O_PART}')
    def part_ops(a):
        out = []
        for p in range(2):
            out += [f'v_cvt_pk_bf16_f32 {po[p][e]}, {a[8 * p + 2 * e]}, {a[8 * p + 2 * e + 1]}' for e in range(4)]
            if 'nopart' not in opt: out.append(f'buffer_store_dwordx4 {po[p]}, {vo[2 * p]}, {Rws}, {sp} offen {"" if "partplain" in opt else "sc1"}')
        out.append(f's_add_u32 {sp}, {sp}, 65536')
        return out
    lp = k.label('g4')
    k(f's_mov_b32 {so}, 4\n{lp}:\ns_add_u32 {sn}, {sn}, 18432\ns_cmp_eq_u32 {so}, 1\ns_cselect_b32 {RW[2]}, 0, {RW[2]}')
    tile(acc[0], 0, part_ops(acc[1]), front=True)
    k(f's_add_u32 {sn}, {sn}, 18432')
    tile(acc[1], 1, part_ops(acc[0]), front=True)
    k(f's_sub_u32 {so}, {so}, 1\ns_cmp_lg_u32 {so}, 0\ns_cbranch_scc1 {lp}')
    for x_ in part_ops(acc[1]): k(x_)
    STAMP(10)
    for x_ in (XV, gt, acc[0], acc[1]): x_.release()
    aR = [GC[0][0]]; aO = [GC[0][1], GC[0][2]]; aB = GC[1][0]; T0 = k.s()
    Rout = RG; srd(k, Rout, P['out'], L * D * 2)
    rs = [k.v(12, 4) for _ in range(3)]; pt = [k.v(32, 4) for _ in range(3)]
    k(f's_lshl_b32 {st}, {mb}, 2\ns_and_b32 {st1}, {fs}, 1\ns_lshl_b32 {st1}, {st1}, 1\ns_add_u32 {st}, {st}, {st1}\ns_lshl_b32 {st}, {st}, 4')
    k(f'v_add_u32 {aO[0]}, {st}, {m}\nv_mul_u32_u24 {aO[0]}, 1152, {aO[0]}\nv_lshl_add_u32 {aO[0]}, {q}, 3, {aO[0]}\nv_add_u32 {aO[1]}, {16 * 1152}, {aO[0]}')
    k(f's_mul_i32 {T0}, {mb}, 144\ns_add_u32 {T0}, {T0}, {st1}\ns_lshl_b32 {T0}, {T0}, 10\nv_add_u32 {aR[0]}, {T0}, {l16}\nv_lshlrev_b32 {aB}, 4, {q}')
    k(f's_lshr_b32 {T0}, {fs}, 1\ns_mul_i32 {T0}, {T0}, 9\ns_add_u32 {T0}, {T0}, {s_w}')
    k('s_waitcnt vmcnt(0)'); vm.reset()
    flag_add(mb, O_FP)
    sk = [k.label('skip') for _ in range(3)]
    def third(i, lab):
        if i == 2: k(f's_cmp_lg_u32 {s_w}, 0\ns_cbranch_scc1 {lab}')
    for i in range(3):
        third(i, sk[0])
        k(f's_add_u32 {st}, {T0}, {4 * i}\ns_lshl_b32 {st}, {st}, 6\ns_add_u32 {st1}, {st}, {O_MOD2 + 4608}\ns_lshl_b32 {st}, {st}, 6\ns_add_u32 {st}, {st}, {O_RES}')
        for h in range(2): k(f'buffer_load_dwordx4 {rs[i].sub(4 * h, 4)}, {aR[0]}, {Rws}, {st} offen offset:{1024 * h} sc1')
        k(f'buffer_load_dwordx4 {rs[i].sub(8, 4)}, {aB}, {Rws}, {st1} offen')
    k(f'{sk[0]}:\ns_lshl_b32 {st}, {mb}, 7\nv_mov_b32 {pa}, {st}')
    poll(pa, O_FP, 32)
    STAMP(11)
    k(f's_mul_i32 {sp}, {mb}, 9\ns_add_u32 {sp}, {sp}, {s_w}\ns_lshl_b32 {sp}, {sp}, 3\ns_add_u32 {sp}, {sp}, {fs}\ns_lshl_b32 {sp}, {sp}, 13\ns_add_u32 {sp}, {sp}, {O_PART}')
    for i in range(3):
        third(i, sk[1])
        for s_ in range(8): k(f'buffer_load_dwordx4 {pt[i].sub(4 * s_, 4)}, {vo[s_ // 4]}, {Rws}, {sp} offen offset:{1024 * (s_ % 4)} sc1')
        k(f's_add_u32 {sp}, {sp}, {4 * 65536}')
    k(f'{sk[1]}:')
    sa = k.v(8, 2); u = k.v(8, 2)
    for i in range(3):
        third(i, END)
        k(f's_waitcnt vmcnt({8 if i == 0 else 2})')
        p = pt[i]
        for e in range(8): k(un(sa[e], p[e >> 1], e & 1))
        for s_ in range(1, 8):
            for e in range(8): k(un(u[e], p[4 * s_ + (e >> 1)], e & 1))
            for e in range(4): k(f'v_pk_add_f32 {sa.sub(2 * e, 2)}, {sa.sub(2 * e, 2)}, {u.sub(2 * e, 2)}')
        for e in range(4): k(f'v_pk_fma_f32 {sa.sub(2 * e, 2)}, {sa.sub(2 * e, 2)}, {rs[i].sub(8 + 2 * (e & 1), 2)}, {rs[i].sub(2 * e, 2)}')
        k(f's_add_u32 {st}, {T0}, {4 * i}\ns_lshl_b32 {st}, {st}, 5')
        for h in range(2):
            k(f'v_cvt_pk_bf16_f32 {u[2 * h]}, {sa[4 * h]}, {sa[4 * h + 1]}\nv_cvt_pk_bf16_f32 {u[2 * h + 1]}, {sa[4 * h + 2]}, {sa[4 * h + 3]}')
            k(f'buffer_store_dwordx2 {u.sub(2 * h, 2)}, {aO[h]}, {Rout}, {st} offen')
        if i == 1: STAMP(12)
    k(f'{END}:')
    if stamps:
        k('s_cmp_ge_u32 s2, 256\ns_cbranch_scc1 stamp_done_0\ns_waitcnt vmcnt(0)'); SP(13); SP.flush(P)
    k('s_endpgm')
    k.finish()
    return k

if __name__ == '__main__':
    k = build_k2()
    print('k2 lines', len(k.l), 'nops', k.nops, 'regs', k.counts(), 'sgpr top', k.S.top)
    open('k2.s', 'w').write(module([k], 136))
```

```python
import sys
from common import *
import k1, k2
def build(stamps=False, dump=False, opt=()):
    a = k1.build_k1(dump=dump, stamps=stamps); b = k2.build_k2(stamps=stamps, opt=opt)
    ref = open('cdna_kernels/%s.s.ref' % NAME).read().split('\n')
    hdr = [l for l in ref if l.startswith(';') and '@launch' not in l and 'Override' not in l and 'grid=ceil' not in l and not l.startswith('    ')]
    hdr = '\n'.join(hdr) + '\n'
    hdr += '; @launch kernel=k1_kernel grid=(256,1,1) block=(256,1,1) lds=%d\n' % k1.K1_LDS
    hdr += '; @launch kernel=k2_kernel grid=(256,1,1) block=(256,1,1) lds=%d\n' % k2.K2_LDS
    for k in (a, b): print(k.name, 'lines', len(k.l), 'nops', k.nops, 'regs', k.counts())
    return module([a, b], 136, hdr)
if __name__ == '__main__' and len(sys.argv) > 1:
    for o in sys.argv[1:]: open('v_%s_clk.s' % o, 'w').write(build(stamps=2, opt=o.split('+')))
elif __name__ == '__main__':
    open('full_dbg.s', 'w').write(build(stamps=True))
    open('full_clk.s', 'w').write(build(stamps=2))
    open('full_h.s', 'w').write(build(stamps=3))
    s = build()
    open('full.s', 'w').write(s)
    open('cdna_kernels/%s.s' % NAME, 'w').write(s)
```

```python
from dsl import Kern, Reg, module
import struct

L, D, F = 2048, 576, 4608
NAME = 'adaLN_cond__ssm_conv_s4d__mixer_s_mlp__prompt'

O_FC    = 0x0000
O_FD    = 0x4000
O_FP    = 0x8000
O_FW    = 0x18000
O_FR    = 0xC000
O_FT    = 0x19000
FLAG_BYTES = 0x1D000
O_STATS = 0x20000
O_MODF  = 0x24000
O_MOD2  = O_MODF + 3 * 2304
O_MODB  = 0x29000
O_PST   = 0x30000
GPL = 2052 * 64
O_XT    = 0x100000
O_X2    = 0x3200000
O_G     = 0x400000
O_X1F   = 0x700000
O_RES   = 0xA00000
O_W1F   = 0xF00000
O_W2F   = 0x1000000
O_W3F   = 0x1100000
O_W4F   = 0x1700000
O_PART  = 0x2000000
O_DBG   = 0x3800000
WS_USED = 0x4000000

def f2u(x): return struct.unpack('<I', struct.pack('<f', x))[0]
def fl(x): return '0x%08x' % f2u(x)
LOG2E = 1.4426950408889634

class Trk:
    def __init__(self, k, cnt, mx): self.k = k; self.cnt = cnt; self.mx = mx; self.n = 0; self.done = 0
    def op(self, s):
        self.k(s); self.n += 1; return self.n
    def wait(self, idx):
        if idx <= self.done: return
        left = min(self.n - idx, self.mx)
        self.k('s_waitcnt %s(%d)' % (self.cnt, left)); self.done = self.n - left
    def all(self): self.wait(self.n)
    def reset(self): self.done = self.n

def trackers(k): return Trk(k, 'vmcnt', 63), Trk(k, 'lgkmcnt', 15)

def srd(k, dst, ptr, nbytes, off=0):
    if off:
        k(f's_add_u32 {dst[0]}, {ptr[0]}, {off}\ns_addc_u32 {dst[1]}, {ptr[1]}, 0')
    else:
        k(f's_mov_b32 {dst[0]}, {ptr[0]}\ns_mov_b32 {dst[1]}, {ptr[1]}')
    k(f's_mov_b32 {dst[2]}, {nbytes}\ns_mov_b32 {dst[3]}, 0x20000')

def kernargs(k):
    a = k.s(16, 4); b = k.s(16, 4); c = k.s(2)
    k(f's_load_dwordx16 {a}, s[0:1], 0\ns_load_dwordx16 {b}, s[0:1], 64\ns_load_dwordx2 {c}, s[0:1], 128')
    names = ['u', 'logA', 'Aim', 'Cr', 'Ci', 'logdt', 'Dskip', 'Bx']
    P = {n: a.sub(2 * i, 2) for i, n in enumerate(names)}
    names = ['w1', 'w2', 'w3', 'w4', 'c', 'wmod', 'out', 'dbg']
    P.update({n: b.sub(2 * i, 2) for i, n in enumerate(names)})
    P['ws'] = c
    return P

def code_prefetch(k, vm, lo, hi, nbytes, tid, tmp, sp, back=False):
    here = k.label('pc')
    k(f's_getpc_b64 {sp}\n{here}:')
    if back: k(f's_sub_u32 {sp[0]}, {sp[0]}, {here}-{lo}\ns_subb_u32 {sp[1]}, {sp[1]}, 0')
    else: k(f's_add_u32 {sp[0]}, {sp[0]}, {lo}-{here}\ns_addc_u32 {sp[1]}, {sp[1]}, 0')
    k(f'v_lshlrev_b32 {tmp[0]}, 7, {tid}')
    k(f'v_min_u32 {tmp[0]}, {hi}-{lo}-4, {tmp[0]}')
    n = (nbytes + 32767) // 32768
    for i in range(n):
        x = f'global_load_dword {tmp[1]}, {tmp[0]}, {sp}'
        vm.op(x) if vm else k(x)
        if i + 1 < n:
            k(f'v_add_u32 {tmp[0]}, 0x8000, {tmp[0]}\nv_min_u32 {tmp[0]}, {hi}-{lo}-4, {tmp[0]}')

def interleave(*streams):
    out = []; n = max(len(s) for s in streams)
    for i in range(n):
        for s in streams:
            if i < len(s): out.append(s[i])
    return out

class ColJob:
    def __init__(self, k, vm, lg, lane, s_w):
        self.k, self.vm, self.lg, self.lane, self.s_w = k, vm, lg, lane, s_w
        k_ = k
        self.row = k.v(); self.chunk = k.v(); t = k.v(2)
        k_(f'v_lshrrev_b32 {self.row}, 3, {lane}')
        k_(f'v_bfe_u32 {t[0]}, {lane}, 5, 1\ns_and_b32 vcc_lo, {s_w}, 1\nv_xor_b32 {t[0]}, vcc_lo, {t[0]}')
        k_(f'v_bfe_u32 {t[1]}, {lane}, 4, 1\nv_lshl_or_b32 {t[0]}, {t[0]}, 1, {t[1]}')
        k_(f'v_lshlrev_b32 {t[0]}, 1, {t[0]}\nv_and_b32 {t[1]}, 7, {lane}\nv_xor_b32 {t[0]}, {t[0]}, {t[1]}')
        k_(f'v_lshlrev_b32 {self.chunk}, 4, {t[0]}')
        t.release()
    def dma(self, R, s_src, s_stride, buf):
        k = self.k
        va = k.v(); so = k.s(); st = k.s(); sm = k.s()
        k(f'v_mad_u32_u24 {va}, {self.row}, {s_stride}, {self.chunk}')
        k(f's_lshl_b32 {st}, {s_stride}, 3\ns_mul_i32 {so}, {st}, {self.s_w}\ns_add_u32 {so}, {so}, {s_src}\ns_lshl_b32 {st}, {st}, 2')
        k(f's_lshl_b32 {sm}, {self.s_w}, 10')
        last = None
        for i in range(18):
            k(f's_add_u32 m0, {sm}, {buf + i * 4096}')
            last = self.vm.op(f'buffer_load_dwordx4 {va}, {R}, {so} offen lds')
            if i < 17: k(f's_add_u32 {so}, {so}, {st}')
        va.release(); so.release(); st.release(); sm.release()
        return last
    def read(self, buf, fr, **kw):
        return self.reads(self.addr(buf, **kw), fr)
    def addr(self, buf, w4order=False, s_il=None, s_w4=None):
        k, lane = self.k, self.lane
        ad = k.v(4); q = k.v(); r = k.v(); c = k.v(); un = k.v(); wi = k.v(); t = k.v(2)
        k(f'v_lshrrev_b32 {q}, 4, {lane}\nv_bfe_u32 {r}, {lane}, 2, 2\nv_and_b32 {c}, 3, {lane}')
        k(f'v_mov_b32 {un}, {self.s_w}\nv_lshlrev_b32 {wi}, 3, {c}')
        if s_il is not None:
            st = k.s()
            k(f's_and_b32 {st}, {self.s_w}, 2\nv_lshrrev_b32 {t[0]}, 1, {c}\nv_add_u32 {t[0]}, {st}, {t[0]}')
            k(f's_and_b32 {st}, {self.s_w}, 1\ns_lshl_b32 {st}, {st}, 3\nv_and_b32 {t[1]}, 1, {c}\nv_lshl_add_u32 {t[1]}, {t[1]}, 4, {st}')
            k(f's_cmp_lg_u32 {s_il}, 0\ns_cselect_b64 vcc, -1, 0')
            k(f'v_cndmask_b32 {un}, {un}, {t[0]}, vcc\nv_cndmask_b32 {wi}, {wi}, {t[1]}, vcc')
            st.release()
        for h in range(2):
            kl = ad[h]
            if w4order: k(f'v_lshl_add_u32 {kl}, {q}, 2, {r}\nv_add_u32 {kl}, {16 * h}, {kl}')
            else: k(f'v_lshl_add_u32 {kl}, {q}, 3, {r}\nv_add_u32 {kl}, {4 * h}, {kl}')
            if s_w4 is not None:
                k(f'v_lshl_add_u32 {t[0]}, {q}, 2, {r}\nv_add_u32 {t[0]}, {16 * h}, {t[0]}\ns_cmp_eq_u32 {s_w4}, 4\ns_cselect_b64 vcc, -1, 0\nv_cndmask_b32 {kl}, {kl}, {t[0]}, vcc')
            k(f'v_lshrrev_b32 {t[0]}, 1, {kl}\nv_xor_b32 {t[0]}, {t[0]}, {kl}\nv_bfe_u32 {t[0]}, {t[0]}, 2, 1')
            k(f'v_bfe_u32 {t[1]}, {kl}, 1, 1\nv_lshl_or_b32 {t[0]}, {t[0]}, 1, {t[1]}\nv_xor_b32 {t[0]}, {t[0]}, {un}')
            k(f'v_lshl_add_u32 {t[0]}, {t[0]}, 5, {wi}\nv_lshl_add_u32 {kl}, {kl}, 7, {t[0]}')
            k(f'v_add_u32 {kl}, {buf}, {kl}\nv_add_u32 {ad[2 + h]}, 0x9000, {kl}')
        for x in (q, r, c, un, wi, t): x.release()
        return ad
    def reads(self, ad, fr):
        ids = []
        for s in range(18):
            for h in range(2):
                a = ad[h] if s < 9 else ad[2 + h]
                i = self.lg.op(f'ds_read_b64_tr_b16 {fr.sub(4 * s + 2 * h, 2)}, {a} offset:{(s % 9) * 4096}')
            ids.append(i)
        ad.release()
        return ids
    def store(self, fr, ids, Rws, s_dst, s_step, s_rot=None, flags='sc1'):
        k = self.k
        va = k.v(); so = k.s(); sl = k.s()
        k(f'v_lshlrev_b32 {va}, 4, {self.lane}')
        if s_rot is not None: k(f's_mov_b32 {sl}, {s_rot}')
        else: k(f's_mov_b32 {so}, {s_dst}')
        for s in range(18):
            if s_rot is not None:
                k(f's_mul_i32 {so}, {sl}, {s_step}\ns_add_u32 {so}, {so}, {s_dst}')
                k(f's_add_u32 {sl}, {sl}, 1\ns_cmp_eq_u32 {sl}, 18\ns_cselect_b32 {sl}, 0, {sl}')
            if ids: self.lg.wait(ids[s])
            self.vm.op(f'buffer_store_dwordx4 {fr.sub(4 * s, 4)}, {va}, {Rws}, {so} offen {flags}')
            if s_rot is None and s < 17: k(f's_add_u32 {so}, {so}, {s_step}')
        va.release(); so.release(); sl.release()

class Stamper:
    def __init__(self, k, on, area):
        self.k = k; self.on = on; self.area = area; self.used = []
        if on: self.r = k.s(16, 1); self.t = k.s(2)
    def __call__(self, i):
        if self.on:
            self.k(f'{"s_memtime" if self.on == 2 else "s_memrealtime"} {self.t}\ns_waitcnt lgkmcnt(0)\ns_mov_b32 {self.r[i]}, {self.t[0]}')
    def init(self):
        if self.on:
            for i in range(16): self.k(f's_mov_b32 {self.r[i]}, 0')
    def flush(self, P):
        if not self.on: return
        k = self.k
        k(f's_waitcnt vmcnt(0) lgkmcnt(0)\ns_mov_b64 exec, -1\nv_mov_b32 v1, 0\nv_cmp_eq_u32 vcc, 0, v0\ns_and_saveexec_b64 s[96:97], vcc\ns_cbranch_execz stamp_done_{self.area}')
        k(f's_load_dwordx2 s[92:93], s[0:1], 128\ns_waitcnt lgkmcnt(0)\ns_mov_b32 s94, {WS_USED}\ns_mov_b32 s95, 0x20000')
        k(f's_lshl_b32 s98, s2, 6\ns_add_u32 s98, s98, {O_DBG + 0x400000 + self.area * 256 * 64}')
        for i in range(16): k(f'v_mov_b32 v2, {self.r[i]}\nbuffer_store_dword v2, v1, s[92:95], s98 offen offset:{4 * i}')
        if self.on == 3 and self.area == 0:
            k(f's_cmp_lg_u32 s2, 0\ns_cbranch_scc1 stamp_done_0\ns_mov_b64 exec, -1\nv_lshlrev_b32 v3, 6, v0\ns_mov_b32 s98, {O_DBG + 0x400000 + 256 * 64}')
            for i in range(4): k(f'buffer_load_dword v{4 + i}, v3, s[92:95], s98 offen\nbuffer_load_dword v{8 + i}, v3, s[92:95], s98 offen offset:60\nv_add_u32 v3, 4096, v3')
            k('s_waitcnt vmcnt(0)\nv_min_u32 v4, v4, v5\nv_min3_u32 v4, v4, v6, v7\nv_max_u32 v8, v8, v9\nv_max3_u32 v8, v8, v10, v11\nv_not_b32 v4, v4')
            k(f's_load_dwordx2 s[92:93], s[0:1], 120\ns_waitcnt lgkmcnt(0)\ns_mov_b32 s94, 256')
            k('buffer_atomic_umax v4, v1, s[92:95], 0 offen offset:56\nbuffer_atomic_umax v8, v1, s[92:95], 0 offen offset:60\ns_mov_b64 exec, 1')
            for i in range(14): k(f'v_mov_b32 v2, {self.r[i]}\nbuffer_store_dword v2, v1, s[92:95], 0 offen offset:{4 * i}')
        k(f'stamp_done_{self.area}:')

def sigma_bf16(k, mean, var):
    k(f'v_mul_f32 {mean}, {fl(1 / 576)}, {mean}\nv_mul_f32 {var}, {fl(1 / 576)}, {var}')
    k(f'v_fma_f32 {var}, -{mean}, {mean}, {var}\nv_max_f32 {var}, 0, {var}')
    k(f'v_cvt_pk_bf16_f32 {var}, {var}, {var}\nv_and_b32 {var}, 0xffff0000, {var}\nv_add_f32 {var}, {fl(1e-5)}, {var}')
    k(f'v_cvt_pk_bf16_f32 {var}, {var}, {var}\nv_and_b32 {var}, 0xffff0000, {var}\nv_sqrt_f32 {var}, {var}')
```

```python
from common import *

N_SIG = 64 + 45
BUF0, BUF1, SVEC = 0, 73728, 147456
K1_LDS = 147456 + 2560
SPIN_MAX = 40000

def vmaps():
    maps = [list(range(16))]
    for s in (1, 2, 3):
        m = list(maps[-1]); step = 1 << s
        new = [step * i for i in range(8, 16)]
        for j in range(16):
            if m[j] % step: m[j] = new.pop(0)
        assert not new
        maps.append(m)
    return maps

def service(k, P, lane, s_w, END, SP):
    vm, lg = trackers(k)
    Rws = k.s(4); Rdbg = k.s(4); RA = k.s(4); RB = k.s(4)
    srd(k, Rws, P['ws'], WS_USED); srd(k, Rdbg, P['dbg'], 256)
    z4 = k.v(4, 4); zero = z4.sub(0, 2); one = k.v(); l16 = k.v(); q = k.v(); m = k.v()
    fr = k.v(72, 4); sv = k.v(72, 4); acc = k.v(4, 4)
    sav = k.s(2); st = k.s(); cnt = k.s()
    jb = k.s(); modeB = k.s(); blkB = k.s(); srcB = k.s(); strB = k.s()
    L_mod, L_B, L_C = k.label('mod'), k.label('jobB'), k.label('jobC')
    k(f'v_lshrrev_b32 {q}, 4, {lane}\nv_and_b32 {m}, 15, {lane}\nv_lshlrev_b32 {l16}, 4, {lane}')
    cjs = {}
    def common():
        for i in range(4): k(f'v_mov_b32 {z4[i]}, 0')
        k(f'v_mov_b32 {one}, 1\ns_mov_b32 {cnt}, 0')
        k(f's_sub_u32 {jb}, s2, 64\ns_add_u32 {blkB}, s2, 40\ns_cmp_ge_u32 s2, 64\ns_cselect_b32 {jb}, {jb}, {blkB}')
        k(f's_sub_u32 {st}, s2, 104\ns_cmp_lt_u32 {st}, 8\ns_cselect_b32 {jb}, 104, {jb}')
        srd(k, RB, P['wmod'], D * 3456 * 2)
        k(f's_mov_b32 {modeB}, 0\ns_add_u32 {blkB}, {jb}, 48\ns_mov_b32 {strB}, 6912')
        for mode, lo, ptr, nb, st_ in ((1, 6, 'w1', D * D * 2, 1152), (2, 15, 'w2', D * D * 2, 1152), (4, 24, 'w4', D * F * 2, 1152), (3, 32, 'w3', D * F * 2, 9216)):
            k(f's_sub_u32 {srcB}, {jb}, {lo}\ns_cmp_ge_u32 {jb}, {lo}')
            k(f's_cselect_b32 {blkB}, {srcB}, {blkB}\ns_cselect_b32 {modeB}, {mode}, {modeB}\ns_cselect_b32 {strB}, {st_}, {strB}')
            k(f's_cselect_b32 {RB[0]}, {P[ptr][0]}, {RB[0]}\ns_cselect_b32 {RB[1]}, {P[ptr][1]}, {RB[1]}\ns_cselect_b32 {RB[2]}, {nb}, {RB[2]}')
        k(f's_lshl_b32 {srcB}, {blkB}, 7\ns_cmp_eq_u32 {modeB}, 4\ns_cselect_b32 {st}, {7 * 576 * 1152 + 128}, 0\ns_add_u32 {srcB}, {srcB}, {st}')
    def signal(which, n_sig):
        sk = k.label('notlast')
        k(f's_mov_b64 exec, 1\nv_mov_b32 {acc[0]}, 1\nbuffer_atomic_add {acc[0]}, {zero[0]}, {Rdbg}, 0 offen offset:{64 + 4 * which} sc0 sc1\ns_waitcnt vmcnt(0)')
        k(f'v_readfirstlane_b32 {st}, {acc[0]}\ns_cmp_lg_u32 {st}, {n_sig - 1}\ns_cbranch_scc1 {sk}')
        k(f'buffer_store_dword {one}, {zero[0]}, {Rdbg}, 0 offen offset:{192 + 4 * which} sc1\n{sk}:\ns_mov_b64 exec, -1')
    cj = ColJob(k, vm, lg, lane, s_w)
    k(f's_cmp_ge_u32 s2, 64\ns_cbranch_scc1 {L_mod}')

    srd(k, RA, P['u'], L * D * 2)
    va = k.v(); vx = k.v(2); t = k.v(6); row = k.v(); s1 = k.s()
    k(f's_and_b32 {st}, {s_w}, 1\ns_lshl_b32 {s1}, s2, 1\ns_add_u32 {st}, {st}, {s1}\ns_lshl_b32 {st}, {st}, 4\nv_add_u32 {row}, {st}, {m}')
    k(f's_lshr_b32 {s1}, {s_w}, 1\ns_mul_i32 {st}, {s1}, 576\nv_mul_u32_u24 {va}, 1152, {row}\nv_lshl_add_u32 {va}, {q}, 4, {va}')
    ix = [vm.op(f'buffer_load_dwordx4 {fr.sub(4 * i, 4)}, {va}, {RA}, {st} offen offset:{64 * i}') for i in range(9)]
    pf = k.v(2); pfs = k.s(2)
    code_prefetch(k, vm, 'k1_kernel', 'k1_conv', 16384, 'v0', pf, pfs, back=True)
    common()
    k(f'v_and_b32 {t[0]}, 1, {m}\nv_lshl_add_u32 {t[1]}, {q}, 1, {t[0]}\nv_lshlrev_b32 {vx[0]}, 14, {t[1]}\nv_sub_u32 {t[1]}, {row}, {t[0]}\nv_lshl_add_u32 {vx[0]}, {t[1]}, 3, {vx[0]}')
    k(f's_mul_i32 {s1}, {s1}, {9 * 131072}\ns_add_u32 {s1}, {s1}, {O_XT}\ns_mov_b32 {st}, 0x3f803f80\nv_cmp_eq_u32 vcc, 0, {t[0]}')
    for i in range(4): k(f'v_mov_b32 {acc[i]}, 0')
    dp = 'quad_perm:[1,0,3,2] row_mask:0xf bank_mask:0xf'
    for i in range(9):
        vm.wait(ix[i])
        if i == 0: SP(8)
        r_ = fr.sub(4 * i, 4); o = sv.sub(4 * i, 4)
        k(f'v_cndmask_b32_dpp {o[0]}, {r_[2]}, {r_[0]}, vcc {dp}\nv_cndmask_b32_dpp {o[1]}, {r_[3]}, {r_[1]}, vcc {dp}\ns_not_b64 vcc, vcc')
        k(f'v_cndmask_b32_dpp {o[2]}, {r_[0]}, {r_[2]}, vcc {dp}\nv_cndmask_b32_dpp {o[3]}, {r_[1]}, {r_[3]}, vcc {dp}\ns_not_b64 vcc, vcc')
        vm.op(f'buffer_store_dwordx4 {o}, {vx[0]}, {Rws}, {s1} offen sc1')
        if i < 8: k(f's_add_u32 {s1}, {s1}, 131072')
    for i in range(36):
        k(f'v_dot2_f32_bf16 {acc[i & 1]}, {fr[i]}, {st}, {acc[i & 1]}')
        k(f'v_dot2_f32_bf16 {acc[2 + (i & 1)]}, {fr[i]}, {fr[i]}, {acc[2 + (i & 1)]}')
    k(f'v_add_f32 {t[0]}, {acc[0]}, {acc[1]}\nv_add_f32 {t[2]}, {acc[2]}, {acc[3]}\nv_permlane32_swap_b32 {t[0]}, {t[2]}\nv_add_f32 {t[0]}, {t[0]}, {t[2]}')
    k(f'v_mov_b32 {t[1]}, {t[0]}\nv_permlane16_swap_b32 {t[0]}, {t[1]}\nv_add_f32 {t[0]}, {t[0]}, {t[1]}')
    k(f's_lshl_b32 {st}, {s_w}, 8\ns_add_u32 {st}, {st}, {SVEC}\nv_lshl_add_u32 {t[1]}, {lane}, 2, {st}\nds_write_b32 {t[1]}, {t[0]}')
    k('s_waitcnt lgkmcnt(0)\ns_barrier')
    a, b = k.label('notw0'), k.label('sigd')
    k(f's_cmp_lg_u32 {s_w}, 0\ns_cbranch_scc1 {a}')
    k(f'v_and_b32 {t[1]}, 1, {q}\nv_lshlrev_b32 {t[1]}, 8, {t[1]}\nv_lshl_add_u32 {t[1]}, {m}, 2, {t[1]}\nv_add_u32 {t[1]}, {SVEC}, {t[1]}')
    k(f'ds_read2_b32 {t[2:4]}, {t[1]} offset0:0 offset1:32\nds_read2_b32 {t[4:6]}, {t[1]} offset0:128 offset1:160\ns_waitcnt lgkmcnt(0)')
    k(f'v_add_f32 {t[0]}, {t[2]}, {t[4]}\nv_add_f32 {t[2]}, {t[3]}, {t[5]}')
    sigma_bf16(k, t[0], t[2])
    k(f'v_cvt_pk_bf16_f32 {t[2]}, {t[0]}, {t[2]}\nv_lshlrev_b32 {t[1]}, 2, {lane}\ns_lshl_b32 {st}, s2, 7\ns_add_u32 {st}, {st}, {O_STATS}')
    k(f's_mov_b32 exec_hi, 0\nbuffer_store_dword {t[2]}, {t[1]}, {Rws}, {st} offen sc1\ns_mov_b64 exec, -1')
    k(f'{a}:\ns_waitcnt vmcnt(0)\ns_barrier'); vm.reset()
    k(f's_cmp_lg_u32 {s_w}, 0\ns_cbranch_scc1 {b}')
    signal(0, 64)
    k(f'{b}:'); SP(9)
    cj.dma(RB, srcB, strB, BUF1)
    k(f's_mul_i32 {st}, s2, {FLAG_BYTES // 64}\nv_lshlrev_b32 {t[2]}, 3, v0\nv_cmp_gt_u32 vcc, {FLAG_BYTES // 64}, {t[2]}')
    k(f's_and_saveexec_b64 {sav}, vcc\nbuffer_store_dwordx2 {zero}, {t[2]}, {Rws}, {st} offen\ns_mov_b64 exec, {sav}')
    k(f's_cmp_ge_u32 s2, 36\ns_cbranch_scc1 {L_B}\ns_lshr_b32 {st}, s2, 1\ns_mul_i32 {st}, {st}, {GPL}\ns_bitcmp1_b32 s2, 0\ns_cselect_b32 {sav[0]}, {2050 * 64}, 0')
    k(f's_add_u32 {st}, {st}, {sav[0]}\ns_add_u32 {st}, {st}, {O_G}\ns_mov_b64 exec, 0xff\nbuffer_store_dwordx4 {z4}, {l16}, {Rws}, {st} offen\ns_mov_b64 exec, -1')
    k(f's_branch {L_B}')
    for x_ in (va, vx, t, row, s1): x_.release()

    def mod_tail(ids, s_blk, sig):
        t = k.v(2); vg = k.v(); s1 = k.s()
        for s in range(18):
            if s % 2 == 0: lg.wait(ids[s + 1])
            k(f'v_mfma_f32_16x16x32_bf16 {acc}, {sv.sub(4 * s, 4)}, {fr.sub(4 * s, 4)}, {"0" if s == 0 else acc}')
        k(f's_lshl_b32 {s1}, {s_w}, 6\ns_add_u32 {s1}, {s1}, {SVEC + 2048}\nv_lshl_add_u32 {vg}, {m}, 2, {s1}')
        k(f'v_cvt_pk_bf16_f32 {t[0]}, {acc[0]}, {acc[0]}\nv_and_b32 {t[0]}, 0xffff0000, {t[0]}')
        k(f'v_add_f32 {t[1]}, 1.0, {t[0]}\nv_cvt_pk_bf16_f32 {t[1]}, {t[1]}, {t[1]}\nv_and_b32 {t[1]}, 0xffff0000, {t[1]}')
        k(f's_mov_b64 vcc, 0\ns_sub_u32 {s1}, {s_blk}, 9\ns_cmp_lt_u32 {s1}, 9\ns_cselect_b64 vcc, -1, vcc')
        k(f's_sub_u32 {s1}, {s_blk}, 36\ns_cmp_lt_u32 {s1}, 9\ns_cselect_b64 vcc, -1, vcc')
        k(f'v_cndmask_b32 {t[0]}, {t[0]}, {t[1]}, vcc\nds_write_b32 {vg}, {t[0]}\ns_waitcnt lgkmcnt(0)\ns_barrier'); lg.reset()
        a, b = k.label('notw0'), k.label('nob')
        k(f's_cmp_lg_u32 {s_w}, 0\ns_cbranch_scc1 {a}')
        k(f'v_lshlrev_b32 {vg}, 3, {lane}\nv_add_u32 {t[0]}, {SVEC + 2048}, {vg}\nds_read_b64 {t}, {t[0]}\ns_lshl_b32 {s1}, {s_blk}, 8\ns_add_u32 {s1}, {s1}, {O_MODF}')
        k(f's_mov_b32 exec_hi, 0\ns_waitcnt lgkmcnt(0)\nbuffer_store_dwordx2 {t}, {vg}, {Rws}, {s1} offen sc1')
        if sig:
            k(f's_sub_u32 {s1}, {s_blk}, 27\ns_cmp_ge_u32 {s1}, 18\ns_cbranch_scc1 {b}')
            k(f'v_cvt_pk_bf16_f32 {acc[0]}, {t[0]}, {t[1]}\nv_lshrrev_b32 {vg}, 1, {vg}\ns_lshl_b32 {s1}, {s1}, 7\ns_add_u32 {s1}, {s1}, {O_MODB}')
            k(f'buffer_store_dword {acc[0]}, {vg}, {Rws}, {s1} offen sc1\n{b}:')
            k(f's_cmp_ge_u32 {s_blk}, 45\ns_cbranch_scc1 {a}\ns_waitcnt vmcnt(0)')
            signal(1, 45)
        k(f'{a}:\ns_mov_b64 exec, -1')
        t.release(); vg.release(); s1.release()

    k(f'{L_mod}:')
    vm, lg = trackers(k); cj.vm, cj.lg = vm, lg
    blkA = k.s(); srcA = k.s(); strA = k.s(); Rc = k.s(4)
    srd(k, RA, P['wmod'], D * 3456 * 2); srd(k, Rc, P['c'], D * 2)
    k(f's_sub_u32 {blkA}, s2, 64\ns_lshl_b32 {srcA}, {blkA}, 7\ns_mov_b32 {strA}, 6912')
    t = k.v(8); vg = k.v()
    k(f'v_lshlrev_b32 {vg}, 3, v0')
    ic = vm.op(f'buffer_load_dwordx2 {t[0:2]}, {vg}, {Rc}, 0 offen')
    code_prefetch(k, vm, 'k1_kernel', 'k1_conv', 16384, 'v0', pf, pfs, back=True)
    ia = cj.dma(RA, srcA, strA, BUF0)
    common()
    vm.wait(ic)
    k(f'v_lshlrev_b32 {t[2]}, 16, {t[0]}\nv_and_b32 {t[3]}, 0xffff0000, {t[0]}\nv_lshlrev_b32 {t[4]}, 16, {t[1]}\nv_and_b32 {t[5]}, 0xffff0000, {t[1]}')
    e = k.v(4)
    for i in range(4): k(f'v_mul_f32 {e[i]}, {fl(-LOG2E)}, {t[2 + i]}')
    for i in range(4): k(f'v_exp_f32 {e[i]}, {e[i]}')
    for i in range(4): k(f'v_add_f32 {e[i]}, 1.0, {e[i]}')
    for i in range(4): k(f'v_rcp_f32 {e[i]}, {e[i]}')
    for i in range(4): k(f'v_mul_f32 {e[i]}, {e[i]}, {t[2 + i]}')
    k(f'v_cvt_pk_bf16_f32 {t[0]}, {e[0]}, {e[1]}\nv_cvt_pk_bf16_f32 {t[1]}, {e[2]}, {e[3]}\nv_add_u32 {vg}, {SVEC}, {vg}')
    k(f'ds_write_b64 {vg}, {t[0:2]}\nv_lshlrev_b32 {vg}, 4, {q}\nv_add_u32 {vg}, {SVEC}, {vg}\ns_waitcnt lgkmcnt(0)\ns_barrier')
    for s in range(18): lg.op(f'ds_read_b128 {sv.sub(4 * s, 4)}, {vg} offset:{64 * s}')
    ad = cj.addr(BUF0)
    k('s_waitcnt vmcnt(0) lgkmcnt(0)\ns_barrier'); SP(10); vm.reset(); lg.reset()
    ids = cj.reads(ad, fr)
    mod_tail(ids, blkA, True); SP(11)
    k(f's_cmp_ge_u32 {jb}, 104\ns_cbranch_scc1 {L_C}')
    cj.dma(RB, srcB, strB, BUF1)
    k('s_waitcnt vmcnt(0)')
    e.release(); t.release(); vg.release()

    k(f'{L_B}:')
    vm, lg = trackers(k); cj.vm, cj.lg = vm, lg
    k(f's_waitcnt vmcnt(1) lgkmcnt(0)\ns_barrier')
    SP(12)
    il = k.s(); k(f's_sub_u32 {il}, {modeB}, 1\ns_cmp_lt_u32 {il}, 2\ns_cselect_b32 {il}, 1, 0')
    ids = cj.read(BUF1, fr, s_il=il, s_w4=modeB)
    notmod, nocenter = k.label('notmod'), k.label('nocenter')
    k(f's_cmp_lg_u32 {modeB}, 0\ns_cbranch_scc1 {notmod}')
    mod_tail(ids, blkB, False)
    k(f's_branch {L_C}\n{notmod}:')
    k('s_waitcnt lgkmcnt(0)'); lg.reset()
    k(f's_bitcmp0_b32 {modeB}, 0\ns_cbranch_scc1 {nocenter}')
    ones = sv.sub(0, 4); t = k.v(4)
    for i in range(4): k(f'v_mov_b32 {ones[i]}, 0x3f803f80')
    for s in range(18): k(f'v_mfma_f32_16x16x32_bf16 {acc}, {ones}, {fr.sub(4 * s, 4)}, {"0" if s == 0 else acc}')
    nm = sv.sub(4, 2)
    k(f'v_mul_f32 {nm[0]}, {fl(-1 / 576)}, {acc[0]}')
    for i in range(0, 72, 2):
        k(f'v_lshlrev_b32 {t[0]}, 16, {fr[i]}\nv_and_b32 {t[1]}, 0xffff0000, {fr[i]}')
        k(f'v_lshlrev_b32 {t[2]}, 16, {fr[i + 1]}\nv_and_b32 {t[3]}, 0xffff0000, {fr[i + 1]}')
        k(f'v_pk_add_f32 {t[0:2]}, {t[0:2]}, {nm} op_sel_hi:[1,0]\nv_pk_add_f32 {t[2:4]}, {t[2:4]}, {nm} op_sel_hi:[1,0]')
        k(f'v_cvt_pk_bf16_f32 {fr[i]}, {t[0]}, {t[1]}\nv_cvt_pk_bf16_f32 {fr[i + 1]}, {t[2]}, {t[3]}')
    k(f'{nocenter}:')
    T = k.s(); j = k.s(); dst = k.s(); step = k.s(); rot = k.s()
    k(f's_lshl_b32 {T}, {blkB}, 2\ns_add_u32 {T}, {T}, {s_w}')
    k(f's_mul_hi_u32 {j}, {T}, {(1 << 32) // 6 + 1}\ns_mul_i32 {dst}, {j}, 6\ns_sub_u32 {dst}, {T}, {dst}\ns_lshl_b32 {dst}, {dst}, 10')
    k(f's_mul_i32 {step}, {j}, 110592\ns_add_u32 {dst}, {dst}, {step}')
    k(f's_mul_i32 {rot}, {j}, 3\ns_sub_u32 {rot}, 18, {rot}\ns_cmp_eq_u32 {rot}, 18\ns_cselect_b32 {rot}, 0, {rot}')
    k(f's_cmp_eq_u32 {modeB}, 1\ns_cselect_b32 {rot}, {rot}, 0\ns_cselect_b32 {step}, 0, {O_W2F - O_W1F}\ns_add_u32 {dst}, {dst}, {step}\ns_add_u32 {dst}, {dst}, {O_W1F}')
    k(f's_mul_i32 {j}, {T}, 18432\ns_add_u32 {j}, {j}, {O_W3F}')
    k(f's_cmp_eq_u32 {modeB}, 4\ns_cselect_b32 {step}, {O_W4F - O_W3F + 256 * 18432}, 0\ns_add_u32 {j}, {j}, {step}')
    k(f's_cmp_ge_u32 {modeB}, 3\ns_cselect_b32 {dst}, {j}, {dst}\ns_cselect_b32 {step}, 1, 6\ns_lshl_b32 {step}, {step}, 10')
    cj.store(fr, None, Rws, dst, step, s_rot=rot)
    k(f's_cmp_lg_u32 {modeB}, 1\ns_cbranch_scc1 {L_C}')
    lp, ok = k.label('pollm'), k.label('gotm')
    k(f'{lp}:\nbuffer_load_dword {t[0]}, {zero[0]}, {Rdbg}, 0 offen offset:196 sc1\ns_waitcnt vmcnt(0)\nv_readfirstlane_b32 {st}, {t[0]}')
    k(f's_cmp_ge_u32 {st}, 1\ns_cbranch_scc1 {ok}\ns_sleep 4\ns_add_u32 {cnt}, {cnt}, 1\ns_cmp_lt_u32 {cnt}, {SPIN_MAX}\ns_cbranch_scc1 {lp}\ns_branch {END}\n{ok}:'); vm.reset()
    k(f'v_and_b32 {t[0]}, 1, {m}\nv_xor_b32 {t[0]}, 1, {t[0]}\nv_mul_u32_u24 {t[0]}, 1152, {t[0]}\nv_lshl_add_u32 {t[0]}, {q}, 4, {t[0]}\ns_mov_b32 {st}, {O_MODB}')
    ids = [vm.op(f'buffer_load_dwordx4 {sv.sub(4 * s, 4)}, {t[0]}, {Rws}, {st} offen offset:{64 * s} sc1') for s in range(18)]
    k(f's_lshr_b32 {j}, {T}, 1\ns_lshl_b32 {j}, {j}, 7\ns_and_b32 {st}, {T}, 1\ns_lshl_b32 {st}, {st}, 4\ns_add_u32 {j}, {j}, {st}\ns_add_u32 {j}, {j}, {O_MODF + 6 * 2304}')
    k(f'v_lshrrev_b32 {t[1]}, 2, {m}\nv_and_b32 {t[2]}, 3, {m}\nv_lshlrev_b32 {t[2]}, 2, {t[2]}\nv_lshl_add_u32 {t[1]}, {t[1]}, 5, {t[2]}')
    for s in range(18):
        vm.wait(ids[s])
        k(f'v_mfma_f32_16x16x32_bf16 {acc}, {sv.sub(4 * s, 4)}, {fr.sub(4 * s, 4)}, {"0" if s == 0 else acc}')
    k(f's_mov_b64 exec, 0xffff\nbuffer_store_dword {acc[0]}, {t[1]}, {Rws}, {j} offen\nbuffer_store_dword {acc[1]}, {t[1]}, {Rws}, {j} offen offset:2304\ns_mov_b64 exec, -1')
    k(f'{L_C}:'); SP(13)
    code_prefetch(k, None, 'k2_kernel', 'k2_end', 40000, 'v0', k.v(2), k.s(2))
    k(f's_branch {END}')

TAB, KD, WSTR = 0, 17408, 19072
HB = 4 * WSTR
HSTR = 4608

def conv(k, P, lane, s_w, END, dump, SP):
    vm, lg = trackers(k)
    cidx = k.s(); s_d = k.s(); st = k.s(); st2 = k.s(); sav = k.s(2)
    k(f's_and_b32 {cidx}, s2, 7\ns_mul_i32 {cidx}, {cidx}, 18\ns_lshr_b32 {st}, s2, 3\ns_add_u32 {cidx}, {cidx}, {st}\ns_sub_u32 {cidx}, {cidx}, 14')
    k(f's_lshl_b32 {s_d}, {cidx}, 2\ns_add_u32 {s_d}, {s_d}, {s_w}\ns_lshl_b32 {st}, {cidx}, 3')
    sdt = k.s(2); sD = k.s(2)
    k(f's_load_dwordx2 {sdt}, {P["logdt"]}, {st}\ns_load_dwordx2 {sD}, {P["Dskip"]}, {st}')
    R = k.s(4); Rws = k.s(4); Rdbg = k.s(4)
    par = k.v(4); t = k.v(8); x = k.v(16)
    k(f'v_lshlrev_b32 {t[0]}, 2, {lane}\ns_lshl_b32 {st2}, {s_d}, 8')
    for i, n in enumerate(('logA', 'Aim', 'Cr', 'Ci')):
        srd(k, R, P[n], D * 128 * 2)
        ipar = vm.op(f'buffer_load_dword {par[i]}, {t[0]}, {R}, {st2} offen')
    code_prefetch(k, vm, 'k1_conv', 'k1_end', 16384, 'v0', k.v(2), k.s(2), back=True)
    srd(k, Rws, P['ws'], WS_USED); srd(k, Rdbg, P['dbg'], 256)
    wb = k.s(); k(f's_mul_i32 {wb}, {s_w}, {WSTR}')
    q = k.v(); m = k.v(); ag = k.v(); am = k.v(); a4 = k.v(); fl_v = k.v(2)
    k(f'v_lshrrev_b32 {q}, 4, {lane}\nv_and_b32 {m}, 15, {lane}')
    ga = k.v(32); cst = k.v()
    k(f's_add_u32 {st2}, {wb}, {KD - 2 * (134 * 128 - 128)}\nv_mov_b32 {cst}, {st2}')
    k(f'v_lshlrev_b32 {t[2]}, 3, {lane}\nv_cvt_f32_u32 {t[2]}, {t[2]}')
    for c in range(4):
        for e in range(0, 8, 2):
            k(f'v_add_f32 {t[4]}, {fl(512 * c + e)}, {t[2]}\nv_add_f32 {t[5]}, {fl(512 * c + e + 1)}, {t[2]}\nv_cvt_pk_bf16_f32 {t[4]}, {t[4]}, {t[5]}')
            k(f'v_mad_u32_u16 {ga[8 * c + e]}, {t[4]}, 2, {cst}\nv_mad_u32_u16 {ga[8 * c + e + 1]}, {t[4]}, 2, {cst} op_sel:[1,0,0,0]')
    k(f's_add_u32 {st2}, {wb}, {KD}\nv_lshl_add_u32 {t[4]}, {lane}, 4, {st2}\nv_cmp_gt_u32 vcc, 16, {lane}')
    for e in range(8): k(f'v_add_u32 {t[5]}, {2 * e}, {t[4]}\nv_cndmask_b32 {ga[e]}, {ga[e]}, {t[5]}, vcc')
    VM = vmaps()
    kda = k.v(4)
    k(f'v_lshlrev_b32 {t[2]}, 2, {m}')
    for s in range(4):
        lut = sum((VM[s][j] >> s) << (4 * j) for j in range(16))
        base = 0 if s == 0 else 128 + 128 * s
        k(f's_mov_b32 {sav[0]}, {lut & 0xffffffff}\ns_mov_b32 {sav[1]}, {lut >> 32}\nv_lshrrev_b64 {t[4:6]}, {t[2]}, {sav}\nv_and_b32 {t[4]}, 15, {t[4]}')
        k(f'v_lshl_add_u32 {t[4]}, {q}, 6, {t[4]}\ns_add_u32 {st2}, {wb}, {KD + 2 * base}\nv_lshl_add_u32 {kda[s]}, {t[4]}, 1, {st2}')
    cst.release()
    atw = k.v(); atr = k.v()
    k(f'v_lshl_add_u32 {atw}, {lane}, 3, {wb}\nv_mul_u32_u24 {atr}, 544, {m}\nv_lshl_add_u32 {atr}, {q}, 4, {atr}\nv_add_u32 {atr}, {wb}, {atr}')
    z4 = k.v(4)
    for i in range(4): k(f'v_mov_b32 {z4[i]}, 0')
    k(f'v_lshrrev_b32 {t[4]}, 5, v0\nv_mul_u32_u24 {t[4]}, {HSTR}, {t[4]}\nv_and_b32 {t[5]}, 31, v0\nv_lshl_add_u32 {t[4]}, {t[5]}, 4, {t[4]}\nv_add_u32 {t[4]}, {HB}, {t[4]}')
    k(f'v_cmp_gt_u32 vcc, 128, v0\ns_and_saveexec_b64 {sav}, vcc\nds_write_b128 {t[4]}, {z4}\ns_mov_b64 exec, {sav}')
    k('s_waitcnt lgkmcnt(0)')
    k(f's_lshl_b32 {st2}, {s_w}, 4\ns_lshr_b64 {sdt}, {sdt}, {st2}\ns_lshl_b32 {sdt[0]}, {sdt[0]}, 16')
    dt = k.v(); ks = k.v()
    k(f'v_mov_b32 {dt}, {fl(LOG2E)}\nv_mul_f32 {dt}, {sdt[0]}, {dt}\nv_exp_f32 {dt}, {dt}\nv_cvt_pk_bf16_f32 {dt}, {dt}, {dt}\nv_and_b32 {dt}, 0xffff0000, {dt}')
    SP(1); vm.wait(ipar); SP(2)
    pr = lambda: [k.v(2), k.v(2)]
    w1, w16, U = pr(), pr(), pr()
    er = k.v(2); rev = k.v(2)
    un = lambda d, s_, hi: f'v_and_b32 {d}, 0xffff0000, {s_}' if hi else f'v_lshlrev_b32 {d}, 16, {s_}'
    for md in range(2):
        k(un(er[md], par[0], md)); k(un(rev[md], par[1], md)); k(un(U[0][md], par[2], md)); k(un(U[1][md], par[3], md))
    for md in range(2): k(f'v_mul_f32 {er[md]}, {fl(LOG2E)}, {er[md]}')
    for md in range(2): k(f'v_exp_f32 {er[md]}, {er[md]}')
    k(f'v_max3_f32 {t[0]}, |{U[0][0]}|, |{U[0][1]}|, |{U[1][0]}|\nv_max_f32 {t[0]}, |{U[1][1]}|, {t[0]}')
    k(f'v_cvt_pk_bf16_f32 {t[1]}, {er[0]}, {er[1]}')
    for mm in ('quad_perm:[1,0,3,2]', 'quad_perm:[2,3,0,1]', 'row_half_mirror', 'row_mirror'):
        k(f'v_max_f32_dpp {t[0]}, {t[0]}, {t[0]} {mm} row_mask:0xf bank_mask:0xf')
    for md in range(2):
        k(un(er[md], t[1], md))
        k(f'v_mul_f32 {er[md]}, {er[md]}, {dt}\nv_mul_f32 {rev[md]}, {rev[md]}, {dt}')
        k(f'v_mul_f32 {er[md]}, {fl(-LOG2E)}, {er[md]}\nv_mul_f32 {rev[md]}, 0.15915494, {rev[md]}')
    k(f'v_readlane_b32 {st2}, {t[0]}, 0\nv_readlane_b32 {sav[0]}, {t[0]}, 16\nv_readlane_b32 {sav[1]}, {t[0]}, 32\nv_readlane_b32 {st}, {t[0]}, 48')
    k(f's_max_u32 {st2}, {st2}, {sav[0]}\ns_max_u32 {st}, {st}, {sav[1]}\ns_max_u32 {st2}, {st2}, {st}')
    for w_, mul in ((w1, None), (w16, '16.0')):
        for md in range(2):
            a, b = t[2 + md], t[4 + md]
            if mul: k(f'v_mul_f32 {a}, {fl(16.)}, {er[md]}\nv_mul_f32 {b}, {fl(16.)}, {rev[md]}\nv_fract_f32 {b}, {b}\nv_exp_f32 {a}, {a}')
            else: k(f'v_fract_f32 {b}, {rev[md]}\nv_exp_f32 {a}, {er[md]}')
            k(f'v_cos_f32 {w_[0][md]}, {b}\nv_sin_f32 {w_[1][md]}, {b}')
        for c in range(2): k(f'v_pk_mul_f32 {w_[c]}, {w_[c]}, {t[2:4]}')
    k(f'v_frexp_exp_i32_f32 {t[0]}, {st2}\nv_sub_u32 {t[1]}, 8, {t[0]}\nv_add_u32 {t[0]}, -7, {t[0]}\nv_ldexp_f32 {ks}, {dt}, {t[0]}')
    for md in range(2):
        for c in range(2): k(f'v_ldexp_f32 {U[c][md]}, {U[c][md]}, {t[1]}')
    er.release(); rev.release(); dt.release()
    tm = [k.v(2) for _ in range(4)]
    def cmul(d, z, s_, ta, tb):
        return [f'v_pk_mul_f32 {ta}, {z[1]}, {s_[1]}', f'v_pk_mul_f32 {tb}, {z[0]}, {s_[1]}',
                f'v_pk_fma_f32 {d[0]}, {z[0]}, {s_[0]}, {ta} neg_lo:[0,0,1] neg_hi:[0,0,1]', f'v_pk_fma_f32 {d[1]}, {z[1]}, {s_[0]}, {tb}']
    w32, w64, w128, w2, w4, w8, V = pr(), pr(), pr(), pr(), pr(), pr(), pr()
    for d_, s_ in ((w32, w16), (w64, w32), (w128, w64)):
        for x_ in cmul(d_, s_, s_, tm[0], tm[1]): k(x_)
    pv = [k.v(2), k.v(2)]; pu = [k.v(2), k.v(2)]
    fa = k.v(32, 4); fb = k.v(32, 4); kacc = k.v(16, 4)
    state = {'V': None, 'nv': 0, 'nu': 0}
    def v_entry(val, slot):
        out = []
        pk = pv[state['nv'] & 1]; state['nv'] += 1
        if val == 0:
            out += [f'v_mov_b32 {pk[0]}, 0x3c00', f'v_mov_b32 {pk[1]}, 0x3c00']
        else:
            if val == 1: cur = w1
            else:
                step = w1 if val <= 16 else w2 if val <= 32 else w4 if val <= 64 else w8
                cur = {2: w2, 4: w4, 8: w8}.get(val, V)
                out += cmul(cur, state['V'], step, tm[0], tm[1])
            state['V'] = cur
            out += [f'v_cvt_pk_f16_f32 {pk[md]}, {cur[0][md]}, {cur[1][md]}' for md in range(2)]
        out.append(('ds', f'ds_write_b64 {atw}, {pk} offset:{TAB + slot * 544}'))
        return out
    def u_entry(val, row):
        out = []
        pk = pu[state['nu'] & 1]; state['nu'] += 1
        if val:
            step = w16 if val <= 256 else w32 if val <= 512 else w64 if val <= 1024 else w128
            out += cmul(U, U, step, tm[2], tm[3])
        out += [f'v_cvt_pk_f16_f32 {pk[md]}, {U[0][md]}, -{U[1][md]}' for md in range(2)]
        out.append(('ds', f'ds_write_b64 {atw}, {pk} offset:{TAB + (16 + row) * 544}'))
        return out
    def put(x_):
        if isinstance(x_, tuple): return lg.op(x_[1])
        k(x_)
    pend = []
    flag_ld = f'buffer_load_dwordx2 {fl_v}, {z4[0]}, {Rdbg}, 0 offen offset:192 sc1'
    ifl = None
    for s in range(4):
        vs = sorted((VM[s][j], j) for j in range(16) if s == 0 or VM[s][j] != VM[s - 1][j])
        us = [16 * u for u in range(16)] if s == 0 else [(128 << s) + (16 << s) * u for u in range(9 if s == 3 else 8)]
        sv_ = [x_ for val, j in vs for x_ in v_entry(val, j)]
        su_ = [x_ for r_, val in enumerate(us) for x_ in u_entry(val, r_)]
        stream = interleave(sv_, su_)
        for n_, x_ in enumerate(stream):
            put(x_)
            if n_ == 27:
                while pend:
                    idr, mf = pend.pop(0); lg.wait(idr); k(mf)
            if s == 3 and n_ == 40: k(flag_ld)
        assert not pend
        for kk in range(8):
            lg.op(f'ds_read_b128 {fa.sub(4 * kk, 4)}, {atr} offset:{TAB + 16 * 544 + 64 * kk}')
            i_ = lg.op(f'ds_read_b128 {fb.sub(4 * kk, 4)}, {atr} offset:{TAB + 64 * kk}')
            ac = kacc.sub(4 * s, 4)
            pend.append((i_, f'v_mfma_f32_16x16x32_f16 {ac}, {fa.sub(4 * kk, 4)}, {fb.sub(4 * kk, 4)}, {"0" if kk == 0 else ac}'))
    for x_ in (w1, w16, w32, w64, w128, w2, w4, w8, V, U, tm, pv, pu):
        for y_ in x_: y_.release()
    sg = k.v(8, 2); md_ = k.v(16, 4); cnt = k.s()
    def kd_out(s):
        ac = kacc.sub(4 * s, 4)
        for e in range(4): k(f'v_mul_f32 {ac[e]}, {ks}, {ac[e]}')
        k(f'v_cvt_pk_bf16_f32 {ac[0]}, {ac[0]}, {ac[1]}\nv_cvt_pk_bf16_f32 {ac[2]}, {ac[2]}, {ac[3]}')
        for e in range(4): lg.op(f'ds_write_b16{"_d16_hi" if e & 1 else ""} {kda[s]}, {ac[e & 2]} offset:{32 * e}')
    for s in range(3): kd_out(s)
    SP(3); lg.reset() if SP.on else None
    got = k.s()
    def row_loads():
        k(f's_lshl_b32 {st}, {cidx}, 14\ns_add_u32 {st}, {st}, {O_XT}')
        for i in range(4):
            k(f'buffer_load_dwordx4 {x.sub(4 * i, 4)}, {ag}, {Rws}, {st} offen sc1')
            if i < 3: k(f's_add_u32 {st}, {st}, 4096')
        k(f's_mov_b32 {st}, {O_STATS}\ns_mov_b32 {st2}, {O_STATS + 4096}')
        for i in range(4): k(f'buffer_load_dwordx2 {sg.sub(2 * i, 2)}, {am}, {Rws}, {(st, st2)[i // 2]} offen offset:{2048 * (i & 1)} sc1')
    def spin(i):
        lp, ok = k.label('poll'), k.label('go')
        k(f'{lp}:\nv_readfirstlane_b32 {st}, {fl_v[i]}\ns_cmp_ge_u32 {st}, 1\ns_cbranch_scc1 {ok}')
        k(f'{flag_ld}\ns_add_u32 {cnt}, {cnt}, 1\ns_cmp_lt_u32 {cnt}, {SPIN_MAX}\ns_waitcnt vmcnt(0)\ns_cbranch_scc1 {lp}\ns_branch {END}\n{ok}:')
    late = k.label('late')
    k(f'v_lshlrev_b32 {ag}, 4, v0\nv_lshlrev_b32 {am}, 3, v0\nv_lshlrev_b32 {a4}, 2, v0\ns_mov_b32 {cnt}, 0\ns_waitcnt vmcnt(0)')
    k(f'v_readfirstlane_b32 {got}, {fl_v[0]}\ns_cmp_eq_u32 {got}, 0\ns_cbranch_scc1 {late}')
    row_loads()
    k(f'{late}:')
    while pend:
        idr, mf = pend.pop(0); lg.wait(idr); k(mf)
    kd_out(3)
    kc = fa.sub(0, 16); pvv = fa.sub(16, 8)
    gid = [lg.op(f'ds_read_u16 {ga[e]}, {ga[e]}') for e in range(32)]
    aw = kda[0]; ap = kda[1]
    k(f'v_lshl_add_u32 {aw}, {lane}, 4, {wb}\nv_lshrrev_b32 {ap}, 1, {lane}\nv_mul_u32_u24 {ap}, 4160, {ap}\nv_and_b32 {t[1]}, 1, {lane}')
    k(f'v_lshl_add_u32 {ap}, {t[1]}, 4, {ap}\nv_add_u32 {ap}, {wb}, {ap}')
    k(f's_mov_b64 exec, 0xff'); lg.op(f'ds_write_b128 {ap}, {z4}'); k('s_mov_b64 exec, -1')
    for c in range(4):
        lg.wait(gid[8 * c + 7])
        for e in range(4): k(f'v_lshl_or_b32 {kc[4 * c + e]}, {ga[8 * c + 2 * e + 1]}, 16, {ga[8 * c + 2 * e]}')
        lg.op(f'ds_write_b128 {aw}, {kc.sub(4 * c, 4)} offset:{32 + 1024 * c}')
    ids = [lg.op(f'ds_read_b64 {pvv.sub(2 * c, 2)}, {aw} offset:{24 + 1024 * c}') for c in range(4)]
    k(flag_ld)
    for c in range(4):
        lg.wait(ids[c])
        o = fb.sub(12 * (c & 1), 12); d_ = kc.sub(4 * c, 4); p0, p1 = pvv[2 * c], pvv[2 * c + 1]
        seq = [p0, p1, d_[0], d_[1], d_[2], d_[3]]
        o3 = o.sub(0, 4); o1 = o.sub(4, 4); o2 = o.sub(8, 4)
        for i in range(4): k(f'v_alignbit_b32 {o3[i]}, {seq[i + 1]}, {seq[i]}, 16')
        for i in range(3): k(f'v_mov_b32 {o1[i]}, {o3[i + 1]}')
        k(f'v_alignbit_b32 {o1[3]}, {seq[5]}, {seq[4]}, 16')
        for i in range(4): k(f'v_mov_b32 {o2[i]}, {seq[i + 1]}')
        for r_, oo in ((1, o1), (2, o2), (3, o3)): lg.op(f'ds_write_b128 {aw}, {oo} offset:{4160 * r_ + 32 + 1024 * c}')
    if dump:
        k(f's_lshl_b32 {st}, {s_d}, 12\ns_add_u32 {st}, {st}, {O_DBG}\nv_lshlrev_b32 {t[1]}, 4, {lane}')
        for c in range(4): vm.op(f'buffer_store_dwordx4 {kc.sub(4 * c, 4)}, {t[1]}, {Rws}, {st} offen offset:{1024 * c}')
    ga.release(); acc = k.v(32, 4); kacc.release(); ks.release(); atw.release(); atr.release()
    SP(4); lg.reset() if SP.on else None
    have = k.label('have')
    k(f's_waitcnt vmcnt(0)\ns_cmp_lg_u32 {got}, 0\ns_cbranch_scc1 {have}')
    spin(0); row_loads()
    k(f'{have}:')
    spin(1)
    SP(14); lg.reset() if SP.on else None
    k(f's_lshl_b32 {st}, {cidx}, 4\ns_add_u32 {st}, {st}, {O_MODF}\ns_add_u32 {st2}, {st}, 4608')
    for i, (sr, off) in enumerate(((st, 0), (st, 2304), (st2, 0))): vm.op(f'buffer_load_dwordx4 {md_.sub(4 * i, 4)}, {z4[0]}, {Rws}, {sr} offen offset:{off} sc1')
    k(f's_add_u32 {st2}, {st2}, 4608')
    vm.op(f'buffer_load_dwordx4 {md_.sub(12, 4)}, {z4[0]}, {Rws}, {st2} offen sc1')
    k('s_waitcnt vmcnt(4)')
    SP(5)
    xf = k.v(32); hf = k.v(32); st_ = k.v(16)
    for i in range(8): k(f'v_and_b32 {st_[2 * i]}, 0xffff0000, {sg[i]}\nv_lshlrev_b32 {st_[2 * i + 1]}, 16, {sg[i]}')
    for i in range(8): k(f'v_rcp_f32 {st_[2 * i]}, {st_[2 * i]}')
    for i in range(16): k(f'v_lshlrev_b32 {xf[2 * i]}, 16, {x[i]}\nv_and_b32 {xf[2 * i + 1]}, 0xffff0000, {x[i]}')
    for i in range(8): k(f'v_mul_f32 {st_[2 * i + 1]}, -{st_[2 * i + 1]}, {st_[2 * i]}')
    k(f'v_add_u32 {am}, {HB + 512}, {a4}')
    for j in range(16): k(f'v_pk_fma_f32 {hf.sub(2 * j, 2)}, {xf.sub(2 * j, 2)}, {st_.sub(2 * (j // 2), 2)}, {st_.sub(2 * (j // 2), 2)} op_sel:[0,0,1] op_sel_hi:[1,0,1]')
    vm.all()
    for i in range(4):
        for j in range(4 * i, 4 * i + 4): k(f'v_pk_fma_f32 {hf.sub(2 * j, 2)}, {hf.sub(2 * j, 2)}, {md_.sub(4 + 2 * (j & 1), 2)}, {md_.sub(2 * (j & 1), 2)}')
        for c in range(4): k(f'v_cvt_pk_bf16_f32 {x[4 * i + c]}, {hf[8 * i + c]}, {hf[8 * i + 4 + c]}')
        for c in range(4): lg.op(f'ds_write_b32 {am}, {x[4 * i + c]} offset:{HSTR * c + 1024 * i}')
    st_.release(); sg.release()
    aA = kda[2]; aB = kda[3]
    k(f'v_bfe_u32 {t[0]}, {lane}, 2, 2\nv_mul_u32_u24 {aA}, 4160, {t[0]}\nv_and_b32 {t[0]}, 3, {lane}\nv_lshl_add_u32 {aA}, {t[0]}, 3, {aA}')
    k(f'v_lshlrev_b32 {t[0]}, 4, {q}\nv_sub_u32 {aA}, {aA}, {t[0]}\ns_add_u32 {st}, {wb}, 56\nv_add_u32 {aA}, {st}, {aA}')
    k(f's_mul_i32 {st}, {s_w}, {HSTR}\ns_add_u32 {st}, {st}, {HB + 480}\nv_lshl_add_u32 {aB}, {m}, 5, {t[0]}\nv_add_u32 {aB}, {st}, {aB}')
    lg.all(); k('s_barrier'); SP(6)
    fa2 = k.a(32, 4); fb2 = k.a(32, 4)
    sets = [(fa, fb), (fa2, fb2)]
    k(f'v_add_u32 {aB}, -448, {aB}')
    def reads(r_):
        A_, B_ = sets[r_ & 1]; out = []
        for i in range(8):
            out.append(f'ds_read_b128 {B_.sub(4 * i, 4)}, {aB} offset:{448 - 64 * r_ + 512 * i}')
            out.append(f'ds_read_b64_tr_b16 {A_.sub(4 * i, 2)}, {aA} offset:{64 * r_ + 8 + 512 * i}')
            out.append(f'ds_read_b64_tr_b16 {A_.sub(4 * i + 2, 2)}, {aA} offset:{64 * r_ + 512 * i}')
        return out
    cur = [lg.op(x_) for x_ in reads(0)]
    for r_ in range(8):
        rd = reads(r_ + 1) if r_ < 7 else []
        A_, B_ = sets[r_ & 1]; nxt = []
        order = [(i, tt) for i in range(8) for tt in range(i, 8)] if r_ else sorted(((i, tt) for i in range(8) for tt in range(i, 8)), key=lambda p: (max(p[0], p[1] - p[0]), p))
        seen = set()
        for i, tt in order:
            lg.wait(max(cur[3 * i + 2], cur[3 * (tt - i)]))
            first = r_ == 0 and tt not in seen; seen.add(tt)
            k(f'v_mfma_f32_16x16x32_bf16 {acc.sub(4 * tt, 4)}, {A_.sub(4 * i, 4)}, {B_.sub(4 * (tt - i), 4)}, {"0" if first else acc.sub(4 * tt, 4)}')
            if rd: nxt.append(lg.op(rd.pop(0)))
        cur = nxt
    SP(7)
    k(f'v_lshlrev_b32 {t[0]}, 3, {q}\nv_lshl_add_u32 {t[0]}, {m}, 5, {t[0]}\nv_add_u32 {t[0]}, {wb}, {t[0]}')
    for tt in range(8):
        o = fa.sub(2 * tt, 2)
        k(f'v_cvt_pk_bf16_f32 {o[0]}, {acc[4 * tt]}, {acc[4 * tt + 1]}\nv_cvt_pk_bf16_f32 {o[1]}, {acc[4 * tt + 2]}, {acc[4 * tt + 3]}')
        k(f'ds_write_b64 {t[0]}, {o} offset:{512 * tt}')
    dv = t.sub(4, 4)
    k(f's_lshl_b32 {st}, {sD[0]}, 16\ns_and_b32 {st2}, {sD[0]}, 0xffff0000\nv_mov_b32 {dv[0]}, {st}\nv_mov_b32 {dv[1]}, {st2}')
    k(f's_lshl_b32 {st}, {sD[1]}, 16\ns_and_b32 {st2}, {sD[1]}, 0xffff0000\nv_mov_b32 {dv[2]}, {st}\nv_mov_b32 {dv[3]}, {st2}')
    k('s_waitcnt lgkmcnt(0)\ns_barrier')
    lg.reset()
    yp = fb.sub(0, 16); yf = acc; o = fa
    ids = [[lg.op(f'ds_read_b32 {yp[4 * i + c]}, {a4} offset:{WSTR * c + 1024 * i}') for c in range(4)] for i in range(4)]
    k(f's_lshl_b32 {st}, {cidx}, 15\ns_lshl_b32 {st2}, {s_w}, 11\ns_add_u32 {st}, {st}, {st2}\ns_add_u32 {st}, {st}, {O_X2}')
    k(f's_add_u32 {st2}, {wb}, 4096\nv_lshl_add_u32 {am}, {lane}, 5, {st2}\nv_lshl_add_u32 {a4}, {lane}, 4, {st2}\nv_lshlrev_b32 {ag}, 4, {lane}')
    odd, fin = k.label('odd'), k.label('fin')
    for i in range(4):
        lg.wait(ids[i][3])
        for c in range(4): k(f'v_lshlrev_b32 {yf[8 * i + c]}, 16, {yp[4 * i + c]}\nv_and_b32 {yf[8 * i + 4 + c]}, 0xffff0000, {yp[4 * i + c]}')
        for j in range(4 * i, 4 * i + 4): k(f'v_pk_fma_f32 {yf.sub(2 * j, 2)}, {hf.sub(2 * j, 2)}, {dv.sub(2 * (j & 1), 2)}, {yf.sub(2 * j, 2)}')
        for j in range(4 * i, 4 * i + 4): k(f'v_pk_fma_f32 {yf.sub(2 * j, 2)}, {yf.sub(2 * j, 2)}, {md_.sub(8 + 2 * (j & 1), 2)}, {xf.sub(2 * j, 2)}')
        for j in range(4 * i, 4 * i + 4): k(f'v_pk_mul_f32 {xf.sub(2 * j, 2)}, {yf.sub(2 * j, 2)}, {md_.sub(12 + 2 * (j & 1), 2)}')
    k(f's_bitcmp1_b32 {cidx}, 0\ns_cbranch_scc1 {odd}')
    for par_ in range(2):
        A_, B_ = (yf, xf) if par_ == 0 else (xf, yf)
        for r_ in range(8):
            for c in range(2):
                k(f'v_cvt_pk_bf16_f32 {o[4 * r_ + c]}, {A_[4 * r_ + 2 * c]}, {A_[4 * r_ + 2 * c + 1]}')
                k(f'v_cvt_pk_bf16_f32 {o[4 * r_ + 2 + c]}, {B_[4 * r_ + 2 * c]}, {B_[4 * r_ + 2 * c + 1]}')
            k(f'ds_write_b128 {am}, {o.sub(4 * r_, 4)} offset:{2048 * (r_ >> 1) + 16 * (r_ & 1)}')
        if par_ == 0: k(f's_branch {fin}\n{odd}:')
    k(f'{fin}:'); lg.reset()
    ids = [lg.op(f'ds_read_b128 {fb.sub(4 * r_, 4)}, {a4} offset:{1024 * r_}') for r_ in range(8)]
    for r_ in range(8):
        lg.wait(ids[r_])
        k(f'buffer_store_dwordx4 {fb.sub(4 * r_, 4)}, {ag}, {Rws}, {st} offen offset:{1024 * (r_ & 1)} sc1')
        if r_ & 1 and r_ < 7: k(f's_add_u32 {st}, {st}, 8192')

def build_k1(dump=False, stamps=False):
    k = Kern('k1_kernel', nv=256, na=64)
    END = 'k1_end'
    k(f's_cmp_ge_u32 s2, 256\ns_cbranch_scc1 {END}')
    SP = Stamper(k, stamps, 1); SP.init(); SP(0)
    P = kernargs(k)
    lane = k.v(); s_w = k.s()
    k(f'v_lshrrev_b32 {lane}, 6, v0\nv_readfirstlane_b32 {s_w}, {lane}\nv_and_b32 {lane}, 63, v0')
    k('s_waitcnt lgkmcnt(0)\ns_cmp_ge_u32 s2, 112\ns_cbranch_scc1 k1_conv')
    fv, fs = list(k.V.free), list(k.S.free)
    service(k, P, lane, s_w, END, SP)
    k.V.free, k.S.free = fv, fs
    k('k1_conv:')
    conv(k, P, lane, s_w, END, dump, SP)
    k(f'{END}:')
    if stamps:
        k('s_cmp_ge_u32 s2, 256\ns_cbranch_scc1 stamp_done_1\ns_waitcnt vmcnt(0)'); SP(15); SP.flush(P)
    k('s_endpgm')
    k.finish()
    return k

if __name__ == '__main__':
    k = build_k1(dump=True)
    print('k1 lines', len(k.l), 'nops', k.nops, 'regs', k.counts(), 'sgpr top', k.S.top)
    open('k1.s', 'w').write(module([k], 136))
```

```python
from common import *

K2_LDS = 159744
W2X = 122880
WBUF, TABS = 0, 110592
T_B, T_F = TABS, TABS + 7168
XBUF, HBUF = 0, 73728
SPIN_MAX = 40000
GC1 = -2.0 * LOG2E * 0.7978845608028654
GC2 = GC1 * 0.044715
PI = [0, 1, 2, 3, 5, 6, 7, 9, 10, 11, 12, 14, 15, 16, 4, 8, 13, 17]
MF = 'v_mfma_f32_16x16x32_bf16'

def un(d, s_, hi): return f'v_and_b32 {d}, 0xffff0000, {s_}' if hi else f'v_lshlrev_b32 {d}, 16, {s_}'

def gelu_consts(k, sig, c):
    k(f'v_mov_b32 {c[2]}, {sig}\nv_rcp_f32 {c[0]}, {sig}')
    k(f'v_mul_f32 {c[1]}, {c[0]}, {c[0]}\nv_mul_f32 {c[1]}, {c[1]}, {c[0]}')
    k(f'v_mul_f32 {c[0]}, {fl(GC1)}, {c[0]}\nv_mul_f32 {c[1]}, {fl(GC2)}, {c[1]}')

def build_k2(stamps=False, opt=()):
    WFL = ''.join(' ' + o[2:] for o in opt if o.startswith('w_'))
    PFL = ' '.join(o[2:] for o in opt if o.startswith('p_')) or 'sc1'
    k = Kern('k2_kernel', nv=256, na=256)
    END = 'k2_end'
    k(f's_cmp_ge_u32 s2, 256\ns_cbranch_scc1 {END}')
    P = kernargs(k)
    code_prefetch(k, None, 'k2_kernel', 'k2_end', 32768, 'v0', k.v(2), k.s(2), back=True)
    lane = k.v(); s_w = k.s(); q = k.v(); m = k.v(); l16 = k.v()
    k(f'v_lshrrev_b32 {lane}, 6, v0\nv_readfirstlane_b32 {s_w}, {lane}\nv_and_b32 {lane}, 63, v0')
    k(f'v_lshrrev_b32 {q}, 4, {lane}\nv_and_b32 {m}, 15, {lane}\nv_lshlrev_b32 {l16}, 4, {lane}')
    rb = k.s(); jm = k.s(); mb = k.s(); fs = k.s(); st = k.s(); st1 = k.s(); sav = k.s(2); cnt = k.s(); mt = k.s(); resf = k.s()
    k(f's_and_b32 {st}, s2, 1\ns_lshl_b32 {mb}, {st}, 4\ns_bfe_u32 {st}, s2, 0x20001\ns_lshl_b32 {fs}, {st}, 1\ns_lshl_b32 {rb}, {st}, 2\ns_add_u32 {rb}, {rb}, {mb}')
    k(f's_bfe_u32 {st}, s2, 0x20003\ns_add_u32 {rb}, {rb}, {st}\ns_lshr_b32 {jm}, s2, 5')
    k(f's_bfe_u32 {st}, s2, 0x40003\ns_add_u32 {mb}, {mb}, {st}\ns_lshr_b32 {st}, s2, 7\ns_add_u32 {fs}, {fs}, {st}')
    k(f's_lshl_b32 {mt}, {rb}, 2\ns_add_u32 {mt}, {mt}, {s_w}\ns_mov_b32 {cnt}, 0\ns_mov_b32 {resf}, 0')
    Rws = k.s(4); RG = k.s(4); RW = k.s(4)
    one = k.v(); zero = k.v(); k(f'v_mov_b32 {one}, 1\nv_mov_b32 {zero}, 0')
    SP = Stamper(k, stamps, 0); SP.init()
    k('s_waitcnt lgkmcnt(0)')
    srd(k, Rws, P['ws'], WS_USED); srd(k, RW, P['ws'], WS_USED)
    vm, lg = trackers(k)
    def STAMP(i):
        if stamps: SP(i); lg.reset()
    def flag_add(s_idx, base):
        k(f's_lshl_b32 {st}, {s_idx}, 7\ns_add_u32 {st}, {st}, {base}\ns_mov_b64 exec, 1')
        vm.op(f'buffer_atomic_add {one}, {zero}, {Rws}, {st} offen sc1')
        k('s_mov_b64 exec, -1')
    def poll(vaddr, base, target, sleep=0):
        fv = k.v(); lp, ok = k.label('poll'), k.label('ok')
        k(f's_mov_b32 {st1}, {base}\n{lp}:\nbuffer_load_dword {fv}, {vaddr}, {Rws}, {st1} offen sc1\ns_waitcnt vmcnt(0)')
        k(f'v_cmp_gt_u32 vcc, {target}, {fv}\ns_cmp_eq_u64 vcc, 0\ns_cbranch_scc1 {ok}')
        if sleep: k(f's_sleep {sleep}')
        k(f's_add_u32 {cnt}, {cnt}, 1\ns_cmp_lt_u32 {cnt}, {SPIN_MAX}\ns_cbranch_scc1 {lp}\ns_branch {END}\n{ok}:')
        vm.reset(); fv.release()
    W = [k.a(72, 4), k.a(72, 4)]; vo = [l16] + [k.v() for _ in range(4)]
    for g in range(1, 5): k(f'v_add_u32 {vo[g]}, {4096 * g}, {l16}')
    sn = k.s(); s4 = k.s()
    k(f's_lshl_b32 {sn}, {fs}, 2\ns_add_u32 {sn}, {sn}, {s_w}\ns_mul_i32 {sn}, {sn}, {9 * 18432}\ns_add_u32 {s4}, {sn}, {O_W4F}\ns_add_u32 {sn}, {sn}, {O_W3F}')
    wld = lambda r_, ks: f'buffer_load_dwordx4 {W[r_].sub(4 * ks, 4)}, {vo[ks // 4]}, {RW}, {sn} offen offset:{1024 * (ks % 4)}' + WFL
    STAMP(0)
    k(f's_cmp_ge_u32 {jm}, 6\ns_cbranch_scc1 k2_idle')
    keepV, keepA, keepS = list(k.V.free), list(k.A.free), list(k.S.free)

    XX = k.v(146, 2); t = k.v(8); row = k.v()
    sm = k.s(); so = k.s(); so2 = k.s()
    k(f's_lshl_b32 {st}, {s_w}, 6\nv_add_u32 {t[2]}, {st}, {lane}\ns_lshl_b32 {sm}, {s_w}, 10')
    k(f'v_cmp_le_u32 vcc, 72, {t[2]}\nv_subrev_u32 {t[3]}, 72, {t[2]}\nv_cndmask_b32 {t[3]}, {t[2]}, {t[3]}, vcc\nv_add_u32 {t[3]}, 72, {t[3]}')
    k(f'v_cmp_le_u32 vcc, 144, {t[2]}\nv_subrev_u32 {t[4]}, 144, {t[2]}\nv_cndmask_b32 {t[3]}, {t[3]}, {t[4]}, vcc')
    k(f'v_cmp_le_u32 vcc, 216, {t[2]}\nv_subrev_u32 {t[4]}, 216, {t[2]}\nv_cndmask_b32 {t[3]}, {t[3]}, {t[4]}, vcc\nv_lshlrev_b32 {t[3]}, 4, {t[3]}')
    k(f's_add_u32 m0, {sm}, {T_B + 2304}\ns_mov_b32 {so}, {O_MODB}')
    vm.op(f'buffer_load_dwordx4 {t[3]}, {Rws}, {so} offen lds')
    k(f'v_add_u32 {t[4]}, 40, {lane}\nv_mul_u32_u24 {t[5]}, 43691, {t[2]}\nv_lshrrev_b32 {t[5]}, 20, {t[5]}\nv_mul_u32_u24 {t[6]}, 120, {t[5]}\nv_add_u32 {t[6]}, {t[6]}, {t[2]}')
    k(f's_cmp_eq_u32 {s_w}, 3\ns_cselect_b64 vcc, -1, 0\nv_cndmask_b32 {t[6]}, {t[6]}, {t[4]}, vcc\nv_lshlrev_b32 {t[6]}, 4, {t[6]}')
    k(f's_mul_i32 {so}, {jm}, 384\ns_add_u32 {so}, {so}, {O_MOD2}\ns_add_u32 {st}, {sm}, {T_F}\ns_cmp_eq_u32 {s_w}, 3')
    k(f's_cselect_b32 {so}, {O_MODB}, {so}\ns_cselect_b32 m0, {T_B + 2304 + 4096}, {st}')
    k(f's_cselect_b32 exec_hi, 0, -1')
    vm.op(f'buffer_load_dwordx4 {t[6]}, {Rws}, {so} offen lds')
    k('s_mov_b64 exec, -1')
    k(f's_lshl_b32 {st}, {mt}, 4\nv_add_u32 {row}, {st}, {m}')
    k(f'v_lshlrev_b32 {t[0]}, 16, {q}\nv_lshl_add_u32 {t[0]}, {row}, 4, {t[0]}\nv_add_u32 {t[1]}, 0x8000, {t[0]}')
    k(f's_mul_i32 {so}, {jm}, 110592\ns_add_u32 {so}, {so}, {sm}\ns_add_u32 {so2}, {so}, {O_W2F}\ns_add_u32 {so}, {so}, {O_W1F}\ns_mul_i32 {st1}, {jm}, 3')
    def wdma(sreg, lds):
        k(f's_add_u32 m0, {sm}, {lds}')
        i_ = vm.op(f'buffer_load_dwordx4 {l16}, {Rws}, {sreg} offen lds')
        k(f's_add_u32 {sreg}, {sreg}, 4096')
        return i_
    w2lds = lambda n: (W2X + 4096 * n) if n < 9 else (WBUF + 4096 * (n - 9))
    ix = []; iw = []
    def issue(i):
        k(f's_lshl_b32 {st}, {st1}, 18\ns_add_u32 {st}, {st}, {O_X2}')
        vm.op(f'buffer_load_dwordx4 {XX.sub(8 * i, 4)}, {t[0]}, {Rws}, {st} offen')
        ix.append(vm.op(f'buffer_load_dwordx4 {XX.sub(8 * i + 4, 4)}, {t[1]}, {Rws}, {st} offen'))
        if i < 17: k(f's_add_u32 {st1}, {st1}, 1\ns_cmp_eq_u32 {st1}, 18\ns_cselect_b32 {st1}, 0, {st1}')
        while 4 * len(iw) < 6 * (i + 1): iw.append(wdma(so, WBUF + 4096 * len(iw)))
    AHEAD = 6
    for i in range(AHEAD): issue(i)
    ones = k.v(4, 4); sacc = k.v(4, 4); gacc = k.v(4, 4); tacc = k.v(4, 4); qacc = k.v(4, 4); acc = k.v(24, 4)
    for i in range(4): k(f'v_mov_b32 {ones[i]}, 0x3f803f80')
    k(f'v_lshlrev_b32 {t[2]}, 4, v0\nv_add_u32 {t[2]}, {T_B}, {t[2]}\nv_cmp_gt_u32 vcc, 144, v0\ns_and_saveexec_b64 {sav}, vcc')
    k(f'ds_write_b128 {t[2]}, {ones}\ns_mov_b64 exec, {sav}')
    msk = [k.s(2) for _ in range(3)]; bidx = k.v()
    k(f'v_and_b32 {t[2]}, 3, {m}')
    for e in range(3): k(f'v_cmp_eq_u32 {msk[e]}, {e + 1}, {t[2]}')
    aT = k.v(); aW = k.v(2); aW2 = k.v()
    k(f'v_min_u32 {t[2]}, 2, {t[2]}\nv_mul_u32_u24 {aT}, 2304, {t[2]}\nv_lshl_add_u32 {aT}, {q}, 4, {aT}\ns_mul_i32 {st}, {jm}, 192\ns_add_u32 {st}, {st}, {T_B}\nv_add_u32 {aT}, {st}, {aT}')
    k(f'v_lshrrev_b32 {t[2]}, 2, {m}\nv_lshl_add_u32 {t[2]}, {t[2]}, 4, {m}\nv_lshlrev_b32 {bidx}, 2, {t[2]}')
    k(f'v_add_u32 {aW2}, {W2X}, {l16}\nv_mov_b32 {aW[0]}, {l16}\nv_add_u32 {aW[1]}, {9 * 6144}, {l16}')
    TF = W[1]; WR = [k.a(24, 4), k.a(24, 4)]
    def w_reads(i):
        return [f'ds_read_b128 {WR[i & 1].sub(4 * tt, 4)}, {aW[i // 9]} offset:{WBUF + (i % 9) * 6144 + 1024 * tt}' for tt in range(6)]
    def w2_reads(i):
        a_, o_ = (aW2, 6144 * i) if i < 6 else (aW[(i - 6) // 9], WBUF + ((i - 6) % 9) * 6144)
        return [f'ds_read_b128 {WR[i & 1].sub(4 * tt, 4)}, {a_} offset:{o_ + 1024 * tt}' for tt in range(6)]
    BAR = {0: 2, 1: 5, 3: 8, 5: 11, 7: 14, 9: 17, 11: 20, 13: 23, 15: 26}
    k('s_waitcnt lgkmcnt(0)'); vm.wait(iw[BAR[0]]); k('s_barrier')
    STAMP(1)
    iwr = [lg.op(x_) for x_ in w_reads(0)]
    itf = [lg.op(f'ds_read_b128 {TF.sub(4 * i, 4)}, {aT} offset:{64 * i}') for i in range(18)]
    for i in range(18):
        lg.wait(itf[i]); k(f'{MF} {acc[4:8]}, {TF.sub(4 * i, 4)}, {TF.sub(4 * i, 4)}, {"0" if i == 0 else acc[4:8]}')
    cs = k.s(5, 1)
    for n_, (e, j_) in enumerate(((0, 1), (0, 2), (1, 1), (1, 2), (2, 2))): k(f'v_readlane_b32 {cs[n_]}, {acc[4 + e]}, {j_}')
    n2 = 0
    for i in range(18):
        if i in BAR and i: vm.wait(iw[BAR[i]]); k('s_barrier')
        xg = XX.sub(8 * i + 2, 4); xr = XX.sub(8 * i - 2, 4) if i else None
        c_ = lambda r_, first: '0' if first else r_
        M = [(iwr[tt], f'{MF} {acc.sub(4 * tt, 4)}, {WR[i & 1].sub(4 * tt, 4)}, {xg}, {c_(acc.sub(4 * tt, 4), i == 0)}') for tt in range(6)]
        S_ = [f'{MF} {tacc}, {TF.sub(4 * i, 4)}, {xg}, {c_(tacc, i == 0)}', f'{MF} {qacc}, {xg}, {xg}, {c_(qacc, i == 0)}']
        if i: S_ += [f'{MF} {sacc}, {ones}, {xr}, {c_(sacc, i == 1)}', f'{MF} {gacc}, {xr}, {xr}, {c_(gacc, i == 1)}']
        Rd = w_reads(i + 1) if i < 17 else []
        vm.wait(ix[i])
        if i == 0: k(f'v_mov_b32 {XX[144]}, {XX[0]}\nv_mov_b32 {XX[145]}, {XX[1]}')
        nxt = []
        for x_ in S_:
            k(x_)
            if Rd: nxt.append(lg.op(Rd.pop(0)))
        for idr, mm in M:
            lg.wait(idr); k(mm)
            if Rd: nxt.append(lg.op(Rd.pop(0)))
        iwr = nxt
        if i + AHEAD < 18: issue(i + AHEAD)
        else:
            for _ in range(3):
                if n2 < 18: wdma(so2, w2lds(n2)); n2 += 1
    while n2 < 27: wdma(so2, w2lds(n2)); n2 += 1
    sk_ = k.label('notrig')
    k(f's_or_b32 {st}, {jm}, {s_w}\ns_cmp_lg_u32 {st}, 0\ns_cbranch_scc1 {sk_}\ns_lshl_b32 {st}, {rb}, 9\ns_add_u32 {st}, {st}, {O_FT}\ns_mov_b64 exec, 1')
    k(f'buffer_store_dword {one}, {zero}, {Rws}, {st} offen sc1\ns_mov_b64 exec, -1\n{sk_}:')
    xr = XX.sub(142, 4)
    k(f'{MF} {sacc}, {ones}, {xr}, {sacc}\n{MF} {gacc}, {xr}, {xr}, {gacc}')
    STAMP(2)
    TB = [XX.sub(24, 16), XX.sub(40, 16)]; uu = XX.sub(56, 48)
    k(f'v_lshlrev_b32 {aT}, 5, {q}\nv_add_u32 {aT}, {T_F}, {aT}')
    tf_read = lambda dst, r_, e: f'ds_read_b128 {dst}, {aT} offset:{384 * r_ + 128 * (e >> 1) + 16 * (e & 1)}'
    def diag(d, g_):
        k(f'v_cndmask_b32 {d}, {g_[0]}, {g_[1]}, {msk[0]}\nv_cndmask_b32 {d}, {d}, {g_[2]}, {msk[1]}\nv_cndmask_b32 {d}, {d}, {g_[3]}, {msk[2]}')
        return lg.op(f'ds_bpermute_b32 {d}, {bidx}, {d}')
    i2 = diag(t[2], qacc); i1 = diag(t[1], gacc)
    iu = [lg.op(tf_read(uu.sub(24 * r_ + 4 * e, 4), 3 + r_, e)) for e in range(6) for r_ in range(2)]
    s1 = k.v(2); gc = k.v(4)
    k(f'v_mov_b32 {t[0]}, {sacc[0]}'); lg.wait(i1)
    sigma_bf16(k, t[0], t[1])
    k(f'v_cvt_pk_bf16_f32 {t[0]}, {t[0]}, {t[1]}\nv_and_b32 {s1[0]}, 0xffff0000, {t[0]}\nv_lshlrev_b32 {s1[1]}, 16, {t[0]}')
    k(f'v_rcp_f32 {s1[0]}, {s1[0]}\nv_mov_b32 {t[3]}, {cs[1]}\nv_mov_b32 {t[4]}, {cs[3]}\nv_mul_f32 {s1[1]}, -{s1[1]}, {s1[0]}')
    k(f'v_fma_f32 {t[3]}, {s1[1]}, {cs[0]}, {t[3]}\nv_fma_f32 {t[0]}, {s1[0]}, {tacc[0]}, {t[3]}')
    k(f'v_fma_f32 {t[3]}, {s1[1]}, {tacc[1]}, {tacc[2]}\nv_add_f32 {t[3]}, {t[3]}, {t[3]}\nv_fma_f32 {t[3]}, {s1[0]}, {t[2]}, {t[3]}')
    k(f'v_add_f32 {t[4]}, {t[4]}, {t[4]}\nv_fma_f32 {t[4]}, {s1[1]}, {cs[2]}, {t[4]}\nv_mov_b32 {t[5]}, {cs[4]}\nv_fma_f32 {t[4]}, {s1[1]}, {t[4]}, {t[5]}')
    k(f'v_fma_f32 {t[1]}, {s1[0]}, {t[3]}, {t[4]}')
    sigma_bf16(k, t[0], t[1])
    k(f'v_cvt_pk_bf16_f32 {t[1]}, {t[1]}, {t[1]}\nv_and_b32 {t[1]}, 0xffff0000, {t[1]}')
    gelu_consts(k, t[1], gc)
    aG = k.v()
    k(f's_mul_i32 {st}, {jm}, {3 * GPL}\ns_add_u32 {st}, {st}, {O_G}\nv_lshlrev_b32 {aG}, 6, {row}\nv_lshl_add_u32 {aG}, {q}, 4, {aG}\nv_add_u32 {aG}, 128, {aG}')
    lg.all()
    for e in range(12): k(f'v_pk_fma_f32 {uu.sub(2 * e, 2)}, {uu.sub(2 * e, 2)}, {s1}, {uu.sub(24 + 2 * e, 2)} op_sel:[0,1,0] op_sel_hi:[1,1,1]')
    for e in range(12): k(f'v_pk_fma_f32 {acc.sub(2 * e, 2)}, {acc.sub(2 * e, 2)}, {s1}, {uu.sub(2 * e, 2)} op_sel_hi:[1,0,1]')
    tt_ = TB[0]; go = TB[1]
    for Pp in range(3):
        a = acc.sub(8 * Pp, 8); u = tt_.sub(0, 8)
        for e in range(4): k(f'v_pk_mul_f32 {u.sub(2 * e, 2)}, {a.sub(2 * e, 2)}, {a.sub(2 * e, 2)}')
        for e in range(4): k(f'v_pk_fma_f32 {u.sub(2 * e, 2)}, {u.sub(2 * e, 2)}, {gc[0:2]}, {gc[0:2]} op_sel:[0,1,0] op_sel_hi:[1,1,0]')
        for e in range(4): k(f'v_pk_mul_f32 {u.sub(2 * e, 2)}, {u.sub(2 * e, 2)}, {a.sub(2 * e, 2)}')
        for e in range(8): k(f'v_exp_f32 {u[e]}, {u[e]}')
        for e in range(4): k(f'v_pk_fma_f32 {u.sub(2 * e, 2)}, {u.sub(2 * e, 2)}, {gc[2:4]}, {gc[2:4]} op_sel_hi:[1,0,0]')
        for e in range(8): k(f'v_rcp_f32 {u[e]}, {u[e]}')
        for e in range(4): k(f'v_pk_mul_f32 {u.sub(2 * e, 2)}, {u.sub(2 * e, 2)}, {a.sub(2 * e, 2)}')
        o = go.sub(4 * Pp, 4)
        for e in range(4): k(f'v_cvt_pk_bf16_f32 {o[e]}, {u[2 * e]}, {u[2 * e + 1]}')
        ig = vm.op(f'buffer_store_dwordx4 {o}, {aG}, {Rws}, {st} offen sc1')
        if Pp < 2: k(f's_add_u32 {st}, {st}, {GPL}')
    h2f = uu.sub(0, 24); x2f = XX.sub(104, 24); gbv = k.v(24, 4)
    xsrc = lambda e: XX[8 * (e // 8) + (0, 1, 6, 7)[(e % 8) // 2]]
    ig_ = [lg.op(tf_read(gbv.sub(4 * e, 4), 1, e)) for e in range(6)]
    is_ = [lg.op(tf_read(uu.sub(24 + 4 * e, 4), 0, e)) for e in range(6)]
    for e in range(24): k(un(x2f[e], xsrc(e), e & 1))
    dl = [XX[128 + i] for i in range(6)]
    k(f'v_cmp_gt_u32 vcc, 2, {q}')
    for g, dlt in enumerate((-1, 1, -2, 2)): k(f'v_add_u32 {dl[g]}, {dlt * 64}, {aG}')
    k(f'v_cndmask_b32 {dl[4]}, {dl[1]}, {dl[0]}, vcc\nv_cndmask_b32 {dl[5]}, {dl[3]}, {dl[2]}, vcc')
    pa = XX[134]
    k(f'v_min_u32 {pa}, 2, {lane}\nv_add_u32 {pa}, {mt}, {pa}\nv_add_u32 {pa}, -1, {pa}\nv_max_i32 {pa}, 0, {pa}\nv_min_u32 {pa}, 127, {pa}\nv_lshlrev_b32 {pa}, 7, {pa}')
    vm.wait(ig)
    flag_add(mt, O_FC)
    STAMP(3)
    for ks in PI: vm.op(wld(0, ks))
    k(f's_add_u32 {sn}, {sn}, 18432')
    for e in range(12): k(f'v_pk_fma_f32 {h2f.sub(2 * e, 2)}, {x2f.sub(2 * e, 2)}, {s1}, {s1} op_sel:[0,0,1] op_sel_hi:[1,0,1]')
    lg.all()
    for e in range(12): k(f'v_pk_fma_f32 {h2f.sub(2 * e, 2)}, {h2f.sub(2 * e, 2)}, {gbv.sub(2 * e, 2)}, {uu.sub(24 + 2 * e, 2)}')
    for e in range(6): lg.op(tf_read(gbv.sub(4 * e, 4), 2, e))
    NPRE = 5
    k('s_barrier')
    WP = [WR[0], WR[1], k.a(24, 4), k.a(24, 4), XX.sub(0, 24)]
    def w2_addr(i, tt):
        a_, o_ = (aW2, 6144 * i) if i < 6 else (aW[(i - 6) // 9], WBUF + ((i - 6) % 9) * 6144)
        return f'{a_} offset:{o_ + 1024 * tt}'
    for i in range(NPRE):
        for tt in range(6): lg.op(f'ds_read_b128 {WP[i].sub(4 * tt, 4)}, {w2_addr(i, tt)}')
    poll(pa, O_FC, 6)
    STAMP(4)
    GF = TF
    sel = lambda s: dl[4] if s == 4 else dl[5] if s == 13 else dl[(2 * s) // 9]
    ig = []
    for s in range(18):
        k(f's_mov_b32 {st}, {O_G + s * GPL}')
        ig.append(vm.op(f'buffer_load_dwordx4 {GF.sub(4 * s, 4)}, {sel(s)}, {Rws}, {st} offen sc1'))
    lg.all()
    ird = {}
    for s in range(18):
        vm.wait(ig[s])
        wr = WP[s % NPRE]
        for tt in range(6):
            if s >= NPRE: lg.wait(ird[s, tt])
            k(f'{MF} {acc.sub(4 * tt, 4)}, {wr.sub(4 * tt, 4)}, {GF.sub(4 * s, 4)}, {"0" if s == 0 else acc.sub(4 * tt, 4)}')
            if s + NPRE < 18: ird[s + NPRE, tt] = lg.op(f'ds_read_b128 {wr.sub(4 * tt, 4)}, {w2_addr(s + NPRE, tt)}')
        vm.op(wld(1, s))
    lg.all()
    STAMP(5)
    aR = dl[0]; aS = dl[1]
    k(f'v_lshrrev_b32 {t[0]}, 1, {q}\nv_and_b32 {t[1]}, 1, {q}\nv_lshlrev_b32 {aR}, 12, {t[0]}\nv_lshl_add_u32 {aR}, {t[1]}, 9, {aR}\nv_lshl_add_u32 {aR}, {m}, 4, {aR}')
    k(f'v_lshlrev_b32 {aS}, 6, {t[0]}\nv_lshl_add_u32 {aS}, {m}, 2, {aS}')
    k(f's_mul_i32 {st}, {rb}, 18\ns_mul_i32 {so}, {jm}, 3\ns_add_u32 {st}, {st}, {so}\ns_lshl_b32 {st}, {st}, 2\ns_add_u32 {st}, {st}, {s_w}\ns_lshl_b32 {st}, {st}, 10\ns_add_u32 {st}, {st}, {O_X1F}')
    for e in range(12): k(f'v_pk_add_f32 {h2f.sub(2 * e, 2)}, {h2f.sub(2 * e, 2)}, {acc.sub(2 * e, 2)}')
    for Pp in range(3):
        o = go.sub(4 * Pp, 4)
        for e in range(4): k(f'v_cvt_pk_bf16_f32 {o[e]}, {h2f[8 * Pp + 2 * e]}, {h2f[8 * Pp + 2 * e + 1]}')
        vm.op(f'buffer_store_dwordx4 {o}, {l16}, {Rws}, {st} offen sc1')
        if Pp < 2: k(f's_add_u32 {st}, {st}, 4096')
    k(f'v_pk_add_f32 {t[0:2]}, {h2f[0:2]}, {h2f[2:4]}\nv_pk_mul_f32 {t[2:4]}, {h2f[0:2]}, {h2f[0:2]}\nv_pk_fma_f32 {t[2:4]}, {h2f[2:4]}, {h2f[2:4]}, {t[2:4]}')
    for e in range(2, 12): k(f'v_pk_add_f32 {t[0:2]}, {t[0:2]}, {h2f.sub(2 * e, 2)}\nv_pk_fma_f32 {t[2:4]}, {h2f.sub(2 * e, 2)}, {h2f.sub(2 * e, 2)}, {t[2:4]}')
    k(f'v_add_f32 {t[0]}, {t[0]}, {t[1]}\nv_add_f32 {t[2]}, {t[2]}, {t[3]}\nv_permlane32_swap_b32 {t[0]}, {t[2]}\nv_add_f32 {t[0]}, {t[0]}, {t[2]}')
    k(f'v_mov_b32 {t[1]}, {t[0]}\nv_permlane16_swap_b32 {t[0]}, {t[1]}\nv_add_f32 {t[0]}, {t[0]}, {t[1]}')
    k(f's_mul_i32 {st}, {mt}, 6\ns_add_u32 {st}, {st}, {jm}\ns_lshl_b32 {st}, {st}, 7\ns_add_u32 {st}, {st}, {O_PST}\ns_mov_b32 exec_lo, 0xffff\ns_mov_b32 exec_hi, 0xffff')
    vm.op(f'buffer_store_dword {t[0]}, {aS}, {Rws}, {st} offen sc1')
    k('s_mov_b64 exec, -1')
    ist = vm.n
    k(f's_mul_i32 {so}, {rb}, 6\ns_add_u32 {so}, {so}, {jm}\ns_mul_i32 {so}, {so}, 24\ns_add_u32 {so}, {so}, {s_w}\ns_lshl_b32 {so}, {so}, 10\ns_add_u32 {so}, {so}, {O_RES}')
    for e in range(12): k(f'v_pk_fma_f32 {x2f.sub(2 * e, 2)}, {h2f.sub(2 * e, 2)}, {gbv.sub(2 * e, 2)}, {x2f.sub(2 * e, 2)}')
    vm.wait(ist)
    flag_add(mt, O_FD)
    STAMP(6)
    for e in range(6):
        vm.op(f'buffer_store_dwordx4 {x2f.sub(4 * e, 4)}, {aR}, {Rws}, {so} offen offset:{256 * (e & 1)} sc1')
        if e in (1, 3): k(f's_add_u32 {so}, {so}, 8192')
    k(f's_mov_b32 {resf}, 1')
    k('s_branch k2_phase_e')
    k('k2_idle:')
    k.V.free, k.A.free, k.S.free = list(keepV), list(keepA), list(keepS)
    vm, lg = trackers(k)
    cj = ColJob(k, vm, lg, lane, s_w)
    fr = k.v(72, 4); job = k.s(); src = k.s(); strd = k.s(); sl = k.s(); dst = k.s(); pw = k.v()
    srd(k, RG, P['w4'], D * F * 2)
    k(f's_sub_u32 {job}, s2, 192\ns_mov_b32 {strd}, 1152\ns_lshl_b32 {st}, {rb}, 9\nv_mov_b32 {pw}, {st}')
    k(f's_mul_hi_u32 {sl}, {job}, {(1 << 32) // 9 + 1}\ns_mul_i32 {src}, {sl}, 9\ns_sub_u32 {src}, {job}, {src}\ns_lshl_b32 {src}, {src}, 7')
    k(f's_mul_i32 {st}, {sl}, {576 * 1152}\ns_add_u32 {src}, {src}, {st}')
    ad = cj.addr(0, w4order=True)
    if 'w4now' not in opt:
        sk_ = k.label('nopoll')
        k(f's_cmp_lg_u32 {s_w}, 0\ns_cbranch_scc1 {sk_}')
        poll(pw, O_FT, 1, sleep=8)
        k(f'{sk_}:\ns_barrier')
    cj.dma(RG, src, strd, 0)
    k('s_waitcnt vmcnt(0)\ns_barrier'); vm.reset()
    ids = cj.reads(ad, fr)
    k(f's_lshl_b32 {dst}, {job}, 2\ns_add_u32 {dst}, {dst}, {s_w}\ns_mul_i32 {dst}, {dst}, 18432\ns_add_u32 {dst}, {dst}, {O_W4F}')
    cj.store(fr, ids, Rws, dst, 1024)
    ist = vm.n
    for r_ in range(2):
        for ks in PI: vm.op(wld(r_, ks))
        if r_ == 0: k(f's_add_u32 {sn}, {sn}, 18432')
    vm.wait(ist)
    flag_add(sl, O_FW)
    STAMP(14)
    k('k2_phase_e:')
    k.V.free, k.A.free, k.S.free = keepV, keepA, keepS
    vm, lg = trackers(k)
    vm.n = 1
    XA = k.a(112, 4); XV = k.v(176, 4)
    xf = lambda ks, t_: XA.sub(16 * ks + 4 * t_, 4) if 16 * ks + 4 * t_ < 112 else XV.sub(16 * ks + 4 * t_ - 112, 4)
    sm = k.s(); so = k.s()
    k(f's_add_u32 {sn}, {sn}, 18432')
    acc = [k.v(16, 4), k.v(16, 4)]
    t = acc[1].sub(0, 12); pa = k.v()
    k(f's_lshl_b32 {st}, {mb}, 2\nv_min_u32 {pa}, 3, {lane}\nv_add_u32 {pa}, {st}, {pa}\nv_lshlrev_b32 {pa}, 7, {pa}')
    k(f's_lshl_b32 {sm}, {s_w}, 10\ns_mul_i32 {so}, {mb}, 73728\ns_add_u32 {so}, {so}, {sm}\ns_add_u32 {so}, {so}, {O_X1F}')
    k('s_barrier')
    poll(pa, O_FD, 6)
    STAMP(7)
    ixd = []
    for ks in PI:
        k(f's_add_u32 m0, {sm}, {XBUF + 4096 * ks}\ns_add_u32 {st}, {so}, {4096 * ks}')
        ixd.append(vm.op(f'buffer_load_dwordx4 {l16}, {Rws}, {st} offen sc1 lds'))
    k(f's_mul_i32 {st}, {mb}, 3072\ns_add_u32 {st}, {st}, {O_PST}\nv_mul_u32_u24 {pa}, 768, {q}\nv_lshl_add_u32 {pa}, {m}, 2, {pa}')
    for i in range(12): ip = vm.op(f'buffer_load_dword {t[i]}, {pa}, {Rws}, {st} offen offset:{64 * i} sc1')
    sk_ = k.label('nores')
    k(f's_cmp_eq_u32 {resf}, 0\ns_cbranch_scc1 {sk_}')
    n0 = vm.n; flag_add(rb, O_FR); vm.n = n0
    k(f'{sk_}:')
    aX = [l16, k.v()]; aHr = [k.v(), k.v()]; aH = [k.v(), k.v()]
    k(f'v_add_u32 {aX[1]}, 0x9000, {l16}\nv_add_u32 {aHr[0]}, {HBUF}, {l16}\nv_add_u32 {aHr[1]}, {HBUF + 0x9000}, {l16}')
    for h in range(2):
        k(f's_mul_i32 {st}, {s_w}, 9\ns_add_u32 {st}, {st}, {h}\ns_and_b32 {st1}, {st}, 1\ns_lshl_b32 {st1}, {st1}, 3\ns_lshr_b32 {st}, {st}, 1\ns_lshl_b32 {st}, {st}, 12')
        k(f's_add_u32 {st}, {st}, {st1}\nv_add_u32 {aH[h]}, {st}, {aHr[0]}')
    GC = [k.v(3, 1) for _ in range(4)]
    gt = k.v(8, 4); hp = [k.v(2), k.v(2)]
    def gelu_ops(a, ah):
        out = []
        for t_ in range(4):
            c = GC[t_]; x = [a[4 * t_ + e] for e in range(4)]; u = [gt[4 * (t_ & 1) + e] for e in range(4)]; o = hp[t_ & 1]
            out += [f'v_mul_f32 {u[e]}, {x[e]}, {x[e]}' for e in range(4)]
            out += [f'v_fma_f32 {u[e]}, {u[e]}, {c[1]}, {c[0]}' for e in range(4)]
            out += [f'v_mul_f32 {u[e]}, {u[e]}, {x[e]}' for e in range(4)]
            out += [f'v_exp_f32 {u[e]}, {u[e]}' for e in range(4)]
            out += [f'v_fma_f32 {u[e]}, {u[e]}, {c[2]}, {c[2]}' for e in range(4)]
            out += [f'v_rcp_f32 {u[e]}, {u[e]}' for e in range(4)]
            out += [f'v_mul_f32 {u[e]}, {u[e]}, {x[e]}' for e in range(4)]
            out += [f'v_cvt_pk_bf16_f32 {o[0]}, {u[0]}, {u[1]}', f'v_cvt_pk_bf16_f32 {o[1]}, {u[2]}, {u[3]}']
            out.append(f'ds_write_b64 {ah}, {o} offset:{1024 * t_}')
        return out
    cost = lambda x_: 2 if x_.startswith(('v_exp', 'v_rcp', 'ds_write')) else 1
    def tile(a, r_, fill, steps=range(18), lead=2, pre=None, vmw=17, per_step=0, front=False, load=True):
        steps = list(steps); nm = 4 * len(steps); done = 0; n_ = 0
        fixed = len(steps) * (1 + per_step) + (len(steps) // 2 if vmw else 0)
        total = fixed + sum(cost(x_) for x_ in fill)
        rate = 2.0 if front else total / nm
        cum = 0
        for i in steps:
            ks = PI[i]
            if pre: pre(i); cum += per_step
            if vmw is not None and (i % 2 == 0 or i == steps[0]): k(f's_waitcnt vmcnt({vmw - 1})'); cum += 1
            for t_ in range(4):
                k(f'{MF} {a.sub(4 * t_, 4)}, {W[r_].sub(4 * ks, 4)}, {xf(ks, t_)}, {"0" if i == 0 else a.sub(4 * t_, 4)}')
                n_ += 1
                nxt = 0
                if t_ == 3:
                    if load: k(wld(1 - r_, ks)); cum += 1
                    nxt = per_step + (1 if vmw and i % 2 == 1 else 0)
                while n_ >= lead and done < len(fill) and cum + nxt + cost(fill[done]) / 2 <= rate * n_: k(fill[done]); cum += cost(fill[done]); done += 1
        while done < len(fill): k(fill[done]); done += 1
    def frag_reads(base, i):
        ks = PI[i]
        return [lg.op(f'ds_read_b128 {xf(ks, t_)}, {base[ks // 9]} offset:{(ks % 9) * 4096 + 1024 * t_}') for t_ in range(4)]
    rd = {}
    def pre0(i):
        if i == 0:
            vm.wait(ixd[5]); k('s_barrier')
            for j in (0, 1): rd[j] = frag_reads(aX, j)
        if i in (4, 10):
            vm.wait(ixd[i + 7]); k('s_barrier')
        if i + 2 < 18: rd[i + 2] = frag_reads(aX, i + 2)
        lg.wait(rd[i][3])
    tile(acc[0], 0, [], pre=pre0, vmw=None, load=False)
    STAMP(8)
    vm.wait(ip)
    for e in (0, 4, 8): k(f'v_add_f32 {t[e]}, {t[e]}, {t[e + 2]}\nv_add_f32 {t[e + 1]}, {t[e + 1]}, {t[e + 3]}')
    for e in (4, 8): k(f'v_add_f32 {t[0]}, {t[0]}, {t[e]}\nv_add_f32 {t[1]}, {t[1]}, {t[e + 1]}')
    sigma_bf16(k, t[0], t[1])
    k(f'v_cvt_pk_bf16_f32 {t[1]}, {t[1]}, {t[1]}\nv_and_b32 {t[1]}, 0xffff0000, {t[1]}\nv_lshlrev_b32 {t[2]}, 2, {m}')
    ib = [lg.op(f'ds_bpermute_b32 {t[4 + i]}, {t[2]}, {t[1]} offset:{64 * i}') for i in range(4)]
    for i in range(4): lg.wait(ib[i]); gelu_consts(k, t[4 + i], GC[i])
    fa_ = k.v(); tg = k.v()
    k(f's_lshl_b32 {st}, {fs}, 7\ns_add_u32 {st}, {st}, {O_FW}\ns_lshl_b32 {st1}, {mb}, 7\ns_add_u32 {st1}, {st1}, {O_FR}\nv_mov_b32 {fa_}, {st1}\nv_writelane_b32 {fa_}, {st}, 0')
    k(f's_cmp_eq_u32 {fs}, 7\ns_cselect_b32 {st}, 4, 36\nv_mov_b32 {tg}, 24\nv_writelane_b32 {tg}, {st}, 0')
    k(f'buffer_load_dword {pa}, {fa_}, {Rws}, 0 offen sc1')
    lp = k.label('g3')
    k(f's_mov_b32 {so}, 4\n{lp}:')
    tile(acc[1], 1, gelu_ops(acc[0], aH[0]))
    k(f's_add_u32 {sn}, {sn}, 18432\nv_add_u32 {aH[0]}, 4096, {aH[0]}\ns_cmp_lg_u32 {so}, 1\ns_cbranch_scc1 k2_w4ok')
    k(f's_mov_b32 {sn}, {s4}\nv_cmp_gt_u32 vcc, {tg}, {pa}\ns_cmp_eq_u64 vcc, 0\ns_cbranch_scc1 k2_w4ok')
    poll(fa_, 0, tg)
    k('k2_w4ok:')
    tile(acc[0], 0, gelu_ops(acc[1], aH[1]))
    k(f's_add_u32 {sn}, {sn}, 18432\nv_add_u32 {aH[1]}, 4096, {aH[1]}\ns_sub_u32 {so}, {so}, 1\ns_cmp_lg_u32 {so}, 0\ns_cbranch_scc1 {lp}')
    STAMP(9)
    k('s_waitcnt lgkmcnt(0)\ns_barrier')
    lg.reset(); rd = {}
    g8 = gelu_ops(acc[0], aH[0])
    class Fill(list):
        pass
    def pre1(i):
        if i == 0:
            for j in (0, 1): rd[j] = frag_reads(aHr, j)
        if i + 2 < 14: rd[i + 2] = frag_reads(aHr, i + 2)
        k(f's_waitcnt lgkmcnt({min(8, 4 * (13 - i))})')
    tile(acc[1], 1, g8, steps=range(14), pre=pre1, lead=1, per_step=5)
    k('s_waitcnt lgkmcnt(0)\ns_barrier'); lg.reset()
    for j in range(14, 18): rd[j] = frag_reads(aHr, j)
    tile(acc[1], 1, [], steps=range(14, 18), pre=lambda i: lg.wait(rd[i][3]))
    sp = k.s(); po = [gt.sub(0, 4), gt.sub(4, 4)]
    k(f's_mul_i32 {sp}, {mb}, {9 * 65536}\ns_lshl_b32 {st}, {s_w}, 14\ns_add_u32 {sp}, {sp}, {st}\ns_lshl_b32 {st}, {fs}, 10\ns_add_u32 {sp}, {sp}, {st}\ns_add_u32 {sp}, {sp}, {O_PART}')
    def part_ops(a):
        out = []
        for p in range(2):
            out += [f'v_cvt_pk_bf16_f32 {po[p][e]}, {a[8 * p + 2 * e]}, {a[8 * p + 2 * e + 1]}' for e in range(4)]
            if 'nopart' not in opt: out.append(f'buffer_store_dwordx4 {po[p]}, {vo[2 * p]}, {Rws}, {sp} offen {PFL}')
        out.append(f's_add_u32 {sp}, {sp}, 65536')
        return out
    lp = k.label('g4')
    k(f's_mov_b32 {so}, 4\n{lp}:\ns_add_u32 {sn}, {sn}, 18432')
    tile(acc[0], 0, part_ops(acc[1]), front=True)
    k(f's_add_u32 {sn}, {sn}, 18432\ns_cmp_eq_u32 {so}, 1\ns_cselect_b32 {RW[2]}, 0, {RW[2]}')
    tile(acc[1], 1, part_ops(acc[0]), front=True)
    k(f's_sub_u32 {so}, {so}, 1\ns_cmp_lg_u32 {so}, 0\ns_cbranch_scc1 {lp}')
    for x_ in part_ops(acc[1]): k(x_)
    STAMP(10)
    for x_ in (XV, gt, acc[0], acc[1]): x_.release()
    aR = [GC[0][0]]; aO = [GC[0][1], GC[0][2]]; aB = GC[1][0]; T0 = k.s()
    Rout = RG; srd(k, Rout, P['out'], L * D * 2)
    rs = [k.v(12, 4) for _ in range(3)]; pt = [k.v(32, 4) for _ in range(3)]
    k(f's_lshl_b32 {st}, {mb}, 2\ns_and_b32 {st1}, {fs}, 1\ns_lshl_b32 {st1}, {st1}, 1\ns_add_u32 {st}, {st}, {st1}\ns_lshl_b32 {st}, {st}, 4')
    k(f'v_add_u32 {aO[0]}, {st}, {m}\nv_mul_u32_u24 {aO[0]}, 1152, {aO[0]}\nv_lshl_add_u32 {aO[0]}, {q}, 3, {aO[0]}\nv_add_u32 {aO[1]}, {16 * 1152}, {aO[0]}')
    k(f's_mul_i32 {T0}, {mb}, 144\ns_add_u32 {T0}, {T0}, {st1}\ns_lshl_b32 {T0}, {T0}, 10\nv_add_u32 {aR[0]}, {T0}, {l16}\nv_lshlrev_b32 {aB}, 4, {q}')
    k(f's_lshr_b32 {T0}, {fs}, 1\ns_mul_i32 {T0}, {T0}, 9\ns_add_u32 {T0}, {T0}, {s_w}')
    k('s_waitcnt vmcnt(0)'); vm.reset()
    k(f's_lshl_b32 {so}, {mb}, 2\ns_add_u32 {so}, {so}, {s_w}')
    flag_add(so, O_FP)

    sk = [k.label('skip') for _ in range(3)]
    def third(i, lab):
        if i == 2: k(f's_cmp_lg_u32 {s_w}, 0\ns_cbranch_scc1 {lab}')
    for i in range(3):
        third(i, sk[0])
        k(f's_add_u32 {st}, {T0}, {4 * i}\ns_lshl_b32 {st}, {st}, 6\ns_add_u32 {st1}, {st}, {O_MOD2 + 4608}\ns_lshl_b32 {st}, {st}, 6\ns_add_u32 {st}, {st}, {O_RES}')
        for h in range(2): k(f'buffer_load_dwordx4 {rs[i].sub(4 * h, 4)}, {aR[0]}, {Rws}, {st} offen offset:{1024 * h} sc1')
        k(f'buffer_load_dwordx4 {rs[i].sub(8, 4)}, {aB}, {Rws}, {st1} offen')
    k(f'{sk[0]}:\ns_lshl_b32 {st}, {mb}, 2\ns_lshr_b32 {so}, {fs}, 1\ns_add_u32 {st}, {st}, {so}\ns_lshl_b32 {st}, {st}, 7\nv_mov_b32 {pa}, {st}')
    poll(pa, O_FP, 8)
    STAMP(11)
    k(f's_mul_i32 {sp}, {mb}, 9\ns_add_u32 {sp}, {sp}, {s_w}\ns_lshl_b32 {sp}, {sp}, 3\ns_add_u32 {sp}, {sp}, {fs}\ns_lshl_b32 {sp}, {sp}, 13\ns_add_u32 {sp}, {sp}, {O_PART}')
    for i in range(3):
        third(i, sk[1])
        for s_ in range(8): k(f'buffer_load_dwordx4 {pt[i].sub(4 * s_, 4)}, {vo[s_ // 4]}, {Rws}, {sp} offen offset:{1024 * (s_ % 4)} sc1')
        k(f's_add_u32 {sp}, {sp}, {4 * 65536}')
    k(f'{sk[1]}:')
    sa = k.v(8, 2); u = k.v(8, 2)
    for i in range(3):
        third(i, END)
        k(f's_waitcnt vmcnt({8 if i == 0 else 2})')
        p = pt[i]
        for e in range(8): k(un(sa[e], p[e >> 1], e & 1))
        for s_ in range(1, 8):
            for e in range(8): k(un(u[e], p[4 * s_ + (e >> 1)], e & 1))
            for e in range(4): k(f'v_pk_add_f32 {sa.sub(2 * e, 2)}, {sa.sub(2 * e, 2)}, {u.sub(2 * e, 2)}')
        for e in range(4): k(f'v_pk_fma_f32 {sa.sub(2 * e, 2)}, {sa.sub(2 * e, 2)}, {rs[i].sub(8 + 2 * (e & 1), 2)}, {rs[i].sub(2 * e, 2)}')
        k(f's_add_u32 {st}, {T0}, {4 * i}\ns_lshl_b32 {st}, {st}, 5')
        for h in range(2):
            k(f'v_cvt_pk_bf16_f32 {u[2 * h]}, {sa[4 * h]}, {sa[4 * h + 1]}\nv_cvt_pk_bf16_f32 {u[2 * h + 1]}, {sa[4 * h + 2]}, {sa[4 * h + 3]}')
            k(f'buffer_store_dwordx2 {u.sub(2 * h, 2)}, {aO[h]}, {Rout}, {st} offen')
        if i == 1: STAMP(12)
    k(f'{END}:')
    if stamps:
        k('s_cmp_ge_u32 s2, 256\ns_cbranch_scc1 stamp_done_0\ns_waitcnt vmcnt(0)'); SP(13); SP.flush(P)
    k('s_endpgm')
    k.finish()
    return k

if __name__ == '__main__':
    k = build_k2()
    print('k2 lines', len(k.l), 'nops', k.nops, 'regs', k.counts(), 'sgpr top', k.S.top)
    open('k2.s', 'w').write(module([k], 136))
```

```python
import sys, re
from common import *
import k1, k2
def build(stamps=False, dump=False, opt=()):
    a = k1.build_k1(dump=dump, stamps=stamps); b = k2.build_k2(stamps=stamps, opt=opt)
    ref = open('cdna_kernels/%s.s.ref' % NAME).read().split('\n')
    hdr = [l for l in ref if l.startswith(';') and '@launch' not in l and 'Override' not in l and 'grid=ceil' not in l and not l.startswith('    ')]
    hdr = '\n'.join(hdr) + '\n'
    hdr += '; @launch kernel=k1_kernel grid=(256,1,1) block=(256,1,1) lds=%d\n' % k1.K1_LDS
    hdr += '; @launch kernel=k2_kernel grid=(256,1,1) block=(256,1,1) lds=%d\n' % k2.K2_LDS
    for k in (a, b): print(k.name, 'lines', len(k.l), 'nops', k.nops, 'regs', k.counts())
    s = module([a, b], 136, hdr)
    for o in opt:
        if o.startswith('ws'):
            off = int(o[2:]) << 20
            s = re.sub(r'(s_load_dwordx2 s\[(\d+):(\d+)\], s\[0:1\], 128\n(?:.*\n)*?    s_waitcnt lgkmcnt\(0\)\n)', lambda m: m.group(1) + '    s_add_u32 s%s, s%s, %d\n    s_addc_u32 s%s, s%s, 0\n' % (m.group(2), m.group(2), off, m.group(3), m.group(3)), s)
        if o == 'nont': s = s.replace(' nt', '')
        if o == 'outsc1': s = re.sub(r'(buffer_store_dwordx2 .* offen)\n(?=(?:.*\n){0,400}k2_end)', r'\1 sc1\n', s)
        if o == 'outnt': s = re.sub(r'(buffer_store_dwordx2 .* offen)\n(?=(?:.*\n){0,400}k2_end)', r'\1 nt\n', s)
    return s
if __name__ == '__main__' and len(sys.argv) > 1:
    for o in sys.argv[1:]: open('v_%s_clk.s' % o, 'w').write(build(stamps=2, opt=o.split('+'))); open('v_%s.s' % o, 'w').write(build(opt=o.split('+'))); open('v_%s_dbg.s' % o, 'w').write(build(stamps=1, opt=o.split('+')))
elif __name__ == '__main__':
    open('full_dbg.s', 'w').write(build(stamps=True))
    open('full_clk.s', 'w').write(build(stamps=2))
    open('full_h.s', 'w').write(build(stamps=3))
    s = build()
    open('full.s', 'w').write(s)
    open('cdna_kernels/%s.s' % NAME, 'w').write(s)
```

```python
from dsl import Kern, Reg, module
import struct

L, D, F = 2048, 576, 4608
NAME = 'adaLN_cond__ssm_conv_s4d__mixer_s_mlp__prompt'

O_FC    = 0x0000
O_FD    = 0x4000
O_FP    = 0x8000
O_FW    = 0x18000
O_FR    = 0xC000
O_FT    = 0x19000
O_FA    = 0x1D000
FLAG_BYTES = 0x20000
O_STATS = 0x20000
O_MODF  = 0x24000
O_MOD2  = O_MODF + 3 * 2304
O_MODB  = 0x29000
O_PST   = 0x30000
GPL = 2052 * 64
O_XT    = 0x100000
O_X2    = 0x3200000
O_G     = 0x400000
O_X1F   = 0x700000
O_RES   = 0xA00000
O_W1F   = 0xF00000
O_W2F   = 0x1000000
O_W3F   = 0x1100000
O_W4F   = 0x1700000
O_PART  = 0x2000000
O_DBG   = 0x3800000
WS_USED = 0x4000000

def f2u(x): return struct.unpack('<I', struct.pack('<f', x))[0]
def fl(x): return '0x%08x' % f2u(x)
LOG2E = 1.4426950408889634

class Trk:
    def __init__(self, k, cnt, mx): self.k = k; self.cnt = cnt; self.mx = mx; self.n = 0; self.done = 0
    def op(self, s):
        self.k(s); self.n += 1; return self.n
    def wait(self, idx):
        if idx <= self.done: return
        left = min(self.n - idx, self.mx)
        self.k('s_waitcnt %s(%d)' % (self.cnt, left)); self.done = self.n - left
    def all(self): self.wait(self.n)
    def reset(self): self.done = self.n

def trackers(k): return Trk(k, 'vmcnt', 63), Trk(k, 'lgkmcnt', 15)

def srd(k, dst, ptr, nbytes, off=0):
    if off:
        k(f's_add_u32 {dst[0]}, {ptr[0]}, {off}\ns_addc_u32 {dst[1]}, {ptr[1]}, 0')
    else:
        k(f's_mov_b32 {dst[0]}, {ptr[0]}\ns_mov_b32 {dst[1]}, {ptr[1]}')
    k(f's_mov_b32 {dst[2]}, {nbytes}\ns_mov_b32 {dst[3]}, 0x20000')

def kernargs(k):
    a = k.s(16, 4); b = k.s(16, 4); c = k.s(2)
    k(f's_load_dwordx16 {a}, s[0:1], 0\ns_load_dwordx16 {b}, s[0:1], 64\ns_load_dwordx2 {c}, s[0:1], 128')
    names = ['u', 'logA', 'Aim', 'Cr', 'Ci', 'logdt', 'Dskip', 'Bx']
    P = {n: a.sub(2 * i, 2) for i, n in enumerate(names)}
    names = ['w1', 'w2', 'w3', 'w4', 'c', 'wmod', 'out', 'dbg']
    P.update({n: b.sub(2 * i, 2) for i, n in enumerate(names)})
    P['ws'] = c
    P['_blocks'] = (a, b)
    return P

def code_prefetch(k, vm, lo, hi, nbytes, tid, tmp, sp, back=False):
    here = k.label('pc')
    k(f's_getpc_b64 {sp}\n{here}:')
    if back: k(f's_sub_u32 {sp[0]}, {sp[0]}, {here}-{lo}\ns_subb_u32 {sp[1]}, {sp[1]}, 0')
    else: k(f's_add_u32 {sp[0]}, {sp[0]}, {lo}-{here}\ns_addc_u32 {sp[1]}, {sp[1]}, 0')
    k(f'v_lshlrev_b32 {tmp[0]}, 7, {tid}')
    k(f'v_min_u32 {tmp[0]}, {hi}-{lo}-4, {tmp[0]}')
    n = (nbytes + 32767) // 32768
    for i in range(n):
        x = f'global_load_dword {tmp[1]}, {tmp[0]}, {sp}'
        vm.op(x) if vm else k(x)
        if i + 1 < n:
            k(f'v_add_u32 {tmp[0]}, 0x8000, {tmp[0]}\nv_min_u32 {tmp[0]}, {hi}-{lo}-4, {tmp[0]}')

def interleave(*streams):
    out = []; n = max(len(s) for s in streams)
    for i in range(n):
        for s in streams:
            if i < len(s): out.append(s[i])
    return out

class ColJob:
    def __init__(self, k, vm, lg, lane, s_w):
        self.k, self.vm, self.lg, self.lane, self.s_w = k, vm, lg, lane, s_w
        k_ = k
        self.row = k.v(); self.chunk = k.v(); t = k.v(2)
        k_(f'v_lshrrev_b32 {self.row}, 3, {lane}')
        k_(f'v_bfe_u32 {t[0]}, {lane}, 5, 1\ns_and_b32 vcc_lo, {s_w}, 1\nv_xor_b32 {t[0]}, vcc_lo, {t[0]}')
        k_(f'v_bfe_u32 {t[1]}, {lane}, 4, 1\nv_lshl_or_b32 {t[0]}, {t[0]}, 1, {t[1]}')
        k_(f'v_lshlrev_b32 {t[0]}, 1, {t[0]}\nv_and_b32 {t[1]}, 7, {lane}\nv_xor_b32 {t[0]}, {t[0]}, {t[1]}')
        k_(f'v_lshlrev_b32 {self.chunk}, 4, {t[0]}')
        t.release()
    def dma(self, R, s_src, s_stride, buf):
        k = self.k
        va = k.v(); so = k.s(); st = k.s(); sm = k.s()
        k(f'v_mad_u32_u24 {va}, {self.row}, {s_stride}, {self.chunk}')
        k(f's_lshl_b32 {st}, {s_stride}, 3\ns_mul_i32 {so}, {st}, {self.s_w}\ns_add_u32 {so}, {so}, {s_src}\ns_lshl_b32 {st}, {st}, 2')
        k(f's_lshl_b32 {sm}, {self.s_w}, 10')
        last = None
        for i in range(18):
            k(f's_add_u32 m0, {sm}, {buf + i * 4096}')
            last = self.vm.op(f'buffer_load_dwordx4 {va}, {R}, {so} offen lds')
            if i < 17: k(f's_add_u32 {so}, {so}, {st}')
        va.release(); so.release(); st.release(); sm.release()
        return last
    def read(self, buf, fr, **kw):
        return self.reads(self.addr(buf, **kw), fr)
    def addr(self, buf, w4order=False, s_il=None, s_w4=None):
        k, lane = self.k, self.lane
        ad = k.v(4); q = k.v(); r = k.v(); c = k.v(); un = k.v(); wi = k.v(); t = k.v(2)
        k(f'v_lshrrev_b32 {q}, 4, {lane}\nv_bfe_u32 {r}, {lane}, 2, 2\nv_and_b32 {c}, 3, {lane}')
        k(f'v_mov_b32 {un}, {self.s_w}\nv_lshlrev_b32 {wi}, 3, {c}')
        if s_il is not None:
            st = k.s()
            k(f's_and_b32 {st}, {self.s_w}, 2\nv_lshrrev_b32 {t[0]}, 1, {c}\nv_add_u32 {t[0]}, {st}, {t[0]}')
            k(f's_and_b32 {st}, {self.s_w}, 1\ns_lshl_b32 {st}, {st}, 3\nv_and_b32 {t[1]}, 1, {c}\nv_lshl_add_u32 {t[1]}, {t[1]}, 4, {st}')
            k(f's_cmp_lg_u32 {s_il}, 0\ns_cselect_b64 vcc, -1, 0')
            k(f'v_cndmask_b32 {un}, {un}, {t[0]}, vcc\nv_cndmask_b32 {wi}, {wi}, {t[1]}, vcc')
            st.release()
        for h in range(2):
            kl = ad[h]
            if w4order: k(f'v_lshl_add_u32 {kl}, {q}, 2, {r}\nv_add_u32 {kl}, {16 * h}, {kl}')
            else: k(f'v_lshl_add_u32 {kl}, {q}, 3, {r}\nv_add_u32 {kl}, {4 * h}, {kl}')
            if s_w4 is not None:
                k(f'v_lshl_add_u32 {t[0]}, {q}, 2, {r}\nv_add_u32 {t[0]}, {16 * h}, {t[0]}\ns_cmp_eq_u32 {s_w4}, 4\ns_cselect_b64 vcc, -1, 0\nv_cndmask_b32 {kl}, {kl}, {t[0]}, vcc')
            k(f'v_lshrrev_b32 {t[0]}, 1, {kl}\nv_xor_b32 {t[0]}, {t[0]}, {kl}\nv_bfe_u32 {t[0]}, {t[0]}, 2, 1')
            k(f'v_bfe_u32 {t[1]}, {kl}, 1, 1\nv_lshl_or_b32 {t[0]}, {t[0]}, 1, {t[1]}\nv_xor_b32 {t[0]}, {t[0]}, {un}')
            k(f'v_lshl_add_u32 {t[0]}, {t[0]}, 5, {wi}\nv_lshl_add_u32 {kl}, {kl}, 7, {t[0]}')
            k(f'v_add_u32 {kl}, {buf}, {kl}\nv_add_u32 {ad[2 + h]}, 0x9000, {kl}')
        for x in (q, r, c, un, wi, t): x.release()
        return ad
    def reads(self, ad, fr):
        ids = []
        for s in range(18):
            for h in range(2):
                a = ad[h] if s < 9 else ad[2 + h]
                i = self.lg.op(f'ds_read_b64_tr_b16 {fr.sub(4 * s + 2 * h, 2)}, {a} offset:{(s % 9) * 4096}')
            ids.append(i)
        ad.release()
        return ids
    def store(self, fr, ids, Rws, s_dst, s_step, s_rot=None, flags='sc1'):
        k = self.k
        va = k.v(); so = k.s(); sl = k.s()
        k(f'v_lshlrev_b32 {va}, 4, {self.lane}')
        if s_rot is not None: k(f's_mov_b32 {sl}, {s_rot}')
        else: k(f's_mov_b32 {so}, {s_dst}')
        for s in range(18):
            if s_rot is not None:
                k(f's_mul_i32 {so}, {sl}, {s_step}\ns_add_u32 {so}, {so}, {s_dst}')
                k(f's_add_u32 {sl}, {sl}, 1\ns_cmp_eq_u32 {sl}, 18\ns_cselect_b32 {sl}, 0, {sl}')
            if ids: self.lg.wait(ids[s])
            self.vm.op(f'buffer_store_dwordx4 {fr.sub(4 * s, 4)}, {va}, {Rws}, {so} offen {flags}')
            if s_rot is None and s < 17: k(f's_add_u32 {so}, {so}, {s_step}')
        va.release(); so.release(); sl.release()

class Stamper:
    def __init__(self, k, on, area, t=None):
        self.k = k; self.on = on; self.area = area
        if on: self.r = k.s(16, 1); self.t = t or k.s(2)
    def __call__(self, i):
        if self.on:
            self.k(f'{"s_memtime" if self.on == 2 else "s_memrealtime"} {self.t}\ns_waitcnt lgkmcnt(0)\ns_mov_b32 {self.r[i]}, {self.t[0]}')
    def init(self):
        if self.on:
            for i in range(16): self.k(f's_mov_b32 {self.r[i]}, 0')
    def flush(self):
        if not self.on: return
        k = self.k; t = self.t; done = k.label('stamped')
        k(f's_waitcnt vmcnt(0) lgkmcnt(0)\ns_mov_b64 exec, -1\nv_mov_b32 v1, 0\nv_cmp_eq_u32 vcc, 0, v0\ns_and_b64 exec, exec, vcc\ns_cbranch_execz {done}')
        k(f's_load_dwordx2 {t}, s[0:1], 128\ns_lshl_b32 vcc_lo, s2, 6\ns_add_u32 vcc_lo, vcc_lo, {O_DBG + 0x400000 + self.area * 256 * 64}\nv_mov_b32 v1, vcc_lo\ns_waitcnt lgkmcnt(0)')
        for i in range(16): k(f'v_mov_b32 v2, {self.r[i]}\nglobal_store_dword v1, v2, {t} offset:{4 * i}')
        k(f'{done}:')

def sigma_bf16(k, mean, var):
    k(f'v_mul_f32 {mean}, {fl(1 / 576)}, {mean}\nv_mul_f32 {var}, {fl(1 / 576)}, {var}')
    k(f'v_fma_f32 {var}, -{mean}, {mean}, {var}\nv_max_f32 {var}, 0, {var}')
    k(f'v_cvt_pk_bf16_f32 {var}, {var}, {var}\nv_and_b32 {var}, 0xffff0000, {var}\nv_add_f32 {var}, {fl(1e-5)}, {var}')
    k(f'v_cvt_pk_bf16_f32 {var}, {var}, {var}\nv_and_b32 {var}, 0xffff0000, {var}\nv_sqrt_f32 {var}, {var}')
```

```python
from common import *

N_SIG = 64 + 45
BUF0, BUF1, SVEC = 0, 73728, 147456
K1_LDS = 147456 + 2560
SPIN_MAX = 40000

def vmaps():
    maps = [list(range(16))]
    for s in (1, 2, 3):
        m = list(maps[-1]); step = 1 << s
        new = [step * i for i in range(8, 16)]
        for j in range(16):
            if m[j] % step: m[j] = new.pop(0)
        assert not new
        maps.append(m)
    return maps

def service(k, P, lane, s_w, END, NEXT, SP):
    vm, lg = trackers(k)
    Rws = k.s(4); Rdbg = k.s(4); RA = k.s(4); RB = k.s(4)
    srd(k, Rws, P['ws'], WS_USED); srd(k, Rdbg, P['dbg'], 256)
    z4 = k.v(4, 4); zero = z4.sub(0, 2); one = k.v(); l16 = k.v(); q = k.v(); m = k.v()
    fr = k.v(72, 4); sv = k.v(72, 4); acc = k.v(4, 4)
    sav = k.s(2); st = k.s(); cnt = k.s()
    jb = k.s(); modeB = k.s(); blkB = k.s(); srcB = k.s(); strB = k.s()
    L_mod, L_B, L_C = k.label('mod'), k.label('jobB'), k.label('jobC')
    k(f'v_lshrrev_b32 {q}, 4, {lane}\nv_and_b32 {m}, 15, {lane}\nv_lshlrev_b32 {l16}, 4, {lane}')
    cjs = {}
    def common():
        for i in range(4): k(f'v_mov_b32 {z4[i]}, 0')
        k(f'v_mov_b32 {one}, 1\ns_mov_b32 {cnt}, 0')
        k(f's_sub_u32 {jb}, s2, 64\ns_add_u32 {blkB}, s2, 40\ns_cmp_ge_u32 s2, 64\ns_cselect_b32 {jb}, {jb}, {blkB}')
        k(f's_sub_u32 {st}, s2, 104\ns_cmp_lt_u32 {st}, 8\ns_cselect_b32 {jb}, 104, {jb}')
        srd(k, RB, P['wmod'], D * 3456 * 2)
        k(f's_mov_b32 {modeB}, 0\ns_add_u32 {blkB}, {jb}, 48\ns_mov_b32 {strB}, 6912')
        for mode, lo, ptr, nb, st_ in ((1, 6, 'w1', D * D * 2, 1152), (2, 15, 'w2', D * D * 2, 1152), (4, 24, 'w4', D * F * 2, 1152), (3, 32, 'w3', D * F * 2, 9216)):
            k(f's_sub_u32 {srcB}, {jb}, {lo}\ns_cmp_ge_u32 {jb}, {lo}')
            k(f's_cselect_b32 {blkB}, {srcB}, {blkB}\ns_cselect_b32 {modeB}, {mode}, {modeB}\ns_cselect_b32 {strB}, {st_}, {strB}')
            k(f's_cselect_b32 {RB[0]}, {P[ptr][0]}, {RB[0]}\ns_cselect_b32 {RB[1]}, {P[ptr][1]}, {RB[1]}\ns_cselect_b32 {RB[2]}, {nb}, {RB[2]}')
        k(f's_lshl_b32 {srcB}, {blkB}, 7\ns_cmp_eq_u32 {modeB}, 4\ns_cselect_b32 {st}, {7 * 576 * 1152 + 128}, 0\ns_add_u32 {srcB}, {srcB}, {st}')
    def signal(which, n_sig):
        sk = k.label('notlast')
        k(f's_mov_b64 exec, 1\nv_mov_b32 {acc[0]}, 1\nbuffer_atomic_add {acc[0]}, {zero[0]}, {Rdbg}, 0 offen offset:{64 + 4 * which} sc0 sc1\ns_waitcnt vmcnt(0)')
        k(f'v_readfirstlane_b32 {st}, {acc[0]}\ns_cmp_lg_u32 {st}, {n_sig - 1}\ns_cbranch_scc1 {sk}')
        k(f'buffer_store_dword {one}, {zero[0]}, {Rdbg}, 0 offen offset:{192 + 4 * which} sc1\n{sk}:\ns_mov_b64 exec, -1')
    cj = ColJob(k, vm, lg, lane, s_w)
    k(f's_cmp_ge_u32 s2, 64\ns_cbranch_scc1 {L_mod}')

    srd(k, RA, P['u'], L * D * 2)
    va = k.v(); vx = k.v(2); t = k.v(6); row = k.v(); s1 = k.s()
    k(f's_and_b32 {st}, {s_w}, 1\ns_lshl_b32 {s1}, s2, 1\ns_add_u32 {st}, {st}, {s1}\ns_lshl_b32 {st}, {st}, 4\nv_add_u32 {row}, {st}, {m}')
    k(f's_lshr_b32 {s1}, {s_w}, 1\ns_mul_i32 {st}, {s1}, 576\nv_mul_u32_u24 {va}, 1152, {row}\nv_lshl_add_u32 {va}, {q}, 4, {va}')
    ix = [vm.op(f'buffer_load_dwordx4 {fr.sub(4 * i, 4)}, {va}, {RA}, {st} offen offset:{64 * i}') for i in range(9)]
    pf = k.v(2); pfs = k.s(2)
    code_prefetch(k, vm, 'k1_top', 'k1_conv', 16384, 'v0', pf, pfs, back=True)
    common()
    sk = k.label('noclr')
    k(f's_cmp_ge_u32 {s_w}, 2\ns_cbranch_scc1 {sk}\ns_lshl_b32 {st}, s2, 1\ns_add_u32 {st}, {st}, {s_w}\ns_lshl_b32 {st}, {st}, 10')
    k(f'buffer_store_dwordx4 {z4}, {l16}, {Rws}, {st} offen sc1\n{sk}:')
    sk = k.label('nopad')
    k(f's_cmp_lg_u32 {s_w}, 2\ns_cbranch_scc1 {sk}\ns_cmp_ge_u32 s2, 36\ns_cbranch_scc1 {sk}\ns_lshr_b32 {st}, s2, 1\ns_mul_i32 {st}, {st}, {GPL}\ns_bitcmp1_b32 s2, 0\ns_cselect_b32 {sav[0]}, {2050 * 64}, 0')
    k(f's_add_u32 {st}, {st}, {sav[0]}\ns_add_u32 {st}, {st}, {O_G}\ns_mov_b64 exec, 0xff\nbuffer_store_dwordx4 {z4}, {l16}, {Rws}, {st} offen sc1\ns_mov_b64 exec, -1\n{sk}:')
    k(f'v_and_b32 {t[0]}, 1, {m}\nv_lshl_add_u32 {t[1]}, {q}, 1, {t[0]}\nv_lshlrev_b32 {vx[0]}, 14, {t[1]}\nv_sub_u32 {t[1]}, {row}, {t[0]}\nv_lshl_add_u32 {vx[0]}, {t[1]}, 3, {vx[0]}')
    k(f's_mul_i32 {s1}, {s1}, {9 * 131072}\ns_add_u32 {s1}, {s1}, {O_XT}\ns_mov_b32 {st}, 0x3f803f80\nv_cmp_eq_u32 vcc, 0, {t[0]}')
    for i in range(4): k(f'v_mov_b32 {acc[i]}, 0')
    dp = 'quad_perm:[1,0,3,2] row_mask:0xf bank_mask:0xf'
    for i in range(9):
        vm.wait(ix[i])
        if i == 0: SP(8)
        r_ = fr.sub(4 * i, 4); o = sv.sub(4 * i, 4)
        k(f'v_cndmask_b32_dpp {o[0]}, {r_[2]}, {r_[0]}, vcc {dp}\nv_cndmask_b32_dpp {o[1]}, {r_[3]}, {r_[1]}, vcc {dp}\ns_not_b64 vcc, vcc')
        k(f'v_cndmask_b32_dpp {o[2]}, {r_[0]}, {r_[2]}, vcc {dp}\nv_cndmask_b32_dpp {o[3]}, {r_[1]}, {r_[3]}, vcc {dp}\ns_not_b64 vcc, vcc')
        vm.op(f'buffer_store_dwordx4 {o}, {vx[0]}, {Rws}, {s1} offen sc1')
        if i < 8: k(f's_add_u32 {s1}, {s1}, 131072')
    for i in range(36):
        k(f'v_dot2_f32_bf16 {acc[i & 1]}, {fr[i]}, {st}, {acc[i & 1]}')
        k(f'v_dot2_f32_bf16 {acc[2 + (i & 1)]}, {fr[i]}, {fr[i]}, {acc[2 + (i & 1)]}')
    k(f'v_add_f32 {t[0]}, {acc[0]}, {acc[1]}\nv_add_f32 {t[2]}, {acc[2]}, {acc[3]}\nv_permlane32_swap_b32 {t[0]}, {t[2]}\nv_add_f32 {t[0]}, {t[0]}, {t[2]}')
    k(f'v_mov_b32 {t[1]}, {t[0]}\nv_permlane16_swap_b32 {t[0]}, {t[1]}\nv_add_f32 {t[0]}, {t[0]}, {t[1]}')
    k(f's_lshl_b32 {st}, {s_w}, 8\ns_add_u32 {st}, {st}, {SVEC}\nv_lshl_add_u32 {t[1]}, {lane}, 2, {st}\nds_write_b32 {t[1]}, {t[0]}')
    k('s_waitcnt lgkmcnt(0)\ns_barrier')
    a, b = k.label('notw0'), k.label('sigd')
    k(f's_cmp_lg_u32 {s_w}, 0\ns_cbranch_scc1 {a}')
    k(f'v_and_b32 {t[1]}, 1, {q}\nv_lshlrev_b32 {t[1]}, 8, {t[1]}\nv_lshl_add_u32 {t[1]}, {m}, 2, {t[1]}\nv_add_u32 {t[1]}, {SVEC}, {t[1]}')
    k(f'ds_read2_b32 {t[2:4]}, {t[1]} offset0:0 offset1:32\nds_read2_b32 {t[4:6]}, {t[1]} offset0:128 offset1:160\ns_waitcnt lgkmcnt(0)')
    k(f'v_add_f32 {t[0]}, {t[2]}, {t[4]}\nv_add_f32 {t[2]}, {t[3]}, {t[5]}')
    sigma_bf16(k, t[0], t[2])
    k(f'v_cvt_pk_bf16_f32 {t[2]}, {t[0]}, {t[2]}\nv_lshlrev_b32 {t[1]}, 2, {lane}\ns_lshl_b32 {st}, s2, 7\ns_add_u32 {st}, {st}, {O_STATS}')
    k(f's_mov_b32 exec_hi, 0\nbuffer_store_dword {t[2]}, {t[1]}, {Rws}, {st} offen sc1\ns_mov_b64 exec, -1')
    k(f'{a}:\ns_waitcnt vmcnt(0)\ns_barrier'); vm.reset()
    k(f's_cmp_lg_u32 {s_w}, 0\ns_cbranch_scc1 {b}')
    signal(0, 64)
    k(f'{b}:'); SP(9)
    cj.dma(RB, srcB, strB, BUF1)
    srd(k, RA, P['w4'], D * F * 2)
    k(f's_mul_hi_u32 {st}, s2, {(1 << 32) // 9 + 1}\ns_mul_i32 {s1}, {st}, 9\ns_sub_u32 {s1}, s2, {s1}\ns_lshl_b32 {s1}, {s1}, 7')
    k(f's_mul_i32 {st}, {st}, {576 * 1152}\ns_add_u32 {s1}, {s1}, {st}\ns_mov_b32 {st}, 1152')
    cj.dma(RA, s1, st, BUF0)
    k(f's_branch {L_B}')
    for x_ in (va, vx, t, row, s1): x_.release()

    def mod_tail(ids, s_blk, sig):
        t = k.v(2); vg = k.v(); s1 = k.s()
        for s in range(18):
            if s % 2 == 0: lg.wait(ids[s + 1])
            k(f'v_mfma_f32_16x16x32_bf16 {acc}, {sv.sub(4 * s, 4)}, {fr.sub(4 * s, 4)}, {"0" if s == 0 else acc}')
        k(f's_lshl_b32 {s1}, {s_w}, 6\ns_add_u32 {s1}, {s1}, {SVEC + 2048}\nv_lshl_add_u32 {vg}, {m}, 2, {s1}')
        k(f'v_cvt_pk_bf16_f32 {t[0]}, {acc[0]}, {acc[0]}\nv_and_b32 {t[0]}, 0xffff0000, {t[0]}')
        k(f'v_add_f32 {t[1]}, 1.0, {t[0]}\nv_cvt_pk_bf16_f32 {t[1]}, {t[1]}, {t[1]}\nv_and_b32 {t[1]}, 0xffff0000, {t[1]}')
        k(f's_mov_b64 vcc, 0\ns_sub_u32 {s1}, {s_blk}, 9\ns_cmp_lt_u32 {s1}, 9\ns_cselect_b64 vcc, -1, vcc')
        k(f's_sub_u32 {s1}, {s_blk}, 36\ns_cmp_lt_u32 {s1}, 9\ns_cselect_b64 vcc, -1, vcc')
        k(f'v_cndmask_b32 {t[0]}, {t[0]}, {t[1]}, vcc\nds_write_b32 {vg}, {t[0]}\ns_waitcnt lgkmcnt(0)\ns_barrier'); lg.reset()
        a, b = k.label('notw0'), k.label('nob')
        k(f's_cmp_lg_u32 {s_w}, 0\ns_cbranch_scc1 {a}')
        k(f'v_lshlrev_b32 {vg}, 3, {lane}\nv_add_u32 {t[0]}, {SVEC + 2048}, {vg}\nds_read_b64 {t}, {t[0]}\ns_lshl_b32 {s1}, {s_blk}, 8\ns_add_u32 {s1}, {s1}, {O_MODF}')
        k(f's_mov_b32 exec_hi, 0\ns_waitcnt lgkmcnt(0)\nbuffer_store_dwordx2 {t}, {vg}, {Rws}, {s1} offen sc1')
        if sig:
            k(f's_sub_u32 {s1}, {s_blk}, 27\ns_cmp_ge_u32 {s1}, 18\ns_cbranch_scc1 {b}')
            k(f'v_cvt_pk_bf16_f32 {acc[0]}, {t[0]}, {t[1]}\nv_lshrrev_b32 {vg}, 1, {vg}\ns_lshl_b32 {s1}, {s1}, 7\ns_add_u32 {s1}, {s1}, {O_MODB}')
            k(f'buffer_store_dword {acc[0]}, {vg}, {Rws}, {s1} offen sc1\n{b}:')
            k(f's_cmp_ge_u32 {s_blk}, 45\ns_cbranch_scc1 {a}\ns_waitcnt vmcnt(0)')
            signal(1, 45)
        k(f'{a}:\ns_mov_b64 exec, -1')
        t.release(); vg.release(); s1.release()

    k(f'{L_mod}:')
    vm, lg = trackers(k); cj.vm, cj.lg = vm, lg
    blkA = k.s(); srcA = k.s(); strA = k.s(); Rc = k.s(4)
    srd(k, RA, P['wmod'], D * 3456 * 2); srd(k, Rc, P['c'], D * 2)
    k(f's_sub_u32 {blkA}, s2, 64\ns_lshl_b32 {srcA}, {blkA}, 7\ns_mov_b32 {strA}, 6912')
    t = k.v(8); vg = k.v()
    k(f'v_lshlrev_b32 {vg}, 3, v0')
    ic = vm.op(f'buffer_load_dwordx2 {t[0:2]}, {vg}, {Rc}, 0 offen')
    code_prefetch(k, vm, 'k1_top', 'k1_conv', 16384, 'v0', pf, pfs, back=True)
    ia = cj.dma(RA, srcA, strA, BUF0)
    common()
    vm.wait(ic)
    k(f'v_lshlrev_b32 {t[2]}, 16, {t[0]}\nv_and_b32 {t[3]}, 0xffff0000, {t[0]}\nv_lshlrev_b32 {t[4]}, 16, {t[1]}\nv_and_b32 {t[5]}, 0xffff0000, {t[1]}')
    e = k.v(4)
    for i in range(4): k(f'v_mul_f32 {e[i]}, {fl(-LOG2E)}, {t[2 + i]}')
    for i in range(4): k(f'v_exp_f32 {e[i]}, {e[i]}')
    for i in range(4): k(f'v_add_f32 {e[i]}, 1.0, {e[i]}')
    for i in range(4): k(f'v_rcp_f32 {e[i]}, {e[i]}')
    for i in range(4): k(f'v_mul_f32 {e[i]}, {e[i]}, {t[2 + i]}')
    k(f'v_cvt_pk_bf16_f32 {t[0]}, {e[0]}, {e[1]}\nv_cvt_pk_bf16_f32 {t[1]}, {e[2]}, {e[3]}\nv_add_u32 {vg}, {SVEC}, {vg}')
    k(f'ds_write_b64 {vg}, {t[0:2]}\nv_lshlrev_b32 {vg}, 4, {q}\nv_add_u32 {vg}, {SVEC}, {vg}\ns_waitcnt lgkmcnt(0)\ns_barrier')
    for s in range(18): lg.op(f'ds_read_b128 {sv.sub(4 * s, 4)}, {vg} offset:{64 * s}')
    ad = cj.addr(BUF0)
    k('s_waitcnt vmcnt(0) lgkmcnt(0)\ns_barrier'); SP(10); vm.reset(); lg.reset()
    ids = cj.reads(ad, fr)
    mod_tail(ids, blkA, True); SP(11)
    k(f's_cmp_ge_u32 {jb}, 104\ns_cbranch_scc1 {L_C}')
    cj.dma(RB, srcB, strB, BUF1)
    k('s_waitcnt vmcnt(0)')
    e.release(); t.release(); vg.release()

    k(f'{L_B}:')
    vm, lg = trackers(k); cj.vm, cj.lg = vm, lg
    k(f's_waitcnt vmcnt(18) lgkmcnt(0)\ns_barrier')
    SP(12)
    il = k.s(); k(f's_sub_u32 {il}, {modeB}, 1\ns_cmp_lt_u32 {il}, 2\ns_cselect_b32 {il}, 1, 0')
    ids = cj.read(BUF1, fr, s_il=il, s_w4=modeB)
    notmod, nocenter = k.label('notmod'), k.label('nocenter')
    k(f's_cmp_lg_u32 {modeB}, 0\ns_cbranch_scc1 {notmod}')
    mod_tail(ids, blkB, False)
    k(f's_branch {L_C}\n{notmod}:')
    k('s_waitcnt lgkmcnt(0)'); lg.reset()
    k(f's_bitcmp0_b32 {modeB}, 0\ns_cbranch_scc1 {nocenter}')
    ones = sv.sub(0, 4); t = k.v(4)
    for i in range(4): k(f'v_mov_b32 {ones[i]}, 0x3f803f80')
    for s in range(18): k(f'v_mfma_f32_16x16x32_bf16 {acc}, {ones}, {fr.sub(4 * s, 4)}, {"0" if s == 0 else acc}')
    nm = sv.sub(4, 2)
    k(f'v_mul_f32 {nm[0]}, {fl(-1 / 576)}, {acc[0]}')
    for i in range(0, 72, 2):
        k(f'v_lshlrev_b32 {t[0]}, 16, {fr[i]}\nv_and_b32 {t[1]}, 0xffff0000, {fr[i]}')
        k(f'v_lshlrev_b32 {t[2]}, 16, {fr[i + 1]}\nv_and_b32 {t[3]}, 0xffff0000, {fr[i + 1]}')
        k(f'v_pk_add_f32 {t[0:2]}, {t[0:2]}, {nm} op_sel_hi:[1,0]\nv_pk_add_f32 {t[2:4]}, {t[2:4]}, {nm} op_sel_hi:[1,0]')
        k(f'v_cvt_pk_bf16_f32 {fr[i]}, {t[0]}, {t[1]}\nv_cvt_pk_bf16_f32 {fr[i + 1]}, {t[2]}, {t[3]}')
    k(f'{nocenter}:')
    T = k.s(); j = k.s(); dst = k.s(); step = k.s(); rot = k.s()
    k(f's_lshl_b32 {T}, {blkB}, 2\ns_add_u32 {T}, {T}, {s_w}')
    k(f's_mul_hi_u32 {j}, {T}, {(1 << 32) // 6 + 1}\ns_mul_i32 {dst}, {j}, 6\ns_sub_u32 {dst}, {T}, {dst}\ns_lshl_b32 {dst}, {dst}, 10')
    k(f's_mul_i32 {step}, {j}, 110592\ns_add_u32 {dst}, {dst}, {step}')
    k(f's_mul_i32 {rot}, {j}, 3\ns_sub_u32 {rot}, 18, {rot}\ns_cmp_eq_u32 {rot}, 18\ns_cselect_b32 {rot}, 0, {rot}')
    k(f's_cmp_eq_u32 {modeB}, 1\ns_cselect_b32 {rot}, {rot}, 0\ns_cselect_b32 {step}, 0, {O_W2F - O_W1F}\ns_add_u32 {dst}, {dst}, {step}\ns_add_u32 {dst}, {dst}, {O_W1F}')
    k(f's_mul_i32 {j}, {T}, 18432\ns_add_u32 {j}, {j}, {O_W3F}')
    k(f's_cmp_eq_u32 {modeB}, 4\ns_cselect_b32 {step}, {O_W4F - O_W3F + 256 * 18432}, 0\ns_add_u32 {j}, {j}, {step}')
    k(f's_cmp_ge_u32 {modeB}, 3\ns_cselect_b32 {dst}, {j}, {dst}\ns_cselect_b32 {step}, 1, 6\ns_lshl_b32 {step}, {step}, 10')
    cj.store(fr, None, Rws, dst, step, s_rot=rot)
    k(f's_cmp_lg_u32 {modeB}, 1\ns_cbranch_scc1 {L_C}')
    sk = k.label('nosig')
    k(f's_waitcnt vmcnt(0)\ns_barrier\ns_cmp_lg_u32 {s_w}, 0\ns_cbranch_scc1 {sk}')
    signal(2, 9)
    k(f'{sk}:')
    lp, ok = k.label('pollm'), k.label('gotm')
    k(f'{lp}:\nbuffer_load_dword {t[0]}, {zero[0]}, {Rdbg}, 0 offen offset:196 sc1\ns_waitcnt vmcnt(0)\nv_readfirstlane_b32 {st}, {t[0]}')
    k(f's_cmp_ge_u32 {st}, 1\ns_cbranch_scc1 {ok}\ns_sleep 4\ns_add_u32 {cnt}, {cnt}, 1\ns_cmp_lt_u32 {cnt}, {SPIN_MAX}\ns_cbranch_scc1 {lp}\ns_branch {END}\n{ok}:'); vm.reset()
    k(f'v_and_b32 {t[0]}, 1, {m}\nv_xor_b32 {t[0]}, 1, {t[0]}\nv_mul_u32_u24 {t[0]}, 1152, {t[0]}\nv_lshl_add_u32 {t[0]}, {q}, 4, {t[0]}\ns_mov_b32 {st}, {O_MODB}')
    ids = [vm.op(f'buffer_load_dwordx4 {sv.sub(4 * s, 4)}, {t[0]}, {Rws}, {st} offen offset:{64 * s} sc1') for s in range(18)]
    k(f's_lshr_b32 {j}, {T}, 1\ns_lshl_b32 {j}, {j}, 7\ns_and_b32 {st}, {T}, 1\ns_lshl_b32 {st}, {st}, 4\ns_add_u32 {j}, {j}, {st}\ns_add_u32 {j}, {j}, {O_MODF + 6 * 2304}')
    k(f'v_lshrrev_b32 {t[1]}, 2, {m}\nv_and_b32 {t[2]}, 3, {m}\nv_lshlrev_b32 {t[2]}, 2, {t[2]}\nv_lshl_add_u32 {t[1]}, {t[1]}, 5, {t[2]}')
    for s in range(18):
        vm.wait(ids[s])
        k(f'v_mfma_f32_16x16x32_bf16 {acc}, {sv.sub(4 * s, 4)}, {fr.sub(4 * s, 4)}, {"0" if s == 0 else acc}')
    k(f's_mov_b64 exec, 0xffff\nbuffer_store_dword {acc[0]}, {t[1]}, {Rws}, {j} offen sc1\nbuffer_store_dword {acc[1]}, {t[1]}, {Rws}, {j} offen offset:2304 sc1\ns_mov_b64 exec, -1')
    k(f'{L_C}:'); SP(13)
    code_prefetch(k, None, NEXT, END, 40000, 'v0', pf, pfs)
    k(f's_branch {NEXT}')

TAB, KD, WSTR = 0, 17408, 19072
HB = 4 * WSTR
HSTR = 4608

def conv(k, P, lane, s_w, END, NEXT, dump, SP):
    vm, lg = trackers(k)
    cidx = k.s(); s_d = k.s(); st = k.s(); st2 = k.s(); sav = k.s(2)
    k(f's_and_b32 {cidx}, s2, 7\ns_mul_i32 {cidx}, {cidx}, 18\ns_lshr_b32 {st}, s2, 3\ns_add_u32 {cidx}, {cidx}, {st}\ns_sub_u32 {cidx}, {cidx}, 14')
    k(f's_lshl_b32 {s_d}, {cidx}, 2\ns_add_u32 {s_d}, {s_d}, {s_w}\ns_lshl_b32 {st}, {cidx}, 3')
    sdt = k.s(2); sD = k.s(2)
    k(f's_load_dwordx2 {sdt}, {P["logdt"]}, {st}\ns_load_dwordx2 {sD}, {P["Dskip"]}, {st}')
    R = k.s(4); Rws = k.s(4); Rdbg = k.s(4)
    par = k.v(4); t = k.v(8); x = k.v(16)
    k(f'v_lshlrev_b32 {t[0]}, 2, {lane}\ns_lshl_b32 {st2}, {s_d}, 8')
    for i, n in enumerate(('logA', 'Aim', 'Cr', 'Ci')):
        srd(k, R, P[n], D * 128 * 2)
        ipar = vm.op(f'buffer_load_dword {par[i]}, {t[0]}, {R}, {st2} offen')
    code_prefetch(k, vm, 'k1_conv', NEXT, 20000, 'v0', k.v(2), k.s(2), back=True)
    srd(k, Rws, P['ws'], WS_USED); srd(k, Rdbg, P['dbg'], 256)
    wb = k.s(); k(f's_mul_i32 {wb}, {s_w}, {WSTR}')
    q = k.v(); m = k.v(); ag = k.v(); am = k.v(); a4 = k.v(); fl_v = k.v(2)
    k(f'v_lshrrev_b32 {q}, 4, {lane}\nv_and_b32 {m}, 15, {lane}')
    ga = k.v(32); cst = k.v()
    k(f's_add_u32 {st2}, {wb}, {KD - 2 * (134 * 128 - 128)}\nv_mov_b32 {cst}, {st2}')
    k(f'v_lshlrev_b32 {t[2]}, 3, {lane}\nv_cvt_f32_u32 {t[2]}, {t[2]}')
    for c in range(4):
        for e in range(0, 8, 2):
            k(f'v_add_f32 {t[4]}, {fl(512 * c + e)}, {t[2]}\nv_add_f32 {t[5]}, {fl(512 * c + e + 1)}, {t[2]}\nv_cvt_pk_bf16_f32 {t[4]}, {t[4]}, {t[5]}')
            k(f'v_mad_u32_u16 {ga[8 * c + e]}, {t[4]}, 2, {cst}\nv_mad_u32_u16 {ga[8 * c + e + 1]}, {t[4]}, 2, {cst} op_sel:[1,0,0,0]')
    k(f's_add_u32 {st2}, {wb}, {KD}\nv_lshl_add_u32 {t[4]}, {lane}, 4, {st2}\nv_cmp_gt_u32 vcc, 16, {lane}')
    for e in range(8): k(f'v_add_u32 {t[5]}, {2 * e}, {t[4]}\nv_cndmask_b32 {ga[e]}, {ga[e]}, {t[5]}, vcc')
    VM = vmaps()
    kda = k.v(4)
    k(f'v_lshlrev_b32 {t[2]}, 2, {m}')
    for s in range(4):
        lut = sum((VM[s][j] >> s) << (4 * j) for j in range(16))
        base = 0 if s == 0 else 128 + 128 * s
        k(f's_mov_b32 {sav[0]}, {lut & 0xffffffff}\ns_mov_b32 {sav[1]}, {lut >> 32}\nv_lshrrev_b64 {t[4:6]}, {t[2]}, {sav}\nv_and_b32 {t[4]}, 15, {t[4]}')
        k(f'v_lshl_add_u32 {t[4]}, {q}, 6, {t[4]}\ns_add_u32 {st2}, {wb}, {KD + 2 * base}\nv_lshl_add_u32 {kda[s]}, {t[4]}, 1, {st2}')
    cst.release()
    atw = k.v(); atr = k.v()
    k(f'v_lshl_add_u32 {atw}, {lane}, 3, {wb}\nv_mul_u32_u24 {atr}, 544, {m}\nv_lshl_add_u32 {atr}, {q}, 4, {atr}\nv_add_u32 {atr}, {wb}, {atr}')
    z4 = k.v(4)
    for i in range(4): k(f'v_mov_b32 {z4[i]}, 0')
    k(f'v_lshrrev_b32 {t[4]}, 5, v0\nv_mul_u32_u24 {t[4]}, {HSTR}, {t[4]}\nv_and_b32 {t[5]}, 31, v0\nv_lshl_add_u32 {t[4]}, {t[5]}, 4, {t[4]}\nv_add_u32 {t[4]}, {HB}, {t[4]}')
    k(f'v_cmp_gt_u32 vcc, 128, v0\ns_and_saveexec_b64 {sav}, vcc\nds_write_b128 {t[4]}, {z4}\ns_mov_b64 exec, {sav}')
    k('s_waitcnt lgkmcnt(0)')
    k(f's_lshl_b32 {st2}, {s_w}, 4\ns_lshr_b64 {sdt}, {sdt}, {st2}\ns_lshl_b32 {sdt[0]}, {sdt[0]}, 16')
    dt = k.v(); ks = k.v()
    k(f'v_mov_b32 {dt}, {fl(LOG2E)}\nv_mul_f32 {dt}, {sdt[0]}, {dt}\nv_exp_f32 {dt}, {dt}\nv_cvt_pk_bf16_f32 {dt}, {dt}, {dt}\nv_and_b32 {dt}, 0xffff0000, {dt}')
    SP(1); vm.wait(ipar); SP(2)
    pr = lambda: [k.v(2), k.v(2)]
    w1, w16, U = pr(), pr(), pr()
    er = k.v(2); rev = k.v(2)
    un = lambda d, s_, hi: f'v_and_b32 {d}, 0xffff0000, {s_}' if hi else f'v_lshlrev_b32 {d}, 16, {s_}'
    for md in range(2):
        k(un(er[md], par[0], md)); k(un(rev[md], par[1], md)); k(un(U[0][md], par[2], md)); k(un(U[1][md], par[3], md))
    for md in range(2): k(f'v_mul_f32 {er[md]}, {fl(LOG2E)}, {er[md]}')
    for md in range(2): k(f'v_exp_f32 {er[md]}, {er[md]}')
    k(f'v_max3_f32 {t[0]}, |{U[0][0]}|, |{U[0][1]}|, |{U[1][0]}|\nv_max_f32 {t[0]}, |{U[1][1]}|, {t[0]}')
    k(f'v_cvt_pk_bf16_f32 {t[1]}, {er[0]}, {er[1]}')
    for mm in ('quad_perm:[1,0,3,2]', 'quad_perm:[2,3,0,1]', 'row_half_mirror', 'row_mirror'):
        k(f'v_max_f32_dpp {t[0]}, {t[0]}, {t[0]} {mm} row_mask:0xf bank_mask:0xf')
    for md in range(2):
        k(un(er[md], t[1], md))
        k(f'v_mul_f32 {er[md]}, {er[md]}, {dt}\nv_mul_f32 {rev[md]}, {rev[md]}, {dt}')
        k(f'v_mul_f32 {er[md]}, {fl(-LOG2E)}, {er[md]}\nv_mul_f32 {rev[md]}, 0.15915494, {rev[md]}')
    k(f'v_readlane_b32 {st2}, {t[0]}, 0\nv_readlane_b32 {sav[0]}, {t[0]}, 16\nv_readlane_b32 {sav[1]}, {t[0]}, 32\nv_readlane_b32 {st}, {t[0]}, 48')
    k(f's_max_u32 {st2}, {st2}, {sav[0]}\ns_max_u32 {st}, {st}, {sav[1]}\ns_max_u32 {st2}, {st2}, {st}')
    for w_, mul in ((w1, None), (w16, '16.0')):
        for md in range(2):
            a, b = t[2 + md], t[4 + md]
            if mul: k(f'v_mul_f32 {a}, {fl(16.)}, {er[md]}\nv_mul_f32 {b}, {fl(16.)}, {rev[md]}\nv_fract_f32 {b}, {b}\nv_exp_f32 {a}, {a}')
            else: k(f'v_fract_f32 {b}, {rev[md]}\nv_exp_f32 {a}, {er[md]}')
            k(f'v_cos_f32 {w_[0][md]}, {b}\nv_sin_f32 {w_[1][md]}, {b}')
        for c in range(2): k(f'v_pk_mul_f32 {w_[c]}, {w_[c]}, {t[2:4]}')
    k(f'v_frexp_exp_i32_f32 {t[0]}, {st2}\nv_sub_u32 {t[1]}, 8, {t[0]}\nv_add_u32 {t[0]}, -7, {t[0]}\nv_ldexp_f32 {ks}, {dt}, {t[0]}')
    for md in range(2):
        for c in range(2): k(f'v_ldexp_f32 {U[c][md]}, {U[c][md]}, {t[1]}')
    er.release(); rev.release(); dt.release()
    tm = [k.v(2) for _ in range(4)]
    def cmul(d, z, s_, ta, tb):
        return [f'v_pk_mul_f32 {ta}, {z[1]}, {s_[1]}', f'v_pk_mul_f32 {tb}, {z[0]}, {s_[1]}',
                f'v_pk_fma_f32 {d[0]}, {z[0]}, {s_[0]}, {ta} neg_lo:[0,0,1] neg_hi:[0,0,1]', f'v_pk_fma_f32 {d[1]}, {z[1]}, {s_[0]}, {tb}']
    w32, w64, w128, w2, w4, w8, V = pr(), pr(), pr(), pr(), pr(), pr(), pr()
    for d_, s_ in ((w32, w16), (w64, w32), (w128, w64)):
        for x_ in cmul(d_, s_, s_, tm[0], tm[1]): k(x_)
    pv = [k.v(2), k.v(2)]; pu = [k.v(2), k.v(2)]
    fa = k.v(32, 4); fb = k.v(32, 4); kacc = k.v(16, 4)
    state = {'V': None, 'nv': 0, 'nu': 0}
    def v_entry(val, slot):
        out = []
        pk = pv[state['nv'] & 1]; state['nv'] += 1
        if val == 0:
            out += [f'v_mov_b32 {pk[0]}, 0x3c00', f'v_mov_b32 {pk[1]}, 0x3c00']
        else:
            if val == 1: cur = w1
            else:
                step = w1 if val <= 16 else w2 if val <= 32 else w4 if val <= 64 else w8
                cur = {2: w2, 4: w4, 8: w8}.get(val, V)
                out += cmul(cur, state['V'], step, tm[0], tm[1])
            state['V'] = cur
            out += [f'v_cvt_pk_f16_f32 {pk[md]}, {cur[0][md]}, {cur[1][md]}' for md in range(2)]
        out.append(('ds', f'ds_write_b64 {atw}, {pk} offset:{TAB + slot * 544}'))
        return out
    def u_entry(val, row):
        out = []
        pk = pu[state['nu'] & 1]; state['nu'] += 1
        if val:
            step = w16 if val <= 256 else w32 if val <= 512 else w64 if val <= 1024 else w128
            out += cmul(U, U, step, tm[2], tm[3])
        out += [f'v_cvt_pk_f16_f32 {pk[md]}, {U[0][md]}, -{U[1][md]}' for md in range(2)]
        out.append(('ds', f'ds_write_b64 {atw}, {pk} offset:{TAB + (16 + row) * 544}'))
        return out
    def put(x_):
        if isinstance(x_, tuple): return lg.op(x_[1])
        k(x_)
    pend = []
    flag_ld = f'buffer_load_dwordx2 {fl_v}, {z4[0]}, {Rdbg}, 0 offen offset:192 sc1'
    ifl = None
    for s in range(4):
        vs = sorted((VM[s][j], j) for j in range(16) if s == 0 or VM[s][j] != VM[s - 1][j])
        us = [16 * u for u in range(16)] if s == 0 else [(128 << s) + (16 << s) * u for u in range(9 if s == 3 else 8)]
        sv_ = [x_ for val, j in vs for x_ in v_entry(val, j)]
        su_ = [x_ for r_, val in enumerate(us) for x_ in u_entry(val, r_)]
        stream = interleave(sv_, su_)
        for n_, x_ in enumerate(stream):
            put(x_)
            if n_ == 27:
                while pend:
                    idr, mf = pend.pop(0); lg.wait(idr); k(mf)
            if s == 3 and n_ == 40: k(flag_ld)
        assert not pend
        for kk in range(8):
            lg.op(f'ds_read_b128 {fa.sub(4 * kk, 4)}, {atr} offset:{TAB + 16 * 544 + 64 * kk}')
            i_ = lg.op(f'ds_read_b128 {fb.sub(4 * kk, 4)}, {atr} offset:{TAB + 64 * kk}')
            ac = kacc.sub(4 * s, 4)
            pend.append((i_, f'v_mfma_f32_16x16x32_f16 {ac}, {fa.sub(4 * kk, 4)}, {fb.sub(4 * kk, 4)}, {"0" if kk == 0 else ac}'))
    for x_ in (w1, w16, w32, w64, w128, w2, w4, w8, V, U, tm, pv, pu):
        for y_ in x_: y_.release()
    sg = k.v(8, 2); md_ = k.v(16, 4); cnt = k.s()
    def kd_out(s):
        ac = kacc.sub(4 * s, 4)
        for e in range(4): k(f'v_mul_f32 {ac[e]}, {ks}, {ac[e]}')
        k(f'v_cvt_pk_bf16_f32 {ac[0]}, {ac[0]}, {ac[1]}\nv_cvt_pk_bf16_f32 {ac[2]}, {ac[2]}, {ac[3]}')
        for e in range(4): lg.op(f'ds_write_b16{"_d16_hi" if e & 1 else ""} {kda[s]}, {ac[e & 2]} offset:{32 * e}')
    for s in range(3): kd_out(s)
    SP(3); lg.reset() if SP.on else None
    got = k.s()
    def row_loads():
        k(f's_lshl_b32 {st}, {cidx}, 14\ns_add_u32 {st}, {st}, {O_XT}')
        for i in range(4):
            k(f'buffer_load_dwordx4 {x.sub(4 * i, 4)}, {ag}, {Rws}, {st} offen sc1')
            if i < 3: k(f's_add_u32 {st}, {st}, 4096')
        k(f's_mov_b32 {st}, {O_STATS}\ns_mov_b32 {st2}, {O_STATS + 4096}')
        for i in range(4): k(f'buffer_load_dwordx2 {sg.sub(2 * i, 2)}, {am}, {Rws}, {(st, st2)[i // 2]} offen offset:{2048 * (i & 1)} sc1')
    def spin(i):
        lp, ok = k.label('poll'), k.label('go')
        k(f'{lp}:\nv_readfirstlane_b32 {st}, {fl_v[i]}\ns_cmp_ge_u32 {st}, 1\ns_cbranch_scc1 {ok}')
        k(f'{flag_ld}\ns_add_u32 {cnt}, {cnt}, 1\ns_cmp_lt_u32 {cnt}, {SPIN_MAX}\ns_waitcnt vmcnt(0)\ns_cbranch_scc1 {lp}\ns_branch {END}\n{ok}:')
    late = k.label('late')
    k(f'v_lshlrev_b32 {ag}, 4, v0\nv_lshlrev_b32 {am}, 3, v0\nv_lshlrev_b32 {a4}, 2, v0\ns_mov_b32 {cnt}, 0\ns_waitcnt vmcnt(0)')
    k(f'v_readfirstlane_b32 {got}, {fl_v[0]}\ns_cmp_eq_u32 {got}, 0\ns_cbranch_scc1 {late}')
    row_loads()
    k(f'{late}:')
    while pend:
        idr, mf = pend.pop(0); lg.wait(idr); k(mf)
    kd_out(3)
    kc = fa.sub(0, 16); pvv = fa.sub(16, 8)
    gid = [lg.op(f'ds_read_u16 {ga[e]}, {ga[e]}') for e in range(32)]
    aw = kda[0]; ap = kda[1]
    k(f'v_lshl_add_u32 {aw}, {lane}, 4, {wb}\nv_lshrrev_b32 {ap}, 1, {lane}\nv_mul_u32_u24 {ap}, 4160, {ap}\nv_and_b32 {t[1]}, 1, {lane}')
    k(f'v_lshl_add_u32 {ap}, {t[1]}, 4, {ap}\nv_add_u32 {ap}, {wb}, {ap}')
    k(f's_mov_b64 exec, 0xff'); lg.op(f'ds_write_b128 {ap}, {z4}'); k('s_mov_b64 exec, -1')
    for c in range(4):
        lg.wait(gid[8 * c + 7])
        for e in range(4): k(f'v_lshl_or_b32 {kc[4 * c + e]}, {ga[8 * c + 2 * e + 1]}, 16, {ga[8 * c + 2 * e]}')
        lg.op(f'ds_write_b128 {aw}, {kc.sub(4 * c, 4)} offset:{32 + 1024 * c}')
    ids = [lg.op(f'ds_read_b64 {pvv.sub(2 * c, 2)}, {aw} offset:{24 + 1024 * c}') for c in range(4)]
    k(flag_ld)
    for c in range(4):
        lg.wait(ids[c])
        o = fb.sub(12 * (c & 1), 12); d_ = kc.sub(4 * c, 4); p0, p1 = pvv[2 * c], pvv[2 * c + 1]
        seq = [p0, p1, d_[0], d_[1], d_[2], d_[3]]
        o3 = o.sub(0, 4); o1 = o.sub(4, 4); o2 = o.sub(8, 4)
        for i in range(4): k(f'v_alignbit_b32 {o3[i]}, {seq[i + 1]}, {seq[i]}, 16')
        for i in range(3): k(f'v_mov_b32 {o1[i]}, {o3[i + 1]}')
        k(f'v_alignbit_b32 {o1[3]}, {seq[5]}, {seq[4]}, 16')
        for i in range(4): k(f'v_mov_b32 {o2[i]}, {seq[i + 1]}')
        for r_, oo in ((1, o1), (2, o2), (3, o3)): lg.op(f'ds_write_b128 {aw}, {oo} offset:{4160 * r_ + 32 + 1024 * c}')
    if dump:
        k(f's_lshl_b32 {st}, {s_d}, 12\ns_add_u32 {st}, {st}, {O_DBG}\nv_lshlrev_b32 {t[1]}, 4, {lane}')
        for c in range(4): vm.op(f'buffer_store_dwordx4 {kc.sub(4 * c, 4)}, {t[1]}, {Rws}, {st} offen offset:{1024 * c}')
    ga.release(); acc = k.v(32, 4); kacc.release(); ks.release(); atw.release(); atr.release()
    SP(4); lg.reset() if SP.on else None
    have = k.label('have')
    k(f's_waitcnt vmcnt(0)\ns_cmp_lg_u32 {got}, 0\ns_cbranch_scc1 {have}')
    spin(0); row_loads()
    k(f'{have}:')
    spin(1)
    SP(14); lg.reset() if SP.on else None
    k(f's_lshl_b32 {st}, {cidx}, 4\ns_add_u32 {st}, {st}, {O_MODF}\ns_add_u32 {st2}, {st}, 4608')
    for i, (sr, off) in enumerate(((st, 0), (st, 2304), (st2, 0))): vm.op(f'buffer_load_dwordx4 {md_.sub(4 * i, 4)}, {z4[0]}, {Rws}, {sr} offen offset:{off} sc1')
    k(f's_add_u32 {st2}, {st2}, 4608')
    vm.op(f'buffer_load_dwordx4 {md_.sub(12, 4)}, {z4[0]}, {Rws}, {st2} offen sc1')
    k('s_waitcnt vmcnt(4)')
    SP(5)
    xf = k.v(32); hf = k.v(32); st_ = k.v(16)
    for i in range(8): k(f'v_and_b32 {st_[2 * i]}, 0xffff0000, {sg[i]}\nv_lshlrev_b32 {st_[2 * i + 1]}, 16, {sg[i]}')
    for i in range(8): k(f'v_rcp_f32 {st_[2 * i]}, {st_[2 * i]}')
    for i in range(16): k(f'v_lshlrev_b32 {xf[2 * i]}, 16, {x[i]}\nv_and_b32 {xf[2 * i + 1]}, 0xffff0000, {x[i]}')
    for i in range(8): k(f'v_mul_f32 {st_[2 * i + 1]}, -{st_[2 * i + 1]}, {st_[2 * i]}')
    k(f'v_add_u32 {am}, {HB + 512}, {a4}')
    for j in range(16): k(f'v_pk_fma_f32 {hf.sub(2 * j, 2)}, {xf.sub(2 * j, 2)}, {st_.sub(2 * (j // 2), 2)}, {st_.sub(2 * (j // 2), 2)} op_sel:[0,0,1] op_sel_hi:[1,0,1]')
    vm.all()
    for i in range(4):
        for j in range(4 * i, 4 * i + 4): k(f'v_pk_fma_f32 {hf.sub(2 * j, 2)}, {hf.sub(2 * j, 2)}, {md_.sub(4 + 2 * (j & 1), 2)}, {md_.sub(2 * (j & 1), 2)}')
        for c in range(4): k(f'v_cvt_pk_bf16_f32 {x[4 * i + c]}, {hf[8 * i + c]}, {hf[8 * i + 4 + c]}')
        for c in range(4): lg.op(f'ds_write_b32 {am}, {x[4 * i + c]} offset:{HSTR * c + 1024 * i}')
    st_.release(); sg.release()
    aA = kda[2]; aB = kda[3]
    k(f'v_bfe_u32 {t[0]}, {lane}, 2, 2\nv_mul_u32_u24 {aA}, 4160, {t[0]}\nv_and_b32 {t[0]}, 3, {lane}\nv_lshl_add_u32 {aA}, {t[0]}, 3, {aA}')
    k(f'v_lshlrev_b32 {t[0]}, 4, {q}\nv_sub_u32 {aA}, {aA}, {t[0]}\ns_add_u32 {st}, {wb}, 56\nv_add_u32 {aA}, {st}, {aA}')
    k(f's_mul_i32 {st}, {s_w}, {HSTR}\ns_add_u32 {st}, {st}, {HB + 480}\nv_lshl_add_u32 {aB}, {m}, 5, {t[0]}\nv_add_u32 {aB}, {st}, {aB}')
    lg.all(); k('s_barrier'); SP(6)
    fa2 = k.a(32, 4); fb2 = k.a(32, 4)
    sets = [(fa, fb), (fa2, fb2)]
    k(f'v_add_u32 {aB}, -448, {aB}')
    def reads(r_):
        A_, B_ = sets[r_ & 1]; out = []
        for i in range(8):
            out.append(f'ds_read_b128 {B_.sub(4 * i, 4)}, {aB} offset:{448 - 64 * r_ + 512 * i}')
            out.append(f'ds_read_b64_tr_b16 {A_.sub(4 * i, 2)}, {aA} offset:{64 * r_ + 8 + 512 * i}')
            out.append(f'ds_read_b64_tr_b16 {A_.sub(4 * i + 2, 2)}, {aA} offset:{64 * r_ + 512 * i}')
        return out
    cur = [lg.op(x_) for x_ in reads(0)]
    for r_ in range(8):
        rd = reads(r_ + 1) if r_ < 7 else []
        A_, B_ = sets[r_ & 1]; nxt = []
        order = [(i, tt) for i in range(8) for tt in range(i, 8)] if r_ else sorted(((i, tt) for i in range(8) for tt in range(i, 8)), key=lambda p: (max(p[0], p[1] - p[0]), p))
        seen = set()
        for i, tt in order:
            lg.wait(max(cur[3 * i + 2], cur[3 * (tt - i)]))
            first = r_ == 0 and tt not in seen; seen.add(tt)
            k(f'v_mfma_f32_16x16x32_bf16 {acc.sub(4 * tt, 4)}, {A_.sub(4 * i, 4)}, {B_.sub(4 * (tt - i), 4)}, {"0" if first else acc.sub(4 * tt, 4)}')
            if rd: nxt.append(lg.op(rd.pop(0)))
        cur = nxt
    SP(7)
    k(f'v_lshlrev_b32 {t[0]}, 3, {q}\nv_lshl_add_u32 {t[0]}, {m}, 5, {t[0]}\nv_add_u32 {t[0]}, {wb}, {t[0]}')
    for tt in range(8):
        o = fa.sub(2 * tt, 2)
        k(f'v_cvt_pk_bf16_f32 {o[0]}, {acc[4 * tt]}, {acc[4 * tt + 1]}\nv_cvt_pk_bf16_f32 {o[1]}, {acc[4 * tt + 2]}, {acc[4 * tt + 3]}')
        k(f'ds_write_b64 {t[0]}, {o} offset:{512 * tt}')
    dv = t.sub(4, 4)
    k(f's_lshl_b32 {st}, {sD[0]}, 16\ns_and_b32 {st2}, {sD[0]}, 0xffff0000\nv_mov_b32 {dv[0]}, {st}\nv_mov_b32 {dv[1]}, {st2}')
    k(f's_lshl_b32 {st}, {sD[1]}, 16\ns_and_b32 {st2}, {sD[1]}, 0xffff0000\nv_mov_b32 {dv[2]}, {st}\nv_mov_b32 {dv[3]}, {st2}')
    k('s_waitcnt lgkmcnt(0)\ns_barrier')
    lg.reset()
    yp = fb.sub(0, 16); yf = acc; o = fa
    ids = [[lg.op(f'ds_read_b32 {yp[4 * i + c]}, {a4} offset:{WSTR * c + 1024 * i}') for c in range(4)] for i in range(4)]
    k(f's_lshl_b32 {st}, {cidx}, 15\ns_lshl_b32 {st2}, {s_w}, 11\ns_add_u32 {st}, {st}, {st2}\ns_add_u32 {st}, {st}, {O_X2}')
    k(f's_add_u32 {st2}, {wb}, 4096\nv_lshl_add_u32 {am}, {lane}, 5, {st2}\nv_lshl_add_u32 {a4}, {lane}, 4, {st2}\nv_lshlrev_b32 {ag}, 4, {lane}')
    odd, fin = k.label('odd'), k.label('fin')
    for i in range(4):
        lg.wait(ids[i][3])
        for c in range(4): k(f'v_lshlrev_b32 {yf[8 * i + c]}, 16, {yp[4 * i + c]}\nv_and_b32 {yf[8 * i + 4 + c]}, 0xffff0000, {yp[4 * i + c]}')
        for j in range(4 * i, 4 * i + 4): k(f'v_pk_fma_f32 {yf.sub(2 * j, 2)}, {hf.sub(2 * j, 2)}, {dv.sub(2 * (j & 1), 2)}, {yf.sub(2 * j, 2)}')
        for j in range(4 * i, 4 * i + 4): k(f'v_pk_fma_f32 {yf.sub(2 * j, 2)}, {yf.sub(2 * j, 2)}, {md_.sub(8 + 2 * (j & 1), 2)}, {xf.sub(2 * j, 2)}')
        for j in range(4 * i, 4 * i + 4): k(f'v_pk_mul_f32 {xf.sub(2 * j, 2)}, {yf.sub(2 * j, 2)}, {md_.sub(12 + 2 * (j & 1), 2)}')
    k(f's_bitcmp1_b32 {cidx}, 0\ns_cbranch_scc1 {odd}')
    for par_ in range(2):
        A_, B_ = (yf, xf) if par_ == 0 else (xf, yf)
        for r_ in range(8):
            for c in range(2):
                k(f'v_cvt_pk_bf16_f32 {o[4 * r_ + c]}, {A_[4 * r_ + 2 * c]}, {A_[4 * r_ + 2 * c + 1]}')
                k(f'v_cvt_pk_bf16_f32 {o[4 * r_ + 2 + c]}, {B_[4 * r_ + 2 * c]}, {B_[4 * r_ + 2 * c + 1]}')
            k(f'ds_write_b128 {am}, {o.sub(4 * r_, 4)} offset:{2048 * (r_ >> 1) + 16 * (r_ & 1)}')
        if par_ == 0: k(f's_branch {fin}\n{odd}:')
    k(f'{fin}:'); lg.reset()
    ids = [lg.op(f'ds_read_b128 {fb.sub(4 * r_, 4)}, {a4} offset:{1024 * r_}') for r_ in range(8)]
    for r_ in range(8):
        lg.wait(ids[r_])
        k(f'buffer_store_dwordx4 {fb.sub(4 * r_, 4)}, {ag}, {Rws}, {st} offen offset:{1024 * (r_ & 1)} sc1')
        if r_ & 1 and r_ < 7: k(f's_add_u32 {st}, {st}, 8192')
```

```python
from common import *

K2_LDS = 159744
W2X = 122880
WBUF, TABS = 0, 110592
T_B, T_F = TABS, TABS + 7168
XBUF, HBUF = 0, 73728
SPIN_MAX = 40000
GC1 = -2.0 * LOG2E * 0.7978845608028654
GC2 = GC1 * 0.044715
PI = [0, 1, 2, 3, 5, 6, 7, 9, 10, 11, 12, 14, 15, 16, 4, 8, 13, 17]
MF = 'v_mfma_f32_16x16x32_bf16'

def un(d, s_, hi): return f'v_and_b32 {d}, 0xffff0000, {s_}' if hi else f'v_lshlrev_b32 {d}, 16, {s_}'

def gelu_consts(k, sig, c):
    k(f'v_mov_b32 {c[2]}, {sig}\nv_rcp_f32 {c[0]}, {sig}')
    k(f'v_mul_f32 {c[1]}, {c[0]}, {c[0]}\nv_mul_f32 {c[1]}, {c[1]}, {c[0]}')
    k(f'v_mul_f32 {c[0]}, {fl(GC1)}, {c[0]}\nv_mul_f32 {c[1]}, {fl(GC2)}, {c[1]}')

def phase2(k, P, lane, s_w, END, SP, opt=()):
    stamps = SP.on
    WFL = ' sc1'
    PFL = ' '.join(o[2:] for o in opt if o.startswith('p_')) or 'sc1'
    q = k.v(); m = k.v(); l16 = k.v(); one = k.v(); zero = k.v(); fv4 = k.v(8, 4)
    Rws = k.s(4); RG = k.s(4); RW = k.s(4)
    srd(k, RG, P['dbg'], 256)
    k(f'v_mov_b32 {one}, 1\nv_mov_b32 {zero}, 0')
    go_ld = f'buffer_load_dwordx4 {fv4[0:4]}, {zero}, {RG}, 0 offen offset:192 sc1'
    k(go_ld)
    k(f'v_lshrrev_b32 {q}, 4, {lane}\nv_and_b32 {m}, 15, {lane}\nv_lshlrev_b32 {l16}, 4, {lane}')
    rb = k.s(); jm = k.s(); mb = k.s(); fs = k.s(); st = k.s(); st1 = k.s(); sav = k.s(2); cnt = k.s(); mt = k.s(); resf = k.s()
    k(f's_and_b32 {st}, s2, 1\ns_lshl_b32 {mb}, {st}, 4\ns_bfe_u32 {st}, s2, 0x20001\ns_lshl_b32 {fs}, {st}, 1\ns_lshl_b32 {rb}, {st}, 2\ns_add_u32 {rb}, {rb}, {mb}')
    k(f's_bfe_u32 {st}, s2, 0x20003\ns_add_u32 {rb}, {rb}, {st}\ns_lshr_b32 {jm}, s2, 5\ns_sub_u32 {jm}, {jm}, 2')
    k(f's_bfe_u32 {st}, s2, 0x40003\ns_add_u32 {mb}, {mb}, {st}\ns_lshr_b32 {st}, s2, 7\ns_add_u32 {fs}, {fs}, {st}')
    k(f's_lshl_b32 {mt}, {rb}, 2\ns_add_u32 {mt}, {mt}, {s_w}\ns_mov_b32 {cnt}, 0\ns_mov_b32 {resf}, 0')
    srd(k, Rws, P['ws'], WS_USED); srd(k, RW, P['ws'], WS_USED)
    vm, lg = trackers(k)
    def STAMP(i):
        if stamps: SP(i); lg.reset()
    def flag_add(s_idx, base):
        k(f's_lshl_b32 {st}, {s_idx}, 7\ns_add_u32 {st}, {st}, {base}\ns_mov_b64 exec, 1')
        vm.op(f'buffer_atomic_add {one}, {zero}, {Rws}, {st} offen sc1')
        k('s_mov_b64 exec, -1')
    def poll(vaddr, base, target, sleep=0):
        fv = k.v(); lp, ok = k.label('poll'), k.label('ok')
        k(f's_mov_b32 {st1}, {base}\n{lp}:\nbuffer_load_dword {fv}, {vaddr}, {Rws}, {st1} offen sc1\ns_waitcnt vmcnt(0)')
        k(f'v_cmp_gt_u32 vcc, {target}, {fv}\ns_cmp_eq_u64 vcc, 0\ns_cbranch_scc1 {ok}')
        if sleep: k(f's_sleep {sleep}')
        k(f's_add_u32 {cnt}, {cnt}, 1\ns_cmp_lt_u32 {cnt}, {SPIN_MAX}\ns_cbranch_scc1 {lp}\ns_branch {END}\n{ok}:')
        vm.reset(); fv.release()
    W = [k.a(72, 4), k.a(72, 4)]; vo = [l16] + [k.v() for _ in range(4)]
    for g in range(1, 5): k(f'v_add_u32 {vo[g]}, {4096 * g}, {l16}')
    sn = k.s(); s4 = k.s()
    k(f's_lshl_b32 {sn}, {fs}, 2\ns_add_u32 {sn}, {sn}, {s_w}\ns_mul_i32 {sn}, {sn}, {9 * 18432}\ns_add_u32 {s4}, {sn}, {O_W4F}\ns_add_u32 {sn}, {sn}, {O_W3F}')
    wld = lambda r_, ks: f'buffer_load_dwordx4 {W[r_].sub(4 * ks, 4)}, {vo[ks // 4]}, {RW}, {sn} offen offset:{1024 * (ks % 4)}' + WFL
    sm = k.s(); so = k.s(); so2 = k.s()
    k(f's_lshl_b32 {sm}, {s_w}, 10\ns_mul_i32 {so}, {jm}, 110592\ns_add_u32 {so}, {so}, {sm}\ns_add_u32 {so2}, {so}, {O_W2F}\ns_add_u32 {so}, {so}, {O_W1F}')
    def spin(ld, regs):
        lp, ok = k.label('spin'), k.label('up')
        k(f'{lp}:\ns_waitcnt vmcnt(0)\nv_mov_b32 {fv4[7]}, {regs[0]}')
        for r_ in regs[1:]: k(f'v_and_b32 {fv4[7]}, {fv4[7]}, {r_}')
        k(f'v_readfirstlane_b32 {st}, {fv4[7]}\ns_cmp_lg_u32 {st}, 0\ns_cbranch_scc1 {ok}')
        k(f'{ld}\ns_add_u32 {cnt}, {cnt}, 1\ns_cmp_lt_u32 {cnt}, {SPIN_MAX}\ns_cbranch_scc1 {lp}\ns_branch {END}\n{ok}:')
    spin(go_ld, [fv4[0], fv4[2]])
    k('s_waitcnt lgkmcnt(0)\ns_barrier')
    STAMP(15)
    def wdma(sreg, lds):
        k(f's_add_u32 m0, {sm}, {lds}')
        i_ = vm.op(f'buffer_load_dwordx4 {l16}, {Rws}, {sreg} offen sc1 lds')
        k(f's_add_u32 {sreg}, {sreg}, 4096')
        return i_
    na, nb = k.label('noarr'), k.label('notlast')
    k(f's_cmp_lg_u32 {s_w}, 0\ns_cbranch_scc1 {na}\ns_and_b32 {st1}, s2, 3\ns_lshl_b32 {st}, {st1}, 7\ns_add_u32 {st}, {st}, {O_FA}\ns_mov_b64 exec, 1')
    k(f'v_mov_b32 {fv4[4]}, 1\nbuffer_atomic_add {fv4[4]}, {zero}, {Rws}, {st} offen sc0 sc1\ns_lshl_b32 {st1}, {st1}, 2\ns_waitcnt vmcnt(0)')
    k(f'v_readfirstlane_b32 {st}, {fv4[4]}\ns_cmp_lg_u32 {st}, 63\ns_cbranch_scc1 {nb}')
    k(f'buffer_store_dword {one}, {zero}, {RG}, {st1} offen offset:208 sc1\n{nb}:\ns_mov_b64 exec, -1\n{na}:')
    go3_ld = f'buffer_load_dwordx4 {fv4[0:4]}, {zero}, {RG}, 0 offen offset:208 sc1'
    k('s_cmp_lt_u32 s2, 64\ns_cbranch_scc1 k2_idle')
    keepV, keepA, keepS = list(k.V.free), list(k.A.free), list(k.S.free)
    for n in range(27): wdma(so, WBUF + 4096 * n)
    k(go3_ld)
    spin(go3_ld, [fv4[i] for i in range(4)]); vm.reset()
    STAMP(0)

    XX = k.v(146, 2); t = fv4; row = k.v()
    k(f's_lshl_b32 {st}, {s_w}, 6\nv_add_u32 {t[2]}, {st}, {lane}')
    k(f'v_cmp_le_u32 vcc, 72, {t[2]}\nv_subrev_u32 {t[3]}, 72, {t[2]}\nv_cndmask_b32 {t[3]}, {t[2]}, {t[3]}, vcc\nv_add_u32 {t[3]}, 72, {t[3]}')
    k(f'v_cmp_le_u32 vcc, 144, {t[2]}\nv_subrev_u32 {t[4]}, 144, {t[2]}\nv_cndmask_b32 {t[3]}, {t[3]}, {t[4]}, vcc')
    k(f'v_cmp_le_u32 vcc, 216, {t[2]}\nv_subrev_u32 {t[4]}, 216, {t[2]}\nv_cndmask_b32 {t[3]}, {t[3]}, {t[4]}, vcc\nv_lshlrev_b32 {t[3]}, 4, {t[3]}')
    k(f's_add_u32 m0, {sm}, {T_B + 2304}\ns_mov_b32 {so}, {O_MODB}')
    vm.op(f'buffer_load_dwordx4 {t[3]}, {Rws}, {so} offen sc1 lds')
    k(f'v_add_u32 {t[4]}, 40, {lane}\nv_mul_u32_u24 {t[5]}, 43691, {t[2]}\nv_lshrrev_b32 {t[5]}, 20, {t[5]}\nv_mul_u32_u24 {t[6]}, 120, {t[5]}\nv_add_u32 {t[6]}, {t[6]}, {t[2]}')
    k(f's_cmp_eq_u32 {s_w}, 3\ns_cselect_b64 vcc, -1, 0\nv_cndmask_b32 {t[6]}, {t[6]}, {t[4]}, vcc\nv_lshlrev_b32 {t[6]}, 4, {t[6]}')
    k(f's_mul_i32 {so}, {jm}, 384\ns_add_u32 {so}, {so}, {O_MOD2}\ns_add_u32 {st}, {sm}, {T_F}\ns_cmp_eq_u32 {s_w}, 3')
    k(f's_cselect_b32 {so}, {O_MODB}, {so}\ns_cselect_b32 m0, {T_B + 2304 + 4096}, {st}')
    k(f's_cselect_b32 exec_hi, 0, -1')
    vm.op(f'buffer_load_dwordx4 {t[6]}, {Rws}, {so} offen sc1 lds')
    k('s_mov_b64 exec, -1')
    k(f's_lshl_b32 {st}, {mt}, 4\nv_add_u32 {row}, {st}, {m}')
    k(f'v_lshlrev_b32 {t[0]}, 16, {q}\nv_lshl_add_u32 {t[0]}, {row}, 4, {t[0]}\nv_add_u32 {t[1]}, 0x8000, {t[0]}')
    k(f's_mul_i32 {st1}, {jm}, 3')
    itab = vm.n
    w2lds = lambda n: (W2X + 4096 * n) if n < 9 else (WBUF + 4096 * (n - 9))
    ix = []; iw = []
    def issue(i):
        k(f's_lshl_b32 {st}, {st1}, 18\ns_add_u32 {st}, {st}, {O_X2}')
        vm.op(f'buffer_load_dwordx4 {XX.sub(8 * i, 4)}, {t[0]}, {Rws}, {st} offen sc1')
        ix.append(vm.op(f'buffer_load_dwordx4 {XX.sub(8 * i + 4, 4)}, {t[1]}, {Rws}, {st} offen sc1'))
        if i < 17: k(f's_add_u32 {st1}, {st1}, 1\ns_cmp_eq_u32 {st1}, 18\ns_cselect_b32 {st1}, 0, {st1}')
    AHEAD = 9
    for i in range(AHEAD): issue(i)
    ones = k.v(4, 4); sacc = k.v(4, 4); gacc = k.v(4, 4); tacc = k.v(4, 4); qacc = k.v(4, 4); acc = k.v(24, 4)
    for i in range(4): k(f'v_mov_b32 {ones[i]}, 0x3f803f80')
    k(f'v_lshlrev_b32 {t[2]}, 4, v0\nv_add_u32 {t[2]}, {T_B}, {t[2]}\nv_cmp_gt_u32 vcc, 144, v0\ns_and_saveexec_b64 {sav}, vcc')
    k(f'ds_write_b128 {t[2]}, {ones}\ns_mov_b64 exec, {sav}')
    msk = [k.s(2) for _ in range(3)]; bidx = k.v()
    k(f'v_and_b32 {t[2]}, 3, {m}')
    for e in range(3): k(f'v_cmp_eq_u32 {msk[e]}, {e + 1}, {t[2]}')
    aT = k.v(); aW = k.v(2); aW2 = k.v()
    k(f'v_min_u32 {t[2]}, 2, {t[2]}\nv_mul_u32_u24 {aT}, 2304, {t[2]}\nv_lshl_add_u32 {aT}, {q}, 4, {aT}\ns_mul_i32 {st}, {jm}, 192\ns_add_u32 {st}, {st}, {T_B}\nv_add_u32 {aT}, {st}, {aT}')
    k(f'v_lshrrev_b32 {t[2]}, 2, {m}\nv_lshl_add_u32 {t[2]}, {t[2]}, 4, {m}\nv_lshlrev_b32 {bidx}, 2, {t[2]}')
    k(f'v_add_u32 {aW2}, {W2X}, {l16}\nv_mov_b32 {aW[0]}, {l16}\nv_add_u32 {aW[1]}, {9 * 6144}, {l16}')
    TF = W[1]; WR = [k.a(24, 4), k.a(24, 4)]
    def w_reads(i):
        return [f'ds_read_b128 {WR[i & 1].sub(4 * tt, 4)}, {aW[i // 9]} offset:{WBUF + (i % 9) * 6144 + 1024 * tt}' for tt in range(6)]
    def w2_reads(i):
        a_, o_ = (aW2, 6144 * i) if i < 6 else (aW[(i - 6) // 9], WBUF + ((i - 6) % 9) * 6144)
        return [f'ds_read_b128 {WR[i & 1].sub(4 * tt, 4)}, {a_} offset:{o_ + 1024 * tt}' for tt in range(6)]
    k('s_waitcnt lgkmcnt(0)'); vm.wait(itab); k('s_barrier')
    STAMP(1)
    iwr = [lg.op(x_) for x_ in w_reads(0)]
    itf = [lg.op(f'ds_read_b128 {TF.sub(4 * i, 4)}, {aT} offset:{64 * i}') for i in range(18)]
    for i in range(18):
        lg.wait(itf[i]); k(f'{MF} {acc[4:8]}, {TF.sub(4 * i, 4)}, {TF.sub(4 * i, 4)}, {"0" if i == 0 else acc[4:8]}')
    cs = k.s(5, 1)
    for n_, (e, j_) in enumerate(((0, 1), (0, 2), (1, 1), (1, 2), (2, 2))): k(f'v_readlane_b32 {cs[n_]}, {acc[4 + e]}, {j_}')
    n2 = 0
    for i in range(18):
        if i in (9, 13): k('s_barrier')
        xg = XX.sub(8 * i + 2, 4); xr = XX.sub(8 * i - 2, 4) if i else None
        c_ = lambda r_, first: '0' if first else r_
        M = [(iwr[tt], f'{MF} {acc.sub(4 * tt, 4)}, {WR[i & 1].sub(4 * tt, 4)}, {xg}, {c_(acc.sub(4 * tt, 4), i == 0)}') for tt in range(6)]
        S_ = [f'{MF} {tacc}, {TF.sub(4 * i, 4)}, {xg}, {c_(tacc, i == 0)}', f'{MF} {qacc}, {xg}, {xg}, {c_(qacc, i == 0)}']
        if i: S_ += [f'{MF} {sacc}, {ones}, {xr}, {c_(sacc, i == 1)}', f'{MF} {gacc}, {xr}, {xr}, {c_(gacc, i == 1)}']
        Rd = w_reads(i + 1) if i < 17 else []
        vm.wait(ix[i])
        if i == 0: k(f'v_mov_b32 {XX[144]}, {XX[0]}\nv_mov_b32 {XX[145]}, {XX[1]}')
        nxt = []
        for x_ in S_:
            k(x_)
            if Rd: nxt.append(lg.op(Rd.pop(0)))
        for idr, mm in M:
            lg.wait(idr); k(mm)
            if Rd: nxt.append(lg.op(Rd.pop(0)))
        iwr = nxt
        if i + AHEAD < 18: issue(i + AHEAD)
        else:
            for _ in range(3):
                if n2 < (18 if i < 13 else 27): wdma(so2, w2lds(n2)); n2 += 1
    while n2 < 27: wdma(so2, w2lds(n2)); n2 += 1
    xr = XX.sub(142, 4)
    k(f'{MF} {sacc}, {ones}, {xr}, {sacc}\n{MF} {gacc}, {xr}, {xr}, {gacc}')
    STAMP(2)
    TB = [XX.sub(24, 16), XX.sub(40, 16)]; uu = XX.sub(56, 48)
    k(f'v_lshlrev_b32 {aT}, 5, {q}\nv_add_u32 {aT}, {T_F}, {aT}')
    tf_read = lambda dst, r_, e: f'ds_read_b128 {dst}, {aT} offset:{384 * r_ + 128 * (e >> 1) + 16 * (e & 1)}'
    def diag(d, g_):
        k(f'v_cndmask_b32 {d}, {g_[0]}, {g_[1]}, {msk[0]}\nv_cndmask_b32 {d}, {d}, {g_[2]}, {msk[1]}\nv_cndmask_b32 {d}, {d}, {g_[3]}, {msk[2]}')
        return lg.op(f'ds_bpermute_b32 {d}, {bidx}, {d}')
    i2 = diag(t[2], qacc); i1 = diag(t[1], gacc)
    iu = [lg.op(tf_read(uu.sub(24 * r_ + 4 * e, 4), 3 + r_, e)) for e in range(6) for r_ in range(2)]
    s1 = k.v(2); gc = k.v(4)
    k(f'v_mov_b32 {t[0]}, {sacc[0]}'); lg.wait(i1)
    sigma_bf16(k, t[0], t[1])
    k(f'v_cvt_pk_bf16_f32 {t[0]}, {t[0]}, {t[1]}\nv_and_b32 {s1[0]}, 0xffff0000, {t[0]}\nv_lshlrev_b32 {s1[1]}, 16, {t[0]}')
    k(f'v_rcp_f32 {s1[0]}, {s1[0]}\nv_mov_b32 {t[3]}, {cs[1]}\nv_mov_b32 {t[4]}, {cs[3]}\nv_mul_f32 {s1[1]}, -{s1[1]}, {s1[0]}')
    k(f'v_fma_f32 {t[3]}, {s1[1]}, {cs[0]}, {t[3]}\nv_fma_f32 {t[0]}, {s1[0]}, {tacc[0]}, {t[3]}')
    k(f'v_fma_f32 {t[3]}, {s1[1]}, {tacc[1]}, {tacc[2]}\nv_add_f32 {t[3]}, {t[3]}, {t[3]}\nv_fma_f32 {t[3]}, {s1[0]}, {t[2]}, {t[3]}')
    k(f'v_add_f32 {t[4]}, {t[4]}, {t[4]}\nv_fma_f32 {t[4]}, {s1[1]}, {cs[2]}, {t[4]}\nv_mov_b32 {t[5]}, {cs[4]}\nv_fma_f32 {t[4]}, {s1[1]}, {t[4]}, {t[5]}')
    k(f'v_fma_f32 {t[1]}, {s1[0]}, {t[3]}, {t[4]}')
    sigma_bf16(k, t[0], t[1])
    k(f'v_cvt_pk_bf16_f32 {t[1]}, {t[1]}, {t[1]}\nv_and_b32 {t[1]}, 0xffff0000, {t[1]}')
    gelu_consts(k, t[1], gc)
    aG = k.v()
    k(f's_mul_i32 {st}, {jm}, {3 * GPL}\ns_add_u32 {st}, {st}, {O_G}\nv_lshlrev_b32 {aG}, 6, {row}\nv_lshl_add_u32 {aG}, {q}, 4, {aG}\nv_add_u32 {aG}, 128, {aG}')
    lg.all()
    for e in range(12): k(f'v_pk_fma_f32 {uu.sub(2 * e, 2)}, {uu.sub(2 * e, 2)}, {s1}, {uu.sub(24 + 2 * e, 2)} op_sel:[0,1,0] op_sel_hi:[1,1,1]')
    for e in range(12): k(f'v_pk_fma_f32 {acc.sub(2 * e, 2)}, {acc.sub(2 * e, 2)}, {s1}, {uu.sub(2 * e, 2)} op_sel_hi:[1,0,1]')
    tt_ = TB[0]; go = TB[1]
    for Pp in range(3):
        a = acc.sub(8 * Pp, 8); u = tt_.sub(0, 8)
        for e in range(4): k(f'v_pk_mul_f32 {u.sub(2 * e, 2)}, {a.sub(2 * e, 2)}, {a.sub(2 * e, 2)}')
        for e in range(4): k(f'v_pk_fma_f32 {u.sub(2 * e, 2)}, {u.sub(2 * e, 2)}, {gc[0:2]}, {gc[0:2]} op_sel:[0,1,0] op_sel_hi:[1,1,0]')
        for e in range(4): k(f'v_pk_mul_f32 {u.sub(2 * e, 2)}, {u.sub(2 * e, 2)}, {a.sub(2 * e, 2)}')
        for e in range(8): k(f'v_exp_f32 {u[e]}, {u[e]}')
        for e in range(4): k(f'v_pk_fma_f32 {u.sub(2 * e, 2)}, {u.sub(2 * e, 2)}, {gc[2:4]}, {gc[2:4]} op_sel_hi:[1,0,0]')
        for e in range(8): k(f'v_rcp_f32 {u[e]}, {u[e]}')
        for e in range(4): k(f'v_pk_mul_f32 {u.sub(2 * e, 2)}, {u.sub(2 * e, 2)}, {a.sub(2 * e, 2)}')
        o = go.sub(4 * Pp, 4)
        for e in range(4): k(f'v_cvt_pk_bf16_f32 {o[e]}, {u[2 * e]}, {u[2 * e + 1]}')
        ig = vm.op(f'buffer_store_dwordx4 {o}, {aG}, {Rws}, {st} offen sc1')
        if Pp < 2: k(f's_add_u32 {st}, {st}, {GPL}')
    h2f = uu.sub(0, 24); x2f = XX.sub(104, 24); gbv = k.v(24, 4)
    xsrc = lambda e: XX[8 * (e // 8) + (0, 1, 6, 7)[(e % 8) // 2]]
    ig_ = [lg.op(tf_read(gbv.sub(4 * e, 4), 1, e)) for e in range(6)]
    is_ = [lg.op(tf_read(uu.sub(24 + 4 * e, 4), 0, e)) for e in range(6)]
    for e in range(24): k(un(x2f[e], xsrc(e), e & 1))
    dl = [XX[128 + i] for i in range(6)]
    k(f'v_cmp_gt_u32 vcc, 2, {q}')
    for g, dlt in enumerate((-1, 1, -2, 2)): k(f'v_add_u32 {dl[g]}, {dlt * 64}, {aG}')
    k(f'v_cndmask_b32 {dl[4]}, {dl[1]}, {dl[0]}, vcc\nv_cndmask_b32 {dl[5]}, {dl[3]}, {dl[2]}, vcc')
    pa = XX[134]
    k(f'v_min_u32 {pa}, 2, {lane}\nv_add_u32 {pa}, {mt}, {pa}\nv_add_u32 {pa}, -1, {pa}\nv_max_i32 {pa}, 0, {pa}\nv_min_u32 {pa}, 127, {pa}\nv_lshlrev_b32 {pa}, 7, {pa}')
    vm.wait(ig)
    flag_add(mt, O_FC)
    STAMP(3)
    for ks in PI: vm.op(wld(0, ks))
    k(f's_add_u32 {sn}, {sn}, 18432')
    for e in range(12): k(f'v_pk_fma_f32 {h2f.sub(2 * e, 2)}, {x2f.sub(2 * e, 2)}, {s1}, {s1} op_sel:[0,0,1] op_sel_hi:[1,0,1]')
    lg.all()
    for e in range(12): k(f'v_pk_fma_f32 {h2f.sub(2 * e, 2)}, {h2f.sub(2 * e, 2)}, {gbv.sub(2 * e, 2)}, {uu.sub(24 + 2 * e, 2)}')
    for e in range(6): lg.op(tf_read(gbv.sub(4 * e, 4), 2, e))
    NPRE = 5
    k('s_barrier')
    WP = [WR[0], WR[1], k.a(24, 4), k.a(24, 4), XX.sub(0, 24)]
    def w2_addr(i, tt):
        a_, o_ = (aW2, 6144 * i) if i < 6 else (aW[(i - 6) // 9], WBUF + ((i - 6) % 9) * 6144)
        return f'{a_} offset:{o_ + 1024 * tt}'
    for i in range(NPRE):
        for tt in range(6): lg.op(f'ds_read_b128 {WP[i].sub(4 * tt, 4)}, {w2_addr(i, tt)}')
    poll(pa, O_FC, 6)
    STAMP(4)
    GF = TF
    sel = lambda s: dl[4] if s == 4 else dl[5] if s == 13 else dl[(2 * s) // 9]
    ig = []
    for s in range(18):
        k(f's_mov_b32 {st}, {O_G + s * GPL}')
        ig.append(vm.op(f'buffer_load_dwordx4 {GF.sub(4 * s, 4)}, {sel(s)}, {Rws}, {st} offen sc1'))
    lg.all()
    ird = {}
    for s in range(18):
        vm.wait(ig[s])
        wr = WP[s % NPRE]
        for tt in range(6):
            if s >= NPRE: lg.wait(ird[s, tt])
            k(f'{MF} {acc.sub(4 * tt, 4)}, {wr.sub(4 * tt, 4)}, {GF.sub(4 * s, 4)}, {"0" if s == 0 else acc.sub(4 * tt, 4)}')
            if s + NPRE < 18: ird[s + NPRE, tt] = lg.op(f'ds_read_b128 {wr.sub(4 * tt, 4)}, {w2_addr(s + NPRE, tt)}')
        vm.op(wld(1, s))
    lg.all()
    STAMP(5)
    aR = dl[0]; aS = dl[1]
    k(f'v_lshrrev_b32 {t[0]}, 1, {q}\nv_and_b32 {t[1]}, 1, {q}\nv_lshlrev_b32 {aR}, 12, {t[0]}\nv_lshl_add_u32 {aR}, {t[1]}, 9, {aR}\nv_lshl_add_u32 {aR}, {m}, 4, {aR}')
    k(f'v_lshlrev_b32 {aS}, 6, {t[0]}\nv_lshl_add_u32 {aS}, {m}, 2, {aS}')
    k(f's_mul_i32 {st}, {rb}, 18\ns_mul_i32 {so}, {jm}, 3\ns_add_u32 {st}, {st}, {so}\ns_lshl_b32 {st}, {st}, 2\ns_add_u32 {st}, {st}, {s_w}\ns_lshl_b32 {st}, {st}, 10\ns_add_u32 {st}, {st}, {O_X1F}')
    for e in range(12): k(f'v_pk_add_f32 {h2f.sub(2 * e, 2)}, {h2f.sub(2 * e, 2)}, {acc.sub(2 * e, 2)}')
    for Pp in range(3):
        o = go.sub(4 * Pp, 4)
        for e in range(4): k(f'v_cvt_pk_bf16_f32 {o[e]}, {h2f[8 * Pp + 2 * e]}, {h2f[8 * Pp + 2 * e + 1]}')
        vm.op(f'buffer_store_dwordx4 {o}, {l16}, {Rws}, {st} offen sc1')
        if Pp < 2: k(f's_add_u32 {st}, {st}, 4096')
    k(f'v_pk_add_f32 {t[0:2]}, {h2f[0:2]}, {h2f[2:4]}\nv_pk_mul_f32 {t[2:4]}, {h2f[0:2]}, {h2f[0:2]}\nv_pk_fma_f32 {t[2:4]}, {h2f[2:4]}, {h2f[2:4]}, {t[2:4]}')
    for e in range(2, 12): k(f'v_pk_add_f32 {t[0:2]}, {t[0:2]}, {h2f.sub(2 * e, 2)}\nv_pk_fma_f32 {t[2:4]}, {h2f.sub(2 * e, 2)}, {h2f.sub(2 * e, 2)}, {t[2:4]}')
    k(f'v_add_f32 {t[0]}, {t[0]}, {t[1]}\nv_add_f32 {t[2]}, {t[2]}, {t[3]}\nv_permlane32_swap_b32 {t[0]}, {t[2]}\nv_add_f32 {t[0]}, {t[0]}, {t[2]}')
    k(f'v_mov_b32 {t[1]}, {t[0]}\nv_permlane16_swap_b32 {t[0]}, {t[1]}\nv_add_f32 {t[0]}, {t[0]}, {t[1]}')
    k(f's_mul_i32 {st}, {mt}, 6\ns_add_u32 {st}, {st}, {jm}\ns_lshl_b32 {st}, {st}, 7\ns_add_u32 {st}, {st}, {O_PST}\ns_mov_b32 exec_lo, 0xffff\ns_mov_b32 exec_hi, 0xffff')
    vm.op(f'buffer_store_dword {t[0]}, {aS}, {Rws}, {st} offen sc1')
    k('s_mov_b64 exec, -1')
    ist = vm.n
    k(f's_mul_i32 {so}, {rb}, 6\ns_add_u32 {so}, {so}, {jm}\ns_mul_i32 {so}, {so}, 24\ns_add_u32 {so}, {so}, {s_w}\ns_lshl_b32 {so}, {so}, 10\ns_add_u32 {so}, {so}, {O_RES}')
    for e in range(12): k(f'v_pk_fma_f32 {x2f.sub(2 * e, 2)}, {h2f.sub(2 * e, 2)}, {gbv.sub(2 * e, 2)}, {x2f.sub(2 * e, 2)}')
    vm.wait(ist)
    flag_add(mt, O_FD)
    STAMP(6)
    for e in range(6):
        vm.op(f'buffer_store_dwordx4 {x2f.sub(4 * e, 4)}, {aR}, {Rws}, {so} offen offset:{256 * (e & 1)} sc1')
        if e in (1, 3): k(f's_add_u32 {so}, {so}, 8192')
    k(f's_mov_b32 {resf}, 1')
    k('s_branch k2_phase_e')
    k('k2_idle:')
    k.V.free, k.A.free, k.S.free = list(keepV), list(keepA), list(keepS)
    vm, lg = trackers(k)
    cj = ColJob(k, vm, lg, lane, s_w)
    fr = k.v(72, 4); sl = k.s(); dst = k.s()
    k(f's_mul_hi_u32 {sl}, s2, {(1 << 32) // 9 + 1}')
    ids = cj.read(0, fr, w4order=True)
    k(f's_lshl_b32 {dst}, s2, 2\ns_add_u32 {dst}, {dst}, {s_w}\ns_mul_i32 {dst}, {dst}, 18432\ns_add_u32 {dst}, {dst}, {O_W4F}')
    cj.store(fr, ids, Rws, dst, 1024)
    k(go3_ld)
    k('s_waitcnt vmcnt(1)')
    flag_add(sl, O_FW)
    spin(go3_ld, [fv4[i] for i in range(4)]); vm.reset()
    for r_ in range(2):
        for ks in PI: vm.op(wld(r_, ks))
        if r_ == 0: k(f's_add_u32 {sn}, {sn}, 18432')
    STAMP(14)
    k('k2_phase_e:')
    k.V.free, k.A.free, k.S.free = keepV, keepA, keepS
    vm, lg = trackers(k)
    vm.n = 1
    XA = k.a(112, 4); XV = k.v(176, 4)
    xf = lambda ks, t_: XA.sub(16 * ks + 4 * t_, 4) if 16 * ks + 4 * t_ < 112 else XV.sub(16 * ks + 4 * t_ - 112, 4)
    fv4.release()
    k(f's_add_u32 {sn}, {sn}, 18432')
    acc = [k.v(16, 4), k.v(16, 4)]
    t = acc[1].sub(0, 12); pa = k.v()
    k(f's_lshl_b32 {st}, {mb}, 2\nv_min_u32 {pa}, 3, {lane}\nv_add_u32 {pa}, {st}, {pa}\nv_lshlrev_b32 {pa}, 7, {pa}')
    k(f's_lshl_b32 {sm}, {s_w}, 10\ns_mul_i32 {so}, {mb}, 73728\ns_add_u32 {so}, {so}, {sm}\ns_add_u32 {so}, {so}, {O_X1F}')
    k('s_barrier')
    poll(pa, O_FD, 6)
    STAMP(7)
    ixd = []
    for ks in PI:
        k(f's_add_u32 m0, {sm}, {XBUF + 4096 * ks}\ns_add_u32 {st}, {so}, {4096 * ks}')
        ixd.append(vm.op(f'buffer_load_dwordx4 {l16}, {Rws}, {st} offen sc1 lds'))
    k(f's_mul_i32 {st}, {mb}, 3072\ns_add_u32 {st}, {st}, {O_PST}\nv_mul_u32_u24 {pa}, 768, {q}\nv_lshl_add_u32 {pa}, {m}, 2, {pa}')
    for i in range(12): ip = vm.op(f'buffer_load_dword {t[i]}, {pa}, {Rws}, {st} offen offset:{64 * i} sc1')
    sk_ = k.label('nores')
    k(f's_cmp_eq_u32 {resf}, 0\ns_cbranch_scc1 {sk_}')
    n0 = vm.n; flag_add(rb, O_FR); vm.n = n0
    k(f'{sk_}:')
    aX = [l16, k.v()]; aHr = [k.v(), k.v()]; aH = [k.v(), k.v()]
    k(f'v_add_u32 {aX[1]}, 0x9000, {l16}\nv_add_u32 {aHr[0]}, {HBUF}, {l16}\nv_add_u32 {aHr[1]}, {HBUF + 0x9000}, {l16}')
    for h in range(2):
        k(f's_mul_i32 {st}, {s_w}, 9\ns_add_u32 {st}, {st}, {h}\ns_and_b32 {st1}, {st}, 1\ns_lshl_b32 {st1}, {st1}, 3\ns_lshr_b32 {st}, {st}, 1\ns_lshl_b32 {st}, {st}, 12')
        k(f's_add_u32 {st}, {st}, {st1}\nv_add_u32 {aH[h]}, {st}, {aHr[0]}')
    GC = [k.v(3, 1) for _ in range(4)]
    gt = k.v(8, 4); hp = [k.v(2), k.v(2)]
    def gelu_ops(a, ah):
        out = []
        for t_ in range(4):
            c = GC[t_]; x = [a[4 * t_ + e] for e in range(4)]; u = [gt[4 * (t_ & 1) + e] for e in range(4)]; o = hp[t_ & 1]
            out += [f'v_mul_f32 {u[e]}, {x[e]}, {x[e]}' for e in range(4)]
            out += [f'v_fma_f32 {u[e]}, {u[e]}, {c[1]}, {c[0]}' for e in range(4)]
            out += [f'v_mul_f32 {u[e]}, {u[e]}, {x[e]}' for e in range(4)]
            out += [f'v_exp_f32 {u[e]}, {u[e]}' for e in range(4)]
            out += [f'v_fma_f32 {u[e]}, {u[e]}, {c[2]}, {c[2]}' for e in range(4)]
            out += [f'v_rcp_f32 {u[e]}, {u[e]}' for e in range(4)]
            out += [f'v_mul_f32 {u[e]}, {u[e]}, {x[e]}' for e in range(4)]
            out += [f'v_cvt_pk_bf16_f32 {o[0]}, {u[0]}, {u[1]}', f'v_cvt_pk_bf16_f32 {o[1]}, {u[2]}, {u[3]}']
            out.append(f'ds_write_b64 {ah}, {o} offset:{1024 * t_}')
        return out
    cost = lambda x_: 2 if x_.startswith(('v_exp', 'v_rcp', 'ds_write')) else 1
    def tile(a, r_, fill, steps=range(18), lead=2, pre=None, vmw=17, per_step=0, front=False, load=True):
        steps = list(steps); nm = 4 * len(steps); done = 0; n_ = 0
        fixed = len(steps) * (1 + per_step) + (len(steps) // 2 if vmw else 0)
        total = fixed + sum(cost(x_) for x_ in fill)
        rate = 2.0 if front else total / nm
        cum = 0
        for i in steps:
            ks = PI[i]
            if pre: pre(i); cum += per_step
            if vmw is not None and (i % 2 == 0 or i == steps[0]): k(f's_waitcnt vmcnt({vmw - 1})'); cum += 1
            for t_ in range(4):
                k(f'{MF} {a.sub(4 * t_, 4)}, {W[r_].sub(4 * ks, 4)}, {xf(ks, t_)}, {"0" if i == 0 else a.sub(4 * t_, 4)}')
                n_ += 1
                nxt = 0
                if t_ == 3:
                    if load: k(wld(1 - r_, ks)); cum += 1
                    nxt = per_step + (1 if vmw and i % 2 == 1 else 0)
                while n_ >= lead and done < len(fill) and cum + nxt + cost(fill[done]) / 2 <= rate * n_: k(fill[done]); cum += cost(fill[done]); done += 1
        while done < len(fill): k(fill[done]); done += 1
    def frag_reads(base, i):
        ks = PI[i]
        return [lg.op(f'ds_read_b128 {xf(ks, t_)}, {base[ks // 9]} offset:{(ks % 9) * 4096 + 1024 * t_}') for t_ in range(4)]
    rd = {}
    def pre0(i):
        if i == 0:
            vm.wait(ixd[5]); k('s_barrier')
            for j in (0, 1): rd[j] = frag_reads(aX, j)
        if i in (4, 10):
            vm.wait(ixd[i + 7]); k('s_barrier')
        if i + 2 < 18: rd[i + 2] = frag_reads(aX, i + 2)
        lg.wait(rd[i][3])
    tile(acc[0], 0, [], pre=pre0, vmw=None, load=False)
    STAMP(8)
    vm.wait(ip)
    for e in (0, 4, 8): k(f'v_add_f32 {t[e]}, {t[e]}, {t[e + 2]}\nv_add_f32 {t[e + 1]}, {t[e + 1]}, {t[e + 3]}')
    for e in (4, 8): k(f'v_add_f32 {t[0]}, {t[0]}, {t[e]}\nv_add_f32 {t[1]}, {t[1]}, {t[e + 1]}')
    sigma_bf16(k, t[0], t[1])
    k(f'v_cvt_pk_bf16_f32 {t[1]}, {t[1]}, {t[1]}\nv_and_b32 {t[1]}, 0xffff0000, {t[1]}\nv_lshlrev_b32 {t[2]}, 2, {m}')
    ib = [lg.op(f'ds_bpermute_b32 {t[4 + i]}, {t[2]}, {t[1]} offset:{64 * i}') for i in range(4)]
    for i in range(4): lg.wait(ib[i]); gelu_consts(k, t[4 + i], GC[i])
    fa_ = k.v(); tg = k.v()
    k(f's_lshl_b32 {st}, {fs}, 7\ns_add_u32 {st}, {st}, {O_FW}\ns_lshl_b32 {st1}, {mb}, 7\ns_add_u32 {st1}, {st1}, {O_FR}\nv_mov_b32 {fa_}, {st1}\nv_writelane_b32 {fa_}, {st}, 0')
    k(f's_cmp_eq_u32 {fs}, 7\ns_cselect_b32 {st}, 4, 36\nv_mov_b32 {tg}, 24\nv_writelane_b32 {tg}, {st}, 0')
    k(f'buffer_load_dword {pa}, {fa_}, {Rws}, 0 offen sc1')
    lp = k.label('g3')
    k(f's_mov_b32 {so}, 4\n{lp}:')
    tile(acc[1], 1, gelu_ops(acc[0], aH[0]))
    k(f's_add_u32 {sn}, {sn}, 18432\nv_add_u32 {aH[0]}, 4096, {aH[0]}\ns_cmp_lg_u32 {so}, 1\ns_cbranch_scc1 k2_w4ok')
    k(f's_mov_b32 {sn}, {s4}\nv_cmp_gt_u32 vcc, {tg}, {pa}\ns_cmp_eq_u64 vcc, 0\ns_cbranch_scc1 k2_w4ok')
    poll(fa_, 0, tg)
    k('k2_w4ok:')
    tile(acc[0], 0, gelu_ops(acc[1], aH[1]))
    k(f's_add_u32 {sn}, {sn}, 18432\nv_add_u32 {aH[1]}, 4096, {aH[1]}\ns_sub_u32 {so}, {so}, 1\ns_cmp_lg_u32 {so}, 0\ns_cbranch_scc1 {lp}')
    STAMP(9)
    k('s_waitcnt lgkmcnt(0)\ns_barrier')
    lg.reset(); rd = {}
    g8 = gelu_ops(acc[0], aH[0])
    class Fill(list):
        pass
    def pre1(i):
        if i == 0:
            for j in (0, 1): rd[j] = frag_reads(aHr, j)
        if i + 2 < 14: rd[i + 2] = frag_reads(aHr, i + 2)
        k(f's_waitcnt lgkmcnt({min(8, 4 * (13 - i))})')
    tile(acc[1], 1, g8, steps=range(14), pre=pre1, lead=1, per_step=5)
    k('s_waitcnt lgkmcnt(0)\ns_barrier'); lg.reset()
    for j in range(14, 18): rd[j] = frag_reads(aHr, j)
    tile(acc[1], 1, [], steps=range(14, 18), pre=lambda i: lg.wait(rd[i][3]))
    sp = k.s(); po = [gt.sub(0, 4), gt.sub(4, 4)]
    k(f's_mul_i32 {sp}, {mb}, {9 * 65536}\ns_lshl_b32 {st}, {s_w}, 14\ns_add_u32 {sp}, {sp}, {st}\ns_lshl_b32 {st}, {fs}, 10\ns_add_u32 {sp}, {sp}, {st}\ns_add_u32 {sp}, {sp}, {O_PART}')
    def part_ops(a):
        out = []
        for p in range(2):
            out += [f'v_cvt_pk_bf16_f32 {po[p][e]}, {a[8 * p + 2 * e]}, {a[8 * p + 2 * e + 1]}' for e in range(4)]
            if 'nopart' not in opt: out.append(f'buffer_store_dwordx4 {po[p]}, {vo[2 * p]}, {Rws}, {sp} offen {PFL}')
        out.append(f's_add_u32 {sp}, {sp}, 65536')
        return out
    lp = k.label('g4')
    k(f's_mov_b32 {so}, 4\n{lp}:\ns_add_u32 {sn}, {sn}, 18432')
    tile(acc[0], 0, part_ops(acc[1]), front=True)
    k(f's_add_u32 {sn}, {sn}, 18432\ns_cmp_eq_u32 {so}, 1\ns_cselect_b32 {RW[2]}, 0, {RW[2]}')
    tile(acc[1], 1, part_ops(acc[0]), front=True)
    k(f's_sub_u32 {so}, {so}, 1\ns_cmp_lg_u32 {so}, 0\ns_cbranch_scc1 {lp}')
    for x_ in part_ops(acc[1]): k(x_)
    STAMP(10)
    for x_ in (XV, gt, acc[0], acc[1]): x_.release()
    aR = [GC[0][0]]; aO = [GC[0][1], GC[0][2]]; aB = GC[1][0]; T0 = k.s()
    Rout = RG; srd(k, Rout, P['out'], L * D * 2)
    rs = [k.v(12, 4) for _ in range(3)]; pt = [k.v(32, 4) for _ in range(3)]
    k(f's_lshl_b32 {st}, {mb}, 2\ns_and_b32 {st1}, {fs}, 1\ns_lshl_b32 {st1}, {st1}, 1\ns_add_u32 {st}, {st}, {st1}\ns_lshl_b32 {st}, {st}, 4')
    k(f'v_add_u32 {aO[0]}, {st}, {m}\nv_mul_u32_u24 {aO[0]}, 1152, {aO[0]}\nv_lshl_add_u32 {aO[0]}, {q}, 3, {aO[0]}\nv_add_u32 {aO[1]}, {16 * 1152}, {aO[0]}')
    k(f's_mul_i32 {T0}, {mb}, 144\ns_add_u32 {T0}, {T0}, {st1}\ns_lshl_b32 {T0}, {T0}, 10\nv_add_u32 {aR[0]}, {T0}, {l16}\nv_lshlrev_b32 {aB}, 4, {q}')
    k(f's_lshr_b32 {T0}, {fs}, 1\ns_mul_i32 {T0}, {T0}, 9\ns_add_u32 {T0}, {T0}, {s_w}')
    k('s_waitcnt vmcnt(0)'); vm.reset()
    k(f's_lshl_b32 {so}, {mb}, 2\ns_add_u32 {so}, {so}, {s_w}')
    flag_add(so, O_FP)

    sk = [k.label('skip') for _ in range(3)]
    def third(i, lab):
        if i == 2: k(f's_cmp_lg_u32 {s_w}, 0\ns_cbranch_scc1 {lab}')
    for i in range(3):
        third(i, sk[0])
        k(f's_add_u32 {st}, {T0}, {4 * i}\ns_lshl_b32 {st}, {st}, 6\ns_add_u32 {st1}, {st}, {O_MOD2 + 4608}\ns_lshl_b32 {st}, {st}, 6\ns_add_u32 {st}, {st}, {O_RES}')
        for h in range(2): k(f'buffer_load_dwordx4 {rs[i].sub(4 * h, 4)}, {aR[0]}, {Rws}, {st} offen offset:{1024 * h} sc1')
        k(f'buffer_load_dwordx4 {rs[i].sub(8, 4)}, {aB}, {Rws}, {st1} offen sc1')
    k(f'{sk[0]}:\ns_lshl_b32 {st}, {mb}, 2\ns_lshr_b32 {so}, {fs}, 1\ns_add_u32 {st}, {st}, {so}\ns_lshl_b32 {st}, {st}, 7\nv_mov_b32 {pa}, {st}')
    poll(pa, O_FP, 8)
    STAMP(11)
    k(f's_mul_i32 {sp}, {mb}, 9\ns_add_u32 {sp}, {sp}, {s_w}\ns_lshl_b32 {sp}, {sp}, 3\ns_add_u32 {sp}, {sp}, {fs}\ns_lshl_b32 {sp}, {sp}, 13\ns_add_u32 {sp}, {sp}, {O_PART}')
    for i in range(3):
        third(i, sk[1])
        for s_ in range(8): k(f'buffer_load_dwordx4 {pt[i].sub(4 * s_, 4)}, {vo[s_ // 4]}, {Rws}, {sp} offen offset:{1024 * (s_ % 4)} sc1')
        k(f's_add_u32 {sp}, {sp}, {4 * 65536}')
    k(f'{sk[1]}:')
    sa = k.v(8, 2); u = k.v(8, 2)
    for i in range(3):
        third(i, END)
        k(f's_waitcnt vmcnt({8 if i == 0 else 2})')
        p = pt[i]
        for e in range(8): k(un(sa[e], p[e >> 1], e & 1))
        for s_ in range(1, 8):
            for e in range(8): k(un(u[e], p[4 * s_ + (e >> 1)], e & 1))
            for e in range(4): k(f'v_pk_add_f32 {sa.sub(2 * e, 2)}, {sa.sub(2 * e, 2)}, {u.sub(2 * e, 2)}')
        for e in range(4): k(f'v_pk_fma_f32 {sa.sub(2 * e, 2)}, {sa.sub(2 * e, 2)}, {rs[i].sub(8 + 2 * (e & 1), 2)}, {rs[i].sub(2 * e, 2)}')
        k(f's_add_u32 {st}, {T0}, {4 * i}\ns_lshl_b32 {st}, {st}, 5')
        for h in range(2):
            k(f'v_cvt_pk_bf16_f32 {u[2 * h]}, {sa[4 * h]}, {sa[4 * h + 1]}\nv_cvt_pk_bf16_f32 {u[2 * h + 1]}, {sa[4 * h + 2]}, {sa[4 * h + 3]}')
            k(f'buffer_store_dwordx2 {u.sub(2 * h, 2)}, {aO[h]}, {Rout}, {st} offen')
        if i == 1: STAMP(12)
```

```python
import sys, re
from common import *
import k1, k2
KN = NAME + '_kernel'
def build(stamps=False, dump=False, opt=()):
    k = Kern(KN, nv=256, na=256)
    END, NEXT = 'all_done', 'phase2'
    k(f's_cmp_ge_u32 s2, 256\\ns_cbranch_scc1 exit\\nk1_top:'.replace('\\n', '\n'))
    S1 = Stamper(k, stamps, 1); S1.init(); S1(0)
    P = kernargs(k)
    lane = k.v(); s_w = k.s()
    pf = k.v(2); pfs = k.s(2)
    code_prefetch(k, None, 'k1_top', NEXT, 32768, 'v0', pf, pfs, back=True)
    k(f'v_lshrrev_b32 {lane}, 6, v0')
    k(f'v_readfirstlane_b32 {s_w}, {lane}')
    k(f'v_and_b32 {lane}, 63, v0')
    k('s_waitcnt lgkmcnt(0)'); k('s_cmp_ge_u32 s2, 112'); k('s_cbranch_scc1 k1_conv')
    st = lambda: (list(k.V.free), list(k.A.free), list(k.S.free))
    def rs(x): k.V.free, k.A.free, k.S.free = [list(y) for y in x]
    base = st()
    k1.service(k, P, lane, s_w, END, NEXT, S1)
    rs(base); k('k1_conv:')
    k1.conv(k, P, lane, s_w, END, NEXT, dump, S1)
    rs(base); k(f'{NEXT}:'); S1(15)
    a, b = P['_blocks']
    a.release(); pf.release(); pfs.release()
    for i in list(range(0, 6)) + list(range(8, 12)): k.S.free[b.i + i] = True
    S2 = Stamper(k, stamps, 0, t=S1.t if stamps else None); S2.init()
    k2.phase2(k, P, lane, s_w, END, S2, opt)
    k(f'{END}:')
    if stamps:
        k('s_waitcnt vmcnt(0)'); S2(13); S2.flush(); S1.flush()
    k('exit:'); k('s_endpgm')
    k.finish()
    ref = open('cdna_kernels/%s.s.ref' % NAME).read().split('\n')
    hdr = [l for l in ref if l.startswith(';') and '@launch' not in l and 'Override' not in l and 'grid=ceil' not in l]
    hdr = '\n'.join(hdr) + '\n; @launch grid=(256,1,1) block=(256,1,1) lds=%d\n' % k2.K2_LDS
    print('lines', len(k.l), 'nops', k.nops, 'regs', k.counts(), 'sgpr', k.S.top)
    return module([k], 136, hdr)
if __name__ == '__main__' and len(sys.argv) > 1:
    for o in sys.argv[1:]:
        for suf, stp in (('', 0), ('_dbg', 1), ('_clk', 2)): open('v_%s%s.s' % (o, suf), 'w').write(build(stamps=stp, opt=o.split('+')))
elif __name__ == '__main__':
    a_, b_, s = build(stamps=1), build(stamps=2), build()
    open('full_dbg.s', 'w').write(a_); open('full_clk.s', 'w').write(b_)
    open('full.s', 'w').write(s)
    open('cdna_kernels/%s.s' % NAME, 'w').write(s)
```

```python
from dsl import Kern, Reg, module
import struct

L, D, F = 2048, 576, 4608
NAME = 'adaLN_cond__ssm_conv_s4d__mixer_s_mlp__prompt'

O_FC    = 0x0000
O_FD    = 0x4000
O_FP    = 0x8000
O_FW    = 0x18000
O_FR    = 0xC000
O_FT    = 0x19000
O_FA    = 0x1D000
FLAG_BYTES = 0x20000
O_STATS = 0x20000
O_MODF  = 0x24000
O_MOD2  = O_MODF + 3 * 2304
O_MODB  = 0x29000
O_PST   = 0x30000
GPL = 2052 * 64
O_XT    = 0x100000
O_X2    = 0x3200000
O_G     = 0x400000
O_X1F   = 0x700000
O_RES   = 0xA00000
O_W1F   = 0xF00000
O_W2F   = 0x1000000
O_W3F   = 0x1100000
O_W4F   = 0x1700000
O_PART  = 0x2000000
O_DBG   = 0x3800000
WS_USED = 0x4000000

def f2u(x): return struct.unpack('<I', struct.pack('<f', x))[0]
def fl(x): return '0x%08x' % f2u(x)
LOG2E = 1.4426950408889634

class Trk:
    def __init__(self, k, cnt, mx): self.k = k; self.cnt = cnt; self.mx = mx; self.n = 0; self.done = 0
    def op(self, s):
        self.k(s); self.n += 1; return self.n
    def wait(self, idx):
        if idx <= self.done: return
        left = min(self.n - idx, self.mx)
        self.k('s_waitcnt %s(%d)' % (self.cnt, left)); self.done = self.n - left
    def all(self): self.wait(self.n)
    def reset(self): self.done = self.n

def trackers(k): return Trk(k, 'vmcnt', 63), Trk(k, 'lgkmcnt', 15)

def srd(k, dst, ptr, nbytes, off=0):
    if off:
        k(f's_add_u32 {dst[0]}, {ptr[0]}, {off}\ns_addc_u32 {dst[1]}, {ptr[1]}, 0')
    else:
        k(f's_mov_b32 {dst[0]}, {ptr[0]}\ns_mov_b32 {dst[1]}, {ptr[1]}')
    k(f's_mov_b32 {dst[2]}, {nbytes}\ns_mov_b32 {dst[3]}, 0x20000')

def kernargs(k):
    a = k.s(16, 4); b = k.s(16, 4); c = k.s(2)
    k(f's_load_dwordx16 {a}, s[0:1], 0\ns_load_dwordx16 {b}, s[0:1], 64\ns_load_dwordx2 {c}, s[0:1], 128')
    names = ['u', 'logA', 'Aim', 'Cr', 'Ci', 'logdt', 'Dskip', 'Bx']
    P = {n: a.sub(2 * i, 2) for i, n in enumerate(names)}
    names = ['w1', 'w2', 'w3', 'w4', 'c', 'wmod', 'out', 'dbg']
    P.update({n: b.sub(2 * i, 2) for i, n in enumerate(names)})
    P['ws'] = c
    P['_blocks'] = (a, b)
    return P

def code_prefetch(k, vm, lo, hi, nbytes, tid, tmp, sp, back=False):
    here = k.label('pc')
    k(f's_getpc_b64 {sp}\n{here}:')
    if back: k(f's_sub_u32 {sp[0]}, {sp[0]}, {here}-{lo}\ns_subb_u32 {sp[1]}, {sp[1]}, 0')
    else: k(f's_add_u32 {sp[0]}, {sp[0]}, {lo}-{here}\ns_addc_u32 {sp[1]}, {sp[1]}, 0')
    k(f'v_lshlrev_b32 {tmp[0]}, 7, {tid}')
    k(f'v_min_u32 {tmp[0]}, {hi}-{lo}-4, {tmp[0]}')
    n = (nbytes + 32767) // 32768
    for i in range(n):
        x = f'global_load_dword {tmp[1]}, {tmp[0]}, {sp}'
        vm.op(x) if vm else k(x)
        if i + 1 < n:
            k(f'v_add_u32 {tmp[0]}, 0x8000, {tmp[0]}\nv_min_u32 {tmp[0]}, {hi}-{lo}-4, {tmp[0]}')

def interleave(*streams):
    out = []; n = max(len(s) for s in streams)
    for i in range(n):
        for s in streams:
            if i < len(s): out.append(s[i])
    return out

class ColJob:
    def __init__(self, k, vm, lg, lane, s_w):
        self.k, self.vm, self.lg, self.lane, self.s_w = k, vm, lg, lane, s_w
        k_ = k
        self.row = k.v(); self.chunk = k.v(); t = k.v(2)
        k_(f'v_lshrrev_b32 {self.row}, 3, {lane}')
        k_(f'v_bfe_u32 {t[0]}, {lane}, 5, 1\ns_and_b32 vcc_lo, {s_w}, 1\nv_xor_b32 {t[0]}, vcc_lo, {t[0]}')
        k_(f'v_bfe_u32 {t[1]}, {lane}, 4, 1\nv_lshl_or_b32 {t[0]}, {t[0]}, 1, {t[1]}')
        k_(f'v_lshlrev_b32 {t[0]}, 1, {t[0]}\nv_and_b32 {t[1]}, 7, {lane}\nv_xor_b32 {t[0]}, {t[0]}, {t[1]}')
        k_(f'v_lshlrev_b32 {self.chunk}, 4, {t[0]}')
        t.release()
    def dma(self, R, s_src, s_stride, buf):
        k = self.k
        va = k.v(); so = k.s(); st = k.s(); sm = k.s()
        k(f'v_mad_u32_u24 {va}, {self.row}, {s_stride}, {self.chunk}')
        k(f's_lshl_b32 {st}, {s_stride}, 3\ns_mul_i32 {so}, {st}, {self.s_w}\ns_add_u32 {so}, {so}, {s_src}\ns_lshl_b32 {st}, {st}, 2')
        k(f's_lshl_b32 {sm}, {self.s_w}, 10')
        last = None
        for i in range(18):
            k(f's_add_u32 m0, {sm}, {buf + i * 4096}')
            last = self.vm.op(f'buffer_load_dwordx4 {va}, {R}, {so} offen lds')
            if i < 17: k(f's_add_u32 {so}, {so}, {st}')
        va.release(); so.release(); st.release(); sm.release()
        return last
    def read(self, buf, fr, **kw):
        return self.reads(self.addr(buf, **kw), fr)
    def addr(self, buf, w4order=False, s_il=None, s_w4=None):
        k, lane = self.k, self.lane
        ad = k.v(4); q = k.v(); r = k.v(); c = k.v(); un = k.v(); wi = k.v(); t = k.v(2)
        k(f'v_lshrrev_b32 {q}, 4, {lane}\nv_bfe_u32 {r}, {lane}, 2, 2\nv_and_b32 {c}, 3, {lane}')
        k(f'v_mov_b32 {un}, {self.s_w}\nv_lshlrev_b32 {wi}, 3, {c}')
        if s_il is not None:
            st = k.s()
            k(f's_and_b32 {st}, {self.s_w}, 2\nv_lshrrev_b32 {t[0]}, 1, {c}\nv_add_u32 {t[0]}, {st}, {t[0]}')
            k(f's_and_b32 {st}, {self.s_w}, 1\ns_lshl_b32 {st}, {st}, 3\nv_and_b32 {t[1]}, 1, {c}\nv_lshl_add_u32 {t[1]}, {t[1]}, 4, {st}')
            k(f's_cmp_lg_u32 {s_il}, 0\ns_cselect_b64 vcc, -1, 0')
            k(f'v_cndmask_b32 {un}, {un}, {t[0]}, vcc\nv_cndmask_b32 {wi}, {wi}, {t[1]}, vcc')
            st.release()
        for h in range(2):
            kl = ad[h]
            if w4order: k(f'v_lshl_add_u32 {kl}, {q}, 2, {r}\nv_add_u32 {kl}, {16 * h}, {kl}')
            else: k(f'v_lshl_add_u32 {kl}, {q}, 3, {r}\nv_add_u32 {kl}, {4 * h}, {kl}')
            if s_w4 is not None:
                k(f'v_lshl_add_u32 {t[0]}, {q}, 2, {r}\nv_add_u32 {t[0]}, {16 * h}, {t[0]}\ns_cmp_eq_u32 {s_w4}, 4\ns_cselect_b64 vcc, -1, 0\nv_cndmask_b32 {kl}, {kl}, {t[0]}, vcc')
            k(f'v_lshrrev_b32 {t[0]}, 1, {kl}\nv_xor_b32 {t[0]}, {t[0]}, {kl}\nv_bfe_u32 {t[0]}, {t[0]}, 2, 1')
            k(f'v_bfe_u32 {t[1]}, {kl}, 1, 1\nv_lshl_or_b32 {t[0]}, {t[0]}, 1, {t[1]}\nv_xor_b32 {t[0]}, {t[0]}, {un}')
            k(f'v_lshl_add_u32 {t[0]}, {t[0]}, 5, {wi}\nv_lshl_add_u32 {kl}, {kl}, 7, {t[0]}')
            k(f'v_add_u32 {kl}, {buf}, {kl}\nv_add_u32 {ad[2 + h]}, 0x9000, {kl}')
        for x in (q, r, c, un, wi, t): x.release()
        return ad
    def reads(self, ad, fr):
        ids = []
        for s in range(18):
            for h in range(2):
                a = ad[h] if s < 9 else ad[2 + h]
                i = self.lg.op(f'ds_read_b64_tr_b16 {fr.sub(4 * s + 2 * h, 2)}, {a} offset:{(s % 9) * 4096}')
            ids.append(i)
        ad.release()
        return ids
    def store(self, fr, ids, Rws, s_dst, s_step, s_rot=None, flags='sc1'):
        k = self.k
        va = k.v(); so = k.s(); sl = k.s()
        k(f'v_lshlrev_b32 {va}, 4, {self.lane}')
        if s_rot is not None: k(f's_mov_b32 {sl}, {s_rot}')
        else: k(f's_mov_b32 {so}, {s_dst}')
        for s in range(18):
            if s_rot is not None:
                k(f's_mul_i32 {so}, {sl}, {s_step}\ns_add_u32 {so}, {so}, {s_dst}')
                k(f's_add_u32 {sl}, {sl}, 1\ns_cmp_eq_u32 {sl}, 18\ns_cselect_b32 {sl}, 0, {sl}')
            if ids: self.lg.wait(ids[s])
            self.vm.op(f'buffer_store_dwordx4 {fr.sub(4 * s, 4)}, {va}, {Rws}, {so} offen {flags}')
            if s_rot is None and s < 17: k(f's_add_u32 {so}, {so}, {s_step}')
        va.release(); so.release(); sl.release()

class Stamper:
    def __init__(self, k, on, area, t=None):
        self.k = k; self.on = on; self.area = area
        if on: self.r = k.s(16, 1); self.t = t or k.s(2)
    def __call__(self, i):
        if self.on:
            self.k(f'{"s_memtime" if self.on == 2 else "s_memrealtime"} {self.t}\ns_waitcnt lgkmcnt(0)\ns_mov_b32 {self.r[i]}, {self.t[0]}')
    def init(self):
        if self.on:
            for i in range(16): self.k(f's_mov_b32 {self.r[i]}, 0')
    def flush(self):
        if not self.on: return
        k = self.k; t = self.t; done = k.label('stamped')
        k(f's_waitcnt vmcnt(0) lgkmcnt(0)\ns_mov_b64 exec, -1\nv_mov_b32 v1, 0\nv_cmp_eq_u32 vcc, 0, v0\ns_and_b64 exec, exec, vcc\ns_cbranch_execz {done}')
        k(f's_load_dwordx2 {t}, s[0:1], 128\ns_lshl_b32 vcc_lo, s2, 6\ns_add_u32 vcc_lo, vcc_lo, {O_DBG + 0x400000 + self.area * 256 * 64}\nv_mov_b32 v1, vcc_lo\ns_waitcnt lgkmcnt(0)')
        for i in range(16): k(f'v_mov_b32 v2, {self.r[i]}\nglobal_store_dword v1, v2, {t} offset:{4 * i}')
        k(f'{done}:')

def sigma_bf16(k, mean, var):
    k(f'v_mul_f32 {mean}, {fl(1 / 576)}, {mean}\nv_mul_f32 {var}, {fl(1 / 576)}, {var}')
    k(f'v_fma_f32 {var}, -{mean}, {mean}, {var}\nv_max_f32 {var}, 0, {var}')
    k(f'v_cvt_pk_bf16_f32 {var}, {var}, {var}\nv_and_b32 {var}, 0xffff0000, {var}\nv_add_f32 {var}, {fl(1e-5)}, {var}')
    k(f'v_cvt_pk_bf16_f32 {var}, {var}, {var}\nv_and_b32 {var}, 0xffff0000, {var}\nv_sqrt_f32 {var}, {var}')


LDS_BYTES = 163840
WSTR, HB, HSTR = 19072, 4 * 19072, 4608
FREE0 = HB + 4 * HSTR
W1_AT = [FREE0 + 6144 * i for i in range(11)] + [HB + 6144 * i for i in range(3)] + [WSTR * i + 12288 for i in range(4)]
W2_AT = [WSTR * (i // 2) + 6144 * (i % 2) for i in range(6)] + W1_AT[:12]
TABS = 3 * WSTR

class PairDma:
    def __init__(self, k, s_w, s_jm, base, R, l16, at):
        self.k, self.R, self.l16, self.at = k, R, l16, at
        self.src = k.s(); self.wh = k.s(); self.wl = k.s(); self.t = k.s()
        k(f's_mul_i32 {self.src}, {s_jm}, 110592\ns_mul_i32 {self.t}, {s_w}, 3072\ns_add_u32 {self.src}, {self.src}, {self.t}\ns_add_u32 {self.src}, {self.src}, {base}')
        k(f's_lshr_b32 {self.wh}, {s_w}, 1\ns_and_b32 {self.wl}, {s_w}, 1\ns_mul_i32 {self.wl}, {self.wl}, 3072')
    def ops(self, P):
        c0, c1 = self.at[2 * P], self.at[2 * P + 1]
        ld = lambda i: f'buffer_load_dwordx4 {self.l16}, {self.R}, {self.src} offen sc1 lds'
        return [[f's_mul_i32 {self.t}, {self.wh}, {c1 - c0}', f's_add_u32 {self.t}, {self.t}, {self.wl}', f's_add_u32 m0, {self.t}, {c0}', ld(0)],
                [f's_add_u32 m0, {self.t}, {c0 + 1024}', f's_add_u32 {self.src}, {self.src}, 1024', ld(1)],
                [f's_add_u32 m0, {self.t}, {c0 + 2048}', f's_add_u32 {self.src}, {self.src}, 1024', ld(2), f's_add_u32 {self.src}, {self.src}, {12288 - 2048}']]
    def release(self):
        for x in (self.src, self.wh, self.wl, self.t): x.release()
```

```python
from common import *

N_SIG = 64 + 45
BUF0, BUF1, SVEC = 0, 73728, 147456
K1_LDS = 147456 + 2560
SPIN_MAX = 40000

def vmaps():
    maps = [list(range(16))]
    for s in (1, 2, 3):
        m = list(maps[-1]); step = 1 << s
        new = [step * i for i in range(8, 16)]
        for j in range(16):
            if m[j] % step: m[j] = new.pop(0)
        assert not new
        maps.append(m)
    return maps

def service(k, P, lane, s_w, END, NEXT, SP):
    vm, lg = trackers(k)
    Rws = k.s(4); Rdbg = k.s(4); RA = k.s(4); RB = k.s(4)
    srd(k, Rws, P['ws'], WS_USED); srd(k, Rdbg, P['dbg'], 256)
    z4 = k.v(4, 4); zero = z4.sub(0, 2); one = k.v(); l16 = k.v(); q = k.v(); m = k.v()
    fr = k.v(72, 4); sv = k.v(72, 4); acc = k.v(4, 4)
    sav = k.s(2); st = k.s(); cnt = k.s()
    jb = k.s(); modeB = k.s(); blkB = k.s(); srcB = k.s(); strB = k.s()
    L_mod, L_B, L_C = k.label('mod'), k.label('jobB'), k.label('jobC')
    k(f'v_lshrrev_b32 {q}, 4, {lane}\nv_and_b32 {m}, 15, {lane}\nv_lshlrev_b32 {l16}, 4, {lane}')
    cjs = {}
    def common():
        for i in range(4): k(f'v_mov_b32 {z4[i]}, 0')
        k(f'v_mov_b32 {one}, 1\ns_mov_b32 {cnt}, 0')
        k(f's_add_u32 {jb}, s2, 32\ns_sub_u32 {blkB}, s2, 64\ns_cmp_ge_u32 s2, 64\ns_cselect_b32 {jb}, {blkB}, {jb}')
        k(f's_cmp_ge_u32 s2, 96\ns_cselect_b32 {jb}, 200, {jb}\ns_sub_u32 {blkB}, s2, 7\ns_cmp_ge_u32 s2, 103\ns_cselect_b32 {jb}, {blkB}, {jb}')
        srd(k, RB, P['wmod'], D * 3456 * 2)
        k(f's_mov_b32 {modeB}, 0\ns_cmp_ge_u32 {jb}, 6\ns_cselect_b32 {blkB}, 39, 30\ns_add_u32 {blkB}, {blkB}, {jb}\ns_mov_b32 {strB}, 6912')
        for mode, lo, ptr, nb, st_ in ((2, 15, 'w2', D * D * 2, 1152), (3, 24, 'w3', D * F * 2, 9216), (1, 96, 'w1', D * D * 2, 1152)):
            k(f's_sub_u32 {srcB}, {jb}, {lo}\ns_cmp_ge_u32 {jb}, {lo}')
            k(f's_cselect_b32 {blkB}, {srcB}, {blkB}\ns_cselect_b32 {modeB}, {mode}, {modeB}\ns_cselect_b32 {strB}, {st_}, {strB}')
            k(f's_cselect_b32 {RB[0]}, {P[ptr][0]}, {RB[0]}\ns_cselect_b32 {RB[1]}, {P[ptr][1]}, {RB[1]}\ns_cselect_b32 {RB[2]}, {nb}, {RB[2]}')
        k(f's_lshl_b32 {srcB}, {blkB}, 7')
    def signal(off, last):
        sk = k.label('notlast')
        k(f's_mov_b64 exec, 1\nv_mov_b32 {acc[0]}, 1\nbuffer_atomic_add {acc[0]}, {zero[0]}, {Rdbg}, {off} offen offset:64 sc0 sc1\ns_waitcnt vmcnt(0)')
        k(f'v_readfirstlane_b32 {st}, {acc[0]}\ns_cmp_lg_u32 {st}, {last}\ns_cbranch_scc1 {sk}')
        k(f'buffer_store_dword {one}, {zero[0]}, {Rdbg}, {off} offen offset:192 sc1\n{sk}:\ns_mov_b64 exec, -1')
    cj = ColJob(k, vm, lg, lane, s_w)
    L_w1 = k.label('w1')
    k(f's_cmp_ge_u32 s2, 103\ns_cbranch_scc1 {L_w1}\ns_cmp_ge_u32 s2, 64\ns_cbranch_scc1 {L_mod}')

    srd(k, RA, P['u'], L * D * 2)
    va = k.v(); vx = k.v(2); t = k.v(6); row = k.v(); s1 = k.s()
    k(f's_and_b32 {st}, {s_w}, 1\ns_lshl_b32 {s1}, s2, 1\ns_add_u32 {st}, {st}, {s1}\ns_lshl_b32 {st}, {st}, 4\nv_add_u32 {row}, {st}, {m}')
    k(f's_lshr_b32 {s1}, {s_w}, 1\ns_mul_i32 {st}, {s1}, 576\nv_mul_u32_u24 {va}, 1152, {row}\nv_lshl_add_u32 {va}, {q}, 4, {va}')
    ix = [vm.op(f'buffer_load_dwordx4 {fr.sub(4 * i, 4)}, {va}, {RA}, {st} offen offset:{64 * i}') for i in range(9)]
    pf = k.v(2); pfs = k.s(2)
    common()
    sk = k.label('noclr')
    k(f's_cmp_ge_u32 {s_w}, 2\ns_cbranch_scc1 {sk}\ns_lshl_b32 {st}, s2, 1\ns_add_u32 {st}, {st}, {s_w}\ns_lshl_b32 {st}, {st}, 10')
    k(f'buffer_store_dwordx4 {z4}, {l16}, {Rws}, {st} offen sc1\n{sk}:')
    sk = k.label('nopad')
    k(f's_cmp_lg_u32 {s_w}, 2\ns_cbranch_scc1 {sk}\ns_cmp_ge_u32 s2, 36\ns_cbranch_scc1 {sk}\ns_lshr_b32 {st}, s2, 1\ns_mul_i32 {st}, {st}, {GPL}\ns_bitcmp1_b32 s2, 0\ns_cselect_b32 {sav[0]}, {2050 * 64}, 0')
    k(f's_add_u32 {st}, {st}, {sav[0]}\ns_add_u32 {st}, {st}, {O_G}\ns_mov_b64 exec, 0xff\nbuffer_store_dwordx4 {z4}, {l16}, {Rws}, {st} offen sc1\ns_mov_b64 exec, -1\n{sk}:')
    k(f'v_and_b32 {t[0]}, 1, {m}\nv_lshl_add_u32 {t[1]}, {q}, 1, {t[0]}\nv_lshlrev_b32 {vx[0]}, 14, {t[1]}\nv_sub_u32 {t[1]}, {row}, {t[0]}\nv_lshl_add_u32 {vx[0]}, {t[1]}, 3, {vx[0]}')
    k(f's_mul_i32 {s1}, {s1}, {9 * 131072}\ns_add_u32 {s1}, {s1}, {O_XT}\ns_mov_b32 {st}, 0x3f803f80\nv_cmp_eq_u32 vcc, 0, {t[0]}')
    for i in range(4): k(f'v_mov_b32 {acc[i]}, 0')
    dp = 'quad_perm:[1,0,3,2] row_mask:0xf bank_mask:0xf'
    for i in range(9):
        vm.wait(ix[i])
        if i == 0: SP(8)
        r_ = fr.sub(4 * i, 4); o = sv.sub(4 * i, 4)
        k(f'v_cndmask_b32_dpp {o[0]}, {r_[2]}, {r_[0]}, vcc {dp}\nv_cndmask_b32_dpp {o[1]}, {r_[3]}, {r_[1]}, vcc {dp}\ns_not_b64 vcc, vcc')
        k(f'v_cndmask_b32_dpp {o[2]}, {r_[0]}, {r_[2]}, vcc {dp}\nv_cndmask_b32_dpp {o[3]}, {r_[1]}, {r_[3]}, vcc {dp}\ns_not_b64 vcc, vcc')
        vm.op(f'buffer_store_dwordx4 {o}, {vx[0]}, {Rws}, {s1} offen sc1')
        if i < 8: k(f's_add_u32 {s1}, {s1}, 131072')
    for i in range(36):
        k(f'v_dot2_f32_bf16 {acc[i & 1]}, {fr[i]}, {st}, {acc[i & 1]}')
        k(f'v_dot2_f32_bf16 {acc[2 + (i & 1)]}, {fr[i]}, {fr[i]}, {acc[2 + (i & 1)]}')
    k(f'v_add_f32 {t[0]}, {acc[0]}, {acc[1]}\nv_add_f32 {t[2]}, {acc[2]}, {acc[3]}\nv_permlane32_swap_b32 {t[0]}, {t[2]}\nv_add_f32 {t[0]}, {t[0]}, {t[2]}')
    k(f'v_mov_b32 {t[1]}, {t[0]}\nv_permlane16_swap_b32 {t[0]}, {t[1]}\nv_add_f32 {t[0]}, {t[0]}, {t[1]}')
    k(f's_lshl_b32 {st}, {s_w}, 8\ns_add_u32 {st}, {st}, {SVEC}\nv_lshl_add_u32 {t[1]}, {lane}, 2, {st}\nds_write_b32 {t[1]}, {t[0]}')
    k('s_waitcnt lgkmcnt(0)\ns_barrier')
    a, b = k.label('notw0'), k.label('sigd')
    k(f's_cmp_lg_u32 {s_w}, 0\ns_cbranch_scc1 {a}')
    k(f'v_and_b32 {t[1]}, 1, {q}\nv_lshlrev_b32 {t[1]}, 8, {t[1]}\nv_lshl_add_u32 {t[1]}, {m}, 2, {t[1]}\nv_add_u32 {t[1]}, {SVEC}, {t[1]}')
    k(f'ds_read2_b32 {t[2:4]}, {t[1]} offset0:0 offset1:32\nds_read2_b32 {t[4:6]}, {t[1]} offset0:128 offset1:160\ns_waitcnt lgkmcnt(0)')
    k(f'v_add_f32 {t[0]}, {t[2]}, {t[4]}\nv_add_f32 {t[2]}, {t[3]}, {t[5]}')
    sigma_bf16(k, t[0], t[2])
    k(f'v_cvt_pk_bf16_f32 {t[2]}, {t[0]}, {t[2]}\nv_lshlrev_b32 {t[1]}, 2, {lane}\ns_lshl_b32 {st}, s2, 7\ns_add_u32 {st}, {st}, {O_STATS}')
    k(f's_mov_b32 exec_hi, 0\nbuffer_store_dword {t[2]}, {t[1]}, {Rws}, {st} offen sc1\ns_mov_b64 exec, -1')
    k(f'{a}:\ns_waitcnt vmcnt(0)\ns_barrier'); vm.reset()
    k(f's_cmp_lg_u32 {s_w}, 0\ns_cbranch_scc1 {b}')
    signal(0, 63)
    k(f'{b}:'); SP(9)
    cj.dma(RB, srcB, strB, BUF1)
    srd(k, RA, P['w4'], D * F * 2)
    k(f's_mul_hi_u32 {st}, s2, {(1 << 32) // 9 + 1}\ns_mul_i32 {s1}, {st}, 9\ns_sub_u32 {s1}, s2, {s1}\ns_lshl_b32 {s1}, {s1}, 7')
    k(f's_mul_i32 {st}, {st}, {576 * 1152}\ns_add_u32 {s1}, {s1}, {st}\ns_mov_b32 {st}, 1152')
    cj.dma(RA, s1, st, BUF0)
    k(f's_branch {L_B}')
    for x_ in (va, vx, t, row, s1): x_.release()

    def mod_tail(ids, s_blk, sig):
        t = k.v(2); vg = k.v(); s1 = k.s()
        for s in range(18):
            if s % 2 == 0: lg.wait(ids[s + 1])
            k(f'v_mfma_f32_16x16x32_bf16 {acc}, {sv.sub(4 * s, 4)}, {fr.sub(4 * s, 4)}, {"0" if s == 0 else acc}')
        k(f's_lshl_b32 {s1}, {s_w}, 6\ns_add_u32 {s1}, {s1}, {SVEC + 2048}\nv_lshl_add_u32 {vg}, {m}, 2, {s1}')
        k(f'v_cvt_pk_bf16_f32 {t[0]}, {acc[0]}, {acc[0]}\nv_and_b32 {t[0]}, 0xffff0000, {t[0]}')
        k(f'v_add_f32 {t[1]}, 1.0, {t[0]}\nv_cvt_pk_bf16_f32 {t[1]}, {t[1]}, {t[1]}\nv_and_b32 {t[1]}, 0xffff0000, {t[1]}')
        k(f's_mov_b64 vcc, 0\ns_sub_u32 {s1}, {s_blk}, 9\ns_cmp_lt_u32 {s1}, 9\ns_cselect_b64 vcc, -1, vcc')
        k(f's_sub_u32 {s1}, {s_blk}, 36\ns_cmp_lt_u32 {s1}, 9\ns_cselect_b64 vcc, -1, vcc')
        k(f'v_cndmask_b32 {t[0]}, {t[0]}, {t[1]}, vcc\nds_write_b32 {vg}, {t[0]}\ns_waitcnt lgkmcnt(0)\ns_barrier'); lg.reset()
        a, b = k.label('notw0'), k.label('nob')
        k(f's_cmp_lg_u32 {s_w}, 0\ns_cbranch_scc1 {a}')
        k(f'v_lshlrev_b32 {vg}, 3, {lane}\nv_add_u32 {t[0]}, {SVEC + 2048}, {vg}\nds_read_b64 {t}, {t[0]}\ns_lshl_b32 {s1}, {s_blk}, 8\ns_add_u32 {s1}, {s1}, {O_MODF}')
        k(f's_mov_b32 exec_hi, 0\ns_waitcnt lgkmcnt(0)\nbuffer_store_dwordx2 {t}, {vg}, {Rws}, {s1} offen sc1')
        if sig:
            k(f's_sub_u32 {s1}, {s_blk}, 27\ns_cmp_ge_u32 {s1}, 18\ns_cbranch_scc1 {b}')
            k(f'v_cvt_pk_bf16_f32 {acc[0]}, {t[0]}, {t[1]}\nv_lshrrev_b32 {vg}, 1, {vg}\ns_lshl_b32 {s1}, {s1}, 7\ns_add_u32 {s1}, {s1}, {O_MODB}')
            k(f'buffer_store_dword {acc[0]}, {vg}, {Rws}, {s1} offen sc1\n{b}:')
            k(f's_cmp_ge_u32 {s_blk}, 45\ns_cbranch_scc1 {a}\ns_sub_u32 {s1}, {s_blk}, 27\ns_cmp_lt_u32 {s1}, 9')
            k(f's_cselect_b32 {sav[0]}, 12, 4\ns_cselect_b32 {sav[1]}, 8, 35\ns_waitcnt vmcnt(0)')
            signal(sav[0], sav[1])
        k(f'{a}:\ns_mov_b64 exec, -1')
        t.release(); vg.release(); s1.release()

    k(f'{L_mod}:')
    vm, lg = trackers(k); cj.vm, cj.lg = vm, lg
    blkA = k.s(); srcA = k.s(); strA = k.s(); Rc = k.s(4)
    srd(k, RA, P['wmod'], D * 3456 * 2); srd(k, Rc, P['c'], D * 2)
    k(f's_sub_u32 {blkA}, s2, 64\ns_cmp_ge_u32 {blkA}, 27\ns_cselect_b32 {st}, 9, 0\ns_cmp_ge_u32 {blkA}, 36\ns_cselect_b32 {st}, -9, {st}\ns_add_u32 {blkA}, {blkA}, {st}')
    k(f's_lshl_b32 {srcA}, {blkA}, 7\ns_mov_b32 {strA}, 6912')
    t = k.v(8); vg = k.v()
    k(f'v_lshlrev_b32 {vg}, 3, v0')
    ic = vm.op(f'buffer_load_dwordx2 {t[0:2]}, {vg}, {Rc}, 0 offen')
    ia = cj.dma(RA, srcA, strA, BUF0)
    common()
    vm.wait(ic)
    k(f'v_lshlrev_b32 {t[2]}, 16, {t[0]}\nv_and_b32 {t[3]}, 0xffff0000, {t[0]}\nv_lshlrev_b32 {t[4]}, 16, {t[1]}\nv_and_b32 {t[5]}, 0xffff0000, {t[1]}')
    e = k.v(4)
    for i in range(4): k(f'v_mul_f32 {e[i]}, {fl(-LOG2E)}, {t[2 + i]}')
    for i in range(4): k(f'v_exp_f32 {e[i]}, {e[i]}')
    for i in range(4): k(f'v_add_f32 {e[i]}, 1.0, {e[i]}')
    for i in range(4): k(f'v_rcp_f32 {e[i]}, {e[i]}')
    for i in range(4): k(f'v_mul_f32 {e[i]}, {e[i]}, {t[2 + i]}')
    k(f'v_cvt_pk_bf16_f32 {t[0]}, {e[0]}, {e[1]}\nv_cvt_pk_bf16_f32 {t[1]}, {e[2]}, {e[3]}\nv_add_u32 {vg}, {SVEC}, {vg}')
    k(f'ds_write_b64 {vg}, {t[0:2]}\nv_lshlrev_b32 {vg}, 4, {q}\nv_add_u32 {vg}, {SVEC}, {vg}\ns_waitcnt lgkmcnt(0)\ns_barrier')
    for s in range(18): lg.op(f'ds_read_b128 {sv.sub(4 * s, 4)}, {vg} offset:{64 * s}')
    ad = cj.addr(BUF0)
    k('s_waitcnt vmcnt(0) lgkmcnt(0)\ns_barrier'); SP(10); vm.reset(); lg.reset()
    ids = cj.reads(ad, fr)
    mod_tail(ids, blkA, True); SP(11)
    k(f's_cmp_ge_u32 {jb}, 200\ns_cbranch_scc1 {L_C}')
    cj.dma(RB, srcB, strB, BUF1)
    k(f's_waitcnt vmcnt(0)\ns_branch {L_B}')
    e.release(); t.release(); vg.release()

    k(f'{L_w1}:')
    common()
    cj.dma(RB, srcB, strB, BUF1)
    k('s_waitcnt vmcnt(0)')

    k(f'{L_B}:')
    vm, lg = trackers(k); cj.vm, cj.lg = vm, lg
    k(f's_waitcnt vmcnt(18) lgkmcnt(0)\ns_barrier')
    SP(12)
    il = k.s(); k(f's_sub_u32 {il}, {modeB}, 1\ns_cmp_lt_u32 {il}, 2\ns_cselect_b32 {il}, 1, 0')
    ids = cj.read(BUF1, fr, s_il=il)
    notmod, nocenter = k.label('notmod'), k.label('nocenter')
    k(f's_cmp_lg_u32 {modeB}, 0\ns_cbranch_scc1 {notmod}')
    mod_tail(ids, blkB, True)
    k(f's_branch {L_C}\n{notmod}:')
    k('s_waitcnt lgkmcnt(0)'); lg.reset()
    k(f's_bitcmp0_b32 {modeB}, 0\ns_cbranch_scc1 {nocenter}')
    ones = sv.sub(0, 4); t = k.v(4); gof = k.v(4, 4)
    go2_ld = f'buffer_load_dwordx4 {gof}, {zero[0]}, {Rdbg}, 0 offen offset:192 sc1'
    k(go2_ld)
    for i in range(4): k(f'v_mov_b32 {ones[i]}, 0x3f803f80')
    for s in range(18): k(f'v_mfma_f32_16x16x32_bf16 {acc}, {ones}, {fr.sub(4 * s, 4)}, {"0" if s == 0 else acc}')
    nm = sv.sub(4, 2)
    k(f'v_mul_f32 {nm[0]}, {fl(-1 / 576)}, {acc[0]}')
    for i in range(0, 72, 2):
        k(f'v_lshlrev_b32 {t[0]}, 16, {fr[i]}\nv_and_b32 {t[1]}, 0xffff0000, {fr[i]}')
        k(f'v_lshlrev_b32 {t[2]}, 16, {fr[i + 1]}\nv_and_b32 {t[3]}, 0xffff0000, {fr[i + 1]}')
        k(f'v_pk_add_f32 {t[0:2]}, {t[0:2]}, {nm} op_sel_hi:[1,0]\nv_pk_add_f32 {t[2:4]}, {t[2:4]}, {nm} op_sel_hi:[1,0]')
        k(f'v_cvt_pk_bf16_f32 {fr[i]}, {t[0]}, {t[1]}\nv_cvt_pk_bf16_f32 {fr[i + 1]}, {t[2]}, {t[3]}')
    k(f'{nocenter}:')
    T = k.s(); j = k.s(); dst = k.s(); step = k.s(); rot = k.s()
    k(f's_lshl_b32 {T}, {blkB}, 2\ns_add_u32 {T}, {T}, {s_w}')
    k(f's_mul_hi_u32 {j}, {T}, {(1 << 32) // 6 + 1}\ns_mul_i32 {dst}, {j}, 6\ns_sub_u32 {dst}, {T}, {dst}\ns_lshl_b32 {dst}, {dst}, 10')
    k(f's_mul_i32 {step}, {j}, 110592\ns_add_u32 {dst}, {dst}, {step}')
    k(f's_mul_i32 {rot}, {j}, 3\ns_sub_u32 {rot}, 18, {rot}\ns_cmp_eq_u32 {rot}, 18\ns_cselect_b32 {rot}, 0, {rot}')
    k(f's_cmp_eq_u32 {modeB}, 1\ns_cselect_b32 {rot}, {rot}, 0\ns_cselect_b32 {step}, 0, {O_W2F - O_W1F}\ns_add_u32 {dst}, {dst}, {step}\ns_add_u32 {dst}, {dst}, {O_W1F}')
    k(f's_mul_i32 {j}, {T}, 18432\ns_add_u32 {j}, {j}, {O_W3F}')
    k(f's_cmp_ge_u32 {modeB}, 3\ns_cselect_b32 {dst}, {j}, {dst}\ns_cselect_b32 {step}, 1, 6\ns_lshl_b32 {step}, {step}, 10')
    notw1, L_st = k.label('notw1'), k.label('stored')
    k(f's_cmp_lg_u32 {modeB}, 1\ns_cbranch_scc1 {notw1}')
    cj.store(fr, None, Rws, dst, step, s_rot=rot)
    sk = k.label('nosig')
    k(f's_waitcnt vmcnt(0)\ns_barrier\ns_cmp_lg_u32 {s_w}, 0\ns_cbranch_scc1 {sk}')
    signal(8, 8)
    k(f'{sk}:')
    lp, ok = k.label('pollm'), k.label('gotm')
    k(f'{lp}:\ns_waitcnt vmcnt(0)\nv_and_b32 {gof[1]}, {gof[1]}, {gof[3]}\nv_readfirstlane_b32 {st}, {gof[1]}\ns_cmp_ge_u32 {st}, 1\ns_cbranch_scc1 {ok}')
    k(f's_sleep 4\n{go2_ld}\ns_add_u32 {cnt}, {cnt}, 1\ns_cmp_lt_u32 {cnt}, {SPIN_MAX}\ns_cbranch_scc1 {lp}\ns_branch {END}\n{ok}:'); vm.reset()
    k(f'v_and_b32 {t[0]}, 1, {m}\nv_xor_b32 {t[0]}, 1, {t[0]}\nv_mul_u32_u24 {t[0]}, 1152, {t[0]}\nv_lshl_add_u32 {t[0]}, {q}, 4, {t[0]}\ns_mov_b32 {st}, {O_MODB}')
    ids = [vm.op(f'buffer_load_dwordx4 {sv.sub(4 * s, 4)}, {t[0]}, {Rws}, {st} offen offset:{64 * s} sc1') for s in range(18)]
    k(f's_lshr_b32 {j}, {s_w}, 1\ns_lshl_b32 {j}, {j}, 7\ns_and_b32 {st}, {s_w}, 1\ns_lshl_b32 {st}, {st}, 4\ns_add_u32 {j}, {j}, {st}\ns_add_u32 {j}, {j}, {SVEC}')
    k(f'v_lshrrev_b32 {t[1]}, 2, {m}\nv_and_b32 {t[2]}, 3, {m}\nv_lshlrev_b32 {t[2]}, 2, {t[2]}\nv_lshl_add_u32 {t[1]}, {t[1]}, 5, {t[2]}\nv_add_u32 {t[1]}, {j}, {t[1]}')
    for s in range(18):
        vm.wait(ids[s])
        k(f'v_mfma_f32_16x16x32_bf16 {acc}, {sv.sub(4 * s, 4)}, {fr.sub(4 * s, 4)}, {"0" if s == 0 else acc}')
    k(f'ds_write2st64_b32 {t[1]}, {acc[0]}, {acc[1]} offset0:0 offset1:1\ns_waitcnt lgkmcnt(0)\ns_barrier\ns_cmp_lg_u32 {s_w}, 0\ns_cbranch_scc1 {L_st}')
    k(f'v_add_u32 {t[0]}, {SVEC}, {l16}\nds_read_b128 {acc}, {t[0]}\nv_mul_u32_u24 {t[1]}, 2304, {q}\nv_lshl_add_u32 {t[1]}, {m}, 4, {t[1]}')
    k(f's_lshl_b32 {j}, {blkB}, 8\ns_add_u32 {j}, {j}, {O_MODF + 6 * 2304}\ns_mov_b32 exec_hi, 0\ns_waitcnt lgkmcnt(0)')
    k(f'buffer_store_dwordx4 {acc}, {t[1]}, {Rws}, {j} offen sc1\ns_mov_b64 exec, -1')
    k(f'{L_st}:\ns_branch {L_C}')
    k(f'{notw1}:'); vm.reset()
    cj.store(fr, None, Rws, dst, step, s_rot=rot)
    k(f'{L_C}:'); SP(13)
    code_prefetch(k, None, NEXT, END, 40000, 'v0', pf, pfs)
    k(f's_branch {NEXT}')

TAB, KD = 0, 17408

def conv(k, P, lane, s_w, END, NEXT, dump, SP):
    vm, lg = trackers(k)
    cidx = k.s(); s_d = k.s(); st = k.s(); st2 = k.s(); sav = k.s(2)
    k(f's_and_b32 {cidx}, s2, 7\ns_mul_i32 {cidx}, {cidx}, 18\ns_lshr_b32 {st}, s2, 3\ns_add_u32 {cidx}, {cidx}, {st}\ns_sub_u32 {cidx}, {cidx}, 14')
    k(f's_lshl_b32 {s_d}, {cidx}, 2\ns_add_u32 {s_d}, {s_d}, {s_w}\ns_lshl_b32 {st}, {cidx}, 3')
    sdt = k.s(2); sD = k.s(2)
    k(f's_load_dwordx2 {sdt}, {P["logdt"]}, {st}\ns_load_dwordx2 {sD}, {P["Dskip"]}, {st}')
    R = k.s(4); Rws = k.s(4); Rdbg = k.s(4)
    par = k.v(4); t = k.v(8); x = k.v(16)
    k(f'v_lshlrev_b32 {t[0]}, 2, {lane}\ns_lshl_b32 {st2}, {s_d}, 8')
    for i, n in enumerate(('logA', 'Aim', 'Cr', 'Ci')):
        srd(k, R, P[n], D * 128 * 2)
        ipar = vm.op(f'buffer_load_dword {par[i]}, {t[0]}, {R}, {st2} offen')
    srd(k, Rws, P['ws'], WS_USED); srd(k, Rdbg, P['dbg'], 256)
    wb = k.s(); k(f's_mul_i32 {wb}, {s_w}, {WSTR}')
    q = k.v(); m = k.v(); ag = k.v(); am = k.v(); a4 = k.v(); fl_v = k.v(2)
    k(f'v_lshrrev_b32 {q}, 4, {lane}\nv_and_b32 {m}, 15, {lane}')
    ga = k.v(32); cst = k.v()
    k(f's_add_u32 {st2}, {wb}, {KD - 2 * (134 * 128 - 128)}\nv_mov_b32 {cst}, {st2}')
    k(f'v_lshlrev_b32 {t[2]}, 3, {lane}\nv_cvt_f32_u32 {t[2]}, {t[2]}')
    for c in range(4):
        for e in range(0, 8, 2):
            k(f'v_add_f32 {t[4]}, {fl(512 * c + e)}, {t[2]}\nv_add_f32 {t[5]}, {fl(512 * c + e + 1)}, {t[2]}\nv_cvt_pk_bf16_f32 {t[4]}, {t[4]}, {t[5]}')
            k(f'v_mad_u32_u16 {ga[8 * c + e]}, {t[4]}, 2, {cst}\nv_mad_u32_u16 {ga[8 * c + e + 1]}, {t[4]}, 2, {cst} op_sel:[1,0,0,0]')
    k(f's_add_u32 {st2}, {wb}, {KD}\nv_lshl_add_u32 {t[4]}, {lane}, 4, {st2}\nv_cmp_gt_u32 vcc, 16, {lane}')
    for e in range(8): k(f'v_add_u32 {t[5]}, {2 * e}, {t[4]}\nv_cndmask_b32 {ga[e]}, {ga[e]}, {t[5]}, vcc')
    VM = vmaps()
    kda = k.v(4)
    k(f'v_lshlrev_b32 {t[2]}, 2, {m}')
    for s in range(4):
        lut = sum((VM[s][j] >> s) << (4 * j) for j in range(16))
        base = 0 if s == 0 else 128 + 128 * s
        k(f's_mov_b32 {sav[0]}, {lut & 0xffffffff}\ns_mov_b32 {sav[1]}, {lut >> 32}\nv_lshrrev_b64 {t[4:6]}, {t[2]}, {sav}\nv_and_b32 {t[4]}, 15, {t[4]}')
        k(f'v_lshl_add_u32 {t[4]}, {q}, 6, {t[4]}\ns_add_u32 {st2}, {wb}, {KD + 2 * base}\nv_lshl_add_u32 {kda[s]}, {t[4]}, 1, {st2}')
    cst.release()
    atw = k.v(); atr = k.v()
    k(f'v_lshl_add_u32 {atw}, {lane}, 3, {wb}\nv_mul_u32_u24 {atr}, 544, {m}\nv_lshl_add_u32 {atr}, {q}, 4, {atr}\nv_add_u32 {atr}, {wb}, {atr}')
    z4 = k.v(4)
    for i in range(4): k(f'v_mov_b32 {z4[i]}, 0')
    k(f'v_lshrrev_b32 {t[4]}, 5, v0\nv_mul_u32_u24 {t[4]}, {HSTR}, {t[4]}\nv_and_b32 {t[5]}, 31, v0\nv_lshl_add_u32 {t[4]}, {t[5]}, 4, {t[4]}\nv_add_u32 {t[4]}, {HB}, {t[4]}')
    k(f'v_cmp_gt_u32 vcc, 128, v0\ns_and_saveexec_b64 {sav}, vcc\nds_write_b128 {t[4]}, {z4}\ns_mov_b64 exec, {sav}')
    k('s_waitcnt lgkmcnt(0)')
    k(f's_lshl_b32 {st2}, {s_w}, 4\ns_lshr_b64 {sdt}, {sdt}, {st2}\ns_lshl_b32 {sdt[0]}, {sdt[0]}, 16')
    dt = k.v(); ks = k.v()
    k(f'v_mov_b32 {dt}, {fl(LOG2E)}\nv_mul_f32 {dt}, {sdt[0]}, {dt}\nv_exp_f32 {dt}, {dt}\nv_cvt_pk_bf16_f32 {dt}, {dt}, {dt}\nv_and_b32 {dt}, 0xffff0000, {dt}')
    SP(1); vm.wait(ipar); SP(2)
    pr = lambda: [k.v(2), k.v(2)]
    w1, w16, U = pr(), pr(), pr()
    er = k.v(2); rev = k.v(2)
    un = lambda d, s_, hi: f'v_and_b32 {d}, 0xffff0000, {s_}' if hi else f'v_lshlrev_b32 {d}, 16, {s_}'
    for md in range(2):
        k(un(er[md], par[0], md)); k(un(rev[md], par[1], md)); k(un(U[0][md], par[2], md)); k(un(U[1][md], par[3], md))
    for md in range(2): k(f'v_mul_f32 {er[md]}, {fl(LOG2E)}, {er[md]}')
    for md in range(2): k(f'v_exp_f32 {er[md]}, {er[md]}')
    k(f'v_max3_f32 {t[0]}, |{U[0][0]}|, |{U[0][1]}|, |{U[1][0]}|\nv_max_f32 {t[0]}, |{U[1][1]}|, {t[0]}')
    k(f'v_cvt_pk_bf16_f32 {t[1]}, {er[0]}, {er[1]}')
    for mm in ('quad_perm:[1,0,3,2]', 'quad_perm:[2,3,0,1]', 'row_half_mirror', 'row_mirror'):
        k(f'v_max_f32_dpp {t[0]}, {t[0]}, {t[0]} {mm} row_mask:0xf bank_mask:0xf')
    for md in range(2):
        k(un(er[md], t[1], md))
        k(f'v_mul_f32 {er[md]}, {er[md]}, {dt}\nv_mul_f32 {rev[md]}, {rev[md]}, {dt}')
        k(f'v_mul_f32 {er[md]}, {fl(-LOG2E)}, {er[md]}\nv_mul_f32 {rev[md]}, 0.15915494, {rev[md]}')
    k(f'v_readlane_b32 {st2}, {t[0]}, 0\nv_readlane_b32 {sav[0]}, {t[0]}, 16\nv_readlane_b32 {sav[1]}, {t[0]}, 32\nv_readlane_b32 {st}, {t[0]}, 48')
    k(f's_max_u32 {st2}, {st2}, {sav[0]}\ns_max_u32 {st}, {st}, {sav[1]}\ns_max_u32 {st2}, {st2}, {st}')
    for w_, mul in ((w1, None), (w16, '16.0')):
        for md in range(2):
            a, b = t[2 + md], t[4 + md]
            if mul: k(f'v_mul_f32 {a}, {fl(16.)}, {er[md]}\nv_mul_f32 {b}, {fl(16.)}, {rev[md]}\nv_fract_f32 {b}, {b}\nv_exp_f32 {a}, {a}')
            else: k(f'v_fract_f32 {b}, {rev[md]}\nv_exp_f32 {a}, {er[md]}')
            k(f'v_cos_f32 {w_[0][md]}, {b}\nv_sin_f32 {w_[1][md]}, {b}')
        for c in range(2): k(f'v_pk_mul_f32 {w_[c]}, {w_[c]}, {t[2:4]}')
    k(f'v_frexp_exp_i32_f32 {t[0]}, {st2}\nv_sub_u32 {t[1]}, 8, {t[0]}\nv_add_u32 {t[0]}, -7, {t[0]}\nv_ldexp_f32 {ks}, {dt}, {t[0]}')
    for md in range(2):
        for c in range(2): k(f'v_ldexp_f32 {U[c][md]}, {U[c][md]}, {t[1]}')
    er.release(); rev.release(); dt.release()
    tm = [k.v(2) for _ in range(4)]
    def cmul(d, z, s_, ta, tb):
        return [f'v_pk_mul_f32 {ta}, {z[1]}, {s_[1]}', f'v_pk_mul_f32 {tb}, {z[0]}, {s_[1]}',
                f'v_pk_fma_f32 {d[0]}, {z[0]}, {s_[0]}, {ta} neg_lo:[0,0,1] neg_hi:[0,0,1]', f'v_pk_fma_f32 {d[1]}, {z[1]}, {s_[0]}, {tb}']
    w32, w64, w128, w2, w4, w8, V = pr(), pr(), pr(), pr(), pr(), pr(), pr()
    for d_, s_ in ((w32, w16), (w64, w32), (w128, w64)):
        for x_ in cmul(d_, s_, s_, tm[0], tm[1]): k(x_)
    pv = [k.v(2), k.v(2)]; pu = [k.v(2), k.v(2)]
    fa = k.v(32, 4); fb = k.v(32, 4); kacc = k.v(16, 4)
    state = {'V': None, 'nv': 0, 'nu': 0}
    def v_entry(val, slot):
        out = []
        pk = pv[state['nv'] & 1]; state['nv'] += 1
        if val == 0:
            out += [f'v_mov_b32 {pk[0]}, 0x3c00', f'v_mov_b32 {pk[1]}, 0x3c00']
        else:
            if val == 1: cur = w1
            else:
                step = w1 if val <= 16 else w2 if val <= 32 else w4 if val <= 64 else w8
                cur = {2: w2, 4: w4, 8: w8}.get(val, V)
                out += cmul(cur, state['V'], step, tm[0], tm[1])
            state['V'] = cur
            out += [f'v_cvt_pk_f16_f32 {pk[md]}, {cur[0][md]}, {cur[1][md]}' for md in range(2)]
        out.append(('ds', f'ds_write_b64 {atw}, {pk} offset:{TAB + slot * 544}'))
        return out
    def u_entry(val, row):
        out = []
        pk = pu[state['nu'] & 1]; state['nu'] += 1
        if val:
            step = w16 if val <= 256 else w32 if val <= 512 else w64 if val <= 1024 else w128
            out += cmul(U, U, step, tm[2], tm[3])
        out += [f'v_cvt_pk_f16_f32 {pk[md]}, {U[0][md]}, -{U[1][md]}' for md in range(2)]
        out.append(('ds', f'ds_write_b64 {atw}, {pk} offset:{TAB + (16 + row) * 544}'))
        return out
    def put(x_):
        if isinstance(x_, tuple): return lg.op(x_[1])
        k(x_)
    pend = []
    flag_ld = f'buffer_load_dwordx2 {fl_v}, {z4[0]}, {Rdbg}, 0 offen offset:192 sc1'
    ifl = None
    for s in range(4):
        vs = sorted((VM[s][j], j) for j in range(16) if s == 0 or VM[s][j] != VM[s - 1][j])
        us = [16 * u for u in range(16)] if s == 0 else [(128 << s) + (16 << s) * u for u in range(9 if s == 3 else 8)]
        sv_ = [x_ for val, j in vs for x_ in v_entry(val, j)]
        su_ = [x_ for r_, val in enumerate(us) for x_ in u_entry(val, r_)]
        stream = interleave(sv_, su_)
        for n_, x_ in enumerate(stream):
            put(x_)
            if n_ == 27:
                while pend:
                    idr, mf = pend.pop(0); lg.wait(idr); k(mf)
            if s == 3 and n_ == 40: k(flag_ld)
        assert not pend
        for kk in range(8):
            lg.op(f'ds_read_b128 {fa.sub(4 * kk, 4)}, {atr} offset:{TAB + 16 * 544 + 64 * kk}')
            i_ = lg.op(f'ds_read_b128 {fb.sub(4 * kk, 4)}, {atr} offset:{TAB + 64 * kk}')
            ac = kacc.sub(4 * s, 4)
            pend.append((i_, f'v_mfma_f32_16x16x32_f16 {ac}, {fa.sub(4 * kk, 4)}, {fb.sub(4 * kk, 4)}, {"0" if kk == 0 else ac}'))
    for x_ in (w1, w16, w32, w64, w128, w2, w4, w8, V, U, tm, pv, pu):
        for y_ in x_: y_.release()
    sg = k.v(8, 2); md_ = k.v(16, 4); cnt = k.s()
    def kd_out(s):
        ac = kacc.sub(4 * s, 4)
        for e in range(4): k(f'v_mul_f32 {ac[e]}, {ks}, {ac[e]}')
        k(f'v_cvt_pk_bf16_f32 {ac[0]}, {ac[0]}, {ac[1]}\nv_cvt_pk_bf16_f32 {ac[2]}, {ac[2]}, {ac[3]}')
        for e in range(4): lg.op(f'ds_write_b16{"_d16_hi" if e & 1 else ""} {kda[s]}, {ac[e & 2]} offset:{32 * e}')
    for s in range(3): kd_out(s)
    SP(3); lg.reset() if SP.on else None
    got = k.s()
    def row_loads():
        k(f's_lshl_b32 {st}, {cidx}, 14\ns_add_u32 {st}, {st}, {O_XT}')
        for i in range(4):
            k(f'buffer_load_dwordx4 {x.sub(4 * i, 4)}, {ag}, {Rws}, {st} offen sc1')
            if i < 3: k(f's_add_u32 {st}, {st}, 4096')
        k(f's_mov_b32 {st}, {O_STATS}\ns_mov_b32 {st2}, {O_STATS + 4096}')
        for i in range(4): k(f'buffer_load_dwordx2 {sg.sub(2 * i, 2)}, {am}, {Rws}, {(st, st2)[i // 2]} offen offset:{2048 * (i & 1)} sc1')
    def spin(i, flag_ld):
        lp, ok = k.label('poll'), k.label('go')
        k(f'{lp}:\nv_readfirstlane_b32 {st}, {fl_v[i]}\ns_cmp_ge_u32 {st}, 1\ns_cbranch_scc1 {ok}')
        k(f's_sleep 4\n{flag_ld}\ns_add_u32 {cnt}, {cnt}, 1\ns_cmp_lt_u32 {cnt}, {SPIN_MAX}\ns_waitcnt vmcnt(0)\ns_cbranch_scc1 {lp}\ns_branch {END}\n{ok}:')
    late = k.label('late')
    k(f'v_lshlrev_b32 {ag}, 4, v0\nv_lshlrev_b32 {am}, 3, v0\nv_lshlrev_b32 {a4}, 2, v0\ns_mov_b32 {cnt}, 0\ns_waitcnt vmcnt(0)')
    k(f'v_readfirstlane_b32 {got}, {fl_v[0]}\ns_cmp_eq_u32 {got}, 0\ns_cbranch_scc1 {late}')
    row_loads()
    k(f'{late}:')
    while pend:
        idr, mf = pend.pop(0); lg.wait(idr); k(mf)
    kd_out(3)
    kc = fa.sub(0, 16); pvv = fa.sub(16, 8)
    gid = [lg.op(f'ds_read_u16 {ga[e]}, {ga[e]}') for e in range(32)]
    aw = kda[0]; ap = kda[1]
    k(f'v_lshl_add_u32 {aw}, {lane}, 4, {wb}\nv_lshrrev_b32 {ap}, 1, {lane}\nv_mul_u32_u24 {ap}, 4160, {ap}\nv_and_b32 {t[1]}, 1, {lane}')
    k(f'v_lshl_add_u32 {ap}, {t[1]}, 4, {ap}\nv_add_u32 {ap}, {wb}, {ap}')
    k(f's_mov_b64 exec, 0xff'); lg.op(f'ds_write_b128 {ap}, {z4}'); k('s_mov_b64 exec, -1')
    for c in range(4):
        lg.wait(gid[8 * c + 7])
        for e in range(4): k(f'v_lshl_or_b32 {kc[4 * c + e]}, {ga[8 * c + 2 * e + 1]}, 16, {ga[8 * c + 2 * e]}')
        lg.op(f'ds_write_b128 {aw}, {kc.sub(4 * c, 4)} offset:{32 + 1024 * c}')
    ids = [lg.op(f'ds_read_b64 {pvv.sub(2 * c, 2)}, {aw} offset:{24 + 1024 * c}') for c in range(4)]
    k(flag_ld)
    for c in range(4):
        lg.wait(ids[c])
        o = fb.sub(12 * (c & 1), 12); d_ = kc.sub(4 * c, 4); p0, p1 = pvv[2 * c], pvv[2 * c + 1]
        seq = [p0, p1, d_[0], d_[1], d_[2], d_[3]]
        o3 = o.sub(0, 4); o1 = o.sub(4, 4); o2 = o.sub(8, 4)
        for i in range(4): k(f'v_alignbit_b32 {o3[i]}, {seq[i + 1]}, {seq[i]}, 16')
        for i in range(3): k(f'v_mov_b32 {o1[i]}, {o3[i + 1]}')
        k(f'v_alignbit_b32 {o1[3]}, {seq[5]}, {seq[4]}, 16')
        for i in range(4): k(f'v_mov_b32 {o2[i]}, {seq[i + 1]}')
        for r_, oo in ((1, o1), (2, o2), (3, o3)): lg.op(f'ds_write_b128 {aw}, {oo} offset:{4160 * r_ + 32 + 1024 * c}')
    if dump:
        k(f's_lshl_b32 {st}, {s_d}, 12\ns_add_u32 {st}, {st}, {O_DBG}\nv_lshlrev_b32 {t[1]}, 4, {lane}')
        for c in range(4): vm.op(f'buffer_store_dwordx4 {kc.sub(4 * c, 4)}, {t[1]}, {Rws}, {st} offen offset:{1024 * c}')
    ga.release(); acc = k.v(32, 4); kacc.release(); ks.release(); atw.release(); atr.release()
    SP(4); lg.reset() if SP.on else None
    have = k.label('have')
    k(f's_waitcnt vmcnt(0)\ns_cmp_lg_u32 {got}, 0\ns_cbranch_scc1 {have}')
    spin(0, flag_ld); row_loads()
    k(f'{have}:')
    spin(1, flag_ld)
    SP(14); lg.reset() if SP.on else None
    k(f's_lshl_b32 {st}, {cidx}, 4\ns_add_u32 {st}, {st}, {O_MODF}\ns_add_u32 {st2}, {st}, 4608')
    for i, (sr, off) in enumerate(((st, 0), (st, 2304), (st2, 0))): vm.op(f'buffer_load_dwordx4 {md_.sub(4 * i, 4)}, {z4[0]}, {Rws}, {sr} offen offset:{off} sc1')
    k(f's_add_u32 {st2}, {st2}, 4608')
    vm.op(f'buffer_load_dwordx4 {md_.sub(12, 4)}, {z4[0]}, {Rws}, {st2} offen sc1')
    k('s_waitcnt vmcnt(4)')
    SP(5)
    xf = k.v(32); hf = k.v(32); st_ = k.v(16)
    for i in range(8): k(f'v_and_b32 {st_[2 * i]}, 0xffff0000, {sg[i]}\nv_lshlrev_b32 {st_[2 * i + 1]}, 16, {sg[i]}')
    for i in range(8): k(f'v_rcp_f32 {st_[2 * i]}, {st_[2 * i]}')
    for i in range(16): k(f'v_lshlrev_b32 {xf[2 * i]}, 16, {x[i]}\nv_and_b32 {xf[2 * i + 1]}, 0xffff0000, {x[i]}')
    for i in range(8): k(f'v_mul_f32 {st_[2 * i + 1]}, -{st_[2 * i + 1]}, {st_[2 * i]}')
    k(f'v_add_u32 {am}, {HB + 512}, {a4}')
    for j in range(16): k(f'v_pk_fma_f32 {hf.sub(2 * j, 2)}, {xf.sub(2 * j, 2)}, {st_.sub(2 * (j // 2), 2)}, {st_.sub(2 * (j // 2), 2)} op_sel:[0,0,1] op_sel_hi:[1,0,1]')
    vm.all()
    for i in range(4):
        for j in range(4 * i, 4 * i + 4): k(f'v_pk_fma_f32 {hf.sub(2 * j, 2)}, {hf.sub(2 * j, 2)}, {md_.sub(4 + 2 * (j & 1), 2)}, {md_.sub(2 * (j & 1), 2)}')
        for c in range(4): k(f'v_cvt_pk_bf16_f32 {x[4 * i + c]}, {hf[8 * i + c]}, {hf[8 * i + 4 + c]}')
        for c in range(4): lg.op(f'ds_write_b32 {am}, {x[4 * i + c]} offset:{HSTR * c + 1024 * i}')
    st_.release(); sg.release()
    aA = kda[2]; aB = kda[3]
    k(f'v_bfe_u32 {t[0]}, {lane}, 2, 2\nv_mul_u32_u24 {aA}, 4160, {t[0]}\nv_and_b32 {t[0]}, 3, {lane}\nv_lshl_add_u32 {aA}, {t[0]}, 3, {aA}')
    k(f'v_lshlrev_b32 {t[0]}, 4, {q}\nv_sub_u32 {aA}, {aA}, {t[0]}\ns_add_u32 {st}, {wb}, 56\nv_add_u32 {aA}, {st}, {aA}')
    k(f's_mul_i32 {st}, {s_w}, {HSTR}\ns_add_u32 {st}, {st}, {HB + 480}\nv_lshl_add_u32 {aB}, {m}, 5, {t[0]}\nv_add_u32 {aB}, {st}, {aB}')
    lg.all(); k('s_barrier'); SP(6)
    fa2 = k.a(32, 4); fb2 = k.a(32, 4)
    sets = [(fa, fb), (fa2, fb2)]
    k(f'v_add_u32 {aB}, -448, {aB}')
    def reads(r_):
        A_, B_ = sets[r_ & 1]; out = []
        for i in range(8):
            out.append(f'ds_read_b128 {B_.sub(4 * i, 4)}, {aB} offset:{448 - 64 * r_ + 512 * i}')
            out.append(f'ds_read_b64_tr_b16 {A_.sub(4 * i, 2)}, {aA} offset:{64 * r_ + 8 + 512 * i}')
            out.append(f'ds_read_b64_tr_b16 {A_.sub(4 * i + 2, 2)}, {aA} offset:{64 * r_ + 512 * i}')
        return out
    jm = k.s(); l16 = k.v()
    k(f's_lshr_b32 {jm}, s2, 5\ns_sub_u32 {jm}, {jm}, 2\nv_lshlrev_b32 {l16}, 4, {lane}')
    pd = PairDma(k, s_w, jm, O_W1F, Rws, l16, W1_AT)
    early = [g for P_ in range(5) for g in pd.ops(P_)]
    flag_ld = f'buffer_load_dwordx2 {fl_v}, {z4[0]}, {Rdbg}, 0 offen offset:200 sc1'
    cur = [lg.op(x_) for x_ in reads(0)]
    for r_ in range(8):
        rd = reads(r_ + 1) if r_ < 7 else []
        A_, B_ = sets[r_ & 1]; nxt = []
        order = [(i, tt) for i in range(8) for tt in range(i, 8)] if r_ else sorted(((i, tt) for i in range(8) for tt in range(i, 8)), key=lambda p: (max(p[0], p[1] - p[0]), p))
        seen = set()
        if r_ == 1: k(flag_ld)
        if r_ == 3: k('s_waitcnt vmcnt(0)'); spin(0, flag_ld)
        for n_, (i, tt) in enumerate(order):
            lg.wait(max(cur[3 * i + 2], cur[3 * (tt - i)]))
            first = r_ == 0 and tt not in seen; seen.add(tt)
            k(f'v_mfma_f32_16x16x32_bf16 {acc.sub(4 * tt, 4)}, {A_.sub(4 * i, 4)}, {B_.sub(4 * (tt - i), 4)}, {"0" if first else acc.sub(4 * tt, 4)}')
            if rd: nxt.append(lg.op(rd.pop(0)))
            if r_ >= 3 and n_ >= 24 and n_ % 3 == 0 and early:
                for x_ in early.pop(0): k(x_)
        cur = nxt
    assert not early
    SP(7)
    k(f'v_lshlrev_b32 {t[0]}, 3, {q}\nv_lshl_add_u32 {t[0]}, {m}, 5, {t[0]}\nv_add_u32 {t[0]}, {wb}, {t[0]}')
    for tt in range(8):
        o = fa.sub(2 * tt, 2)
        k(f'v_cvt_pk_bf16_f32 {o[0]}, {acc[4 * tt]}, {acc[4 * tt + 1]}\nv_cvt_pk_bf16_f32 {o[1]}, {acc[4 * tt + 2]}, {acc[4 * tt + 3]}')
        k(f'ds_write_b64 {t[0]}, {o} offset:{512 * tt}')
    dv = t.sub(4, 4)
    k(f's_lshl_b32 {st}, {sD[0]}, 16\ns_and_b32 {st2}, {sD[0]}, 0xffff0000\nv_mov_b32 {dv[0]}, {st}\nv_mov_b32 {dv[1]}, {st2}')
    k(f's_lshl_b32 {st}, {sD[1]}, 16\ns_and_b32 {st2}, {sD[1]}, 0xffff0000\nv_mov_b32 {dv[2]}, {st}\nv_mov_b32 {dv[3]}, {st2}')
    k('s_waitcnt lgkmcnt(0)\ns_barrier')
    lg.reset()
    yp = fb.sub(0, 16); yf = acc; o = fa
    ids = [[lg.op(f'ds_read_b32 {yp[4 * i + c]}, {a4} offset:{WSTR * c + 1024 * i}') for c in range(4)] for i in range(4)]
    k(f's_lshl_b32 {st}, {cidx}, 15\ns_lshl_b32 {st2}, {s_w}, 11\ns_add_u32 {st}, {st}, {st2}\ns_add_u32 {st}, {st}, {O_X2}')
    k(f's_add_u32 {st2}, {wb}, 4096\nv_lshl_add_u32 {am}, {lane}, 5, {st2}\nv_lshl_add_u32 {a4}, {lane}, 4, {st2}\nv_lshlrev_b32 {ag}, 4, {lane}')
    odd, fin = k.label('odd'), k.label('fin')
    for i in range(4):
        lg.wait(ids[i][3])
        for c in range(4): k(f'v_lshlrev_b32 {yf[8 * i + c]}, 16, {yp[4 * i + c]}\nv_and_b32 {yf[8 * i + 4 + c]}, 0xffff0000, {yp[4 * i + c]}')
        for j in range(4 * i, 4 * i + 4): k(f'v_pk_fma_f32 {yf.sub(2 * j, 2)}, {hf.sub(2 * j, 2)}, {dv.sub(2 * (j & 1), 2)}, {yf.sub(2 * j, 2)}')
        for j in range(4 * i, 4 * i + 4): k(f'v_pk_fma_f32 {yf.sub(2 * j, 2)}, {yf.sub(2 * j, 2)}, {md_.sub(8 + 2 * (j & 1), 2)}, {xf.sub(2 * j, 2)}')
        for j in range(4 * i, 4 * i + 4): k(f'v_pk_mul_f32 {xf.sub(2 * j, 2)}, {yf.sub(2 * j, 2)}, {md_.sub(12 + 2 * (j & 1), 2)}')
    k(f's_bitcmp1_b32 {cidx}, 0\ns_cbranch_scc1 {odd}')
    for par_ in range(2):
        A_, B_ = (yf, xf) if par_ == 0 else (xf, yf)
        for r_ in range(8):
            for c in range(2):
                k(f'v_cvt_pk_bf16_f32 {o[4 * r_ + c]}, {A_[4 * r_ + 2 * c]}, {A_[4 * r_ + 2 * c + 1]}')
                k(f'v_cvt_pk_bf16_f32 {o[4 * r_ + 2 + c]}, {B_[4 * r_ + 2 * c]}, {B_[4 * r_ + 2 * c + 1]}')
            k(f'ds_write_b128 {am}, {o.sub(4 * r_, 4)} offset:{2048 * (r_ >> 1) + 16 * (r_ & 1)}')
        if par_ == 0: k(f's_branch {fin}\n{odd}:')
    k(f'{fin}:'); lg.reset()
    ids = [lg.op(f'ds_read_b128 {fb.sub(4 * r_, 4)}, {a4} offset:{1024 * r_}') for r_ in range(8)]
    for r_ in range(8):
        lg.wait(ids[r_])
        k(f'buffer_store_dwordx4 {fb.sub(4 * r_, 4)}, {ag}, {Rws}, {st} offen offset:{1024 * (r_ & 1)} sc1')
        if r_ & 1 and r_ < 7: k(f's_add_u32 {st}, {st}, 8192')
```

```python
from common import *

K2_LDS = LDS_BYTES
T_B, T_F = TABS, TABS + 7168
XBUF, HBUF = 0, 73728
SPIN_MAX = 40000
GC1 = -2.0 * LOG2E * 0.7978845608028654
GC2 = GC1 * 0.044715
PI = [0, 1, 2, 3, 5, 6, 7, 9, 10, 11, 12, 14, 15, 16, 4, 8, 13, 17]
MF = 'v_mfma_f32_16x16x32_bf16'

def un(d, s_, hi): return f'v_and_b32 {d}, 0xffff0000, {s_}' if hi else f'v_lshlrev_b32 {d}, 16, {s_}'

def gelu_consts(k, sig, c):
    k(f'v_mov_b32 {c[2]}, {sig}\nv_rcp_f32 {c[0]}, {sig}')
    k(f'v_mul_f32 {c[1]}, {c[0]}, {c[0]}\nv_mul_f32 {c[1]}, {c[1]}, {c[0]}')
    k(f'v_mul_f32 {c[0]}, {fl(GC1)}, {c[0]}\nv_mul_f32 {c[1]}, {fl(GC2)}, {c[1]}')

def phase2(k, P, lane, s_w, END, SP, opt=()):
    stamps = SP.on
    WFL = ' sc1'
    PFL = ' '.join(o[2:] for o in opt if o.startswith('p_')) or 'sc1'
    q = k.v(); m = k.v(); l16 = k.v(); one = k.v(); zero = k.v(); fv4 = k.v(8, 4)
    Rws = k.s(4); RG = k.s(4); RW = k.s(4)
    srd(k, RG, P['dbg'], 256)
    k(f'v_mov_b32 {one}, 1\nv_mov_b32 {zero}, 0')
    go_ld = f'buffer_load_dwordx4 {fv4[0:4]}, {zero}, {RG}, 0 offen offset:192 sc1'
    k(f'v_lshrrev_b32 {q}, 4, {lane}\nv_and_b32 {m}, 15, {lane}\nv_lshlrev_b32 {l16}, 4, {lane}')
    rb = k.s(); jm = k.s(); mb = k.s(); fs = k.s(); st = k.s(); st1 = k.s(); sav = k.s(2); cnt = k.s(); mt = k.s(); resf = k.s()
    k(f's_and_b32 {st}, s2, 1\ns_lshl_b32 {mb}, {st}, 4\ns_bfe_u32 {st}, s2, 0x20001\ns_lshl_b32 {fs}, {st}, 1\ns_lshl_b32 {rb}, {st}, 2\ns_add_u32 {rb}, {rb}, {mb}')
    k(f's_bfe_u32 {st}, s2, 0x20003\ns_add_u32 {rb}, {rb}, {st}\ns_lshr_b32 {jm}, s2, 5\ns_sub_u32 {jm}, {jm}, 2')
    k(f's_bfe_u32 {st}, s2, 0x40003\ns_add_u32 {mb}, {mb}, {st}\ns_lshr_b32 {st}, s2, 7\ns_add_u32 {fs}, {fs}, {st}')
    k(f's_lshl_b32 {mt}, {rb}, 2\ns_add_u32 {mt}, {mt}, {s_w}\ns_mov_b32 {cnt}, 0\ns_mov_b32 {resf}, 0')
    srd(k, Rws, P['ws'], WS_USED); srd(k, RW, P['ws'], WS_USED)
    vm, lg = trackers(k)
    def STAMP(i):
        if stamps: SP(i); lg.reset()
    def flag_add(s_idx, base):
        k(f's_lshl_b32 {st}, {s_idx}, 7\ns_add_u32 {st}, {st}, {base}\ns_mov_b64 exec, 1')
        vm.op(f'buffer_atomic_add {one}, {zero}, {Rws}, {st} offen sc1')
        k('s_mov_b64 exec, -1')
    def poll(vaddr, base, target, sleep=0):
        fv = k.v(); lp, ok = k.label('poll'), k.label('ok')
        k(f's_mov_b32 {st1}, {base}\n{lp}:\nbuffer_load_dword {fv}, {vaddr}, {Rws}, {st1} offen sc1\ns_waitcnt vmcnt(0)')
        k(f'v_cmp_gt_u32 vcc, {target}, {fv}\ns_cmp_eq_u64 vcc, 0\ns_cbranch_scc1 {ok}')
        if sleep: k(f's_sleep {sleep}')
        k(f's_add_u32 {cnt}, {cnt}, 1\ns_cmp_lt_u32 {cnt}, {SPIN_MAX}\ns_cbranch_scc1 {lp}\ns_branch {END}\n{ok}:')
        vm.reset(); fv.release()
    W = [k.a(72, 4), k.a(72, 4)]; vo = [l16] + [k.v() for _ in range(4)]
    for g in range(1, 5): k(f'v_add_u32 {vo[g]}, {4096 * g}, {l16}')
    sn = k.s(); s4 = k.s()
    k(f's_lshl_b32 {sn}, {fs}, 2\ns_add_u32 {sn}, {sn}, {s_w}\ns_mul_i32 {sn}, {sn}, {9 * 18432}\ns_add_u32 {s4}, {sn}, {O_W4F}\ns_add_u32 {sn}, {sn}, {O_W3F}')
    wld = lambda r_, ks: f'buffer_load_dwordx4 {W[r_].sub(4 * ks, 4)}, {vo[ks // 4]}, {RW}, {sn} offen offset:{1024 * (ks % 4)}' + WFL
    sm = k.s(); so = k.s()
    k(f's_lshl_b32 {sm}, {s_w}, 10')
    def spin(ld, regs, sleep=16):
        lp, ok = k.label('spin'), k.label('up')
        k(f'{lp}:\ns_waitcnt vmcnt(0)\nv_mov_b32 {fv4[7]}, {regs[0]}')
        for r_ in regs[1:]: k(f'v_and_b32 {fv4[7]}, {fv4[7]}, {r_}')
        k(f'v_readfirstlane_b32 {st}, {fv4[7]}\ns_cmp_lg_u32 {st}, 0\ns_cbranch_scc1 {ok}')
        k(f's_sleep {sleep}\n{ld}\ns_add_u32 {cnt}, {cnt}, 1\ns_cmp_lt_u32 {cnt}, {SPIN_MAX}\ns_cbranch_scc1 {lp}\ns_branch {END}\n{ok}:')
    cv, ar = k.label('fromconv'), k.label('acked')
    k(f's_cmp_ge_u32 s2, 112\ns_cbranch_scc1 {cv}\n{go_ld}')
    spin(go_ld, [fv4[0]])
    k(f's_branch {ar}\n{cv}:\ns_waitcnt vmcnt(0)\n{ar}:')
    k('s_waitcnt lgkmcnt(0)\ns_barrier')
    STAMP(15)
    na, nb = k.label('noarr'), k.label('notlast')
    k(f's_cmp_lg_u32 {s_w}, 0\ns_cbranch_scc1 {na}\ns_and_b32 {st1}, s2, 3\ns_lshl_b32 {st}, {st1}, 7\ns_add_u32 {st}, {st}, {O_FA}\ns_mov_b64 exec, 1')
    k(f'v_mov_b32 {fv4[4]}, 1\nbuffer_atomic_add {fv4[4]}, {zero}, {Rws}, {st} offen sc0 sc1\ns_lshl_b32 {st1}, {st1}, 2\ns_waitcnt vmcnt(0)')
    k(f'v_readfirstlane_b32 {st}, {fv4[4]}\ns_cmp_lg_u32 {st}, 63\ns_cbranch_scc1 {nb}')
    k(f'buffer_store_dword {one}, {zero}, {RG}, {st1} offen offset:208 sc1\n{nb}:\ns_mov_b64 exec, -1\n{na}:')
    go3_ld = f'buffer_load_dwordx4 {fv4[0:4]}, {zero}, {RG}, 0 offen offset:208 sc1'
    k('s_cmp_lt_u32 s2, 64\ns_cbranch_scc1 k2_idle')
    keepV, keepA, keepS = list(k.V.free), list(k.A.free), list(k.S.free)

    XX = k.v(146, 2); t = k.v(8); row = k.v()
    w0, w5 = k.label('havew1'), k.label('rest')
    pd = PairDma(k, s_w, jm, O_W1F, Rws, l16, W1_AT)
    k(f's_cmp_ge_u32 s2, 112\ns_cbranch_scc1 {w0}')
    spin(go_ld, [fv4[2]])
    for P_ in range(9):
        if P_ == 5: k(f's_branch {w5}\n{w0}:\ns_add_u32 {pd.src}, {pd.src}, {5 * 12288}\n{w5}:')
        for g in pd.ops(P_):
            for x_ in g: k(x_)
    pd.release()
    k(go_ld)
    k(f's_lshl_b32 {st}, {s_w}, 6\nv_add_u32 {t[2]}, {st}, {lane}')
    k(f'v_cmp_le_u32 vcc, 72, {t[2]}\nv_subrev_u32 {t[3]}, 72, {t[2]}\nv_cndmask_b32 {t[3]}, {t[2]}, {t[3]}, vcc\nv_add_u32 {t[3]}, 72, {t[3]}')
    k(f'v_cmp_le_u32 vcc, 144, {t[2]}\nv_subrev_u32 {t[4]}, 144, {t[2]}\nv_cndmask_b32 {t[3]}, {t[3]}, {t[4]}, vcc')
    k(f'v_cmp_le_u32 vcc, 216, {t[2]}\nv_subrev_u32 {t[4]}, 216, {t[2]}\nv_cndmask_b32 {t[3]}, {t[3]}, {t[4]}, vcc\nv_lshlrev_b32 {t[3]}, 4, {t[3]}')
    spin(go_ld, [fv4[1], fv4[3]])
    k(f's_add_u32 m0, {sm}, {T_B + 2304}\ns_mov_b32 {st1}, {O_MODB}')
    k(f'buffer_load_dwordx4 {t[3]}, {Rws}, {st1} offen sc1 lds')
    k(f'v_add_u32 {t[4]}, 40, {lane}\nv_lshlrev_b32 {t[4]}, 4, {t[4]}\nv_mul_u32_u24 {t[5]}, 43691, {t[2]}\nv_lshrrev_b32 {t[5]}, 20, {t[5]}\nv_mul_u32_u24 {t[6]}, 120, {t[5]}')
    k(f'v_add_u32 {t[6]}, {t[6]}, {t[2]}\nv_lshlrev_b32 {t[6]}, 4, {t[6]}')
    wj = k.label('joined')
    k(f's_mov_b32 m0, {T_B + 2304 + 4096}\ns_mov_b32 exec_hi, 0\nbuffer_load_dwordx4 {t[4]}, {Rws}, {st1} offen sc1 lds\ns_mov_b64 exec, -1')
    pd = PairDma(k, s_w, jm, O_W2F, Rws, l16, W2_AT)
    w2ops = [g for P_ in range(9) for g in pd.ops(P_)]
    def w2dma():
        for x_ in w2ops.pop(0): vm.op(x_) if x_.startswith('buffer') else k(x_)
    k(f's_lshl_b32 {st}, {mt}, 4\nv_add_u32 {row}, {st}, {m}')
    k(f'v_lshlrev_b32 {t[0]}, 16, {q}\nv_lshl_add_u32 {t[0]}, {row}, 4, {t[0]}\nv_add_u32 {t[1]}, 0x8000, {t[0]}')
    ix = []; iw = []
    def issue(i):
        k(f's_lshl_b32 {st}, {st1}, 18\ns_add_u32 {st}, {st}, {O_X2}')
        vm.op(f'buffer_load_dwordx4 {XX.sub(8 * i, 4)}, {t[0]}, {Rws}, {st} offen sc1')
        ix.append(vm.op(f'buffer_load_dwordx4 {XX.sub(8 * i + 4, 4)}, {t[1]}, {Rws}, {st} offen sc1'))
        if i < 17: k(f's_add_u32 {st1}, {st1}, 1\ns_cmp_eq_u32 {st1}, 18\ns_cselect_b32 {st1}, 0, {st1}')
    ones = k.v(4, 4); sacc = k.v(4, 4); gacc = k.v(4, 4); tacc = k.v(4, 4); qacc = k.v(4, 4); acc = k.v(24, 4)
    for i in range(4): k(f'v_mov_b32 {ones[i]}, 0x3f803f80')
    k(f'v_lshlrev_b32 {t[2]}, 4, v0\nv_add_u32 {t[2]}, {T_B}, {t[2]}\nv_cmp_gt_u32 vcc, 144, v0\ns_and_saveexec_b64 {sav}, vcc')
    k(f'ds_write_b128 {t[2]}, {ones}\ns_mov_b64 exec, {sav}')
    msk = [k.s(2) for _ in range(3)]; bidx = k.v()
    k(f'v_and_b32 {t[2]}, 3, {m}')
    for e in range(3): k(f'v_cmp_eq_u32 {msk[e]}, {e + 1}, {t[2]}')
    aT = k.v(); aW = [l16, k.v(), k.v()]
    k(f'v_min_u32 {t[2]}, 2, {t[2]}\nv_mul_u32_u24 {aT}, 2304, {t[2]}\nv_lshl_add_u32 {aT}, {q}, 4, {aT}\ns_mul_i32 {st}, {jm}, 192\ns_add_u32 {st}, {st}, {T_B}\nv_add_u32 {aT}, {st}, {aT}')
    k(f'v_lshrrev_b32 {t[2]}, 2, {m}\nv_lshl_add_u32 {t[2]}, {t[2]}, 4, {m}\nv_lshlrev_b32 {bidx}, 2, {t[2]}')
    k(f'v_add_u32 {aW[1]}, 0xf000, {l16}\nv_add_u32 {aW[2]}, 0x1e000, {l16}')
    lds_at = lambda a_: f'{aW[a_ // 0xf000]} offset:{a_ % 0xf000}'
    TF = W[1]; WR = [k.a(24, 4), k.a(24, 4)]
    def w_reads(i):
        return [f'ds_read_b128 {WR[i & 1].sub(4 * tt, 4)}, {lds_at(W1_AT[i] + 1024 * tt)}' for tt in range(6)]
    k('s_waitcnt vmcnt(0) lgkmcnt(0)\ns_barrier'); vm.reset(); lg.reset()
    k(f's_cmp_lg_u32 {s_w}, 0\ns_cbranch_scc1 {wj}_a\n{go3_ld}\n{wj}_a:')
    itf = [lg.op(f'ds_read_b128 {TF.sub(4 * i, 4)}, {aT} offset:{64 * i}') for i in range(18)]
    iwr = [lg.op(x_) for x_ in w_reads(0)]
    for i in range(18):
        lg.wait(itf[i]); k(f'{MF} {acc[4:8]}, {TF.sub(4 * i, 4)}, {TF.sub(4 * i, 4)}, {"0" if i == 0 else acc[4:8]}')
    cs = k.s(5, 1)
    for n_, (e, j_) in enumerate(((0, 1), (0, 2), (1, 1), (1, 2), (2, 2))): k(f'v_readlane_b32 {cs[n_]}, {acc[4 + e]}, {j_}')
    k(f's_mul_i32 {st1}, {jm}, 3\ns_mul_i32 {so}, {jm}, 384\ns_add_u32 {so}, {so}, {O_MOD2}')
    k(f's_cmp_lg_u32 {s_w}, 0\ns_cbranch_scc1 {wj}')
    spin(go3_ld, [fv4[i] for i in range(4)], 2)
    k(f'{wj}:\ns_barrier')
    STAMP(0)
    nis = 4
    for i in range(nis): issue(i)
    n2 = 0
    for i in range(18):
        if i == 9: vm.wait(itab)
        if i in (9, 13): k('s_barrier')
        if i == 1: STAMP(1)
        xg = XX.sub(8 * i + 2, 4); xr = XX.sub(8 * i - 2, 4) if i else None
        c_ = lambda r_, first: '0' if first else r_
        M = [(iwr[tt], f'{MF} {acc.sub(4 * tt, 4)}, {WR[i & 1].sub(4 * tt, 4)}, {xg}, {c_(acc.sub(4 * tt, 4), i == 0)}') for tt in range(6)]
        S_ = [f'{MF} {tacc}, {TF.sub(4 * i, 4)}, {xg}, {c_(tacc, i == 0)}', f'{MF} {qacc}, {xg}, {xg}, {c_(qacc, i == 0)}']
        if i: S_ += [f'{MF} {sacc}, {ones}, {xr}, {c_(sacc, i == 1)}', f'{MF} {gacc}, {xr}, {xr}, {c_(gacc, i == 1)}']
        Rd = w_reads(i + 1) if i < 17 else []
        vm.wait(ix[i])
        if i == 0: k(f'v_mov_b32 {XX[144]}, {XX[0]}\nv_mov_b32 {XX[145]}, {XX[1]}')
        nxt = []
        for x_ in S_:
            k(x_)
            if Rd: nxt.append(lg.op(Rd.pop(0)))
        for idr, mm in M:
            lg.wait(idr); k(mm)
            if Rd: nxt.append(lg.op(Rd.pop(0)))
        iwr = nxt
        if i == 4:
            k(f's_add_u32 m0, {sm}, {T_F}')
            itab = vm.op(f'buffer_load_dwordx4 {t[6]}, {Rws}, {so} offen sc1 lds')
        if nis < 18:
            for _ in range(2 if nis < i + 9 else 1):
                if nis < 18: issue(nis); nis += 1
        else:
            for _ in range(3):
                if n2 < (18 if i < 13 else 27): w2dma(); n2 += 1
    assert n2 == 27
    xr = XX.sub(142, 4)
    k(f'{MF} {sacc}, {ones}, {xr}, {sacc}\n{MF} {gacc}, {xr}, {xr}, {gacc}')
    STAMP(2)
    TB = [XX.sub(24, 16), XX.sub(40, 16)]; uu = XX.sub(56, 48)
    k(f'v_lshlrev_b32 {aT}, 5, {q}\nv_add_u32 {aT}, {T_F}, {aT}')
    tf_read = lambda dst, r_, e: f'ds_read_b128 {dst}, {aT} offset:{384 * r_ + 128 * (e >> 1) + 16 * (e & 1)}'
    def diag(d, g_):
        k(f'v_cndmask_b32 {d}, {g_[0]}, {g_[1]}, {msk[0]}\nv_cndmask_b32 {d}, {d}, {g_[2]}, {msk[1]}\nv_cndmask_b32 {d}, {d}, {g_[3]}, {msk[2]}')
        return lg.op(f'ds_bpermute_b32 {d}, {bidx}, {d}')
    i2 = diag(t[2], qacc); i1 = diag(t[1], gacc)
    iu = [lg.op(tf_read(uu.sub(24 * r_ + 4 * e, 4), 3 + r_, e)) for e in range(6) for r_ in range(2)]
    s1 = k.v(2); gc = k.v(4)
    k(f'v_mov_b32 {t[0]}, {sacc[0]}'); lg.wait(i1)
    sigma_bf16(k, t[0], t[1])
    k(f'v_cvt_pk_bf16_f32 {t[0]}, {t[0]}, {t[1]}\nv_and_b32 {s1[0]}, 0xffff0000, {t[0]}\nv_lshlrev_b32 {s1[1]}, 16, {t[0]}')
    k(f'v_rcp_f32 {s1[0]}, {s1[0]}\nv_mov_b32 {t[3]}, {cs[1]}\nv_mov_b32 {t[4]}, {cs[3]}\nv_mul_f32 {s1[1]}, -{s1[1]}, {s1[0]}')
    k(f'v_fma_f32 {t[3]}, {s1[1]}, {cs[0]}, {t[3]}\nv_fma_f32 {t[0]}, {s1[0]}, {tacc[0]}, {t[3]}')
    k(f'v_fma_f32 {t[3]}, {s1[1]}, {tacc[1]}, {tacc[2]}\nv_add_f32 {t[3]}, {t[3]}, {t[3]}\nv_fma_f32 {t[3]}, {s1[0]}, {t[2]}, {t[3]}')
    k(f'v_add_f32 {t[4]}, {t[4]}, {t[4]}\nv_fma_f32 {t[4]}, {s1[1]}, {cs[2]}, {t[4]}\nv_mov_b32 {t[5]}, {cs[4]}\nv_fma_f32 {t[4]}, {s1[1]}, {t[4]}, {t[5]}')
    k(f'v_fma_f32 {t[1]}, {s1[0]}, {t[3]}, {t[4]}')
    sigma_bf16(k, t[0], t[1])
    k(f'v_cvt_pk_bf16_f32 {t[1]}, {t[1]}, {t[1]}\nv_and_b32 {t[1]}, 0xffff0000, {t[1]}')
    gelu_consts(k, t[1], gc)
    aG = k.v()
    k(f's_mul_i32 {st}, {jm}, {3 * GPL}\ns_add_u32 {st}, {st}, {O_G}\nv_lshlrev_b32 {aG}, 6, {row}\nv_lshl_add_u32 {aG}, {q}, 4, {aG}\nv_add_u32 {aG}, 128, {aG}')
    lg.all()
    for e in range(12): k(f'v_pk_fma_f32 {uu.sub(2 * e, 2)}, {uu.sub(2 * e, 2)}, {s1}, {uu.sub(24 + 2 * e, 2)} op_sel:[0,1,0] op_sel_hi:[1,1,1]')
    for e in range(12): k(f'v_pk_fma_f32 {acc.sub(2 * e, 2)}, {acc.sub(2 * e, 2)}, {s1}, {uu.sub(2 * e, 2)} op_sel_hi:[1,0,1]')
    tt_ = TB[0]; go = TB[1]
    for Pp in range(3):
        a = acc.sub(8 * Pp, 8); u = tt_.sub(0, 8)
        for e in range(4): k(f'v_pk_mul_f32 {u.sub(2 * e, 2)}, {a.sub(2 * e, 2)}, {a.sub(2 * e, 2)}')
        for e in range(4): k(f'v_pk_fma_f32 {u.sub(2 * e, 2)}, {u.sub(2 * e, 2)}, {gc[0:2]}, {gc[0:2]} op_sel:[0,1,0] op_sel_hi:[1,1,0]')
        for e in range(4): k(f'v_pk_mul_f32 {u.sub(2 * e, 2)}, {u.sub(2 * e, 2)}, {a.sub(2 * e, 2)}')
        for e in range(8): k(f'v_exp_f32 {u[e]}, {u[e]}')
        for e in range(4): k(f'v_pk_fma_f32 {u.sub(2 * e, 2)}, {u.sub(2 * e, 2)}, {gc[2:4]}, {gc[2:4]} op_sel_hi:[1,0,0]')
        for e in range(8): k(f'v_rcp_f32 {u[e]}, {u[e]}')
        for e in range(4): k(f'v_pk_mul_f32 {u.sub(2 * e, 2)}, {u.sub(2 * e, 2)}, {a.sub(2 * e, 2)}')
        o = go.sub(4 * Pp, 4)
        for e in range(4): k(f'v_cvt_pk_bf16_f32 {o[e]}, {u[2 * e]}, {u[2 * e + 1]}')
        ig = vm.op(f'buffer_store_dwordx4 {o}, {aG}, {Rws}, {st} offen sc1')
        if Pp < 2: k(f's_add_u32 {st}, {st}, {GPL}')
    h2f = uu.sub(0, 24); x2f = XX.sub(104, 24); gbv = k.v(24, 4)
    xsrc = lambda e: XX[8 * (e // 8) + (0, 1, 6, 7)[(e % 8) // 2]]
    ig_ = [lg.op(tf_read(gbv.sub(4 * e, 4), 1, e)) for e in range(6)]
    is_ = [lg.op(tf_read(uu.sub(24 + 4 * e, 4), 0, e)) for e in range(6)]
    for e in range(24): k(un(x2f[e], xsrc(e), e & 1))
    dl = [XX[128 + i] for i in range(6)]
    k(f'v_cmp_gt_u32 vcc, 2, {q}')
    for g, dlt in enumerate((-1, 1, -2, 2)): k(f'v_add_u32 {dl[g]}, {dlt * 64}, {aG}')
    k(f'v_cndmask_b32 {dl[4]}, {dl[1]}, {dl[0]}, vcc\nv_cndmask_b32 {dl[5]}, {dl[3]}, {dl[2]}, vcc')
    pa = XX[134]
    k(f'v_min_u32 {pa}, 2, {lane}\nv_add_u32 {pa}, {mt}, {pa}\nv_add_u32 {pa}, -1, {pa}\nv_max_i32 {pa}, 0, {pa}\nv_min_u32 {pa}, 127, {pa}\nv_lshlrev_b32 {pa}, 7, {pa}')
    vm.wait(ig)
    flag_add(mt, O_FC)
    STAMP(3)
    for ks in PI: vm.op(wld(0, ks))
    k(f's_add_u32 {sn}, {sn}, 18432')
    for e in range(12): k(f'v_pk_fma_f32 {h2f.sub(2 * e, 2)}, {x2f.sub(2 * e, 2)}, {s1}, {s1} op_sel:[0,0,1] op_sel_hi:[1,0,1]')
    lg.all()
    for e in range(12): k(f'v_pk_fma_f32 {h2f.sub(2 * e, 2)}, {h2f.sub(2 * e, 2)}, {gbv.sub(2 * e, 2)}, {uu.sub(24 + 2 * e, 2)}')
    for e in range(6): lg.op(tf_read(gbv.sub(4 * e, 4), 2, e))
    NPRE = 5
    k('s_barrier')
    WP = [WR[0], WR[1], k.a(24, 4), k.a(24, 4), XX.sub(0, 24)]
    w2_addr = lambda i, tt: lds_at(W2_AT[i] + 1024 * tt)
    for i in range(NPRE):
        for tt in range(6): lg.op(f'ds_read_b128 {WP[i].sub(4 * tt, 4)}, {w2_addr(i, tt)}')
    poll(pa, O_FC, 6)
    STAMP(4)
    GF = TF
    sel = lambda s: dl[4] if s == 4 else dl[5] if s == 13 else dl[(2 * s) // 9]
    ig = []
    for s in range(18):
        k(f's_mov_b32 {st}, {O_G + s * GPL}')
        ig.append(vm.op(f'buffer_load_dwordx4 {GF.sub(4 * s, 4)}, {sel(s)}, {Rws}, {st} offen sc1'))
    lg.all()
    ird = {}
    for s in range(18):
        vm.wait(ig[s])
        wr = WP[s % NPRE]
        for tt in range(6):
            if s >= NPRE: lg.wait(ird[s, tt])
            k(f'{MF} {acc.sub(4 * tt, 4)}, {wr.sub(4 * tt, 4)}, {GF.sub(4 * s, 4)}, {"0" if s == 0 else acc.sub(4 * tt, 4)}')
            if s + NPRE < 18: ird[s + NPRE, tt] = lg.op(f'ds_read_b128 {wr.sub(4 * tt, 4)}, {w2_addr(s + NPRE, tt)}')
        vm.op(wld(1, s))
    lg.all()
    STAMP(5)
    aR = dl[0]; aS = dl[1]
    k(f'v_lshrrev_b32 {t[0]}, 1, {q}\nv_and_b32 {t[1]}, 1, {q}\nv_lshlrev_b32 {aR}, 12, {t[0]}\nv_lshl_add_u32 {aR}, {t[1]}, 9, {aR}\nv_lshl_add_u32 {aR}, {m}, 4, {aR}')
    k(f'v_lshlrev_b32 {aS}, 6, {t[0]}\nv_lshl_add_u32 {aS}, {m}, 2, {aS}')
    k(f's_mul_i32 {st}, {rb}, 18\ns_mul_i32 {so}, {jm}, 3\ns_add_u32 {st}, {st}, {so}\ns_lshl_b32 {st}, {st}, 2\ns_add_u32 {st}, {st}, {s_w}\ns_lshl_b32 {st}, {st}, 10\ns_add_u32 {st}, {st}, {O_X1F}')
    for e in range(12): k(f'v_pk_add_f32 {h2f.sub(2 * e, 2)}, {h2f.sub(2 * e, 2)}, {acc.sub(2 * e, 2)}')
    for Pp in range(3):
        o = go.sub(4 * Pp, 4)
        for e in range(4): k(f'v_cvt_pk_bf16_f32 {o[e]}, {h2f[8 * Pp + 2 * e]}, {h2f[8 * Pp + 2 * e + 1]}')
        vm.op(f'buffer_store_dwordx4 {o}, {l16}, {Rws}, {st} offen sc1')
        if Pp < 2: k(f's_add_u32 {st}, {st}, 4096')
    k(f'v_pk_add_f32 {t[0:2]}, {h2f[0:2]}, {h2f[2:4]}\nv_pk_mul_f32 {t[2:4]}, {h2f[0:2]}, {h2f[0:2]}\nv_pk_fma_f32 {t[2:4]}, {h2f[2:4]}, {h2f[2:4]}, {t[2:4]}')
    for e in range(2, 12): k(f'v_pk_add_f32 {t[0:2]}, {t[0:2]}, {h2f.sub(2 * e, 2)}\nv_pk_fma_f32 {t[2:4]}, {h2f.sub(2 * e, 2)}, {h2f.sub(2 * e, 2)}, {t[2:4]}')
    k(f'v_add_f32 {t[0]}, {t[0]}, {t[1]}\nv_add_f32 {t[2]}, {t[2]}, {t[3]}\nv_permlane32_swap_b32 {t[0]}, {t[2]}\nv_add_f32 {t[0]}, {t[0]}, {t[2]}')
    k(f'v_mov_b32 {t[1]}, {t[0]}\nv_permlane16_swap_b32 {t[0]}, {t[1]}\nv_add_f32 {t[0]}, {t[0]}, {t[1]}')
    k(f's_mul_i32 {st}, {mt}, 6\ns_add_u32 {st}, {st}, {jm}\ns_lshl_b32 {st}, {st}, 7\ns_add_u32 {st}, {st}, {O_PST}\ns_mov_b32 exec_lo, 0xffff\ns_mov_b32 exec_hi, 0xffff')
    vm.op(f'buffer_store_dword {t[0]}, {aS}, {Rws}, {st} offen sc1')
    k('s_mov_b64 exec, -1')
    ist = vm.n
    k(f's_mul_i32 {so}, {rb}, 6\ns_add_u32 {so}, {so}, {jm}\ns_mul_i32 {so}, {so}, 24\ns_add_u32 {so}, {so}, {s_w}\ns_lshl_b32 {so}, {so}, 10\ns_add_u32 {so}, {so}, {O_RES}')
    for e in range(12): k(f'v_pk_fma_f32 {x2f.sub(2 * e, 2)}, {h2f.sub(2 * e, 2)}, {gbv.sub(2 * e, 2)}, {x2f.sub(2 * e, 2)}')
    vm.wait(ist)
    flag_add(mt, O_FD)
    STAMP(6)
    for e in range(6):
        vm.op(f'buffer_store_dwordx4 {x2f.sub(4 * e, 4)}, {aR}, {Rws}, {so} offen offset:{256 * (e & 1)} sc1')
        if e in (1, 3): k(f's_add_u32 {so}, {so}, 8192')
    k(f's_mov_b32 {resf}, 1')
    k('s_branch k2_phase_e')
    k('k2_idle:')
    k.V.free, k.A.free, k.S.free = list(keepV), list(keepA), list(keepS)
    vm, lg = trackers(k)
    cj = ColJob(k, vm, lg, lane, s_w)
    fr = k.v(72, 4); sl = k.s(); dst = k.s(); job = k.s(); R4 = k.s(4)
    srd(k, R4, P['w4'], D * F * 2)
    lpj, dn = k.label('w4job'), k.label('w4done')
    k(f's_mov_b32 {job}, s2\n{lpj}:\ns_mul_hi_u32 {sl}, {job}, {(1 << 32) // 9 + 1}')
    ids = cj.read(0, fr, w4order=True)
    k(f's_lshl_b32 {dst}, {job}, 2\ns_add_u32 {dst}, {dst}, {s_w}\ns_mul_i32 {dst}, {dst}, 18432\ns_add_u32 {dst}, {dst}, {O_W4F}')
    cj.store(fr, ids, Rws, dst, 1024)
    vm.all()
    flag_add(sl, O_FW)
    k(f's_cmp_ge_u32 {job}, 8\ns_cbranch_scc1 {dn}\ns_add_u32 {job}, {job}, 64\ns_lshl_b32 {dst}, s2, 7\ns_add_u32 {dst}, {dst}, {7 * 576 * 1152 + 128}\ns_mov_b32 {sl}, 1152\ns_barrier')
    cj.dma(R4, dst, sl, 0)
    k(f's_waitcnt vmcnt(0)\ns_barrier\ns_branch {lpj}\n{dn}:\n{go3_ld}')
    spin(go3_ld, [fv4[i] for i in range(4)]); vm.reset()
    for r_ in range(2):
        for ks in PI: vm.op(wld(r_, ks))
        if r_ == 0: k(f's_add_u32 {sn}, {sn}, 18432')
    STAMP(14)
    k('k2_phase_e:')
    k.V.free, k.A.free, k.S.free = keepV, keepA, keepS
    vm, lg = trackers(k)
    vm.n = 1
    XA = k.a(112, 4); XV = k.v(176, 4)
    xf = lambda ks, t_: XA.sub(16 * ks + 4 * t_, 4) if 16 * ks + 4 * t_ < 112 else XV.sub(16 * ks + 4 * t_ - 112, 4)
    fv4.release()
    k(f's_add_u32 {sn}, {sn}, 18432')
    acc = [k.v(16, 4), k.v(16, 4)]
    t = acc[1].sub(0, 12); pa = k.v()
    k(f's_lshl_b32 {st}, {mb}, 2\nv_min_u32 {pa}, 3, {lane}\nv_add_u32 {pa}, {st}, {pa}\nv_lshlrev_b32 {pa}, 7, {pa}')
    k(f's_lshl_b32 {sm}, {s_w}, 10\ns_mul_i32 {so}, {mb}, 73728\ns_add_u32 {so}, {so}, {sm}\ns_add_u32 {so}, {so}, {O_X1F}')
    k('s_barrier')
    poll(pa, O_FD, 6)
    STAMP(7)
    ixd = []
    for ks in PI:
        k(f's_add_u32 m0, {sm}, {XBUF + 4096 * ks}\ns_add_u32 {st}, {so}, {4096 * ks}')
        ixd.append(vm.op(f'buffer_load_dwordx4 {l16}, {Rws}, {st} offen sc1 lds'))
    k(f's_mul_i32 {st}, {mb}, 3072\ns_add_u32 {st}, {st}, {O_PST}\nv_mul_u32_u24 {pa}, 768, {q}\nv_lshl_add_u32 {pa}, {m}, 2, {pa}')
    for i in range(12): ip = vm.op(f'buffer_load_dword {t[i]}, {pa}, {Rws}, {st} offen offset:{64 * i} sc1')
    sk_ = k.label('nores')
    k(f's_cmp_eq_u32 {resf}, 0\ns_cbranch_scc1 {sk_}')
    n0 = vm.n; flag_add(rb, O_FR); vm.n = n0
    k(f'{sk_}:')
    aX = [l16, k.v()]; aHr = [k.v(), k.v()]; aH = [k.v(), k.v()]
    k(f'v_add_u32 {aX[1]}, 0x9000, {l16}\nv_add_u32 {aHr[0]}, {HBUF}, {l16}\nv_add_u32 {aHr[1]}, {HBUF + 0x9000}, {l16}')
    for h in range(2):
        k(f's_mul_i32 {st}, {s_w}, 9\ns_add_u32 {st}, {st}, {h}\ns_and_b32 {st1}, {st}, 1\ns_lshl_b32 {st1}, {st1}, 3\ns_lshr_b32 {st}, {st}, 1\ns_lshl_b32 {st}, {st}, 12')
        k(f's_add_u32 {st}, {st}, {st1}\nv_add_u32 {aH[h]}, {st}, {aHr[0]}')
    GC = [k.v(3, 1) for _ in range(4)]
    gt = k.v(8, 4); hp = [k.v(2), k.v(2)]
    def gelu_ops(a, ah):
        out = []
        for t_ in range(4):
            c = GC[t_]; x = [a[4 * t_ + e] for e in range(4)]; u = [gt[4 * (t_ & 1) + e] for e in range(4)]; o = hp[t_ & 1]
            out += [f'v_mul_f32 {u[e]}, {x[e]}, {x[e]}' for e in range(4)]
            out += [f'v_fma_f32 {u[e]}, {u[e]}, {c[1]}, {c[0]}' for e in range(4)]
            out += [f'v_mul_f32 {u[e]}, {u[e]}, {x[e]}' for e in range(4)]
            out += [f'v_exp_f32 {u[e]}, {u[e]}' for e in range(4)]
            out += [f'v_fma_f32 {u[e]}, {u[e]}, {c[2]}, {c[2]}' for e in range(4)]
            out += [f'v_rcp_f32 {u[e]}, {u[e]}' for e in range(4)]
            out += [f'v_mul_f32 {u[e]}, {u[e]}, {x[e]}' for e in range(4)]
            out += [f'v_cvt_pk_bf16_f32 {o[0]}, {u[0]}, {u[1]}', f'v_cvt_pk_bf16_f32 {o[1]}, {u[2]}, {u[3]}']
            out.append(f'ds_write_b64 {ah}, {o} offset:{1024 * t_}')
        return out
    cost = lambda x_: 2 if x_.startswith(('v_exp', 'v_rcp', 'ds_write')) else 1
    def tile(a, r_, fill, steps=range(18), lead=2, pre=None, vmw=17, per_step=0, front=False, load=True):
        steps = list(steps); nm = 4 * len(steps); done = 0; n_ = 0
        fixed = len(steps) * (1 + per_step) + (len(steps) // 2 if vmw else 0)
        total = fixed + sum(cost(x_) for x_ in fill)
        rate = 2.0 if front else total / nm
        cum = 0
        for i in steps:
            ks = PI[i]
            if pre: pre(i); cum += per_step
            if vmw is not None and (i % 2 == 0 or i == steps[0]): k(f's_waitcnt vmcnt({vmw - 1})'); cum += 1
            for t_ in range(4):
                k(f'{MF} {a.sub(4 * t_, 4)}, {W[r_].sub(4 * ks, 4)}, {xf(ks, t_)}, {"0" if i == 0 else a.sub(4 * t_, 4)}')
                n_ += 1
                nxt = 0
                if t_ == 3:
                    if load: k(wld(1 - r_, ks)); cum += 1
                    nxt = per_step + (1 if vmw and i % 2 == 1 else 0)
                while n_ >= lead and done < len(fill) and cum + nxt + cost(fill[done]) / 2 <= rate * n_: k(fill[done]); cum += cost(fill[done]); done += 1
        while done < len(fill): k(fill[done]); done += 1
    def frag_reads(base, i):
        ks = PI[i]
        return [lg.op(f'ds_read_b128 {xf(ks, t_)}, {base[ks // 9]} offset:{(ks % 9) * 4096 + 1024 * t_}') for t_ in range(4)]
    rd = {}
    def pre0(i):
        if i == 0:
            vm.wait(ixd[5]); k('s_barrier')
            for j in (0, 1): rd[j] = frag_reads(aX, j)
        if i in (4, 10):
            vm.wait(ixd[i + 7]); k('s_barrier')
        if i + 2 < 18: rd[i + 2] = frag_reads(aX, i + 2)
        lg.wait(rd[i][3])
    tile(acc[0], 0, [], pre=pre0, vmw=None, load=False)
    STAMP(8)
    vm.wait(ip)
    for e in (0, 4, 8): k(f'v_add_f32 {t[e]}, {t[e]}, {t[e + 2]}\nv_add_f32 {t[e + 1]}, {t[e + 1]}, {t[e + 3]}')
    for e in (4, 8): k(f'v_add_f32 {t[0]}, {t[0]}, {t[e]}\nv_add_f32 {t[1]}, {t[1]}, {t[e + 1]}')
    sigma_bf16(k, t[0], t[1])
    k(f'v_cvt_pk_bf16_f32 {t[1]}, {t[1]}, {t[1]}\nv_and_b32 {t[1]}, 0xffff0000, {t[1]}\nv_lshlrev_b32 {t[2]}, 2, {m}')
    ib = [lg.op(f'ds_bpermute_b32 {t[4 + i]}, {t[2]}, {t[1]} offset:{64 * i}') for i in range(4)]
    for i in range(4): lg.wait(ib[i]); gelu_consts(k, t[4 + i], GC[i])
    fa_ = k.v(); tg = k.v()
    k(f's_lshl_b32 {st}, {fs}, 7\ns_add_u32 {st}, {st}, {O_FW}\ns_lshl_b32 {st1}, {mb}, 7\ns_add_u32 {st1}, {st1}, {O_FR}\nv_mov_b32 {fa_}, {st1}\nv_writelane_b32 {fa_}, {st}, 0')
    k(f'v_mov_b32 {tg}, 24\nv_writelane_b32 {tg}, 36, 0')
    k(f'buffer_load_dword {pa}, {fa_}, {Rws}, 0 offen sc1')
    lp = k.label('g3')
    k(f's_mov_b32 {so}, 4\n{lp}:')
    tile(acc[1], 1, gelu_ops(acc[0], aH[0]))
    k(f's_add_u32 {sn}, {sn}, 18432\nv_add_u32 {aH[0]}, 4096, {aH[0]}\ns_cmp_lg_u32 {so}, 1\ns_cbranch_scc1 k2_w4ok')
    k(f's_mov_b32 {sn}, {s4}\nv_cmp_gt_u32 vcc, {tg}, {pa}\ns_cmp_eq_u64 vcc, 0\ns_cbranch_scc1 k2_w4ok')
    poll(fa_, 0, tg)
    k('k2_w4ok:')
    tile(acc[0], 0, gelu_ops(acc[1], aH[1]))
    k(f's_add_u32 {sn}, {sn}, 18432\nv_add_u32 {aH[1]}, 4096, {aH[1]}\ns_sub_u32 {so}, {so}, 1\ns_cmp_lg_u32 {so}, 0\ns_cbranch_scc1 {lp}')
    STAMP(9)
    k('s_waitcnt lgkmcnt(0)\ns_barrier')
    lg.reset(); rd = {}
    g8 = gelu_ops(acc[0], aH[0])
    class Fill(list):
        pass
    def pre1(i):
        if i == 0:
            for j in (0, 1): rd[j] = frag_reads(aHr, j)
        if i + 2 < 14: rd[i + 2] = frag_reads(aHr, i + 2)
        k(f's_waitcnt lgkmcnt({min(8, 4 * (13 - i))})')
    tile(acc[1], 1, g8, steps=range(14), pre=pre1, lead=1, per_step=5)
    k('s_waitcnt lgkmcnt(0)\ns_barrier'); lg.reset()
    for j in range(14, 18): rd[j] = frag_reads(aHr, j)
    tile(acc[1], 1, [], steps=range(14, 18), pre=lambda i: lg.wait(rd[i][3]))
    sp = k.s(); po = [gt.sub(0, 4), gt.sub(4, 4)]
    k(f's_mul_i32 {sp}, {mb}, {9 * 65536}\ns_lshl_b32 {st}, {s_w}, 14\ns_add_u32 {sp}, {sp}, {st}\ns_lshl_b32 {st}, {fs}, 10\ns_add_u32 {sp}, {sp}, {st}\ns_add_u32 {sp}, {sp}, {O_PART}')
    def part_ops(a):
        out = []
        for p in range(2):
            out += [f'v_cvt_pk_bf16_f32 {po[p][e]}, {a[8 * p + 2 * e]}, {a[8 * p + 2 * e + 1]}' for e in range(4)]
            if 'nopart' not in opt: out.append(f'buffer_store_dwordx4 {po[p]}, {vo[2 * p]}, {Rws}, {sp} offen {PFL}')
        out.append(f's_add_u32 {sp}, {sp}, 65536')
        return out
    lp = k.label('g4')
    k(f's_mov_b32 {so}, 4\n{lp}:\ns_add_u32 {sn}, {sn}, 18432')
    tile(acc[0], 0, part_ops(acc[1]), front=True)
    k(f's_add_u32 {sn}, {sn}, 18432\ns_cmp_eq_u32 {so}, 1\ns_cselect_b32 {RW[2]}, 0, {RW[2]}')
    tile(acc[1], 1, part_ops(acc[0]), front=True)
    k(f's_sub_u32 {so}, {so}, 1\ns_cmp_lg_u32 {so}, 0\ns_cbranch_scc1 {lp}')
    for x_ in part_ops(acc[1]): k(x_)
    STAMP(10)
    for x_ in (XV, gt, acc[0], acc[1]): x_.release()
    aR = [GC[0][0]]; aO = [GC[0][1], GC[0][2]]; aB = GC[1][0]; T0 = k.s()
    Rout = RG; srd(k, Rout, P['out'], L * D * 2)
    rs = [k.v(12, 4) for _ in range(3)]; pt = [k.v(32, 4) for _ in range(3)]
    k(f's_lshl_b32 {st}, {mb}, 2\ns_and_b32 {st1}, {fs}, 1\ns_lshl_b32 {st1}, {st1}, 1\ns_add_u32 {st}, {st}, {st1}\ns_lshl_b32 {st}, {st}, 4')
    k(f'v_add_u32 {aO[0]}, {st}, {m}\nv_mul_u32_u24 {aO[0]}, 1152, {aO[0]}\nv_lshl_add_u32 {aO[0]}, {q}, 3, {aO[0]}\nv_add_u32 {aO[1]}, {16 * 1152}, {aO[0]}')
    k(f's_mul_i32 {T0}, {mb}, 144\ns_add_u32 {T0}, {T0}, {st1}\ns_lshl_b32 {T0}, {T0}, 10\nv_add_u32 {aR[0]}, {T0}, {l16}\nv_lshlrev_b32 {aB}, 4, {q}')
    k(f's_lshr_b32 {T0}, {fs}, 1\ns_mul_i32 {T0}, {T0}, 9\ns_add_u32 {T0}, {T0}, {s_w}')
    k('s_waitcnt vmcnt(0)'); vm.reset()
    k(f's_lshl_b32 {so}, {mb}, 2\ns_add_u32 {so}, {so}, {s_w}')
    flag_add(so, O_FP)

    sk = [k.label('skip') for _ in range(3)]
    def third(i, lab):
        if i == 2: k(f's_cmp_lg_u32 {s_w}, 0\ns_cbranch_scc1 {lab}')
    for i in range(3):
        third(i, sk[0])
        k(f's_add_u32 {st}, {T0}, {4 * i}\ns_lshl_b32 {st}, {st}, 6\ns_add_u32 {st1}, {st}, {O_MOD2 + 4608}\ns_lshl_b32 {st}, {st}, 6\ns_add_u32 {st}, {st}, {O_RES}')
        for h in range(2): k(f'buffer_load_dwordx4 {rs[i].sub(4 * h, 4)}, {aR[0]}, {Rws}, {st} offen offset:{1024 * h} sc1')
        k(f'buffer_load_dwordx4 {rs[i].sub(8, 4)}, {aB}, {Rws}, {st1} offen sc1')
    k(f'{sk[0]}:\ns_lshl_b32 {st}, {mb}, 2\ns_lshr_b32 {so}, {fs}, 1\ns_add_u32 {st}, {st}, {so}\ns_lshl_b32 {st}, {st}, 7\nv_mov_b32 {pa}, {st}')
    poll(pa, O_FP, 8)
    STAMP(11)
    k(f's_mul_i32 {sp}, {mb}, 9\ns_add_u32 {sp}, {sp}, {s_w}\ns_lshl_b32 {sp}, {sp}, 3\ns_add_u32 {sp}, {sp}, {fs}\ns_lshl_b32 {sp}, {sp}, 13\ns_add_u32 {sp}, {sp}, {O_PART}')
    for i in range(3):
        third(i, sk[1])
        for s_ in range(8): k(f'buffer_load_dwordx4 {pt[i].sub(4 * s_, 4)}, {vo[s_ // 4]}, {Rws}, {sp} offen offset:{1024 * (s_ % 4)} sc1')
        k(f's_add_u32 {sp}, {sp}, {4 * 65536}')
    k(f'{sk[1]}:')
    sa = k.v(8, 2); u = k.v(8, 2)
    for i in range(3):
        third(i, END)
        k(f's_waitcnt vmcnt({8 if i == 0 else 2})')
        p = pt[i]
        for e in range(8): k(un(sa[e], p[e >> 1], e & 1))
        for s_ in range(1, 8):
            for e in range(8): k(un(u[e], p[4 * s_ + (e >> 1)], e & 1))
            for e in range(4): k(f'v_pk_add_f32 {sa.sub(2 * e, 2)}, {sa.sub(2 * e, 2)}, {u.sub(2 * e, 2)}')
        for e in range(4): k(f'v_pk_fma_f32 {sa.sub(2 * e, 2)}, {sa.sub(2 * e, 2)}, {rs[i].sub(8 + 2 * (e & 1), 2)}, {rs[i].sub(2 * e, 2)}')
        k(f's_add_u32 {st}, {T0}, {4 * i}\ns_lshl_b32 {st}, {st}, 5')
        for h in range(2):
            k(f'v_cvt_pk_bf16_f32 {u[2 * h]}, {sa[4 * h]}, {sa[4 * h + 1]}\nv_cvt_pk_bf16_f32 {u[2 * h + 1]}, {sa[4 * h + 2]}, {sa[4 * h + 3]}')
            k(f'buffer_store_dwordx2 {u.sub(2 * h, 2)}, {aO[h]}, {Rout}, {st} offen')
        if i == 1: STAMP(12)
```

```python
from dsl import Kern, Reg, module
import struct

L, D, F = 2048, 576, 4608
NAME = 'adaLN_cond__ssm_conv_s4d__mixer_s_mlp__prompt'

O_FC    = 0x0000
O_FD    = 0x4000
O_FR    = 0x8000
O_FW    = 0x9000
O_FA    = 0x9400
O_FP    = 0xA000
FLAG_BYTES = 0x40000
O_STATS = 0x40000
O_MODF  = 0x44000
O_MOD2  = O_MODF + 3 * 2304
O_MODB  = 0x49000
O_MODG  = 0x4A000
O_PST   = 0x50000
GPL = 130 * 1024
O_XT    = 0x100000
O_X2    = 0x3200000
O_G     = 0x400000
O_X1F   = 0x700000
O_RES   = 0xA00000
O_W1F   = 0xF00000
O_W2F   = 0x1000000
O_W3F   = 0x1100000
O_W4F   = 0x1700000
O_PART  = 0x2000000
O_DBG   = 0x3800000
WS_USED = 0x4000000

def f2u(x): return struct.unpack('<I', struct.pack('<f', x))[0]
def fl(x): return '0x%08x' % f2u(x)
LOG2E = 1.4426950408889634

class Trk:
    def __init__(self, k, cnt, mx): self.k = k; self.cnt = cnt; self.mx = mx; self.n = 0; self.done = 0
    def op(self, s):
        self.k(s); self.n += 1; return self.n
    def wait(self, idx):
        if idx <= self.done: return
        left = min(self.n - idx, self.mx)
        self.k('s_waitcnt %s(%d)' % (self.cnt, left)); self.done = self.n - left
    def all(self): self.wait(self.n)
    def reset(self): self.done = self.n

def trackers(k): return Trk(k, 'vmcnt', 63), Trk(k, 'lgkmcnt', 15)

def srd(k, dst, ptr, nbytes, off=0):
    if off:
        k(f's_add_u32 {dst[0]}, {ptr[0]}, {off}\ns_addc_u32 {dst[1]}, {ptr[1]}, 0')
    else:
        k(f's_mov_b32 {dst[0]}, {ptr[0]}\ns_mov_b32 {dst[1]}, {ptr[1]}')
    k(f's_mov_b32 {dst[2]}, {nbytes}\ns_mov_b32 {dst[3]}, 0x20000')

def kernargs(k):
    a = k.s(16, 4); b = k.s(16, 4); c = k.s(2)
    k(f's_load_dwordx16 {a}, s[0:1], 0\ns_load_dwordx16 {b}, s[0:1], 64\ns_load_dwordx2 {c}, s[0:1], 128')
    names = ['u', 'logA', 'Aim', 'Cr', 'Ci', 'logdt', 'Dskip', 'Bx']
    P = {n: a.sub(2 * i, 2) for i, n in enumerate(names)}
    names = ['w1', 'w2', 'w3', 'w4', 'c', 'wmod', 'out', 'dbg']
    P.update({n: b.sub(2 * i, 2) for i, n in enumerate(names)})
    P['ws'] = c
    P['_blocks'] = (a, b)
    return P

def code_prefetch(k, vm, lo, hi, nbytes, tid, tmp, sp, back=False):
    here = k.label('pc')
    k(f's_getpc_b64 {sp}\n{here}:')
    if back: k(f's_sub_u32 {sp[0]}, {sp[0]}, {here}-{lo}\ns_subb_u32 {sp[1]}, {sp[1]}, 0')
    else: k(f's_add_u32 {sp[0]}, {sp[0]}, {lo}-{here}\ns_addc_u32 {sp[1]}, {sp[1]}, 0')
    k(f'v_lshlrev_b32 {tmp[0]}, 7, {tid}')
    k(f'v_min_u32 {tmp[0]}, {hi}-{lo}-4, {tmp[0]}')
    n = (nbytes + 32767) // 32768
    for i in range(n):
        x = f'global_load_dword {tmp[1]}, {tmp[0]}, {sp}'
        vm.op(x) if vm else k(x)
        if i + 1 < n:
            k(f'v_add_u32 {tmp[0]}, 0x8000, {tmp[0]}\nv_min_u32 {tmp[0]}, {hi}-{lo}-4, {tmp[0]}')

def interleave(*streams):
    out = []; n = max(len(s) for s in streams)
    for i in range(n):
        for s in streams:
            if i < len(s): out.append(s[i])
    return out

class ColJob:
    def __init__(self, k, vm, lg, lane, s_w):
        self.k, self.vm, self.lg, self.lane, self.s_w = k, vm, lg, lane, s_w
        k_ = k
        self.row = k.v(); self.chunk = k.v(); t = k.v(2)
        k_(f'v_lshrrev_b32 {self.row}, 3, {lane}')
        k_(f'v_bfe_u32 {t[0]}, {lane}, 5, 1\ns_and_b32 vcc_lo, {s_w}, 1\nv_xor_b32 {t[0]}, vcc_lo, {t[0]}')
        k_(f'v_bfe_u32 {t[1]}, {lane}, 4, 1\nv_lshl_or_b32 {t[0]}, {t[0]}, 1, {t[1]}')
        k_(f'v_lshlrev_b32 {t[0]}, 1, {t[0]}\nv_and_b32 {t[1]}, 7, {lane}\nv_xor_b32 {t[0]}, {t[0]}, {t[1]}')
        k_(f'v_lshlrev_b32 {self.chunk}, 4, {t[0]}')
        t.release()
    def dma(self, R, s_src, s_stride, buf):
        k = self.k
        va = k.v(); so = k.s(); st = k.s(); sm = k.s()
        k(f'v_mad_u32_u24 {va}, {self.row}, {s_stride}, {self.chunk}')
        k(f's_lshl_b32 {st}, {s_stride}, 3\ns_mul_i32 {so}, {st}, {self.s_w}\ns_add_u32 {so}, {so}, {s_src}\ns_lshl_b32 {st}, {st}, 2')
        k(f's_lshl_b32 {sm}, {self.s_w}, 10')
        last = None
        for i in range(18):
            k(f's_add_u32 m0, {sm}, {buf + i * 4096}')
            last = self.vm.op(f'buffer_load_dwordx4 {va}, {R}, {so} offen lds')
            if i < 17: k(f's_add_u32 {so}, {so}, {st}')
        va.release(); so.release(); st.release(); sm.release()
        return last
    def read(self, buf, fr, **kw):
        return self.reads(self.addr(buf, **kw), fr)
    def addr(self, buf, w4order=False, s_il=None, s_w4=None):
        k, lane = self.k, self.lane
        ad = k.v(4); q = k.v(); r = k.v(); c = k.v(); un = k.v(); wi = k.v(); t = k.v(2)
        k(f'v_lshrrev_b32 {q}, 4, {lane}\nv_bfe_u32 {r}, {lane}, 2, 2\nv_and_b32 {c}, 3, {lane}')
        k(f'v_mov_b32 {un}, {self.s_w}\nv_lshlrev_b32 {wi}, 3, {c}')
        if s_il is not None:
            st = k.s()
            k(f's_and_b32 {st}, {self.s_w}, 2\nv_lshrrev_b32 {t[0]}, 1, {c}\nv_add_u32 {t[0]}, {st}, {t[0]}')
            k(f's_and_b32 {st}, {self.s_w}, 1\ns_lshl_b32 {st}, {st}, 3\nv_and_b32 {t[1]}, 1, {c}\nv_lshl_add_u32 {t[1]}, {t[1]}, 4, {st}')
            k(f's_cmp_lg_u32 {s_il}, 0\ns_cselect_b64 vcc, -1, 0')
            k(f'v_cndmask_b32 {un}, {un}, {t[0]}, vcc\nv_cndmask_b32 {wi}, {wi}, {t[1]}, vcc')
            st.release()
        for h in range(2):
            kl = ad[h]
            if w4order: k(f'v_lshl_add_u32 {kl}, {q}, 2, {r}\nv_add_u32 {kl}, {16 * h}, {kl}')
            else: k(f'v_lshl_add_u32 {kl}, {q}, 3, {r}\nv_add_u32 {kl}, {4 * h}, {kl}')
            if s_w4 is not None:
                k(f'v_lshl_add_u32 {t[0]}, {q}, 2, {r}\nv_add_u32 {t[0]}, {16 * h}, {t[0]}\ns_cmp_eq_u32 {s_w4}, 4\ns_cselect_b64 vcc, -1, 0\nv_cndmask_b32 {kl}, {kl}, {t[0]}, vcc')
            k(f'v_lshrrev_b32 {t[0]}, 1, {kl}\nv_xor_b32 {t[0]}, {t[0]}, {kl}\nv_bfe_u32 {t[0]}, {t[0]}, 2, 1')
            k(f'v_bfe_u32 {t[1]}, {kl}, 1, 1\nv_lshl_or_b32 {t[0]}, {t[0]}, 1, {t[1]}\nv_xor_b32 {t[0]}, {t[0]}, {un}')
            k(f'v_lshl_add_u32 {t[0]}, {t[0]}, 5, {wi}\nv_lshl_add_u32 {kl}, {kl}, 7, {t[0]}')
            k(f'v_add_u32 {kl}, {buf}, {kl}\nv_add_u32 {ad[2 + h]}, 0x9000, {kl}')
        for x in (q, r, c, un, wi, t): x.release()
        return ad
    def reads(self, ad, fr):
        ids = []
        for s in range(18):
            for h in range(2):
                a = ad[h] if s < 9 else ad[2 + h]
                i = self.lg.op(f'ds_read_b64_tr_b16 {fr.sub(4 * s + 2 * h, 2)}, {a} offset:{(s % 9) * 4096}')
            ids.append(i)
        ad.release()
        return ids
    def store(self, fr, ids, Rws, s_dst, s_step, s_rot=None, flags='sc1'):
        k = self.k
        va = k.v(); so = k.s(); sl = k.s()
        k(f'v_lshlrev_b32 {va}, 4, {self.lane}')
        if s_rot is not None: k(f's_mov_b32 {sl}, {s_rot}')
        else: k(f's_mov_b32 {so}, {s_dst}')
        for s in range(18):
            if s_rot is not None:
                k(f's_mul_i32 {so}, {sl}, {s_step}\ns_add_u32 {so}, {so}, {s_dst}')
                k(f's_add_u32 {sl}, {sl}, 1\ns_cmp_eq_u32 {sl}, 18\ns_cselect_b32 {sl}, 0, {sl}')
            if ids: self.lg.wait(ids[s])
            self.vm.op(f'buffer_store_dwordx4 {fr.sub(4 * s, 4)}, {va}, {Rws}, {so} offen {flags}')
            if s_rot is None and s < 17: k(f's_add_u32 {so}, {so}, {s_step}')
        va.release(); so.release(); sl.release()

class Stamper:
    def __init__(self, k, on, area, t=None):
        self.k = k; self.on = on; self.area = area
        if on: self.r = k.s(16, 1); self.t = t or k.s(2)
    def __call__(self, i):
        if self.on:
            self.k(f'{"s_memtime" if self.on == 2 else "s_memrealtime"} {self.t}\ns_waitcnt lgkmcnt(0)\ns_mov_b32 {self.r[i]}, {self.t[0]}')
    def init(self):
        if self.on:
            for i in range(16): self.k(f's_mov_b32 {self.r[i]}, 0')
    def flush(self):
        if not self.on: return
        k = self.k; t = self.t; done = k.label('stamped')
        k(f's_waitcnt vmcnt(0) lgkmcnt(0)\ns_mov_b64 exec, -1\nv_mov_b32 v1, 0\nv_cmp_eq_u32 vcc, 0, v0\ns_and_b64 exec, exec, vcc\ns_cbranch_execz {done}')
        k(f's_load_dwordx2 {t}, s[0:1], 128\ns_lshl_b32 vcc_lo, s2, 6\ns_add_u32 vcc_lo, vcc_lo, {O_DBG + 0x400000 + self.area * 256 * 64}\nv_mov_b32 v1, vcc_lo\ns_waitcnt lgkmcnt(0)')
        for i in range(16): k(f'v_mov_b32 v2, {self.r[i]}\nglobal_store_dword v1, v2, {t} offset:{4 * i}')
        k(f'{done}:')

def sigma_bf16(k, mean, var):
    k(f'v_mul_f32 {mean}, {fl(1 / 576)}, {mean}\nv_mul_f32 {var}, {fl(1 / 576)}, {var}')
    k(f'v_fma_f32 {var}, -{mean}, {mean}, {var}\nv_max_f32 {var}, 0, {var}')
    k(f'v_cvt_pk_bf16_f32 {var}, {var}, {var}\nv_and_b32 {var}, 0xffff0000, {var}\nv_add_f32 {var}, {fl(1e-5)}, {var}')
    k(f'v_cvt_pk_bf16_f32 {var}, {var}, {var}\nv_and_b32 {var}, 0xffff0000, {var}\nv_sqrt_f32 {var}, {var}')


LDS_BYTES = 163840
WSTR, HB, HSTR = 19072, 4 * 19072, 4608
FREE0 = HB + 4 * HSTR
W1_AT = [FREE0 + 6144 * i for i in range(11)] + [HB + 6144 * i for i in range(3)] + [WSTR * i + 12288 for i in range(4)]
W2_AT = [WSTR * (i // 2) + 6144 * (i % 2) for i in range(6)] + W1_AT[:12]
TABS = 3 * WSTR

class PairDma:
    def __init__(self, k, s_w, s_jm, base, R, l16, at):
        self.k, self.R, self.l16, self.at = k, R, l16, at
        self.src = k.s(); self.wh = k.s(); self.wl = k.s(); self.t = k.s()
        k(f's_mul_i32 {self.src}, {s_jm}, 110592\ns_mul_i32 {self.t}, {s_w}, 3072\ns_add_u32 {self.src}, {self.src}, {self.t}\ns_add_u32 {self.src}, {self.src}, {base}')
        k(f's_lshr_b32 {self.wh}, {s_w}, 1\ns_and_b32 {self.wl}, {s_w}, 1\ns_mul_i32 {self.wl}, {self.wl}, 3072')
    def ops(self, P):
        c0, c1 = self.at[2 * P], self.at[2 * P + 1]
        ld = lambda i: f'buffer_load_dwordx4 {self.l16}, {self.R}, {self.src} offen sc1 lds'
        return [[f's_mul_i32 {self.t}, {self.wh}, {c1 - c0}', f's_add_u32 {self.t}, {self.t}, {self.wl}', f's_add_u32 m0, {self.t}, {c0}', ld(0)],
                [f's_add_u32 m0, {self.t}, {c0 + 1024}', f's_add_u32 {self.src}, {self.src}, 1024', ld(1)],
                [f's_add_u32 m0, {self.t}, {c0 + 2048}', f's_add_u32 {self.src}, {self.src}, 1024', ld(2), f's_add_u32 {self.src}, {self.src}, {12288 - 2048}']]
    def release(self):
        for x in (self.src, self.wh, self.wl, self.t): x.release()
```

```python
from common import *

N_SIG = 64 + 45
BUF0, BUF1, SVEC = 0, 73728, 147456
K1_LDS = 147456 + 2560
SPIN_MAX = 40000

def vmaps():
    maps = [list(range(16))]
    for s in (1, 2, 3):
        m = list(maps[-1]); step = 1 << s
        new = [step * i for i in range(8, 16)]
        for j in range(16):
            if m[j] % step: m[j] = new.pop(0)
        assert not new
        maps.append(m)
    return maps

def service(k, P, lane, s_w, END, NEXT, SP):
    vm, lg = trackers(k)
    Rws = k.s(4); Rdbg = k.s(4); RA = k.s(4); RB = k.s(4)
    srd(k, Rws, P['ws'], WS_USED); srd(k, Rdbg, P['dbg'], 256)
    z4 = k.v(4, 4); zero = z4.sub(0, 2); one = k.v(); l16 = k.v(); q = k.v(); m = k.v()
    fr = k.v(72, 4); sv = k.v(72, 4); acc = k.v(4, 4)
    sav = k.s(2); st = k.s(); cnt = k.s()
    jb = k.s(); modeB = k.s(); blkB = k.s(); srcB = k.s(); strB = k.s()
    L_mod, L_B, L_C = k.label('mod'), k.label('jobB'), k.label('jobC')
    k(f'v_lshrrev_b32 {q}, 4, {lane}\nv_and_b32 {m}, 15, {lane}\nv_lshlrev_b32 {l16}, 4, {lane}')
    cjs = {}
    def common():
        for i in range(4): k(f'v_mov_b32 {z4[i]}, 0')
        k(f'v_mov_b32 {one}, 1\ns_mov_b32 {cnt}, 0')
        k(f's_add_u32 {jb}, s2, 32\ns_sub_u32 {blkB}, s2, 64\ns_cmp_ge_u32 s2, 64\ns_cselect_b32 {jb}, {blkB}, {jb}')
        k(f's_cmp_ge_u32 s2, 96\ns_cselect_b32 {jb}, 200, {jb}\ns_sub_u32 {blkB}, s2, 7\ns_cmp_ge_u32 s2, 103\ns_cselect_b32 {jb}, {blkB}, {jb}')
        srd(k, RB, P['wmod'], D * 3456 * 2)
        k(f's_mov_b32 {modeB}, 0\ns_cmp_ge_u32 {jb}, 6\ns_cselect_b32 {blkB}, 39, 30\ns_add_u32 {blkB}, {blkB}, {jb}\ns_mov_b32 {strB}, 6912')
        for mode, lo, ptr, nb, st_ in ((2, 15, 'w2', D * D * 2, 1152), (3, 24, 'w3', D * F * 2, 9216), (1, 96, 'w1', D * D * 2, 1152)):
            k(f's_sub_u32 {srcB}, {jb}, {lo}\ns_cmp_ge_u32 {jb}, {lo}')
            k(f's_cselect_b32 {blkB}, {srcB}, {blkB}\ns_cselect_b32 {modeB}, {mode}, {modeB}\ns_cselect_b32 {strB}, {st_}, {strB}')
            k(f's_cselect_b32 {RB[0]}, {P[ptr][0]}, {RB[0]}\ns_cselect_b32 {RB[1]}, {P[ptr][1]}, {RB[1]}\ns_cselect_b32 {RB[2]}, {nb}, {RB[2]}')
        k(f's_lshl_b32 {srcB}, {blkB}, 7')
    def signal(off, last):
        sk = k.label('notlast')
        k(f's_mov_b64 exec, 1\nv_mov_b32 {acc[0]}, 1\nbuffer_atomic_add {acc[0]}, {zero[0]}, {Rdbg}, {off} offen offset:64 sc0 sc1\ns_waitcnt vmcnt(0)')
        k(f'v_readfirstlane_b32 {st}, {acc[0]}\ns_cmp_lg_u32 {st}, {last}\ns_cbranch_scc1 {sk}')
        k(f'buffer_store_dword {one}, {zero[0]}, {Rdbg}, {off} offen offset:192 sc1\n{sk}:\ns_mov_b64 exec, -1')
    cj = ColJob(k, vm, lg, lane, s_w)
    L_w1 = k.label('w1')
    k(f's_cmp_ge_u32 s2, 103\ns_cbranch_scc1 {L_w1}\ns_cmp_ge_u32 s2, 64\ns_cbranch_scc1 {L_mod}')

    srd(k, RA, P['u'], L * D * 2)
    va = k.v(); vx = k.v(2); t = k.v(6); row = k.v(); s1 = k.s()
    k(f's_and_b32 {st}, {s_w}, 1\ns_lshl_b32 {s1}, s2, 1\ns_add_u32 {st}, {st}, {s1}\ns_lshl_b32 {st}, {st}, 4')
    k(f'v_and_b32 {t[0]}, 7, {m}\nv_lshrrev_b32 {t[2]}, 3, {m}\nv_lshl_add_u32 {t[5]}, {t[0]}, 1, {t[2]}\nv_add_u32 {row}, {st}, {t[5]}')
    k(f's_lshr_b32 {s1}, {s_w}, 1\ns_mul_i32 {st}, {s1}, 576\nv_mul_u32_u24 {va}, 1152, {row}\nv_lshl_add_u32 {va}, {q}, 4, {va}')
    ix = [vm.op(f'buffer_load_dwordx4 {fr.sub(4 * i, 4)}, {va}, {RA}, {st} offen offset:{64 * i}') for i in range(9)]
    pf = k.v(2); pfs = k.s(2)
    common()
    k(f's_lshl_b32 {st}, s2, 2\ns_add_u32 {st}, {st}, {s_w}\ns_lshl_b32 {st}, {st}, 10')
    k(f'buffer_store_dwordx4 {z4}, {l16}, {Rws}, {st} offen sc1')
    sk = k.label('nopad')
    k(f's_cmp_lg_u32 {s_w}, 2\ns_cbranch_scc1 {sk}\ns_cmp_ge_u32 s2, 36\ns_cbranch_scc1 {sk}\ns_lshr_b32 {st}, s2, 1\ns_mul_i32 {st}, {st}, {GPL}\ns_bitcmp1_b32 s2, 0\ns_cselect_b32 {sav[0]}, {129 * 1024}, 0')
    k(f's_add_u32 {st}, {st}, {sav[0]}\ns_add_u32 {st}, {st}, {O_G}\nbuffer_store_dwordx4 {z4}, {l16}, {Rws}, {st} offen sc1\n{sk}:')
    k(f'v_lshrrev_b32 {t[0]}, 3, {m}\nv_lshl_add_u32 {t[1]}, {q}, 1, {t[0]}\nv_lshlrev_b32 {vx[0]}, 14, {t[1]}\nv_sub_u32 {t[1]}, {row}, {t[0]}\nv_lshl_add_u32 {vx[0]}, {t[1]}, 3, {vx[0]}')
    k(f's_mul_i32 {s1}, {s1}, {9 * 131072}\ns_add_u32 {s1}, {s1}, {O_XT}\ns_mov_b32 {st}, 0x3f803f80\nv_cmp_eq_u32 vcc, 0, {t[0]}')
    for i in range(4): k(f'v_mov_b32 {acc[i]}, 0')
    dp = 'row_ror:8 row_mask:0xf bank_mask:0xf'
    for i in range(9):
        vm.wait(ix[i])
        if i == 0: SP(8)
        r_ = fr.sub(4 * i, 4); o = sv.sub(4 * i, 4)
        k(f'v_cndmask_b32_dpp {o[0]}, {r_[2]}, {r_[0]}, vcc {dp}\nv_cndmask_b32_dpp {o[1]}, {r_[3]}, {r_[1]}, vcc {dp}\ns_not_b64 vcc, vcc')
        k(f'v_cndmask_b32_dpp {o[2]}, {r_[0]}, {r_[2]}, vcc {dp}\nv_cndmask_b32_dpp {o[3]}, {r_[1]}, {r_[3]}, vcc {dp}\ns_not_b64 vcc, vcc')
        vm.op(f'buffer_store_dwordx4 {o}, {vx[0]}, {Rws}, {s1} offen sc1')
        if i < 8: k(f's_add_u32 {s1}, {s1}, 131072')
    for i in range(36):
        k(f'v_dot2_f32_bf16 {acc[i & 1]}, {fr[i]}, {st}, {acc[i & 1]}')
        k(f'v_dot2_f32_bf16 {acc[2 + (i & 1)]}, {fr[i]}, {fr[i]}, {acc[2 + (i & 1)]}')
    k(f'v_add_f32 {t[0]}, {acc[0]}, {acc[1]}\nv_add_f32 {t[2]}, {acc[2]}, {acc[3]}\nv_permlane32_swap_b32 {t[0]}, {t[2]}\nv_add_f32 {t[0]}, {t[0]}, {t[2]}')
    k(f'v_mov_b32 {t[1]}, {t[0]}\nv_permlane16_swap_b32 {t[0]}, {t[1]}\nv_add_f32 {t[0]}, {t[0]}, {t[1]}')
    k(f's_lshl_b32 {st}, {s_w}, 8\ns_add_u32 {st}, {st}, {SVEC}\nv_lshl_add_u32 {t[1]}, {q}, 4, {t[5]}\nv_lshl_add_u32 {t[1]}, {t[1]}, 2, {st}\nds_write_b32 {t[1]}, {t[0]}')
    k('s_waitcnt lgkmcnt(0)\ns_barrier')
    a, b = k.label('notw0'), k.label('sigd')
    k(f's_cmp_lg_u32 {s_w}, 0\ns_cbranch_scc1 {a}')
    k(f'v_and_b32 {t[1]}, 1, {q}\nv_lshlrev_b32 {t[1]}, 8, {t[1]}\nv_lshl_add_u32 {t[1]}, {m}, 2, {t[1]}\nv_add_u32 {t[1]}, {SVEC}, {t[1]}')
    k(f'ds_read2_b32 {t[2:4]}, {t[1]} offset0:0 offset1:32\nds_read2_b32 {t[4:6]}, {t[1]} offset0:128 offset1:160\ns_waitcnt lgkmcnt(0)')
    k(f'v_add_f32 {t[0]}, {t[2]}, {t[4]}\nv_add_f32 {t[2]}, {t[3]}, {t[5]}')
    sigma_bf16(k, t[0], t[2])
    k(f'v_cvt_pk_bf16_f32 {t[2]}, {t[0]}, {t[2]}\nv_lshlrev_b32 {t[1]}, 2, {lane}\ns_lshl_b32 {st}, s2, 7\ns_add_u32 {st}, {st}, {O_STATS}')
    k(f's_mov_b32 exec_hi, 0\nbuffer_store_dword {t[2]}, {t[1]}, {Rws}, {st} offen sc1\ns_mov_b64 exec, -1')
    k(f'{a}:\ns_waitcnt vmcnt(0)\ns_barrier'); vm.reset()
    k(f's_cmp_lg_u32 {s_w}, 0\ns_cbranch_scc1 {b}')
    signal(0, 63)
    k(f'{b}:'); SP(9)
    cj.dma(RB, srcB, strB, BUF1)
    srd(k, RA, P['w4'], D * F * 2)
    k(f's_mul_hi_u32 {st}, s2, {(1 << 32) // 9 + 1}\ns_mul_i32 {s1}, {st}, 9\ns_sub_u32 {s1}, s2, {s1}\ns_lshl_b32 {s1}, {s1}, 7')
    k(f's_mul_i32 {st}, {st}, {576 * 1152}\ns_add_u32 {s1}, {s1}, {st}\ns_mov_b32 {st}, 1152')
    cj.dma(RA, s1, st, BUF0)
    k(f's_branch {L_B}')
    for x_ in (va, vx, t, row, s1): x_.release()

    def mod_tail(ids, s_blk, sig):
        t = k.v(2); vg = k.v(); s1 = k.s()
        for s in range(18):
            if s % 2 == 0: lg.wait(ids[s + 1])
            k(f'v_mfma_f32_16x16x32_bf16 {acc}, {sv.sub(4 * s, 4)}, {fr.sub(4 * s, 4)}, {"0" if s == 0 else acc}')
        k(f's_lshl_b32 {s1}, {s_w}, 6\ns_add_u32 {s1}, {s1}, {SVEC + 2048}\nv_lshl_add_u32 {vg}, {m}, 2, {s1}')
        k(f'v_cvt_pk_bf16_f32 {t[0]}, {acc[0]}, {acc[0]}\nv_and_b32 {t[0]}, 0xffff0000, {t[0]}')
        k(f'v_add_f32 {t[1]}, 1.0, {t[0]}\nv_cvt_pk_bf16_f32 {t[1]}, {t[1]}, {t[1]}\nv_and_b32 {t[1]}, 0xffff0000, {t[1]}')
        k(f's_mov_b64 vcc, 0\ns_sub_u32 {s1}, {s_blk}, 9\ns_cmp_lt_u32 {s1}, 9\ns_cselect_b64 vcc, -1, vcc')
        k(f's_sub_u32 {s1}, {s_blk}, 36\ns_cmp_lt_u32 {s1}, 9\ns_cselect_b64 vcc, -1, vcc')
        k(f'v_cndmask_b32 {t[0]}, {t[0]}, {t[1]}, vcc\nds_write_b32 {vg}, {t[0]}\ns_waitcnt lgkmcnt(0)\ns_barrier'); lg.reset()
        a, b = k.label('notw0'), k.label('nob')
        k(f's_cmp_lg_u32 {s_w}, 0\ns_cbranch_scc1 {a}')
        k(f'v_lshlrev_b32 {vg}, 3, {lane}\nv_add_u32 {t[0]}, {SVEC + 2048}, {vg}\nds_read_b64 {t}, {t[0]}\ns_lshl_b32 {s1}, {s_blk}, 8\ns_add_u32 {s1}, {s1}, {O_MODF}')
        k(f's_mov_b32 exec_hi, 0\ns_waitcnt lgkmcnt(0)\nbuffer_store_dwordx2 {t}, {vg}, {Rws}, {s1} offen sc1')
        if sig:
            k(f's_sub_u32 {s1}, {s_blk}, 27\ns_cmp_ge_u32 {s1}, 18\ns_cbranch_scc1 {b}')
            k(f'v_cvt_pk_bf16_f32 {acc[0]}, {t[0]}, {t[1]}\nv_lshrrev_b32 {vg}, 1, {vg}\ns_lshl_b32 {s1}, {s1}, 7\ns_add_u32 {s1}, {s1}, {O_MODB}')
            k(f'buffer_store_dword {acc[0]}, {vg}, {Rws}, {s1} offen sc1\n{b}:')
            k(f's_cmp_ge_u32 {s_blk}, 45\ns_cbranch_scc1 {a}\ns_sub_u32 {s1}, {s_blk}, 27\ns_cmp_lt_u32 {s1}, 9')
            k(f's_cselect_b32 {sav[0]}, 12, 4\ns_cselect_b32 {sav[1]}, 8, 35\ns_waitcnt vmcnt(0)')
            signal(sav[0], sav[1])
        k(f'{a}:\ns_mov_b64 exec, -1')
        t.release(); vg.release(); s1.release()

    k(f'{L_mod}:')
    vm, lg = trackers(k); cj.vm, cj.lg = vm, lg
    blkA = k.s(); srcA = k.s(); strA = k.s(); Rc = k.s(4)
    srd(k, RA, P['wmod'], D * 3456 * 2); srd(k, Rc, P['c'], D * 2)
    k(f's_sub_u32 {blkA}, s2, 64\ns_cmp_ge_u32 {blkA}, 27\ns_cselect_b32 {st}, 9, 0\ns_cmp_ge_u32 {blkA}, 36\ns_cselect_b32 {st}, -9, {st}\ns_add_u32 {blkA}, {blkA}, {st}')
    k(f's_lshl_b32 {srcA}, {blkA}, 7\ns_mov_b32 {strA}, 6912')
    t = k.v(8); vg = k.v()
    k(f'v_lshlrev_b32 {vg}, 3, v0')
    ic = vm.op(f'buffer_load_dwordx2 {t[0:2]}, {vg}, {Rc}, 0 offen')
    ia = cj.dma(RA, srcA, strA, BUF0)
    common()
    vm.wait(ic)
    k(f'v_lshlrev_b32 {t[2]}, 16, {t[0]}\nv_and_b32 {t[3]}, 0xffff0000, {t[0]}\nv_lshlrev_b32 {t[4]}, 16, {t[1]}\nv_and_b32 {t[5]}, 0xffff0000, {t[1]}')
    e = k.v(4)
    for i in range(4): k(f'v_mul_f32 {e[i]}, {fl(-LOG2E)}, {t[2 + i]}')
    for i in range(4): k(f'v_exp_f32 {e[i]}, {e[i]}')
    for i in range(4): k(f'v_add_f32 {e[i]}, 1.0, {e[i]}')
    for i in range(4): k(f'v_rcp_f32 {e[i]}, {e[i]}')
    for i in range(4): k(f'v_mul_f32 {e[i]}, {e[i]}, {t[2 + i]}')
    k(f'v_cvt_pk_bf16_f32 {t[0]}, {e[0]}, {e[1]}\nv_cvt_pk_bf16_f32 {t[1]}, {e[2]}, {e[3]}\nv_add_u32 {vg}, {SVEC}, {vg}')
    k(f'ds_write_b64 {vg}, {t[0:2]}\nv_lshlrev_b32 {vg}, 4, {q}\nv_add_u32 {vg}, {SVEC}, {vg}\ns_waitcnt lgkmcnt(0)\ns_barrier')
    for s in range(18): lg.op(f'ds_read_b128 {sv.sub(4 * s, 4)}, {vg} offset:{64 * s}')
    ad = cj.addr(BUF0)
    k('s_waitcnt vmcnt(0) lgkmcnt(0)\ns_barrier'); SP(10); vm.reset(); lg.reset()
    ids = cj.reads(ad, fr)
    mod_tail(ids, blkA, True); SP(11)
    k(f's_cmp_ge_u32 {jb}, 200\ns_cbranch_scc1 {L_C}')
    cj.dma(RB, srcB, strB, BUF1)
    k(f's_waitcnt vmcnt(0)\ns_branch {L_B}')
    e.release(); t.release(); vg.release()

    k(f'{L_w1}:')
    common()
    cj.dma(RB, srcB, strB, BUF1)
    k('s_waitcnt vmcnt(0)')

    k(f'{L_B}:')
    vm, lg = trackers(k); cj.vm, cj.lg = vm, lg
    k(f's_waitcnt vmcnt(18) lgkmcnt(0)\ns_barrier')
    SP(12)
    il = k.s(); k(f's_sub_u32 {il}, {modeB}, 1\ns_cmp_lt_u32 {il}, 2\ns_cselect_b32 {il}, 1, 0')
    ids = cj.read(BUF1, fr, s_il=il)
    notmod, nocenter = k.label('notmod'), k.label('nocenter')
    k(f's_cmp_lg_u32 {modeB}, 0\ns_cbranch_scc1 {notmod}')
    mod_tail(ids, blkB, True)
    k(f's_branch {L_C}\n{notmod}:')
    k('s_waitcnt lgkmcnt(0)'); lg.reset()
    k(f's_bitcmp0_b32 {modeB}, 0\ns_cbranch_scc1 {nocenter}')
    ones = sv.sub(0, 4); t = k.v(4); gof = k.v(4, 4)
    go2_ld = f'buffer_load_dwordx4 {gof}, {zero[0]}, {Rdbg}, 0 offen offset:192 sc1'
    k(go2_ld)
    for i in range(4): k(f'v_mov_b32 {ones[i]}, 0x3f803f80')
    for s in range(18): k(f'v_mfma_f32_16x16x32_bf16 {acc}, {ones}, {fr.sub(4 * s, 4)}, {"0" if s == 0 else acc}')
    nm = sv.sub(4, 2)
    k(f'v_mul_f32 {nm[0]}, {fl(-1 / 576)}, {acc[0]}')
    for i in range(0, 72, 2):
        k(f'v_lshlrev_b32 {t[0]}, 16, {fr[i]}\nv_and_b32 {t[1]}, 0xffff0000, {fr[i]}')
        k(f'v_lshlrev_b32 {t[2]}, 16, {fr[i + 1]}\nv_and_b32 {t[3]}, 0xffff0000, {fr[i + 1]}')
        k(f'v_pk_add_f32 {t[0:2]}, {t[0:2]}, {nm} op_sel_hi:[1,0]\nv_pk_add_f32 {t[2:4]}, {t[2:4]}, {nm} op_sel_hi:[1,0]')
        k(f'v_cvt_pk_bf16_f32 {fr[i]}, {t[0]}, {t[1]}\nv_cvt_pk_bf16_f32 {fr[i + 1]}, {t[2]}, {t[3]}')
    k(f'{nocenter}:')
    T = k.s(); j = k.s(); dst = k.s(); step = k.s(); rot = k.s()
    k(f's_lshl_b32 {T}, {blkB}, 2\ns_add_u32 {T}, {T}, {s_w}')
    k(f's_mul_hi_u32 {j}, {T}, {(1 << 32) // 6 + 1}\ns_mul_i32 {dst}, {j}, 6\ns_sub_u32 {dst}, {T}, {dst}\ns_lshl_b32 {dst}, {dst}, 10')
    k(f's_mul_i32 {step}, {j}, 110592\ns_add_u32 {dst}, {dst}, {step}')
    k(f's_mul_i32 {rot}, {j}, 3\ns_sub_u32 {rot}, 18, {rot}\ns_cmp_eq_u32 {rot}, 18\ns_cselect_b32 {rot}, 0, {rot}')
    k(f's_cmp_eq_u32 {modeB}, 1\ns_cselect_b32 {rot}, {rot}, 0\ns_cselect_b32 {step}, 0, {O_W2F - O_W1F}\ns_add_u32 {dst}, {dst}, {step}\ns_add_u32 {dst}, {dst}, {O_W1F}')
    k(f's_mul_i32 {j}, {T}, 18432\ns_add_u32 {j}, {j}, {O_W3F}')
    k(f's_cmp_ge_u32 {modeB}, 3\ns_cselect_b32 {dst}, {j}, {dst}\ns_cselect_b32 {step}, 1, 6\ns_lshl_b32 {step}, {step}, 10')
    notw1, L_st = k.label('notw1'), k.label('stored')
    k(f's_cmp_lg_u32 {modeB}, 1\ns_cbranch_scc1 {notw1}')
    cj.store(fr, None, Rws, dst, step, s_rot=rot)
    sk = k.label('nosig')
    k(f's_waitcnt vmcnt(0)\ns_barrier\ns_cmp_lg_u32 {s_w}, 0\ns_cbranch_scc1 {sk}')
    signal(8, 8)
    k(f'{sk}:')
    lp, ok = k.label('pollm'), k.label('gotm')
    k(f'{lp}:\ns_waitcnt vmcnt(0)\nv_and_b32 {gof[1]}, {gof[1]}, {gof[3]}\nv_readfirstlane_b32 {st}, {gof[1]}\ns_cmp_ge_u32 {st}, 1\ns_cbranch_scc1 {ok}')
    k(f's_sleep 4\n{go2_ld}\ns_add_u32 {cnt}, {cnt}, 1\ns_cmp_lt_u32 {cnt}, {SPIN_MAX}\ns_cbranch_scc1 {lp}\ns_branch {END}\n{ok}:'); vm.reset()
    k(f'v_and_b32 {t[0]}, 1, {m}\nv_xor_b32 {t[0]}, 1, {t[0]}\nv_mul_u32_u24 {t[0]}, 1152, {t[0]}\nv_lshl_add_u32 {t[0]}, {q}, 4, {t[0]}\ns_mov_b32 {st}, {O_MODB}')
    ids = [vm.op(f'buffer_load_dwordx4 {sv.sub(4 * s, 4)}, {t[0]}, {Rws}, {st} offen offset:{64 * s} sc1') for s in range(18)]
    k(f's_lshr_b32 {j}, {s_w}, 1\ns_lshl_b32 {j}, {j}, 7\ns_and_b32 {st}, {s_w}, 1\ns_lshl_b32 {st}, {st}, 4\ns_add_u32 {j}, {j}, {st}\ns_add_u32 {j}, {j}, {SVEC}')
    k(f'v_lshrrev_b32 {t[1]}, 2, {m}\nv_and_b32 {t[2]}, 3, {m}\nv_lshlrev_b32 {t[2]}, 2, {t[2]}\nv_lshl_add_u32 {t[1]}, {t[1]}, 5, {t[2]}\nv_add_u32 {t[1]}, {j}, {t[1]}')
    for s in range(18):
        vm.wait(ids[s])
        k(f'v_mfma_f32_16x16x32_bf16 {acc}, {sv.sub(4 * s, 4)}, {fr.sub(4 * s, 4)}, {"0" if s == 0 else acc}')
    k(f'ds_write2st64_b32 {t[1]}, {acc[0]}, {acc[1]} offset0:0 offset1:1\ns_waitcnt lgkmcnt(0)\ns_barrier\ns_cmp_lg_u32 {s_w}, 0\ns_cbranch_scc1 {L_st}')
    k(f'v_add_u32 {t[0]}, {SVEC}, {l16}\nds_read_b128 {acc}, {t[0]}\nv_mul_u32_u24 {t[1]}, 2304, {q}\nv_lshl_add_u32 {t[1]}, {m}, 4, {t[1]}')
    k(f's_lshl_b32 {j}, {blkB}, 8\ns_add_u32 {j}, {j}, {O_MODF + 6 * 2304}\ns_mov_b32 exec_hi, 0\ns_waitcnt lgkmcnt(0)')
    k(f'buffer_store_dwordx4 {acc}, {t[1]}, {Rws}, {j} offen sc1\ns_mov_b64 exec, -1')
    k(f'{L_st}:\ns_branch {L_C}')
    k(f'{notw1}:'); vm.reset()
    cj.store(fr, None, Rws, dst, step, s_rot=rot)
    k(f'{L_C}:'); SP(13)
    code_prefetch(k, None, NEXT, END, 60000, 'v0', pf, pfs)
    k(f's_branch {NEXT}')

TAB, KD = 0, 17408

def conv(k, P, lane, s_w, END, NEXT, dump, SP):
    vm, lg = trackers(k)
    cidx = k.s(); s_d = k.s(); st = k.s(); st2 = k.s(); sav = k.s(2)
    k(f's_and_b32 {cidx}, s2, 7\ns_mul_i32 {cidx}, {cidx}, 18\ns_lshr_b32 {st}, s2, 3\ns_add_u32 {cidx}, {cidx}, {st}\ns_sub_u32 {cidx}, {cidx}, 14')
    k(f's_lshl_b32 {s_d}, {cidx}, 2\ns_add_u32 {s_d}, {s_d}, {s_w}\ns_lshl_b32 {st}, {cidx}, 3')
    sdt = k.s(2); sD = k.s(2)
    k(f's_load_dwordx2 {sdt}, {P["logdt"]}, {st}\ns_load_dwordx2 {sD}, {P["Dskip"]}, {st}')
    R = k.s(4); Rws = k.s(4); Rdbg = k.s(4)
    par = k.v(4); t = k.v(8); x = k.v(16)
    k(f'v_lshlrev_b32 {t[0]}, 2, {lane}\ns_lshl_b32 {st2}, {s_d}, 8')
    for i, n in enumerate(('logA', 'Aim', 'Cr', 'Ci')):
        srd(k, R, P[n], D * 128 * 2)
        ipar = vm.op(f'buffer_load_dword {par[i]}, {t[0]}, {R}, {st2} offen')
    srd(k, Rws, P['ws'], WS_USED); srd(k, Rdbg, P['dbg'], 256)
    wb = k.s(); k(f's_mul_i32 {wb}, {s_w}, {WSTR}')
    q = k.v(); m = k.v(); ag = k.v(); am = k.v(); a4 = k.v(); fl_v = k.v(2)
    k(f'v_lshrrev_b32 {q}, 4, {lane}\nv_and_b32 {m}, 15, {lane}')
    ga = k.v(32); cst = k.v()
    k(f's_add_u32 {st2}, {wb}, {KD - 2 * (134 * 128 - 128)}\nv_mov_b32 {cst}, {st2}')
    k(f'v_lshlrev_b32 {t[2]}, 3, {lane}\nv_cvt_f32_u32 {t[2]}, {t[2]}')
    for c in range(4):
        for e in range(0, 8, 2):
            k(f'v_add_f32 {t[4]}, {fl(512 * c + e)}, {t[2]}\nv_add_f32 {t[5]}, {fl(512 * c + e + 1)}, {t[2]}\nv_cvt_pk_bf16_f32 {t[4]}, {t[4]}, {t[5]}')
            k(f'v_mad_u32_u16 {ga[8 * c + e]}, {t[4]}, 2, {cst}\nv_mad_u32_u16 {ga[8 * c + e + 1]}, {t[4]}, 2, {cst} op_sel:[1,0,0,0]')
    k(f's_add_u32 {st2}, {wb}, {KD}\nv_lshl_add_u32 {t[4]}, {lane}, 4, {st2}\nv_cmp_gt_u32 vcc, 16, {lane}')
    for e in range(8): k(f'v_add_u32 {t[5]}, {2 * e}, {t[4]}\nv_cndmask_b32 {ga[e]}, {ga[e]}, {t[5]}, vcc')
    VM = vmaps()
    kda = k.v(4)
    k(f'v_lshlrev_b32 {t[2]}, 2, {m}')
    for s in range(4):
        lut = sum((VM[s][j] >> s) << (4 * j) for j in range(16))
        base = 0 if s == 0 else 128 + 128 * s
        k(f's_mov_b32 {sav[0]}, {lut & 0xffffffff}\ns_mov_b32 {sav[1]}, {lut >> 32}\nv_lshrrev_b64 {t[4:6]}, {t[2]}, {sav}\nv_and_b32 {t[4]}, 15, {t[4]}')
        k(f'v_lshl_add_u32 {t[4]}, {q}, 6, {t[4]}\ns_add_u32 {st2}, {wb}, {KD + 2 * base}\nv_lshl_add_u32 {kda[s]}, {t[4]}, 1, {st2}')
    cst.release()
    atw = k.v(); atr = k.v()
    k(f'v_lshl_add_u32 {atw}, {lane}, 3, {wb}\nv_mul_u32_u24 {atr}, 544, {m}\nv_lshl_add_u32 {atr}, {q}, 4, {atr}\nv_add_u32 {atr}, {wb}, {atr}')
    z4 = k.v(4)
    for i in range(4): k(f'v_mov_b32 {z4[i]}, 0')
    k(f'v_lshrrev_b32 {t[4]}, 5, v0\nv_mul_u32_u24 {t[4]}, {HSTR}, {t[4]}\nv_and_b32 {t[5]}, 31, v0\nv_lshl_add_u32 {t[4]}, {t[5]}, 4, {t[4]}\nv_add_u32 {t[4]}, {HB}, {t[4]}')
    k(f'v_cmp_gt_u32 vcc, 128, v0\ns_and_saveexec_b64 {sav}, vcc\nds_write_b128 {t[4]}, {z4}\ns_mov_b64 exec, {sav}')
    k('s_waitcnt lgkmcnt(0)')
    k(f's_lshl_b32 {st2}, {s_w}, 4\ns_lshr_b64 {sdt}, {sdt}, {st2}\ns_lshl_b32 {sdt[0]}, {sdt[0]}, 16')
    dt = k.v(); ks = k.v()
    k(f'v_mov_b32 {dt}, {fl(LOG2E)}\nv_mul_f32 {dt}, {sdt[0]}, {dt}\nv_exp_f32 {dt}, {dt}\nv_cvt_pk_bf16_f32 {dt}, {dt}, {dt}\nv_and_b32 {dt}, 0xffff0000, {dt}')
    SP(1); vm.wait(ipar); SP(2)
    pr = lambda: [k.v(2), k.v(2)]
    w1, w16, U = pr(), pr(), pr()
    er = k.v(2); rev = k.v(2)
    un = lambda d, s_, hi: f'v_and_b32 {d}, 0xffff0000, {s_}' if hi else f'v_lshlrev_b32 {d}, 16, {s_}'
    for md in range(2):
        k(un(er[md], par[0], md)); k(un(rev[md], par[1], md)); k(un(U[0][md], par[2], md)); k(un(U[1][md], par[3], md))
    for md in range(2): k(f'v_mul_f32 {er[md]}, {fl(LOG2E)}, {er[md]}')
    for md in range(2): k(f'v_exp_f32 {er[md]}, {er[md]}')
    k(f'v_max3_f32 {t[0]}, |{U[0][0]}|, |{U[0][1]}|, |{U[1][0]}|\nv_max_f32 {t[0]}, |{U[1][1]}|, {t[0]}')
    k(f'v_cvt_pk_bf16_f32 {t[1]}, {er[0]}, {er[1]}')
    for mm in ('quad_perm:[1,0,3,2]', 'quad_perm:[2,3,0,1]', 'row_half_mirror', 'row_mirror'):
        k(f'v_max_f32_dpp {t[0]}, {t[0]}, {t[0]} {mm} row_mask:0xf bank_mask:0xf')
    for md in range(2):
        k(un(er[md], t[1], md))
        k(f'v_mul_f32 {er[md]}, {er[md]}, {dt}\nv_mul_f32 {rev[md]}, {rev[md]}, {dt}')
        k(f'v_mul_f32 {er[md]}, {fl(-LOG2E)}, {er[md]}\nv_mul_f32 {rev[md]}, 0.15915494, {rev[md]}')
    k(f'v_readlane_b32 {st2}, {t[0]}, 0\nv_readlane_b32 {sav[0]}, {t[0]}, 16\nv_readlane_b32 {sav[1]}, {t[0]}, 32\nv_readlane_b32 {st}, {t[0]}, 48')
    k(f's_max_u32 {st2}, {st2}, {sav[0]}\ns_max_u32 {st}, {st}, {sav[1]}\ns_max_u32 {st2}, {st2}, {st}')
    for w_, mul in ((w1, None), (w16, '16.0')):
        for md in range(2):
            a, b = t[2 + md], t[4 + md]
            if mul: k(f'v_mul_f32 {a}, {fl(16.)}, {er[md]}\nv_mul_f32 {b}, {fl(16.)}, {rev[md]}\nv_fract_f32 {b}, {b}\nv_exp_f32 {a}, {a}')
            else: k(f'v_fract_f32 {b}, {rev[md]}\nv_exp_f32 {a}, {er[md]}')
            k(f'v_cos_f32 {w_[0][md]}, {b}\nv_sin_f32 {w_[1][md]}, {b}')
        for c in range(2): k(f'v_pk_mul_f32 {w_[c]}, {w_[c]}, {t[2:4]}')
    k(f'v_frexp_exp_i32_f32 {t[0]}, {st2}\nv_sub_u32 {t[1]}, 8, {t[0]}\nv_add_u32 {t[0]}, -7, {t[0]}\nv_ldexp_f32 {ks}, {dt}, {t[0]}')
    for md in range(2):
        for c in range(2): k(f'v_ldexp_f32 {U[c][md]}, {U[c][md]}, {t[1]}')
    er.release(); rev.release(); dt.release()
    tm = [k.v(2) for _ in range(4)]
    def cmul(d, z, s_, ta, tb):
        return [f'v_pk_mul_f32 {ta}, {z[1]}, {s_[1]}', f'v_pk_mul_f32 {tb}, {z[0]}, {s_[1]}',
                f'v_pk_fma_f32 {d[0]}, {z[0]}, {s_[0]}, {ta} neg_lo:[0,0,1] neg_hi:[0,0,1]', f'v_pk_fma_f32 {d[1]}, {z[1]}, {s_[0]}, {tb}']
    w32, w64, w128, w2, w4, w8, V = pr(), pr(), pr(), pr(), pr(), pr(), pr()
    for d_, s_ in ((w32, w16), (w64, w32), (w128, w64)):
        for x_ in cmul(d_, s_, s_, tm[0], tm[1]): k(x_)
    pv = [k.v(2), k.v(2)]; pu = [k.v(2), k.v(2)]
    fa = k.v(32, 4); fb = k.v(32, 4); kacc = k.v(16, 4)
    state = {'V': None, 'nv': 0, 'nu': 0}
    def v_entry(val, slot):
        out = []
        pk = pv[state['nv'] & 1]; state['nv'] += 1
        if val == 0:
            out += [f'v_mov_b32 {pk[0]}, 0x3c00', f'v_mov_b32 {pk[1]}, 0x3c00']
        else:
            if val == 1: cur = w1
            else:
                step = w1 if val <= 16 else w2 if val <= 32 else w4 if val <= 64 else w8
                cur = {2: w2, 4: w4, 8: w8}.get(val, V)
                out += cmul(cur, state['V'], step, tm[0], tm[1])
            state['V'] = cur
            out += [f'v_cvt_pk_f16_f32 {pk[md]}, {cur[0][md]}, {cur[1][md]}' for md in range(2)]
        out.append(('ds', f'ds_write_b64 {atw}, {pk} offset:{TAB + slot * 544}'))
        return out
    def u_entry(val, row):
        out = []
        pk = pu[state['nu'] & 1]; state['nu'] += 1
        if val:
            step = w16 if val <= 256 else w32 if val <= 512 else w64 if val <= 1024 else w128
            out += cmul(U, U, step, tm[2], tm[3])
        out += [f'v_cvt_pk_f16_f32 {pk[md]}, {U[0][md]}, -{U[1][md]}' for md in range(2)]
        out.append(('ds', f'ds_write_b64 {atw}, {pk} offset:{TAB + (16 + row) * 544}'))
        return out
    def put(x_):
        if isinstance(x_, tuple): return lg.op(x_[1])
        k(x_)
    pend = []
    flag_ld = f'buffer_load_dwordx2 {fl_v}, {z4[0]}, {Rdbg}, 0 offen offset:192 sc1'
    ifl = None
    for s in range(4):
        vs = sorted((VM[s][j], j) for j in range(16) if s == 0 or VM[s][j] != VM[s - 1][j])
        us = [16 * u for u in range(16)] if s == 0 else [(128 << s) + (16 << s) * u for u in range(9 if s == 3 else 8)]
        sv_ = [x_ for val, j in vs for x_ in v_entry(val, j)]
        su_ = [x_ for r_, val in enumerate(us) for x_ in u_entry(val, r_)]
        stream = interleave(sv_, su_)
        for n_, x_ in enumerate(stream):
            put(x_)
            if n_ == 27:
                while pend:
                    idr, mf = pend.pop(0); lg.wait(idr); k(mf)
            if s == 3 and n_ == 40: k(flag_ld)
        assert not pend
        for kk in range(8):
            lg.op(f'ds_read_b128 {fa.sub(4 * kk, 4)}, {atr} offset:{TAB + 16 * 544 + 64 * kk}')
            i_ = lg.op(f'ds_read_b128 {fb.sub(4 * kk, 4)}, {atr} offset:{TAB + 64 * kk}')
            ac = kacc.sub(4 * s, 4)
            pend.append((i_, f'v_mfma_f32_16x16x32_f16 {ac}, {fa.sub(4 * kk, 4)}, {fb.sub(4 * kk, 4)}, {"0" if kk == 0 else ac}'))
    for x_ in (w1, w16, w32, w64, w128, w2, w4, w8, V, U, tm, pv, pu):
        for y_ in x_: y_.release()
    sg = k.v(8, 2); md_ = k.v(16, 4); cnt = k.s()
    def kd_out(s):
        ac = kacc.sub(4 * s, 4)
        for e in range(4): k(f'v_mul_f32 {ac[e]}, {ks}, {ac[e]}')
        k(f'v_cvt_pk_bf16_f32 {ac[0]}, {ac[0]}, {ac[1]}\nv_cvt_pk_bf16_f32 {ac[2]}, {ac[2]}, {ac[3]}')
        for e in range(4): lg.op(f'ds_write_b16{"_d16_hi" if e & 1 else ""} {kda[s]}, {ac[e & 2]} offset:{32 * e}')
    for s in range(3): kd_out(s)
    SP(3); lg.reset() if SP.on else None
    got = k.s()
    def row_loads():
        k(f's_lshl_b32 {st}, {cidx}, 14\ns_add_u32 {st}, {st}, {O_XT}')
        for i in range(4):
            k(f'buffer_load_dwordx4 {x.sub(4 * i, 4)}, {ag}, {Rws}, {st} offen sc1')
            if i < 3: k(f's_add_u32 {st}, {st}, 4096')
        k(f's_mov_b32 {st}, {O_STATS}\ns_mov_b32 {st2}, {O_STATS + 4096}')
        for i in range(4): k(f'buffer_load_dwordx2 {sg.sub(2 * i, 2)}, {am}, {Rws}, {(st, st2)[i // 2]} offen offset:{2048 * (i & 1)} sc1')
    def spin(i, flag_ld):
        lp, ok = k.label('poll'), k.label('go')
        k(f'{lp}:\nv_readfirstlane_b32 {st}, {fl_v[i]}\ns_cmp_ge_u32 {st}, 1\ns_cbranch_scc1 {ok}')
        k(f's_sleep 4\n{flag_ld}\ns_add_u32 {cnt}, {cnt}, 1\ns_cmp_lt_u32 {cnt}, {SPIN_MAX}\ns_waitcnt vmcnt(0)\ns_cbranch_scc1 {lp}\ns_branch {END}\n{ok}:')
    late = k.label('late')
    k(f'v_lshlrev_b32 {ag}, 4, v0\nv_lshlrev_b32 {am}, 3, v0\nv_lshlrev_b32 {a4}, 2, v0\ns_mov_b32 {cnt}, 0\ns_waitcnt vmcnt(0)')
    k(f'v_readfirstlane_b32 {got}, {fl_v[0]}\ns_cmp_eq_u32 {got}, 0\ns_cbranch_scc1 {late}')
    row_loads()
    k(f'{late}:')
    while pend:
        idr, mf = pend.pop(0); lg.wait(idr); k(mf)
    kd_out(3)
    kc = fa.sub(0, 16); pvv = fa.sub(16, 8)
    gid = [lg.op(f'ds_read_u16 {ga[e]}, {ga[e]}') for e in range(32)]
    aw = kda[0]; ap = kda[1]
    k(f'v_lshl_add_u32 {aw}, {lane}, 4, {wb}\nv_lshrrev_b32 {ap}, 1, {lane}\nv_mul_u32_u24 {ap}, 4160, {ap}\nv_and_b32 {t[1]}, 1, {lane}')
    k(f'v_lshl_add_u32 {ap}, {t[1]}, 4, {ap}\nv_add_u32 {ap}, {wb}, {ap}')
    k(f's_mov_b64 exec, 0xff'); lg.op(f'ds_write_b128 {ap}, {z4}'); k('s_mov_b64 exec, -1')
    for c in range(4):
        lg.wait(gid[8 * c + 7])
        for e in range(4): k(f'v_lshl_or_b32 {kc[4 * c + e]}, {ga[8 * c + 2 * e + 1]}, 16, {ga[8 * c + 2 * e]}')
        lg.op(f'ds_write_b128 {aw}, {kc.sub(4 * c, 4)} offset:{32 + 1024 * c}')
    ids = [lg.op(f'ds_read_b64 {pvv.sub(2 * c, 2)}, {aw} offset:{24 + 1024 * c}') for c in range(4)]
    k(flag_ld)
    for c in range(4):
        lg.wait(ids[c])
        o = fb.sub(12 * (c & 1), 12); d_ = kc.sub(4 * c, 4); p0, p1 = pvv[2 * c], pvv[2 * c + 1]
        seq = [p0, p1, d_[0], d_[1], d_[2], d_[3]]
        o3 = o.sub(0, 4); o1 = o.sub(4, 4); o2 = o.sub(8, 4)
        for i in range(4): k(f'v_alignbit_b32 {o3[i]}, {seq[i + 1]}, {seq[i]}, 16')
        for i in range(3): k(f'v_mov_b32 {o1[i]}, {o3[i + 1]}')
        k(f'v_alignbit_b32 {o1[3]}, {seq[5]}, {seq[4]}, 16')
        for i in range(4): k(f'v_mov_b32 {o2[i]}, {seq[i + 1]}')
        for r_, oo in ((1, o1), (2, o2), (3, o3)): lg.op(f'ds_write_b128 {aw}, {oo} offset:{4160 * r_ + 32 + 1024 * c}')
    if dump:
        k(f's_lshl_b32 {st}, {s_d}, 12\ns_add_u32 {st}, {st}, {O_DBG}\nv_lshlrev_b32 {t[1]}, 4, {lane}')
        for c in range(4): vm.op(f'buffer_store_dwordx4 {kc.sub(4 * c, 4)}, {t[1]}, {Rws}, {st} offen offset:{1024 * c}')
    ga.release(); acc = k.v(32, 4); kacc.release(); ks.release(); atw.release(); atr.release()
    SP(4); lg.reset() if SP.on else None
    have = k.label('have')
    k(f's_waitcnt vmcnt(0)\ns_cmp_lg_u32 {got}, 0\ns_cbranch_scc1 {have}')
    spin(0, flag_ld); row_loads()
    k(f'{have}:')
    spin(1, flag_ld)
    SP(14); lg.reset() if SP.on else None
    k(f's_lshl_b32 {st}, {cidx}, 4\ns_add_u32 {st}, {st}, {O_MODF}\ns_add_u32 {st2}, {st}, 4608')
    for i, (sr, off) in enumerate(((st, 0), (st, 2304), (st2, 0))): vm.op(f'buffer_load_dwordx4 {md_.sub(4 * i, 4)}, {z4[0]}, {Rws}, {sr} offen offset:{off} sc1')
    k(f's_add_u32 {st2}, {st2}, 4608')
    vm.op(f'buffer_load_dwordx4 {md_.sub(12, 4)}, {z4[0]}, {Rws}, {st2} offen sc1')
    k('s_waitcnt vmcnt(4)')
    SP(5)
    xf = k.v(32); hf = k.v(32); st_ = k.v(16)
    for i in range(8): k(f'v_and_b32 {st_[2 * i]}, 0xffff0000, {sg[i]}\nv_lshlrev_b32 {st_[2 * i + 1]}, 16, {sg[i]}')
    for i in range(8): k(f'v_rcp_f32 {st_[2 * i]}, {st_[2 * i]}')
    for i in range(16): k(f'v_lshlrev_b32 {xf[2 * i]}, 16, {x[i]}\nv_and_b32 {xf[2 * i + 1]}, 0xffff0000, {x[i]}')
    for i in range(8): k(f'v_mul_f32 {st_[2 * i + 1]}, -{st_[2 * i + 1]}, {st_[2 * i]}')
    k(f'v_add_u32 {am}, {HB + 512}, {a4}')
    for j in range(16): k(f'v_pk_fma_f32 {hf.sub(2 * j, 2)}, {xf.sub(2 * j, 2)}, {st_.sub(2 * (j // 2), 2)}, {st_.sub(2 * (j // 2), 2)} op_sel:[0,0,1] op_sel_hi:[1,0,1]')
    vm.all()
    for i in range(4):
        for j in range(4 * i, 4 * i + 4): k(f'v_pk_fma_f32 {hf.sub(2 * j, 2)}, {hf.sub(2 * j, 2)}, {md_.sub(4 + 2 * (j & 1), 2)}, {md_.sub(2 * (j & 1), 2)}')
        for c in range(4): k(f'v_cvt_pk_bf16_f32 {x[4 * i + c]}, {hf[8 * i + c]}, {hf[8 * i + 4 + c]}')
        for c in range(4): lg.op(f'ds_write_b32 {am}, {x[4 * i + c]} offset:{HSTR * c + 1024 * i}')
    st_.release(); sg.release()
    aA = kda[2]; aB = kda[3]
    k(f'v_bfe_u32 {t[0]}, {lane}, 2, 2\nv_mul_u32_u24 {aA}, 4160, {t[0]}\nv_and_b32 {t[0]}, 3, {lane}\nv_lshl_add_u32 {aA}, {t[0]}, 3, {aA}')
    k(f'v_lshlrev_b32 {t[0]}, 4, {q}\nv_sub_u32 {aA}, {aA}, {t[0]}\ns_add_u32 {st}, {wb}, 56\nv_add_u32 {aA}, {st}, {aA}')
    k(f's_mul_i32 {st}, {s_w}, {HSTR}\ns_add_u32 {st}, {st}, {HB + 480}\nv_lshl_add_u32 {aB}, {m}, 5, {t[0]}\nv_add_u32 {aB}, {st}, {aB}')
    lg.all(); k('s_barrier'); SP(6)
    fa2 = k.a(32, 4); fb2 = k.a(32, 4)
    sets = [(fa, fb), (fa2, fb2)]
    k(f'v_add_u32 {aB}, -448, {aB}')
    def reads(r_):
        A_, B_ = sets[r_ & 1]; out = []
        for i in range(8):
            out.append(f'ds_read_b128 {B_.sub(4 * i, 4)}, {aB} offset:{448 - 64 * r_ + 512 * i}')
            out.append(f'ds_read_b64_tr_b16 {A_.sub(4 * i, 2)}, {aA} offset:{64 * r_ + 8 + 512 * i}')
            out.append(f'ds_read_b64_tr_b16 {A_.sub(4 * i + 2, 2)}, {aA} offset:{64 * r_ + 512 * i}')
        return out
    jm = k.s(); l16 = k.v()
    k(f's_lshr_b32 {jm}, s2, 5\ns_sub_u32 {jm}, {jm}, 2\nv_lshlrev_b32 {l16}, 4, {lane}')
    pd = PairDma(k, s_w, jm, O_W1F, Rws, l16, W1_AT)
    early = [g for P_ in range(5) for g in pd.ops(P_)]
    flag_ld = f'buffer_load_dwordx2 {fl_v}, {z4[0]}, {Rdbg}, 0 offen offset:200 sc1'
    cur = [lg.op(x_) for x_ in reads(0)]
    for r_ in range(8):
        rd = reads(r_ + 1) if r_ < 7 else []
        A_, B_ = sets[r_ & 1]; nxt = []
        order = [(i, tt) for i in range(8) for tt in range(i, 8)] if r_ else sorted(((i, tt) for i in range(8) for tt in range(i, 8)), key=lambda p: (max(p[0], p[1] - p[0]), p))
        seen = set()
        if r_ == 1: k(flag_ld)
        if r_ == 3: k('s_waitcnt vmcnt(0)'); spin(0, flag_ld)
        for n_, (i, tt) in enumerate(order):
            lg.wait(max(cur[3 * i + 2], cur[3 * (tt - i)]))
            first = r_ == 0 and tt not in seen; seen.add(tt)
            k(f'v_mfma_f32_16x16x32_bf16 {acc.sub(4 * tt, 4)}, {A_.sub(4 * i, 4)}, {B_.sub(4 * (tt - i), 4)}, {"0" if first else acc.sub(4 * tt, 4)}')
            if rd: nxt.append(lg.op(rd.pop(0)))
            if r_ >= 3 and n_ >= 24 and n_ % 3 == 0 and early:
                for x_ in early.pop(0): k(x_)
        cur = nxt
    assert not early
    SP(7)
    k(f'v_lshlrev_b32 {t[0]}, 3, {q}\nv_lshl_add_u32 {t[0]}, {m}, 5, {t[0]}\nv_add_u32 {t[0]}, {wb}, {t[0]}')
    for tt in range(8):
        o = fa.sub(2 * tt, 2)
        k(f'v_cvt_pk_bf16_f32 {o[0]}, {acc[4 * tt]}, {acc[4 * tt + 1]}\nv_cvt_pk_bf16_f32 {o[1]}, {acc[4 * tt + 2]}, {acc[4 * tt + 3]}')
        k(f'ds_write_b64 {t[0]}, {o} offset:{512 * tt}')
    dv = t.sub(4, 4)
    k(f's_lshl_b32 {st}, {sD[0]}, 16\ns_and_b32 {st2}, {sD[0]}, 0xffff0000\nv_mov_b32 {dv[0]}, {st}\nv_mov_b32 {dv[1]}, {st2}')
    k(f's_lshl_b32 {st}, {sD[1]}, 16\ns_and_b32 {st2}, {sD[1]}, 0xffff0000\nv_mov_b32 {dv[2]}, {st}\nv_mov_b32 {dv[3]}, {st2}')
    k('s_waitcnt lgkmcnt(0)\ns_barrier')
    lg.reset()
    yp = fb.sub(0, 16); yf = acc; o = fa
    ids = [[lg.op(f'ds_read_b32 {yp[4 * i + c]}, {a4} offset:{WSTR * c + 1024 * i}') for c in range(4)] for i in range(4)]
    k(f's_lshl_b32 {st}, {cidx}, 15\ns_lshl_b32 {st2}, {s_w}, 11\ns_add_u32 {st}, {st}, {st2}\ns_add_u32 {st}, {st}, {O_X2}')
    k(f's_add_u32 {st2}, {wb}, 4096\nv_lshl_add_u32 {am}, {lane}, 5, {st2}\nv_lshl_add_u32 {a4}, {lane}, 4, {st2}\nv_lshlrev_b32 {ag}, 4, {lane}')
    odd, fin = k.label('odd'), k.label('fin')
    for i in range(4):
        lg.wait(ids[i][3])
        for c in range(4): k(f'v_lshlrev_b32 {yf[8 * i + c]}, 16, {yp[4 * i + c]}\nv_and_b32 {yf[8 * i + 4 + c]}, 0xffff0000, {yp[4 * i + c]}')
        for j in range(4 * i, 4 * i + 4): k(f'v_pk_fma_f32 {yf.sub(2 * j, 2)}, {hf.sub(2 * j, 2)}, {dv.sub(2 * (j & 1), 2)}, {yf.sub(2 * j, 2)}')
        for j in range(4 * i, 4 * i + 4): k(f'v_pk_fma_f32 {yf.sub(2 * j, 2)}, {yf.sub(2 * j, 2)}, {md_.sub(8 + 2 * (j & 1), 2)}, {xf.sub(2 * j, 2)}')
        for j in range(4 * i, 4 * i + 4): k(f'v_pk_mul_f32 {xf.sub(2 * j, 2)}, {yf.sub(2 * j, 2)}, {md_.sub(12 + 2 * (j & 1), 2)}')
    k(f's_bitcmp1_b32 {cidx}, 0\ns_cbranch_scc1 {odd}')
    for par_ in range(2):
        A_, B_ = (yf, xf) if par_ == 0 else (xf, yf)
        for r_ in range(8):
            for c in range(2):
                k(f'v_cvt_pk_bf16_f32 {o[4 * r_ + c]}, {A_[4 * r_ + 2 * c]}, {A_[4 * r_ + 2 * c + 1]}')
                k(f'v_cvt_pk_bf16_f32 {o[4 * r_ + 2 + c]}, {B_[4 * r_ + 2 * c]}, {B_[4 * r_ + 2 * c + 1]}')
            k(f'ds_write_b128 {am}, {o.sub(4 * r_, 4)} offset:{2048 * (r_ >> 1) + 16 * (r_ & 1)}')
        if par_ == 0: k(f's_branch {fin}\n{odd}:')
    k(f'{fin}:'); lg.reset()
    ids = [lg.op(f'ds_read_b128 {fb.sub(4 * r_, 4)}, {a4} offset:{1024 * r_}') for r_ in range(8)]
    for r_ in range(8):
        lg.wait(ids[r_])
        k(f'buffer_store_dwordx4 {fb.sub(4 * r_, 4)}, {ag}, {Rws}, {st} offen offset:{1024 * (r_ & 1)} sc1')
        if r_ & 1 and r_ < 7: k(f's_add_u32 {st}, {st}, 8192')
```

```python
from common import *

K2_LDS = LDS_BYTES
T_B, T_F = TABS, TABS + 7168
XBUF, HBUF = 0, 73728
SPIN_MAX = 40000
GC1 = -2.0 * LOG2E * 0.7978845608028654
GC2 = GC1 * 0.044715
PI = [0, 1, 2, 5, 6, 7, 9, 10, 11, 14, 15, 16, 3, 12, 4, 8, 13, 17]
MF = 'v_mfma_f32_16x16x32_bf16'

def un(d, s_, hi): return f'v_and_b32 {d}, 0xffff0000, {s_}' if hi else f'v_lshlrev_b32 {d}, 16, {s_}'

def gelu_consts(k, sig, c):
    k(f'v_mov_b32 {c[2]}, {sig}\nv_rcp_f32 {c[0]}, {sig}')
    k(f'v_mul_f32 {c[1]}, {c[0]}, {c[0]}\nv_mul_f32 {c[1]}, {c[1]}, {c[0]}')
    k(f'v_mul_f32 {c[0]}, {fl(GC1)}, {c[0]}\nv_mul_f32 {c[1]}, {fl(GC2)}, {c[1]}')

def phase2(k, P, lane, s_w, END, SP, opt=()):
    stamps = SP.on
    WFL = ' sc1'
    PFL = ' '.join(o[2:] for o in opt if o.startswith('p_')) or 'sc1'
    q = k.v(); m = k.v(); l16 = k.v(); one = k.v(); zero = k.v(); fv4 = k.v(8, 4)
    Rws = k.s(4); RG = k.s(4); RW = k.s(4)
    srd(k, RG, P['dbg'], 256)
    k(f'v_mov_b32 {one}, 1\nv_mov_b32 {zero}, 0')
    go_ld = f'buffer_load_dwordx4 {fv4[0:4]}, {zero}, {RG}, 0 offen offset:192 sc1'
    k(f'v_lshrrev_b32 {q}, 4, {lane}\nv_and_b32 {m}, 15, {lane}\nv_lshlrev_b32 {l16}, 4, {lane}')
    rb = k.s(); jm = k.s(); mb = k.s(); fs = k.s(); st = k.s(); st1 = k.s(); sav = k.s(2); cnt = k.s(); mt = k.s(); resf = k.s()
    k(f's_and_b32 {st}, s2, 1\ns_lshl_b32 {mb}, {st}, 4\ns_bfe_u32 {st}, s2, 0x20001\ns_lshl_b32 {fs}, {st}, 1\ns_lshl_b32 {rb}, {st}, 2\ns_add_u32 {rb}, {rb}, {mb}')
    k(f's_bfe_u32 {st}, s2, 0x20003\ns_add_u32 {rb}, {rb}, {st}\ns_lshr_b32 {jm}, s2, 5\ns_sub_u32 {jm}, {jm}, 2')
    k(f's_bfe_u32 {st}, s2, 0x40003\ns_add_u32 {mb}, {mb}, {st}\ns_lshr_b32 {st}, s2, 7\ns_add_u32 {fs}, {fs}, {st}')
    k(f's_lshl_b32 {mt}, {rb}, 2\ns_add_u32 {mt}, {mt}, {s_w}\ns_mov_b32 {cnt}, 0\ns_mov_b32 {resf}, 0')
    srd(k, Rws, P['ws'], WS_USED); srd(k, RW, P['ws'], WS_USED)
    vm, lg = trackers(k)
    def STAMP(i, g4=False):
        if stamps and (g4 == ('g4st' in opt) or i not in (1, 2, 3, 4, 5)): SP(i); lg.reset()
    def flag_add(s_idx, base):
        k(f's_lshl_b32 {st}, {s_idx}, 7\ns_add_u32 {st}, {st}, {base}\ns_mov_b64 exec, 1')
        vm.op(f'buffer_atomic_add {one}, {zero}, {Rws}, {st} offen sc1')
        k('s_mov_b64 exec, -1')
    def poll(vaddr, base, target, sleep=0, fv=None):
        own = fv is None; fv = fv or k.v(); lp, ok = k.label('poll'), k.label('ok')
        k(f's_mov_b32 {st1}, {base}\n{lp}:\nbuffer_load_dword {fv}, {vaddr}, {Rws}, {st1} offen sc1\ns_waitcnt vmcnt(0)')
        k(f'v_cmp_gt_u32 vcc, {target}, {fv}\ns_cmp_eq_u64 vcc, 0\ns_cbranch_scc1 {ok}')
        if sleep: k(f's_sleep {sleep}')
        k(f's_add_u32 {cnt}, {cnt}, 1\ns_cmp_lt_u32 {cnt}, {SPIN_MAX}\ns_cbranch_scc1 {lp}\ns_branch {END}\n{ok}:')
        vm.reset()
        if own: fv.release()
    W = [k.a(72, 4), k.a(72, 4)]; vo = [l16] + [k.v() for _ in range(4)]
    for g in range(1, 5): k(f'v_add_u32 {vo[g]}, {4096 * g}, {l16}')
    sn = k.s(); s4 = k.s()
    k(f's_lshl_b32 {sn}, {fs}, 2\ns_add_u32 {sn}, {sn}, {s_w}\ns_mul_i32 {sn}, {sn}, {9 * 18432}\ns_add_u32 {s4}, {sn}, {O_W4F}\ns_add_u32 {sn}, {sn}, {O_W3F}')
    wld = lambda r_, ks: f'buffer_load_dwordx4 {W[r_].sub(4 * ks, 4)}, {vo[ks // 4]}, {RW}, {sn} offen offset:{1024 * (ks % 4)}' + WFL
    sm = k.s(); so = k.s()
    k(f's_lshl_b32 {sm}, {s_w}, 10')
    def spin(ld, regs, sleep=16):
        lp, ok = k.label('spin'), k.label('up')
        k(f'{lp}:\ns_waitcnt vmcnt(0)\nv_mov_b32 {fv4[7]}, {regs[0]}')
        for r_ in regs[1:]: k(f'v_and_b32 {fv4[7]}, {fv4[7]}, {r_}')
        k(f'v_readfirstlane_b32 {st}, {fv4[7]}\ns_cmp_lg_u32 {st}, 0\ns_cbranch_scc1 {ok}')
        k(f's_sleep {sleep}\n{ld}\ns_add_u32 {cnt}, {cnt}, 1\ns_cmp_lt_u32 {cnt}, {SPIN_MAX}\ns_cbranch_scc1 {lp}\ns_branch {END}\n{ok}:')
    cv, ar = k.label('fromconv'), k.label('acked')
    k(f's_cmp_ge_u32 s2, 112\ns_cbranch_scc1 {cv}\n{go_ld}')
    spin(go_ld, [fv4[0]])
    k(f's_branch {ar}\n{cv}:\ns_waitcnt vmcnt(0)\n{ar}:')
    k('s_waitcnt lgkmcnt(0)\ns_barrier')
    STAMP(15)
    na, nb = k.label('noarr'), k.label('notlast')
    k(f's_cmp_lg_u32 {s_w}, 0\ns_cbranch_scc1 {na}\ns_and_b32 {st1}, s2, 3\ns_lshl_b32 {st}, {st1}, 7\ns_add_u32 {st}, {st}, {O_FA}\ns_mov_b64 exec, 1')
    k(f'v_mov_b32 {fv4[4]}, 1\nbuffer_atomic_add {fv4[4]}, {zero}, {Rws}, {st} offen sc0 sc1\ns_lshl_b32 {st1}, {st1}, 2\ns_waitcnt vmcnt(0)')
    k(f'v_readfirstlane_b32 {st}, {fv4[4]}\ns_cmp_lg_u32 {st}, 63\ns_cbranch_scc1 {nb}')
    k(f'buffer_store_dword {one}, {zero}, {RG}, {st1} offen offset:208 sc1\n{nb}:\ns_mov_b64 exec, -1\n{na}:')
    go3_ld = f'buffer_load_dwordx4 {fv4[0:4]}, {zero}, {RG}, 0 offen offset:208 sc1'
    RB = k.v(24, 4); fa_ = k.v(); sres = k.s()
    k(f'v_mov_b32 {fa_}, 0\ns_mov_b32 {sres}, {WS_USED}')
    k('s_cmp_lt_u32 s2, 64\ns_cbranch_scc1 k2_idle')
    keepV, keepA, keepS = list(k.V.free), list(k.A.free), list(k.S.free)

    XX = k.v(146, 2); t = k.v(8); row = k.v()
    w0, w5 = k.label('havew1'), k.label('rest')
    pd = PairDma(k, s_w, jm, O_W1F, Rws, l16, W1_AT)
    k(f's_cmp_ge_u32 s2, 112\ns_cbranch_scc1 {w0}')
    spin(go_ld, [fv4[2]])
    for P_ in range(9):
        if P_ == 5: k(f's_branch {w5}\n{w0}:\ns_add_u32 {pd.src}, {pd.src}, {5 * 12288}\n{w5}:')
        for g in pd.ops(P_):
            for x_ in g: k(x_)
    pd.release()
    k(go_ld)
    k(f's_lshl_b32 {st}, {s_w}, 6\nv_add_u32 {t[2]}, {st}, {lane}')
    k(f'v_cmp_le_u32 vcc, 72, {t[2]}\nv_subrev_u32 {t[3]}, 72, {t[2]}\nv_cndmask_b32 {t[3]}, {t[2]}, {t[3]}, vcc\nv_add_u32 {t[3]}, 72, {t[3]}')
    k(f'v_cmp_le_u32 vcc, 144, {t[2]}\nv_subrev_u32 {t[4]}, 144, {t[2]}\nv_cndmask_b32 {t[3]}, {t[3]}, {t[4]}, vcc')
    k(f'v_cmp_le_u32 vcc, 216, {t[2]}\nv_subrev_u32 {t[4]}, 216, {t[2]}\nv_cndmask_b32 {t[3]}, {t[3]}, {t[4]}, vcc\nv_lshlrev_b32 {t[3]}, 4, {t[3]}')
    spin(go_ld, [fv4[1], fv4[3]])
    k(f's_add_u32 m0, {sm}, {T_B + 2304}\ns_mov_b32 {st1}, {O_MODB}')
    k(f'buffer_load_dwordx4 {t[3]}, {Rws}, {st1} offen sc1 lds')
    k(f'v_add_u32 {t[4]}, 40, {lane}\nv_lshlrev_b32 {t[4]}, 4, {t[4]}\nv_mul_u32_u24 {t[5]}, 43691, {t[2]}\nv_lshrrev_b32 {t[5]}, 20, {t[5]}\nv_mul_u32_u24 {t[6]}, 120, {t[5]}')
    k(f'v_add_u32 {t[6]}, {t[6]}, {t[2]}\nv_lshlrev_b32 {t[6]}, 4, {t[6]}')
    wj = k.label('joined')
    k(f's_mov_b32 m0, {T_B + 2304 + 4096}\ns_mov_b32 exec_hi, 0\nbuffer_load_dwordx4 {t[4]}, {Rws}, {st1} offen sc1 lds\ns_mov_b64 exec, -1')
    pd = PairDma(k, s_w, jm, O_W2F, Rws, l16, W2_AT)
    w2ops = [g for P_ in range(9) for g in pd.ops(P_)]
    def w2dma():
        for x_ in w2ops.pop(0): vm.op(x_) if x_.startswith('buffer') else k(x_)
    k(f's_lshl_b32 {st}, {mt}, 4\nv_add_u32 {row}, {st}, {m}')
    k(f'v_lshlrev_b32 {t[0]}, 16, {q}\nv_lshl_add_u32 {t[0]}, {row}, 4, {t[0]}\nv_add_u32 {t[1]}, 0x8000, {t[0]}')
    ix = []; iw = []
    def issue(i):
        k(f's_lshl_b32 {st}, {st1}, 18\ns_add_u32 {st}, {st}, {O_X2}')
        vm.op(f'buffer_load_dwordx4 {XX.sub(8 * i, 4)}, {t[0]}, {Rws}, {st} offen sc1')
        ix.append(vm.op(f'buffer_load_dwordx4 {XX.sub(8 * i + 4, 4)}, {t[1]}, {Rws}, {st} offen sc1'))
        if i < 17: k(f's_add_u32 {st1}, {st1}, 1\ns_cmp_eq_u32 {st1}, 18\ns_cselect_b32 {st1}, 0, {st1}')
    ones = k.v(4, 4); sacc = k.v(4, 4); gacc = k.v(4, 4); tacc = k.v(4, 4); qacc = k.v(4, 4); acc = k.v(24, 4)
    for i in range(4): k(f'v_mov_b32 {ones[i]}, 0x3f803f80')
    k(f'v_lshlrev_b32 {t[2]}, 4, v0\nv_add_u32 {t[2]}, {T_B}, {t[2]}\nv_cmp_gt_u32 vcc, 144, v0\ns_and_saveexec_b64 {sav}, vcc')
    k(f'ds_write_b128 {t[2]}, {ones}\ns_mov_b64 exec, {sav}')
    msk = [k.s(2) for _ in range(3)]; bidx = k.v()
    k(f'v_and_b32 {t[2]}, 3, {m}')
    for e in range(3): k(f'v_cmp_eq_u32 {msk[e]}, {e + 1}, {t[2]}')
    aT = k.v(); aW = [l16, k.v(), k.v()]
    k(f'v_min_u32 {t[2]}, 2, {t[2]}\nv_mul_u32_u24 {aT}, 2304, {t[2]}\nv_lshl_add_u32 {aT}, {q}, 4, {aT}\ns_mul_i32 {st}, {jm}, 192\ns_add_u32 {st}, {st}, {T_B}\nv_add_u32 {aT}, {st}, {aT}')
    k(f'v_lshrrev_b32 {t[2]}, 2, {m}\nv_lshl_add_u32 {t[2]}, {t[2]}, 4, {m}\nv_lshlrev_b32 {bidx}, 2, {t[2]}')
    k(f'v_add_u32 {aW[1]}, 0xf000, {l16}\nv_add_u32 {aW[2]}, 0x1e000, {l16}')
    lds_at = lambda a_: f'{aW[a_ // 0xf000]} offset:{a_ % 0xf000}'
    TF = W[1]; WR = [k.a(24, 4), k.a(24, 4)]
    def w_reads(i):
        return [f'ds_read_b128 {WR[i & 1].sub(4 * tt, 4)}, {lds_at(W1_AT[i] + 1024 * tt)}' for tt in range(6)]
    k('s_waitcnt vmcnt(0) lgkmcnt(0)\ns_barrier'); vm.reset(); lg.reset()
    k(f's_cmp_lg_u32 {s_w}, 0\ns_cbranch_scc1 {wj}_a\n{go3_ld}\n{wj}_a:')
    itf = [lg.op(f'ds_read_b128 {TF.sub(4 * i, 4)}, {aT} offset:{64 * i}') for i in range(18)]
    iwr = [lg.op(x_) for x_ in w_reads(0)]
    for i in range(18):
        lg.wait(itf[i]); k(f'{MF} {acc[4:8]}, {TF.sub(4 * i, 4)}, {TF.sub(4 * i, 4)}, {"0" if i == 0 else acc[4:8]}')
    cs = k.s(5, 1)
    for n_, (e, j_) in enumerate(((0, 1), (0, 2), (1, 1), (1, 2), (2, 2))): k(f'v_readlane_b32 {cs[n_]}, {acc[4 + e]}, {j_}')
    k(f's_mul_i32 {st1}, {jm}, 3\ns_mul_i32 {so}, {jm}, 384\ns_add_u32 {so}, {so}, {O_MOD2}')
    k(f's_cmp_lg_u32 {s_w}, 0\ns_cbranch_scc1 {wj}')
    spin(go3_ld, [fv4[i] for i in range(4)], 2)
    k(f'{wj}:\ns_barrier')
    STAMP(0)
    nis = 4
    for i in range(nis): issue(i)
    n2 = 0
    for i in range(18):
        if i == 9: vm.wait(itab)
        if i in (9, 13): k('s_barrier')
        if i == 1: STAMP(1)
        xg = XX.sub(8 * i + 2, 4); xr = XX.sub(8 * i - 2, 4) if i else None
        c_ = lambda r_, first: '0' if first else r_
        M = [(iwr[tt], f'{MF} {acc.sub(4 * tt, 4)}, {WR[i & 1].sub(4 * tt, 4)}, {xg}, {c_(acc.sub(4 * tt, 4), i == 0)}') for tt in range(6)]
        S_ = [f'{MF} {tacc}, {TF.sub(4 * i, 4)}, {xg}, {c_(tacc, i == 0)}', f'{MF} {qacc}, {xg}, {xg}, {c_(qacc, i == 0)}']
        if i: S_ += [f'{MF} {sacc}, {ones}, {xr}, {c_(sacc, i == 1)}', f'{MF} {gacc}, {xr}, {xr}, {c_(gacc, i == 1)}']
        Rd = w_reads(i + 1) if i < 17 else []
        vm.wait(ix[i])
        if i == 0: k(f'v_mov_b32 {XX[144]}, {XX[0]}\nv_mov_b32 {XX[145]}, {XX[1]}')
        nxt = []
        for x_ in S_:
            k(x_)
            if Rd: nxt.append(lg.op(Rd.pop(0)))
        for idr, mm in M:
            lg.wait(idr); k(mm)
            if Rd: nxt.append(lg.op(Rd.pop(0)))
        iwr = nxt
        if i == 4:
            k(f's_add_u32 m0, {sm}, {T_F}')
            itab = vm.op(f'buffer_load_dwordx4 {t[6]}, {Rws}, {so} offen sc1 lds')
        if nis < 18:
            for _ in range(2 if nis < i + 9 else 1):
                if nis < 18: issue(nis); nis += 1
        else:
            for _ in range(3):
                if n2 < (18 if i < 13 else 27): w2dma(); n2 += 1
    assert n2 == 27
    xr = XX.sub(142, 4)
    k(f'{MF} {sacc}, {ones}, {xr}, {sacc}\n{MF} {gacc}, {xr}, {xr}, {gacc}')
    STAMP(2)
    TB = [XX.sub(24, 16), XX.sub(40, 16)]; uu = XX.sub(56, 48)
    k(f'v_lshlrev_b32 {aT}, 5, {q}\nv_add_u32 {aT}, {T_F}, {aT}')
    tf_read = lambda dst, r_, e: f'ds_read_b128 {dst}, {aT} offset:{384 * r_ + 128 * (e >> 1) + 16 * (e & 1)}'
    def diag(d, g_):
        k(f'v_cndmask_b32 {d}, {g_[0]}, {g_[1]}, {msk[0]}\nv_cndmask_b32 {d}, {d}, {g_[2]}, {msk[1]}\nv_cndmask_b32 {d}, {d}, {g_[3]}, {msk[2]}')
        return lg.op(f'ds_bpermute_b32 {d}, {bidx}, {d}')
    i2 = diag(t[2], qacc); i1 = diag(t[1], gacc)
    iu = [lg.op(tf_read(uu.sub(24 * r_ + 4 * e, 4), 3 + r_, e)) for e in range(6) for r_ in range(2)]
    s1 = XX.sub(140, 2); gc = XX.sub(136, 4)
    k(f'v_mov_b32 {t[0]}, {sacc[0]}'); lg.wait(i1)
    sigma_bf16(k, t[0], t[1])
    k(f'v_cvt_pk_bf16_f32 {t[0]}, {t[0]}, {t[1]}\nv_and_b32 {s1[0]}, 0xffff0000, {t[0]}\nv_lshlrev_b32 {s1[1]}, 16, {t[0]}')
    k(f'v_rcp_f32 {s1[0]}, {s1[0]}\nv_mov_b32 {t[3]}, {cs[1]}\nv_mov_b32 {t[4]}, {cs[3]}\nv_mul_f32 {s1[1]}, -{s1[1]}, {s1[0]}')
    k(f'v_fma_f32 {t[3]}, {s1[1]}, {cs[0]}, {t[3]}\nv_fma_f32 {t[0]}, {s1[0]}, {tacc[0]}, {t[3]}')
    k(f'v_fma_f32 {t[3]}, {s1[1]}, {tacc[1]}, {tacc[2]}\nv_add_f32 {t[3]}, {t[3]}, {t[3]}\nv_fma_f32 {t[3]}, {s1[0]}, {t[2]}, {t[3]}')
    k(f'v_add_f32 {t[4]}, {t[4]}, {t[4]}\nv_fma_f32 {t[4]}, {s1[1]}, {cs[2]}, {t[4]}\nv_mov_b32 {t[5]}, {cs[4]}\nv_fma_f32 {t[4]}, {s1[1]}, {t[4]}, {t[5]}')
    k(f'v_fma_f32 {t[1]}, {s1[0]}, {t[3]}, {t[4]}')
    sigma_bf16(k, t[0], t[1])
    k(f'v_cvt_pk_bf16_f32 {t[1]}, {t[1]}, {t[1]}\nv_and_b32 {t[1]}, 0xffff0000, {t[1]}')
    gelu_consts(k, t[1], gc)
    k(f's_mul_i32 {st}, {jm}, {3 * GPL}\ns_lshl_b32 {so}, {mt}, 10\ns_add_u32 {st}, {st}, {so}\ns_add_u32 {st}, {st}, {O_G + 1024}')
    lg.all()
    for e in range(12): k(f'v_pk_fma_f32 {uu.sub(2 * e, 2)}, {uu.sub(2 * e, 2)}, {s1}, {uu.sub(24 + 2 * e, 2)} op_sel:[0,1,0] op_sel_hi:[1,1,1]')
    for e in range(12): k(f'v_pk_fma_f32 {acc.sub(2 * e, 2)}, {acc.sub(2 * e, 2)}, {s1}, {uu.sub(2 * e, 2)} op_sel_hi:[1,0,1]')
    tt_ = TB[0]; go = TB[1]
    for Pp in range(3):
        a = acc.sub(8 * Pp, 8); u = tt_.sub(0, 8)
        for e in range(4): k(f'v_pk_mul_f32 {u.sub(2 * e, 2)}, {a.sub(2 * e, 2)}, {a.sub(2 * e, 2)}')
        for e in range(4): k(f'v_pk_fma_f32 {u.sub(2 * e, 2)}, {u.sub(2 * e, 2)}, {gc[0:2]}, {gc[0:2]} op_sel:[0,1,0] op_sel_hi:[1,1,0]')
        for e in range(4): k(f'v_pk_mul_f32 {u.sub(2 * e, 2)}, {u.sub(2 * e, 2)}, {a.sub(2 * e, 2)}')
        for e in range(8): k(f'v_exp_f32 {u[e]}, {u[e]}')
        for e in range(4): k(f'v_pk_fma_f32 {u.sub(2 * e, 2)}, {u.sub(2 * e, 2)}, {gc[2:4]}, {gc[2:4]} op_sel_hi:[1,0,0]')
        for e in range(8): k(f'v_rcp_f32 {u[e]}, {u[e]}')
        for e in range(4): k(f'v_pk_mul_f32 {u.sub(2 * e, 2)}, {u.sub(2 * e, 2)}, {a.sub(2 * e, 2)}')
        o = go.sub(4 * Pp, 4)
        for e in range(4): k(f'v_cvt_pk_bf16_f32 {o[e]}, {u[2 * e]}, {u[2 * e + 1]}')
        ig = vm.op(f'buffer_store_dwordx4 {o}, {l16}, {Rws}, {st} offen sc1')
        if Pp < 2: k(f's_add_u32 {st}, {st}, {GPL}')
    h2f = uu.sub(0, 24); x2f = XX.sub(104, 24); gbv = RB
    xsrc = lambda e: XX[8 * (e // 8) + (0, 1, 6, 7)[(e % 8) // 2]]
    ig_ = [lg.op(tf_read(gbv.sub(4 * e, 4), 1, e)) for e in range(6)]
    is_ = [lg.op(tf_read(uu.sub(24 + 4 * e, 4), 0, e)) for e in range(6)]
    for e in range(24): k(un(x2f[e], xsrc(e), e & 1))
    dl = [XX[128 + i] for i in range(6)]
    k(f'v_cmp_gt_u32 vcc, 2, {q}')
    for g, dlt in enumerate((-1, 1, -2, 2)):
        k(f'v_add_u32 {dl[4]}, {16 + dlt}, {row}\nv_lshrrev_b32 {dl[5]}, 4, {dl[4]}\nv_and_b32 {dl[4]}, 15, {dl[4]}\nv_lshlrev_b32 {dl[4]}, 4, {dl[4]}')
        k(f'v_lshl_add_u32 {dl[4]}, {dl[5]}, 10, {dl[4]}\nv_lshl_add_u32 {dl[g]}, {q}, 8, {dl[4]}')
    k(f'v_cndmask_b32 {dl[4]}, {dl[1]}, {dl[0]}, vcc\nv_cndmask_b32 {dl[5]}, {dl[3]}, {dl[2]}, vcc')
    pa = XX[134]
    k(f'v_min_u32 {pa}, 2, {lane}\nv_add_u32 {pa}, {mt}, {pa}\nv_add_u32 {pa}, -1, {pa}\nv_max_i32 {pa}, 0, {pa}\nv_min_u32 {pa}, 127, {pa}\nv_lshlrev_b32 {pa}, 7, {pa}')
    vm.wait(ig)
    flag_add(mt, O_FC)
    STAMP(3)
    for ks in PI: vm.op(wld(0, ks))
    k(f's_add_u32 {sn}, {sn}, 18432')
    for e in range(12): k(f'v_pk_fma_f32 {h2f.sub(2 * e, 2)}, {x2f.sub(2 * e, 2)}, {s1}, {s1} op_sel:[0,0,1] op_sel_hi:[1,0,1]')
    lg.all()
    for e in range(12): k(f'v_pk_fma_f32 {h2f.sub(2 * e, 2)}, {h2f.sub(2 * e, 2)}, {gbv.sub(2 * e, 2)}, {uu.sub(24 + 2 * e, 2)}')
    for e in range(6): lg.op(tf_read(gbv.sub(4 * e, 4), 2, e))
    NPRE = 5
    k('s_barrier')
    WP = [WR[0], WR[1], k.a(24, 4), k.a(24, 4), XX.sub(0, 24)]
    w2_addr = lambda i, tt: lds_at(W2_AT[i] + 1024 * tt)
    for i in range(NPRE):
        for tt in range(6): lg.op(f'ds_read_b128 {WP[i].sub(4 * tt, 4)}, {w2_addr(i, tt)}')
    poll(pa, O_FC, 6)
    STAMP(4)
    GF = TF
    sel = lambda s: dl[4] if s == 4 else dl[5] if s == 13 else dl[(2 * s) // 9]
    ig = []
    for s in range(18):
        k(f's_mov_b32 {st}, {O_G + s * GPL}')
        ig.append(vm.op(f'buffer_load_dwordx4 {GF.sub(4 * s, 4)}, {sel(s)}, {Rws}, {st} offen sc1'))
    lg.all()
    ird = {}
    for s in range(18):
        vm.wait(ig[s])
        wr = WP[s % NPRE]
        for tt in range(6):
            if s >= NPRE: lg.wait(ird[s, tt])
            k(f'{MF} {acc.sub(4 * tt, 4)}, {wr.sub(4 * tt, 4)}, {GF.sub(4 * s, 4)}, {"0" if s == 0 else acc.sub(4 * tt, 4)}')
            if s + NPRE < 18: ird[s + NPRE, tt] = lg.op(f'ds_read_b128 {wr.sub(4 * tt, 4)}, {w2_addr(s + NPRE, tt)}')
        vm.op(wld(1, s))
    lg.all()
    STAMP(5)
    aR = fa_; aS = dl[1]
    k(f'v_lshrrev_b32 {t[0]}, 1, {q}\nv_and_b32 {t[1]}, 1, {q}\nv_lshlrev_b32 {aR}, 12, {t[0]}\nv_lshl_add_u32 {aR}, {t[1]}, 9, {aR}\nv_lshl_add_u32 {aR}, {m}, 4, {aR}')
    k(f'v_lshlrev_b32 {aS}, 6, {t[0]}\nv_lshl_add_u32 {aS}, {m}, 2, {aS}')
    k(f's_mul_i32 {st}, {rb}, 18\ns_mul_i32 {so}, {jm}, 3\ns_add_u32 {st}, {st}, {so}\ns_lshl_b32 {st}, {st}, 2\ns_add_u32 {st}, {st}, {s_w}\ns_lshl_b32 {st}, {st}, 10\ns_add_u32 {st}, {st}, {O_X1F}')
    for e in range(12): k(f'v_pk_add_f32 {h2f.sub(2 * e, 2)}, {h2f.sub(2 * e, 2)}, {acc.sub(2 * e, 2)}')
    for Pp in range(3):
        o = go.sub(4 * Pp, 4)
        for e in range(4): k(f'v_cvt_pk_bf16_f32 {o[e]}, {h2f[8 * Pp + 2 * e]}, {h2f[8 * Pp + 2 * e + 1]}')
        vm.op(f'buffer_store_dwordx4 {o}, {l16}, {Rws}, {st} offen sc1')
        if Pp < 2: k(f's_add_u32 {st}, {st}, 4096')
    k(f'v_pk_add_f32 {t[0:2]}, {h2f[0:2]}, {h2f[2:4]}\nv_pk_mul_f32 {t[2:4]}, {h2f[0:2]}, {h2f[0:2]}\nv_pk_fma_f32 {t[2:4]}, {h2f[2:4]}, {h2f[2:4]}, {t[2:4]}')
    for e in range(2, 12): k(f'v_pk_add_f32 {t[0:2]}, {t[0:2]}, {h2f.sub(2 * e, 2)}\nv_pk_fma_f32 {t[2:4]}, {h2f.sub(2 * e, 2)}, {h2f.sub(2 * e, 2)}, {t[2:4]}')
    k(f'v_add_f32 {t[0]}, {t[0]}, {t[1]}\nv_add_f32 {t[2]}, {t[2]}, {t[3]}\nv_permlane32_swap_b32 {t[0]}, {t[2]}\nv_add_f32 {t[0]}, {t[0]}, {t[2]}')
    k(f'v_mov_b32 {t[1]}, {t[0]}\nv_permlane16_swap_b32 {t[0]}, {t[1]}\nv_add_f32 {t[0]}, {t[0]}, {t[1]}')
    k(f's_mul_i32 {st}, {mt}, 6\ns_add_u32 {st}, {st}, {jm}\ns_lshl_b32 {st}, {st}, 7\ns_add_u32 {st}, {st}, {O_PST}\ns_mov_b32 exec_lo, 0xffff\ns_mov_b32 exec_hi, 0xffff')
    vm.op(f'buffer_store_dword {t[0]}, {aS}, {Rws}, {st} offen sc1')
    k('s_mov_b64 exec, -1')
    ist = vm.n
    k(f's_mul_i32 {sres}, {rb}, 6\ns_add_u32 {sres}, {sres}, {jm}\ns_mul_i32 {sres}, {sres}, 24\ns_add_u32 {sres}, {sres}, {s_w}\ns_lshl_b32 {sres}, {sres}, 10\ns_add_u32 {sres}, {sres}, {O_RES}')
    for e in range(12): k(f'v_pk_fma_f32 {RB.sub(2 * e, 2)}, {h2f.sub(2 * e, 2)}, {RB.sub(2 * e, 2)}, {x2f.sub(2 * e, 2)}')
    vm.wait(ist)
    flag_add(mt, O_FD)
    STAMP(6)
    k(f's_mov_b32 {resf}, 1')
    k('s_branch k2_phase_e')
    k('k2_idle:')
    k.V.free, k.A.free, k.S.free = list(keepV), list(keepA), list(keepS)
    vm, lg = trackers(k)
    cj = ColJob(k, vm, lg, lane, s_w)
    fr = k.v(72, 4); sl = k.s(); dst = k.s(); job = k.s(); R4 = k.s(4)
    srd(k, R4, P['w4'], D * F * 2)
    lpj, dn = k.label('w4job'), k.label('w4done')
    k(f's_mov_b32 {job}, s2\n{lpj}:\ns_mul_hi_u32 {sl}, {job}, {(1 << 32) // 9 + 1}')
    ids = cj.read(0, fr, w4order=True)
    k(f's_lshl_b32 {dst}, {job}, 2\ns_add_u32 {dst}, {dst}, {s_w}\ns_mul_i32 {dst}, {dst}, 18432\ns_add_u32 {dst}, {dst}, {O_W4F}')
    cj.store(fr, ids, Rws, dst, 1024)
    vm.all()
    flag_add(sl, O_FW)
    k(f's_cmp_ge_u32 {job}, 8\ns_cbranch_scc1 {dn}\ns_add_u32 {job}, {job}, 64\ns_lshl_b32 {dst}, s2, 7\ns_add_u32 {dst}, {dst}, {7 * 576 * 1152 + 128}\ns_mov_b32 {sl}, 1152\ns_barrier')
    cj.dma(R4, dst, sl, 0)
    k(f's_waitcnt vmcnt(0)\ns_barrier\ns_branch {lpj}\n{dn}:\n{go3_ld}')
    spin(go3_ld, [fv4[i] for i in range(4)]); vm.reset()
    for r_ in range(2):
        for ks in PI: vm.op(wld(r_, ks))
        if r_ == 0: k(f's_add_u32 {sn}, {sn}, 18432')
    STAMP(14)
    k('k2_phase_e:')
    k.V.free, k.A.free, k.S.free = keepV, keepA, keepS
    vm, lg = trackers(k)
    vm.n = 1
    XA = k.a(112, 4); XV = k.v(176, 4)
    xf = lambda ks, t_: XA.sub(16 * ks + 4 * t_, 4) if 16 * ks + 4 * t_ < 112 else XV.sub(16 * ks + 4 * t_ - 112, 4)
    fv4.release()
    k(f's_add_u32 {sn}, {sn}, 18432')
    acc = [k.v(16, 4), k.v(16, 4)]
    t = acc[1].sub(0, 12); pa = k.v()
    k(f's_lshl_b32 {st}, {mb}, 2\nv_min_u32 {pa}, 3, {lane}\nv_add_u32 {pa}, {st}, {pa}\nv_lshlrev_b32 {pa}, 7, {pa}')
    k(f's_lshl_b32 {sm}, {s_w}, 10\ns_mul_i32 {so}, {mb}, 73728\ns_add_u32 {so}, {so}, {sm}\ns_add_u32 {so}, {so}, {O_X1F}')
    sk_ = k.label('nopoll')
    k(f's_cmp_lg_u32 {s_w}, 0\ns_cbranch_scc1 {sk_}')
    poll(pa, O_FD, 6, sleep=1)
    k(f'{sk_}:\ns_waitcnt vmcnt(0)\ns_barrier')
    STAMP(7)
    ixd = []; idv = {}
    def xdma(ks):
        k(f's_add_u32 m0, {sm}, {XBUF + 4096 * ks}\ns_add_u32 {st}, {so}, {4096 * ks}')
        ixd.append(vm.op(f'buffer_load_dwordx4 {l16}, {Rws}, {st} offen sc1 lds'))
    for ks in PI[:7]: xdma(ks)
    spst = k.s()
    k(f's_mul_i32 {spst}, {mb}, 3072\ns_add_u32 {spst}, {spst}, {O_PST}\nv_mul_u32_u24 {pa}, 768, {q}\nv_lshl_add_u32 {pa}, {m}, 2, {pa}')
    def res_store(e):
        idv['res'] = vm.op(f'buffer_store_dwordx4 {RB.sub(4 * e, 4)}, {fa_}, {Rws}, {sres} offen offset:{256 * (e & 1)} sc1')
        if e in (1, 3): k(f's_add_u32 {sres}, {sres}, 8192')
    aX = [l16, k.v()]; aHr = [k.v(), k.v()]; aH = [k.v(), k.v()]
    k(f'v_add_u32 {aX[1]}, 0x9000, {l16}\nv_add_u32 {aHr[0]}, {HBUF}, {l16}\nv_add_u32 {aHr[1]}, {HBUF + 0x9000}, {l16}')
    for h in range(2):
        k(f's_mul_i32 {st}, {s_w}, 9\ns_add_u32 {st}, {st}, {h}\ns_and_b32 {st1}, {st}, 1\ns_lshl_b32 {st1}, {st1}, 3\ns_lshr_b32 {st}, {st}, 1\ns_lshl_b32 {st}, {st}, 12')
        k(f's_add_u32 {st}, {st}, {st1}\nv_add_u32 {aH[h]}, {st}, {aHr[0]}')
    GC = [RB.sub(8 + 3 * i, 3) for i in range(4)]
    gt = RB.sub(0, 8); hp = [RB.sub(20, 2), RB.sub(22, 2)]
    def gelu_ops(a, ah):
        out = []
        for t_ in range(4):
            c = GC[t_]; x = [a[4 * t_ + e] for e in range(4)]; u = [gt[4 * (t_ & 1) + e] for e in range(4)]; o = hp[t_ & 1]
            out += [f'v_mul_f32 {u[e]}, {x[e]}, {x[e]}' for e in range(4)]
            out += [f'v_fma_f32 {u[e]}, {u[e]}, {c[1]}, {c[0]}' for e in range(4)]
            out += [f'v_mul_f32 {u[e]}, {u[e]}, {x[e]}' for e in range(4)]
            out += [f'v_exp_f32 {u[e]}, {u[e]}' for e in range(4)]
            out += [f'v_fma_f32 {u[e]}, {u[e]}, {c[2]}, {c[2]}' for e in range(4)]
            out += [f'v_rcp_f32 {u[e]}, {u[e]}' for e in range(4)]
            out += [f'v_mul_f32 {u[e]}, {u[e]}, {x[e]}' for e in range(4)]
            out += [f'v_cvt_pk_bf16_f32 {o[0]}, {u[0]}, {u[1]}', f'v_cvt_pk_bf16_f32 {o[1]}, {u[2]}, {u[3]}']
            out.append(f'ds_write_b64 {ah}, {o} offset:{1024 * t_}')
        return out
    def cost(x_):
        if isinstance(x_, tuple): return x_[0]
        return 2 if x_.startswith(('v_exp', 'v_rcp', 'ds_write')) else 1
    def emit(x_):
        if isinstance(x_, tuple): x_[1]()
        elif x_.startswith('ds_'): lg.op(x_)
        elif x_.startswith('buffer_'): vm.op(x_)
        else: k(x_)
    wid = {}; nw = {}
    def tile(a, r_, fill, steps=range(18), lead=2, pre=None, post=None, per_step=0, rate=None, load=True, at=None):
        steps = list(steps); nm = 4 * len(steps); n_ = 0; fill = list(fill); at = at or {}
        total = len(steps) * (1.5 + per_step) + sum(cost(x_) for x_ in fill)
        rate = rate or total / nm
        cum = 0
        for i in steps:
            ks = PI[i]
            if i in at: fill += at[i]; cum = max(cum, rate * n_ - 1)
            if pre: pre(i)
            if i % 2 == 0:
                n0 = len(k.l); vm.wait(max(wid.get((r_, PI[j]), 0) for j in (i, i + 1))); cum += len(k.l) - n0
            for t_ in range(4):
                k(f'{MF} {a.sub(4 * t_, 4)}, {W[r_].sub(4 * ks, 4)}, {xf(ks, t_)}, {"0" if i == 0 else a.sub(4 * t_, 4)}')
                n_ += 1
                nxt = 0
                if t_ == 3:
                    if load: nw[r_, ks] = vm.op(wld(r_, ks)); cum += 1
                    if post: post(i)
                    cum += per_step
                    nxt = i % 2
                while n_ >= lead and fill and cum + nxt + cost(fill[0]) / 2 <= rate * n_: cum += cost(fill[0]); emit(fill.pop(0))
        for x_ in fill: emit(x_)
        if steps[-1] == 17: wid.update(nw); nw.clear()
    def frag_reads(base, i):
        ks = PI[i]
        return [lg.op(f'ds_read_b128 {xf(ks, t_)}, {base[ks // 9]} offset:{(ks % 9) * 4096 + 1024 * t_}') for t_ in range(4)]
    nxt_tile = lambda: k(f's_add_u32 {sn}, {sn}, 18432')
    rd = {}
    XB = {0: 2, 1: 6, 5: 11, 10: 17}
    def pre0(i):
        if i in XB: vm.wait(ixd[XB[i]]); k('s_barrier')
        if i == 0:
            for j in (0, 1): rd[j] = frag_reads(aX, j)
        if i + 2 < 18: rd[i + 2] = frag_reads(aX, i + 2)
        lg.wait(rd[i][3])
    todo = [(0, lambda ks=ks: xdma(ks)) for ks in PI[7:]]
    todo += [(0, lambda i=i: idv.__setitem__('pst', vm.op(f'buffer_load_dword {t[i]}, {pa}, {Rws}, {spst} offen offset:{64 * i} sc1'))) for i in range(12)]
    for i in range(18):
        todo.append((i, lambda ks=PI[i]: wid.__setitem__((0, ks, 'n'), vm.op(wld(0, ks)))))
        if i % 3 == 2: todo.append((0, lambda e=i // 3: res_store(e)))
    def post0(i):
        for _ in range(18 if i == 17 else 4 if i < 3 else 3):
            if todo and todo[0][0] <= i: todo.pop(0)[1]()
    tile(acc[0], 0, [], pre=pre0, post=post0, load=False)
    assert not todo
    for ks in range(18): wid[0, ks] = wid.pop((0, ks, 'n'))
    ip = idv['pst']; ires = idv['res']
    nxt_tile()
    STAMP(8)
    vm.wait(ip)
    for e in (0, 4, 8): k(f'v_add_f32 {t[e]}, {t[e]}, {t[e + 2]}\nv_add_f32 {t[e + 1]}, {t[e + 1]}, {t[e + 3]}')
    for e in (4, 8): k(f'v_add_f32 {t[0]}, {t[0]}, {t[e]}\nv_add_f32 {t[1]}, {t[1]}, {t[e + 1]}')
    sigma_bf16(k, t[0], t[1])
    k(f'v_cvt_pk_bf16_f32 {t[1]}, {t[1]}, {t[1]}\nv_and_b32 {t[1]}, 0xffff0000, {t[1]}\nv_lshlrev_b32 {t[2]}, 2, {m}')
    ib = [lg.op(f'ds_bpermute_b32 {t[4 + i]}, {t[2]}, {t[1]} offset:{64 * i}') for i in range(4)]
    tg = k.v()
    k(f's_lshl_b32 {st}, {fs}, 7\ns_add_u32 {st}, {st}, {O_FW}\ns_lshl_b32 {st1}, {mb}, 7\ns_add_u32 {st1}, {st1}, {O_FR}\nv_mov_b32 {fa_}, {st1}\nv_writelane_b32 {fa_}, {st}, 0')
    k(f'v_mov_b32 {tg}, 24\nv_writelane_b32 {tg}, 36, 0')
    for i in range(4): lg.wait(ib[i]); gelu_consts(k, t[4 + i], GC[i])
    def check(idl, val, tgt, vaddr, base):
        ok = k.label('up'); d0 = None
        vm.wait(idl)
        k(f'v_cmp_gt_u32 vcc, {tgt}, {val}\ns_cmp_eq_u64 vcc, 0\ns_cbranch_scc1 {ok}')
        d0 = vm.done; poll(vaddr, base, tgt, fv=val); vm.done = d0
        k(f'{ok}:')
    rd = {}
    for tt in range(1, 9):
        fill = gelu_ops(acc[1 - (tt & 1)], aH[1 - (tt & 1)]) + [f'v_add_u32 {aH[1 - (tt & 1)]}, 4096, {aH[1 - (tt & 1)]}']
        if tt == 2:
            sk_ = k.label('nores')
            k(f's_cmp_eq_u32 {resf}, 0\ns_cbranch_scc1 {sk_}\ns_waitcnt vmcnt({vm.n - ires})')
            n0 = vm.n; flag_add(rb, O_FR); vm.n = n0
            k(f'{sk_}:')
        if tt == 4: ifw = vm.op(f'buffer_load_dword {pa}, {fa_}, {Rws}, 0 offen sc1')
        if tt == 7: check(ifw, pa, tg, fa_, 0); k(f's_mov_b32 {sn}, {s4}')
        if tt < 8: tile(acc[tt & 1], tt & 1, fill)
        else:
            lg.all(); k('s_barrier')
            def post8(i):
                if i < 12: rd[i] = frag_reads(aHr, i)
            tile(acc[0], 0, fill, post=post8, per_step=2.7)
        nxt_tile()
    STAMP(9)
    k('s_waitcnt lgkmcnt(0)\ns_barrier'); lg.reset()
    for j in (12, 13): rd[j] = frag_reads(aHr, j)
    tile(acc[1], 1, gelu_ops(acc[0], aH[0]), steps=range(14), pre=lambda i: lg.wait(rd[i][3]) if i >= 12 else None, lead=1)
    lg.all(); k('s_barrier')
    for j in range(14, 18): rd[j] = frag_reads(aHr, j)
    tile(acc[1], 1, [], steps=range(14, 18), pre=lambda i: lg.wait(rd[i][3]))
    Rout = k.s(4)
    sp = k.s(); sq = k.s(); sf = k.s(); T0 = k.s(); sl_ = k.s(); po = [gt.sub(0, 4), gt.sub(4, 4)]
    aP, aR, aO = GC[0][0], GC[0][1], GC[0][2]; aL, aLr, aLg = GC[1][0], GC[1][1], GC[1][2]; aOw, aOr = GC[2][0], GC[2][1]; fv = pa; fpa = fa_
    u0, u1, u2 = hp[0][0], hp[0][1], hp[1][0]
    OUTB = 4 * 28672
    setup = f"""s_mov_b32 {Rout[0]}, {P['out'][0]}
s_mov_b32 {Rout[1]}, {P['out'][1]}
s_mov_b32 {Rout[2]}, {L * D * 2}
s_mov_b32 {Rout[3]}, 0x20000
s_lshl_b32 {st}, {fs}, 13
s_mul_i32 {sq}, {mb}, {9 * 65536}
s_add_u32 {sq}, {sq}, {st}
s_add_u32 {sq}, {sq}, {O_PART}
s_mul_i32 {sf}, {mb}, 36
s_lshr_b32 {T0}, {fs}, 1
s_add_u32 {st}, {sf}, {T0}
s_lshl_b32 {st}, {st}, 7
v_mov_b32 {fpa}, {st}
s_add_u32 {sf}, {sf}, {s_w}
s_lshl_b32 {sf}, {sf}, 7
s_add_u32 {sf}, {sf}, {O_FP}
s_mul_i32 {T0}, {T0}, 9
s_lshl_b32 {st}, {s_w}, 8
v_lshl_add_u32 {u0}, {m}, 4, {st}
v_lshl_add_u32 {aP}, {q}, 10, {u0}
v_and_b32 {u1}, 1, {q}
v_lshrrev_b32 {u2}, 1, {q}
v_lshl_add_u32 {aR}, {u1}, 10, {u0}
s_and_b32 {so}, {fs}, 1
s_lshl_b32 {so}, {so}, 1
s_mul_i32 {st}, {mb}, 144
s_add_u32 {st}, {st}, {so}
s_lshl_b32 {st}, {st}, 10
v_add_u32 {aR}, {st}, {aR}
s_mul_i32 {sl_}, {s_w}, 28672
v_add_u32 {aL}, {sl_}, {l16}
v_lshl_add_u32 {aLr}, {u1}, 3, {sl_}
s_lshl_b32 {st}, {s_w}, 4
v_add_u32 {aLg}, {st}, {aLr}
v_lshl_add_u32 {aLr}, {m}, 4, {aLr}
v_lshl_add_u32 {aLr}, {u2}, 8, {aLr}
v_lshl_add_u32 {u0}, {u2}, 4, {m}
v_mul_u32_u24 {aOw}, 304, {u0}
v_lshl_add_u32 {aOw}, {u1}, 2, {aOw}
s_lshl_b32 {st}, {s_w}, 3
s_add_u32 {st}, {st}, {OUTB}
v_add_u32 {aOw}, {st}, {aOw}""".split('\n')
    k(f's_mul_i32 {sp}, {mb}, {9 * 65536}\ns_lshl_b32 {st}, {s_w}, 14\ns_add_u32 {sp}, {sp}, {st}\ns_lshl_b32 {st}, {fs}, 10\ns_add_u32 {sp}, {sp}, {st}\ns_add_u32 {sp}, {sp}, {O_PART}')
    for x_ in (tg, aHr[0], aHr[1], aH[0], aH[1], aX[1]): x_.release()
    ids = {}
    def S(t_, a, p):
        out = [f'v_cvt_pk_bf16_f32 {po[p][e]}, {a[8 * p + 2 * e]}, {a[8 * p + 2 * e + 1]}' for e in range(4)]
        out.append((1, lambda: ids.__setitem__(('S', t_), 0 if 'nopart' in opt else vm.op(f'buffer_store_dwordx4 {po[p]}, {vo[2 * p]}, {Rws}, {sp} offen {PFL}'))))
        return out + ([f's_add_u32 {sp}, {sp}, 65536'] if p else [])
    def G(t_):
        def f():
            vm.wait(ids['S', t_]); k('s_mov_b64 exec, 1')
            vm.op(f'buffer_atomic_add {one}, {zero}, {Rws}, {sf} offen sc1')
            k(f's_mov_b64 exec, -1\ns_add_u32 {sf}, {sf}, 512')
        return [(5, f)]
    def Lf(t_): return [f's_mov_b32 {st1}, {O_FP + 512 * t_}', (1, lambda: ids.__setitem__(('L', t_), vm.op(f'buffer_load_dword {fv}, {fpa}, {Rws}, {st1} offen sc1')))]
    def dma(lds, va, soff): return [f's_add_u32 m0, {sl_}, {lds}', (1, lambda: ids.__setitem__('d', vm.op(f'buffer_load_dwordx4 {va}, {Rws}, {soff} offen sc1 lds')))]
    def C(t_):
        return (dma(3072 * t_, aP, sq) + [f's_add_u32 {st}, {sq}, 4096'] + dma(3072 * t_ + 1024, aP, st) + [f's_add_u32 {sq}, {sq}, 65536']
                + [(0, lambda: ids.__setitem__(('C', t_), ids['d']))])
    def RS(t_):
        def f():
            k('s_mov_b32 exec_hi, 0'); vm.op(f'buffer_load_dwordx4 {aR}, {Rws}, {st} offen sc1 lds'); k('s_mov_b32 exec_hi, -1')
        return [f's_add_u32 {st}, {T0}, {t_}', f's_lshl_b32 {st}, {st}, 12', f's_add_u32 {st}, {st}, {O_RES}', f's_add_u32 m0, {sl_}, {3072 * t_ + 2048}', (3, f)]
    def CK(t_): return [(4, lambda: check(ids['L', t_], fv, 8, fpa, O_FP + 512 * t_))]
    def R(t_, Dr, v):
        A_, B_, r_, g_ = Dr
        def rd_():
            vm.wait(ids['C', t_])
            lg.op(f'ds_read_b128 {A_}, {aL} offset:{3072 * t_}'); lg.op(f'ds_read_b128 {B_}, {aL} offset:{3072 * t_ + 1024}')
            lg.op(f'ds_read_b64 {r_}, {aLr} offset:{3072 * t_ + 2048}'); ids['r', t_] = lg.op(f'ds_read_b64 {g_}, {aLg} offset:{27648 + 64 * t_}')
        out = [(1, lambda: lg.wait(ids['r', t_]))]
        for d in range(4): out += [f'v_lshlrev_b32 {v[2 * d]}, 16, {A_[d]}', f'v_lshlrev_b32 {v[2 * d + 1]}, 16, {B_[d]}']
        for d in range(4): out += [f'v_and_b32 {A_[d]}, 0xffff0000, {A_[d]}', f'v_add_f32 {v[2 * d]}, {v[2 * d]}, {v[2 * d + 1]}', f'v_and_b32 {B_[d]}, 0xffff0000, {B_[d]}']
        out += [f'v_add_f32 {v[2 * d + 1]}, {A_[d]}, {B_[d]}' for d in range(4)]
        out += [f'v_permlane32_swap_b32 {v[e]}, {v[e + 4]}' for e in (0, 2, 1, 3)]
        out += [f'v_add_f32 {v[e]}, {v[e]}, {v[e + 4]}' for e in (0, 2, 1, 3)]
        out += [f'v_permlane16_swap_b32 {v[e]}, {v[e + 2]}' for e in range(2)]
        out += [f'v_add_f32 {v[e]}, {v[e]}, {v[e + 2]}' for e in range(2)]
        out += [f'v_fma_f32 {v[e]}, {v[e]}, {g_[e]}, {r_[e]}' for e in range(2)]
        out += [f'v_cvt_pk_bf16_f32 {v[4]}, {v[0]}, {v[1]}', f'ds_write_b32 {aOw}, {v[4]} offset:{32 * t_}']
        return [(5, rd_)], out
    SPOS = 9
    for tt in range(1, 9):
        nxt_tile()
        a_ = acc[tt & 1]
        at = {0: S(tt - 1, a_, 0), SPOS: S(tt - 1, a_, 1)}
        add = lambda i, ops: at.__setitem__(i, at.get(i, []) + ops)
        if tt == 1: add(2, setup)
        if tt == 2:
            k('s_barrier')
            add(2, [f's_lshl_b32 {st}, {T0}, 6', f's_add_u32 {st}, {st}, {O_MOD2 + 4608}'] + dma(27648, l16, st))
        if 2 <= tt <= 6: add(4, RS(2 * tt - 4) + (RS(2 * tt - 3) if tt < 6 else []))
        if tt >= 2: add(6, G(tt - 2))
        if tt >= 4: add(12, CK(tt - 4) + C(tt - 4))
        if tt >= 3: add(15, Lf(tt - 3))
        if tt in (1, 4, 7, 8): STAMP({1: 1, 4: 2, 7: 3, 8: 4}[tt], True)
        tile(acc[1 - (tt & 1)], 1 - (tt & 1), [], rate=2.0, at=at, load=tt < 7)
    STAMP(10)
    XV.release()
    Dn = [[k.v(4, 2), k.v(4, 2), k.v(2), k.v(2)] for _ in range(9)]; v2 = k.v(8, 2)
    RR = [R(t_, Dn[t_], v2) for t_ in range(9)]
    seq = S(8, acc[1], 0) + S(8, acc[1], 1) + G(7) + CK(5) + C(5) + Lf(6)
    for t_ in range(4): seq += RR[t_][0]
    seq += RR[0][1] + G(8) + RR[1][1] + CK(6) + C(6) + Lf(7) + RR[4][0] + RR[2][1] + RR[3][1] + CK(7) + C(7) + Lf(8) + RR[5][0] + RR[4][1] + RR[5][1]
    for x_ in seq: emit(x_)
    u = k.v(3)
    k(f'v_mul_u32_u24 {u[0]}, 3641, v0\nv_lshrrev_b32 {u[0]}, 16, {u[0]}\nv_mul_u32_u24 {u[1]}, 18, {u[0]}\nv_sub_u32 {u[1]}, v0, {u[1]}\nv_lshlrev_b32 {u[1]}, 4, {u[1]}')
    k(f'v_mul_u32_u24 {aOr}, 304, {u[0]}\nv_add_u32 {aOr}, {aOr}, {u[1]}\nv_add_u32 {aOr}, {OUTB}, {aOr}\nv_mul_u32_u24 {aO}, 1152, {u[0]}\nv_add_u32 {aO}, {aO}, {u[1]}')
    k(f's_lshl_b32 {st}, {mb}, 1\ns_and_b32 {so}, {fs}, 1\ns_add_u32 {so}, {so}, {st}\ns_mul_i32 {so}, {so}, {32 * 1152}\ns_lshl_b32 {st}, {T0}, 5\ns_add_u32 {so}, {so}, {st}')
    for x_ in CK(8): emit(x_)
    STAMP(11)
    for x_ in C(8) + RR[6][0] + RR[7][0] + RR[6][1] + RR[7][1] + RR[8][0] + RR[8][1]: emit(x_)
    lg.all(); k('s_barrier')
    o4 = [Dn[0][0], Dn[0][1], Dn[1][0]]
    k(f'v_cmp_gt_u32 vcc, 252, v0\ns_and_b64 exec, exec, vcc')
    io = [lg.op(f'ds_read_b128 {o4[i]}, {aOr} offset:{14 * 304 * i}') for i in range(3)]
    for i in range(3):
        if i == 2: k(f's_cmp_ge_u32 {s_w}, 2\ns_cbranch_scc1 {END}\nv_cmp_gt_u32 vcc, 72, v0\ns_and_b64 exec, exec, vcc')
        lg.wait(io[i])
        k(f'buffer_store_dwordx4 {o4[i]}, {aO}, {Rout}, {so} offen')
        if i < 2: k(f's_add_u32 {so}, {so}, {14 * 1152}')
    STAMP(12)
```

```python
import re

TRANS = ('v_exp_f32', 'v_log_f32', 'v_rcp_f32', 'v_rsq_f32', 'v_sqrt_f32', 'v_sin_f32', 'v_cos_f32', 'v_rcp_iflag_f32')
NOREG_S = ('s_waitcnt', 's_barrier', 's_nop', 's_sleep', 's_setprio', 's_endpgm', 's_branch', 's_cbranch')

def regs_of(tok):
    tok = tok.strip()
    if tok.startswith('-'): tok = tok[1:]
    m = re.fullmatch(r'abs\((.*)\)|\|(.*)\|', tok)
    if m: tok = m.group(1) or m.group(2)
    m = re.fullmatch(r'([vas])(\d+)', tok)
    if m: return [(m.group(1), int(m.group(2)))]
    m = re.fullmatch(r'([vas])\[(\d+):(\d+)\]', tok)
    if m: return [(m.group(1), i) for i in range(int(m.group(2)), int(m.group(3)) + 1)]
    if tok == 'vcc': return [('x', 'vcc')]
    if tok == 'exec': return [('x', 'exec')]
    if tok == 'm0': return [('x', 'm0')]
    return []

class Ins:
    def __init__(self, text):
        self.text = text
        self.label = text[:-1] if text.endswith(':') else None
        self.directive = text.startswith('.')
        self.w = []; self.r = []; self.cls = 'other'; self.op = ''
        if self.label or self.directive: return
        body = text.split(';')[0].strip()
        parts = body.split(None, 1)
        op = self.op = parts[0]
        rest = parts[1] if len(parts) > 1 else ''
        toks = [t.strip() for t in re.split(r',(?![^\[]*\])', rest)] if rest else []
        mods = ''
        if toks:
            last = toks[-1].split(None, 1)
            if len(last) > 1 and not toks[-1].startswith('vmcnt') and not toks[-1].startswith('lgkmcnt'):
                toks[-1] = last[0]; mods = last[1]
        self.mods = mods; self.toks = toks
        R = [regs_of(t) for t in toks]
        flat = lambda L: [x for l in L for x in l]
        self.srcA = self.srcC = []
        if op.startswith('v_mfma'):
            self.cls = 'mfma'; self.w = R[0]; self.r = flat(R[1:]); self.srcAB = R[1] + R[2]; self.srcC = R[3]
            self.passes = 8 if '32x32' in op else 4
        elif op.startswith('v_'):
            self.cls = 'valu'
            self.trans = any(op.startswith(t) for t in TRANS)
            self.dpp = ('dpp' in op) or any(k in mods for k in ('quad_perm', 'row_', 'wave_'))
            self.dot = op.startswith('v_dot')
            if 'permlane' in op and 'swap' in op:
                self.w = R[0] + R[1]; self.r = R[0] + R[1]
            elif op.startswith('v_add_co') or op.startswith('v_sub_co') or op.startswith('v_addc_co'):
                self.w = R[0] + R[1]; self.r = flat(R[2:])
            else:
                self.w = R[0]; self.r = flat(R[1:])
                if op.startswith(('v_fmac', 'v_dot2c', 'v_pk_fmac', 'v_writelane')) or self.dpp: self.r = self.r + R[0]
        elif op.startswith('ds_'):
            self.cls = 'ds'
            if op.startswith(('ds_read', 'ds_bpermute', 'ds_swizzle', 'ds_permute')):
                self.w = R[0]; self.r = flat(R[1:])
            else: self.r = flat(R)
        elif op.startswith(('buffer_', 'global_')):
            self.cls = 'vmem'
            self.lds = bool(re.search(r'\blds\b', mods))
            if op in ('buffer_inv', 'buffer_wbl2'): pass
            elif 'load' in op and not self.lds:
                self.w = R[0]; self.r = flat(R[1:])
            elif 'atomic' in op and 'sc0' in mods:
                self.w = R[0]; self.r = flat(R)
            else:
                self.r = flat(R)
                if self.lds: self.r = self.r + [('x', 'm0')]
            self.wide_data = []
            if 'store' in op and ('x4' in op or 'x3' in op):
                self.wide_data = R[0] if op.startswith('buffer_') else R[1]
        elif op.startswith(('s_load', 's_memtime', 's_memrealtime', 's_buffer_load')):
            self.cls = 'smem'; self.w = R[0]; self.r = flat(R[1:])
        elif op.startswith('s_'):
            self.cls = 'salu'
            if op.startswith(NOREG_S): pass
            elif op.startswith(('s_cmp', 's_bitcmp')): self.r = flat(R)
            elif 'saveexec' in op: self.w = R[0] + [('x', 'exec')]; self.r = flat(R[1:]) + [('x', 'exec')]
            else: self.w = R[0]; self.r = flat(R[1:])
    def states(self):
        if self.label or self.directive: return 0
        if self.op == 's_nop': return int(self.toks[0], 0) + 1
        return 1
    def target(self):
        if self.op.startswith(('s_branch', 's_cbranch')): return self.toks[0]
        return None

def need(p, c):
    n = 0
    W = set(p.w); cr = set(c.r); cw = set(c.w)
    isv = lambda x: x[0] in 'va'
    if p.cls == 'valu':
        vw = {x for x in W if isv(x)}; sw = W - vw
        if c.cls == 'mfma' and vw & cr: n = max(n, 2)
        if c.cls == 'valu':
            if p.trans and not c.trans and vw & cr: n = max(n, 1)
            if c.dpp and vw & cr: n = max(n, 2)
            if 'permlane' in c.op and vw & cr: n = max(n, 2)
            if c.op.startswith(('v_readlane', 'v_readfirstlane')) and vw & cr: n = max(n, 1)
            if sw & cr: n = max(n, 4 if c.op.startswith(('v_readlane', 'v_writelane')) else 2)
            if p.dot and vw & (cr | cw):
                same_c = c.op == p.op and not (vw & set(regs_of(c.toks[1]) + regs_of(c.toks[2])))
                if not same_c: n = max(n, 3)
            if ('op_sel' in p.mods and not p.op.startswith('v_pk_')) and vw & (cr | cw): n = max(n, 1)
        if p.dot and c.cls != 'valu' and vw & (cr | cw): n = max(n, 3)
        if c.cls == 'vmem' and sw & cr: n = max(n, 5)
        if c.cls in ('salu', 'smem') and sw & cr: n = max(n, 1)
    if p.cls == 'mfma':
        P = p.passes
        if c.cls == 'mfma':
            if W & set(c.srcAB): n = max(n, P + 4)
            if W & set(c.srcC):
                if not (list(p.w) == list(c.srcC) and p.passes == c.passes): n = max(n, P + 2)
            elif W & cw: n = max(n, P + 4)
        elif W & (cr | cw): n = max(n, P + 4)
        if c.cls == 'valu' and set(p.srcC) & cw: n = max(n, P - 1)
    if p.cls == 'salu' and ('x', 'm0') in W and c.cls in ('vmem', 'ds') and ('x', 'm0') in cr: n = max(n, 1)
    if p.cls == 'vmem' and p.wide_data and set(p.wide_data) & cw: n = max(n, 2 if c.cls == 'valu' else 1)
    return n

def insert_nops(lines):
    ins = [Ins(x) for x in lines]
    total = 0
    i = 0
    while i < len(ins):
        c = ins[i]
        if c.label or c.directive or c.cls == 'other': i += 1; continue
        worst = 0
        labels = None
        stack = [(i - 1, 0)]; seen = {}
        while stack:
            j, d = stack.pop()
            while j >= 0 and d < 20:
                if seen.get(j, 99) <= d: break
                seen[j] = d
                p = ins[j]
                if p.label:
                    if labels is None:
                        labels = {}
                        for t, x in enumerate(ins):
                            tg = x.target() if not (x.label or x.directive) else None
                            if tg: labels.setdefault(tg, []).append(t)
                    for t in labels.get(p.label, []): stack.append((t, d))
                    k = j - 1
                    while k >= 0 and (ins[k].directive): k -= 1
                    if k >= 0 and not ins[k].label and ins[k].op in ('s_branch', 's_endpgm'): break
                    j -= 1; continue
                if p.directive: j -= 1; continue
                worst = max(worst, need(p, c) - d)
                d += p.states(); j -= 1
        if worst > 0:
            ins.insert(i, Ins('s_nop %d' % (worst - 1))); total += worst; i += 1
        i += 1
    return [x.text for x in ins], total

def lint_waits(lines, name=''):
    ins = [Ins(x) for x in lines]
    pos = {x.label: i for i, x in enumerate(ins) if x.label}
    errs = []
    def run(seq, vm, lg):
        for i in seq:
            c = ins[i]
            if c.label or c.directive: continue
            if c.op == 's_waitcnt':
                m = re.search(r'vmcnt\((\d+)\)', c.text)
                if m:
                    n = int(m.group(1)); assert n <= 63, c.text
                    if len(vm) > n: del vm[:len(vm) - n]
                m = re.search(r'lgkmcnt\((\d+)\)', c.text)
                if m:
                    n = int(m.group(1)); assert n <= 15, c.text
                    if n == 0: lg.clear()
                    elif not any(k == 'smem' for k, _ in lg) and len(lg) > n: del lg[:len(lg) - n]
                continue
            touched = set(c.r) | set(c.w)
            d16 = c.cls in ('ds', 'vmem') and 'd16' in c.op
            for q in (vm, lg):
                for kind, dst in q:
                    hit = touched & dst
                    if hit and d16 and kind == c.cls and not (set(c.r) & dst): continue
                    if hit and kind == c.cls and not (set(c.r) & dst): continue
                    if hit: errs.append('%s: line %d "%s" touches pending %s %s' % (name, i, c.text, kind, sorted(hit)[:2]))
            if c.cls == 'vmem': vm.append(('vmem', set(c.w)))
            elif c.cls == 'ds': lg.append(('ds', set(c.w)))
            elif c.cls == 'smem': lg.append(('smem', set(c.w)))
    vm, lg = [], []
    i = 0
    for i, c in enumerate(ins):
        if c.label and i > 0 and not ins[i - 1].label and not ins[i - 1].directive and ins[i - 1].op in ('s_branch', 's_endpgm'):
            vm.clear(); lg.clear()
        run([i], vm, lg)
        tg = None if (c.label or c.directive) else c.target()
        if tg in pos and pos[tg] < i:
            run(range(pos[tg], i), list(vm), list(lg))
    return sorted(set(errs))

class Pool:
    def __init__(self, kind, lo, hi):
        self.kind = kind; self.free = [True] * hi; self.lo = lo; self.hi = hi; self.top = lo
        for i in range(lo): self.free[i] = False
    def get(self, n=1, align=None):
        align = align or (1 if n == 1 else (2 if self.kind != 's' or n == 2 else 4))
        i = (self.lo + align - 1) // align * align
        while i + n <= self.hi:
            if all(self.free[i:i + n]):
                for j in range(i, i + n): self.free[j] = False
                self.top = max(self.top, i + n)
                return Reg(self.kind, i, n, self)
            i += align
        raise RuntimeError('out of %s registers (%d)' % (self.kind, n))

class Reg:
    def __init__(self, kind, i, n, pool=None):
        self.kind = kind; self.i = i; self.n = n; self.pool = pool
    def __str__(self):
        return '%s%d' % (self.kind, self.i) if self.n == 1 else '%s[%d:%d]' % (self.kind, self.i, self.i + self.n - 1)
    __repr__ = __str__
    def __format__(self, spec): return str(self)
    def __getitem__(self, k):
        if isinstance(k, slice):
            a = k.start or 0; b = self.n if k.stop is None else k.stop
            assert 0 <= a < b <= self.n, (a, b, self.n)
            return Reg(self.kind, self.i + a, b - a)
        assert 0 <= k < self.n, (k, self.n)
        return Reg(self.kind, self.i + k, 1)
    def sub(self, k, n): return self[k:k + n]
    def release(self):
        for j in range(self.i, self.i + self.n):
            assert not self.pool.free[j]
            self.pool.free[j] = True

class Kern:
    def __init__(self, name, nv=256, na=0):
        self.name = name; self.l = []; self._lab = 0
        self.V = Pool('v', 1, nv); self.A = Pool('a', 0, max(na, 1)); self.S = Pool('s', 3, 100)
        self.na = na; self.inj = None
    def __call__(self, s=''):
        for x in s.split('\n'):
            x = x.strip()
            if not x: continue
            self.l.append(x)
            if self.inj and x.startswith('v_'):
                self.injn += 1
                if self.injn % self.every == 0:
                    f = self.inj.pop(0); pend, self.inj = self.inj, None; f(); self.inj = pend
    def inject(self, fns, every):
        self.inj = list(fns); self.every = every; self.injn = 0
    def flush_inject(self):
        pend, self.inj = self.inj or [], None
        for f in pend: f()
    def v(self, n=1, align=None): return self.V.get(n, align)
    def a(self, n=1, align=None): return self.A.get(n, align)
    def s(self, n=1, align=None): return self.S.get(n, align)
    def label(self, base='L'):
        self._lab += 1
        return '%s_%s_%d' % (base, self.name.replace('_kernel', ''), self._lab)
    def finish(self):
        self.l, nn = insert_nops(self.l)
        errs = lint_waits(self.l, self.name)
        for e in errs[:30]: print('LINT', e)
        self.nops = nn
        return errs
    def body(self):
        o = ['.globl %s' % self.name, '.p2align 8', '.type %s,@function' % self.name, '%s:' % self.name]
        for x in self.l: o.append(x if x.endswith(':') else '    ' + x)
        return '\n'.join(o) + '\n'
    def counts(self):
        acc = max(4, (self.V.top + 3) // 4 * 4)
        nfv = acc + self.A.top if self.na else self.V.top
        return acc, nfv
    def desc(self, ka):
        acc, nfv = self.counts()
        o = ['.p2align 6', '.amdhsa_kernel %s' % self.name,
             '  .amdhsa_next_free_vgpr %d' % nfv, '  .amdhsa_next_free_sgpr 102',
             '  .amdhsa_accum_offset %d' % acc, '  .amdhsa_group_segment_fixed_size 0',
             '  .amdhsa_kernarg_size %d' % ka, '  .amdhsa_user_sgpr_count 2',
             '  .amdhsa_user_sgpr_kernarg_segment_ptr 1', '  .amdhsa_system_sgpr_workgroup_id_x 1',
             '  .amdhsa_float_denorm_mode_32 3', '.end_amdhsa_kernel']
        return '\n'.join(o) + '\n'

def module(kernels, ka, header=''):
    s = header + '.amdgcn_target "amdgcn-amd-amdhsa--gfx950"\n.text\n'
    for k in kernels: s += k.body()
    s += '.section .rodata,"a"\n'
    for k in kernels: s += k.desc(ka)
    return s
```

```python
from common import *

N_SIG = 64 + 45
BUF0, BUF1, SVEC = 0, 73728, 147456
K1_LDS = 147456 + 2560
SPIN_MAX = 40000

def vmaps():
    maps = [list(range(16))]
    for s in (1, 2, 3):
        m = list(maps[-1]); step = 1 << s
        new = [step * i for i in range(8, 16)]
        for j in range(16):
            if m[j] % step: m[j] = new.pop(0)
        assert not new
        maps.append(m)
    return maps

def service(k, P, lane, s_w, END, NEXT, SP):
    vm, lg = trackers(k)
    Rws = k.s(4); Rdbg = k.s(4); RA = k.s(4); RB = k.s(4)
    srd(k, Rws, P['ws'], WS_USED); srd(k, Rdbg, P['dbg'], 256)
    z4 = k.v(4, 4); zero = z4.sub(0, 2); one = k.v(); l16 = k.v(); q = k.v(); m = k.v()
    fr = k.v(72, 4); sv = k.v(72, 4); acc = k.v(4, 4)
    sav = k.s(2); st = k.s(); cnt = k.s()
    jb = k.s(); modeB = k.s(); blkB = k.s(); srcB = k.s(); strB = k.s()
    L_mod, L_B, L_C = k.label('mod'), k.label('jobB'), k.label('jobC')
    k(f'v_lshrrev_b32 {q}, 4, {lane}\nv_and_b32 {m}, 15, {lane}\nv_lshlrev_b32 {l16}, 4, {lane}')
    cjs = {}
    def common():
        for i in range(4): k(f'v_mov_b32 {z4[i]}, 0')
        k(f'v_mov_b32 {one}, 1\ns_mov_b32 {cnt}, 0')
        k(f's_add_u32 {jb}, s2, 32\ns_sub_u32 {blkB}, s2, 64\ns_cmp_ge_u32 s2, 64\ns_cselect_b32 {jb}, {blkB}, {jb}')
        k(f's_cmp_ge_u32 s2, 96\ns_cselect_b32 {jb}, 200, {jb}\ns_sub_u32 {blkB}, s2, 7\ns_cmp_ge_u32 s2, 103\ns_cselect_b32 {jb}, {blkB}, {jb}')
        srd(k, RB, P['wmod'], D * 3456 * 2)
        k(f's_mov_b32 {modeB}, 0\ns_cmp_ge_u32 {jb}, 6\ns_cselect_b32 {blkB}, 39, 30\ns_add_u32 {blkB}, {blkB}, {jb}\ns_mov_b32 {strB}, 6912')
        for mode, lo, ptr, nb, st_ in ((2, 15, 'w2', D * D * 2, 1152), (3, 24, 'w3', D * F * 2, 9216), (1, 96, 'w1', D * D * 2, 1152)):
            k(f's_sub_u32 {srcB}, {jb}, {lo}\ns_cmp_ge_u32 {jb}, {lo}')
            k(f's_cselect_b32 {blkB}, {srcB}, {blkB}\ns_cselect_b32 {modeB}, {mode}, {modeB}\ns_cselect_b32 {strB}, {st_}, {strB}')
            k(f's_cselect_b32 {RB[0]}, {P[ptr][0]}, {RB[0]}\ns_cselect_b32 {RB[1]}, {P[ptr][1]}, {RB[1]}\ns_cselect_b32 {RB[2]}, {nb}, {RB[2]}')
        k(f's_lshl_b32 {srcB}, {blkB}, 7')
    def signal(off, last):
        sk = k.label('notlast')
        k(f's_mov_b64 exec, 1\nv_mov_b32 {acc[0]}, 1\nbuffer_atomic_add {acc[0]}, {zero[0]}, {Rdbg}, {off} offen offset:64 sc0 sc1\ns_waitcnt vmcnt(0)')
        k(f'v_readfirstlane_b32 {st}, {acc[0]}\ns_cmp_lg_u32 {st}, {last}\ns_cbranch_scc1 {sk}')
        k(f'buffer_store_dword {one}, {zero[0]}, {Rdbg}, {off} offen offset:192 sc1\n{sk}:\ns_mov_b64 exec, -1')
    cj = ColJob(k, vm, lg, lane, s_w)
    L_w1 = k.label('w1')
    k(f's_cmp_ge_u32 s2, 103\ns_cbranch_scc1 {L_w1}\ns_cmp_ge_u32 s2, 64\ns_cbranch_scc1 {L_mod}')

    srd(k, RA, P['u'], L * D * 2)
    va = k.v(); vx = k.v(2); t = k.v(6); row = k.v(); s1 = k.s()
    k(f's_and_b32 {st}, {s_w}, 1\ns_lshl_b32 {s1}, s2, 1\ns_add_u32 {st}, {st}, {s1}\ns_lshl_b32 {st}, {st}, 4')
    k(f'v_and_b32 {t[0]}, 7, {m}\nv_lshrrev_b32 {t[2]}, 3, {m}\nv_lshl_add_u32 {t[5]}, {t[0]}, 1, {t[2]}\nv_add_u32 {row}, {st}, {t[5]}')
    k(f's_lshr_b32 {s1}, {s_w}, 1\ns_mul_i32 {st}, {s1}, 576\nv_mul_u32_u24 {va}, 1152, {row}\nv_lshl_add_u32 {va}, {q}, 4, {va}')
    for i in range(4): k(f'v_mov_b32 {z4[i]}, 0')
    k(f's_lshl_b32 {sav[0]}, s2, 8\ns_add_u32 {sav[0]}, {sav[0]}, {O_STATS}\ns_cmp_eq_u32 {s_w}, 0\ns_cselect_b32 {sav[0]}, {sav[0]}, {WS_USED}\ns_mov_b64 exec, 0xffff')
    k(f'buffer_store_dwordx4 {z4}, {l16}, {Rws}, {sav[0]} offen sc1\ns_mov_b64 exec, -1')
    k(f's_or_b32 {sav[0]}, s2, {s_w}\ns_cmp_eq_u32 {sav[0]}, 0\ns_mov_b32 {sav[0]}, {O_FW}\ns_cselect_b32 {sav[0]}, {sav[0]}, {WS_USED}')
    k(f'buffer_store_dwordx4 {z4}, {l16}, {Rws}, {sav[0]} offen sc1\nbuffer_store_dwordx4 {z4}, {l16}, {Rws}, {sav[0]} offen offset:1024 sc1')
    ix = [vm.op(f'buffer_load_dwordx4 {fr.sub(4 * i, 4)}, {va}, {RA}, {st} offen offset:{64 * i}') for i in range(9)]
    pf = k.v(2); pfs = k.s(2)
    common()
    ones = sv.sub(40, 4); gacc = sv.sub(36, 4); arr = sv[44]; msk = [k.s(2) for _ in range(3)]
    sk = k.label('noarr')
    k(f's_cmp_lg_u32 {s_w}, 0\ns_cbranch_scc1 {sk}\ns_mov_b64 exec, 1\nv_mov_b32 {arr}, 1\ns_waitcnt vmcnt(9)\nbuffer_atomic_add {arr}, {zero[0]}, {Rdbg}, 0 offen offset:64 sc0 sc1\ns_mov_b64 exec, -1\n{sk}:')
    for i in range(4): k(f'v_mov_b32 {ones[i]}, 0x3f803f80')
    k(f'v_and_b32 {t[0]}, 3, {m}')
    for e in range(3): k(f'v_cmp_eq_u32 {msk[e]}, {e + 1}, {t[0]}')
    k(f's_lshl_b32 {st}, {s_w}, 8\ns_add_u32 {st}, {st}, {SVEC}\nv_lshl_add_u32 {t[3]}, {t[5]}, 2, {st}\nv_lshrrev_b32 {t[0]}, 2, {m}\nv_cmp_eq_u32 vcc, {t[0]}, {q}')
    k(f'v_add_u32 {t[4]}, 128, {t[3]}\nv_add_u32 {t[5]}, 192, {t[3]}\nv_cndmask_b32 {t[4]}, {t[5]}, {t[4]}, vcc')
    k(f'v_lshrrev_b32 {t[0]}, 3, {m}\nv_lshl_add_u32 {t[1]}, {q}, 1, {t[0]}\nv_lshlrev_b32 {vx[0]}, 14, {t[1]}\nv_sub_u32 {t[1]}, {row}, {t[0]}\nv_lshl_add_u32 {vx[0]}, {t[1]}, 3, {vx[0]}')
    k(f's_mul_i32 {s1}, {s1}, {9 * 131072}\ns_add_u32 {s1}, {s1}, {O_XT}\nv_cmp_eq_u32 vcc, 0, {t[0]}')
    dp = 'row_ror:8 row_mask:0xf bank_mask:0xf'
    for i in range(9):
        vm.wait(ix[i])
        if i == 0: SP(8)
        r_ = fr.sub(4 * i, 4); o = sv.sub(4 * i, 4)
        k(f'v_mfma_f32_16x16x32_bf16 {acc}, {ones}, {r_}, {"0" if i == 0 else acc}')
        k(f'v_cndmask_b32_dpp {o[0]}, {r_[2]}, {r_[0]}, vcc {dp}\nv_cndmask_b32_dpp {o[1]}, {r_[3]}, {r_[1]}, vcc {dp}\ns_not_b64 vcc, vcc')
        k(f'v_mfma_f32_16x16x32_bf16 {gacc}, {r_}, {r_}, {"0" if i == 0 else gacc}')
        k(f'v_cndmask_b32_dpp {o[2]}, {r_[0]}, {r_[2]}, vcc {dp}\nv_cndmask_b32_dpp {o[3]}, {r_[1]}, {r_[3]}, vcc {dp}\ns_not_b64 vcc, vcc')
        vm.op(f'buffer_store_dwordx4 {o}, {vx[0]}, {Rws}, {s1} offen sc1')
        if i < 8: k(f's_add_u32 {s1}, {s1}, 131072')
    SP(10)
    k(f'v_cndmask_b32 {t[0]}, {gacc[0]}, {gacc[1]}, {msk[0]}\nv_cndmask_b32 {t[0]}, {t[0]}, {gacc[2]}, {msk[1]}\nv_cndmask_b32 {t[0]}, {t[0]}, {gacc[3]}, {msk[2]}')
    k(f'ds_write_b32 {t[3]}, {acc[0]}\nds_write_b32 {t[4]}, {t[0]}\ns_waitcnt lgkmcnt(0)\ns_barrier')
    a, b = k.label('notw0'), k.label('sigd')
    k(f's_cmp_lg_u32 {s_w}, 0\ns_cbranch_scc1 {a}')
    k(f'v_and_b32 {t[1]}, 1, {q}\nv_lshlrev_b32 {t[1]}, 8, {t[1]}\nv_lshl_add_u32 {t[1]}, {m}, 2, {t[1]}\nv_add_u32 {t[1]}, {SVEC}, {t[1]}')
    k(f'ds_read2_b32 {t[2:4]}, {t[1]} offset0:0 offset1:32\nds_read2_b32 {t[4:6]}, {t[1]} offset0:128 offset1:160')
    sk = k.label('notlast')
    k(f's_waitcnt vmcnt(9)\nv_readfirstlane_b32 {st}, {arr}\ns_cmp_lg_u32 {st}, 102\ns_cbranch_scc1 {sk}')
    k(f's_mov_b64 exec, 1\nbuffer_store_dword {one}, {zero[0]}, {Rdbg}, 0 offen offset:192 sc1\ns_mov_b64 exec, -1\n{sk}:\ns_waitcnt lgkmcnt(0)')
    k(f'v_add_f32 {t[0]}, {t[2]}, {t[4]}\nv_add_f32 {t[2]}, {t[3]}, {t[5]}')
    sigma_bf16(k, t[0], t[2])
    k(f'v_cvt_pk_bf16_f32 {t[2]}, {t[0]}, {t[2]}\nv_mov_b32 {t[3]}, 1\nv_lshlrev_b32 {t[1]}, 3, {lane}\ns_lshl_b32 {st}, s2, 8\ns_add_u32 {st}, {st}, {O_STATS}')
    k(f'{a}:'); SP(14); k('s_waitcnt vmcnt(0)\ns_barrier'); vm.reset()
    k(f's_cmp_lg_u32 {s_w}, 0\ns_cbranch_scc1 {b}')
    k(f's_mov_b32 exec_hi, 0\nbuffer_store_dwordx2 {t[2:4]}, {t[1]}, {Rws}, {st} offen sc1\ns_mov_b64 exec, -1')
    k(f'{b}:'); SP(9)
    for x_ in msk: x_.release()
    cj.dma(RB, srcB, strB, BUF1)
    k(f's_lshl_b32 {st}, s2, 2\ns_add_u32 {st}, {st}, {s_w}\ns_lshl_b32 {st}, {st}, 10')
    k(f's_cmp_eq_u32 s2, {O_FW // 4096}\ns_cselect_b32 {st}, {WS_USED}, {st}\nbuffer_store_dwordx4 {z4}, {l16}, {Rws}, {st} offen sc1')
    sk = k.label('nopad')
    k(f's_cmp_lg_u32 {s_w}, 2\ns_cbranch_scc1 {sk}\ns_cmp_ge_u32 s2, 36\ns_cbranch_scc1 {sk}\ns_lshr_b32 {st}, s2, 1\ns_mul_i32 {st}, {st}, {GPL}\ns_bitcmp1_b32 s2, 0\ns_cselect_b32 {sav[0]}, {129 * 1024}, 0')
    k(f's_add_u32 {st}, {st}, {sav[0]}\ns_add_u32 {st}, {st}, {O_G}\nbuffer_store_dwordx4 {z4}, {l16}, {Rws}, {st} offen sc1\n{sk}:')
    k(f's_branch {L_B}')
    for x_ in (va, vx, t, row, s1): x_.release()

    def mod_tail(ids, s_blk, sig, gran=False):
        t = k.v(2); vg = k.v(); s1 = k.s()
        for s in range(18):
            if s % 2 == 0: lg.wait(ids[s + 1])
            k(f'v_mfma_f32_16x16x32_bf16 {acc}, {sv.sub(4 * s, 4)}, {fr.sub(4 * s, 4)}, {"0" if s == 0 else acc}')
        k(f's_lshl_b32 {s1}, {s_w}, 6\ns_add_u32 {s1}, {s1}, {SVEC + 2048}\nv_lshl_add_u32 {vg}, {m}, 2, {s1}')
        k(f'v_cvt_pk_bf16_f32 {t[0]}, {acc[0]}, {acc[0]}\nv_and_b32 {t[0]}, 0xffff0000, {t[0]}')
        k(f'v_add_f32 {t[1]}, 1.0, {t[0]}\nv_cvt_pk_bf16_f32 {t[1]}, {t[1]}, {t[1]}\nv_and_b32 {t[1]}, 0xffff0000, {t[1]}')
        k(f's_mov_b64 vcc, 0\ns_sub_u32 {s1}, {s_blk}, 9\ns_cmp_lt_u32 {s1}, 9\ns_cselect_b64 vcc, -1, vcc')
        k(f's_sub_u32 {s1}, {s_blk}, 36\ns_cmp_lt_u32 {s1}, 9\ns_cselect_b64 vcc, -1, vcc')
        k(f'v_cndmask_b32 {t[0]}, {t[0]}, {t[1]}, vcc\nds_write_b32 {vg}, {t[0]}\ns_waitcnt lgkmcnt(0)\ns_barrier'); lg.reset()
        a, b = k.label('notw0'), k.label('nob')
        k(f's_cmp_lg_u32 {s_w}, 0\ns_cbranch_scc1 {a}')
        k(f'v_lshlrev_b32 {vg}, 3, {lane}\nv_add_u32 {t[0]}, {SVEC + 2048}, {vg}\nds_read_b64 {t}, {t[0]}\ns_lshl_b32 {s1}, {s_blk}, 8\ns_add_u32 {s1}, {s1}, {O_MODF}')
        k(f's_mov_b32 exec_hi, 0')
        if gran:
            k(f's_lshl_b32 {sav[0]}, {s_blk}, 9\ns_add_u32 {sav[0]}, {sav[0]}, {O_MODG}\nv_mov_b32 {acc[1]}, 1\nv_mov_b32 {acc[3]}, 1\ns_waitcnt lgkmcnt(0)')
            k(f'v_mov_b32 {acc[0]}, {t[0]}\nv_mov_b32 {acc[2]}, {t[1]}\nbuffer_store_dwordx4 {acc}, {l16}, {Rws}, {sav[0]} offen sc1')
        k(f's_waitcnt lgkmcnt(0)\nbuffer_store_dwordx2 {t}, {vg}, {Rws}, {s1} offen sc1')
        if sig:
            k(f's_sub_u32 {s1}, {s_blk}, 27\ns_cmp_ge_u32 {s1}, 18\ns_cbranch_scc1 {b}')
            k(f'v_cvt_pk_bf16_f32 {acc[0]}, {t[0]}, {t[1]}\nv_lshrrev_b32 {vg}, 1, {vg}\ns_lshl_b32 {s1}, {s1}, 7\ns_add_u32 {s1}, {s1}, {O_MODB}')
            k(f'buffer_store_dword {acc[0]}, {vg}, {Rws}, {s1} offen sc1\n{b}:')
            k(f's_cmp_ge_u32 {s_blk}, 45\ns_cbranch_scc1 {a}\ns_sub_u32 {s1}, {s_blk}, 27\ns_cmp_lt_u32 {s1}, 9')
            k(f's_cselect_b32 {sav[0]}, 12, 4\ns_cselect_b32 {sav[1]}, 8, 35\ns_waitcnt vmcnt(0)')
            signal(sav[0], sav[1])
        k(f'{a}:\ns_mov_b64 exec, -1')
        t.release(); vg.release(); s1.release()

    k(f'{L_mod}:')
    vm, lg = trackers(k); cj.vm, cj.lg = vm, lg
    blkA = k.s(); srcA = k.s(); strA = k.s(); Rc = k.s(4)
    srd(k, RA, P['wmod'], D * 3456 * 2); srd(k, Rc, P['c'], D * 2)
    k(f's_sub_u32 {blkA}, s2, 64\ns_cmp_ge_u32 {blkA}, 27\ns_cselect_b32 {st}, 9, 0\ns_cmp_ge_u32 {blkA}, 36\ns_cselect_b32 {st}, -9, {st}\ns_add_u32 {blkA}, {blkA}, {st}')
    k(f's_lshl_b32 {srcA}, {blkA}, 7\ns_mov_b32 {strA}, 6912')
    t = k.v(8); vg = k.v()
    k(f'v_lshlrev_b32 {vg}, 3, v0')
    for i in range(4): k(f'v_mov_b32 {z4[i]}, 0')
    k(f's_lshl_b32 {st}, {blkA}, 9\ns_add_u32 {st}, {st}, {O_MODG}\ns_cmp_eq_u32 {s_w}, 0\ns_cselect_b32 {st}, {st}, {WS_USED}\ns_mov_b32 exec_hi, 0')
    icl = vm.op(f'buffer_store_dwordx4 {z4}, {l16}, {Rws}, {st} offen sc1')
    k('s_mov_b64 exec, -1')
    ic = vm.op(f'buffer_load_dwordx2 {t[0:2]}, {vg}, {Rc}, 0 offen')
    ia = cj.dma(RA, srcA, strA, BUF0)
    common()
    vm.wait(ic)
    sk = k.label('noarr')
    k(f's_cmp_lg_u32 {s_w}, 0\ns_cbranch_scc1 {sk}\ns_mov_b64 exec, 1\nv_mov_b32 {acc[1]}, 1\nbuffer_atomic_add {acc[1]}, {zero[0]}, {Rdbg}, 0 offen offset:64 sc0 sc1\ns_mov_b64 exec, -1\n{sk}:')
    k(f'v_lshlrev_b32 {t[2]}, 16, {t[0]}\nv_and_b32 {t[3]}, 0xffff0000, {t[0]}\nv_lshlrev_b32 {t[4]}, 16, {t[1]}\nv_and_b32 {t[5]}, 0xffff0000, {t[1]}')
    e = k.v(4)
    for i in range(4): k(f'v_mul_f32 {e[i]}, {fl(-LOG2E)}, {t[2 + i]}')
    for i in range(4): k(f'v_exp_f32 {e[i]}, {e[i]}')
    for i in range(4): k(f'v_add_f32 {e[i]}, 1.0, {e[i]}')
    for i in range(4): k(f'v_rcp_f32 {e[i]}, {e[i]}')
    for i in range(4): k(f'v_mul_f32 {e[i]}, {e[i]}, {t[2 + i]}')
    k(f'v_cvt_pk_bf16_f32 {t[0]}, {e[0]}, {e[1]}\nv_cvt_pk_bf16_f32 {t[1]}, {e[2]}, {e[3]}\nv_add_u32 {vg}, {SVEC}, {vg}')
    k(f'ds_write_b64 {vg}, {t[0:2]}\nv_lshlrev_b32 {vg}, 4, {q}\nv_add_u32 {vg}, {SVEC}, {vg}\ns_waitcnt lgkmcnt(0)\ns_barrier')
    for s in range(18): lg.op(f'ds_read_b128 {sv.sub(4 * s, 4)}, {vg} offset:{64 * s}')
    ad = cj.addr(BUF0)
    sk = k.label('notlast')
    k(f's_waitcnt vmcnt(0) lgkmcnt(0)\ns_cmp_lg_u32 {s_w}, 0\ns_cbranch_scc1 {sk}\nv_readfirstlane_b32 {st}, {acc[1]}\ns_cmp_lg_u32 {st}, 102\ns_cbranch_scc1 {sk}')
    k(f's_mov_b64 exec, 1\nbuffer_store_dword {one}, {zero[0]}, {Rdbg}, 0 offen offset:192 sc1\ns_mov_b64 exec, -1\n{sk}:\ns_barrier'); SP(10); vm.reset(); lg.reset()
    ids = cj.reads(ad, fr)
    mod_tail(ids, blkA, True, True); SP(11)
    k(f's_cmp_ge_u32 {jb}, 200\ns_cbranch_scc1 {L_C}')
    cj.dma(RB, srcB, strB, BUF1)
    k(f's_waitcnt vmcnt(0)\ns_branch {L_B}')
    e.release(); t.release(); vg.release()

    k(f'{L_w1}:')
    common()
    cj.dma(RB, srcB, strB, BUF1)
    k('s_waitcnt vmcnt(0)')

    k(f'{L_B}:')
    vm, lg = trackers(k); cj.vm, cj.lg = vm, lg
    k(f's_waitcnt vmcnt(1) lgkmcnt(0)\ns_barrier')
    SP(12)
    il = k.s(); k(f's_sub_u32 {il}, {modeB}, 1\ns_cmp_lt_u32 {il}, 2\ns_cselect_b32 {il}, 1, 0')
    ids = cj.read(BUF1, fr, s_il=il)
    notmod, nocenter = k.label('notmod'), k.label('nocenter')
    k(f's_cmp_lg_u32 {modeB}, 0\ns_cbranch_scc1 {notmod}')
    mod_tail(ids, blkB, True)
    k(f's_branch {L_C}\n{notmod}:')
    k('s_waitcnt lgkmcnt(0)'); lg.reset()
    k(f's_bitcmp0_b32 {modeB}, 0\ns_cbranch_scc1 {nocenter}')
    ones = sv.sub(0, 4); t = k.v(4); gof = k.v(4, 4)
    go2_ld = f'buffer_load_dwordx4 {gof}, {zero[0]}, {Rdbg}, 0 offen offset:192 sc1'
    k(go2_ld)
    for i in range(4): k(f'v_mov_b32 {ones[i]}, 0x3f803f80')
    for s in range(18): k(f'v_mfma_f32_16x16x32_bf16 {acc}, {ones}, {fr.sub(4 * s, 4)}, {"0" if s == 0 else acc}')
    nm = sv.sub(4, 2)
    k(f'v_mul_f32 {nm[0]}, {fl(-1 / 576)}, {acc[0]}')
    for i in range(0, 72, 2):
        k(f'v_lshlrev_b32 {t[0]}, 16, {fr[i]}\nv_and_b32 {t[1]}, 0xffff0000, {fr[i]}')
        k(f'v_lshlrev_b32 {t[2]}, 16, {fr[i + 1]}\nv_and_b32 {t[3]}, 0xffff0000, {fr[i + 1]}')
        k(f'v_pk_add_f32 {t[0:2]}, {t[0:2]}, {nm} op_sel_hi:[1,0]\nv_pk_add_f32 {t[2:4]}, {t[2:4]}, {nm} op_sel_hi:[1,0]')
        k(f'v_cvt_pk_bf16_f32 {fr[i]}, {t[0]}, {t[1]}\nv_cvt_pk_bf16_f32 {fr[i + 1]}, {t[2]}, {t[3]}')
    k(f'{nocenter}:')
    sk = k.label('now4'); s1 = k.s()
    k(f's_cmp_ge_u32 s2, 64\ns_cbranch_scc1 {sk}')
    srd(k, RA, P['w4'], D * F * 2)
    k(f's_mul_hi_u32 {st}, s2, {(1 << 32) // 9 + 1}\ns_mul_i32 {s1}, {st}, 9\ns_sub_u32 {s1}, s2, {s1}\ns_lshl_b32 {s1}, {s1}, 7')
    k(f's_mul_i32 {st}, {st}, {576 * 1152}\ns_add_u32 {s1}, {s1}, {st}\ns_mov_b32 {st}, 1152')
    cj.dma(RA, s1, st, BUF0)
    k(f'{sk}:'); s1.release(); vm.reset()
    T = k.s(); j = k.s(); dst = k.s(); step = k.s(); rot = k.s()
    k(f's_lshl_b32 {T}, {blkB}, 2\ns_add_u32 {T}, {T}, {s_w}')
    k(f's_mul_hi_u32 {j}, {T}, {(1 << 32) // 6 + 1}\ns_mul_i32 {dst}, {j}, 6\ns_sub_u32 {dst}, {T}, {dst}\ns_lshl_b32 {dst}, {dst}, 10')
    k(f's_mul_i32 {step}, {j}, 110592\ns_add_u32 {dst}, {dst}, {step}')
    k(f's_mul_i32 {rot}, {j}, 3\ns_sub_u32 {rot}, 18, {rot}\ns_cmp_eq_u32 {rot}, 18\ns_cselect_b32 {rot}, 0, {rot}')
    k(f's_cmp_eq_u32 {modeB}, 1\ns_cselect_b32 {rot}, {rot}, 0\ns_cselect_b32 {step}, 0, {O_W2F - O_W1F}\ns_add_u32 {dst}, {dst}, {step}\ns_add_u32 {dst}, {dst}, {O_W1F}')
    k(f's_mul_i32 {j}, {T}, 18432\ns_add_u32 {j}, {j}, {O_W3F}')
    k(f's_cmp_ge_u32 {modeB}, 3\ns_cselect_b32 {dst}, {j}, {dst}\ns_cselect_b32 {step}, 1, 6\ns_lshl_b32 {step}, {step}, 10')
    notw1, L_st = k.label('notw1'), k.label('stored')
    k(f's_cmp_lg_u32 {modeB}, 1\ns_cbranch_scc1 {notw1}')
    cj.store(fr, None, Rws, dst, step, s_rot=rot)
    sk = k.label('nosig')
    k(f's_waitcnt vmcnt(0)\ns_barrier\ns_cmp_lg_u32 {s_w}, 0\ns_cbranch_scc1 {sk}')
    signal(8, 8)
    k(f'{sk}:')
    lp, ok = k.label('pollm'), k.label('gotm')
    k(f'{lp}:\ns_waitcnt vmcnt(0)\nv_and_b32 {gof[1]}, {gof[1]}, {gof[3]}\nv_readfirstlane_b32 {st}, {gof[1]}\ns_cmp_ge_u32 {st}, 1\ns_cbranch_scc1 {ok}')
    k(f's_sleep 4\n{go2_ld}\ns_add_u32 {cnt}, {cnt}, 1\ns_cmp_lt_u32 {cnt}, {SPIN_MAX}\ns_cbranch_scc1 {lp}\ns_branch {END}\n{ok}:'); vm.reset()
    k(f'v_and_b32 {t[0]}, 1, {m}\nv_xor_b32 {t[0]}, 1, {t[0]}\nv_mul_u32_u24 {t[0]}, 1152, {t[0]}\nv_lshl_add_u32 {t[0]}, {q}, 4, {t[0]}\ns_mov_b32 {st}, {O_MODB}')
    ids = [vm.op(f'buffer_load_dwordx4 {sv.sub(4 * s, 4)}, {t[0]}, {Rws}, {st} offen offset:{64 * s} sc1') for s in range(18)]
    k(f's_lshr_b32 {j}, {s_w}, 1\ns_lshl_b32 {j}, {j}, 7\ns_and_b32 {st}, {s_w}, 1\ns_lshl_b32 {st}, {st}, 4\ns_add_u32 {j}, {j}, {st}\ns_add_u32 {j}, {j}, {SVEC}')
    k(f'v_lshrrev_b32 {t[1]}, 2, {m}\nv_and_b32 {t[2]}, 3, {m}\nv_lshlrev_b32 {t[2]}, 2, {t[2]}\nv_lshl_add_u32 {t[1]}, {t[1]}, 5, {t[2]}\nv_add_u32 {t[1]}, {j}, {t[1]}')
    for s in range(18):
        vm.wait(ids[s])
        k(f'v_mfma_f32_16x16x32_bf16 {acc}, {sv.sub(4 * s, 4)}, {fr.sub(4 * s, 4)}, {"0" if s == 0 else acc}')
    k(f'ds_write2st64_b32 {t[1]}, {acc[0]}, {acc[1]} offset0:0 offset1:1\ns_waitcnt lgkmcnt(0)\ns_barrier\ns_cmp_lg_u32 {s_w}, 0\ns_cbranch_scc1 {L_st}')
    k(f'v_add_u32 {t[0]}, {SVEC}, {l16}\nds_read_b128 {acc}, {t[0]}\nv_mul_u32_u24 {t[1]}, 2304, {q}\nv_lshl_add_u32 {t[1]}, {m}, 4, {t[1]}')
    k(f's_lshl_b32 {j}, {blkB}, 8\ns_add_u32 {j}, {j}, {O_MODF + 6 * 2304}\ns_mov_b32 exec_hi, 0\ns_waitcnt lgkmcnt(0)')
    k(f'buffer_store_dwordx4 {acc}, {t[1]}, {Rws}, {j} offen sc1\ns_mov_b64 exec, -1')
    k(f'{L_st}:\ns_branch {L_C}')
    k(f'{notw1}:'); vm.reset()
    cj.store(fr, None, Rws, dst, step, s_rot=rot)
    k(f'{L_C}:'); SP(13)
    code_prefetch(k, None, NEXT, END, 60000, 'v0', pf, pfs)
    k(f's_branch {NEXT}')

TAB, KD = 0, 17408

def conv(k, P, lane, s_w, END, NEXT, dump, SP):
    vm, lg = trackers(k)
    cidx = k.s(); s_d = k.s(); st = k.s(); st2 = k.s(); sav = k.s(2)
    k(f's_and_b32 {cidx}, s2, 7\ns_mul_i32 {cidx}, {cidx}, 18\ns_lshr_b32 {st}, s2, 3\ns_add_u32 {cidx}, {cidx}, {st}\ns_sub_u32 {cidx}, {cidx}, 14')
    k(f's_lshl_b32 {s_d}, {cidx}, 2\ns_add_u32 {s_d}, {s_d}, {s_w}\ns_lshl_b32 {st}, {cidx}, 3')
    sdt = k.s(2); sD = k.s(2)
    k(f's_load_dwordx2 {sdt}, {P["logdt"]}, {st}\ns_load_dwordx2 {sD}, {P["Dskip"]}, {st}')
    R = k.s(4); Rws = k.s(4); Rdbg = k.s(4)
    par = k.v(4); t = k.v(8); x = k.v(16)
    k(f'v_lshlrev_b32 {t[0]}, 2, {lane}\ns_lshl_b32 {st2}, {s_d}, 8')
    for i, n in enumerate(('logA', 'Aim', 'Cr', 'Ci')):
        srd(k, R, P[n], D * 128 * 2)
        ipar = vm.op(f'buffer_load_dword {par[i]}, {t[0]}, {R}, {st2} offen')
    srd(k, Rws, P['ws'], WS_USED); srd(k, Rdbg, P['dbg'], 256)
    wb = k.s(); k(f's_mul_i32 {wb}, {s_w}, {WSTR}')
    q = k.v(); m = k.v(); ag = k.v(); am = k.v(); a4 = k.v(); fl_v = k.v(2)
    k(f'v_lshrrev_b32 {q}, 4, {lane}\nv_and_b32 {m}, 15, {lane}')
    ga = k.v(32); cst = k.v()
    k(f's_add_u32 {st2}, {wb}, {KD - 2 * (134 * 128 - 128)}\nv_mov_b32 {cst}, {st2}')
    k(f'v_lshlrev_b32 {t[2]}, 3, {lane}\nv_cvt_f32_u32 {t[2]}, {t[2]}')
    for c in range(4):
        for e in range(0, 8, 2):
            k(f'v_add_f32 {t[4]}, {fl(512 * c + e)}, {t[2]}\nv_add_f32 {t[5]}, {fl(512 * c + e + 1)}, {t[2]}\nv_cvt_pk_bf16_f32 {t[4]}, {t[4]}, {t[5]}')
            k(f'v_mad_u32_u16 {ga[8 * c + e]}, {t[4]}, 2, {cst}\nv_mad_u32_u16 {ga[8 * c + e + 1]}, {t[4]}, 2, {cst} op_sel:[1,0,0,0]')
    k(f's_add_u32 {st2}, {wb}, {KD}\nv_lshl_add_u32 {t[4]}, {lane}, 4, {st2}\nv_cmp_gt_u32 vcc, 16, {lane}')
    for e in range(8): k(f'v_add_u32 {t[5]}, {2 * e}, {t[4]}\nv_cndmask_b32 {ga[e]}, {ga[e]}, {t[5]}, vcc')
    VM = vmaps()
    kda = k.v(4)
    k(f'v_lshlrev_b32 {t[2]}, 2, {m}')
    for s in range(4):
        lut = sum((VM[s][j] >> s) << (4 * j) for j in range(16))
        base = 0 if s == 0 else 128 + 128 * s
        k(f's_mov_b32 {sav[0]}, {lut & 0xffffffff}\ns_mov_b32 {sav[1]}, {lut >> 32}\nv_lshrrev_b64 {t[4:6]}, {t[2]}, {sav}\nv_and_b32 {t[4]}, 15, {t[4]}')
        k(f'v_lshl_add_u32 {t[4]}, {q}, 6, {t[4]}\ns_add_u32 {st2}, {wb}, {KD + 2 * base}\nv_lshl_add_u32 {kda[s]}, {t[4]}, 1, {st2}')
    cst.release()
    atw = k.v(); atr = k.v()
    k(f'v_lshl_add_u32 {atw}, {lane}, 3, {wb}\nv_mul_u32_u24 {atr}, 544, {m}\nv_lshl_add_u32 {atr}, {q}, 4, {atr}\nv_add_u32 {atr}, {wb}, {atr}')
    z4 = k.v(4)
    for i in range(4): k(f'v_mov_b32 {z4[i]}, 0')
    k(f'v_lshrrev_b32 {t[4]}, 5, v0\nv_mul_u32_u24 {t[4]}, {HSTR}, {t[4]}\nv_and_b32 {t[5]}, 31, v0\nv_lshl_add_u32 {t[4]}, {t[5]}, 4, {t[4]}\nv_add_u32 {t[4]}, {HB}, {t[4]}')
    k(f'v_cmp_gt_u32 vcc, 128, v0\ns_and_saveexec_b64 {sav}, vcc\nds_write_b128 {t[4]}, {z4}\ns_mov_b64 exec, {sav}')
    k('s_waitcnt lgkmcnt(0)')
    k(f's_lshl_b32 {st2}, {s_w}, 4\ns_lshr_b64 {sdt}, {sdt}, {st2}\ns_lshl_b32 {sdt[0]}, {sdt[0]}, 16')
    dt = k.v(); ks = k.v()
    k(f'v_mov_b32 {dt}, {fl(LOG2E)}\nv_mul_f32 {dt}, {sdt[0]}, {dt}\nv_exp_f32 {dt}, {dt}\nv_cvt_pk_bf16_f32 {dt}, {dt}, {dt}\nv_and_b32 {dt}, 0xffff0000, {dt}')
    SP(1); vm.wait(ipar); SP(2)
    pr = lambda: [k.v(2), k.v(2)]
    w1, w16, U = pr(), pr(), pr()
    er = k.v(2); rev = k.v(2)
    un = lambda d, s_, hi: f'v_and_b32 {d}, 0xffff0000, {s_}' if hi else f'v_lshlrev_b32 {d}, 16, {s_}'
    for md in range(2):
        k(un(er[md], par[0], md)); k(un(rev[md], par[1], md)); k(un(U[0][md], par[2], md)); k(un(U[1][md], par[3], md))
    for md in range(2): k(f'v_mul_f32 {er[md]}, {fl(LOG2E)}, {er[md]}')
    for md in range(2): k(f'v_exp_f32 {er[md]}, {er[md]}')
    k(f'v_max3_f32 {t[0]}, |{U[0][0]}|, |{U[0][1]}|, |{U[1][0]}|\nv_max_f32 {t[0]}, |{U[1][1]}|, {t[0]}')
    k(f'v_cvt_pk_bf16_f32 {t[1]}, {er[0]}, {er[1]}')
    for mm in ('quad_perm:[1,0,3,2]', 'quad_perm:[2,3,0,1]', 'row_half_mirror', 'row_mirror'):
        k(f'v_max_f32_dpp {t[0]}, {t[0]}, {t[0]} {mm} row_mask:0xf bank_mask:0xf')
    for md in range(2):
        k(un(er[md], t[1], md))
        k(f'v_mul_f32 {er[md]}, {er[md]}, {dt}\nv_mul_f32 {rev[md]}, {rev[md]}, {dt}')
        k(f'v_mul_f32 {er[md]}, {fl(-LOG2E)}, {er[md]}\nv_mul_f32 {rev[md]}, 0.15915494, {rev[md]}')
    k(f'v_readlane_b32 {st2}, {t[0]}, 0\nv_readlane_b32 {sav[0]}, {t[0]}, 16\nv_readlane_b32 {sav[1]}, {t[0]}, 32\nv_readlane_b32 {st}, {t[0]}, 48')
    k(f's_max_u32 {st2}, {st2}, {sav[0]}\ns_max_u32 {st}, {st}, {sav[1]}\ns_max_u32 {st2}, {st2}, {st}')
    for w_, mul in ((w1, None), (w16, '16.0')):
        for md in range(2):
            a, b = t[2 + md], t[4 + md]
            if mul: k(f'v_mul_f32 {a}, {fl(16.)}, {er[md]}\nv_mul_f32 {b}, {fl(16.)}, {rev[md]}\nv_fract_f32 {b}, {b}\nv_exp_f32 {a}, {a}')
            else: k(f'v_fract_f32 {b}, {rev[md]}\nv_exp_f32 {a}, {er[md]}')
            k(f'v_cos_f32 {w_[0][md]}, {b}\nv_sin_f32 {w_[1][md]}, {b}')
        for c in range(2): k(f'v_pk_mul_f32 {w_[c]}, {w_[c]}, {t[2:4]}')
    k(f'v_frexp_exp_i32_f32 {t[0]}, {st2}\nv_sub_u32 {t[1]}, 8, {t[0]}\nv_add_u32 {t[0]}, -7, {t[0]}\nv_ldexp_f32 {ks}, {dt}, {t[0]}')
    for md in range(2):
        for c in range(2): k(f'v_ldexp_f32 {U[c][md]}, {U[c][md]}, {t[1]}')
    er.release(); rev.release(); dt.release()
    tm = [k.v(2) for _ in range(4)]
    def cmul(d, z, s_, ta, tb):
        return [f'v_pk_mul_f32 {ta}, {z[1]}, {s_[1]}', f'v_pk_mul_f32 {tb}, {z[0]}, {s_[1]}',
                f'v_pk_fma_f32 {d[0]}, {z[0]}, {s_[0]}, {ta} neg_lo:[0,0,1] neg_hi:[0,0,1]', f'v_pk_fma_f32 {d[1]}, {z[1]}, {s_[0]}, {tb}']
    w32, w64, w128, w2, w4, w8, V = pr(), pr(), pr(), pr(), pr(), pr(), pr()
    for d_, s_ in ((w32, w16), (w64, w32), (w128, w64)):
        for x_ in cmul(d_, s_, s_, tm[0], tm[1]): k(x_)
    pv = [k.v(2), k.v(2)]; pu = [k.v(2), k.v(2)]
    fa = k.v(32, 4); fb = k.v(32, 4); kacc = k.v(16, 4)
    state = {'V': None, 'nv': 0, 'nu': 0}
    def v_entry(val, slot):
        out = []
        pk = pv[state['nv'] & 1]; state['nv'] += 1
        if val == 0:
            out += [f'v_mov_b32 {pk[0]}, 0x3c00', f'v_mov_b32 {pk[1]}, 0x3c00']
        else:
            if val == 1: cur = w1
            else:
                step = w1 if val <= 16 else w2 if val <= 32 else w4 if val <= 64 else w8
                cur = {2: w2, 4: w4, 8: w8}.get(val, V)
                out += cmul(cur, state['V'], step, tm[0], tm[1])
            state['V'] = cur
            out += [f'v_cvt_pk_f16_f32 {pk[md]}, {cur[0][md]}, {cur[1][md]}' for md in range(2)]
        out.append(('ds', f'ds_write_b64 {atw}, {pk} offset:{TAB + slot * 544}'))
        return out
    def u_entry(val, row):
        out = []
        pk = pu[state['nu'] & 1]; state['nu'] += 1
        if val:
            step = w16 if val <= 256 else w32 if val <= 512 else w64 if val <= 1024 else w128
            out += cmul(U, U, step, tm[2], tm[3])
        out += [f'v_cvt_pk_f16_f32 {pk[md]}, {U[0][md]}, -{U[1][md]}' for md in range(2)]
        out.append(('ds', f'ds_write_b64 {atw}, {pk} offset:{TAB + (16 + row) * 544}'))
        return out
    def put(x_):
        if isinstance(x_, tuple): return lg.op(x_[1])
        k(x_)
    pend = []
    flag_ld = f'buffer_load_dwordx2 {fl_v}, {z4[0]}, {Rdbg}, 0 offen offset:192 sc1'
    ifl = None
    for s in range(4):
        vs = sorted((VM[s][j], j) for j in range(16) if s == 0 or VM[s][j] != VM[s - 1][j])
        us = [16 * u for u in range(16)] if s == 0 else [(128 << s) + (16 << s) * u for u in range(9 if s == 3 else 8)]
        sv_ = [x_ for val, j in vs for x_ in v_entry(val, j)]
        su_ = [x_ for r_, val in enumerate(us) for x_ in u_entry(val, r_)]
        stream = interleave(sv_, su_)
        for n_, x_ in enumerate(stream):
            put(x_)
            if n_ == 27:
                while pend:
                    idr, mf = pend.pop(0); lg.wait(idr); k(mf)
            if s == 3 and n_ == 40: k(flag_ld)
        assert not pend
        for kk in range(8):
            lg.op(f'ds_read_b128 {fa.sub(4 * kk, 4)}, {atr} offset:{TAB + 16 * 544 + 64 * kk}')
            i_ = lg.op(f'ds_read_b128 {fb.sub(4 * kk, 4)}, {atr} offset:{TAB + 64 * kk}')
            ac = kacc.sub(4 * s, 4)
            pend.append((i_, f'v_mfma_f32_16x16x32_f16 {ac}, {fa.sub(4 * kk, 4)}, {fb.sub(4 * kk, 4)}, {"0" if kk == 0 else ac}'))
    for x_ in (w1, w16, w32, w64, w128, w2, w4, w8, V, U, tm, pv, pu):
        for y_ in x_: y_.release()
    md_ = k.v(16, 4); sg = md_; cnt = k.s(); mg = par.sub(0, 2); amg = par[2]
    k(f'v_lshrrev_b32 {amg}, 2, {m}\nv_cmp_eq_u32 vcc, 3, {amg}\nv_addc_co_u32 {amg}, vcc, 0, {amg}, vcc\nv_mul_u32_u24 {amg}, 4608, {amg}\nv_and_b32 {mg[0]}, 3, {m}\nv_lshl_add_u32 {amg}, {mg[0]}, 3, {amg}')
    def kd_out(s):
        ac = kacc.sub(4 * s, 4)
        for e in range(4): k(f'v_mul_f32 {ac[e]}, {ks}, {ac[e]}')
        k(f'v_cvt_pk_bf16_f32 {ac[0]}, {ac[0]}, {ac[1]}\nv_cvt_pk_bf16_f32 {ac[2]}, {ac[2]}, {ac[3]}')
        for e in range(4): lg.op(f'ds_write_b16{"_d16_hi" if e & 1 else ""} {kda[s]}, {ac[e & 2]} offset:{32 * e}')
    for s in range(3): kd_out(s)
    SP(3); lg.reset() if SP.on else None
    got = k.s()
    def x_loads():
        k(f's_lshl_b32 {st}, {cidx}, 14\ns_add_u32 {st}, {st}, {O_XT}')
        for i in range(4):
            k(f'buffer_load_dwordx4 {x.sub(4 * i, 4)}, {ag}, {Rws}, {st} offen sc1')
            if i < 3: k(f's_add_u32 {st}, {st}, 4096')
    def gran_loads():
        for i in range(4): k(f's_mov_b32 {st}, {O_STATS + 4096 * i}\nbuffer_load_dwordx4 {sg.sub(4 * i, 4)}, {ag}, {Rws}, {st} offen sc1')
        mod_loads()
    def gran_check():
        k(f's_waitcnt vmcnt(0)\nv_and_b32 {am}, {sg[1]}, {sg[3]}')
        for i in (5, 9, 13): k(f'v_bitop3_b32 {am}, {am}, {sg[i]}, {sg[i + 2]} bitop3:0x80')
        k(f'v_cmp_ne_u32 vcc, 1, {am}\ns_cmp_eq_u64 vcc, 0')
    def mod_loads():
        k(f's_lshl_b32 {st}, {cidx}, 5\ns_add_u32 {st}, {st}, {O_MODG}')
        k(f'buffer_load_dwordx2 {mg}, {amg}, {Rws}, {st} offen sc1')
    def spin(i, flag_ld):
        lp, ok = k.label('poll'), k.label('go')
        k(f'{lp}:\nv_readfirstlane_b32 {st}, {fl_v[i]}\ns_cmp_ge_u32 {st}, 1\ns_cbranch_scc1 {ok}')
        k(f's_sleep 4\n{flag_ld}\ns_add_u32 {cnt}, {cnt}, 1\ns_cmp_lt_u32 {cnt}, {SPIN_MAX}\ns_waitcnt vmcnt(0)\ns_cbranch_scc1 {lp}\ns_branch {END}\n{ok}:')
    k(f'v_lshlrev_b32 {ag}, 4, v0\nv_lshlrev_b32 {a4}, 2, v0\ns_mov_b32 {cnt}, 0\ns_waitcnt vmcnt(0)')
    spin(0, flag_ld)
    gran_loads()
    while pend:
        idr, mf = pend.pop(0); lg.wait(idr); k(mf)
    kd_out(3)
    kc = fa.sub(0, 16); pvv = fa.sub(16, 8)
    gid = [lg.op(f'ds_read_u16 {ga[e]}, {ga[e]}') for e in range(32)]
    aw = kda[0]; ap = kda[1]
    k(f'v_lshl_add_u32 {aw}, {lane}, 4, {wb}\nv_lshrrev_b32 {ap}, 1, {lane}\nv_mul_u32_u24 {ap}, 4160, {ap}\nv_and_b32 {t[1]}, 1, {lane}')
    k(f'v_lshl_add_u32 {ap}, {t[1]}, 4, {ap}\nv_add_u32 {ap}, {wb}, {ap}')
    k(f's_mov_b64 exec, 0xff'); lg.op(f'ds_write_b128 {ap}, {z4}'); k('s_mov_b64 exec, -1')
    for c in range(4):
        lg.wait(gid[8 * c + 7])
        for e in range(4): k(f'v_lshl_or_b32 {kc[4 * c + e]}, {ga[8 * c + 2 * e + 1]}, 16, {ga[8 * c + 2 * e]}')
        lg.op(f'ds_write_b128 {aw}, {kc.sub(4 * c, 4)} offset:{32 + 1024 * c}')
    ids = [lg.op(f'ds_read_b64 {pvv.sub(2 * c, 2)}, {aw} offset:{24 + 1024 * c}') for c in range(4)]
    late = k.label('late')
    gran_check()
    k(f's_cselect_b32 {got}, 1, 0\ns_cbranch_scc0 {late}')
    x_loads()
    k(f'{late}:')
    for c in range(4):
        lg.wait(ids[c])
        o = fb.sub(12 * (c & 1), 12); d_ = kc.sub(4 * c, 4); p0, p1 = pvv[2 * c], pvv[2 * c + 1]
        seq = [p0, p1, d_[0], d_[1], d_[2], d_[3]]
        o3 = o.sub(0, 4); o1 = o.sub(4, 4); o2 = o.sub(8, 4)
        for i in range(4): k(f'v_alignbit_b32 {o3[i]}, {seq[i + 1]}, {seq[i]}, 16')
        for i in range(3): k(f'v_mov_b32 {o1[i]}, {o3[i + 1]}')
        k(f'v_alignbit_b32 {o1[3]}, {seq[5]}, {seq[4]}, 16')
        for i in range(4): k(f'v_mov_b32 {o2[i]}, {seq[i + 1]}')
        for r_, oo in ((1, o1), (2, o2), (3, o3)): lg.op(f'ds_write_b128 {aw}, {oo} offset:{4160 * r_ + 32 + 1024 * c}')
    if dump:
        k(f's_lshl_b32 {st}, {s_d}, 12\ns_add_u32 {st}, {st}, {O_DBG}\nv_lshlrev_b32 {t[1]}, 4, {lane}')
        for c in range(4): vm.op(f'buffer_store_dwordx4 {kc.sub(4 * c, 4)}, {t[1]}, {Rws}, {st} offen offset:{1024 * c}')
    ga.release(); acc = k.v(32, 4); kacc.release(); ks.release(); atw.release(); atr.release()
    SP(4); lg.reset() if SP.on else None
    have = k.label('have')
    lp, ok = k.label('again'), k.label('rows')
    k(f's_cmp_lg_u32 {got}, 0\ns_cbranch_scc1 {have}\n{lp}:')
    gran_loads(); gran_check()
    k(f's_cbranch_scc1 {ok}\ns_sleep 2\ns_add_u32 {cnt}, {cnt}, 1\ns_cmp_lt_u32 {cnt}, {SPIN_MAX}\ns_cbranch_scc1 {lp}\ns_branch {END}\n{ok}:')
    x_loads()
    k(f'{have}:')
    xf = k.v(32); hf = k.v(32); st_ = k.v(16)
    for i in range(8): k(f'v_and_b32 {st_[2 * i]}, 0xffff0000, {sg[2 * i]}\nv_lshlrev_b32 {st_[2 * i + 1]}, 16, {sg[2 * i]}')
    for i in range(8): k(f'v_rcp_f32 {st_[2 * i]}, {st_[2 * i]}')
    for i in range(8): k(f'v_mul_f32 {st_[2 * i + 1]}, -{st_[2 * i + 1]}, {st_[2 * i]}')
    k('s_waitcnt vmcnt(0)')
    SP(14); lg.reset() if SP.on else None
    for i in range(16): k(f'v_lshlrev_b32 {xf[2 * i]}, 16, {x[i]}\nv_and_b32 {xf[2 * i + 1]}, 0xffff0000, {x[i]}')
    k(f'v_add_u32 {am}, {HB + 512}, {a4}')
    for j in range(16): k(f'v_pk_fma_f32 {hf.sub(2 * j, 2)}, {xf.sub(2 * j, 2)}, {st_.sub(2 * (j // 2), 2)}, {st_.sub(2 * (j // 2), 2)} op_sel:[0,0,1] op_sel_hi:[1,0,1]')
    lp, ok = k.label('gran'), k.label('got')
    k(f'{lp}:')
    k(f'v_cmp_ne_u32 vcc, 1, {mg[1]}\ns_cmp_eq_u64 vcc, 0\ns_cbranch_scc1 {ok}\ns_sleep 2')
    mod_loads()
    k(f's_add_u32 {cnt}, {cnt}, 1\ns_cmp_lt_u32 {cnt}, {SPIN_MAX}\ns_waitcnt vmcnt(0)\ns_cbranch_scc1 {lp}\ns_branch {END}\n{ok}:')
    for i in range(16): k(f'v_mov_b32_dpp {md_[i]}, {mg[0]} row_newbcast:{i} row_mask:0xf bank_mask:0xf')
    SP(5)
    for i in range(4):
        for j in range(4 * i, 4 * i + 4): k(f'v_pk_fma_f32 {hf.sub(2 * j, 2)}, {hf.sub(2 * j, 2)}, {md_.sub(4 + 2 * (j & 1), 2)}, {md_.sub(2 * (j & 1), 2)}')
        for c in range(4): k(f'v_cvt_pk_bf16_f32 {x[4 * i + c]}, {hf[8 * i + c]}, {hf[8 * i + 4 + c]}')
        for c in range(4): lg.op(f'ds_write_b32 {am}, {x[4 * i + c]} offset:{HSTR * c + 1024 * i}')
    st_.release()
    aA = kda[2]; aB = kda[3]
    k(f'v_bfe_u32 {t[0]}, {lane}, 2, 2\nv_mul_u32_u24 {aA}, 4160, {t[0]}\nv_and_b32 {t[0]}, 3, {lane}\nv_lshl_add_u32 {aA}, {t[0]}, 3, {aA}')
    k(f'v_lshlrev_b32 {t[0]}, 4, {q}\nv_sub_u32 {aA}, {aA}, {t[0]}\ns_add_u32 {st}, {wb}, 56\nv_add_u32 {aA}, {st}, {aA}')
    k(f's_mul_i32 {st}, {s_w}, {HSTR}\ns_add_u32 {st}, {st}, {HB + 480}\nv_lshl_add_u32 {aB}, {m}, 5, {t[0]}\nv_add_u32 {aB}, {st}, {aB}')
    lg.all(); k('s_barrier'); SP(6)
    fa2 = k.a(32, 4); fb2 = k.a(32, 4)
    sets = [(fa, fb), (fa2, fb2)]
    k(f'v_add_u32 {aB}, -448, {aB}')
    def reads(r_):
        A_, B_ = sets[r_ & 1]; out = []
        for i in range(8):
            out.append(f'ds_read_b128 {B_.sub(4 * i, 4)}, {aB} offset:{448 - 64 * r_ + 512 * i}')
            out.append(f'ds_read_b64_tr_b16 {A_.sub(4 * i, 2)}, {aA} offset:{64 * r_ + 8 + 512 * i}')
            out.append(f'ds_read_b64_tr_b16 {A_.sub(4 * i + 2, 2)}, {aA} offset:{64 * r_ + 512 * i}')
        return out
    jm = k.s(); l16 = k.v()
    k(f's_lshr_b32 {jm}, s2, 5\ns_sub_u32 {jm}, {jm}, 2\nv_lshlrev_b32 {l16}, 4, {lane}')
    pd = PairDma(k, s_w, jm, O_W1F, Rws, l16, W1_AT)
    early = [g for P_ in range(5) for g in pd.ops(P_)]
    flag_ld = f'buffer_load_dwordx2 {fl_v}, {z4[0]}, {Rdbg}, 0 offen offset:200 sc1'
    cur = [lg.op(x_) for x_ in reads(0)]
    for r_ in range(8):
        rd = reads(r_ + 1) if r_ < 7 else []
        A_, B_ = sets[r_ & 1]; nxt = []
        order = [(i, tt) for i in range(8) for tt in range(i, 8)] if r_ else sorted(((i, tt) for i in range(8) for tt in range(i, 8)), key=lambda p: (max(p[0], p[1] - p[0]), p))
        seen = set()
        if r_ == 1: k(flag_ld)
        if r_ == 3: k('s_waitcnt vmcnt(0)'); spin(0, flag_ld)
        for n_, (i, tt) in enumerate(order):
            lg.wait(max(cur[3 * i + 2], cur[3 * (tt - i)]))
            first = r_ == 0 and tt not in seen; seen.add(tt)
            k(f'v_mfma_f32_16x16x32_bf16 {acc.sub(4 * tt, 4)}, {A_.sub(4 * i, 4)}, {B_.sub(4 * (tt - i), 4)}, {"0" if first else acc.sub(4 * tt, 4)}')
            if rd: nxt.append(lg.op(rd.pop(0)))
            if r_ >= 3 and n_ >= 24 and n_ % 3 == 0 and early:
                for x_ in early.pop(0): k(x_)
        cur = nxt
    assert not early
    SP(7)
    k(f'v_lshlrev_b32 {t[0]}, 3, {q}\nv_lshl_add_u32 {t[0]}, {m}, 5, {t[0]}\nv_add_u32 {t[0]}, {wb}, {t[0]}')
    for tt in range(8):
        o = fa.sub(2 * tt, 2)
        k(f'v_cvt_pk_bf16_f32 {o[0]}, {acc[4 * tt]}, {acc[4 * tt + 1]}\nv_cvt_pk_bf16_f32 {o[1]}, {acc[4 * tt + 2]}, {acc[4 * tt + 3]}')
        k(f'ds_write_b64 {t[0]}, {o} offset:{512 * tt}')
    dv = t.sub(4, 4)
    k(f's_lshl_b32 {st}, {sD[0]}, 16\ns_and_b32 {st2}, {sD[0]}, 0xffff0000\nv_mov_b32 {dv[0]}, {st}\nv_mov_b32 {dv[1]}, {st2}')
    k(f's_lshl_b32 {st}, {sD[1]}, 16\ns_and_b32 {st2}, {sD[1]}, 0xffff0000\nv_mov_b32 {dv[2]}, {st}\nv_mov_b32 {dv[3]}, {st2}')
    k('s_waitcnt lgkmcnt(0)\ns_barrier')
    lg.reset()
    yp = fb.sub(0, 16); yf = acc; o = fa
    ids = [[lg.op(f'ds_read_b32 {yp[4 * i + c]}, {a4} offset:{WSTR * c + 1024 * i}') for c in range(4)] for i in range(4)]
    k(f's_lshl_b32 {st}, {cidx}, 15\ns_lshl_b32 {st2}, {s_w}, 11\ns_add_u32 {st}, {st}, {st2}\ns_add_u32 {st}, {st}, {O_X2}')
    k(f's_add_u32 {st2}, {wb}, 4096\nv_lshl_add_u32 {am}, {lane}, 5, {st2}\nv_lshl_add_u32 {a4}, {lane}, 4, {st2}\nv_lshlrev_b32 {ag}, 4, {lane}')
    odd, fin = k.label('odd'), k.label('fin')
    for i in range(4):
        lg.wait(ids[i][3])
        for c in range(4): k(f'v_lshlrev_b32 {yf[8 * i + c]}, 16, {yp[4 * i + c]}\nv_and_b32 {yf[8 * i + 4 + c]}, 0xffff0000, {yp[4 * i + c]}')
        for j in range(4 * i, 4 * i + 4): k(f'v_pk_fma_f32 {yf.sub(2 * j, 2)}, {hf.sub(2 * j, 2)}, {dv.sub(2 * (j & 1), 2)}, {yf.sub(2 * j, 2)}')
        for j in range(4 * i, 4 * i + 4): k(f'v_pk_fma_f32 {yf.sub(2 * j, 2)}, {yf.sub(2 * j, 2)}, {md_.sub(8 + 2 * (j & 1), 2)}, {xf.sub(2 * j, 2)}')
        for j in range(4 * i, 4 * i + 4): k(f'v_pk_mul_f32 {xf.sub(2 * j, 2)}, {yf.sub(2 * j, 2)}, {md_.sub(12 + 2 * (j & 1), 2)}')
    k(f's_bitcmp1_b32 {cidx}, 0\ns_cbranch_scc1 {odd}')
    for par_ in range(2):
        A_, B_ = (yf, xf) if par_ == 0 else (xf, yf)
        for r_ in range(8):
            for c in range(2):
                k(f'v_cvt_pk_bf16_f32 {o[4 * r_ + c]}, {A_[4 * r_ + 2 * c]}, {A_[4 * r_ + 2 * c + 1]}')
                k(f'v_cvt_pk_bf16_f32 {o[4 * r_ + 2 + c]}, {B_[4 * r_ + 2 * c]}, {B_[4 * r_ + 2 * c + 1]}')
            k(f'ds_write_b128 {am}, {o.sub(4 * r_, 4)} offset:{2048 * (r_ >> 1) + 16 * (r_ & 1)}')
        if par_ == 0: k(f's_branch {fin}\n{odd}:')
    k(f'{fin}:'); lg.reset()
    ids = [lg.op(f'ds_read_b128 {fb.sub(4 * r_, 4)}, {a4} offset:{1024 * r_}') for r_ in range(8)]
    for r_ in range(8):
        lg.wait(ids[r_])
        k(f'buffer_store_dwordx4 {fb.sub(4 * r_, 4)}, {ag}, {Rws}, {st} offen offset:{1024 * (r_ & 1)} sc1')
        if r_ & 1 and r_ < 7: k(f's_add_u32 {st}, {st}, 8192')
```

```python
from common import *

K2_LDS = LDS_BYTES
T_B, T_F = TABS, TABS + 7168
XBUF, HBUF = 0, 73728
X1C, PSTL = 147456, 147456 + 9216
SPIN_MAX = 40000
GC1 = -2.0 * LOG2E * 0.7978845608028654
GC2 = GC1 * 0.044715
PI = [0, 1, 2, 5, 6, 7, 9, 10, 11, 14, 15, 16, 3, 12, 4, 8, 13, 17]
MF = 'v_mfma_f32_16x16x32_bf16'

def un(d, s_, hi): return f'v_and_b32 {d}, 0xffff0000, {s_}' if hi else f'v_lshlrev_b32 {d}, 16, {s_}'

def gelu_consts(k, sig, c):
    k(f'v_mov_b32 {c[2]}, {sig}\nv_rcp_f32 {c[0]}, {sig}')
    k(f'v_mul_f32 {c[1]}, {c[0]}, {c[0]}\nv_mul_f32 {c[1]}, {c[1]}, {c[0]}')
    k(f'v_mul_f32 {c[0]}, {fl(GC1)}, {c[0]}\nv_mul_f32 {c[1]}, {fl(GC2)}, {c[1]}')

def phase2(k, P, lane, s_w, END, SP, opt=()):
    stamps = SP.on
    WFL = ' sc1'
    PFL = ' '.join(o[2:] for o in opt if o.startswith('p_')) or 'sc1'
    q = k.v(); m = k.v(); l16 = k.v(); one = k.v(); zero = k.v(); fv4 = k.v(8, 4)
    Rws = k.s(4); RG = k.s(4); RW = k.s(4)
    srd(k, RG, P['dbg'], 256)
    k(f'v_mov_b32 {one}, 1\nv_mov_b32 {zero}, 0')
    go_ld = f'buffer_load_dwordx4 {fv4[0:4]}, {zero}, {RG}, 0 offen offset:192 sc1'
    k(go_ld)
    k(f'v_lshrrev_b32 {q}, 4, {lane}\nv_and_b32 {m}, 15, {lane}\nv_lshlrev_b32 {l16}, 4, {lane}')
    rb = k.s(); jm = k.s(); mb = k.s(); fs = k.s(); st = k.s(); st1 = k.s(); sav = k.s(2); cnt = k.s(); mt = k.s()
    k(f's_and_b32 {st}, s2, 1\ns_lshl_b32 {mb}, {st}, 4\ns_bfe_u32 {st}, s2, 0x20001\ns_lshl_b32 {fs}, {st}, 1\ns_lshl_b32 {rb}, {st}, 2\ns_add_u32 {rb}, {rb}, {mb}')
    k(f's_bfe_u32 {st}, s2, 0x20003\ns_add_u32 {rb}, {rb}, {st}\ns_lshr_b32 {jm}, s2, 5\ns_sub_u32 {jm}, {jm}, 2')
    k(f's_bfe_u32 {st}, s2, 0x40003\ns_add_u32 {mb}, {mb}, {st}\ns_lshr_b32 {st}, s2, 7\ns_add_u32 {fs}, {fs}, {st}')
    if 'a4' in opt:
        k(f's_and_b32 {mb}, s2, 3\ns_lshl_b32 {mb}, {mb}, 3\ns_bfe_u32 {st}, s2, 0x30003\ns_add_u32 {mb}, {mb}, {st}')
        k(f's_bfe_u32 {fs}, s2, 0x10002\ns_lshl_b32 {fs}, {fs}, 2\ns_lshr_b32 {st}, s2, 6\ns_add_u32 {fs}, {fs}, {st}')
    if 'a1' in opt: k(f's_lshr_b32 {mb}, s2, 3\ns_and_b32 {fs}, s2, 7')
    if 'a8' in opt:
        k(f's_and_b32 {mb}, s2, 7\ns_lshl_b32 {mb}, {mb}, 2\ns_bfe_u32 {st}, s2, 0x20003\ns_add_u32 {mb}, {mb}, {st}\ns_lshr_b32 {fs}, s2, 5')
    k(f's_lshl_b32 {mt}, {rb}, 2\ns_add_u32 {mt}, {mt}, {s_w}\ns_mov_b32 {cnt}, 0')
    srd(k, Rws, P['ws'], WS_USED); srd(k, RW, P['ws'], WS_USED)
    vm, lg = trackers(k)
    def STAMP(i, g4=False):
        mode = 'g4st' if 'g4st' in opt else 'g3st' if 'g3st' in opt else False
        if stamps and (g4 == mode or (i not in (1, 2, 3, 4, 5) and not g4)): SP(i); lg.reset()
    def flag_add(s_idx, base):
        k(f's_lshl_b32 {st}, {s_idx}, 7\ns_add_u32 {st}, {st}, {base}\ns_mov_b64 exec, 1')
        vm.op(f'buffer_atomic_add {one}, {zero}, {Rws}, {st} offen sc1')
        k('s_mov_b64 exec, -1')
    def poll(vaddr, base, target, sleep=0, fv=None):
        own = fv is None; fv = fv or k.v(); lp, ok = k.label('poll'), k.label('ok')
        k(f's_mov_b32 {st1}, {base}\n{lp}:\nbuffer_load_dword {fv}, {vaddr}, {Rws}, {st1} offen sc1\ns_waitcnt vmcnt(0)')
        k(f'v_cmp_gt_u32 vcc, {target}, {fv}\ns_cmp_eq_u64 vcc, 0\ns_cbranch_scc1 {ok}')
        if sleep: k(f's_sleep {sleep}')
        k(f's_add_u32 {cnt}, {cnt}, 1\ns_cmp_lt_u32 {cnt}, {SPIN_MAX}\ns_cbranch_scc1 {lp}\ns_branch {END}\n{ok}:')
        vm.reset()
        if own: fv.release()
    W = [k.a(72, 4), k.a(72, 4)]; vo = [l16] + [k.v() for _ in range(4)]
    for g in range(1, 5): k(f'v_add_u32 {vo[g]}, {4096 * g}, {l16}')
    sn = k.s(); s4 = k.s()
    k(f's_lshl_b32 {sn}, {fs}, 2\ns_add_u32 {sn}, {sn}, {s_w}\ns_mul_i32 {sn}, {sn}, {9 * 18432}\ns_add_u32 {s4}, {sn}, {O_W4F}\ns_add_u32 {sn}, {sn}, {O_W3F}')
    wld = lambda r_, ks: f'buffer_load_dwordx4 {W[r_].sub(4 * ks, 4)}, {vo[ks // 4]}, {RW}, {sn} offen offset:{1024 * (ks % 4)}' + WFL
    sm = k.s(); so = k.s()
    k(f's_lshl_b32 {sm}, {s_w}, 10')
    def spin(ld, regs, sleep=16):
        lp, ok = k.label('spin'), k.label('up')
        k(f'{lp}:\ns_waitcnt vmcnt(0)\nv_mov_b32 {fv4[7]}, {regs[0]}')
        for r_ in regs[1:]: k(f'v_and_b32 {fv4[7]}, {fv4[7]}, {r_}')
        k(f'v_readfirstlane_b32 {st}, {fv4[7]}\ns_cmp_lg_u32 {st}, 0\ns_cbranch_scc1 {ok}')
        k(f's_sleep {sleep}\n{ld}\ns_add_u32 {cnt}, {cnt}, 1\ns_cmp_lt_u32 {cnt}, {SPIN_MAX}\ns_cbranch_scc1 {lp}\ns_branch {END}\n{ok}:')
    RB = k.v(24, 4)
    keepV, keepA, keepS = list(k.V.free), list(k.A.free), list(k.S.free)
    XX = k.v(146, 2); t = k.v(8); row = k.v()
    pd1 = PairDma(k, s_w, jm, O_W1F, Rws, l16, W1_AT)
    k(f's_lshl_b32 {st}, {s_w}, 6\nv_add_u32 {t[2]}, {st}, {lane}')
    k(f'v_cmp_le_u32 vcc, 72, {t[2]}\nv_subrev_u32 {t[3]}, 72, {t[2]}\nv_cndmask_b32 {t[3]}, {t[2]}, {t[3]}, vcc\nv_add_u32 {t[3]}, 72, {t[3]}')
    k(f'v_cmp_le_u32 vcc, 144, {t[2]}\nv_subrev_u32 {t[4]}, 144, {t[2]}\nv_cndmask_b32 {t[3]}, {t[3]}, {t[4]}, vcc')
    k(f'v_cmp_le_u32 vcc, 216, {t[2]}\nv_subrev_u32 {t[4]}, 216, {t[2]}\nv_cndmask_b32 {t[3]}, {t[3]}, {t[4]}, vcc\nv_lshlrev_b32 {t[3]}, 4, {t[3]}')
    k(f'v_add_u32 {t[4]}, 40, {lane}\nv_lshlrev_b32 {t[4]}, 4, {t[4]}\nv_mul_u32_u24 {t[5]}, 43691, {t[2]}\nv_lshrrev_b32 {t[5]}, 20, {t[5]}\nv_mul_u32_u24 {t[6]}, 120, {t[5]}')
    k(f'v_add_u32 {t[6]}, {t[6]}, {t[2]}\nv_lshlrev_b32 {t[6]}, 4, {t[6]}')
    pd = PairDma(k, s_w, jm, O_W2F, Rws, l16, W2_AT)
    k(f's_lshl_b32 {st}, {mt}, 4\nv_add_u32 {row}, {st}, {m}')
    k(f'v_lshlrev_b32 {t[0]}, 16, {q}\nv_lshl_add_u32 {t[0]}, {row}, 4, {t[0]}\nv_add_u32 {t[1]}, 0x8000, {t[0]}')
    ones = k.v(4, 4); sacc = k.v(4, 4); gacc = k.v(4, 4); tacc = k.v(4, 4); qacc = k.v(4, 4); acc = k.v(24, 4)
    for i in range(4): k(f'v_mov_b32 {ones[i]}, 0x3f803f80')
    msk = [k.s(2) for _ in range(3)]; bidx = k.v()
    k(f'v_and_b32 {t[2]}, 3, {m}')
    for e in range(3): k(f'v_cmp_eq_u32 {msk[e]}, {e + 1}, {t[2]}')
    aT = k.v(); aW = [l16, k.v(), k.v()]
    k(f'v_min_u32 {t[2]}, 2, {t[2]}\nv_mul_u32_u24 {aT}, 2304, {t[2]}\nv_lshl_add_u32 {aT}, {q}, 4, {aT}\ns_mul_i32 {st}, {jm}, 192\ns_add_u32 {st}, {st}, {T_B}\nv_add_u32 {aT}, {st}, {aT}')
    k(f'v_lshrrev_b32 {t[2]}, 2, {m}\nv_lshl_add_u32 {t[2]}, {t[2]}, 4, {m}\nv_lshlrev_b32 {bidx}, 2, {t[2]}')
    k(f'v_add_u32 {aW[1]}, 0xf000, {l16}\nv_add_u32 {aW[2]}, 0x1e000, {l16}')
    k(f'v_lshlrev_b32 {t[2]}, 4, v0\nv_add_u32 {t[2]}, {T_B}, {t[2]}')
    spin(go_ld, [fv4[0]])
    k('s_waitcnt lgkmcnt(0)\ns_barrier')
    STAMP(15)
    na, nb = k.label('noarr'), k.label('notlast')
    k(f's_cmp_lg_u32 {s_w}, 0\ns_cbranch_scc1 {na}\ns_and_b32 {st1}, s2, 3\ns_lshl_b32 {st}, {st1}, 7\ns_add_u32 {st}, {st}, {O_FA}\ns_mov_b64 exec, 1')
    k(f'v_mov_b32 {fv4[4]}, 1\nbuffer_atomic_add {fv4[4]}, {zero}, {Rws}, {st} offen sc0 sc1\ns_lshl_b32 {st1}, {st1}, 2\ns_waitcnt vmcnt(0)')
    k(f'v_readfirstlane_b32 {st}, {fv4[4]}\ns_cmp_lg_u32 {st}, 63\ns_cbranch_scc1 {nb}')
    k(f'buffer_store_dword {one}, {zero}, {RG}, {st1} offen offset:208 sc1\n{nb}:\ns_mov_b64 exec, -1\n{na}:')
    go3_ld = f'buffer_load_dwordx4 {fv4[0:4]}, {zero}, {RG}, 0 offen offset:208 sc1'
    k('s_cmp_lt_u32 s2, 64\ns_cbranch_scc1 k2_idle')

    w0, w5, wj = k.label('havew1'), k.label('rest'), k.label('joined')
    spin(go_ld, [fv4[1], fv4[2], fv4[3]])
    k(f's_add_u32 m0, {sm}, {T_B + 2304}\ns_mov_b32 {st1}, {O_MODB}\nbuffer_load_dwordx4 {t[3]}, {Rws}, {st1} offen sc1 lds')
    k(f's_mov_b32 m0, {T_B + 2304 + 4096}\ns_mov_b32 exec_hi, 0\nbuffer_load_dwordx4 {t[4]}, {Rws}, {st1} offen sc1 lds\ns_mov_b64 exec, -1')
    k(f's_cmp_ge_u32 s2, 112\ns_cbranch_scc1 {w0}')
    for P_ in range(5):
        for g in pd1.ops(P_):
            for x_ in g: k(x_)
    k(f's_waitcnt vmcnt(0)\n{w0}:\ns_barrier\ns_cmp_eq_u32 {s_w}, 0\ns_cbranch_scc1 {w5}')
    k(f's_lshl_b32 {pd1.t}, {s_w}, 11\ns_sub_u32 {pd1.t}, {pd1.t}, 2048\ns_mul_i32 {pd1.src}, {jm}, 110592\ns_add_u32 {pd1.src}, {pd1.src}, {pd1.t}\ns_add_u32 {pd1.src}, {pd1.src}, {O_W1F + 61440}')
    for sl_i in range(10, 18):
        k(f's_add_u32 m0, {pd1.t}, {W1_AT[sl_i]}\nbuffer_load_dwordx4 {l16}, {Rws}, {pd1.src} offen sc1 lds')
        k(f'buffer_load_dwordx4 {l16}, {Rws}, {pd1.src} offen offset:1024 sc1 lds')
        if sl_i < 17: k(f's_add_u32 {pd1.src}, {pd1.src}, 6144')
    k(f'{w5}:')
    pd1.release()
    k(f'v_cmp_gt_u32 vcc, 144, v0\ns_and_saveexec_b64 {sav}, vcc\nds_write_b128 {t[2]}, {ones}\ns_mov_b64 exec, {sav}')
    w2ops = [g for P_ in range(9) for g in pd.ops(P_)]
    def w2dma():
        for x_ in w2ops.pop(0): vm.op(x_) if x_.startswith('buffer') else k(x_)
    ix = []
    def issue(i):
        k(f's_lshl_b32 {st}, {st1}, 18\ns_add_u32 {st}, {st}, {O_X2}')
        vm.op(f'buffer_load_dwordx4 {XX.sub(8 * i, 4)}, {t[0]}, {Rws}, {st} offen sc1')
        ix.append(vm.op(f'buffer_load_dwordx4 {XX.sub(8 * i + 4, 4)}, {t[1]}, {Rws}, {st} offen sc1'))
        if i < 17: k(f's_add_u32 {st1}, {st1}, 1\ns_cmp_eq_u32 {st1}, 18\ns_cselect_b32 {st1}, 0, {st1}')
    lds_at = lambda a_: f'{aW[a_ // 0xf000]} offset:{a_ % 0xf000}'
    TF = W[1]; WR = [k.a(24, 4), k.a(24, 4)]
    def w_reads(i):
        return [f'ds_read_b128 {WR[i & 1].sub(4 * tt, 4)}, {lds_at(W1_AT[i] + 1024 * tt)}' for tt in range(6)]
    k(f's_cmp_lg_u32 {s_w}, 0\ns_cbranch_scc1 {wj}\n{go3_ld}')
    spin(go3_ld, [fv4[i] for i in range(4)], 2)
    k(f'{wj}:\ns_mul_i32 {st1}, {jm}, 3\ns_mul_i32 {so}, {jm}, 384\ns_add_u32 {so}, {so}, {O_MOD2}\ns_waitcnt vmcnt(16) lgkmcnt(0)\ns_barrier'); vm.reset(); lg.reset()
    STAMP(0)
    nis = 5
    for i in range(nis): issue(i)
    itf = [lg.op(f'ds_read_b128 {TF.sub(4 * i, 4)}, {aT} offset:{64 * i}') for i in range(18)]
    iwr = [lg.op(x_) for x_ in w_reads(0)]
    for i in range(18):
        lg.wait(itf[i]); k(f'{MF} {acc[4:8]}, {TF.sub(4 * i, 4)}, {TF.sub(4 * i, 4)}, {"0" if i == 0 else acc[4:8]}')
    cs = k.s(5, 1)
    for n_, (e, j_) in enumerate(((0, 1), (0, 2), (1, 1), (1, 2), (2, 2))): k(f'v_readlane_b32 {cs[n_]}, {acc[4 + e]}, {j_}')
    n2 = 0
    for i in range(18):
        if i == 9: vm.wait(itab)
        if i in (9, 13): k('s_barrier')
        if i == 1: STAMP(1)
        xg = XX.sub(8 * i + 2, 4); xr = XX.sub(8 * i - 2, 4) if i else None
        c_ = lambda r_, first: '0' if first else r_
        M = [(iwr[tt], f'{MF} {acc.sub(4 * tt, 4)}, {WR[i & 1].sub(4 * tt, 4)}, {xg}, {c_(acc.sub(4 * tt, 4), i == 0)}') for tt in range(6)]
        S_ = [f'{MF} {tacc}, {TF.sub(4 * i, 4)}, {xg}, {c_(tacc, i == 0)}', f'{MF} {qacc}, {xg}, {xg}, {c_(qacc, i == 0)}']
        if i: S_ += [f'{MF} {sacc}, {ones}, {xr}, {c_(sacc, i == 1)}', f'{MF} {gacc}, {xr}, {xr}, {c_(gacc, i == 1)}']
        Rd = w_reads(i + 1) if i < 17 else []
        vm.wait(ix[i])
        if i == 0: k(f'v_mov_b32 {XX[144]}, {XX[0]}\nv_mov_b32 {XX[145]}, {XX[1]}')
        nxt = []
        for x_ in S_:
            k(x_)
            if Rd: nxt.append(lg.op(Rd.pop(0)))
        for idr, mm in M:
            lg.wait(idr); k(mm)
            if Rd: nxt.append(lg.op(Rd.pop(0)))
        iwr = nxt
        if i == 4:
            k(f's_add_u32 m0, {sm}, {T_F}')
            itab = vm.op(f'buffer_load_dwordx4 {t[6]}, {Rws}, {so} offen sc1 lds')
        if nis < 18:
            for _ in range(2 if nis < i + 9 else 1):
                if nis < 18: issue(nis); nis += 1
        else:
            for _ in range(3):
                if n2 < (18 if i < 13 else 27): w2dma(); n2 += 1
    assert n2 == 27
    xr = XX.sub(142, 4)
    k(f'{MF} {sacc}, {ones}, {xr}, {sacc}\n{MF} {gacc}, {xr}, {xr}, {gacc}')
    STAMP(2)
    k.inject([lambda ks=ks: vm.op(wld(0, ks)) for ks in PI], 9)
    TB = [XX.sub(24, 16), XX.sub(40, 16)]; uu = XX.sub(56, 48)
    k(f'v_lshlrev_b32 {aT}, 5, {q}\nv_add_u32 {aT}, {T_F}, {aT}')
    tf_read = lambda dst, r_, e: f'ds_read_b128 {dst}, {aT} offset:{384 * r_ + 128 * (e >> 1) + 16 * (e & 1)}'
    def diag(d, g_):
        k(f'v_cndmask_b32 {d}, {g_[0]}, {g_[1]}, {msk[0]}\nv_cndmask_b32 {d}, {d}, {g_[2]}, {msk[1]}\nv_cndmask_b32 {d}, {d}, {g_[3]}, {msk[2]}')
        return lg.op(f'ds_bpermute_b32 {d}, {bidx}, {d}')
    i2 = diag(t[2], qacc); i1 = diag(t[1], gacc)
    iu = [lg.op(tf_read(uu.sub(24 * r_ + 4 * e, 4), 3 + r_, e)) for e in range(6) for r_ in range(2)]
    s1 = XX.sub(140, 2); gc = XX.sub(136, 4)
    k(f'v_mov_b32 {t[0]}, {sacc[0]}'); lg.wait(i1)
    sigma_bf16(k, t[0], t[1])
    k(f'v_cvt_pk_bf16_f32 {t[0]}, {t[0]}, {t[1]}\nv_and_b32 {s1[0]}, 0xffff0000, {t[0]}\nv_lshlrev_b32 {s1[1]}, 16, {t[0]}')
    k(f'v_rcp_f32 {s1[0]}, {s1[0]}\nv_mov_b32 {t[3]}, {cs[1]}\nv_mov_b32 {t[4]}, {cs[3]}\nv_mul_f32 {s1[1]}, -{s1[1]}, {s1[0]}')
    k(f'v_fma_f32 {t[3]}, {s1[1]}, {cs[0]}, {t[3]}\nv_fma_f32 {t[0]}, {s1[0]}, {tacc[0]}, {t[3]}')
    k(f'v_fma_f32 {t[3]}, {s1[1]}, {tacc[1]}, {tacc[2]}\nv_add_f32 {t[3]}, {t[3]}, {t[3]}\nv_fma_f32 {t[3]}, {s1[0]}, {t[2]}, {t[3]}')
    k(f'v_add_f32 {t[4]}, {t[4]}, {t[4]}\nv_fma_f32 {t[4]}, {s1[1]}, {cs[2]}, {t[4]}\nv_mov_b32 {t[5]}, {cs[4]}\nv_fma_f32 {t[4]}, {s1[1]}, {t[4]}, {t[5]}')
    k(f'v_fma_f32 {t[1]}, {s1[0]}, {t[3]}, {t[4]}')
    sigma_bf16(k, t[0], t[1])
    k(f'v_cvt_pk_bf16_f32 {t[1]}, {t[1]}, {t[1]}\nv_and_b32 {t[1]}, 0xffff0000, {t[1]}')
    gelu_consts(k, t[1], gc)
    k(f's_mul_i32 {st}, {jm}, {3 * GPL}\ns_lshl_b32 {so}, {mt}, 10\ns_add_u32 {st}, {st}, {so}\ns_add_u32 {st}, {st}, {O_G + 1024}')
    lg.all()
    for e in range(12): k(f'v_pk_fma_f32 {uu.sub(2 * e, 2)}, {uu.sub(2 * e, 2)}, {s1}, {uu.sub(24 + 2 * e, 2)} op_sel:[0,1,0] op_sel_hi:[1,1,1]')
    for e in range(12): k(f'v_pk_fma_f32 {acc.sub(2 * e, 2)}, {acc.sub(2 * e, 2)}, {s1}, {uu.sub(2 * e, 2)} op_sel_hi:[1,0,1]')
    tt_ = TB[0]; go = TB[1]
    for Pp in range(3):
        a = acc.sub(8 * Pp, 8); u = tt_.sub(0, 8)
        for e in range(4): k(f'v_pk_mul_f32 {u.sub(2 * e, 2)}, {a.sub(2 * e, 2)}, {a.sub(2 * e, 2)}')
        for e in range(4): k(f'v_pk_fma_f32 {u.sub(2 * e, 2)}, {u.sub(2 * e, 2)}, {gc[0:2]}, {gc[0:2]} op_sel:[0,1,0] op_sel_hi:[1,1,0]')
        for e in range(4): k(f'v_pk_mul_f32 {u.sub(2 * e, 2)}, {u.sub(2 * e, 2)}, {a.sub(2 * e, 2)}')
        for e in range(8): k(f'v_exp_f32 {u[e]}, {u[e]}')
        for e in range(4): k(f'v_pk_fma_f32 {u.sub(2 * e, 2)}, {u.sub(2 * e, 2)}, {gc[2:4]}, {gc[2:4]} op_sel_hi:[1,0,0]')
        for e in range(8): k(f'v_rcp_f32 {u[e]}, {u[e]}')
        for e in range(4): k(f'v_pk_mul_f32 {u.sub(2 * e, 2)}, {u.sub(2 * e, 2)}, {a.sub(2 * e, 2)}')
        o = go.sub(4 * Pp, 4)
        for e in range(4): k(f'v_cvt_pk_bf16_f32 {o[e]}, {u[2 * e]}, {u[2 * e + 1]}')
        if Pp == 2: k.flush_inject()
        ig = vm.op(f'buffer_store_dwordx4 {o}, {l16}, {Rws}, {st} offen sc1')
        if Pp < 2: k(f's_add_u32 {st}, {st}, {GPL}')
    h2f = uu.sub(0, 24); x2f = XX.sub(104, 24); gbv = RB
    xsrc = lambda e: XX[8 * (e // 8) + (0, 1, 6, 7)[(e % 8) // 2]]
    ig_ = [lg.op(tf_read(gbv.sub(4 * e, 4), 1, e)) for e in range(6)]
    is_ = [lg.op(tf_read(uu.sub(24 + 4 * e, 4), 0, e)) for e in range(6)]
    for e in range(24): k(un(x2f[e], xsrc(e), e & 1))
    dl = [XX[128 + i] for i in range(6)]
    k(f'v_cmp_gt_u32 vcc, 2, {q}')
    for g, dlt in enumerate((-1, 1, -2, 2)):
        k(f'v_add_u32 {dl[4]}, {16 + dlt}, {row}\nv_lshrrev_b32 {dl[5]}, 4, {dl[4]}\nv_and_b32 {dl[4]}, 15, {dl[4]}\nv_lshlrev_b32 {dl[4]}, 4, {dl[4]}')
        k(f'v_lshl_add_u32 {dl[4]}, {dl[5]}, 10, {dl[4]}\nv_lshl_add_u32 {dl[g]}, {q}, 8, {dl[4]}')
    k(f'v_cndmask_b32 {dl[4]}, {dl[1]}, {dl[0]}, vcc\nv_cndmask_b32 {dl[5]}, {dl[3]}, {dl[2]}, vcc')
    pa = XX[134]
    k(f'v_min_u32 {pa}, 2, {lane}\nv_add_u32 {pa}, {mt}, {pa}\nv_add_u32 {pa}, -1, {pa}\nv_max_i32 {pa}, 0, {pa}\nv_min_u32 {pa}, 127, {pa}\nv_lshlrev_b32 {pa}, 7, {pa}')
    vm.wait(ig)
    flag_add(mt, O_FC)
    STAMP(3)
    k(f's_add_u32 {sn}, {sn}, 18432')
    for e in range(12): k(f'v_pk_fma_f32 {h2f.sub(2 * e, 2)}, {x2f.sub(2 * e, 2)}, {s1}, {s1} op_sel:[0,0,1] op_sel_hi:[1,0,1]')
    lg.all()
    for e in range(12): k(f'v_pk_fma_f32 {h2f.sub(2 * e, 2)}, {h2f.sub(2 * e, 2)}, {gbv.sub(2 * e, 2)}, {uu.sub(24 + 2 * e, 2)}')
    NPRE = 5
    k('s_barrier')
    WP = [WR[0], WR[1], k.a(24, 4), k.a(24, 4), XX.sub(0, 24)]
    w2_addr = lambda i, tt: lds_at(W2_AT[i] + 1024 * tt)
    for i in range(NPRE):
        for tt in range(6): lg.op(f'ds_read_b128 {WP[i].sub(4 * tt, 4)}, {w2_addr(i, tt)}')
    poll(pa, O_FC, 6)
    STAMP(4)
    GF = TF
    sel = lambda s: dl[4] if s == 4 else dl[5] if s == 13 else dl[(2 * s) // 9]
    ig = []
    for s in range(18):
        k(f's_mov_b32 {st}, {O_G + s * GPL}')
        ig.append(vm.op(f'buffer_load_dwordx4 {GF.sub(4 * s, 4)}, {sel(s)}, {Rws}, {st} offen sc1'))
    lg.all()
    ird = {}
    for s in range(18):
        vm.wait(ig[s])
        wr = WP[s % NPRE]
        for tt in range(6):
            if s >= NPRE: lg.wait(ird[s, tt])
            k(f'{MF} {acc.sub(4 * tt, 4)}, {wr.sub(4 * tt, 4)}, {GF.sub(4 * s, 4)}, {"0" if s == 0 else acc.sub(4 * tt, 4)}')
            if s + NPRE < 18: ird[s + NPRE, tt] = lg.op(f'ds_read_b128 {wr.sub(4 * tt, 4)}, {w2_addr(s + NPRE, tt)}')
        vm.op(wld(1, s))
    lg.all()
    STAMP(5)
    aS = dl[1]
    k(f'v_lshrrev_b32 {t[0]}, 1, {q}')
    k(f'v_lshlrev_b32 {aS}, 6, {t[0]}\nv_lshl_add_u32 {aS}, {m}, 2, {aS}')
    k(f's_mul_i32 {st}, {rb}, 18\ns_mul_i32 {so}, {jm}, 3\ns_add_u32 {st}, {st}, {so}\ns_lshl_b32 {st}, {st}, 2\ns_add_u32 {st}, {st}, {s_w}\ns_lshl_b32 {st}, {st}, 10\ns_add_u32 {st}, {st}, {O_X1F}')
    for e in range(12): k(f'v_pk_add_f32 {h2f.sub(2 * e, 2)}, {h2f.sub(2 * e, 2)}, {acc.sub(2 * e, 2)}')
    for Pp in range(3):
        o = go.sub(4 * Pp, 4)
        for e in range(4): k(f'v_cvt_pk_bf16_f32 {o[e]}, {h2f[8 * Pp + 2 * e]}, {h2f[8 * Pp + 2 * e + 1]}')
        vm.op(f'buffer_store_dwordx4 {o}, {l16}, {Rws}, {st} offen sc1')
        if Pp < 2: k(f's_add_u32 {st}, {st}, 4096')
    k(f'v_pk_add_f32 {t[0:2]}, {h2f[0:2]}, {h2f[2:4]}\nv_pk_mul_f32 {t[2:4]}, {h2f[0:2]}, {h2f[0:2]}\nv_pk_fma_f32 {t[2:4]}, {h2f[2:4]}, {h2f[2:4]}, {t[2:4]}')
    for e in range(2, 12): k(f'v_pk_add_f32 {t[0:2]}, {t[0:2]}, {h2f.sub(2 * e, 2)}\nv_pk_fma_f32 {t[2:4]}, {h2f.sub(2 * e, 2)}, {h2f.sub(2 * e, 2)}, {t[2:4]}')
    k(f'v_add_f32 {t[0]}, {t[0]}, {t[1]}\nv_add_f32 {t[2]}, {t[2]}, {t[3]}\nv_permlane32_swap_b32 {t[0]}, {t[2]}\nv_add_f32 {t[0]}, {t[0]}, {t[2]}')
    k(f'v_mov_b32 {t[1]}, {t[0]}\nv_permlane16_swap_b32 {t[0]}, {t[1]}\nv_add_f32 {t[0]}, {t[0]}, {t[1]}')
    k(f's_mul_i32 {st}, {mt}, 6\ns_add_u32 {st}, {st}, {jm}\ns_lshl_b32 {st}, {st}, 7\ns_add_u32 {st}, {st}, {O_PST}\ns_mov_b32 exec_lo, 0xffff\ns_mov_b32 exec_hi, 0xffff')
    vm.op(f'buffer_store_dword {t[0]}, {aS}, {Rws}, {st} offen sc1')
    k('s_mov_b64 exec, -1')
    vm.all()
    flag_add(mt, O_FD)
    STAMP(6)
    k('s_branch k2_phase_e')
    k('k2_idle:')
    k.V.free, k.A.free, k.S.free = list(keepV), list(keepA), list(keepS)
    vm, lg = trackers(k)
    cj = ColJob(k, vm, lg, lane, s_w)
    fr = k.v(72, 4); sl = k.s(); dst = k.s(); job = k.s(); R4 = k.s(4)
    srd(k, R4, P['w4'], D * F * 2)
    lpj, dn = k.label('w4job'), k.label('w4done')
    k(f's_mov_b32 {job}, s2\n{lpj}:\ns_mul_hi_u32 {sl}, {job}, {(1 << 32) // 9 + 1}')
    ids = cj.read(0, fr, w4order=True)
    k(f's_lshl_b32 {dst}, {job}, 2\ns_add_u32 {dst}, {dst}, {s_w}\ns_mul_i32 {dst}, {dst}, 18432\ns_add_u32 {dst}, {dst}, {O_W4F}')
    cj.store(fr, ids, Rws, dst, 1024)
    vm.all()
    flag_add(sl, O_FW)
    k(f's_cmp_ge_u32 {job}, 8\ns_cbranch_scc1 {dn}\ns_add_u32 {job}, {job}, 64\ns_lshl_b32 {dst}, s2, 7\ns_add_u32 {dst}, {dst}, {7 * 576 * 1152 + 128}\ns_mov_b32 {sl}, 1152\ns_barrier')
    cj.dma(R4, dst, sl, 0)
    k(f's_waitcnt vmcnt(0)\ns_barrier\ns_branch {lpj}\n{dn}:\n{go3_ld}')
    spin(go3_ld, [fv4[i] for i in range(4)]); vm.reset()
    for r_ in range(2):
        for ks in PI: vm.op(wld(r_, ks))
        if r_ == 0: k(f's_add_u32 {sn}, {sn}, 18432')
    STAMP(14)
    k('k2_phase_e:')
    k.V.free, k.A.free, k.S.free = keepV, keepA, keepS
    vm, lg = trackers(k)
    vm.n = 1
    XA = k.a(112, 4); XV = k.v(176, 4)
    xf = lambda ks, t_: XA.sub(16 * ks + 4 * t_, 4) if 16 * ks + 4 * t_ < 112 else XV.sub(16 * ks + 4 * t_ - 112, 4)
    fv4.release()
    k(f's_add_u32 {sn}, {sn}, 18432')
    acc = [k.v(16, 4), k.v(16, 4)]
    t = acc[1].sub(0, 12); pa = k.v()
    k(f's_lshl_b32 {st}, {mb}, 2\nv_min_u32 {pa}, 3, {lane}\nv_add_u32 {pa}, {st}, {pa}\nv_lshlrev_b32 {pa}, 7, {pa}')
    k(f's_lshl_b32 {sm}, {s_w}, 10\ns_mul_i32 {so}, {mb}, 73728\ns_add_u32 {so}, {so}, {sm}\ns_add_u32 {so}, {so}, {O_X1F}')
    sk_ = k.label('nopoll')
    k(f's_cmp_lg_u32 {s_w}, 0\ns_cbranch_scc1 {sk_}')
    poll(pa, O_FD, 6, sleep=1)
    k(f'{sk_}:\ns_waitcnt vmcnt(0)\ns_barrier')
    STAMP(7)
    ixd = []; idv = {}
    def xdma(ks):
        k(f's_add_u32 m0, {sm}, {XBUF + 4096 * ks}\ns_add_u32 {st}, {so}, {4096 * ks}')
        ixd.append(vm.op(f'buffer_load_dwordx4 {l16}, {Rws}, {st} offen sc1 lds'))
    for ks in PI[:7]: xdma(ks)
    k(f's_mul_i32 {st}, {mb}, 3072\ns_add_u32 {st}, {st}, {sm}\ns_add_u32 {st}, {st}, {O_PST}\ns_add_u32 m0, {sm}, {PSTL}')
    vm.op(f'buffer_load_dwordx4 {l16}, {Rws}, {st} offen sc1 lds')
    k(f'v_mul_u32_u24 {pa}, 768, {q}\nv_lshl_add_u32 {pa}, {m}, 2, {pa}\nv_add_u32 {pa}, {PSTL}, {pa}')
    aX = [l16, k.v()]; aHr = [k.v(), k.v()]; aH = [k.v(), k.v()]
    k(f'v_add_u32 {aX[1]}, 0x9000, {l16}\nv_add_u32 {aHr[0]}, {HBUF}, {l16}\nv_add_u32 {aHr[1]}, {HBUF + 0x9000}, {l16}')
    for h in range(2):
        k(f's_mul_i32 {st}, {s_w}, 9\ns_add_u32 {st}, {st}, {h}\ns_and_b32 {st1}, {st}, 1\ns_lshl_b32 {st1}, {st1}, 3\ns_lshr_b32 {st}, {st}, 1\ns_lshl_b32 {st}, {st}, 12')
        k(f's_add_u32 {st}, {st}, {st1}\nv_add_u32 {aH[h]}, {st}, {aHr[0]}')
    GC = [RB.sub(8 + 3 * i, 3) for i in range(4)]
    gt = RB.sub(0, 8); hp = [RB.sub(20, 2), RB.sub(22, 2)]
    def gelu_ops(a, ah):
        out = []
        for t_ in range(4):
            c = GC[t_]; x = [a[4 * t_ + e] for e in range(4)]; u = [gt[4 * (t_ & 1) + e] for e in range(4)]; o = hp[t_ & 1]
            out += [f'v_mul_f32 {u[e]}, {x[e]}, {x[e]}' for e in range(4)]
            out += [f'v_fma_f32 {u[e]}, {u[e]}, {c[1]}, {c[0]}' for e in range(4)]
            out += [f'v_mul_f32 {u[e]}, {u[e]}, {x[e]}' for e in range(4)]
            out += [f'v_exp_f32 {u[e]}, {u[e]}' for e in range(4)]
            out += [f'v_fma_f32 {u[e]}, {u[e]}, {c[2]}, {c[2]}' for e in range(4)]
            out += [f'v_rcp_f32 {u[e]}, {u[e]}' for e in range(4)]
            out += [f'v_mul_f32 {u[e]}, {u[e]}, {x[e]}' for e in range(4)]
            out += [f'v_cvt_pk_bf16_f32 {o[0]}, {u[0]}, {u[1]}', f'v_cvt_pk_bf16_f32 {o[1]}, {u[2]}, {u[3]}']
            out.append(f'ds_write_b64 {ah}, {o} offset:{1024 * t_}')
        return out
    def cost(x_):
        if isinstance(x_, tuple): return x_[0]
        return 2 if x_.startswith(('v_exp', 'v_rcp', 'ds_write')) else 1
    def emit(x_):
        if isinstance(x_, tuple): x_[1]()
        elif x_.startswith('ds_'): lg.op(x_)
        elif x_.startswith('buffer_'): vm.op(x_)
        else: k(x_)
    wid = {}; nw = {}; due = []
    def refill(r_):
        ks = due.pop(); nw[r_, ks] = vm.op(wld(r_, ks))
    def tile(a, r_, fill, steps=range(18), lead=2, pre=None, post=None, per_step=0, rate=None, load=True, at=None):
        steps = list(steps); nm = 4 * len(steps); n_ = 0; fill = list(fill); at = at or {}
        total = len(steps) * (1.5 + per_step) + sum(cost(x_) for x_ in fill)
        rate = rate or total / nm
        cum = 0
        for i in steps:
            ks = PI[i]
            if i in at: fill += at[i]; cum = max(cum, rate * n_ - 1)
            if pre: pre(i)
            if i % 2 == 0:
                n0 = len(k.l); vm.wait(max(wid.get((r_, PI[j]), 0) for j in (i, i + 1))); cum += len(k.l) - n0
            for t_ in range(4):
                k(f'{MF} {a.sub(4 * t_, 4)}, {W[r_].sub(4 * ks, 4)}, {xf(ks, t_)}, {"0" if i == 0 else a.sub(4 * t_, 4)}')
                n_ += 1
                nxt = 0
                if t_ == 0 and due: refill(r_); cum += 1
                if t_ == 3:
                    if load: due.append(ks)
                    if post: post(i)
                    cum += per_step
                    nxt = i % 2
                while n_ >= lead and fill and cum + nxt + cost(fill[0]) / 2 <= rate * n_: cum += cost(fill[0]); emit(fill.pop(0))
        for x_ in fill: emit(x_)
        if steps[-1] == 17 and due: refill(r_)
        if steps[-1] == 17: wid.update(nw); nw.clear()
    def frag_reads(base, i):
        ks = PI[i]
        return [lg.op(f'ds_read_b128 {xf(ks, t_)}, {base[ks // 9]} offset:{(ks % 9) * 4096 + 1024 * t_}') for t_ in range(4)]
    nxt_tile = lambda: k(f's_add_u32 {sn}, {sn}, 18432')
    rd = {}
    XB = {0: 2, 1: 6, 5: 11, 10: 17}
    def pre0(i):
        if i in XB: vm.wait(ixd[XB[i]]); k('s_barrier')
        if i == 0:
            for j in (0, 1): rd[j] = frag_reads(aX, j)
        if i + 2 < 18: rd[i + 2] = frag_reads(aX, i + 2)
        lg.wait(rd[i][3])
    todo = [(0, lambda ks=ks: xdma(ks)) for ks in PI[7:]]
    todo += [(i, lambda ks=PI[i]: wid.__setitem__((0, ks, 'n'), vm.op(wld(0, ks)))) for i in range(18)]
    def post0(i):
        for _ in range(18 if i == 17 else 4 if i < 3 else 3):
            if todo and todo[0][0] <= i: todo.pop(0)[1]()
        if i == 10:
            for j in range(6): idv['p'] = lg.op(f'ds_read2_b32 {t.sub(2 * j, 2)}, {pa} offset0:{32 * j} offset1:{32 * j + 16}')
    class Rec:
        def __init__(self): self.l = []
        def __call__(self, x_): self.l += x_.split('\n')
    rec = Rec()
    for e in (0, 4, 8): rec(f'v_add_f32 {t[e]}, {t[e]}, {t[e + 2]}\nv_add_f32 {t[e + 1]}, {t[e + 1]}, {t[e + 3]}')
    for e in (4, 8): rec(f'v_add_f32 {t[0]}, {t[0]}, {t[e]}\nv_add_f32 {t[1]}, {t[1]}, {t[e + 1]}')
    sigma_bf16(rec, t[0], t[1])
    rec(f'v_cvt_pk_bf16_f32 {t[1]}, {t[1]}, {t[1]}\nv_and_b32 {t[1]}, 0xffff0000, {t[1]}\nv_lshlrev_b32 {t[2]}, 2, {m}')
    c1 = [(1, lambda: lg.wait(idv['p']))] + rec.l
    c1 += [(1, lambda i=i: idv.__setitem__('b', lg.op(f'ds_bpermute_b32 {t[4 + i]}, {t[2]}, {t[1]} offset:{64 * i}'))) for i in range(4)]
    rec = Rec()
    for i in range(4): gelu_consts(rec, t[4 + i], GC[i])
    c2 = [(1, lambda: lg.wait(idv['b']))] + [rec.l[6 * i + j] for j in range(6) for i in range(4)]
    tile(acc[0], 0, [], pre=pre0, post=post0, load=False, rate=2.0, at={12: c1, 16: c2})
    assert not todo
    for ks in range(18): wid[0, ks] = wid.pop((0, ks, 'n'))
    nxt_tile()
    STAMP(8)
    fa_ = k.v(); xc = k.v(3, 1)
    k(f's_lshl_b32 {st}, {fs}, 7\nv_mov_b32 {fa_}, {st}')
    def check(idl, val, tgt, vaddr, base):
        ok = k.label('up'); d0 = None
        vm.wait(idl)
        k(f'v_cmp_gt_u32 vcc, {tgt}, {val}\ns_cmp_eq_u64 vcc, 0\ns_cbranch_scc1 {ok}')
        d0 = vm.done; poll(vaddr, base, tgt, fv=val); vm.done = d0
        k(f'{ok}:')
    rd = {}
    for tt in range(1, 9):
        fill = gelu_ops(acc[1 - (tt & 1)], aH[1 - (tt & 1)]) + [f'v_add_u32 {aH[1 - (tt & 1)]}, 4096, {aH[1 - (tt & 1)]}']
        if tt == 4: k(f's_mov_b32 {st}, {O_FW}'); ifw = vm.op(f'buffer_load_dword {pa}, {fa_}, {Rws}, {st} offen sc1')
        if tt == 1:
            k(f's_lshr_b32 {so}, {fs}, 1\ns_mul_i32 {so}, {so}, 9\ns_and_b32 {st1}, {fs}, 1\ns_lshl_b32 {st1}, {st1}, 11\ns_lshr_b32 {sm}, {s_w}, 1\ns_lshl_b32 {sm}, {sm}, 8\ns_add_u32 {st1}, {st1}, {sm}')
            k(f's_and_b32 {sm}, {s_w}, 1\ns_lshl_b32 {sm}, {sm}, 3\ns_add_u32 {st1}, {st1}, {sm}\nv_lshrrev_b32 {xc[2]}, 1, {q}\nv_lshl_add_u32 {xc[0]}, {xc[2]}, 10, {st1}')
            k(f'v_lshl_add_u32 {xc[0]}, {m}, 4, {xc[0]}\nv_and_b32 {xc[2]}, 1, {q}\nv_lshl_add_u32 {xc[2]}, {xc[2]}, 2, {xc[0]}')
            for h in range(2):
                k(f's_add_u32 {st}, {so}, {h}\ns_and_b32 {sm}, {st}, 1\ns_lshl_b32 {sm}, {sm}, 9\ns_lshr_b32 {st}, {st}, 1\ns_lshl_b32 {st}, {st}, 12\ns_add_u32 {st}, {st}, {sm}\nv_add_u32 {xc[h]}, {st}, {xc[2]}')
            k(f's_mul_i32 {st}, {s_w}, 2304\ns_add_u32 {st}, {st}, {X1C}\nv_lshl_add_u32 {xc[2]}, {lane}, 2, {st}')
        if 1 <= tt <= 3:
            for t_ in range(3 * tt - 3, 3 * tt):
                def cp(t_=t_): idv['x'] = lg.op(f'ds_read_b32 {pa}, {xc[t_ & 1]} offset:{4096 * (t_ >> 1)}')
                def wr(t_=t_): lg.wait(idv['x']); lg.op(f'ds_write_b32 {xc[2]}, {pa} offset:{256 * t_}')
                n_ = 20 + 33 * (t_ % 3)
                fill[n_:n_] = [(1, cp)]; fill[n_ + 20:n_ + 20] = [(2, wr)]
        if tt == 7: check(ifw, pa, 36, fa_, O_FW); k(f's_mov_b32 {sn}, {s4}')
        if tt in (1, 4, 7, 8): STAMP({1: 1, 4: 2, 7: 3, 8: 4}[tt], 'g3st')
        if tt < 8: tile(acc[tt & 1], tt & 1, fill)
        else:
            lg.all(); k('s_barrier')
            def post8(i):
                if i < 12: rd[i] = frag_reads(aHr, i)
            tile(acc[0], 0, fill, post=post8, per_step=2.7)
        nxt_tile()
    STAMP(9)
    k('s_waitcnt lgkmcnt(0)\ns_barrier'); lg.reset()
    for j in (12, 13): rd[j] = frag_reads(aHr, j)
    tile(acc[1], 1, gelu_ops(acc[0], aH[0]), steps=range(14), pre=lambda i: lg.wait(rd[i][3]) if i >= 12 else None, lead=1)
    lg.all(); k('s_barrier')
    for j in range(14, 18): rd[j] = frag_reads(aHr, j)
    tile(acc[1], 1, [], steps=range(14, 18), pre=lambda i: lg.wait(rd[i][3]))
    Rout = k.s(4)
    sp = k.s(); sq = k.s(); sf = k.s(); T0 = k.s(); sl_ = k.s(); po = [gt.sub(0, 4), gt.sub(4, 4)]
    aP, aR, aO = GC[0][0], GC[0][1], GC[0][2]; aL, aLr, aLg = GC[1][0], GC[1][1], GC[1][2]; aOw, aOr = GC[2][0], GC[2][1]; fv = pa; fpa = fa_
    u0, u1, u2 = hp[0][0], hp[0][1], hp[1][0]
    OUTB = 4 * 28672
    setup = f"""s_mov_b32 {Rout[0]}, {P['out'][0]}
s_mov_b32 {Rout[1]}, {P['out'][1]}
s_mov_b32 {Rout[2]}, {L * D * 2}
s_mov_b32 {Rout[3]}, 0x20000
s_lshl_b32 {st}, {fs}, 13
s_mul_i32 {sq}, {mb}, {9 * 65536}
s_add_u32 {sq}, {sq}, {st}
s_add_u32 {sq}, {sq}, {O_PART}
s_mul_i32 {sf}, {mb}, 36
s_lshr_b32 {T0}, {fs}, 1
s_add_u32 {st}, {sf}, {T0}
s_lshl_b32 {st}, {st}, 7
v_mov_b32 {fpa}, {st}
s_add_u32 {sf}, {sf}, {s_w}
s_lshl_b32 {sf}, {sf}, 7
s_add_u32 {sf}, {sf}, {O_FP}
s_mul_i32 {T0}, {T0}, 9
s_lshl_b32 {st}, {s_w}, 8
v_lshl_add_u32 {u0}, {m}, 4, {st}
v_lshl_add_u32 {aP}, {q}, 10, {u0}
v_and_b32 {u1}, 1, {q}
v_lshrrev_b32 {u2}, 1, {q}
v_lshl_add_u32 {u0}, {u2}, 4, {m}
v_lshlrev_b32 {aR}, 4, {u0}
v_lshl_add_u32 {aR}, {u1}, 2, {aR}
s_and_b32 {so}, {fs}, 1
s_lshl_b32 {st}, {mb}, 1
s_add_u32 {so}, {so}, {st}
s_lshl_b32 {so}, {so}, 9
s_lshl_b32 {st}, {s_w}, 15
s_add_u32 {so}, {so}, {st}
s_and_b32 {st}, {s_w}, 1
s_lshl_b32 {st}, {st}, 3
s_add_u32 {so}, {so}, {st}
v_add_u32 {aR}, {so}, {aR}
s_mul_i32 {sl_}, {s_w}, 28672
v_add_u32 {aL}, {sl_}, {l16}
v_lshl_add_u32 {aLr}, {lane}, 2, {sl_}
s_lshl_b32 {st}, {s_w}, 4
s_add_u32 {st}, {st}, {sl_}
v_lshl_add_u32 {aLg}, {u1}, 3, {st}
v_mul_u32_u24 {aOw}, 304, {u0}
v_lshl_add_u32 {aOw}, {u1}, 2, {aOw}
s_lshl_b32 {st}, {s_w}, 3
s_add_u32 {st}, {st}, {OUTB}
v_add_u32 {aOw}, {st}, {aOw}""".split('\n')
    k(f's_mul_i32 {sp}, {mb}, {9 * 65536}\ns_lshl_b32 {st}, {s_w}, 14\ns_add_u32 {sp}, {sp}, {st}\ns_lshl_b32 {st}, {fs}, 10\ns_add_u32 {sp}, {sp}, {st}\ns_add_u32 {sp}, {sp}, {O_PART}')
    for x_ in (aHr[0], aHr[1], aH[0], aH[1], aX[1]): x_.release()
    ids = {}
    def S(t_, a, p):
        out = [f'v_cvt_pk_bf16_f32 {po[p][e]}, {a[8 * p + 2 * e]}, {a[8 * p + 2 * e + 1]}' for e in range(4)]
        out.append((1, lambda: ids.__setitem__(('S', t_), 0 if 'nopart' in opt else vm.op(f'buffer_store_dwordx4 {po[p]}, {vo[2 * p]}, {Rws}, {sp} offen {PFL}'))))
        return out + ([f's_add_u32 {sp}, {sp}, 65536'] if p else [])
    def G(t_):
        def f():
            if t_ == 8: k(f's_add_u32 {sf}, {sf}, 4096')
            vm.wait(ids['S', t_]); k('s_mov_b64 exec, 1')
            vm.op(f'buffer_atomic_add {one}, {zero}, {Rws}, {sf} offen offset:{512 * (t_ % 8)} sc1')
            k('s_mov_b64 exec, -1')
        return [(4, f)]
    def Lf(t_): return [f's_mov_b32 {st1}, {O_FP + 512 * t_}', (1, lambda: ids.__setitem__(('L', t_), vm.op(f'buffer_load_dword {fv}, {fpa}, {Rws}, {st1} offen sc1')))]
    def dma(lds, va, soff): return [f's_add_u32 m0, {sl_}, {lds}', (1, lambda: ids.__setitem__('d', vm.op(f'buffer_load_dwordx4 {va}, {Rws}, {soff} offen sc1 lds')))]
    def C(t_):
        return (dma(3072 * t_, aP, sq) + [f's_add_u32 {st}, {sq}, 4096'] + dma(3072 * t_ + 1024, aP, st) + [f's_add_u32 {sq}, {sq}, 65536']
                + [(0, lambda: ids.__setitem__(('C', t_), ids['d']))])
    def RS(t_): return [f's_add_u32 {st}, {T0}, {t_}', f's_lshl_b32 {st}, {st}, 17', f's_add_u32 {st}, {st}, {O_X2}', f's_add_u32 m0, {sl_}, {3072 * t_ + 2048}',
                        f'buffer_load_dword {aR}, {Rws}, {st} offen sc1 lds']
    def CK(t_): return [(4, lambda: check(ids['L', t_], fv, 8, fpa, O_FP + 512 * t_))]
    def R(t_, Dr, v):
        A_, B_, r_, g_ = Dr
        def rd_():
            vm.wait(ids['C', t_])
            lg.op(f'ds_read_b128 {A_}, {aL} offset:{3072 * t_}'); lg.op(f'ds_read_b128 {B_}, {aL} offset:{3072 * t_ + 1024}')
            lg.op(f'ds_read_b32 {r_[0]}, {aLr} offset:{3072 * t_ + 2048}'); lg.op(f'ds_read_b32 {r_[1]}, {xc[2]} offset:{256 * t_}'); ids['r', t_] = lg.op(f'ds_read_b64 {g_}, {aLg} offset:{27648 + 64 * t_}')
        out = [(1, lambda: lg.wait(ids['r', t_]))]
        for d in range(4): out += [f'v_lshlrev_b32 {v[2 * d]}, 16, {A_[d]}', f'v_lshlrev_b32 {v[2 * d + 1]}, 16, {B_[d]}']
        for d in range(4): out += [f'v_and_b32 {A_[d]}, 0xffff0000, {A_[d]}', f'v_add_f32 {v[2 * d]}, {v[2 * d]}, {v[2 * d + 1]}', f'v_and_b32 {B_[d]}, 0xffff0000, {B_[d]}']
        out += [f'v_add_f32 {v[2 * d + 1]}, {A_[d]}, {B_[d]}' for d in range(4)]
        out += [f'v_permlane32_swap_b32 {v[e]}, {v[e + 4]}' for e in (0, 2, 1, 3)]
        out += [f'v_add_f32 {v[e]}, {v[e]}, {v[e + 4]}' for e in (0, 2, 1, 3)]
        out += [un(v[4 + e], r_[e >> 1], e & 1) for e in (2, 3)]
        out += [f'v_permlane16_swap_b32 {v[e]}, {v[e + 2]}' for e in range(2)]
        out += [un(v[4 + e], r_[e >> 1], e & 1) for e in (0, 1)]
        out += [f'v_add_f32 {v[e]}, {v[e]}, {v[e + 2]}' for e in range(2)]
        out += [f'v_add_f32 {v[e]}, {v[e]}, {v[e + 6]}' for e in range(2)]
        out += [f'v_fma_f32 {v[e]}, {v[e]}, {g_[e]}, {v[4 + e]}' for e in range(2)]
        out += [f'v_cvt_pk_bf16_f32 {v[4]}, {v[0]}, {v[1]}', f'ds_write_b32 {aOw}, {v[4]} offset:{32 * t_}']
        return [(6, rd_)], out
    SPOS = 9
    for tt in range(1, 9):
        nxt_tile()
        a_ = acc[tt & 1]
        at = {0: S(tt - 1, a_, 0), SPOS: S(tt - 1, a_, 1)}
        add = lambda i, ops: at.__setitem__(i, at.get(i, []) + ops)
        if tt == 1: add(2, setup)
        if tt == 2:
            k('s_barrier')
            add(2, [f's_lshl_b32 {st}, {T0}, 6', f's_add_u32 {st}, {st}, {O_MOD2 + 4608}'] + dma(27648, l16, st))
        if 2 <= tt <= 6: add(4, RS(2 * tt - 4) + (RS(2 * tt - 3) if tt < 6 else []))
        if 'sB' in opt:
            if tt in (3, 5, 6, 7, 8): add(6, G(tt - 2))
            if tt in (4, 6, 7, 8): add(15, Lf(tt - 3))
            if tt in (5, 7): add(12, CK(tt - 4) + C(tt - 5) + C(tt - 4))
            if tt == 8: add(12, CK(4) + C(4))
        elif 'sC' in opt:
            if tt in (4, 6, 7, 8): add(6, G(tt - 2))
            if tt in (6, 7, 8): add(15 if tt > 6 else 8, Lf({6: 2, 7: 4, 8: 5}[tt]))
            if tt == 7: add(1, CK(2) + C(0) + C(1) + C(2))
            if tt == 8: add(12, CK(4) + C(3) + C(4))
        else:
            if tt >= 2: add(6, G(tt - 2))
            if tt >= 4: add(12, CK(tt - 4) + C(tt - 4))
            if tt >= 3: add(15, Lf(tt - 3))
        if tt in (1, 4, 7, 8): STAMP({1: 1, 4: 2, 7: 3, 8: 4}[tt], 'g4st')
        tile(acc[1 - (tt & 1)], 1 - (tt & 1), [], rate=2.0, at=at, load=tt < 7)
    STAMP(10)
    XV.release()
    Dn = [[k.v(4, 2), k.v(4, 2), k.v(2), k.v(2)] for _ in range(9)]; v2 = k.v(8, 2)
    RR = [R(t_, Dn[t_], v2) for t_ in range(9)]
    seq = S(8, acc[1], 0) + S(8, acc[1], 1) + G(7) + CK(5) + C(5) + Lf(6)
    for t_ in range(3): seq += RR[t_][0]
    seq += RR[0][1] + G(8) + RR[1][1] + CK(6) + C(6) + Lf(7) + RR[3][0] + RR[4][0] + RR[2][1] + RR[3][1] + CK(7) + C(7) + Lf(8) + RR[5][0] + RR[4][1] + RR[5][1]
    for x_ in seq: emit(x_)
    u = k.v(3)
    k(f'v_mul_u32_u24 {u[0]}, 3641, v0\nv_lshrrev_b32 {u[0]}, 16, {u[0]}\nv_mul_u32_u24 {u[1]}, 18, {u[0]}\nv_sub_u32 {u[1]}, v0, {u[1]}\nv_lshlrev_b32 {u[1]}, 4, {u[1]}')
    k(f'v_mul_u32_u24 {aOr}, 304, {u[0]}\nv_add_u32 {aOr}, {aOr}, {u[1]}\nv_add_u32 {aOr}, {OUTB}, {aOr}\nv_mul_u32_u24 {aO}, 1152, {u[0]}\nv_add_u32 {aO}, {aO}, {u[1]}')
    k(f's_lshl_b32 {st}, {mb}, 1\ns_and_b32 {so}, {fs}, 1\ns_add_u32 {so}, {so}, {st}\ns_mul_i32 {so}, {so}, {32 * 1152}\ns_lshl_b32 {st}, {T0}, 5\ns_add_u32 {so}, {so}, {st}')
    for x_ in CK(8): emit(x_)
    STAMP(11)
    for x_ in C(8) + RR[6][0] + RR[7][0] + RR[6][1] + RR[7][1] + RR[8][0] + RR[8][1]: emit(x_)
    lg.all(); k('s_barrier')
    o4 = [Dn[0][0], Dn[0][1], Dn[1][0]]
    k(f'v_cmp_gt_u32 vcc, 252, v0\ns_and_b64 exec, exec, vcc')
    io = [lg.op(f'ds_read_b128 {o4[i]}, {aOr} offset:{14 * 304 * i}') for i in range(3)]
    for i in range(3):
        if i == 2: k(f's_cmp_ge_u32 {s_w}, 2\ns_cbranch_scc1 {END}\nv_cmp_gt_u32 vcc, 72, v0\ns_and_b64 exec, exec, vcc')
        lg.wait(io[i])
        k(f'buffer_store_dwordx4 {o4[i]}, {aO}, {Rout}, {so} offen')
        if i < 2: k(f's_add_u32 {so}, {so}, {14 * 1152}')
    STAMP(12)
```

```python
from dsl import Kern, Reg, module
import struct

L, D, F = 2048, 576, 4608
NAME = 'adaLN_cond__ssm_conv_s4d__mixer_s_mlp__prompt'

O_FC    = 0x0000
O_FD    = 0x4000
O_FR    = 0x8000
O_FW    = 0x9000
O_FA    = 0x9400
O_FP    = 0xA000
FLAG_BYTES = 0x40000
O_STATS = 0x40000
O_MODF  = 0x44000
O_MOD2  = O_MODF + 3 * 2304
O_MODB  = 0x49000
O_MODG  = 0x4A000
O_PST   = 0x50000
GPL = 130 * 1024
O_XT    = 0x100000
O_X2    = 0x3200000
O_G     = 0x400000
O_X1F   = 0x700000
O_RES   = 0xA00000
O_W1F   = 0xF00000
O_W2F   = 0x1000000
O_W3F   = 0x1100000
O_W4F   = 0x1700000
O_PART  = 0x2000000
O_DBG   = 0x3800000
WS_USED = 0x4000000

def f2u(x): return struct.unpack('<I', struct.pack('<f', x))[0]
def fl(x): return '0x%08x' % f2u(x)
LOG2E = 1.4426950408889634

class Trk:
    def __init__(self, k, cnt, mx): self.k = k; self.cnt = cnt; self.mx = mx; self.n = 0; self.done = 0
    def op(self, s):
        self.k(s); self.n += 1; return self.n
    def wait(self, idx):
        if idx <= self.done: return
        left = min(self.n - idx, self.mx)
        self.k('s_waitcnt %s(%d)' % (self.cnt, left)); self.done = self.n - left
    def all(self): self.wait(self.n)
    def reset(self): self.done = self.n

def trackers(k): return Trk(k, 'vmcnt', 63), Trk(k, 'lgkmcnt', 15)

def srd(k, dst, ptr, nbytes, off=0):
    if off:
        k(f's_add_u32 {dst[0]}, {ptr[0]}, {off}\ns_addc_u32 {dst[1]}, {ptr[1]}, 0')
    else:
        k(f's_mov_b32 {dst[0]}, {ptr[0]}\ns_mov_b32 {dst[1]}, {ptr[1]}')
    k(f's_mov_b32 {dst[2]}, {nbytes}\ns_mov_b32 {dst[3]}, 0x20000')

def kernargs(k):
    a = k.s(16, 4); b = k.s(16, 4); c = k.s(2)
    k(f's_load_dwordx16 {a}, s[0:1], 0\ns_load_dwordx16 {b}, s[0:1], 64\ns_load_dwordx2 {c}, s[0:1], 128')
    names = ['u', 'logA', 'Aim', 'Cr', 'Ci', 'logdt', 'Dskip', 'Bx']
    P = {n: a.sub(2 * i, 2) for i, n in enumerate(names)}
    names = ['w1', 'w2', 'w3', 'w4', 'c', 'wmod', 'out', 'dbg']
    P.update({n: b.sub(2 * i, 2) for i, n in enumerate(names)})
    P['ws'] = c
    P['_blocks'] = (a, b)
    return P

def code_prefetch(k, vm, lo, hi, nbytes, tid, tmp, sp, back=False):
    here = k.label('pc')
    k(f's_getpc_b64 {sp}\n{here}:')
    if back: k(f's_sub_u32 {sp[0]}, {sp[0]}, {here}-{lo}\ns_subb_u32 {sp[1]}, {sp[1]}, 0')
    else: k(f's_add_u32 {sp[0]}, {sp[0]}, {lo}-{here}\ns_addc_u32 {sp[1]}, {sp[1]}, 0')
    k(f'v_lshlrev_b32 {tmp[0]}, 7, {tid}')
    k(f'v_min_u32 {tmp[0]}, {hi}-{lo}-4, {tmp[0]}')
    n = (nbytes + 32767) // 32768
    for i in range(n):
        x = f'global_load_dword {tmp[1]}, {tmp[0]}, {sp}'
        vm.op(x) if vm else k(x)
        if i + 1 < n:
            k(f'v_add_u32 {tmp[0]}, 0x8000, {tmp[0]}\nv_min_u32 {tmp[0]}, {hi}-{lo}-4, {tmp[0]}')

def interleave(*streams):
    out = []; n = max(len(s) for s in streams)
    for i in range(n):
        for s in streams:
            if i < len(s): out.append(s[i])
    return out

class ColJob:
    def __init__(self, k, vm, lg, lane, s_w):
        self.k, self.vm, self.lg, self.lane, self.s_w = k, vm, lg, lane, s_w
        k_ = k
        self.row = k.v(); self.chunk = k.v(); t = k.v(2)
        k_(f'v_lshrrev_b32 {self.row}, 3, {lane}')
        k_(f'v_bfe_u32 {t[0]}, {lane}, 5, 1\ns_and_b32 vcc_lo, {s_w}, 1\nv_xor_b32 {t[0]}, vcc_lo, {t[0]}')
        k_(f'v_bfe_u32 {t[1]}, {lane}, 4, 1\nv_lshl_or_b32 {t[0]}, {t[0]}, 1, {t[1]}')
        k_(f'v_lshlrev_b32 {t[0]}, 1, {t[0]}\nv_and_b32 {t[1]}, 7, {lane}\nv_xor_b32 {t[0]}, {t[0]}, {t[1]}')
        k_(f'v_lshlrev_b32 {self.chunk}, 4, {t[0]}')
        t.release()
    def dma(self, R, s_src, s_stride, buf):
        k = self.k
        va = k.v(); so = k.s(); st = k.s(); sm = k.s()
        k(f'v_mad_u32_u24 {va}, {self.row}, {s_stride}, {self.chunk}')
        k(f's_lshl_b32 {st}, {s_stride}, 3\ns_mul_i32 {so}, {st}, {self.s_w}\ns_add_u32 {so}, {so}, {s_src}\ns_lshl_b32 {st}, {st}, 2')
        k(f's_lshl_b32 {sm}, {self.s_w}, 10')
        last = None
        for i in range(18):
            k(f's_add_u32 m0, {sm}, {buf + i * 4096}')
            last = self.vm.op(f'buffer_load_dwordx4 {va}, {R}, {so} offen lds')
            if i < 17: k(f's_add_u32 {so}, {so}, {st}')
        va.release(); so.release(); st.release(); sm.release()
        return last
    def read(self, buf, fr, **kw):
        return self.reads(self.addr(buf, **kw), fr)
    def addr(self, buf, w4order=False, s_il=None, s_w4=None):
        k, lane = self.k, self.lane
        ad = k.v(4); q = k.v(); r = k.v(); c = k.v(); un = k.v(); wi = k.v(); t = k.v(2)
        k(f'v_lshrrev_b32 {q}, 4, {lane}\nv_bfe_u32 {r}, {lane}, 2, 2\nv_and_b32 {c}, 3, {lane}')
        k(f'v_mov_b32 {un}, {self.s_w}\nv_lshlrev_b32 {wi}, 3, {c}')
        if s_il is not None:
            st = k.s()
            k(f's_and_b32 {st}, {self.s_w}, 2\nv_lshrrev_b32 {t[0]}, 1, {c}\nv_add_u32 {t[0]}, {st}, {t[0]}')
            k(f's_and_b32 {st}, {self.s_w}, 1\ns_lshl_b32 {st}, {st}, 3\nv_and_b32 {t[1]}, 1, {c}\nv_lshl_add_u32 {t[1]}, {t[1]}, 4, {st}')
            k(f's_cmp_lg_u32 {s_il}, 0\ns_cselect_b64 vcc, -1, 0')
            k(f'v_cndmask_b32 {un}, {un}, {t[0]}, vcc\nv_cndmask_b32 {wi}, {wi}, {t[1]}, vcc')
            st.release()
        for h in range(2):
            kl = ad[h]
            if w4order: k(f'v_lshl_add_u32 {kl}, {q}, 2, {r}\nv_add_u32 {kl}, {16 * h}, {kl}')
            else: k(f'v_lshl_add_u32 {kl}, {q}, 3, {r}\nv_add_u32 {kl}, {4 * h}, {kl}')
            if s_w4 is not None:
                k(f'v_lshl_add_u32 {t[0]}, {q}, 2, {r}\nv_add_u32 {t[0]}, {16 * h}, {t[0]}\ns_cmp_eq_u32 {s_w4}, 4\ns_cselect_b64 vcc, -1, 0\nv_cndmask_b32 {kl}, {kl}, {t[0]}, vcc')
            k(f'v_lshrrev_b32 {t[0]}, 1, {kl}\nv_xor_b32 {t[0]}, {t[0]}, {kl}\nv_bfe_u32 {t[0]}, {t[0]}, 2, 1')
            k(f'v_bfe_u32 {t[1]}, {kl}, 1, 1\nv_lshl_or_b32 {t[0]}, {t[0]}, 1, {t[1]}\nv_xor_b32 {t[0]}, {t[0]}, {un}')
            k(f'v_lshl_add_u32 {t[0]}, {t[0]}, 5, {wi}\nv_lshl_add_u32 {kl}, {kl}, 7, {t[0]}')
            k(f'v_add_u32 {kl}, {buf}, {kl}\nv_add_u32 {ad[2 + h]}, 0x9000, {kl}')
        for x in (q, r, c, un, wi, t): x.release()
        return ad
    def reads(self, ad, fr):
        ids = []
        for s in range(18):
            for h in range(2):
                a = ad[h] if s < 9 else ad[2 + h]
                i = self.lg.op(f'ds_read_b64_tr_b16 {fr.sub(4 * s + 2 * h, 2)}, {a} offset:{(s % 9) * 4096}')
            ids.append(i)
        ad.release()
        return ids
    def store(self, fr, ids, Rws, s_dst, s_step, s_rot=None, flags='sc1'):
        k = self.k
        va = k.v(); so = k.s(); sl = k.s()
        k(f'v_lshlrev_b32 {va}, 4, {self.lane}')
        if s_rot is not None: k(f's_mov_b32 {sl}, {s_rot}')
        else: k(f's_mov_b32 {so}, {s_dst}')
        for s in range(18):
            if s_rot is not None:
                k(f's_mul_i32 {so}, {sl}, {s_step}\ns_add_u32 {so}, {so}, {s_dst}')
                k(f's_add_u32 {sl}, {sl}, 1\ns_cmp_eq_u32 {sl}, 18\ns_cselect_b32 {sl}, 0, {sl}')
            if ids: self.lg.wait(ids[s])
            self.vm.op(f'buffer_store_dwordx4 {fr.sub(4 * s, 4)}, {va}, {Rws}, {so} offen {flags}')
            if s_rot is None and s < 17: k(f's_add_u32 {so}, {so}, {s_step}')
        va.release(); so.release(); sl.release()

class Stamper:
    def __init__(self, k, on, area, t=None):
        self.k = k; self.on = on; self.area = area
        if isinstance(on, tuple): self.t = None
        elif on: self.r = k.s(16, 1); self.t = t or k.s(2)
    def __call__(self, i):
        if isinstance(self.on, tuple):
            if self.on[:2] == (self.area, i):
                sk = self.k.label('noprobe')
                self.k(f's_sub_u32 s96, s2, {self.on[2]}\ns_cmp_ge_u32 s96, {self.on[3] - self.on[2]}\ns_cbranch_scc1 {sk}\ns_memrealtime s[98:99]\n{sk}:')
            if self.on[:2] == (self.area, i) or i != 0: self.k('s_waitcnt lgkmcnt(0)')
        elif self.on:
            self.k(f'{"s_memtime" if self.on == 2 else "s_memrealtime"} {self.t}\ns_waitcnt lgkmcnt(0)\ns_mov_b32 {self.r[i]}, {self.t[0]}')
    def init(self):
        if self.on and not isinstance(self.on, tuple):
            for i in range(16): self.k(f's_mov_b32 {self.r[i]}, 0')
    def flush(self):
        if not self.on: return
        k = self.k; t = self.t; done = k.label('stamped')
        k(f's_waitcnt vmcnt(0) lgkmcnt(0)\ns_mov_b64 exec, -1\nv_mov_b32 v1, 0\nv_cmp_eq_u32 vcc, 0, v0\ns_and_b64 exec, exec, vcc\ns_cbranch_execz {done}')
        k(f's_load_dwordx2 {t}, s[0:1], 128\ns_lshl_b32 vcc_lo, s2, 6\ns_add_u32 vcc_lo, vcc_lo, {O_DBG + 0x400000 + self.area * 256 * 64}\nv_mov_b32 v1, vcc_lo\ns_waitcnt lgkmcnt(0)')
        for i in range(16): k(f'v_mov_b32 v2, {self.r[i]}\nglobal_store_dword v1, v2, {t} offset:{4 * i}')
        k(f'{done}:')

def sigma_bf16(k, mean, var):
    k(f'v_mul_f32 {mean}, {fl(1 / 576)}, {mean}\nv_mul_f32 {var}, {fl(1 / 576)}, {var}')
    k(f'v_fma_f32 {var}, -{mean}, {mean}, {var}\nv_max_f32 {var}, 0, {var}')
    k(f'v_cvt_pk_bf16_f32 {var}, {var}, {var}\nv_and_b32 {var}, 0xffff0000, {var}\nv_add_f32 {var}, {fl(1e-5)}, {var}')
    k(f'v_cvt_pk_bf16_f32 {var}, {var}, {var}\nv_and_b32 {var}, 0xffff0000, {var}\nv_sqrt_f32 {var}, {var}')


LDS_BYTES = 163840
WSTR, HB, HSTR = 19072, 4 * 19072, 4608
FREE0 = HB + 4 * HSTR
W1_AT = [FREE0 + 6144 * i for i in range(11)] + [HB + 6144 * i for i in range(3)] + [WSTR * i + 12288 for i in range(4)]
W2_AT = [WSTR * (i // 2) + 6144 * (i % 2) for i in range(6)] + W1_AT[:12]
TABS = 3 * WSTR

class PairDma:
    def __init__(self, k, s_w, s_jm, base, R, l16, at):
        self.k, self.R, self.l16, self.at = k, R, l16, at
        self.src = k.s(); self.wh = k.s(); self.wl = k.s(); self.t = k.s()
        k(f's_mul_i32 {self.src}, {s_jm}, 110592\ns_mul_i32 {self.t}, {s_w}, 3072\ns_add_u32 {self.src}, {self.src}, {self.t}\ns_add_u32 {self.src}, {self.src}, {base}')
        k(f's_lshr_b32 {self.wh}, {s_w}, 1\ns_and_b32 {self.wl}, {s_w}, 1\ns_mul_i32 {self.wl}, {self.wl}, 3072')
    def ops(self, P):
        c0, c1 = self.at[2 * P], self.at[2 * P + 1]
        ld = lambda i: f'buffer_load_dwordx4 {self.l16}, {self.R}, {self.src} offen sc1 lds'
        return [[f's_mul_i32 {self.t}, {self.wh}, {c1 - c0}', f's_add_u32 {self.t}, {self.t}, {self.wl}', f's_add_u32 m0, {self.t}, {c0}', ld(0)],
                [f's_add_u32 m0, {self.t}, {c0 + 1024}', f's_add_u32 {self.src}, {self.src}, 1024', ld(1)],
                [f's_add_u32 m0, {self.t}, {c0 + 2048}', f's_add_u32 {self.src}, {self.src}, 1024', ld(2), f's_add_u32 {self.src}, {self.src}, {12288 - 2048}']]
    def release(self):
        for x in (self.src, self.wh, self.wl, self.t): x.release()
```

```python
from common import *

N_SIG = 64 + 45
BUF0, BUF1, SVEC = 0, 73728, 147456
K1_LDS = 147456 + 2560
SPIN_MAX = 40000

def vmaps():
    maps = [list(range(16))]
    for s in (1, 2, 3):
        m = list(maps[-1]); step = 1 << s
        new = [step * i for i in range(8, 16)]
        for j in range(16):
            if m[j] % step: m[j] = new.pop(0)
        assert not new
        maps.append(m)
    return maps

def service(k, P, lane, s_w, END, NEXT, SP):
    vm, lg = trackers(k)
    Rws = k.s(4); Rdbg = k.s(4); RA = k.s(4); RB = k.s(4)
    srd(k, Rws, P['ws'], WS_USED); srd(k, Rdbg, P['dbg'], 256)
    z4 = k.v(4, 4); zero = z4.sub(0, 2); one = k.v(); l16 = k.v(); q = k.v(); m = k.v()
    fr = k.v(72, 4); sv = k.v(72, 4); acc = k.v(4, 4)
    sav = k.s(2); st = k.s(); cnt = k.s()
    jb = k.s(); modeB = k.s(); blkB = k.s(); srcB = k.s(); strB = k.s()
    L_mod, L_B, L_C = k.label('mod'), k.label('jobB'), k.label('jobC')
    k(f'v_lshrrev_b32 {q}, 4, {lane}\nv_and_b32 {m}, 15, {lane}\nv_lshlrev_b32 {l16}, 4, {lane}')
    cjs = {}
    def common():
        for i in range(4): k(f'v_mov_b32 {z4[i]}, 0')
        k(f'v_mov_b32 {one}, 1\ns_mov_b32 {cnt}, 0')
        k(f's_add_u32 {jb}, s2, 32\ns_sub_u32 {blkB}, s2, 64\ns_cmp_ge_u32 s2, 64\ns_cselect_b32 {jb}, {blkB}, {jb}')
        k(f's_cmp_ge_u32 s2, 96\ns_cselect_b32 {jb}, 200, {jb}\ns_sub_u32 {blkB}, s2, 7\ns_cmp_ge_u32 s2, 103\ns_cselect_b32 {jb}, {blkB}, {jb}')
        srd(k, RB, P['wmod'], D * 3456 * 2)
        k(f's_mov_b32 {modeB}, 0\ns_cmp_ge_u32 {jb}, 6\ns_cselect_b32 {blkB}, 39, 30\ns_add_u32 {blkB}, {blkB}, {jb}\ns_mov_b32 {strB}, 6912')
        for mode, lo, ptr, nb, st_ in ((2, 15, 'w2', D * D * 2, 1152), (3, 24, 'w3', D * F * 2, 9216), (1, 96, 'w1', D * D * 2, 1152)):
            k(f's_sub_u32 {srcB}, {jb}, {lo}\ns_cmp_ge_u32 {jb}, {lo}')
            k(f's_cselect_b32 {blkB}, {srcB}, {blkB}\ns_cselect_b32 {modeB}, {mode}, {modeB}\ns_cselect_b32 {strB}, {st_}, {strB}')
            k(f's_cselect_b32 {RB[0]}, {P[ptr][0]}, {RB[0]}\ns_cselect_b32 {RB[1]}, {P[ptr][1]}, {RB[1]}\ns_cselect_b32 {RB[2]}, {nb}, {RB[2]}')
        k(f's_lshl_b32 {srcB}, {blkB}, 7')
    def signal(off, last):
        sk = k.label('notlast')
        k(f's_mov_b64 exec, 1\nv_mov_b32 {acc[0]}, 1\nbuffer_atomic_add {acc[0]}, {zero[0]}, {Rdbg}, {off} offen offset:64 sc0 sc1\ns_waitcnt vmcnt(0)')
        k(f'v_readfirstlane_b32 {st}, {acc[0]}\ns_cmp_lg_u32 {st}, {last}\ns_cbranch_scc1 {sk}')
        k(f'buffer_store_dword {one}, {zero[0]}, {Rdbg}, {off} offen offset:192 sc1\n{sk}:\ns_mov_b64 exec, -1')
    cj = ColJob(k, vm, lg, lane, s_w)
    L_w1 = k.label('w1')
    k(f's_cmp_ge_u32 s2, 103\ns_cbranch_scc1 {L_w1}\ns_cmp_ge_u32 s2, 64\ns_cbranch_scc1 {L_mod}')

    srd(k, RA, P['u'], L * D * 2)
    va = k.v(); vx = k.v(2); t = k.v(6); row = k.v(); s1 = k.s()
    k(f's_and_b32 {st}, {s_w}, 1\ns_lshl_b32 {s1}, s2, 1\ns_add_u32 {st}, {st}, {s1}\ns_lshl_b32 {st}, {st}, 4')
    k(f'v_and_b32 {t[0]}, 7, {m}\nv_lshrrev_b32 {t[2]}, 3, {m}\nv_lshl_add_u32 {t[5]}, {t[0]}, 1, {t[2]}\nv_add_u32 {row}, {st}, {t[5]}')
    k(f's_lshr_b32 {s1}, {s_w}, 1\ns_mul_i32 {st}, {s1}, 576\nv_mul_u32_u24 {va}, 1152, {row}\nv_lshl_add_u32 {va}, {q}, 4, {va}')
    for i in range(4): k(f'v_mov_b32 {z4[i]}, 0')
    k(f's_lshl_b32 {sav[0]}, s2, 8\ns_add_u32 {sav[0]}, {sav[0]}, {O_STATS}\ns_cmp_eq_u32 {s_w}, 0\ns_cselect_b32 {sav[0]}, {sav[0]}, {WS_USED}\ns_mov_b64 exec, 0xffff')
    k(f'buffer_store_dwordx4 {z4}, {l16}, {Rws}, {sav[0]} offen sc1\ns_mov_b64 exec, -1')
    k(f's_or_b32 {sav[0]}, s2, {s_w}\ns_cmp_eq_u32 {sav[0]}, 0\ns_mov_b32 {sav[0]}, {O_FW}\ns_cselect_b32 {sav[0]}, {sav[0]}, {WS_USED}')
    k(f'buffer_store_dwordx4 {z4}, {l16}, {Rws}, {sav[0]} offen sc1\nbuffer_store_dwordx4 {z4}, {l16}, {Rws}, {sav[0]} offen offset:1024 sc1')
    ix = [vm.op(f'buffer_load_dwordx4 {fr.sub(4 * i, 4)}, {va}, {RA}, {st} offen offset:{64 * i}') for i in range(9)]
    pf = k.v(2); pfs = k.s(2)
    common()
    ones = sv.sub(40, 4); gacc = sv.sub(36, 4); arr = sv[44]; msk = [k.s(2) for _ in range(3)]
    sk = k.label('noarr')
    k(f's_cmp_lg_u32 {s_w}, 0\ns_cbranch_scc1 {sk}\ns_mov_b64 exec, 1\nv_mov_b32 {arr}, 1\ns_waitcnt vmcnt(9)\nbuffer_atomic_add {arr}, {zero[0]}, {Rdbg}, 0 offen offset:64 sc0 sc1\ns_mov_b64 exec, -1\n{sk}:')
    for i in range(4): k(f'v_mov_b32 {ones[i]}, 0x3f803f80')
    k(f'v_and_b32 {t[0]}, 3, {m}')
    for e in range(3): k(f'v_cmp_eq_u32 {msk[e]}, {e + 1}, {t[0]}')
    k(f's_lshl_b32 {st}, {s_w}, 8\ns_add_u32 {st}, {st}, {SVEC}\nv_lshl_add_u32 {t[3]}, {t[5]}, 2, {st}\nv_lshrrev_b32 {t[0]}, 2, {m}\nv_cmp_eq_u32 vcc, {t[0]}, {q}')
    k(f'v_add_u32 {t[4]}, 128, {t[3]}\nv_add_u32 {t[5]}, 192, {t[3]}\nv_cndmask_b32 {t[4]}, {t[5]}, {t[4]}, vcc')
    k(f'v_lshrrev_b32 {t[0]}, 3, {m}\nv_lshl_add_u32 {t[1]}, {q}, 1, {t[0]}\nv_lshlrev_b32 {vx[0]}, 14, {t[1]}\nv_sub_u32 {t[1]}, {row}, {t[0]}\nv_lshl_add_u32 {vx[0]}, {t[1]}, 3, {vx[0]}')
    k(f's_mul_i32 {s1}, {s1}, {9 * 131072}\ns_add_u32 {s1}, {s1}, {O_XT}\nv_cmp_eq_u32 vcc, 0, {t[0]}')
    dp = 'row_ror:8 row_mask:0xf bank_mask:0xf'
    for i in range(9):
        vm.wait(ix[i])
        if i == 0: SP(8)
        r_ = fr.sub(4 * i, 4); o = sv.sub(4 * i, 4)
        k(f'v_mfma_f32_16x16x32_bf16 {acc}, {ones}, {r_}, {"0" if i == 0 else acc}')
        k(f'v_cndmask_b32_dpp {o[0]}, {r_[2]}, {r_[0]}, vcc {dp}\nv_cndmask_b32_dpp {o[1]}, {r_[3]}, {r_[1]}, vcc {dp}\ns_not_b64 vcc, vcc')
        k(f'v_mfma_f32_16x16x32_bf16 {gacc}, {r_}, {r_}, {"0" if i == 0 else gacc}')
        k(f'v_cndmask_b32_dpp {o[2]}, {r_[0]}, {r_[2]}, vcc {dp}\nv_cndmask_b32_dpp {o[3]}, {r_[1]}, {r_[3]}, vcc {dp}\ns_not_b64 vcc, vcc')
        vm.op(f'buffer_store_dwordx4 {o}, {vx[0]}, {Rws}, {s1} offen sc1')
        if i < 8: k(f's_add_u32 {s1}, {s1}, 131072')
    SP(10)
    k(f'v_cndmask_b32 {t[0]}, {gacc[0]}, {gacc[1]}, {msk[0]}\nv_cndmask_b32 {t[0]}, {t[0]}, {gacc[2]}, {msk[1]}\nv_cndmask_b32 {t[0]}, {t[0]}, {gacc[3]}, {msk[2]}')
    k(f'ds_write_b32 {t[3]}, {acc[0]}\nds_write_b32 {t[4]}, {t[0]}\ns_waitcnt lgkmcnt(0)\ns_barrier')
    a, b = k.label('notw0'), k.label('sigd')
    k(f's_cmp_lg_u32 {s_w}, 0\ns_cbranch_scc1 {a}')
    k(f'v_and_b32 {t[1]}, 1, {q}\nv_lshlrev_b32 {t[1]}, 8, {t[1]}\nv_lshl_add_u32 {t[1]}, {m}, 2, {t[1]}\nv_add_u32 {t[1]}, {SVEC}, {t[1]}')
    k(f'ds_read2_b32 {t[2:4]}, {t[1]} offset0:0 offset1:32\nds_read2_b32 {t[4:6]}, {t[1]} offset0:128 offset1:160')
    sk = k.label('notlast')
    k(f's_waitcnt vmcnt(9)\nv_readfirstlane_b32 {st}, {arr}\ns_cmp_lg_u32 {st}, 102\ns_cbranch_scc1 {sk}')
    k(f's_mov_b64 exec, 1\nbuffer_store_dword {one}, {zero[0]}, {Rdbg}, 0 offen offset:192 sc1\ns_mov_b64 exec, -1\n{sk}:\ns_waitcnt lgkmcnt(0)')
    k(f'v_add_f32 {t[0]}, {t[2]}, {t[4]}\nv_add_f32 {t[2]}, {t[3]}, {t[5]}')
    sigma_bf16(k, t[0], t[2])
    k(f'v_cvt_pk_bf16_f32 {t[2]}, {t[0]}, {t[2]}\nv_mov_b32 {t[3]}, 1\nv_lshlrev_b32 {t[1]}, 3, {lane}\ns_lshl_b32 {st}, s2, 8\ns_add_u32 {st}, {st}, {O_STATS}')
    k(f'{a}:'); SP(14); k('s_waitcnt vmcnt(0)\ns_barrier'); vm.reset()
    k(f's_cmp_lg_u32 {s_w}, 0\ns_cbranch_scc1 {b}')
    k(f's_mov_b32 exec_hi, 0\nbuffer_store_dwordx2 {t[2:4]}, {t[1]}, {Rws}, {st} offen sc1\ns_mov_b64 exec, -1')
    k(f'{b}:'); SP(9)
    for x_ in msk: x_.release()
    cj.dma(RB, srcB, strB, BUF1)
    k(f's_lshl_b32 {st}, s2, 2\ns_add_u32 {st}, {st}, {s_w}\ns_lshl_b32 {st}, {st}, 10')
    k(f's_cmp_eq_u32 s2, {O_FW // 4096}\ns_cselect_b32 {st}, {WS_USED}, {st}\nbuffer_store_dwordx4 {z4}, {l16}, {Rws}, {st} offen sc1')
    sk = k.label('nopad')
    k(f's_cmp_lg_u32 {s_w}, 2\ns_cbranch_scc1 {sk}\ns_cmp_ge_u32 s2, 36\ns_cbranch_scc1 {sk}\ns_lshr_b32 {st}, s2, 1\ns_mul_i32 {st}, {st}, {GPL}\ns_bitcmp1_b32 s2, 0\ns_cselect_b32 {sav[0]}, {129 * 1024}, 0')
    k(f's_add_u32 {st}, {st}, {sav[0]}\ns_add_u32 {st}, {st}, {O_G}\nbuffer_store_dwordx4 {z4}, {l16}, {Rws}, {st} offen sc1\n{sk}:')
    k(f's_branch {L_B}')
    for x_ in (va, vx, t, row, s1): x_.release()

    def mod_tail(ids, s_blk, sig, gran=False):
        t = k.v(2); vg = k.v(); s1 = k.s()
        for s in range(18):
            if s % 2 == 0: lg.wait(ids[s + 1])
            k(f'v_mfma_f32_16x16x32_bf16 {acc}, {sv.sub(4 * s, 4)}, {fr.sub(4 * s, 4)}, {"0" if s == 0 else acc}')
        k(f's_lshl_b32 {s1}, {s_w}, 6\ns_add_u32 {s1}, {s1}, {SVEC + 2048}\nv_lshl_add_u32 {vg}, {m}, 2, {s1}')
        k(f'v_cvt_pk_bf16_f32 {t[0]}, {acc[0]}, {acc[0]}\nv_and_b32 {t[0]}, 0xffff0000, {t[0]}')
        k(f'v_add_f32 {t[1]}, 1.0, {t[0]}\nv_cvt_pk_bf16_f32 {t[1]}, {t[1]}, {t[1]}\nv_and_b32 {t[1]}, 0xffff0000, {t[1]}')
        k(f's_mov_b64 vcc, 0\ns_sub_u32 {s1}, {s_blk}, 9\ns_cmp_lt_u32 {s1}, 9\ns_cselect_b64 vcc, -1, vcc')
        k(f's_sub_u32 {s1}, {s_blk}, 36\ns_cmp_lt_u32 {s1}, 9\ns_cselect_b64 vcc, -1, vcc')
        k(f'v_cndmask_b32 {t[0]}, {t[0]}, {t[1]}, vcc\nds_write_b32 {vg}, {t[0]}\ns_waitcnt lgkmcnt(0)\ns_barrier'); lg.reset()
        a, b = k.label('notw0'), k.label('nob')
        k(f's_cmp_lg_u32 {s_w}, 0\ns_cbranch_scc1 {a}')
        k(f'v_lshlrev_b32 {vg}, 3, {lane}\nv_add_u32 {t[0]}, {SVEC + 2048}, {vg}\nds_read_b64 {t}, {t[0]}\ns_lshl_b32 {s1}, {s_blk}, 8\ns_add_u32 {s1}, {s1}, {O_MODF}')
        k(f's_mov_b32 exec_hi, 0')
        if gran:
            k(f's_lshl_b32 {sav[0]}, {s_blk}, 9\ns_add_u32 {sav[0]}, {sav[0]}, {O_MODG}\nv_mov_b32 {acc[1]}, 1\nv_mov_b32 {acc[3]}, 1\ns_waitcnt lgkmcnt(0)')
            k(f'v_mov_b32 {acc[0]}, {t[0]}\nv_mov_b32 {acc[2]}, {t[1]}\nbuffer_store_dwordx4 {acc}, {l16}, {Rws}, {sav[0]} offen sc1')
        k(f's_waitcnt lgkmcnt(0)\nbuffer_store_dwordx2 {t}, {vg}, {Rws}, {s1} offen sc1')
        if sig:
            k(f's_sub_u32 {s1}, {s_blk}, 27\ns_cmp_ge_u32 {s1}, 18\ns_cbranch_scc1 {b}')
            k(f'v_cvt_pk_bf16_f32 {acc[0]}, {t[0]}, {t[1]}\nv_lshrrev_b32 {vg}, 1, {vg}\ns_lshl_b32 {s1}, {s1}, 7\ns_add_u32 {s1}, {s1}, {O_MODB}')
            k(f'buffer_store_dword {acc[0]}, {vg}, {Rws}, {s1} offen sc1\n{b}:')
            k(f's_cmp_ge_u32 {s_blk}, 45\ns_cbranch_scc1 {a}\ns_sub_u32 {s1}, {s_blk}, 27\ns_cmp_lt_u32 {s1}, 9')
            k(f's_cselect_b32 {sav[0]}, 12, 4\ns_cselect_b32 {sav[1]}, 8, 35\ns_waitcnt vmcnt(0)')
            signal(sav[0], sav[1])
        k(f'{a}:\ns_mov_b64 exec, -1')
        t.release(); vg.release(); s1.release()

    k(f'{L_mod}:')
    vm, lg = trackers(k); cj.vm, cj.lg = vm, lg
    blkA = k.s(); srcA = k.s(); strA = k.s(); Rc = k.s(4)
    srd(k, RA, P['wmod'], D * 3456 * 2); srd(k, Rc, P['c'], D * 2)
    k(f's_sub_u32 {blkA}, s2, 64\ns_cmp_ge_u32 {blkA}, 27\ns_cselect_b32 {st}, 9, 0\ns_cmp_ge_u32 {blkA}, 36\ns_cselect_b32 {st}, -9, {st}\ns_add_u32 {blkA}, {blkA}, {st}')
    k(f's_lshl_b32 {srcA}, {blkA}, 7\ns_mov_b32 {strA}, 6912')
    t = k.v(8); vg = k.v()
    k(f'v_lshlrev_b32 {vg}, 3, v0')
    for i in range(4): k(f'v_mov_b32 {z4[i]}, 0')
    k(f's_lshl_b32 {st}, {blkA}, 9\ns_add_u32 {st}, {st}, {O_MODG}\ns_cmp_eq_u32 {s_w}, 0\ns_cselect_b32 {st}, {st}, {WS_USED}\ns_mov_b32 exec_hi, 0')
    icl = vm.op(f'buffer_store_dwordx4 {z4}, {l16}, {Rws}, {st} offen sc1')
    k('s_mov_b64 exec, -1')
    ic = vm.op(f'buffer_load_dwordx2 {t[0:2]}, {vg}, {Rc}, 0 offen')
    ia = cj.dma(RA, srcA, strA, BUF0)
    common()
    vm.wait(ic)
    sk = k.label('noarr')
    k(f's_cmp_lg_u32 {s_w}, 0\ns_cbranch_scc1 {sk}\ns_mov_b64 exec, 1\nv_mov_b32 {acc[1]}, 1\nbuffer_atomic_add {acc[1]}, {zero[0]}, {Rdbg}, 0 offen offset:64 sc0 sc1\ns_mov_b64 exec, -1\n{sk}:')
    k(f'v_lshlrev_b32 {t[2]}, 16, {t[0]}\nv_and_b32 {t[3]}, 0xffff0000, {t[0]}\nv_lshlrev_b32 {t[4]}, 16, {t[1]}\nv_and_b32 {t[5]}, 0xffff0000, {t[1]}')
    e = k.v(4)
    for i in range(4): k(f'v_mul_f32 {e[i]}, {fl(-LOG2E)}, {t[2 + i]}')
    for i in range(4): k(f'v_exp_f32 {e[i]}, {e[i]}')
    for i in range(4): k(f'v_add_f32 {e[i]}, 1.0, {e[i]}')
    for i in range(4): k(f'v_rcp_f32 {e[i]}, {e[i]}')
    for i in range(4): k(f'v_mul_f32 {e[i]}, {e[i]}, {t[2 + i]}')
    k(f'v_cvt_pk_bf16_f32 {t[0]}, {e[0]}, {e[1]}\nv_cvt_pk_bf16_f32 {t[1]}, {e[2]}, {e[3]}\nv_add_u32 {vg}, {SVEC}, {vg}')
    k(f'ds_write_b64 {vg}, {t[0:2]}\nv_lshlrev_b32 {vg}, 4, {q}\nv_add_u32 {vg}, {SVEC}, {vg}\ns_waitcnt lgkmcnt(0)\ns_barrier')
    for s in range(18): lg.op(f'ds_read_b128 {sv.sub(4 * s, 4)}, {vg} offset:{64 * s}')
    ad = cj.addr(BUF0)
    sk = k.label('notlast')
    k(f's_waitcnt vmcnt(0) lgkmcnt(0)\ns_cmp_lg_u32 {s_w}, 0\ns_cbranch_scc1 {sk}\nv_readfirstlane_b32 {st}, {acc[1]}\ns_cmp_lg_u32 {st}, 102\ns_cbranch_scc1 {sk}')
    k(f's_mov_b64 exec, 1\nbuffer_store_dword {one}, {zero[0]}, {Rdbg}, 0 offen offset:192 sc1\ns_mov_b64 exec, -1\n{sk}:\ns_barrier'); SP(10); vm.reset(); lg.reset()
    ids = cj.reads(ad, fr)
    mod_tail(ids, blkA, True, True); SP(11)
    k(f's_cmp_ge_u32 {jb}, 200\ns_cbranch_scc1 {L_C}')
    cj.dma(RB, srcB, strB, BUF1)
    k(f's_waitcnt vmcnt(0)\ns_branch {L_B}')
    e.release(); t.release(); vg.release()

    k(f'{L_w1}:')
    common()
    cj.dma(RB, srcB, strB, BUF1)
    SP(8); k('s_waitcnt vmcnt(0)')

    k(f'{L_B}:')
    vm, lg = trackers(k); cj.vm, cj.lg = vm, lg
    k(f's_waitcnt vmcnt(1) lgkmcnt(0)\ns_barrier')
    SP(12)
    il = k.s(); k(f's_sub_u32 {il}, {modeB}, 1\ns_cmp_lt_u32 {il}, 2\ns_cselect_b32 {il}, 1, 0')
    ids = cj.read(BUF1, fr, s_il=il)
    notmod, nocenter = k.label('notmod'), k.label('nocenter')
    k(f's_cmp_lg_u32 {modeB}, 0\ns_cbranch_scc1 {notmod}')
    mod_tail(ids, blkB, True)
    k(f's_branch {L_C}\n{notmod}:')
    k('s_waitcnt lgkmcnt(0)'); lg.reset()
    k(f's_bitcmp0_b32 {modeB}, 0\ns_cbranch_scc1 {nocenter}')
    ones = sv.sub(0, 4); t = k.v(4); gof = k.v(4, 4)
    go2_ld = f'buffer_load_dwordx4 {gof}, {zero[0]}, {Rdbg}, 0 offen offset:192 sc1'
    k(go2_ld)
    for i in range(4): k(f'v_mov_b32 {ones[i]}, 0x3f803f80')
    for s in range(18): k(f'v_mfma_f32_16x16x32_bf16 {acc}, {ones}, {fr.sub(4 * s, 4)}, {"0" if s == 0 else acc}')
    nm = sv.sub(4, 2)
    k(f'v_mul_f32 {nm[0]}, {fl(-1 / 576)}, {acc[0]}')
    for i in range(0, 72, 2):
        k(f'v_lshlrev_b32 {t[0]}, 16, {fr[i]}\nv_and_b32 {t[1]}, 0xffff0000, {fr[i]}')
        k(f'v_lshlrev_b32 {t[2]}, 16, {fr[i + 1]}\nv_and_b32 {t[3]}, 0xffff0000, {fr[i + 1]}')
        k(f'v_pk_add_f32 {t[0:2]}, {t[0:2]}, {nm} op_sel_hi:[1,0]\nv_pk_add_f32 {t[2:4]}, {t[2:4]}, {nm} op_sel_hi:[1,0]')
        k(f'v_cvt_pk_bf16_f32 {fr[i]}, {t[0]}, {t[1]}\nv_cvt_pk_bf16_f32 {fr[i + 1]}, {t[2]}, {t[3]}')
    k(f'{nocenter}:')
    T = k.s(); j = k.s(); dst = k.s(); step = k.s(); rot = k.s()
    k(f's_lshl_b32 {T}, {blkB}, 2\ns_add_u32 {T}, {T}, {s_w}')
    k(f's_mul_hi_u32 {j}, {T}, {(1 << 32) // 6 + 1}\ns_mul_i32 {dst}, {j}, 6\ns_sub_u32 {dst}, {T}, {dst}\ns_lshl_b32 {dst}, {dst}, 10')
    k(f's_mul_i32 {step}, {j}, 110592\ns_add_u32 {dst}, {dst}, {step}')
    k(f's_mul_i32 {rot}, {j}, 3\ns_sub_u32 {rot}, 18, {rot}\ns_cmp_eq_u32 {rot}, 18\ns_cselect_b32 {rot}, 0, {rot}')
    k(f's_cmp_eq_u32 {modeB}, 1\ns_cselect_b32 {rot}, {rot}, 0\ns_cselect_b32 {step}, 0, {O_W2F - O_W1F}\ns_add_u32 {dst}, {dst}, {step}\ns_add_u32 {dst}, {dst}, {O_W1F}')
    k(f's_mul_i32 {j}, {T}, 18432\ns_add_u32 {j}, {j}, {O_W3F}')
    k(f's_cmp_ge_u32 {modeB}, 3\ns_cselect_b32 {dst}, {j}, {dst}\ns_cselect_b32 {step}, 1, 6\ns_lshl_b32 {step}, {step}, 10')
    notw1, L_st = k.label('notw1'), k.label('stored')
    k(f's_cmp_lg_u32 {modeB}, 1\ns_cbranch_scc1 {notw1}')
    cj.store(fr, None, Rws, dst, step, s_rot=rot)
    sk = k.label('nosig')
    k(f's_waitcnt vmcnt(0)\ns_barrier\ns_cmp_lg_u32 {s_w}, 0\ns_cbranch_scc1 {sk}')
    signal(8, 8)
    k(f'{sk}:')
    lp, ok = k.label('pollm'), k.label('gotm')
    k(f'{lp}:\ns_waitcnt vmcnt(0)\nv_and_b32 {gof[1]}, {gof[1]}, {gof[3]}\nv_readfirstlane_b32 {st}, {gof[1]}\ns_cmp_ge_u32 {st}, 1\ns_cbranch_scc1 {ok}')
    k(f's_sleep 4\n{go2_ld}\ns_add_u32 {cnt}, {cnt}, 1\ns_cmp_lt_u32 {cnt}, {SPIN_MAX}\ns_cbranch_scc1 {lp}\ns_branch {END}\n{ok}:'); vm.reset()
    k(f'v_and_b32 {t[0]}, 1, {m}\nv_xor_b32 {t[0]}, 1, {t[0]}\nv_mul_u32_u24 {t[0]}, 1152, {t[0]}\nv_lshl_add_u32 {t[0]}, {q}, 4, {t[0]}\ns_mov_b32 {st}, {O_MODB}')
    ids = [vm.op(f'buffer_load_dwordx4 {sv.sub(4 * s, 4)}, {t[0]}, {Rws}, {st} offen offset:{64 * s} sc1') for s in range(18)]
    k(f's_lshr_b32 {j}, {s_w}, 1\ns_lshl_b32 {j}, {j}, 7\ns_and_b32 {st}, {s_w}, 1\ns_lshl_b32 {st}, {st}, 4\ns_add_u32 {j}, {j}, {st}\ns_add_u32 {j}, {j}, {SVEC}')
    k(f'v_lshrrev_b32 {t[1]}, 2, {m}\nv_and_b32 {t[2]}, 3, {m}\nv_lshlrev_b32 {t[2]}, 2, {t[2]}\nv_lshl_add_u32 {t[1]}, {t[1]}, 5, {t[2]}\nv_add_u32 {t[1]}, {j}, {t[1]}')
    for s in range(18):
        vm.wait(ids[s])
        k(f'v_mfma_f32_16x16x32_bf16 {acc}, {sv.sub(4 * s, 4)}, {fr.sub(4 * s, 4)}, {"0" if s == 0 else acc}')
    k(f'ds_write2st64_b32 {t[1]}, {acc[0]}, {acc[1]} offset0:0 offset1:1\ns_waitcnt lgkmcnt(0)\ns_barrier\ns_cmp_lg_u32 {s_w}, 0\ns_cbranch_scc1 {L_st}')
    k(f'v_add_u32 {t[0]}, {SVEC}, {l16}\nds_read_b128 {acc}, {t[0]}\nv_mul_u32_u24 {t[1]}, 2304, {q}\nv_lshl_add_u32 {t[1]}, {m}, 4, {t[1]}')
    k(f's_lshl_b32 {j}, {blkB}, 8\ns_add_u32 {j}, {j}, {O_MODF + 6 * 2304}\ns_mov_b32 exec_hi, 0\ns_waitcnt lgkmcnt(0)')
    k(f'buffer_store_dwordx4 {acc}, {t[1]}, {Rws}, {j} offen sc1\ns_mov_b64 exec, -1')
    k(f'{L_st}:\ns_branch {L_C}')
    k(f'{notw1}:'); vm.reset()
    cj.store(fr, None, Rws, dst, step, s_rot=rot)
    k(f'{L_C}:'); SP(13)
    code_prefetch(k, None, NEXT, END, 60000, 'v0', pf, pfs)
    k(f's_branch {NEXT}')

TAB, KD = 0, 17408

def conv(k, P, lane, s_w, END, NEXT, dump, SP):
    vm, lg = trackers(k)
    cidx = k.s(); s_d = k.s(); st = k.s(); st2 = k.s(); sav = k.s(2)
    k(f's_and_b32 {cidx}, s2, 7\ns_mul_i32 {cidx}, {cidx}, 18\ns_lshr_b32 {st}, s2, 3\ns_add_u32 {cidx}, {cidx}, {st}\ns_sub_u32 {cidx}, {cidx}, 14')
    k(f's_lshl_b32 {s_d}, {cidx}, 2\ns_add_u32 {s_d}, {s_d}, {s_w}\ns_lshl_b32 {st}, {cidx}, 3')
    sdt = k.s(2); sD = k.s(2)
    k(f's_load_dwordx2 {sdt}, {P["logdt"]}, {st}\ns_load_dwordx2 {sD}, {P["Dskip"]}, {st}')
    R = k.s(4); Rws = k.s(4); Rdbg = k.s(4)
    par = k.v(4); t = k.v(8); x = k.v(16)
    k(f'v_lshlrev_b32 {t[0]}, 2, {lane}\ns_lshl_b32 {st2}, {s_d}, 8')
    for i, n in enumerate(('logA', 'Aim', 'Cr', 'Ci')):
        srd(k, R, P[n], D * 128 * 2)
        ipar = vm.op(f'buffer_load_dword {par[i]}, {t[0]}, {R}, {st2} offen')
    srd(k, Rws, P['ws'], WS_USED); srd(k, Rdbg, P['dbg'], 256)
    wb = k.s(); k(f's_mul_i32 {wb}, {s_w}, {WSTR}')
    q = k.v(); m = k.v(); ag = k.v(); am = k.v(); a4 = k.v(); fl_v = k.v(2)
    k(f'v_lshrrev_b32 {q}, 4, {lane}\nv_and_b32 {m}, 15, {lane}')
    ga = k.v(32); cst = k.v()
    k(f's_add_u32 {st2}, {wb}, {KD - 2 * (134 * 128 - 128)}\nv_mov_b32 {cst}, {st2}')
    k(f'v_lshlrev_b32 {t[2]}, 3, {lane}\nv_cvt_f32_u32 {t[2]}, {t[2]}')
    for c in range(4):
        for e in range(0, 8, 2):
            k(f'v_add_f32 {t[4]}, {fl(512 * c + e)}, {t[2]}\nv_add_f32 {t[5]}, {fl(512 * c + e + 1)}, {t[2]}\nv_cvt_pk_bf16_f32 {t[4]}, {t[4]}, {t[5]}')
            k(f'v_mad_u32_u16 {ga[8 * c + e]}, {t[4]}, 2, {cst}\nv_mad_u32_u16 {ga[8 * c + e + 1]}, {t[4]}, 2, {cst} op_sel:[1,0,0,0]')
    k(f's_add_u32 {st2}, {wb}, {KD}\nv_lshl_add_u32 {t[4]}, {lane}, 4, {st2}\nv_cmp_gt_u32 vcc, 16, {lane}')
    for e in range(8): k(f'v_add_u32 {t[5]}, {2 * e}, {t[4]}\nv_cndmask_b32 {ga[e]}, {ga[e]}, {t[5]}, vcc')
    VM = vmaps()
    kda = k.v(4)
    k(f'v_lshlrev_b32 {t[2]}, 2, {m}')
    for s in range(4):
        lut = sum((VM[s][j] >> s) << (4 * j) for j in range(16))
        base = 0 if s == 0 else 128 + 128 * s
        k(f's_mov_b32 {sav[0]}, {lut & 0xffffffff}\ns_mov_b32 {sav[1]}, {lut >> 32}\nv_lshrrev_b64 {t[4:6]}, {t[2]}, {sav}\nv_and_b32 {t[4]}, 15, {t[4]}')
        k(f'v_lshl_add_u32 {t[4]}, {q}, 6, {t[4]}\ns_add_u32 {st2}, {wb}, {KD + 2 * base}\nv_lshl_add_u32 {kda[s]}, {t[4]}, 1, {st2}')
    cst.release()
    atw = k.v(); atr = k.v()
    k(f'v_lshl_add_u32 {atw}, {lane}, 3, {wb}\nv_mul_u32_u24 {atr}, 544, {m}\nv_lshl_add_u32 {atr}, {q}, 4, {atr}\nv_add_u32 {atr}, {wb}, {atr}')
    z4 = k.v(4)
    for i in range(4): k(f'v_mov_b32 {z4[i]}, 0')
    k(f'v_lshrrev_b32 {t[4]}, 5, v0\nv_mul_u32_u24 {t[4]}, {HSTR}, {t[4]}\nv_and_b32 {t[5]}, 31, v0\nv_lshl_add_u32 {t[4]}, {t[5]}, 4, {t[4]}\nv_add_u32 {t[4]}, {HB}, {t[4]}')
    k(f'v_cmp_gt_u32 vcc, 128, v0\ns_and_saveexec_b64 {sav}, vcc\nds_write_b128 {t[4]}, {z4}\ns_mov_b64 exec, {sav}')
    k('s_waitcnt lgkmcnt(0)')
    k(f's_lshl_b32 {st2}, {s_w}, 4\ns_lshr_b64 {sdt}, {sdt}, {st2}\ns_lshl_b32 {sdt[0]}, {sdt[0]}, 16')
    dt = k.v(); ks = k.v()
    k(f'v_mov_b32 {dt}, {fl(LOG2E)}\nv_mul_f32 {dt}, {sdt[0]}, {dt}\nv_exp_f32 {dt}, {dt}\nv_cvt_pk_bf16_f32 {dt}, {dt}, {dt}\nv_and_b32 {dt}, 0xffff0000, {dt}')
    SP(1); vm.wait(ipar); SP(2)
    pr = lambda: [k.v(2), k.v(2)]
    w1, w16, U = pr(), pr(), pr()
    er = k.v(2); rev = k.v(2)
    un = lambda d, s_, hi: f'v_and_b32 {d}, 0xffff0000, {s_}' if hi else f'v_lshlrev_b32 {d}, 16, {s_}'
    for md in range(2):
        k(un(er[md], par[0], md)); k(un(rev[md], par[1], md)); k(un(U[0][md], par[2], md)); k(un(U[1][md], par[3], md))
    for md in range(2): k(f'v_mul_f32 {er[md]}, {fl(LOG2E)}, {er[md]}')
    for md in range(2): k(f'v_exp_f32 {er[md]}, {er[md]}')
    k(f'v_max3_f32 {t[0]}, |{U[0][0]}|, |{U[0][1]}|, |{U[1][0]}|\nv_max_f32 {t[0]}, |{U[1][1]}|, {t[0]}')
    k(f'v_cvt_pk_bf16_f32 {t[1]}, {er[0]}, {er[1]}')
    for mm in ('quad_perm:[1,0,3,2]', 'quad_perm:[2,3,0,1]', 'row_half_mirror', 'row_mirror'):
        k(f'v_max_f32_dpp {t[0]}, {t[0]}, {t[0]} {mm} row_mask:0xf bank_mask:0xf')
    for md in range(2):
        k(un(er[md], t[1], md))
        k(f'v_mul_f32 {er[md]}, {er[md]}, {dt}\nv_mul_f32 {rev[md]}, {rev[md]}, {dt}')
        k(f'v_mul_f32 {er[md]}, {fl(-LOG2E)}, {er[md]}\nv_mul_f32 {rev[md]}, 0.15915494, {rev[md]}')
    k(f'v_readlane_b32 {st2}, {t[0]}, 0\nv_readlane_b32 {sav[0]}, {t[0]}, 16\nv_readlane_b32 {sav[1]}, {t[0]}, 32\nv_readlane_b32 {st}, {t[0]}, 48')
    k(f's_max_u32 {st2}, {st2}, {sav[0]}\ns_max_u32 {st}, {st}, {sav[1]}\ns_max_u32 {st2}, {st2}, {st}')
    for w_, mul in ((w1, None), (w16, '16.0')):
        for md in range(2):
            a, b = t[2 + md], t[4 + md]
            if mul: k(f'v_mul_f32 {a}, {fl(16.)}, {er[md]}\nv_mul_f32 {b}, {fl(16.)}, {rev[md]}\nv_fract_f32 {b}, {b}\nv_exp_f32 {a}, {a}')
            else: k(f'v_fract_f32 {b}, {rev[md]}\nv_exp_f32 {a}, {er[md]}')
            k(f'v_cos_f32 {w_[0][md]}, {b}\nv_sin_f32 {w_[1][md]}, {b}')
        for c in range(2): k(f'v_pk_mul_f32 {w_[c]}, {w_[c]}, {t[2:4]}')
    k(f'v_frexp_exp_i32_f32 {t[0]}, {st2}\nv_sub_u32 {t[1]}, 8, {t[0]}\nv_add_u32 {t[0]}, -7, {t[0]}\nv_ldexp_f32 {ks}, {dt}, {t[0]}')
    for md in range(2):
        for c in range(2): k(f'v_ldexp_f32 {U[c][md]}, {U[c][md]}, {t[1]}')
    er.release(); rev.release(); dt.release()
    tm = [k.v(2) for _ in range(4)]
    def cmul(d, z, s_, ta, tb):
        return [f'v_pk_mul_f32 {ta}, {z[1]}, {s_[1]}', f'v_pk_mul_f32 {tb}, {z[0]}, {s_[1]}',
                f'v_pk_fma_f32 {d[0]}, {z[0]}, {s_[0]}, {ta} neg_lo:[0,0,1] neg_hi:[0,0,1]', f'v_pk_fma_f32 {d[1]}, {z[1]}, {s_[0]}, {tb}']
    w32, w64, w128, w2, w4, w8, V = pr(), pr(), pr(), pr(), pr(), pr(), pr()
    for d_, s_ in ((w32, w16), (w64, w32), (w128, w64)):
        for x_ in cmul(d_, s_, s_, tm[0], tm[1]): k(x_)
    pv = [k.v(2), k.v(2)]; pu = [k.v(2), k.v(2)]
    fa = k.v(32, 4); fb = k.v(32, 4); kacc = k.v(16, 4)
    state = {'V': None, 'nv': 0, 'nu': 0}
    def v_entry(val, slot):
        out = []
        pk = pv[state['nv'] & 1]; state['nv'] += 1
        if val == 0:
            out += [f'v_mov_b32 {pk[0]}, 0x3c00', f'v_mov_b32 {pk[1]}, 0x3c00']
        else:
            if val == 1: cur = w1
            else:
                step = w1 if val <= 16 else w2 if val <= 32 else w4 if val <= 64 else w8
                cur = {2: w2, 4: w4, 8: w8}.get(val, V)
                out += cmul(cur, state['V'], step, tm[0], tm[1])
            state['V'] = cur
            out += [f'v_cvt_pk_f16_f32 {pk[md]}, {cur[0][md]}, {cur[1][md]}' for md in range(2)]
        out.append(('ds', f'ds_write_b64 {atw}, {pk} offset:{TAB + slot * 544}'))
        return out
    def u_entry(val, row):
        out = []
        pk = pu[state['nu'] & 1]; state['nu'] += 1
        if val:
            step = w16 if val <= 256 else w32 if val <= 512 else w64 if val <= 1024 else w128
            out += cmul(U, U, step, tm[2], tm[3])
        out += [f'v_cvt_pk_f16_f32 {pk[md]}, {U[0][md]}, -{U[1][md]}' for md in range(2)]
        out.append(('ds', f'ds_write_b64 {atw}, {pk} offset:{TAB + (16 + row) * 544}'))
        return out
    def put(x_):
        if isinstance(x_, tuple): return lg.op(x_[1])
        k(x_)
    pend = []
    flag_ld = f'buffer_load_dwordx2 {fl_v}, {z4[0]}, {Rdbg}, 0 offen offset:192 sc1'
    ifl = None
    for s in range(4):
        vs = sorted((VM[s][j], j) for j in range(16) if s == 0 or VM[s][j] != VM[s - 1][j])
        us = [16 * u for u in range(16)] if s == 0 else [(128 << s) + (16 << s) * u for u in range(9 if s == 3 else 8)]
        sv_ = [x_ for val, j in vs for x_ in v_entry(val, j)]
        su_ = [x_ for r_, val in enumerate(us) for x_ in u_entry(val, r_)]
        stream = interleave(sv_, su_)
        for n_, x_ in enumerate(stream):
            put(x_)
            if n_ == 27:
                while pend:
                    idr, mf = pend.pop(0); lg.wait(idr); k(mf)
            if s == 3 and n_ == 40: k(flag_ld)
        assert not pend
        for kk in range(8):
            lg.op(f'ds_read_b128 {fa.sub(4 * kk, 4)}, {atr} offset:{TAB + 16 * 544 + 64 * kk}')
            i_ = lg.op(f'ds_read_b128 {fb.sub(4 * kk, 4)}, {atr} offset:{TAB + 64 * kk}')
            ac = kacc.sub(4 * s, 4)
            pend.append((i_, f'v_mfma_f32_16x16x32_f16 {ac}, {fa.sub(4 * kk, 4)}, {fb.sub(4 * kk, 4)}, {"0" if kk == 0 else ac}'))
    for x_ in (w1, w16, w32, w64, w128, w2, w4, w8, V, U, tm, pv, pu):
        for y_ in x_: y_.release()
    md_ = k.v(16, 4); sg = md_; cnt = k.s(); mg = par.sub(0, 2); amg = par[2]
    k(f'v_lshrrev_b32 {amg}, 2, {m}\nv_cmp_eq_u32 vcc, 3, {amg}\nv_addc_co_u32 {amg}, vcc, 0, {amg}, vcc\nv_mul_u32_u24 {amg}, 4608, {amg}\nv_and_b32 {mg[0]}, 3, {m}\nv_lshl_add_u32 {amg}, {mg[0]}, 3, {amg}')
    def kd_out(s):
        ac = kacc.sub(4 * s, 4)
        for e in range(4): k(f'v_mul_f32 {ac[e]}, {ks}, {ac[e]}')
        k(f'v_cvt_pk_bf16_f32 {ac[0]}, {ac[0]}, {ac[1]}\nv_cvt_pk_bf16_f32 {ac[2]}, {ac[2]}, {ac[3]}')
        for e in range(4): lg.op(f'ds_write_b16{"_d16_hi" if e & 1 else ""} {kda[s]}, {ac[e & 2]} offset:{32 * e}')
    for s in range(3): kd_out(s)
    SP(3); lg.reset() if SP.on else None
    got = k.s()
    def x_loads():
        k(f's_lshl_b32 {st}, {cidx}, 14\ns_add_u32 {st}, {st}, {O_XT}')
        for i in range(4):
            k(f'buffer_load_dwordx4 {x.sub(4 * i, 4)}, {ag}, {Rws}, {st} offen sc1')
            if i < 3: k(f's_add_u32 {st}, {st}, 4096')
    def gran_loads():
        for i in range(4): k(f's_mov_b32 {st}, {O_STATS + 4096 * i}\nbuffer_load_dwordx4 {sg.sub(4 * i, 4)}, {ag}, {Rws}, {st} offen sc1')
        mod_loads()
    def gran_check():
        k(f's_waitcnt vmcnt(0)\nv_and_b32 {am}, {sg[1]}, {sg[3]}')
        for i in (5, 9, 13): k(f'v_bitop3_b32 {am}, {am}, {sg[i]}, {sg[i + 2]} bitop3:0x80')
        k(f'v_cmp_ne_u32 vcc, 1, {am}\ns_cmp_eq_u64 vcc, 0')
    def mod_loads():
        k(f's_lshl_b32 {st}, {cidx}, 5\ns_add_u32 {st}, {st}, {O_MODG}')
        k(f'buffer_load_dwordx2 {mg}, {amg}, {Rws}, {st} offen sc1')
    def spin(i, flag_ld):
        lp, ok = k.label('poll'), k.label('go')
        k(f'{lp}:\nv_readfirstlane_b32 {st}, {fl_v[i]}\ns_cmp_ge_u32 {st}, 1\ns_cbranch_scc1 {ok}')
        k(f's_sleep 4\n{flag_ld}\ns_add_u32 {cnt}, {cnt}, 1\ns_cmp_lt_u32 {cnt}, {SPIN_MAX}\ns_waitcnt vmcnt(0)\ns_cbranch_scc1 {lp}\ns_branch {END}\n{ok}:')
    k(f'v_lshlrev_b32 {ag}, 4, v0\nv_lshlrev_b32 {a4}, 2, v0\ns_mov_b32 {cnt}, 0\ns_waitcnt vmcnt(0)')
    spin(0, flag_ld)
    gran_loads()
    while pend:
        idr, mf = pend.pop(0); lg.wait(idr); k(mf)
    kd_out(3)
    kc = fa.sub(0, 16); pvv = fa.sub(16, 8)
    gid = [lg.op(f'ds_read_u16 {ga[e]}, {ga[e]}') for e in range(32)]
    aw = kda[0]; ap = kda[1]
    k(f'v_lshl_add_u32 {aw}, {lane}, 4, {wb}\nv_lshrrev_b32 {ap}, 1, {lane}\nv_mul_u32_u24 {ap}, 4160, {ap}\nv_and_b32 {t[1]}, 1, {lane}')
    k(f'v_lshl_add_u32 {ap}, {t[1]}, 4, {ap}\nv_add_u32 {ap}, {wb}, {ap}')
    k(f's_mov_b64 exec, 0xff'); lg.op(f'ds_write_b128 {ap}, {z4}'); k('s_mov_b64 exec, -1')
    for c in range(4):
        lg.wait(gid[8 * c + 7])
        for e in range(4): k(f'v_lshl_or_b32 {kc[4 * c + e]}, {ga[8 * c + 2 * e + 1]}, 16, {ga[8 * c + 2 * e]}')
        lg.op(f'ds_write_b128 {aw}, {kc.sub(4 * c, 4)} offset:{32 + 1024 * c}')
    ids = [lg.op(f'ds_read_b64 {pvv.sub(2 * c, 2)}, {aw} offset:{24 + 1024 * c}') for c in range(4)]
    late = k.label('late')
    gran_check()
    k(f's_cselect_b32 {got}, 1, 0\ns_cbranch_scc0 {late}')
    x_loads()
    k(f'{late}:')
    for c in range(4):
        lg.wait(ids[c])
        o = fb.sub(12 * (c & 1), 12); d_ = kc.sub(4 * c, 4); p0, p1 = pvv[2 * c], pvv[2 * c + 1]
        seq = [p0, p1, d_[0], d_[1], d_[2], d_[3]]
        o3 = o.sub(0, 4); o1 = o.sub(4, 4); o2 = o.sub(8, 4)
        for i in range(4): k(f'v_alignbit_b32 {o3[i]}, {seq[i + 1]}, {seq[i]}, 16')
        for i in range(3): k(f'v_mov_b32 {o1[i]}, {o3[i + 1]}')
        k(f'v_alignbit_b32 {o1[3]}, {seq[5]}, {seq[4]}, 16')
        for i in range(4): k(f'v_mov_b32 {o2[i]}, {seq[i + 1]}')
        for r_, oo in ((1, o1), (2, o2), (3, o3)): lg.op(f'ds_write_b128 {aw}, {oo} offset:{4160 * r_ + 32 + 1024 * c}')
    if dump:
        k(f's_lshl_b32 {st}, {s_d}, 12\ns_add_u32 {st}, {st}, {O_DBG}\nv_lshlrev_b32 {t[1]}, 4, {lane}')
        for c in range(4): vm.op(f'buffer_store_dwordx4 {kc.sub(4 * c, 4)}, {t[1]}, {Rws}, {st} offen offset:{1024 * c}')
    ga.release(); acc = k.v(32, 4); kacc.release(); ks.release(); atw.release(); atr.release()
    SP(4); lg.reset() if SP.on else None
    have = k.label('have')
    lp, ok = k.label('again'), k.label('rows')
    k(f's_cmp_lg_u32 {got}, 0\ns_cbranch_scc1 {have}\n{lp}:')
    gran_loads(); gran_check()
    k(f's_cbranch_scc1 {ok}\ns_sleep 2\ns_add_u32 {cnt}, {cnt}, 1\ns_cmp_lt_u32 {cnt}, {SPIN_MAX}\ns_cbranch_scc1 {lp}\ns_branch {END}\n{ok}:')
    x_loads()
    k(f'{have}:')
    xf = k.v(32); hf = k.v(32); st_ = k.v(16)
    for i in range(8): k(f'v_and_b32 {st_[2 * i]}, 0xffff0000, {sg[2 * i]}\nv_lshlrev_b32 {st_[2 * i + 1]}, 16, {sg[2 * i]}')
    for i in range(8): k(f'v_rcp_f32 {st_[2 * i]}, {st_[2 * i]}')
    for i in range(8): k(f'v_mul_f32 {st_[2 * i + 1]}, -{st_[2 * i + 1]}, {st_[2 * i]}')
    k('s_waitcnt vmcnt(0)')
    SP(14); lg.reset() if SP.on else None
    for i in range(16): k(f'v_lshlrev_b32 {xf[2 * i]}, 16, {x[i]}\nv_and_b32 {xf[2 * i + 1]}, 0xffff0000, {x[i]}')
    k(f'v_add_u32 {am}, {HB + 512}, {a4}')
    for j in range(16): k(f'v_pk_fma_f32 {hf.sub(2 * j, 2)}, {xf.sub(2 * j, 2)}, {st_.sub(2 * (j // 2), 2)}, {st_.sub(2 * (j // 2), 2)} op_sel:[0,0,1] op_sel_hi:[1,0,1]')
    lp, ok = k.label('gran'), k.label('got')
    k(f'{lp}:')
    k(f'v_cmp_ne_u32 vcc, 1, {mg[1]}\ns_cmp_eq_u64 vcc, 0\ns_cbranch_scc1 {ok}\ns_sleep 2')
    mod_loads()
    k(f's_add_u32 {cnt}, {cnt}, 1\ns_cmp_lt_u32 {cnt}, {SPIN_MAX}\ns_waitcnt vmcnt(0)\ns_cbranch_scc1 {lp}\ns_branch {END}\n{ok}:')
    for i in range(16): k(f'v_mov_b32_dpp {md_[i]}, {mg[0]} row_newbcast:{i} row_mask:0xf bank_mask:0xf')
    SP(5)
    for i in range(4):
        for j in range(4 * i, 4 * i + 4): k(f'v_pk_fma_f32 {hf.sub(2 * j, 2)}, {hf.sub(2 * j, 2)}, {md_.sub(4 + 2 * (j & 1), 2)}, {md_.sub(2 * (j & 1), 2)}')
        for c in range(4): k(f'v_cvt_pk_bf16_f32 {x[4 * i + c]}, {hf[8 * i + c]}, {hf[8 * i + 4 + c]}')
        for c in range(4): lg.op(f'ds_write_b32 {am}, {x[4 * i + c]} offset:{HSTR * c + 1024 * i}')
    st_.release()
    aA = kda[2]; aB = kda[3]
    k(f'v_bfe_u32 {t[0]}, {lane}, 2, 2\nv_mul_u32_u24 {aA}, 4160, {t[0]}\nv_and_b32 {t[0]}, 3, {lane}\nv_lshl_add_u32 {aA}, {t[0]}, 3, {aA}')
    k(f'v_lshlrev_b32 {t[0]}, 4, {q}\nv_sub_u32 {aA}, {aA}, {t[0]}\ns_add_u32 {st}, {wb}, 56\nv_add_u32 {aA}, {st}, {aA}')
    k(f's_mul_i32 {st}, {s_w}, {HSTR}\ns_add_u32 {st}, {st}, {HB + 480}\nv_lshl_add_u32 {aB}, {m}, 5, {t[0]}\nv_add_u32 {aB}, {st}, {aB}')
    lg.all(); k('s_barrier'); SP(6)
    fa2 = k.a(32, 4); fb2 = k.a(32, 4)
    sets = [(fa, fb), (fa2, fb2)]
    k(f'v_add_u32 {aB}, -448, {aB}')
    def reads(r_):
        A_, B_ = sets[r_ & 1]; out = []
        for i in range(8):
            out.append(f'ds_read_b128 {B_.sub(4 * i, 4)}, {aB} offset:{448 - 64 * r_ + 512 * i}')
            out.append(f'ds_read_b64_tr_b16 {A_.sub(4 * i, 2)}, {aA} offset:{64 * r_ + 8 + 512 * i}')
            out.append(f'ds_read_b64_tr_b16 {A_.sub(4 * i + 2, 2)}, {aA} offset:{64 * r_ + 512 * i}')
        return out
    jm = k.s(); l16 = k.v()
    k(f's_lshr_b32 {jm}, s2, 5\ns_sub_u32 {jm}, {jm}, 2\nv_lshlrev_b32 {l16}, 4, {lane}')
    pd = PairDma(k, s_w, jm, O_W1F, Rws, l16, W1_AT)
    early = [g for P_ in range(5) for g in pd.ops(P_)]
    flag_ld = f'buffer_load_dwordx2 {fl_v}, {z4[0]}, {Rdbg}, 0 offen offset:200 sc1'
    cur = [lg.op(x_) for x_ in reads(0)]
    for r_ in range(8):
        rd = reads(r_ + 1) if r_ < 7 else []
        A_, B_ = sets[r_ & 1]; nxt = []
        order = [(i, tt) for i in range(8) for tt in range(i, 8)] if r_ else sorted(((i, tt) for i in range(8) for tt in range(i, 8)), key=lambda p: (max(p[0], p[1] - p[0]), p))
        seen = set()
        if r_ == 1: k(flag_ld)
        if r_ == 3: k('s_waitcnt vmcnt(0)'); spin(0, flag_ld)
        for n_, (i, tt) in enumerate(order):
            lg.wait(max(cur[3 * i + 2], cur[3 * (tt - i)]))
            first = r_ == 0 and tt not in seen; seen.add(tt)
            k(f'v_mfma_f32_16x16x32_bf16 {acc.sub(4 * tt, 4)}, {A_.sub(4 * i, 4)}, {B_.sub(4 * (tt - i), 4)}, {"0" if first else acc.sub(4 * tt, 4)}')
            if rd: nxt.append(lg.op(rd.pop(0)))
            if r_ >= 3 and n_ >= 24 and n_ % 3 == 0 and early:
                for x_ in early.pop(0): k(x_)
        cur = nxt
    assert not early
    SP(7)
    k(f'v_lshlrev_b32 {t[0]}, 3, {q}\nv_lshl_add_u32 {t[0]}, {m}, 5, {t[0]}\nv_add_u32 {t[0]}, {wb}, {t[0]}')
    for tt in range(8):
        o = fa.sub(2 * tt, 2)
        k(f'v_cvt_pk_bf16_f32 {o[0]}, {acc[4 * tt]}, {acc[4 * tt + 1]}\nv_cvt_pk_bf16_f32 {o[1]}, {acc[4 * tt + 2]}, {acc[4 * tt + 3]}')
        k(f'ds_write_b64 {t[0]}, {o} offset:{512 * tt}')
    dv = t.sub(4, 4)
    k(f's_lshl_b32 {st}, {sD[0]}, 16\ns_and_b32 {st2}, {sD[0]}, 0xffff0000\nv_mov_b32 {dv[0]}, {st}\nv_mov_b32 {dv[1]}, {st2}')
    k(f's_lshl_b32 {st}, {sD[1]}, 16\ns_and_b32 {st2}, {sD[1]}, 0xffff0000\nv_mov_b32 {dv[2]}, {st}\nv_mov_b32 {dv[3]}, {st2}')
    k('s_waitcnt lgkmcnt(0)\ns_barrier')
    lg.reset()
    yp = fb.sub(0, 16); yf = acc; o = fa
    ids = [[lg.op(f'ds_read_b32 {yp[4 * i + c]}, {a4} offset:{WSTR * c + 1024 * i}') for c in range(4)] for i in range(4)]
    k(f's_lshl_b32 {st}, {cidx}, 15\ns_lshl_b32 {st2}, {s_w}, 11\ns_add_u32 {st}, {st}, {st2}\ns_add_u32 {st}, {st}, {O_X2}')
    k(f's_add_u32 {st2}, {wb}, 4096\nv_lshl_add_u32 {am}, {lane}, 5, {st2}\nv_lshl_add_u32 {a4}, {lane}, 4, {st2}\nv_lshlrev_b32 {ag}, 4, {lane}')
    odd, fin = k.label('odd'), k.label('fin')
    for i in range(4):
        lg.wait(ids[i][3])
        for c in range(4): k(f'v_lshlrev_b32 {yf[8 * i + c]}, 16, {yp[4 * i + c]}\nv_and_b32 {yf[8 * i + 4 + c]}, 0xffff0000, {yp[4 * i + c]}')
        for j in range(4 * i, 4 * i + 4): k(f'v_pk_fma_f32 {yf.sub(2 * j, 2)}, {hf.sub(2 * j, 2)}, {dv.sub(2 * (j & 1), 2)}, {yf.sub(2 * j, 2)}')
        for j in range(4 * i, 4 * i + 4): k(f'v_pk_fma_f32 {yf.sub(2 * j, 2)}, {yf.sub(2 * j, 2)}, {md_.sub(8 + 2 * (j & 1), 2)}, {xf.sub(2 * j, 2)}')
        for j in range(4 * i, 4 * i + 4): k(f'v_pk_mul_f32 {xf.sub(2 * j, 2)}, {yf.sub(2 * j, 2)}, {md_.sub(12 + 2 * (j & 1), 2)}')
    k(f's_bitcmp1_b32 {cidx}, 0\ns_cbranch_scc1 {odd}')
    for par_ in range(2):
        A_, B_ = (yf, xf) if par_ == 0 else (xf, yf)
        for r_ in range(8):
            for c in range(2):
                k(f'v_cvt_pk_bf16_f32 {o[4 * r_ + c]}, {A_[4 * r_ + 2 * c]}, {A_[4 * r_ + 2 * c + 1]}')
                k(f'v_cvt_pk_bf16_f32 {o[4 * r_ + 2 + c]}, {B_[4 * r_ + 2 * c]}, {B_[4 * r_ + 2 * c + 1]}')
            k(f'ds_write_b128 {am}, {o.sub(4 * r_, 4)} offset:{2048 * (r_ >> 1) + 16 * (r_ & 1)}')
        if par_ == 0: k(f's_branch {fin}\n{odd}:')
    k(f'{fin}:'); lg.reset()
    ids = [lg.op(f'ds_read_b128 {fb.sub(4 * r_, 4)}, {a4} offset:{1024 * r_}') for r_ in range(8)]
    for r_ in range(8):
        lg.wait(ids[r_])
        k(f'buffer_store_dwordx4 {fb.sub(4 * r_, 4)}, {ag}, {Rws}, {st} offen offset:{1024 * (r_ & 1)} sc1')
        if r_ & 1 and r_ < 7: k(f's_add_u32 {st}, {st}, 8192')
```

```python
from common import *

K2_LDS = LDS_BYTES
T_B, T_F = TABS, TABS + 7168
XBUF, HBUF = 0, 73728
X1C, PSTL = 147456, 147456 + 9216
SPIN_MAX = 40000
GC1 = -2.0 * LOG2E * 0.7978845608028654
GC2 = GC1 * 0.044715
PI = [0, 1, 2, 5, 6, 7, 9, 10, 11, 14, 15, 16, 3, 12, 4, 8, 13, 17]
MF = 'v_mfma_f32_16x16x32_bf16'

def un(d, s_, hi): return f'v_and_b32 {d}, 0xffff0000, {s_}' if hi else f'v_lshlrev_b32 {d}, 16, {s_}'

def gelu_consts(k, sig, c):
    k(f'v_mov_b32 {c[2]}, {sig}\nv_rcp_f32 {c[0]}, {sig}')
    k(f'v_mul_f32 {c[1]}, {c[0]}, {c[0]}\nv_mul_f32 {c[1]}, {c[1]}, {c[0]}')
    k(f'v_mul_f32 {c[0]}, {fl(GC1)}, {c[0]}\nv_mul_f32 {c[1]}, {fl(GC2)}, {c[1]}')

def phase2(k, P, lane, s_w, END, SP, opt=()):
    stamps = SP.on
    WFL = ' sc1'
    PFL = ' '.join(o[2:] for o in opt if o.startswith('p_')) or 'sc1'
    q = k.v(); m = k.v(); l16 = k.v(); one = k.v(); zero = k.v(); fv4 = k.v(8, 4)
    Rws = k.s(4); RG = k.s(4); RW = k.s(4)
    srd(k, RG, P['dbg'], 256)
    k(f'v_mov_b32 {one}, 1\nv_mov_b32 {zero}, 0')
    go_ld = f'buffer_load_dwordx4 {fv4[0:4]}, {zero}, {RG}, 0 offen offset:192 sc1'
    k(go_ld)
    k(f'v_lshrrev_b32 {q}, 4, {lane}\nv_and_b32 {m}, 15, {lane}\nv_lshlrev_b32 {l16}, 4, {lane}')
    rb = k.s(); jm = k.s(); mb = k.s(); fs = k.s(); st = k.s(); st1 = k.s(); sav = k.s(2); cnt = k.s(); mt = k.s()
    k(f's_and_b32 {st}, s2, 1\ns_lshl_b32 {mb}, {st}, 4\ns_bfe_u32 {st}, s2, 0x20001\ns_lshl_b32 {fs}, {st}, 1\ns_lshl_b32 {rb}, {st}, 2\ns_add_u32 {rb}, {rb}, {mb}')
    k(f's_bfe_u32 {st}, s2, 0x20003\ns_add_u32 {rb}, {rb}, {st}\ns_lshr_b32 {jm}, s2, 5\ns_sub_u32 {jm}, {jm}, 2')
    k(f's_bfe_u32 {st}, s2, 0x40003\ns_add_u32 {mb}, {mb}, {st}\ns_lshr_b32 {st}, s2, 7\ns_add_u32 {fs}, {fs}, {st}')
    if 'a4' in opt:
        k(f's_and_b32 {mb}, s2, 3\ns_lshl_b32 {mb}, {mb}, 3\ns_bfe_u32 {st}, s2, 0x30003\ns_add_u32 {mb}, {mb}, {st}')
        k(f's_bfe_u32 {fs}, s2, 0x10002\ns_lshl_b32 {fs}, {fs}, 2\ns_lshr_b32 {st}, s2, 6\ns_add_u32 {fs}, {fs}, {st}')
    if 'a1' in opt: k(f's_lshr_b32 {mb}, s2, 3\ns_and_b32 {fs}, s2, 7')
    if 'a8' in opt:
        k(f's_and_b32 {mb}, s2, 7\ns_lshl_b32 {mb}, {mb}, 2\ns_bfe_u32 {st}, s2, 0x20003\ns_add_u32 {mb}, {mb}, {st}\ns_lshr_b32 {fs}, s2, 5')
    k(f's_lshl_b32 {mt}, {rb}, 2\ns_add_u32 {mt}, {mt}, {s_w}\ns_mov_b32 {cnt}, 0')
    srd(k, Rws, P['ws'], WS_USED); srd(k, RW, P['ws'], WS_USED)
    vm, lg = trackers(k)
    def STAMP(i, g4=False):
        mode = 'g4st' if 'g4st' in opt else 'g3st' if 'g3st' in opt else False
        if stamps and (g4 == mode or (i not in (1, 2, 3, 4, 5) and not g4)): SP(i); lg.reset()
    def flag_add(s_idx, base):
        k(f's_lshl_b32 {st}, {s_idx}, 7\ns_add_u32 {st}, {st}, {base}\ns_mov_b64 exec, 1')
        vm.op(f'buffer_atomic_add {one}, {zero}, {Rws}, {st} offen sc1')
        k('s_mov_b64 exec, -1')
    def poll(vaddr, base, target, sleep=0, fv=None):
        own = fv is None; fv = fv or k.v(); lp, ok = k.label('poll'), k.label('ok')
        k(f's_mov_b32 {st1}, {base}\n{lp}:\nbuffer_load_dword {fv}, {vaddr}, {Rws}, {st1} offen sc1\ns_waitcnt vmcnt(0)')
        k(f'v_cmp_gt_u32 vcc, {target}, {fv}\ns_cmp_eq_u64 vcc, 0\ns_cbranch_scc1 {ok}')
        if sleep: k(f's_sleep {sleep}')
        k(f's_add_u32 {cnt}, {cnt}, 1\ns_cmp_lt_u32 {cnt}, {SPIN_MAX}\ns_cbranch_scc1 {lp}\ns_branch {END}\n{ok}:')
        vm.reset()
        if own: fv.release()
    W = [k.a(72, 4), k.a(72, 4)]; vo = [l16] + [k.v() for _ in range(4)]
    for g in range(1, 5): k(f'v_add_u32 {vo[g]}, {4096 * g}, {l16}')
    sn = k.s(); s4 = k.s()
    k(f's_lshl_b32 {sn}, {fs}, 2\ns_add_u32 {sn}, {sn}, {s_w}\ns_mul_i32 {sn}, {sn}, {9 * 18432}\ns_add_u32 {s4}, {sn}, {O_W4F}\ns_add_u32 {sn}, {sn}, {O_W3F}')
    wld = lambda r_, ks: f'buffer_load_dwordx4 {W[r_].sub(4 * ks, 4)}, {vo[ks // 4]}, {RW}, {sn} offen offset:{1024 * (ks % 4)}' + WFL
    sm = k.s(); so = k.s()
    k(f's_lshl_b32 {sm}, {s_w}, 10')
    def spin(ld, regs, sleep=16):
        lp, ok = k.label('spin'), k.label('up')
        k(f'{lp}:\ns_waitcnt vmcnt(0)\nv_mov_b32 {fv4[7]}, {regs[0]}')
        for r_ in regs[1:]: k(f'v_and_b32 {fv4[7]}, {fv4[7]}, {r_}')
        k(f'v_readfirstlane_b32 {st}, {fv4[7]}\ns_cmp_lg_u32 {st}, 0\ns_cbranch_scc1 {ok}')
        k(f's_sleep {sleep}\n{ld}\ns_add_u32 {cnt}, {cnt}, 1\ns_cmp_lt_u32 {cnt}, {SPIN_MAX}\ns_cbranch_scc1 {lp}\ns_branch {END}\n{ok}:')
    RB = k.v(24, 4)
    keepV, keepA, keepS = list(k.V.free), list(k.A.free), list(k.S.free)
    XX = k.v(146, 2); t = k.v(8); row = k.v()
    pd1 = PairDma(k, s_w, jm, O_W1F, Rws, l16, W1_AT)
    k(f's_lshl_b32 {st}, {s_w}, 6\nv_add_u32 {t[2]}, {st}, {lane}')
    k(f'v_cmp_le_u32 vcc, 72, {t[2]}\nv_subrev_u32 {t[3]}, 72, {t[2]}\nv_cndmask_b32 {t[3]}, {t[2]}, {t[3]}, vcc\nv_add_u32 {t[3]}, 72, {t[3]}')
    k(f'v_cmp_le_u32 vcc, 144, {t[2]}\nv_subrev_u32 {t[4]}, 144, {t[2]}\nv_cndmask_b32 {t[3]}, {t[3]}, {t[4]}, vcc')
    k(f'v_cmp_le_u32 vcc, 216, {t[2]}\nv_subrev_u32 {t[4]}, 216, {t[2]}\nv_cndmask_b32 {t[3]}, {t[3]}, {t[4]}, vcc\nv_lshlrev_b32 {t[3]}, 4, {t[3]}')
    k(f'v_add_u32 {t[4]}, 40, {lane}\nv_lshlrev_b32 {t[4]}, 4, {t[4]}\nv_mul_u32_u24 {t[5]}, 43691, {t[2]}\nv_lshrrev_b32 {t[5]}, 20, {t[5]}\nv_mul_u32_u24 {t[6]}, 120, {t[5]}')
    k(f'v_add_u32 {t[6]}, {t[6]}, {t[2]}\nv_lshlrev_b32 {t[6]}, 4, {t[6]}')
    pd = PairDma(k, s_w, jm, O_W2F, Rws, l16, W2_AT)
    k(f's_lshl_b32 {st}, {mt}, 4\nv_add_u32 {row}, {st}, {m}')
    k(f'v_lshlrev_b32 {t[0]}, 16, {q}\nv_lshl_add_u32 {t[0]}, {row}, 4, {t[0]}\nv_add_u32 {t[1]}, 0x8000, {t[0]}')
    ones = k.v(4, 4); sacc = k.v(4, 4); gacc = k.v(4, 4); tacc = k.v(4, 4); qacc = k.v(4, 4); acc = k.v(24, 4)
    for i in range(4): k(f'v_mov_b32 {ones[i]}, 0x3f803f80')
    msk = [k.s(2) for _ in range(3)]; bidx = k.v()
    k(f'v_and_b32 {t[2]}, 3, {m}')
    for e in range(3): k(f'v_cmp_eq_u32 {msk[e]}, {e + 1}, {t[2]}')
    aT = k.v(); aW = [l16, k.v(), k.v()]
    k(f'v_min_u32 {t[2]}, 2, {t[2]}\nv_mul_u32_u24 {aT}, 2304, {t[2]}\nv_lshl_add_u32 {aT}, {q}, 4, {aT}\ns_mul_i32 {st}, {jm}, 192\ns_add_u32 {st}, {st}, {T_B}\nv_add_u32 {aT}, {st}, {aT}')
    k(f'v_lshrrev_b32 {t[2]}, 2, {m}\nv_lshl_add_u32 {t[2]}, {t[2]}, 4, {m}\nv_lshlrev_b32 {bidx}, 2, {t[2]}')
    k(f'v_add_u32 {aW[1]}, 0xf000, {l16}\nv_add_u32 {aW[2]}, 0x1e000, {l16}')
    k(f'v_lshlrev_b32 {t[2]}, 4, v0\nv_add_u32 {t[2]}, {T_B}, {t[2]}')
    spin(go_ld, [fv4[0]])
    k('s_waitcnt lgkmcnt(0)\ns_barrier')
    STAMP(15)
    na, nb = k.label('noarr'), k.label('notlast')
    k(f's_cmp_lg_u32 {s_w}, 0\ns_cbranch_scc1 {na}\ns_and_b32 {st1}, s2, 3\ns_lshl_b32 {st}, {st1}, 7\ns_add_u32 {st}, {st}, {O_FA}\ns_mov_b64 exec, 1')
    k(f'v_mov_b32 {fv4[4]}, 1\nbuffer_atomic_add {fv4[4]}, {zero}, {Rws}, {st} offen sc0 sc1\ns_lshl_b32 {st1}, {st1}, 2\ns_waitcnt vmcnt(0)')
    k(f'v_readfirstlane_b32 {st}, {fv4[4]}\ns_cmp_lg_u32 {st}, 63\ns_cbranch_scc1 {nb}')
    k(f'buffer_store_dword {one}, {zero}, {RG}, {st1} offen offset:208 sc1\n{nb}:\ns_mov_b64 exec, -1\n{na}:')
    go3_ld = f'buffer_load_dwordx4 {fv4[0:4]}, {zero}, {RG}, 0 offen offset:208 sc1'
    k('s_cmp_lt_u32 s2, 64\ns_cbranch_scc1 k2_idle')

    w0, w5, wj = k.label('havew1'), k.label('rest'), k.label('joined')
    spin(go_ld, [fv4[1], fv4[2], fv4[3]])
    k(f's_add_u32 m0, {sm}, {T_B + 2304}\ns_mov_b32 {st1}, {O_MODB}\nbuffer_load_dwordx4 {t[3]}, {Rws}, {st1} offen sc1 lds')
    k(f's_mov_b32 m0, {T_B + 2304 + 4096}\ns_mov_b32 exec_hi, 0\nbuffer_load_dwordx4 {t[4]}, {Rws}, {st1} offen sc1 lds\ns_mov_b64 exec, -1')
    k(f's_cmp_ge_u32 s2, 112\ns_cbranch_scc1 {w0}')
    for P_ in range(5):
        for g in pd1.ops(P_):
            for x_ in g: k(x_)
    k(f's_waitcnt vmcnt(0)\n{w0}:\ns_barrier\ns_cmp_eq_u32 {s_w}, 0\ns_cbranch_scc1 {w5}')
    k(f's_lshl_b32 {pd1.t}, {s_w}, 11\ns_sub_u32 {pd1.t}, {pd1.t}, 2048\ns_mul_i32 {pd1.src}, {jm}, 110592\ns_add_u32 {pd1.src}, {pd1.src}, {pd1.t}\ns_add_u32 {pd1.src}, {pd1.src}, {O_W1F + 61440}')
    for sl_i in range(10, 18):
        k(f's_add_u32 m0, {pd1.t}, {W1_AT[sl_i]}\nbuffer_load_dwordx4 {l16}, {Rws}, {pd1.src} offen sc1 lds')
        k(f'buffer_load_dwordx4 {l16}, {Rws}, {pd1.src} offen offset:1024 sc1 lds')
        if sl_i < 17: k(f's_add_u32 {pd1.src}, {pd1.src}, 6144')
    k(f'{w5}:')
    pd1.release()
    k(f'v_cmp_gt_u32 vcc, 144, v0\ns_and_saveexec_b64 {sav}, vcc\nds_write_b128 {t[2]}, {ones}\ns_mov_b64 exec, {sav}')
    w2ops = [g for P_ in range(9) for g in pd.ops(P_)]
    def w2dma():
        for x_ in w2ops.pop(0): vm.op(x_) if x_.startswith('buffer') else k(x_)
    ix = []
    def issue(i):
        k(f's_lshl_b32 {st}, {st1}, 18\ns_add_u32 {st}, {st}, {O_X2}')
        vm.op(f'buffer_load_dwordx4 {XX.sub(8 * i, 4)}, {t[0]}, {Rws}, {st} offen sc1')
        ix.append(vm.op(f'buffer_load_dwordx4 {XX.sub(8 * i + 4, 4)}, {t[1]}, {Rws}, {st} offen sc1'))
        if i < 17: k(f's_add_u32 {st1}, {st1}, 1\ns_cmp_eq_u32 {st1}, 18\ns_cselect_b32 {st1}, 0, {st1}')
    lds_at = lambda a_: f'{aW[a_ // 0xf000]} offset:{a_ % 0xf000}'
    TF = W[1]; WR = [k.a(24, 4), k.a(24, 4)]
    def w_reads(i):
        return [f'ds_read_b128 {WR[i & 1].sub(4 * tt, 4)}, {lds_at(W1_AT[i] + 1024 * tt)}' for tt in range(6)]
    k(f's_cmp_lg_u32 {s_w}, 0\ns_cbranch_scc1 {wj}\n{go3_ld}')
    spin(go3_ld, [fv4[i] for i in range(4)], 2)
    k(f'{wj}:\ns_mul_i32 {st1}, {jm}, 3\ns_mul_i32 {so}, {jm}, 384\ns_add_u32 {so}, {so}, {O_MOD2}\ns_waitcnt vmcnt(16) lgkmcnt(0)\ns_barrier'); vm.reset(); lg.reset()
    STAMP(0)
    nis = 5
    for i in range(nis): issue(i)
    itf = [lg.op(f'ds_read_b128 {TF.sub(4 * i, 4)}, {aT} offset:{64 * i}') for i in range(18)]
    iwr = [lg.op(x_) for x_ in w_reads(0)]
    for i in range(18):
        lg.wait(itf[i]); k(f'{MF} {acc[4:8]}, {TF.sub(4 * i, 4)}, {TF.sub(4 * i, 4)}, {"0" if i == 0 else acc[4:8]}')
    cs = k.s(5, 1)
    for n_, (e, j_) in enumerate(((0, 1), (0, 2), (1, 1), (1, 2), (2, 2))): k(f'v_readlane_b32 {cs[n_]}, {acc[4 + e]}, {j_}')
    n2 = 0
    for i in range(18):
        if i == 9: vm.wait(itab)
        if i in (9, 13): k('s_barrier')
        if i == 1: STAMP(1)
        xg = XX.sub(8 * i + 2, 4); xr = XX.sub(8 * i - 2, 4) if i else None
        c_ = lambda r_, first: '0' if first else r_
        M = [(iwr[tt], f'{MF} {acc.sub(4 * tt, 4)}, {WR[i & 1].sub(4 * tt, 4)}, {xg}, {c_(acc.sub(4 * tt, 4), i == 0)}') for tt in range(6)]
        S_ = [f'{MF} {tacc}, {TF.sub(4 * i, 4)}, {xg}, {c_(tacc, i == 0)}', f'{MF} {qacc}, {xg}, {xg}, {c_(qacc, i == 0)}']
        if i: S_ += [f'{MF} {sacc}, {ones}, {xr}, {c_(sacc, i == 1)}', f'{MF} {gacc}, {xr}, {xr}, {c_(gacc, i == 1)}']
        Rd = w_reads(i + 1) if i < 17 else []
        vm.wait(ix[i])
        if i == 0: k(f'v_mov_b32 {XX[144]}, {XX[0]}\nv_mov_b32 {XX[145]}, {XX[1]}')
        nxt = []
        for x_ in S_:
            k(x_)
            if Rd: nxt.append(lg.op(Rd.pop(0)))
        for idr, mm in M:
            lg.wait(idr); k(mm)
            if Rd: nxt.append(lg.op(Rd.pop(0)))
        iwr = nxt
        if i == 4:
            k(f's_add_u32 m0, {sm}, {T_F}')
            itab = vm.op(f'buffer_load_dwordx4 {t[6]}, {Rws}, {so} offen sc1 lds')
        if nis < 18:
            for _ in range(2 if nis < i + 9 else 1):
                if nis < 18: issue(nis); nis += 1
        else:
            for _ in range(3):
                if n2 < (18 if i < 13 else 27): w2dma(); n2 += 1
    assert n2 == 27
    xr = XX.sub(142, 4)
    k(f'{MF} {sacc}, {ones}, {xr}, {sacc}\n{MF} {gacc}, {xr}, {xr}, {gacc}')
    STAMP(2)
    k.inject([lambda ks=ks: vm.op(wld(0, ks)) for ks in PI], 9)
    TB = [XX.sub(24, 16), XX.sub(40, 16)]; uu = XX.sub(56, 48)
    k(f'v_lshlrev_b32 {aT}, 5, {q}\nv_add_u32 {aT}, {T_F}, {aT}')
    tf_read = lambda dst, r_, e: f'ds_read_b128 {dst}, {aT} offset:{384 * r_ + 128 * (e >> 1) + 16 * (e & 1)}'
    def diag(d, g_):
        k(f'v_cndmask_b32 {d}, {g_[0]}, {g_[1]}, {msk[0]}\nv_cndmask_b32 {d}, {d}, {g_[2]}, {msk[1]}\nv_cndmask_b32 {d}, {d}, {g_[3]}, {msk[2]}')
        return lg.op(f'ds_bpermute_b32 {d}, {bidx}, {d}')
    i2 = diag(t[2], qacc); i1 = diag(t[1], gacc)
    iu = [lg.op(tf_read(uu.sub(24 * r_ + 4 * e, 4), 3 + r_, e)) for e in range(6) for r_ in range(2)]
    s1 = XX.sub(140, 2); gc = XX.sub(136, 4)
    k(f'v_mov_b32 {t[0]}, {sacc[0]}'); lg.wait(i1)
    sigma_bf16(k, t[0], t[1])
    k(f'v_cvt_pk_bf16_f32 {t[0]}, {t[0]}, {t[1]}\nv_and_b32 {s1[0]}, 0xffff0000, {t[0]}\nv_lshlrev_b32 {s1[1]}, 16, {t[0]}')
    k(f'v_rcp_f32 {s1[0]}, {s1[0]}\nv_mov_b32 {t[3]}, {cs[1]}\nv_mov_b32 {t[4]}, {cs[3]}\nv_mul_f32 {s1[1]}, -{s1[1]}, {s1[0]}')
    k(f'v_fma_f32 {t[3]}, {s1[1]}, {cs[0]}, {t[3]}\nv_fma_f32 {t[0]}, {s1[0]}, {tacc[0]}, {t[3]}')
    k(f'v_fma_f32 {t[3]}, {s1[1]}, {tacc[1]}, {tacc[2]}\nv_add_f32 {t[3]}, {t[3]}, {t[3]}\nv_fma_f32 {t[3]}, {s1[0]}, {t[2]}, {t[3]}')
    k(f'v_add_f32 {t[4]}, {t[4]}, {t[4]}\nv_fma_f32 {t[4]}, {s1[1]}, {cs[2]}, {t[4]}\nv_mov_b32 {t[5]}, {cs[4]}\nv_fma_f32 {t[4]}, {s1[1]}, {t[4]}, {t[5]}')
    k(f'v_fma_f32 {t[1]}, {s1[0]}, {t[3]}, {t[4]}')
    sigma_bf16(k, t[0], t[1])
    k(f'v_cvt_pk_bf16_f32 {t[1]}, {t[1]}, {t[1]}\nv_and_b32 {t[1]}, 0xffff0000, {t[1]}')
    gelu_consts(k, t[1], gc)
    k(f's_mul_i32 {st}, {jm}, {3 * GPL}\ns_lshl_b32 {so}, {mt}, 10\ns_add_u32 {st}, {st}, {so}\ns_add_u32 {st}, {st}, {O_G + 1024}')
    lg.all()
    for e in range(12): k(f'v_pk_fma_f32 {uu.sub(2 * e, 2)}, {uu.sub(2 * e, 2)}, {s1}, {uu.sub(24 + 2 * e, 2)} op_sel:[0,1,0] op_sel_hi:[1,1,1]')
    for e in range(12): k(f'v_pk_fma_f32 {acc.sub(2 * e, 2)}, {acc.sub(2 * e, 2)}, {s1}, {uu.sub(2 * e, 2)} op_sel_hi:[1,0,1]')
    tt_ = TB[0]; go = TB[1]
    for Pp in range(3):
        a = acc.sub(8 * Pp, 8); u = tt_.sub(0, 8)
        for e in range(4): k(f'v_pk_mul_f32 {u.sub(2 * e, 2)}, {a.sub(2 * e, 2)}, {a.sub(2 * e, 2)}')
        for e in range(4): k(f'v_pk_fma_f32 {u.sub(2 * e, 2)}, {u.sub(2 * e, 2)}, {gc[0:2]}, {gc[0:2]} op_sel:[0,1,0] op_sel_hi:[1,1,0]')
        for e in range(4): k(f'v_pk_mul_f32 {u.sub(2 * e, 2)}, {u.sub(2 * e, 2)}, {a.sub(2 * e, 2)}')
        for e in range(8): k(f'v_exp_f32 {u[e]}, {u[e]}')
        for e in range(4): k(f'v_pk_fma_f32 {u.sub(2 * e, 2)}, {u.sub(2 * e, 2)}, {gc[2:4]}, {gc[2:4]} op_sel_hi:[1,0,0]')
        for e in range(8): k(f'v_rcp_f32 {u[e]}, {u[e]}')
        for e in range(4): k(f'v_pk_mul_f32 {u.sub(2 * e, 2)}, {u.sub(2 * e, 2)}, {a.sub(2 * e, 2)}')
        o = go.sub(4 * Pp, 4)
        for e in range(4): k(f'v_cvt_pk_bf16_f32 {o[e]}, {u[2 * e]}, {u[2 * e + 1]}')
        if Pp == 2: k.flush_inject()
        ig = vm.op(f'buffer_store_dwordx4 {o}, {l16}, {Rws}, {st} offen sc1')
        if Pp < 2: k(f's_add_u32 {st}, {st}, {GPL}')
    h2f = uu.sub(0, 24); x2f = XX.sub(104, 24); gbv = RB
    xsrc = lambda e: XX[8 * (e // 8) + (0, 1, 6, 7)[(e % 8) // 2]]
    ig_ = [lg.op(tf_read(gbv.sub(4 * e, 4), 1, e)) for e in range(6)]
    is_ = [lg.op(tf_read(uu.sub(24 + 4 * e, 4), 0, e)) for e in range(6)]
    for e in range(24): k(un(x2f[e], xsrc(e), e & 1))
    dl = [XX[128 + i] for i in range(6)]
    k(f'v_cmp_gt_u32 vcc, 2, {q}')
    for g, dlt in enumerate((-1, 1, -2, 2)):
        k(f'v_add_u32 {dl[4]}, {16 + dlt}, {row}\nv_lshrrev_b32 {dl[5]}, 4, {dl[4]}\nv_and_b32 {dl[4]}, 15, {dl[4]}\nv_lshlrev_b32 {dl[4]}, 4, {dl[4]}')
        k(f'v_lshl_add_u32 {dl[4]}, {dl[5]}, 10, {dl[4]}\nv_lshl_add_u32 {dl[g]}, {q}, 8, {dl[4]}')
    k(f'v_cndmask_b32 {dl[4]}, {dl[1]}, {dl[0]}, vcc\nv_cndmask_b32 {dl[5]}, {dl[3]}, {dl[2]}, vcc')
    pa = XX[134]
    k(f'v_min_u32 {pa}, 2, {lane}\nv_add_u32 {pa}, {mt}, {pa}\nv_add_u32 {pa}, -1, {pa}\nv_max_i32 {pa}, 0, {pa}\nv_min_u32 {pa}, 127, {pa}\nv_lshlrev_b32 {pa}, 7, {pa}')
    vm.wait(ig)
    flag_add(mt, O_FC)
    STAMP(3)
    k(f's_add_u32 {sn}, {sn}, 18432')
    for e in range(12): k(f'v_pk_fma_f32 {h2f.sub(2 * e, 2)}, {x2f.sub(2 * e, 2)}, {s1}, {s1} op_sel:[0,0,1] op_sel_hi:[1,0,1]')
    lg.all()
    for e in range(12): k(f'v_pk_fma_f32 {h2f.sub(2 * e, 2)}, {h2f.sub(2 * e, 2)}, {gbv.sub(2 * e, 2)}, {uu.sub(24 + 2 * e, 2)}')
    NPRE = 5
    k('s_barrier')
    WP = [WR[0], WR[1], k.a(24, 4), k.a(24, 4), XX.sub(0, 24)]
    w2_addr = lambda i, tt: lds_at(W2_AT[i] + 1024 * tt)
    for i in range(NPRE):
        for tt in range(6): lg.op(f'ds_read_b128 {WP[i].sub(4 * tt, 4)}, {w2_addr(i, tt)}')
    poll(pa, O_FC, 6)
    STAMP(4)
    GF = TF
    sel = lambda s: dl[4] if s == 4 else dl[5] if s == 13 else dl[(2 * s) // 9]
    ig = []
    for s in range(18):
        k(f's_mov_b32 {st}, {O_G + s * GPL}')
        ig.append(vm.op(f'buffer_load_dwordx4 {GF.sub(4 * s, 4)}, {sel(s)}, {Rws}, {st} offen sc1'))
    lg.all()
    ird = {}
    for s in range(18):
        vm.wait(ig[s])
        wr = WP[s % NPRE]
        for tt in range(6):
            if s >= NPRE: lg.wait(ird[s, tt])
            k(f'{MF} {acc.sub(4 * tt, 4)}, {wr.sub(4 * tt, 4)}, {GF.sub(4 * s, 4)}, {"0" if s == 0 else acc.sub(4 * tt, 4)}')
            if s + NPRE < 18: ird[s + NPRE, tt] = lg.op(f'ds_read_b128 {wr.sub(4 * tt, 4)}, {w2_addr(s + NPRE, tt)}')
        vm.op(wld(1, s))
    lg.all()
    STAMP(5)
    aS = dl[1]
    k(f'v_lshrrev_b32 {t[0]}, 1, {q}')
    k(f'v_lshlrev_b32 {aS}, 6, {t[0]}\nv_lshl_add_u32 {aS}, {m}, 2, {aS}')
    k(f's_mul_i32 {st}, {rb}, 18\ns_mul_i32 {so}, {jm}, 3\ns_add_u32 {st}, {st}, {so}\ns_lshl_b32 {st}, {st}, 2\ns_add_u32 {st}, {st}, {s_w}\ns_lshl_b32 {st}, {st}, 10\ns_add_u32 {st}, {st}, {O_X1F}')
    for e in range(12): k(f'v_pk_add_f32 {h2f.sub(2 * e, 2)}, {h2f.sub(2 * e, 2)}, {acc.sub(2 * e, 2)}')
    for Pp in range(3):
        o = go.sub(4 * Pp, 4)
        for e in range(4): k(f'v_cvt_pk_bf16_f32 {o[e]}, {h2f[8 * Pp + 2 * e]}, {h2f[8 * Pp + 2 * e + 1]}')
        vm.op(f'buffer_store_dwordx4 {o}, {l16}, {Rws}, {st} offen sc1')
        if Pp < 2: k(f's_add_u32 {st}, {st}, 4096')
    k(f'v_pk_add_f32 {t[0:2]}, {h2f[0:2]}, {h2f[2:4]}\nv_pk_mul_f32 {t[2:4]}, {h2f[0:2]}, {h2f[0:2]}\nv_pk_fma_f32 {t[2:4]}, {h2f[2:4]}, {h2f[2:4]}, {t[2:4]}')
    for e in range(2, 12): k(f'v_pk_add_f32 {t[0:2]}, {t[0:2]}, {h2f.sub(2 * e, 2)}\nv_pk_fma_f32 {t[2:4]}, {h2f.sub(2 * e, 2)}, {h2f.sub(2 * e, 2)}, {t[2:4]}')
    k(f'v_add_f32 {t[0]}, {t[0]}, {t[1]}\nv_add_f32 {t[2]}, {t[2]}, {t[3]}\nv_permlane32_swap_b32 {t[0]}, {t[2]}\nv_add_f32 {t[0]}, {t[0]}, {t[2]}')
    k(f'v_mov_b32 {t[1]}, {t[0]}\nv_permlane16_swap_b32 {t[0]}, {t[1]}\nv_add_f32 {t[0]}, {t[0]}, {t[1]}')
    k(f's_mul_i32 {st}, {mt}, 6\ns_add_u32 {st}, {st}, {jm}\ns_lshl_b32 {st}, {st}, 7\ns_add_u32 {st}, {st}, {O_PST}\ns_mov_b32 exec_lo, 0xffff\ns_mov_b32 exec_hi, 0xffff')
    vm.op(f'buffer_store_dword {t[0]}, {aS}, {Rws}, {st} offen sc1')
    k('s_mov_b64 exec, -1')
    vm.all()
    flag_add(mt, O_FD)
    STAMP(6)
    k('s_branch k2_phase_e')
    k('k2_idle:')
    k.V.free, k.A.free, k.S.free = list(keepV), list(keepA), list(keepS)
    vm, lg = trackers(k)
    cj = ColJob(k, vm, lg, lane, s_w)
    fr = k.v(72, 4); sl = k.s(); dst = k.s(); job = k.s(); R4 = k.s(4)
    srd(k, R4, P['w4'], D * F * 2)
    lpj, dn = k.label('w4job'), k.label('w4done')
    k(f's_mov_b32 {job}, s2\n{lpj}:\ns_mul_hi_u32 {sl}, {job}, {(1 << 32) // 9 + 1}\ns_mul_i32 {dst}, {sl}, 9\ns_sub_u32 {dst}, {job}, {dst}\ns_lshl_b32 {dst}, {dst}, 7')
    k(f's_mul_i32 {st}, {sl}, {576 * 1152}\ns_add_u32 {dst}, {dst}, {st}\ns_mov_b32 {st}, 1152')
    cj.dma(R4, dst, st, 0)
    ad = cj.addr(0, w4order=True)
    k('s_waitcnt vmcnt(0)\ns_barrier'); vm.reset()
    ids = cj.reads(ad, fr)
    k(f's_lshl_b32 {dst}, {job}, 2\ns_add_u32 {dst}, {dst}, {s_w}\ns_mul_i32 {dst}, {dst}, 18432\ns_add_u32 {dst}, {dst}, {O_W4F}')
    cj.store(fr, ids, Rws, dst, 1024)
    vm.all()
    flag_add(sl, O_FW)
    k(f's_barrier\ns_add_u32 {job}, {job}, 64\ns_cmp_lt_u32 {job}, 72\ns_cbranch_scc1 {lpj}\n{go3_ld}')
    spin(go3_ld, [fv4[i] for i in range(4)]); vm.reset()
    for r_ in range(2):
        for ks in PI: vm.op(wld(r_, ks))
        if r_ == 0: k(f's_add_u32 {sn}, {sn}, 18432')
    STAMP(14)
    k('k2_phase_e:')
    k.V.free, k.A.free, k.S.free = keepV, keepA, keepS
    vm, lg = trackers(k)
    vm.n = 1
    XA = k.a(112, 4); XV = k.v(176, 4)
    xf = lambda ks, t_: XA.sub(16 * ks + 4 * t_, 4) if 16 * ks + 4 * t_ < 112 else XV.sub(16 * ks + 4 * t_ - 112, 4)
    fv4.release()
    k(f's_add_u32 {sn}, {sn}, 18432')
    acc = [k.v(16, 4), k.v(16, 4)]
    t = acc[1].sub(0, 12); pa = k.v()
    k(f's_lshl_b32 {st}, {mb}, 2\nv_min_u32 {pa}, 3, {lane}\nv_add_u32 {pa}, {st}, {pa}\nv_lshlrev_b32 {pa}, 7, {pa}')
    k(f's_lshl_b32 {sm}, {s_w}, 10\ns_mul_i32 {so}, {mb}, 73728\ns_add_u32 {so}, {so}, {sm}\ns_add_u32 {so}, {so}, {O_X1F}')
    sk_ = k.label('nopoll')
    k(f's_cmp_lg_u32 {s_w}, 0\ns_cbranch_scc1 {sk_}')
    poll(pa, O_FD, 6, sleep=1)
    k(f'{sk_}:\ns_waitcnt vmcnt(0)\ns_barrier')
    STAMP(7)
    ixd = []; idv = {}
    def xdma(ks):
        k(f's_add_u32 m0, {sm}, {XBUF + 4096 * ks}\ns_add_u32 {st}, {so}, {4096 * ks}')
        ixd.append(vm.op(f'buffer_load_dwordx4 {l16}, {Rws}, {st} offen sc1 lds'))
    for ks in PI[:7]: xdma(ks)
    k(f's_mul_i32 {st}, {mb}, 3072\ns_add_u32 {st}, {st}, {sm}\ns_add_u32 {st}, {st}, {O_PST}\ns_add_u32 m0, {sm}, {PSTL}')
    vm.op(f'buffer_load_dwordx4 {l16}, {Rws}, {st} offen sc1 lds')
    k(f'v_mul_u32_u24 {pa}, 768, {q}\nv_lshl_add_u32 {pa}, {m}, 2, {pa}\nv_add_u32 {pa}, {PSTL}, {pa}')
    aX = [l16, k.v()]; aHr = [k.v(), k.v()]; aH = [k.v(), k.v()]
    k(f'v_add_u32 {aX[1]}, 0x9000, {l16}\nv_add_u32 {aHr[0]}, {HBUF}, {l16}\nv_add_u32 {aHr[1]}, {HBUF + 0x9000}, {l16}')
    for h in range(2):
        k(f's_mul_i32 {st}, {s_w}, 9\ns_add_u32 {st}, {st}, {h}\ns_and_b32 {st1}, {st}, 1\ns_lshl_b32 {st1}, {st1}, 3\ns_lshr_b32 {st}, {st}, 1\ns_lshl_b32 {st}, {st}, 12')
        k(f's_add_u32 {st}, {st}, {st1}\nv_add_u32 {aH[h]}, {st}, {aHr[0]}')
    GC = [RB.sub(8 + 3 * i, 3) for i in range(4)]
    gt = RB.sub(0, 8); hp = [RB.sub(20, 2), RB.sub(22, 2)]
    def gelu_ops(a, ah):
        out = []
        for t_ in range(4):
            c = GC[t_]; x = [a[4 * t_ + e] for e in range(4)]; u = [gt[4 * (t_ & 1) + e] for e in range(4)]; o = hp[t_ & 1]
            out += [f'v_mul_f32 {u[e]}, {x[e]}, {x[e]}' for e in range(4)]
            out += [f'v_fma_f32 {u[e]}, {u[e]}, {c[1]}, {c[0]}' for e in range(4)]
            out += [f'v_mul_f32 {u[e]}, {u[e]}, {x[e]}' for e in range(4)]
            out += [f'v_exp_f32 {u[e]}, {u[e]}' for e in range(4)]
            out += [f'v_fma_f32 {u[e]}, {u[e]}, {c[2]}, {c[2]}' for e in range(4)]
            out += [f'v_rcp_f32 {u[e]}, {u[e]}' for e in range(4)]
            out += [f'v_mul_f32 {u[e]}, {u[e]}, {x[e]}' for e in range(4)]
            out += [f'v_cvt_pk_bf16_f32 {o[0]}, {u[0]}, {u[1]}', f'v_cvt_pk_bf16_f32 {o[1]}, {u[2]}, {u[3]}']
            out.append(f'ds_write_b64 {ah}, {o} offset:{1024 * t_}')
        return out
    def cost(x_):
        if isinstance(x_, tuple): return x_[0]
        return 2 if x_.startswith(('v_exp', 'v_rcp', 'ds_write')) else 1
    def emit(x_):
        if isinstance(x_, tuple): x_[1]()
        elif x_.startswith('ds_'): lg.op(x_)
        elif x_.startswith('buffer_'): vm.op(x_)
        else: k(x_)
    wid = {}; nw = {}; due = []
    def refill(r_):
        ks = due.pop(); nw[r_, ks] = vm.op(wld(r_, ks))
    def tile(a, r_, fill, steps=range(18), lead=2, pre=None, post=None, per_step=0, rate=None, load=True, at=None):
        steps = list(steps); nm = 4 * len(steps); n_ = 0; fill = list(fill); at = at or {}
        total = len(steps) * (1.5 + per_step) + sum(cost(x_) for x_ in fill)
        rate = rate or total / nm
        cum = 0
        for i in steps:
            ks = PI[i]
            if i in at: fill += at[i]; cum = max(cum, rate * n_ - 1)
            if pre: pre(i)
            if i % 2 == 0:
                n0 = len(k.l); vm.wait(max(wid.get((r_, PI[j]), 0) for j in (i, i + 1))); cum += len(k.l) - n0
            for t_ in range(4):
                k(f'{MF} {a.sub(4 * t_, 4)}, {W[r_].sub(4 * ks, 4)}, {xf(ks, t_)}, {"0" if i == 0 else a.sub(4 * t_, 4)}')
                n_ += 1
                nxt = 0
                if t_ == 0 and due: refill(r_); cum += 1
                if t_ == 3:
                    if load: due.append(ks)
                    if post: post(i)
                    cum += per_step
                    nxt = i % 2
                while n_ >= lead and fill and cum + nxt + cost(fill[0]) / 2 <= rate * n_: cum += cost(fill[0]); emit(fill.pop(0))
        for x_ in fill: emit(x_)
        if steps[-1] == 17 and due: refill(r_)
        if steps[-1] == 17: wid.update(nw); nw.clear()
    def frag_reads(base, i):
        ks = PI[i]
        return [lg.op(f'ds_read_b128 {xf(ks, t_)}, {base[ks // 9]} offset:{(ks % 9) * 4096 + 1024 * t_}') for t_ in range(4)]
    nxt_tile = lambda: k(f's_add_u32 {sn}, {sn}, 18432')
    rd = {}
    XB = {0: 2, 1: 6, 5: 11, 10: 17}
    def pre0(i):
        if i in XB: vm.wait(ixd[XB[i]]); k('s_barrier')
        if i == 0:
            for j in (0, 1): rd[j] = frag_reads(aX, j)
        if i + 2 < 18: rd[i + 2] = frag_reads(aX, i + 2)
        lg.wait(rd[i][3])
    todo = [(0, lambda ks=ks: xdma(ks)) for ks in PI[7:]]
    todo += [(i, lambda ks=PI[i]: wid.__setitem__((0, ks, 'n'), vm.op(wld(0, ks)))) for i in range(18)]
    def post0(i):
        for _ in range(18 if i == 17 else 4 if i < 3 else 3):
            if todo and todo[0][0] <= i: todo.pop(0)[1]()
        if i == 10:
            for j in range(6): idv['p'] = lg.op(f'ds_read2_b32 {t.sub(2 * j, 2)}, {pa} offset0:{32 * j} offset1:{32 * j + 16}')
    class Rec:
        def __init__(self): self.l = []
        def __call__(self, x_): self.l += x_.split('\n')
    rec = Rec()
    for e in (0, 4, 8): rec(f'v_add_f32 {t[e]}, {t[e]}, {t[e + 2]}\nv_add_f32 {t[e + 1]}, {t[e + 1]}, {t[e + 3]}')
    for e in (4, 8): rec(f'v_add_f32 {t[0]}, {t[0]}, {t[e]}\nv_add_f32 {t[1]}, {t[1]}, {t[e + 1]}')
    sigma_bf16(rec, t[0], t[1])
    rec(f'v_cvt_pk_bf16_f32 {t[1]}, {t[1]}, {t[1]}\nv_and_b32 {t[1]}, 0xffff0000, {t[1]}\nv_lshlrev_b32 {t[2]}, 2, {m}')
    c1 = [(1, lambda: lg.wait(idv['p']))] + rec.l
    c1 += [(1, lambda i=i: idv.__setitem__('b', lg.op(f'ds_bpermute_b32 {t[4 + i]}, {t[2]}, {t[1]} offset:{64 * i}'))) for i in range(4)]
    rec = Rec()
    for i in range(4): gelu_consts(rec, t[4 + i], GC[i])
    c2 = [(1, lambda: lg.wait(idv['b']))] + [rec.l[6 * i + j] for j in range(6) for i in range(4)]
    tile(acc[0], 0, [], pre=pre0, post=post0, load=False, rate=2.0, at={12: c1, 16: c2})
    assert not todo
    for ks in range(18): wid[0, ks] = wid.pop((0, ks, 'n'))
    nxt_tile()
    STAMP(8)
    fa_ = k.v(); xc = k.v(3, 1)
    k(f's_lshl_b32 {st}, {fs}, 7\nv_mov_b32 {fa_}, {st}')
    def check(idl, val, tgt, vaddr, base):
        ok = k.label('up'); d0 = None
        vm.wait(idl)
        k(f'v_cmp_gt_u32 vcc, {tgt}, {val}\ns_cmp_eq_u64 vcc, 0\ns_cbranch_scc1 {ok}')
        d0 = vm.done; poll(vaddr, base, tgt, fv=val); vm.done = d0
        k(f'{ok}:')
    rd = {}
    for tt in range(1, 9):
        fill = gelu_ops(acc[1 - (tt & 1)], aH[1 - (tt & 1)]) + [f'v_add_u32 {aH[1 - (tt & 1)]}, 4096, {aH[1 - (tt & 1)]}']
        if tt == 4: k(f's_mov_b32 {st}, {O_FW}'); ifw = vm.op(f'buffer_load_dword {pa}, {fa_}, {Rws}, {st} offen sc1')
        if tt == 1:
            k(f's_lshr_b32 {so}, {fs}, 1\ns_mul_i32 {so}, {so}, 9\ns_and_b32 {st1}, {fs}, 1\ns_lshl_b32 {st1}, {st1}, 11\ns_lshr_b32 {sm}, {s_w}, 1\ns_lshl_b32 {sm}, {sm}, 8\ns_add_u32 {st1}, {st1}, {sm}')
            k(f's_and_b32 {sm}, {s_w}, 1\ns_lshl_b32 {sm}, {sm}, 3\ns_add_u32 {st1}, {st1}, {sm}\nv_lshrrev_b32 {xc[2]}, 1, {q}\nv_lshl_add_u32 {xc[0]}, {xc[2]}, 10, {st1}')
            k(f'v_lshl_add_u32 {xc[0]}, {m}, 4, {xc[0]}\nv_and_b32 {xc[2]}, 1, {q}\nv_lshl_add_u32 {xc[2]}, {xc[2]}, 2, {xc[0]}')
            for h in range(2):
                k(f's_add_u32 {st}, {so}, {h}\ns_and_b32 {sm}, {st}, 1\ns_lshl_b32 {sm}, {sm}, 9\ns_lshr_b32 {st}, {st}, 1\ns_lshl_b32 {st}, {st}, 12\ns_add_u32 {st}, {st}, {sm}\nv_add_u32 {xc[h]}, {st}, {xc[2]}')
            k(f's_mul_i32 {st}, {s_w}, 2304\ns_add_u32 {st}, {st}, {X1C}\nv_lshl_add_u32 {xc[2]}, {lane}, 2, {st}')
        if 1 <= tt <= 3:
            for t_ in range(3 * tt - 3, 3 * tt):
                def cp(t_=t_): idv['x'] = lg.op(f'ds_read_b32 {pa}, {xc[t_ & 1]} offset:{4096 * (t_ >> 1)}')
                def wr(t_=t_): lg.wait(idv['x']); lg.op(f'ds_write_b32 {xc[2]}, {pa} offset:{256 * t_}')
                n_ = 20 + 33 * (t_ % 3)
                fill[n_:n_] = [(1, cp)]; fill[n_ + 20:n_ + 20] = [(2, wr)]
        if tt == 7: check(ifw, pa, 36, fa_, O_FW); k(f's_mov_b32 {sn}, {s4}')
        if tt in (1, 4, 7, 8): STAMP({1: 1, 4: 2, 7: 3, 8: 4}[tt], 'g3st')
        if tt < 8: tile(acc[tt & 1], tt & 1, fill)
        else:
            lg.all(); k('s_barrier')
            def post8(i):
                if i < 12: rd[i] = frag_reads(aHr, i)
            tile(acc[0], 0, fill, post=post8, per_step=2.7)
        nxt_tile()
    STAMP(9)
    k('s_waitcnt lgkmcnt(0)\ns_barrier'); lg.reset()
    for j in (12, 13): rd[j] = frag_reads(aHr, j)
    tile(acc[1], 1, gelu_ops(acc[0], aH[0]), steps=range(14), pre=lambda i: lg.wait(rd[i][3]) if i >= 12 else None, lead=1)
    lg.all(); k('s_barrier')
    for j in range(14, 18): rd[j] = frag_reads(aHr, j)
    tile(acc[1], 1, [], steps=range(14, 18), pre=lambda i: lg.wait(rd[i][3]))
    Rout = k.s(4)
    sp = k.s(); sq = k.s(); sf = k.s(); T0 = k.s(); sl_ = k.s(); po = [gt.sub(0, 4), gt.sub(4, 4)]
    aP, aR, aO = GC[0][0], GC[0][1], GC[0][2]; aL, aLr, aLg = GC[1][0], GC[1][1], GC[1][2]; aOw, aOr = GC[2][0], GC[2][1]; fv = pa; fpa = fa_
    u0, u1, u2 = hp[0][0], hp[0][1], hp[1][0]
    OUTB = 4 * 28672
    setup = f"""s_mov_b32 {Rout[0]}, {P['out'][0]}
s_mov_b32 {Rout[1]}, {P['out'][1]}
s_mov_b32 {Rout[2]}, {L * D * 2}
s_mov_b32 {Rout[3]}, 0x20000
s_lshl_b32 {st}, {fs}, 13
s_mul_i32 {sq}, {mb}, {9 * 65536}
s_add_u32 {sq}, {sq}, {st}
s_add_u32 {sq}, {sq}, {O_PART}
s_mul_i32 {sf}, {mb}, 36
s_lshr_b32 {T0}, {fs}, 1
s_add_u32 {st}, {sf}, {T0}
s_lshl_b32 {st}, {st}, 7
v_mov_b32 {fpa}, {st}
s_add_u32 {sf}, {sf}, {s_w}
s_lshl_b32 {sf}, {sf}, 7
s_add_u32 {sf}, {sf}, {O_FP}
s_mul_i32 {T0}, {T0}, 9
s_lshl_b32 {st}, {s_w}, 8
v_lshl_add_u32 {u0}, {m}, 4, {st}
v_lshl_add_u32 {aP}, {q}, 10, {u0}
v_and_b32 {u1}, 1, {q}
v_lshrrev_b32 {u2}, 1, {q}
v_lshl_add_u32 {u0}, {u2}, 4, {m}
v_lshlrev_b32 {aR}, 4, {u0}
v_lshl_add_u32 {aR}, {u1}, 2, {aR}
s_and_b32 {so}, {fs}, 1
s_lshl_b32 {st}, {mb}, 1
s_add_u32 {so}, {so}, {st}
s_lshl_b32 {so}, {so}, 9
s_lshl_b32 {st}, {s_w}, 15
s_add_u32 {so}, {so}, {st}
s_and_b32 {st}, {s_w}, 1
s_lshl_b32 {st}, {st}, 3
s_add_u32 {so}, {so}, {st}
v_add_u32 {aR}, {so}, {aR}
s_mul_i32 {sl_}, {s_w}, 28672
v_add_u32 {aL}, {sl_}, {l16}
v_lshl_add_u32 {aLr}, {lane}, 2, {sl_}
s_lshl_b32 {st}, {s_w}, 4
s_add_u32 {st}, {st}, {sl_}
v_lshl_add_u32 {aLg}, {u1}, 3, {st}
v_mul_u32_u24 {aOw}, 304, {u0}
v_lshl_add_u32 {aOw}, {u1}, 2, {aOw}
s_lshl_b32 {st}, {s_w}, 3
s_add_u32 {st}, {st}, {OUTB}
v_add_u32 {aOw}, {st}, {aOw}""".split('\n')
    k(f's_mul_i32 {sp}, {mb}, {9 * 65536}\ns_lshl_b32 {st}, {s_w}, 14\ns_add_u32 {sp}, {sp}, {st}\ns_lshl_b32 {st}, {fs}, 10\ns_add_u32 {sp}, {sp}, {st}\ns_add_u32 {sp}, {sp}, {O_PART}')
    for x_ in (aHr[0], aHr[1], aH[0], aH[1], aX[1]): x_.release()
    ids = {}
    def S(t_, a, p):
        out = [f'v_cvt_pk_bf16_f32 {po[p][e]}, {a[8 * p + 2 * e]}, {a[8 * p + 2 * e + 1]}' for e in range(4)]
        out.append((1, lambda: ids.__setitem__(('S', t_), 0 if 'nopart' in opt else vm.op(f'buffer_store_dwordx4 {po[p]}, {vo[2 * p]}, {Rws}, {sp} offen {PFL}'))))
        return out + ([f's_add_u32 {sp}, {sp}, 65536'] if p else [])
    def G(t_):
        def f():
            if t_ == 8: k(f's_add_u32 {sf}, {sf}, 4096')
            vm.wait(ids['S', t_]); k('s_mov_b64 exec, 1')
            vm.op(f'buffer_atomic_add {one}, {zero}, {Rws}, {sf} offen offset:{512 * (t_ % 8)} sc1')
            k('s_mov_b64 exec, -1')
        return [(4, f)]
    def Lf(t_): return [f's_mov_b32 {st1}, {O_FP + 512 * t_}', (1, lambda: ids.__setitem__(('L', t_), vm.op(f'buffer_load_dword {fv}, {fpa}, {Rws}, {st1} offen sc1')))]
    def dma(lds, va, soff): return [f's_add_u32 m0, {sl_}, {lds}', (1, lambda: ids.__setitem__('d', vm.op(f'buffer_load_dwordx4 {va}, {Rws}, {soff} offen sc1 lds')))]
    def C(t_):
        return (dma(3072 * t_, aP, sq) + [f's_add_u32 {st}, {sq}, 4096'] + dma(3072 * t_ + 1024, aP, st) + [f's_add_u32 {sq}, {sq}, 65536']
                + [(0, lambda: ids.__setitem__(('C', t_), ids['d']))])
    def RS(t_): return [f's_add_u32 {st}, {T0}, {t_}', f's_lshl_b32 {st}, {st}, 17', f's_add_u32 {st}, {st}, {O_X2}', f's_add_u32 m0, {sl_}, {3072 * t_ + 2048}',
                        f'buffer_load_dword {aR}, {Rws}, {st} offen sc1 lds']
    def CK(t_): return [(4, lambda: check(ids['L', t_], fv, 8, fpa, O_FP + 512 * t_))]
    def R(t_, Dr, v):
        A_, B_, r_, g_ = Dr
        def rd_():
            vm.wait(ids['C', t_])
            lg.op(f'ds_read_b128 {A_}, {aL} offset:{3072 * t_}'); lg.op(f'ds_read_b128 {B_}, {aL} offset:{3072 * t_ + 1024}')
            lg.op(f'ds_read_b32 {r_[0]}, {aLr} offset:{3072 * t_ + 2048}'); lg.op(f'ds_read_b32 {r_[1]}, {xc[2]} offset:{256 * t_}'); ids['r', t_] = lg.op(f'ds_read_b64 {g_}, {aLg} offset:{27648 + 64 * t_}')
        out = [(1, lambda: lg.wait(ids['r', t_]))]
        for d in range(4): out += [f'v_lshlrev_b32 {v[2 * d]}, 16, {A_[d]}', f'v_lshlrev_b32 {v[2 * d + 1]}, 16, {B_[d]}']
        for d in range(4): out += [f'v_and_b32 {A_[d]}, 0xffff0000, {A_[d]}', f'v_add_f32 {v[2 * d]}, {v[2 * d]}, {v[2 * d + 1]}', f'v_and_b32 {B_[d]}, 0xffff0000, {B_[d]}']
        out += [f'v_add_f32 {v[2 * d + 1]}, {A_[d]}, {B_[d]}' for d in range(4)]
        out += [f'v_permlane32_swap_b32 {v[e]}, {v[e + 4]}' for e in (0, 2, 1, 3)]
        out += [f'v_add_f32 {v[e]}, {v[e]}, {v[e + 4]}' for e in (0, 2, 1, 3)]
        out += [un(v[4 + e], r_[e >> 1], e & 1) for e in (2, 3)]
        out += [f'v_permlane16_swap_b32 {v[e]}, {v[e + 2]}' for e in range(2)]
        out += [un(v[4 + e], r_[e >> 1], e & 1) for e in (0, 1)]
        out += [f'v_add_f32 {v[e]}, {v[e]}, {v[e + 2]}' for e in range(2)]
        out += [f'v_add_f32 {v[e]}, {v[e]}, {v[e + 6]}' for e in range(2)]
        out += [f'v_fma_f32 {v[e]}, {v[e]}, {g_[e]}, {v[4 + e]}' for e in range(2)]
        out += [f'v_cvt_pk_bf16_f32 {v[4]}, {v[0]}, {v[1]}', f'ds_write_b32 {aOw}, {v[4]} offset:{32 * t_}']
        return [(6, rd_)], out
    SPOS = 9
    for tt in range(1, 9):
        nxt_tile()
        a_ = acc[tt & 1]
        at = {0: S(tt - 1, a_, 0), SPOS: S(tt - 1, a_, 1)}
        add = lambda i, ops: at.__setitem__(i, at.get(i, []) + ops)
        if tt == 1: add(2, setup)
        if tt == 2:
            k('s_barrier')
            add(2, [f's_lshl_b32 {st}, {T0}, 6', f's_add_u32 {st}, {st}, {O_MOD2 + 4608}'] + dma(27648, l16, st))
        if 2 <= tt <= 6: add(4, RS(2 * tt - 4) + (RS(2 * tt - 3) if tt < 6 else []))
        if 'sB' in opt:
            if tt in (3, 5, 6, 7, 8): add(6, G(tt - 2))
            if tt in (4, 6, 7, 8): add(15, Lf(tt - 3))
            if tt in (5, 7): add(12, CK(tt - 4) + C(tt - 5) + C(tt - 4))
            if tt == 8: add(12, CK(4) + C(4))
        elif 'sC' in opt:
            if tt in (4, 6, 7, 8): add(6, G(tt - 2))
            if tt in (6, 7, 8): add(15 if tt > 6 else 8, Lf({6: 2, 7: 4, 8: 5}[tt]))
            if tt == 7: add(1, CK(2) + C(0) + C(1) + C(2))
            if tt == 8: add(12, CK(4) + C(3) + C(4))
        else:
            if tt >= 2: add(6, G(tt - 2))
            if tt >= 4: add(12, CK(tt - 4) + C(tt - 4))
            if tt >= 3: add(15, Lf(tt - 3))
        if tt in (1, 4, 7, 8): STAMP({1: 1, 4: 2, 7: 3, 8: 4}[tt], 'g4st')
        tile(acc[1 - (tt & 1)], 1 - (tt & 1), [], rate=2.0, at=at, load=tt < 7)
    STAMP(10)
    XV.release()
    Dn = [[k.v(4, 2), k.v(4, 2), k.v(2), k.v(2)] for _ in range(9)]; v2 = k.v(8, 2)
    RR = [R(t_, Dn[t_], v2) for t_ in range(9)]
    seq = S(8, acc[1], 0) + S(8, acc[1], 1) + G(7) + CK(5) + C(5) + Lf(6)
    for t_ in range(3): seq += RR[t_][0]
    seq += RR[0][1] + G(8) + RR[1][1] + CK(6) + C(6) + Lf(7) + RR[3][0] + RR[4][0] + RR[2][1] + RR[3][1] + CK(7) + C(7) + Lf(8) + RR[5][0] + RR[4][1] + RR[5][1]
    for x_ in seq: emit(x_)
    u = k.v(3)
    k(f'v_mul_u32_u24 {u[0]}, 3641, v0\nv_lshrrev_b32 {u[0]}, 16, {u[0]}\nv_mul_u32_u24 {u[1]}, 18, {u[0]}\nv_sub_u32 {u[1]}, v0, {u[1]}\nv_lshlrev_b32 {u[1]}, 4, {u[1]}')
    k(f'v_mul_u32_u24 {aOr}, 304, {u[0]}\nv_add_u32 {aOr}, {aOr}, {u[1]}\nv_add_u32 {aOr}, {OUTB}, {aOr}\nv_mul_u32_u24 {aO}, 1152, {u[0]}\nv_add_u32 {aO}, {aO}, {u[1]}')
    k(f's_lshl_b32 {st}, {mb}, 1\ns_and_b32 {so}, {fs}, 1\ns_add_u32 {so}, {so}, {st}\ns_mul_i32 {so}, {so}, {32 * 1152}\ns_lshl_b32 {st}, {T0}, 5\ns_add_u32 {so}, {so}, {st}')
    for x_ in CK(8): emit(x_)
    STAMP(11)
    for x_ in C(8) + RR[6][0] + RR[7][0] + RR[6][1] + RR[7][1] + RR[8][0] + RR[8][1]: emit(x_)
    lg.all(); k('s_barrier')
    o4 = [Dn[0][0], Dn[0][1], Dn[1][0]]
    k(f'v_cmp_gt_u32 vcc, 252, v0\ns_and_b64 exec, exec, vcc')
    io = [lg.op(f'ds_read_b128 {o4[i]}, {aOr} offset:{14 * 304 * i}') for i in range(3)]
    for i in range(3):
        if i == 2: k(f's_cmp_ge_u32 {s_w}, 2\ns_cbranch_scc1 {END}\nv_cmp_gt_u32 vcc, 72, v0\ns_and_b64 exec, exec, vcc')
        lg.wait(io[i])
        k(f'buffer_store_dwordx4 {o4[i]}, {aO}, {Rout}, {so} offen')
        if i < 2: k(f's_add_u32 {so}, {so}, {14 * 1152}')
    STAMP(12)
```

```python
import sys, re
from common import *
import k1, k2
KN = NAME + '_kernel'
def build(stamps=False, dump=False, opt=()):
    k = Kern(KN, nv=256, na=256)
    END, NEXT = 'all_done', 'phase2'
    k(f's_cmp_ge_u32 s2, 256\\ns_cbranch_scc1 exit\\nk1_top:'.replace('\\n', '\n'))
    if isinstance(stamps, tuple): k.S.free[96] = k.S.free[98] = k.S.free[99] = False; k('s_memrealtime s[98:99]')
    if 'rot' in opt: k('s_add_u32 s2, s2, 112'); k('s_and_b32 s2, s2, 255')
    S1 = Stamper(k, stamps, 1); S1.init(); S1(0)
    P = kernargs(k)
    lane = k.v(); s_w = k.s()
    pf = k.v(2); pfs = k.s(2)
    code_prefetch(k, None, 'k1_top', NEXT, 32768, 'v0', pf, pfs, back=True)
    k(f'v_lshrrev_b32 {lane}, 6, v0')
    k(f'v_readfirstlane_b32 {s_w}, {lane}')
    k(f'v_and_b32 {lane}, 63, v0')
    k('s_waitcnt lgkmcnt(0)'); k('s_cmp_ge_u32 s2, 112'); k('s_cbranch_scc1 k1_conv')
    st = lambda: (list(k.V.free), list(k.A.free), list(k.S.free))
    def rs(x): k.V.free, k.A.free, k.S.free = [list(y) for y in x]
    base = st()
    k1.service(k, P, lane, s_w, END, NEXT, S1, opt)
    rs(base); k('k1_conv:')
    k1.conv(k, P, lane, s_w, END, NEXT, dump, S1, opt)
    rs(base); k(f'{NEXT}:'); S1(15)
    a, b = P['_blocks']
    a.release(); pf.release(); pfs.release()
    for i in list(range(0, 6)) + list(range(8, 12)): k.S.free[b.i + i] = True
    S2 = Stamper(k, stamps, 0, t=S1.t if stamps else None); S2.init()
    k2.phase2(k, P, lane, s_w, END, S2, opt)
    k(f'{END}:')
    if isinstance(stamps, tuple):
        k('s_waitcnt vmcnt(0)'); S2(13)
        k('probe_w:'); k('s_memrealtime s[4:5]'); k('s_waitcnt lgkmcnt(0)'); k('s_sub_u32 s4, s4, s98'); k('s_cmp_lt_u32 s4, 6000'); k('s_cbranch_scc1 probe_w')
    elif stamps:
        k('s_waitcnt vmcnt(0)'); S2(13); S2.flush(); S1.flush()
    k('exit:'); k('s_endpgm')
    k.finish()
    ref = open('cdna_kernels/%s.s.ref' % NAME).read().split('\n')
    hdr = [l for l in ref if l.startswith(';') and '@launch' not in l and 'Override' not in l and 'grid=ceil' not in l]
    hdr = '\n'.join(hdr) + '\n; @launch grid=(256,1,1) block=(256,1,1) lds=%d\n' % k2.K2_LDS
    print('lines', len(k.l), 'nops', k.nops, 'regs', k.counts(), 'sgpr', k.S.top)
    return module([k], 136, hdr)
if __name__ == '__main__' and len(sys.argv) > 1 and sys.argv[1] == 'probe':
    for o in sys.argv[2:]:
        a_, i_, lo, hi = (o.split('_') + ['0', '256'])[:4]; open('probe_%s.s' % o, 'w').write(build(stamps=({'k1': 1, 'k2': 0}[a_], int(i_), int(lo), int(hi))))
elif __name__ == '__main__' and len(sys.argv) > 1:
    for o in sys.argv[1:]:
        for suf, stp in (('', 0), ('_dbg', 1), ('_clk', 2)): open('v_%s%s.s' % (o, suf), 'w').write(build(stamps=stp, opt=o.split('+')))
elif __name__ == '__main__':
    a_, b_, s = build(stamps=1), build(stamps=2), build()
    open('full_dbg.s', 'w').write(a_); open('full_clk.s', 'w').write(b_)
    open('full.s', 'w').write(s)
    open('cdna_kernels/%s.s' % NAME, 'w').write(s)
```

```python
from dsl import Kern, Reg, module
import struct

L, D, F = 2048, 576, 4608
NAME = 'adaLN_cond__ssm_conv_s4d__mixer_s_mlp__prompt'

O_FC    = 0x0000
O_FD    = 0x4000
O_FR    = 0x8000
O_FW    = 0x9000
O_FA    = 0x9400
O_FP    = 0xA000
FLAG_BYTES = 0x40000
O_STATS = 0x40000
O_MODF  = 0x44000
O_MOD2  = O_MODF + 3 * 2304
O_MODB  = 0x49000
O_MODG  = 0x4A000
O_PST   = 0x50000
GPL = 130 * 1024
O_XT    = 0x100000
O_X2    = 0x3200000
O_G     = 0x400000
O_X1F   = 0x700000
O_RES   = 0xA00000
O_W1F   = 0xF00000
O_W2F   = 0x1000000
O_W3F   = 0x1100000
O_W4F   = 0x1700000
O_PART  = 0x2000000
O_DBG   = 0x3800000
WS_USED = 0x4000000

def f2u(x): return struct.unpack('<I', struct.pack('<f', x))[0]
def fl(x): return '0x%08x' % f2u(x)
POISON = 0xffffffff
RETRY_MAX = 2000
LOG2E = 1.4426950408889634

class Trk:
    def __init__(self, k, cnt, mx): self.k = k; self.cnt = cnt; self.mx = mx; self.n = 0; self.done = 0
    def op(self, s):
        self.k(s); self.n += 1; return self.n
    def wait(self, idx):
        if idx <= self.done: return
        left = min(self.n - idx, self.mx)
        self.k('s_waitcnt %s(%d)' % (self.cnt, left)); self.done = self.n - left
    def all(self): self.wait(self.n)
    def reset(self): self.done = self.n

def trackers(k): return Trk(k, 'vmcnt', 63), Trk(k, 'lgkmcnt', 15)

def srd(k, dst, ptr, nbytes, off=0):
    if off:
        k(f's_add_u32 {dst[0]}, {ptr[0]}, {off}\ns_addc_u32 {dst[1]}, {ptr[1]}, 0')
    else:
        k(f's_mov_b32 {dst[0]}, {ptr[0]}\ns_mov_b32 {dst[1]}, {ptr[1]}')
    k(f's_mov_b32 {dst[2]}, {nbytes}\ns_mov_b32 {dst[3]}, 0x20000')

def kernargs(k):
    a = k.s(16, 4); b = k.s(16, 4); c = k.s(2)
    k(f's_load_dwordx16 {a}, s[0:1], 0\ns_load_dwordx16 {b}, s[0:1], 64\ns_load_dwordx2 {c}, s[0:1], 128')
    names = ['u', 'logA', 'Aim', 'Cr', 'Ci', 'logdt', 'Dskip', 'Bx']
    P = {n: a.sub(2 * i, 2) for i, n in enumerate(names)}
    names = ['w1', 'w2', 'w3', 'w4', 'c', 'wmod', 'out', 'dbg']
    P.update({n: b.sub(2 * i, 2) for i, n in enumerate(names)})
    P['ws'] = c
    P['_blocks'] = (a, b)
    return P

def code_prefetch(k, vm, lo, hi, nbytes, tid, tmp, sp, back=False):
    here = k.label('pc')
    k(f's_getpc_b64 {sp}\n{here}:')
    if back: k(f's_sub_u32 {sp[0]}, {sp[0]}, {here}-{lo}\ns_subb_u32 {sp[1]}, {sp[1]}, 0')
    else: k(f's_add_u32 {sp[0]}, {sp[0]}, {lo}-{here}\ns_addc_u32 {sp[1]}, {sp[1]}, 0')
    k(f'v_lshlrev_b32 {tmp[0]}, 7, {tid}')
    k(f'v_min_u32 {tmp[0]}, {hi}-{lo}-4, {tmp[0]}')
    n = (nbytes + 32767) // 32768
    for i in range(n):
        x = f'global_load_dword {tmp[1]}, {tmp[0]}, {sp}'
        vm.op(x) if vm else k(x)
        if i + 1 < n:
            k(f'v_add_u32 {tmp[0]}, 0x8000, {tmp[0]}\nv_min_u32 {tmp[0]}, {hi}-{lo}-4, {tmp[0]}')

def interleave(*streams):
    out = []; n = max(len(s) for s in streams)
    for i in range(n):
        for s in streams:
            if i < len(s): out.append(s[i])
    return out

class ColJob:
    def __init__(self, k, vm, lg, lane, s_w):
        self.k, self.vm, self.lg, self.lane, self.s_w = k, vm, lg, lane, s_w
        k_ = k
        self.row = k.v(); self.chunk = k.v(); t = k.v(2)
        k_(f'v_lshrrev_b32 {self.row}, 3, {lane}')
        k_(f'v_bfe_u32 {t[0]}, {lane}, 5, 1\ns_and_b32 vcc_lo, {s_w}, 1\nv_xor_b32 {t[0]}, vcc_lo, {t[0]}')
        k_(f'v_bfe_u32 {t[1]}, {lane}, 4, 1\nv_lshl_or_b32 {t[0]}, {t[0]}, 1, {t[1]}')
        k_(f'v_lshlrev_b32 {t[0]}, 1, {t[0]}\nv_and_b32 {t[1]}, 7, {lane}\nv_xor_b32 {t[0]}, {t[0]}, {t[1]}')
        k_(f'v_lshlrev_b32 {self.chunk}, 4, {t[0]}')
        t.release()
    def dma(self, R, s_src, s_stride, buf, nt=False):
        k = self.k
        va = k.v(); so = k.s(); st = k.s(); sm = k.s()
        k(f'v_mad_u32_u24 {va}, {self.row}, {s_stride}, {self.chunk}')
        k(f's_lshl_b32 {st}, {s_stride}, 3\ns_mul_i32 {so}, {st}, {self.s_w}\ns_add_u32 {so}, {so}, {s_src}\ns_lshl_b32 {st}, {st}, 2')
        k(f's_lshl_b32 {sm}, {self.s_w}, 10')
        last = None
        for i in range(18):
            k(f's_add_u32 m0, {sm}, {buf + i * 4096}')
            last = self.vm.op(f'buffer_load_dwordx4 {va}, {R}, {so} offen {"nt " if nt else ""}lds')
            if i < 17: k(f's_add_u32 {so}, {so}, {st}')
        va.release(); so.release(); st.release(); sm.release()
        return last
    def read(self, buf, fr, **kw):
        return self.reads(self.addr(buf, **kw), fr)
    def addr(self, buf, w4order=False, s_il=None, s_w4=None):
        k, lane = self.k, self.lane
        ad = k.v(4); q = k.v(); r = k.v(); c = k.v(); un = k.v(); wi = k.v(); t = k.v(2)
        k(f'v_lshrrev_b32 {q}, 4, {lane}\nv_bfe_u32 {r}, {lane}, 2, 2\nv_and_b32 {c}, 3, {lane}')
        k(f'v_mov_b32 {un}, {self.s_w}\nv_lshlrev_b32 {wi}, 3, {c}')
        if s_il is not None:
            st = k.s()
            k(f's_and_b32 {st}, {self.s_w}, 2\nv_lshrrev_b32 {t[0]}, 1, {c}\nv_add_u32 {t[0]}, {st}, {t[0]}')
            k(f's_and_b32 {st}, {self.s_w}, 1\ns_lshl_b32 {st}, {st}, 3\nv_and_b32 {t[1]}, 1, {c}\nv_lshl_add_u32 {t[1]}, {t[1]}, 4, {st}')
            k(f's_cmp_lg_u32 {s_il}, 0\ns_cselect_b64 vcc, -1, 0')
            k(f'v_cndmask_b32 {un}, {un}, {t[0]}, vcc\nv_cndmask_b32 {wi}, {wi}, {t[1]}, vcc')
            st.release()
        for h in range(2):
            kl = ad[h]
            if w4order: k(f'v_lshl_add_u32 {kl}, {q}, 2, {r}\nv_add_u32 {kl}, {16 * h}, {kl}')
            else: k(f'v_lshl_add_u32 {kl}, {q}, 3, {r}\nv_add_u32 {kl}, {4 * h}, {kl}')
            if s_w4 is not None:
                k(f'v_lshl_add_u32 {t[0]}, {q}, 2, {r}\nv_add_u32 {t[0]}, {16 * h}, {t[0]}\ns_cmp_eq_u32 {s_w4}, 4\ns_cselect_b64 vcc, -1, 0\nv_cndmask_b32 {kl}, {kl}, {t[0]}, vcc')
            k(f'v_lshrrev_b32 {t[0]}, 1, {kl}\nv_xor_b32 {t[0]}, {t[0]}, {kl}\nv_bfe_u32 {t[0]}, {t[0]}, 2, 1')
            k(f'v_bfe_u32 {t[1]}, {kl}, 1, 1\nv_lshl_or_b32 {t[0]}, {t[0]}, 1, {t[1]}\nv_xor_b32 {t[0]}, {t[0]}, {un}')
            k(f'v_lshl_add_u32 {t[0]}, {t[0]}, 5, {wi}\nv_lshl_add_u32 {kl}, {kl}, 7, {t[0]}')
            k(f'v_add_u32 {kl}, {buf}, {kl}\nv_add_u32 {ad[2 + h]}, 0x9000, {kl}')
        for x in (q, r, c, un, wi, t): x.release()
        return ad
    def reads(self, ad, fr):
        ids = []
        for s in range(18):
            for h in range(2):
                a = ad[h] if s < 9 else ad[2 + h]
                i = self.lg.op(f'ds_read_b64_tr_b16 {fr.sub(4 * s + 2 * h, 2)}, {a} offset:{(s % 9) * 4096}')
            ids.append(i)
        ad.release()
        return ids
    def store(self, fr, ids, Rws, s_dst, s_step, s_rot=None, flags='sc1'):
        k = self.k
        va = k.v(); so = k.s(); sl = k.s()
        k(f'v_lshlrev_b32 {va}, 4, {self.lane}')
        if s_rot is not None: k(f's_mov_b32 {sl}, {s_rot}')
        else: k(f's_mov_b32 {so}, {s_dst}')
        for s in range(18):
            if s_rot is not None:
                k(f's_mul_i32 {so}, {sl}, {s_step}\ns_add_u32 {so}, {so}, {s_dst}')
                k(f's_add_u32 {sl}, {sl}, 1\ns_cmp_eq_u32 {sl}, 18\ns_cselect_b32 {sl}, 0, {sl}')
            if ids: self.lg.wait(ids[s])
            self.vm.op(f'buffer_store_dwordx4 {fr.sub(4 * s, 4)}, {va}, {Rws}, {so} offen {flags}')
            if s_rot is None and s < 17: k(f's_add_u32 {so}, {so}, {s_step}')
        va.release(); so.release(); sl.release()

class Stamper:
    def __init__(self, k, on, area, t=None):
        self.k = k; self.on = on; self.area = area
        if isinstance(on, tuple): self.t = None
        elif on: self.r = k.s(16, 1); self.t = t or k.s(2)
    def __call__(self, i):
        if isinstance(self.on, tuple):
            if self.on[:2] == (self.area, i):
                sk = self.k.label('noprobe')
                self.k(f's_sub_u32 s96, s2, {self.on[2]}\ns_cmp_ge_u32 s96, {self.on[3] - self.on[2]}\ns_cbranch_scc1 {sk}\ns_memrealtime s[98:99]\n{sk}:')
            if self.on[:2] == (self.area, i) or i != 0: self.k('s_waitcnt lgkmcnt(0)')
        elif self.on:
            self.k(f'{"s_memtime" if self.on == 2 else "s_memrealtime"} {self.t}\ns_waitcnt lgkmcnt(0)\ns_mov_b32 {self.r[i]}, {self.t[0]}')
    def init(self):
        if self.on and not isinstance(self.on, tuple):
            for i in range(16): self.k(f's_mov_b32 {self.r[i]}, 0')
    def flush(self):
        if not self.on: return
        k = self.k; t = self.t; done = k.label('stamped')
        k(f's_waitcnt vmcnt(0) lgkmcnt(0)\ns_mov_b64 exec, -1\nv_mov_b32 v1, 0\nv_cmp_eq_u32 vcc, 0, v0\ns_and_b64 exec, exec, vcc\ns_cbranch_execz {done}')
        k(f's_load_dwordx2 {t}, s[0:1], 128\ns_lshl_b32 vcc_lo, s2, 6\ns_add_u32 vcc_lo, vcc_lo, {O_DBG + 0x400000 + self.area * 256 * 64}\nv_mov_b32 v1, vcc_lo\ns_waitcnt lgkmcnt(0)')
        for i in range(16): k(f'v_mov_b32 v2, {self.r[i]}\nglobal_store_dword v1, v2, {t} offset:{4 * i}')
        k(f'{done}:')

def sigma_bf16(k, mean, var):
    k(f'v_mul_f32 {mean}, {fl(1 / 576)}, {mean}\nv_mul_f32 {var}, {fl(1 / 576)}, {var}')
    k(f'v_fma_f32 {var}, -{mean}, {mean}, {var}\nv_max_f32 {var}, 0, {var}')
    k(f'v_cvt_pk_bf16_f32 {var}, {var}, {var}\nv_and_b32 {var}, 0xffff0000, {var}\nv_add_f32 {var}, {fl(1e-5)}, {var}')
    k(f'v_cvt_pk_bf16_f32 {var}, {var}, {var}\nv_and_b32 {var}, 0xffff0000, {var}\nv_sqrt_f32 {var}, {var}')


LDS_BYTES = 163840
WSTR, HB, HSTR = 19072, 4 * 19072, 4608
FREE0 = HB + 4 * HSTR
W1_AT = [FREE0 + 6144 * i for i in range(11)] + [HB + 6144 * i for i in range(3)] + [WSTR * i + 12288 for i in range(4)]
W2_AT = [WSTR * (i // 2) + 6144 * (i % 2) for i in range(6)] + W1_AT[:12]
TABS = 3 * WSTR

class PairDma:
    def __init__(self, k, s_w, s_jm, base, R, l16, at):
        self.k, self.R, self.l16, self.at = k, R, l16, at
        self.src = k.s(); self.wh = k.s(); self.wl = k.s(); self.t = k.s()
        k(f's_mul_i32 {self.src}, {s_jm}, 110592\ns_mul_i32 {self.t}, {s_w}, 3072\ns_add_u32 {self.src}, {self.src}, {self.t}\ns_add_u32 {self.src}, {self.src}, {base}')
        k(f's_lshr_b32 {self.wh}, {s_w}, 1\ns_and_b32 {self.wl}, {s_w}, 1\ns_mul_i32 {self.wl}, {self.wl}, 3072')
    def ops(self, P):
        c0, c1 = self.at[2 * P], self.at[2 * P + 1]
        ld = lambda i: f'buffer_load_dwordx4 {self.l16}, {self.R}, {self.src} offen sc1 lds'
        return [[f's_mul_i32 {self.t}, {self.wh}, {c1 - c0}', f's_add_u32 {self.t}, {self.t}, {self.wl}', f's_add_u32 m0, {self.t}, {c0}', ld(0)],
                [f's_add_u32 m0, {self.t}, {c0 + 1024}', f's_add_u32 {self.src}, {self.src}, 1024', ld(1)],
                [f's_add_u32 m0, {self.t}, {c0 + 2048}', f's_add_u32 {self.src}, {self.src}, 1024', ld(2), f's_add_u32 {self.src}, {self.src}, {12288 - 2048}']]
    def release(self):
        for x in (self.src, self.wh, self.wl, self.t): x.release()
```

```python
from common import *

N_SIG = 64 + 45
BUF0, BUF1, SVEC = 0, 73728, 147456
K1_LDS = 147456 + 2560
SPIN_MAX = 40000

def vmaps():
    maps = [list(range(16))]
    for s in (1, 2, 3):
        m = list(maps[-1]); step = 1 << s
        new = [step * i for i in range(8, 16)]
        for j in range(16):
            if m[j] % step: m[j] = new.pop(0)
        assert not new
        maps.append(m)
    return maps

def service(k, P, lane, s_w, END, NEXT, SP, opt=()):
    vm, lg = trackers(k)
    Rws = k.s(4); Rdbg = k.s(4); RA = k.s(4); RB = k.s(4)
    srd(k, Rws, P['ws'], WS_USED); srd(k, Rdbg, P['dbg'], 256)
    z4 = k.v(4, 4); zero = z4.sub(0, 2); one = k.v(); l16 = k.v(); q = k.v(); m = k.v()
    fr = k.v(72, 4); sv = k.v(72, 4); acc = k.v(4, 4)
    sav = k.s(2); st = k.s(); cnt = k.s()
    jb = k.s(); modeB = k.s(); blkB = k.s(); srcB = k.s(); strB = k.s()
    L_mod, L_B, L_C = k.label('mod'), k.label('jobB'), k.label('jobC')
    k(f'v_lshrrev_b32 {q}, 4, {lane}\nv_and_b32 {m}, 15, {lane}\nv_lshlrev_b32 {l16}, 4, {lane}')
    cjs = {}
    def common():
        for i in range(4): k(f'v_mov_b32 {z4[i]}, 0')
        k(f'v_mov_b32 {one}, 1\ns_mov_b32 {cnt}, 0')
        k(f's_add_u32 {jb}, s2, 32\ns_sub_u32 {blkB}, s2, 64\ns_cmp_ge_u32 s2, 64\ns_cselect_b32 {jb}, {blkB}, {jb}')
        k(f's_cmp_ge_u32 s2, 96\ns_cselect_b32 {jb}, 200, {jb}\ns_sub_u32 {blkB}, s2, 7\ns_cmp_ge_u32 s2, 103\ns_cselect_b32 {jb}, {blkB}, {jb}')
        srd(k, RB, P['wmod'], D * 3456 * 2)
        k(f's_mov_b32 {modeB}, 0\ns_cmp_ge_u32 {jb}, 6\ns_cselect_b32 {blkB}, 39, 30\ns_add_u32 {blkB}, {blkB}, {jb}\ns_mov_b32 {strB}, 6912')
        for mode, lo, ptr, nb, st_ in ((2, 15, 'w2', D * D * 2, 1152), (3, 24, 'w3', D * F * 2, 9216), (1, 96, 'w1', D * D * 2, 1152)):
            k(f's_sub_u32 {srcB}, {jb}, {lo}\ns_cmp_ge_u32 {jb}, {lo}')
            k(f's_cselect_b32 {blkB}, {srcB}, {blkB}\ns_cselect_b32 {modeB}, {mode}, {modeB}\ns_cselect_b32 {strB}, {st_}, {strB}')
            k(f's_cselect_b32 {RB[0]}, {P[ptr][0]}, {RB[0]}\ns_cselect_b32 {RB[1]}, {P[ptr][1]}, {RB[1]}\ns_cselect_b32 {RB[2]}, {nb}, {RB[2]}')
        k(f's_lshl_b32 {srcB}, {blkB}, 7')
    def signal(off, last):
        sk = k.label('notlast')
        k(f's_mov_b64 exec, 1\nv_mov_b32 {acc[0]}, 1\nbuffer_atomic_add {acc[0]}, {zero[0]}, {Rdbg}, {off} offen offset:64 sc0 sc1\ns_waitcnt vmcnt(0)')
        k(f'v_readfirstlane_b32 {st}, {acc[0]}\ns_cmp_lg_u32 {st}, {last}\ns_cbranch_scc1 {sk}')
        k(f'buffer_store_dword {one}, {zero[0]}, {Rdbg}, {off} offen offset:192 sc1\n{sk}:\ns_mov_b64 exec, -1')
    cj = ColJob(k, vm, lg, lane, s_w)
    L_w1 = k.label('w1')
    k(f's_cmp_ge_u32 s2, 103\ns_cbranch_scc1 {L_w1}\ns_cmp_ge_u32 s2, 64\ns_cbranch_scc1 {L_mod}')

    srd(k, RA, P['u'], L * D * 2)
    va = k.v(); vx = k.v(2); t = k.v(6); row = k.v(); s1 = k.s()
    k(f's_and_b32 {st}, {s_w}, 1\ns_lshl_b32 {s1}, s2, 1\ns_add_u32 {st}, {st}, {s1}\ns_lshl_b32 {st}, {st}, 4')
    k(f'v_and_b32 {t[0]}, 7, {m}\nv_lshrrev_b32 {t[2]}, 3, {m}\nv_lshl_add_u32 {t[5]}, {t[0]}, 1, {t[2]}\nv_add_u32 {row}, {st}, {t[5]}')
    k(f's_lshr_b32 {s1}, {s_w}, 1\ns_mul_i32 {st}, {s1}, 576\nv_mul_u32_u24 {va}, 1152, {row}\nv_lshl_add_u32 {va}, {q}, 4, {va}')
    for i in range(4): k(f'v_mov_b32 {z4[i]}, 0')
    k(f's_lshl_b32 {sav[0]}, s2, 8\ns_add_u32 {sav[0]}, {sav[0]}, {O_STATS}\ns_cmp_eq_u32 {s_w}, 0\ns_cselect_b32 {sav[0]}, {sav[0]}, {WS_USED}\ns_mov_b64 exec, 0xffff')
    k(f'buffer_store_dwordx4 {z4}, {l16}, {Rws}, {sav[0]} offen sc1\ns_mov_b64 exec, -1')
    k(f's_or_b32 {sav[0]}, s2, {s_w}\ns_cmp_eq_u32 {sav[0]}, 0\ns_mov_b32 {sav[0]}, {O_FW}\ns_cselect_b32 {sav[0]}, {sav[0]}, {WS_USED}')
    k(f'buffer_store_dwordx4 {z4}, {l16}, {Rws}, {sav[0]} offen sc1\nbuffer_store_dwordx4 {z4}, {l16}, {Rws}, {sav[0]} offen offset:1024 sc1')
    ix = [vm.op(f'buffer_load_dwordx4 {fr.sub(4 * i, 4)}, {va}, {RA}, {st} offen offset:{64 * i}') for i in range(9)]
    pf = k.v(2); pfs = k.s(2)
    common()
    ones = sv.sub(40, 4); gacc = sv.sub(36, 4); arr = sv[44]; msk = [k.s(2) for _ in range(3)]
    sk = k.label('noarr')
    k(f's_cmp_lg_u32 {s_w}, 0\ns_cbranch_scc1 {sk}\ns_mov_b64 exec, 1\nv_mov_b32 {arr}, 1\ns_waitcnt vmcnt(9)\nbuffer_atomic_add {arr}, {zero[0]}, {Rdbg}, 0 offen offset:64 sc0 sc1\ns_mov_b64 exec, -1\n{sk}:')
    for i in range(4): k(f'v_mov_b32 {ones[i]}, 0x3f803f80')
    k(f'v_and_b32 {t[0]}, 3, {m}')
    for e in range(3): k(f'v_cmp_eq_u32 {msk[e]}, {e + 1}, {t[0]}')
    k(f's_lshl_b32 {st}, {s_w}, 8\ns_add_u32 {st}, {st}, {SVEC}\nv_lshl_add_u32 {t[3]}, {t[5]}, 2, {st}\nv_lshrrev_b32 {t[0]}, 2, {m}\nv_cmp_eq_u32 vcc, {t[0]}, {q}')
    k(f'v_add_u32 {t[4]}, 128, {t[3]}\nv_add_u32 {t[5]}, 192, {t[3]}\nv_cndmask_b32 {t[4]}, {t[5]}, {t[4]}, vcc')
    k(f'v_lshrrev_b32 {t[0]}, 3, {m}\nv_lshl_add_u32 {t[1]}, {q}, 1, {t[0]}\nv_lshlrev_b32 {vx[0]}, 14, {t[1]}\nv_sub_u32 {t[1]}, {row}, {t[0]}\nv_lshl_add_u32 {vx[0]}, {t[1]}, 3, {vx[0]}')
    k(f's_mul_i32 {s1}, {s1}, {9 * 131072}\ns_add_u32 {s1}, {s1}, {O_XT}\nv_cmp_eq_u32 vcc, 0, {t[0]}')
    dp = 'row_ror:8 row_mask:0xf bank_mask:0xf'
    for i in range(9):
        vm.wait(ix[i])
        if i == 0: SP(8)
        r_ = fr.sub(4 * i, 4); o = sv.sub(4 * i, 4)
        k(f'v_mfma_f32_16x16x32_bf16 {acc}, {ones}, {r_}, {"0" if i == 0 else acc}')
        k(f'v_cndmask_b32_dpp {o[0]}, {r_[2]}, {r_[0]}, vcc {dp}\nv_cndmask_b32_dpp {o[1]}, {r_[3]}, {r_[1]}, vcc {dp}\ns_not_b64 vcc, vcc')
        k(f'v_mfma_f32_16x16x32_bf16 {gacc}, {r_}, {r_}, {"0" if i == 0 else gacc}')
        k(f'v_cndmask_b32_dpp {o[2]}, {r_[0]}, {r_[2]}, vcc {dp}\nv_cndmask_b32_dpp {o[3]}, {r_[1]}, {r_[3]}, vcc {dp}\ns_not_b64 vcc, vcc')
        vm.op(f'buffer_store_dwordx4 {o}, {vx[0]}, {Rws}, {s1} offen sc1')
        if i < 8: k(f's_add_u32 {s1}, {s1}, 131072')
    SP(10)
    k(f'v_cndmask_b32 {t[0]}, {gacc[0]}, {gacc[1]}, {msk[0]}\nv_cndmask_b32 {t[0]}, {t[0]}, {gacc[2]}, {msk[1]}\nv_cndmask_b32 {t[0]}, {t[0]}, {gacc[3]}, {msk[2]}')
    k(f'ds_write_b32 {t[3]}, {acc[0]}\nds_write_b32 {t[4]}, {t[0]}\ns_waitcnt lgkmcnt(0)\ns_barrier')
    a, b = k.label('notw0'), k.label('sigd')
    k(f's_cmp_lg_u32 {s_w}, 0\ns_cbranch_scc1 {a}')
    k(f'v_and_b32 {t[1]}, 1, {q}\nv_lshlrev_b32 {t[1]}, 8, {t[1]}\nv_lshl_add_u32 {t[1]}, {m}, 2, {t[1]}\nv_add_u32 {t[1]}, {SVEC}, {t[1]}')
    k(f'ds_read2_b32 {t[2:4]}, {t[1]} offset0:0 offset1:32\nds_read2_b32 {t[4:6]}, {t[1]} offset0:128 offset1:160')
    sk = k.label('notlast')
    k(f's_waitcnt vmcnt(9)\nv_readfirstlane_b32 {st}, {arr}\ns_cmp_lg_u32 {st}, 102\ns_cbranch_scc1 {sk}')
    k(f's_mov_b64 exec, 1\nbuffer_store_dword {one}, {zero[0]}, {Rdbg}, 0 offen offset:192 sc1\ns_mov_b64 exec, -1\n{sk}:\ns_waitcnt lgkmcnt(0)')
    k(f'v_add_f32 {t[0]}, {t[2]}, {t[4]}\nv_add_f32 {t[2]}, {t[3]}, {t[5]}')
    sigma_bf16(k, t[0], t[2])
    k(f'v_cvt_pk_bf16_f32 {t[2]}, {t[0]}, {t[2]}\nv_mov_b32 {t[3]}, 1\nv_lshlrev_b32 {t[1]}, 3, {lane}\ns_lshl_b32 {st}, s2, 8\ns_add_u32 {st}, {st}, {O_STATS}')
    k(f'{a}:'); SP(14); k('s_waitcnt vmcnt(0)\ns_barrier'); vm.reset()
    k(f's_cmp_lg_u32 {s_w}, 0\ns_cbranch_scc1 {b}')
    k(f's_mov_b32 exec_hi, 0\nbuffer_store_dwordx2 {t[2:4]}, {t[1]}, {Rws}, {st} offen sc1\ns_mov_b64 exec, -1')
    k(f'{b}:'); SP(9)
    for x_ in msk: x_.release()
    cj.dma(RB, srcB, strB, BUF1, 'nt3' in opt)
    k(f's_lshl_b32 {st}, s2, 2\ns_add_u32 {st}, {st}, {s_w}\ns_lshl_b32 {st}, {st}, 10')
    k(f's_cmp_eq_u32 s2, {O_FW // 4096}\ns_cselect_b32 {st}, {WS_USED}, {st}\nbuffer_store_dwordx4 {z4}, {l16}, {Rws}, {st} offen sc1')
    sk = k.label('nopad')
    k(f's_cmp_lg_u32 {s_w}, 2\ns_cbranch_scc1 {sk}\ns_cmp_ge_u32 s2, 36\ns_cbranch_scc1 {sk}\ns_lshr_b32 {st}, s2, 1\ns_mul_i32 {st}, {st}, {GPL}\ns_bitcmp1_b32 s2, 0\ns_cselect_b32 {sav[0]}, {129 * 1024}, 0')
    k(f's_add_u32 {st}, {st}, {sav[0]}\ns_add_u32 {st}, {st}, {O_G}\nbuffer_store_dwordx4 {z4}, {l16}, {Rws}, {st} offen sc1\n{sk}:')
    k(f's_branch {L_B}')
    for x_ in (va, vx, t, row, s1): x_.release()

    def mod_tail(ids, s_blk, sig, gran=False):
        t = k.v(2); vg = k.v(); s1 = k.s()
        for s in range(18):
            if s % 2 == 0: lg.wait(ids[s + 1])
            k(f'v_mfma_f32_16x16x32_bf16 {acc}, {sv.sub(4 * s, 4)}, {fr.sub(4 * s, 4)}, {"0" if s == 0 else acc}')
        k(f's_lshl_b32 {s1}, {s_w}, 6\ns_add_u32 {s1}, {s1}, {SVEC + 2048}\nv_lshl_add_u32 {vg}, {m}, 2, {s1}')
        k(f'v_cvt_pk_bf16_f32 {t[0]}, {acc[0]}, {acc[0]}\nv_and_b32 {t[0]}, 0xffff0000, {t[0]}')
        k(f'v_add_f32 {t[1]}, 1.0, {t[0]}\nv_cvt_pk_bf16_f32 {t[1]}, {t[1]}, {t[1]}\nv_and_b32 {t[1]}, 0xffff0000, {t[1]}')
        k(f's_mov_b64 vcc, 0\ns_sub_u32 {s1}, {s_blk}, 9\ns_cmp_lt_u32 {s1}, 9\ns_cselect_b64 vcc, -1, vcc')
        k(f's_sub_u32 {s1}, {s_blk}, 36\ns_cmp_lt_u32 {s1}, 9\ns_cselect_b64 vcc, -1, vcc')
        k(f'v_cndmask_b32 {t[0]}, {t[0]}, {t[1]}, vcc\nds_write_b32 {vg}, {t[0]}\ns_waitcnt lgkmcnt(0)\ns_barrier'); lg.reset()
        a, b = k.label('notw0'), k.label('nob')
        k(f's_cmp_lg_u32 {s_w}, 0\ns_cbranch_scc1 {a}')
        k(f'v_lshlrev_b32 {vg}, 3, {lane}\nv_add_u32 {t[0]}, {SVEC + 2048}, {vg}\nds_read_b64 {t}, {t[0]}\ns_lshl_b32 {s1}, {s_blk}, 8\ns_add_u32 {s1}, {s1}, {O_MODF}')
        k(f's_mov_b32 exec_hi, 0')
        if gran:
            k(f's_lshl_b32 {sav[0]}, {s_blk}, 9\ns_add_u32 {sav[0]}, {sav[0]}, {O_MODG}\nv_mov_b32 {acc[1]}, 1\nv_mov_b32 {acc[3]}, 1\ns_waitcnt lgkmcnt(0)')
            k(f'v_mov_b32 {acc[0]}, {t[0]}\nv_mov_b32 {acc[2]}, {t[1]}\nbuffer_store_dwordx4 {acc}, {l16}, {Rws}, {sav[0]} offen sc1')
        k(f's_waitcnt lgkmcnt(0)\nbuffer_store_dwordx2 {t}, {vg}, {Rws}, {s1} offen sc1')
        if sig:
            k(f's_sub_u32 {s1}, {s_blk}, 27\ns_cmp_ge_u32 {s1}, 18\ns_cbranch_scc1 {b}')
            k(f'v_cvt_pk_bf16_f32 {acc[0]}, {t[0]}, {t[1]}\nv_lshrrev_b32 {vg}, 1, {vg}\ns_lshl_b32 {s1}, {s1}, 7\ns_add_u32 {s1}, {s1}, {O_MODB}')
            k(f'buffer_store_dword {acc[0]}, {vg}, {Rws}, {s1} offen sc1\n{b}:')
            k(f's_cmp_ge_u32 {s_blk}, 45\ns_cbranch_scc1 {a}\ns_sub_u32 {s1}, {s_blk}, 27\ns_cmp_lt_u32 {s1}, 9')
            k(f's_cselect_b32 {sav[0]}, 12, 4\ns_cselect_b32 {sav[1]}, 8, 35\ns_waitcnt vmcnt(0)')
            signal(sav[0], sav[1])
        k(f'{a}:\ns_mov_b64 exec, -1')
        t.release(); vg.release(); s1.release()

    k(f'{L_mod}:')
    vm, lg = trackers(k); cj.vm, cj.lg = vm, lg
    blkA = k.s(); srcA = k.s(); strA = k.s(); Rc = k.s(4)
    srd(k, RA, P['wmod'], D * 3456 * 2); srd(k, Rc, P['c'], D * 2)
    k(f's_sub_u32 {blkA}, s2, 64\ns_cmp_ge_u32 {blkA}, 27\ns_cselect_b32 {st}, 9, 0\ns_cmp_ge_u32 {blkA}, 36\ns_cselect_b32 {st}, -9, {st}\ns_add_u32 {blkA}, {blkA}, {st}')
    k(f's_lshl_b32 {srcA}, {blkA}, 7\ns_mov_b32 {strA}, 6912')
    t = k.v(8); vg = k.v()
    k(f'v_lshlrev_b32 {vg}, 3, v0')
    for i in range(4): k(f'v_mov_b32 {z4[i]}, 0')
    k(f's_lshl_b32 {st}, {blkA}, 9\ns_add_u32 {st}, {st}, {O_MODG}\ns_cmp_eq_u32 {s_w}, 0\ns_cselect_b32 {st}, {st}, {WS_USED}\ns_mov_b32 exec_hi, 0')
    icl = vm.op(f'buffer_store_dwordx4 {z4}, {l16}, {Rws}, {st} offen sc1')
    k('s_mov_b64 exec, -1')
    ic = vm.op(f'buffer_load_dwordx2 {t[0:2]}, {vg}, {Rc}, 0 offen')
    ia = cj.dma(RA, srcA, strA, BUF0)
    common()
    vm.wait(ic)
    sk = k.label('noarr')
    k(f's_cmp_lg_u32 {s_w}, 0\ns_cbranch_scc1 {sk}\ns_mov_b64 exec, 1\nv_mov_b32 {acc[1]}, 1\nbuffer_atomic_add {acc[1]}, {zero[0]}, {Rdbg}, 0 offen offset:64 sc0 sc1\ns_mov_b64 exec, -1\n{sk}:')
    k(f'v_lshlrev_b32 {t[2]}, 16, {t[0]}\nv_and_b32 {t[3]}, 0xffff0000, {t[0]}\nv_lshlrev_b32 {t[4]}, 16, {t[1]}\nv_and_b32 {t[5]}, 0xffff0000, {t[1]}')
    e = k.v(4)
    for i in range(4): k(f'v_mul_f32 {e[i]}, {fl(-LOG2E)}, {t[2 + i]}')
    for i in range(4): k(f'v_exp_f32 {e[i]}, {e[i]}')
    for i in range(4): k(f'v_add_f32 {e[i]}, 1.0, {e[i]}')
    for i in range(4): k(f'v_rcp_f32 {e[i]}, {e[i]}')
    for i in range(4): k(f'v_mul_f32 {e[i]}, {e[i]}, {t[2 + i]}')
    k(f'v_cvt_pk_bf16_f32 {t[0]}, {e[0]}, {e[1]}\nv_cvt_pk_bf16_f32 {t[1]}, {e[2]}, {e[3]}\nv_add_u32 {vg}, {SVEC}, {vg}')
    k(f'ds_write_b64 {vg}, {t[0:2]}\nv_lshlrev_b32 {vg}, 4, {q}\nv_add_u32 {vg}, {SVEC}, {vg}\ns_waitcnt lgkmcnt(0)\ns_barrier')
    for s in range(18): lg.op(f'ds_read_b128 {sv.sub(4 * s, 4)}, {vg} offset:{64 * s}')
    ad = cj.addr(BUF0)
    sk = k.label('notlast')
    k(f's_waitcnt vmcnt(0) lgkmcnt(0)\ns_cmp_lg_u32 {s_w}, 0\ns_cbranch_scc1 {sk}\nv_readfirstlane_b32 {st}, {acc[1]}\ns_cmp_lg_u32 {st}, 102\ns_cbranch_scc1 {sk}')
    k(f's_mov_b64 exec, 1\nbuffer_store_dword {one}, {zero[0]}, {Rdbg}, 0 offen offset:192 sc1\ns_mov_b64 exec, -1\n{sk}:\ns_barrier'); SP(10); vm.reset(); lg.reset()
    ids = cj.reads(ad, fr)
    mod_tail(ids, blkA, True, True); SP(11)
    k(f's_cmp_ge_u32 {jb}, 200\ns_cbranch_scc1 {L_C}')
    cj.dma(RB, srcB, strB, BUF1)
    k(f's_waitcnt vmcnt(0)\ns_branch {L_B}')
    e.release(); t.release(); vg.release()

    k(f'{L_w1}:')
    common()
    cj.dma(RB, srcB, strB, BUF1)
    SP(8); k('s_waitcnt vmcnt(0)')

    k(f'{L_B}:')
    vm, lg = trackers(k); cj.vm, cj.lg = vm, lg
    k(f's_waitcnt vmcnt(1) lgkmcnt(0)\ns_barrier')
    SP(12)
    il = k.s(); k(f's_sub_u32 {il}, {modeB}, 1\ns_cmp_lt_u32 {il}, 2\ns_cselect_b32 {il}, 1, 0')
    ids = cj.read(BUF1, fr, s_il=il)
    notmod, nocenter = k.label('notmod'), k.label('nocenter')
    k(f's_cmp_lg_u32 {modeB}, 0\ns_cbranch_scc1 {notmod}')
    mod_tail(ids, blkB, True)
    k(f's_branch {L_C}\n{notmod}:')
    k('s_waitcnt lgkmcnt(0)'); lg.reset()
    k(f's_bitcmp0_b32 {modeB}, 0\ns_cbranch_scc1 {nocenter}')
    ones = sv.sub(0, 4); t = k.v(4); gof = k.v(4, 4)
    go2_ld = f'buffer_load_dwordx4 {gof}, {zero[0]}, {Rdbg}, 0 offen offset:192 sc1'
    k(go2_ld)
    for i in range(4): k(f'v_mov_b32 {ones[i]}, 0x3f803f80')
    for s in range(18): k(f'v_mfma_f32_16x16x32_bf16 {acc}, {ones}, {fr.sub(4 * s, 4)}, {"0" if s == 0 else acc}')
    nm = sv.sub(4, 2)
    k(f'v_mul_f32 {nm[0]}, {fl(-1 / 576)}, {acc[0]}')
    for i in range(0, 72, 2):
        k(f'v_lshlrev_b32 {t[0]}, 16, {fr[i]}\nv_and_b32 {t[1]}, 0xffff0000, {fr[i]}')
        k(f'v_lshlrev_b32 {t[2]}, 16, {fr[i + 1]}\nv_and_b32 {t[3]}, 0xffff0000, {fr[i + 1]}')
        k(f'v_pk_add_f32 {t[0:2]}, {t[0:2]}, {nm} op_sel_hi:[1,0]\nv_pk_add_f32 {t[2:4]}, {t[2:4]}, {nm} op_sel_hi:[1,0]')
        k(f'v_cvt_pk_bf16_f32 {fr[i]}, {t[0]}, {t[1]}\nv_cvt_pk_bf16_f32 {fr[i + 1]}, {t[2]}, {t[3]}')
    k(f'{nocenter}:')
    T = k.s(); j = k.s(); dst = k.s(); step = k.s(); rot = k.s()
    k(f's_lshl_b32 {T}, {blkB}, 2\ns_add_u32 {T}, {T}, {s_w}')
    k(f's_mul_hi_u32 {j}, {T}, {(1 << 32) // 6 + 1}\ns_mul_i32 {dst}, {j}, 6\ns_sub_u32 {dst}, {T}, {dst}\ns_lshl_b32 {dst}, {dst}, 10')
    k(f's_mul_i32 {step}, {j}, 110592\ns_add_u32 {dst}, {dst}, {step}')
    k(f's_mul_i32 {rot}, {j}, 3\ns_sub_u32 {rot}, 18, {rot}\ns_cmp_eq_u32 {rot}, 18\ns_cselect_b32 {rot}, 0, {rot}')
    k(f's_cmp_eq_u32 {modeB}, 1\ns_cselect_b32 {rot}, {rot}, 0\ns_cselect_b32 {step}, 0, {O_W2F - O_W1F}\ns_add_u32 {dst}, {dst}, {step}\ns_add_u32 {dst}, {dst}, {O_W1F}')
    k(f's_mul_i32 {j}, {T}, 18432\ns_add_u32 {j}, {j}, {O_W3F}')
    k(f's_cmp_ge_u32 {modeB}, 3\ns_cselect_b32 {dst}, {j}, {dst}\ns_cselect_b32 {step}, 1, 6\ns_lshl_b32 {step}, {step}, 10')
    notw1, L_st = k.label('notw1'), k.label('stored')
    k(f's_cmp_lg_u32 {modeB}, 1\ns_cbranch_scc1 {notw1}')
    cj.store(fr, None, Rws, dst, step, s_rot=rot)
    sk = k.label('nosig')
    k(f's_waitcnt vmcnt(0)\ns_barrier\ns_cmp_lg_u32 {s_w}, 0\ns_cbranch_scc1 {sk}')
    signal(8, 8)
    k(f'{sk}:')
    lp, ok = k.label('pollm'), k.label('gotm')
    k(f'{lp}:\ns_waitcnt vmcnt(0)\nv_and_b32 {gof[1]}, {gof[1]}, {gof[3]}\nv_readfirstlane_b32 {st}, {gof[1]}\ns_cmp_ge_u32 {st}, 1\ns_cbranch_scc1 {ok}')
    k(f's_sleep 4\n{go2_ld}\ns_add_u32 {cnt}, {cnt}, 1\ns_cmp_lt_u32 {cnt}, {SPIN_MAX}\ns_cbranch_scc1 {lp}\ns_branch {END}\n{ok}:'); vm.reset()
    k(f'v_and_b32 {t[0]}, 1, {m}\nv_xor_b32 {t[0]}, 1, {t[0]}\nv_mul_u32_u24 {t[0]}, 1152, {t[0]}\nv_lshl_add_u32 {t[0]}, {q}, 4, {t[0]}\ns_mov_b32 {st}, {O_MODB}')
    ids = [vm.op(f'buffer_load_dwordx4 {sv.sub(4 * s, 4)}, {t[0]}, {Rws}, {st} offen offset:{64 * s} sc1') for s in range(18)]
    k(f's_lshr_b32 {j}, {s_w}, 1\ns_lshl_b32 {j}, {j}, 7\ns_and_b32 {st}, {s_w}, 1\ns_lshl_b32 {st}, {st}, 4\ns_add_u32 {j}, {j}, {st}\ns_add_u32 {j}, {j}, {SVEC}')
    k(f'v_lshrrev_b32 {t[1]}, 2, {m}\nv_and_b32 {t[2]}, 3, {m}\nv_lshlrev_b32 {t[2]}, 2, {t[2]}\nv_lshl_add_u32 {t[1]}, {t[1]}, 5, {t[2]}\nv_add_u32 {t[1]}, {j}, {t[1]}')
    for s in range(18):
        vm.wait(ids[s])
        k(f'v_mfma_f32_16x16x32_bf16 {acc}, {sv.sub(4 * s, 4)}, {fr.sub(4 * s, 4)}, {"0" if s == 0 else acc}')
    k(f'ds_write2st64_b32 {t[1]}, {acc[0]}, {acc[1]} offset0:0 offset1:1\ns_waitcnt lgkmcnt(0)\ns_barrier\ns_cmp_lg_u32 {s_w}, 0\ns_cbranch_scc1 {L_st}')
    k(f'v_add_u32 {t[0]}, {SVEC}, {l16}\nds_read_b128 {acc}, {t[0]}\nv_mul_u32_u24 {t[1]}, 2304, {q}\nv_lshl_add_u32 {t[1]}, {m}, 4, {t[1]}')
    k(f's_lshl_b32 {j}, {blkB}, 8\ns_add_u32 {j}, {j}, {O_MODF + 6 * 2304}\ns_mov_b32 exec_hi, 0\ns_waitcnt lgkmcnt(0)')
    k(f'buffer_store_dwordx4 {acc}, {t[1]}, {Rws}, {j} offen sc1\ns_mov_b64 exec, -1')
    k(f'{L_st}:\ns_branch {L_C}')
    k(f'{notw1}:'); vm.reset()
    cj.store(fr, None, Rws, dst, step, s_rot=rot)
    k(f'{L_C}:'); SP(13)
    code_prefetch(k, None, NEXT, END, 60000, 'v0', pf, pfs)
    k(f's_cmp_ge_u32 s2, 103\ns_cbranch_scc1 {NEXT}\ns_lshl_b32 {T}, s2, 2\ns_add_u32 {T}, {T}, {s_w}')
    for i in range(4): k(f'v_mov_b32 {acc[i]}, {POISON}')
    for i in range(12):
        k(f's_lshr_b32 {j}, {T}, 7\ns_lshl_b32 {j}, {j}, 1\ns_add_u32 {j}, {j}, {T}\ns_lshl_b32 {j}, {j}, 10\ns_add_u32 {j}, {j}, {O_G + 1024}')
        k(f's_lshl_b32 {dst}, {T}, 10\ns_add_u32 {step}, {dst}, {O_X1F - 2304 * 1024}\ns_cmp_ge_u32 {T}, 2304\ns_cselect_b32 {j}, {step}, {j}')
        if i == 11:
            k(f's_sub_u32 {step}, {dst}, {4608 * 1024 - O_PST}\ns_cmp_ge_u32 {T}, 4608\ns_cselect_b32 {j}, {step}, {j}\ns_cmp_ge_u32 {T}, 4704\ns_cselect_b32 {j}, {WS_USED}, {j}')
        k(f'buffer_store_dwordx4 {acc}, {l16}, {Rws}, {j} offen sc1')
        if i < 11: k(f's_add_u32 {T}, {T}, 412')
    k(f's_branch {NEXT}')

TAB, KD = 0, 17408

def conv(k, P, lane, s_w, END, NEXT, dump, SP):
    vm, lg = trackers(k)
    cidx = k.s(); s_d = k.s(); st = k.s(); st2 = k.s(); sav = k.s(2)
    k(f's_and_b32 {cidx}, s2, 7\ns_mul_i32 {cidx}, {cidx}, 18\ns_lshr_b32 {st}, s2, 3\ns_add_u32 {cidx}, {cidx}, {st}\ns_sub_u32 {cidx}, {cidx}, 14')
    k(f's_lshl_b32 {s_d}, {cidx}, 2\ns_add_u32 {s_d}, {s_d}, {s_w}\ns_lshl_b32 {st}, {cidx}, 3')
    sdt = k.s(2); sD = k.s(2)
    k(f's_load_dwordx2 {sdt}, {P["logdt"]}, {st}\ns_load_dwordx2 {sD}, {P["Dskip"]}, {st}')
    R = k.s(4); Rws = k.s(4); Rdbg = k.s(4)
    par = k.v(4); t = k.v(8); x = k.v(16)
    k(f'v_lshlrev_b32 {t[0]}, 2, {lane}\ns_lshl_b32 {st2}, {s_d}, 8')
    for i, n in enumerate(('logA', 'Aim', 'Cr', 'Ci')):
        srd(k, R, P[n], D * 128 * 2)
        ipar = vm.op(f'buffer_load_dword {par[i]}, {t[0]}, {R}, {st2} offen')
    srd(k, Rws, P['ws'], WS_USED); srd(k, Rdbg, P['dbg'], 256)
    wb = k.s(); k(f's_mul_i32 {wb}, {s_w}, {WSTR}')
    q = k.v(); m = k.v(); ag = k.v(); am = k.v(); a4 = k.v(); fl_v = k.v(2)
    k(f'v_lshrrev_b32 {q}, 4, {lane}\nv_and_b32 {m}, 15, {lane}')
    ga = k.v(32); cst = k.v()
    k(f's_add_u32 {st2}, {wb}, {KD - 2 * (134 * 128 - 128)}\nv_mov_b32 {cst}, {st2}')
    k(f'v_lshlrev_b32 {t[2]}, 3, {lane}\nv_cvt_f32_u32 {t[2]}, {t[2]}')
    for c in range(4):
        for e in range(0, 8, 2):
            k(f'v_add_f32 {t[4]}, {fl(512 * c + e)}, {t[2]}\nv_add_f32 {t[5]}, {fl(512 * c + e + 1)}, {t[2]}\nv_cvt_pk_bf16_f32 {t[4]}, {t[4]}, {t[5]}')
            k(f'v_mad_u32_u16 {ga[8 * c + e]}, {t[4]}, 2, {cst}\nv_mad_u32_u16 {ga[8 * c + e + 1]}, {t[4]}, 2, {cst} op_sel:[1,0,0,0]')
    k(f's_add_u32 {st2}, {wb}, {KD}\nv_lshl_add_u32 {t[4]}, {lane}, 4, {st2}\nv_cmp_gt_u32 vcc, 16, {lane}')
    for e in range(8): k(f'v_add_u32 {t[5]}, {2 * e}, {t[4]}\nv_cndmask_b32 {ga[e]}, {ga[e]}, {t[5]}, vcc')
    VM = vmaps()
    kda = k.v(4)
    k(f'v_lshlrev_b32 {t[2]}, 2, {m}')
    for s in range(4):
        lut = sum((VM[s][j] >> s) << (4 * j) for j in range(16))
        base = 0 if s == 0 else 128 + 128 * s
        k(f's_mov_b32 {sav[0]}, {lut & 0xffffffff}\ns_mov_b32 {sav[1]}, {lut >> 32}\nv_lshrrev_b64 {t[4:6]}, {t[2]}, {sav}\nv_and_b32 {t[4]}, 15, {t[4]}')
        k(f'v_lshl_add_u32 {t[4]}, {q}, 6, {t[4]}\ns_add_u32 {st2}, {wb}, {KD + 2 * base}\nv_lshl_add_u32 {kda[s]}, {t[4]}, 1, {st2}')
    cst.release()
    atw = k.v(); atr = k.v()
    k(f'v_lshl_add_u32 {atw}, {lane}, 3, {wb}\nv_mul_u32_u24 {atr}, 544, {m}\nv_lshl_add_u32 {atr}, {q}, 4, {atr}\nv_add_u32 {atr}, {wb}, {atr}')
    z4 = k.v(4)
    for i in range(4): k(f'v_mov_b32 {z4[i]}, 0')
    k(f'v_lshrrev_b32 {t[4]}, 5, v0\nv_mul_u32_u24 {t[4]}, {HSTR}, {t[4]}\nv_and_b32 {t[5]}, 31, v0\nv_lshl_add_u32 {t[4]}, {t[5]}, 4, {t[4]}\nv_add_u32 {t[4]}, {HB}, {t[4]}')
    k(f'v_cmp_gt_u32 vcc, 128, v0\ns_and_saveexec_b64 {sav}, vcc\nds_write_b128 {t[4]}, {z4}\ns_mov_b64 exec, {sav}')
    k('s_waitcnt lgkmcnt(0)')
    k(f's_lshl_b32 {st2}, {s_w}, 4\ns_lshr_b64 {sdt}, {sdt}, {st2}\ns_lshl_b32 {sdt[0]}, {sdt[0]}, 16')
    dt = k.v(); ks = k.v()
    k(f'v_mov_b32 {dt}, {fl(LOG2E)}\nv_mul_f32 {dt}, {sdt[0]}, {dt}\nv_exp_f32 {dt}, {dt}\nv_cvt_pk_bf16_f32 {dt}, {dt}, {dt}\nv_and_b32 {dt}, 0xffff0000, {dt}')
    SP(1); vm.wait(ipar); SP(2)
    pr = lambda: [k.v(2), k.v(2)]
    w1, w16, U = pr(), pr(), pr()
    er = k.v(2); rev = k.v(2)
    un = lambda d, s_, hi: f'v_and_b32 {d}, 0xffff0000, {s_}' if hi else f'v_lshlrev_b32 {d}, 16, {s_}'
    for md in range(2):
        k(un(er[md], par[0], md)); k(un(rev[md], par[1], md)); k(un(U[0][md], par[2], md)); k(un(U[1][md], par[3], md))
    for md in range(2): k(f'v_mul_f32 {er[md]}, {fl(LOG2E)}, {er[md]}')
    for md in range(2): k(f'v_exp_f32 {er[md]}, {er[md]}')
    k(f'v_max3_f32 {t[0]}, |{U[0][0]}|, |{U[0][1]}|, |{U[1][0]}|\nv_max_f32 {t[0]}, |{U[1][1]}|, {t[0]}')
    k(f'v_cvt_pk_bf16_f32 {t[1]}, {er[0]}, {er[1]}')
    for mm in ('quad_perm:[1,0,3,2]', 'quad_perm:[2,3,0,1]', 'row_half_mirror', 'row_mirror'):
        k(f'v_max_f32_dpp {t[0]}, {t[0]}, {t[0]} {mm} row_mask:0xf bank_mask:0xf')
    for md in range(2):
        k(un(er[md], t[1], md))
        k(f'v_mul_f32 {er[md]}, {er[md]}, {dt}\nv_mul_f32 {rev[md]}, {rev[md]}, {dt}')
        k(f'v_mul_f32 {er[md]}, {fl(-LOG2E)}, {er[md]}\nv_mul_f32 {rev[md]}, 0.15915494, {rev[md]}')
    k(f'v_readlane_b32 {st2}, {t[0]}, 0\nv_readlane_b32 {sav[0]}, {t[0]}, 16\nv_readlane_b32 {sav[1]}, {t[0]}, 32\nv_readlane_b32 {st}, {t[0]}, 48')
    k(f's_max_u32 {st2}, {st2}, {sav[0]}\ns_max_u32 {st}, {st}, {sav[1]}\ns_max_u32 {st2}, {st2}, {st}')
    for w_, mul in ((w1, None), (w16, '16.0')):
        for md in range(2):
            a, b = t[2 + md], t[4 + md]
            if mul: k(f'v_mul_f32 {a}, {fl(16.)}, {er[md]}\nv_mul_f32 {b}, {fl(16.)}, {rev[md]}\nv_fract_f32 {b}, {b}\nv_exp_f32 {a}, {a}')
            else: k(f'v_fract_f32 {b}, {rev[md]}\nv_exp_f32 {a}, {er[md]}')
            k(f'v_cos_f32 {w_[0][md]}, {b}\nv_sin_f32 {w_[1][md]}, {b}')
        for c in range(2): k(f'v_pk_mul_f32 {w_[c]}, {w_[c]}, {t[2:4]}')
    k(f'v_frexp_exp_i32_f32 {t[0]}, {st2}\nv_sub_u32 {t[1]}, 8, {t[0]}\nv_add_u32 {t[0]}, -7, {t[0]}\nv_ldexp_f32 {ks}, {dt}, {t[0]}')
    for md in range(2):
        for c in range(2): k(f'v_ldexp_f32 {U[c][md]}, {U[c][md]}, {t[1]}')
    er.release(); rev.release(); dt.release()
    tm = [k.v(2) for _ in range(4)]
    def cmul(d, z, s_, ta, tb):
        return [f'v_pk_mul_f32 {ta}, {z[1]}, {s_[1]}', f'v_pk_mul_f32 {tb}, {z[0]}, {s_[1]}',
                f'v_pk_fma_f32 {d[0]}, {z[0]}, {s_[0]}, {ta} neg_lo:[0,0,1] neg_hi:[0,0,1]', f'v_pk_fma_f32 {d[1]}, {z[1]}, {s_[0]}, {tb}']
    w32, w64, w128, w2, w4, w8, V = pr(), pr(), pr(), pr(), pr(), pr(), pr()
    for d_, s_ in ((w32, w16), (w64, w32), (w128, w64)):
        for x_ in cmul(d_, s_, s_, tm[0], tm[1]): k(x_)
    pv = [k.v(2), k.v(2)]; pu = [k.v(2), k.v(2)]
    fa = k.v(32, 4); fb = k.v(32, 4); kacc = k.v(16, 4)
    state = {'V': None, 'nv': 0, 'nu': 0}
    def v_entry(val, slot):
        out = []
        pk = pv[state['nv'] & 1]; state['nv'] += 1
        if val == 0:
            out += [f'v_mov_b32 {pk[0]}, 0x3c00', f'v_mov_b32 {pk[1]}, 0x3c00']
        else:
            if val == 1: cur = w1
            else:
                step = w1 if val <= 16 else w2 if val <= 32 else w4 if val <= 64 else w8
                cur = {2: w2, 4: w4, 8: w8}.get(val, V)
                out += cmul(cur, state['V'], step, tm[0], tm[1])
            state['V'] = cur
            out += [f'v_cvt_pk_f16_f32 {pk[md]}, {cur[0][md]}, {cur[1][md]}' for md in range(2)]
        out.append(('ds', f'ds_write_b64 {atw}, {pk} offset:{TAB + slot * 544}'))
        return out
    def u_entry(val, row):
        out = []
        pk = pu[state['nu'] & 1]; state['nu'] += 1
        if val:
            step = w16 if val <= 256 else w32 if val <= 512 else w64 if val <= 1024 else w128
            out += cmul(U, U, step, tm[2], tm[3])
        out += [f'v_cvt_pk_f16_f32 {pk[md]}, {U[0][md]}, -{U[1][md]}' for md in range(2)]
        out.append(('ds', f'ds_write_b64 {atw}, {pk} offset:{TAB + (16 + row) * 544}'))
        return out
    def put(x_):
        if isinstance(x_, tuple): return lg.op(x_[1])
        k(x_)
    pend = []
    flag_ld = f'buffer_load_dwordx2 {fl_v}, {z4[0]}, {Rdbg}, 0 offen offset:192 sc1'
    ifl = None
    for s in range(4):
        vs = sorted((VM[s][j], j) for j in range(16) if s == 0 or VM[s][j] != VM[s - 1][j])
        us = [16 * u for u in range(16)] if s == 0 else [(128 << s) + (16 << s) * u for u in range(9 if s == 3 else 8)]
        sv_ = [x_ for val, j in vs for x_ in v_entry(val, j)]
        su_ = [x_ for r_, val in enumerate(us) for x_ in u_entry(val, r_)]
        stream = interleave(sv_, su_)
        for n_, x_ in enumerate(stream):
            put(x_)
            if n_ == 27:
                while pend:
                    idr, mf = pend.pop(0); lg.wait(idr); k(mf)
            if s == 3 and n_ == 40: k(flag_ld)
        assert not pend
        for kk in range(8):
            lg.op(f'ds_read_b128 {fa.sub(4 * kk, 4)}, {atr} offset:{TAB + 16 * 544 + 64 * kk}')
            i_ = lg.op(f'ds_read_b128 {fb.sub(4 * kk, 4)}, {atr} offset:{TAB + 64 * kk}')
            ac = kacc.sub(4 * s, 4)
            pend.append((i_, f'v_mfma_f32_16x16x32_f16 {ac}, {fa.sub(4 * kk, 4)}, {fb.sub(4 * kk, 4)}, {"0" if kk == 0 else ac}'))
    for x_ in (w1, w16, w32, w64, w128, w2, w4, w8, V, U, tm, pv, pu):
        for y_ in x_: y_.release()
    md_ = k.v(16, 4); sg = md_; cnt = k.s(); mg = par.sub(0, 2); amg = par[2]
    k(f'v_lshrrev_b32 {amg}, 2, {m}\nv_cmp_eq_u32 vcc, 3, {amg}\nv_addc_co_u32 {amg}, vcc, 0, {amg}, vcc\nv_mul_u32_u24 {amg}, 4608, {amg}\nv_and_b32 {mg[0]}, 3, {m}\nv_lshl_add_u32 {amg}, {mg[0]}, 3, {amg}')
    def kd_out(s):
        ac = kacc.sub(4 * s, 4)
        for e in range(4): k(f'v_mul_f32 {ac[e]}, {ks}, {ac[e]}')
        k(f'v_cvt_pk_bf16_f32 {ac[0]}, {ac[0]}, {ac[1]}\nv_cvt_pk_bf16_f32 {ac[2]}, {ac[2]}, {ac[3]}')
        for e in range(4): lg.op(f'ds_write_b16{"_d16_hi" if e & 1 else ""} {kda[s]}, {ac[e & 2]} offset:{32 * e}')
    for s in range(3): kd_out(s)
    SP(3); lg.reset() if SP.on else None
    got = k.s()
    def x_loads():
        k(f's_lshl_b32 {st}, {cidx}, 14\ns_add_u32 {st}, {st}, {O_XT}')
        for i in range(4):
            k(f'buffer_load_dwordx4 {x.sub(4 * i, 4)}, {ag}, {Rws}, {st} offen sc1')
            if i < 3: k(f's_add_u32 {st}, {st}, 4096')
    def gran_loads():
        for i in range(4): k(f's_mov_b32 {st}, {O_STATS + 4096 * i}\nbuffer_load_dwordx4 {sg.sub(4 * i, 4)}, {ag}, {Rws}, {st} offen sc1')
        mod_loads()
    def gran_check():
        k(f's_waitcnt vmcnt(0)\nv_and_b32 {am}, {sg[1]}, {sg[3]}')
        for i in (5, 9, 13): k(f'v_bitop3_b32 {am}, {am}, {sg[i]}, {sg[i + 2]} bitop3:0x80')
        k(f'v_cmp_ne_u32 vcc, 1, {am}\ns_cmp_eq_u64 vcc, 0')
    def mod_loads():
        k(f's_lshl_b32 {st}, {cidx}, 5\ns_add_u32 {st}, {st}, {O_MODG}')
        k(f'buffer_load_dwordx2 {mg}, {amg}, {Rws}, {st} offen sc1')
    def spin(i, flag_ld):
        lp, ok = k.label('poll'), k.label('go')
        k(f'{lp}:\nv_readfirstlane_b32 {st}, {fl_v[i]}\ns_cmp_ge_u32 {st}, 1\ns_cbranch_scc1 {ok}')
        k(f's_sleep 4\n{flag_ld}\ns_add_u32 {cnt}, {cnt}, 1\ns_cmp_lt_u32 {cnt}, {SPIN_MAX}\ns_waitcnt vmcnt(0)\ns_cbranch_scc1 {lp}\ns_branch {END}\n{ok}:')
    k(f'v_lshlrev_b32 {ag}, 4, v0\nv_lshlrev_b32 {a4}, 2, v0\ns_mov_b32 {cnt}, 0\ns_waitcnt vmcnt(0)')
    spin(0, flag_ld)
    gran_loads()
    while pend:
        idr, mf = pend.pop(0); lg.wait(idr); k(mf)
    kd_out(3)
    kc = fa.sub(0, 16); pvv = fa.sub(16, 8)
    gid = [lg.op(f'ds_read_u16 {ga[e]}, {ga[e]}') for e in range(32)]
    aw = kda[0]; ap = kda[1]
    k(f'v_lshl_add_u32 {aw}, {lane}, 4, {wb}\nv_lshrrev_b32 {ap}, 1, {lane}\nv_mul_u32_u24 {ap}, 4160, {ap}\nv_and_b32 {t[1]}, 1, {lane}')
    k(f'v_lshl_add_u32 {ap}, {t[1]}, 4, {ap}\nv_add_u32 {ap}, {wb}, {ap}')
    k(f's_mov_b64 exec, 0xff'); lg.op(f'ds_write_b128 {ap}, {z4}'); k('s_mov_b64 exec, -1')
    for c in range(4):
        lg.wait(gid[8 * c + 7])
        for e in range(4): k(f'v_lshl_or_b32 {kc[4 * c + e]}, {ga[8 * c + 2 * e + 1]}, 16, {ga[8 * c + 2 * e]}')
        lg.op(f'ds_write_b128 {aw}, {kc.sub(4 * c, 4)} offset:{32 + 1024 * c}')
    ids = [lg.op(f'ds_read_b64 {pvv.sub(2 * c, 2)}, {aw} offset:{24 + 1024 * c}') for c in range(4)]
    late = k.label('late')
    gran_check()
    k(f's_cselect_b32 {got}, 1, 0\ns_cbranch_scc0 {late}')
    x_loads()
    k(f'{late}:')
    for c in range(4):
        lg.wait(ids[c])
        o = fb.sub(12 * (c & 1), 12); d_ = kc.sub(4 * c, 4); p0, p1 = pvv[2 * c], pvv[2 * c + 1]
        seq = [p0, p1, d_[0], d_[1], d_[2], d_[3]]
        o3 = o.sub(0, 4); o1 = o.sub(4, 4); o2 = o.sub(8, 4)
        for i in range(4): k(f'v_alignbit_b32 {o3[i]}, {seq[i + 1]}, {seq[i]}, 16')
        for i in range(3): k(f'v_mov_b32 {o1[i]}, {o3[i + 1]}')
        k(f'v_alignbit_b32 {o1[3]}, {seq[5]}, {seq[4]}, 16')
        for i in range(4): k(f'v_mov_b32 {o2[i]}, {seq[i + 1]}')
        for r_, oo in ((1, o1), (2, o2), (3, o3)): lg.op(f'ds_write_b128 {aw}, {oo} offset:{4160 * r_ + 32 + 1024 * c}')
    if dump:
        k(f's_lshl_b32 {st}, {s_d}, 12\ns_add_u32 {st}, {st}, {O_DBG}\nv_lshlrev_b32 {t[1]}, 4, {lane}')
        for c in range(4): vm.op(f'buffer_store_dwordx4 {kc.sub(4 * c, 4)}, {t[1]}, {Rws}, {st} offen offset:{1024 * c}')
    ga.release(); acc = k.v(32, 4); kacc.release(); ks.release(); atw.release(); atr.release()
    SP(4); lg.reset() if SP.on else None
    have = k.label('have')
    lp, ok = k.label('again'), k.label('rows')
    k(f's_cmp_lg_u32 {got}, 0\ns_cbranch_scc1 {have}\n{lp}:')
    gran_loads(); gran_check()
    k(f's_cbranch_scc1 {ok}\ns_sleep 2\ns_add_u32 {cnt}, {cnt}, 1\ns_cmp_lt_u32 {cnt}, {SPIN_MAX}\ns_cbranch_scc1 {lp}\ns_branch {END}\n{ok}:')
    x_loads()
    k(f'{have}:')
    xf = k.v(32); hf = k.v(32); st_ = k.v(16)
    for i in range(8): k(f'v_and_b32 {st_[2 * i]}, 0xffff0000, {sg[2 * i]}\nv_lshlrev_b32 {st_[2 * i + 1]}, 16, {sg[2 * i]}')
    for i in range(8): k(f'v_rcp_f32 {st_[2 * i]}, {st_[2 * i]}')
    for i in range(8): k(f'v_mul_f32 {st_[2 * i + 1]}, -{st_[2 * i + 1]}, {st_[2 * i]}')
    k('s_waitcnt vmcnt(0)')
    SP(14); lg.reset() if SP.on else None
    for i in range(16): k(f'v_lshlrev_b32 {xf[2 * i]}, 16, {x[i]}\nv_and_b32 {xf[2 * i + 1]}, 0xffff0000, {x[i]}')
    k(f'v_add_u32 {am}, {HB + 512}, {a4}')
    for j in range(16): k(f'v_pk_fma_f32 {hf.sub(2 * j, 2)}, {xf.sub(2 * j, 2)}, {st_.sub(2 * (j // 2), 2)}, {st_.sub(2 * (j // 2), 2)} op_sel:[0,0,1] op_sel_hi:[1,0,1]')
    lp, ok = k.label('gran'), k.label('got')
    k(f'{lp}:')
    k(f'v_cmp_ne_u32 vcc, 1, {mg[1]}\ns_cmp_eq_u64 vcc, 0\ns_cbranch_scc1 {ok}\ns_sleep 2')
    mod_loads()
    k(f's_add_u32 {cnt}, {cnt}, 1\ns_cmp_lt_u32 {cnt}, {SPIN_MAX}\ns_waitcnt vmcnt(0)\ns_cbranch_scc1 {lp}\ns_branch {END}\n{ok}:')
    for i in range(16): k(f'v_mov_b32_dpp {md_[i]}, {mg[0]} row_newbcast:{i} row_mask:0xf bank_mask:0xf')
    SP(5)
    for i in range(4):
        for j in range(4 * i, 4 * i + 4): k(f'v_pk_fma_f32 {hf.sub(2 * j, 2)}, {hf.sub(2 * j, 2)}, {md_.sub(4 + 2 * (j & 1), 2)}, {md_.sub(2 * (j & 1), 2)}')
        for c in range(4): k(f'v_cvt_pk_bf16_f32 {x[4 * i + c]}, {hf[8 * i + c]}, {hf[8 * i + 4 + c]}')
        for c in range(4): lg.op(f'ds_write_b32 {am}, {x[4 * i + c]} offset:{HSTR * c + 1024 * i}')
    st_.release()
    aA = kda[2]; aB = kda[3]
    k(f'v_bfe_u32 {t[0]}, {lane}, 2, 2\nv_mul_u32_u24 {aA}, 4160, {t[0]}\nv_and_b32 {t[0]}, 3, {lane}\nv_lshl_add_u32 {aA}, {t[0]}, 3, {aA}')
    k(f'v_lshlrev_b32 {t[0]}, 4, {q}\nv_sub_u32 {aA}, {aA}, {t[0]}\ns_add_u32 {st}, {wb}, 56\nv_add_u32 {aA}, {st}, {aA}')
    k(f's_mul_i32 {st}, {s_w}, {HSTR}\ns_add_u32 {st}, {st}, {HB + 480}\nv_lshl_add_u32 {aB}, {m}, 5, {t[0]}\nv_add_u32 {aB}, {st}, {aB}')
    lg.all(); k('s_barrier'); SP(6)
    fa2 = k.a(32, 4); fb2 = k.a(32, 4)
    sets = [(fa, fb), (fa2, fb2)]
    k(f'v_add_u32 {aB}, -448, {aB}')
    def reads(r_):
        A_, B_ = sets[r_ & 1]; out = []
        for i in range(8):
            out.append(f'ds_read_b128 {B_.sub(4 * i, 4)}, {aB} offset:{448 - 64 * r_ + 512 * i}')
            out.append(f'ds_read_b64_tr_b16 {A_.sub(4 * i, 2)}, {aA} offset:{64 * r_ + 8 + 512 * i}')
            out.append(f'ds_read_b64_tr_b16 {A_.sub(4 * i + 2, 2)}, {aA} offset:{64 * r_ + 512 * i}')
        return out
    jm = k.s(); l16 = k.v()
    k(f's_lshr_b32 {jm}, s2, 5\ns_sub_u32 {jm}, {jm}, 2\nv_lshlrev_b32 {l16}, 4, {lane}')
    pd = PairDma(k, s_w, jm, O_W1F, Rws, l16, W1_AT)
    early = [g for P_ in range(5) for g in pd.ops(P_)]
    flag_ld = f'buffer_load_dwordx2 {fl_v}, {z4[0]}, {Rdbg}, 0 offen offset:200 sc1'
    cur = [lg.op(x_) for x_ in reads(0)]
    for r_ in range(8):
        rd = reads(r_ + 1) if r_ < 7 else []
        A_, B_ = sets[r_ & 1]; nxt = []
        order = [(i, tt) for i in range(8) for tt in range(i, 8)] if r_ else sorted(((i, tt) for i in range(8) for tt in range(i, 8)), key=lambda p: (max(p[0], p[1] - p[0]), p))
        seen = set()
        if r_ == 1: k(flag_ld)
        if r_ == 3: k('s_waitcnt vmcnt(0)'); spin(0, flag_ld)
        for n_, (i, tt) in enumerate(order):
            lg.wait(max(cur[3 * i + 2], cur[3 * (tt - i)]))
            first = r_ == 0 and tt not in seen; seen.add(tt)
            k(f'v_mfma_f32_16x16x32_bf16 {acc.sub(4 * tt, 4)}, {A_.sub(4 * i, 4)}, {B_.sub(4 * (tt - i), 4)}, {"0" if first else acc.sub(4 * tt, 4)}')
            if rd: nxt.append(lg.op(rd.pop(0)))
            if r_ >= 3 and n_ >= 24 and n_ % 3 == 0 and early:
                for x_ in early.pop(0): k(x_)
        cur = nxt
    assert not early
    SP(7)
    k(f'v_lshlrev_b32 {t[0]}, 3, {q}\nv_lshl_add_u32 {t[0]}, {m}, 5, {t[0]}\nv_add_u32 {t[0]}, {wb}, {t[0]}')
    for tt in range(8):
        o = fa.sub(2 * tt, 2)
        k(f'v_cvt_pk_bf16_f32 {o[0]}, {acc[4 * tt]}, {acc[4 * tt + 1]}\nv_cvt_pk_bf16_f32 {o[1]}, {acc[4 * tt + 2]}, {acc[4 * tt + 3]}')
        k(f'ds_write_b64 {t[0]}, {o} offset:{512 * tt}')
    dv = t.sub(4, 4)
    k(f's_lshl_b32 {st}, {sD[0]}, 16\ns_and_b32 {st2}, {sD[0]}, 0xffff0000\nv_mov_b32 {dv[0]}, {st}\nv_mov_b32 {dv[1]}, {st2}')
    k(f's_lshl_b32 {st}, {sD[1]}, 16\ns_and_b32 {st2}, {sD[1]}, 0xffff0000\nv_mov_b32 {dv[2]}, {st}\nv_mov_b32 {dv[3]}, {st2}')
    k('s_waitcnt lgkmcnt(0)\ns_barrier')
    lg.reset()
    yp = fb.sub(0, 16); yf = acc; o = fa
    ids = [[lg.op(f'ds_read_b32 {yp[4 * i + c]}, {a4} offset:{WSTR * c + 1024 * i}') for c in range(4)] for i in range(4)]
    k(f's_lshl_b32 {st}, {cidx}, 15\ns_lshl_b32 {st2}, {s_w}, 11\ns_add_u32 {st}, {st}, {st2}\ns_add_u32 {st}, {st}, {O_X2}')
    k(f's_add_u32 {st2}, {wb}, 4096\nv_lshl_add_u32 {am}, {lane}, 5, {st2}\nv_lshl_add_u32 {a4}, {lane}, 4, {st2}\nv_lshlrev_b32 {ag}, 4, {lane}')
    odd, fin = k.label('odd'), k.label('fin')
    for i in range(4):
        lg.wait(ids[i][3])
        for c in range(4): k(f'v_lshlrev_b32 {yf[8 * i + c]}, 16, {yp[4 * i + c]}\nv_and_b32 {yf[8 * i + 4 + c]}, 0xffff0000, {yp[4 * i + c]}')
        for j in range(4 * i, 4 * i + 4): k(f'v_pk_fma_f32 {yf.sub(2 * j, 2)}, {hf.sub(2 * j, 2)}, {dv.sub(2 * (j & 1), 2)}, {yf.sub(2 * j, 2)}')
        for j in range(4 * i, 4 * i + 4): k(f'v_pk_fma_f32 {yf.sub(2 * j, 2)}, {yf.sub(2 * j, 2)}, {md_.sub(8 + 2 * (j & 1), 2)}, {xf.sub(2 * j, 2)}')
        for j in range(4 * i, 4 * i + 4): k(f'v_pk_mul_f32 {xf.sub(2 * j, 2)}, {yf.sub(2 * j, 2)}, {md_.sub(12 + 2 * (j & 1), 2)}')
    k(f's_bitcmp1_b32 {cidx}, 0\ns_cbranch_scc1 {odd}')
    for par_ in range(2):
        A_, B_ = (yf, xf) if par_ == 0 else (xf, yf)
        for r_ in range(8):
            for c in range(2):
                k(f'v_cvt_pk_bf16_f32 {o[4 * r_ + c]}, {A_[4 * r_ + 2 * c]}, {A_[4 * r_ + 2 * c + 1]}')
                k(f'v_cvt_pk_bf16_f32 {o[4 * r_ + 2 + c]}, {B_[4 * r_ + 2 * c]}, {B_[4 * r_ + 2 * c + 1]}')
            k(f'ds_write_b128 {am}, {o.sub(4 * r_, 4)} offset:{2048 * (r_ >> 1) + 16 * (r_ & 1)}')
        if par_ == 0: k(f's_branch {fin}\n{odd}:')
    k(f'{fin}:'); lg.reset()
    ids = [lg.op(f'ds_read_b128 {fb.sub(4 * r_, 4)}, {a4} offset:{1024 * r_}') for r_ in range(8)]
    for r_ in range(8):
        lg.wait(ids[r_])
        k(f'buffer_store_dwordx4 {fb.sub(4 * r_, 4)}, {ag}, {Rws}, {st} offen offset:{1024 * (r_ & 1)} sc1')
        if r_ & 1 and r_ < 7: k(f's_add_u32 {st}, {st}, 8192')
```

```python
from common import *

K2_LDS = LDS_BYTES
T_B, T_F = TABS, TABS + 7168
XBUF, HBUF = 0, 73728
X1C, PSTL = 147456, 147456 + 9216
SPIN_MAX = 40000
GC1 = -2.0 * LOG2E * 0.7978845608028654
GC2 = GC1 * 0.044715
PI = [0, 1, 2, 5, 6, 7, 9, 10, 11, 14, 15, 16, 3, 12, 4, 8, 13, 17]
MF = 'v_mfma_f32_16x16x32_bf16'

def un(d, s_, hi): return f'v_and_b32 {d}, 0xffff0000, {s_}' if hi else f'v_lshlrev_b32 {d}, 16, {s_}'

def gelu_consts(k, sig, c):
    k(f'v_mov_b32 {c[2]}, {sig}\nv_rcp_f32 {c[0]}, {sig}')
    k(f'v_mul_f32 {c[1]}, {c[0]}, {c[0]}\nv_mul_f32 {c[1]}, {c[1]}, {c[0]}')
    k(f'v_mul_f32 {c[0]}, {fl(GC1)}, {c[0]}\nv_mul_f32 {c[1]}, {fl(GC2)}, {c[1]}')

def phase2(k, P, lane, s_w, END, SP, opt=()):
    stamps = SP.on
    WFL = ' sc1'
    PFL = ' '.join(o[2:] for o in opt if o.startswith('p_')) or 'sc1'
    q = k.v(); m = k.v(); l16 = k.v(); one = k.v(); zero = k.v(); fv4 = k.v(8, 4)
    Rws = k.s(4); RG = k.s(4); RW = k.s(4)
    srd(k, RG, P['dbg'], 256)
    k(f'v_mov_b32 {one}, 1\nv_mov_b32 {zero}, 0')
    go_ld = f'buffer_load_dwordx4 {fv4[0:4]}, {zero}, {RG}, 0 offen offset:192 sc1'
    k(go_ld)
    k(f'v_lshrrev_b32 {q}, 4, {lane}\nv_and_b32 {m}, 15, {lane}\nv_lshlrev_b32 {l16}, 4, {lane}')
    rb = k.s(); jm = k.s(); mb = k.s(); fs = k.s(); st = k.s(); st1 = k.s(); sav = k.s(2); cnt = k.s(); mt = k.s(); rty = k.s()
    k(f's_and_b32 {st}, s2, 1\ns_lshl_b32 {mb}, {st}, 4\ns_bfe_u32 {st}, s2, 0x20001\ns_lshl_b32 {fs}, {st}, 1\ns_lshl_b32 {rb}, {st}, 2\ns_add_u32 {rb}, {rb}, {mb}')
    k(f's_bfe_u32 {st}, s2, 0x20003\ns_add_u32 {rb}, {rb}, {st}\ns_lshr_b32 {jm}, s2, 5\ns_sub_u32 {jm}, {jm}, 2')
    k(f's_bfe_u32 {st}, s2, 0x40003\ns_add_u32 {mb}, {mb}, {st}\ns_lshr_b32 {st}, s2, 7\ns_add_u32 {fs}, {fs}, {st}')
    if 'a4' in opt:
        k(f's_and_b32 {mb}, s2, 3\ns_lshl_b32 {mb}, {mb}, 3\ns_bfe_u32 {st}, s2, 0x30003\ns_add_u32 {mb}, {mb}, {st}')
        k(f's_bfe_u32 {fs}, s2, 0x10002\ns_lshl_b32 {fs}, {fs}, 2\ns_lshr_b32 {st}, s2, 6\ns_add_u32 {fs}, {fs}, {st}')
    if 'a1' in opt: k(f's_lshr_b32 {mb}, s2, 3\ns_and_b32 {fs}, s2, 7')
    if 'a8' in opt:
        k(f's_and_b32 {mb}, s2, 7\ns_lshl_b32 {mb}, {mb}, 2\ns_bfe_u32 {st}, s2, 0x20003\ns_add_u32 {mb}, {mb}, {st}\ns_lshr_b32 {fs}, s2, 5')
    k(f's_lshl_b32 {mt}, {rb}, 2\ns_add_u32 {mt}, {mt}, {s_w}\ns_mov_b32 {cnt}, 0\ns_mov_b32 {rty}, 0')
    srd(k, Rws, P['ws'], WS_USED); srd(k, RW, P['ws'], WS_USED)
    vm, lg = trackers(k)
    def STAMP(i, g4=False):
        mode = 'g4st' if 'g4st' in opt else 'g3st' if 'g3st' in opt else False
        if stamps and (g4 == mode or (i not in (1, 2, 3, 4, 5) and not g4)): SP(i); lg.reset()
    def flag_add(s_idx, base):
        k(f's_lshl_b32 {st}, {s_idx}, 7\ns_add_u32 {st}, {st}, {base}\ns_mov_b64 exec, 1')
        vm.op(f'buffer_atomic_add {one}, {zero}, {Rws}, {st} offen sc1')
        k('s_mov_b64 exec, -1')
    def poll(vaddr, base, target, sleep=0, fv=None):
        own = fv is None; fv = fv or k.v(); lp, ok = k.label('poll'), k.label('ok')
        k(f's_mov_b32 {st1}, {base}\n{lp}:\nbuffer_load_dword {fv}, {vaddr}, {Rws}, {st1} offen sc1\ns_waitcnt vmcnt(0)')
        k(f'v_cmp_gt_u32 vcc, {target}, {fv}\ns_cmp_eq_u64 vcc, 0\ns_cbranch_scc1 {ok}')
        if sleep: k(f's_sleep {sleep}')
        k(f's_add_u32 {cnt}, {cnt}, 1\ns_cmp_lt_u32 {cnt}, {SPIN_MAX}\ns_cbranch_scc1 {lp}\ns_branch {END}\n{ok}:')
        vm.reset()
        if own: fv.release()
    W = [k.a(72, 4), k.a(72, 4)]; vo = [l16] + [k.v() for _ in range(4)]
    for g in range(1, 5): k(f'v_add_u32 {vo[g]}, {4096 * g}, {l16}')
    sn = k.s(); s4 = k.s()
    k(f's_lshl_b32 {sn}, {fs}, 2\ns_add_u32 {sn}, {sn}, {s_w}\ns_mul_i32 {sn}, {sn}, {9 * 18432}\ns_add_u32 {s4}, {sn}, {O_W4F}\ns_add_u32 {sn}, {sn}, {O_W3F}')
    wld = lambda r_, ks: f'buffer_load_dwordx4 {W[r_].sub(4 * ks, 4)}, {vo[ks // 4]}, {RW}, {sn} offen offset:{1024 * (ks % 4)}' + WFL
    sm = k.s(); so = k.s()
    k(f's_lshl_b32 {sm}, {s_w}, 10')
    def spin(ld, regs, sleep=16):
        lp, ok = k.label('spin'), k.label('up')
        k(f'{lp}:\ns_waitcnt vmcnt(0)\nv_mov_b32 {fv4[7]}, {regs[0]}')
        for r_ in regs[1:]: k(f'v_and_b32 {fv4[7]}, {fv4[7]}, {r_}')
        k(f'v_readfirstlane_b32 {st}, {fv4[7]}\ns_cmp_lg_u32 {st}, 0\ns_cbranch_scc1 {ok}')
        k(f's_sleep {sleep}\n{ld}\ns_add_u32 {cnt}, {cnt}, 1\ns_cmp_lt_u32 {cnt}, {SPIN_MAX}\ns_cbranch_scc1 {lp}\ns_branch {END}\n{ok}:')
    RB = k.v(24, 4)
    keepV, keepA, keepS = list(k.V.free), list(k.A.free), list(k.S.free)
    XX = k.v(146, 2); t = k.v(8); row = k.v()
    pd1 = PairDma(k, s_w, jm, O_W1F, Rws, l16, W1_AT)
    k(f's_lshl_b32 {st}, {s_w}, 6\nv_add_u32 {t[2]}, {st}, {lane}')
    k(f'v_cmp_le_u32 vcc, 72, {t[2]}\nv_subrev_u32 {t[3]}, 72, {t[2]}\nv_cndmask_b32 {t[3]}, {t[2]}, {t[3]}, vcc\nv_add_u32 {t[3]}, 72, {t[3]}')
    k(f'v_cmp_le_u32 vcc, 144, {t[2]}\nv_subrev_u32 {t[4]}, 144, {t[2]}\nv_cndmask_b32 {t[3]}, {t[3]}, {t[4]}, vcc')
    k(f'v_cmp_le_u32 vcc, 216, {t[2]}\nv_subrev_u32 {t[4]}, 216, {t[2]}\nv_cndmask_b32 {t[3]}, {t[3]}, {t[4]}, vcc\nv_lshlrev_b32 {t[3]}, 4, {t[3]}')
    k(f'v_add_u32 {t[4]}, 40, {lane}\nv_lshlrev_b32 {t[4]}, 4, {t[4]}\nv_mul_u32_u24 {t[5]}, 43691, {t[2]}\nv_lshrrev_b32 {t[5]}, 20, {t[5]}\nv_mul_u32_u24 {t[6]}, 120, {t[5]}')
    k(f'v_add_u32 {t[6]}, {t[6]}, {t[2]}\nv_lshlrev_b32 {t[6]}, 4, {t[6]}')
    pd = PairDma(k, s_w, jm, O_W2F, Rws, l16, W2_AT)
    k(f's_lshl_b32 {st}, {mt}, 4\nv_add_u32 {row}, {st}, {m}')
    k(f'v_lshlrev_b32 {t[0]}, 16, {q}\nv_lshl_add_u32 {t[0]}, {row}, 4, {t[0]}\nv_add_u32 {t[1]}, 0x8000, {t[0]}')
    ones = k.v(4, 4); sacc = k.v(4, 4); gacc = k.v(4, 4); tacc = k.v(4, 4); qacc = k.v(4, 4); acc = k.v(24, 4)
    for i in range(4): k(f'v_mov_b32 {ones[i]}, 0x3f803f80')
    msk = [k.s(2) for _ in range(3)]; bidx = k.v()
    k(f'v_and_b32 {t[2]}, 3, {m}')
    for e in range(3): k(f'v_cmp_eq_u32 {msk[e]}, {e + 1}, {t[2]}')
    aT = k.v(); aW = [l16, k.v(), k.v()]
    k(f'v_min_u32 {t[2]}, 2, {t[2]}\nv_mul_u32_u24 {aT}, 2304, {t[2]}\nv_lshl_add_u32 {aT}, {q}, 4, {aT}\ns_mul_i32 {st}, {jm}, 192\ns_add_u32 {st}, {st}, {T_B}\nv_add_u32 {aT}, {st}, {aT}')
    k(f'v_lshrrev_b32 {t[2]}, 2, {m}\nv_lshl_add_u32 {t[2]}, {t[2]}, 4, {m}\nv_lshlrev_b32 {bidx}, 2, {t[2]}')
    k(f'v_add_u32 {aW[1]}, 0xf000, {l16}\nv_add_u32 {aW[2]}, 0x1e000, {l16}')
    k(f'v_lshlrev_b32 {t[2]}, 4, v0\nv_add_u32 {t[2]}, {T_B}, {t[2]}')
    spin(go_ld, [fv4[0]])
    k('s_waitcnt lgkmcnt(0)\ns_barrier')
    STAMP(15)
    na, nb = k.label('noarr'), k.label('notlast')
    k(f's_cmp_lg_u32 {s_w}, 0\ns_cbranch_scc1 {na}\ns_and_b32 {st1}, s2, 3\ns_lshl_b32 {st}, {st1}, 7\ns_add_u32 {st}, {st}, {O_FA}\ns_mov_b64 exec, 1')
    k(f'v_mov_b32 {fv4[4]}, 1\nbuffer_atomic_add {fv4[4]}, {zero}, {Rws}, {st} offen sc0 sc1\ns_lshl_b32 {st1}, {st1}, 2\ns_waitcnt vmcnt(0)')
    k(f'v_readfirstlane_b32 {st}, {fv4[4]}\ns_cmp_lg_u32 {st}, 63\ns_cbranch_scc1 {nb}')
    k(f'buffer_store_dword {one}, {zero}, {RG}, {st1} offen offset:208 sc1\n{nb}:\ns_mov_b64 exec, -1\n{na}:')
    go3_ld = f'buffer_load_dwordx4 {fv4[0:4]}, {zero}, {RG}, 0 offen offset:208 sc1'
    k('s_cmp_lt_u32 s2, 64\ns_cbranch_scc1 k2_idle')

    w0, w5, wj = k.label('havew1'), k.label('rest'), k.label('joined')
    spin(go_ld, [fv4[1], fv4[2], fv4[3]])
    k(f's_add_u32 m0, {sm}, {T_B + 2304}\ns_mov_b32 {st1}, {O_MODB}\nbuffer_load_dwordx4 {t[3]}, {Rws}, {st1} offen sc1 lds')
    k(f's_mov_b32 m0, {T_B + 2304 + 4096}\ns_mov_b32 exec_hi, 0\nbuffer_load_dwordx4 {t[4]}, {Rws}, {st1} offen sc1 lds\ns_mov_b64 exec, -1')
    k(f's_cmp_ge_u32 s2, 112\ns_cbranch_scc1 {w0}')
    for P_ in range(5):
        for g in pd1.ops(P_):
            for x_ in g: k(x_)
    k(f's_waitcnt vmcnt(0)\n{w0}:\ns_barrier\ns_cmp_eq_u32 {s_w}, 0\ns_cbranch_scc1 {w5}')
    k(f's_lshl_b32 {pd1.t}, {s_w}, 11\ns_sub_u32 {pd1.t}, {pd1.t}, 2048\ns_mul_i32 {pd1.src}, {jm}, 110592\ns_add_u32 {pd1.src}, {pd1.src}, {pd1.t}\ns_add_u32 {pd1.src}, {pd1.src}, {O_W1F + 61440}')
    for sl_i in range(10, 18):
        k(f's_add_u32 m0, {pd1.t}, {W1_AT[sl_i]}\nbuffer_load_dwordx4 {l16}, {Rws}, {pd1.src} offen sc1 lds')
        k(f'buffer_load_dwordx4 {l16}, {Rws}, {pd1.src} offen offset:1024 sc1 lds')
        if sl_i < 17: k(f's_add_u32 {pd1.src}, {pd1.src}, 6144')
    k(f'{w5}:')
    pd1.release()
    k(f'v_cmp_gt_u32 vcc, 144, v0\ns_and_saveexec_b64 {sav}, vcc\nds_write_b128 {t[2]}, {ones}\ns_mov_b64 exec, {sav}')
    w2ops = [g for P_ in range(9) for g in pd.ops(P_)]
    iw2 = [0]
    def w2dma():
        for x_ in w2ops.pop(0):
            if x_.startswith('buffer'): iw2[0] = vm.op(x_)
            else: k(x_)
    ix = []
    def issue(i):
        k(f's_lshl_b32 {st}, {st1}, 18\ns_add_u32 {st}, {st}, {O_X2}')
        vm.op(f'buffer_load_dwordx4 {XX.sub(8 * i, 4)}, {t[0]}, {Rws}, {st} offen sc1')
        ix.append(vm.op(f'buffer_load_dwordx4 {XX.sub(8 * i + 4, 4)}, {t[1]}, {Rws}, {st} offen sc1'))
        if i < 17: k(f's_add_u32 {st1}, {st1}, 1\ns_cmp_eq_u32 {st1}, 18\ns_cselect_b32 {st1}, 0, {st1}')
    lds_at = lambda a_: f'{aW[a_ // 0xf000]} offset:{a_ % 0xf000}'
    TF = W[1]; WR = [k.a(24, 4), k.a(24, 4)]
    def w_reads(i):
        return [f'ds_read_b128 {WR[i & 1].sub(4 * tt, 4)}, {lds_at(W1_AT[i] + 1024 * tt)}' for tt in range(6)]
    k(f's_cmp_lg_u32 {s_w}, 0\ns_cbranch_scc1 {wj}\n{go3_ld}')
    spin(go3_ld, [fv4[i] for i in range(4)], 2)
    k(f'{wj}:\ns_mul_i32 {st1}, {jm}, 3\ns_mul_i32 {so}, {jm}, 384\ns_add_u32 {so}, {so}, {O_MOD2}\ns_waitcnt vmcnt(16) lgkmcnt(0)\ns_barrier'); vm.reset(); lg.reset()
    STAMP(0)
    nis = 5
    for i in range(nis): issue(i)
    itf = [lg.op(f'ds_read_b128 {TF.sub(4 * i, 4)}, {aT} offset:{64 * i}') for i in range(18)]
    iwr = [lg.op(x_) for x_ in w_reads(0)]
    for i in range(18):
        lg.wait(itf[i]); k(f'{MF} {acc[4:8]}, {TF.sub(4 * i, 4)}, {TF.sub(4 * i, 4)}, {"0" if i == 0 else acc[4:8]}')
    cs = k.s(5, 1)
    for n_, (e, j_) in enumerate(((0, 1), (0, 2), (1, 1), (1, 2), (2, 2))): k(f'v_readlane_b32 {cs[n_]}, {acc[4 + e]}, {j_}')
    n2 = 0
    for i in range(18):
        if i == 9: vm.wait(itab)
        if i in (9, 13): k('s_barrier')
        if i == 1: STAMP(1)
        xg = XX.sub(8 * i + 2, 4); xr = XX.sub(8 * i - 2, 4) if i else None
        c_ = lambda r_, first: '0' if first else r_
        M = [(iwr[tt], f'{MF} {acc.sub(4 * tt, 4)}, {WR[i & 1].sub(4 * tt, 4)}, {xg}, {c_(acc.sub(4 * tt, 4), i == 0)}') for tt in range(6)]
        S_ = [f'{MF} {tacc}, {TF.sub(4 * i, 4)}, {xg}, {c_(tacc, i == 0)}', f'{MF} {qacc}, {xg}, {xg}, {c_(qacc, i == 0)}']
        if i: S_ += [f'{MF} {sacc}, {ones}, {xr}, {c_(sacc, i == 1)}', f'{MF} {gacc}, {xr}, {xr}, {c_(gacc, i == 1)}']
        Rd = w_reads(i + 1) if i < 17 else []
        vm.wait(ix[i])
        if i == 0: k(f'v_mov_b32 {XX[144]}, {XX[0]}\nv_mov_b32 {XX[145]}, {XX[1]}')
        nxt = []
        for x_ in S_:
            k(x_)
            if Rd: nxt.append(lg.op(Rd.pop(0)))
        for idr, mm in M:
            lg.wait(idr); k(mm)
            if Rd: nxt.append(lg.op(Rd.pop(0)))
        iwr = nxt
        if i == 4:
            k(f's_add_u32 m0, {sm}, {T_F}')
            itab = vm.op(f'buffer_load_dwordx4 {t[6]}, {Rws}, {so} offen sc1 lds')
        if nis < 18:
            for _ in range(2 if nis < i + 9 else 1):
                if nis < 18: issue(nis); nis += 1
        else:
            for _ in range(3):
                if n2 < (18 if i < 13 else 27): w2dma(); n2 += 1
    assert n2 == 27
    xr = XX.sub(142, 4)
    k(f'{MF} {sacc}, {ones}, {xr}, {sacc}\n{MF} {gacc}, {xr}, {xr}, {gacc}')
    STAMP(2)
    k.inject([lambda ks=ks: vm.op(wld(0, ks)) for ks in PI], 9)
    TB = [XX.sub(24, 16), XX.sub(40, 16)]; uu = XX.sub(56, 48)
    k(f'v_lshlrev_b32 {aT}, 5, {q}\nv_add_u32 {aT}, {T_F}, {aT}')
    tf_read = lambda dst, r_, e: f'ds_read_b128 {dst}, {aT} offset:{384 * r_ + 128 * (e >> 1) + 16 * (e & 1)}'
    def diag(d, g_):
        k(f'v_cndmask_b32 {d}, {g_[0]}, {g_[1]}, {msk[0]}\nv_cndmask_b32 {d}, {d}, {g_[2]}, {msk[1]}\nv_cndmask_b32 {d}, {d}, {g_[3]}, {msk[2]}')
        return lg.op(f'ds_bpermute_b32 {d}, {bidx}, {d}')
    i2 = diag(t[2], qacc); i1 = diag(t[1], gacc)
    iu = [lg.op(tf_read(uu.sub(24 * r_ + 4 * e, 4), 3 + r_, e)) for e in range(6) for r_ in range(2)]
    s1 = XX.sub(140, 2); gc = XX.sub(136, 4)
    k(f'v_mov_b32 {t[0]}, {sacc[0]}'); lg.wait(i1)
    sigma_bf16(k, t[0], t[1])
    k(f'v_cvt_pk_bf16_f32 {t[0]}, {t[0]}, {t[1]}\nv_and_b32 {s1[0]}, 0xffff0000, {t[0]}\nv_lshlrev_b32 {s1[1]}, 16, {t[0]}')
    k(f'v_rcp_f32 {s1[0]}, {s1[0]}\nv_mov_b32 {t[3]}, {cs[1]}\nv_mov_b32 {t[4]}, {cs[3]}\nv_mul_f32 {s1[1]}, -{s1[1]}, {s1[0]}')
    k(f'v_fma_f32 {t[3]}, {s1[1]}, {cs[0]}, {t[3]}\nv_fma_f32 {t[0]}, {s1[0]}, {tacc[0]}, {t[3]}')
    k(f'v_fma_f32 {t[3]}, {s1[1]}, {tacc[1]}, {tacc[2]}\nv_add_f32 {t[3]}, {t[3]}, {t[3]}\nv_fma_f32 {t[3]}, {s1[0]}, {t[2]}, {t[3]}')
    k(f'v_add_f32 {t[4]}, {t[4]}, {t[4]}\nv_fma_f32 {t[4]}, {s1[1]}, {cs[2]}, {t[4]}\nv_mov_b32 {t[5]}, {cs[4]}\nv_fma_f32 {t[4]}, {s1[1]}, {t[4]}, {t[5]}')
    k(f'v_fma_f32 {t[1]}, {s1[0]}, {t[3]}, {t[4]}')
    sigma_bf16(k, t[0], t[1])
    k(f'v_cvt_pk_bf16_f32 {t[1]}, {t[1]}, {t[1]}\nv_and_b32 {t[1]}, 0xffff0000, {t[1]}')
    gelu_consts(k, t[1], gc)
    k(f's_mul_i32 {st}, {jm}, {3 * GPL}\ns_lshl_b32 {so}, {mt}, 10\ns_add_u32 {st}, {st}, {so}\ns_add_u32 {st}, {st}, {O_G + 1024}')
    lg.all()
    for e in range(12): k(f'v_pk_fma_f32 {uu.sub(2 * e, 2)}, {uu.sub(2 * e, 2)}, {s1}, {uu.sub(24 + 2 * e, 2)} op_sel:[0,1,0] op_sel_hi:[1,1,1]')
    for e in range(12): k(f'v_pk_fma_f32 {acc.sub(2 * e, 2)}, {acc.sub(2 * e, 2)}, {s1}, {uu.sub(2 * e, 2)} op_sel_hi:[1,0,1]')
    tt_ = TB[0]; go = TB[1]
    for Pp in range(3):
        a = acc.sub(8 * Pp, 8); u = tt_.sub(0, 8)
        for e in range(4): k(f'v_pk_mul_f32 {u.sub(2 * e, 2)}, {a.sub(2 * e, 2)}, {a.sub(2 * e, 2)}')
        for e in range(4): k(f'v_pk_fma_f32 {u.sub(2 * e, 2)}, {u.sub(2 * e, 2)}, {gc[0:2]}, {gc[0:2]} op_sel:[0,1,0] op_sel_hi:[1,1,0]')
        for e in range(4): k(f'v_pk_mul_f32 {u.sub(2 * e, 2)}, {u.sub(2 * e, 2)}, {a.sub(2 * e, 2)}')
        for e in range(8): k(f'v_exp_f32 {u[e]}, {u[e]}')
        for e in range(4): k(f'v_pk_fma_f32 {u.sub(2 * e, 2)}, {u.sub(2 * e, 2)}, {gc[2:4]}, {gc[2:4]} op_sel_hi:[1,0,0]')
        for e in range(8): k(f'v_rcp_f32 {u[e]}, {u[e]}')
        for e in range(4): k(f'v_pk_mul_f32 {u.sub(2 * e, 2)}, {u.sub(2 * e, 2)}, {a.sub(2 * e, 2)}')
        o = go.sub(4 * Pp, 4)
        for e in range(4): k(f'v_cvt_pk_bf16_f32 {o[e]}, {u[2 * e]}, {u[2 * e + 1]}')
        if Pp == 2: k.flush_inject()
        if 'slowG' in opt and Pp == 1:
            sk_ = k.label('fast'); k(f's_cmp_lg_u32 {jm}, 0\ns_cbranch_scc1 {sk_}\ns_sleep 60\n{sk_}:')
        ig = vm.op(f'buffer_store_dwordx4 {o}, {l16}, {Rws}, {st} offen sc1')
        if Pp < 2: k(f's_add_u32 {st}, {st}, {GPL}')
    h2f = uu.sub(0, 24); x2f = XX.sub(104, 24); gbv = RB
    xsrc = lambda e: XX[8 * (e // 8) + (0, 1, 6, 7)[(e % 8) // 2]]
    ig_ = [lg.op(tf_read(gbv.sub(4 * e, 4), 1, e)) for e in range(6)]
    is_ = [lg.op(tf_read(uu.sub(24 + 4 * e, 4), 0, e)) for e in range(6)]
    for e in range(24): k(un(x2f[e], xsrc(e), e & 1))
    dl = [XX[128 + i] for i in range(6)]
    k(f'v_cmp_gt_u32 vcc, 2, {q}')
    for g, dlt in enumerate((-1, 1, -2, 2)):
        k(f'v_add_u32 {dl[4]}, {16 + dlt}, {row}\nv_lshrrev_b32 {dl[5]}, 4, {dl[4]}\nv_and_b32 {dl[4]}, 15, {dl[4]}\nv_lshlrev_b32 {dl[4]}, 4, {dl[4]}')
        k(f'v_lshl_add_u32 {dl[4]}, {dl[5]}, 10, {dl[4]}\nv_lshl_add_u32 {dl[g]}, {q}, 8, {dl[4]}')
    k(f'v_cndmask_b32 {dl[4]}, {dl[1]}, {dl[0]}, vcc\nv_cndmask_b32 {dl[5]}, {dl[3]}, {dl[2]}, vcc')
    pa = XX[134]
    k(f'v_min_u32 {t[0]}, 17, {lane}\nv_mul_u32_u24 {t[1]}, 86, {t[0]}\nv_lshrrev_b32 {t[1]}, 8, {t[1]}\nv_mul_u32_u24 {t[2]}, 3, {t[1]}\nv_sub_u32 {t[0]}, {t[0]}, {t[2]}')
    k(f'v_add_u32 {t[0]}, {mt}, {t[0]}\nv_add_u32 {t[0]}, -1, {t[0]}\nv_max_i32 {t[0]}, 0, {t[0]}\nv_min_u32 {t[0]}, 127, {t[0]}\nv_mul_u32_u24 {pa}, {3 * GPL}, {t[1]}\nv_lshl_add_u32 {pa}, {t[0]}, 10, {pa}')
    STAMP(3)
    k(f's_add_u32 {sn}, {sn}, 18432')
    for e in range(12): k(f'v_pk_fma_f32 {h2f.sub(2 * e, 2)}, {x2f.sub(2 * e, 2)}, {s1}, {s1} op_sel:[0,0,1] op_sel_hi:[1,0,1]')
    lg.all()
    for e in range(12): k(f'v_pk_fma_f32 {h2f.sub(2 * e, 2)}, {h2f.sub(2 * e, 2)}, {gbv.sub(2 * e, 2)}, {uu.sub(24 + 2 * e, 2)}')
    NPRE = 5
    vm.wait(iw2[0]); k('s_barrier')
    WP = [WR[0], WR[1], k.a(24, 4), k.a(24, 4), XX.sub(0, 24)]
    w2_addr = lambda i, tt: lds_at(W2_AT[i] + 1024 * tt)
    def w2_pre():
        for i in range(NPRE):
            for tt in range(6): lg.op(f'ds_read_b128 {WP[i].sub(4 * tt, 4)}, {w2_addr(i, tt)}')
    w2_pre()
    lp, L_g = k.label('probe'), k.label('gload')
    k(f's_mov_b32 {st1}, {O_G + 2 * GPL + 1024 + 1020}\n{lp}:\nbuffer_load_dword {t[0]}, {pa}, {Rws}, {st1} offen sc1\ns_add_u32 {cnt}, {cnt}, 1\ns_waitcnt vmcnt(0)')
    k(f'v_cmp_eq_u32 vcc, {7 if "noprobe" in opt else POISON}, {t[0]}\ns_cmp_eq_u64 vcc, 0\ns_cbranch_scc1 {L_g}\ns_cmp_lt_u32 {cnt}, {SPIN_MAX}\ns_cbranch_scc1 {lp}\n{L_g}:'); vm.reset()
    STAMP(4)
    GF = TF
    sel = lambda s: dl[4] if s == 4 else dl[5] if s == 13 else dl[(2 * s) // 9]
    ig = []
    for s in range(18):
        k(f's_mov_b32 {st}, {O_G + s * GPL}')
        ig.append(vm.op(f'buffer_load_dwordx4 {GF.sub(4 * s, 4)}, {sel(s)}, {Rws}, {st} offen sc1'))
    lg.all()
    ird = {}
    for s in range(18):
        vm.wait(ig[s])
        wr = WP[s % NPRE]
        for tt in range(6):
            if s >= NPRE: lg.wait(ird[s, tt])
            k(f'{MF} {acc.sub(4 * tt, 4)}, {wr.sub(4 * tt, 4)}, {GF.sub(4 * s, 4)}, {"0" if s == 0 else acc.sub(4 * tt, 4)}')
            if s + NPRE < 18: ird[s + NPRE, tt] = lg.op(f'ds_read_b128 {wr.sub(4 * tt, 4)}, {w2_addr(s + NPRE, tt)}')
        vm.op(wld(1, s))
    lg.all()
    STAMP(5)
    aS = XX[135]
    k(f'v_lshrrev_b32 {t[0]}, 1, {q}')
    k(f'v_lshlrev_b32 {aS}, 6, {t[0]}\nv_lshl_add_u32 {aS}, {m}, 2, {aS}')
    k(f's_mul_i32 {st}, {rb}, 18\ns_mul_i32 {so}, {jm}, 3\ns_add_u32 {st}, {st}, {so}\ns_lshl_b32 {st}, {st}, 2\ns_add_u32 {st}, {st}, {s_w}\ns_lshl_b32 {st}, {st}, 10\ns_add_u32 {st}, {st}, {O_X1F}')
    for e in range(12): k(f'v_pk_add_f32 {acc.sub(2 * e, 2)}, {h2f.sub(2 * e, 2)}, {acc.sub(2 * e, 2)}')
    k(f'v_pk_add_f32 {t[0:2]}, {acc[0:2]}, {acc[2:4]}\nv_pk_add_f32 {t[4:6]}, {acc[4:6]}, {acc[6:8]}')
    for e in range(4, 12): k(f'v_pk_add_f32 {t.sub(4 * (e & 1), 2)}, {t.sub(4 * (e & 1), 2)}, {acc.sub(2 * e, 2)}')
    for Pp in range(3):
        for e in range(4): k(f'v_cvt_pk_bf16_f32 {go[4 * Pp + e]}, {acc[8 * Pp + 2 * e]}, {acc[8 * Pp + 2 * e + 1]}')
    ok = k.label('gok')
    k(f'v_pk_add_f32 {t[0:2]}, {t[0:2]}, {t[4:6]}\nv_cmp_u_f32 vcc, {t[0]}, {t[1]}\ns_cmp_eq_u64 vcc, 0\ns_cbranch_scc1 {ok}')
    k(f's_add_u32 {rty}, {rty}, 1\ns_cmp_ge_u32 {rty}, {RETRY_MAX}\ns_cbranch_scc1 {ok}')
    w2_pre()
    k(f's_waitcnt vmcnt(0)\ns_branch {L_g}\n{ok}:'); lg.reset()
    for Pp in range(3):
        vm.op(f'buffer_store_dwordx4 {go.sub(4 * Pp, 4)}, {l16}, {Rws}, {st} offen sc1')
        if Pp < 2: k(f's_add_u32 {st}, {st}, 4096')
    k(f'v_pk_mul_f32 {t[2:4]}, {acc[0:2]}, {acc[0:2]}\nv_pk_mul_f32 {t[4:6]}, {acc[2:4]}, {acc[2:4]}')
    for e in range(2, 12): k(f'v_pk_fma_f32 {t.sub(2 + 2 * (e & 1), 2)}, {acc.sub(2 * e, 2)}, {acc.sub(2 * e, 2)}, {t.sub(2 + 2 * (e & 1), 2)}')
    k(f'v_pk_add_f32 {t[2:4]}, {t[2:4]}, {t[4:6]}')
    k(f'v_add_f32 {t[0]}, {t[0]}, {t[1]}\nv_add_f32 {t[2]}, {t[2]}, {t[3]}\nv_permlane32_swap_b32 {t[0]}, {t[2]}\nv_add_f32 {t[0]}, {t[0]}, {t[2]}')
    k(f'v_mov_b32 {t[1]}, {t[0]}\nv_permlane16_swap_b32 {t[0]}, {t[1]}\nv_add_f32 {t[0]}, {t[0]}, {t[1]}')
    k(f's_mul_i32 {st}, {mt}, 6\ns_add_u32 {st}, {st}, {jm}\ns_lshl_b32 {st}, {st}, 7\ns_add_u32 {st}, {st}, {O_PST}\ns_mov_b32 exec_lo, 0xffff\ns_mov_b32 exec_hi, 0xffff')
    vm.op(f'buffer_store_dword {t[0]}, {aS}, {Rws}, {st} offen sc1')
    k('s_mov_b64 exec, -1')
    STAMP(6)
    k('s_branch k2_phase_e')
    k('k2_idle:')
    k.V.free, k.A.free, k.S.free = list(keepV), list(keepA), list(keepS)
    vm, lg = trackers(k)
    cj = ColJob(k, vm, lg, lane, s_w)
    fr = k.v(72, 4); sl = k.s(); dst = k.s(); job = k.s(); R4 = k.s(4)
    srd(k, R4, P['w4'], D * F * 2)
    lpj, dn = k.label('w4job'), k.label('w4done')
    k(f's_mov_b32 {job}, s2\n{lpj}:\ns_mul_hi_u32 {sl}, {job}, {(1 << 32) // 9 + 1}\ns_mul_i32 {dst}, {sl}, 9\ns_sub_u32 {dst}, {job}, {dst}\ns_lshl_b32 {dst}, {dst}, 7')
    k(f's_mul_i32 {st}, {sl}, {576 * 1152}\ns_add_u32 {dst}, {dst}, {st}\ns_mov_b32 {st}, 1152')
    cj.dma(R4, dst, st, 0, True)
    ad = cj.addr(0, w4order=True)
    k('s_waitcnt vmcnt(0)\ns_barrier'); vm.reset()
    ids = cj.reads(ad, fr)
    k(f's_lshl_b32 {dst}, {job}, 2\ns_add_u32 {dst}, {dst}, {s_w}\ns_mul_i32 {dst}, {dst}, 18432\ns_add_u32 {dst}, {dst}, {O_W4F}')
    cj.store(fr, ids, Rws, dst, 1024)
    vm.all()
    flag_add(sl, O_FW)
    k(f's_barrier\ns_add_u32 {job}, {job}, 64\ns_cmp_lt_u32 {job}, 72\ns_cbranch_scc1 {lpj}\n{go3_ld}')
    spin(go3_ld, [fv4[i] for i in range(4)]); vm.reset()
    for r_ in range(2):
        for ks in PI: vm.op(wld(r_, ks))
        if r_ == 0: k(f's_add_u32 {sn}, {sn}, 18432')
    STAMP(14)
    k('k2_phase_e:')
    k.V.free, k.A.free, k.S.free = keepV, keepA, keepS
    vm, lg = trackers(k)
    vm.n = 1
    XA = k.a(112, 4); XV = k.v(176, 4)
    xf = lambda ks, t_: XA.sub(16 * ks + 4 * t_, 4) if 16 * ks + 4 * t_ < 112 else XV.sub(16 * ks + 4 * t_ - 112, 4)
    fv4.release()
    k(f's_add_u32 {sn}, {sn}, 18432')
    acc = [k.v(16, 4), k.v(16, 4)]
    t = acc[1].sub(0, 12); Q = k.v(4, 4); pa = Q[2]; fa_ = Q[3]; xc = [Q[0], Q[1], k.v()]
    k(f's_mul_i32 {st}, {mb}, 24\ns_add_u32 {st}, {st}, {O_PST // 128}\nv_add_u32 {pa}, {st}, {lane}\ns_add_u32 {st}, {fs}, {O_FW // 128}\nv_mov_b32 {t[0]}, {st}\nv_cmp_gt_u32 vcc, 24, {lane}')
    k(f'v_cndmask_b32 {pa}, {t[0]}, {pa}, vcc\nv_lshlrev_b32 {pa}, 7, {pa}\nv_mov_b32 {t[0]}, 36\nv_cndmask_b32 {t[0]}, {t[0]}, 0, vcc')
    k(f's_lshl_b32 {sm}, {s_w}, 10\ns_mul_i32 {so}, {mb}, 73728\ns_add_u32 {so}, {so}, {sm}\ns_add_u32 {so}, {so}, {O_X1F}')
    sk_ = sk_x = k.label('nopoll')
    if stamps == 1 and 'rty' in opt: k(f's_lshl_b32 {SP.r[14]}, {rty}, 16')
    k(f's_mov_b32 {rty}, 0')
    k(f's_cmp_lg_u32 {s_w}, 0\ns_cbranch_scc1 {sk_}')
    lp = k.label('probe')
    k(f'{lp}:\nbuffer_load_dword {t[1]}, {pa}, {Rws}, 0 offen sc1\ns_add_u32 {cnt}, {cnt}, 1\ns_waitcnt vmcnt(0)')
    k(f'v_cmp_eq_u32 vcc, {7 if "noprobe" in opt else POISON}, {t[1]}\nv_cmp_gt_u32 {sav}, {t[0]}, {t[1]}\ns_or_b64 vcc, vcc, {sav}\ns_cbranch_scc0 {sk_}\ns_cmp_lt_u32 {cnt}, {SPIN_MAX}\ns_cbranch_scc1 {lp}')
    k(f'{sk_}:\ns_waitcnt vmcnt(0)\ns_barrier'); vm.reset()
    STAMP(7)
    ixd = []; idv = {}
    def xdma(ks):
        k(f's_add_u32 m0, {sm}, {XBUF + 4096 * ks}\ns_add_u32 {st}, {so}, {4096 * ks}')
        ixd.append(vm.op(f'buffer_load_dwordx4 {l16}, {Rws}, {st} offen sc1 lds'))
    for ks in PI[:7]: xdma(ks)
    k(f's_mul_i32 {st}, {mb}, 3072\ns_add_u32 {st}, {st}, {sm}\ns_add_u32 {st}, {st}, {O_PST}\ns_add_u32 m0, {sm}, {PSTL}')
    vm.op(f'buffer_load_dwordx4 {l16}, {Rws}, {st} offen sc1 lds')
    k(f'v_mul_u32_u24 {pa}, 768, {q}\nv_lshl_add_u32 {pa}, {m}, 2, {pa}\nv_add_u32 {pa}, {PSTL}, {pa}')
    aX = [l16, k.v()]; aHr = k.v(2); aH = [k.v(), k.v()]
    k(f'v_add_u32 {aX[1]}, 0x9000, {l16}\nv_add_u32 {aHr[0]}, {HBUF}, {l16}\nv_add_u32 {aHr[1]}, {HBUF + 0x9000}, {l16}')
    for h in range(2):
        k(f's_mul_i32 {st}, {s_w}, 9\ns_add_u32 {st}, {st}, {h}\ns_and_b32 {st1}, {st}, 1\ns_lshl_b32 {st1}, {st1}, 3\ns_lshr_b32 {st}, {st}, 1\ns_lshl_b32 {st}, {st}, 12')
        k(f's_add_u32 {st}, {st}, {st1}\nv_add_u32 {aH[h]}, {st}, {aHr[0]}')
    GC = [RB.sub(8 + 3 * i, 3) for i in range(4)]
    gt = RB.sub(0, 8); hp = [RB.sub(20, 2), RB.sub(22, 2)]
    def gelu_ops(a, ah):
        out = []
        for t_ in range(4):
            c = GC[t_]; x = [a[4 * t_ + e] for e in range(4)]; u = [gt[4 * (t_ & 1) + e] for e in range(4)]; o = hp[t_ & 1]
            out += [f'v_mul_f32 {u[e]}, {x[e]}, {x[e]}' for e in range(4)]
            out += [f'v_fma_f32 {u[e]}, {u[e]}, {c[1]}, {c[0]}' for e in range(4)]
            out += [f'v_mul_f32 {u[e]}, {u[e]}, {x[e]}' for e in range(4)]
            out += [f'v_exp_f32 {u[e]}, {u[e]}' for e in range(4)]
            out += [f'v_fma_f32 {u[e]}, {u[e]}, {c[2]}, {c[2]}' for e in range(4)]
            out += [f'v_rcp_f32 {u[e]}, {u[e]}' for e in range(4)]
            out += [f'v_mul_f32 {u[e]}, {u[e]}, {x[e]}' for e in range(4)]
            out += [f'v_cvt_pk_bf16_f32 {o[0]}, {u[0]}, {u[1]}', f'v_cvt_pk_bf16_f32 {o[1]}, {u[2]}, {u[3]}']
            out.append(f'ds_write_b64 {ah}, {o} offset:{1024 * t_}')
        return out
    def cost(x_):
        if isinstance(x_, tuple): return x_[0]
        return 2 if x_.startswith(('v_exp', 'v_rcp', 'ds_write')) else 1
    def emit(x_):
        if isinstance(x_, tuple): x_[1]()
        elif x_.startswith('ds_'): lg.op(x_)
        elif x_.startswith('buffer_'): vm.op(x_)
        else: k(x_)
    wid = {}; nw = {}; due = []
    def refill(r_):
        ks = due.pop(); nw[r_, ks] = vm.op(wld(r_, ks))
    def tile(a, r_, fill, steps=range(18), lead=2, pre=None, post=None, per_step=0, rate=None, load=True, at=None):
        steps = list(steps); nm = 4 * len(steps); n_ = 0; fill = list(fill); at = at or {}
        total = len(steps) * (1.5 + per_step) + sum(cost(x_) for x_ in fill)
        rate = rate or total / nm
        cum = 0
        for i in steps:
            ks = PI[i]
            if i in at: fill += at[i]; cum = max(cum, rate * n_ - 1)
            if pre: pre(i)
            if i % 2 == 0:
                n0 = len(k.l); vm.wait(max(wid.get((r_, PI[j]), 0) for j in (i, i + 1))); cum += len(k.l) - n0
            for t_ in range(4):
                k(f'{MF} {a.sub(4 * t_, 4)}, {W[r_].sub(4 * ks, 4)}, {xf(ks, t_)}, {"0" if i == 0 else a.sub(4 * t_, 4)}')
                n_ += 1
                nxt = 0
                if t_ == 0 and due: refill(r_); cum += 1
                if t_ == 3:
                    if load: due.append(ks)
                    if post: post(i)
                    cum += per_step
                    nxt = i % 2
                while n_ >= lead and fill and cum + nxt + cost(fill[0]) / 2 <= rate * n_: cum += cost(fill[0]); emit(fill.pop(0))
        for x_ in fill: emit(x_)
        if steps[-1] == 17 and due: refill(r_)
        if steps[-1] == 17: wid.update(nw); nw.clear()
    def frag_reads(base, i):
        ks = PI[i]
        return [lg.op(f'ds_read_b128 {xf(ks, t_)}, {base[ks // 9]} offset:{(ks % 9) * 4096 + 1024 * t_}') for t_ in range(4)]
    nxt_tile = lambda: k(f's_add_u32 {sn}, {sn}, 18432')
    rd = {}
    XB = {0: 2, 1: 6, 5: 11, 10: 17}
    def pre0(i):
        if i in XB: vm.wait(ixd[XB[i]]); k('s_barrier')
        if i == 0:
            for j in (0, 1): rd[j] = frag_reads(aX, j)
        if i + 2 < 18: rd[i + 2] = frag_reads(aX, i + 2)
        lg.wait(rd[i][3])
    todo = [(0, lambda ks=ks: xdma(ks)) for ks in PI[7:]]
    todo += [(i, lambda ks=PI[i]: wid.__setitem__((0, ks, 'n'), vm.op(wld(0, ks)))) for i in range(18)]
    def post0(i):
        for _ in range(18 if i == 17 else 4 if i < 3 else 3):
            if todo and todo[0][0] <= i: todo.pop(0)[1]()
        if i == 10:
            for j in range(6): idv['p'] = lg.op(f'ds_read2_b32 {t.sub(2 * j, 2)}, {pa} offset0:{32 * j} offset1:{32 * j + 16}')
    class Rec:
        def __init__(self): self.l = []
        def __call__(self, x_): self.l += x_.split('\n')
    rec = Rec()
    for e in (0, 4, 8): rec(f'v_add_f32 {t[e]}, {t[e]}, {t[e + 2]}\nv_add_f32 {t[e + 1]}, {t[e + 1]}, {t[e + 3]}')
    for e in (4, 8): rec(f'v_add_f32 {t[0]}, {t[0]}, {t[e]}\nv_add_f32 {t[1]}, {t[1]}, {t[e + 1]}')
    rec(f'v_add_f32 {t[9]}, {t[0]}, {t[1]}')
    sigma_bf16(rec, t[0], t[1])
    rec(f'v_cvt_pk_bf16_f32 {t[1]}, {t[1]}, {t[1]}\nv_and_b32 {t[1]}, 0xffff0000, {t[1]}\nv_lshlrev_b32 {t[2]}, 2, {m}')
    c1 = [(1, lambda: lg.wait(idv['p']))] + rec.l
    c1 += [(1, lambda i=i: idv.__setitem__('b', lg.op(f'ds_bpermute_b32 {t[4 + i]}, {t[2]}, {t[1]} offset:{64 * i}'))) for i in range(4)]
    rec = Rec()
    for i in range(4): gelu_consts(rec, t[4 + i], GC[i])
    c2 = [(1, lambda: lg.wait(idv['b']))] + [rec.l[6 * i + j] for j in range(6) for i in range(4)]
    tile(acc[0], 0, [], pre=pre0, post=post0, load=False, rate=2.0, at={12: c1, 16: c2})
    assert not todo
    for ks in range(18): wid[0, ks] = wid.pop((0, ks, 'n'))
    nxt_tile()
    ok = k.label('xok')
    k(f'v_add_f32 {t[0]}, {t[9]}, {acc[0][0]}\nv_add_f32 {t[1]}, {acc[0][4]}, {acc[0][8]}\nv_add_f32 {t[0]}, {t[0]}, {acc[0][12]}')
    k(f'v_cmp_u_f32 vcc, {t[0]}, {t[1]}\ns_cmp_eq_u64 vcc, 0\ns_cbranch_scc1 {ok}\ns_add_u32 {rty}, {rty}, 1\ns_cmp_ge_u32 {rty}, {RETRY_MAX}\ns_cbranch_scc1 {ok}')
    k(f's_sub_u32 {sn}, {sn}, {3 * 18432}')
    for ks in PI: k(wld(0, ks))
    k(f's_add_u32 {sn}, {sn}, {2 * 18432}\ns_branch {sk_x}\n{ok}:')
    if stamps == 1 and 'rty' in opt: k(f's_lshl_b32 {st}, {rty}, 8\ns_or_b32 {SP.r[14]}, {SP.r[14]}, {st}')
    STAMP(8)
    spz = k.s()
    k(f's_mul_i32 {spz}, {mb}, {9 * 65536}\ns_lshl_b32 {st}, {s_w}, 14\ns_add_u32 {spz}, {spz}, {st}\ns_lshl_b32 {st}, {fs}, 10\ns_add_u32 {spz}, {spz}, {st}\ns_add_u32 {spz}, {spz}, {O_PART + 7 * 65536}')
    def check(idl, val, tgt, vaddr, base):
        ok = k.label('up'); d0 = None
        vm.wait(idl)
        k(f'v_cmp_gt_u32 vcc, {tgt}, {val}\ns_cmp_eq_u64 vcc, 0\ns_cbranch_scc1 {ok}')
        d0 = vm.done; poll(vaddr, base, tgt, fv=val); vm.done = d0
        k(f'{ok}:')
    rd = {}
    for tt in range(1, 9):
        fill = gelu_ops(acc[1 - (tt & 1)], aH[1 - (tt & 1)]) + [f'v_add_u32 {aH[1 - (tt & 1)]}, 4096, {aH[1 - (tt & 1)]}']
        if tt == 1:
            k(f's_lshr_b32 {so}, {fs}, 1\ns_mul_i32 {so}, {so}, 9\ns_and_b32 {st1}, {fs}, 1\ns_lshl_b32 {st1}, {st1}, 11\ns_lshr_b32 {sm}, {s_w}, 1\ns_lshl_b32 {sm}, {sm}, 8\ns_add_u32 {st1}, {st1}, {sm}')
            k(f's_and_b32 {sm}, {s_w}, 1\ns_lshl_b32 {sm}, {sm}, 3\ns_add_u32 {st1}, {st1}, {sm}\nv_lshrrev_b32 {xc[2]}, 1, {q}\nv_lshl_add_u32 {xc[0]}, {xc[2]}, 10, {st1}')
            k(f'v_lshl_add_u32 {xc[0]}, {m}, 4, {xc[0]}\nv_and_b32 {xc[2]}, 1, {q}\nv_lshl_add_u32 {xc[2]}, {xc[2]}, 2, {xc[0]}')
            for h in range(2):
                k(f's_add_u32 {st}, {so}, {h}\ns_and_b32 {sm}, {st}, 1\ns_lshl_b32 {sm}, {sm}, 9\ns_lshr_b32 {st}, {st}, 1\ns_lshl_b32 {st}, {st}, 12\ns_add_u32 {st}, {st}, {sm}\nv_add_u32 {xc[h]}, {st}, {xc[2]}')
            k(f's_mul_i32 {st}, {s_w}, 2304\ns_add_u32 {st}, {st}, {X1C}\nv_lshl_add_u32 {xc[2]}, {lane}, 2, {st}')
        if tt in (1, 2):
            for n_, t_ in enumerate(range(5) if tt == 1 else range(5, 9)):
                def cp(t_=t_): idv['x'] = lg.op(f'ds_read_b32 {pa}, {xc[t_ & 1]} offset:{4096 * (t_ >> 1)}')
                def wr(t_=t_): lg.wait(idv['x']); lg.op(f'ds_write_b32 {xc[2]}, {pa} offset:{256 * t_}')
                fill[4 + 25 * n_:4 + 25 * n_] = [(1, cp)]; fill[22 + 25 * n_:22 + 25 * n_] = [(2, wr)]
        if 3 <= tt <= 6:
            ops = [f'v_mov_b32 {Q[i]}, {POISON}' for i in range(4)] if tt == 3 else []
            ops.append(f'buffer_store_dwordx4 {Q}, {vo[2 * (tt & 1)]}, {Rws}, {spz} offen sc1')
            if tt == 4: ops.append(f's_add_u32 {spz}, {spz}, 65536')
            fill[40:40] = ops
        if tt == 7: k(f's_mov_b32 {sn}, {s4}')
        if tt in (1, 4, 7, 8): STAMP({1: 1, 4: 2, 7: 3, 8: 4}[tt], 'g3st')
        if tt < 8: tile(acc[tt & 1], tt & 1, fill)
        else:
            lg.all(); k('s_barrier')
            def post8(i):
                if i < 12: rd[i] = frag_reads(aHr, i)
            tile(acc[0], 0, fill, post=post8, per_step=2.7)
        nxt_tile()
    STAMP(9)
    k('s_waitcnt lgkmcnt(0)\ns_barrier'); lg.reset()
    for j in (12, 13): rd[j] = frag_reads(aHr, j)
    tile(acc[1], 1, gelu_ops(acc[0], aH[0]), steps=range(14), pre=lambda i: lg.wait(rd[i][3]) if i >= 12 else None, lead=1)
    lg.all(); k('s_barrier')
    for j in range(14, 18): rd[j] = frag_reads(aHr, j)
    tile(acc[1], 1, [], steps=range(14, 18), pre=lambda i: lg.wait(rd[i][3]))
    Rout = k.s(4)
    sp = k.s(); sq = k.s(); sf = k.s(); T0 = k.s(); sl_ = k.s(); po = [gt.sub(0, 4), gt.sub(4, 4)]
    aP, aR, aO = GC[0][0], GC[0][1], GC[0][2]; aL, aLr, aLg = GC[1][0], GC[1][1], GC[1][2]; aOw, aOr = GC[2][0], GC[2][1]; fv = pa; fpa = fa_
    u0, u1, u2 = hp[0][0], hp[0][1], hp[1][0]
    OUTB = 4 * 28672
    setup = f"""s_mov_b32 {Rout[0]}, {P['out'][0]}
s_mov_b32 {Rout[1]}, {P['out'][1]}
s_mov_b32 {Rout[2]}, {L * D * 2}
s_mov_b32 {Rout[3]}, 0x20000
s_lshl_b32 {st}, {fs}, 13
s_mul_i32 {sq}, {mb}, {9 * 65536}
s_add_u32 {sq}, {sq}, {st}
s_add_u32 {sq}, {sq}, {O_PART}
s_mul_i32 {sf}, {mb}, 36
s_lshr_b32 {T0}, {fs}, 1
s_add_u32 {st}, {sf}, {T0}
s_lshl_b32 {st}, {st}, 7
v_mov_b32 {fpa}, {st}
s_add_u32 {sf}, {sf}, {s_w}
s_lshl_b32 {sf}, {sf}, 7
s_add_u32 {sf}, {sf}, {O_FP}
s_mul_i32 {T0}, {T0}, 9
s_lshl_b32 {st}, {s_w}, 8
v_lshl_add_u32 {u0}, {m}, 4, {st}
v_lshl_add_u32 {aP}, {q}, 10, {u0}
v_and_b32 {u1}, 1, {q}
v_lshrrev_b32 {u2}, 1, {q}
v_lshl_add_u32 {u0}, {u2}, 4, {m}
v_lshlrev_b32 {aR}, 4, {u0}
v_lshl_add_u32 {aR}, {u1}, 2, {aR}
s_and_b32 {so}, {fs}, 1
s_lshl_b32 {st}, {mb}, 1
s_add_u32 {so}, {so}, {st}
s_lshl_b32 {so}, {so}, 9
s_lshl_b32 {st}, {s_w}, 15
s_add_u32 {so}, {so}, {st}
s_and_b32 {st}, {s_w}, 1
s_lshl_b32 {st}, {st}, 3
s_add_u32 {so}, {so}, {st}
v_add_u32 {aR}, {so}, {aR}
s_mul_i32 {sl_}, {s_w}, 28672
v_add_u32 {aL}, {sl_}, {l16}
v_lshl_add_u32 {aLr}, {lane}, 2, {sl_}
s_lshl_b32 {st}, {s_w}, 4
s_add_u32 {st}, {st}, {sl_}
v_lshl_add_u32 {aLg}, {u1}, 3, {st}
v_mul_u32_u24 {aOw}, 304, {u0}
v_lshl_add_u32 {aOw}, {u1}, 2, {aOw}
s_lshl_b32 {st}, {s_w}, 3
s_add_u32 {st}, {st}, {OUTB}
v_add_u32 {aOw}, {st}, {aOw}""".split('\n')
    k(f's_mul_i32 {sp}, {mb}, {9 * 65536}\ns_lshl_b32 {st}, {s_w}, 14\ns_add_u32 {sp}, {sp}, {st}\ns_lshl_b32 {st}, {fs}, 10\ns_add_u32 {sp}, {sp}, {st}\ns_add_u32 {sp}, {sp}, {O_PART}')
    for x_ in (aH[0], aH[1], aX[1]): x_.release()
    D0 = [RB.sub(16, 4), RB.sub(20, 4), Q.sub(0, 2), aHr]
    ids = {}
    def S(t_, a, p):
        out = [f'v_cvt_pk_bf16_f32 {po[p][e]}, {a[8 * p + 2 * e]}, {a[8 * p + 2 * e + 1]}' for e in range(4)]
        out.append((1, lambda: ids.__setitem__(('S', t_), 0 if 'nopart' in opt else vm.op(f'buffer_store_dwordx4 {po[p]}, {vo[2 * p]}, {Rws}, {sp} offen {PFL}'))))
        return out + ([f's_add_u32 {sp}, {sp}, 65536'] if p else [])
    def G(t_):
        def f():
            vm.wait(ids['S', t_]); k('s_mov_b64 exec, 1')
            vm.op(f'buffer_atomic_add {one}, {zero}, {Rws}, {sf} offen offset:{512 * (t_ % 8)} sc1')
            k('s_mov_b64 exec, -1')
        return [(4, f)]
    def Lf(t_): return [f's_mov_b32 {st1}, {O_FP + 512 * t_}', (1, lambda: ids.__setitem__(('L', t_), vm.op(f'buffer_load_dword {fv}, {fpa}, {Rws}, {st1} offen sc1')))]
    def dma(lds, va, soff): return [f's_add_u32 m0, {sl_}, {lds}', (1, lambda: ids.__setitem__('d', vm.op(f'buffer_load_dwordx4 {va}, {Rws}, {soff} offen sc1 lds')))]
    def C(t_):
        return (dma(3072 * t_, aP, sq) + [f's_add_u32 {st}, {sq}, 4096'] + dma(3072 * t_ + 1024, aP, st) + [f's_add_u32 {sq}, {sq}, 65536']
                + [(0, lambda: ids.__setitem__(('C', t_), ids['d']))])
    def RS(t_): return [f's_add_u32 {st}, {T0}, {t_}', f's_lshl_b32 {st}, {st}, 17', f's_add_u32 {st}, {st}, {O_X2}', f's_add_u32 m0, {sl_}, {3072 * t_ + 2048}',
                        f'buffer_load_dword {aR}, {Rws}, {st} offen sc1 lds']
    def CK(t_): return [(4, lambda: check(ids['L', t_], fv, 8, fpa, O_FP + 512 * t_))]
    def R(t_, Dr, v):
        A_, B_, r_, g_ = Dr
        def rd_():
            vm.wait(ids['C', t_])
            lg.op(f'ds_read_b128 {A_}, {aL} offset:{3072 * t_}'); lg.op(f'ds_read_b128 {B_}, {aL} offset:{3072 * t_ + 1024}')
            lg.op(f'ds_read_b32 {r_[0]}, {aLr} offset:{3072 * t_ + 2048}'); lg.op(f'ds_read_b32 {r_[1]}, {xc[2]} offset:{256 * t_}'); ids['r', t_] = lg.op(f'ds_read_b64 {g_}, {aLg} offset:{27648 + 64 * t_}')
        out = [(1, lambda: lg.wait(ids['r', t_]))]
        for d in range(4): out += [f'v_lshlrev_b32 {v[2 * d]}, 16, {A_[d]}', f'v_lshlrev_b32 {v[2 * d + 1]}, 16, {B_[d]}']
        for d in range(4): out += [f'v_and_b32 {A_[d]}, 0xffff0000, {A_[d]}', f'v_add_f32 {v[2 * d]}, {v[2 * d]}, {v[2 * d + 1]}', f'v_and_b32 {B_[d]}, 0xffff0000, {B_[d]}']
        out += [f'v_add_f32 {v[2 * d + 1]}, {A_[d]}, {B_[d]}' for d in range(4)]
        out += [f'v_permlane32_swap_b32 {v[e]}, {v[e + 4]}' for e in (0, 2, 1, 3)]
        out += [f'v_add_f32 {v[e]}, {v[e]}, {v[e + 4]}' for e in (0, 2, 1, 3)]
        out += [un(v[4 + e], r_[e >> 1], e & 1) for e in (2, 3)]
        out += [f'v_permlane16_swap_b32 {v[e]}, {v[e + 2]}' for e in range(2)]
        out += [un(v[4 + e], r_[e >> 1], e & 1) for e in (0, 1)]
        out += [f'v_add_f32 {v[e]}, {v[e]}, {v[e + 2]}' for e in range(2)]
        out += [f'v_add_f32 {v[e]}, {v[e]}, {v[e + 6]}' for e in range(2)]
        out += [f'v_fma_f32 {v[e]}, {v[e]}, {g_[e]}, {v[4 + e]}' for e in range(2)]
        out += [f'v_cvt_pk_bf16_f32 {v[4]}, {v[0]}, {v[1]}', f'ds_write_b32 {aOw}, {v[4]} offset:{32 * t_}']
        return [(6, rd_)], out
    SPOS = 9
    for tt in range(1, 9):
        nxt_tile()
        a_ = acc[tt & 1]
        at = {0: S(tt - 1, a_, 0), SPOS: S(tt - 1, a_, 1)}
        add = lambda i, ops: at.__setitem__(i, at.get(i, []) + ops)
        if tt == 1: add(2, setup)
        if tt == 2:
            k('s_barrier')
            add(2, [f's_lshl_b32 {st}, {T0}, 6', f's_add_u32 {st}, {st}, {O_MOD2 + 4608}'] + dma(27648, l16, st))
        if 2 <= tt <= 6: add(4, RS(2 * tt - 4) + (RS(2 * tt - 3) if tt < 6 else []))
        if tt >= 2: add(6, G(tt - 2))
        if 4 <= tt <= 7: add(12, CK(tt - 4) + C(tt - 4))
        if 3 <= tt <= 7: add(15, Lf(tt - 3))
        for pos, t_ in {6: ((2, 0), (11, 1)), 7: ((2, 2),), 8: ((3, 3), (12, 4))}.get(tt, ()):
            r0, r1 = R(t_, D0, gt); add(pos - 1, r0); add(pos, r1)
        if tt == 8: add(1, CK(4) + C(4) + Lf(5)); add(11, CK(5) + C(5)); add(15, Lf(6))
        if tt in (1, 4, 7, 8): STAMP({1: 1, 4: 2, 7: 3, 8: 4}[tt], 'g4st')
        tile(acc[1 - (tt & 1)], 1 - (tt & 1), [], rate=2.0, at=at, load=tt < 7)
    STAMP(10)
    XV.release()
    Dn = [[k.v(4, 2), k.v(4, 2), k.v(2), k.v(2)] for _ in range(9)]; v2 = k.v(8, 2)
    RR = [R(t_, Dn[t_], v2) for t_ in range(9)]
    seq = S(8, acc[1], 0) + S(8, acc[1], 1) + CK(6) + C(6) + C(7) + C(8)
    seq += RR[5][0] + RR[5][1] + RR[6][0] + RR[6][1]
    for x_ in seq: emit(x_)
    u = k.v(3)
    k(f'v_mul_u32_u24 {u[0]}, 3641, v0\nv_lshrrev_b32 {u[0]}, 16, {u[0]}\nv_mul_u32_u24 {u[1]}, 18, {u[0]}\nv_sub_u32 {u[1]}, v0, {u[1]}\nv_lshlrev_b32 {u[1]}, 4, {u[1]}')
    k(f'v_mul_u32_u24 {aOr}, 304, {u[0]}\nv_add_u32 {aOr}, {aOr}, {u[1]}\nv_add_u32 {aOr}, {OUTB}, {aOr}\nv_mul_u32_u24 {aO}, 1152, {u[0]}\nv_add_u32 {aO}, {aO}, {u[1]}')
    k(f's_lshl_b32 {st}, {mb}, 1\ns_and_b32 {so}, {fs}, 1\ns_add_u32 {so}, {so}, {st}\ns_mul_i32 {so}, {so}, {32 * 1152}\ns_lshl_b32 {st}, {T0}, 5\ns_add_u32 {so}, {so}, {st}')
    lp, ok = k.label('last'), k.label('summed')
    k(f's_mov_b32 {cnt}, 0\n{lp}:')
    v3 = k.v(8, 2); R8 = R(8, Dn[8], v3)
    for x_ in RR[7][0] + R8[0] + interleave(RR[7][1], R8[1]): emit(x_)
    k(f'v_add_f32 {v2[0]}, {v2[0]}, {v2[1]}\nv_add_f32 {v3[0]}, {v3[0]}, {v3[1]}\nv_cmp_u_f32 vcc, {v2[0]}, {v3[0]}\ns_cmp_eq_u64 vcc, 0\ns_cbranch_scc1 {ok}')
    k(f's_add_u32 {cnt}, {cnt}, 1\ns_cmp_ge_u32 {cnt}, {RETRY_MAX}\ns_cbranch_scc1 {ok}\ns_sub_u32 {sq}, {sq}, {2 * 65536}\ns_waitcnt lgkmcnt(0)')
    for x_ in C(7) + C(8): emit(x_)
    k(f's_waitcnt vmcnt(0)\ns_branch {lp}\n{ok}:')
    if stamps == 1 and 'rty' in opt: k(f's_or_b32 {SP.r[14]}, {SP.r[14]}, {cnt}')
    STAMP(11)
    lg.all(); k('s_barrier')
    o4 = [Dn[0][0], Dn[0][1], Dn[1][0]]
    k(f'v_cmp_gt_u32 vcc, 252, v0\ns_and_b64 exec, exec, vcc')
    io = [lg.op(f'ds_read_b128 {o4[i]}, {aOr} offset:{14 * 304 * i}') for i in range(3)]
    for i in range(3):
        if i == 2: k(f's_cmp_ge_u32 {s_w}, 2\ns_cbranch_scc1 {END}\nv_cmp_gt_u32 vcc, 72, v0\ns_and_b64 exec, exec, vcc')
        lg.wait(io[i])
        k(f'buffer_store_dwordx4 {o4[i]}, {aO}, {Rout}, {so} offen')
        if i < 2: k(f's_add_u32 {so}, {so}, {14 * 1152}')
    STAMP(12)
```

```python
from common import *

N_SIG = 64 + 45
BUF0, BUF1, SVEC = 0, 73728, 147456
K1_LDS = 147456 + 2560
SPIN_MAX = 40000

def vmaps():
    maps = [list(range(16))]
    for s in (1, 2, 3):
        m = list(maps[-1]); step = 1 << s
        new = [step * i for i in range(8, 16)]
        for j in range(16):
            if m[j] % step: m[j] = new.pop(0)
        assert not new
        maps.append(m)
    return maps

def service(k, P, lane, s_w, END, NEXT, SP, opt=()):
    vm, lg = trackers(k)
    Rws = k.s(4); Rdbg = k.s(4); RA = k.s(4); RB = k.s(4)
    srd(k, Rws, P['ws'], WS_USED); srd(k, Rdbg, P['dbg'], 256)
    z4 = k.v(4, 4); zero = z4.sub(0, 2); one = k.v(); l16 = k.v(); q = k.v(); m = k.v()
    fr = k.v(72, 4); sv = k.v(72, 4); acc = k.v(4, 4)
    sav = k.s(2); st = k.s(); cnt = k.s()
    jb = k.s(); modeB = k.s(); blkB = k.s(); srcB = k.s(); strB = k.s()
    L_mod, L_B, L_C = k.label('mod'), k.label('jobB'), k.label('jobC')
    k(f'v_lshrrev_b32 {q}, 4, {lane}\nv_and_b32 {m}, 15, {lane}\nv_lshlrev_b32 {l16}, 4, {lane}')
    cjs = {}
    def common():
        for i in range(4): k(f'v_mov_b32 {z4[i]}, 0')
        k(f'v_mov_b32 {one}, 1\ns_mov_b32 {cnt}, 0')
        k(f's_add_u32 {jb}, s2, 32\ns_sub_u32 {blkB}, s2, 64\ns_cmp_ge_u32 s2, 64\ns_cselect_b32 {jb}, {blkB}, {jb}')
        k(f's_cmp_ge_u32 s2, 96\ns_cselect_b32 {jb}, 200, {jb}\ns_sub_u32 {blkB}, s2, 7\ns_cmp_ge_u32 s2, 103\ns_cselect_b32 {jb}, {blkB}, {jb}')
        srd(k, RB, P['wmod'], D * 3456 * 2)
        k(f's_mov_b32 {modeB}, 0\ns_cmp_ge_u32 {jb}, 6\ns_cselect_b32 {blkB}, 39, 30\ns_add_u32 {blkB}, {blkB}, {jb}\ns_mov_b32 {strB}, 6912')
        for mode, lo, ptr, nb, st_ in ((2, 15, 'w2', D * D * 2, 1152), (3, 24, 'w3', D * F * 2, 9216), (1, 96, 'w1', D * D * 2, 1152)):
            k(f's_sub_u32 {srcB}, {jb}, {lo}\ns_cmp_ge_u32 {jb}, {lo}')
            k(f's_cselect_b32 {blkB}, {srcB}, {blkB}\ns_cselect_b32 {modeB}, {mode}, {modeB}\ns_cselect_b32 {strB}, {st_}, {strB}')
            k(f's_cselect_b32 {RB[0]}, {P[ptr][0]}, {RB[0]}\ns_cselect_b32 {RB[1]}, {P[ptr][1]}, {RB[1]}\ns_cselect_b32 {RB[2]}, {nb}, {RB[2]}')
        k(f's_lshl_b32 {srcB}, {blkB}, 7')
    def signal(off, last):
        sk = k.label('notlast')
        k(f's_mov_b64 exec, 1\nv_mov_b32 {acc[0]}, 1\nbuffer_atomic_add {acc[0]}, {zero[0]}, {Rdbg}, {off} offen offset:64 sc0 sc1\ns_waitcnt vmcnt(0)')
        k(f'v_readfirstlane_b32 {st}, {acc[0]}\ns_cmp_lg_u32 {st}, {last}\ns_cbranch_scc1 {sk}')
        k(f'buffer_store_dword {one}, {zero[0]}, {Rdbg}, {off} offen offset:192 sc1\n{sk}:\ns_mov_b64 exec, -1')
    cj = ColJob(k, vm, lg, lane, s_w)
    L_w1 = k.label('w1')
    k(f's_cmp_ge_u32 s2, 103\ns_cbranch_scc1 {L_w1}\ns_cmp_ge_u32 s2, 64\ns_cbranch_scc1 {L_mod}')

    srd(k, RA, P['u'], L * D * 2)
    va = k.v(); vx = k.v(2); t = k.v(6); row = k.v(); s1 = k.s()
    k(f's_and_b32 {st}, {s_w}, 1\ns_lshl_b32 {s1}, s2, 1\ns_add_u32 {st}, {st}, {s1}\ns_lshl_b32 {st}, {st}, 4')
    k(f'v_and_b32 {t[0]}, 7, {m}\nv_lshrrev_b32 {t[2]}, 3, {m}\nv_lshl_add_u32 {t[5]}, {t[0]}, 1, {t[2]}\nv_add_u32 {row}, {st}, {t[5]}')
    k(f's_lshr_b32 {s1}, {s_w}, 1\ns_mul_i32 {st}, {s1}, 576\nv_mul_u32_u24 {va}, 1152, {row}\nv_lshl_add_u32 {va}, {q}, 4, {va}')
    for i in range(4): k(f'v_mov_b32 {z4[i]}, 0')
    k(f's_lshl_b32 {sav[0]}, s2, 8\ns_add_u32 {sav[0]}, {sav[0]}, {O_STATS}\ns_cmp_eq_u32 {s_w}, 0\ns_cselect_b32 {sav[0]}, {sav[0]}, {WS_USED}\ns_mov_b64 exec, 0xffff')
    k(f'buffer_store_dwordx4 {z4}, {l16}, {Rws}, {sav[0]} offen sc1\ns_mov_b64 exec, -1')
    k(f's_or_b32 {sav[0]}, s2, {s_w}\ns_cmp_eq_u32 {sav[0]}, 0\ns_mov_b32 {sav[0]}, {O_FW}\ns_cselect_b32 {sav[0]}, {sav[0]}, {WS_USED}')
    k(f'buffer_store_dwordx4 {z4}, {l16}, {Rws}, {sav[0]} offen sc1\nbuffer_store_dwordx4 {z4}, {l16}, {Rws}, {sav[0]} offen offset:1024 sc1')
    ix = [vm.op(f'buffer_load_dwordx4 {fr.sub(4 * i, 4)}, {va}, {RA}, {st} offen offset:{64 * i}') for i in range(9)]
    pf = k.v(2); pfs = k.s(2)
    common()
    ones = sv.sub(40, 4); gacc = sv.sub(36, 4); arr = sv[44]; msk = [k.s(2) for _ in range(3)]
    sk = k.label('noarr')
    k(f's_cmp_lg_u32 {s_w}, 0\ns_cbranch_scc1 {sk}\ns_mov_b64 exec, 1\nv_mov_b32 {arr}, 1\ns_waitcnt vmcnt(9)\nbuffer_atomic_add {arr}, {zero[0]}, {Rdbg}, 0 offen offset:64 sc0 sc1\ns_mov_b64 exec, -1\n{sk}:')
    for i in range(4): k(f'v_mov_b32 {ones[i]}, 0x3f803f80')
    k(f'v_and_b32 {t[0]}, 3, {m}')
    for e in range(3): k(f'v_cmp_eq_u32 {msk[e]}, {e + 1}, {t[0]}')
    k(f's_lshl_b32 {st}, {s_w}, 8\ns_add_u32 {st}, {st}, {SVEC}\nv_lshl_add_u32 {t[3]}, {t[5]}, 2, {st}\nv_lshrrev_b32 {t[0]}, 2, {m}\nv_cmp_eq_u32 vcc, {t[0]}, {q}')
    k(f'v_add_u32 {t[4]}, 128, {t[3]}\nv_add_u32 {t[5]}, 192, {t[3]}\nv_cndmask_b32 {t[4]}, {t[5]}, {t[4]}, vcc')
    k(f'v_lshrrev_b32 {t[0]}, 3, {m}\nv_lshl_add_u32 {t[1]}, {q}, 1, {t[0]}\nv_lshlrev_b32 {vx[0]}, 14, {t[1]}\nv_sub_u32 {t[1]}, {row}, {t[0]}\nv_lshl_add_u32 {vx[0]}, {t[1]}, 3, {vx[0]}')
    k(f's_mul_i32 {s1}, {s1}, {9 * 131072}\ns_add_u32 {s1}, {s1}, {O_XT}\nv_cmp_eq_u32 vcc, 0, {t[0]}')
    dp = 'row_ror:8 row_mask:0xf bank_mask:0xf'
    for i in range(9):
        vm.wait(ix[i])
        if i == 0: SP(8)
        r_ = fr.sub(4 * i, 4); o = sv.sub(4 * i, 4)
        k(f'v_mfma_f32_16x16x32_bf16 {acc}, {ones}, {r_}, {"0" if i == 0 else acc}')
        k(f'v_cndmask_b32_dpp {o[0]}, {r_[2]}, {r_[0]}, vcc {dp}\nv_cndmask_b32_dpp {o[1]}, {r_[3]}, {r_[1]}, vcc {dp}\ns_not_b64 vcc, vcc')
        k(f'v_mfma_f32_16x16x32_bf16 {gacc}, {r_}, {r_}, {"0" if i == 0 else gacc}')
        k(f'v_cndmask_b32_dpp {o[2]}, {r_[0]}, {r_[2]}, vcc {dp}\nv_cndmask_b32_dpp {o[3]}, {r_[1]}, {r_[3]}, vcc {dp}\ns_not_b64 vcc, vcc')
        vm.op(f'buffer_store_dwordx4 {o}, {vx[0]}, {Rws}, {s1} offen sc1')
        if i < 8: k(f's_add_u32 {s1}, {s1}, 131072')
    SP(10)
    k(f'v_cndmask_b32 {t[0]}, {gacc[0]}, {gacc[1]}, {msk[0]}\nv_cndmask_b32 {t[0]}, {t[0]}, {gacc[2]}, {msk[1]}\nv_cndmask_b32 {t[0]}, {t[0]}, {gacc[3]}, {msk[2]}')
    k(f'ds_write_b32 {t[3]}, {acc[0]}\nds_write_b32 {t[4]}, {t[0]}\ns_waitcnt lgkmcnt(0)\ns_barrier')
    a, b = k.label('notw0'), k.label('sigd')
    k(f's_cmp_lg_u32 {s_w}, 0\ns_cbranch_scc1 {a}')
    k(f'v_and_b32 {t[1]}, 1, {q}\nv_lshlrev_b32 {t[1]}, 8, {t[1]}\nv_lshl_add_u32 {t[1]}, {m}, 2, {t[1]}\nv_add_u32 {t[1]}, {SVEC}, {t[1]}')
    k(f'ds_read2_b32 {t[2:4]}, {t[1]} offset0:0 offset1:32\nds_read2_b32 {t[4:6]}, {t[1]} offset0:128 offset1:160')
    sk = k.label('notlast')
    k(f's_waitcnt vmcnt(9)\nv_readfirstlane_b32 {st}, {arr}\ns_cmp_lg_u32 {st}, 102\ns_cbranch_scc1 {sk}')
    k(f's_mov_b64 exec, 1\nbuffer_store_dword {one}, {zero[0]}, {Rdbg}, 0 offen offset:192 sc1\ns_mov_b64 exec, -1\n{sk}:\ns_waitcnt lgkmcnt(0)')
    k(f'v_add_f32 {t[0]}, {t[2]}, {t[4]}\nv_add_f32 {t[2]}, {t[3]}, {t[5]}')
    sigma_bf16(k, t[0], t[2])
    k(f'v_cvt_pk_bf16_f32 {t[2]}, {t[0]}, {t[2]}\nv_mov_b32 {t[3]}, 1\nv_lshlrev_b32 {t[1]}, 3, {lane}\ns_lshl_b32 {st}, s2, 8\ns_add_u32 {st}, {st}, {O_STATS}')
    k(f'{a}:'); SP(14); k('s_waitcnt vmcnt(0)\ns_barrier'); vm.reset()
    k(f's_cmp_lg_u32 {s_w}, 0\ns_cbranch_scc1 {b}')
    k(f's_mov_b32 exec_hi, 0\nbuffer_store_dwordx2 {t[2:4]}, {t[1]}, {Rws}, {st} offen sc1\ns_mov_b64 exec, -1')
    k(f'{b}:'); SP(9)
    for x_ in msk: x_.release()
    cj.dma(RB, srcB, strB, BUF1)
    k(f's_lshl_b32 {st}, s2, 2\ns_add_u32 {st}, {st}, {s_w}\ns_lshl_b32 {st}, {st}, 10')
    k(f's_cmp_eq_u32 s2, {O_FW // 4096}\ns_cselect_b32 {st}, {WS_USED}, {st}\nbuffer_store_dwordx4 {z4}, {l16}, {Rws}, {st} offen sc1')
    sk = k.label('nopad')
    k(f's_cmp_lg_u32 {s_w}, 2\ns_cbranch_scc1 {sk}\ns_cmp_ge_u32 s2, 36\ns_cbranch_scc1 {sk}\ns_lshr_b32 {st}, s2, 1\ns_mul_i32 {st}, {st}, {GPL}\ns_bitcmp1_b32 s2, 0\ns_cselect_b32 {sav[0]}, {129 * 1024}, 0')
    k(f's_add_u32 {st}, {st}, {sav[0]}\ns_add_u32 {st}, {st}, {O_G}\nbuffer_store_dwordx4 {z4}, {l16}, {Rws}, {st} offen sc1\n{sk}:')
    k(f's_branch {L_B}')
    for x_ in (va, vx, t, row, s1): x_.release()

    def mod_tail(ids, s_blk, sig, gran=False):
        t = k.v(2); vg = k.v(); s1 = k.s()
        for s in range(18):
            if s % 2 == 0: lg.wait(ids[s + 1])
            k(f'v_mfma_f32_16x16x32_bf16 {acc}, {sv.sub(4 * s, 4)}, {fr.sub(4 * s, 4)}, {"0" if s == 0 else acc}')
        k(f's_lshl_b32 {s1}, {s_w}, 6\ns_add_u32 {s1}, {s1}, {SVEC + 2048}\nv_lshl_add_u32 {vg}, {m}, 2, {s1}')
        k(f'v_cvt_pk_bf16_f32 {t[0]}, {acc[0]}, {acc[0]}\nv_and_b32 {t[0]}, 0xffff0000, {t[0]}')
        k(f'v_add_f32 {t[1]}, 1.0, {t[0]}\nv_cvt_pk_bf16_f32 {t[1]}, {t[1]}, {t[1]}\nv_and_b32 {t[1]}, 0xffff0000, {t[1]}')
        k(f's_mov_b64 vcc, 0\ns_sub_u32 {s1}, {s_blk}, 9\ns_cmp_lt_u32 {s1}, 9\ns_cselect_b64 vcc, -1, vcc')
        k(f's_sub_u32 {s1}, {s_blk}, 36\ns_cmp_lt_u32 {s1}, 9\ns_cselect_b64 vcc, -1, vcc')
        k(f'v_cndmask_b32 {t[0]}, {t[0]}, {t[1]}, vcc\nds_write_b32 {vg}, {t[0]}\ns_waitcnt lgkmcnt(0)\ns_barrier'); lg.reset()
        a, b = k.label('notw0'), k.label('nob')
        k(f's_cmp_lg_u32 {s_w}, 0\ns_cbranch_scc1 {a}')
        k(f'v_lshlrev_b32 {vg}, 3, {lane}\nv_add_u32 {t[0]}, {SVEC + 2048}, {vg}\nds_read_b64 {t}, {t[0]}\ns_lshl_b32 {s1}, {s_blk}, 8\ns_add_u32 {s1}, {s1}, {O_MODF}')
        k(f's_mov_b32 exec_hi, 0')
        if gran:
            k(f's_lshl_b32 {sav[0]}, {s_blk}, 9\ns_add_u32 {sav[0]}, {sav[0]}, {O_MODG}\nv_mov_b32 {acc[1]}, 1\nv_mov_b32 {acc[3]}, 1\ns_waitcnt lgkmcnt(0)')
            k(f'v_mov_b32 {acc[0]}, {t[0]}\nv_mov_b32 {acc[2]}, {t[1]}\nbuffer_store_dwordx4 {acc}, {l16}, {Rws}, {sav[0]} offen sc1')
        k(f's_waitcnt lgkmcnt(0)\nbuffer_store_dwordx2 {t}, {vg}, {Rws}, {s1} offen sc1')
        if sig:
            k(f's_sub_u32 {s1}, {s_blk}, 27\ns_cmp_ge_u32 {s1}, 18\ns_cbranch_scc1 {b}')
            k(f'v_cvt_pk_bf16_f32 {acc[0]}, {t[0]}, {t[1]}\nv_lshrrev_b32 {vg}, 1, {vg}\ns_lshl_b32 {s1}, {s1}, 7\ns_add_u32 {s1}, {s1}, {O_MODB}')
            k(f'buffer_store_dword {acc[0]}, {vg}, {Rws}, {s1} offen sc1\n{b}:')
            k(f's_cmp_ge_u32 {s_blk}, 45\ns_cbranch_scc1 {a}\ns_sub_u32 {s1}, {s_blk}, 27\ns_cmp_lt_u32 {s1}, 9')
            k(f's_cselect_b32 {sav[0]}, 12, 4\ns_cselect_b32 {sav[1]}, 8, 35\ns_waitcnt vmcnt(0)')
            signal(sav[0], sav[1])
        k(f'{a}:\ns_mov_b64 exec, -1')
        t.release(); vg.release(); s1.release()

    k(f'{L_mod}:')
    vm, lg = trackers(k); cj.vm, cj.lg = vm, lg
    blkA = k.s(); srcA = k.s(); strA = k.s(); Rc = k.s(4)
    srd(k, RA, P['wmod'], D * 3456 * 2); srd(k, Rc, P['c'], D * 2)
    k(f's_sub_u32 {blkA}, s2, 64\ns_cmp_ge_u32 {blkA}, 27\ns_cselect_b32 {st}, 9, 0\ns_cmp_ge_u32 {blkA}, 36\ns_cselect_b32 {st}, -9, {st}\ns_add_u32 {blkA}, {blkA}, {st}')
    k(f's_lshl_b32 {srcA}, {blkA}, 7\ns_mov_b32 {strA}, 6912')
    t = k.v(8); vg = k.v()
    k(f'v_lshlrev_b32 {vg}, 3, v0')
    for i in range(4): k(f'v_mov_b32 {z4[i]}, 0')
    k(f's_lshl_b32 {st}, {blkA}, 9\ns_add_u32 {st}, {st}, {O_MODG}\ns_cmp_eq_u32 {s_w}, 0\ns_cselect_b32 {st}, {st}, {WS_USED}\ns_mov_b32 exec_hi, 0')
    icl = vm.op(f'buffer_store_dwordx4 {z4}, {l16}, {Rws}, {st} offen sc1')
    k('s_mov_b64 exec, -1')
    ic = vm.op(f'buffer_load_dwordx2 {t[0:2]}, {vg}, {Rc}, 0 offen')
    ia = cj.dma(RA, srcA, strA, BUF0)
    common()
    vm.wait(ic)
    sk = k.label('noarr')
    k(f's_cmp_lg_u32 {s_w}, 0\ns_cbranch_scc1 {sk}\ns_mov_b64 exec, 1\nv_mov_b32 {acc[1]}, 1\nbuffer_atomic_add {acc[1]}, {zero[0]}, {Rdbg}, 0 offen offset:64 sc0 sc1\ns_mov_b64 exec, -1\n{sk}:')
    k(f'v_lshlrev_b32 {t[2]}, 16, {t[0]}\nv_and_b32 {t[3]}, 0xffff0000, {t[0]}\nv_lshlrev_b32 {t[4]}, 16, {t[1]}\nv_and_b32 {t[5]}, 0xffff0000, {t[1]}')
    e = k.v(4)
    for i in range(4): k(f'v_mul_f32 {e[i]}, {fl(-LOG2E)}, {t[2 + i]}')
    for i in range(4): k(f'v_exp_f32 {e[i]}, {e[i]}')
    for i in range(4): k(f'v_add_f32 {e[i]}, 1.0, {e[i]}')
    for i in range(4): k(f'v_rcp_f32 {e[i]}, {e[i]}')
    for i in range(4): k(f'v_mul_f32 {e[i]}, {e[i]}, {t[2 + i]}')
    k(f'v_cvt_pk_bf16_f32 {t[0]}, {e[0]}, {e[1]}\nv_cvt_pk_bf16_f32 {t[1]}, {e[2]}, {e[3]}\nv_add_u32 {vg}, {SVEC}, {vg}')
    k(f'ds_write_b64 {vg}, {t[0:2]}\nv_lshlrev_b32 {vg}, 4, {q}\nv_add_u32 {vg}, {SVEC}, {vg}\ns_waitcnt lgkmcnt(0)\ns_barrier')
    for s in range(18): lg.op(f'ds_read_b128 {sv.sub(4 * s, 4)}, {vg} offset:{64 * s}')
    ad = cj.addr(BUF0)
    sk = k.label('notlast')
    k(f's_waitcnt vmcnt(0) lgkmcnt(0)\ns_cmp_lg_u32 {s_w}, 0\ns_cbranch_scc1 {sk}\nv_readfirstlane_b32 {st}, {acc[1]}\ns_cmp_lg_u32 {st}, 102\ns_cbranch_scc1 {sk}')
    k(f's_mov_b64 exec, 1\nbuffer_store_dword {one}, {zero[0]}, {Rdbg}, 0 offen offset:192 sc1\ns_mov_b64 exec, -1\n{sk}:\ns_barrier'); SP(10); vm.reset(); lg.reset()
    ids = cj.reads(ad, fr)
    mod_tail(ids, blkA, True, True); SP(11)
    k(f's_cmp_ge_u32 {jb}, 200\ns_cbranch_scc1 {L_C}')
    cj.dma(RB, srcB, strB, BUF1)
    k(f's_waitcnt vmcnt(0)\ns_branch {L_B}')
    e.release(); t.release(); vg.release()

    k(f'{L_w1}:')
    common()
    cj.dma(RB, srcB, strB, BUF1)
    k('s_waitcnt vmcnt(0)')

    k(f'{L_B}:')
    vm, lg = trackers(k); cj.vm, cj.lg = vm, lg
    k(f's_waitcnt vmcnt(1) lgkmcnt(0)\ns_barrier')
    SP(12)
    il = k.s(); k(f's_sub_u32 {il}, {modeB}, 1\ns_cmp_lt_u32 {il}, 2\ns_cselect_b32 {il}, 1, 0')
    ids = cj.read(BUF1, fr, s_il=il)
    notmod, nocenter = k.label('notmod'), k.label('nocenter')
    k(f's_cmp_lg_u32 {modeB}, 0\ns_cbranch_scc1 {notmod}')
    mod_tail(ids, blkB, True)
    k(f's_branch {L_C}\n{notmod}:')
    k('s_waitcnt lgkmcnt(0)'); lg.reset()
    k(f's_bitcmp0_b32 {modeB}, 0\ns_cbranch_scc1 {nocenter}')
    ones = sv.sub(0, 4); t = k.v(4); gof = k.v(4, 4)
    go2_ld = f'buffer_load_dwordx4 {gof}, {zero[0]}, {Rdbg}, 0 offen offset:192 sc1'
    k(go2_ld)
    for i in range(4): k(f'v_mov_b32 {ones[i]}, 0x3f803f80')
    for s in range(18): k(f'v_mfma_f32_16x16x32_bf16 {acc}, {ones}, {fr.sub(4 * s, 4)}, {"0" if s == 0 else acc}')
    nm = sv.sub(4, 2)
    k(f'v_mul_f32 {nm[0]}, {fl(-1 / 576)}, {acc[0]}')
    for i in range(0, 72, 2):
        k(f'v_lshlrev_b32 {t[0]}, 16, {fr[i]}\nv_and_b32 {t[1]}, 0xffff0000, {fr[i]}')
        k(f'v_lshlrev_b32 {t[2]}, 16, {fr[i + 1]}\nv_and_b32 {t[3]}, 0xffff0000, {fr[i + 1]}')
        k(f'v_pk_add_f32 {t[0:2]}, {t[0:2]}, {nm} op_sel_hi:[1,0]\nv_pk_add_f32 {t[2:4]}, {t[2:4]}, {nm} op_sel_hi:[1,0]')
        k(f'v_cvt_pk_bf16_f32 {fr[i]}, {t[0]}, {t[1]}\nv_cvt_pk_bf16_f32 {fr[i + 1]}, {t[2]}, {t[3]}')
    k(f'{nocenter}:')
    T = k.s(); j = k.s(); dst = k.s(); step = k.s(); rot = k.s()
    k(f's_lshl_b32 {T}, {blkB}, 2\ns_add_u32 {T}, {T}, {s_w}')
    k(f's_mul_hi_u32 {j}, {T}, {(1 << 32) // 6 + 1}\ns_mul_i32 {dst}, {j}, 6\ns_sub_u32 {dst}, {T}, {dst}\ns_lshl_b32 {dst}, {dst}, 10')
    k(f's_mul_i32 {step}, {j}, 110592\ns_add_u32 {dst}, {dst}, {step}')
    k(f's_mul_i32 {rot}, {j}, 3\ns_sub_u32 {rot}, 18, {rot}\ns_cmp_eq_u32 {rot}, 18\ns_cselect_b32 {rot}, 0, {rot}')
    k(f's_cmp_eq_u32 {modeB}, 1\ns_cselect_b32 {rot}, {rot}, 0\ns_cselect_b32 {step}, 0, {O_W2F - O_W1F}\ns_add_u32 {dst}, {dst}, {step}\ns_add_u32 {dst}, {dst}, {O_W1F}')
    k(f's_mul_i32 {j}, {T}, 18432\ns_add_u32 {j}, {j}, {O_W3F}')
    k(f's_cmp_ge_u32 {modeB}, 3\ns_cselect_b32 {dst}, {j}, {dst}\ns_cselect_b32 {step}, 1, 6\ns_lshl_b32 {step}, {step}, 10')
    notw1, L_st = k.label('notw1'), k.label('stored')
    k(f's_cmp_lg_u32 {modeB}, 1\ns_cbranch_scc1 {notw1}')
    cj.store(fr, None, Rws, dst, step, s_rot=rot)
    sk = k.label('nosig')
    k(f's_waitcnt vmcnt(0)\ns_barrier\ns_cmp_lg_u32 {s_w}, 0\ns_cbranch_scc1 {sk}')
    signal(8, 8)
    k(f'{sk}:')
    lp, ok = k.label('pollm'), k.label('gotm')
    k(f'{lp}:\ns_waitcnt vmcnt(0)\nv_and_b32 {gof[1]}, {gof[1]}, {gof[3]}\nv_readfirstlane_b32 {st}, {gof[1]}\ns_cmp_ge_u32 {st}, 1\ns_cbranch_scc1 {ok}')
    k(f's_sleep 4\n{go2_ld}\ns_add_u32 {cnt}, {cnt}, 1\ns_cmp_lt_u32 {cnt}, {SPIN_MAX}\ns_cbranch_scc1 {lp}\ns_branch {END}\n{ok}:'); vm.reset()
    k(f'v_and_b32 {t[0]}, 1, {m}\nv_xor_b32 {t[0]}, 1, {t[0]}\nv_mul_u32_u24 {t[0]}, 1152, {t[0]}\nv_lshl_add_u32 {t[0]}, {q}, 4, {t[0]}\ns_mov_b32 {st}, {O_MODB}')
    ids = [vm.op(f'buffer_load_dwordx4 {sv.sub(4 * s, 4)}, {t[0]}, {Rws}, {st} offen offset:{64 * s} sc1') for s in range(18)]
    k(f's_lshr_b32 {j}, {s_w}, 1\ns_lshl_b32 {j}, {j}, 7\ns_and_b32 {st}, {s_w}, 1\ns_lshl_b32 {st}, {st}, 4\ns_add_u32 {j}, {j}, {st}\ns_add_u32 {j}, {j}, {SVEC}')
    k(f'v_lshrrev_b32 {t[1]}, 2, {m}\nv_and_b32 {t[2]}, 3, {m}\nv_lshlrev_b32 {t[2]}, 2, {t[2]}\nv_lshl_add_u32 {t[1]}, {t[1]}, 5, {t[2]}\nv_add_u32 {t[1]}, {j}, {t[1]}')
    for s in range(18):
        vm.wait(ids[s])
        k(f'v_mfma_f32_16x16x32_bf16 {acc}, {sv.sub(4 * s, 4)}, {fr.sub(4 * s, 4)}, {"0" if s == 0 else acc}')
    k(f'ds_write2st64_b32 {t[1]}, {acc[0]}, {acc[1]} offset0:0 offset1:1\ns_waitcnt lgkmcnt(0)\ns_barrier\ns_cmp_lg_u32 {s_w}, 0\ns_cbranch_scc1 {L_st}')
    k(f'v_add_u32 {t[0]}, {SVEC}, {l16}\nds_read_b128 {acc}, {t[0]}\nv_mul_u32_u24 {t[1]}, 2304, {q}\nv_lshl_add_u32 {t[1]}, {m}, 4, {t[1]}')
    k(f's_lshl_b32 {j}, {blkB}, 8\ns_add_u32 {j}, {j}, {O_MODF + 6 * 2304}\ns_mov_b32 exec_hi, 0\ns_waitcnt lgkmcnt(0)')
    k(f'buffer_store_dwordx4 {acc}, {t[1]}, {Rws}, {j} offen sc1\ns_mov_b64 exec, -1')
    k(f'{L_st}:\ns_branch {L_C}')
    k(f'{notw1}:'); vm.reset()
    cj.store(fr, None, Rws, dst, step, s_rot=rot)
    k(f'{L_C}:'); SP(13)
    code_prefetch(k, None, NEXT, END, 60000, 'v0', pf, pfs)
    k(f's_branch {NEXT}')

TAB, KD = 0, 17408

def conv(k, P, lane, s_w, END, NEXT, dump, SP, opt=()):
    vm, lg = trackers(k)
    cidx = k.s(); s_d = k.s(); st = k.s(); st2 = k.s(); sav = k.s(2)
    k(f's_and_b32 {cidx}, s2, 7\ns_mul_i32 {cidx}, {cidx}, 18\ns_lshr_b32 {st}, s2, 3\ns_add_u32 {cidx}, {cidx}, {st}\ns_sub_u32 {cidx}, {cidx}, 14')
    k(f's_lshl_b32 {s_d}, {cidx}, 2\ns_add_u32 {s_d}, {s_d}, {s_w}\ns_lshl_b32 {st}, {cidx}, 3')
    sdt = k.s(2); sD = k.s(2)
    k(f's_load_dwordx2 {sdt}, {P["logdt"]}, {st}\ns_load_dwordx2 {sD}, {P["Dskip"]}, {st}')
    R = k.s(4); Rws = k.s(4); Rdbg = k.s(4)
    par = k.v(4); t = k.v(8); x = k.v(16)
    k(f'v_lshlrev_b32 {t[0]}, 2, {lane}\ns_lshl_b32 {st2}, {s_d}, 8')
    for i, n in enumerate(('logA', 'Aim', 'Cr', 'Ci')):
        srd(k, R, P[n], D * 128 * 2)
        ipar = vm.op(f'buffer_load_dword {par[i]}, {t[0]}, {R}, {st2} offen')
    srd(k, Rws, P['ws'], WS_USED); srd(k, Rdbg, P['dbg'], 256)
    wb = k.s(); k(f's_mul_i32 {wb}, {s_w}, {WSTR}')
    q = k.v(); m = k.v(); ag = k.v(); am = k.v(); a4 = k.v(); fl_v = k.v(2)
    k(f'v_lshrrev_b32 {q}, 4, {lane}\nv_and_b32 {m}, 15, {lane}')
    ga = k.v(32); cst = k.v()
    k(f's_add_u32 {st2}, {wb}, {KD - 2 * (134 * 128 - 128)}\nv_mov_b32 {cst}, {st2}')
    k(f'v_lshlrev_b32 {t[2]}, 3, {lane}\nv_cvt_f32_u32 {t[2]}, {t[2]}')
    for c in range(4):
        for e in range(0, 8, 2):
            k(f'v_add_f32 {t[4]}, {fl(512 * c + e)}, {t[2]}\nv_add_f32 {t[5]}, {fl(512 * c + e + 1)}, {t[2]}\nv_cvt_pk_bf16_f32 {t[4]}, {t[4]}, {t[5]}')
            k(f'v_mad_u32_u16 {ga[8 * c + e]}, {t[4]}, 2, {cst}\nv_mad_u32_u16 {ga[8 * c + e + 1]}, {t[4]}, 2, {cst} op_sel:[1,0,0,0]')
    k(f's_add_u32 {st2}, {wb}, {KD}\nv_lshl_add_u32 {t[4]}, {lane}, 4, {st2}\nv_cmp_gt_u32 vcc, 16, {lane}')
    for e in range(8): k(f'v_add_u32 {t[5]}, {2 * e}, {t[4]}\nv_cndmask_b32 {ga[e]}, {ga[e]}, {t[5]}, vcc')
    VM = vmaps()
    kda = k.v(4)
    k(f'v_lshlrev_b32 {t[2]}, 2, {m}')
    for s in range(4):
        lut = sum((VM[s][j] >> s) << (4 * j) for j in range(16))
        base = 0 if s == 0 else 128 + 128 * s
        k(f's_mov_b32 {sav[0]}, {lut & 0xffffffff}\ns_mov_b32 {sav[1]}, {lut >> 32}\nv_lshrrev_b64 {t[4:6]}, {t[2]}, {sav}\nv_and_b32 {t[4]}, 15, {t[4]}')
        k(f'v_lshl_add_u32 {t[4]}, {q}, 6, {t[4]}\ns_add_u32 {st2}, {wb}, {KD + 2 * base}\nv_lshl_add_u32 {kda[s]}, {t[4]}, 1, {st2}')
    cst.release()
    atw = k.v(); atr = k.v()
    k(f'v_lshl_add_u32 {atw}, {lane}, 3, {wb}\nv_mul_u32_u24 {atr}, 544, {m}\nv_lshl_add_u32 {atr}, {q}, 4, {atr}\nv_add_u32 {atr}, {wb}, {atr}')
    z4 = k.v(4)
    for i in range(4): k(f'v_mov_b32 {z4[i]}, 0')
    k(f'v_lshrrev_b32 {t[4]}, 5, v0\nv_mul_u32_u24 {t[4]}, {HSTR}, {t[4]}\nv_and_b32 {t[5]}, 31, v0\nv_lshl_add_u32 {t[4]}, {t[5]}, 4, {t[4]}\nv_add_u32 {t[4]}, {HB}, {t[4]}')
    k(f'v_cmp_gt_u32 vcc, 128, v0\ns_and_saveexec_b64 {sav}, vcc\nds_write_b128 {t[4]}, {z4}\ns_mov_b64 exec, {sav}')
    k('s_waitcnt lgkmcnt(0)')
    k(f's_lshl_b32 {st2}, {s_w}, 4\ns_lshr_b64 {sdt}, {sdt}, {st2}\ns_lshl_b32 {sdt[0]}, {sdt[0]}, 16')
    dt = k.v(); ks = k.v()
    k(f'v_mov_b32 {dt}, {fl(LOG2E)}\nv_mul_f32 {dt}, {sdt[0]}, {dt}\nv_exp_f32 {dt}, {dt}\nv_cvt_pk_bf16_f32 {dt}, {dt}, {dt}\nv_and_b32 {dt}, 0xffff0000, {dt}')
    SP(1); vm.wait(ipar); SP(2)
    pr = lambda: [k.v(2), k.v(2)]
    w1, w16, U = pr(), pr(), pr()
    er = k.v(2); rev = k.v(2)
    un = lambda d, s_, hi: f'v_and_b32 {d}, 0xffff0000, {s_}' if hi else f'v_lshlrev_b32 {d}, 16, {s_}'
    for md in range(2):
        k(un(er[md], par[0], md)); k(un(rev[md], par[1], md)); k(un(U[0][md], par[2], md)); k(un(U[1][md], par[3], md))
    for md in range(2): k(f'v_mul_f32 {er[md]}, {fl(LOG2E)}, {er[md]}')
    for md in range(2): k(f'v_exp_f32 {er[md]}, {er[md]}')
    k(f'v_max3_f32 {t[0]}, |{U[0][0]}|, |{U[0][1]}|, |{U[1][0]}|\nv_max_f32 {t[0]}, |{U[1][1]}|, {t[0]}')
    k(f'v_cvt_pk_bf16_f32 {t[1]}, {er[0]}, {er[1]}')
    for mm in ('quad_perm:[1,0,3,2]', 'quad_perm:[2,3,0,1]', 'row_half_mirror', 'row_mirror'):
        k(f'v_max_f32_dpp {t[0]}, {t[0]}, {t[0]} {mm} row_mask:0xf bank_mask:0xf')
    for md in range(2):
        k(un(er[md], t[1], md))
        k(f'v_mul_f32 {er[md]}, {er[md]}, {dt}\nv_mul_f32 {rev[md]}, {rev[md]}, {dt}')
        k(f'v_mul_f32 {er[md]}, {fl(-LOG2E)}, {er[md]}\nv_mul_f32 {rev[md]}, 0.15915494, {rev[md]}')
    k(f'v_readlane_b32 {st2}, {t[0]}, 0\nv_readlane_b32 {sav[0]}, {t[0]}, 16\nv_readlane_b32 {sav[1]}, {t[0]}, 32\nv_readlane_b32 {st}, {t[0]}, 48')
    k(f's_max_u32 {st2}, {st2}, {sav[0]}\ns_max_u32 {st}, {st}, {sav[1]}\ns_max_u32 {st2}, {st2}, {st}')
    for w_, mul in ((w1, None), (w16, '16.0')):
        for md in range(2):
            a, b = t[2 + md], t[4 + md]
            if mul: k(f'v_mul_f32 {a}, {fl(16.)}, {er[md]}\nv_mul_f32 {b}, {fl(16.)}, {rev[md]}\nv_fract_f32 {b}, {b}\nv_exp_f32 {a}, {a}')
            else: k(f'v_fract_f32 {b}, {rev[md]}\nv_exp_f32 {a}, {er[md]}')
            k(f'v_cos_f32 {w_[0][md]}, {b}\nv_sin_f32 {w_[1][md]}, {b}')
        for c in range(2): k(f'v_pk_mul_f32 {w_[c]}, {w_[c]}, {t[2:4]}')
    k(f'v_frexp_exp_i32_f32 {t[0]}, {st2}\nv_sub_u32 {t[1]}, 8, {t[0]}\nv_add_u32 {t[0]}, -7, {t[0]}\nv_ldexp_f32 {ks}, {dt}, {t[0]}')
    for md in range(2):
        for c in range(2): k(f'v_ldexp_f32 {U[c][md]}, {U[c][md]}, {t[1]}')
    er.release(); rev.release(); dt.release()
    tm = [k.v(2) for _ in range(4)]
    def cmul(d, z, s_, ta, tb):
        return [f'v_pk_mul_f32 {ta}, {z[1]}, {s_[1]}', f'v_pk_mul_f32 {tb}, {z[0]}, {s_[1]}',
                f'v_pk_fma_f32 {d[0]}, {z[0]}, {s_[0]}, {ta} neg_lo:[0,0,1] neg_hi:[0,0,1]', f'v_pk_fma_f32 {d[1]}, {z[1]}, {s_[0]}, {tb}']
    w32, w64, w128, w2, w4, w8, V = pr(), pr(), pr(), pr(), pr(), pr(), pr()
    for d_, s_ in ((w32, w16), (w64, w32), (w128, w64)):
        for x_ in cmul(d_, s_, s_, tm[0], tm[1]): k(x_)
    pv = [k.v(2), k.v(2)]; pu = [k.v(2), k.v(2)]
    fa = k.v(32, 4); fb = k.v(32, 4); kacc = k.v(16, 4)
    state = {'V': None, 'nv': 0, 'nu': 0}
    def v_entry(val, slot):
        out = []
        pk = pv[state['nv'] & 1]; state['nv'] += 1
        if val == 0:
            out += [f'v_mov_b32 {pk[0]}, 0x3c00', f'v_mov_b32 {pk[1]}, 0x3c00']
        else:
            if val == 1: cur = w1
            else:
                step = w1 if val <= 16 else w2 if val <= 32 else w4 if val <= 64 else w8
                cur = {2: w2, 4: w4, 8: w8}.get(val, V)
                out += cmul(cur, state['V'], step, tm[0], tm[1])
            state['V'] = cur
            out += [f'v_cvt_pk_f16_f32 {pk[md]}, {cur[0][md]}, {cur[1][md]}' for md in range(2)]
        out.append(('ds', f'ds_write_b64 {atw}, {pk} offset:{TAB + slot * 544}'))
        return out
    def u_entry(val, row):
        out = []
        pk = pu[state['nu'] & 1]; state['nu'] += 1
        if val:
            step = w16 if val <= 256 else w32 if val <= 512 else w64 if val <= 1024 else w128
            out += cmul(U, U, step, tm[2], tm[3])
        out += [f'v_cvt_pk_f16_f32 {pk[md]}, {U[0][md]}, -{U[1][md]}' for md in range(2)]
        out.append(('ds', f'ds_write_b64 {atw}, {pk} offset:{TAB + (16 + row) * 544}'))
        return out
    def put(x_):
        if isinstance(x_, tuple): return lg.op(x_[1])
        k(x_)
    pend = []
    flag_ld = f'buffer_load_dwordx2 {fl_v}, {z4[0]}, {Rdbg}, 0 offen offset:192 sc1'
    ifl = None
    for s in range(4):
        vs = sorted((VM[s][j], j) for j in range(16) if s == 0 or VM[s][j] != VM[s - 1][j])
        us = [16 * u for u in range(16)] if s == 0 else [(128 << s) + (16 << s) * u for u in range(9 if s == 3 else 8)]
        sv_ = [x_ for val, j in vs for x_ in v_entry(val, j)]
        su_ = [x_ for r_, val in enumerate(us) for x_ in u_entry(val, r_)]
        stream = interleave(sv_, su_)
        for n_, x_ in enumerate(stream):
            put(x_)
            if n_ == 27:
                while pend:
                    idr, mf = pend.pop(0); lg.wait(idr); k(mf)
            if s == 3 and n_ == 40: k(flag_ld)
        assert not pend
        for kk in range(8):
            lg.op(f'ds_read_b128 {fa.sub(4 * kk, 4)}, {atr} offset:{TAB + 16 * 544 + 64 * kk}')
            i_ = lg.op(f'ds_read_b128 {fb.sub(4 * kk, 4)}, {atr} offset:{TAB + 64 * kk}')
            ac = kacc.sub(4 * s, 4)
            pend.append((i_, f'v_mfma_f32_16x16x32_f16 {ac}, {fa.sub(4 * kk, 4)}, {fb.sub(4 * kk, 4)}, {"0" if kk == 0 else ac}'))
    for x_ in (w1, w16, w32, w64, w128, w2, w4, w8, V, U, tm, pv, pu):
        for y_ in x_: y_.release()
    md_ = k.v(16, 4); sg = md_; cnt = k.s(); mg = par.sub(0, 2); amg = par[2]
    k(f'v_lshrrev_b32 {amg}, 2, {m}\nv_cmp_eq_u32 vcc, 3, {amg}\nv_addc_co_u32 {amg}, vcc, 0, {amg}, vcc\nv_mul_u32_u24 {amg}, 4608, {amg}\nv_and_b32 {mg[0]}, 3, {m}\nv_lshl_add_u32 {amg}, {mg[0]}, 3, {amg}')
    def kd_out(s):
        ac = kacc.sub(4 * s, 4)
        for e in range(4): k(f'v_mul_f32 {ac[e]}, {ks}, {ac[e]}')
        k(f'v_cvt_pk_bf16_f32 {ac[0]}, {ac[0]}, {ac[1]}\nv_cvt_pk_bf16_f32 {ac[2]}, {ac[2]}, {ac[3]}')
        for e in range(4): lg.op(f'ds_write_b16{"_d16_hi" if e & 1 else ""} {kda[s]}, {ac[e & 2]} offset:{32 * e}')
    for s in range(3): kd_out(s)
    SP(3); lg.reset() if SP.on else None
    got = k.s()
    def x_loads():
        k(f's_lshl_b32 {st}, {cidx}, 14\ns_add_u32 {st}, {st}, {O_XT}')
        for i in range(4):
            k(f'buffer_load_dwordx4 {x.sub(4 * i, 4)}, {ag}, {Rws}, {st} offen sc1')
            if i < 3: k(f's_add_u32 {st}, {st}, 4096')
    def gran_loads():
        for i in range(4): k(f's_mov_b32 {st}, {O_STATS + 4096 * i}\nbuffer_load_dwordx4 {sg.sub(4 * i, 4)}, {ag}, {Rws}, {st} offen sc1')
        mod_loads()
    def gran_check():
        k(f's_waitcnt vmcnt(0)\nv_and_b32 {am}, {sg[1]}, {sg[3]}')
        for i in (5, 9, 13): k(f'v_bitop3_b32 {am}, {am}, {sg[i]}, {sg[i + 2]} bitop3:0x80')
        k(f'v_cmp_ne_u32 vcc, 1, {am}\ns_cmp_eq_u64 vcc, 0')
    def mod_loads():
        k(f's_lshl_b32 {st}, {cidx}, 5\ns_add_u32 {st}, {st}, {O_MODG}')
        k(f'buffer_load_dwordx2 {mg}, {amg}, {Rws}, {st} offen sc1')
    def spin(i, flag_ld):
        lp, ok = k.label('poll'), k.label('go')
        k(f'{lp}:\nv_readfirstlane_b32 {st}, {fl_v[i]}\ns_cmp_ge_u32 {st}, 1\ns_cbranch_scc1 {ok}')
        k(f's_sleep 4\n{flag_ld}\ns_add_u32 {cnt}, {cnt}, 1\ns_cmp_lt_u32 {cnt}, {SPIN_MAX}\ns_waitcnt vmcnt(0)\ns_cbranch_scc1 {lp}\ns_branch {END}\n{ok}:')
    k(f'v_lshlrev_b32 {ag}, 4, v0\nv_lshlrev_b32 {a4}, 2, v0\ns_mov_b32 {cnt}, 0\ns_waitcnt vmcnt(0)')
    spin(0, flag_ld)
    gran_loads()
    while pend:
        idr, mf = pend.pop(0); lg.wait(idr); k(mf)
    kd_out(3)
    kc = fa.sub(0, 16); pvv = fa.sub(16, 8)
    gid = [lg.op(f'ds_read_u16 {ga[e]}, {ga[e]}') for e in range(32)]
    aw = kda[0]; ap = kda[1]
    k(f'v_lshl_add_u32 {aw}, {lane}, 4, {wb}\nv_lshrrev_b32 {ap}, 1, {lane}\nv_mul_u32_u24 {ap}, 4160, {ap}\nv_and_b32 {t[1]}, 1, {lane}')
    k(f'v_lshl_add_u32 {ap}, {t[1]}, 4, {ap}\nv_add_u32 {ap}, {wb}, {ap}')
    k(f's_mov_b64 exec, 0xff'); lg.op(f'ds_write_b128 {ap}, {z4}'); k('s_mov_b64 exec, -1')
    for c in range(4):
        lg.wait(gid[8 * c + 7])
        for e in range(4): k(f'v_lshl_or_b32 {kc[4 * c + e]}, {ga[8 * c + 2 * e + 1]}, 16, {ga[8 * c + 2 * e]}')
        lg.op(f'ds_write_b128 {aw}, {kc.sub(4 * c, 4)} offset:{32 + 1024 * c}')
    ids = [lg.op(f'ds_read_b64 {pvv.sub(2 * c, 2)}, {aw} offset:{24 + 1024 * c}') for c in range(4)]
    late = k.label('late')
    gran_check()
    k(f's_cselect_b32 {got}, 1, 0\ns_cbranch_scc0 {late}')
    x_loads()
    k(f'{late}:')
    for c in range(4):
        lg.wait(ids[c])
        o = fb.sub(12 * (c & 1), 12); d_ = kc.sub(4 * c, 4); p0, p1 = pvv[2 * c], pvv[2 * c + 1]
        seq = [p0, p1, d_[0], d_[1], d_[2], d_[3]]
        o3 = o.sub(0, 4); o1 = o.sub(4, 4); o2 = o.sub(8, 4)
        for i in range(4): k(f'v_alignbit_b32 {o3[i]}, {seq[i + 1]}, {seq[i]}, 16')
        for i in range(3): k(f'v_mov_b32 {o1[i]}, {o3[i + 1]}')
        k(f'v_alignbit_b32 {o1[3]}, {seq[5]}, {seq[4]}, 16')
        for i in range(4): k(f'v_mov_b32 {o2[i]}, {seq[i + 1]}')
        for r_, oo in ((1, o1), (2, o2), (3, o3)): lg.op(f'ds_write_b128 {aw}, {oo} offset:{4160 * r_ + 32 + 1024 * c}')
    if dump:
        k(f's_lshl_b32 {st}, {s_d}, 12\ns_add_u32 {st}, {st}, {O_DBG}\nv_lshlrev_b32 {t[1]}, 4, {lane}')
        for c in range(4): vm.op(f'buffer_store_dwordx4 {kc.sub(4 * c, 4)}, {t[1]}, {Rws}, {st} offen offset:{1024 * c}')
    ga.release(); acc = k.v(32, 4); kacc.release(); ks.release(); atw.release(); atr.release()
    SP(4); lg.reset() if SP.on else None
    have = k.label('have')
    lp, ok = k.label('again'), k.label('rows')
    k(f's_cmp_lg_u32 {got}, 0\ns_cbranch_scc1 {have}\n{lp}:')
    gran_loads(); gran_check()
    k(f's_cbranch_scc1 {ok}\ns_sleep 2\ns_add_u32 {cnt}, {cnt}, 1\ns_cmp_lt_u32 {cnt}, {SPIN_MAX}\ns_cbranch_scc1 {lp}\ns_branch {END}\n{ok}:')
    x_loads()
    k(f'{have}:')
    xf = k.v(32); hf = k.v(32); st_ = k.v(16)
    for i in range(8): k(f'v_and_b32 {st_[2 * i]}, 0xffff0000, {sg[2 * i]}\nv_lshlrev_b32 {st_[2 * i + 1]}, 16, {sg[2 * i]}')
    for i in range(8): k(f'v_rcp_f32 {st_[2 * i]}, {st_[2 * i]}')
    for i in range(8): k(f'v_mul_f32 {st_[2 * i + 1]}, -{st_[2 * i + 1]}, {st_[2 * i]}')
    k('s_waitcnt vmcnt(0)')
    SP(14); lg.reset() if SP.on else None
    for i in range(16): k(f'v_lshlrev_b32 {xf[2 * i]}, 16, {x[i]}\nv_and_b32 {xf[2 * i + 1]}, 0xffff0000, {x[i]}')
    k(f'v_add_u32 {am}, {HB + 512}, {a4}')
    for j in range(16): k(f'v_pk_fma_f32 {hf.sub(2 * j, 2)}, {xf.sub(2 * j, 2)}, {st_.sub(2 * (j // 2), 2)}, {st_.sub(2 * (j // 2), 2)} op_sel:[0,0,1] op_sel_hi:[1,0,1]')
    lp, ok = k.label('gran'), k.label('got')
    k(f'{lp}:')
    k(f'v_cmp_ne_u32 vcc, 1, {mg[1]}\ns_cmp_eq_u64 vcc, 0\ns_cbranch_scc1 {ok}\ns_sleep 2')
    mod_loads()
    k(f's_add_u32 {cnt}, {cnt}, 1\ns_cmp_lt_u32 {cnt}, {SPIN_MAX}\ns_waitcnt vmcnt(0)\ns_cbranch_scc1 {lp}\ns_branch {END}\n{ok}:')
    for i in range(16): k(f'v_mov_b32_dpp {md_[i]}, {mg[0]} row_newbcast:{i} row_mask:0xf bank_mask:0xf')
    SP(5)
    for i in range(4):
        for j in range(4 * i, 4 * i + 4): k(f'v_pk_fma_f32 {hf.sub(2 * j, 2)}, {hf.sub(2 * j, 2)}, {md_.sub(4 + 2 * (j & 1), 2)}, {md_.sub(2 * (j & 1), 2)}')
        for c in range(4): k(f'v_cvt_pk_bf16_f32 {x[4 * i + c]}, {hf[8 * i + c]}, {hf[8 * i + 4 + c]}')
        for c in range(4): lg.op(f'ds_write_b32 {am}, {x[4 * i + c]} offset:{HSTR * c + 1024 * i}')
    st_.release()
    aA = kda[2]; aB = kda[3]
    k(f'v_bfe_u32 {t[0]}, {lane}, 2, 2\nv_mul_u32_u24 {aA}, 4160, {t[0]}\nv_and_b32 {t[0]}, 3, {lane}\nv_lshl_add_u32 {aA}, {t[0]}, 3, {aA}')
    k(f'v_lshlrev_b32 {t[0]}, 4, {q}\nv_sub_u32 {aA}, {aA}, {t[0]}\ns_add_u32 {st}, {wb}, 56\nv_add_u32 {aA}, {st}, {aA}')
    k(f's_mul_i32 {st}, {s_w}, {HSTR}\ns_add_u32 {st}, {st}, {HB + 480}\nv_lshl_add_u32 {aB}, {m}, 5, {t[0]}\nv_add_u32 {aB}, {st}, {aB}')
    lg.all(); k('s_barrier'); SP(6)
    fa2 = k.a(32, 4); fb2 = k.a(32, 4)
    sets = [(fa, fb), (fa2, fb2)]
    k(f'v_add_u32 {aB}, -448, {aB}')
    def reads(r_):
        A_, B_ = sets[r_ & 1]; out = []
        for i in range(8):
            out.append(f'ds_read_b128 {B_.sub(4 * i, 4)}, {aB} offset:{448 - 64 * r_ + 512 * i}')
            out.append(f'ds_read_b64_tr_b16 {A_.sub(4 * i, 2)}, {aA} offset:{64 * r_ + 8 + 512 * i}')
            out.append(f'ds_read_b64_tr_b16 {A_.sub(4 * i + 2, 2)}, {aA} offset:{64 * r_ + 512 * i}')
        return out
    jm = k.s(); l16 = k.v()
    k(f's_lshr_b32 {jm}, s2, 5\ns_sub_u32 {jm}, {jm}, 2\nv_lshlrev_b32 {l16}, 4, {lane}')
    pd = PairDma(k, s_w, jm, O_W1F, Rws, l16, W1_AT)
    early = [g for P_ in range(5) for g in pd.ops(P_)]
    flag_ld = f'buffer_load_dwordx2 {fl_v}, {z4[0]}, {Rdbg}, 0 offen offset:200 sc1'
    cur = [lg.op(x_) for x_ in reads(0)]
    for r_ in range(8):
        rd = reads(r_ + 1) if r_ < 7 else []
        A_, B_ = sets[r_ & 1]; nxt = []
        order = [(i, tt) for i in range(8) for tt in range(i, 8)] if r_ else sorted(((i, tt) for i in range(8) for tt in range(i, 8)), key=lambda p: (max(p[0], p[1] - p[0]), p))
        seen = set()
        if r_ == 1: k(flag_ld)
        if r_ == 3: k('s_waitcnt vmcnt(0)'); spin(0, flag_ld)
        for n_, (i, tt) in enumerate(order):
            lg.wait(max(cur[3 * i + 2], cur[3 * (tt - i)]))
            first = r_ == 0 and tt not in seen; seen.add(tt)
            k(f'v_mfma_f32_16x16x32_bf16 {acc.sub(4 * tt, 4)}, {A_.sub(4 * i, 4)}, {B_.sub(4 * (tt - i), 4)}, {"0" if first else acc.sub(4 * tt, 4)}')
            if rd: nxt.append(lg.op(rd.pop(0)))
            if r_ >= 3 and n_ >= 24 and n_ % 3 == 0 and early:
                for x_ in early.pop(0): k(x_)
        cur = nxt
    assert not early
    SP(7)
    k(f'v_lshlrev_b32 {t[0]}, 3, {q}\nv_lshl_add_u32 {t[0]}, {m}, 5, {t[0]}\nv_add_u32 {t[0]}, {wb}, {t[0]}')
    for tt in range(8):
        o = fa.sub(2 * tt, 2)
        k(f'v_cvt_pk_bf16_f32 {o[0]}, {acc[4 * tt]}, {acc[4 * tt + 1]}\nv_cvt_pk_bf16_f32 {o[1]}, {acc[4 * tt + 2]}, {acc[4 * tt + 3]}')
        k(f'ds_write_b64 {t[0]}, {o} offset:{512 * tt}')
    dv = t.sub(4, 4)
    k(f's_lshl_b32 {st}, {sD[0]}, 16\ns_and_b32 {st2}, {sD[0]}, 0xffff0000\nv_mov_b32 {dv[0]}, {st}\nv_mov_b32 {dv[1]}, {st2}')
    k(f's_lshl_b32 {st}, {sD[1]}, 16\ns_and_b32 {st2}, {sD[1]}, 0xffff0000\nv_mov_b32 {dv[2]}, {st}\nv_mov_b32 {dv[3]}, {st2}')
    k('s_waitcnt lgkmcnt(0)\ns_barrier')
    lg.reset()
    yp = fb.sub(0, 16); yf = acc; o = fa
    ids = [[lg.op(f'ds_read_b32 {yp[4 * i + c]}, {a4} offset:{WSTR * c + 1024 * i}') for c in range(4)] for i in range(4)]
    k(f's_lshl_b32 {st}, {cidx}, 15\ns_lshl_b32 {st2}, {s_w}, 11\ns_add_u32 {st}, {st}, {st2}\ns_add_u32 {st}, {st}, {O_X2}')
    k(f's_add_u32 {st2}, {wb}, 4096\nv_lshl_add_u32 {am}, {lane}, 5, {st2}\nv_lshl_add_u32 {a4}, {lane}, 4, {st2}\nv_lshlrev_b32 {ag}, 4, {lane}')
    odd, fin = k.label('odd'), k.label('fin')
    for i in range(4):
        lg.wait(ids[i][3])
        for c in range(4): k(f'v_lshlrev_b32 {yf[8 * i + c]}, 16, {yp[4 * i + c]}\nv_and_b32 {yf[8 * i + 4 + c]}, 0xffff0000, {yp[4 * i + c]}')
        for j in range(4 * i, 4 * i + 4): k(f'v_pk_fma_f32 {yf.sub(2 * j, 2)}, {hf.sub(2 * j, 2)}, {dv.sub(2 * (j & 1), 2)}, {yf.sub(2 * j, 2)}')
        for j in range(4 * i, 4 * i + 4): k(f'v_pk_fma_f32 {yf.sub(2 * j, 2)}, {yf.sub(2 * j, 2)}, {md_.sub(8 + 2 * (j & 1), 2)}, {xf.sub(2 * j, 2)}')
        for j in range(4 * i, 4 * i + 4): k(f'v_pk_mul_f32 {xf.sub(2 * j, 2)}, {yf.sub(2 * j, 2)}, {md_.sub(12 + 2 * (j & 1), 2)}')
    k(f's_bitcmp1_b32 {cidx}, 0\ns_cbranch_scc1 {odd}')
    for par_ in range(2):
        A_, B_ = (yf, xf) if par_ == 0 else (xf, yf)
        for r_ in range(8):
            for c in range(2):
                k(f'v_cvt_pk_bf16_f32 {o[4 * r_ + c]}, {A_[4 * r_ + 2 * c]}, {A_[4 * r_ + 2 * c + 1]}')
                k(f'v_cvt_pk_bf16_f32 {o[4 * r_ + 2 + c]}, {B_[4 * r_ + 2 * c]}, {B_[4 * r_ + 2 * c + 1]}')
            k(f'ds_write_b128 {am}, {o.sub(4 * r_, 4)} offset:{2048 * (r_ >> 1) + 16 * (r_ & 1)}')
        if par_ == 0: k(f's_branch {fin}\n{odd}:')
    k(f'{fin}:'); lg.reset()
    ids = [lg.op(f'ds_read_b128 {fb.sub(4 * r_, 4)}, {a4} offset:{1024 * r_}') for r_ in range(8)]
    for r_ in range(8):
        lg.wait(ids[r_])
        k(f'buffer_store_dwordx4 {fb.sub(4 * r_, 4)}, {ag}, {Rws}, {st} offen offset:{1024 * (r_ & 1)} sc1')
        if r_ & 1 and r_ < 7: k(f's_add_u32 {st}, {st}, 8192')
```

```python
from common import *

K2_LDS = LDS_BYTES
T_B, T_F = TABS, TABS + 7168
XBUF, HBUF = 0, 73728
X1C, PSTL = 147456, 147456 + 9216
SPIN_MAX = 40000
GC1 = -2.0 * LOG2E * 0.7978845608028654
GC2 = GC1 * 0.044715
PI = [0, 1, 2, 5, 6, 7, 9, 10, 11, 14, 15, 16, 3, 12, 4, 8, 13, 17]
MF = 'v_mfma_f32_16x16x32_bf16'

def un(d, s_, hi): return f'v_and_b32 {d}, 0xffff0000, {s_}' if hi else f'v_lshlrev_b32 {d}, 16, {s_}'

def gelu_consts(k, sig, c):
    k(f'v_mov_b32 {c[2]}, {sig}\nv_rcp_f32 {c[0]}, {sig}')
    k(f'v_mul_f32 {c[1]}, {c[0]}, {c[0]}\nv_mul_f32 {c[1]}, {c[1]}, {c[0]}')
    k(f'v_mul_f32 {c[0]}, {fl(GC1)}, {c[0]}\nv_mul_f32 {c[1]}, {fl(GC2)}, {c[1]}')

def phase2(k, P, lane, s_w, END, SP, opt=()):
    stamps = SP.on
    WFL = ' sc1'
    PFL = ' '.join(o[2:] for o in opt if o.startswith('p_')) or 'sc1'
    q = k.v(); m = k.v(); l16 = k.v(); one = k.v(); zero = k.v(); fv4 = k.v(8, 4)
    Rws = k.s(4); RG = k.s(4); RW = k.s(4)
    srd(k, RG, P['dbg'], 256)
    k(f'v_mov_b32 {one}, 1\nv_mov_b32 {zero}, 0')
    go_ld = f'buffer_load_dwordx4 {fv4[0:4]}, {zero}, {RG}, 0 offen offset:192 sc1'
    k(go_ld)
    k(f'v_lshrrev_b32 {q}, 4, {lane}\nv_and_b32 {m}, 15, {lane}\nv_lshlrev_b32 {l16}, 4, {lane}')
    rb = k.s(); jm = k.s(); mb = k.s(); fs = k.s(); st = k.s(); st1 = k.s(); sav = k.s(2); cnt = k.s(); mt = k.s()
    k(f's_and_b32 {st}, s2, 1\ns_lshl_b32 {mb}, {st}, 4\ns_bfe_u32 {st}, s2, 0x20001\ns_lshl_b32 {fs}, {st}, 1\ns_lshl_b32 {rb}, {st}, 2\ns_add_u32 {rb}, {rb}, {mb}')
    k(f's_bfe_u32 {st}, s2, 0x20003\ns_add_u32 {rb}, {rb}, {st}\ns_lshr_b32 {jm}, s2, 5\ns_sub_u32 {jm}, {jm}, 2')
    k(f's_bfe_u32 {st}, s2, 0x40003\ns_add_u32 {mb}, {mb}, {st}\ns_lshr_b32 {st}, s2, 7\ns_add_u32 {fs}, {fs}, {st}')
    if 'a4' in opt:
        k(f's_and_b32 {mb}, s2, 3\ns_lshl_b32 {mb}, {mb}, 3\ns_bfe_u32 {st}, s2, 0x30003\ns_add_u32 {mb}, {mb}, {st}')
        k(f's_bfe_u32 {fs}, s2, 0x10002\ns_lshl_b32 {fs}, {fs}, 2\ns_lshr_b32 {st}, s2, 6\ns_add_u32 {fs}, {fs}, {st}')
    if 'a1' in opt: k(f's_lshr_b32 {mb}, s2, 3\ns_and_b32 {fs}, s2, 7')
    if 'a8' in opt:
        k(f's_and_b32 {mb}, s2, 7\ns_lshl_b32 {mb}, {mb}, 2\ns_bfe_u32 {st}, s2, 0x20003\ns_add_u32 {mb}, {mb}, {st}\ns_lshr_b32 {fs}, s2, 5')
    k(f's_lshl_b32 {mt}, {rb}, 2\ns_add_u32 {mt}, {mt}, {s_w}\ns_mov_b32 {cnt}, 0')
    srd(k, Rws, P['ws'], WS_USED); srd(k, RW, P['ws'], WS_USED)
    vm, lg = trackers(k)
    def STAMP(i, g4=False):
        mode = 'g4st' if 'g4st' in opt else 'g3st' if 'g3st' in opt else False
        if stamps and (g4 == mode or (i not in (1, 2, 3, 4, 5) and not g4)): SP(i); lg.reset()
    def flag_add(s_idx, base):
        k(f's_lshl_b32 {st}, {s_idx}, 7\ns_add_u32 {st}, {st}, {base}\ns_mov_b64 exec, 1')
        vm.op(f'buffer_atomic_add {one}, {zero}, {Rws}, {st} offen sc1')
        k('s_mov_b64 exec, -1')
    def poll(vaddr, base, target, sleep=0, fv=None):
        own = fv is None; fv = fv or k.v(); lp, ok = k.label('poll'), k.label('ok')
        k(f's_mov_b32 {st1}, {base}\n{lp}:\nbuffer_load_dword {fv}, {vaddr}, {Rws}, {st1} offen sc1\ns_waitcnt vmcnt(0)')
        k(f'v_cmp_gt_u32 vcc, {target}, {fv}\ns_cmp_eq_u64 vcc, 0\ns_cbranch_scc1 {ok}')
        if sleep: k(f's_sleep {sleep}')
        k(f's_add_u32 {cnt}, {cnt}, 1\ns_cmp_lt_u32 {cnt}, {SPIN_MAX}\ns_cbranch_scc1 {lp}\ns_branch {END}\n{ok}:')
        vm.reset()
        if own: fv.release()
    W = [k.a(72, 4), k.a(72, 4)]; vo = [l16] + [k.v() for _ in range(4)]
    for g in range(1, 5): k(f'v_add_u32 {vo[g]}, {4096 * g}, {l16}')
    sn = k.s(); s4 = k.s()
    k(f's_lshl_b32 {sn}, {fs}, 2\ns_add_u32 {sn}, {sn}, {s_w}\ns_mul_i32 {sn}, {sn}, {9 * 18432}\ns_add_u32 {s4}, {sn}, {O_W4F}\ns_add_u32 {sn}, {sn}, {O_W3F}')
    wld = lambda r_, ks: f'buffer_load_dwordx4 {W[r_].sub(4 * ks, 4)}, {vo[ks // 4]}, {RW}, {sn} offen offset:{1024 * (ks % 4)}' + WFL
    sm = k.s(); so = k.s()
    k(f's_lshl_b32 {sm}, {s_w}, 10')
    def spin(ld, regs, sleep=16):
        lp, ok = k.label('spin'), k.label('up')
        k(f'{lp}:\ns_waitcnt vmcnt(0)\nv_mov_b32 {fv4[7]}, {regs[0]}')
        for r_ in regs[1:]: k(f'v_and_b32 {fv4[7]}, {fv4[7]}, {r_}')
        k(f'v_readfirstlane_b32 {st}, {fv4[7]}\ns_cmp_lg_u32 {st}, 0\ns_cbranch_scc1 {ok}')
        k(f's_sleep {sleep}\n{ld}\ns_add_u32 {cnt}, {cnt}, 1\ns_cmp_lt_u32 {cnt}, {SPIN_MAX}\ns_cbranch_scc1 {lp}\ns_branch {END}\n{ok}:')
    RB = k.v(24, 4)
    keepV, keepA, keepS = list(k.V.free), list(k.A.free), list(k.S.free)
    XX = k.v(146, 2); t = k.v(8); row = k.v()
    pd1 = PairDma(k, s_w, jm, O_W1F, Rws, l16, W1_AT)
    k(f's_lshl_b32 {st}, {s_w}, 6\nv_add_u32 {t[2]}, {st}, {lane}')
    k(f'v_cmp_le_u32 vcc, 72, {t[2]}\nv_subrev_u32 {t[3]}, 72, {t[2]}\nv_cndmask_b32 {t[3]}, {t[2]}, {t[3]}, vcc\nv_add_u32 {t[3]}, 72, {t[3]}')
    k(f'v_cmp_le_u32 vcc, 144, {t[2]}\nv_subrev_u32 {t[4]}, 144, {t[2]}\nv_cndmask_b32 {t[3]}, {t[3]}, {t[4]}, vcc')
    k(f'v_cmp_le_u32 vcc, 216, {t[2]}\nv_subrev_u32 {t[4]}, 216, {t[2]}\nv_cndmask_b32 {t[3]}, {t[3]}, {t[4]}, vcc\nv_lshlrev_b32 {t[3]}, 4, {t[3]}')
    k(f'v_add_u32 {t[4]}, 40, {lane}\nv_lshlrev_b32 {t[4]}, 4, {t[4]}\nv_mul_u32_u24 {t[5]}, 43691, {t[2]}\nv_lshrrev_b32 {t[5]}, 20, {t[5]}\nv_mul_u32_u24 {t[6]}, 120, {t[5]}')
    k(f'v_add_u32 {t[6]}, {t[6]}, {t[2]}\nv_lshlrev_b32 {t[6]}, 4, {t[6]}')
    pd = PairDma(k, s_w, jm, O_W2F, Rws, l16, W2_AT)
    k(f's_lshl_b32 {st}, {mt}, 4\nv_add_u32 {row}, {st}, {m}')
    k(f'v_lshlrev_b32 {t[0]}, 16, {q}\nv_lshl_add_u32 {t[0]}, {row}, 4, {t[0]}\nv_add_u32 {t[1]}, 0x8000, {t[0]}')
    ones = k.v(4, 4); sacc = k.v(4, 4); gacc = k.v(4, 4); tacc = k.v(4, 4); qacc = k.v(4, 4); acc = k.v(24, 4)
    for i in range(4): k(f'v_mov_b32 {ones[i]}, 0x3f803f80')
    msk = [k.s(2) for _ in range(3)]; bidx = k.v()
    k(f'v_and_b32 {t[2]}, 3, {m}')
    for e in range(3): k(f'v_cmp_eq_u32 {msk[e]}, {e + 1}, {t[2]}')
    aT = k.v(); aW = [l16, k.v(), k.v()]
    k(f'v_min_u32 {t[2]}, 2, {t[2]}\nv_mul_u32_u24 {aT}, 2304, {t[2]}\nv_lshl_add_u32 {aT}, {q}, 4, {aT}\ns_mul_i32 {st}, {jm}, 192\ns_add_u32 {st}, {st}, {T_B}\nv_add_u32 {aT}, {st}, {aT}')
    k(f'v_lshrrev_b32 {t[2]}, 2, {m}\nv_lshl_add_u32 {t[2]}, {t[2]}, 4, {m}\nv_lshlrev_b32 {bidx}, 2, {t[2]}')
    k(f'v_add_u32 {aW[1]}, 0xf000, {l16}\nv_add_u32 {aW[2]}, 0x1e000, {l16}')
    k(f'v_lshlrev_b32 {t[2]}, 4, v0\nv_add_u32 {t[2]}, {T_B}, {t[2]}')
    spin(go_ld, [fv4[0]])
    k('s_waitcnt lgkmcnt(0)\ns_barrier')
    STAMP(15)
    na, nb = k.label('noarr'), k.label('notlast')
    k(f's_cmp_lg_u32 {s_w}, 0\ns_cbranch_scc1 {na}\ns_and_b32 {st1}, s2, 3\ns_lshl_b32 {st}, {st1}, 7\ns_add_u32 {st}, {st}, {O_FA}\ns_mov_b64 exec, 1')
    k(f'v_mov_b32 {fv4[4]}, 1\nbuffer_atomic_add {fv4[4]}, {zero}, {Rws}, {st} offen sc0 sc1\ns_lshl_b32 {st1}, {st1}, 2\ns_waitcnt vmcnt(0)')
    k(f'v_readfirstlane_b32 {st}, {fv4[4]}\ns_cmp_lg_u32 {st}, 63\ns_cbranch_scc1 {nb}')
    k(f'buffer_store_dword {one}, {zero}, {RG}, {st1} offen offset:208 sc1\n{nb}:\ns_mov_b64 exec, -1\n{na}:')
    go3_ld = f'buffer_load_dwordx4 {fv4[0:4]}, {zero}, {RG}, 0 offen offset:208 sc1'
    k('s_cmp_lt_u32 s2, 64\ns_cbranch_scc1 k2_idle')

    w0, w5, wj = k.label('havew1'), k.label('rest'), k.label('joined')
    spin(go_ld, [fv4[1], fv4[2], fv4[3]])
    k(f's_add_u32 m0, {sm}, {T_B + 2304}\ns_mov_b32 {st1}, {O_MODB}\nbuffer_load_dwordx4 {t[3]}, {Rws}, {st1} offen sc1 lds')
    k(f's_mov_b32 m0, {T_B + 2304 + 4096}\ns_mov_b32 exec_hi, 0\nbuffer_load_dwordx4 {t[4]}, {Rws}, {st1} offen sc1 lds\ns_mov_b64 exec, -1')
    k(f's_cmp_ge_u32 s2, 112\ns_cbranch_scc1 {w0}')
    for P_ in range(5):
        for g in pd1.ops(P_):
            for x_ in g: k(x_)
    k(f's_waitcnt vmcnt(0)\n{w0}:\ns_barrier\ns_cmp_eq_u32 {s_w}, 0\ns_cbranch_scc1 {w5}')
    k(f's_lshl_b32 {pd1.t}, {s_w}, 11\ns_sub_u32 {pd1.t}, {pd1.t}, 2048\ns_mul_i32 {pd1.src}, {jm}, 110592\ns_add_u32 {pd1.src}, {pd1.src}, {pd1.t}\ns_add_u32 {pd1.src}, {pd1.src}, {O_W1F + 61440}')
    for sl_i in range(10, 18):
        k(f's_add_u32 m0, {pd1.t}, {W1_AT[sl_i]}\nbuffer_load_dwordx4 {l16}, {Rws}, {pd1.src} offen sc1 lds')
        k(f'buffer_load_dwordx4 {l16}, {Rws}, {pd1.src} offen offset:1024 sc1 lds')
        if sl_i < 17: k(f's_add_u32 {pd1.src}, {pd1.src}, 6144')
    k(f'{w5}:')
    pd1.release()
    k(f'v_cmp_gt_u32 vcc, 144, v0\ns_and_saveexec_b64 {sav}, vcc\nds_write_b128 {t[2]}, {ones}\ns_mov_b64 exec, {sav}')
    w2ops = [g for P_ in range(9) for g in pd.ops(P_)]
    def w2dma():
        for x_ in w2ops.pop(0): vm.op(x_) if x_.startswith('buffer') else k(x_)
    ix = []
    def issue(i):
        k(f's_lshl_b32 {st}, {st1}, 18\ns_add_u32 {st}, {st}, {O_X2}')
        vm.op(f'buffer_load_dwordx4 {XX.sub(8 * i, 4)}, {t[0]}, {Rws}, {st} offen sc1')
        ix.append(vm.op(f'buffer_load_dwordx4 {XX.sub(8 * i + 4, 4)}, {t[1]}, {Rws}, {st} offen sc1'))
        if i < 17: k(f's_add_u32 {st1}, {st1}, 1\ns_cmp_eq_u32 {st1}, 18\ns_cselect_b32 {st1}, 0, {st1}')
    lds_at = lambda a_: f'{aW[a_ // 0xf000]} offset:{a_ % 0xf000}'
    TF = W[1]; WR = [k.a(24, 4), k.a(24, 4)]
    def w_reads(i):
        return [f'ds_read_b128 {WR[i & 1].sub(4 * tt, 4)}, {lds_at(W1_AT[i] + 1024 * tt)}' for tt in range(6)]
    k(f's_cmp_lg_u32 {s_w}, 0\ns_cbranch_scc1 {wj}\n{go3_ld}')
    spin(go3_ld, [fv4[i] for i in range(4)], 2)
    k(f'{wj}:\ns_mul_i32 {st1}, {jm}, 3\ns_mul_i32 {so}, {jm}, 384\ns_add_u32 {so}, {so}, {O_MOD2}\ns_waitcnt vmcnt(16) lgkmcnt(0)\ns_barrier'); vm.reset(); lg.reset()
    STAMP(0)
    nis = 5
    for i in range(nis): issue(i)
    itf = [lg.op(f'ds_read_b128 {TF.sub(4 * i, 4)}, {aT} offset:{64 * i}') for i in range(18)]
    iwr = [lg.op(x_) for x_ in w_reads(0)]
    for i in range(18):
        lg.wait(itf[i]); k(f'{MF} {acc[4:8]}, {TF.sub(4 * i, 4)}, {TF.sub(4 * i, 4)}, {"0" if i == 0 else acc[4:8]}')
    cs = k.s(5, 1)
    for n_, (e, j_) in enumerate(((0, 1), (0, 2), (1, 1), (1, 2), (2, 2))): k(f'v_readlane_b32 {cs[n_]}, {acc[4 + e]}, {j_}')
    n2 = 0
    for i in range(18):
        if i == 9: vm.wait(itab)
        if i in (9, 13): k('s_barrier')
        if i == 1: STAMP(1)
        xg = XX.sub(8 * i + 2, 4); xr = XX.sub(8 * i - 2, 4) if i else None
        c_ = lambda r_, first: '0' if first else r_
        M = [(iwr[tt], f'{MF} {acc.sub(4 * tt, 4)}, {WR[i & 1].sub(4 * tt, 4)}, {xg}, {c_(acc.sub(4 * tt, 4), i == 0)}') for tt in range(6)]
        S_ = [f'{MF} {tacc}, {TF.sub(4 * i, 4)}, {xg}, {c_(tacc, i == 0)}', f'{MF} {qacc}, {xg}, {xg}, {c_(qacc, i == 0)}']
        if i: S_ += [f'{MF} {sacc}, {ones}, {xr}, {c_(sacc, i == 1)}', f'{MF} {gacc}, {xr}, {xr}, {c_(gacc, i == 1)}']
        Rd = w_reads(i + 1) if i < 17 else []
        vm.wait(ix[i])
        if i == 0: k(f'v_mov_b32 {XX[144]}, {XX[0]}\nv_mov_b32 {XX[145]}, {XX[1]}')
        nxt = []
        for x_ in S_:
            k(x_)
            if Rd: nxt.append(lg.op(Rd.pop(0)))
        for idr, mm in M:
            lg.wait(idr); k(mm)
            if Rd: nxt.append(lg.op(Rd.pop(0)))
        iwr = nxt
        if i == 4:
            k(f's_add_u32 m0, {sm}, {T_F}')
            itab = vm.op(f'buffer_load_dwordx4 {t[6]}, {Rws}, {so} offen sc1 lds')
        if nis < 18:
            for _ in range(2 if nis < i + 9 else 1):
                if nis < 18: issue(nis); nis += 1
        else:
            for _ in range(3):
                if n2 < (18 if i < 13 else 27): w2dma(); n2 += 1
    assert n2 == 27
    xr = XX.sub(142, 4)
    k(f'{MF} {sacc}, {ones}, {xr}, {sacc}\n{MF} {gacc}, {xr}, {xr}, {gacc}')
    STAMP(2)
    k.inject([lambda ks=ks: vm.op(wld(0, ks)) for ks in PI], 9)
    TB = [XX.sub(24, 16), XX.sub(40, 16)]; uu = XX.sub(56, 48)
    k(f'v_lshlrev_b32 {aT}, 5, {q}\nv_add_u32 {aT}, {T_F}, {aT}')
    tf_read = lambda dst, r_, e: f'ds_read_b128 {dst}, {aT} offset:{384 * r_ + 128 * (e >> 1) + 16 * (e & 1)}'
    def diag(d, g_):
        k(f'v_cndmask_b32 {d}, {g_[0]}, {g_[1]}, {msk[0]}\nv_cndmask_b32 {d}, {d}, {g_[2]}, {msk[1]}\nv_cndmask_b32 {d}, {d}, {g_[3]}, {msk[2]}')
        return lg.op(f'ds_bpermute_b32 {d}, {bidx}, {d}')
    i2 = diag(t[2], qacc); i1 = diag(t[1], gacc)
    iu = [lg.op(tf_read(uu.sub(24 * r_ + 4 * e, 4), 3 + r_, e)) for e in range(6) for r_ in range(2)]
    s1 = XX.sub(140, 2); gc = XX.sub(136, 4)
    k(f'v_mov_b32 {t[0]}, {sacc[0]}'); lg.wait(i1)
    sigma_bf16(k, t[0], t[1])
    k(f'v_cvt_pk_bf16_f32 {t[0]}, {t[0]}, {t[1]}\nv_and_b32 {s1[0]}, 0xffff0000, {t[0]}\nv_lshlrev_b32 {s1[1]}, 16, {t[0]}')
    k(f'v_rcp_f32 {s1[0]}, {s1[0]}\nv_mov_b32 {t[3]}, {cs[1]}\nv_mov_b32 {t[4]}, {cs[3]}\nv_mul_f32 {s1[1]}, -{s1[1]}, {s1[0]}')
    k(f'v_fma_f32 {t[3]}, {s1[1]}, {cs[0]}, {t[3]}\nv_fma_f32 {t[0]}, {s1[0]}, {tacc[0]}, {t[3]}')
    k(f'v_fma_f32 {t[3]}, {s1[1]}, {tacc[1]}, {tacc[2]}\nv_add_f32 {t[3]}, {t[3]}, {t[3]}\nv_fma_f32 {t[3]}, {s1[0]}, {t[2]}, {t[3]}')
    k(f'v_add_f32 {t[4]}, {t[4]}, {t[4]}\nv_fma_f32 {t[4]}, {s1[1]}, {cs[2]}, {t[4]}\nv_mov_b32 {t[5]}, {cs[4]}\nv_fma_f32 {t[4]}, {s1[1]}, {t[4]}, {t[5]}')
    k(f'v_fma_f32 {t[1]}, {s1[0]}, {t[3]}, {t[4]}')
    sigma_bf16(k, t[0], t[1])
    k(f'v_cvt_pk_bf16_f32 {t[1]}, {t[1]}, {t[1]}\nv_and_b32 {t[1]}, 0xffff0000, {t[1]}')
    gelu_consts(k, t[1], gc)
    k(f's_mul_i32 {st}, {jm}, {3 * GPL}\ns_lshl_b32 {so}, {mt}, 10\ns_add_u32 {st}, {st}, {so}\ns_add_u32 {st}, {st}, {O_G + 1024}')
    lg.all()
    for e in range(12): k(f'v_pk_fma_f32 {uu.sub(2 * e, 2)}, {uu.sub(2 * e, 2)}, {s1}, {uu.sub(24 + 2 * e, 2)} op_sel:[0,1,0] op_sel_hi:[1,1,1]')
    for e in range(12): k(f'v_pk_fma_f32 {acc.sub(2 * e, 2)}, {acc.sub(2 * e, 2)}, {s1}, {uu.sub(2 * e, 2)} op_sel_hi:[1,0,1]')
    tt_ = TB[0]; go = TB[1]
    for Pp in range(3):
        a = acc.sub(8 * Pp, 8); u = tt_.sub(0, 8)
        for e in range(4): k(f'v_pk_mul_f32 {u.sub(2 * e, 2)}, {a.sub(2 * e, 2)}, {a.sub(2 * e, 2)}')
        for e in range(4): k(f'v_pk_fma_f32 {u.sub(2 * e, 2)}, {u.sub(2 * e, 2)}, {gc[0:2]}, {gc[0:2]} op_sel:[0,1,0] op_sel_hi:[1,1,0]')
        for e in range(4): k(f'v_pk_mul_f32 {u.sub(2 * e, 2)}, {u.sub(2 * e, 2)}, {a.sub(2 * e, 2)}')
        for e in range(8): k(f'v_exp_f32 {u[e]}, {u[e]}')
        for e in range(4): k(f'v_pk_fma_f32 {u.sub(2 * e, 2)}, {u.sub(2 * e, 2)}, {gc[2:4]}, {gc[2:4]} op_sel_hi:[1,0,0]')
        for e in range(8): k(f'v_rcp_f32 {u[e]}, {u[e]}')
        for e in range(4): k(f'v_pk_mul_f32 {u.sub(2 * e, 2)}, {u.sub(2 * e, 2)}, {a.sub(2 * e, 2)}')
        o = go.sub(4 * Pp, 4)
        for e in range(4): k(f'v_cvt_pk_bf16_f32 {o[e]}, {u[2 * e]}, {u[2 * e + 1]}')
        if Pp == 2: k.flush_inject()
        ig = vm.op(f'buffer_store_dwordx4 {o}, {l16}, {Rws}, {st} offen sc1')
        if Pp < 2: k(f's_add_u32 {st}, {st}, {GPL}')
    h2f = uu.sub(0, 24); x2f = XX.sub(104, 24); gbv = RB
    xsrc = lambda e: XX[8 * (e // 8) + (0, 1, 6, 7)[(e % 8) // 2]]
    ig_ = [lg.op(tf_read(gbv.sub(4 * e, 4), 1, e)) for e in range(6)]
    is_ = [lg.op(tf_read(uu.sub(24 + 4 * e, 4), 0, e)) for e in range(6)]
    for e in range(24): k(un(x2f[e], xsrc(e), e & 1))
    dl = [XX[128 + i] for i in range(6)]
    k(f'v_cmp_gt_u32 vcc, 2, {q}')
    for g, dlt in enumerate((-1, 1, -2, 2)):
        k(f'v_add_u32 {dl[4]}, {16 + dlt}, {row}\nv_lshrrev_b32 {dl[5]}, 4, {dl[4]}\nv_and_b32 {dl[4]}, 15, {dl[4]}\nv_lshlrev_b32 {dl[4]}, 4, {dl[4]}')
        k(f'v_lshl_add_u32 {dl[4]}, {dl[5]}, 10, {dl[4]}\nv_lshl_add_u32 {dl[g]}, {q}, 8, {dl[4]}')
    k(f'v_cndmask_b32 {dl[4]}, {dl[1]}, {dl[0]}, vcc\nv_cndmask_b32 {dl[5]}, {dl[3]}, {dl[2]}, vcc')
    pa = XX[134]
    k(f'v_min_u32 {pa}, 2, {lane}\nv_add_u32 {pa}, {mt}, {pa}\nv_add_u32 {pa}, -1, {pa}\nv_max_i32 {pa}, 0, {pa}\nv_min_u32 {pa}, 127, {pa}\nv_lshlrev_b32 {pa}, 7, {pa}')
    vm.wait(ig)
    flag_add(mt, O_FC)
    STAMP(3)
    k(f's_add_u32 {sn}, {sn}, 18432')
    for e in range(12): k(f'v_pk_fma_f32 {h2f.sub(2 * e, 2)}, {x2f.sub(2 * e, 2)}, {s1}, {s1} op_sel:[0,0,1] op_sel_hi:[1,0,1]')
    lg.all()
    for e in range(12): k(f'v_pk_fma_f32 {h2f.sub(2 * e, 2)}, {h2f.sub(2 * e, 2)}, {gbv.sub(2 * e, 2)}, {uu.sub(24 + 2 * e, 2)}')
    NPRE = 5
    k('s_barrier')
    WP = [WR[0], WR[1], k.a(24, 4), k.a(24, 4), XX.sub(0, 24)]
    w2_addr = lambda i, tt: lds_at(W2_AT[i] + 1024 * tt)
    for i in range(NPRE):
        for tt in range(6): lg.op(f'ds_read_b128 {WP[i].sub(4 * tt, 4)}, {w2_addr(i, tt)}')
    poll(pa, O_FC, 6)
    STAMP(4)
    GF = TF
    sel = lambda s: dl[4] if s == 4 else dl[5] if s == 13 else dl[(2 * s) // 9]
    ig = []
    for s in range(18):
        k(f's_mov_b32 {st}, {O_G + s * GPL}')
        ig.append(vm.op(f'buffer_load_dwordx4 {GF.sub(4 * s, 4)}, {sel(s)}, {Rws}, {st} offen sc1'))
    lg.all()
    ird = {}
    for s in range(18):
        vm.wait(ig[s])
        wr = WP[s % NPRE]
        for tt in range(6):
            if s >= NPRE: lg.wait(ird[s, tt])
            k(f'{MF} {acc.sub(4 * tt, 4)}, {wr.sub(4 * tt, 4)}, {GF.sub(4 * s, 4)}, {"0" if s == 0 else acc.sub(4 * tt, 4)}')
            if s + NPRE < 18: ird[s + NPRE, tt] = lg.op(f'ds_read_b128 {wr.sub(4 * tt, 4)}, {w2_addr(s + NPRE, tt)}')
        vm.op(wld(1, s))
    lg.all()
    STAMP(5)
    aS = dl[1]
    k(f'v_lshrrev_b32 {t[0]}, 1, {q}')
    k(f'v_lshlrev_b32 {aS}, 6, {t[0]}\nv_lshl_add_u32 {aS}, {m}, 2, {aS}')
    k(f's_mul_i32 {st}, {rb}, 18\ns_mul_i32 {so}, {jm}, 3\ns_add_u32 {st}, {st}, {so}\ns_lshl_b32 {st}, {st}, 2\ns_add_u32 {st}, {st}, {s_w}\ns_lshl_b32 {st}, {st}, 10\ns_add_u32 {st}, {st}, {O_X1F}')
    for e in range(12): k(f'v_pk_add_f32 {h2f.sub(2 * e, 2)}, {h2f.sub(2 * e, 2)}, {acc.sub(2 * e, 2)}')
    for Pp in range(3):
        o = go.sub(4 * Pp, 4)
        for e in range(4): k(f'v_cvt_pk_bf16_f32 {o[e]}, {h2f[8 * Pp + 2 * e]}, {h2f[8 * Pp + 2 * e + 1]}')
        vm.op(f'buffer_store_dwordx4 {o}, {l16}, {Rws}, {st} offen sc1')
        if Pp < 2: k(f's_add_u32 {st}, {st}, 4096')
    k(f'v_pk_add_f32 {t[0:2]}, {h2f[0:2]}, {h2f[2:4]}\nv_pk_mul_f32 {t[2:4]}, {h2f[0:2]}, {h2f[0:2]}\nv_pk_fma_f32 {t[2:4]}, {h2f[2:4]}, {h2f[2:4]}, {t[2:4]}')
    for e in range(2, 12): k(f'v_pk_add_f32 {t[0:2]}, {t[0:2]}, {h2f.sub(2 * e, 2)}\nv_pk_fma_f32 {t[2:4]}, {h2f.sub(2 * e, 2)}, {h2f.sub(2 * e, 2)}, {t[2:4]}')
    k(f'v_add_f32 {t[0]}, {t[0]}, {t[1]}\nv_add_f32 {t[2]}, {t[2]}, {t[3]}\nv_permlane32_swap_b32 {t[0]}, {t[2]}\nv_add_f32 {t[0]}, {t[0]}, {t[2]}')
    k(f'v_mov_b32 {t[1]}, {t[0]}\nv_permlane16_swap_b32 {t[0]}, {t[1]}\nv_add_f32 {t[0]}, {t[0]}, {t[1]}')
    k(f's_mul_i32 {st}, {mt}, 6\ns_add_u32 {st}, {st}, {jm}\ns_lshl_b32 {st}, {st}, 7\ns_add_u32 {st}, {st}, {O_PST}\ns_mov_b32 exec_lo, 0xffff\ns_mov_b32 exec_hi, 0xffff')
    vm.op(f'buffer_store_dword {t[0]}, {aS}, {Rws}, {st} offen sc1')
    k('s_mov_b64 exec, -1')
    vm.all()
    flag_add(mt, O_FD)
    STAMP(6)
    k('s_branch k2_phase_e')
    k('k2_idle:')
    k.V.free, k.A.free, k.S.free = list(keepV), list(keepA), list(keepS)
    vm, lg = trackers(k)
    cj = ColJob(k, vm, lg, lane, s_w)
    fr = k.v(72, 4); sl = k.s(); dst = k.s(); job = k.s(); R4 = k.s(4)
    srd(k, R4, P['w4'], D * F * 2)
    lpj, dn = k.label('w4job'), k.label('w4done')
    k(f's_mov_b32 {job}, s2\n{lpj}:\ns_mul_hi_u32 {sl}, {job}, {(1 << 32) // 9 + 1}\ns_mul_i32 {dst}, {sl}, 9\ns_sub_u32 {dst}, {job}, {dst}\ns_lshl_b32 {dst}, {dst}, 7')
    k(f's_mul_i32 {st}, {sl}, {576 * 1152}\ns_add_u32 {dst}, {dst}, {st}\ns_mov_b32 {st}, 1152')
    cj.dma(R4, dst, st, 0, True)
    ad = cj.addr(0, w4order=True)
    k('s_waitcnt vmcnt(0)\ns_barrier'); vm.reset()
    ids = cj.reads(ad, fr)
    if 'w4wait' in opt:
        k(go3_ld); spin(go3_ld, [fv4[i] for i in range(4)]); vm.reset()
    k(f's_lshl_b32 {dst}, {job}, 2\ns_add_u32 {dst}, {dst}, {s_w}\ns_mul_i32 {dst}, {dst}, 18432\ns_add_u32 {dst}, {dst}, {O_W4F}')
    cj.store(fr, ids, Rws, dst, 1024)
    vm.all()
    flag_add(sl, O_FW)
    k(f's_barrier\ns_add_u32 {job}, {job}, 64\ns_cmp_lt_u32 {job}, 72\ns_cbranch_scc1 {lpj}\n{go3_ld}')
    spin(go3_ld, [fv4[i] for i in range(4)]); vm.reset()
    for r_ in range(2):
        for ks in PI: vm.op(wld(r_, ks))
        if r_ == 0: k(f's_add_u32 {sn}, {sn}, 18432')
    STAMP(14)
    k('k2_phase_e:')
    k.V.free, k.A.free, k.S.free = keepV, keepA, keepS
    vm, lg = trackers(k)
    vm.n = 1
    XA = k.a(112, 4); XV = k.v(176, 4)
    xf = lambda ks, t_: XA.sub(16 * ks + 4 * t_, 4) if 16 * ks + 4 * t_ < 112 else XV.sub(16 * ks + 4 * t_ - 112, 4)
    fv4.release()
    k(f's_add_u32 {sn}, {sn}, 18432')
    acc = [k.v(16, 4), k.v(16, 4)]
    t = acc[1].sub(0, 12); pa = k.v()
    k(f's_lshl_b32 {st}, {mb}, 2\nv_min_u32 {pa}, 3, {lane}\nv_add_u32 {pa}, {st}, {pa}\nv_lshlrev_b32 {pa}, 7, {pa}')
    k(f's_lshl_b32 {sm}, {s_w}, 10\ns_mul_i32 {so}, {mb}, 73728\ns_add_u32 {so}, {so}, {sm}\ns_add_u32 {so}, {so}, {O_X1F}')
    sk_ = k.label('nopoll')
    k(f's_cmp_lg_u32 {s_w}, 0\ns_cbranch_scc1 {sk_}')
    poll(pa, O_FD, 6, sleep=1)
    k(f'{sk_}:\ns_waitcnt vmcnt(0)\ns_barrier')
    STAMP(7)
    ixd = []; idv = {}
    def xdma(ks):
        k(f's_add_u32 m0, {sm}, {XBUF + 4096 * ks}\ns_add_u32 {st}, {so}, {4096 * ks}')
        ixd.append(vm.op(f'buffer_load_dwordx4 {l16}, {Rws}, {st} offen sc1 lds'))
    for ks in PI[:7]: xdma(ks)
    k(f's_mul_i32 {st}, {mb}, 3072\ns_add_u32 {st}, {st}, {sm}\ns_add_u32 {st}, {st}, {O_PST}\ns_add_u32 m0, {sm}, {PSTL}')
    vm.op(f'buffer_load_dwordx4 {l16}, {Rws}, {st} offen sc1 lds')
    k(f'v_mul_u32_u24 {pa}, 768, {q}\nv_lshl_add_u32 {pa}, {m}, 2, {pa}\nv_add_u32 {pa}, {PSTL}, {pa}')
    aX = [l16, k.v()]; aHr = [k.v(), k.v()]; aH = [k.v(), k.v()]
    k(f'v_add_u32 {aX[1]}, 0x9000, {l16}\nv_add_u32 {aHr[0]}, {HBUF}, {l16}\nv_add_u32 {aHr[1]}, {HBUF + 0x9000}, {l16}')
    for h in range(2):
        k(f's_mul_i32 {st}, {s_w}, 9\ns_add_u32 {st}, {st}, {h}\ns_and_b32 {st1}, {st}, 1\ns_lshl_b32 {st1}, {st1}, 3\ns_lshr_b32 {st}, {st}, 1\ns_lshl_b32 {st}, {st}, 12')
        k(f's_add_u32 {st}, {st}, {st1}\nv_add_u32 {aH[h]}, {st}, {aHr[0]}')
    GC = [RB.sub(8 + 3 * i, 3) for i in range(4)]
    gt = RB.sub(0, 8); hp = [RB.sub(20, 2), RB.sub(22, 2)]
    def gelu_ops(a, ah):
        out = []
        for t_ in range(4):
            c = GC[t_]; x = [a[4 * t_ + e] for e in range(4)]; u = [gt[4 * (t_ & 1) + e] for e in range(4)]; o = hp[t_ & 1]
            out += [f'v_mul_f32 {u[e]}, {x[e]}, {x[e]}' for e in range(4)]
            out += [f'v_fma_f32 {u[e]}, {u[e]}, {c[1]}, {c[0]}' for e in range(4)]
            out += [f'v_mul_f32 {u[e]}, {u[e]}, {x[e]}' for e in range(4)]
            out += [f'v_exp_f32 {u[e]}, {u[e]}' for e in range(4)]
            out += [f'v_fma_f32 {u[e]}, {u[e]}, {c[2]}, {c[2]}' for e in range(4)]
            out += [f'v_rcp_f32 {u[e]}, {u[e]}' for e in range(4)]
            out += [f'v_mul_f32 {u[e]}, {u[e]}, {x[e]}' for e in range(4)]
            out += [f'v_cvt_pk_bf16_f32 {o[0]}, {u[0]}, {u[1]}', f'v_cvt_pk_bf16_f32 {o[1]}, {u[2]}, {u[3]}']
            out.append(f'ds_write_b64 {ah}, {o} offset:{1024 * t_}')
        return out
    def cost(x_):
        if isinstance(x_, tuple): return x_[0]
        return 2 if x_.startswith(('v_exp', 'v_rcp', 'ds_write')) else 1
    def emit(x_):
        if isinstance(x_, tuple): x_[1]()
        elif x_.startswith('ds_'): lg.op(x_)
        elif x_.startswith('buffer_'): vm.op(x_)
        else: k(x_)
    wid = {}; nw = {}; due = []
    def refill(r_):
        ks = due.pop(); nw[r_, ks] = vm.op(wld(r_, ks))
    def tile(a, r_, fill, steps=range(18), lead=2, pre=None, post=None, per_step=0, rate=None, load=True, at=None):
        steps = list(steps); nm = 4 * len(steps); n_ = 0; fill = list(fill); at = at or {}
        total = len(steps) * (1.5 + per_step) + sum(cost(x_) for x_ in fill)
        rate = rate or total / nm
        cum = 0
        for i in steps:
            ks = PI[i]
            if i in at: fill += at[i]; cum = max(cum, rate * n_ - 1)
            if pre: pre(i)
            if i % 2 == 0:
                n0 = len(k.l); vm.wait(max(wid.get((r_, PI[j]), 0) for j in (i, i + 1))); cum += len(k.l) - n0
            for t_ in range(4):
                k(f'{MF} {a.sub(4 * t_, 4)}, {W[r_].sub(4 * ks, 4)}, {xf(ks, t_)}, {"0" if i == 0 else a.sub(4 * t_, 4)}')
                n_ += 1
                nxt = 0
                if t_ == 0 and due: refill(r_); cum += 1
                if t_ == 3:
                    if load: due.append(ks)
                    if post: post(i)
                    cum += per_step
                    nxt = i % 2
                while n_ >= lead and fill and cum + nxt + cost(fill[0]) / 2 <= rate * n_: cum += cost(fill[0]); emit(fill.pop(0))
        for x_ in fill: emit(x_)
        if steps[-1] == 17 and due: refill(r_)
        if steps[-1] == 17: wid.update(nw); nw.clear()
    def frag_reads(base, i):
        ks = PI[i]
        return [lg.op(f'ds_read_b128 {xf(ks, t_)}, {base[ks // 9]} offset:{(ks % 9) * 4096 + 1024 * t_}') for t_ in range(4)]
    nxt_tile = lambda: k(f's_add_u32 {sn}, {sn}, 18432')
    rd = {}
    XB = {0: 2, 1: 6, 5: 11, 10: 17}
    def pre0(i):
        if i in XB: vm.wait(ixd[XB[i]]); k('s_barrier')
        if i == 0:
            for j in (0, 1): rd[j] = frag_reads(aX, j)
        if i + 2 < 18: rd[i + 2] = frag_reads(aX, i + 2)
        lg.wait(rd[i][3])
    todo = [(0, lambda ks=ks: xdma(ks)) for ks in PI[7:]]
    todo += [(i, lambda ks=PI[i]: wid.__setitem__((0, ks, 'n'), vm.op(wld(0, ks)))) for i in range(18)]
    def post0(i):
        for _ in range(18 if i == 17 else 4 if i < 3 else 3):
            if todo and todo[0][0] <= i: todo.pop(0)[1]()
        if i == 10:
            for j in range(6): idv['p'] = lg.op(f'ds_read2_b32 {t.sub(2 * j, 2)}, {pa} offset0:{32 * j} offset1:{32 * j + 16}')
    class Rec:
        def __init__(self): self.l = []
        def __call__(self, x_): self.l += x_.split('\n')
    rec = Rec()
    for e in (0, 4, 8): rec(f'v_add_f32 {t[e]}, {t[e]}, {t[e + 2]}\nv_add_f32 {t[e + 1]}, {t[e + 1]}, {t[e + 3]}')
    for e in (4, 8): rec(f'v_add_f32 {t[0]}, {t[0]}, {t[e]}\nv_add_f32 {t[1]}, {t[1]}, {t[e + 1]}')
    sigma_bf16(rec, t[0], t[1])
    rec(f'v_cvt_pk_bf16_f32 {t[1]}, {t[1]}, {t[1]}\nv_and_b32 {t[1]}, 0xffff0000, {t[1]}\nv_lshlrev_b32 {t[2]}, 2, {m}')
    c1 = [(1, lambda: lg.wait(idv['p']))] + rec.l
    c1 += [(1, lambda i=i: idv.__setitem__('b', lg.op(f'ds_bpermute_b32 {t[4 + i]}, {t[2]}, {t[1]} offset:{64 * i}'))) for i in range(4)]
    rec = Rec()
    for i in range(4): gelu_consts(rec, t[4 + i], GC[i])
    c2 = [(1, lambda: lg.wait(idv['b']))] + [rec.l[6 * i + j] for j in range(6) for i in range(4)]
    tile(acc[0], 0, [], pre=pre0, post=post0, load=False, rate=2.0, at={12: c1, 16: c2})
    assert not todo
    for ks in range(18): wid[0, ks] = wid.pop((0, ks, 'n'))
    nxt_tile()
    STAMP(8)
    fa_ = k.v(); xc = k.v(3, 1)
    k(f's_lshl_b32 {st}, {fs}, 7\nv_mov_b32 {fa_}, {st}')
    def check(idl, val, tgt, vaddr, base):
        ok = k.label('up'); d0 = None
        vm.wait(idl)
        k(f'v_cmp_gt_u32 vcc, {tgt}, {val}\ns_cmp_eq_u64 vcc, 0\ns_cbranch_scc1 {ok}')
        d0 = vm.done; poll(vaddr, base, tgt, fv=val); vm.done = d0
        k(f'{ok}:')
    rd = {}
    for tt in range(1, 9):
        fill = gelu_ops(acc[1 - (tt & 1)], aH[1 - (tt & 1)]) + [f'v_add_u32 {aH[1 - (tt & 1)]}, 4096, {aH[1 - (tt & 1)]}']
        if tt == 4: k(f's_mov_b32 {st}, {O_FW}'); ifw = vm.op(f'buffer_load_dword {pa}, {fa_}, {Rws}, {st} offen sc1')
        if tt == 1:
            k(f's_lshr_b32 {so}, {fs}, 1\ns_mul_i32 {so}, {so}, 9\ns_and_b32 {st1}, {fs}, 1\ns_lshl_b32 {st1}, {st1}, 11\ns_lshr_b32 {sm}, {s_w}, 1\ns_lshl_b32 {sm}, {sm}, 8\ns_add_u32 {st1}, {st1}, {sm}')
            k(f's_and_b32 {sm}, {s_w}, 1\ns_lshl_b32 {sm}, {sm}, 3\ns_add_u32 {st1}, {st1}, {sm}\nv_lshrrev_b32 {xc[2]}, 1, {q}\nv_lshl_add_u32 {xc[0]}, {xc[2]}, 10, {st1}')
            k(f'v_lshl_add_u32 {xc[0]}, {m}, 4, {xc[0]}\nv_and_b32 {xc[2]}, 1, {q}\nv_lshl_add_u32 {xc[2]}, {xc[2]}, 2, {xc[0]}')
            for h in range(2):
                k(f's_add_u32 {st}, {so}, {h}\ns_and_b32 {sm}, {st}, 1\ns_lshl_b32 {sm}, {sm}, 9\ns_lshr_b32 {st}, {st}, 1\ns_lshl_b32 {st}, {st}, 12\ns_add_u32 {st}, {st}, {sm}\nv_add_u32 {xc[h]}, {st}, {xc[2]}')
            k(f's_mul_i32 {st}, {s_w}, 2304\ns_add_u32 {st}, {st}, {X1C}\nv_lshl_add_u32 {xc[2]}, {lane}, 2, {st}')
        if 1 <= tt <= 3:
            for t_ in range(3 * tt - 3, 3 * tt):
                def cp(t_=t_): idv['x'] = lg.op(f'ds_read_b32 {pa}, {xc[t_ & 1]} offset:{4096 * (t_ >> 1)}')
                def wr(t_=t_): lg.wait(idv['x']); lg.op(f'ds_write_b32 {xc[2]}, {pa} offset:{256 * t_}')
                n_ = 20 + 33 * (t_ % 3)
                fill[n_:n_] = [(1, cp)]; fill[n_ + 20:n_ + 20] = [(2, wr)]
        if tt == 7: check(ifw, pa, 36, fa_, O_FW); k(f's_mov_b32 {sn}, {s4}')
        if tt in (1, 4, 7, 8): STAMP({1: 1, 4: 2, 7: 3, 8: 4}[tt], 'g3st')
        if tt < 8: tile(acc[tt & 1], tt & 1, fill)
        else:
            lg.all(); k('s_barrier')
            def post8(i):
                if i < 12: rd[i] = frag_reads(aHr, i)
            tile(acc[0], 0, fill, post=post8, per_step=2.7)
        nxt_tile()
    STAMP(9)
    k('s_waitcnt lgkmcnt(0)\ns_barrier'); lg.reset()
    for j in (12, 13): rd[j] = frag_reads(aHr, j)
    tile(acc[1], 1, gelu_ops(acc[0], aH[0]), steps=range(14), pre=lambda i: lg.wait(rd[i][3]) if i >= 12 else None, lead=1)
    lg.all(); k('s_barrier')
    for j in range(14, 18): rd[j] = frag_reads(aHr, j)
    tile(acc[1], 1, [], steps=range(14, 18), pre=lambda i: lg.wait(rd[i][3]))
    Rout = k.s(4)
    sp = k.s(); sq = k.s(); sf = k.s(); T0 = k.s(); sl_ = k.s(); po = [gt.sub(0, 4), gt.sub(4, 4)]
    aP, aR, aO = GC[0][0], GC[0][1], GC[0][2]; aL, aLr, aLg = GC[1][0], GC[1][1], GC[1][2]; aOw, aOr = GC[2][0], GC[2][1]; fv = pa; fpa = fa_
    u0, u1, u2 = hp[0][0], hp[0][1], hp[1][0]
    OUTB = 4 * 28672
    setup = f"""s_mov_b32 {Rout[0]}, {P['out'][0]}
s_mov_b32 {Rout[1]}, {P['out'][1]}
s_mov_b32 {Rout[2]}, {L * D * 2}
s_mov_b32 {Rout[3]}, 0x20000
s_lshl_b32 {st}, {fs}, 13
s_mul_i32 {sq}, {mb}, {9 * 65536}
s_add_u32 {sq}, {sq}, {st}
s_add_u32 {sq}, {sq}, {O_PART}
s_mul_i32 {sf}, {mb}, 36
s_lshr_b32 {T0}, {fs}, 1
s_add_u32 {st}, {sf}, {T0}
s_lshl_b32 {st}, {st}, 7
v_mov_b32 {fpa}, {st}
s_add_u32 {sf}, {sf}, {s_w}
s_lshl_b32 {sf}, {sf}, 7
s_add_u32 {sf}, {sf}, {O_FP}
s_mul_i32 {T0}, {T0}, 9
s_lshl_b32 {st}, {s_w}, 8
v_lshl_add_u32 {u0}, {m}, 4, {st}
v_lshl_add_u32 {aP}, {q}, 10, {u0}
v_and_b32 {u1}, 1, {q}
v_lshrrev_b32 {u2}, 1, {q}
v_lshl_add_u32 {u0}, {u2}, 4, {m}
v_lshlrev_b32 {aR}, 4, {u0}
v_lshl_add_u32 {aR}, {u1}, 2, {aR}
s_and_b32 {so}, {fs}, 1
s_lshl_b32 {st}, {mb}, 1
s_add_u32 {so}, {so}, {st}
s_lshl_b32 {so}, {so}, 9
s_lshl_b32 {st}, {s_w}, 15
s_add_u32 {so}, {so}, {st}
s_and_b32 {st}, {s_w}, 1
s_lshl_b32 {st}, {st}, 3
s_add_u32 {so}, {so}, {st}
v_add_u32 {aR}, {so}, {aR}
s_mul_i32 {sl_}, {s_w}, 28672
v_add_u32 {aL}, {sl_}, {l16}
v_lshl_add_u32 {aLr}, {lane}, 2, {sl_}
s_lshl_b32 {st}, {s_w}, 4
s_add_u32 {st}, {st}, {sl_}
v_lshl_add_u32 {aLg}, {u1}, 3, {st}
v_mul_u32_u24 {aOw}, 304, {u0}
v_lshl_add_u32 {aOw}, {u1}, 2, {aOw}
s_lshl_b32 {st}, {s_w}, 3
s_add_u32 {st}, {st}, {OUTB}
v_add_u32 {aOw}, {st}, {aOw}""".split('\n')
    k(f's_mul_i32 {sp}, {mb}, {9 * 65536}\ns_lshl_b32 {st}, {s_w}, 14\ns_add_u32 {sp}, {sp}, {st}\ns_lshl_b32 {st}, {fs}, 10\ns_add_u32 {sp}, {sp}, {st}\ns_add_u32 {sp}, {sp}, {O_PART}')
    for x_ in (aHr[0], aHr[1], aH[0], aH[1], aX[1]): x_.release()
    ids = {}
    def S(t_, a, p):
        out = [f'v_cvt_pk_bf16_f32 {po[p][e]}, {a[8 * p + 2 * e]}, {a[8 * p + 2 * e + 1]}' for e in range(4)]
        out.append((1, lambda: ids.__setitem__(('S', t_), 0 if 'nopart' in opt else vm.op(f'buffer_store_dwordx4 {po[p]}, {vo[2 * p]}, {Rws}, {sp} offen {PFL}'))))
        return out + ([f's_add_u32 {sp}, {sp}, 65536'] if p else [])
    def G(t_):
        def f():
            if t_ == 8: k(f's_add_u32 {sf}, {sf}, 4096')
            vm.wait(ids['S', t_]); k('s_mov_b64 exec, 1')
            vm.op(f'buffer_atomic_add {one}, {zero}, {Rws}, {sf} offen offset:{512 * (t_ % 8)} sc1')
            k('s_mov_b64 exec, -1')
        return [(4, f)]
    def Lf(t_): return [f's_mov_b32 {st1}, {O_FP + 512 * t_}', (1, lambda: ids.__setitem__(('L', t_), vm.op(f'buffer_load_dword {fv}, {fpa}, {Rws}, {st1} offen sc1')))]
    def dma(lds, va, soff): return [f's_add_u32 m0, {sl_}, {lds}', (1, lambda: ids.__setitem__('d', vm.op(f'buffer_load_dwordx4 {va}, {Rws}, {soff} offen sc1 lds')))]
    def C(t_):
        return (dma(3072 * t_, aP, sq) + [f's_add_u32 {st}, {sq}, 4096'] + dma(3072 * t_ + 1024, aP, st) + [f's_add_u32 {sq}, {sq}, 65536']
                + [(0, lambda: ids.__setitem__(('C', t_), ids['d']))])
    def RS(t_): return [f's_add_u32 {st}, {T0}, {t_}', f's_lshl_b32 {st}, {st}, 17', f's_add_u32 {st}, {st}, {O_X2}', f's_add_u32 m0, {sl_}, {3072 * t_ + 2048}',
                        f'buffer_load_dword {aR}, {Rws}, {st} offen sc1 lds']
    def CK(t_): return [(4, lambda: check(ids['L', t_], fv, 8, fpa, O_FP + 512 * t_))]
    def R(t_, Dr, v):
        A_, B_, r_, g_ = Dr
        def rd_():
            vm.wait(ids['C', t_])
            lg.op(f'ds_read_b128 {A_}, {aL} offset:{3072 * t_}'); lg.op(f'ds_read_b128 {B_}, {aL} offset:{3072 * t_ + 1024}')
            lg.op(f'ds_read_b32 {r_[0]}, {aLr} offset:{3072 * t_ + 2048}'); lg.op(f'ds_read_b32 {r_[1]}, {xc[2]} offset:{256 * t_}'); ids['r', t_] = lg.op(f'ds_read_b64 {g_}, {aLg} offset:{27648 + 64 * t_}')
        out = [(1, lambda: lg.wait(ids['r', t_]))]
        for d in range(4): out += [f'v_lshlrev_b32 {v[2 * d]}, 16, {A_[d]}', f'v_lshlrev_b32 {v[2 * d + 1]}, 16, {B_[d]}']
        for d in range(4): out += [f'v_and_b32 {A_[d]}, 0xffff0000, {A_[d]}', f'v_add_f32 {v[2 * d]}, {v[2 * d]}, {v[2 * d + 1]}', f'v_and_b32 {B_[d]}, 0xffff0000, {B_[d]}']
        out += [f'v_add_f32 {v[2 * d + 1]}, {A_[d]}, {B_[d]}' for d in range(4)]
        out += [f'v_permlane32_swap_b32 {v[e]}, {v[e + 4]}' for e in (0, 2, 1, 3)]
        out += [f'v_add_f32 {v[e]}, {v[e]}, {v[e + 4]}' for e in (0, 2, 1, 3)]
        out += [un(v[4 + e], r_[e >> 1], e & 1) for e in (2, 3)]
        out += [f'v_permlane16_swap_b32 {v[e]}, {v[e + 2]}' for e in range(2)]
        out += [un(v[4 + e], r_[e >> 1], e & 1) for e in (0, 1)]
        out += [f'v_add_f32 {v[e]}, {v[e]}, {v[e + 2]}' for e in range(2)]
        out += [f'v_add_f32 {v[e]}, {v[e]}, {v[e + 6]}' for e in range(2)]
        out += [f'v_fma_f32 {v[e]}, {v[e]}, {g_[e]}, {v[4 + e]}' for e in range(2)]
        out += [f'v_cvt_pk_bf16_f32 {v[4]}, {v[0]}, {v[1]}', f'ds_write_b32 {aOw}, {v[4]} offset:{32 * t_}']
        return [(6, rd_)], out
    SPOS = 9
    for tt in range(1, 9):
        nxt_tile()
        a_ = acc[tt & 1]
        at = {0: S(tt - 1, a_, 0), SPOS: S(tt - 1, a_, 1)}
        add = lambda i, ops: at.__setitem__(i, at.get(i, []) + ops)
        if tt == 1: add(2, setup)
        if tt == 2:
            k('s_barrier')
            add(2, [f's_lshl_b32 {st}, {T0}, 6', f's_add_u32 {st}, {st}, {O_MOD2 + 4608}'] + dma(27648, l16, st))
        if 2 <= tt <= 6: add(4, RS(2 * tt - 4) + (RS(2 * tt - 3) if tt < 6 else []))
        if 'sB' in opt:
            if tt in (3, 5, 6, 7, 8): add(6, G(tt - 2))
            if tt in (4, 6, 7, 8): add(15, Lf(tt - 3))
            if tt in (5, 7): add(12, CK(tt - 4) + C(tt - 5) + C(tt - 4))
            if tt == 8: add(12, CK(4) + C(4))
        elif 'sC' in opt:
            if tt in (4, 6, 7, 8): add(6, G(tt - 2))
            if tt in (6, 7, 8): add(15 if tt > 6 else 8, Lf({6: 2, 7: 4, 8: 5}[tt]))
            if tt == 7: add(1, CK(2) + C(0) + C(1) + C(2))
            if tt == 8: add(12, CK(4) + C(3) + C(4))
        else:
            if tt >= 2: add(6, G(tt - 2))
            if tt >= 4: add(12, CK(tt - 4) + C(tt - 4))
            if tt >= 3: add(15, Lf(tt - 3))
        if tt in (1, 4, 7, 8): STAMP({1: 1, 4: 2, 7: 3, 8: 4}[tt], 'g4st')
        tile(acc[1 - (tt & 1)], 1 - (tt & 1), [], rate=2.0, at=at, load=tt < 7)
    STAMP(10)
    XV.release()
    Dn = [[k.v(4, 2), k.v(4, 2), k.v(2), k.v(2)] for _ in range(9)]; v2 = k.v(8, 2)
    RR = [R(t_, Dn[t_], v2) for t_ in range(9)]
    seq = S(8, acc[1], 0) + S(8, acc[1], 1) + G(7) + CK(5) + C(5) + Lf(6)
    for t_ in range(3): seq += RR[t_][0]
    seq += RR[0][1] + G(8) + RR[1][1] + CK(6) + C(6) + Lf(7) + RR[3][0] + RR[4][0] + RR[2][1] + RR[3][1] + CK(7) + C(7) + Lf(8) + RR[5][0] + RR[4][1] + RR[5][1]
    for x_ in seq: emit(x_)
    u = k.v(3)
    k(f'v_mul_u32_u24 {u[0]}, 3641, v0\nv_lshrrev_b32 {u[0]}, 16, {u[0]}\nv_mul_u32_u24 {u[1]}, 18, {u[0]}\nv_sub_u32 {u[1]}, v0, {u[1]}\nv_lshlrev_b32 {u[1]}, 4, {u[1]}')
    k(f'v_mul_u32_u24 {aOr}, 304, {u[0]}\nv_add_u32 {aOr}, {aOr}, {u[1]}\nv_add_u32 {aOr}, {OUTB}, {aOr}\nv_mul_u32_u24 {aO}, 1152, {u[0]}\nv_add_u32 {aO}, {aO}, {u[1]}')
    k(f's_lshl_b32 {st}, {mb}, 1\ns_and_b32 {so}, {fs}, 1\ns_add_u32 {so}, {so}, {st}\ns_mul_i32 {so}, {so}, {32 * 1152}\ns_lshl_b32 {st}, {T0}, 5\ns_add_u32 {so}, {so}, {st}')
    for x_ in CK(8): emit(x_)
    STAMP(11)
    for x_ in C(8) + RR[6][0] + RR[7][0] + RR[6][1] + RR[7][1] + RR[8][0] + RR[8][1]: emit(x_)
    lg.all(); k('s_barrier')
    o4 = [Dn[0][0], Dn[0][1], Dn[1][0]]
    k(f'v_cmp_gt_u32 vcc, 252, v0\ns_and_b64 exec, exec, vcc')
    io = [lg.op(f'ds_read_b128 {o4[i]}, {aOr} offset:{14 * 304 * i}') for i in range(3)]
    for i in range(3):
        if i == 2: k(f's_cmp_ge_u32 {s_w}, 2\ns_cbranch_scc1 {END}\nv_cmp_gt_u32 vcc, 72, v0\ns_and_b64 exec, exec, vcc')
        lg.wait(io[i])
        k(f'buffer_store_dwordx4 {o4[i]}, {aO}, {Rout}, {so} offen')
        if i < 2: k(f's_add_u32 {so}, {so}, {14 * 1152}')
    STAMP(12)
```

```python
from common import *

N_SIG = 64 + 45
BUF0, BUF1, SVEC = 0, 73728, 147456
K1_LDS = 147456 + 2560
SPIN_MAX = 40000

def vmaps():
    maps = [list(range(16))]
    for s in (1, 2, 3):
        m = list(maps[-1]); step = 1 << s
        new = [step * i for i in range(8, 16)]
        for j in range(16):
            if m[j] % step: m[j] = new.pop(0)
        assert not new
        maps.append(m)
    return maps

def service(k, P, lane, s_w, END, NEXT, SP, opt=()):
    vm, lg = trackers(k)
    Rws = k.s(4); Rdbg = k.s(4); RA = k.s(4); RB = k.s(4)
    srd(k, Rws, P['ws'], WS_USED); srd(k, Rdbg, P['dbg'], 256)
    z4 = k.v(4, 4); zero = z4.sub(0, 2); one = k.v(); l16 = k.v(); q = k.v(); m = k.v()
    fr = k.v(72, 4); sv = k.v(72, 4); acc = k.v(4, 4)
    sav = k.s(2); st = k.s(); cnt = k.s()
    jb = k.s(); modeB = k.s(); blkB = k.s(); srcB = k.s(); strB = k.s()
    L_mod, L_B, L_C = k.label('mod'), k.label('jobB'), k.label('jobC')
    k(f'v_lshrrev_b32 {q}, 4, {lane}\nv_and_b32 {m}, 15, {lane}\nv_lshlrev_b32 {l16}, 4, {lane}')
    cjs = {}
    def common():
        for i in range(4): k(f'v_mov_b32 {z4[i]}, 0')
        k(f'v_mov_b32 {one}, 1\ns_mov_b32 {cnt}, 0')
        k(f's_add_u32 {jb}, s2, 32\ns_sub_u32 {blkB}, s2, 64\ns_cmp_ge_u32 s2, 64\ns_cselect_b32 {jb}, {blkB}, {jb}')
        k(f's_cmp_ge_u32 s2, 96\ns_cselect_b32 {jb}, 200, {jb}\ns_sub_u32 {blkB}, s2, 7\ns_cmp_ge_u32 s2, 103\ns_cselect_b32 {jb}, {blkB}, {jb}')
        srd(k, RB, P['wmod'], D * 3456 * 2)
        k(f's_mov_b32 {modeB}, 0\ns_cmp_ge_u32 {jb}, 6\ns_cselect_b32 {blkB}, 39, 30\ns_add_u32 {blkB}, {blkB}, {jb}\ns_mov_b32 {strB}, 6912')
        for mode, lo, ptr, nb, st_ in ((2, 15, 'w2', D * D * 2, 1152), (3, 24, 'w3', D * F * 2, 9216), (1, 96, 'w1', D * D * 2, 1152)):
            k(f's_sub_u32 {srcB}, {jb}, {lo}\ns_cmp_ge_u32 {jb}, {lo}')
            k(f's_cselect_b32 {blkB}, {srcB}, {blkB}\ns_cselect_b32 {modeB}, {mode}, {modeB}\ns_cselect_b32 {strB}, {st_}, {strB}')
            k(f's_cselect_b32 {RB[0]}, {P[ptr][0]}, {RB[0]}\ns_cselect_b32 {RB[1]}, {P[ptr][1]}, {RB[1]}\ns_cselect_b32 {RB[2]}, {nb}, {RB[2]}')
        k(f's_lshl_b32 {srcB}, {blkB}, 7')
    def signal(off, last):
        sk = k.label('notlast')
        k(f's_mov_b64 exec, 1\nv_mov_b32 {acc[0]}, 1\nbuffer_atomic_add {acc[0]}, {zero[0]}, {Rdbg}, {off} offen offset:64 sc0 sc1\ns_waitcnt vmcnt(0)')
        k(f'v_readfirstlane_b32 {st}, {acc[0]}\ns_cmp_lg_u32 {st}, {last}\ns_cbranch_scc1 {sk}')
        k(f'buffer_store_dword {one}, {zero[0]}, {Rdbg}, {off} offen offset:192 sc1\n{sk}:\ns_mov_b64 exec, -1')
    cj = ColJob(k, vm, lg, lane, s_w)
    L_w1 = k.label('w1')
    k(f's_cmp_ge_u32 s2, 103\ns_cbranch_scc1 {L_w1}\ns_cmp_ge_u32 s2, 64\ns_cbranch_scc1 {L_mod}')

    srd(k, RA, P['u'], L * D * 2)
    va = k.v(); vx = k.v(2); t = k.v(6); row = k.v(); s1 = k.s()
    k(f's_and_b32 {st}, {s_w}, 1\ns_lshl_b32 {s1}, s2, 1\ns_add_u32 {st}, {st}, {s1}\ns_lshl_b32 {st}, {st}, 4')
    k(f'v_and_b32 {t[0]}, 7, {m}\nv_lshrrev_b32 {t[2]}, 3, {m}\nv_lshl_add_u32 {t[5]}, {t[0]}, 1, {t[2]}\nv_add_u32 {row}, {st}, {t[5]}')
    k(f's_lshr_b32 {s1}, {s_w}, 1\ns_mul_i32 {st}, {s1}, 576\nv_mul_u32_u24 {va}, 1152, {row}\nv_lshl_add_u32 {va}, {q}, 4, {va}')
    for i in range(4): k(f'v_mov_b32 {z4[i]}, 0')
    k(f's_lshl_b32 {sav[0]}, s2, 8\ns_add_u32 {sav[0]}, {sav[0]}, {O_STATS}\ns_cmp_eq_u32 {s_w}, 0\ns_cselect_b32 {sav[0]}, {sav[0]}, {WS_USED}\ns_mov_b64 exec, 0xffff')
    k(f'buffer_store_dwordx4 {z4}, {l16}, {Rws}, {sav[0]} offen sc1\ns_mov_b64 exec, -1')
    k(f's_or_b32 {sav[0]}, s2, {s_w}\ns_cmp_eq_u32 {sav[0]}, 0\ns_mov_b32 {sav[0]}, {O_FW}\ns_cselect_b32 {sav[0]}, {sav[0]}, {WS_USED}')
    k(f'buffer_store_dwordx4 {z4}, {l16}, {Rws}, {sav[0]} offen sc1\nbuffer_store_dwordx4 {z4}, {l16}, {Rws}, {sav[0]} offen offset:1024 sc1')
    ix = [vm.op(f'buffer_load_dwordx4 {fr.sub(4 * i, 4)}, {va}, {RA}, {st} offen offset:{64 * i}' + (' nt' if 'ntx' in opt else '')) for i in range(9)]
    pf = k.v(2); pfs = k.s(2)
    common()
    ones = sv.sub(40, 4); gacc = sv.sub(36, 4); arr = sv[44]; msk = [k.s(2) for _ in range(3)]
    sk = k.label('noarr')
    k(f's_cmp_lg_u32 {s_w}, 0\ns_cbranch_scc1 {sk}\ns_mov_b64 exec, 1\nv_mov_b32 {arr}, 1\ns_waitcnt vmcnt(9)\nbuffer_atomic_add {arr}, {zero[0]}, {Rdbg}, 0 offen offset:64 sc0 sc1\ns_mov_b64 exec, -1\n{sk}:')
    for i in range(4): k(f'v_mov_b32 {ones[i]}, 0x3f803f80')
    k(f'v_and_b32 {t[0]}, 3, {m}')
    for e in range(3): k(f'v_cmp_eq_u32 {msk[e]}, {e + 1}, {t[0]}')
    k(f's_lshl_b32 {st}, {s_w}, 8\ns_add_u32 {st}, {st}, {SVEC}\nv_lshl_add_u32 {t[3]}, {t[5]}, 2, {st}\nv_lshrrev_b32 {t[0]}, 2, {m}\nv_cmp_eq_u32 vcc, {t[0]}, {q}')
    k(f'v_add_u32 {t[4]}, 128, {t[3]}\nv_add_u32 {t[5]}, 192, {t[3]}\nv_cndmask_b32 {t[4]}, {t[5]}, {t[4]}, vcc')
    k(f'v_lshrrev_b32 {t[0]}, 3, {m}\nv_lshl_add_u32 {t[1]}, {q}, 1, {t[0]}\nv_lshlrev_b32 {vx[0]}, 14, {t[1]}\nv_sub_u32 {t[1]}, {row}, {t[0]}\nv_lshl_add_u32 {vx[0]}, {t[1]}, 3, {vx[0]}')
    k(f's_mul_i32 {s1}, {s1}, {9 * 131072}\ns_add_u32 {s1}, {s1}, {O_XT}\nv_cmp_eq_u32 vcc, 0, {t[0]}')
    dp = 'row_ror:8 row_mask:0xf bank_mask:0xf'
    for i in range(9):
        vm.wait(ix[i])
        if i == 0: SP(8)
        r_ = fr.sub(4 * i, 4); o = sv.sub(4 * i, 4)
        k(f'v_mfma_f32_16x16x32_bf16 {acc}, {ones}, {r_}, {"0" if i == 0 else acc}')
        k(f'v_cndmask_b32_dpp {o[0]}, {r_[2]}, {r_[0]}, vcc {dp}\nv_cndmask_b32_dpp {o[1]}, {r_[3]}, {r_[1]}, vcc {dp}\ns_not_b64 vcc, vcc')
        k(f'v_mfma_f32_16x16x32_bf16 {gacc}, {r_}, {r_}, {"0" if i == 0 else gacc}')
        k(f'v_cndmask_b32_dpp {o[2]}, {r_[0]}, {r_[2]}, vcc {dp}\nv_cndmask_b32_dpp {o[3]}, {r_[1]}, {r_[3]}, vcc {dp}\ns_not_b64 vcc, vcc')
        vm.op(f'buffer_store_dwordx4 {o}, {vx[0]}, {Rws}, {s1} offen sc1')
        if i < 8: k(f's_add_u32 {s1}, {s1}, 131072')
    SP(10)
    k(f'v_cndmask_b32 {t[0]}, {gacc[0]}, {gacc[1]}, {msk[0]}\nv_cndmask_b32 {t[0]}, {t[0]}, {gacc[2]}, {msk[1]}\nv_cndmask_b32 {t[0]}, {t[0]}, {gacc[3]}, {msk[2]}')
    k(f'ds_write_b32 {t[3]}, {acc[0]}\nds_write_b32 {t[4]}, {t[0]}\ns_waitcnt lgkmcnt(0)\ns_barrier')
    a, b = k.label('notw0'), k.label('sigd')
    k(f's_cmp_lg_u32 {s_w}, 0\ns_cbranch_scc1 {a}')
    k(f'v_and_b32 {t[1]}, 1, {q}\nv_lshlrev_b32 {t[1]}, 8, {t[1]}\nv_lshl_add_u32 {t[1]}, {m}, 2, {t[1]}\nv_add_u32 {t[1]}, {SVEC}, {t[1]}')
    k(f'ds_read2_b32 {t[2:4]}, {t[1]} offset0:0 offset1:32\nds_read2_b32 {t[4:6]}, {t[1]} offset0:128 offset1:160')
    sk = k.label('notlast')
    k(f's_waitcnt vmcnt(9)\nv_readfirstlane_b32 {st}, {arr}\ns_cmp_lg_u32 {st}, 102\ns_cbranch_scc1 {sk}')
    k(f's_mov_b64 exec, 1\nbuffer_store_dword {one}, {zero[0]}, {Rdbg}, 0 offen offset:192 sc1\ns_mov_b64 exec, -1\n{sk}:\ns_waitcnt lgkmcnt(0)')
    k(f'v_add_f32 {t[0]}, {t[2]}, {t[4]}\nv_add_f32 {t[2]}, {t[3]}, {t[5]}')
    sigma_bf16(k, t[0], t[2])
    k(f'v_cvt_pk_bf16_f32 {t[2]}, {t[0]}, {t[2]}\nv_mov_b32 {t[3]}, 1\nv_lshlrev_b32 {t[1]}, 3, {lane}\ns_lshl_b32 {st}, s2, 8\ns_add_u32 {st}, {st}, {O_STATS}')
    k(f'{a}:'); SP(14); k('s_waitcnt vmcnt(0)\ns_barrier'); vm.reset()
    k(f's_cmp_lg_u32 {s_w}, 0\ns_cbranch_scc1 {b}')
    k(f's_mov_b32 exec_hi, 0\nbuffer_store_dwordx2 {t[2:4]}, {t[1]}, {Rws}, {st} offen sc1\ns_mov_b64 exec, -1')
    k(f'{b}:'); SP(9)
    for x_ in msk: x_.release()
    cj.dma(RB, srcB, strB, BUF1, 'nt3' in opt)
    k(f's_lshl_b32 {st}, s2, 2\ns_add_u32 {st}, {st}, {s_w}\ns_lshl_b32 {st}, {st}, 10')
    k(f's_cmp_eq_u32 s2, {O_FW // 4096}\ns_cselect_b32 {st}, {WS_USED}, {st}\nbuffer_store_dwordx4 {z4}, {l16}, {Rws}, {st} offen sc1')
    sk = k.label('nopad')
    k(f's_cmp_lg_u32 {s_w}, 2\ns_cbranch_scc1 {sk}\ns_cmp_ge_u32 s2, 36\ns_cbranch_scc1 {sk}\ns_lshr_b32 {st}, s2, 1\ns_mul_i32 {st}, {st}, {GPL}\ns_bitcmp1_b32 s2, 0\ns_cselect_b32 {sav[0]}, {129 * 1024}, 0')
    k(f's_add_u32 {st}, {st}, {sav[0]}\ns_add_u32 {st}, {st}, {O_G}\nbuffer_store_dwordx4 {z4}, {l16}, {Rws}, {st} offen sc1\n{sk}:')
    k(f's_branch {L_B}')
    for x_ in (va, vx, t, row, s1): x_.release()

    def mod_tail(ids, s_blk, sig, gran=False):
        t = k.v(2); vg = k.v(); s1 = k.s()
        for s in range(18):
            if s % 2 == 0: lg.wait(ids[s + 1])
            k(f'v_mfma_f32_16x16x32_bf16 {acc}, {sv.sub(4 * s, 4)}, {fr.sub(4 * s, 4)}, {"0" if s == 0 else acc}')
        k(f's_lshl_b32 {s1}, {s_w}, 6\ns_add_u32 {s1}, {s1}, {SVEC + 2048}\nv_lshl_add_u32 {vg}, {m}, 2, {s1}')
        k(f'v_cvt_pk_bf16_f32 {t[0]}, {acc[0]}, {acc[0]}\nv_and_b32 {t[0]}, 0xffff0000, {t[0]}')
        k(f'v_add_f32 {t[1]}, 1.0, {t[0]}\nv_cvt_pk_bf16_f32 {t[1]}, {t[1]}, {t[1]}\nv_and_b32 {t[1]}, 0xffff0000, {t[1]}')
        k(f's_mov_b64 vcc, 0\ns_sub_u32 {s1}, {s_blk}, 9\ns_cmp_lt_u32 {s1}, 9\ns_cselect_b64 vcc, -1, vcc')
        k(f's_sub_u32 {s1}, {s_blk}, 36\ns_cmp_lt_u32 {s1}, 9\ns_cselect_b64 vcc, -1, vcc')
        k(f'v_cndmask_b32 {t[0]}, {t[0]}, {t[1]}, vcc\nds_write_b32 {vg}, {t[0]}\ns_waitcnt lgkmcnt(0)\ns_barrier'); lg.reset()
        a, b = k.label('notw0'), k.label('nob')
        k(f's_cmp_lg_u32 {s_w}, 0\ns_cbranch_scc1 {a}')
        k(f'v_lshlrev_b32 {vg}, 3, {lane}\nv_add_u32 {t[0]}, {SVEC + 2048}, {vg}\nds_read_b64 {t}, {t[0]}\ns_lshl_b32 {s1}, {s_blk}, 8\ns_add_u32 {s1}, {s1}, {O_MODF}')
        k(f's_mov_b32 exec_hi, 0')
        if gran:
            k(f's_lshl_b32 {sav[0]}, {s_blk}, 9\ns_add_u32 {sav[0]}, {sav[0]}, {O_MODG}\nv_mov_b32 {acc[1]}, 1\nv_mov_b32 {acc[3]}, 1\ns_waitcnt lgkmcnt(0)')
            k(f'v_mov_b32 {acc[0]}, {t[0]}\nv_mov_b32 {acc[2]}, {t[1]}\nbuffer_store_dwordx4 {acc}, {l16}, {Rws}, {sav[0]} offen sc1')
        k(f's_waitcnt lgkmcnt(0)\nbuffer_store_dwordx2 {t}, {vg}, {Rws}, {s1} offen sc1')
        if sig:
            k(f's_sub_u32 {s1}, {s_blk}, 27\ns_cmp_ge_u32 {s1}, 18\ns_cbranch_scc1 {b}')
            k(f'v_cvt_pk_bf16_f32 {acc[0]}, {t[0]}, {t[1]}\nv_lshrrev_b32 {vg}, 1, {vg}\ns_lshl_b32 {s1}, {s1}, 7\ns_add_u32 {s1}, {s1}, {O_MODB}')
            k(f'buffer_store_dword {acc[0]}, {vg}, {Rws}, {s1} offen sc1\n{b}:')
            k(f's_cmp_ge_u32 {s_blk}, 45\ns_cbranch_scc1 {a}\ns_sub_u32 {s1}, {s_blk}, 27\ns_cmp_lt_u32 {s1}, 9')
            k(f's_cselect_b32 {sav[0]}, 12, 4\ns_cselect_b32 {sav[1]}, 8, 35\ns_waitcnt vmcnt(0)')
            signal(sav[0], sav[1])
        k(f'{a}:\ns_mov_b64 exec, -1')
        t.release(); vg.release(); s1.release()

    k(f'{L_mod}:')
    vm, lg = trackers(k); cj.vm, cj.lg = vm, lg
    blkA = k.s(); srcA = k.s(); strA = k.s(); Rc = k.s(4)
    srd(k, RA, P['wmod'], D * 3456 * 2); srd(k, Rc, P['c'], D * 2)
    k(f's_sub_u32 {blkA}, s2, 64\ns_cmp_ge_u32 {blkA}, 27\ns_cselect_b32 {st}, 9, 0\ns_cmp_ge_u32 {blkA}, 36\ns_cselect_b32 {st}, -9, {st}\ns_add_u32 {blkA}, {blkA}, {st}')
    k(f's_lshl_b32 {srcA}, {blkA}, 7\ns_mov_b32 {strA}, 6912')
    t = k.v(8); vg = k.v()
    k(f'v_lshlrev_b32 {vg}, 3, v0')
    for i in range(4): k(f'v_mov_b32 {z4[i]}, 0')
    k(f's_lshl_b32 {st}, {blkA}, 9\ns_add_u32 {st}, {st}, {O_MODG}\ns_cmp_eq_u32 {s_w}, 0\ns_cselect_b32 {st}, {st}, {WS_USED}\ns_mov_b32 exec_hi, 0')
    icl = vm.op(f'buffer_store_dwordx4 {z4}, {l16}, {Rws}, {st} offen sc1')
    k('s_mov_b64 exec, -1')
    ic = vm.op(f'buffer_load_dwordx2 {t[0:2]}, {vg}, {Rc}, 0 offen')
    ia = cj.dma(RA, srcA, strA, BUF0, 'ntm' in opt)
    common()
    vm.wait(ic)
    sk = k.label('noarr')
    k(f's_cmp_lg_u32 {s_w}, 0\ns_cbranch_scc1 {sk}\ns_mov_b64 exec, 1\nv_mov_b32 {acc[1]}, 1\nbuffer_atomic_add {acc[1]}, {zero[0]}, {Rdbg}, 0 offen offset:64 sc0 sc1\ns_mov_b64 exec, -1\n{sk}:')
    k(f'v_lshlrev_b32 {t[2]}, 16, {t[0]}\nv_and_b32 {t[3]}, 0xffff0000, {t[0]}\nv_lshlrev_b32 {t[4]}, 16, {t[1]}\nv_and_b32 {t[5]}, 0xffff0000, {t[1]}')
    e = k.v(4)
    for i in range(4): k(f'v_mul_f32 {e[i]}, {fl(-LOG2E)}, {t[2 + i]}')
    for i in range(4): k(f'v_exp_f32 {e[i]}, {e[i]}')
    for i in range(4): k(f'v_add_f32 {e[i]}, 1.0, {e[i]}')
    for i in range(4): k(f'v_rcp_f32 {e[i]}, {e[i]}')
    for i in range(4): k(f'v_mul_f32 {e[i]}, {e[i]}, {t[2 + i]}')
    k(f'v_cvt_pk_bf16_f32 {t[0]}, {e[0]}, {e[1]}\nv_cvt_pk_bf16_f32 {t[1]}, {e[2]}, {e[3]}\nv_add_u32 {vg}, {SVEC}, {vg}')
    k(f'ds_write_b64 {vg}, {t[0:2]}\nv_lshlrev_b32 {vg}, 4, {q}\nv_add_u32 {vg}, {SVEC}, {vg}\ns_waitcnt lgkmcnt(0)\ns_barrier')
    for s in range(18): lg.op(f'ds_read_b128 {sv.sub(4 * s, 4)}, {vg} offset:{64 * s}')
    ad = cj.addr(BUF0)
    sk = k.label('notlast')
    k(f's_waitcnt vmcnt(0) lgkmcnt(0)\ns_cmp_lg_u32 {s_w}, 0\ns_cbranch_scc1 {sk}\nv_readfirstlane_b32 {st}, {acc[1]}\ns_cmp_lg_u32 {st}, 102\ns_cbranch_scc1 {sk}')
    k(f's_mov_b64 exec, 1\nbuffer_store_dword {one}, {zero[0]}, {Rdbg}, 0 offen offset:192 sc1\ns_mov_b64 exec, -1\n{sk}:\ns_barrier'); SP(10); vm.reset(); lg.reset()
    ids = cj.reads(ad, fr)
    mod_tail(ids, blkA, True, True); SP(11)
    k(f's_cmp_ge_u32 {jb}, 200\ns_cbranch_scc1 {L_C}')
    cj.dma(RB, srcB, strB, BUF1, 'nt3' in opt)
    k(f's_waitcnt vmcnt(0)\ns_branch {L_B}')
    e.release(); t.release(); vg.release()

    k(f'{L_w1}:')
    common()
    cj.dma(RB, srcB, strB, BUF1, 'nt1' in opt)
    k('s_waitcnt vmcnt(0)')

    k(f'{L_B}:')
    vm, lg = trackers(k); cj.vm, cj.lg = vm, lg
    k(f's_waitcnt vmcnt(1) lgkmcnt(0)\ns_barrier')
    SP(12)
    il = k.s(); k(f's_sub_u32 {il}, {modeB}, 1\ns_cmp_lt_u32 {il}, 2\ns_cselect_b32 {il}, 1, 0')
    ids = cj.read(BUF1, fr, s_il=il)
    notmod, nocenter = k.label('notmod'), k.label('nocenter')
    k(f's_cmp_lg_u32 {modeB}, 0\ns_cbranch_scc1 {notmod}')
    mod_tail(ids, blkB, True)
    k(f's_branch {L_C}\n{notmod}:')
    k('s_waitcnt lgkmcnt(0)'); lg.reset()
    k(f's_bitcmp0_b32 {modeB}, 0\ns_cbranch_scc1 {nocenter}')
    ones = sv.sub(0, 4); t = k.v(4); gof = k.v(4, 4)
    go2_ld = f'buffer_load_dwordx4 {gof}, {zero[0]}, {Rdbg}, 0 offen offset:192 sc1'
    k(go2_ld)
    for i in range(4): k(f'v_mov_b32 {ones[i]}, 0x3f803f80')
    for s in range(18): k(f'v_mfma_f32_16x16x32_bf16 {acc}, {ones}, {fr.sub(4 * s, 4)}, {"0" if s == 0 else acc}')
    nm = sv.sub(4, 2)
    k(f'v_mul_f32 {nm[0]}, {fl(-1 / 576)}, {acc[0]}')
    for i in range(0, 72, 2):
        k(f'v_lshlrev_b32 {t[0]}, 16, {fr[i]}\nv_and_b32 {t[1]}, 0xffff0000, {fr[i]}')
        k(f'v_lshlrev_b32 {t[2]}, 16, {fr[i + 1]}\nv_and_b32 {t[3]}, 0xffff0000, {fr[i + 1]}')
        k(f'v_pk_add_f32 {t[0:2]}, {t[0:2]}, {nm} op_sel_hi:[1,0]\nv_pk_add_f32 {t[2:4]}, {t[2:4]}, {nm} op_sel_hi:[1,0]')
        k(f'v_cvt_pk_bf16_f32 {fr[i]}, {t[0]}, {t[1]}\nv_cvt_pk_bf16_f32 {fr[i + 1]}, {t[2]}, {t[3]}')
    k(f'{nocenter}:')
    T = k.s(); j = k.s(); dst = k.s(); step = k.s(); rot = k.s()
    k(f's_lshl_b32 {T}, {blkB}, 2\ns_add_u32 {T}, {T}, {s_w}')
    k(f's_mul_hi_u32 {j}, {T}, {(1 << 32) // 6 + 1}\ns_mul_i32 {dst}, {j}, 6\ns_sub_u32 {dst}, {T}, {dst}\ns_lshl_b32 {dst}, {dst}, 10')
    k(f's_mul_i32 {step}, {j}, 110592\ns_add_u32 {dst}, {dst}, {step}')
    k(f's_mul_i32 {rot}, {j}, 3\ns_sub_u32 {rot}, 18, {rot}\ns_cmp_eq_u32 {rot}, 18\ns_cselect_b32 {rot}, 0, {rot}')
    k(f's_cmp_eq_u32 {modeB}, 1\ns_cselect_b32 {rot}, {rot}, 0\ns_cselect_b32 {step}, 0, {O_W2F - O_W1F}\ns_add_u32 {dst}, {dst}, {step}\ns_add_u32 {dst}, {dst}, {O_W1F}')
    k(f's_mul_i32 {j}, {T}, 18432\ns_add_u32 {j}, {j}, {O_W3F}')
    k(f's_cmp_ge_u32 {modeB}, 3\ns_cselect_b32 {dst}, {j}, {dst}\ns_cselect_b32 {step}, 1, 6\ns_lshl_b32 {step}, {step}, 10')
    notw1, L_st = k.label('notw1'), k.label('stored')
    k(f's_cmp_lg_u32 {modeB}, 1\ns_cbranch_scc1 {notw1}')
    cj.store(fr, None, Rws, dst, step, s_rot=rot)
    sk = k.label('nosig')
    k(f's_waitcnt vmcnt(0)\ns_barrier\ns_cmp_lg_u32 {s_w}, 0\ns_cbranch_scc1 {sk}')
    signal(8, 8)
    k(f'{sk}:')
    lp, ok = k.label('pollm'), k.label('gotm')
    k(f'{lp}:\ns_waitcnt vmcnt(0)\nv_and_b32 {gof[1]}, {gof[1]}, {gof[3]}\nv_readfirstlane_b32 {st}, {gof[1]}\ns_cmp_ge_u32 {st}, 1\ns_cbranch_scc1 {ok}')
    k(f's_sleep 4\n{go2_ld}\ns_add_u32 {cnt}, {cnt}, 1\ns_cmp_lt_u32 {cnt}, {SPIN_MAX}\ns_cbranch_scc1 {lp}\ns_branch {END}\n{ok}:'); vm.reset()
    k(f'v_and_b32 {t[0]}, 1, {m}\nv_xor_b32 {t[0]}, 1, {t[0]}\nv_mul_u32_u24 {t[0]}, 1152, {t[0]}\nv_lshl_add_u32 {t[0]}, {q}, 4, {t[0]}\ns_mov_b32 {st}, {O_MODB}')
    ids = [vm.op(f'buffer_load_dwordx4 {sv.sub(4 * s, 4)}, {t[0]}, {Rws}, {st} offen offset:{64 * s} sc1') for s in range(18)]
    k(f's_lshr_b32 {j}, {s_w}, 1\ns_lshl_b32 {j}, {j}, 7\ns_and_b32 {st}, {s_w}, 1\ns_lshl_b32 {st}, {st}, 4\ns_add_u32 {j}, {j}, {st}\ns_add_u32 {j}, {j}, {SVEC}')
    k(f'v_lshrrev_b32 {t[1]}, 2, {m}\nv_and_b32 {t[2]}, 3, {m}\nv_lshlrev_b32 {t[2]}, 2, {t[2]}\nv_lshl_add_u32 {t[1]}, {t[1]}, 5, {t[2]}\nv_add_u32 {t[1]}, {j}, {t[1]}')
    for s in range(18):
        vm.wait(ids[s])
        k(f'v_mfma_f32_16x16x32_bf16 {acc}, {sv.sub(4 * s, 4)}, {fr.sub(4 * s, 4)}, {"0" if s == 0 else acc}')
    k(f'ds_write2st64_b32 {t[1]}, {acc[0]}, {acc[1]} offset0:0 offset1:1\ns_waitcnt lgkmcnt(0)\ns_barrier\ns_cmp_lg_u32 {s_w}, 0\ns_cbranch_scc1 {L_st}')
    k(f'v_add_u32 {t[0]}, {SVEC}, {l16}\nds_read_b128 {acc}, {t[0]}\nv_mul_u32_u24 {t[1]}, 2304, {q}\nv_lshl_add_u32 {t[1]}, {m}, 4, {t[1]}')
    k(f's_lshl_b32 {j}, {blkB}, 8\ns_add_u32 {j}, {j}, {O_MODF + 6 * 2304}\ns_mov_b32 exec_hi, 0\ns_waitcnt lgkmcnt(0)')
    k(f'buffer_store_dwordx4 {acc}, {t[1]}, {Rws}, {j} offen sc1\ns_mov_b64 exec, -1')
    k(f'{L_st}:\ns_branch {L_C}')
    k(f'{notw1}:'); vm.reset()
    cj.store(fr, None, Rws, dst, step, s_rot=rot)
    k(f'{L_C}:'); SP(13)
    code_prefetch(k, None, NEXT, END, 60000, 'v0', pf, pfs)
    k(f's_branch {NEXT}')

TAB, KD = 0, 17408

def conv(k, P, lane, s_w, END, NEXT, dump, SP, opt=()):
    vm, lg = trackers(k)
    cidx = k.s(); s_d = k.s(); st = k.s(); st2 = k.s(); sav = k.s(2)
    k(f's_and_b32 {cidx}, s2, 7\ns_mul_i32 {cidx}, {cidx}, 18\ns_lshr_b32 {st}, s2, 3\ns_add_u32 {cidx}, {cidx}, {st}\ns_sub_u32 {cidx}, {cidx}, 14')
    k(f's_lshl_b32 {s_d}, {cidx}, 2\ns_add_u32 {s_d}, {s_d}, {s_w}\ns_lshl_b32 {st}, {cidx}, 3')
    sdt = k.s(2); sD = k.s(2)
    k(f's_load_dwordx2 {sdt}, {P["logdt"]}, {st}\ns_load_dwordx2 {sD}, {P["Dskip"]}, {st}')
    R = k.s(4); Rws = k.s(4); Rdbg = k.s(4)
    par = k.v(4); t = k.v(8); x = k.v(16)
    k(f'v_lshlrev_b32 {t[0]}, 2, {lane}\ns_lshl_b32 {st2}, {s_d}, 8')
    for i, n in enumerate(('logA', 'Aim', 'Cr', 'Ci')):
        srd(k, R, P[n], D * 128 * 2)
        ipar = vm.op(f'buffer_load_dword {par[i]}, {t[0]}, {R}, {st2} offen' + (' nt' if 'ntp' in opt else ''))
    srd(k, Rws, P['ws'], WS_USED); srd(k, Rdbg, P['dbg'], 256)
    wb = k.s(); k(f's_mul_i32 {wb}, {s_w}, {WSTR}')
    q = k.v(); m = k.v(); ag = k.v(); am = k.v(); a4 = k.v(); fl_v = k.v(2)
    k(f'v_lshrrev_b32 {q}, 4, {lane}\nv_and_b32 {m}, 15, {lane}')
    ga = k.v(32); cst = k.v()
    k(f's_add_u32 {st2}, {wb}, {KD - 2 * (134 * 128 - 128)}\nv_mov_b32 {cst}, {st2}')
    k(f'v_lshlrev_b32 {t[2]}, 3, {lane}\nv_cvt_f32_u32 {t[2]}, {t[2]}')
    for c in range(4):
        for e in range(0, 8, 2):
            k(f'v_add_f32 {t[4]}, {fl(512 * c + e)}, {t[2]}\nv_add_f32 {t[5]}, {fl(512 * c + e + 1)}, {t[2]}\nv_cvt_pk_bf16_f32 {t[4]}, {t[4]}, {t[5]}')
            k(f'v_mad_u32_u16 {ga[8 * c + e]}, {t[4]}, 2, {cst}\nv_mad_u32_u16 {ga[8 * c + e + 1]}, {t[4]}, 2, {cst} op_sel:[1,0,0,0]')
    k(f's_add_u32 {st2}, {wb}, {KD}\nv_lshl_add_u32 {t[4]}, {lane}, 4, {st2}\nv_cmp_gt_u32 vcc, 16, {lane}')
    for e in range(8): k(f'v_add_u32 {t[5]}, {2 * e}, {t[4]}\nv_cndmask_b32 {ga[e]}, {ga[e]}, {t[5]}, vcc')
    VM = vmaps()
    kda = k.v(4)
    k(f'v_lshlrev_b32 {t[2]}, 2, {m}')
    for s in range(4):
        lut = sum((VM[s][j] >> s) << (4 * j) for j in range(16))
        base = 0 if s == 0 else 128 + 128 * s
        k(f's_mov_b32 {sav[0]}, {lut & 0xffffffff}\ns_mov_b32 {sav[1]}, {lut >> 32}\nv_lshrrev_b64 {t[4:6]}, {t[2]}, {sav}\nv_and_b32 {t[4]}, 15, {t[4]}')
        k(f'v_lshl_add_u32 {t[4]}, {q}, 6, {t[4]}\ns_add_u32 {st2}, {wb}, {KD + 2 * base}\nv_lshl_add_u32 {kda[s]}, {t[4]}, 1, {st2}')
    cst.release()
    atw = k.v(); atr = k.v()
    k(f'v_lshl_add_u32 {atw}, {lane}, 3, {wb}\nv_mul_u32_u24 {atr}, 544, {m}\nv_lshl_add_u32 {atr}, {q}, 4, {atr}\nv_add_u32 {atr}, {wb}, {atr}')
    z4 = k.v(4)
    for i in range(4): k(f'v_mov_b32 {z4[i]}, 0')
    k(f'v_lshrrev_b32 {t[4]}, 5, v0\nv_mul_u32_u24 {t[4]}, {HSTR}, {t[4]}\nv_and_b32 {t[5]}, 31, v0\nv_lshl_add_u32 {t[4]}, {t[5]}, 4, {t[4]}\nv_add_u32 {t[4]}, {HB}, {t[4]}')
    k(f'v_cmp_gt_u32 vcc, 128, v0\ns_and_saveexec_b64 {sav}, vcc\nds_write_b128 {t[4]}, {z4}\ns_mov_b64 exec, {sav}')
    k('s_waitcnt lgkmcnt(0)')
    k(f's_lshl_b32 {st2}, {s_w}, 4\ns_lshr_b64 {sdt}, {sdt}, {st2}\ns_lshl_b32 {sdt[0]}, {sdt[0]}, 16')
    dt = k.v(); ks = k.v()
    k(f'v_mov_b32 {dt}, {fl(LOG2E)}\nv_mul_f32 {dt}, {sdt[0]}, {dt}\nv_exp_f32 {dt}, {dt}\nv_cvt_pk_bf16_f32 {dt}, {dt}, {dt}\nv_and_b32 {dt}, 0xffff0000, {dt}')
    SP(1); vm.wait(ipar); SP(2)
    pr = lambda: [k.v(2), k.v(2)]
    w1, w16, U = pr(), pr(), pr()
    er = k.v(2); rev = k.v(2)
    un = lambda d, s_, hi: f'v_and_b32 {d}, 0xffff0000, {s_}' if hi else f'v_lshlrev_b32 {d}, 16, {s_}'
    for md in range(2):
        k(un(er[md], par[0], md)); k(un(rev[md], par[1], md)); k(un(U[0][md], par[2], md)); k(un(U[1][md], par[3], md))
    for md in range(2): k(f'v_mul_f32 {er[md]}, {fl(LOG2E)}, {er[md]}')
    for md in range(2): k(f'v_exp_f32 {er[md]}, {er[md]}')
    k(f'v_max3_f32 {t[0]}, |{U[0][0]}|, |{U[0][1]}|, |{U[1][0]}|\nv_max_f32 {t[0]}, |{U[1][1]}|, {t[0]}')
    k(f'v_cvt_pk_bf16_f32 {t[1]}, {er[0]}, {er[1]}')
    for mm in ('quad_perm:[1,0,3,2]', 'quad_perm:[2,3,0,1]', 'row_half_mirror', 'row_mirror'):
        k(f'v_max_f32_dpp {t[0]}, {t[0]}, {t[0]} {mm} row_mask:0xf bank_mask:0xf')
    for md in range(2):
        k(un(er[md], t[1], md))
        k(f'v_mul_f32 {er[md]}, {er[md]}, {dt}\nv_mul_f32 {rev[md]}, {rev[md]}, {dt}')
        k(f'v_mul_f32 {er[md]}, {fl(-LOG2E)}, {er[md]}\nv_mul_f32 {rev[md]}, 0.15915494, {rev[md]}')
    k(f'v_readlane_b32 {st2}, {t[0]}, 0\nv_readlane_b32 {sav[0]}, {t[0]}, 16\nv_readlane_b32 {sav[1]}, {t[0]}, 32\nv_readlane_b32 {st}, {t[0]}, 48')
    k(f's_max_u32 {st2}, {st2}, {sav[0]}\ns_max_u32 {st}, {st}, {sav[1]}\ns_max_u32 {st2}, {st2}, {st}')
    for w_, mul in ((w1, None), (w16, '16.0')):
        for md in range(2):
            a, b = t[2 + md], t[4 + md]
            if mul: k(f'v_mul_f32 {a}, {fl(16.)}, {er[md]}\nv_mul_f32 {b}, {fl(16.)}, {rev[md]}\nv_fract_f32 {b}, {b}\nv_exp_f32 {a}, {a}')
            else: k(f'v_fract_f32 {b}, {rev[md]}\nv_exp_f32 {a}, {er[md]}')
            k(f'v_cos_f32 {w_[0][md]}, {b}\nv_sin_f32 {w_[1][md]}, {b}')
        for c in range(2): k(f'v_pk_mul_f32 {w_[c]}, {w_[c]}, {t[2:4]}')
    k(f'v_frexp_exp_i32_f32 {t[0]}, {st2}\nv_sub_u32 {t[1]}, 8, {t[0]}\nv_add_u32 {t[0]}, -7, {t[0]}\nv_ldexp_f32 {ks}, {dt}, {t[0]}')
    for md in range(2):
        for c in range(2): k(f'v_ldexp_f32 {U[c][md]}, {U[c][md]}, {t[1]}')
    er.release(); rev.release(); dt.release()
    tm = [k.v(2) for _ in range(4)]
    def cmul(d, z, s_, ta, tb):
        return [f'v_pk_mul_f32 {ta}, {z[1]}, {s_[1]}', f'v_pk_mul_f32 {tb}, {z[0]}, {s_[1]}',
                f'v_pk_fma_f32 {d[0]}, {z[0]}, {s_[0]}, {ta} neg_lo:[0,0,1] neg_hi:[0,0,1]', f'v_pk_fma_f32 {d[1]}, {z[1]}, {s_[0]}, {tb}']
    w32, w64, w128, w2, w4, w8, V = pr(), pr(), pr(), pr(), pr(), pr(), pr()
    for d_, s_ in ((w32, w16), (w64, w32), (w128, w64)):
        for x_ in cmul(d_, s_, s_, tm[0], tm[1]): k(x_)
    pv = [k.v(2), k.v(2)]; pu = [k.v(2), k.v(2)]
    fa = k.v(32, 4); fb = k.v(32, 4); kacc = k.v(16, 4)
    state = {'V': None, 'nv': 0, 'nu': 0}
    def v_entry(val, slot):
        out = []
        pk = pv[state['nv'] & 1]; state['nv'] += 1
        if val == 0:
            out += [f'v_mov_b32 {pk[0]}, 0x3c00', f'v_mov_b32 {pk[1]}, 0x3c00']
        else:
            if val == 1: cur = w1
            else:
                step = w1 if val <= 16 else w2 if val <= 32 else w4 if val <= 64 else w8
                cur = {2: w2, 4: w4, 8: w8}.get(val, V)
                out += cmul(cur, state['V'], step, tm[0], tm[1])
            state['V'] = cur
            out += [f'v_cvt_pk_f16_f32 {pk[md]}, {cur[0][md]}, {cur[1][md]}' for md in range(2)]
        out.append(('ds', f'ds_write_b64 {atw}, {pk} offset:{TAB + slot * 544}'))
        return out
    def u_entry(val, row):
        out = []
        pk = pu[state['nu'] & 1]; state['nu'] += 1
        if val:
            step = w16 if val <= 256 else w32 if val <= 512 else w64 if val <= 1024 else w128
            out += cmul(U, U, step, tm[2], tm[3])
        out += [f'v_cvt_pk_f16_f32 {pk[md]}, {U[0][md]}, -{U[1][md]}' for md in range(2)]
        out.append(('ds', f'ds_write_b64 {atw}, {pk} offset:{TAB + (16 + row) * 544}'))
        return out
    def put(x_):
        if isinstance(x_, tuple): return lg.op(x_[1])
        k(x_)
    pend = []
    flag_ld = f'buffer_load_dwordx2 {fl_v}, {z4[0]}, {Rdbg}, 0 offen offset:192 sc1'
    ifl = None
    for s in range(4):
        vs = sorted((VM[s][j], j) for j in range(16) if s == 0 or VM[s][j] != VM[s - 1][j])
        us = [16 * u for u in range(16)] if s == 0 else [(128 << s) + (16 << s) * u for u in range(9 if s == 3 else 8)]
        sv_ = [x_ for val, j in vs for x_ in v_entry(val, j)]
        su_ = [x_ for r_, val in enumerate(us) for x_ in u_entry(val, r_)]
        stream = interleave(sv_, su_)
        for n_, x_ in enumerate(stream):
            put(x_)
            if n_ == 27:
                while pend:
                    idr, mf = pend.pop(0); lg.wait(idr); k(mf)
            if s == 3 and n_ == 40: k(flag_ld)
        assert not pend
        for kk in range(8):
            lg.op(f'ds_read_b128 {fa.sub(4 * kk, 4)}, {atr} offset:{TAB + 16 * 544 + 64 * kk}')
            i_ = lg.op(f'ds_read_b128 {fb.sub(4 * kk, 4)}, {atr} offset:{TAB + 64 * kk}')
            ac = kacc.sub(4 * s, 4)
            pend.append((i_, f'v_mfma_f32_16x16x32_f16 {ac}, {fa.sub(4 * kk, 4)}, {fb.sub(4 * kk, 4)}, {"0" if kk == 0 else ac}'))
    for x_ in (w1, w16, w32, w64, w128, w2, w4, w8, V, U, tm, pv, pu):
        for y_ in x_: y_.release()
    md_ = k.v(16, 4); sg = md_; cnt = k.s(); mg = par.sub(0, 2); amg = par[2]
    k(f'v_lshrrev_b32 {amg}, 2, {m}\nv_cmp_eq_u32 vcc, 3, {amg}\nv_addc_co_u32 {amg}, vcc, 0, {amg}, vcc\nv_mul_u32_u24 {amg}, 4608, {amg}\nv_and_b32 {mg[0]}, 3, {m}\nv_lshl_add_u32 {amg}, {mg[0]}, 3, {amg}')
    def kd_out(s):
        ac = kacc.sub(4 * s, 4)
        for e in range(4): k(f'v_mul_f32 {ac[e]}, {ks}, {ac[e]}')
        k(f'v_cvt_pk_bf16_f32 {ac[0]}, {ac[0]}, {ac[1]}\nv_cvt_pk_bf16_f32 {ac[2]}, {ac[2]}, {ac[3]}')
        for e in range(4): lg.op(f'ds_write_b16{"_d16_hi" if e & 1 else ""} {kda[s]}, {ac[e & 2]} offset:{32 * e}')
    for s in range(3): kd_out(s)
    SP(3); lg.reset() if SP.on else None
    got = k.s()
    def x_loads():
        k(f's_lshl_b32 {st}, {cidx}, 14\ns_add_u32 {st}, {st}, {O_XT}')
        for i in range(4):
            k(f'buffer_load_dwordx4 {x.sub(4 * i, 4)}, {ag}, {Rws}, {st} offen sc1')
            if i < 3: k(f's_add_u32 {st}, {st}, 4096')
    def gran_loads():
        for i in range(4): k(f's_mov_b32 {st}, {O_STATS + 4096 * i}\nbuffer_load_dwordx4 {sg.sub(4 * i, 4)}, {ag}, {Rws}, {st} offen sc1')
        mod_loads()
    def gran_check():
        k(f's_waitcnt vmcnt(0)\nv_and_b32 {am}, {sg[1]}, {sg[3]}')
        for i in (5, 9, 13): k(f'v_bitop3_b32 {am}, {am}, {sg[i]}, {sg[i + 2]} bitop3:0x80')
        k(f'v_cmp_ne_u32 vcc, 1, {am}\ns_cmp_eq_u64 vcc, 0')
    def mod_loads():
        k(f's_lshl_b32 {st}, {cidx}, 5\ns_add_u32 {st}, {st}, {O_MODG}')
        k(f'buffer_load_dwordx2 {mg}, {amg}, {Rws}, {st} offen sc1')
    def spin(i, flag_ld):
        lp, ok = k.label('poll'), k.label('go')
        k(f'{lp}:\nv_readfirstlane_b32 {st}, {fl_v[i]}\ns_cmp_ge_u32 {st}, 1\ns_cbranch_scc1 {ok}')
        k(f's_sleep 4\n{flag_ld}\ns_add_u32 {cnt}, {cnt}, 1\ns_cmp_lt_u32 {cnt}, {SPIN_MAX}\ns_waitcnt vmcnt(0)\ns_cbranch_scc1 {lp}\ns_branch {END}\n{ok}:')
    k(f'v_lshlrev_b32 {ag}, 4, v0\nv_lshlrev_b32 {a4}, 2, v0\ns_mov_b32 {cnt}, 0\ns_waitcnt vmcnt(0)')
    spin(0, flag_ld)
    gran_loads()
    while pend:
        idr, mf = pend.pop(0); lg.wait(idr); k(mf)
    kd_out(3)
    kc = fa.sub(0, 16); pvv = fa.sub(16, 8)
    gid = [lg.op(f'ds_read_u16 {ga[e]}, {ga[e]}') for e in range(32)]
    aw = kda[0]; ap = kda[1]
    k(f'v_lshl_add_u32 {aw}, {lane}, 4, {wb}\nv_lshrrev_b32 {ap}, 1, {lane}\nv_mul_u32_u24 {ap}, 4160, {ap}\nv_and_b32 {t[1]}, 1, {lane}')
    k(f'v_lshl_add_u32 {ap}, {t[1]}, 4, {ap}\nv_add_u32 {ap}, {wb}, {ap}')
    k(f's_mov_b64 exec, 0xff'); lg.op(f'ds_write_b128 {ap}, {z4}'); k('s_mov_b64 exec, -1')
    for c in range(4):
        lg.wait(gid[8 * c + 7])
        for e in range(4): k(f'v_lshl_or_b32 {kc[4 * c + e]}, {ga[8 * c + 2 * e + 1]}, 16, {ga[8 * c + 2 * e]}')
        lg.op(f'ds_write_b128 {aw}, {kc.sub(4 * c, 4)} offset:{32 + 1024 * c}')
    ids = [lg.op(f'ds_read_b64 {pvv.sub(2 * c, 2)}, {aw} offset:{24 + 1024 * c}') for c in range(4)]
    late = k.label('late')
    gran_check()
    k(f's_cselect_b32 {got}, 1, 0\ns_cbranch_scc0 {late}')
    x_loads()
    k(f'{late}:')
    for c in range(4):
        lg.wait(ids[c])
        o = fb.sub(12 * (c & 1), 12); d_ = kc.sub(4 * c, 4); p0, p1 = pvv[2 * c], pvv[2 * c + 1]
        seq = [p0, p1, d_[0], d_[1], d_[2], d_[3]]
        o3 = o.sub(0, 4); o1 = o.sub(4, 4); o2 = o.sub(8, 4)
        for i in range(4): k(f'v_alignbit_b32 {o3[i]}, {seq[i + 1]}, {seq[i]}, 16')
        for i in range(3): k(f'v_mov_b32 {o1[i]}, {o3[i + 1]}')
        k(f'v_alignbit_b32 {o1[3]}, {seq[5]}, {seq[4]}, 16')
        for i in range(4): k(f'v_mov_b32 {o2[i]}, {seq[i + 1]}')
        for r_, oo in ((1, o1), (2, o2), (3, o3)): lg.op(f'ds_write_b128 {aw}, {oo} offset:{4160 * r_ + 32 + 1024 * c}')
    if dump:
        k(f's_lshl_b32 {st}, {s_d}, 12\ns_add_u32 {st}, {st}, {O_DBG}\nv_lshlrev_b32 {t[1]}, 4, {lane}')
        for c in range(4): vm.op(f'buffer_store_dwordx4 {kc.sub(4 * c, 4)}, {t[1]}, {Rws}, {st} offen offset:{1024 * c}')
    ga.release(); acc = k.v(32, 4); kacc.release(); ks.release(); atw.release(); atr.release()
    SP(4); lg.reset() if SP.on else None
    have = k.label('have')
    lp, ok = k.label('again'), k.label('rows')
    k(f's_cmp_lg_u32 {got}, 0\ns_cbranch_scc1 {have}\n{lp}:')
    gran_loads(); gran_check()
    k(f's_cbranch_scc1 {ok}\ns_sleep 2\ns_add_u32 {cnt}, {cnt}, 1\ns_cmp_lt_u32 {cnt}, {SPIN_MAX}\ns_cbranch_scc1 {lp}\ns_branch {END}\n{ok}:')
    x_loads()
    k(f'{have}:')
    xf = k.v(32); hf = k.v(32); st_ = k.v(16)
    for i in range(8): k(f'v_and_b32 {st_[2 * i]}, 0xffff0000, {sg[2 * i]}\nv_lshlrev_b32 {st_[2 * i + 1]}, 16, {sg[2 * i]}')
    for i in range(8): k(f'v_rcp_f32 {st_[2 * i]}, {st_[2 * i]}')
    for i in range(8): k(f'v_mul_f32 {st_[2 * i + 1]}, -{st_[2 * i + 1]}, {st_[2 * i]}')
    k('s_waitcnt vmcnt(0)')
    SP(14); lg.reset() if SP.on else None
    for i in range(16): k(f'v_lshlrev_b32 {xf[2 * i]}, 16, {x[i]}\nv_and_b32 {xf[2 * i + 1]}, 0xffff0000, {x[i]}')
    k(f'v_add_u32 {am}, {HB + 512}, {a4}')
    for j in range(16): k(f'v_pk_fma_f32 {hf.sub(2 * j, 2)}, {xf.sub(2 * j, 2)}, {st_.sub(2 * (j // 2), 2)}, {st_.sub(2 * (j // 2), 2)} op_sel:[0,0,1] op_sel_hi:[1,0,1]')
    lp, ok = k.label('gran'), k.label('got')
    k(f'{lp}:')
    k(f'v_cmp_ne_u32 vcc, 1, {mg[1]}\ns_cmp_eq_u64 vcc, 0\ns_cbranch_scc1 {ok}\ns_sleep 2')
    mod_loads()
    k(f's_add_u32 {cnt}, {cnt}, 1\ns_cmp_lt_u32 {cnt}, {SPIN_MAX}\ns_waitcnt vmcnt(0)\ns_cbranch_scc1 {lp}\ns_branch {END}\n{ok}:')
    for i in range(16): k(f'v_mov_b32_dpp {md_[i]}, {mg[0]} row_newbcast:{i} row_mask:0xf bank_mask:0xf')
    SP(5)
    for i in range(4):
        for j in range(4 * i, 4 * i + 4): k(f'v_pk_fma_f32 {hf.sub(2 * j, 2)}, {hf.sub(2 * j, 2)}, {md_.sub(4 + 2 * (j & 1), 2)}, {md_.sub(2 * (j & 1), 2)}')
        for c in range(4): k(f'v_cvt_pk_bf16_f32 {x[4 * i + c]}, {hf[8 * i + c]}, {hf[8 * i + 4 + c]}')
        for c in range(4): lg.op(f'ds_write_b32 {am}, {x[4 * i + c]} offset:{HSTR * c + 1024 * i}')
    st_.release()
    aA = kda[2]; aB = kda[3]
    k(f'v_bfe_u32 {t[0]}, {lane}, 2, 2\nv_mul_u32_u24 {aA}, 4160, {t[0]}\nv_and_b32 {t[0]}, 3, {lane}\nv_lshl_add_u32 {aA}, {t[0]}, 3, {aA}')
    k(f'v_lshlrev_b32 {t[0]}, 4, {q}\nv_sub_u32 {aA}, {aA}, {t[0]}\ns_add_u32 {st}, {wb}, 56\nv_add_u32 {aA}, {st}, {aA}')
    k(f's_mul_i32 {st}, {s_w}, {HSTR}\ns_add_u32 {st}, {st}, {HB + 480}\nv_lshl_add_u32 {aB}, {m}, 5, {t[0]}\nv_add_u32 {aB}, {st}, {aB}')
    lg.all(); k('s_barrier'); SP(6)
    fa2 = k.a(32, 4); fb2 = k.a(32, 4)
    sets = [(fa, fb), (fa2, fb2)]
    k(f'v_add_u32 {aB}, -448, {aB}')
    def reads(r_):
        A_, B_ = sets[r_ & 1]; out = []
        for i in range(8):
            out.append(f'ds_read_b128 {B_.sub(4 * i, 4)}, {aB} offset:{448 - 64 * r_ + 512 * i}')
            out.append(f'ds_read_b64_tr_b16 {A_.sub(4 * i, 2)}, {aA} offset:{64 * r_ + 8 + 512 * i}')
            out.append(f'ds_read_b64_tr_b16 {A_.sub(4 * i + 2, 2)}, {aA} offset:{64 * r_ + 512 * i}')
        return out
    jm = k.s(); l16 = k.v()
    k(f's_lshr_b32 {jm}, s2, 5\ns_sub_u32 {jm}, {jm}, 2\nv_lshlrev_b32 {l16}, 4, {lane}')
    pd = PairDma(k, s_w, jm, O_W1F, Rws, l16, W1_AT)
    early = [g for P_ in range(5) for g in pd.ops(P_)]
    flag_ld = f'buffer_load_dwordx2 {fl_v}, {z4[0]}, {Rdbg}, 0 offen offset:200 sc1'
    cur = [lg.op(x_) for x_ in reads(0)]
    for r_ in range(8):
        rd = reads(r_ + 1) if r_ < 7 else []
        A_, B_ = sets[r_ & 1]; nxt = []
        order = [(i, tt) for i in range(8) for tt in range(i, 8)] if r_ else sorted(((i, tt) for i in range(8) for tt in range(i, 8)), key=lambda p: (max(p[0], p[1] - p[0]), p))
        seen = set()
        if r_ == 1: k(flag_ld)
        if r_ == 3: k('s_waitcnt vmcnt(0)'); spin(0, flag_ld)
        for n_, (i, tt) in enumerate(order):
            lg.wait(max(cur[3 * i + 2], cur[3 * (tt - i)]))
            first = r_ == 0 and tt not in seen; seen.add(tt)
            k(f'v_mfma_f32_16x16x32_bf16 {acc.sub(4 * tt, 4)}, {A_.sub(4 * i, 4)}, {B_.sub(4 * (tt - i), 4)}, {"0" if first else acc.sub(4 * tt, 4)}')
            if rd: nxt.append(lg.op(rd.pop(0)))
            if r_ >= 3 and n_ >= 24 and n_ % 3 == 0 and early:
                for x_ in early.pop(0): k(x_)
        cur = nxt
    assert not early
    SP(7)
    k(f'v_lshlrev_b32 {t[0]}, 3, {q}\nv_lshl_add_u32 {t[0]}, {m}, 5, {t[0]}\nv_add_u32 {t[0]}, {wb}, {t[0]}')
    for tt in range(8):
        o = fa.sub(2 * tt, 2)
        k(f'v_cvt_pk_bf16_f32 {o[0]}, {acc[4 * tt]}, {acc[4 * tt + 1]}\nv_cvt_pk_bf16_f32 {o[1]}, {acc[4 * tt + 2]}, {acc[4 * tt + 3]}')
        k(f'ds_write_b64 {t[0]}, {o} offset:{512 * tt}')
    dv = t.sub(4, 4)
    k(f's_lshl_b32 {st}, {sD[0]}, 16\ns_and_b32 {st2}, {sD[0]}, 0xffff0000\nv_mov_b32 {dv[0]}, {st}\nv_mov_b32 {dv[1]}, {st2}')
    k(f's_lshl_b32 {st}, {sD[1]}, 16\ns_and_b32 {st2}, {sD[1]}, 0xffff0000\nv_mov_b32 {dv[2]}, {st}\nv_mov_b32 {dv[3]}, {st2}')
    k('s_waitcnt lgkmcnt(0)\ns_barrier')
    lg.reset()
    yp = fb.sub(0, 16); yf = acc; o = fa
    ids = [[lg.op(f'ds_read_b32 {yp[4 * i + c]}, {a4} offset:{WSTR * c + 1024 * i}') for c in range(4)] for i in range(4)]
    k(f's_lshl_b32 {st}, {cidx}, 15\ns_lshl_b32 {st2}, {s_w}, 11\ns_add_u32 {st}, {st}, {st2}\ns_add_u32 {st}, {st}, {O_X2}')
    k(f's_add_u32 {st2}, {wb}, 4096\nv_lshl_add_u32 {am}, {lane}, 5, {st2}\nv_lshl_add_u32 {a4}, {lane}, 4, {st2}\nv_lshlrev_b32 {ag}, 4, {lane}')
    odd, fin = k.label('odd'), k.label('fin')
    for i in range(4):
        lg.wait(ids[i][3])
        for c in range(4): k(f'v_lshlrev_b32 {yf[8 * i + c]}, 16, {yp[4 * i + c]}\nv_and_b32 {yf[8 * i + 4 + c]}, 0xffff0000, {yp[4 * i + c]}')
        for j in range(4 * i, 4 * i + 4): k(f'v_pk_fma_f32 {yf.sub(2 * j, 2)}, {hf.sub(2 * j, 2)}, {dv.sub(2 * (j & 1), 2)}, {yf.sub(2 * j, 2)}')
        for j in range(4 * i, 4 * i + 4): k(f'v_pk_fma_f32 {yf.sub(2 * j, 2)}, {yf.sub(2 * j, 2)}, {md_.sub(8 + 2 * (j & 1), 2)}, {xf.sub(2 * j, 2)}')
        for j in range(4 * i, 4 * i + 4): k(f'v_pk_mul_f32 {xf.sub(2 * j, 2)}, {yf.sub(2 * j, 2)}, {md_.sub(12 + 2 * (j & 1), 2)}')
    k(f's_bitcmp1_b32 {cidx}, 0\ns_cbranch_scc1 {odd}')
    for par_ in range(2):
        A_, B_ = (yf, xf) if par_ == 0 else (xf, yf)
        for r_ in range(8):
            for c in range(2):
                k(f'v_cvt_pk_bf16_f32 {o[4 * r_ + c]}, {A_[4 * r_ + 2 * c]}, {A_[4 * r_ + 2 * c + 1]}')
                k(f'v_cvt_pk_bf16_f32 {o[4 * r_ + 2 + c]}, {B_[4 * r_ + 2 * c]}, {B_[4 * r_ + 2 * c + 1]}')
            k(f'ds_write_b128 {am}, {o.sub(4 * r_, 4)} offset:{2048 * (r_ >> 1) + 16 * (r_ & 1)}')
        if par_ == 0: k(f's_branch {fin}\n{odd}:')
    k(f'{fin}:'); lg.reset()
    ids = [lg.op(f'ds_read_b128 {fb.sub(4 * r_, 4)}, {a4} offset:{1024 * r_}') for r_ in range(8)]
    for r_ in range(8):
        lg.wait(ids[r_])
        k(f'buffer_store_dwordx4 {fb.sub(4 * r_, 4)}, {ag}, {Rws}, {st} offen offset:{1024 * (r_ & 1)} sc1')
        if r_ & 1 and r_ < 7: k(f's_add_u32 {st}, {st}, 8192')
```

```python
from common import *

K2_LDS = LDS_BYTES
T_B, T_F = TABS, TABS + 7168
XBUF, HBUF = 0, 73728
X1C, PSTL = 147456, 147456 + 9216
SPIN_MAX = 40000
GC1 = -2.0 * LOG2E * 0.7978845608028654
GC2 = GC1 * 0.044715
PI = [0, 1, 2, 5, 6, 7, 9, 10, 11, 14, 15, 16, 3, 12, 4, 8, 13, 17]
MF = 'v_mfma_f32_16x16x32_bf16'

def un(d, s_, hi): return f'v_and_b32 {d}, 0xffff0000, {s_}' if hi else f'v_lshlrev_b32 {d}, 16, {s_}'

def gelu_consts(k, sig, c):
    k(f'v_mov_b32 {c[2]}, {sig}\nv_rcp_f32 {c[0]}, {sig}')
    k(f'v_mul_f32 {c[1]}, {c[0]}, {c[0]}\nv_mul_f32 {c[1]}, {c[1]}, {c[0]}')
    k(f'v_mul_f32 {c[0]}, {fl(GC1)}, {c[0]}\nv_mul_f32 {c[1]}, {fl(GC2)}, {c[1]}')

def phase2(k, P, lane, s_w, END, SP, opt=()):
    stamps = SP.on
    WFL = ' sc1'
    PFL = ' '.join(o[2:] for o in opt if o.startswith('p_')) or 'sc1'
    q = k.v(); m = k.v(); l16 = k.v(); one = k.v(); zero = k.v(); fv4 = k.v(8, 4)
    Rws = k.s(4); RG = k.s(4); RW = k.s(4)
    srd(k, RG, P['dbg'], 256)
    k(f'v_mov_b32 {one}, 1\nv_mov_b32 {zero}, 0')
    go_ld = f'buffer_load_dwordx4 {fv4[0:4]}, {zero}, {RG}, 0 offen offset:192 sc1'
    k(go_ld)
    k(f'v_lshrrev_b32 {q}, 4, {lane}\nv_and_b32 {m}, 15, {lane}\nv_lshlrev_b32 {l16}, 4, {lane}')
    rb = k.s(); jm = k.s(); mb = k.s(); fs = k.s(); st = k.s(); st1 = k.s(); sav = k.s(2); cnt = k.s(); mt = k.s()
    k(f's_and_b32 {st}, s2, 1\ns_lshl_b32 {mb}, {st}, 4\ns_bfe_u32 {st}, s2, 0x20001\ns_lshl_b32 {fs}, {st}, 1\ns_lshl_b32 {rb}, {st}, 2\ns_add_u32 {rb}, {rb}, {mb}')
    k(f's_bfe_u32 {st}, s2, 0x20003\ns_add_u32 {rb}, {rb}, {st}\ns_lshr_b32 {jm}, s2, 5\ns_sub_u32 {jm}, {jm}, 2')
    k(f's_bfe_u32 {st}, s2, 0x40003\ns_add_u32 {mb}, {mb}, {st}\ns_lshr_b32 {st}, s2, 7\ns_add_u32 {fs}, {fs}, {st}')
    if 'a4' in opt:
        k(f's_and_b32 {mb}, s2, 3\ns_lshl_b32 {mb}, {mb}, 3\ns_bfe_u32 {st}, s2, 0x30003\ns_add_u32 {mb}, {mb}, {st}')
        k(f's_bfe_u32 {fs}, s2, 0x10002\ns_lshl_b32 {fs}, {fs}, 2\ns_lshr_b32 {st}, s2, 6\ns_add_u32 {fs}, {fs}, {st}')
    if 'a1' in opt: k(f's_lshr_b32 {mb}, s2, 3\ns_and_b32 {fs}, s2, 7')
    if 'a8' in opt:
        k(f's_and_b32 {mb}, s2, 7\ns_lshl_b32 {mb}, {mb}, 2\ns_bfe_u32 {st}, s2, 0x20003\ns_add_u32 {mb}, {mb}, {st}\ns_lshr_b32 {fs}, s2, 5')
    k(f's_lshl_b32 {mt}, {rb}, 2\ns_add_u32 {mt}, {mt}, {s_w}\ns_mov_b32 {cnt}, 0')
    srd(k, Rws, P['ws'], WS_USED); srd(k, RW, P['ws'], WS_USED)
    vm, lg = trackers(k)
    def STAMP(i, g4=False):
        mode = 'g4st' if 'g4st' in opt else 'g3st' if 'g3st' in opt else False
        if stamps and (g4 == mode or (i not in (1, 2, 3, 4, 5) and not g4)): SP(i); lg.reset()
    def flag_add(s_idx, base):
        k(f's_lshl_b32 {st}, {s_idx}, 7\ns_add_u32 {st}, {st}, {base}\ns_mov_b64 exec, 1')
        vm.op(f'buffer_atomic_add {one}, {zero}, {Rws}, {st} offen sc1')
        k('s_mov_b64 exec, -1')
    def poll(vaddr, base, target, sleep=0, fv=None):
        own = fv is None; fv = fv or k.v(); lp, ok = k.label('poll'), k.label('ok')
        k(f's_mov_b32 {st1}, {base}\n{lp}:\nbuffer_load_dword {fv}, {vaddr}, {Rws}, {st1} offen sc1\ns_waitcnt vmcnt(0)')
        k(f'v_cmp_gt_u32 vcc, {target}, {fv}\ns_cmp_eq_u64 vcc, 0\ns_cbranch_scc1 {ok}')
        if sleep: k(f's_sleep {sleep}')
        k(f's_add_u32 {cnt}, {cnt}, 1\ns_cmp_lt_u32 {cnt}, {SPIN_MAX}\ns_cbranch_scc1 {lp}\ns_branch {END}\n{ok}:')
        vm.reset()
        if own: fv.release()
    W = [k.a(72, 4), k.a(72, 4)]; vo = [l16] + [k.v() for _ in range(4)]
    for g in range(1, 5): k(f'v_add_u32 {vo[g]}, {4096 * g}, {l16}')
    sn = k.s(); s4 = k.s()
    k(f's_lshl_b32 {sn}, {fs}, 2\ns_add_u32 {sn}, {sn}, {s_w}\ns_mul_i32 {sn}, {sn}, {9 * 18432}\ns_add_u32 {s4}, {sn}, {O_W4F}\ns_add_u32 {sn}, {sn}, {O_W3F}')
    wld = lambda r_, ks: f'buffer_load_dwordx4 {W[r_].sub(4 * ks, 4)}, {vo[ks // 4]}, {RW}, {sn} offen offset:{1024 * (ks % 4)}' + WFL
    sm = k.s(); so = k.s()
    k(f's_lshl_b32 {sm}, {s_w}, 10')
    def spin(ld, regs, sleep=16):
        lp, ok = k.label('spin'), k.label('up')
        k(f'{lp}:\ns_waitcnt vmcnt(0)\nv_mov_b32 {fv4[7]}, {regs[0]}')
        for r_ in regs[1:]: k(f'v_and_b32 {fv4[7]}, {fv4[7]}, {r_}')
        k(f'v_readfirstlane_b32 {st}, {fv4[7]}\ns_cmp_lg_u32 {st}, 0\ns_cbranch_scc1 {ok}')
        k(f's_sleep {sleep}\n{ld}\ns_add_u32 {cnt}, {cnt}, 1\ns_cmp_lt_u32 {cnt}, {SPIN_MAX}\ns_cbranch_scc1 {lp}\ns_branch {END}\n{ok}:')
    RB = k.v(24, 4)
    keepV, keepA, keepS = list(k.V.free), list(k.A.free), list(k.S.free)
    XX = k.v(146, 2); t = k.v(8); row = k.v()
    pd1 = PairDma(k, s_w, jm, O_W1F, Rws, l16, W1_AT)
    k(f's_lshl_b32 {st}, {s_w}, 6\nv_add_u32 {t[2]}, {st}, {lane}')
    k(f'v_cmp_le_u32 vcc, 72, {t[2]}\nv_subrev_u32 {t[3]}, 72, {t[2]}\nv_cndmask_b32 {t[3]}, {t[2]}, {t[3]}, vcc\nv_add_u32 {t[3]}, 72, {t[3]}')
    k(f'v_cmp_le_u32 vcc, 144, {t[2]}\nv_subrev_u32 {t[4]}, 144, {t[2]}\nv_cndmask_b32 {t[3]}, {t[3]}, {t[4]}, vcc')
    k(f'v_cmp_le_u32 vcc, 216, {t[2]}\nv_subrev_u32 {t[4]}, 216, {t[2]}\nv_cndmask_b32 {t[3]}, {t[3]}, {t[4]}, vcc\nv_lshlrev_b32 {t[3]}, 4, {t[3]}')
    k(f'v_add_u32 {t[4]}, 40, {lane}\nv_lshlrev_b32 {t[4]}, 4, {t[4]}\nv_mul_u32_u24 {t[5]}, 43691, {t[2]}\nv_lshrrev_b32 {t[5]}, 20, {t[5]}\nv_mul_u32_u24 {t[6]}, 120, {t[5]}')
    k(f'v_add_u32 {t[6]}, {t[6]}, {t[2]}\nv_lshlrev_b32 {t[6]}, 4, {t[6]}')
    pd = PairDma(k, s_w, jm, O_W2F, Rws, l16, W2_AT)
    k(f's_lshl_b32 {st}, {mt}, 4\nv_add_u32 {row}, {st}, {m}')
    k(f'v_lshlrev_b32 {t[0]}, 16, {q}\nv_lshl_add_u32 {t[0]}, {row}, 4, {t[0]}\nv_add_u32 {t[1]}, 0x8000, {t[0]}')
    ones = k.v(4, 4); sacc = k.v(4, 4); gacc = k.v(4, 4); tacc = k.v(4, 4); qacc = k.v(4, 4); acc = k.v(24, 4)
    for i in range(4): k(f'v_mov_b32 {ones[i]}, 0x3f803f80')
    msk = [k.s(2) for _ in range(3)]; bidx = k.v()
    k(f'v_and_b32 {t[2]}, 3, {m}')
    for e in range(3): k(f'v_cmp_eq_u32 {msk[e]}, {e + 1}, {t[2]}')
    aT = k.v(); aW = [l16, k.v(), k.v()]
    k(f'v_min_u32 {t[2]}, 2, {t[2]}\nv_mul_u32_u24 {aT}, 2304, {t[2]}\nv_lshl_add_u32 {aT}, {q}, 4, {aT}\ns_mul_i32 {st}, {jm}, 192\ns_add_u32 {st}, {st}, {T_B}\nv_add_u32 {aT}, {st}, {aT}')
    k(f'v_lshrrev_b32 {t[2]}, 2, {m}\nv_lshl_add_u32 {t[2]}, {t[2]}, 4, {m}\nv_lshlrev_b32 {bidx}, 2, {t[2]}')
    k(f'v_add_u32 {aW[1]}, 0xf000, {l16}\nv_add_u32 {aW[2]}, 0x1e000, {l16}')
    k(f'v_lshlrev_b32 {t[2]}, 4, v0\nv_add_u32 {t[2]}, {T_B}, {t[2]}')
    spin(go_ld, [fv4[0]])
    k('s_waitcnt lgkmcnt(0)\ns_barrier')
    STAMP(15)
    na, nb = k.label('noarr'), k.label('notlast')
    k(f's_cmp_lg_u32 {s_w}, 0\ns_cbranch_scc1 {na}\ns_and_b32 {st1}, s2, 3\ns_lshl_b32 {st}, {st1}, 7\ns_add_u32 {st}, {st}, {O_FA}\ns_mov_b64 exec, 1')
    k(f'v_mov_b32 {fv4[4]}, 1\nbuffer_atomic_add {fv4[4]}, {zero}, {Rws}, {st} offen sc0 sc1\ns_lshl_b32 {st1}, {st1}, 2\ns_waitcnt vmcnt(0)')
    k(f'v_readfirstlane_b32 {st}, {fv4[4]}\ns_cmp_lg_u32 {st}, 63\ns_cbranch_scc1 {nb}')
    k(f'buffer_store_dword {one}, {zero}, {RG}, {st1} offen offset:208 sc1\n{nb}:\ns_mov_b64 exec, -1\n{na}:')
    go3_ld = f'buffer_load_dwordx4 {fv4[0:4]}, {zero}, {RG}, 0 offen offset:208 sc1'
    k('s_cmp_lt_u32 s2, 64\ns_cbranch_scc1 k2_idle')

    w0, w5, wj = k.label('havew1'), k.label('rest'), k.label('joined')
    spin(go_ld, [fv4[1], fv4[2], fv4[3]])
    k(f's_add_u32 m0, {sm}, {T_B + 2304}\ns_mov_b32 {st1}, {O_MODB}\nbuffer_load_dwordx4 {t[3]}, {Rws}, {st1} offen sc1 lds')
    k(f's_mov_b32 m0, {T_B + 2304 + 4096}\ns_mov_b32 exec_hi, 0\nbuffer_load_dwordx4 {t[4]}, {Rws}, {st1} offen sc1 lds\ns_mov_b64 exec, -1')
    k(f's_cmp_ge_u32 s2, 112\ns_cbranch_scc1 {w0}')
    for P_ in range(5):
        for g in pd1.ops(P_):
            for x_ in g: k(x_)
    k(f's_waitcnt vmcnt(0)\n{w0}:\ns_barrier\ns_cmp_eq_u32 {s_w}, 0\ns_cbranch_scc1 {w5}')
    k(f's_lshl_b32 {pd1.t}, {s_w}, 11\ns_sub_u32 {pd1.t}, {pd1.t}, 2048\ns_mul_i32 {pd1.src}, {jm}, 110592\ns_add_u32 {pd1.src}, {pd1.src}, {pd1.t}\ns_add_u32 {pd1.src}, {pd1.src}, {O_W1F + 61440}')
    for sl_i in range(10, 18):
        k(f's_add_u32 m0, {pd1.t}, {W1_AT[sl_i]}\nbuffer_load_dwordx4 {l16}, {Rws}, {pd1.src} offen sc1 lds')
        k(f'buffer_load_dwordx4 {l16}, {Rws}, {pd1.src} offen offset:1024 sc1 lds')
        if sl_i < 17: k(f's_add_u32 {pd1.src}, {pd1.src}, 6144')
    k(f'{w5}:')
    pd1.release()
    k(f'v_cmp_gt_u32 vcc, 144, v0\ns_and_saveexec_b64 {sav}, vcc\nds_write_b128 {t[2]}, {ones}\ns_mov_b64 exec, {sav}')
    w2ops = [g for P_ in range(9) for g in pd.ops(P_)]
    def w2dma():
        for x_ in w2ops.pop(0): vm.op(x_) if x_.startswith('buffer') else k(x_)
    ix = []
    def issue(i):
        k(f's_lshl_b32 {st}, {st1}, 18\ns_add_u32 {st}, {st}, {O_X2}')
        vm.op(f'buffer_load_dwordx4 {XX.sub(8 * i, 4)}, {t[0]}, {Rws}, {st} offen sc1')
        ix.append(vm.op(f'buffer_load_dwordx4 {XX.sub(8 * i + 4, 4)}, {t[1]}, {Rws}, {st} offen sc1'))
        if i < 17: k(f's_add_u32 {st1}, {st1}, 1\ns_cmp_eq_u32 {st1}, 18\ns_cselect_b32 {st1}, 0, {st1}')
    lds_at = lambda a_: f'{aW[a_ // 0xf000]} offset:{a_ % 0xf000}'
    TF = W[1]; WR = [k.a(24, 4), k.a(24, 4)]
    def w_reads(i):
        return [f'ds_read_b128 {WR[i & 1].sub(4 * tt, 4)}, {lds_at(W1_AT[i] + 1024 * tt)}' for tt in range(6)]
    k(f's_cmp_lg_u32 {s_w}, 0\ns_cbranch_scc1 {wj}\n{go3_ld}')
    spin(go3_ld, [fv4[i] for i in range(4)], 2)
    k(f'{wj}:\ns_mul_i32 {st1}, {jm}, 3\ns_mul_i32 {so}, {jm}, 384\ns_add_u32 {so}, {so}, {O_MOD2}\ns_waitcnt vmcnt(16) lgkmcnt(0)\ns_barrier'); vm.reset(); lg.reset()
    STAMP(0)
    nis = 5
    for i in range(nis): issue(i)
    itf = [lg.op(f'ds_read_b128 {TF.sub(4 * i, 4)}, {aT} offset:{64 * i}') for i in range(18)]
    iwr = [lg.op(x_) for x_ in w_reads(0)]
    for i in range(18):
        lg.wait(itf[i]); k(f'{MF} {acc[4:8]}, {TF.sub(4 * i, 4)}, {TF.sub(4 * i, 4)}, {"0" if i == 0 else acc[4:8]}')
    cs = k.s(5, 1)
    for n_, (e, j_) in enumerate(((0, 1), (0, 2), (1, 1), (1, 2), (2, 2))): k(f'v_readlane_b32 {cs[n_]}, {acc[4 + e]}, {j_}')
    n2 = 0
    for i in range(18):
        if i == 9: vm.wait(itab)
        if i in (9, 13): k('s_barrier')
        if i == 1: STAMP(1)
        xg = XX.sub(8 * i + 2, 4); xr = XX.sub(8 * i - 2, 4) if i else None
        c_ = lambda r_, first: '0' if first else r_
        M = [(iwr[tt], f'{MF} {acc.sub(4 * tt, 4)}, {WR[i & 1].sub(4 * tt, 4)}, {xg}, {c_(acc.sub(4 * tt, 4), i == 0)}') for tt in range(6)]
        S_ = [f'{MF} {tacc}, {TF.sub(4 * i, 4)}, {xg}, {c_(tacc, i == 0)}', f'{MF} {qacc}, {xg}, {xg}, {c_(qacc, i == 0)}']
        if i: S_ += [f'{MF} {sacc}, {ones}, {xr}, {c_(sacc, i == 1)}', f'{MF} {gacc}, {xr}, {xr}, {c_(gacc, i == 1)}']
        Rd = w_reads(i + 1) if i < 17 else []
        vm.wait(ix[i])
        if i == 0: k(f'v_mov_b32 {XX[144]}, {XX[0]}\nv_mov_b32 {XX[145]}, {XX[1]}')
        nxt = []
        for x_ in S_:
            k(x_)
            if Rd: nxt.append(lg.op(Rd.pop(0)))
        for idr, mm in M:
            lg.wait(idr); k(mm)
            if Rd: nxt.append(lg.op(Rd.pop(0)))
        iwr = nxt
        if i == 4:
            k(f's_add_u32 m0, {sm}, {T_F}')
            itab = vm.op(f'buffer_load_dwordx4 {t[6]}, {Rws}, {so} offen sc1 lds')
        if nis < 18:
            for _ in range(2 if nis < i + 9 else 1):
                if nis < 18: issue(nis); nis += 1
        else:
            for _ in range(3):
                if n2 < (18 if i < 13 else 27): w2dma(); n2 += 1
    assert n2 == 27
    xr = XX.sub(142, 4)
    k(f'{MF} {sacc}, {ones}, {xr}, {sacc}\n{MF} {gacc}, {xr}, {xr}, {gacc}')
    STAMP(2)
    k.inject([lambda ks=ks: vm.op(wld(0, ks)) for ks in PI], 9)
    TB = [XX.sub(24, 16), XX.sub(40, 16)]; uu = XX.sub(56, 48)
    k(f'v_lshlrev_b32 {aT}, 5, {q}\nv_add_u32 {aT}, {T_F}, {aT}')
    tf_read = lambda dst, r_, e: f'ds_read_b128 {dst}, {aT} offset:{384 * r_ + 128 * (e >> 1) + 16 * (e & 1)}'
    def diag(d, g_):
        k(f'v_cndmask_b32 {d}, {g_[0]}, {g_[1]}, {msk[0]}\nv_cndmask_b32 {d}, {d}, {g_[2]}, {msk[1]}\nv_cndmask_b32 {d}, {d}, {g_[3]}, {msk[2]}')
        return lg.op(f'ds_bpermute_b32 {d}, {bidx}, {d}')
    i2 = diag(t[2], qacc); i1 = diag(t[1], gacc)
    iu = [lg.op(tf_read(uu.sub(24 * r_ + 4 * e, 4), 3 + r_, e)) for e in range(6) for r_ in range(2)]
    s1 = XX.sub(140, 2); gc = XX.sub(136, 4)
    k(f'v_mov_b32 {t[0]}, {sacc[0]}'); lg.wait(i1)
    sigma_bf16(k, t[0], t[1])
    k(f'v_cvt_pk_bf16_f32 {t[0]}, {t[0]}, {t[1]}\nv_and_b32 {s1[0]}, 0xffff0000, {t[0]}\nv_lshlrev_b32 {s1[1]}, 16, {t[0]}')
    k(f'v_rcp_f32 {s1[0]}, {s1[0]}\nv_mov_b32 {t[3]}, {cs[1]}\nv_mov_b32 {t[4]}, {cs[3]}\nv_mul_f32 {s1[1]}, -{s1[1]}, {s1[0]}')
    k(f'v_fma_f32 {t[3]}, {s1[1]}, {cs[0]}, {t[3]}\nv_fma_f32 {t[0]}, {s1[0]}, {tacc[0]}, {t[3]}')
    k(f'v_fma_f32 {t[3]}, {s1[1]}, {tacc[1]}, {tacc[2]}\nv_add_f32 {t[3]}, {t[3]}, {t[3]}\nv_fma_f32 {t[3]}, {s1[0]}, {t[2]}, {t[3]}')
    k(f'v_add_f32 {t[4]}, {t[4]}, {t[4]}\nv_fma_f32 {t[4]}, {s1[1]}, {cs[2]}, {t[4]}\nv_mov_b32 {t[5]}, {cs[4]}\nv_fma_f32 {t[4]}, {s1[1]}, {t[4]}, {t[5]}')
    k(f'v_fma_f32 {t[1]}, {s1[0]}, {t[3]}, {t[4]}')
    sigma_bf16(k, t[0], t[1])
    k(f'v_cvt_pk_bf16_f32 {t[1]}, {t[1]}, {t[1]}\nv_and_b32 {t[1]}, 0xffff0000, {t[1]}')
    gelu_consts(k, t[1], gc)
    k(f's_mul_i32 {st}, {jm}, {3 * GPL}\ns_lshl_b32 {so}, {mt}, 10\ns_add_u32 {st}, {st}, {so}\ns_add_u32 {st}, {st}, {O_G + 1024}')
    lg.all()
    for e in range(12): k(f'v_pk_fma_f32 {uu.sub(2 * e, 2)}, {uu.sub(2 * e, 2)}, {s1}, {uu.sub(24 + 2 * e, 2)} op_sel:[0,1,0] op_sel_hi:[1,1,1]')
    for e in range(12): k(f'v_pk_fma_f32 {acc.sub(2 * e, 2)}, {acc.sub(2 * e, 2)}, {s1}, {uu.sub(2 * e, 2)} op_sel_hi:[1,0,1]')
    tt_ = TB[0]; go = TB[1]
    for Pp in range(3):
        a = acc.sub(8 * Pp, 8); u = tt_.sub(0, 8)
        for e in range(4): k(f'v_pk_mul_f32 {u.sub(2 * e, 2)}, {a.sub(2 * e, 2)}, {a.sub(2 * e, 2)}')
        for e in range(4): k(f'v_pk_fma_f32 {u.sub(2 * e, 2)}, {u.sub(2 * e, 2)}, {gc[0:2]}, {gc[0:2]} op_sel:[0,1,0] op_sel_hi:[1,1,0]')
        for e in range(4): k(f'v_pk_mul_f32 {u.sub(2 * e, 2)}, {u.sub(2 * e, 2)}, {a.sub(2 * e, 2)}')
        for e in range(8): k(f'v_exp_f32 {u[e]}, {u[e]}')
        for e in range(4): k(f'v_pk_fma_f32 {u.sub(2 * e, 2)}, {u.sub(2 * e, 2)}, {gc[2:4]}, {gc[2:4]} op_sel_hi:[1,0,0]')
        for e in range(8): k(f'v_rcp_f32 {u[e]}, {u[e]}')
        for e in range(4): k(f'v_pk_mul_f32 {u.sub(2 * e, 2)}, {u.sub(2 * e, 2)}, {a.sub(2 * e, 2)}')
        o = go.sub(4 * Pp, 4)
        for e in range(4): k(f'v_cvt_pk_bf16_f32 {o[e]}, {u[2 * e]}, {u[2 * e + 1]}')
        if Pp == 2: k.flush_inject()
        ig = vm.op(f'buffer_store_dwordx4 {o}, {l16}, {Rws}, {st} offen sc1')
        if Pp < 2: k(f's_add_u32 {st}, {st}, {GPL}')
    h2f = uu.sub(0, 24); x2f = XX.sub(104, 24); gbv = RB
    xsrc = lambda e: XX[8 * (e // 8) + (0, 1, 6, 7)[(e % 8) // 2]]
    ig_ = [lg.op(tf_read(gbv.sub(4 * e, 4), 1, e)) for e in range(6)]
    is_ = [lg.op(tf_read(uu.sub(24 + 4 * e, 4), 0, e)) for e in range(6)]
    for e in range(24): k(un(x2f[e], xsrc(e), e & 1))
    dl = [XX[128 + i] for i in range(6)]
    k(f'v_cmp_gt_u32 vcc, 2, {q}')
    for g, dlt in enumerate((-1, 1, -2, 2)):
        k(f'v_add_u32 {dl[4]}, {16 + dlt}, {row}\nv_lshrrev_b32 {dl[5]}, 4, {dl[4]}\nv_and_b32 {dl[4]}, 15, {dl[4]}\nv_lshlrev_b32 {dl[4]}, 4, {dl[4]}')
        k(f'v_lshl_add_u32 {dl[4]}, {dl[5]}, 10, {dl[4]}\nv_lshl_add_u32 {dl[g]}, {q}, 8, {dl[4]}')
    k(f'v_cndmask_b32 {dl[4]}, {dl[1]}, {dl[0]}, vcc\nv_cndmask_b32 {dl[5]}, {dl[3]}, {dl[2]}, vcc')
    pa = XX[134]
    k(f'v_min_u32 {pa}, 2, {lane}\nv_add_u32 {pa}, {mt}, {pa}\nv_add_u32 {pa}, -1, {pa}\nv_max_i32 {pa}, 0, {pa}\nv_min_u32 {pa}, 127, {pa}\nv_lshlrev_b32 {pa}, 7, {pa}')
    vm.wait(ig)
    flag_add(mt, O_FC)
    STAMP(3)
    k(f's_add_u32 {sn}, {sn}, 18432')
    for e in range(12): k(f'v_pk_fma_f32 {h2f.sub(2 * e, 2)}, {x2f.sub(2 * e, 2)}, {s1}, {s1} op_sel:[0,0,1] op_sel_hi:[1,0,1]')
    lg.all()
    for e in range(12): k(f'v_pk_fma_f32 {h2f.sub(2 * e, 2)}, {h2f.sub(2 * e, 2)}, {gbv.sub(2 * e, 2)}, {uu.sub(24 + 2 * e, 2)}')
    NPRE = 5
    k('s_barrier')
    WP = [WR[0], WR[1], k.a(24, 4), k.a(24, 4), XX.sub(0, 24)]
    w2_addr = lambda i, tt: lds_at(W2_AT[i] + 1024 * tt)
    for i in range(NPRE):
        for tt in range(6): lg.op(f'ds_read_b128 {WP[i].sub(4 * tt, 4)}, {w2_addr(i, tt)}')
    poll(pa, O_FC, 6)
    STAMP(4)
    GF = TF
    sel = lambda s: dl[4] if s == 4 else dl[5] if s == 13 else dl[(2 * s) // 9]
    ig = []
    for s in range(18):
        k(f's_mov_b32 {st}, {O_G + s * GPL}')
        ig.append(vm.op(f'buffer_load_dwordx4 {GF.sub(4 * s, 4)}, {sel(s)}, {Rws}, {st} offen sc1'))
    lg.all()
    ird = {}
    for s in range(18):
        vm.wait(ig[s])
        wr = WP[s % NPRE]
        for tt in range(6):
            if s >= NPRE: lg.wait(ird[s, tt])
            k(f'{MF} {acc.sub(4 * tt, 4)}, {wr.sub(4 * tt, 4)}, {GF.sub(4 * s, 4)}, {"0" if s == 0 else acc.sub(4 * tt, 4)}')
            if s + NPRE < 18: ird[s + NPRE, tt] = lg.op(f'ds_read_b128 {wr.sub(4 * tt, 4)}, {w2_addr(s + NPRE, tt)}')
        vm.op(wld(1, s))
    lg.all()
    STAMP(5)
    aS = dl[1]
    k(f'v_lshrrev_b32 {t[0]}, 1, {q}')
    k(f'v_lshlrev_b32 {aS}, 6, {t[0]}\nv_lshl_add_u32 {aS}, {m}, 2, {aS}')
    k(f's_mul_i32 {st}, {rb}, 18\ns_mul_i32 {so}, {jm}, 3\ns_add_u32 {st}, {st}, {so}\ns_lshl_b32 {st}, {st}, 2\ns_add_u32 {st}, {st}, {s_w}\ns_lshl_b32 {st}, {st}, 10\ns_add_u32 {st}, {st}, {O_X1F}')
    for e in range(12): k(f'v_pk_add_f32 {h2f.sub(2 * e, 2)}, {h2f.sub(2 * e, 2)}, {acc.sub(2 * e, 2)}')
    for Pp in range(3):
        o = go.sub(4 * Pp, 4)
        for e in range(4): k(f'v_cvt_pk_bf16_f32 {o[e]}, {h2f[8 * Pp + 2 * e]}, {h2f[8 * Pp + 2 * e + 1]}')
        vm.op(f'buffer_store_dwordx4 {o}, {l16}, {Rws}, {st} offen sc1')
        if Pp < 2: k(f's_add_u32 {st}, {st}, 4096')
    k(f'v_pk_add_f32 {t[0:2]}, {h2f[0:2]}, {h2f[2:4]}\nv_pk_mul_f32 {t[2:4]}, {h2f[0:2]}, {h2f[0:2]}\nv_pk_fma_f32 {t[2:4]}, {h2f[2:4]}, {h2f[2:4]}, {t[2:4]}')
    for e in range(2, 12): k(f'v_pk_add_f32 {t[0:2]}, {t[0:2]}, {h2f.sub(2 * e, 2)}\nv_pk_fma_f32 {t[2:4]}, {h2f.sub(2 * e, 2)}, {h2f.sub(2 * e, 2)}, {t[2:4]}')
    k(f'v_add_f32 {t[0]}, {t[0]}, {t[1]}\nv_add_f32 {t[2]}, {t[2]}, {t[3]}\nv_permlane32_swap_b32 {t[0]}, {t[2]}\nv_add_f32 {t[0]}, {t[0]}, {t[2]}')
    k(f'v_mov_b32 {t[1]}, {t[0]}\nv_permlane16_swap_b32 {t[0]}, {t[1]}\nv_add_f32 {t[0]}, {t[0]}, {t[1]}')
    k(f's_mul_i32 {st}, {mt}, 6\ns_add_u32 {st}, {st}, {jm}\ns_lshl_b32 {st}, {st}, 7\ns_add_u32 {st}, {st}, {O_PST}\ns_mov_b32 exec_lo, 0xffff\ns_mov_b32 exec_hi, 0xffff')
    vm.op(f'buffer_store_dword {t[0]}, {aS}, {Rws}, {st} offen sc1')
    k('s_mov_b64 exec, -1')
    vm.all()
    flag_add(mt, O_FD)
    STAMP(6)
    k('s_branch k2_phase_e')
    k('k2_idle:')
    k.V.free, k.A.free, k.S.free = list(keepV), list(keepA), list(keepS)
    vm, lg = trackers(k)
    cj = ColJob(k, vm, lg, lane, s_w)
    fr = k.v(72, 4); sl = k.s(); dst = k.s(); job = k.s(); R4 = k.s(4)
    srd(k, R4, P['w4'], D * F * 2)
    lpj, dn = k.label('w4job'), k.label('w4done')
    k(f's_mov_b32 {job}, s2\n{lpj}:\ns_mul_hi_u32 {sl}, {job}, {(1 << 32) // 9 + 1}\ns_mul_i32 {dst}, {sl}, 9\ns_sub_u32 {dst}, {job}, {dst}\ns_lshl_b32 {dst}, {dst}, 7')
    k(f's_mul_i32 {st}, {sl}, {576 * 1152}\ns_add_u32 {dst}, {dst}, {st}\ns_mov_b32 {st}, 1152')
    cj.dma(R4, dst, st, 0, True)
    ad = cj.addr(0, w4order=True)
    k('s_waitcnt vmcnt(0)\ns_barrier'); vm.reset()
    ids = cj.reads(ad, fr)
    if 'w4wait' in opt:
        k(go3_ld); spin(go3_ld, [fv4[i] for i in range(4)]); vm.reset()
    k(f's_lshl_b32 {dst}, {job}, 2\ns_add_u32 {dst}, {dst}, {s_w}\ns_mul_i32 {dst}, {dst}, 18432\ns_add_u32 {dst}, {dst}, {O_W4F}')
    cj.store(fr, ids, Rws, dst, 1024)
    vm.all()
    flag_add(sl, O_FW)
    k(f's_barrier\ns_add_u32 {job}, {job}, 64\ns_cmp_lt_u32 {job}, 72\ns_cbranch_scc1 {lpj}\n{go3_ld}')
    spin(go3_ld, [fv4[i] for i in range(4)]); vm.reset()
    for r_ in range(2):
        for ks in PI: vm.op(wld(r_, ks))
        if r_ == 0: k(f's_add_u32 {sn}, {sn}, 18432')
    STAMP(14)
    k('k2_phase_e:')
    k.V.free, k.A.free, k.S.free = keepV, keepA, keepS
    vm, lg = trackers(k)
    vm.n = 1
    XA = k.a(112, 4); XV = k.v(176, 4)
    xf = lambda ks, t_: XA.sub(16 * ks + 4 * t_, 4) if 16 * ks + 4 * t_ < 112 else XV.sub(16 * ks + 4 * t_ - 112, 4)
    fv4.release()
    k(f's_add_u32 {sn}, {sn}, 18432')
    acc = [k.v(16, 4), k.v(16, 4)]
    t = acc[1].sub(0, 12); pa = k.v()
    k(f's_lshl_b32 {st}, {mb}, 2\nv_add_u32 {pa}, {st}, {lane}\ns_add_u32 {st}, {fs}, {(O_FW - O_FD) // 128}\nv_mov_b32 {t[0]}, {st}\nv_cmp_gt_u32 vcc, 4, {lane}')
    k(f'v_cndmask_b32 {pa}, {t[0]}, {pa}, vcc\nv_lshlrev_b32 {pa}, 7, {pa}\nv_mov_b32 {t[0]}, 36\nv_cndmask_b32 {t[0]}, {t[0]}, 6, vcc')
    k(f's_lshl_b32 {sm}, {s_w}, 10\ns_mul_i32 {so}, {mb}, 73728\ns_add_u32 {so}, {so}, {sm}\ns_add_u32 {so}, {so}, {O_X1F}')
    sk_ = k.label('nopoll')
    k(f's_cmp_lg_u32 {s_w}, 0\ns_cbranch_scc1 {sk_}')
    poll(pa, O_FD, t[0], sleep=1, fv=t[1])
    k(f'{sk_}:\ns_waitcnt vmcnt(0)\ns_barrier')
    STAMP(7)
    ixd = []; idv = {}
    def xdma(ks):
        k(f's_add_u32 m0, {sm}, {XBUF + 4096 * ks}\ns_add_u32 {st}, {so}, {4096 * ks}')
        ixd.append(vm.op(f'buffer_load_dwordx4 {l16}, {Rws}, {st} offen sc1 lds'))
    for ks in PI[:7]: xdma(ks)
    k(f's_mul_i32 {st}, {mb}, 3072\ns_add_u32 {st}, {st}, {sm}\ns_add_u32 {st}, {st}, {O_PST}\ns_add_u32 m0, {sm}, {PSTL}')
    vm.op(f'buffer_load_dwordx4 {l16}, {Rws}, {st} offen sc1 lds')
    k(f'v_mul_u32_u24 {pa}, 768, {q}\nv_lshl_add_u32 {pa}, {m}, 2, {pa}\nv_add_u32 {pa}, {PSTL}, {pa}')
    aX = [l16, k.v()]; aHr = [k.v(), k.v()]; aH = [k.v(), k.v()]
    k(f'v_add_u32 {aX[1]}, 0x9000, {l16}\nv_add_u32 {aHr[0]}, {HBUF}, {l16}\nv_add_u32 {aHr[1]}, {HBUF + 0x9000}, {l16}')
    for h in range(2):
        k(f's_mul_i32 {st}, {s_w}, 9\ns_add_u32 {st}, {st}, {h}\ns_and_b32 {st1}, {st}, 1\ns_lshl_b32 {st1}, {st1}, 3\ns_lshr_b32 {st}, {st}, 1\ns_lshl_b32 {st}, {st}, 12')
        k(f's_add_u32 {st}, {st}, {st1}\nv_add_u32 {aH[h]}, {st}, {aHr[0]}')
    GC = [RB.sub(8 + 3 * i, 3) for i in range(4)]
    gt = RB.sub(0, 8); hp = [RB.sub(20, 2), RB.sub(22, 2)]
    def gelu_ops(a, ah):
        out = []
        for t_ in range(4):
            c = GC[t_]; x = [a[4 * t_ + e] for e in range(4)]; u = [gt[4 * (t_ & 1) + e] for e in range(4)]; o = hp[t_ & 1]
            out += [f'v_mul_f32 {u[e]}, {x[e]}, {x[e]}' for e in range(4)]
            out += [f'v_fma_f32 {u[e]}, {u[e]}, {c[1]}, {c[0]}' for e in range(4)]
            out += [f'v_mul_f32 {u[e]}, {u[e]}, {x[e]}' for e in range(4)]
            out += [f'v_exp_f32 {u[e]}, {u[e]}' for e in range(4)]
            out += [f'v_fma_f32 {u[e]}, {u[e]}, {c[2]}, {c[2]}' for e in range(4)]
            out += [f'v_rcp_f32 {u[e]}, {u[e]}' for e in range(4)]
            out += [f'v_mul_f32 {u[e]}, {u[e]}, {x[e]}' for e in range(4)]
            out += [f'v_cvt_pk_bf16_f32 {o[0]}, {u[0]}, {u[1]}', f'v_cvt_pk_bf16_f32 {o[1]}, {u[2]}, {u[3]}']
            out.append(f'ds_write_b64 {ah}, {o} offset:{1024 * t_}')
        return out
    def cost(x_):
        if isinstance(x_, tuple): return x_[0]
        return 2 if x_.startswith(('v_exp', 'v_rcp', 'ds_write')) else 1
    def emit(x_):
        if isinstance(x_, tuple): x_[1]()
        elif x_.startswith('ds_'): lg.op(x_)
        elif x_.startswith('buffer_'): vm.op(x_)
        else: k(x_)
    wid = {}; nw = {}; due = []
    from_lds = []; lid = {}
    def refill(r_):
        ks = due.pop()
        if from_lds: lid[r_, ks] = lg.op(f'ds_read_b128 {W[r_].sub(4 * ks, 4)}, {from_lds[0]} offset:{1024 * ks}'); nw[r_, ks] = 0
        else: nw[r_, ks] = vm.op(wld(r_, ks))
    def tile(a, r_, fill, steps=range(18), lead=2, pre=None, post=None, per_step=0, rate=None, load=True, at=None):
        steps = list(steps); nm = 4 * len(steps); n_ = 0; fill = list(fill); at = at or {}
        total = len(steps) * (1.5 + per_step) + sum(cost(x_) for x_ in fill)
        rate = rate or total / nm
        cum = 0
        for i in steps:
            ks = PI[i]
            if i in at: fill += at[i]; cum = max(cum, rate * n_ - 1)
            if pre: pre(i)
            if i % 2 == 0:
                n0 = len(k.l); vm.wait(max(wid.get((r_, PI[j]), 0) for j in (i, i + 1))); cum += len(k.l) - n0
            for t_ in range(4):
                k(f'{MF} {a.sub(4 * t_, 4)}, {W[r_].sub(4 * ks, 4)}, {xf(ks, t_)}, {"0" if i == 0 else a.sub(4 * t_, 4)}')
                n_ += 1
                nxt = 0
                if t_ == 0 and due: refill(r_); cum += 1
                if t_ == 3:
                    if load: due.append(ks)
                    if post: post(i)
                    cum += per_step
                    nxt = i % 2
                while n_ >= lead and fill and cum + nxt + cost(fill[0]) / 2 <= rate * n_: cum += cost(fill[0]); emit(fill.pop(0))
        for x_ in fill: emit(x_)
        if steps[-1] == 17 and due: refill(r_)
        if steps[-1] == 17: wid.update(nw); nw.clear()
    def frag_reads(base, i):
        ks = PI[i]
        return [lg.op(f'ds_read_b128 {xf(ks, t_)}, {base[ks // 9]} offset:{(ks % 9) * 4096 + 1024 * t_}') for t_ in range(4)]
    nxt_tile = lambda: k(f's_add_u32 {sn}, {sn}, 18432')
    rd = {}
    XB = {0: 2, 1: 6, 5: 11, 10: 17}
    def pre0(i):
        if i in XB: vm.wait(ixd[XB[i]]); k('s_barrier')
        if i == 0:
            for j in (0, 1): rd[j] = frag_reads(aX, j)
        if i + 2 < 18: rd[i + 2] = frag_reads(aX, i + 2)
        lg.wait(rd[i][3])
    todo = [(0, lambda ks=ks: xdma(ks)) for ks in PI[7:]]
    todo += [(i, lambda ks=PI[i]: wid.__setitem__((0, ks, 'n'), vm.op(wld(0, ks)))) for i in range(18)]
    def post0(i):
        for _ in range(18 if i == 17 else 4 if i < 3 else 3):
            if todo and todo[0][0] <= i: todo.pop(0)[1]()
        if i == 10:
            for j in range(6): idv['p'] = lg.op(f'ds_read2_b32 {t.sub(2 * j, 2)}, {pa} offset0:{32 * j} offset1:{32 * j + 16}')
    class Rec:
        def __init__(self): self.l = []
        def __call__(self, x_): self.l += x_.split('\n')
    rec = Rec()
    for e in (0, 4, 8): rec(f'v_add_f32 {t[e]}, {t[e]}, {t[e + 2]}\nv_add_f32 {t[e + 1]}, {t[e + 1]}, {t[e + 3]}')
    for e in (4, 8): rec(f'v_add_f32 {t[0]}, {t[0]}, {t[e]}\nv_add_f32 {t[1]}, {t[1]}, {t[e + 1]}')
    sigma_bf16(rec, t[0], t[1])
    rec(f'v_cvt_pk_bf16_f32 {t[1]}, {t[1]}, {t[1]}\nv_and_b32 {t[1]}, 0xffff0000, {t[1]}\nv_lshlrev_b32 {t[2]}, 2, {m}')
    c1 = [(1, lambda: lg.wait(idv['p']))] + rec.l
    c1 += [(1, lambda i=i: idv.__setitem__('b', lg.op(f'ds_bpermute_b32 {t[4 + i]}, {t[2]}, {t[1]} offset:{64 * i}'))) for i in range(4)]
    rec = Rec()
    for i in range(4): gelu_consts(rec, t[4 + i], GC[i])
    c2 = [(1, lambda: lg.wait(idv['b']))] + [rec.l[6 * i + j] for j in range(6) for i in range(4)]
    tile(acc[0], 0, [], pre=pre0, post=post0, load=False, rate=2.0, at={12: c1, 16: c2})
    assert not todo
    for ks in range(18): wid[0, ks] = wid.pop((0, ks, 'n'))
    nxt_tile()
    STAMP(8)
    fa_ = k.v(); xc = k.v(3, 1)
    sS = k.s(); sM = k.s()
    k(f's_add_u32 {sS}, {s4}, {4 * 18432}\ns_mul_i32 {sM}, {s_w}, 18432')
    def check(idl, val, tgt, vaddr, base):
        ok = k.label('up'); d0 = None
        vm.wait(idl)
        k(f'v_cmp_gt_u32 vcc, {tgt}, {val}\ns_cmp_eq_u64 vcc, 0\ns_cbranch_scc1 {ok}')
        d0 = vm.done; poll(vaddr, base, tgt, fv=val); vm.done = d0
        k(f'{ok}:')
    STAGE = 'nostage' not in opt
    rd = {}
    for tt in range(1, 9):
        fill = gelu_ops(acc[1 - (tt & 1)], aH[1 - (tt & 1)]) + [f'v_add_u32 {aH[1 - (tt & 1)]}, 4096, {aH[1 - (tt & 1)]}']
        if 4 <= tt <= 7 and STAGE:
            if tt == 4: lg.all(); k('s_barrier')
            for n_, ks in enumerate(range((tt - 4) * 18 // 4, (tt - 3) * 18 // 4)):
                fill[10 + 26 * n_:10 + 26 * n_] = [f's_add_u32 m0, {sM}, {4096 * (ks // 4)}',
                    (1, lambda ks=ks: idv.__setitem__('stage', vm.op(f'buffer_load_dwordx4 {vo[ks // 4]}, {RW}, {sS} offen offset:{1024 * (ks % 4)} sc1 lds')))]
        if tt == 1:
            k(f's_lshr_b32 {so}, {fs}, 1\ns_mul_i32 {so}, {so}, 9\ns_and_b32 {st1}, {fs}, 1\ns_lshl_b32 {st1}, {st1}, 11\ns_lshr_b32 {sm}, {s_w}, 1\ns_lshl_b32 {sm}, {sm}, 8\ns_add_u32 {st1}, {st1}, {sm}')
            k(f's_and_b32 {sm}, {s_w}, 1\ns_lshl_b32 {sm}, {sm}, 3\ns_add_u32 {st1}, {st1}, {sm}\nv_lshrrev_b32 {xc[2]}, 1, {q}\nv_lshl_add_u32 {xc[0]}, {xc[2]}, 10, {st1}')
            k(f'v_lshl_add_u32 {xc[0]}, {m}, 4, {xc[0]}\nv_and_b32 {xc[2]}, 1, {q}\nv_lshl_add_u32 {xc[2]}, {xc[2]}, 2, {xc[0]}')
            for h in range(2):
                k(f's_add_u32 {st}, {so}, {h}\ns_and_b32 {sm}, {st}, 1\ns_lshl_b32 {sm}, {sm}, 9\ns_lshr_b32 {st}, {st}, 1\ns_lshl_b32 {st}, {st}, 12\ns_add_u32 {st}, {st}, {sm}\nv_add_u32 {xc[h]}, {st}, {xc[2]}')
            k(f's_mul_i32 {st}, {s_w}, 2304\ns_add_u32 {st}, {st}, {X1C}\nv_lshl_add_u32 {xc[2]}, {lane}, 2, {st}')
        if 1 <= tt <= 3:
            for t_ in range(3 * tt - 3, 3 * tt):
                def cp(t_=t_): idv['x'] = lg.op(f'ds_read_b32 {pa}, {xc[t_ & 1]} offset:{4096 * (t_ >> 1)}')
                def wr(t_=t_): lg.wait(idv['x']); lg.op(f'ds_write_b32 {xc[2]}, {pa} offset:{256 * t_}')
                n_ = 20 + 33 * (t_ % 3)
                fill[n_:n_] = [(1, cp)]; fill[n_ + 20:n_ + 20] = [(2, wr)]
        if tt == 7: k(f's_mov_b32 {sn}, {s4}')
        if tt in (1, 4, 7, 8): STAMP({1: 1, 4: 2, 7: 3, 8: 4}[tt], 'g3st')
        if tt < 8: tile(acc[tt & 1], tt & 1, fill)
        else:
            lg.all(); k('s_barrier')
            def post8(i):
                if i < 12: rd[i] = frag_reads(aHr, i)
            tile(acc[0], 0, fill, post=post8, per_step=2.7)
        nxt_tile()
    STAMP(9)
    k('s_waitcnt lgkmcnt(0)\ns_barrier'); lg.reset()
    for j in (12, 13): rd[j] = frag_reads(aHr, j)
    tile(acc[1], 1, gelu_ops(acc[0], aH[0]), steps=range(10), lead=1)
    lg.all(); k('s_barrier')
    for j in range(14, 18): rd[j] = frag_reads(aHr, j)
    tile(acc[1], 1, [], steps=range(10, 18), pre=lambda i: lg.wait(rd[i][3]) if i >= 14 else None)
    Rout = k.s(4)
    sp = k.s(); sq = k.s(); sf = k.s(); T0 = k.s(); sl_ = k.s(); po = [gt.sub(0, 4), gt.sub(4, 4)]
    aP, aR, aO = GC[0][0], GC[0][1], GC[0][2]; aL, aLr, aLg = GC[1][0], GC[1][1], GC[1][2]; aOw, aOr = GC[2][0], GC[2][1]; fv = pa; fpa = fa_
    u0, u1, u2 = hp[0][0], hp[0][1], hp[1][0]
    X2L, GBL, OUTB = HBUF, HBUF + 9216, HBUF + 13312
    sx_ = k.s()
    setup = f"""s_mov_b32 {Rout[0]}, {P['out'][0]}
s_mov_b32 {Rout[1]}, {P['out'][1]}
s_mov_b32 {Rout[2]}, {L * D * 2}
s_mov_b32 {Rout[3]}, 0x20000
s_lshl_b32 {st}, {fs}, 13
s_mul_i32 {sq}, {mb}, {9 * 65536}
s_add_u32 {sq}, {sq}, {st}
s_add_u32 {sq}, {sq}, {O_PART}
s_mul_i32 {sf}, {mb}, 36
s_lshr_b32 {T0}, {fs}, 1
s_add_u32 {st}, {sf}, {T0}
s_lshl_b32 {st}, {st}, 7
v_mov_b32 {fpa}, {st}
s_add_u32 {sf}, {sf}, {s_w}
s_lshl_b32 {sf}, {sf}, 7
s_add_u32 {sf}, {sf}, {O_FP}
s_mul_i32 {T0}, {T0}, 9
s_lshl_b32 {st}, {s_w}, 8
v_lshl_add_u32 {u0}, {m}, 4, {st}
v_lshl_add_u32 {aP}, {q}, 10, {u0}
v_and_b32 {u1}, 1, {q}
v_lshrrev_b32 {u2}, 1, {q}
v_lshl_add_u32 {u0}, {u2}, 4, {m}
v_lshlrev_b32 {aR}, 4, {u0}
v_lshl_add_u32 {aR}, {u1}, 2, {aR}
s_and_b32 {so}, {fs}, 1
s_lshl_b32 {st}, {mb}, 1
s_add_u32 {so}, {so}, {st}
s_lshl_b32 {so}, {so}, 9
s_lshl_b32 {st}, {s_w}, 15
s_add_u32 {so}, {so}, {st}
s_and_b32 {st}, {s_w}, 1
s_lshl_b32 {st}, {st}, 3
s_add_u32 {so}, {so}, {st}
v_add_u32 {aR}, {so}, {aR}
s_mul_i32 {sx_}, {s_w}, 2304
s_add_u32 {sx_}, {sx_}, {X2L}
v_lshl_add_u32 {aLr}, {lane}, 2, {sx_}
s_mul_i32 {st}, {s_w}, 1040
s_add_u32 {st}, {st}, {GBL}
v_lshl_add_u32 {aLg}, {u1}, 3, {st}
v_mul_u32_u24 {aOw}, 304, {u0}
v_lshl_add_u32 {aOw}, {u1}, 2, {aOw}
s_lshl_b32 {st}, {s_w}, 3
s_add_u32 {st}, {st}, {OUTB}
v_add_u32 {aOw}, {st}, {aOw}""".split('\n')
    k(f's_mul_i32 {sp}, {mb}, {9 * 65536}\ns_lshl_b32 {st}, {s_w}, 14\ns_add_u32 {sp}, {sp}, {st}\ns_lshl_b32 {st}, {fs}, 10\ns_add_u32 {sp}, {sp}, {st}\ns_add_u32 {sp}, {sp}, {O_PART}')
    k(f's_mov_b32 {sl_}, {sM}\nv_add_u32 {aL}, {sM}, {l16}')
    for x_ in (aHr[0], aHr[1], aH[0], aH[1], aX[1]): x_.release()
    ids = {}
    def S(t_, a, p):
        out = [f'v_cvt_pk_bf16_f32 {po[p][e]}, {a[8 * p + 2 * e]}, {a[8 * p + 2 * e + 1]}' for e in range(4)]
        out.append((1, lambda: ids.__setitem__(('S', t_), 0 if 'nopart' in opt else vm.op(f'buffer_store_dwordx4 {po[p]}, {vo[2 * p]}, {Rws}, {sp} offen {PFL}'))))
        return out + ([f's_add_u32 {sp}, {sp}, 65536'] if p else [])
    def G(t_):
        def f():
            if t_ == 8: k(f's_add_u32 {sf}, {sf}, 4096')
            vm.wait(ids['S', t_]); k('s_mov_b64 exec, 1')
            vm.op(f'buffer_atomic_add {one}, {zero}, {Rws}, {sf} offen offset:{512 * (t_ % 8)} sc1')
            k('s_mov_b64 exec, -1')
        return [(4, f)]
    def Lf(t_): return [f's_mov_b32 {st1}, {O_FP + 512 * t_}', (1, lambda: ids.__setitem__(('L', t_), vm.op(f'buffer_load_dword {fv}, {fpa}, {Rws}, {st1} offen sc1')))]
    def dma(lds, va, soff): return [f's_add_u32 m0, {sl_}, {lds}', (1, lambda: ids.__setitem__('d', vm.op(f'buffer_load_dwordx4 {va}, {Rws}, {soff} offen sc1 lds')))]
    def C(t_):
        return (dma(2048 * t_, aP, sq) + [f's_add_u32 {st}, {sq}, 4096'] + dma(2048 * t_ + 1024, aP, st) + [f's_add_u32 {sq}, {sq}, 65536']
                + [(0, lambda: ids.__setitem__(('C', t_), ids['d']))])
    def RS(t_): return [f's_add_u32 {st}, {T0}, {t_}', f's_lshl_b32 {st}, {st}, 17', f's_add_u32 {st}, {st}, {O_X2}', f's_add_u32 m0, {sx_}, {256 * t_}',
                        f'buffer_load_dword {aR}, {Rws}, {st} offen sc1 lds']
    def CK(t_): return [(4, lambda: check(ids['L', t_], fv, 8, fpa, O_FP + 512 * t_))]
    def R(t_, Dr, v):
        A_, B_, r_, g_ = Dr
        def rd_():
            vm.wait(ids['C', t_])
            lg.op(f'ds_read_b128 {A_}, {aL} offset:{2048 * t_}'); lg.op(f'ds_read_b128 {B_}, {aL} offset:{2048 * t_ + 1024}')
            lg.op(f'ds_read_b32 {r_[0]}, {aLr} offset:{256 * t_}'); lg.op(f'ds_read_b32 {r_[1]}, {xc[2]} offset:{256 * t_}'); ids['r', t_] = lg.op(f'ds_read_b64 {g_}, {aLg} offset:{64 * t_}')
        out = [(1, lambda: lg.wait(ids['r', t_]))]
        for d in range(4): out += [f'v_lshlrev_b32 {v[2 * d]}, 16, {A_[d]}', f'v_lshlrev_b32 {v[2 * d + 1]}, 16, {B_[d]}']
        for d in range(4): out += [f'v_and_b32 {A_[d]}, 0xffff0000, {A_[d]}', f'v_add_f32 {v[2 * d]}, {v[2 * d]}, {v[2 * d + 1]}', f'v_and_b32 {B_[d]}, 0xffff0000, {B_[d]}']
        out += [f'v_add_f32 {v[2 * d + 1]}, {A_[d]}, {B_[d]}' for d in range(4)]
        out += [f'v_permlane32_swap_b32 {v[e]}, {v[e + 4]}' for e in (0, 2, 1, 3)]
        out += [f'v_add_f32 {v[e]}, {v[e]}, {v[e + 4]}' for e in (0, 2, 1, 3)]
        out += [un(v[4 + e], r_[e >> 1], e & 1) for e in (2, 3)]
        out += [f'v_permlane16_swap_b32 {v[e]}, {v[e + 2]}' for e in range(2)]
        out += [un(v[4 + e], r_[e >> 1], e & 1) for e in (0, 1)]
        out += [f'v_add_f32 {v[e]}, {v[e]}, {v[e + 2]}' for e in range(2)]
        out += [f'v_add_f32 {v[e]}, {v[e]}, {v[e + 6]}' for e in range(2)]
        out += [f'v_fma_f32 {v[e]}, {v[e]}, {g_[e]}, {v[4 + e]}' for e in range(2)]
        out += [f'v_cvt_pk_bf16_f32 {v[4]}, {v[0]}, {v[1]}', f'ds_write_b32 {aOw}, {v[4]} offset:{32 * t_}']
        return [(6, rd_)], out
    SPOS = 9
    for tt in range(1, 9):
        nxt_tile()
        a_ = acc[tt & 1]
        at = {0: S(tt - 1, a_, 0), SPOS: S(tt - 1, a_, 1)}
        add = lambda i, ops: at.__setitem__(i, at.get(i, []) + ops)
        if tt == 1: add(2, setup)
        if tt == 2:
            k('s_barrier')
            add(2, [f's_lshl_b32 {st}, {T0}, 6', f's_add_u32 {st}, {st}, {O_MOD2 + 4608}', f's_lshl_b32 {so}, {s_w}, 10', f's_add_u32 m0, {so}, {GBL}',
                    f'buffer_load_dwordx4 {l16}, {Rws}, {st} offen sc1 lds'])
        if 2 <= tt <= 6: add(4, RS(2 * tt - 4) + (RS(2 * tt - 3) if tt < 6 else []))
        if 'sB' in opt:
            if tt in (3, 5, 6, 7, 8): add(6, G(tt - 2))
            if tt in (4, 6, 7, 8): add(15, Lf(tt - 3))
            if tt in (5, 7): add(12, CK(tt - 4) + C(tt - 5) + C(tt - 4))
            if tt == 8: add(12, CK(4) + C(4))
        elif 'sC' in opt:
            if tt in (4, 6, 7, 8): add(6, G(tt - 2))
            if tt in (6, 7, 8): add(15 if tt > 6 else 8, Lf({6: 2, 7: 4, 8: 5}[tt]))
            if tt == 7: add(1, CK(2) + C(0) + C(1) + C(2))
            if tt == 8: add(12, CK(4) + C(3) + C(4))
        else:
            if tt >= 2: add(6, G(tt - 2))
            if tt >= 4: add(12, CK(tt - 4) + C(tt - 4))
            if tt >= 3: add(15, Lf(tt - 3))
        if tt in (1, 4, 7, 8): STAMP({1: 1, 4: 2, 7: 3, 8: 4}[tt], 'g4st')
        if tt == 2 and STAGE: vm.wait(idv['stage']); from_lds.append(aL)
        tile(acc[1 - (tt & 1)], 1 - (tt & 1), [], rate=2.0, at=at, load=tt < 7)
        if tt == 2 and STAGE: from_lds.clear()
        if tt == 3 and STAGE: lg.all()
    STAMP(10)
    XV.release()
    Dn = [[k.v(4, 2), k.v(4, 2), k.v(2), k.v(2)] for _ in range(9)]; v2 = k.v(8, 2)
    RR = [R(t_, Dn[t_], v2) for t_ in range(9)]
    seq = S(8, acc[1], 0) + S(8, acc[1], 1) + G(7) + CK(5) + C(5) + Lf(6)
    for t_ in range(3): seq += RR[t_][0]
    seq += RR[0][1] + G(8) + RR[1][1] + CK(6) + C(6) + Lf(7) + RR[3][0] + RR[4][0] + RR[2][1] + RR[3][1] + CK(7) + C(7) + Lf(8) + RR[5][0] + RR[4][1] + RR[5][1]
    for x_ in seq: emit(x_)
    u = k.v(3)
    k(f'v_mul_u32_u24 {u[0]}, 3641, v0\nv_lshrrev_b32 {u[0]}, 16, {u[0]}\nv_mul_u32_u24 {u[1]}, 18, {u[0]}\nv_sub_u32 {u[1]}, v0, {u[1]}\nv_lshlrev_b32 {u[1]}, 4, {u[1]}')
    k(f'v_mul_u32_u24 {aOr}, 304, {u[0]}\nv_add_u32 {aOr}, {aOr}, {u[1]}\nv_add_u32 {aOr}, {OUTB}, {aOr}\nv_mul_u32_u24 {aO}, 1152, {u[0]}\nv_add_u32 {aO}, {aO}, {u[1]}')
    k(f's_lshl_b32 {st}, {mb}, 1\ns_and_b32 {so}, {fs}, 1\ns_add_u32 {so}, {so}, {st}\ns_mul_i32 {so}, {so}, {32 * 1152}\ns_lshl_b32 {st}, {T0}, 5\ns_add_u32 {so}, {so}, {st}')
    for x_ in CK(8): emit(x_)
    STAMP(11)
    for x_ in C(8) + RR[6][0] + RR[7][0] + RR[6][1] + RR[7][1] + RR[8][0] + RR[8][1]: emit(x_)
    lg.all(); k('s_barrier')
    o4 = [Dn[0][0], Dn[0][1], Dn[1][0]]
    k(f'v_cmp_gt_u32 vcc, 252, v0\ns_and_b64 exec, exec, vcc')
    io = [lg.op(f'ds_read_b128 {o4[i]}, {aOr} offset:{14 * 304 * i}') for i in range(3)]
    for i in range(3):
        if i == 2: k(f's_cmp_ge_u32 {s_w}, 2\ns_cbranch_scc1 {END}\nv_cmp_gt_u32 vcc, 72, v0\ns_and_b64 exec, exec, vcc')
        lg.wait(io[i])
        k(f'buffer_store_dwordx4 {o4[i]}, {aO}, {Rout}, {so} offen')
        if i < 2: k(f's_add_u32 {so}, {so}, {14 * 1152}')
    STAMP(12)
```

```python
from dsl import Kern, Reg, module
import struct

L, D, F = 2048, 576, 4608
NAME = 'adaLN_cond__ssm_conv_s4d__mixer_s_mlp__prompt'

O_FC    = 0x0000
O_FD    = 0x4000
O_FR    = 0x8000
O_FW    = 0x9000
O_FA    = 0x9400
O_FG    = 0x9800
O_FU    = 0x9A00
O_FP    = 0xA000
FLAG_BYTES = 0x40000
O_STATS = 0x40000
O_MODF  = 0x44000
O_MOD2  = O_MODF + 3 * 2304
O_MODB  = 0x49000
O_MODG  = 0x4A000
O_PST   = 0x50000
GPL = 130 * 1024
O_XT    = 0x100000
O_X2    = 0x3200000
O_G     = 0x400000
O_X1F   = 0x700000
O_RES   = 0xA00000
O_W1F   = 0xF00000
O_W2F   = 0x1000000
O_W3F   = 0x1100000
O_W4F   = 0x1700000
O_PART  = 0x2000000
O_DBG   = 0x3800000
WS_USED = 0x4000000

def f2u(x): return struct.unpack('<I', struct.pack('<f', x))[0]
def fl(x): return '0x%08x' % f2u(x)
POISON = 0xffffffff
RETRY_MAX = 2000
LOG2E = 1.4426950408889634

class Trk:
    def __init__(self, k, cnt, mx): self.k = k; self.cnt = cnt; self.mx = mx; self.n = 0; self.done = 0
    def op(self, s):
        self.k(s); self.n += 1; return self.n
    def wait(self, idx):
        if idx <= self.done: return
        left = min(self.n - idx, self.mx)
        self.k('s_waitcnt %s(%d)' % (self.cnt, left)); self.done = self.n - left
    def all(self): self.wait(self.n)
    def reset(self): self.done = self.n

def trackers(k): return Trk(k, 'vmcnt', 63), Trk(k, 'lgkmcnt', 15)

def srd(k, dst, ptr, nbytes, off=0):
    if off:
        k(f's_add_u32 {dst[0]}, {ptr[0]}, {off}\ns_addc_u32 {dst[1]}, {ptr[1]}, 0')
    else:
        k(f's_mov_b32 {dst[0]}, {ptr[0]}\ns_mov_b32 {dst[1]}, {ptr[1]}')
    k(f's_mov_b32 {dst[2]}, {nbytes}\ns_mov_b32 {dst[3]}, 0x20000')

def kernargs(k):
    a = k.s(16, 4); b = k.s(16, 4); c = k.s(2)
    k(f's_load_dwordx16 {a}, s[0:1], 0\ns_load_dwordx16 {b}, s[0:1], 64\ns_load_dwordx2 {c}, s[0:1], 128')
    names = ['u', 'logA', 'Aim', 'Cr', 'Ci', 'logdt', 'Dskip', 'Bx']
    P = {n: a.sub(2 * i, 2) for i, n in enumerate(names)}
    names = ['w1', 'w2', 'w3', 'w4', 'c', 'wmod', 'out', 'dbg']
    P.update({n: b.sub(2 * i, 2) for i, n in enumerate(names)})
    P['ws'] = c
    P['_blocks'] = (a, b)
    return P

def code_prefetch(k, vm, lo, hi, nbytes, tid, tmp, sp, back=False):
    here = k.label('pc')
    k(f's_getpc_b64 {sp}\n{here}:')
    if back: k(f's_sub_u32 {sp[0]}, {sp[0]}, {here}-{lo}\ns_subb_u32 {sp[1]}, {sp[1]}, 0')
    else: k(f's_add_u32 {sp[0]}, {sp[0]}, {lo}-{here}\ns_addc_u32 {sp[1]}, {sp[1]}, 0')
    k(f'v_lshlrev_b32 {tmp[0]}, 7, {tid}')
    k(f'v_min_u32 {tmp[0]}, {hi}-{lo}-4, {tmp[0]}')
    n = (nbytes + 32767) // 32768
    for i in range(n):
        x = f'global_load_dword {tmp[1]}, {tmp[0]}, {sp}'
        vm.op(x) if vm else k(x)
        if i + 1 < n:
            k(f'v_add_u32 {tmp[0]}, 0x8000, {tmp[0]}\nv_min_u32 {tmp[0]}, {hi}-{lo}-4, {tmp[0]}')

def interleave(*streams):
    out = []; n = max(len(s) for s in streams)
    for i in range(n):
        for s in streams:
            if i < len(s): out.append(s[i])
    return out

class ColJob:
    def __init__(self, k, vm, lg, lane, s_w):
        self.k, self.vm, self.lg, self.lane, self.s_w = k, vm, lg, lane, s_w
        k_ = k
        self.row = k.v(); self.chunk = k.v(); t = k.v(2)
        k_(f'v_lshrrev_b32 {self.row}, 3, {lane}')
        k_(f'v_bfe_u32 {t[0]}, {lane}, 5, 1\ns_and_b32 vcc_lo, {s_w}, 1\nv_xor_b32 {t[0]}, vcc_lo, {t[0]}')
        k_(f'v_bfe_u32 {t[1]}, {lane}, 4, 1\nv_lshl_or_b32 {t[0]}, {t[0]}, 1, {t[1]}')
        k_(f'v_lshlrev_b32 {t[0]}, 1, {t[0]}\nv_and_b32 {t[1]}, 7, {lane}\nv_xor_b32 {t[0]}, {t[0]}, {t[1]}')
        k_(f'v_lshlrev_b32 {self.chunk}, 4, {t[0]}')
        t.release()
    def dma(self, R, s_src, s_stride, buf, nt=False, nks=18):
        k = self.k
        va = k.v(); so = k.s(); st = k.s(); sm = k.s()
        k(f'v_mad_u32_u24 {va}, {self.row}, {s_stride}, {self.chunk}')
        k(f's_lshl_b32 {st}, {s_stride}, 3\ns_mul_i32 {so}, {st}, {self.s_w}\ns_add_u32 {so}, {so}, {s_src}\ns_lshl_b32 {st}, {st}, 2')
        k(f's_lshl_b32 {sm}, {self.s_w}, 10')
        last = None
        for i in range(nks):
            k(f's_add_u32 m0, {sm}, {buf + i * 4096}')
            last = self.vm.op(f'buffer_load_dwordx4 {va}, {R}, {so} offen {"nt " if nt else ""}lds')
            if i < nks - 1: k(f's_add_u32 {so}, {so}, {st}')
        va.release(); so.release(); st.release(); sm.release()
        return last
    def read(self, buf, fr, **kw):
        return self.reads(self.addr(buf, **kw), fr)
    def addr(self, buf, w4order=False, s_il=None, s_w4=None):
        k, lane = self.k, self.lane
        ad = k.v(4); q = k.v(); r = k.v(); c = k.v(); un = k.v(); wi = k.v(); t = k.v(2)
        k(f'v_lshrrev_b32 {q}, 4, {lane}\nv_bfe_u32 {r}, {lane}, 2, 2\nv_and_b32 {c}, 3, {lane}')
        k(f'v_mov_b32 {un}, {self.s_w}\nv_lshlrev_b32 {wi}, 3, {c}')
        if s_il is not None:
            st = k.s()
            k(f's_and_b32 {st}, {self.s_w}, 2\nv_lshrrev_b32 {t[0]}, 1, {c}\nv_add_u32 {t[0]}, {st}, {t[0]}')
            k(f's_and_b32 {st}, {self.s_w}, 1\ns_lshl_b32 {st}, {st}, 3\nv_and_b32 {t[1]}, 1, {c}\nv_lshl_add_u32 {t[1]}, {t[1]}, 4, {st}')
            k(f's_cmp_lg_u32 {s_il}, 0\ns_cselect_b64 vcc, -1, 0')
            k(f'v_cndmask_b32 {un}, {un}, {t[0]}, vcc\nv_cndmask_b32 {wi}, {wi}, {t[1]}, vcc')
            st.release()
        for h in range(2):
            kl = ad[h]
            if w4order: k(f'v_lshl_add_u32 {kl}, {q}, 2, {r}\nv_add_u32 {kl}, {16 * h}, {kl}')
            else: k(f'v_lshl_add_u32 {kl}, {q}, 3, {r}\nv_add_u32 {kl}, {4 * h}, {kl}')
            if s_w4 is not None:
                k(f'v_lshl_add_u32 {t[0]}, {q}, 2, {r}\nv_add_u32 {t[0]}, {16 * h}, {t[0]}\ns_cmp_eq_u32 {s_w4}, 4\ns_cselect_b64 vcc, -1, 0\nv_cndmask_b32 {kl}, {kl}, {t[0]}, vcc')
            k(f'v_lshrrev_b32 {t[0]}, 1, {kl}\nv_xor_b32 {t[0]}, {t[0]}, {kl}\nv_bfe_u32 {t[0]}, {t[0]}, 2, 1')
            k(f'v_bfe_u32 {t[1]}, {kl}, 1, 1\nv_lshl_or_b32 {t[0]}, {t[0]}, 1, {t[1]}\nv_xor_b32 {t[0]}, {t[0]}, {un}')
            k(f'v_lshl_add_u32 {t[0]}, {t[0]}, 5, {wi}\nv_lshl_add_u32 {kl}, {kl}, 7, {t[0]}')
            k(f'v_add_u32 {kl}, {buf}, {kl}\nv_add_u32 {ad[2 + h]}, 0x9000, {kl}')
        for x in (q, r, c, un, wi, t): x.release()
        return ad
    def reads(self, ad, fr, nks=18):
        ids = []
        for s in range(nks):
            for h in range(2):
                a = ad[h] if s < 9 else ad[2 + h]
                i = self.lg.op(f'ds_read_b64_tr_b16 {fr.sub(4 * s + 2 * h, 2)}, {a} offset:{(s % 9) * 4096}')
            ids.append(i)
        ad.release()
        return ids
    def store(self, fr, ids, Rws, s_dst, s_step, s_rot=None, flags='sc1', nks=18):
        k = self.k
        va = k.v(); so = k.s(); sl = k.s()
        k(f'v_lshlrev_b32 {va}, 4, {self.lane}')
        if s_rot is not None: k(f's_mov_b32 {sl}, {s_rot}')
        else: k(f's_mov_b32 {so}, {s_dst}')
        for s in range(nks):
            if s_rot is not None:
                k(f's_mul_i32 {so}, {sl}, {s_step}\ns_add_u32 {so}, {so}, {s_dst}')
                k(f's_add_u32 {sl}, {sl}, 1\ns_cmp_eq_u32 {sl}, 18\ns_cselect_b32 {sl}, 0, {sl}')
            if ids: self.lg.wait(ids[s])
            self.vm.op(f'buffer_store_dwordx4 {fr.sub(4 * s, 4)}, {va}, {Rws}, {so} offen {flags}')
            if s_rot is None and s < nks - 1: k(f's_add_u32 {so}, {so}, {s_step}')
        va.release(); so.release(); sl.release()

class Stamper:
    def __init__(self, k, on, area, t=None):
        self.k = k; self.on = on; self.area = area
        if isinstance(on, tuple): self.t = None
        elif on: self.r = k.s(16, 1); self.t = t or k.s(2)
    def __call__(self, i):
        if isinstance(self.on, tuple):
            if self.on[:2] == (self.area, i):
                sk = self.k.label('noprobe')
                self.k(f's_sub_u32 s96, s2, {self.on[2]}\ns_cmp_ge_u32 s96, {self.on[3] - self.on[2]}\ns_cbranch_scc1 {sk}\ns_memrealtime s[98:99]\n{sk}:')
            if self.on[:2] == (self.area, i) or i != 0: self.k('s_waitcnt lgkmcnt(0)')
        elif self.on:
            self.k(f'{"s_memtime" if self.on == 2 else "s_memrealtime"} {self.t}\ns_waitcnt lgkmcnt(0)\ns_mov_b32 {self.r[i]}, {self.t[0]}')
    def init(self):
        if self.on and not isinstance(self.on, tuple):
            for i in range(16): self.k(f's_mov_b32 {self.r[i]}, 0')
    def flush(self):
        if not self.on: return
        k = self.k; t = self.t; done = k.label('stamped')
        k(f's_waitcnt vmcnt(0) lgkmcnt(0)\ns_mov_b64 exec, -1\nv_mov_b32 v1, 0\nv_cmp_eq_u32 vcc, 0, v0\ns_and_b64 exec, exec, vcc\ns_cbranch_execz {done}')
        k(f's_load_dwordx2 {t}, s[0:1], 128\ns_lshl_b32 vcc_lo, s2, 6\ns_add_u32 vcc_lo, vcc_lo, {O_DBG + 0x400000 + self.area * 256 * 64}\nv_mov_b32 v1, vcc_lo\ns_waitcnt lgkmcnt(0)')
        for i in range(16): k(f'v_mov_b32 v2, {self.r[i]}\nglobal_store_dword v1, v2, {t} offset:{4 * i}')
        k(f'{done}:')

def sigma_bf16(k, mean, var):
    k(f'v_mul_f32 {mean}, {fl(1 / 576)}, {mean}\nv_mul_f32 {var}, {fl(1 / 576)}, {var}')
    k(f'v_fma_f32 {var}, -{mean}, {mean}, {var}\nv_max_f32 {var}, 0, {var}')
    k(f'v_cvt_pk_bf16_f32 {var}, {var}, {var}\nv_and_b32 {var}, 0xffff0000, {var}\nv_add_f32 {var}, {fl(1e-5)}, {var}')
    k(f'v_cvt_pk_bf16_f32 {var}, {var}, {var}\nv_and_b32 {var}, 0xffff0000, {var}\nv_sqrt_f32 {var}, {var}')


LDS_BYTES = 163840
WSTR, HB, HSTR = 19072, 4 * 19072, 4608
FREE0 = HB + 4 * HSTR
W1_AT = [FREE0 + 6144 * i for i in range(11)] + [HB + 6144 * i for i in range(3)] + [WSTR * i + 12288 for i in range(4)]
W2_AT = [WSTR * (i // 2) + 6144 * (i % 2) for i in range(6)] + W1_AT[:12]
TABS = 3 * WSTR

class PairDma:
    def __init__(self, k, s_w, s_jm, base, R, l16, at):
        self.k, self.R, self.l16, self.at = k, R, l16, at
        self.src = k.s(); self.wh = k.s(); self.wl = k.s(); self.t = k.s()
        k(f's_mul_i32 {self.src}, {s_jm}, 110592\ns_mul_i32 {self.t}, {s_w}, 3072\ns_add_u32 {self.src}, {self.src}, {self.t}\ns_add_u32 {self.src}, {self.src}, {base}')
        k(f's_lshr_b32 {self.wh}, {s_w}, 1\ns_mul_i32 {self.wl}, {s_w}, 3072')
    def ops(self, P):
        c0, c1 = self.at[2 * P], self.at[2 * P + 1]
        ld = lambda i: f'buffer_load_dwordx4 {self.l16}, {self.R}, {self.src} offen offset:{1024 * i} sc1 lds'
        head = [f's_mul_i32 {self.t}, {self.wh}, {c1 - c0 - 6144}', f's_add_u32 {self.t}, {self.t}, {self.wl}', f's_add_u32 m0, {self.t}, {c0}'] if c1 - c0 != 6144 else [f's_add_u32 m0, {self.wl}, {c0}']
        return [head + [ld(0)], [ld(1)], [ld(2), f's_add_u32 {self.src}, {self.src}, 12288']]
    def release(self):
        for x in (self.src, self.wh, self.wl, self.t): x.release()
```

```python
from common import *

N_SIG = 64 + 45
BUF0, BUF1, SVEC = 0, 73728, 147456
K1_LDS = 147456 + 2560
SPIN_MAX = 40000

def vmaps():
    maps = [list(range(16))]
    for s in (1, 2, 3):
        m = list(maps[-1]); step = 1 << s
        new = [step * i for i in range(8, 16)]
        for j in range(16):
            if m[j] % step: m[j] = new.pop(0)
        assert not new
        maps.append(m)
    return maps

def service(k, P, lane, s_w, END, NEXT, SP, opt=()):
    vm, lg = trackers(k)
    Rws = k.s(4); Rdbg = k.s(4); RA = k.s(4); RB = k.s(4)
    srd(k, Rws, P['ws'], WS_USED); srd(k, Rdbg, P['dbg'], 256)
    z4 = k.v(4, 4); zero = z4.sub(0, 2); one = k.v(); l16 = k.v(); q = k.v(); m = k.v()
    fr = k.v(72, 4); sv = k.v(72, 4); acc = k.v(4, 4)
    sav = k.s(2); st = k.s(); cnt = k.s()
    jb = k.s(); modeB = k.s(); blkB = k.s(); srcB = k.s(); strB = k.s()
    L_mod, L_B, L_C = k.label('mod'), k.label('jobB'), k.label('jobC')
    k(f'v_lshrrev_b32 {q}, 4, {lane}\nv_and_b32 {m}, 15, {lane}\nv_lshlrev_b32 {l16}, 4, {lane}')
    cjs = {}
    def common():
        for i in range(4): k(f'v_mov_b32 {z4[i]}, 0')
        k(f'v_mov_b32 {one}, 1\ns_mov_b32 {cnt}, 0')
        k(f's_add_u32 {jb}, s2, 32\ns_sub_u32 {blkB}, s2, 64\ns_cmp_ge_u32 s2, 64\ns_cselect_b32 {jb}, {blkB}, {jb}')
        k(f's_cmp_ge_u32 s2, 96\ns_cselect_b32 {jb}, 200, {jb}\ns_sub_u32 {blkB}, s2, 7\ns_cmp_ge_u32 s2, 103\ns_cselect_b32 {jb}, {blkB}, {jb}')
        srd(k, RB, P['wmod'], D * 3456 * 2)
        k(f's_mov_b32 {modeB}, 0\ns_cmp_ge_u32 {jb}, 6\ns_cselect_b32 {blkB}, 39, 30\ns_add_u32 {blkB}, {blkB}, {jb}\ns_mov_b32 {strB}, 6912')
        for mode, lo, ptr, nb, st_ in ((2, 15, 'w2', D * D * 2, 1152), (3, 24, 'w3', D * F * 2, 9216), (1, 96, 'w1', D * D * 2, 1152)):
            k(f's_sub_u32 {srcB}, {jb}, {lo}\ns_cmp_ge_u32 {jb}, {lo}')
            k(f's_cselect_b32 {blkB}, {srcB}, {blkB}\ns_cselect_b32 {modeB}, {mode}, {modeB}\ns_cselect_b32 {strB}, {st_}, {strB}')
            k(f's_cselect_b32 {RB[0]}, {P[ptr][0]}, {RB[0]}\ns_cselect_b32 {RB[1]}, {P[ptr][1]}, {RB[1]}\ns_cselect_b32 {RB[2]}, {nb}, {RB[2]}')
        k(f's_lshl_b32 {srcB}, {blkB}, 7')
    def signal(off, last):
        sk = k.label('notlast')
        k(f's_mov_b64 exec, 1\nv_mov_b32 {acc[0]}, 1\nbuffer_atomic_add {acc[0]}, {zero[0]}, {Rdbg}, {off} offen offset:64 sc0 sc1\ns_waitcnt vmcnt(0)')
        k(f'v_readfirstlane_b32 {st}, {acc[0]}\ns_cmp_lg_u32 {st}, {last}\ns_cbranch_scc1 {sk}')
        k(f'buffer_store_dword {one}, {zero[0]}, {Rdbg}, {off} offen offset:192 sc1\n{sk}:\ns_mov_b64 exec, -1')
    cj = ColJob(k, vm, lg, lane, s_w)
    L_w1 = k.label('w1')
    k(f's_cmp_ge_u32 s2, 103\ns_cbranch_scc1 {L_w1}\ns_cmp_ge_u32 s2, 64\ns_cbranch_scc1 {L_mod}')

    srd(k, RA, P['u'], L * D * 2)
    va = k.v(); vx = k.v(2); t = k.v(6); row = k.v(); s1 = k.s()
    k(f's_and_b32 {st}, {s_w}, 1\ns_lshl_b32 {s1}, s2, 1\ns_add_u32 {st}, {st}, {s1}\ns_lshl_b32 {st}, {st}, 4')
    k(f'v_and_b32 {t[0]}, 7, {m}\nv_lshrrev_b32 {t[2]}, 3, {m}\nv_lshl_add_u32 {t[5]}, {t[0]}, 1, {t[2]}\nv_add_u32 {row}, {st}, {t[5]}')
    k(f's_lshr_b32 {s1}, {s_w}, 1\ns_mul_i32 {st}, {s1}, 576\nv_mul_u32_u24 {va}, 1152, {row}\nv_lshl_add_u32 {va}, {q}, 4, {va}')
    for i in range(4): k(f'v_mov_b32 {z4[i]}, 0')
    k(f's_lshl_b32 {sav[0]}, s2, 8\ns_add_u32 {sav[0]}, {sav[0]}, {O_STATS}\ns_cmp_eq_u32 {s_w}, 0\ns_cselect_b32 {sav[0]}, {sav[0]}, {WS_USED}\ns_mov_b64 exec, 0xffff')
    k(f'buffer_store_dwordx4 {z4}, {l16}, {Rws}, {sav[0]} offen sc1\ns_mov_b64 exec, -1')
    k(f's_or_b32 {sav[0]}, s2, {s_w}\ns_cmp_eq_u32 {sav[0]}, 0\ns_mov_b32 {sav[0]}, {O_FW}\ns_cselect_b32 {sav[0]}, {sav[0]}, {WS_USED}')
    k(f'buffer_store_dwordx4 {z4}, {l16}, {Rws}, {sav[0]} offen sc1\nbuffer_store_dwordx4 {z4}, {l16}, {Rws}, {sav[0]} offen offset:1024 sc1')
    ix = [vm.op(f'buffer_load_dwordx4 {fr.sub(4 * i, 4)}, {va}, {RA}, {st} offen offset:{64 * i}' + (' nt' if 'ntx' in opt else '')) for i in range(9)]
    pf = k.v(2); pfs = k.s(2)
    common()
    ones = sv.sub(40, 4); gacc = sv.sub(36, 4); arr = sv[44]; msk = [k.s(2) for _ in range(3)]
    sk = k.label('noarr')
    k(f's_cmp_lg_u32 {s_w}, 0\ns_cbranch_scc1 {sk}\ns_mov_b64 exec, 1\nv_mov_b32 {arr}, 1\ns_waitcnt vmcnt(9)\nbuffer_atomic_add {arr}, {zero[0]}, {Rdbg}, 0 offen offset:64 sc0 sc1\ns_mov_b64 exec, -1\n{sk}:')
    for i in range(4): k(f'v_mov_b32 {ones[i]}, 0x3f803f80')
    k(f'v_and_b32 {t[0]}, 3, {m}')
    for e in range(3): k(f'v_cmp_eq_u32 {msk[e]}, {e + 1}, {t[0]}')
    k(f's_lshl_b32 {st}, {s_w}, 8\ns_add_u32 {st}, {st}, {SVEC}\nv_lshl_add_u32 {t[3]}, {t[5]}, 2, {st}\nv_lshrrev_b32 {t[0]}, 2, {m}\nv_cmp_eq_u32 vcc, {t[0]}, {q}')
    k(f'v_add_u32 {t[4]}, 128, {t[3]}\nv_add_u32 {t[5]}, 192, {t[3]}\nv_cndmask_b32 {t[4]}, {t[5]}, {t[4]}, vcc')
    k(f'v_lshrrev_b32 {t[0]}, 3, {m}\nv_lshl_add_u32 {t[1]}, {q}, 1, {t[0]}\nv_lshlrev_b32 {vx[0]}, 14, {t[1]}\nv_sub_u32 {t[1]}, {row}, {t[0]}\nv_lshl_add_u32 {vx[0]}, {t[1]}, 3, {vx[0]}')
    k(f's_mul_i32 {s1}, {s1}, {9 * 131072}\ns_add_u32 {s1}, {s1}, {O_XT}\nv_cmp_eq_u32 vcc, 0, {t[0]}')
    dp = 'row_ror:8 row_mask:0xf bank_mask:0xf'
    for i in range(9):
        vm.wait(ix[i])
        if i == 0: SP(8)
        r_ = fr.sub(4 * i, 4); o = sv.sub(4 * i, 4)
        k(f'v_mfma_f32_16x16x32_bf16 {acc}, {ones}, {r_}, {"0" if i == 0 else acc}')
        k(f'v_cndmask_b32_dpp {o[0]}, {r_[2]}, {r_[0]}, vcc {dp}\nv_cndmask_b32_dpp {o[1]}, {r_[3]}, {r_[1]}, vcc {dp}\ns_not_b64 vcc, vcc')
        k(f'v_mfma_f32_16x16x32_bf16 {gacc}, {r_}, {r_}, {"0" if i == 0 else gacc}')
        k(f'v_cndmask_b32_dpp {o[2]}, {r_[0]}, {r_[2]}, vcc {dp}\nv_cndmask_b32_dpp {o[3]}, {r_[1]}, {r_[3]}, vcc {dp}\ns_not_b64 vcc, vcc')
        vm.op(f'buffer_store_dwordx4 {o}, {vx[0]}, {Rws}, {s1} offen sc1')
        if i < 8: k(f's_add_u32 {s1}, {s1}, 131072')
    SP(10)
    k(f'v_cndmask_b32 {t[0]}, {gacc[0]}, {gacc[1]}, {msk[0]}\nv_cndmask_b32 {t[0]}, {t[0]}, {gacc[2]}, {msk[1]}\nv_cndmask_b32 {t[0]}, {t[0]}, {gacc[3]}, {msk[2]}')
    k(f'ds_write_b32 {t[3]}, {acc[0]}\nds_write_b32 {t[4]}, {t[0]}\ns_waitcnt lgkmcnt(0)\ns_barrier')
    a, b = k.label('notw0'), k.label('sigd')
    k(f's_cmp_lg_u32 {s_w}, 0\ns_cbranch_scc1 {a}')
    k(f'v_and_b32 {t[1]}, 1, {q}\nv_lshlrev_b32 {t[1]}, 8, {t[1]}\nv_lshl_add_u32 {t[1]}, {m}, 2, {t[1]}\nv_add_u32 {t[1]}, {SVEC}, {t[1]}')
    k(f'ds_read2_b32 {t[2:4]}, {t[1]} offset0:0 offset1:32\nds_read2_b32 {t[4:6]}, {t[1]} offset0:128 offset1:160')
    sk = k.label('notlast')
    k(f's_waitcnt vmcnt(9)\nv_readfirstlane_b32 {st}, {arr}\ns_cmp_lg_u32 {st}, 102\ns_cbranch_scc1 {sk}')
    k(f's_mov_b64 exec, 1\nbuffer_store_dword {one}, {zero[0]}, {Rdbg}, 0 offen offset:192 sc1\ns_mov_b64 exec, -1\n{sk}:\ns_waitcnt lgkmcnt(0)')
    k(f'v_add_f32 {t[0]}, {t[2]}, {t[4]}\nv_add_f32 {t[2]}, {t[3]}, {t[5]}')
    sigma_bf16(k, t[0], t[2])
    k(f'v_cvt_pk_bf16_f32 {t[2]}, {t[0]}, {t[2]}\nv_mov_b32 {t[3]}, 1\nv_lshlrev_b32 {t[1]}, 3, {lane}\ns_lshl_b32 {st}, s2, 8\ns_add_u32 {st}, {st}, {O_STATS}')
    k(f'{a}:'); SP(14); k('s_waitcnt vmcnt(0)\ns_barrier'); vm.reset()
    k(f's_cmp_lg_u32 {s_w}, 0\ns_cbranch_scc1 {b}')
    k(f's_mov_b32 exec_hi, 0\nbuffer_store_dwordx2 {t[2:4]}, {t[1]}, {Rws}, {st} offen sc1\ns_mov_b64 exec, -1')
    k(f'{b}:'); SP(9)
    for x_ in msk: x_.release()
    cj.dma(RB, srcB, strB, BUF1, 'nt3' in opt)
    k(f's_lshl_b32 {st}, s2, 2\ns_add_u32 {st}, {st}, {s_w}\ns_lshl_b32 {st}, {st}, 10')
    k(f's_cmp_eq_u32 s2, {O_FW // 4096}\ns_cselect_b32 {st}, {WS_USED}, {st}\nbuffer_store_dwordx4 {z4}, {l16}, {Rws}, {st} offen sc1')
    sk = k.label('nopad')
    k(f's_cmp_lg_u32 {s_w}, 2\ns_cbranch_scc1 {sk}\ns_cmp_ge_u32 s2, 36\ns_cbranch_scc1 {sk}\ns_lshr_b32 {st}, s2, 1\ns_mul_i32 {st}, {st}, {GPL}\ns_bitcmp1_b32 s2, 0\ns_cselect_b32 {sav[0]}, {129 * 1024}, 0')
    k(f's_add_u32 {st}, {st}, {sav[0]}\ns_add_u32 {st}, {st}, {O_G}\nbuffer_store_dwordx4 {z4}, {l16}, {Rws}, {st} offen sc1\n{sk}:')
    k(f's_branch {L_B}')
    for x_ in (va, vx, t, row, s1): x_.release()

    def mod_tail(ids, s_blk, sig, gran=False):
        t = k.v(2); vg = k.v(); s1 = k.s()
        for s in range(18):
            if s % 2 == 0: lg.wait(ids[s + 1])
            k(f'v_mfma_f32_16x16x32_bf16 {acc}, {sv.sub(4 * s, 4)}, {fr.sub(4 * s, 4)}, {"0" if s == 0 else acc}')
        k(f's_lshl_b32 {s1}, {s_w}, 6\ns_add_u32 {s1}, {s1}, {SVEC + 2048}\nv_lshl_add_u32 {vg}, {m}, 2, {s1}')
        k(f'v_cvt_pk_bf16_f32 {t[0]}, {acc[0]}, {acc[0]}\nv_and_b32 {t[0]}, 0xffff0000, {t[0]}')
        k(f'v_add_f32 {t[1]}, 1.0, {t[0]}\nv_cvt_pk_bf16_f32 {t[1]}, {t[1]}, {t[1]}\nv_and_b32 {t[1]}, 0xffff0000, {t[1]}')
        k(f's_mov_b64 vcc, 0\ns_sub_u32 {s1}, {s_blk}, 9\ns_cmp_lt_u32 {s1}, 9\ns_cselect_b64 vcc, -1, vcc')
        k(f's_sub_u32 {s1}, {s_blk}, 36\ns_cmp_lt_u32 {s1}, 9\ns_cselect_b64 vcc, -1, vcc')
        k(f'v_cndmask_b32 {t[0]}, {t[0]}, {t[1]}, vcc\nds_write_b32 {vg}, {t[0]}\ns_waitcnt lgkmcnt(0)\ns_barrier'); lg.reset()
        a, b = k.label('notw0'), k.label('nob')
        k(f's_cmp_lg_u32 {s_w}, 0\ns_cbranch_scc1 {a}')
        k(f'v_lshlrev_b32 {vg}, 3, {lane}\nv_add_u32 {t[0]}, {SVEC + 2048}, {vg}\nds_read_b64 {t}, {t[0]}\ns_lshl_b32 {s1}, {s_blk}, 8\ns_add_u32 {s1}, {s1}, {O_MODF}')
        k(f's_mov_b32 exec_hi, 0')
        if gran:
            k(f's_lshl_b32 {sav[0]}, {s_blk}, 9\ns_add_u32 {sav[0]}, {sav[0]}, {O_MODG}\nv_mov_b32 {acc[1]}, 1\nv_mov_b32 {acc[3]}, 1\ns_waitcnt lgkmcnt(0)')
            k(f'v_mov_b32 {acc[0]}, {t[0]}\nv_mov_b32 {acc[2]}, {t[1]}\nbuffer_store_dwordx4 {acc}, {l16}, {Rws}, {sav[0]} offen sc1')
        k(f's_waitcnt lgkmcnt(0)\nbuffer_store_dwordx2 {t}, {vg}, {Rws}, {s1} offen sc1')
        if sig:
            k(f's_sub_u32 {s1}, {s_blk}, 27\ns_cmp_ge_u32 {s1}, 18\ns_cbranch_scc1 {b}')
            k(f'v_cvt_pk_bf16_f32 {acc[0]}, {t[0]}, {t[1]}\nv_lshrrev_b32 {vg}, 1, {vg}\ns_lshl_b32 {s1}, {s1}, 7\ns_add_u32 {s1}, {s1}, {O_MODB}')
            k(f'buffer_store_dword {acc[0]}, {vg}, {Rws}, {s1} offen sc1\n{b}:')
            k(f's_cmp_ge_u32 {s_blk}, 45\ns_cbranch_scc1 {a}\ns_sub_u32 {s1}, {s_blk}, 27\ns_cmp_lt_u32 {s1}, 9')
            k(f's_cselect_b32 {sav[0]}, 12, 4\ns_cselect_b32 {sav[1]}, 8, 35\ns_waitcnt vmcnt(0)')
            signal(sav[0], sav[1])
        k(f'{a}:\ns_mov_b64 exec, -1')
        t.release(); vg.release(); s1.release()

    k(f'{L_mod}:')
    vm, lg = trackers(k); cj.vm, cj.lg = vm, lg
    blkA = k.s(); srcA = k.s(); strA = k.s(); Rc = k.s(4)
    srd(k, RA, P['wmod'], D * 3456 * 2); srd(k, Rc, P['c'], D * 2)
    k(f's_sub_u32 {blkA}, s2, 64\ns_cmp_ge_u32 {blkA}, 27\ns_cselect_b32 {st}, 9, 0\ns_cmp_ge_u32 {blkA}, 36\ns_cselect_b32 {st}, -9, {st}\ns_add_u32 {blkA}, {blkA}, {st}')
    k(f's_lshl_b32 {srcA}, {blkA}, 7\ns_mov_b32 {strA}, 6912')
    t = k.v(8); vg = k.v()
    k(f'v_lshlrev_b32 {vg}, 3, v0')
    for i in range(4): k(f'v_mov_b32 {z4[i]}, 0')
    k(f's_lshl_b32 {st}, {blkA}, 9\ns_add_u32 {st}, {st}, {O_MODG}\ns_cmp_eq_u32 {s_w}, 0\ns_cselect_b32 {st}, {st}, {WS_USED}\ns_mov_b32 exec_hi, 0')
    icl = vm.op(f'buffer_store_dwordx4 {z4}, {l16}, {Rws}, {st} offen sc1')
    k('s_mov_b64 exec, -1')
    ic = vm.op(f'buffer_load_dwordx2 {t[0:2]}, {vg}, {Rc}, 0 offen')
    ia = cj.dma(RA, srcA, strA, BUF0, 'ntm' in opt)
    common()
    vm.wait(ic)
    sk = k.label('noarr')
    k(f's_cmp_lg_u32 {s_w}, 0\ns_cbranch_scc1 {sk}\ns_mov_b64 exec, 1\nv_mov_b32 {acc[1]}, 1\nbuffer_atomic_add {acc[1]}, {zero[0]}, {Rdbg}, 0 offen offset:64 sc0 sc1\ns_mov_b64 exec, -1\n{sk}:')
    k(f'v_lshlrev_b32 {t[2]}, 16, {t[0]}\nv_and_b32 {t[3]}, 0xffff0000, {t[0]}\nv_lshlrev_b32 {t[4]}, 16, {t[1]}\nv_and_b32 {t[5]}, 0xffff0000, {t[1]}')
    e = k.v(4)
    for i in range(4): k(f'v_mul_f32 {e[i]}, {fl(-LOG2E)}, {t[2 + i]}')
    for i in range(4): k(f'v_exp_f32 {e[i]}, {e[i]}')
    for i in range(4): k(f'v_add_f32 {e[i]}, 1.0, {e[i]}')
    for i in range(4): k(f'v_rcp_f32 {e[i]}, {e[i]}')
    for i in range(4): k(f'v_mul_f32 {e[i]}, {e[i]}, {t[2 + i]}')
    k(f'v_cvt_pk_bf16_f32 {t[0]}, {e[0]}, {e[1]}\nv_cvt_pk_bf16_f32 {t[1]}, {e[2]}, {e[3]}\nv_add_u32 {vg}, {SVEC}, {vg}')
    k(f'ds_write_b64 {vg}, {t[0:2]}\nv_lshlrev_b32 {vg}, 4, {q}\nv_add_u32 {vg}, {SVEC}, {vg}\ns_waitcnt lgkmcnt(0)\ns_barrier')
    for s in range(18): lg.op(f'ds_read_b128 {sv.sub(4 * s, 4)}, {vg} offset:{64 * s}')
    ad = cj.addr(BUF0)
    sk = k.label('notlast')
    k(f's_waitcnt vmcnt(0) lgkmcnt(0)\ns_cmp_lg_u32 {s_w}, 0\ns_cbranch_scc1 {sk}\nv_readfirstlane_b32 {st}, {acc[1]}\ns_cmp_lg_u32 {st}, 102\ns_cbranch_scc1 {sk}')
    k(f's_mov_b64 exec, 1\nbuffer_store_dword {one}, {zero[0]}, {Rdbg}, 0 offen offset:192 sc1\ns_mov_b64 exec, -1\n{sk}:\ns_barrier'); SP(10); vm.reset(); lg.reset()
    ids = cj.reads(ad, fr)
    mod_tail(ids, blkA, True, True); SP(11)
    k(f's_cmp_ge_u32 {jb}, 200\ns_cbranch_scc1 {L_C}')
    cj.dma(RB, srcB, strB, BUF1, 'nt3' in opt)
    k(f's_waitcnt vmcnt(0)\ns_branch {L_B}')
    e.release(); t.release(); vg.release()

    k(f'{L_w1}:')
    common()
    cj.dma(RB, srcB, strB, BUF1, 'nt1' in opt)
    k('s_waitcnt vmcnt(0)')

    k(f'{L_B}:')
    vm, lg = trackers(k); cj.vm, cj.lg = vm, lg
    k(f's_waitcnt vmcnt(1) lgkmcnt(0)\ns_barrier')
    SP(12)
    il = k.s(); k(f's_sub_u32 {il}, {modeB}, 1\ns_cmp_lt_u32 {il}, 2\ns_cselect_b32 {il}, 1, 0')
    ids = cj.read(BUF1, fr, s_il=il)
    notmod, nocenter = k.label('notmod'), k.label('nocenter')
    k(f's_cmp_lg_u32 {modeB}, 0\ns_cbranch_scc1 {notmod}')
    mod_tail(ids, blkB, True)
    k(f's_branch {L_C}\n{notmod}:')
    k('s_waitcnt lgkmcnt(0)'); lg.reset()
    k(f's_bitcmp0_b32 {modeB}, 0\ns_cbranch_scc1 {nocenter}')
    ones = sv.sub(0, 4); t = k.v(4); gof = k.v(4, 4)
    go2_ld = f'buffer_load_dwordx4 {gof}, {zero[0]}, {Rdbg}, 0 offen offset:192 sc1'
    k(go2_ld)
    for i in range(4): k(f'v_mov_b32 {ones[i]}, 0x3f803f80')
    for s in range(18): k(f'v_mfma_f32_16x16x32_bf16 {acc}, {ones}, {fr.sub(4 * s, 4)}, {"0" if s == 0 else acc}')
    nm = sv.sub(4, 2)
    k(f'v_mul_f32 {nm[0]}, {fl(-1 / 576)}, {acc[0]}')
    for i in range(0, 72, 2):
        k(f'v_lshlrev_b32 {t[0]}, 16, {fr[i]}\nv_and_b32 {t[1]}, 0xffff0000, {fr[i]}')
        k(f'v_lshlrev_b32 {t[2]}, 16, {fr[i + 1]}\nv_and_b32 {t[3]}, 0xffff0000, {fr[i + 1]}')
        k(f'v_pk_add_f32 {t[0:2]}, {t[0:2]}, {nm} op_sel_hi:[1,0]\nv_pk_add_f32 {t[2:4]}, {t[2:4]}, {nm} op_sel_hi:[1,0]')
        k(f'v_cvt_pk_bf16_f32 {fr[i]}, {t[0]}, {t[1]}\nv_cvt_pk_bf16_f32 {fr[i + 1]}, {t[2]}, {t[3]}')
    k(f'{nocenter}:')
    T = k.s(); j = k.s(); dst = k.s(); step = k.s(); rot = k.s()
    k(f's_lshl_b32 {T}, {blkB}, 2\ns_add_u32 {T}, {T}, {s_w}')
    k(f's_mul_hi_u32 {j}, {T}, {(1 << 32) // 6 + 1}\ns_mul_i32 {dst}, {j}, 6\ns_sub_u32 {dst}, {T}, {dst}\ns_lshl_b32 {dst}, {dst}, 10')
    k(f's_mul_i32 {step}, {j}, 110592\ns_add_u32 {dst}, {dst}, {step}')
    k(f's_mul_i32 {rot}, {j}, 3\ns_sub_u32 {rot}, 18, {rot}\ns_cmp_eq_u32 {rot}, 18\ns_cselect_b32 {rot}, 0, {rot}')
    k(f's_cmp_eq_u32 {modeB}, 1\ns_cselect_b32 {rot}, {rot}, 0\ns_cselect_b32 {step}, 0, {O_W2F - O_W1F}\ns_add_u32 {dst}, {dst}, {step}\ns_add_u32 {dst}, {dst}, {O_W1F}')
    k(f's_mul_i32 {j}, {T}, 18432\ns_add_u32 {j}, {j}, {O_W3F}')
    k(f's_cmp_ge_u32 {modeB}, 3\ns_cselect_b32 {dst}, {j}, {dst}\ns_cselect_b32 {step}, 1, 6\ns_lshl_b32 {step}, {step}, 10')
    notw1, L_st = k.label('notw1'), k.label('stored')
    k(f's_cmp_lg_u32 {modeB}, 1\ns_cbranch_scc1 {notw1}')
    cj.store(fr, None, Rws, dst, step, s_rot=rot)
    sk = k.label('nosig')
    k(f's_waitcnt vmcnt(0)\ns_barrier\ns_cmp_lg_u32 {s_w}, 0\ns_cbranch_scc1 {sk}')
    signal(8, 8)
    k(f'{sk}:')
    lp, ok = k.label('pollm'), k.label('gotm')
    k(f'{lp}:\ns_waitcnt vmcnt(0)\nv_and_b32 {gof[1]}, {gof[1]}, {gof[3]}\nv_readfirstlane_b32 {st}, {gof[1]}\ns_cmp_ge_u32 {st}, 1\ns_cbranch_scc1 {ok}')
    k(f's_sleep 4\n{go2_ld}\ns_add_u32 {cnt}, {cnt}, 1\ns_cmp_lt_u32 {cnt}, {SPIN_MAX}\ns_cbranch_scc1 {lp}\ns_branch {END}\n{ok}:'); vm.reset()
    k(f'v_and_b32 {t[0]}, 1, {m}\nv_xor_b32 {t[0]}, 1, {t[0]}\nv_mul_u32_u24 {t[0]}, 1152, {t[0]}\nv_lshl_add_u32 {t[0]}, {q}, 4, {t[0]}\ns_mov_b32 {st}, {O_MODB}')
    ids = [vm.op(f'buffer_load_dwordx4 {sv.sub(4 * s, 4)}, {t[0]}, {Rws}, {st} offen offset:{64 * s} sc1') for s in range(18)]
    k(f's_lshr_b32 {j}, {s_w}, 1\ns_lshl_b32 {j}, {j}, 7\ns_and_b32 {st}, {s_w}, 1\ns_lshl_b32 {st}, {st}, 4\ns_add_u32 {j}, {j}, {st}\ns_add_u32 {j}, {j}, {SVEC}')
    k(f'v_lshrrev_b32 {t[1]}, 2, {m}\nv_and_b32 {t[2]}, 3, {m}\nv_lshlrev_b32 {t[2]}, 2, {t[2]}\nv_lshl_add_u32 {t[1]}, {t[1]}, 5, {t[2]}\nv_add_u32 {t[1]}, {j}, {t[1]}')
    for s in range(18):
        vm.wait(ids[s])
        k(f'v_mfma_f32_16x16x32_bf16 {acc}, {sv.sub(4 * s, 4)}, {fr.sub(4 * s, 4)}, {"0" if s == 0 else acc}')
    k(f'ds_write2st64_b32 {t[1]}, {acc[0]}, {acc[1]} offset0:0 offset1:1\ns_waitcnt lgkmcnt(0)\ns_barrier\ns_cmp_lg_u32 {s_w}, 0\ns_cbranch_scc1 {L_st}')
    k(f'v_add_u32 {t[0]}, {SVEC}, {l16}\nds_read_b128 {acc}, {t[0]}\nv_mul_u32_u24 {t[1]}, 2304, {q}\nv_lshl_add_u32 {t[1]}, {m}, 4, {t[1]}')
    k(f's_lshl_b32 {j}, {blkB}, 8\ns_add_u32 {j}, {j}, {O_MODF + 6 * 2304}\ns_mov_b32 exec_hi, 0\ns_waitcnt lgkmcnt(0)')
    k(f'buffer_store_dwordx4 {acc}, {t[1]}, {Rws}, {j} offen sc1\ns_mov_b64 exec, -1')
    k(f'{L_st}:\ns_branch {L_C}')
    k(f'{notw1}:'); vm.reset()
    cj.store(fr, None, Rws, dst, step, s_rot=rot)
    k(f'{L_C}:'); SP(13)
    code_prefetch(k, None, NEXT, END, 60000, 'v0', pf, pfs)
    k(f's_branch {NEXT}')

TAB, KD = 0, 17408

def conv(k, P, lane, s_w, END, NEXT, dump, SP, opt=()):
    vm, lg = trackers(k)
    cidx = k.s(); s_d = k.s(); st = k.s(); st2 = k.s(); sav = k.s(2)
    k(f's_and_b32 {cidx}, s2, 7\ns_mul_i32 {cidx}, {cidx}, 18\ns_lshr_b32 {st}, s2, 3\ns_add_u32 {cidx}, {cidx}, {st}\ns_sub_u32 {cidx}, {cidx}, 14')
    k(f's_lshl_b32 {s_d}, {cidx}, 2\ns_add_u32 {s_d}, {s_d}, {s_w}\ns_lshl_b32 {st}, {cidx}, 3')
    sdt = k.s(2); sD = k.s(2)
    k(f's_load_dwordx2 {sdt}, {P["logdt"]}, {st}\ns_load_dwordx2 {sD}, {P["Dskip"]}, {st}')
    R = k.s(4); Rws = k.s(4); Rdbg = k.s(4)
    par = k.v(4); t = k.v(8); x = k.v(16)
    k(f'v_lshlrev_b32 {t[0]}, 2, {lane}\ns_lshl_b32 {st2}, {s_d}, 8')
    for i, n in enumerate(('logA', 'Aim', 'Cr', 'Ci')):
        srd(k, R, P[n], D * 128 * 2)
        ipar = vm.op(f'buffer_load_dword {par[i]}, {t[0]}, {R}, {st2} offen' + (' nt' if 'ntp' in opt else ''))
    srd(k, Rws, P['ws'], WS_USED); srd(k, Rdbg, P['dbg'], 256)
    wb = k.s(); k(f's_mul_i32 {wb}, {s_w}, {WSTR}')
    q = k.v(); m = k.v(); ag = k.v(); am = k.v(); a4 = k.v(); fl_v = k.v(2)
    k(f'v_lshrrev_b32 {q}, 4, {lane}\nv_and_b32 {m}, 15, {lane}')
    ga = k.v(32); cst = k.v()
    k(f's_add_u32 {st2}, {wb}, {KD - 2 * (134 * 128 - 128)}\nv_mov_b32 {cst}, {st2}')
    k(f'v_lshlrev_b32 {t[2]}, 3, {lane}\nv_cvt_f32_u32 {t[2]}, {t[2]}')
    for c in range(4):
        for e in range(0, 8, 2):
            k(f'v_add_f32 {t[4]}, {fl(512 * c + e)}, {t[2]}\nv_add_f32 {t[5]}, {fl(512 * c + e + 1)}, {t[2]}\nv_cvt_pk_bf16_f32 {t[4]}, {t[4]}, {t[5]}')
            k(f'v_mad_u32_u16 {ga[8 * c + e]}, {t[4]}, 2, {cst}\nv_mad_u32_u16 {ga[8 * c + e + 1]}, {t[4]}, 2, {cst} op_sel:[1,0,0,0]')
    k(f's_add_u32 {st2}, {wb}, {KD}\nv_lshl_add_u32 {t[4]}, {lane}, 4, {st2}\nv_cmp_gt_u32 vcc, 16, {lane}')
    for e in range(8): k(f'v_add_u32 {t[5]}, {2 * e}, {t[4]}\nv_cndmask_b32 {ga[e]}, {ga[e]}, {t[5]}, vcc')
    VM = vmaps()
    kda = k.v(4)
    k(f'v_lshlrev_b32 {t[2]}, 2, {m}')
    for s in range(4):
        lut = sum((VM[s][j] >> s) << (4 * j) for j in range(16))
        base = 0 if s == 0 else 128 + 128 * s
        k(f's_mov_b32 {sav[0]}, {lut & 0xffffffff}\ns_mov_b32 {sav[1]}, {lut >> 32}\nv_lshrrev_b64 {t[4:6]}, {t[2]}, {sav}\nv_and_b32 {t[4]}, 15, {t[4]}')
        k(f'v_lshl_add_u32 {t[4]}, {q}, 6, {t[4]}\ns_add_u32 {st2}, {wb}, {KD + 2 * base}\nv_lshl_add_u32 {kda[s]}, {t[4]}, 1, {st2}')
    cst.release()
    atw = k.v(); atr = k.v()
    k(f'v_lshl_add_u32 {atw}, {lane}, 3, {wb}\nv_mul_u32_u24 {atr}, 544, {m}\nv_lshl_add_u32 {atr}, {q}, 4, {atr}\nv_add_u32 {atr}, {wb}, {atr}')
    z4 = k.v(4)
    for i in range(4): k(f'v_mov_b32 {z4[i]}, 0')
    k(f'v_lshrrev_b32 {t[4]}, 5, v0\nv_mul_u32_u24 {t[4]}, {HSTR}, {t[4]}\nv_and_b32 {t[5]}, 31, v0\nv_lshl_add_u32 {t[4]}, {t[5]}, 4, {t[4]}\nv_add_u32 {t[4]}, {HB}, {t[4]}')
    k(f'v_cmp_gt_u32 vcc, 128, v0\ns_and_saveexec_b64 {sav}, vcc\nds_write_b128 {t[4]}, {z4}\ns_mov_b64 exec, {sav}')
    k('s_waitcnt lgkmcnt(0)')
    k(f's_lshl_b32 {st2}, {s_w}, 4\ns_lshr_b64 {sdt}, {sdt}, {st2}\ns_lshl_b32 {sdt[0]}, {sdt[0]}, 16')
    dt = k.v(); ks = k.v()
    k(f'v_mov_b32 {dt}, {fl(LOG2E)}\nv_mul_f32 {dt}, {sdt[0]}, {dt}\nv_exp_f32 {dt}, {dt}\nv_cvt_pk_bf16_f32 {dt}, {dt}, {dt}\nv_and_b32 {dt}, 0xffff0000, {dt}')
    SP(1); vm.wait(ipar); SP(2)
    pr = lambda: [k.v(2), k.v(2)]
    w1, w16, U = pr(), pr(), pr()
    er = k.v(2); rev = k.v(2)
    un = lambda d, s_, hi: f'v_and_b32 {d}, 0xffff0000, {s_}' if hi else f'v_lshlrev_b32 {d}, 16, {s_}'
    for md in range(2):
        k(un(er[md], par[0], md)); k(un(rev[md], par[1], md)); k(un(U[0][md], par[2], md)); k(un(U[1][md], par[3], md))
    for md in range(2): k(f'v_mul_f32 {er[md]}, {fl(LOG2E)}, {er[md]}')
    for md in range(2): k(f'v_exp_f32 {er[md]}, {er[md]}')
    k(f'v_max3_f32 {t[0]}, |{U[0][0]}|, |{U[0][1]}|, |{U[1][0]}|\nv_max_f32 {t[0]}, |{U[1][1]}|, {t[0]}')
    k(f'v_cvt_pk_bf16_f32 {t[1]}, {er[0]}, {er[1]}')
    for mm in ('quad_perm:[1,0,3,2]', 'quad_perm:[2,3,0,1]', 'row_half_mirror', 'row_mirror'):
        k(f'v_max_f32_dpp {t[0]}, {t[0]}, {t[0]} {mm} row_mask:0xf bank_mask:0xf')
    for md in range(2):
        k(un(er[md], t[1], md))
        k(f'v_mul_f32 {er[md]}, {er[md]}, {dt}\nv_mul_f32 {rev[md]}, {rev[md]}, {dt}')
        k(f'v_mul_f32 {er[md]}, {fl(-LOG2E)}, {er[md]}\nv_mul_f32 {rev[md]}, 0.15915494, {rev[md]}')
    k(f'v_readlane_b32 {st2}, {t[0]}, 0\nv_readlane_b32 {sav[0]}, {t[0]}, 16\nv_readlane_b32 {sav[1]}, {t[0]}, 32\nv_readlane_b32 {st}, {t[0]}, 48')
    k(f's_max_u32 {st2}, {st2}, {sav[0]}\ns_max_u32 {st}, {st}, {sav[1]}\ns_max_u32 {st2}, {st2}, {st}')
    for w_, mul in ((w1, None), (w16, '16.0')):
        for md in range(2):
            a, b = t[2 + md], t[4 + md]
            if mul: k(f'v_mul_f32 {a}, {fl(16.)}, {er[md]}\nv_mul_f32 {b}, {fl(16.)}, {rev[md]}\nv_fract_f32 {b}, {b}\nv_exp_f32 {a}, {a}')
            else: k(f'v_fract_f32 {b}, {rev[md]}\nv_exp_f32 {a}, {er[md]}')
            k(f'v_cos_f32 {w_[0][md]}, {b}\nv_sin_f32 {w_[1][md]}, {b}')
        for c in range(2): k(f'v_pk_mul_f32 {w_[c]}, {w_[c]}, {t[2:4]}')
    k(f'v_frexp_exp_i32_f32 {t[0]}, {st2}\nv_sub_u32 {t[1]}, 8, {t[0]}\nv_add_u32 {t[0]}, -7, {t[0]}\nv_ldexp_f32 {ks}, {dt}, {t[0]}')
    for md in range(2):
        for c in range(2): k(f'v_ldexp_f32 {U[c][md]}, {U[c][md]}, {t[1]}')
    er.release(); rev.release(); dt.release()
    tm = [k.v(2) for _ in range(4)]
    def cmul(d, z, s_, ta, tb):
        return [f'v_pk_mul_f32 {ta}, {z[1]}, {s_[1]}', f'v_pk_mul_f32 {tb}, {z[0]}, {s_[1]}',
                f'v_pk_fma_f32 {d[0]}, {z[0]}, {s_[0]}, {ta} neg_lo:[0,0,1] neg_hi:[0,0,1]', f'v_pk_fma_f32 {d[1]}, {z[1]}, {s_[0]}, {tb}']
    w32, w64, w128, w2, w4, w8, V = pr(), pr(), pr(), pr(), pr(), pr(), pr()
    for d_, s_ in ((w32, w16), (w64, w32), (w128, w64)):
        for x_ in cmul(d_, s_, s_, tm[0], tm[1]): k(x_)
    pv = [k.v(2), k.v(2)]; pu = [k.v(2), k.v(2)]
    fa = k.v(32, 4); fb = k.v(32, 4); kacc = k.v(16, 4)
    state = {'V': None, 'nv': 0, 'nu': 0}
    def v_entry(val, slot):
        out = []
        pk = pv[state['nv'] & 1]; state['nv'] += 1
        if val == 0:
            out += [f'v_mov_b32 {pk[0]}, 0x3c00', f'v_mov_b32 {pk[1]}, 0x3c00']
        else:
            if val == 1: cur = w1
            else:
                step = w1 if val <= 16 else w2 if val <= 32 else w4 if val <= 64 else w8
                cur = {2: w2, 4: w4, 8: w8}.get(val, V)
                out += cmul(cur, state['V'], step, tm[0], tm[1])
            state['V'] = cur
            out += [f'v_cvt_pk_f16_f32 {pk[md]}, {cur[0][md]}, {cur[1][md]}' for md in range(2)]
        out.append(('ds', f'ds_write_b64 {atw}, {pk} offset:{TAB + slot * 544}'))
        return out
    def u_entry(val, row):
        out = []
        pk = pu[state['nu'] & 1]; state['nu'] += 1
        if val:
            step = w16 if val <= 256 else w32 if val <= 512 else w64 if val <= 1024 else w128
            out += cmul(U, U, step, tm[2], tm[3])
        out += [f'v_cvt_pk_f16_f32 {pk[md]}, {U[0][md]}, -{U[1][md]}' for md in range(2)]
        out.append(('ds', f'ds_write_b64 {atw}, {pk} offset:{TAB + (16 + row) * 544}'))
        return out
    def put(x_):
        if isinstance(x_, tuple): return lg.op(x_[1])
        k(x_)
    pend = []
    flag_ld = f'buffer_load_dwordx2 {fl_v}, {z4[0]}, {Rdbg}, 0 offen offset:192 sc1'
    ifl = None
    for s in range(4):
        vs = sorted((VM[s][j], j) for j in range(16) if s == 0 or VM[s][j] != VM[s - 1][j])
        us = [16 * u for u in range(16)] if s == 0 else [(128 << s) + (16 << s) * u for u in range(9 if s == 3 else 8)]
        sv_ = [x_ for val, j in vs for x_ in v_entry(val, j)]
        su_ = [x_ for r_, val in enumerate(us) for x_ in u_entry(val, r_)]
        stream = interleave(sv_, su_)
        for n_, x_ in enumerate(stream):
            put(x_)
            if n_ == 27:
                while pend:
                    idr, mf = pend.pop(0); lg.wait(idr); k(mf)
            if s == 3 and n_ == 40: k(flag_ld)
        assert not pend
        for kk in range(8):
            lg.op(f'ds_read_b128 {fa.sub(4 * kk, 4)}, {atr} offset:{TAB + 16 * 544 + 64 * kk}')
            i_ = lg.op(f'ds_read_b128 {fb.sub(4 * kk, 4)}, {atr} offset:{TAB + 64 * kk}')
            ac = kacc.sub(4 * s, 4)
            pend.append((i_, f'v_mfma_f32_16x16x32_f16 {ac}, {fa.sub(4 * kk, 4)}, {fb.sub(4 * kk, 4)}, {"0" if kk == 0 else ac}'))
    for x_ in (w1, w16, w32, w64, w128, w2, w4, w8, V, U, tm, pv, pu):
        for y_ in x_: y_.release()
    md_ = k.v(16, 4); sg = md_; cnt = k.s(); mg = par.sub(0, 2); amg = par[2]
    k(f'v_lshrrev_b32 {amg}, 2, {m}\nv_cmp_eq_u32 vcc, 3, {amg}\nv_addc_co_u32 {amg}, vcc, 0, {amg}, vcc\nv_mul_u32_u24 {amg}, 4608, {amg}\nv_and_b32 {mg[0]}, 3, {m}\nv_lshl_add_u32 {amg}, {mg[0]}, 3, {amg}')
    def kd_out(s):
        ac = kacc.sub(4 * s, 4)
        for e in range(4): k(f'v_mul_f32 {ac[e]}, {ks}, {ac[e]}')
        k(f'v_cvt_pk_bf16_f32 {ac[0]}, {ac[0]}, {ac[1]}\nv_cvt_pk_bf16_f32 {ac[2]}, {ac[2]}, {ac[3]}')
        for e in range(4): lg.op(f'ds_write_b16{"_d16_hi" if e & 1 else ""} {kda[s]}, {ac[e & 2]} offset:{32 * e}')
    for s in range(3): kd_out(s)
    SP(3); lg.reset() if SP.on else None
    got = k.s()
    def x_loads():
        k(f's_lshl_b32 {st}, {cidx}, 14\ns_add_u32 {st}, {st}, {O_XT}')
        for i in range(4):
            k(f'buffer_load_dwordx4 {x.sub(4 * i, 4)}, {ag}, {Rws}, {st} offen sc1')
            if i < 3: k(f's_add_u32 {st}, {st}, 4096')
    def gran_loads():
        for i in range(4): k(f's_mov_b32 {st}, {O_STATS + 4096 * i}\nbuffer_load_dwordx4 {sg.sub(4 * i, 4)}, {ag}, {Rws}, {st} offen sc1')
        mod_loads()
    def gran_check():
        k(f's_waitcnt vmcnt(0)\nv_and_b32 {am}, {sg[1]}, {sg[3]}')
        for i in (5, 9, 13): k(f'v_bitop3_b32 {am}, {am}, {sg[i]}, {sg[i + 2]} bitop3:0x80')
        k(f'v_cmp_ne_u32 vcc, 1, {am}\ns_cmp_eq_u64 vcc, 0')
    def mod_loads():
        k(f's_lshl_b32 {st}, {cidx}, 5\ns_add_u32 {st}, {st}, {O_MODG}')
        k(f'buffer_load_dwordx2 {mg}, {amg}, {Rws}, {st} offen sc1')
    def spin(i, flag_ld):
        lp, ok = k.label('poll'), k.label('go')
        k(f'{lp}:\nv_readfirstlane_b32 {st}, {fl_v[i]}\ns_cmp_ge_u32 {st}, 1\ns_cbranch_scc1 {ok}')
        k(f's_sleep 4\n{flag_ld}\ns_add_u32 {cnt}, {cnt}, 1\ns_cmp_lt_u32 {cnt}, {SPIN_MAX}\ns_waitcnt vmcnt(0)\ns_cbranch_scc1 {lp}\ns_branch {END}\n{ok}:')
    k(f'v_lshlrev_b32 {ag}, 4, v0\nv_lshlrev_b32 {a4}, 2, v0\ns_mov_b32 {cnt}, 0\ns_waitcnt vmcnt(0)')
    spin(0, flag_ld)
    gran_loads()
    while pend:
        idr, mf = pend.pop(0); lg.wait(idr); k(mf)
    kd_out(3)
    kc = fa.sub(0, 16); pvv = fa.sub(16, 8)
    gid = [lg.op(f'ds_read_u16 {ga[e]}, {ga[e]}') for e in range(32)]
    aw = kda[0]; ap = kda[1]
    k(f'v_lshl_add_u32 {aw}, {lane}, 4, {wb}\nv_lshrrev_b32 {ap}, 1, {lane}\nv_mul_u32_u24 {ap}, 4160, {ap}\nv_and_b32 {t[1]}, 1, {lane}')
    k(f'v_lshl_add_u32 {ap}, {t[1]}, 4, {ap}\nv_add_u32 {ap}, {wb}, {ap}')
    k(f's_mov_b64 exec, 0xff'); lg.op(f'ds_write_b128 {ap}, {z4}'); k('s_mov_b64 exec, -1')
    for c in range(4):
        lg.wait(gid[8 * c + 7])
        for e in range(4): k(f'v_lshl_or_b32 {kc[4 * c + e]}, {ga[8 * c + 2 * e + 1]}, 16, {ga[8 * c + 2 * e]}')
        lg.op(f'ds_write_b128 {aw}, {kc.sub(4 * c, 4)} offset:{32 + 1024 * c}')
    ids = [lg.op(f'ds_read_b64 {pvv.sub(2 * c, 2)}, {aw} offset:{24 + 1024 * c}') for c in range(4)]
    late = k.label('late')
    gran_check()
    k(f's_cselect_b32 {got}, 1, 0\ns_cbranch_scc0 {late}')
    x_loads()
    k(f'{late}:')
    for c in range(4):
        lg.wait(ids[c])
        o = fb.sub(12 * (c & 1), 12); d_ = kc.sub(4 * c, 4); p0, p1 = pvv[2 * c], pvv[2 * c + 1]
        seq = [p0, p1, d_[0], d_[1], d_[2], d_[3]]
        o3 = o.sub(0, 4); o1 = o.sub(4, 4); o2 = o.sub(8, 4)
        for i in range(4): k(f'v_alignbit_b32 {o3[i]}, {seq[i + 1]}, {seq[i]}, 16')
        for i in range(3): k(f'v_mov_b32 {o1[i]}, {o3[i + 1]}')
        k(f'v_alignbit_b32 {o1[3]}, {seq[5]}, {seq[4]}, 16')
        for i in range(4): k(f'v_mov_b32 {o2[i]}, {seq[i + 1]}')
        for r_, oo in ((1, o1), (2, o2), (3, o3)): lg.op(f'ds_write_b128 {aw}, {oo} offset:{4160 * r_ + 32 + 1024 * c}')
    if dump:
        k(f's_lshl_b32 {st}, {s_d}, 12\ns_add_u32 {st}, {st}, {O_DBG}\nv_lshlrev_b32 {t[1]}, 4, {lane}')
        for c in range(4): vm.op(f'buffer_store_dwordx4 {kc.sub(4 * c, 4)}, {t[1]}, {Rws}, {st} offen offset:{1024 * c}')
    ga.release(); acc = k.v(32, 4); kacc.release(); ks.release(); atw.release(); atr.release()
    SP(4); lg.reset() if SP.on else None
    have = k.label('have')
    lp, ok = k.label('again'), k.label('rows')
    k(f's_cmp_lg_u32 {got}, 0\ns_cbranch_scc1 {have}\n{lp}:')
    gran_loads(); gran_check()
    k(f's_cbranch_scc1 {ok}\ns_sleep 2\ns_add_u32 {cnt}, {cnt}, 1\ns_cmp_lt_u32 {cnt}, {SPIN_MAX}\ns_cbranch_scc1 {lp}\ns_branch {END}\n{ok}:')
    x_loads()
    k(f'{have}:')
    xf = k.v(32); hf = k.v(32); st_ = k.v(16)
    for i in range(8): k(f'v_and_b32 {st_[2 * i]}, 0xffff0000, {sg[2 * i]}\nv_lshlrev_b32 {st_[2 * i + 1]}, 16, {sg[2 * i]}')
    for i in range(8): k(f'v_rcp_f32 {st_[2 * i]}, {st_[2 * i]}')
    for i in range(8): k(f'v_mul_f32 {st_[2 * i + 1]}, -{st_[2 * i + 1]}, {st_[2 * i]}')
    k('s_waitcnt vmcnt(0)')
    SP(14); lg.reset() if SP.on else None
    for i in range(16): k(f'v_lshlrev_b32 {xf[2 * i]}, 16, {x[i]}\nv_and_b32 {xf[2 * i + 1]}, 0xffff0000, {x[i]}')
    k(f'v_add_u32 {am}, {HB + 512}, {a4}')
    for j in range(16): k(f'v_pk_fma_f32 {hf.sub(2 * j, 2)}, {xf.sub(2 * j, 2)}, {st_.sub(2 * (j // 2), 2)}, {st_.sub(2 * (j // 2), 2)} op_sel:[0,0,1] op_sel_hi:[1,0,1]')
    lp, ok = k.label('gran'), k.label('got')
    k(f'{lp}:')
    k(f'v_cmp_ne_u32 vcc, 1, {mg[1]}\ns_cmp_eq_u64 vcc, 0\ns_cbranch_scc1 {ok}\ns_sleep 2')
    mod_loads()
    k(f's_add_u32 {cnt}, {cnt}, 1\ns_cmp_lt_u32 {cnt}, {SPIN_MAX}\ns_waitcnt vmcnt(0)\ns_cbranch_scc1 {lp}\ns_branch {END}\n{ok}:')
    for i in range(16): k(f'v_mov_b32_dpp {md_[i]}, {mg[0]} row_newbcast:{i} row_mask:0xf bank_mask:0xf')
    SP(5)
    for i in range(4):
        for j in range(4 * i, 4 * i + 4): k(f'v_pk_fma_f32 {hf.sub(2 * j, 2)}, {hf.sub(2 * j, 2)}, {md_.sub(4 + 2 * (j & 1), 2)}, {md_.sub(2 * (j & 1), 2)}')
        for c in range(4): k(f'v_cvt_pk_bf16_f32 {x[4 * i + c]}, {hf[8 * i + c]}, {hf[8 * i + 4 + c]}')
        for c in range(4): lg.op(f'ds_write_b32 {am}, {x[4 * i + c]} offset:{HSTR * c + 1024 * i}')
    st_.release()
    aA = kda[2]; aB = kda[3]
    k(f'v_bfe_u32 {t[0]}, {lane}, 2, 2\nv_mul_u32_u24 {aA}, 4160, {t[0]}\nv_and_b32 {t[0]}, 3, {lane}\nv_lshl_add_u32 {aA}, {t[0]}, 3, {aA}')
    k(f'v_lshlrev_b32 {t[0]}, 4, {q}\nv_sub_u32 {aA}, {aA}, {t[0]}\ns_add_u32 {st}, {wb}, 56\nv_add_u32 {aA}, {st}, {aA}')
    k(f's_mul_i32 {st}, {s_w}, {HSTR}\ns_add_u32 {st}, {st}, {HB + 480}\nv_lshl_add_u32 {aB}, {m}, 5, {t[0]}\nv_add_u32 {aB}, {st}, {aB}')
    lg.all(); k('s_barrier'); SP(6)
    fa2 = k.a(32, 4); fb2 = k.a(32, 4)
    sets = [(fa, fb), (fa2, fb2)]
    k(f'v_add_u32 {aB}, -448, {aB}')
    def reads(r_):
        A_, B_ = sets[r_ & 1]; out = []
        for i in range(8):
            out.append(f'ds_read_b128 {B_.sub(4 * i, 4)}, {aB} offset:{448 - 64 * r_ + 512 * i}')
            out.append(f'ds_read_b64_tr_b16 {A_.sub(4 * i, 2)}, {aA} offset:{64 * r_ + 8 + 512 * i}')
            out.append(f'ds_read_b64_tr_b16 {A_.sub(4 * i + 2, 2)}, {aA} offset:{64 * r_ + 512 * i}')
        return out
    jm = k.s(); l16 = k.v()
    k(f's_lshr_b32 {jm}, s2, 5\ns_sub_u32 {jm}, {jm}, 2\nv_lshlrev_b32 {l16}, 4, {lane}')
    pd = PairDma(k, s_w, jm, O_W1F, Rws, l16, W1_AT)
    early = [g for P_ in range(5) for g in pd.ops(P_)]
    flag_ld = f'buffer_load_dwordx2 {fl_v}, {z4[0]}, {Rdbg}, 0 offen offset:200 sc1'
    k(f'v_lshlrev_b32 {t[0]}, 3, {q}\nv_lshl_add_u32 {t[0]}, {m}, 5, {t[0]}\nv_add_u32 {t[0]}, {wb}, {t[0]}')
    dv = t.sub(4, 4)
    k(f's_lshl_b32 {st}, {sD[0]}, 16\ns_and_b32 {st2}, {sD[0]}, 0xffff0000\nv_mov_b32 {dv[0]}, {st}\nv_mov_b32 {dv[1]}, {st2}')
    k(f's_lshl_b32 {st}, {sD[1]}, 16\ns_and_b32 {st2}, {sD[1]}, 0xffff0000\nv_mov_b32 {dv[2]}, {st}\nv_mov_b32 {dv[3]}, {st2}')
    def y_out(tt):
        o = x.sub(2 * tt, 2)
        return [f'v_cvt_pk_bf16_f32 {o[0]}, {acc[4 * tt]}, {acc[4 * tt + 1]}', f'v_cvt_pk_bf16_f32 {o[1]}, {acc[4 * tt + 2]}, {acc[4 * tt + 3]}',
                f'ds_write_b64 {t[0]}, {o} offset:{512 * tt}']
    yq = []
    cur = [lg.op(x_) for x_ in reads(0)]
    for r_ in range(8):
        rd = reads(r_ + 1) if r_ < 7 else []
        A_, B_ = sets[r_ & 1]; nxt = []
        order = [(i, tt) for i in range(8) for tt in range(i, 8)] if r_ else sorted(((i, tt) for i in range(8) for tt in range(i, 8)), key=lambda p: (max(p[0], p[1] - p[0]), p))
        seen = set()
        if r_ == 1: k(flag_ld)
        if r_ == 3: k('s_waitcnt vmcnt(0)'); spin(0, flag_ld)
        for n_, (i, tt) in enumerate(order):
            lg.wait(max(cur[3 * i + 2], cur[3 * (tt - i)]))
            first = r_ == 0 and tt not in seen; seen.add(tt)
            k(f'v_mfma_f32_16x16x32_bf16 {acc.sub(4 * tt, 4)}, {A_.sub(4 * i, 4)}, {B_.sub(4 * (tt - i), 4)}, {"0" if first else acc.sub(4 * tt, 4)}')
            if rd: nxt.append(lg.op(rd.pop(0)))
            if r_ == 7:
                if i == tt and i: yq += y_out(i - 1)
                for _ in range(2):
                    if yq: x_ = yq.pop(0); lg.op(x_) if x_.startswith('ds_') else k(x_)
            if r_ >= 3 and n_ >= 24 and n_ % 3 == 0 and early:
                for x_ in early.pop(0): k(x_)
        cur = nxt
    assert not early
    SP(7)
    for x_ in yq + y_out(7): k(x_)
    k('s_waitcnt lgkmcnt(0)\ns_barrier')
    lg.reset()
    yp = fb.sub(0, 16); yf = acc; o = fa
    ids = [[lg.op(f'ds_read_b32 {yp[4 * i + c]}, {a4} offset:{WSTR * c + 1024 * i}') for c in range(4)] for i in range(4)]
    k(f's_lshl_b32 {st}, {cidx}, 14\ns_add_u32 {st}, {st}, {O_X2}')
    for i in range(4):
        lg.wait(ids[i][3])
        for c in range(4): k(f'v_lshlrev_b32 {yf[8 * i + c]}, 16, {yp[4 * i + c]}\nv_and_b32 {yf[8 * i + 4 + c]}, 0xffff0000, {yp[4 * i + c]}')
        for j in range(4 * i, 4 * i + 4): k(f'v_pk_fma_f32 {yf.sub(2 * j, 2)}, {hf.sub(2 * j, 2)}, {dv.sub(2 * (j & 1), 2)}, {yf.sub(2 * j, 2)}')
        for j in range(4 * i, 4 * i + 4): k(f'v_pk_fma_f32 {yf.sub(2 * j, 2)}, {yf.sub(2 * j, 2)}, {md_.sub(8 + 2 * (j & 1), 2)}, {xf.sub(2 * j, 2)}')
        for j in range(4): k(f'v_cvt_pk_bf16_f32 {o[4 * i + j]}, {yf[8 * i + 2 * j]}, {yf[8 * i + 2 * j + 1]}')
        k(f'buffer_store_dwordx4 {o.sub(4 * i, 4)}, {ag}, {Rws}, {st} offen sc1')
        if i < 3: k(f's_add_u32 {st}, {st}, 4096')
```

```python
from common import *

K2_LDS = LDS_BYTES
T_B, T_G, T_F = TABS, TABS + 3456, TABS + 6144
XBUF, HBUF = 0, 73728
X1C, PSTL = 147456, 147456 + 9216
SPIN_MAX = 40000
GC1 = -2.0 * LOG2E * 0.7978845608028654
GC2 = GC1 * 0.044715
PI = [0, 1, 2, 5, 6, 7, 9, 10, 11, 14, 15, 16, 3, 12, 4, 8, 13, 17]
MF = 'v_mfma_f32_16x16x32_bf16'

def un(d, s_, hi): return f'v_and_b32 {d}, 0xffff0000, {s_}' if hi else f'v_lshlrev_b32 {d}, 16, {s_}'

def gelu_consts(k, sig, c):
    k(f'v_mov_b32 {c[2]}, {sig}\nv_rcp_f32 {c[0]}, {sig}')
    k(f'v_mul_f32 {c[1]}, {c[0]}, {c[0]}\nv_mul_f32 {c[1]}, {c[1]}, {c[0]}')
    k(f'v_mul_f32 {c[0]}, {fl(GC1)}, {c[0]}\nv_mul_f32 {c[1]}, {fl(GC2)}, {c[1]}')

def phase2(k, P, lane, s_w, END, SP, opt=()):
    stamps = SP.on
    WFL = ' sc1'
    PFL = ' '.join(o[2:] for o in opt if o.startswith('p_')) or 'sc1'
    q = k.v(); m = k.v(); l16 = k.v(); one = k.v(); zero = k.v(); fv4 = k.v(8, 4)
    Rws = k.s(4); RG = k.s(4); RW = k.s(4)
    srd(k, RG, P['dbg'], 256)
    k(f'v_mov_b32 {one}, 1\nv_mov_b32 {zero}, 0')
    go_ld = f'buffer_load_dwordx4 {fv4[0:4]}, {zero}, {RG}, 0 offen offset:192 sc1'
    k(go_ld)
    k(f'v_lshrrev_b32 {q}, 4, {lane}\nv_and_b32 {m}, 15, {lane}\nv_lshlrev_b32 {l16}, 4, {lane}')
    rb = k.s(); jm = k.s(); mb = k.s(); fs = k.s(); st = k.s(); st1 = k.s(); sav = k.s(2); cnt = k.s(); mt = k.s()
    k(f's_and_b32 {st}, s2, 1\ns_lshl_b32 {mb}, {st}, 4\ns_bfe_u32 {st}, s2, 0x20001\ns_lshl_b32 {fs}, {st}, 1\ns_lshl_b32 {rb}, {st}, 2\ns_add_u32 {rb}, {rb}, {mb}')
    k(f's_bfe_u32 {st}, s2, 0x20003\ns_add_u32 {rb}, {rb}, {st}\ns_lshr_b32 {jm}, s2, 5\ns_sub_u32 {jm}, {jm}, 2')
    k(f's_bfe_u32 {st}, s2, 0x40003\ns_add_u32 {mb}, {mb}, {st}\ns_lshr_b32 {st}, s2, 7\ns_add_u32 {fs}, {fs}, {st}')
    if 'a4' in opt:
        k(f's_and_b32 {mb}, s2, 3\ns_lshl_b32 {mb}, {mb}, 3\ns_bfe_u32 {st}, s2, 0x30003\ns_add_u32 {mb}, {mb}, {st}')
        k(f's_bfe_u32 {fs}, s2, 0x10002\ns_lshl_b32 {fs}, {fs}, 2\ns_lshr_b32 {st}, s2, 6\ns_add_u32 {fs}, {fs}, {st}')
    if 'a1' in opt: k(f's_lshr_b32 {mb}, s2, 3\ns_and_b32 {fs}, s2, 7')
    if 'a8' in opt:
        k(f's_and_b32 {mb}, s2, 7\ns_lshl_b32 {mb}, {mb}, 2\ns_bfe_u32 {st}, s2, 0x20003\ns_add_u32 {mb}, {mb}, {st}\ns_lshr_b32 {fs}, s2, 5')
    k(f's_lshl_b32 {mt}, {rb}, 2\ns_add_u32 {mt}, {mt}, {s_w}\ns_mov_b32 {cnt}, 0')
    srd(k, Rws, P['ws'], WS_USED); srd(k, RW, P['ws'], WS_USED)
    vm, lg = trackers(k)
    def STAMP(i, g4=False):
        mode = 'g4st' if 'g4st' in opt else 'g3st' if 'g3st' in opt else False
        if stamps and (g4 == mode or (i not in (1, 2, 3, 4, 5) and not g4)): SP(i); lg.reset()
    def flag_add(s_idx, base):
        k(f's_lshl_b32 {st}, {s_idx}, 7\ns_add_u32 {st}, {st}, {base}\ns_mov_b64 exec, 1')
        vm.op(f'buffer_atomic_add {one}, {zero}, {Rws}, {st} offen sc1')
        k('s_mov_b64 exec, -1')
    def poll(vaddr, base, target, sleep=0, fv=None):
        own = fv is None; fv = fv or k.v(); lp, ok = k.label('poll'), k.label('ok')
        k(f's_mov_b32 {st1}, {base}\n{lp}:\nbuffer_load_dword {fv}, {vaddr}, {Rws}, {st1} offen sc1\ns_waitcnt vmcnt(0)')
        k(f'v_cmp_gt_u32 vcc, {target}, {fv}\ns_cmp_eq_u64 vcc, 0\ns_cbranch_scc1 {ok}')
        if sleep: k(f's_sleep {sleep}')
        k(f's_add_u32 {cnt}, {cnt}, 1\ns_cmp_lt_u32 {cnt}, {SPIN_MAX}\ns_cbranch_scc1 {lp}\ns_branch {END}\n{ok}:')
        vm.reset()
        if own: fv.release()
    W = [k.a(72, 4), k.a(72, 4)]; vo = [l16] + [k.v() for _ in range(4)]
    for g in range(1, 5): k(f'v_add_u32 {vo[g]}, {4096 * g}, {l16}')
    sn = k.s(); s4 = k.s()
    k(f's_lshl_b32 {sn}, {fs}, 2\ns_add_u32 {sn}, {sn}, {s_w}\ns_mul_i32 {sn}, {sn}, {9 * 18432}\ns_add_u32 {s4}, {sn}, {O_W4F}\ns_add_u32 {sn}, {sn}, {O_W3F}')
    wld = lambda r_, ks: f'buffer_load_dwordx4 {W[r_].sub(4 * ks, 4)}, {vo[ks // 4]}, {RW}, {sn} offen offset:{1024 * (ks % 4)}' + WFL
    sm = k.s(); so = k.s()
    k(f's_lshl_b32 {sm}, {s_w}, 10')
    def spin(ld, regs, sleep=16):
        lp, ok = k.label('spin'), k.label('up')
        k(f'{lp}:\ns_waitcnt vmcnt(0)\nv_mov_b32 {fv4[7]}, {regs[0]}')
        for r_ in regs[1:]: k(f'v_and_b32 {fv4[7]}, {fv4[7]}, {r_}')
        k(f'v_readfirstlane_b32 {st}, {fv4[7]}\ns_cmp_lg_u32 {st}, 0\ns_cbranch_scc1 {ok}')
        k(f's_sleep {sleep}\n{ld}\ns_add_u32 {cnt}, {cnt}, 1\ns_cmp_lt_u32 {cnt}, {SPIN_MAX}\ns_cbranch_scc1 {lp}\ns_branch {END}\n{ok}:')
    RB = k.v(24, 4)
    keepV, keepA, keepS = list(k.V.free), list(k.A.free), list(k.S.free)
    XX = k.v(146, 2); t = k.v(8); row = k.v()
    pd1 = PairDma(k, s_w, jm, O_W1F, Rws, l16, W1_AT)
    k(f's_lshl_b32 {st}, {s_w}, 6\nv_add_u32 {t[2]}, {st}, {lane}')
    u_ = XX.sub(0, 4)
    def tab_src(d, u):
        k(f's_mul_i32 {st}, {jm}, 12\nv_cmp_le_u32 vcc, 72, {u}\nv_subrev_u32 {u_[0]}, 72, {u}\nv_cndmask_b32 {u_[0]}, {u}, {u_[0]}, vcc\nv_add_u32 {u_[0]}, {st}, {u_[0]}')
        k(f'v_mov_b32 {u_[2]}, {O_MODB + 1152}\nv_mov_b32 {u_[3]}, {O_MODB}\nv_cndmask_b32 {u_[2]}, {u_[2]}, {u_[3]}, vcc')
        k(f'v_cmp_le_u32 vcc, 72, {u_[0]}\nv_subrev_u32 {u_[1]}, 72, {u_[0]}\nv_cndmask_b32 {u_[0]}, {u_[0]}, {u_[1]}, vcc\nv_lshl_add_u32 {d}, {u_[0]}, 4, {u_[2]}')
        k(f's_mul_i32 {st}, {jm}, 24\ns_sub_u32 {st}, {st}, 144\nv_add_u32 {u_[0]}, {st}, {u}\nv_cmp_le_u32 vcc, 144, {u_[0]}\nv_subrev_u32 {u_[1]}, 144, {u_[0]}')
        k(f'v_cndmask_b32 {u_[0]}, {u_[0]}, {u_[1]}, vcc\nv_lshlrev_b32 {u_[0]}, 4, {u_[0]}\nv_add_u32 {u_[0]}, {O_MODF + 4 * 2304}, {u_[0]}')
        k(f'v_cmp_le_u32 vcc, 144, {u}\nv_cndmask_b32 {d}, {d}, {u_[0]}, vcc')
    tab_src(t[3], t[2])
    k(f'v_add_u32 {t[5]}, 256, {lane}')
    tab_src(t[4], t[5])
    k(f'v_mul_u32_u24 {t[5]}, 43691, {t[2]}\nv_lshrrev_b32 {t[5]}, 20, {t[5]}\nv_mul_u32_u24 {t[6]}, 120, {t[5]}')
    k(f'v_add_u32 {t[6]}, {t[6]}, {t[2]}\nv_lshlrev_b32 {t[6]}, 4, {t[6]}')
    pd = PairDma(k, s_w, jm, O_W2F, Rws, l16, W2_AT)
    k(f's_lshl_b32 {st}, {mt}, 4\nv_add_u32 {row}, {st}, {m}')
    k(f'v_lshlrev_b32 {t[0]}, 15, {q}\nv_lshl_add_u32 {t[0]}, {row}, 3, {t[0]}\nv_add_u32 {t[1]}, 0x4000, {t[0]}')
    ones = k.v(4, 4); sacc = k.v(4, 4); gacc = k.v(4, 4); tacc = k.v(4, 4); qacc = k.v(4, 4); acc = k.v(24, 4)
    for i in range(4): k(f'v_mov_b32 {ones[i]}, 0x3f803f80')
    msk = [k.s(2) for _ in range(3)]; bidx = k.v()
    k(f'v_and_b32 {t[2]}, 3, {m}')
    for e in range(3): k(f'v_cmp_eq_u32 {msk[e]}, {e + 1}, {t[2]}')
    aT = k.v(); aW = [l16, k.v(), k.v()]
    k(f'v_min_u32 {t[2]}, 2, {t[2]}\nv_mul_u32_u24 {aT}, 1152, {t[2]}\nv_lshl_add_u32 {aT}, {q}, 4, {aT}\nv_add_u32 {aT}, {T_B}, {aT}\nv_lshlrev_b32 {t[7]}, 5, {q}\nv_add_u32 {t[7]}, {T_G}, {t[7]}')
    k(f'v_lshrrev_b32 {t[2]}, 2, {m}\nv_lshl_add_u32 {t[2]}, {t[2]}, 4, {m}\nv_lshlrev_b32 {bidx}, 2, {t[2]}')
    k(f'v_add_u32 {aW[1]}, 0xf000, {l16}\nv_add_u32 {aW[2]}, 0x1e000, {l16}')
    k(f'v_lshlrev_b32 {t[2]}, 4, v0\nv_add_u32 {t[2]}, {T_B}, {t[2]}')
    spin(go_ld, [fv4[0]])
    k('s_waitcnt lgkmcnt(0)\ns_barrier')
    STAMP(15)
    na, nb = k.label('noarr'), k.label('notlast')
    k(f's_cmp_lg_u32 {s_w}, 0\ns_cbranch_scc1 {na}\ns_and_b32 {st1}, s2, 3\ns_lshl_b32 {st}, {st1}, 7\ns_add_u32 {st}, {st}, {O_FA}\ns_mov_b64 exec, 1')
    k(f'v_mov_b32 {fv4[4]}, 1\nbuffer_atomic_add {fv4[4]}, {zero}, {Rws}, {st} offen sc0 sc1\ns_lshl_b32 {st1}, {st1}, 2\ns_waitcnt vmcnt(0)')
    k(f'v_readfirstlane_b32 {st}, {fv4[4]}\ns_cmp_lg_u32 {st}, 63\ns_cbranch_scc1 {nb}')
    k(f'buffer_store_dword {one}, {zero}, {RG}, {st1} offen offset:208 sc1\n{nb}:\ns_mov_b64 exec, -1\n{na}:')
    go3_ld = f'buffer_load_dwordx4 {fv4[0:4]}, {zero}, {RG}, 0 offen offset:208 sc1'
    k('s_cmp_lt_u32 s2, 64\ns_cbranch_scc1 k2_idle')

    w0, w5, wj = k.label('havew1'), k.label('rest'), k.label('joined')
    spin(go_ld, [fv4[2], fv4[3]])
    k(f's_add_u32 m0, {sm}, {T_B + 1152}\nbuffer_load_dwordx4 {t[3]}, {Rws}, 0 offen sc1 lds')
    k(f's_mov_b32 m0, {T_B + 1152 + 4096}\ns_mov_b32 exec_hi, 0\nbuffer_load_dwordx4 {t[4]}, {Rws}, 0 offen sc1 lds\ns_mov_b64 exec, -1')
    k(f's_cmp_ge_u32 s2, 112\ns_cbranch_scc1 {w0}')
    for P_ in range(5):
        for g in pd1.ops(P_):
            for x_ in g: k(x_)
    k(f's_waitcnt vmcnt(0)\n{w0}:\ns_barrier\ns_cmp_eq_u32 {s_w}, 0\ns_cbranch_scc1 {w5}')
    k(f's_lshl_b32 {pd1.t}, {s_w}, 11\ns_sub_u32 {pd1.t}, {pd1.t}, 2048\ns_mul_i32 {pd1.src}, {jm}, 110592\ns_add_u32 {pd1.src}, {pd1.src}, {pd1.t}\ns_add_u32 {pd1.src}, {pd1.src}, {O_W1F + 61440}')
    for sl_i in range(10, 18):
        k(f's_add_u32 m0, {pd1.t}, {W1_AT[sl_i]}\nbuffer_load_dwordx4 {l16}, {Rws}, {pd1.src} offen sc1 lds')
        k(f'buffer_load_dwordx4 {l16}, {Rws}, {pd1.src} offen offset:1024 sc1 lds')
        if sl_i < 17: k(f's_add_u32 {pd1.src}, {pd1.src}, 6144')
    k(f'{w5}:')
    pd1.release()
    k(f'v_cmp_gt_u32 vcc, 72, v0\ns_and_saveexec_b64 {sav}, vcc\nds_write_b128 {t[2]}, {ones}\ns_mov_b64 exec, {sav}')
    w2ops = [g for P_ in range(9) for g in pd.ops(P_)]
    def w2dma():
        for x_ in w2ops.pop(0): vm.op(x_) if x_.startswith('buffer') else k(x_)
    ix = []
    def issue(i):
        vm.op(f'buffer_load_dwordx2 {XX.sub(4 * i, 2)}, {t[0]}, {Rws}, {st1} offen sc1')
        ix.append(vm.op(f'buffer_load_dwordx2 {XX.sub(4 * i + 2, 2)}, {t[1]}, {Rws}, {st1} offen sc1'))
        if i < 17: k(f's_add_u32 {st1}, {st1}, 131072')
        if i % 3 == 2 and i < 17: k(f's_cmp_eq_u32 {st1}, {O_X2 + 18 * 131072}\ns_cselect_b32 {st1}, {O_X2}, {st1}')
    lds_at = lambda a_: f'{aW[a_ // 0xf000]} offset:{a_ % 0xf000}'
    TF = W[1]; WR = [k.a(24, 4), k.a(24, 4)]
    def w_reads(i):
        return [f'ds_read_b128 {WR[i & 1].sub(4 * tt, 4)}, {lds_at(W1_AT[i] + 1024 * tt)}' for tt in range(6)]
    k(f's_cmp_lg_u32 {s_w}, 0\ns_cbranch_scc1 {wj}\n{go3_ld}')
    spin(go3_ld, [fv4[i] for i in range(4)], 2)
    k(f'{wj}:\ns_mul_i32 {st1}, {jm}, {3 * 131072}\ns_add_u32 {st1}, {st1}, {O_X2}\ns_mul_i32 {so}, {jm}, 384\ns_add_u32 {so}, {so}, {O_MOD2}\ns_waitcnt vmcnt(16) lgkmcnt(0)\ns_barrier'); vm.reset(); lg.reset()
    STAMP(0)
    nis = 5
    for i in range(nis): issue(i)
    itf = [lg.op(f'ds_read_b128 {TF.sub(4 * i, 4)}, {aT} offset:{64 * i}') for i in range(18)]
    iwr = [lg.op(x_) for x_ in w_reads(0)]
    for i in range(18):
        lg.wait(itf[i]); k(f'{MF} {acc[4:8]}, {TF.sub(4 * i, 4)}, {TF.sub(4 * i, 4)}, {"0" if i == 0 else acc[4:8]}')
    cs = k.s(5, 1)
    for n_, (e, j_) in enumerate(((0, 1), (0, 2), (1, 1), (1, 2), (2, 2))): k(f'v_readlane_b32 {cs[n_]}, {acc[4 + e]}, {j_}')
    XG = [XX.sub(72, 4), XX.sub(76, 4)]; GT = [XX.sub(80, 8), XX.sub(88, 8)]; tv = XX.sub(96, 8)
    g_reads = lambda i: [f'ds_read_b128 {GT[i & 1].sub(4 * h, 4)}, {t[7]} offset:{128 * i + 16 * h}' for h in range(2)]
    def xg_ops(i):
        xs = XX.sub(4 * i, 4); g_ = GT[i & 1]
        return ([un(tv[e], xs[e >> 1], e & 1) for e in range(8)] + [f'v_mul_f32 {tv[e]}, {tv[e]}, {g_[e]}' for e in range(8)]
                + [f'v_cvt_pk_bf16_f32 {XG[i & 1][e]}, {tv[2 * e]}, {tv[2 * e + 1]}' for e in range(4)])
    ig0 = [lg.op(x_) for x_ in g_reads(0) + g_reads(1)]
    vm.wait(ix[0]); lg.wait(ig0[1])
    for x_ in xg_ops(0): k(x_)
    igt = ig0[3]; n2 = 0
    for i in range(18):
        if i == 9: vm.wait(itab)
        if i in (9, 13): k('s_barrier')
        if i == 1: STAMP(1)
        xg = XG[i & 1]; xr = XX.sub(4 * i, 4)
        c_ = lambda r_: '0' if i == 0 else r_
        M = [(0, f'{MF} {sacc}, {ones}, {xr}, {c_(sacc)}'), (0, f'{MF} {gacc}, {xr}, {xr}, {c_(gacc)}'),
             (0, f'{MF} {tacc}, {TF.sub(4 * i, 4)}, {xg}, {c_(tacc)}'), (0, f'{MF} {qacc}, {xg}, {xg}, {c_(qacc)}')]
        M += [(iwr[tt], f'{MF} {acc.sub(4 * tt, 4)}, {WR[i & 1].sub(4 * tt, 4)}, {xg}, {c_(acc.sub(4 * tt, 4))}') for tt in range(6)]
        Rd = w_reads(i + 1) if i < 17 else []
        V = xg_ops(i + 1) if i < 17 else []
        Gd = g_reads(i + 2) if i < 16 else []
        nxt = []
        for n_, (idr, mm) in enumerate(M):
            lg.wait(idr); k(mm)
            if Rd and n_ < 6: nxt.append(lg.op(Rd.pop(0)))
            if V and n_ == 0: vm.wait(ix[i + 1])
            if V and n_ == 4: lg.wait(igt)
            if Gd and n_ >= 8: ign = lg.op(Gd.pop(0))
            for _ in range(2):
                if V: k(V.pop(0))
        iwr = nxt
        if i < 16: igt = ign
        if i == 4:
            k(f's_add_u32 m0, {sm}, {T_F}')
            itab = vm.op(f'buffer_load_dwordx4 {t[6]}, {Rws}, {so} offen sc1 lds')
        if nis < 18:
            for _ in range(2 if nis < i + 9 else 1):
                if nis < 18: issue(nis); nis += 1
        else:
            for _ in range(3):
                if n2 < (18 if i < 13 else 27): w2dma(); n2 += 1
    assert n2 == 27
    STAMP(2)
    k.inject([lambda ks=ks: vm.op(wld(0, ks)) for ks in PI], 9)
    TB = [XX.sub(24, 16), XX.sub(40, 16)]; uu = XX.sub(56, 48)
    k(f'v_lshlrev_b32 {aT}, 5, {q}\nv_add_u32 {aT}, {T_F}, {aT}')
    tf_read = lambda dst, r_, e: f'ds_read_b128 {dst}, {aT} offset:{384 * r_ + 128 * (e >> 1) + 16 * (e & 1)}'
    def diag(d, g_):
        k(f'v_cndmask_b32 {d}, {g_[0]}, {g_[1]}, {msk[0]}\nv_cndmask_b32 {d}, {d}, {g_[2]}, {msk[1]}\nv_cndmask_b32 {d}, {d}, {g_[3]}, {msk[2]}')
        return lg.op(f'ds_bpermute_b32 {d}, {bidx}, {d}')
    i2 = diag(t[2], qacc); i1 = diag(t[1], gacc)
    iu = [lg.op(tf_read(uu.sub(24 * r_ + 4 * e, 4), 3 + r_, e)) for e in range(6) for r_ in range(2)]
    s1 = XX.sub(140, 2); gc = XX.sub(136, 4)
    k(f'v_mov_b32 {t[0]}, {sacc[0]}'); lg.wait(i1)
    sigma_bf16(k, t[0], t[1])
    k(f'v_cvt_pk_bf16_f32 {t[0]}, {t[0]}, {t[1]}\nv_and_b32 {s1[0]}, 0xffff0000, {t[0]}\nv_lshlrev_b32 {s1[1]}, 16, {t[0]}')
    k(f'v_rcp_f32 {s1[0]}, {s1[0]}\nv_mov_b32 {t[3]}, {cs[1]}\nv_mov_b32 {t[4]}, {cs[3]}\nv_mul_f32 {s1[1]}, -{s1[1]}, {s1[0]}')
    k(f'v_fma_f32 {t[3]}, {s1[1]}, {cs[0]}, {t[3]}\nv_fma_f32 {t[0]}, {s1[0]}, {tacc[0]}, {t[3]}')
    k(f'v_fma_f32 {t[3]}, {s1[1]}, {tacc[1]}, {tacc[2]}\nv_add_f32 {t[3]}, {t[3]}, {t[3]}\nv_fma_f32 {t[3]}, {s1[0]}, {t[2]}, {t[3]}')
    k(f'v_add_f32 {t[4]}, {t[4]}, {t[4]}\nv_fma_f32 {t[4]}, {s1[1]}, {cs[2]}, {t[4]}\nv_mov_b32 {t[5]}, {cs[4]}\nv_fma_f32 {t[4]}, {s1[1]}, {t[4]}, {t[5]}')
    k(f'v_fma_f32 {t[1]}, {s1[0]}, {t[3]}, {t[4]}')
    sigma_bf16(k, t[0], t[1])
    k(f'v_cvt_pk_bf16_f32 {t[1]}, {t[1]}, {t[1]}\nv_and_b32 {t[1]}, 0xffff0000, {t[1]}')
    gelu_consts(k, t[1], gc)
    k(f's_mul_i32 {st}, {jm}, {3 * GPL}\ns_lshl_b32 {so}, {mt}, 10\ns_add_u32 {st}, {st}, {so}\ns_add_u32 {st}, {st}, {O_G + 1024}')
    lg.all()
    for e in range(12): k(f'v_pk_fma_f32 {uu.sub(2 * e, 2)}, {uu.sub(2 * e, 2)}, {s1}, {uu.sub(24 + 2 * e, 2)} op_sel:[0,1,0] op_sel_hi:[1,1,1]')
    for e in range(12): k(f'v_pk_fma_f32 {acc.sub(2 * e, 2)}, {acc.sub(2 * e, 2)}, {s1}, {uu.sub(2 * e, 2)} op_sel_hi:[1,0,1]')
    tt_ = TB[0]; go = TB[1]
    for Pp in range(3):
        a = acc.sub(8 * Pp, 8); u = tt_.sub(0, 8)
        for e in range(4): k(f'v_pk_mul_f32 {u.sub(2 * e, 2)}, {a.sub(2 * e, 2)}, {a.sub(2 * e, 2)}')
        for e in range(4): k(f'v_pk_fma_f32 {u.sub(2 * e, 2)}, {u.sub(2 * e, 2)}, {gc[0:2]}, {gc[0:2]} op_sel:[0,1,0] op_sel_hi:[1,1,0]')
        for e in range(4): k(f'v_pk_mul_f32 {u.sub(2 * e, 2)}, {u.sub(2 * e, 2)}, {a.sub(2 * e, 2)}')
        for e in range(8): k(f'v_exp_f32 {u[e]}, {u[e]}')
        for e in range(4): k(f'v_pk_fma_f32 {u.sub(2 * e, 2)}, {u.sub(2 * e, 2)}, {gc[2:4]}, {gc[2:4]} op_sel_hi:[1,0,0]')
        for e in range(8): k(f'v_rcp_f32 {u[e]}, {u[e]}')
        for e in range(4): k(f'v_pk_mul_f32 {u.sub(2 * e, 2)}, {u.sub(2 * e, 2)}, {a.sub(2 * e, 2)}')
        o = go.sub(4 * Pp, 4)
        for e in range(4): k(f'v_cvt_pk_bf16_f32 {o[e]}, {u[2 * e]}, {u[2 * e + 1]}')
        if Pp == 2: k.flush_inject()
        ig = vm.op(f'buffer_store_dwordx4 {o}, {l16}, {Rws}, {st} offen sc1')
        if Pp < 2: k(f's_add_u32 {st}, {st}, {GPL}')
    h2f = uu.sub(0, 24); x2f = XX.sub(104, 24); gbv = RB
    xsrc = lambda e: XX[e >> 1]
    ig_ = [lg.op(tf_read(gbv.sub(4 * e, 4), 1, e)) for e in range(6)]
    is_ = [lg.op(tf_read(uu.sub(24 + 4 * e, 4), 0, e)) for e in range(6)]
    for e in range(24): k(un(x2f[e], xsrc(e), e & 1))
    dl = [XX[128 + i] for i in range(6)]
    k(f'v_cmp_gt_u32 vcc, 2, {q}')
    for g, dlt in enumerate((-1, 1, -2, 2)):
        k(f'v_add_u32 {dl[4]}, {16 + dlt}, {row}\nv_lshrrev_b32 {dl[5]}, 4, {dl[4]}\nv_and_b32 {dl[4]}, 15, {dl[4]}\nv_lshlrev_b32 {dl[4]}, 4, {dl[4]}')
        k(f'v_lshl_add_u32 {dl[4]}, {dl[5]}, 10, {dl[4]}\nv_lshl_add_u32 {dl[g]}, {q}, 8, {dl[4]}')
    k(f'v_cndmask_b32 {dl[4]}, {dl[1]}, {dl[0]}, vcc\nv_cndmask_b32 {dl[5]}, {dl[3]}, {dl[2]}, vcc')
    pa = XX[134]
    k(f'v_min_u32 {pa}, 2, {lane}\nv_add_u32 {pa}, {mt}, {pa}\nv_add_u32 {pa}, -1, {pa}\nv_max_i32 {pa}, 0, {pa}\nv_min_u32 {pa}, 127, {pa}\nv_lshlrev_b32 {pa}, 7, {pa}')
    vm.wait(ig)
    flag_add(mt, O_FC)
    STAMP(3)
    k(f's_add_u32 {sn}, {sn}, 18432')
    for e in range(12): k(f'v_pk_fma_f32 {h2f.sub(2 * e, 2)}, {x2f.sub(2 * e, 2)}, {s1}, {s1} op_sel:[0,0,1] op_sel_hi:[1,0,1]')
    lg.all()
    for e in range(12): k(f'v_pk_fma_f32 {h2f.sub(2 * e, 2)}, {h2f.sub(2 * e, 2)}, {gbv.sub(2 * e, 2)}, {uu.sub(24 + 2 * e, 2)}')
    NPRE = 5
    k('s_barrier')
    WP = [WR[0], WR[1], k.a(24, 4), k.a(24, 4), XX.sub(0, 24)]
    w2_addr = lambda i, tt: lds_at(W2_AT[i] + 1024 * tt)
    for i in range(NPRE):
        for tt in range(6): lg.op(f'ds_read_b128 {WP[i].sub(4 * tt, 4)}, {w2_addr(i, tt)}')
    poll(pa, O_FC, 6)
    STAMP(4)
    GF = TF
    sel = lambda s: dl[4] if s == 4 else dl[5] if s == 13 else dl[(2 * s) // 9]
    ig = []
    for s in range(18):
        k(f's_mov_b32 {st}, {O_G + s * GPL}')
        ig.append(vm.op(f'buffer_load_dwordx4 {GF.sub(4 * s, 4)}, {sel(s)}, {Rws}, {st} offen sc1'))
    lg.all()
    ird = {}
    for s in range(18):
        vm.wait(ig[s])
        wr = WP[s % NPRE]
        for tt in range(6):
            if s >= NPRE: lg.wait(ird[s, tt])
            k(f'{MF} {acc.sub(4 * tt, 4)}, {wr.sub(4 * tt, 4)}, {GF.sub(4 * s, 4)}, {"0" if s == 0 else acc.sub(4 * tt, 4)}')
            if s + NPRE < 18: ird[s + NPRE, tt] = lg.op(f'ds_read_b128 {wr.sub(4 * tt, 4)}, {w2_addr(s + NPRE, tt)}')
        vm.op(wld(1, s))
    lg.all()
    STAMP(5)
    aS = dl[1]
    k(f'v_lshrrev_b32 {t[0]}, 1, {q}')
    k(f'v_lshlrev_b32 {aS}, 6, {t[0]}\nv_lshl_add_u32 {aS}, {m}, 2, {aS}')
    k(f's_mul_i32 {st}, {rb}, 18\ns_mul_i32 {so}, {jm}, 3\ns_add_u32 {st}, {st}, {so}\ns_lshl_b32 {st}, {st}, 2\ns_add_u32 {st}, {st}, {s_w}\ns_lshl_b32 {st}, {st}, 10\ns_add_u32 {st}, {st}, {O_X1F}')
    for e in range(12): k(f'v_pk_add_f32 {h2f.sub(2 * e, 2)}, {h2f.sub(2 * e, 2)}, {acc.sub(2 * e, 2)}')
    for Pp in range(3):
        o = go.sub(4 * Pp, 4)
        for e in range(4): k(f'v_cvt_pk_bf16_f32 {o[e]}, {h2f[8 * Pp + 2 * e]}, {h2f[8 * Pp + 2 * e + 1]}')
        vm.op(f'buffer_store_dwordx4 {o}, {l16}, {Rws}, {st} offen sc1')
        if Pp < 2: k(f's_add_u32 {st}, {st}, 4096')
    k(f'v_pk_add_f32 {t[0:2]}, {h2f[0:2]}, {h2f[2:4]}\nv_pk_mul_f32 {t[2:4]}, {h2f[0:2]}, {h2f[0:2]}\nv_pk_fma_f32 {t[2:4]}, {h2f[2:4]}, {h2f[2:4]}, {t[2:4]}')
    for e in range(2, 12): k(f'v_pk_add_f32 {t[0:2]}, {t[0:2]}, {h2f.sub(2 * e, 2)}\nv_pk_fma_f32 {t[2:4]}, {h2f.sub(2 * e, 2)}, {h2f.sub(2 * e, 2)}, {t[2:4]}')
    k(f'v_add_f32 {t[0]}, {t[0]}, {t[1]}\nv_add_f32 {t[2]}, {t[2]}, {t[3]}\nv_permlane32_swap_b32 {t[0]}, {t[2]}\nv_add_f32 {t[0]}, {t[0]}, {t[2]}')
    k(f'v_mov_b32 {t[1]}, {t[0]}\nv_permlane16_swap_b32 {t[0]}, {t[1]}\nv_add_f32 {t[0]}, {t[0]}, {t[1]}')
    k(f's_mul_i32 {st}, {mt}, 6\ns_add_u32 {st}, {st}, {jm}\ns_lshl_b32 {st}, {st}, 7\ns_add_u32 {st}, {st}, {O_PST}\ns_mov_b32 exec_lo, 0xffff\ns_mov_b32 exec_hi, 0xffff')
    vm.op(f'buffer_store_dword {t[0]}, {aS}, {Rws}, {st} offen sc1')
    k('s_mov_b64 exec, -1')
    vm.all()
    flag_add(mt, O_FD)
    STAMP(6)
    k('s_branch k2_phase_e')
    k('k2_idle:')
    k.V.free, k.A.free, k.S.free = list(keepV), list(keepA), list(keepS)
    vm, lg = trackers(k)
    cj = ColJob(k, vm, lg, lane, s_w)
    fr = k.v(72, 4); sl = k.s(); dst = k.s(); job = k.s(); R4 = k.s(4)
    srd(k, R4, P['w4'], D * F * 2)
    fr2 = k.v(12, 4); part = k.s(); np_, dn = k.label('nopart'), k.label('w4done')
    k(f's_mul_hi_u32 {sl}, s2, {(1 << 32) // 9 + 1}\ns_mul_i32 {dst}, {sl}, 9\ns_sub_u32 {dst}, s2, {dst}\ns_lshl_b32 {dst}, {dst}, 7')
    k(f's_mul_i32 {st}, {sl}, {576 * 1152}\ns_add_u32 {dst}, {dst}, {st}\ns_mov_b32 {st}, 1152')
    cj.dma(R4, dst, st, 0, True)
    k(f's_mul_hi_u32 {job}, s2, {(1 << 32) // 6 + 1}\ns_mul_i32 {part}, {job}, 6\ns_sub_u32 {part}, s2, {part}\ns_cmp_ge_u32 s2, 48\ns_cbranch_scc1 {np_}')
    k(f's_mul_i32 {dst}, {part}, {96 * 1152}\ns_lshl_b32 {st}, {job}, 7\ns_add_u32 {dst}, {dst}, {st}\ns_add_u32 {dst}, {dst}, {7 * 576 * 1152 + 128}\ns_mov_b32 {st}, 1152')
    cj.dma(R4, dst, st, 73728, True, nks=3)
    k(f'{np_}:')
    ad = cj.addr(0, w4order=True); ad2 = cj.addr(73728, w4order=True)
    k('s_waitcnt vmcnt(0)\ns_barrier'); vm.reset()
    ids = cj.reads(ad, fr); ids2 = cj.reads(ad2, fr2, 3)
    k(f's_lshl_b32 {dst}, s2, 2\ns_add_u32 {dst}, {dst}, {s_w}\ns_mul_i32 {dst}, {dst}, 18432\ns_add_u32 {dst}, {dst}, {O_W4F}')
    cj.store(fr, ids, Rws, dst, 1024)
    k(f's_lshl_b32 {dst}, {job}, 2\ns_add_u32 {dst}, {dst}, {s_w}\ns_mul_i32 {dst}, {dst}, 18432\ns_mul_i32 {st}, {part}, 3072\ns_add_u32 {dst}, {dst}, {st}')
    k(f's_add_u32 {dst}, {dst}, {O_W4F + 256 * 18432}\ns_cmp_ge_u32 s2, 48\ns_cselect_b32 {dst}, {WS_USED}, {dst}')
    cj.store(fr2, ids2, Rws, dst, 1024, nks=3)
    vm.all()
    flag_add(sl, O_FW)
    k(f's_cmp_ge_u32 s2, 48\ns_cbranch_scc1 {dn}\ns_mov_b32 {sl}, 7')
    flag_add(sl, O_FW)
    k(f'{dn}:\n{go3_ld}')
    spin(go3_ld, [fv4[i] for i in range(4)]); vm.reset()
    for r_ in range(2):
        for ks in PI: vm.op(wld(r_, ks))
        if r_ == 0: k(f's_add_u32 {sn}, {sn}, 18432')
    STAMP(14)
    k('k2_phase_e:')
    k.V.free, k.A.free, k.S.free = keepV, keepA, keepS
    vm, lg = trackers(k)
    vm.n = 1
    XA = k.a(112, 4); XV = k.v(176, 4)
    xf = lambda ks, t_: XA.sub(16 * ks + 4 * t_, 4) if 16 * ks + 4 * t_ < 112 else XV.sub(16 * ks + 4 * t_ - 112, 4)
    fv4.release()
    k(f's_add_u32 {sn}, {sn}, 18432')
    acc = [k.v(16, 4), k.v(16, 4)]
    t = acc[1].sub(0, 12); pa = k.v()
    k(f's_lshl_b32 {st}, {mb}, 2\nv_add_u32 {pa}, {st}, {lane}\ns_add_u32 {st}, {fs}, {(O_FW - O_FD) // 128}\nv_mov_b32 {t[0]}, {st}\nv_cmp_gt_u32 vcc, 4, {lane}')
    k(f'v_cndmask_b32 {pa}, {t[0]}, {pa}, vcc\nv_lshlrev_b32 {pa}, 7, {pa}\ns_cmp_eq_u32 {fs}, 7\ns_cselect_b32 {st}, 196, 36\nv_mov_b32 {t[0]}, {st}\nv_cndmask_b32 {t[0]}, {t[0]}, 6, vcc')
    k(f's_lshl_b32 {sm}, {s_w}, 10\ns_mul_i32 {so}, {mb}, 73728\ns_add_u32 {so}, {so}, {sm}\ns_add_u32 {so}, {so}, {O_X1F}')
    sk_ = k.label('nopoll')
    k(f's_cmp_lg_u32 {s_w}, 0\ns_cbranch_scc1 {sk_}')
    poll(pa, O_FD, t[0], sleep=1, fv=t[1])
    k(f'{sk_}:\ns_waitcnt vmcnt(0)\ns_barrier')
    STAMP(7)
    ixd = []; idv = {}
    def xdma(ks):
        k(f's_add_u32 m0, {sm}, {XBUF + 4096 * ks}\ns_add_u32 {st}, {so}, {4096 * ks}')
        ixd.append(vm.op(f'buffer_load_dwordx4 {l16}, {Rws}, {st} offen sc1 lds'))
    for ks in PI[:7]: xdma(ks)
    k(f's_mul_i32 {st}, {mb}, 3072\ns_add_u32 {st}, {st}, {sm}\ns_add_u32 {st}, {st}, {O_PST}\ns_add_u32 m0, {sm}, {PSTL}')
    vm.op(f'buffer_load_dwordx4 {l16}, {Rws}, {st} offen sc1 lds')
    k(f'v_mul_u32_u24 {pa}, 768, {q}\nv_lshl_add_u32 {pa}, {m}, 2, {pa}\nv_add_u32 {pa}, {PSTL}, {pa}')
    aX = [l16, k.v()]; aHr = [k.v(), k.v()]; aH = [k.v(), k.v()]
    k(f'v_add_u32 {aX[1]}, 0x9000, {l16}\nv_add_u32 {aHr[0]}, {HBUF}, {l16}\nv_add_u32 {aHr[1]}, {HBUF + 0x9000}, {l16}')
    for h in range(2):
        k(f's_mul_i32 {st}, {s_w}, 9\ns_add_u32 {st}, {st}, {h}\ns_and_b32 {st1}, {st}, 1\ns_lshl_b32 {st1}, {st1}, 3\ns_lshr_b32 {st}, {st}, 1\ns_lshl_b32 {st}, {st}, 12')
        k(f's_add_u32 {st}, {st}, {st1}\nv_add_u32 {aH[h]}, {st}, {aHr[0]}')
    GC = [RB.sub(8 + 3 * i, 3) for i in range(4)]
    gt = RB.sub(0, 8); hp = [RB.sub(20, 2), RB.sub(22, 2)]
    def gelu_ops(a, ah):
        out = []
        for t_ in range(4):
            c = GC[t_]; x = [a[4 * t_ + e] for e in range(4)]; u = [gt[4 * (t_ & 1) + e] for e in range(4)]; o = hp[t_ & 1]
            out += [f'v_mul_f32 {u[e]}, {x[e]}, {x[e]}' for e in range(4)]
            out += [f'v_fma_f32 {u[e]}, {u[e]}, {c[1]}, {c[0]}' for e in range(4)]
            out += [f'v_mul_f32 {u[e]}, {u[e]}, {x[e]}' for e in range(4)]
            out += [f'v_exp_f32 {u[e]}, {u[e]}' for e in range(4)]
            out += [f'v_fma_f32 {u[e]}, {u[e]}, {c[2]}, {c[2]}' for e in range(4)]
            out += [f'v_rcp_f32 {u[e]}, {u[e]}' for e in range(4)]
            out += [f'v_mul_f32 {u[e]}, {u[e]}, {x[e]}' for e in range(4)]
            out += [f'v_cvt_pk_bf16_f32 {o[0]}, {u[0]}, {u[1]}', f'v_cvt_pk_bf16_f32 {o[1]}, {u[2]}, {u[3]}']
            out.append(f'ds_write_b64 {ah}, {o} offset:{1024 * t_}')
        return out
    def cost(x_):
        if isinstance(x_, tuple): return x_[0]
        return 2 if x_.startswith(('v_exp', 'v_rcp', 'ds_write')) else 1
    def emit(x_):
        if isinstance(x_, tuple): x_[1]()
        elif x_.startswith('ds_'): lg.op(x_)
        elif x_.startswith('buffer_'): vm.op(x_)
        else: k(x_)
    wid = {}; nw = {}; due = []
    from_lds = []; lid = {}
    def refill(r_):
        ks = due.pop()
        if from_lds: lid[r_, ks] = lg.op(f'ds_read_b128 {W[r_].sub(4 * ks, 4)}, {from_lds[0]} offset:{1024 * ks}'); nw[r_, ks] = 0
        else: nw[r_, ks] = vm.op(wld(r_, ks))
    def tile(a, r_, fill, steps=range(18), lead=2, pre=None, post=None, per_step=0, rate=None, load=True, at=None):
        steps = list(steps); nm = 4 * len(steps); n_ = 0; fill = list(fill); at = at or {}
        total = len(steps) * (1.5 + per_step) + sum(cost(x_) for x_ in fill)
        rate = rate or total / nm
        cum = 0
        for i in steps:
            ks = PI[i]
            if i in at: fill += at[i]; cum = max(cum, rate * n_ - 1)
            if pre: pre(i)
            if i % 2 == 0:
                n0 = len(k.l); vm.wait(max(wid.get((r_, PI[j]), 0) for j in (i, i + 1))); cum += len(k.l) - n0
            for t_ in range(4):
                k(f'{MF} {a.sub(4 * t_, 4)}, {W[r_].sub(4 * ks, 4)}, {xf(ks, t_)}, {"0" if i == 0 else a.sub(4 * t_, 4)}')
                n_ += 1
                nxt = 0
                if t_ == 0 and due: refill(r_); cum += 1
                if t_ == 3:
                    if load: due.append(ks)
                    if post: post(i)
                    cum += per_step
                    nxt = i % 2
                while n_ >= lead and fill and cum + nxt + cost(fill[0]) / 2 <= rate * n_: cum += cost(fill[0]); emit(fill.pop(0))
        for x_ in fill: emit(x_)
        if steps[-1] == 17 and due: refill(r_)
        if steps[-1] == 17: wid.update(nw); nw.clear()
    def frag_reads(base, i):
        ks = PI[i]
        return [lg.op(f'ds_read_b128 {xf(ks, t_)}, {base[ks // 9]} offset:{(ks % 9) * 4096 + 1024 * t_}') for t_ in range(4)]
    nxt_tile = lambda: k(f's_add_u32 {sn}, {sn}, 18432')
    rd = {}
    XB = {0: 2, 1: 6, 5: 11, 10: 17}
    def pre0(i):
        if i in XB: vm.wait(ixd[XB[i]]); k('s_barrier')
        if i == 0:
            for j in (0, 1): rd[j] = frag_reads(aX, j)
        if i + 2 < 18: rd[i + 2] = frag_reads(aX, i + 2)
        lg.wait(rd[i][3])
    todo = [(0, lambda ks=ks: xdma(ks)) for ks in PI[7:]]
    todo += [(i, lambda ks=PI[i]: wid.__setitem__((0, ks, 'n'), vm.op(wld(0, ks)))) for i in range(18)]
    def post0(i):
        for _ in range(18 if i == 17 else 4 if i < 3 else 3):
            if todo and todo[0][0] <= i: todo.pop(0)[1]()
        if i == 10:
            for j in range(6): idv['p'] = lg.op(f'ds_read2_b32 {t.sub(2 * j, 2)}, {pa} offset0:{32 * j} offset1:{32 * j + 16}')
    class Rec:
        def __init__(self): self.l = []
        def __call__(self, x_): self.l += x_.split('\n')
    rec = Rec()
    for e in (0, 4, 8): rec(f'v_add_f32 {t[e]}, {t[e]}, {t[e + 2]}\nv_add_f32 {t[e + 1]}, {t[e + 1]}, {t[e + 3]}')
    for e in (4, 8): rec(f'v_add_f32 {t[0]}, {t[0]}, {t[e]}\nv_add_f32 {t[1]}, {t[1]}, {t[e + 1]}')
    sigma_bf16(rec, t[0], t[1])
    rec(f'v_cvt_pk_bf16_f32 {t[1]}, {t[1]}, {t[1]}\nv_and_b32 {t[1]}, 0xffff0000, {t[1]}\nv_lshlrev_b32 {t[2]}, 2, {m}')
    c1 = [(1, lambda: lg.wait(idv['p']))] + rec.l
    c1 += [(1, lambda i=i: idv.__setitem__('b', lg.op(f'ds_bpermute_b32 {t[4 + i]}, {t[2]}, {t[1]} offset:{64 * i}'))) for i in range(4)]
    rec = Rec()
    for i in range(4): gelu_consts(rec, t[4 + i], GC[i])
    c2 = [(1, lambda: lg.wait(idv['b']))] + [rec.l[6 * i + j] for j in range(6) for i in range(4)]
    tile(acc[0], 0, [], pre=pre0, post=post0, load=False, rate=2.0, at={12: c1, 16: c2})
    assert not todo
    for ks in range(18): wid[0, ks] = wid.pop((0, ks, 'n'))
    nxt_tile()
    STAMP(8)
    fa_ = k.v(); xc = k.v(3, 1)
    sS = k.s(); sM = k.s()
    k(f's_add_u32 {sS}, {s4}, {4 * 18432}\ns_mul_i32 {sM}, {s_w}, 18432')
    def check(idl, val, tgt, vaddr, base):
        ok = k.label('up'); d0 = None
        vm.wait(idl)
        k(f'v_cmp_gt_u32 vcc, {tgt}, {val}\ns_cmp_eq_u64 vcc, 0\ns_cbranch_scc1 {ok}')
        d0 = vm.done; poll(vaddr, base, tgt, fv=val); vm.done = d0
        k(f'{ok}:')
    STAGE = 'nostage' not in opt
    rd = {}
    for tt in range(1, 9):
        fill = gelu_ops(acc[1 - (tt & 1)], aH[1 - (tt & 1)]) + [f'v_add_u32 {aH[1 - (tt & 1)]}, 4096, {aH[1 - (tt & 1)]}']
        if 4 <= tt <= 7 and STAGE:
            if tt == 4: lg.all(); k('s_barrier')
            for n_, ks in enumerate(range((tt - 4) * 18 // 4, (tt - 3) * 18 // 4)):
                fill[10 + 26 * n_:10 + 26 * n_] = [f's_add_u32 m0, {sM}, {4096 * (ks // 4)}',
                    (1, lambda ks=ks: idv.__setitem__('stage', vm.op(f'buffer_load_dwordx4 {vo[ks // 4]}, {RW}, {sS} offen offset:{1024 * (ks % 4)} sc1 lds')))]
        if tt == 1:
            k(f's_lshr_b32 {so}, {fs}, 1\ns_mul_i32 {so}, {so}, 9\ns_and_b32 {st1}, {fs}, 1\ns_lshl_b32 {st1}, {st1}, 11\ns_lshr_b32 {sm}, {s_w}, 1\ns_lshl_b32 {sm}, {sm}, 8\ns_add_u32 {st1}, {st1}, {sm}')
            k(f's_and_b32 {sm}, {s_w}, 1\ns_lshl_b32 {sm}, {sm}, 3\ns_add_u32 {st1}, {st1}, {sm}\nv_lshrrev_b32 {xc[2]}, 1, {q}\nv_lshl_add_u32 {xc[0]}, {xc[2]}, 10, {st1}')
            k(f'v_lshl_add_u32 {xc[0]}, {m}, 4, {xc[0]}\nv_and_b32 {xc[2]}, 1, {q}\nv_lshl_add_u32 {xc[2]}, {xc[2]}, 2, {xc[0]}')
            for h in range(2):
                k(f's_add_u32 {st}, {so}, {h}\ns_and_b32 {sm}, {st}, 1\ns_lshl_b32 {sm}, {sm}, 9\ns_lshr_b32 {st}, {st}, 1\ns_lshl_b32 {st}, {st}, 12\ns_add_u32 {st}, {st}, {sm}\nv_add_u32 {xc[h]}, {st}, {xc[2]}')
            k(f's_mul_i32 {st}, {s_w}, 2304\ns_add_u32 {st}, {st}, {X1C}\nv_lshl_add_u32 {xc[2]}, {lane}, 2, {st}')
        if 1 <= tt <= 3:
            for t_ in range(3 * tt - 3, 3 * tt):
                def cp(t_=t_): idv['x'] = lg.op(f'ds_read_b32 {pa}, {xc[t_ & 1]} offset:{4096 * (t_ >> 1)}')
                def wr(t_=t_): lg.wait(idv['x']); lg.op(f'ds_write_b32 {xc[2]}, {pa} offset:{256 * t_}')
                n_ = 20 + 33 * (t_ % 3)
                fill[n_:n_] = [(1, cp)]; fill[n_ + 20:n_ + 20] = [(2, wr)]
        if tt == 7: k(f's_mov_b32 {sn}, {s4}')
        if tt in (1, 4, 7, 8): STAMP({1: 1, 4: 2, 7: 3, 8: 4}[tt], 'g3st')
        if tt < 8: tile(acc[tt & 1], tt & 1, fill)
        else:
            lg.all(); k('s_barrier')
            def post8(i):
                if i < 12: rd[i] = frag_reads(aHr, i)
            tile(acc[0], 0, fill, post=post8, per_step=2.7)
        nxt_tile()
    STAMP(9)
    k('s_waitcnt lgkmcnt(0)\ns_barrier'); lg.reset()
    for j in (12, 13): rd[j] = frag_reads(aHr, j)
    tile(acc[1], 1, gelu_ops(acc[0], aH[0]), steps=range(10), lead=1)
    lg.all(); k('s_barrier')
    for j in range(14, 18): rd[j] = frag_reads(aHr, j)
    tile(acc[1], 1, [], steps=range(10, 18), pre=lambda i: lg.wait(rd[i][3]) if i >= 14 else None)
    Rout = k.s(4)
    sp = k.s(); sq = k.s(); sf = k.s(); T0 = k.s(); sl_ = k.s(); po = [gt.sub(0, 4), gt.sub(4, 4)]
    aP, aR, aO = GC[0][0], GC[0][1], GC[0][2]; aL, aLr, aLg = GC[1][0], GC[1][1], GC[1][2]; aOw, aOr = GC[2][0], GC[2][1]; fv = pa; fpa = fa_
    u0, u1, u2 = hp[0][0], hp[0][1], hp[1][0]
    X2L, GBL, OUTB = HBUF, HBUF + 9216, HBUF + 13312
    sx_ = k.s(); mk = [k.s(2), k.s(2)]; own = [k.s(), k.s()]; sp1 = k.s(); OWN = 'noown' not in opt
    setup = f"""s_mov_b32 {Rout[0]}, {P['out'][0]}
s_mov_b32 {Rout[1]}, {P['out'][1]}
s_mov_b32 {Rout[2]}, {L * D * 2}
s_mov_b32 {Rout[3]}, 0x20000
s_lshl_b32 {st}, {fs}, 13
s_mul_i32 {sq}, {mb}, {9 * 65536}
s_add_u32 {sq}, {sq}, {st}
s_add_u32 {sq}, {sq}, {O_PART}
s_mul_i32 {sf}, {mb}, 36
s_lshr_b32 {T0}, {fs}, 1
s_add_u32 {st}, {sf}, {T0}
s_lshl_b32 {st}, {st}, 7
v_mov_b32 {fpa}, {st}
s_add_u32 {sf}, {sf}, {s_w}
s_lshl_b32 {sf}, {sf}, 7
s_add_u32 {sf}, {sf}, {O_FP}
s_mul_i32 {T0}, {T0}, 9
s_lshl_b32 {st}, {s_w}, 8
v_lshl_add_u32 {u0}, {m}, 4, {st}
v_lshl_add_u32 {aP}, {q}, 10, {u0}
v_and_b32 {u1}, 1, {q}
v_lshrrev_b32 {u2}, 1, {q}
v_lshl_add_u32 {u0}, {u2}, 4, {m}
v_lshlrev_b32 {aR}, 3, {u0}
v_lshl_add_u32 {aR}, {u1}, 2, {aR}
s_and_b32 {so}, {fs}, 1
s_lshl_b32 {st}, {mb}, 1
s_add_u32 {so}, {so}, {st}
s_lshl_b32 {so}, {so}, 8
s_lshl_b32 {st}, {s_w}, 14
s_add_u32 {so}, {so}, {st}
v_add_u32 {aR}, {so}, {aR}
s_mul_i32 {sx_}, {s_w}, 2304
s_add_u32 {sx_}, {sx_}, {X2L}
v_lshl_add_u32 {aLr}, {lane}, 2, {sx_}
s_mul_i32 {st}, {s_w}, 1040
s_add_u32 {st}, {st}, {GBL}
v_lshl_add_u32 {aLg}, {u1}, 3, {st}
v_mul_u32_u24 {aOw}, 304, {u0}
v_lshl_add_u32 {aOw}, {u1}, 2, {aOw}
s_lshl_b32 {st}, {s_w}, 3
s_add_u32 {st}, {st}, {OUTB}
v_add_u32 {aOw}, {st}, {aOw}
s_and_b32 {st}, {fs}, 3
s_lshl_b32 {so}, {st}, 4
s_lshl_b64 {mk[0]}, 0xffff, {so}
s_not_b64 {mk[0]}, {mk[0]}
s_cmp_ge_u32 {fs}, 4
s_cselect_b64 {mk[1]}, {mk[0]}, -1
s_cselect_b64 {mk[0]}, -1, {mk[0]}
s_lshl_b32 {st}, {fs}, 8
v_mul_u32_u24 {u0}, 18432, {q}
v_lshl_add_u32 {u0}, {m}, 4, {u0}
v_add_u32 {u0}, {st}, {u0}
v_add_u32 {u1}, {HBUF + 24576}, {l16}
s_lshl_b32 {st}, {s_w}, 1
s_cmp_eq_u32 {st}, {fs}
s_cselect_b64 vcc, -1, 0
s_cselect_b32 {own[0]}, 1, 0
v_cndmask_b32 {aH[0]}, {u1}, {u0}, vcc
s_add_u32 {st}, {st}, 1
s_cmp_eq_u32 {st}, {fs}
s_cselect_b64 vcc, -1, 0
s_cselect_b32 {own[1]}, 1, 0
v_cndmask_b32 {aH[1]}, {u1}, {u0}, vcc""".split('\n')
    k(f's_mul_i32 {sp}, {mb}, {9 * 65536}\ns_lshl_b32 {st}, {s_w}, 14\ns_add_u32 {sp}, {sp}, {st}\ns_lshl_b32 {st}, {fs}, 10\ns_add_u32 {sp}, {sp}, {st}\ns_add_u32 {sp}, {sp}, {O_PART}')
    k(f's_mov_b32 {sl_}, {sM}\nv_add_u32 {aL}, {sM}, {l16}')
    for x_ in (aHr[0], aHr[1], aX[1]): x_.release()
    k(f's_mov_b32 {sp1}, {sp}'); spp = [sp, sp1]
    ids = {}
    def S(t_, a, p):
        out = [f'v_cvt_pk_bf16_f32 {po[p][e]}, {a[8 * p + 2 * e]}, {a[8 * p + 2 * e + 1]}' for e in range(4)]
        if OWN and t_ == 2: out.append((2, lambda: k(f's_cmp_lg_u32 {own[p]}, 0\ns_cselect_b32 {spp[p]}, {WS_USED}, {spp[p]}')))
        out.append((1, lambda: ids.__setitem__(('S', t_), vm.op(f'buffer_store_dwordx4 {po[p]}, {vo[2 * p]}, {Rws}, {spp[p]} offen {PFL}'))))
        if OWN and t_ >= 2: out.append(f'ds_write_b128 {aH[p]}, {po[p]} offset:{2048 * t_}')
        return out + [f's_add_u32 {spp[p]}, {spp[p]}, 65536']
    def G(t_):
        def f():
            if t_ == 8: k(f's_add_u32 {sf}, {sf}, 4096')
            vm.wait(ids['S', t_])
            if OWN and t_ >= 2: lg.all()
            k('s_mov_b64 exec, 1')
            vm.op(f'buffer_atomic_add {one}, {zero}, {Rws}, {sf} offen offset:{512 * (t_ % 8)} sc1')
            k('s_mov_b64 exec, -1')
        return [(4, f)]
    def Lf(t_): return [f's_mov_b32 {st1}, {O_FP + 512 * t_}', (1, lambda: ids.__setitem__(('L', t_), vm.op(f'buffer_load_dword {fv}, {fpa}, {Rws}, {st1} offen sc1')))]
    def dma(lds, va, soff, mask):
        def f():
            if mask: k(f's_mov_b64 exec, {mask}')
            ids['d'] = vm.op(f'buffer_load_dwordx4 {va}, {Rws}, {soff} offen sc1 lds')
            if mask: k('s_mov_b64 exec, -1')
        return [f's_add_u32 m0, {sl_}, {lds}', (3 if mask else 1, f)]
    def C(t_):
        m_ = mk if OWN and t_ >= 2 else [None, None]
        return (dma(2048 * t_, aP, sq, m_[0]) + [f's_add_u32 {st}, {sq}, 4096'] + dma(2048 * t_ + 1024, aP, st, m_[1]) + [f's_add_u32 {sq}, {sq}, 65536']
                + [(0, lambda: ids.__setitem__(('C', t_), ids['d']))])
    def RS(t_): return [f's_add_u32 {st}, {T0}, {t_}', f's_lshl_b32 {st}, {st}, 16', f's_add_u32 {st}, {st}, {O_X2}', f's_add_u32 m0, {sx_}, {256 * t_}',
                        f'buffer_load_dword {aR}, {Rws}, {st} offen sc1 lds']
    def CK(t_): return [(4, lambda: check(ids['L', t_], fv, 8, fpa, O_FP + 512 * t_))]
    def R(t_, Dr, v):
        A_, B_, r_, g_ = Dr
        def rd_():
            vm.wait(ids['C', t_])
            lg.op(f'ds_read_b128 {A_}, {aL} offset:{2048 * t_}'); lg.op(f'ds_read_b128 {B_}, {aL} offset:{2048 * t_ + 1024}')
            lg.op(f'ds_read_b32 {r_[0]}, {aLr} offset:{256 * t_}'); lg.op(f'ds_read_b32 {r_[1]}, {xc[2]} offset:{256 * t_}'); ids['r', t_] = lg.op(f'ds_read_b64 {g_}, {aLg} offset:{64 * t_}')
        out = [(1, lambda: lg.wait(ids['r', t_]))]
        for d in range(4): out += [f'v_lshlrev_b32 {v[2 * d]}, 16, {A_[d]}', f'v_lshlrev_b32 {v[2 * d + 1]}, 16, {B_[d]}']
        for d in range(4): out += [f'v_and_b32 {A_[d]}, 0xffff0000, {A_[d]}', f'v_add_f32 {v[2 * d]}, {v[2 * d]}, {v[2 * d + 1]}', f'v_and_b32 {B_[d]}, 0xffff0000, {B_[d]}']
        out += [f'v_add_f32 {v[2 * d + 1]}, {A_[d]}, {B_[d]}' for d in range(4)]
        out += [f'v_permlane32_swap_b32 {v[e]}, {v[e + 4]}' for e in (0, 2, 1, 3)]
        out += [f'v_add_f32 {v[e]}, {v[e]}, {v[e + 4]}' for e in (0, 2, 1, 3)]
        out += [un(v[4 + e], r_[e >> 1], e & 1) for e in (2, 3)]
        out += [f'v_permlane16_swap_b32 {v[e]}, {v[e + 2]}' for e in range(2)]
        out += [un(v[4 + e], r_[e >> 1], e & 1) for e in (0, 1)]
        out += [f'v_add_f32 {v[e]}, {v[e]}, {v[e + 2]}' for e in range(2)]
        out += [f'v_add_f32 {v[e]}, {v[e]}, {v[e + 6]}' for e in range(2)]
        out += [f'v_fma_f32 {v[e]}, {v[e]}, {g_[e]}, {v[4 + e]}' for e in range(2)]
        out += [f'v_cvt_pk_bf16_f32 {v[4]}, {v[0]}, {v[1]}', f'ds_write_b32 {aOw}, {v[4]} offset:{32 * t_}']
        return [(6, rd_)], out
    SPOS = 9
    for tt in range(1, 9):
        nxt_tile()
        a_ = acc[tt & 1]
        at = {0: S(tt - 1, a_, 0), SPOS: S(tt - 1, a_, 1)}
        add = lambda i, ops: at.__setitem__(i, at.get(i, []) + ops)
        if tt == 1: add(2, setup)
        if tt == 2:
            k('s_barrier')
            add(2, [f's_lshl_b32 {st}, {T0}, 6', f's_add_u32 {st}, {st}, {O_MOD2 + 4608}', f's_lshl_b32 {so}, {s_w}, 10', f's_add_u32 m0, {so}, {GBL}',
                    f'buffer_load_dwordx4 {l16}, {Rws}, {st} offen sc1 lds'])
        if 2 <= tt <= 6: add(4, RS(2 * tt - 4) + (RS(2 * tt - 3) if tt < 6 else []))
        if 'sB' in opt:
            if tt in (3, 5, 6, 7, 8): add(6, G(tt - 2))
            if tt in (4, 6, 7, 8): add(15, Lf(tt - 3))
            if tt in (5, 7): add(12, CK(tt - 4) + C(tt - 5) + C(tt - 4))
            if tt == 8: add(12, CK(4) + C(4))
        elif 'sC' in opt:
            if tt in (4, 6, 7, 8): add(6, G(tt - 2))
            if tt in (6, 7, 8): add(15 if tt > 6 else 8, Lf({6: 2, 7: 4, 8: 5}[tt]))
            if tt == 7: add(1, CK(2) + C(0) + C(1) + C(2))
            if tt == 8: add(12, CK(4) + C(3) + C(4))
        else:
            if tt >= 2: add(6, G(tt - 2))
            if tt >= 4: add(12, CK(tt - 4) + C(tt - 4))
            if tt >= 3: add(15, Lf(tt - 3))
        if tt in (1, 4, 7, 8): STAMP({1: 1, 4: 2, 7: 3, 8: 4}[tt], 'g4st')
        if tt == 2 and STAGE: vm.wait(idv['stage']); from_lds.append(aL)
        tile(acc[1 - (tt & 1)], 1 - (tt & 1), [], rate=2.0, at=at, load=tt < 7)
        if tt == 2 and STAGE: from_lds.clear()
        if tt == 2: lg.all(); k('s_barrier')
    STAMP(10)
    XV.release()
    Dn = [[k.v(4, 2), k.v(4, 2), k.v(2), k.v(2)] for _ in range(9)]; v2 = k.v(8, 2)
    RR = [R(t_, Dn[t_], v2) for t_ in range(9)]
    seq = S(8, acc[1], 0) + S(8, acc[1], 1) + G(7) + CK(5) + C(5) + Lf(6)
    for t_ in range(3): seq += RR[t_][0]
    seq += RR[0][1] + G(8) + RR[1][1] + CK(6) + C(6) + Lf(7) + RR[3][0] + RR[4][0] + RR[2][1] + RR[3][1] + CK(7) + C(7) + Lf(8) + RR[5][0] + RR[4][1] + RR[5][1]
    for x_ in seq: emit(x_)
    u = k.v(3)
    k(f'v_mul_u32_u24 {u[0]}, 3641, v0\nv_lshrrev_b32 {u[0]}, 16, {u[0]}\nv_mul_u32_u24 {u[1]}, 18, {u[0]}\nv_sub_u32 {u[1]}, v0, {u[1]}\nv_lshlrev_b32 {u[1]}, 4, {u[1]}')
    k(f'v_mul_u32_u24 {aOr}, 304, {u[0]}\nv_add_u32 {aOr}, {aOr}, {u[1]}\nv_add_u32 {aOr}, {OUTB}, {aOr}\nv_mul_u32_u24 {aO}, 1152, {u[0]}\nv_add_u32 {aO}, {aO}, {u[1]}')
    k(f's_lshl_b32 {st}, {mb}, 1\ns_and_b32 {so}, {fs}, 1\ns_add_u32 {so}, {so}, {st}\ns_mul_i32 {so}, {so}, {32 * 1152}\ns_lshl_b32 {st}, {T0}, 5\ns_add_u32 {so}, {so}, {st}')
    for x_ in CK(8): emit(x_)
    STAMP(11)
    for x_ in C(8) + RR[6][0] + RR[7][0] + RR[6][1] + RR[7][1] + RR[8][0] + RR[8][1]: emit(x_)
    lg.all(); k('s_barrier')
    o4 = [Dn[0][0], Dn[0][1], Dn[1][0]]
    k(f'v_cmp_gt_u32 vcc, 252, v0\ns_and_b64 exec, exec, vcc')
    io = [lg.op(f'ds_read_b128 {o4[i]}, {aOr} offset:{14 * 304 * i}') for i in range(3)]
    for i in range(3):
        if i == 2: k(f's_cmp_ge_u32 {s_w}, 2\ns_cbranch_scc1 {END}\nv_cmp_gt_u32 vcc, 72, v0\ns_and_b64 exec, exec, vcc')
        lg.wait(io[i])
        k(f'buffer_store_dwordx4 {o4[i]}, {aO}, {Rout}, {so} offen')
        if i < 2: k(f's_add_u32 {so}, {so}, {14 * 1152}')
    STAMP(12)
```

```python
from common import *

N_SIG = 64 + 45
BUF0, BUF1, SVEC = 0, 73728, 147456
K1_LDS = 147456 + 2560
SPIN_MAX = 40000

def vmaps():
    maps = [list(range(16))]
    for s in (1, 2, 3):
        m = list(maps[-1]); step = 1 << s
        new = [step * i for i in range(8, 16)]
        for j in range(16):
            if m[j] % step: m[j] = new.pop(0)
        assert not new
        maps.append(m)
    return maps

def service(k, P, lane, s_w, END, NEXT, SP, opt=()):
    vm, lg = trackers(k)
    Rws = k.s(4); Rdbg = k.s(4); RA = k.s(4); RB = k.s(4)
    srd(k, Rws, P['ws'], WS_USED); srd(k, Rdbg, P['dbg'], 256)
    z4 = k.v(4, 4); zero = z4.sub(0, 2); one = k.v(); l16 = k.v(); q = k.v(); m = k.v()
    fr = k.v(72, 4); sv = k.v(72, 4); acc = k.v(4, 4)
    sav = k.s(2); st = k.s(); cnt = k.s()
    jb = k.s(); modeB = k.s(); blkB = k.s(); srcB = k.s(); strB = k.s()
    L_mod, L_B, L_C = k.label('mod'), k.label('jobB'), k.label('jobC')
    k(f'v_lshrrev_b32 {q}, 4, {lane}\nv_and_b32 {m}, 15, {lane}\nv_lshlrev_b32 {l16}, 4, {lane}')
    cjs = {}
    def common():
        for i in range(4): k(f'v_mov_b32 {z4[i]}, 0')
        k(f'v_mov_b32 {one}, 1\ns_mov_b32 {cnt}, 0')
        k(f's_add_u32 {jb}, s2, 32')
        for lo, val in ((64, -64), (73, -58), (90, None), (91, -82), (97, None), (103, -7)):
            if val is None: k(f's_cmp_ge_u32 s2, {lo}\ns_cselect_b32 {jb}, 200, {jb}')
            else: k(f's_sub_u32 {blkB}, s2, {-val}\ns_cmp_ge_u32 s2, {lo}\ns_cselect_b32 {jb}, {blkB}, {jb}')
        srd(k, RB, P['wmod'], D * 3456 * 2)
        k(f's_mov_b32 {modeB}, 0\ns_cmp_ge_u32 {jb}, 9\ns_cselect_b32 {blkB}, 30, 45\ns_add_u32 {blkB}, {blkB}, {jb}\ns_mov_b32 {strB}, 6912')
        for mode, lo, ptr, nb, st_ in ((2, 15, 'w2', D * D * 2, 1152), (3, 24, 'w3', D * F * 2, 9216), (1, 96, 'w1', D * D * 2, 1152)):
            k(f's_sub_u32 {srcB}, {jb}, {lo}\ns_cmp_ge_u32 {jb}, {lo}')
            k(f's_cselect_b32 {blkB}, {srcB}, {blkB}\ns_cselect_b32 {modeB}, {mode}, {modeB}\ns_cselect_b32 {strB}, {st_}, {strB}')
            k(f's_cselect_b32 {RB[0]}, {P[ptr][0]}, {RB[0]}\ns_cselect_b32 {RB[1]}, {P[ptr][1]}, {RB[1]}\ns_cselect_b32 {RB[2]}, {nb}, {RB[2]}')
        k(f's_lshl_b32 {srcB}, {blkB}, 7')
    def signal(off, last):
        sk = k.label('notlast')
        k(f's_mov_b64 exec, 1\nv_mov_b32 {acc[0]}, 1\nbuffer_atomic_add {acc[0]}, {zero[0]}, {Rdbg}, {off} offen offset:64 sc0 sc1\ns_waitcnt vmcnt(0)')
        k(f'v_readfirstlane_b32 {st}, {acc[0]}\ns_cmp_lg_u32 {st}, {last}\ns_cbranch_scc1 {sk}')
        k(f'buffer_store_dword {one}, {zero[0]}, {Rdbg}, {off} offen offset:192 sc1\n{sk}:\ns_mov_b64 exec, -1')
    cj = ColJob(k, vm, lg, lane, s_w)
    L_w1 = k.label('w1')
    k(f's_cmp_ge_u32 s2, 103\ns_cbranch_scc1 {L_w1}\ns_cmp_ge_u32 s2, 64\ns_cbranch_scc1 {L_mod}')

    srd(k, RA, P['u'], L * D * 2)
    va = k.v(); vx = k.v(2); t = k.v(6); row = k.v(); s1 = k.s()
    k(f's_and_b32 {st}, {s_w}, 1\ns_lshl_b32 {s1}, s2, 1\ns_add_u32 {st}, {st}, {s1}\ns_lshl_b32 {st}, {st}, 4')
    k(f'v_and_b32 {t[0]}, 7, {m}\nv_lshrrev_b32 {t[2]}, 3, {m}\nv_lshl_add_u32 {t[5]}, {t[0]}, 1, {t[2]}\nv_add_u32 {row}, {st}, {t[5]}')
    k(f's_lshr_b32 {s1}, {s_w}, 1\ns_mul_i32 {st}, {s1}, 576\nv_mul_u32_u24 {va}, 1152, {row}\nv_lshl_add_u32 {va}, {q}, 4, {va}')
    for i in range(4): k(f'v_mov_b32 {z4[i]}, 0')
    k(f's_lshl_b32 {sav[0]}, s2, 8\ns_add_u32 {sav[0]}, {sav[0]}, {O_STATS}\ns_cmp_eq_u32 {s_w}, 0\ns_cselect_b32 {sav[0]}, {sav[0]}, {WS_USED}\ns_mov_b64 exec, 0xffff')
    k(f'buffer_store_dwordx4 {z4}, {l16}, {Rws}, {sav[0]} offen sc1\ns_mov_b64 exec, -1')
    k(f's_or_b32 {sav[0]}, s2, {s_w}\ns_cmp_eq_u32 {sav[0]}, 0\ns_mov_b32 {sav[0]}, {O_FW}\ns_cselect_b32 {sav[0]}, {sav[0]}, {WS_USED}')
    k(f'buffer_store_dwordx4 {z4}, {l16}, {Rws}, {sav[0]} offen sc1\nbuffer_store_dwordx4 {z4}, {l16}, {Rws}, {sav[0]} offen offset:1024 sc1\nbuffer_store_dwordx4 {z4}, {l16}, {Rws}, {sav[0]} offen offset:2048 sc1')
    ix = [vm.op(f'buffer_load_dwordx4 {fr.sub(4 * i, 4)}, {va}, {RA}, {st} offen offset:{64 * i}' + (' nt' if 'ntx' in opt else '')) for i in range(9)]
    pf = k.v(2); pfs = k.s(2)
    common()
    ones = sv.sub(40, 4); gacc = sv.sub(36, 4); arr = sv[44]; msk = [k.s(2) for _ in range(3)]
    sk = k.label('noarr')
    k(f's_cmp_lg_u32 {s_w}, 0\ns_cbranch_scc1 {sk}\ns_mov_b64 exec, 1\nv_mov_b32 {arr}, 1\ns_waitcnt vmcnt(9)\nbuffer_atomic_add {arr}, {zero[0]}, {Rdbg}, 0 offen offset:64 sc0 sc1\ns_mov_b64 exec, -1\n{sk}:')
    for i in range(4): k(f'v_mov_b32 {ones[i]}, 0x3f803f80')
    k(f'v_and_b32 {t[0]}, 3, {m}')
    for e in range(3): k(f'v_cmp_eq_u32 {msk[e]}, {e + 1}, {t[0]}')
    k(f's_lshl_b32 {st}, {s_w}, 8\ns_add_u32 {st}, {st}, {SVEC}\nv_lshl_add_u32 {t[3]}, {t[5]}, 2, {st}\nv_lshrrev_b32 {t[0]}, 2, {m}\nv_cmp_eq_u32 vcc, {t[0]}, {q}')
    k(f'v_add_u32 {t[4]}, 128, {t[3]}\nv_add_u32 {t[5]}, 192, {t[3]}\nv_cndmask_b32 {t[4]}, {t[5]}, {t[4]}, vcc')
    k(f'v_lshrrev_b32 {t[0]}, 3, {m}\nv_lshl_add_u32 {t[1]}, {q}, 1, {t[0]}\nv_lshlrev_b32 {vx[0]}, 14, {t[1]}\nv_sub_u32 {t[1]}, {row}, {t[0]}\nv_lshl_add_u32 {vx[0]}, {t[1]}, 3, {vx[0]}')
    k(f's_mul_i32 {s1}, {s1}, {9 * 131072}\ns_add_u32 {s1}, {s1}, {O_XT}\nv_cmp_eq_u32 vcc, 0, {t[0]}')
    dp = 'row_ror:8 row_mask:0xf bank_mask:0xf'
    for i in range(9):
        vm.wait(ix[i])
        if i == 0: SP(8)
        r_ = fr.sub(4 * i, 4); o = sv.sub(4 * i, 4)
        k(f'v_mfma_f32_16x16x32_bf16 {acc}, {ones}, {r_}, {"0" if i == 0 else acc}')
        k(f'v_cndmask_b32_dpp {o[0]}, {r_[2]}, {r_[0]}, vcc {dp}\nv_cndmask_b32_dpp {o[1]}, {r_[3]}, {r_[1]}, vcc {dp}\ns_not_b64 vcc, vcc')
        k(f'v_mfma_f32_16x16x32_bf16 {gacc}, {r_}, {r_}, {"0" if i == 0 else gacc}')
        k(f'v_cndmask_b32_dpp {o[2]}, {r_[0]}, {r_[2]}, vcc {dp}\nv_cndmask_b32_dpp {o[3]}, {r_[1]}, {r_[3]}, vcc {dp}\ns_not_b64 vcc, vcc')
        vm.op(f'buffer_store_dwordx4 {o}, {vx[0]}, {Rws}, {s1} offen sc1')
        if i < 8: k(f's_add_u32 {s1}, {s1}, 131072')
    SP(10)
    k(f'v_cndmask_b32 {t[0]}, {gacc[0]}, {gacc[1]}, {msk[0]}\nv_cndmask_b32 {t[0]}, {t[0]}, {gacc[2]}, {msk[1]}\nv_cndmask_b32 {t[0]}, {t[0]}, {gacc[3]}, {msk[2]}')
    k(f'ds_write_b32 {t[3]}, {acc[0]}\nds_write_b32 {t[4]}, {t[0]}\ns_waitcnt lgkmcnt(0)\ns_barrier')
    a, b = k.label('notw0'), k.label('sigd')
    k(f's_cmp_lg_u32 {s_w}, 0\ns_cbranch_scc1 {a}')
    k(f'v_and_b32 {t[1]}, 1, {q}\nv_lshlrev_b32 {t[1]}, 8, {t[1]}\nv_lshl_add_u32 {t[1]}, {m}, 2, {t[1]}\nv_add_u32 {t[1]}, {SVEC}, {t[1]}')
    k(f'ds_read2_b32 {t[2:4]}, {t[1]} offset0:0 offset1:32\nds_read2_b32 {t[4:6]}, {t[1]} offset0:128 offset1:160')
    sk = k.label('notlast')
    k(f's_waitcnt vmcnt(9)\nv_readfirstlane_b32 {st}, {arr}\ns_cmp_lg_u32 {st}, 102\ns_cbranch_scc1 {sk}')
    k(f's_mov_b64 exec, 1\nbuffer_store_dword {one}, {zero[0]}, {Rdbg}, 0 offen offset:192 sc1\ns_mov_b64 exec, -1\n{sk}:\ns_waitcnt lgkmcnt(0)')
    k(f'v_add_f32 {t[0]}, {t[2]}, {t[4]}\nv_add_f32 {t[2]}, {t[3]}, {t[5]}')
    sigma_bf16(k, t[0], t[2])
    k(f'v_cvt_pk_bf16_f32 {t[2]}, {t[0]}, {t[2]}\nv_mov_b32 {t[3]}, 1\nv_lshlrev_b32 {t[1]}, 3, {lane}\ns_lshl_b32 {st}, s2, 8\ns_add_u32 {st}, {st}, {O_STATS}')
    k(f'{a}:'); SP(14); k('s_waitcnt vmcnt(0)\ns_barrier'); vm.reset()
    k(f's_cmp_lg_u32 {s_w}, 0\ns_cbranch_scc1 {b}')
    k(f's_mov_b32 exec_hi, 0\nbuffer_store_dwordx2 {t[2:4]}, {t[1]}, {Rws}, {st} offen sc1\ns_mov_b64 exec, -1')
    k(f'{b}:'); SP(9)
    for x_ in msk: x_.release()
    cj.dma(RB, srcB, strB, BUF1, 'nt3' in opt)
    k(f's_lshl_b32 {st}, s2, 2\ns_add_u32 {st}, {st}, {s_w}\ns_lshl_b32 {st}, {st}, 10')
    k(f's_cmp_eq_u32 s2, {O_FW // 4096}\ns_cselect_b32 {st}, {WS_USED}, {st}\nbuffer_store_dwordx4 {z4}, {l16}, {Rws}, {st} offen sc1')
    sk = k.label('nopad')
    k(f's_cmp_lg_u32 {s_w}, 2\ns_cbranch_scc1 {sk}\ns_cmp_ge_u32 s2, 36\ns_cbranch_scc1 {sk}\ns_lshr_b32 {st}, s2, 1\ns_mul_i32 {st}, {st}, {GPL}\ns_bitcmp1_b32 s2, 0\ns_cselect_b32 {sav[0]}, {129 * 1024}, 0')
    k(f's_add_u32 {st}, {st}, {sav[0]}\ns_add_u32 {st}, {st}, {O_G}\nbuffer_store_dwordx4 {z4}, {l16}, {Rws}, {st} offen sc1\n{sk}:')
    k(f's_branch {L_B}')
    for x_ in (va, vx, t, row, s1): x_.release()

    def mod_tail(ids, s_blk, sig, gran=False):
        t = k.v(2); vg = k.v(); s1 = k.s()
        for s in range(18):
            if s % 2 == 0: lg.wait(ids[s + 1])
            k(f'v_mfma_f32_16x16x32_bf16 {acc}, {sv.sub(4 * s, 4)}, {fr.sub(4 * s, 4)}, {"0" if s == 0 else acc}')
        k(f's_lshl_b32 {s1}, {s_w}, 6\ns_add_u32 {s1}, {s1}, {SVEC + 2048}\nv_lshl_add_u32 {vg}, {m}, 2, {s1}')
        k(f'v_cvt_pk_bf16_f32 {t[0]}, {acc[0]}, {acc[0]}\nv_and_b32 {t[0]}, 0xffff0000, {t[0]}')
        k(f'v_add_f32 {t[1]}, 1.0, {t[0]}\nv_cvt_pk_bf16_f32 {t[1]}, {t[1]}, {t[1]}\nv_and_b32 {t[1]}, 0xffff0000, {t[1]}')
        k(f's_mov_b64 vcc, 0\ns_sub_u32 {s1}, {s_blk}, 9\ns_cmp_lt_u32 {s1}, 9\ns_cselect_b64 vcc, -1, vcc')
        k(f's_sub_u32 {s1}, {s_blk}, 36\ns_cmp_lt_u32 {s1}, 9\ns_cselect_b64 vcc, -1, vcc')
        k(f'v_cndmask_b32 {t[0]}, {t[0]}, {t[1]}, vcc\nds_write_b32 {vg}, {t[0]}\ns_waitcnt lgkmcnt(0)\ns_barrier'); lg.reset()
        a, b = k.label('notw0'), k.label('nob')
        k(f's_cmp_lg_u32 {s_w}, 0\ns_cbranch_scc1 {a}')
        k(f'v_lshlrev_b32 {vg}, 3, {lane}\nv_add_u32 {t[0]}, {SVEC + 2048}, {vg}\nds_read_b64 {t}, {t[0]}\ns_lshl_b32 {s1}, {s_blk}, 8\ns_add_u32 {s1}, {s1}, {O_MODF}')
        k(f's_mov_b32 exec_hi, 0')
        if gran:
            k(f's_lshl_b32 {sav[0]}, {s_blk}, 9\ns_add_u32 {sav[0]}, {sav[0]}, {O_MODG}\nv_mov_b32 {acc[1]}, 1\nv_mov_b32 {acc[3]}, 1\ns_waitcnt lgkmcnt(0)')
            k(f'v_mov_b32 {acc[0]}, {t[0]}\nv_mov_b32 {acc[2]}, {t[1]}\nbuffer_store_dwordx4 {acc}, {l16}, {Rws}, {sav[0]} offen sc1')
        k(f's_waitcnt lgkmcnt(0)\nbuffer_store_dwordx2 {t}, {vg}, {Rws}, {s1} offen sc1')
        if sig:
            k(f's_sub_u32 {s1}, {s_blk}, 27\ns_cmp_ge_u32 {s1}, 18\ns_cbranch_scc1 {a}')
            k(f'v_cvt_pk_bf16_f32 {acc[0]}, {t[0]}, {t[1]}\nv_lshrrev_b32 {vg}, 1, {vg}\ns_lshl_b32 {s1}, {s1}, 7\ns_add_u32 {s1}, {s1}, {O_MODB}')
            k(f'buffer_store_dword {acc[0]}, {vg}, {Rws}, {s1} offen sc1\ns_waitcnt vmcnt(0)')
            signal(12, 17)
        k(f'{a}:\ns_mov_b64 exec, -1')
        t.release(); vg.release(); s1.release()

    k(f'{L_mod}:')
    vm, lg = trackers(k); cj.vm, cj.lg = vm, lg
    blkA = k.s(); srcA = k.s(); strA = k.s(); Rc = k.s(4)
    srd(k, RA, P['wmod'], D * 3456 * 2); srd(k, Rc, P['c'], D * 2)
    k(f's_sub_u32 {blkA}, s2, 64')
    k(f's_lshl_b32 {srcA}, {blkA}, 7\ns_mov_b32 {strA}, 6912')
    t = k.v(8); vg = k.v()
    k(f'v_lshlrev_b32 {vg}, 3, v0')
    for i in range(4): k(f'v_mov_b32 {z4[i]}, 0')
    k(f's_lshl_b32 {st}, {blkA}, 9\ns_add_u32 {st}, {st}, {O_MODG}\ns_cmp_eq_u32 {s_w}, 0\ns_cselect_b32 {st}, {st}, {WS_USED}\ns_mov_b32 exec_hi, 0')
    icl = vm.op(f'buffer_store_dwordx4 {z4}, {l16}, {Rws}, {st} offen sc1')
    k('s_mov_b64 exec, -1')
    ic = vm.op(f'buffer_load_dwordx2 {t[0:2]}, {vg}, {Rc}, 0 offen')
    ia = cj.dma(RA, srcA, strA, BUF0, 'ntm' in opt)
    common()
    vm.wait(ic)
    sk = k.label('noarr')
    k(f's_cmp_lg_u32 {s_w}, 0\ns_cbranch_scc1 {sk}\ns_mov_b64 exec, 1\nv_mov_b32 {acc[1]}, 1\nbuffer_atomic_add {acc[1]}, {zero[0]}, {Rdbg}, 0 offen offset:64 sc0 sc1\ns_mov_b64 exec, -1\n{sk}:')
    sk = k.label('lateB')
    k(f's_cmp_lt_u32 {blkA}, 27\ns_cbranch_scc1 {sk}\ns_cmp_ge_u32 {jb}, 200\ns_cbranch_scc1 {sk}')
    cj.dma(RB, srcB, strB, BUF1)
    k(f'{sk}:')
    k(f'v_lshlrev_b32 {t[2]}, 16, {t[0]}\nv_and_b32 {t[3]}, 0xffff0000, {t[0]}\nv_lshlrev_b32 {t[4]}, 16, {t[1]}\nv_and_b32 {t[5]}, 0xffff0000, {t[1]}')
    e = k.v(4)
    for i in range(4): k(f'v_mul_f32 {e[i]}, {fl(-LOG2E)}, {t[2 + i]}')
    for i in range(4): k(f'v_exp_f32 {e[i]}, {e[i]}')
    for i in range(4): k(f'v_add_f32 {e[i]}, 1.0, {e[i]}')
    for i in range(4): k(f'v_rcp_f32 {e[i]}, {e[i]}')
    for i in range(4): k(f'v_mul_f32 {e[i]}, {e[i]}, {t[2 + i]}')
    k(f'v_cvt_pk_bf16_f32 {t[0]}, {e[0]}, {e[1]}\nv_cvt_pk_bf16_f32 {t[1]}, {e[2]}, {e[3]}\nv_add_u32 {vg}, {SVEC}, {vg}')
    k(f'ds_write_b64 {vg}, {t[0:2]}\nv_lshlrev_b32 {vg}, 4, {q}\nv_add_u32 {vg}, {SVEC}, {vg}\ns_waitcnt lgkmcnt(0)\ns_barrier')
    for s in range(18): lg.op(f'ds_read_b128 {sv.sub(4 * s, 4)}, {vg} offset:{64 * s}')
    ad = cj.addr(BUF0)
    sk = k.label('notlast')
    k(f's_waitcnt vmcnt(0) lgkmcnt(0)\ns_cmp_lg_u32 {s_w}, 0\ns_cbranch_scc1 {sk}\nv_readfirstlane_b32 {st}, {acc[1]}\ns_cmp_lg_u32 {st}, 102\ns_cbranch_scc1 {sk}')
    k(f's_mov_b64 exec, 1\nbuffer_store_dword {one}, {zero[0]}, {Rdbg}, 0 offen offset:192 sc1\ns_mov_b64 exec, -1\n{sk}:\ns_barrier'); SP(10); vm.reset(); lg.reset()
    ids = cj.reads(ad, fr)
    mod_tail(ids, blkA, True, True); SP(11)
    k(f's_cmp_ge_u32 {jb}, 200\ns_cbranch_scc1 {L_C}\ns_cmp_ge_u32 {blkA}, 27\ns_cbranch_scc1 {L_B}')
    cj.dma(RB, srcB, strB, BUF1, 'nt3' in opt)
    k(f's_waitcnt vmcnt(0)\ns_branch {L_B}')
    e.release(); t.release(); vg.release()

    k(f'{L_w1}:')
    common()
    cj.dma(RB, srcB, strB, BUF1, 'nt1' in opt)
    k('s_waitcnt vmcnt(0)')

    k(f'{L_B}:')
    vm, lg = trackers(k); cj.vm, cj.lg = vm, lg
    k(f's_waitcnt vmcnt(1) lgkmcnt(0)\ns_barrier')
    SP(12)
    il = k.s(); k(f's_sub_u32 {il}, {modeB}, 1\ns_cmp_lt_u32 {il}, 2\ns_cselect_b32 {il}, 1, 0')
    ids = cj.read(BUF1, fr, s_il=il)
    notmod, nocenter = k.label('notmod'), k.label('nocenter')
    k(f's_cmp_lg_u32 {modeB}, 0\ns_cbranch_scc1 {notmod}')
    mod_tail(ids, blkB, True)
    k(f's_branch {L_C}\n{notmod}:')
    k('s_waitcnt lgkmcnt(0)'); lg.reset()
    k(f's_bitcmp0_b32 {modeB}, 0\ns_cbranch_scc1 {nocenter}')
    ones = sv.sub(0, 4); t = k.v(4); gof = k.v(4, 4)
    go2_ld = f'buffer_load_dwordx4 {gof}, {zero[0]}, {Rdbg}, 0 offen offset:192 sc1'
    k(go2_ld)
    for i in range(4): k(f'v_mov_b32 {ones[i]}, 0x3f803f80')
    for s in range(18): k(f'v_mfma_f32_16x16x32_bf16 {acc}, {ones}, {fr.sub(4 * s, 4)}, {"0" if s == 0 else acc}')
    nm = sv.sub(4, 2)
    k(f'v_mul_f32 {nm[0]}, {fl(-1 / 576)}, {acc[0]}')
    for i in range(0, 72, 2):
        k(f'v_lshlrev_b32 {t[0]}, 16, {fr[i]}\nv_and_b32 {t[1]}, 0xffff0000, {fr[i]}')
        k(f'v_lshlrev_b32 {t[2]}, 16, {fr[i + 1]}\nv_and_b32 {t[3]}, 0xffff0000, {fr[i + 1]}')
        k(f'v_pk_add_f32 {t[0:2]}, {t[0:2]}, {nm} op_sel_hi:[1,0]\nv_pk_add_f32 {t[2:4]}, {t[2:4]}, {nm} op_sel_hi:[1,0]')
        k(f'v_cvt_pk_bf16_f32 {fr[i]}, {t[0]}, {t[1]}\nv_cvt_pk_bf16_f32 {fr[i + 1]}, {t[2]}, {t[3]}')
    k(f'{nocenter}:')
    T = k.s(); j = k.s(); dst = k.s(); step = k.s(); rot = k.s()
    k(f's_lshl_b32 {T}, {blkB}, 2\ns_add_u32 {T}, {T}, {s_w}')
    k(f's_mul_hi_u32 {j}, {T}, {(1 << 32) // 6 + 1}\ns_mul_i32 {dst}, {j}, 6\ns_sub_u32 {dst}, {T}, {dst}\ns_lshl_b32 {dst}, {dst}, 10')
    k(f's_mul_i32 {step}, {j}, 110592\ns_add_u32 {dst}, {dst}, {step}')
    k(f's_mul_i32 {rot}, {j}, 3\ns_sub_u32 {rot}, 18, {rot}\ns_cmp_eq_u32 {rot}, 18\ns_cselect_b32 {rot}, 0, {rot}')
    k(f's_cmp_eq_u32 {modeB}, 1\ns_cselect_b32 {rot}, {rot}, 0\ns_cselect_b32 {step}, 0, {O_W2F - O_W1F}\ns_add_u32 {dst}, {dst}, {step}\ns_add_u32 {dst}, {dst}, {O_W1F}')
    k(f's_mul_i32 {j}, {T}, 18432\ns_add_u32 {j}, {j}, {O_W3F}')
    k(f's_cmp_ge_u32 {modeB}, 3\ns_cselect_b32 {dst}, {j}, {dst}\ns_cselect_b32 {step}, 1, 6\ns_lshl_b32 {step}, {step}, 10')
    notw1, L_st = k.label('notw1'), k.label('stored')
    k(f's_cmp_lg_u32 {modeB}, 1\ns_cbranch_scc1 {notw1}')
    cj.store(fr, None, Rws, dst, step, s_rot=rot)
    sk = k.label('nosig')
    k(f's_waitcnt vmcnt(0)\ns_barrier\ns_cmp_lg_u32 {s_w}, 0\ns_cbranch_scc1 {sk}')
    signal(8, 8)
    k(f'{sk}:')
    lp, ok = k.label('pollm'), k.label('gotm')
    k(f'{lp}:\ns_waitcnt vmcnt(0)\nv_readfirstlane_b32 {st}, {gof[3]}\ns_cmp_ge_u32 {st}, 1\ns_cbranch_scc1 {ok}')
    k(f's_sleep 4\n{go2_ld}\ns_add_u32 {cnt}, {cnt}, 1\ns_cmp_lt_u32 {cnt}, {SPIN_MAX}\ns_cbranch_scc1 {lp}\ns_branch {END}\n{ok}:'); vm.reset()
    k(f'v_and_b32 {t[0]}, 1, {m}\nv_xor_b32 {t[0]}, 1, {t[0]}\nv_mul_u32_u24 {t[0]}, 1152, {t[0]}\nv_lshl_add_u32 {t[0]}, {q}, 4, {t[0]}\ns_mov_b32 {st}, {O_MODB}')
    ids = [vm.op(f'buffer_load_dwordx4 {sv.sub(4 * s, 4)}, {t[0]}, {Rws}, {st} offen offset:{64 * s} sc1') for s in range(18)]
    k(f's_lshr_b32 {j}, {s_w}, 1\ns_lshl_b32 {j}, {j}, 7\ns_and_b32 {st}, {s_w}, 1\ns_lshl_b32 {st}, {st}, 4\ns_add_u32 {j}, {j}, {st}\ns_add_u32 {j}, {j}, {SVEC}')
    k(f'v_lshrrev_b32 {t[1]}, 2, {m}\nv_and_b32 {t[2]}, 3, {m}\nv_lshlrev_b32 {t[2]}, 2, {t[2]}\nv_lshl_add_u32 {t[1]}, {t[1]}, 5, {t[2]}\nv_add_u32 {t[1]}, {j}, {t[1]}')
    for s in range(18):
        vm.wait(ids[s])
        k(f'v_mfma_f32_16x16x32_bf16 {acc}, {sv.sub(4 * s, 4)}, {fr.sub(4 * s, 4)}, {"0" if s == 0 else acc}')
    k(f'ds_write2st64_b32 {t[1]}, {acc[0]}, {acc[1]} offset0:0 offset1:1\ns_waitcnt lgkmcnt(0)\ns_barrier\ns_cmp_lg_u32 {s_w}, 0\ns_cbranch_scc1 {L_st}')
    k(f'v_add_u32 {t[0]}, {SVEC}, {l16}\nds_read_b128 {acc}, {t[0]}\nv_mul_u32_u24 {t[1]}, 2304, {q}\nv_lshl_add_u32 {t[1]}, {m}, 4, {t[1]}')
    k(f's_lshl_b32 {j}, {blkB}, 8\ns_add_u32 {j}, {j}, {O_MODF + 6 * 2304}\ns_mov_b32 exec_hi, 0\ns_waitcnt lgkmcnt(0)')
    k(f'buffer_store_dwordx4 {acc}, {t[1]}, {Rws}, {j} offen sc1\ns_mov_b64 exec, -1')
    k(f'{L_st}:\ns_branch {L_C}')
    k(f'{notw1}:'); vm.reset()
    cj.store(fr, None, Rws, dst, step, s_rot=rot)
    k(f'{L_C}:'); SP(13)
    code_prefetch(k, None, NEXT, END, 60000, 'v0', pf, pfs)
    k(f's_branch {NEXT}')

TAB, KD = 0, 17408

def conv(k, P, lane, s_w, END, NEXT, dump, SP, opt=()):
    vm, lg = trackers(k)
    cidx = k.s(); s_d = k.s(); st = k.s(); st2 = k.s(); sav = k.s(2)
    k(f's_and_b32 {cidx}, s2, 7\ns_mul_i32 {cidx}, {cidx}, 18\ns_lshr_b32 {st}, s2, 3\ns_add_u32 {cidx}, {cidx}, {st}\ns_sub_u32 {cidx}, {cidx}, 14')
    k(f's_lshl_b32 {s_d}, {cidx}, 2\ns_add_u32 {s_d}, {s_d}, {s_w}\ns_lshl_b32 {st}, {cidx}, 3')
    sdt = k.s(2); sD = k.s(2)
    k(f's_load_dwordx2 {sdt}, {P["logdt"]}, {st}\ns_load_dwordx2 {sD}, {P["Dskip"]}, {st}')
    R = k.s(4); Rws = k.s(4); Rdbg = k.s(4)
    par = k.v(4); t = k.v(8); x = k.v(16)
    k(f'v_lshlrev_b32 {t[0]}, 2, {lane}\ns_lshl_b32 {st2}, {s_d}, 8')
    for i, n in enumerate(('logA', 'Aim', 'Cr', 'Ci')):
        srd(k, R, P[n], D * 128 * 2)
        ipar = vm.op(f'buffer_load_dword {par[i]}, {t[0]}, {R}, {st2} offen' + (' nt' if 'ntp' in opt else ''))
    srd(k, Rws, P['ws'], WS_USED); srd(k, Rdbg, P['dbg'], 256)
    wb = k.s(); k(f's_mul_i32 {wb}, {s_w}, {WSTR}')
    q = k.v(); m = k.v(); ag = k.v(); am = k.v(); a4 = k.v(); fl_v = k.v(2)
    k(f'v_lshrrev_b32 {q}, 4, {lane}\nv_and_b32 {m}, 15, {lane}')
    ga = k.v(32); cst = k.v()
    k(f's_add_u32 {st2}, {wb}, {KD - 2 * (134 * 128 - 128)}\nv_mov_b32 {cst}, {st2}')
    k(f'v_lshlrev_b32 {t[2]}, 3, {lane}\nv_cvt_f32_u32 {t[2]}, {t[2]}')
    for c in range(4):
        for e in range(0, 8, 2):
            k(f'v_add_f32 {t[4]}, {fl(512 * c + e)}, {t[2]}\nv_add_f32 {t[5]}, {fl(512 * c + e + 1)}, {t[2]}\nv_cvt_pk_bf16_f32 {t[4]}, {t[4]}, {t[5]}')
            k(f'v_mad_u32_u16 {ga[8 * c + e]}, {t[4]}, 2, {cst}\nv_mad_u32_u16 {ga[8 * c + e + 1]}, {t[4]}, 2, {cst} op_sel:[1,0,0,0]')
    k(f's_add_u32 {st2}, {wb}, {KD}\nv_lshl_add_u32 {t[4]}, {lane}, 4, {st2}\nv_cmp_gt_u32 vcc, 16, {lane}')
    for e in range(8): k(f'v_add_u32 {t[5]}, {2 * e}, {t[4]}\nv_cndmask_b32 {ga[e]}, {ga[e]}, {t[5]}, vcc')
    VM = vmaps()
    kda = k.v(4)
    k(f'v_lshlrev_b32 {t[2]}, 2, {m}')
    for s in range(4):
        lut = sum((VM[s][j] >> s) << (4 * j) for j in range(16))
        base = 0 if s == 0 else 128 + 128 * s
        k(f's_mov_b32 {sav[0]}, {lut & 0xffffffff}\ns_mov_b32 {sav[1]}, {lut >> 32}\nv_lshrrev_b64 {t[4:6]}, {t[2]}, {sav}\nv_and_b32 {t[4]}, 15, {t[4]}')
        k(f'v_lshl_add_u32 {t[4]}, {q}, 6, {t[4]}\ns_add_u32 {st2}, {wb}, {KD + 2 * base}\nv_lshl_add_u32 {kda[s]}, {t[4]}, 1, {st2}')
    cst.release()
    atw = k.v(); atr = k.v()
    k(f'v_lshl_add_u32 {atw}, {lane}, 3, {wb}\nv_mul_u32_u24 {atr}, 544, {m}\nv_lshl_add_u32 {atr}, {q}, 4, {atr}\nv_add_u32 {atr}, {wb}, {atr}')
    z4 = k.v(4)
    for i in range(4): k(f'v_mov_b32 {z4[i]}, 0')
    k(f'v_lshrrev_b32 {t[4]}, 5, v0\nv_mul_u32_u24 {t[4]}, {HSTR}, {t[4]}\nv_and_b32 {t[5]}, 31, v0\nv_lshl_add_u32 {t[4]}, {t[5]}, 4, {t[4]}\nv_add_u32 {t[4]}, {HB}, {t[4]}')
    k(f'v_cmp_gt_u32 vcc, 128, v0\ns_and_saveexec_b64 {sav}, vcc\nds_write_b128 {t[4]}, {z4}\ns_mov_b64 exec, {sav}')
    k('s_waitcnt lgkmcnt(0)')
    k(f's_lshl_b32 {st2}, {s_w}, 4\ns_lshr_b64 {sdt}, {sdt}, {st2}\ns_lshl_b32 {sdt[0]}, {sdt[0]}, 16')
    dt = k.v(); ks = k.v()
    k(f'v_mov_b32 {dt}, {fl(LOG2E)}\nv_mul_f32 {dt}, {sdt[0]}, {dt}\nv_exp_f32 {dt}, {dt}\nv_cvt_pk_bf16_f32 {dt}, {dt}, {dt}\nv_and_b32 {dt}, 0xffff0000, {dt}')
    SP(1); vm.wait(ipar); SP(2)
    pr = lambda: [k.v(2), k.v(2)]
    w1, w16, U = pr(), pr(), pr()
    er = k.v(2); rev = k.v(2)
    un = lambda d, s_, hi: f'v_and_b32 {d}, 0xffff0000, {s_}' if hi else f'v_lshlrev_b32 {d}, 16, {s_}'
    for md in range(2):
        k(un(er[md], par[0], md)); k(un(rev[md], par[1], md)); k(un(U[0][md], par[2], md)); k(un(U[1][md], par[3], md))
    for md in range(2): k(f'v_mul_f32 {er[md]}, {fl(LOG2E)}, {er[md]}')
    for md in range(2): k(f'v_exp_f32 {er[md]}, {er[md]}')
    k(f'v_max3_f32 {t[0]}, |{U[0][0]}|, |{U[0][1]}|, |{U[1][0]}|\nv_max_f32 {t[0]}, |{U[1][1]}|, {t[0]}')
    k(f'v_cvt_pk_bf16_f32 {t[1]}, {er[0]}, {er[1]}')
    for mm in ('quad_perm:[1,0,3,2]', 'quad_perm:[2,3,0,1]', 'row_half_mirror', 'row_mirror'):
        k(f'v_max_f32_dpp {t[0]}, {t[0]}, {t[0]} {mm} row_mask:0xf bank_mask:0xf')
    for md in range(2):
        k(un(er[md], t[1], md))
        k(f'v_mul_f32 {er[md]}, {er[md]}, {dt}\nv_mul_f32 {rev[md]}, {rev[md]}, {dt}')
        k(f'v_mul_f32 {er[md]}, {fl(-LOG2E)}, {er[md]}\nv_mul_f32 {rev[md]}, 0.15915494, {rev[md]}')
    k(f'v_readlane_b32 {st2}, {t[0]}, 0\nv_readlane_b32 {sav[0]}, {t[0]}, 16\nv_readlane_b32 {sav[1]}, {t[0]}, 32\nv_readlane_b32 {st}, {t[0]}, 48')
    k(f's_max_u32 {st2}, {st2}, {sav[0]}\ns_max_u32 {st}, {st}, {sav[1]}\ns_max_u32 {st2}, {st2}, {st}')
    for w_, mul in ((w1, None), (w16, '16.0')):
        for md in range(2):
            a, b = t[2 + md], t[4 + md]
            if mul: k(f'v_mul_f32 {a}, {fl(16.)}, {er[md]}\nv_mul_f32 {b}, {fl(16.)}, {rev[md]}\nv_fract_f32 {b}, {b}\nv_exp_f32 {a}, {a}')
            else: k(f'v_fract_f32 {b}, {rev[md]}\nv_exp_f32 {a}, {er[md]}')
            k(f'v_cos_f32 {w_[0][md]}, {b}\nv_sin_f32 {w_[1][md]}, {b}')
        for c in range(2): k(f'v_pk_mul_f32 {w_[c]}, {w_[c]}, {t[2:4]}')
    k(f'v_frexp_exp_i32_f32 {t[0]}, {st2}\nv_sub_u32 {t[1]}, 8, {t[0]}\nv_add_u32 {t[0]}, -7, {t[0]}\nv_ldexp_f32 {ks}, {dt}, {t[0]}')
    for md in range(2):
        for c in range(2): k(f'v_ldexp_f32 {U[c][md]}, {U[c][md]}, {t[1]}')
    er.release(); rev.release(); dt.release()
    tm = [k.v(2) for _ in range(4)]
    def cmul(d, z, s_, ta, tb):
        return [f'v_pk_mul_f32 {ta}, {z[1]}, {s_[1]}', f'v_pk_mul_f32 {tb}, {z[0]}, {s_[1]}',
                f'v_pk_fma_f32 {d[0]}, {z[0]}, {s_[0]}, {ta} neg_lo:[0,0,1] neg_hi:[0,0,1]', f'v_pk_fma_f32 {d[1]}, {z[1]}, {s_[0]}, {tb}']
    w32, w64, w128, w2, w4, w8, V = pr(), pr(), pr(), pr(), pr(), pr(), pr()
    for d_, s_ in ((w32, w16), (w64, w32), (w128, w64)):
        for x_ in cmul(d_, s_, s_, tm[0], tm[1]): k(x_)
    pv = [k.v(2), k.v(2)]; pu = [k.v(2), k.v(2)]
    fa = k.v(32, 4); fb = k.v(32, 4); kacc = k.v(16, 4)
    state = {'V': None, 'nv': 0, 'nu': 0}
    def v_entry(val, slot):
        out = []
        pk = pv[state['nv'] & 1]; state['nv'] += 1
        if val == 0:
            out += [f'v_mov_b32 {pk[0]}, 0x3c00', f'v_mov_b32 {pk[1]}, 0x3c00']
        else:
            if val == 1: cur = w1
            else:
                step = w1 if val <= 16 else w2 if val <= 32 else w4 if val <= 64 else w8
                cur = {2: w2, 4: w4, 8: w8}.get(val, V)
                out += cmul(cur, state['V'], step, tm[0], tm[1])
            state['V'] = cur
            out += [f'v_cvt_pk_f16_f32 {pk[md]}, {cur[0][md]}, {cur[1][md]}' for md in range(2)]
        out.append(('ds', f'ds_write_b64 {atw}, {pk} offset:{TAB + slot * 544}'))
        return out
    def u_entry(val, row):
        out = []
        pk = pu[state['nu'] & 1]; state['nu'] += 1
        if val:
            step = w16 if val <= 256 else w32 if val <= 512 else w64 if val <= 1024 else w128
            out += cmul(U, U, step, tm[2], tm[3])
        out += [f'v_cvt_pk_f16_f32 {pk[md]}, {U[0][md]}, -{U[1][md]}' for md in range(2)]
        out.append(('ds', f'ds_write_b64 {atw}, {pk} offset:{TAB + (16 + row) * 544}'))
        return out
    def put(x_):
        if isinstance(x_, tuple): return lg.op(x_[1])
        k(x_)
    pend = []
    flag_ld = f'buffer_load_dwordx2 {fl_v}, {z4[0]}, {Rdbg}, 0 offen offset:192 sc1'
    ifl = None
    for s in range(4):
        vs = sorted((VM[s][j], j) for j in range(16) if s == 0 or VM[s][j] != VM[s - 1][j])
        us = [16 * u for u in range(16)] if s == 0 else [(128 << s) + (16 << s) * u for u in range(9 if s == 3 else 8)]
        sv_ = [x_ for val, j in vs for x_ in v_entry(val, j)]
        su_ = [x_ for r_, val in enumerate(us) for x_ in u_entry(val, r_)]
        stream = interleave(sv_, su_)
        for n_, x_ in enumerate(stream):
            put(x_)
            if n_ == 27:
                while pend:
                    idr, mf = pend.pop(0); lg.wait(idr); k(mf)
            if s == 3 and n_ == 40: k(flag_ld)
        assert not pend
        for kk in range(8):
            lg.op(f'ds_read_b128 {fa.sub(4 * kk, 4)}, {atr} offset:{TAB + 16 * 544 + 64 * kk}')
            i_ = lg.op(f'ds_read_b128 {fb.sub(4 * kk, 4)}, {atr} offset:{TAB + 64 * kk}')
            ac = kacc.sub(4 * s, 4)
            pend.append((i_, f'v_mfma_f32_16x16x32_f16 {ac}, {fa.sub(4 * kk, 4)}, {fb.sub(4 * kk, 4)}, {"0" if kk == 0 else ac}'))
    for x_ in (w1, w16, w32, w64, w128, w2, w4, w8, V, U, tm, pv, pu):
        for y_ in x_: y_.release()
    md_ = k.v(16, 4); sg = md_; cnt = k.s(); mg = par.sub(0, 2); amg = par[2]
    k(f'v_lshrrev_b32 {amg}, 2, {m}\nv_min_u32 {amg}, 2, {amg}\nv_mul_u32_u24 {amg}, 4608, {amg}\nv_and_b32 {mg[0]}, 3, {m}\nv_lshl_add_u32 {amg}, {mg[0]}, 3, {amg}')
    def kd_out(s):
        ac = kacc.sub(4 * s, 4)
        for e in range(4): k(f'v_mul_f32 {ac[e]}, {ks}, {ac[e]}')
        k(f'v_cvt_pk_bf16_f32 {ac[0]}, {ac[0]}, {ac[1]}\nv_cvt_pk_bf16_f32 {ac[2]}, {ac[2]}, {ac[3]}')
        for e in range(4): lg.op(f'ds_write_b16{"_d16_hi" if e & 1 else ""} {kda[s]}, {ac[e & 2]} offset:{32 * e}')
    for s in range(3): kd_out(s)
    SP(3); lg.reset() if SP.on else None
    got = k.s()
    def x_loads():
        k(f's_lshl_b32 {st}, {cidx}, 14\ns_add_u32 {st}, {st}, {O_XT}')
        for i in range(4):
            k(f'buffer_load_dwordx4 {x.sub(4 * i, 4)}, {ag}, {Rws}, {st} offen sc1')
            if i < 3: k(f's_add_u32 {st}, {st}, 4096')
    def gran_loads():
        for i in range(4): k(f's_mov_b32 {st}, {O_STATS + 4096 * i}\nbuffer_load_dwordx4 {sg.sub(4 * i, 4)}, {ag}, {Rws}, {st} offen sc1')
        mod_loads()
    def gran_check():
        k(f's_waitcnt vmcnt(0)\nv_and_b32 {am}, {sg[1]}, {sg[3]}')
        for i in (5, 9, 13): k(f'v_bitop3_b32 {am}, {am}, {sg[i]}, {sg[i + 2]} bitop3:0x80')
        k(f'v_cmp_ne_u32 vcc, 1, {am}\ns_cmp_eq_u64 vcc, 0')
    def mod_loads():
        k(f's_lshl_b32 {st}, {cidx}, 5\ns_add_u32 {st}, {st}, {O_MODG}')
        k(f'buffer_load_dwordx2 {mg}, {amg}, {Rws}, {st} offen sc1')
    def spin(i, flag_ld):
        lp, ok = k.label('poll'), k.label('go')
        k(f'{lp}:\nv_readfirstlane_b32 {st}, {fl_v[i]}\ns_cmp_ge_u32 {st}, 1\ns_cbranch_scc1 {ok}')
        k(f's_sleep 4\n{flag_ld}\ns_add_u32 {cnt}, {cnt}, 1\ns_cmp_lt_u32 {cnt}, {SPIN_MAX}\ns_waitcnt vmcnt(0)\ns_cbranch_scc1 {lp}\ns_branch {END}\n{ok}:')
    k(f'v_lshlrev_b32 {ag}, 4, v0\nv_lshlrev_b32 {a4}, 2, v0\ns_mov_b32 {cnt}, 0\ns_waitcnt vmcnt(0)')
    spin(0, flag_ld)
    gran_loads()
    while pend:
        idr, mf = pend.pop(0); lg.wait(idr); k(mf)
    kd_out(3)
    kc = fa.sub(0, 16); pvv = fa.sub(16, 8)
    gid = [lg.op(f'ds_read_u16 {ga[e]}, {ga[e]}') for e in range(32)]
    aw = kda[0]; ap = kda[1]
    k(f'v_lshl_add_u32 {aw}, {lane}, 4, {wb}\nv_lshrrev_b32 {ap}, 1, {lane}\nv_mul_u32_u24 {ap}, 4160, {ap}\nv_and_b32 {t[1]}, 1, {lane}')
    k(f'v_lshl_add_u32 {ap}, {t[1]}, 4, {ap}\nv_add_u32 {ap}, {wb}, {ap}')
    k(f's_mov_b64 exec, 0xff'); lg.op(f'ds_write_b128 {ap}, {z4}'); k('s_mov_b64 exec, -1')
    for c in range(4):
        lg.wait(gid[8 * c + 7])
        for e in range(4): k(f'v_lshl_or_b32 {kc[4 * c + e]}, {ga[8 * c + 2 * e + 1]}, 16, {ga[8 * c + 2 * e]}')
        lg.op(f'ds_write_b128 {aw}, {kc.sub(4 * c, 4)} offset:{32 + 1024 * c}')
    ids = [lg.op(f'ds_read_b64 {pvv.sub(2 * c, 2)}, {aw} offset:{24 + 1024 * c}') for c in range(4)]
    late = k.label('late')
    gran_check()
    k(f's_cselect_b32 {got}, 1, 0\ns_cbranch_scc0 {late}')
    x_loads()
    k(f'{late}:')
    for c in range(4):
        lg.wait(ids[c])
        o = fb.sub(12 * (c & 1), 12); d_ = kc.sub(4 * c, 4); p0, p1 = pvv[2 * c], pvv[2 * c + 1]
        seq = [p0, p1, d_[0], d_[1], d_[2], d_[3]]
        o3 = o.sub(0, 4); o1 = o.sub(4, 4); o2 = o.sub(8, 4)
        for i in range(4): k(f'v_alignbit_b32 {o3[i]}, {seq[i + 1]}, {seq[i]}, 16')
        for i in range(3): k(f'v_mov_b32 {o1[i]}, {o3[i + 1]}')
        k(f'v_alignbit_b32 {o1[3]}, {seq[5]}, {seq[4]}, 16')
        for i in range(4): k(f'v_mov_b32 {o2[i]}, {seq[i + 1]}')
        for r_, oo in ((1, o1), (2, o2), (3, o3)): lg.op(f'ds_write_b128 {aw}, {oo} offset:{4160 * r_ + 32 + 1024 * c}')
    if dump:
        k(f's_lshl_b32 {st}, {s_d}, 12\ns_add_u32 {st}, {st}, {O_DBG}\nv_lshlrev_b32 {t[1]}, 4, {lane}')
        for c in range(4): vm.op(f'buffer_store_dwordx4 {kc.sub(4 * c, 4)}, {t[1]}, {Rws}, {st} offen offset:{1024 * c}')
    ga.release(); acc = k.v(32, 4); kacc.release(); ks.release(); atw.release(); atr.release()
    SP(4); lg.reset() if SP.on else None
    have = k.label('have')
    lp, ok = k.label('again'), k.label('rows')
    k(f's_cmp_lg_u32 {got}, 0\ns_cbranch_scc1 {have}\n{lp}:')
    gran_loads(); gran_check()
    k(f's_cbranch_scc1 {ok}\ns_sleep 2\ns_add_u32 {cnt}, {cnt}, 1\ns_cmp_lt_u32 {cnt}, {SPIN_MAX}\ns_cbranch_scc1 {lp}\ns_branch {END}\n{ok}:')
    x_loads()
    k(f'{have}:')
    xf = k.v(32); hf = k.v(32); st_ = k.v(16)
    for i in range(8): k(f'v_and_b32 {st_[2 * i]}, 0xffff0000, {sg[2 * i]}\nv_lshlrev_b32 {st_[2 * i + 1]}, 16, {sg[2 * i]}')
    for i in range(8): k(f'v_rcp_f32 {st_[2 * i]}, {st_[2 * i]}')
    for i in range(8): k(f'v_mul_f32 {st_[2 * i + 1]}, -{st_[2 * i + 1]}, {st_[2 * i]}')
    k('s_waitcnt vmcnt(0)')
    SP(14); lg.reset() if SP.on else None
    for i in range(16): k(f'v_lshlrev_b32 {xf[2 * i]}, 16, {x[i]}\nv_and_b32 {xf[2 * i + 1]}, 0xffff0000, {x[i]}')
    k(f'v_add_u32 {am}, {HB + 512}, {a4}')
    for j in range(16): k(f'v_pk_fma_f32 {hf.sub(2 * j, 2)}, {xf.sub(2 * j, 2)}, {st_.sub(2 * (j // 2), 2)}, {st_.sub(2 * (j // 2), 2)} op_sel:[0,0,1] op_sel_hi:[1,0,1]')
    lp, ok = k.label('gran'), k.label('got')
    k(f'{lp}:')
    k(f'v_cmp_ne_u32 vcc, 1, {mg[1]}\ns_cmp_eq_u64 vcc, 0\ns_cbranch_scc1 {ok}\ns_sleep 2')
    mod_loads()
    k(f's_add_u32 {cnt}, {cnt}, 1\ns_cmp_lt_u32 {cnt}, {SPIN_MAX}\ns_waitcnt vmcnt(0)\ns_cbranch_scc1 {lp}\ns_branch {END}\n{ok}:')
    for i in range(12): k(f'v_mov_b32_dpp {md_[i]}, {mg[0]} row_newbcast:{i} row_mask:0xf bank_mask:0xf')
    SP(5)
    for i in range(4):
        for j in range(4 * i, 4 * i + 4): k(f'v_pk_fma_f32 {hf.sub(2 * j, 2)}, {hf.sub(2 * j, 2)}, {md_.sub(4 + 2 * (j & 1), 2)}, {md_.sub(2 * (j & 1), 2)}')
        for c in range(4): k(f'v_cvt_pk_bf16_f32 {x[4 * i + c]}, {hf[8 * i + c]}, {hf[8 * i + 4 + c]}')
        for c in range(4): lg.op(f'ds_write_b32 {am}, {x[4 * i + c]} offset:{HSTR * c + 1024 * i}')
    st_.release()
    aA = kda[2]; aB = kda[3]
    k(f'v_bfe_u32 {t[0]}, {lane}, 2, 2\nv_mul_u32_u24 {aA}, 4160, {t[0]}\nv_and_b32 {t[0]}, 3, {lane}\nv_lshl_add_u32 {aA}, {t[0]}, 3, {aA}')
    k(f'v_lshlrev_b32 {t[0]}, 4, {q}\nv_sub_u32 {aA}, {aA}, {t[0]}\ns_add_u32 {st}, {wb}, 56\nv_add_u32 {aA}, {st}, {aA}')
    k(f's_mul_i32 {st}, {s_w}, {HSTR}\ns_add_u32 {st}, {st}, {HB + 480}\nv_lshl_add_u32 {aB}, {m}, 5, {t[0]}\nv_add_u32 {aB}, {st}, {aB}')
    lg.all(); k('s_barrier'); SP(6)
    fa2 = k.a(32, 4); fb2 = k.a(32, 4)
    sets = [(fa, fb), (fa2, fb2)]
    k(f'v_add_u32 {aB}, -448, {aB}')
    def reads(r_):
        A_, B_ = sets[r_ & 1]; out = []
        for i in range(8):
            out.append(f'ds_read_b128 {B_.sub(4 * i, 4)}, {aB} offset:{448 - 64 * r_ + 512 * i}')
            out.append(f'ds_read_b64_tr_b16 {A_.sub(4 * i, 2)}, {aA} offset:{64 * r_ + 8 + 512 * i}')
            out.append(f'ds_read_b64_tr_b16 {A_.sub(4 * i + 2, 2)}, {aA} offset:{64 * r_ + 512 * i}')
        return out
    jm = k.s(); l16 = k.v()
    k(f's_lshr_b32 {jm}, s2, 5\ns_sub_u32 {jm}, {jm}, 2\nv_lshlrev_b32 {l16}, 4, {lane}')
    pd = PairDma(k, s_w, jm, O_W1F, Rws, l16, W1_AT)
    early = [g for P_ in range(5) for g in pd.ops(P_)]
    flag_ld = f'buffer_load_dwordx2 {fl_v}, {z4[0]}, {Rdbg}, 0 offen offset:200 sc1'
    k(f'v_lshlrev_b32 {t[0]}, 3, {q}\nv_lshl_add_u32 {t[0]}, {m}, 5, {t[0]}\nv_add_u32 {t[0]}, {wb}, {t[0]}')
    dv = t.sub(4, 4)
    k(f's_lshl_b32 {st}, {sD[0]}, 16\ns_and_b32 {st2}, {sD[0]}, 0xffff0000\nv_mov_b32 {dv[0]}, {st}\nv_mov_b32 {dv[1]}, {st2}')
    k(f's_lshl_b32 {st}, {sD[1]}, 16\ns_and_b32 {st2}, {sD[1]}, 0xffff0000\nv_mov_b32 {dv[2]}, {st}\nv_mov_b32 {dv[3]}, {st2}')
    def y_out(tt):
        o = x.sub(2 * tt, 2)
        return [f'v_cvt_pk_bf16_f32 {o[0]}, {acc[4 * tt]}, {acc[4 * tt + 1]}', f'v_cvt_pk_bf16_f32 {o[1]}, {acc[4 * tt + 2]}, {acc[4 * tt + 3]}',
                f'ds_write_b64 {t[0]}, {o} offset:{512 * tt}']
    yq = []
    cur = [lg.op(x_) for x_ in reads(0)]
    for r_ in range(8):
        rd = reads(r_ + 1) if r_ < 7 else []
        A_, B_ = sets[r_ & 1]; nxt = []
        order = [(i, tt) for i in range(8) for tt in range(i, 8)] if r_ else sorted(((i, tt) for i in range(8) for tt in range(i, 8)), key=lambda p: (max(p[0], p[1] - p[0]), p))
        seen = set()
        if r_ == 1: k(flag_ld)
        if r_ == 3: k('s_waitcnt vmcnt(0)'); spin(0, flag_ld)
        for n_, (i, tt) in enumerate(order):
            lg.wait(max(cur[3 * i + 2], cur[3 * (tt - i)]))
            first = r_ == 0 and tt not in seen; seen.add(tt)
            k(f'v_mfma_f32_16x16x32_bf16 {acc.sub(4 * tt, 4)}, {A_.sub(4 * i, 4)}, {B_.sub(4 * (tt - i), 4)}, {"0" if first else acc.sub(4 * tt, 4)}')
            if rd: nxt.append(lg.op(rd.pop(0)))
            if r_ == 7:
                if i == tt and i: yq += y_out(i - 1)
                for _ in range(2):
                    if yq: x_ = yq.pop(0); lg.op(x_) if x_.startswith('ds_') else k(x_)
            if r_ >= 3 and n_ >= 24 and n_ % 3 == 0 and early:
                for x_ in early.pop(0): k(x_)
        cur = nxt
    assert not early
    SP(7)
    for x_ in yq + y_out(7): k(x_)
    k('s_waitcnt lgkmcnt(0)\ns_barrier')
    lg.reset()
    yp = fb.sub(0, 16); yf = acc; o = fa
    ids = [[lg.op(f'ds_read_b32 {yp[4 * i + c]}, {a4} offset:{WSTR * c + 1024 * i}') for c in range(4)] for i in range(4)]
    k(f's_lshl_b32 {st}, {cidx}, 14\ns_add_u32 {st}, {st}, {O_X2}')
    for i in range(4):
        lg.wait(ids[i][3])
        for c in range(4): k(f'v_lshlrev_b32 {yf[8 * i + c]}, 16, {yp[4 * i + c]}\nv_and_b32 {yf[8 * i + 4 + c]}, 0xffff0000, {yp[4 * i + c]}')
        for j in range(4 * i, 4 * i + 4): k(f'v_pk_fma_f32 {yf.sub(2 * j, 2)}, {hf.sub(2 * j, 2)}, {dv.sub(2 * (j & 1), 2)}, {yf.sub(2 * j, 2)}')
        for j in range(4 * i, 4 * i + 4): k(f'v_pk_fma_f32 {yf.sub(2 * j, 2)}, {yf.sub(2 * j, 2)}, {md_.sub(8 + 2 * (j & 1), 2)}, {xf.sub(2 * j, 2)}')
        for j in range(4): k(f'v_cvt_pk_bf16_f32 {o[4 * i + j]}, {yf[8 * i + 2 * j]}, {yf[8 * i + 2 * j + 1]}')
        k(f'buffer_store_dwordx4 {o.sub(4 * i, 4)}, {ag}, {Rws}, {st} offen sc1')
        if i < 3: k(f's_add_u32 {st}, {st}, 4096')
```

```python
from common import *

K2_LDS = LDS_BYTES
T_B, T_G, T_F = TABS, TABS + 3456, TABS + 6144
XBUF, HBUF = 0, 73728
X1C, PSTL = 147456, 147456 + 9216
SPIN_MAX = 40000
GC1 = -2.0 * LOG2E * 0.7978845608028654
GC2 = GC1 * 0.044715
PI = [0, 1, 2, 5, 6, 7, 9, 10, 11, 14, 15, 16, 3, 12, 4, 8, 13, 17]
MF = 'v_mfma_f32_16x16x32_bf16'

def un(d, s_, hi): return f'v_and_b32 {d}, 0xffff0000, {s_}' if hi else f'v_lshlrev_b32 {d}, 16, {s_}'

def gelu_consts(k, sig, c):
    k(f'v_mov_b32 {c[2]}, {sig}\nv_rcp_f32 {c[0]}, {sig}')
    k(f'v_mul_f32 {c[1]}, {c[0]}, {c[0]}\nv_mul_f32 {c[1]}, {c[1]}, {c[0]}')
    k(f'v_mul_f32 {c[0]}, {fl(GC1)}, {c[0]}\nv_mul_f32 {c[1]}, {fl(GC2)}, {c[1]}')

def phase2(k, P, lane, s_w, END, SP, opt=()):
    stamps = SP.on
    WFL = ' sc1'
    PFL = ' '.join(o[2:] for o in opt if o.startswith('p_')) or 'sc1'
    q = k.v(); m = k.v(); l16 = k.v(); one = k.v(); zero = k.v(); fv4 = k.v(8, 4)
    Rws = k.s(4); RG = k.s(4); RW = k.s(4)
    srd(k, RG, P['dbg'], 256)
    k(f'v_mov_b32 {one}, 1\nv_mov_b32 {zero}, 0')
    go_ld = f'buffer_load_dwordx4 {fv4[0:4]}, {zero}, {RG}, 0 offen offset:192 sc1'
    k(go_ld)
    k(f'v_lshrrev_b32 {q}, 4, {lane}\nv_and_b32 {m}, 15, {lane}\nv_lshlrev_b32 {l16}, 4, {lane}')
    rb = k.s(); jm = k.s(); mb = k.s(); fs = k.s(); st = k.s(); st1 = k.s(); sav = k.s(2); cnt = k.s(); mt = k.s()
    k(f's_and_b32 {st}, s2, 1\ns_lshl_b32 {mb}, {st}, 4\ns_bfe_u32 {st}, s2, 0x20001\ns_lshl_b32 {fs}, {st}, 1\ns_lshl_b32 {rb}, {st}, 2\ns_add_u32 {rb}, {rb}, {mb}')
    k(f's_bfe_u32 {st}, s2, 0x20003\ns_add_u32 {rb}, {rb}, {st}\ns_lshr_b32 {jm}, s2, 5\ns_sub_u32 {jm}, {jm}, 2')
    k(f's_bfe_u32 {st}, s2, 0x40003\ns_add_u32 {mb}, {mb}, {st}\ns_lshr_b32 {st}, s2, 7\ns_add_u32 {fs}, {fs}, {st}')
    if 'a4' in opt:
        k(f's_and_b32 {mb}, s2, 3\ns_lshl_b32 {mb}, {mb}, 3\ns_bfe_u32 {st}, s2, 0x30003\ns_add_u32 {mb}, {mb}, {st}')
        k(f's_bfe_u32 {fs}, s2, 0x10002\ns_lshl_b32 {fs}, {fs}, 2\ns_lshr_b32 {st}, s2, 6\ns_add_u32 {fs}, {fs}, {st}')
    if 'a1' in opt: k(f's_lshr_b32 {mb}, s2, 3\ns_and_b32 {fs}, s2, 7')
    if 'a8' in opt:
        k(f's_and_b32 {mb}, s2, 7\ns_lshl_b32 {mb}, {mb}, 2\ns_bfe_u32 {st}, s2, 0x20003\ns_add_u32 {mb}, {mb}, {st}\ns_lshr_b32 {fs}, s2, 5')
    k(f's_lshl_b32 {mt}, {rb}, 2\ns_add_u32 {mt}, {mt}, {s_w}\ns_mov_b32 {cnt}, 0')
    srd(k, Rws, P['ws'], WS_USED); srd(k, RW, P['ws'], WS_USED)
    vm, lg = trackers(k)
    def STAMP(i, g4=False):
        mode = 'g4st' if 'g4st' in opt else 'g3st' if 'g3st' in opt else False
        if stamps and (g4 == mode or (i not in (1, 2, 3, 4, 5) and not g4)): SP(i); lg.reset()
    def flag_add(s_idx, base):
        k(f's_lshl_b32 {st}, {s_idx}, 7\ns_add_u32 {st}, {st}, {base}\ns_mov_b64 exec, 1')
        vm.op(f'buffer_atomic_add {one}, {zero}, {Rws}, {st} offen sc1')
        k('s_mov_b64 exec, -1')
    def poll(vaddr, base, target, sleep=0, fv=None):
        own = fv is None; fv = fv or k.v(); lp, ok = k.label('poll'), k.label('ok')
        k(f's_mov_b32 {st1}, {base}\n{lp}:\nbuffer_load_dword {fv}, {vaddr}, {Rws}, {st1} offen sc1\ns_waitcnt vmcnt(0)')
        k(f'v_cmp_gt_u32 vcc, {target}, {fv}\ns_cmp_eq_u64 vcc, 0\ns_cbranch_scc1 {ok}')
        if sleep: k(f's_sleep {sleep}')
        k(f's_add_u32 {cnt}, {cnt}, 1\ns_cmp_lt_u32 {cnt}, {SPIN_MAX}\ns_cbranch_scc1 {lp}\ns_branch {END}\n{ok}:')
        vm.reset()
        if own: fv.release()
    W = [k.a(72, 4), k.a(72, 4)]; vo = [l16] + [k.v() for _ in range(4)]
    for g in range(1, 5): k(f'v_add_u32 {vo[g]}, {4096 * g}, {l16}')
    sn = k.s(); s4 = k.s()
    k(f's_lshl_b32 {sn}, {fs}, 2\ns_add_u32 {sn}, {sn}, {s_w}\ns_mul_i32 {sn}, {sn}, {9 * 18432}\ns_add_u32 {s4}, {sn}, {O_W4F}\ns_add_u32 {sn}, {sn}, {O_W3F}')
    wld = lambda r_, ks: f'buffer_load_dwordx4 {W[r_].sub(4 * ks, 4)}, {vo[ks // 4]}, {RW}, {sn} offen offset:{1024 * (ks % 4)}' + WFL
    sm = k.s(); so = k.s()
    k(f's_lshl_b32 {sm}, {s_w}, 10')
    def spin(ld, regs, sleep=16):
        lp, ok = k.label('spin'), k.label('up')
        k(f'{lp}:\ns_waitcnt vmcnt(0)')
        if len(regs) > 1: k(f'v_and_b32 {fv4[7]}, {regs[0]}, {regs[1]}')
        k(f'v_cmp_eq_u32 vcc, 0, {fv4[7] if len(regs) > 1 else regs[0]}\ns_cmp_eq_u64 vcc, 0\ns_cbranch_scc1 {ok}')
        k(f's_sleep {sleep}\n{ld}\ns_add_u32 {cnt}, {cnt}, 1\ns_cmp_lt_u32 {cnt}, {SPIN_MAX}\ns_cbranch_scc1 {lp}\ns_branch {END}\n{ok}:')
    RB = k.v(24, 4)
    keepV, keepA, keepS = list(k.V.free), list(k.A.free), list(k.S.free)
    XX = k.v(146, 2); t = k.v(8); row = k.v()
    pd1 = PairDma(k, s_w, jm, O_W1F, Rws, l16, W1_AT)
    k(f's_lshl_b32 {st}, {s_w}, 6\nv_add_u32 {t[2]}, {st}, {lane}')
    u_ = XX.sub(0, 4)
    def tab_src(d, u):
        k(f's_mul_i32 {st}, {jm}, 12\nv_cmp_le_u32 vcc, 72, {u}\nv_subrev_u32 {u_[0]}, 72, {u}\nv_cndmask_b32 {u_[0]}, {u}, {u_[0]}, vcc\nv_add_u32 {u_[0]}, {st}, {u_[0]}')
        k(f'v_mov_b32 {u_[2]}, {O_MODB + 1152}\nv_mov_b32 {u_[3]}, {O_MODB}\nv_cndmask_b32 {u_[2]}, {u_[2]}, {u_[3]}, vcc')
        k(f'v_cmp_le_u32 vcc, 72, {u_[0]}\nv_subrev_u32 {u_[1]}, 72, {u_[0]}\nv_cndmask_b32 {u_[0]}, {u_[0]}, {u_[1]}, vcc\nv_lshl_add_u32 {d}, {u_[0]}, 4, {u_[2]}')
        k(f's_mul_i32 {st}, {jm}, 24\ns_sub_u32 {st}, {st}, 144\nv_add_u32 {u_[0]}, {st}, {u}\nv_cmp_le_u32 vcc, 144, {u_[0]}\nv_subrev_u32 {u_[1]}, 144, {u_[0]}')
        k(f'v_cndmask_b32 {u_[0]}, {u_[0]}, {u_[1]}, vcc\nv_lshlrev_b32 {u_[0]}, 4, {u_[0]}\nv_add_u32 {u_[0]}, {O_MODF + 4 * 2304}, {u_[0]}')
        k(f'v_cmp_le_u32 vcc, 144, {u}\nv_cndmask_b32 {d}, {d}, {u_[0]}, vcc')
    tab_src(t[3], t[2])
    k(f'v_add_u32 {t[5]}, 256, {lane}')
    tab_src(t[4], t[5])
    k(f'v_mul_u32_u24 {t[5]}, 43691, {t[2]}\nv_lshrrev_b32 {t[5]}, 20, {t[5]}\nv_mul_u32_u24 {t[6]}, 120, {t[5]}')
    k(f'v_add_u32 {t[6]}, {t[6]}, {t[2]}\nv_lshlrev_b32 {t[6]}, 4, {t[6]}')
    pd = PairDma(k, s_w, jm, O_W2F, Rws, l16, W2_AT)
    k(f's_lshl_b32 {st}, {mt}, 4\nv_add_u32 {row}, {st}, {m}')
    k(f'v_lshlrev_b32 {t[0]}, 15, {q}\nv_lshl_add_u32 {t[0]}, {row}, 3, {t[0]}\nv_add_u32 {t[1]}, 0x4000, {t[0]}')
    ones = k.v(4, 4); sacc = k.v(4, 4); gacc = k.v(4, 4); tacc = k.v(4, 4); qacc = k.v(4, 4); acc = k.v(24, 4)
    for i in range(4): k(f'v_mov_b32 {ones[i]}, 0x3f803f80')
    msk = [k.s(2) for _ in range(3)]; bidx = k.v()
    k(f'v_and_b32 {t[2]}, 3, {m}')
    for e in range(3): k(f'v_cmp_eq_u32 {msk[e]}, {e + 1}, {t[2]}')
    aT = k.v(); aW = [l16, k.v(), k.v()]
    k(f'v_min_u32 {t[2]}, 2, {t[2]}\nv_mul_u32_u24 {aT}, 1152, {t[2]}\nv_lshl_add_u32 {aT}, {q}, 4, {aT}\nv_add_u32 {aT}, {T_B}, {aT}\nv_lshlrev_b32 {t[7]}, 5, {q}\nv_add_u32 {t[7]}, {T_G}, {t[7]}')
    k(f'v_lshrrev_b32 {t[2]}, 2, {m}\nv_lshl_add_u32 {t[2]}, {t[2]}, 4, {m}\nv_lshlrev_b32 {bidx}, 2, {t[2]}')
    k(f'v_add_u32 {aW[1]}, 0xf000, {l16}\nv_add_u32 {aW[2]}, 0x1e000, {l16}')
    k(f'v_lshlrev_b32 {t[2]}, 4, v0\nv_add_u32 {t[2]}, {T_B}, {t[2]}')
    spin(go_ld, [fv4[0]])
    k('s_waitcnt lgkmcnt(0)\ns_barrier')
    STAMP(15)
    NSH = next((int(o[2:]) for o in opt if o.startswith('sh')), 4)
    na, nb = k.label('noarr'), k.label('notlast')
    k(f's_cmp_lg_u32 {s_w}, 0\ns_cbranch_scc1 {na}\ns_lshr_b32 {st1}, s2, 3\ns_and_b32 {st1}, {st1}, {NSH - 1}\ns_lshl_b32 {st}, {st1}, 7\ns_add_u32 {st}, {st}, {O_FA}\ns_mov_b64 exec, 1')
    k(f'v_mov_b32 {fv4[4]}, 1\nbuffer_atomic_add {fv4[4]}, {zero}, {Rws}, {st} offen sc0 sc1\ns_add_u32 {st1}, {st}, {O_FG - O_FA}\ns_waitcnt vmcnt(0)')
    k(f'v_readfirstlane_b32 {st}, {fv4[4]}\ns_cmp_lg_u32 {st}, {256 // NSH - 1}\ns_cbranch_scc1 {nb}')
    k(f'buffer_store_dword {one}, {zero}, {Rws}, {st1} offen sc1\n{nb}:\ns_mov_b64 exec, -1\n{na}:')
    go3_ld = f'buffer_load_dword {fv4[0]}, {fv4[5]}, {Rws}, 0 offen sc1'
    k(f'v_and_b32 {fv4[5]}, {NSH - 1}, {lane}\nv_lshlrev_b32 {fv4[5]}, 7, {fv4[5]}\nv_add_u32 {fv4[5]}, {O_FG}, {fv4[5]}')
    k('s_cmp_lt_u32 s2, 64\ns_cbranch_scc1 k2_idle')

    w0, w5, wj = k.label('havew1'), k.label('rest'), k.label('joined')
    spin(go_ld, [fv4[2], fv4[3]])
    k(f's_add_u32 m0, {sm}, {T_B + 1152}\nbuffer_load_dwordx4 {t[3]}, {Rws}, 0 offen sc1 lds')
    k(f's_mov_b32 m0, {T_B + 1152 + 4096}\ns_mov_b32 exec_hi, 0\nbuffer_load_dwordx4 {t[4]}, {Rws}, 0 offen sc1 lds\ns_mov_b64 exec, -1')
    k(f's_cmp_ge_u32 s2, 112\ns_cbranch_scc1 {w0}')
    for P_ in range(5):
        for g in pd1.ops(P_):
            for x_ in g: k(x_)
    k(f's_waitcnt vmcnt(0)\n{w0}:\ns_barrier\ns_cmp_eq_u32 {s_w}, 0\ns_cbranch_scc1 {w5}')
    k(f's_lshl_b32 {pd1.t}, {s_w}, 11\ns_sub_u32 {pd1.t}, {pd1.t}, 2048\ns_mul_i32 {pd1.src}, {jm}, 110592\ns_add_u32 {pd1.src}, {pd1.src}, {pd1.t}\ns_add_u32 {pd1.src}, {pd1.src}, {O_W1F + 61440}')
    for sl_i in range(10, 18):
        k(f's_add_u32 m0, {pd1.t}, {W1_AT[sl_i]}\nbuffer_load_dwordx4 {l16}, {Rws}, {pd1.src} offen sc1 lds')
        k(f'buffer_load_dwordx4 {l16}, {Rws}, {pd1.src} offen offset:1024 sc1 lds')
        if sl_i < 17: k(f's_add_u32 {pd1.src}, {pd1.src}, 6144')
    k(f'{w5}:')
    pd1.release()
    k(f'v_cmp_gt_u32 vcc, 72, v0\ns_and_saveexec_b64 {sav}, vcc\nds_write_b128 {t[2]}, {ones}\ns_mov_b64 exec, {sav}')
    w2ops = [g for P_ in range(9) for g in pd.ops(P_)]
    def w2dma():
        for x_ in w2ops.pop(0): vm.op(x_) if x_.startswith('buffer') else k(x_)
    ix = []
    def issue(i):
        vm.op(f'buffer_load_dwordx2 {XX.sub(4 * i, 2)}, {t[0]}, {Rws}, {st1} offen sc1')
        ix.append(vm.op(f'buffer_load_dwordx2 {XX.sub(4 * i + 2, 2)}, {t[1]}, {Rws}, {st1} offen sc1'))
        if i < 17: k(f's_add_u32 {st1}, {st1}, 131072')
        if i % 3 == 2 and i < 17: k(f's_cmp_eq_u32 {st1}, {O_X2 + 18 * 131072}\ns_cselect_b32 {st1}, {O_X2}, {st1}')
    lds_at = lambda a_: f'{aW[a_ // 0xf000]} offset:{a_ % 0xf000}'
    TF = W[1]; WR = [k.a(24, 4), k.a(24, 4)]
    def w_reads(i):
        return [f'ds_read_b128 {WR[i & 1].sub(4 * tt, 4)}, {lds_at(W1_AT[i] + 1024 * tt)}' for tt in range(6)]
    k(f's_cmp_lg_u32 {s_w}, 0\ns_cbranch_scc1 {wj}\n{go3_ld}')
    spin(go3_ld, [fv4[0]], 2)
    k(f'{wj}:\ns_mul_i32 {st1}, {jm}, {3 * 131072}\ns_add_u32 {st1}, {st1}, {O_X2}\ns_mul_i32 {so}, {jm}, 384\ns_add_u32 {so}, {so}, {O_MOD2}\ns_waitcnt vmcnt(16) lgkmcnt(0)\ns_barrier'); vm.reset(); lg.reset()
    STAMP(0)
    nis = 5
    for i in range(nis): issue(i)
    itf = [lg.op(f'ds_read_b128 {TF.sub(4 * i, 4)}, {aT} offset:{64 * i}') for i in range(18)]
    iwr = [lg.op(x_) for x_ in w_reads(0)]
    for i in range(18):
        lg.wait(itf[i]); k(f'{MF} {acc[4:8]}, {TF.sub(4 * i, 4)}, {TF.sub(4 * i, 4)}, {"0" if i == 0 else acc[4:8]}')
    cs = k.s(5, 1)
    for n_, (e, j_) in enumerate(((0, 1), (0, 2), (1, 1), (1, 2), (2, 2))): k(f'v_readlane_b32 {cs[n_]}, {acc[4 + e]}, {j_}')
    XG = [XX.sub(72, 4), XX.sub(76, 4)]; GT = [XX.sub(80, 8), XX.sub(88, 8)]; tv = XX.sub(96, 8)
    g_reads = lambda i: [f'ds_read_b128 {GT[i & 1].sub(4 * h, 4)}, {t[7]} offset:{128 * i + 16 * h}' for h in range(2)]
    def xg_ops(i):
        xs = XX.sub(4 * i, 4); g_ = GT[i & 1]
        return ([un(tv[e], xs[e >> 1], e & 1) for e in range(8)] + [f'v_mul_f32 {tv[e]}, {tv[e]}, {g_[e]}' for e in range(8)]
                + [f'v_cvt_pk_bf16_f32 {XG[i & 1][e]}, {tv[2 * e]}, {tv[2 * e + 1]}' for e in range(4)])
    ig0 = [lg.op(x_) for x_ in g_reads(0) + g_reads(1)]
    vm.wait(ix[0]); lg.wait(ig0[1])
    for x_ in xg_ops(0): k(x_)
    igt = ig0[3]; n2 = 0
    for i in range(18):
        if i == 9: vm.wait(itab)
        if i in (9, 13): k('s_barrier')
        if i == 1: STAMP(1)
        xg = XG[i & 1]; xr = XX.sub(4 * i, 4)
        c_ = lambda r_: '0' if i == 0 else r_
        M = [(0, f'{MF} {sacc}, {ones}, {xr}, {c_(sacc)}'), (0, f'{MF} {gacc}, {xr}, {xr}, {c_(gacc)}'),
             (0, f'{MF} {tacc}, {TF.sub(4 * i, 4)}, {xg}, {c_(tacc)}'), (0, f'{MF} {qacc}, {xg}, {xg}, {c_(qacc)}')]
        M += [(iwr[tt], f'{MF} {acc.sub(4 * tt, 4)}, {WR[i & 1].sub(4 * tt, 4)}, {xg}, {c_(acc.sub(4 * tt, 4))}') for tt in range(6)]
        Rd = w_reads(i + 1) if i < 17 else []
        V = xg_ops(i + 1) if i < 17 else []
        Gd = g_reads(i + 2) if i < 16 else []
        nxt = []
        for n_, (idr, mm) in enumerate(M):
            lg.wait(idr); k(mm)
            if Rd and n_ < 6: nxt.append(lg.op(Rd.pop(0)))
            if V and n_ == 0: vm.wait(ix[i + 1])
            if V and n_ == 4: lg.wait(igt)
            if Gd and n_ >= 8: ign = lg.op(Gd.pop(0))
            for _ in range(2):
                if V: k(V.pop(0))
        iwr = nxt
        if i < 16: igt = ign
        if i == 4:
            k(f's_add_u32 m0, {sm}, {T_F}')
            itab = vm.op(f'buffer_load_dwordx4 {t[6]}, {Rws}, {so} offen sc1 lds')
        if nis < 18:
            for _ in range(2 if nis < i + 9 else 1):
                if nis < 18: issue(nis); nis += 1
        else:
            for _ in range(3):
                if n2 < (18 if i < 13 else 27): w2dma(); n2 += 1
    assert n2 == 27
    STAMP(2)
    k.inject([lambda ks=ks: vm.op(wld(0, ks)) for ks in PI], 9)
    TB = [XX.sub(24, 16), XX.sub(40, 16)]; uu = XX.sub(56, 48)
    k(f'v_lshlrev_b32 {aT}, 5, {q}\nv_add_u32 {aT}, {T_F}, {aT}')
    tf_read = lambda dst, r_, e: f'ds_read_b128 {dst}, {aT} offset:{384 * r_ + 128 * (e >> 1) + 16 * (e & 1)}'
    def diag(d, g_):
        k(f'v_cndmask_b32 {d}, {g_[0]}, {g_[1]}, {msk[0]}\nv_cndmask_b32 {d}, {d}, {g_[2]}, {msk[1]}\nv_cndmask_b32 {d}, {d}, {g_[3]}, {msk[2]}')
        return lg.op(f'ds_bpermute_b32 {d}, {bidx}, {d}')
    i2 = diag(t[2], qacc); i1 = diag(t[1], gacc)
    iu = [lg.op(tf_read(uu.sub(24 * r_ + 4 * e, 4), 3 + r_, e)) for e in range(6) for r_ in range(2)]
    s1 = XX.sub(140, 2); gc = XX.sub(136, 4)
    k(f'v_mov_b32 {t[0]}, {sacc[0]}'); lg.wait(i1)
    sigma_bf16(k, t[0], t[1])
    k(f'v_cvt_pk_bf16_f32 {t[0]}, {t[0]}, {t[1]}\nv_and_b32 {s1[0]}, 0xffff0000, {t[0]}\nv_lshlrev_b32 {s1[1]}, 16, {t[0]}')
    k(f'v_rcp_f32 {s1[0]}, {s1[0]}\nv_mov_b32 {t[3]}, {cs[1]}\nv_mov_b32 {t[4]}, {cs[3]}\nv_mul_f32 {s1[1]}, -{s1[1]}, {s1[0]}')
    k(f'v_fma_f32 {t[3]}, {s1[1]}, {cs[0]}, {t[3]}\nv_fma_f32 {t[0]}, {s1[0]}, {tacc[0]}, {t[3]}')
    k(f'v_fma_f32 {t[3]}, {s1[1]}, {tacc[1]}, {tacc[2]}\nv_add_f32 {t[3]}, {t[3]}, {t[3]}\nv_fma_f32 {t[3]}, {s1[0]}, {t[2]}, {t[3]}')
    k(f'v_add_f32 {t[4]}, {t[4]}, {t[4]}\nv_fma_f32 {t[4]}, {s1[1]}, {cs[2]}, {t[4]}\nv_mov_b32 {t[5]}, {cs[4]}\nv_fma_f32 {t[4]}, {s1[1]}, {t[4]}, {t[5]}')
    k(f'v_fma_f32 {t[1]}, {s1[0]}, {t[3]}, {t[4]}')
    sigma_bf16(k, t[0], t[1])
    k(f'v_cvt_pk_bf16_f32 {t[1]}, {t[1]}, {t[1]}\nv_and_b32 {t[1]}, 0xffff0000, {t[1]}')
    gelu_consts(k, t[1], gc)
    k(f's_mul_i32 {st}, {jm}, {3 * GPL}\ns_lshl_b32 {so}, {mt}, 10\ns_add_u32 {st}, {st}, {so}\ns_add_u32 {st}, {st}, {O_G + 1024}')
    lg.all()
    for e in range(12): k(f'v_pk_fma_f32 {uu.sub(2 * e, 2)}, {uu.sub(2 * e, 2)}, {s1}, {uu.sub(24 + 2 * e, 2)} op_sel:[0,1,0] op_sel_hi:[1,1,1]')
    for e in range(12): k(f'v_pk_fma_f32 {acc.sub(2 * e, 2)}, {acc.sub(2 * e, 2)}, {s1}, {uu.sub(2 * e, 2)} op_sel_hi:[1,0,1]')
    tt_ = TB[0]; go = TB[1]
    for Pp in range(3):
        a = acc.sub(8 * Pp, 8); u = tt_.sub(0, 8)
        for e in range(4): k(f'v_pk_mul_f32 {u.sub(2 * e, 2)}, {a.sub(2 * e, 2)}, {a.sub(2 * e, 2)}')
        for e in range(4): k(f'v_pk_fma_f32 {u.sub(2 * e, 2)}, {u.sub(2 * e, 2)}, {gc[0:2]}, {gc[0:2]} op_sel:[0,1,0] op_sel_hi:[1,1,0]')
        for e in range(4): k(f'v_pk_mul_f32 {u.sub(2 * e, 2)}, {u.sub(2 * e, 2)}, {a.sub(2 * e, 2)}')
        for e in range(8): k(f'v_exp_f32 {u[e]}, {u[e]}')
        for e in range(4): k(f'v_pk_fma_f32 {u.sub(2 * e, 2)}, {u.sub(2 * e, 2)}, {gc[2:4]}, {gc[2:4]} op_sel_hi:[1,0,0]')
        for e in range(8): k(f'v_rcp_f32 {u[e]}, {u[e]}')
        for e in range(4): k(f'v_pk_mul_f32 {u.sub(2 * e, 2)}, {u.sub(2 * e, 2)}, {a.sub(2 * e, 2)}')
        o = go.sub(4 * Pp, 4)
        for e in range(4): k(f'v_cvt_pk_bf16_f32 {o[e]}, {u[2 * e]}, {u[2 * e + 1]}')
        if Pp == 2: k.flush_inject()
        ig = vm.op(f'buffer_store_dwordx4 {o}, {l16}, {Rws}, {st} offen sc1')
        if Pp < 2: k(f's_add_u32 {st}, {st}, {GPL}')
    h2f = uu.sub(0, 24); x2f = XX.sub(104, 24); gbv = RB
    xsrc = lambda e: XX[e >> 1]
    ig_ = [lg.op(tf_read(gbv.sub(4 * e, 4), 1, e)) for e in range(6)]
    is_ = [lg.op(tf_read(uu.sub(24 + 4 * e, 4), 0, e)) for e in range(6)]
    for e in range(24): k(un(x2f[e], xsrc(e), e & 1))
    dl = [XX[128 + i] for i in range(6)]
    k(f'v_cmp_gt_u32 vcc, 2, {q}')
    for g, dlt in enumerate((-1, 1, -2, 2)):
        k(f'v_add_u32 {dl[4]}, {16 + dlt}, {row}\nv_lshrrev_b32 {dl[5]}, 4, {dl[4]}\nv_and_b32 {dl[4]}, 15, {dl[4]}\nv_lshlrev_b32 {dl[4]}, 4, {dl[4]}')
        k(f'v_lshl_add_u32 {dl[4]}, {dl[5]}, 10, {dl[4]}\nv_lshl_add_u32 {dl[g]}, {q}, 8, {dl[4]}')
    k(f'v_cndmask_b32 {dl[4]}, {dl[1]}, {dl[0]}, vcc\nv_cndmask_b32 {dl[5]}, {dl[3]}, {dl[2]}, vcc')
    pa = XX[134]
    k(f'v_min_u32 {pa}, 2, {lane}\nv_add_u32 {pa}, {mt}, {pa}\nv_add_u32 {pa}, -1, {pa}\nv_max_i32 {pa}, 0, {pa}\nv_min_u32 {pa}, 127, {pa}\nv_lshlrev_b32 {pa}, 7, {pa}')
    vm.wait(ig)
    flag_add(mt, O_FC)
    STAMP(3)
    k(f's_add_u32 {sn}, {sn}, 18432')
    for e in range(12): k(f'v_pk_fma_f32 {h2f.sub(2 * e, 2)}, {x2f.sub(2 * e, 2)}, {s1}, {s1} op_sel:[0,0,1] op_sel_hi:[1,0,1]')
    lg.all()
    for e in range(12): k(f'v_pk_fma_f32 {h2f.sub(2 * e, 2)}, {h2f.sub(2 * e, 2)}, {gbv.sub(2 * e, 2)}, {uu.sub(24 + 2 * e, 2)}')
    NPRE = 5
    k('s_barrier')
    WP = [WR[0], WR[1], k.a(24, 4), k.a(24, 4), XX.sub(0, 24)]
    w2_addr = lambda i, tt: lds_at(W2_AT[i] + 1024 * tt)
    for i in range(NPRE):
        for tt in range(6): lg.op(f'ds_read_b128 {WP[i].sub(4 * tt, 4)}, {w2_addr(i, tt)}')
    poll(pa, O_FC, 6)
    STAMP(4)
    GF = TF
    sel = lambda s: dl[4] if s == 4 else dl[5] if s == 13 else dl[(2 * s) // 9]
    ig = []
    for s in range(18):
        k(f's_mov_b32 {st}, {O_G + s * GPL}')
        ig.append(vm.op(f'buffer_load_dwordx4 {GF.sub(4 * s, 4)}, {sel(s)}, {Rws}, {st} offen sc1'))
    lg.all()
    ird = {}
    for s in range(18):
        vm.wait(ig[s])
        wr = WP[s % NPRE]
        for tt in range(6):
            if s >= NPRE: lg.wait(ird[s, tt])
            k(f'{MF} {acc.sub(4 * tt, 4)}, {wr.sub(4 * tt, 4)}, {GF.sub(4 * s, 4)}, {"0" if s == 0 else acc.sub(4 * tt, 4)}')
            if s + NPRE < 18: ird[s + NPRE, tt] = lg.op(f'ds_read_b128 {wr.sub(4 * tt, 4)}, {w2_addr(s + NPRE, tt)}')
        vm.op(wld(1, s))
    lg.all()
    STAMP(5)
    aS = dl[1]
    k(f'v_lshrrev_b32 {t[0]}, 1, {q}')
    k(f'v_lshlrev_b32 {aS}, 6, {t[0]}\nv_lshl_add_u32 {aS}, {m}, 2, {aS}')
    k(f's_mul_i32 {st}, {rb}, 18\ns_mul_i32 {so}, {jm}, 3\ns_add_u32 {st}, {st}, {so}\ns_lshl_b32 {st}, {st}, 2\ns_add_u32 {st}, {st}, {s_w}\ns_lshl_b32 {st}, {st}, 10\ns_add_u32 {st}, {st}, {O_X1F}')
    for e in range(12): k(f'v_pk_add_f32 {h2f.sub(2 * e, 2)}, {h2f.sub(2 * e, 2)}, {acc.sub(2 * e, 2)}')
    for Pp in range(3):
        o = go.sub(4 * Pp, 4)
        for e in range(4): k(f'v_cvt_pk_bf16_f32 {o[e]}, {h2f[8 * Pp + 2 * e]}, {h2f[8 * Pp + 2 * e + 1]}')
        vm.op(f'buffer_store_dwordx4 {o}, {l16}, {Rws}, {st} offen sc1')
        if Pp < 2: k(f's_add_u32 {st}, {st}, 4096')
    k(f'v_pk_add_f32 {t[0:2]}, {h2f[0:2]}, {h2f[2:4]}\nv_pk_mul_f32 {t[2:4]}, {h2f[0:2]}, {h2f[0:2]}\nv_pk_fma_f32 {t[2:4]}, {h2f[2:4]}, {h2f[2:4]}, {t[2:4]}')
    for e in range(2, 12): k(f'v_pk_add_f32 {t[0:2]}, {t[0:2]}, {h2f.sub(2 * e, 2)}\nv_pk_fma_f32 {t[2:4]}, {h2f.sub(2 * e, 2)}, {h2f.sub(2 * e, 2)}, {t[2:4]}')
    k(f'v_add_f32 {t[0]}, {t[0]}, {t[1]}\nv_add_f32 {t[2]}, {t[2]}, {t[3]}\nv_permlane32_swap_b32 {t[0]}, {t[2]}\nv_add_f32 {t[0]}, {t[0]}, {t[2]}')
    k(f'v_mov_b32 {t[1]}, {t[0]}\nv_permlane16_swap_b32 {t[0]}, {t[1]}\nv_add_f32 {t[0]}, {t[0]}, {t[1]}')
    k(f's_mul_i32 {st}, {mt}, 6\ns_add_u32 {st}, {st}, {jm}\ns_lshl_b32 {st}, {st}, 7\ns_add_u32 {st}, {st}, {O_PST}\ns_mov_b32 exec_lo, 0xffff\ns_mov_b32 exec_hi, 0xffff')
    vm.op(f'buffer_store_dword {t[0]}, {aS}, {Rws}, {st} offen sc1')
    k('s_mov_b64 exec, -1')
    vm.all()
    flag_add(mt, O_FD)
    STAMP(6)
    k('s_branch k2_phase_e')
    k('k2_idle:')
    k.V.free, k.A.free, k.S.free = list(keepV), list(keepA), list(keepS)
    vm, lg = trackers(k)
    cj = ColJob(k, vm, lg, lane, s_w)
    fr = k.v(72, 4); sl = k.s(); dst = k.s(); job = k.s(); R4 = k.s(4)
    srd(k, R4, P['w4'], D * F * 2)
    fr2 = k.v(12, 4); part = k.s(); np_, dn = k.label('nopart'), k.label('w4done')
    k(f's_mul_hi_u32 {sl}, s2, {(1 << 32) // 9 + 1}\ns_mul_i32 {dst}, {sl}, 9\ns_sub_u32 {dst}, s2, {dst}\ns_lshl_b32 {dst}, {dst}, 7')
    k(f's_mul_i32 {st}, {sl}, {576 * 1152}\ns_add_u32 {dst}, {dst}, {st}\ns_mov_b32 {st}, 1152')
    cj.dma(R4, dst, st, 0, True)
    k(f's_mul_hi_u32 {job}, s2, {(1 << 32) // 6 + 1}\ns_mul_i32 {part}, {job}, 6\ns_sub_u32 {part}, s2, {part}\ns_cmp_ge_u32 s2, 48\ns_cbranch_scc1 {np_}')
    k(f's_mul_i32 {dst}, {part}, {96 * 1152}\ns_lshl_b32 {st}, {job}, 7\ns_add_u32 {dst}, {dst}, {st}\ns_add_u32 {dst}, {dst}, {7 * 576 * 1152 + 128}\ns_mov_b32 {st}, 1152')
    cj.dma(R4, dst, st, 73728, True, nks=3)
    k(f'{np_}:')
    ad = cj.addr(0, w4order=True); ad2 = cj.addr(73728, w4order=True)
    k('s_waitcnt vmcnt(0)\ns_barrier'); vm.reset()
    ids = cj.reads(ad, fr); ids2 = cj.reads(ad2, fr2, 3)
    k(f's_lshl_b32 {dst}, s2, 2\ns_add_u32 {dst}, {dst}, {s_w}\ns_mul_i32 {dst}, {dst}, 18432\ns_add_u32 {dst}, {dst}, {O_W4F}')
    cj.store(fr, ids, Rws, dst, 1024)
    k(f's_lshl_b32 {dst}, {job}, 2\ns_add_u32 {dst}, {dst}, {s_w}\ns_mul_i32 {dst}, {dst}, 18432\ns_mul_i32 {st}, {part}, 3072\ns_add_u32 {dst}, {dst}, {st}')
    k(f's_add_u32 {dst}, {dst}, {O_W4F + 256 * 18432}\ns_cmp_ge_u32 s2, 48\ns_cselect_b32 {dst}, {WS_USED}, {dst}')
    cj.store(fr2, ids2, Rws, dst, 1024, nks=3)
    vm.all()
    flag_add(sl, O_FW)
    k(f's_cmp_ge_u32 s2, 48\ns_cbranch_scc1 {dn}\ns_mov_b32 {sl}, 7')
    flag_add(sl, O_FW)
    k(f'{dn}:\n{go3_ld}')
    spin(go3_ld, [fv4[0]]); vm.reset()
    for r_ in range(2):
        for ks in PI: vm.op(wld(r_, ks))
        if r_ == 0: k(f's_add_u32 {sn}, {sn}, 18432')
    STAMP(14)
    k('k2_phase_e:')
    k.V.free, k.A.free, k.S.free = keepV, keepA, keepS
    vm, lg = trackers(k)
    vm.n = 1
    XA = k.a(112, 4); XV = k.v(176, 4)
    xf = lambda ks, t_: XA.sub(16 * ks + 4 * t_, 4) if 16 * ks + 4 * t_ < 112 else XV.sub(16 * ks + 4 * t_ - 112, 4)
    fv4.release()
    k(f's_add_u32 {sn}, {sn}, 18432')
    acc = [k.v(16, 4), k.v(16, 4)]
    t = acc[1].sub(0, 12); pa = k.v()
    k(f's_lshl_b32 {st}, {mb}, 2\nv_add_u32 {pa}, {st}, {lane}\ns_add_u32 {st}, {fs}, {(O_FW - O_FD) // 128}\nv_mov_b32 {t[0]}, {st}\nv_cmp_gt_u32 vcc, 4, {lane}')
    k(f'v_cndmask_b32 {pa}, {t[0]}, {pa}, vcc\nv_lshlrev_b32 {pa}, 7, {pa}\ns_cmp_eq_u32 {fs}, 7\ns_cselect_b32 {st}, 196, 36\nv_mov_b32 {t[0]}, {st}\nv_cndmask_b32 {t[0]}, {t[0]}, 6, vcc')
    k(f's_lshl_b32 {sm}, {s_w}, 10\ns_mul_i32 {so}, {mb}, 73728\ns_add_u32 {so}, {so}, {sm}\ns_add_u32 {so}, {so}, {O_X1F}')
    sk_ = k.label('nopoll')
    k(f's_cmp_lg_u32 {s_w}, 0\ns_cbranch_scc1 {sk_}')
    poll(pa, O_FD, t[0], sleep=1, fv=t[1])
    k(f'{sk_}:\ns_waitcnt vmcnt(0)\ns_barrier')
    STAMP(7)
    ixd = []; idv = {}
    def xdma(ks):
        k(f's_add_u32 m0, {sm}, {XBUF + 4096 * ks}\ns_add_u32 {st}, {so}, {4096 * ks}')
        ixd.append(vm.op(f'buffer_load_dwordx4 {l16}, {Rws}, {st} offen sc1 lds'))
    NX0 = 18 if 'xall' in opt else 10 if 'x10' in opt else 7
    for ks in PI[:NX0]: xdma(ks)
    k(f's_mul_i32 {st}, {mb}, 3072\ns_add_u32 {st}, {st}, {sm}\ns_add_u32 {st}, {st}, {O_PST}\ns_add_u32 m0, {sm}, {PSTL}')
    ipst = vm.op(f'buffer_load_dwordx4 {l16}, {Rws}, {st} offen sc1 lds')
    k(f'v_mul_u32_u24 {pa}, 768, {q}\nv_lshl_add_u32 {pa}, {m}, 2, {pa}\nv_add_u32 {pa}, {PSTL}, {pa}')
    aX = [l16, k.v()]; aHr = [k.v(), k.v()]; aH = [k.v(), k.v()]
    k(f'v_add_u32 {aX[1]}, 0x9000, {l16}\nv_add_u32 {aHr[0]}, {HBUF}, {l16}\nv_add_u32 {aHr[1]}, {HBUF + 0x9000}, {l16}')
    for h in range(2):
        k(f's_mul_i32 {st}, {s_w}, 9\ns_add_u32 {st}, {st}, {h}\ns_and_b32 {st1}, {st}, 1\ns_lshl_b32 {st1}, {st1}, 3\ns_lshr_b32 {st}, {st}, 1\ns_lshl_b32 {st}, {st}, 12')
        k(f's_add_u32 {st}, {st}, {st1}\nv_add_u32 {aH[h]}, {st}, {aHr[0]}')
    GC = [RB.sub(8 + 3 * i, 3) for i in range(4)]
    gt = RB.sub(0, 8); hp = [RB.sub(20, 2), RB.sub(22, 2)]
    def gelu_ops(a, ah):
        out = []
        for t_ in range(4):
            c = GC[t_]; x = [a[4 * t_ + e] for e in range(4)]; u = [gt[4 * (t_ & 1) + e] for e in range(4)]; o = hp[t_ & 1]
            out += [f'v_mul_f32 {u[e]}, {x[e]}, {x[e]}' for e in range(4)]
            out += [f'v_fma_f32 {u[e]}, {u[e]}, {c[1]}, {c[0]}' for e in range(4)]
            out += [f'v_mul_f32 {u[e]}, {u[e]}, {x[e]}' for e in range(4)]
            out += [f'v_exp_f32 {u[e]}, {u[e]}' for e in range(4)]
            out += [f'v_fma_f32 {u[e]}, {u[e]}, {c[2]}, {c[2]}' for e in range(4)]
            out += [f'v_rcp_f32 {u[e]}, {u[e]}' for e in range(4)]
            out += [f'v_mul_f32 {u[e]}, {u[e]}, {x[e]}' for e in range(4)]
            out += [f'v_cvt_pk_bf16_f32 {o[0]}, {u[0]}, {u[1]}', f'v_cvt_pk_bf16_f32 {o[1]}, {u[2]}, {u[3]}']
            out.append(f'ds_write_b64 {ah}, {o} offset:{1024 * t_}')
        return out
    def cost(x_):
        if isinstance(x_, tuple): return x_[0]
        return 2 if x_.startswith(('v_exp', 'v_rcp', 'ds_write')) else 1
    def emit(x_):
        if isinstance(x_, tuple): x_[1]()
        elif x_.startswith('ds_'): lg.op(x_)
        elif x_.startswith('buffer_'): vm.op(x_)
        else: k(x_)
    wid = {}; nw = {}; due = []
    from_lds = []; lid = {}
    def refill(r_):
        ks = due.pop()
        if from_lds: lid[r_, ks] = lg.op(f'ds_read_b128 {W[r_].sub(4 * ks, 4)}, {from_lds[0]} offset:{1024 * ks}'); nw[r_, ks] = 0
        else: nw[r_, ks] = vm.op(wld(r_, ks))
    def tile(a, r_, fill, steps=range(18), lead=2, pre=None, post=None, per_step=0, rate=None, load=True, at=None):
        steps = list(steps); nm = 4 * len(steps); n_ = 0; fill = list(fill); at = at or {}
        total = len(steps) * (1.5 + per_step) + sum(cost(x_) for x_ in fill)
        rate = rate or total / nm
        cum = 0
        for i in steps:
            ks = PI[i]
            if i in at: fill += at[i]; cum = max(cum, rate * n_ - 1)
            if pre: pre(i)
            if i % 2 == 0:
                n0 = len(k.l); vm.wait(max(wid.get((r_, PI[j]), 0) for j in (i, i + 1))); cum += len(k.l) - n0
            for t_ in range(4):
                k(f'{MF} {a.sub(4 * t_, 4)}, {W[r_].sub(4 * ks, 4)}, {xf(ks, t_)}, {"0" if i == 0 else a.sub(4 * t_, 4)}')
                n_ += 1
                nxt = 0
                if t_ == 0 and due: refill(r_); cum += 1
                if t_ == 3:
                    if load: due.append(ks)
                    if post: post(i)
                    cum += per_step
                    nxt = i % 2
                while n_ >= lead and fill and cum + nxt + cost(fill[0]) / 2 <= rate * n_: cum += cost(fill[0]); emit(fill.pop(0))
        for x_ in fill: emit(x_)
        if steps[-1] == 17 and due: refill(r_)
        if steps[-1] == 17: wid.update(nw); nw.clear()
    def frag_reads(base, i):
        ks = PI[i]
        return [lg.op(f'ds_read_b128 {xf(ks, t_)}, {base[ks // 9]} offset:{(ks % 9) * 4096 + 1024 * t_}') for t_ in range(4)]
    nxt_tile = lambda: k(f's_add_u32 {sn}, {sn}, 18432')
    rd = {}
    AH = 3 if 'ah3' in opt else 2
    XB = {0: 5, 3: 11, 9: 17} if 'xb3' in opt else {0: 3, 1: 6, 4: 11, 9: 17} if AH == 3 else {0: 2, 1: 6, 5: 11, 10: 17}
    def pre0(i):
        if i in XB: vm.wait(max(ixd[XB[i]], ipst if XB[i] == 17 else 0)); k('s_barrier')
        if i == 0:
            for j in range(AH): rd[j] = frag_reads(aX, j)
        if i + AH < 18: rd[i + AH] = frag_reads(aX, i + AH)
        lg.wait(rd[i][3])
    todo = [(0, lambda ks=ks: xdma(ks)) for ks in PI[NX0:]]
    todo += [(max(i, 9) if 'wlate' in opt else i, lambda ks=PI[i]: wid.__setitem__((0, ks, 'n'), vm.op(wld(0, ks)))) for i in range(18)]
    def post0(i):
        for _ in range(18 if i == 17 else 4 if i < 3 else 3):
            if todo and todo[0][0] <= i: todo.pop(0)[1]()
        if i == 10:
            for j in range(6): idv['p'] = lg.op(f'ds_read2_b32 {t.sub(2 * j, 2)}, {pa} offset0:{32 * j} offset1:{32 * j + 16}')
    class Rec:
        def __init__(self): self.l = []
        def __call__(self, x_): self.l += x_.split('\n')
    rec = Rec()
    for e in (0, 4, 8): rec(f'v_add_f32 {t[e]}, {t[e]}, {t[e + 2]}\nv_add_f32 {t[e + 1]}, {t[e + 1]}, {t[e + 3]}')
    for e in (4, 8): rec(f'v_add_f32 {t[0]}, {t[0]}, {t[e]}\nv_add_f32 {t[1]}, {t[1]}, {t[e + 1]}')
    sigma_bf16(rec, t[0], t[1])
    rec(f'v_cvt_pk_bf16_f32 {t[1]}, {t[1]}, {t[1]}\nv_and_b32 {t[1]}, 0xffff0000, {t[1]}\nv_lshlrev_b32 {t[2]}, 2, {m}')
    c1 = [(1, lambda: lg.wait(idv['p']))] + rec.l
    c1 += [(1, lambda i=i: idv.__setitem__('b', lg.op(f'ds_bpermute_b32 {t[4 + i]}, {t[2]}, {t[1]} offset:{64 * i}'))) for i in range(4)]
    rec = Rec()
    for i in range(4): gelu_consts(rec, t[4 + i], GC[i])
    c2 = [(1, lambda: lg.wait(idv['b']))] + [rec.l[6 * i + j] for j in range(6) for i in range(4)]
    tile(acc[0], 0, [], pre=pre0, post=post0, load=False, rate=2.0, at={12: c1, 16: c2})
    assert not todo
    for ks in range(18): wid[0, ks] = wid.pop((0, ks, 'n'))
    nxt_tile()
    STAMP(8)
    fa_ = k.v(); xc = k.v(3, 1)
    sS = k.s(); sM = k.s()
    k(f's_add_u32 {sS}, {s4}, {4 * 18432}\ns_mul_i32 {sM}, {s_w}, 18432')
    def check(idl, val, tgt, vaddr, base):
        ok = k.label('up'); d0 = None
        vm.wait(idl)
        k(f'v_cmp_gt_u32 vcc, {tgt}, {val}\ns_cmp_eq_u64 vcc, 0\ns_cbranch_scc1 {ok}')
        d0 = vm.done; poll(vaddr, base, tgt, fv=val); vm.done = d0
        k(f'{ok}:')
    STAGE = 'nostage' not in opt
    rd = {}
    for tt in range(1, 9):
        fill = gelu_ops(acc[1 - (tt & 1)], aH[1 - (tt & 1)]) + [f'v_add_u32 {aH[1 - (tt & 1)]}, 4096, {aH[1 - (tt & 1)]}']
        if 4 <= tt <= 7 and STAGE:
            if tt == 4: lg.all(); k('s_barrier')
            for n_, ks in enumerate(range((tt - 4) * 18 // 4, (tt - 3) * 18 // 4)):
                fill[10 + 26 * n_:10 + 26 * n_] = [f's_add_u32 m0, {sM}, {4096 * (ks // 4)}',
                    (1, lambda ks=ks: idv.__setitem__('stage', vm.op(f'buffer_load_dwordx4 {vo[ks // 4]}, {RW}, {sS} offen offset:{1024 * (ks % 4)} sc1 lds')))]
        if tt == 1:
            k(f's_lshr_b32 {so}, {fs}, 1\ns_mul_i32 {so}, {so}, 9\ns_and_b32 {st1}, {fs}, 1\ns_lshl_b32 {st1}, {st1}, 11\ns_lshr_b32 {sm}, {s_w}, 1\ns_lshl_b32 {sm}, {sm}, 8\ns_add_u32 {st1}, {st1}, {sm}')
            k(f's_and_b32 {sm}, {s_w}, 1\ns_lshl_b32 {sm}, {sm}, 3\ns_add_u32 {st1}, {st1}, {sm}\nv_lshrrev_b32 {xc[2]}, 1, {q}\nv_lshl_add_u32 {xc[0]}, {xc[2]}, 10, {st1}')
            k(f'v_lshl_add_u32 {xc[0]}, {m}, 4, {xc[0]}\nv_and_b32 {xc[2]}, 1, {q}\nv_lshl_add_u32 {xc[2]}, {xc[2]}, 2, {xc[0]}')
            for h in range(2):
                k(f's_add_u32 {st}, {so}, {h}\ns_and_b32 {sm}, {st}, 1\ns_lshl_b32 {sm}, {sm}, 9\ns_lshr_b32 {st}, {st}, 1\ns_lshl_b32 {st}, {st}, 12\ns_add_u32 {st}, {st}, {sm}\nv_add_u32 {xc[h]}, {st}, {xc[2]}')
            k(f's_mul_i32 {st}, {s_w}, 2304\ns_add_u32 {st}, {st}, {X1C}\nv_lshl_add_u32 {xc[2]}, {lane}, 2, {st}')
        if 1 <= tt <= 3:
            for t_ in range(3 * tt - 3, 3 * tt):
                def cp(t_=t_): idv['x'] = lg.op(f'ds_read_b32 {pa}, {xc[t_ & 1]} offset:{4096 * (t_ >> 1)}')
                def wr(t_=t_): lg.wait(idv['x']); lg.op(f'ds_write_b32 {xc[2]}, {pa} offset:{256 * t_}')
                n_ = 20 + 33 * (t_ % 3)
                fill[n_:n_] = [(1, cp)]; fill[n_ + 20:n_ + 20] = [(2, wr)]
        if tt == 7: k(f's_mov_b32 {sn}, {s4}')
        if tt in (1, 4, 7, 8): STAMP({1: 1, 4: 2, 7: 3, 8: 4}[tt], 'g3st')
        if tt < 8: tile(acc[tt & 1], tt & 1, fill)
        else:
            lg.all(); k('s_barrier')
            def post8(i):
                if i < 12: rd[i] = frag_reads(aHr, i)
            tile(acc[0], 0, fill, post=post8, per_step=2.7)
        nxt_tile()
    STAMP(9)
    k('s_waitcnt lgkmcnt(0)\ns_barrier'); lg.reset()
    for j in (12, 13): rd[j] = frag_reads(aHr, j)
    tile(acc[1], 1, gelu_ops(acc[0], aH[0]), steps=range(10), lead=1)
    lg.all(); k('s_barrier')
    for j in range(14, 18): rd[j] = frag_reads(aHr, j)
    tile(acc[1], 1, [], steps=range(10, 18), pre=lambda i: lg.wait(rd[i][3]) if i >= 14 else None)
    Rout = k.s(4)
    sp = k.s(); sq = k.s(); sf = k.s(); T0 = k.s(); sl_ = k.s(); po = [gt.sub(0, 4), gt.sub(4, 4)]
    aP, aR, aO = GC[0][0], GC[0][1], GC[0][2]; aL, aLr, aLg = GC[1][0], GC[1][1], GC[1][2]; aOw, aOr = GC[2][0], GC[2][1]; fv = pa; fpa = fa_
    u0, u1, u2 = hp[0][0], hp[0][1], hp[1][0]
    X2L, GBL, OUTB = HBUF, HBUF + 9216, HBUF + 13312
    sx_ = k.s(); mk = [k.s(2), k.s(2)]; own = [k.s(), k.s()]; sp1 = k.s(); OWN = 'noown' not in opt
    setup = f"""s_mov_b32 {Rout[0]}, {P['out'][0]}
s_mov_b32 {Rout[1]}, {P['out'][1]}
s_mov_b32 {Rout[2]}, {L * D * 2}
s_mov_b32 {Rout[3]}, 0x20000
s_lshl_b32 {st}, {fs}, 13
s_mul_i32 {sq}, {mb}, {9 * 65536}
s_add_u32 {sq}, {sq}, {st}
s_add_u32 {sq}, {sq}, {O_PART}
s_mul_i32 {sf}, {mb}, 36
s_lshr_b32 {T0}, {fs}, 1
s_add_u32 {st}, {sf}, {T0}
s_lshl_b32 {st}, {st}, 7
v_mov_b32 {fpa}, {st}
s_add_u32 {sf}, {sf}, {s_w}
s_lshl_b32 {sf}, {sf}, 7
s_add_u32 {sf}, {sf}, {O_FP}
s_mul_i32 {T0}, {T0}, 9
s_lshl_b32 {st}, {s_w}, 8
v_lshl_add_u32 {u0}, {m}, 4, {st}
v_lshl_add_u32 {aP}, {q}, 10, {u0}
v_and_b32 {u1}, 1, {q}
v_lshrrev_b32 {u2}, 1, {q}
v_lshl_add_u32 {u0}, {u2}, 4, {m}
v_lshlrev_b32 {aR}, 3, {u0}
v_lshl_add_u32 {aR}, {u1}, 2, {aR}
s_and_b32 {so}, {fs}, 1
s_lshl_b32 {st}, {mb}, 1
s_add_u32 {so}, {so}, {st}
s_lshl_b32 {so}, {so}, 8
s_lshl_b32 {st}, {s_w}, 14
s_add_u32 {so}, {so}, {st}
v_add_u32 {aR}, {so}, {aR}
s_mul_i32 {sx_}, {s_w}, 2304
s_add_u32 {sx_}, {sx_}, {X2L}
v_lshl_add_u32 {aLr}, {lane}, 2, {sx_}
s_mul_i32 {st}, {s_w}, 1040
s_add_u32 {st}, {st}, {GBL}
v_lshl_add_u32 {aLg}, {u1}, 3, {st}
v_mul_u32_u24 {aOw}, 304, {u0}
v_lshl_add_u32 {aOw}, {u1}, 2, {aOw}
s_lshl_b32 {st}, {s_w}, 3
s_add_u32 {st}, {st}, {OUTB}
v_add_u32 {aOw}, {st}, {aOw}
s_and_b32 {st}, {fs}, 3
s_lshl_b32 {so}, {st}, 4
s_lshl_b64 {mk[0]}, 0xffff, {so}
s_not_b64 {mk[0]}, {mk[0]}
s_cmp_ge_u32 {fs}, 4
s_cselect_b64 {mk[1]}, {mk[0]}, -1
s_cselect_b64 {mk[0]}, -1, {mk[0]}
s_lshl_b32 {st}, {fs}, 8
v_mul_u32_u24 {u0}, 18432, {q}
v_lshl_add_u32 {u0}, {m}, 4, {u0}
v_add_u32 {u0}, {st}, {u0}
v_add_u32 {u1}, {HBUF + 24576}, {l16}
s_lshl_b32 {st}, {s_w}, 1
s_cmp_eq_u32 {st}, {fs}
s_cselect_b64 vcc, -1, 0
s_cselect_b32 {own[0]}, 1, 0
v_cndmask_b32 {aH[0]}, {u1}, {u0}, vcc
s_add_u32 {st}, {st}, 1
s_cmp_eq_u32 {st}, {fs}
s_cselect_b64 vcc, -1, 0
s_cselect_b32 {own[1]}, 1, 0
v_cndmask_b32 {aH[1]}, {u1}, {u0}, vcc""".split('\n')
    k(f's_mul_i32 {sp}, {mb}, {9 * 65536}\ns_lshl_b32 {st}, {s_w}, 14\ns_add_u32 {sp}, {sp}, {st}\ns_lshl_b32 {st}, {fs}, 10\ns_add_u32 {sp}, {sp}, {st}\ns_add_u32 {sp}, {sp}, {O_PART}')
    k(f's_mov_b32 {sl_}, {sM}\nv_add_u32 {aL}, {sM}, {l16}')
    for x_ in (aHr[0], aHr[1], aX[1]): x_.release()
    k(f's_mov_b32 {sp1}, {sp}'); spp = [sp, sp1]
    ids = {}
    def S(t_, a, p):
        out = [f'v_cvt_pk_bf16_f32 {po[p][e]}, {a[8 * p + 2 * e]}, {a[8 * p + 2 * e + 1]}' for e in range(4)]
        if OWN and t_ == 2: out.append((2, lambda: k(f's_cmp_lg_u32 {own[p]}, 0\ns_cselect_b32 {spp[p]}, {WS_USED}, {spp[p]}')))
        out.append((1, lambda: ids.__setitem__(('S', t_), vm.op(f'buffer_store_dwordx4 {po[p]}, {vo[2 * p]}, {Rws}, {spp[p]} offen {PFL}'))))
        if OWN and t_ >= 2: out.append(f'ds_write_b128 {aH[p]}, {po[p]} offset:{2048 * t_}')
        return out + [f's_add_u32 {spp[p]}, {spp[p]}, 65536']
    def G(t_):
        def f():
            if t_ == 8: k(f's_add_u32 {sf}, {sf}, 4096')
            vm.wait(ids['S', t_])
            if OWN and t_ >= 2: lg.all()
            k('s_mov_b64 exec, 1')
            vm.op(f'buffer_atomic_add {one}, {zero}, {Rws}, {sf} offen offset:{512 * (t_ % 8)} sc1')
            k('s_mov_b64 exec, -1')
        return [(4, f)]
    def Lf(t_): return [f's_mov_b32 {st1}, {O_FP + 512 * t_}', (1, lambda: ids.__setitem__(('L', t_), vm.op(f'buffer_load_dword {fv}, {fpa}, {Rws}, {st1} offen sc1')))]
    def dma(lds, va, soff, mask):
        def f():
            if mask: k(f's_mov_b64 exec, {mask}')
            ids['d'] = vm.op(f'buffer_load_dwordx4 {va}, {Rws}, {soff} offen sc1 lds')
            if mask: k('s_mov_b64 exec, -1')
        return [f's_add_u32 m0, {sl_}, {lds}', (3 if mask else 1, f)]
    def C(t_):
        m_ = mk if OWN and t_ >= 2 else [None, None]
        return (dma(2048 * t_, aP, sq, m_[0]) + [f's_add_u32 {st}, {sq}, 4096'] + dma(2048 * t_ + 1024, aP, st, m_[1]) + [f's_add_u32 {sq}, {sq}, 65536']
                + [(0, lambda: ids.__setitem__(('C', t_), ids['d']))])
    def RS(t_): return [f's_add_u32 {st}, {T0}, {t_}', f's_lshl_b32 {st}, {st}, 16', f's_add_u32 {st}, {st}, {O_X2}', f's_add_u32 m0, {sx_}, {256 * t_}',
                        f'buffer_load_dword {aR}, {Rws}, {st} offen sc1 lds']
    def CK(t_): return [(4, lambda: check(ids['L', t_], fv, 8, fpa, O_FP + 512 * t_))]
    def R(t_, Dr, v):
        A_, B_, r_, g_ = Dr
        def rd_():
            vm.wait(ids['C', t_])
            lg.op(f'ds_read_b128 {A_}, {aL} offset:{2048 * t_}'); lg.op(f'ds_read_b128 {B_}, {aL} offset:{2048 * t_ + 1024}')
            lg.op(f'ds_read_b32 {r_[0]}, {aLr} offset:{256 * t_}'); lg.op(f'ds_read_b32 {r_[1]}, {xc[2]} offset:{256 * t_}'); ids['r', t_] = lg.op(f'ds_read_b64 {g_}, {aLg} offset:{64 * t_}')
        out = [(1, lambda: lg.wait(ids['r', t_]))]
        for d in range(4): out += [f'v_lshlrev_b32 {v[2 * d]}, 16, {A_[d]}', f'v_lshlrev_b32 {v[2 * d + 1]}, 16, {B_[d]}']
        for d in range(4): out += [f'v_and_b32 {A_[d]}, 0xffff0000, {A_[d]}', f'v_add_f32 {v[2 * d]}, {v[2 * d]}, {v[2 * d + 1]}', f'v_and_b32 {B_[d]}, 0xffff0000, {B_[d]}']
        out += [f'v_add_f32 {v[2 * d + 1]}, {A_[d]}, {B_[d]}' for d in range(4)]
        out += [f'v_permlane32_swap_b32 {v[e]}, {v[e + 4]}' for e in (0, 2, 1, 3)]
        out += [f'v_add_f32 {v[e]}, {v[e]}, {v[e + 4]}' for e in (0, 2, 1, 3)]
        out += [un(v[4 + e], r_[e >> 1], e & 1) for e in (2, 3)]
        out += [f'v_permlane16_swap_b32 {v[e]}, {v[e + 2]}' for e in range(2)]
        out += [un(v[4 + e], r_[e >> 1], e & 1) for e in (0, 1)]
        out += [f'v_add_f32 {v[e]}, {v[e]}, {v[e + 2]}' for e in range(2)]
        out += [f'v_add_f32 {v[e]}, {v[e]}, {v[e + 6]}' for e in range(2)]
        out += [f'v_fma_f32 {v[e]}, {v[e]}, {g_[e]}, {v[4 + e]}' for e in range(2)]
        out += [f'v_cvt_pk_bf16_f32 {v[4]}, {v[0]}, {v[1]}', f'ds_write_b32 {aOw}, {v[4]} offset:{32 * t_}']
        return [(6, rd_)], out
    SPOS = 9
    for tt in range(1, 9):
        nxt_tile()
        a_ = acc[tt & 1]
        at = {0: S(tt - 1, a_, 0), SPOS: S(tt - 1, a_, 1)}
        add = lambda i, ops: at.__setitem__(i, at.get(i, []) + ops)
        if tt == 1: add(2, setup)
        if tt == 2:
            k('s_barrier')
            add(2, [f's_lshl_b32 {st}, {T0}, 6', f's_add_u32 {st}, {st}, {O_MOD2 + 4608}', f's_lshl_b32 {so}, {s_w}, 10', f's_add_u32 m0, {so}, {GBL}',
                    f'buffer_load_dwordx4 {l16}, {Rws}, {st} offen sc1 lds'])
        if 2 <= tt <= 6: add(4, RS(2 * tt - 4) + (RS(2 * tt - 3) if tt < 6 else []))
        if 'sB' in opt:
            if tt in (3, 5, 6, 7, 8): add(6, G(tt - 2))
            if tt in (4, 6, 7, 8): add(15, Lf(tt - 3))
            if tt in (5, 7): add(12, CK(tt - 4) + C(tt - 5) + C(tt - 4))
            if tt == 8: add(12, CK(4) + C(4))
        elif 'sC' in opt:
            if tt in (4, 6, 7, 8): add(6, G(tt - 2))
            if tt in (6, 7, 8): add(15 if tt > 6 else 8, Lf({6: 2, 7: 4, 8: 5}[tt]))
            if tt == 7: add(1, CK(2) + C(0) + C(1) + C(2))
            if tt == 8: add(12, CK(4) + C(3) + C(4))
        else:
            if tt >= 2: add(6, G(tt - 2))
            if tt >= 4: add(12, CK(tt - 4) + C(tt - 4))
            if tt >= 3: add(15, Lf(tt - 3))
        if tt in (1, 4, 7, 8): STAMP({1: 1, 4: 2, 7: 3, 8: 4}[tt], 'g4st')
        if tt == 2 and STAGE: vm.wait(idv['stage']); from_lds.append(aL)
        tile(acc[1 - (tt & 1)], 1 - (tt & 1), [], rate=2.0, at=at, load=tt < 7)
        if tt == 2 and STAGE: from_lds.clear()
        if tt == 2: lg.all(); k('s_barrier')
    STAMP(10)
    XV.release()
    Dn = [[k.v(4, 2), k.v(4, 2), k.v(2), k.v(2)] for _ in range(9)]; v2 = k.v(8, 2)
    RR = [R(t_, Dn[t_], v2) for t_ in range(9)]
    seq = S(8, acc[1], 0) + S(8, acc[1], 1) + G(7) + CK(5) + C(5) + Lf(6)
    for t_ in range(3): seq += RR[t_][0]
    seq += RR[0][1] + G(8) + RR[1][1] + CK(6) + C(6) + Lf(7) + RR[3][0] + RR[4][0] + RR[2][1] + RR[3][1] + CK(7) + C(7) + Lf(8) + RR[5][0] + RR[4][1] + RR[5][1]
    for x_ in seq: emit(x_)
    u = k.v(3)
    k(f'v_mul_u32_u24 {u[0]}, 3641, v0\nv_lshrrev_b32 {u[0]}, 16, {u[0]}\nv_mul_u32_u24 {u[1]}, 18, {u[0]}\nv_sub_u32 {u[1]}, v0, {u[1]}\nv_lshlrev_b32 {u[1]}, 4, {u[1]}')
    k(f'v_mul_u32_u24 {aOr}, 304, {u[0]}\nv_add_u32 {aOr}, {aOr}, {u[1]}\nv_add_u32 {aOr}, {OUTB}, {aOr}\nv_mul_u32_u24 {aO}, 1152, {u[0]}\nv_add_u32 {aO}, {aO}, {u[1]}')
    k(f's_lshl_b32 {st}, {mb}, 1\ns_and_b32 {so}, {fs}, 1\ns_add_u32 {so}, {so}, {st}\ns_mul_i32 {so}, {so}, {32 * 1152}\ns_lshl_b32 {st}, {T0}, 5\ns_add_u32 {so}, {so}, {st}')
    for x_ in CK(8): emit(x_)
    STAMP(11)
    for x_ in C(8) + RR[6][0] + RR[7][0] + RR[6][1] + RR[7][1] + RR[8][0] + RR[8][1]: emit(x_)
    lg.all(); k('s_barrier')
    o4 = [Dn[0][0], Dn[0][1], Dn[1][0]]
    k(f'v_cmp_gt_u32 vcc, 252, v0\ns_and_b64 exec, exec, vcc')
    io = [lg.op(f'ds_read_b128 {o4[i]}, {aOr} offset:{14 * 304 * i}') for i in range(3)]
    for i in range(3):
        if i == 2: k(f's_cmp_ge_u32 {s_w}, 2\ns_cbranch_scc1 {END}\nv_cmp_gt_u32 vcc, 72, v0\ns_and_b64 exec, exec, vcc')
        lg.wait(io[i])
        k(f'buffer_store_dwordx4 {o4[i]}, {aO}, {Rout}, {so} offen')
        if i < 2: k(f's_add_u32 {so}, {so}, {14 * 1152}')
    STAMP(12)
```

```python
from common import *

N_SIG = 64 + 45
BUF0, BUF1, SVEC = 0, 73728, 147456
K1_LDS = 147456 + 2560
SPIN_MAX = 40000

def vmaps():
    maps = [list(range(16))]
    for s in (1, 2, 3):
        m = list(maps[-1]); step = 1 << s
        new = [step * i for i in range(8, 16)]
        for j in range(16):
            if m[j] % step: m[j] = new.pop(0)
        assert not new
        maps.append(m)
    return maps

def service(k, P, lane, s_w, END, NEXT, SP, opt=()):
    vm, lg = trackers(k)
    Rws = k.s(4); Rdbg = k.s(4); RA = k.s(4); RB = k.s(4)
    srd(k, Rws, P['ws'], WS_USED); srd(k, Rdbg, P['dbg'], 256)
    z4 = k.v(4, 4); zero = z4.sub(0, 2); one = k.v(); l16 = k.v(); q = k.v(); m = k.v()
    fr = k.v(72, 4); sv = k.v(72, 4); acc = k.v(4, 4)
    sav = k.s(2); st = k.s(); cnt = k.s()
    jb = k.s(); modeB = k.s(); blkB = k.s(); srcB = k.s(); strB = k.s()
    L_mod, L_B, L_C = k.label('mod'), k.label('jobB'), k.label('jobC')
    k(f'v_lshrrev_b32 {q}, 4, {lane}\nv_and_b32 {m}, 15, {lane}\nv_lshlrev_b32 {l16}, 4, {lane}')
    cjs = {}
    def common():
        for i in range(4): k(f'v_mov_b32 {z4[i]}, 0')
        k(f'v_mov_b32 {one}, 1\ns_mov_b32 {cnt}, 0')
        k(f's_add_u32 {jb}, s2, 32')
        for lo, val in ((64, -64), (73, -58), (90, None), (91, -82), (97, None), (103, -7)):
            if val is None: k(f's_cmp_ge_u32 s2, {lo}\ns_cselect_b32 {jb}, 200, {jb}')
            else: k(f's_sub_u32 {blkB}, s2, {-val}\ns_cmp_ge_u32 s2, {lo}\ns_cselect_b32 {jb}, {blkB}, {jb}')
        srd(k, RB, P['wmod'], D * 3456 * 2)
        k(f's_mov_b32 {modeB}, 0\ns_cmp_ge_u32 {jb}, 9\ns_cselect_b32 {blkB}, 30, 45\ns_add_u32 {blkB}, {blkB}, {jb}\ns_mov_b32 {strB}, 6912')
        for mode, lo, ptr, nb, st_ in ((2, 15, 'w2', D * D * 2, 1152), (3, 24, 'w3', D * F * 2, 9216), (1, 96, 'w1', D * D * 2, 1152)):
            k(f's_sub_u32 {srcB}, {jb}, {lo}\ns_cmp_ge_u32 {jb}, {lo}')
            k(f's_cselect_b32 {blkB}, {srcB}, {blkB}\ns_cselect_b32 {modeB}, {mode}, {modeB}\ns_cselect_b32 {strB}, {st_}, {strB}')
            k(f's_cselect_b32 {RB[0]}, {P[ptr][0]}, {RB[0]}\ns_cselect_b32 {RB[1]}, {P[ptr][1]}, {RB[1]}\ns_cselect_b32 {RB[2]}, {nb}, {RB[2]}')
        k(f's_lshl_b32 {srcB}, {blkB}, 7')
    def signal(off, last):
        sk = k.label('notlast')
        k(f's_mov_b64 exec, 1\nv_mov_b32 {acc[0]}, 1\nbuffer_atomic_add {acc[0]}, {zero[0]}, {Rdbg}, {off} offen offset:64 sc0 sc1\ns_waitcnt vmcnt(0)')
        k(f'v_readfirstlane_b32 {st}, {acc[0]}\ns_cmp_lg_u32 {st}, {last}\ns_cbranch_scc1 {sk}')
        k(f'buffer_store_dword {one}, {zero[0]}, {Rdbg}, {off} offen offset:192 sc1\n{sk}:\ns_mov_b64 exec, -1')
    cj = ColJob(k, vm, lg, lane, s_w)
    L_w1 = k.label('w1')
    k(f's_cmp_ge_u32 s2, 103\ns_cbranch_scc1 {L_w1}\ns_cmp_ge_u32 s2, 64\ns_cbranch_scc1 {L_mod}')

    srd(k, RA, P['u'], L * D * 2)
    va = k.v(); vx = k.v(2); t = k.v(6); row = k.v(); s1 = k.s()
    k(f's_and_b32 {st}, {s_w}, 1\ns_lshl_b32 {s1}, s2, 1\ns_add_u32 {st}, {st}, {s1}\ns_lshl_b32 {st}, {st}, 4')
    k(f'v_and_b32 {t[0]}, 7, {m}\nv_lshrrev_b32 {t[2]}, 3, {m}\nv_lshl_add_u32 {t[5]}, {t[0]}, 1, {t[2]}\nv_add_u32 {row}, {st}, {t[5]}')
    k(f's_lshr_b32 {s1}, {s_w}, 1\ns_mul_i32 {st}, {s1}, 576\nv_mul_u32_u24 {va}, 1152, {row}\nv_lshl_add_u32 {va}, {q}, 4, {va}')
    for i in range(4): k(f'v_mov_b32 {z4[i]}, 0')
    k(f's_lshl_b32 {sav[0]}, s2, 8\ns_add_u32 {sav[0]}, {sav[0]}, {O_STATS}\ns_cmp_eq_u32 {s_w}, 0\ns_cselect_b32 {sav[0]}, {sav[0]}, {WS_USED}\ns_mov_b64 exec, 0xffff')
    k(f'buffer_store_dwordx4 {z4}, {l16}, {Rws}, {sav[0]} offen sc1\ns_mov_b64 exec, -1')
    k(f's_or_b32 {sav[0]}, s2, {s_w}\ns_cmp_eq_u32 {sav[0]}, 0\ns_mov_b32 {sav[0]}, {O_FW}\ns_cselect_b32 {sav[0]}, {sav[0]}, {WS_USED}')
    k(f'buffer_store_dwordx4 {z4}, {l16}, {Rws}, {sav[0]} offen sc1\nbuffer_store_dwordx4 {z4}, {l16}, {Rws}, {sav[0]} offen offset:1024 sc1\nbuffer_store_dwordx4 {z4}, {l16}, {Rws}, {sav[0]} offen offset:2048 sc1')
    ix = [vm.op(f'buffer_load_dwordx4 {fr.sub(4 * i, 4)}, {va}, {RA}, {st} offen offset:{64 * i}' + (' nt' if 'ntx' in opt else '')) for i in range(9)]
    pf = k.v(2); pfs = k.s(2)
    common()
    ones = sv.sub(40, 4); gacc = sv.sub(36, 4); arr = sv[44]; msk = [k.s(2) for _ in range(3)]
    sk = k.label('noarr')
    k(f's_cmp_lg_u32 {s_w}, 0\ns_cbranch_scc1 {sk}\ns_mov_b64 exec, 1\nv_mov_b32 {arr}, 1\ns_waitcnt vmcnt(9)\nbuffer_atomic_add {arr}, {zero[0]}, {Rdbg}, 0 offen offset:64 sc0 sc1\ns_mov_b64 exec, -1\n{sk}:')
    for i in range(4): k(f'v_mov_b32 {ones[i]}, 0x3f803f80')
    k(f'v_and_b32 {t[0]}, 3, {m}')
    for e in range(3): k(f'v_cmp_eq_u32 {msk[e]}, {e + 1}, {t[0]}')
    k(f's_lshl_b32 {st}, {s_w}, 8\ns_add_u32 {st}, {st}, {SVEC}\nv_lshl_add_u32 {t[3]}, {t[5]}, 2, {st}\nv_lshrrev_b32 {t[0]}, 2, {m}\nv_cmp_eq_u32 vcc, {t[0]}, {q}')
    k(f'v_add_u32 {t[4]}, 128, {t[3]}\nv_add_u32 {t[5]}, 192, {t[3]}\nv_cndmask_b32 {t[4]}, {t[5]}, {t[4]}, vcc')
    k(f'v_lshrrev_b32 {t[0]}, 3, {m}\nv_lshl_add_u32 {t[1]}, {q}, 1, {t[0]}\nv_lshlrev_b32 {vx[0]}, 14, {t[1]}\nv_sub_u32 {t[1]}, {row}, {t[0]}\nv_lshl_add_u32 {vx[0]}, {t[1]}, 3, {vx[0]}')
    k(f's_mul_i32 {s1}, {s1}, {9 * 131072}\ns_add_u32 {s1}, {s1}, {O_XT}\nv_cmp_eq_u32 vcc, 0, {t[0]}')
    dp = 'row_ror:8 row_mask:0xf bank_mask:0xf'
    for i in range(9):
        vm.wait(ix[i])
        if i == 0: SP(8)
        r_ = fr.sub(4 * i, 4); o = sv.sub(4 * i, 4)
        k(f'v_mfma_f32_16x16x32_bf16 {acc}, {ones}, {r_}, {"0" if i == 0 else acc}')
        k(f'v_cndmask_b32_dpp {o[0]}, {r_[2]}, {r_[0]}, vcc {dp}\nv_cndmask_b32_dpp {o[1]}, {r_[3]}, {r_[1]}, vcc {dp}\ns_not_b64 vcc, vcc')
        k(f'v_mfma_f32_16x16x32_bf16 {gacc}, {r_}, {r_}, {"0" if i == 0 else gacc}')
        k(f'v_cndmask_b32_dpp {o[2]}, {r_[0]}, {r_[2]}, vcc {dp}\nv_cndmask_b32_dpp {o[3]}, {r_[1]}, {r_[3]}, vcc {dp}\ns_not_b64 vcc, vcc')
        vm.op(f'buffer_store_dwordx4 {o}, {vx[0]}, {Rws}, {s1} offen sc1')
        if i < 8: k(f's_add_u32 {s1}, {s1}, 131072')
    SP(10)
    k(f'v_cndmask_b32 {t[0]}, {gacc[0]}, {gacc[1]}, {msk[0]}\nv_cndmask_b32 {t[0]}, {t[0]}, {gacc[2]}, {msk[1]}\nv_cndmask_b32 {t[0]}, {t[0]}, {gacc[3]}, {msk[2]}')
    k(f'ds_write_b32 {t[3]}, {acc[0]}\nds_write_b32 {t[4]}, {t[0]}\ns_waitcnt lgkmcnt(0)\ns_barrier')
    a, b = k.label('notw0'), k.label('sigd')
    k(f's_cmp_lg_u32 {s_w}, 0\ns_cbranch_scc1 {a}')
    k(f'v_and_b32 {t[1]}, 1, {q}\nv_lshlrev_b32 {t[1]}, 8, {t[1]}\nv_lshl_add_u32 {t[1]}, {m}, 2, {t[1]}\nv_add_u32 {t[1]}, {SVEC}, {t[1]}')
    k(f'ds_read2_b32 {t[2:4]}, {t[1]} offset0:0 offset1:32\nds_read2_b32 {t[4:6]}, {t[1]} offset0:128 offset1:160')
    sk = k.label('notlast')
    k(f's_waitcnt vmcnt(9)\nv_readfirstlane_b32 {st}, {arr}\ns_cmp_lg_u32 {st}, 102\ns_cbranch_scc1 {sk}')
    k(f's_mov_b64 exec, 1\nbuffer_store_dword {one}, {zero[0]}, {Rdbg}, 0 offen offset:192 sc1\ns_mov_b64 exec, -1\n{sk}:\ns_waitcnt lgkmcnt(0)')
    k(f'v_add_f32 {t[0]}, {t[2]}, {t[4]}\nv_add_f32 {t[2]}, {t[3]}, {t[5]}')
    sigma_bf16(k, t[0], t[2])
    k(f'v_cvt_pk_bf16_f32 {t[2]}, {t[0]}, {t[2]}\nv_mov_b32 {t[3]}, 1\nv_lshlrev_b32 {t[1]}, 3, {lane}\ns_lshl_b32 {st}, s2, 8\ns_add_u32 {st}, {st}, {O_STATS}')
    k(f'{a}:'); SP(14); k('s_waitcnt vmcnt(0)\ns_barrier'); vm.reset()
    k(f's_cmp_lg_u32 {s_w}, 0\ns_cbranch_scc1 {b}')
    k(f's_mov_b32 exec_hi, 0\nbuffer_store_dwordx2 {t[2:4]}, {t[1]}, {Rws}, {st} offen sc1\ns_mov_b64 exec, -1')
    k(f'{b}:'); SP(9)
    for x_ in msk: x_.release()
    cj.dma(RB, srcB, strB, BUF1, True)
    k(f's_lshl_b32 {st}, s2, 2\ns_add_u32 {st}, {st}, {s_w}\ns_lshl_b32 {st}, {st}, 10')
    k(f's_cmp_eq_u32 s2, {O_FW // 4096}\ns_cselect_b32 {st}, {WS_USED}, {st}\nbuffer_store_dwordx4 {z4}, {l16}, {Rws}, {st} offen sc1')
    sk = k.label('nopad')
    k(f's_cmp_lg_u32 {s_w}, 2\ns_cbranch_scc1 {sk}\ns_cmp_ge_u32 s2, 36\ns_cbranch_scc1 {sk}\ns_lshr_b32 {st}, s2, 1\ns_mul_i32 {st}, {st}, {GPL}\ns_bitcmp1_b32 s2, 0\ns_cselect_b32 {sav[0]}, {129 * 1024}, 0')
    k(f's_add_u32 {st}, {st}, {sav[0]}\ns_add_u32 {st}, {st}, {O_G}\nbuffer_store_dwordx4 {z4}, {l16}, {Rws}, {st} offen sc1\n{sk}:')
    k(f's_branch {L_B}')
    for x_ in (va, vx, t, row, s1): x_.release()

    def mod_tail(ids, s_blk, sig, gran=False):
        t = k.v(2); vg = k.v(); s1 = k.s()
        for s in range(18):
            if s % 2 == 0: lg.wait(ids[s + 1])
            k(f'v_mfma_f32_16x16x32_bf16 {acc}, {sv.sub(4 * s, 4)}, {fr.sub(4 * s, 4)}, {"0" if s == 0 else acc}')
        k(f's_lshl_b32 {s1}, {s_w}, 6\ns_add_u32 {s1}, {s1}, {SVEC + 2048}\nv_lshl_add_u32 {vg}, {m}, 2, {s1}')
        k(f'v_cvt_pk_bf16_f32 {t[0]}, {acc[0]}, {acc[0]}\nv_and_b32 {t[0]}, 0xffff0000, {t[0]}')
        k(f'v_add_f32 {t[1]}, 1.0, {t[0]}\nv_cvt_pk_bf16_f32 {t[1]}, {t[1]}, {t[1]}\nv_and_b32 {t[1]}, 0xffff0000, {t[1]}')
        k(f's_mov_b64 vcc, 0\ns_sub_u32 {s1}, {s_blk}, 9\ns_cmp_lt_u32 {s1}, 9\ns_cselect_b64 vcc, -1, vcc')
        k(f's_sub_u32 {s1}, {s_blk}, 36\ns_cmp_lt_u32 {s1}, 9\ns_cselect_b64 vcc, -1, vcc')
        k(f'v_cndmask_b32 {t[0]}, {t[0]}, {t[1]}, vcc\nds_write_b32 {vg}, {t[0]}\ns_waitcnt lgkmcnt(0)\ns_barrier'); lg.reset()
        a, b = k.label('notw0'), k.label('nob')
        k(f's_cmp_lg_u32 {s_w}, 0\ns_cbranch_scc1 {a}')
        k(f'v_lshlrev_b32 {vg}, 3, {lane}\nv_add_u32 {t[0]}, {SVEC + 2048}, {vg}\nds_read_b64 {t}, {t[0]}\ns_lshl_b32 {s1}, {s_blk}, 8\ns_add_u32 {s1}, {s1}, {O_MODF}')
        k(f's_mov_b32 exec_hi, 0')
        if gran:
            k(f's_lshl_b32 {sav[0]}, {s_blk}, 9\ns_add_u32 {sav[0]}, {sav[0]}, {O_MODG}\nv_mov_b32 {acc[1]}, 1\nv_mov_b32 {acc[3]}, 1\ns_waitcnt lgkmcnt(0)')
            k(f'v_mov_b32 {acc[0]}, {t[0]}\nv_mov_b32 {acc[2]}, {t[1]}\nbuffer_store_dwordx4 {acc}, {l16}, {Rws}, {sav[0]} offen sc1')
        k(f's_waitcnt lgkmcnt(0)\nbuffer_store_dwordx2 {t}, {vg}, {Rws}, {s1} offen sc1')
        if sig:
            k(f's_sub_u32 {s1}, {s_blk}, 27\ns_cmp_ge_u32 {s1}, 18\ns_cbranch_scc1 {a}')
            k(f'v_cvt_pk_bf16_f32 {acc[0]}, {t[0]}, {t[1]}\nv_lshrrev_b32 {vg}, 1, {vg}\ns_lshl_b32 {s1}, {s1}, 7\ns_add_u32 {s1}, {s1}, {O_MODB}')
            k(f'buffer_store_dword {acc[0]}, {vg}, {Rws}, {s1} offen sc1\ns_waitcnt vmcnt(0)')
            signal(12, 17)
        k(f'{a}:\ns_mov_b64 exec, -1')
        t.release(); vg.release(); s1.release()

    k(f'{L_mod}:')
    vm, lg = trackers(k); cj.vm, cj.lg = vm, lg
    blkA = k.s(); srcA = k.s(); strA = k.s(); Rc = k.s(4)
    srd(k, RA, P['wmod'], D * 3456 * 2); srd(k, Rc, P['c'], D * 2)
    k(f's_sub_u32 {blkA}, s2, 64')
    k(f's_lshl_b32 {srcA}, {blkA}, 7\ns_mov_b32 {strA}, 6912')
    t = k.v(8); vg = k.v()
    k(f'v_lshlrev_b32 {vg}, 3, v0')
    for i in range(4): k(f'v_mov_b32 {z4[i]}, 0')
    k(f's_lshl_b32 {st}, {blkA}, 9\ns_add_u32 {st}, {st}, {O_MODG}\ns_cmp_eq_u32 {s_w}, 0\ns_cselect_b32 {st}, {st}, {WS_USED}\ns_mov_b32 exec_hi, 0')
    icl = vm.op(f'buffer_store_dwordx4 {z4}, {l16}, {Rws}, {st} offen sc1')
    k('s_mov_b64 exec, -1')
    ic = vm.op(f'buffer_load_dwordx2 {t[0:2]}, {vg}, {Rc}, 0 offen')
    ia = cj.dma(RA, srcA, strA, BUF0, 'ntm' in opt)
    common()
    vm.wait(ic)
    sk = k.label('noarr')
    k(f's_cmp_lg_u32 {s_w}, 0\ns_cbranch_scc1 {sk}\ns_mov_b64 exec, 1\nv_mov_b32 {acc[1]}, 1\nbuffer_atomic_add {acc[1]}, {zero[0]}, {Rdbg}, 0 offen offset:64 sc0 sc1\ns_mov_b64 exec, -1\n{sk}:')
    k(f'v_lshlrev_b32 {t[2]}, 16, {t[0]}\nv_and_b32 {t[3]}, 0xffff0000, {t[0]}\nv_lshlrev_b32 {t[4]}, 16, {t[1]}\nv_and_b32 {t[5]}, 0xffff0000, {t[1]}')
    e = k.v(4)
    for i in range(4): k(f'v_mul_f32 {e[i]}, {fl(-LOG2E)}, {t[2 + i]}')
    for i in range(4): k(f'v_exp_f32 {e[i]}, {e[i]}')
    for i in range(4): k(f'v_add_f32 {e[i]}, 1.0, {e[i]}')
    for i in range(4): k(f'v_rcp_f32 {e[i]}, {e[i]}')
    for i in range(4): k(f'v_mul_f32 {e[i]}, {e[i]}, {t[2 + i]}')
    k(f'v_cvt_pk_bf16_f32 {t[0]}, {e[0]}, {e[1]}\nv_cvt_pk_bf16_f32 {t[1]}, {e[2]}, {e[3]}\nv_add_u32 {vg}, {SVEC}, {vg}')
    k(f'ds_write_b64 {vg}, {t[0:2]}\nv_lshlrev_b32 {vg}, 4, {q}\nv_add_u32 {vg}, {SVEC}, {vg}\ns_waitcnt lgkmcnt(0)\ns_barrier')
    for s in range(18): lg.op(f'ds_read_b128 {sv.sub(4 * s, 4)}, {vg} offset:{64 * s}')
    ad = cj.addr(BUF0)
    sk = k.label('notlast')
    k(f's_waitcnt vmcnt(0) lgkmcnt(0)\ns_cmp_lg_u32 {s_w}, 0\ns_cbranch_scc1 {sk}\nv_readfirstlane_b32 {st}, {acc[1]}\ns_cmp_lg_u32 {st}, 102\ns_cbranch_scc1 {sk}')
    k(f's_mov_b64 exec, 1\nbuffer_store_dword {one}, {zero[0]}, {Rdbg}, 0 offen offset:192 sc1\ns_mov_b64 exec, -1\n{sk}:\ns_barrier'); SP(10); vm.reset(); lg.reset()
    ids = cj.reads(ad, fr)
    sk = k.label('lateB')
    k(f's_cmp_lt_u32 {blkA}, 27\ns_cbranch_scc1 {sk}\ns_cmp_ge_u32 {jb}, 200\ns_cbranch_scc1 {sk}')
    cj.dma(RB, srcB, strB, BUF1)
    k(f'{sk}:')
    mod_tail(ids, blkA, True, True); SP(11)
    k(f's_cmp_ge_u32 {jb}, 200\ns_cbranch_scc1 {L_C}\ns_cmp_ge_u32 {blkA}, 27\ns_cbranch_scc1 {sk}_w')
    cj.dma(RB, srcB, strB, BUF1, True)
    k(f'{sk}_w:\ns_waitcnt vmcnt(0)\ns_branch {L_B}')
    e.release(); t.release(); vg.release()

    k(f'{L_w1}:')
    common()
    cj.dma(RB, srcB, strB, BUF1, 'nt1' in opt)
    k('s_waitcnt vmcnt(0)')

    k(f'{L_B}:')
    vm, lg = trackers(k); cj.vm, cj.lg = vm, lg
    k(f's_waitcnt vmcnt(1) lgkmcnt(0)\ns_barrier')
    SP(12)
    il = k.s(); k(f's_sub_u32 {il}, {modeB}, 1\ns_cmp_lt_u32 {il}, 2\ns_cselect_b32 {il}, 1, 0')
    ids = cj.read(BUF1, fr, s_il=il)
    notmod, nocenter = k.label('notmod'), k.label('nocenter')
    k(f's_cmp_lg_u32 {modeB}, 0\ns_cbranch_scc1 {notmod}')
    mod_tail(ids, blkB, True)
    k(f's_branch {L_C}\n{notmod}:')
    k('s_waitcnt lgkmcnt(0)'); lg.reset()
    k(f's_bitcmp0_b32 {modeB}, 0\ns_cbranch_scc1 {nocenter}')
    ones = sv.sub(0, 4); t = k.v(4); gof = k.v(4, 4)
    go2_ld = f'buffer_load_dwordx4 {gof}, {zero[0]}, {Rdbg}, 0 offen offset:192 sc1'
    k(go2_ld)
    for i in range(4): k(f'v_mov_b32 {ones[i]}, 0x3f803f80')
    for s in range(18): k(f'v_mfma_f32_16x16x32_bf16 {acc}, {ones}, {fr.sub(4 * s, 4)}, {"0" if s == 0 else acc}')
    nm = sv.sub(4, 2)
    k(f'v_mul_f32 {nm[0]}, {fl(-1 / 576)}, {acc[0]}')
    for i in range(0, 72, 2):
        k(f'v_lshlrev_b32 {t[0]}, 16, {fr[i]}\nv_and_b32 {t[1]}, 0xffff0000, {fr[i]}')
        k(f'v_lshlrev_b32 {t[2]}, 16, {fr[i + 1]}\nv_and_b32 {t[3]}, 0xffff0000, {fr[i + 1]}')
        k(f'v_pk_add_f32 {t[0:2]}, {t[0:2]}, {nm} op_sel_hi:[1,0]\nv_pk_add_f32 {t[2:4]}, {t[2:4]}, {nm} op_sel_hi:[1,0]')
        k(f'v_cvt_pk_bf16_f32 {fr[i]}, {t[0]}, {t[1]}\nv_cvt_pk_bf16_f32 {fr[i + 1]}, {t[2]}, {t[3]}')
    k(f'{nocenter}:')
    T = k.s(); j = k.s(); dst = k.s(); step = k.s(); rot = k.s()
    k(f's_lshl_b32 {T}, {blkB}, 2\ns_add_u32 {T}, {T}, {s_w}')
    k(f's_mul_hi_u32 {j}, {T}, {(1 << 32) // 6 + 1}\ns_mul_i32 {dst}, {j}, 6\ns_sub_u32 {dst}, {T}, {dst}\ns_lshl_b32 {dst}, {dst}, 10')
    k(f's_mul_i32 {step}, {j}, 110592\ns_add_u32 {dst}, {dst}, {step}')
    k(f's_mul_i32 {rot}, {j}, 3\ns_sub_u32 {rot}, 18, {rot}\ns_cmp_eq_u32 {rot}, 18\ns_cselect_b32 {rot}, 0, {rot}')
    k(f's_cmp_eq_u32 {modeB}, 1\ns_cselect_b32 {rot}, {rot}, 0\ns_cselect_b32 {step}, 0, {O_W2F - O_W1F}\ns_add_u32 {dst}, {dst}, {step}\ns_add_u32 {dst}, {dst}, {O_W1F}')
    k(f's_mul_i32 {j}, {T}, 18432\ns_add_u32 {j}, {j}, {O_W3F}')
    k(f's_cmp_ge_u32 {modeB}, 3\ns_cselect_b32 {dst}, {j}, {dst}\ns_cselect_b32 {step}, 1, 6\ns_lshl_b32 {step}, {step}, 10')
    notw1, L_st = k.label('notw1'), k.label('stored')
    k(f's_cmp_lg_u32 {modeB}, 1\ns_cbranch_scc1 {notw1}')
    cj.store(fr, None, Rws, dst, step, s_rot=rot)
    sk = k.label('nosig')
    k(f's_waitcnt vmcnt(0)\ns_barrier\ns_cmp_lg_u32 {s_w}, 0\ns_cbranch_scc1 {sk}')
    signal(8, 8)
    k(f'{sk}:')
    lp, ok = k.label('pollm'), k.label('gotm')
    k(f'{lp}:\ns_waitcnt vmcnt(0)\nv_readfirstlane_b32 {st}, {gof[3]}\ns_cmp_ge_u32 {st}, 1\ns_cbranch_scc1 {ok}')
    k(f's_sleep 2\n{go2_ld}\ns_add_u32 {cnt}, {cnt}, 1\ns_cmp_lt_u32 {cnt}, {SPIN_MAX}\ns_cbranch_scc1 {lp}\ns_branch {END}\n{ok}:'); vm.reset()
    k(f'v_and_b32 {t[0]}, 1, {m}\nv_xor_b32 {t[0]}, 1, {t[0]}\nv_mul_u32_u24 {t[0]}, 1152, {t[0]}\nv_lshl_add_u32 {t[0]}, {q}, 4, {t[0]}\ns_mov_b32 {st}, {O_MODB}')
    ids = [vm.op(f'buffer_load_dwordx4 {sv.sub(4 * s, 4)}, {t[0]}, {Rws}, {st} offen offset:{64 * s} sc1') for s in range(18)]
    k(f's_lshr_b32 {j}, {s_w}, 1\ns_lshl_b32 {j}, {j}, 7\ns_and_b32 {st}, {s_w}, 1\ns_lshl_b32 {st}, {st}, 4\ns_add_u32 {j}, {j}, {st}\ns_add_u32 {j}, {j}, {SVEC}')
    k(f'v_lshrrev_b32 {t[1]}, 2, {m}\nv_and_b32 {t[2]}, 3, {m}\nv_lshlrev_b32 {t[2]}, 2, {t[2]}\nv_lshl_add_u32 {t[1]}, {t[1]}, 5, {t[2]}\nv_add_u32 {t[1]}, {j}, {t[1]}')
    for s in range(18):
        vm.wait(ids[s])
        k(f'v_mfma_f32_16x16x32_bf16 {acc}, {sv.sub(4 * s, 4)}, {fr.sub(4 * s, 4)}, {"0" if s == 0 else acc}')
    k(f'ds_write2st64_b32 {t[1]}, {acc[0]}, {acc[1]} offset0:0 offset1:1\ns_waitcnt lgkmcnt(0)\ns_barrier\ns_cmp_lg_u32 {s_w}, 0\ns_cbranch_scc1 {L_st}')
    k(f'v_add_u32 {t[0]}, {SVEC}, {l16}\nds_read_b128 {acc}, {t[0]}\nv_mul_u32_u24 {t[1]}, 2304, {q}\nv_lshl_add_u32 {t[1]}, {m}, 4, {t[1]}')
    k(f's_lshl_b32 {j}, {blkB}, 8\ns_add_u32 {j}, {j}, {O_MODF + 6 * 2304}\ns_mov_b32 exec_hi, 0\ns_waitcnt lgkmcnt(0)')
    k(f'buffer_store_dwordx4 {acc}, {t[1]}, {Rws}, {j} offen sc1\ns_mov_b64 exec, -1')
    k(f'{L_st}:\ns_branch {L_C}')
    k(f'{notw1}:'); vm.reset()
    cj.store(fr, None, Rws, dst, step, s_rot=rot)
    k(f'{L_C}:'); SP(13)
    code_prefetch(k, None, NEXT, END, 60000, 'v0', pf, pfs)
    k(f's_branch {NEXT}')

TAB, KD = 0, 17408

def conv(k, P, lane, s_w, END, NEXT, dump, SP, opt=()):
    vm, lg = trackers(k)
    cidx = k.s(); s_d = k.s(); st = k.s(); st2 = k.s(); sav = k.s(2)
    k(f's_and_b32 {cidx}, s2, 7\ns_mul_i32 {cidx}, {cidx}, 18\ns_lshr_b32 {st}, s2, 3\ns_add_u32 {cidx}, {cidx}, {st}\ns_sub_u32 {cidx}, {cidx}, 14')
    k(f's_lshl_b32 {s_d}, {cidx}, 2\ns_add_u32 {s_d}, {s_d}, {s_w}\ns_lshl_b32 {st}, {cidx}, 3')
    sdt = k.s(2); sD = k.s(2)
    k(f's_load_dwordx2 {sdt}, {P["logdt"]}, {st}\ns_load_dwordx2 {sD}, {P["Dskip"]}, {st}')
    R = k.s(4); Rws = k.s(4); Rdbg = k.s(4)
    par = k.v(4); t = k.v(8); x = k.v(16)
    k(f'v_lshlrev_b32 {t[0]}, 2, {lane}\ns_lshl_b32 {st2}, {s_d}, 8')
    for i, n in enumerate(('logA', 'Aim', 'Cr', 'Ci')):
        srd(k, R, P[n], D * 128 * 2)
        ipar = vm.op(f'buffer_load_dword {par[i]}, {t[0]}, {R}, {st2} offen' + (' nt' if 'ntp' in opt else ''))
    srd(k, Rws, P['ws'], WS_USED); srd(k, Rdbg, P['dbg'], 256)
    wb = k.s(); k(f's_mul_i32 {wb}, {s_w}, {WSTR}')
    q = k.v(); m = k.v(); ag = k.v(); am = k.v(); a4 = k.v(); fl_v = k.v(2)
    k(f'v_lshrrev_b32 {q}, 4, {lane}\nv_and_b32 {m}, 15, {lane}')
    ga = k.v(32); cst = k.v()
    k(f's_add_u32 {st2}, {wb}, {KD - 2 * (134 * 128 - 128)}\nv_mov_b32 {cst}, {st2}')
    k(f'v_lshlrev_b32 {t[2]}, 3, {lane}\nv_cvt_f32_u32 {t[2]}, {t[2]}')
    for c in range(4):
        for e in range(0, 8, 2):
            k(f'v_add_f32 {t[4]}, {fl(512 * c + e)}, {t[2]}\nv_add_f32 {t[5]}, {fl(512 * c + e + 1)}, {t[2]}\nv_cvt_pk_bf16_f32 {t[4]}, {t[4]}, {t[5]}')
            k(f'v_mad_u32_u16 {ga[8 * c + e]}, {t[4]}, 2, {cst}\nv_mad_u32_u16 {ga[8 * c + e + 1]}, {t[4]}, 2, {cst} op_sel:[1,0,0,0]')
    k(f's_add_u32 {st2}, {wb}, {KD}\nv_lshl_add_u32 {t[4]}, {lane}, 4, {st2}\nv_cmp_gt_u32 vcc, 16, {lane}')
    for e in range(8): k(f'v_add_u32 {t[5]}, {2 * e}, {t[4]}\nv_cndmask_b32 {ga[e]}, {ga[e]}, {t[5]}, vcc')
    VM = vmaps()
    kda = k.v(4)
    k(f'v_lshlrev_b32 {t[2]}, 2, {m}')
    for s in range(4):
        lut = sum((VM[s][j] >> s) << (4 * j) for j in range(16))
        base = 0 if s == 0 else 128 + 128 * s
        k(f's_mov_b32 {sav[0]}, {lut & 0xffffffff}\ns_mov_b32 {sav[1]}, {lut >> 32}\nv_lshrrev_b64 {t[4:6]}, {t[2]}, {sav}\nv_and_b32 {t[4]}, 15, {t[4]}')
        k(f'v_lshl_add_u32 {t[4]}, {q}, 6, {t[4]}\ns_add_u32 {st2}, {wb}, {KD + 2 * base}\nv_lshl_add_u32 {kda[s]}, {t[4]}, 1, {st2}')
    cst.release()
    atw = k.v(); atr = k.v()
    k(f'v_lshl_add_u32 {atw}, {lane}, 3, {wb}\nv_mul_u32_u24 {atr}, 544, {m}\nv_lshl_add_u32 {atr}, {q}, 4, {atr}\nv_add_u32 {atr}, {wb}, {atr}')
    z4 = k.v(4)
    for i in range(4): k(f'v_mov_b32 {z4[i]}, 0')
    k(f'v_lshrrev_b32 {t[4]}, 5, v0\nv_mul_u32_u24 {t[4]}, {HSTR}, {t[4]}\nv_and_b32 {t[5]}, 31, v0\nv_lshl_add_u32 {t[4]}, {t[5]}, 4, {t[4]}\nv_add_u32 {t[4]}, {HB}, {t[4]}')
    k(f'v_cmp_gt_u32 vcc, 128, v0\ns_and_saveexec_b64 {sav}, vcc\nds_write_b128 {t[4]}, {z4}\ns_mov_b64 exec, {sav}')
    k('s_waitcnt lgkmcnt(0)')
    k(f's_lshl_b32 {st2}, {s_w}, 4\ns_lshr_b64 {sdt}, {sdt}, {st2}\ns_lshl_b32 {sdt[0]}, {sdt[0]}, 16')
    dt = k.v(); ks = k.v()
    k(f'v_mov_b32 {dt}, {fl(LOG2E)}\nv_mul_f32 {dt}, {sdt[0]}, {dt}\nv_exp_f32 {dt}, {dt}\nv_cvt_pk_bf16_f32 {dt}, {dt}, {dt}\nv_and_b32 {dt}, 0xffff0000, {dt}')
    SP(1); vm.wait(ipar); SP(2)
    pr = lambda: [k.v(2), k.v(2)]
    w1, w16, U = pr(), pr(), pr()
    er = k.v(2); rev = k.v(2)
    un = lambda d, s_, hi: f'v_and_b32 {d}, 0xffff0000, {s_}' if hi else f'v_lshlrev_b32 {d}, 16, {s_}'
    for md in range(2):
        k(un(er[md], par[0], md)); k(un(rev[md], par[1], md)); k(un(U[0][md], par[2], md)); k(un(U[1][md], par[3], md))
    for md in range(2): k(f'v_mul_f32 {er[md]}, {fl(LOG2E)}, {er[md]}')
    for md in range(2): k(f'v_exp_f32 {er[md]}, {er[md]}')
    k(f'v_max3_f32 {t[0]}, |{U[0][0]}|, |{U[0][1]}|, |{U[1][0]}|\nv_max_f32 {t[0]}, |{U[1][1]}|, {t[0]}')
    k(f'v_cvt_pk_bf16_f32 {t[1]}, {er[0]}, {er[1]}')
    for mm in ('quad_perm:[1,0,3,2]', 'quad_perm:[2,3,0,1]', 'row_half_mirror', 'row_mirror'):
        k(f'v_max_f32_dpp {t[0]}, {t[0]}, {t[0]} {mm} row_mask:0xf bank_mask:0xf')
    for md in range(2):
        k(un(er[md], t[1], md))
        k(f'v_mul_f32 {er[md]}, {er[md]}, {dt}\nv_mul_f32 {rev[md]}, {rev[md]}, {dt}')
        k(f'v_mul_f32 {er[md]}, {fl(-LOG2E)}, {er[md]}\nv_mul_f32 {rev[md]}, 0.15915494, {rev[md]}')
    k(f'v_readlane_b32 {st2}, {t[0]}, 0\nv_readlane_b32 {sav[0]}, {t[0]}, 16\nv_readlane_b32 {sav[1]}, {t[0]}, 32\nv_readlane_b32 {st}, {t[0]}, 48')
    k(f's_max_u32 {st2}, {st2}, {sav[0]}\ns_max_u32 {st}, {st}, {sav[1]}\ns_max_u32 {st2}, {st2}, {st}')
    for w_, mul in ((w1, None), (w16, '16.0')):
        for md in range(2):
            a, b = t[2 + md], t[4 + md]
            if mul: k(f'v_mul_f32 {a}, {fl(16.)}, {er[md]}\nv_mul_f32 {b}, {fl(16.)}, {rev[md]}\nv_fract_f32 {b}, {b}\nv_exp_f32 {a}, {a}')
            else: k(f'v_fract_f32 {b}, {rev[md]}\nv_exp_f32 {a}, {er[md]}')
            k(f'v_cos_f32 {w_[0][md]}, {b}\nv_sin_f32 {w_[1][md]}, {b}')
        for c in range(2): k(f'v_pk_mul_f32 {w_[c]}, {w_[c]}, {t[2:4]}')
    k(f'v_frexp_exp_i32_f32 {t[0]}, {st2}\nv_sub_u32 {t[1]}, 8, {t[0]}\nv_add_u32 {t[0]}, -7, {t[0]}\nv_ldexp_f32 {ks}, {dt}, {t[0]}')
    for md in range(2):
        for c in range(2): k(f'v_ldexp_f32 {U[c][md]}, {U[c][md]}, {t[1]}')
    er.release(); rev.release(); dt.release()
    tm = [k.v(2) for _ in range(4)]
    def cmul(d, z, s_, ta, tb):
        return [f'v_pk_mul_f32 {ta}, {z[1]}, {s_[1]}', f'v_pk_mul_f32 {tb}, {z[0]}, {s_[1]}',
                f'v_pk_fma_f32 {d[0]}, {z[0]}, {s_[0]}, {ta} neg_lo:[0,0,1] neg_hi:[0,0,1]', f'v_pk_fma_f32 {d[1]}, {z[1]}, {s_[0]}, {tb}']
    w32, w64, w128, w2, w4, w8, V = pr(), pr(), pr(), pr(), pr(), pr(), pr()
    for d_, s_ in ((w32, w16), (w64, w32), (w128, w64)):
        for x_ in cmul(d_, s_, s_, tm[0], tm[1]): k(x_)
    pv = [k.v(2), k.v(2)]; pu = [k.v(2), k.v(2)]
    fa = k.v(32, 4); fb = k.v(32, 4); kacc = k.v(16, 4)
    state = {'V': None, 'nv': 0, 'nu': 0}
    def v_entry(val, slot):
        out = []
        pk = pv[state['nv'] & 1]; state['nv'] += 1
        if val == 0:
            out += [f'v_mov_b32 {pk[0]}, 0x3c00', f'v_mov_b32 {pk[1]}, 0x3c00']
        else:
            if val == 1: cur = w1
            else:
                step = w1 if val <= 16 else w2 if val <= 32 else w4 if val <= 64 else w8
                cur = {2: w2, 4: w4, 8: w8}.get(val, V)
                out += cmul(cur, state['V'], step, tm[0], tm[1])
            state['V'] = cur
            out += [f'v_cvt_pk_f16_f32 {pk[md]}, {cur[0][md]}, {cur[1][md]}' for md in range(2)]
        out.append(('ds', f'ds_write_b64 {atw}, {pk} offset:{TAB + slot * 544}'))
        return out
    def u_entry(val, row):
        out = []
        pk = pu[state['nu'] & 1]; state['nu'] += 1
        if val:
            step = w16 if val <= 256 else w32 if val <= 512 else w64 if val <= 1024 else w128
            out += cmul(U, U, step, tm[2], tm[3])
        out += [f'v_cvt_pk_f16_f32 {pk[md]}, {U[0][md]}, -{U[1][md]}' for md in range(2)]
        out.append(('ds', f'ds_write_b64 {atw}, {pk} offset:{TAB + (16 + row) * 544}'))
        return out
    def put(x_):
        if isinstance(x_, tuple): return lg.op(x_[1])
        k(x_)
    pend = []
    flag_ld = f'buffer_load_dwordx2 {fl_v}, {z4[0]}, {Rdbg}, 0 offen offset:192 sc1'
    ifl = None
    for s in range(4):
        vs = sorted((VM[s][j], j) for j in range(16) if s == 0 or VM[s][j] != VM[s - 1][j])
        us = [16 * u for u in range(16)] if s == 0 else [(128 << s) + (16 << s) * u for u in range(9 if s == 3 else 8)]
        sv_ = [x_ for val, j in vs for x_ in v_entry(val, j)]
        su_ = [x_ for r_, val in enumerate(us) for x_ in u_entry(val, r_)]
        stream = interleave(sv_, su_)
        for n_, x_ in enumerate(stream):
            put(x_)
            if n_ == 27:
                while pend:
                    idr, mf = pend.pop(0); lg.wait(idr); k(mf)
            if s == 3 and n_ == 40: k(flag_ld)
        assert not pend
        for kk in range(8):
            lg.op(f'ds_read_b128 {fa.sub(4 * kk, 4)}, {atr} offset:{TAB + 16 * 544 + 64 * kk}')
            i_ = lg.op(f'ds_read_b128 {fb.sub(4 * kk, 4)}, {atr} offset:{TAB + 64 * kk}')
            ac = kacc.sub(4 * s, 4)
            pend.append((i_, f'v_mfma_f32_16x16x32_f16 {ac}, {fa.sub(4 * kk, 4)}, {fb.sub(4 * kk, 4)}, {"0" if kk == 0 else ac}'))
    for x_ in (w1, w16, w32, w64, w128, w2, w4, w8, V, U, tm, pv, pu):
        for y_ in x_: y_.release()
    md_ = k.v(16, 4); sg = md_; cnt = k.s(); mg = par.sub(0, 2); amg = par[2]
    k(f'v_lshrrev_b32 {amg}, 2, {m}\nv_min_u32 {amg}, 2, {amg}\nv_mul_u32_u24 {amg}, 4608, {amg}\nv_and_b32 {mg[0]}, 3, {m}\nv_lshl_add_u32 {amg}, {mg[0]}, 3, {amg}')
    def kd_out(s):
        ac = kacc.sub(4 * s, 4)
        for e in range(4): k(f'v_mul_f32 {ac[e]}, {ks}, {ac[e]}')
        k(f'v_cvt_pk_bf16_f32 {ac[0]}, {ac[0]}, {ac[1]}\nv_cvt_pk_bf16_f32 {ac[2]}, {ac[2]}, {ac[3]}')
        for e in range(4): lg.op(f'ds_write_b16{"_d16_hi" if e & 1 else ""} {kda[s]}, {ac[e & 2]} offset:{32 * e}')
    for s in range(3): kd_out(s)
    SP(3); lg.reset() if SP.on else None
    got = k.s()
    def x_loads():
        k(f's_lshl_b32 {st}, {cidx}, 14\ns_add_u32 {st}, {st}, {O_XT}')
        for i in range(4):
            k(f'buffer_load_dwordx4 {x.sub(4 * i, 4)}, {ag}, {Rws}, {st} offen sc1')
            if i < 3: k(f's_add_u32 {st}, {st}, 4096')
    def gran_loads():
        for i in range(4): k(f's_mov_b32 {st}, {O_STATS + 4096 * i}\nbuffer_load_dwordx4 {sg.sub(4 * i, 4)}, {ag}, {Rws}, {st} offen sc1')
        mod_loads()
    def gran_check():
        k(f's_waitcnt vmcnt(0)\nv_and_b32 {am}, {sg[1]}, {sg[3]}')
        for i in (5, 9, 13): k(f'v_bitop3_b32 {am}, {am}, {sg[i]}, {sg[i + 2]} bitop3:0x80')
        k(f'v_cmp_ne_u32 vcc, 1, {am}\ns_cmp_eq_u64 vcc, 0')
    def mod_loads():
        k(f's_lshl_b32 {st}, {cidx}, 5\ns_add_u32 {st}, {st}, {O_MODG}')
        k(f'buffer_load_dwordx2 {mg}, {amg}, {Rws}, {st} offen sc1')
    def spin(i, flag_ld):
        lp, ok = k.label('poll'), k.label('go')
        k(f'{lp}:\nv_readfirstlane_b32 {st}, {fl_v[i]}\ns_cmp_ge_u32 {st}, 1\ns_cbranch_scc1 {ok}')
        k(f's_sleep 4\n{flag_ld}\ns_add_u32 {cnt}, {cnt}, 1\ns_cmp_lt_u32 {cnt}, {SPIN_MAX}\ns_waitcnt vmcnt(0)\ns_cbranch_scc1 {lp}\ns_branch {END}\n{ok}:')
    k(f'v_lshlrev_b32 {ag}, 4, v0\nv_lshlrev_b32 {a4}, 2, v0\ns_mov_b32 {cnt}, 0\ns_waitcnt vmcnt(0)')
    spin(0, flag_ld)
    gran_loads()
    while pend:
        idr, mf = pend.pop(0); lg.wait(idr); k(mf)
    kd_out(3)
    kc = fa.sub(0, 16); pvv = fa.sub(16, 8)
    gid = [lg.op(f'ds_read_u16 {ga[e]}, {ga[e]}') for e in range(32)]
    aw = kda[0]; ap = kda[1]
    k(f'v_lshl_add_u32 {aw}, {lane}, 4, {wb}\nv_lshrrev_b32 {ap}, 1, {lane}\nv_mul_u32_u24 {ap}, 4160, {ap}\nv_and_b32 {t[1]}, 1, {lane}')
    k(f'v_lshl_add_u32 {ap}, {t[1]}, 4, {ap}\nv_add_u32 {ap}, {wb}, {ap}')
    k(f's_mov_b64 exec, 0xff'); lg.op(f'ds_write_b128 {ap}, {z4}'); k('s_mov_b64 exec, -1')
    for c in range(4):
        lg.wait(gid[8 * c + 7])
        for e in range(4): k(f'v_lshl_or_b32 {kc[4 * c + e]}, {ga[8 * c + 2 * e + 1]}, 16, {ga[8 * c + 2 * e]}')
        lg.op(f'ds_write_b128 {aw}, {kc.sub(4 * c, 4)} offset:{32 + 1024 * c}')
    ids = [lg.op(f'ds_read_b64 {pvv.sub(2 * c, 2)}, {aw} offset:{24 + 1024 * c}') for c in range(4)]
    late = k.label('late')
    gran_check()
    k(f's_cselect_b32 {got}, 1, 0\ns_cbranch_scc0 {late}')
    x_loads()
    k(f'{late}:')
    for c in range(4):
        lg.wait(ids[c])
        o = fb.sub(12 * (c & 1), 12); d_ = kc.sub(4 * c, 4); p0, p1 = pvv[2 * c], pvv[2 * c + 1]
        seq = [p0, p1, d_[0], d_[1], d_[2], d_[3]]
        o3 = o.sub(0, 4); o1 = o.sub(4, 4); o2 = o.sub(8, 4)
        for i in range(4): k(f'v_alignbit_b32 {o3[i]}, {seq[i + 1]}, {seq[i]}, 16')
        for i in range(3): k(f'v_mov_b32 {o1[i]}, {o3[i + 1]}')
        k(f'v_alignbit_b32 {o1[3]}, {seq[5]}, {seq[4]}, 16')
        for i in range(4): k(f'v_mov_b32 {o2[i]}, {seq[i + 1]}')
        for r_, oo in ((1, o1), (2, o2), (3, o3)): lg.op(f'ds_write_b128 {aw}, {oo} offset:{4160 * r_ + 32 + 1024 * c}')
    if dump:
        k(f's_lshl_b32 {st}, {s_d}, 12\ns_add_u32 {st}, {st}, {O_DBG}\nv_lshlrev_b32 {t[1]}, 4, {lane}')
        for c in range(4): vm.op(f'buffer_store_dwordx4 {kc.sub(4 * c, 4)}, {t[1]}, {Rws}, {st} offen offset:{1024 * c}')
    ga.release(); acc = k.v(32, 4); kacc.release(); ks.release(); atw.release(); atr.release()
    SP(4); lg.reset() if SP.on else None
    have = k.label('have')
    lp, ok = k.label('again'), k.label('rows')
    k(f's_cmp_lg_u32 {got}, 0\ns_cbranch_scc1 {have}\n{lp}:')
    gran_loads(); gran_check()
    k(f's_cbranch_scc1 {ok}\ns_sleep 2\ns_add_u32 {cnt}, {cnt}, 1\ns_cmp_lt_u32 {cnt}, {SPIN_MAX}\ns_cbranch_scc1 {lp}\ns_branch {END}\n{ok}:')
    x_loads()
    k(f'{have}:')
    xf = k.v(32); hf = k.v(32); st_ = k.v(16)
    for i in range(8): k(f'v_and_b32 {st_[2 * i]}, 0xffff0000, {sg[2 * i]}\nv_lshlrev_b32 {st_[2 * i + 1]}, 16, {sg[2 * i]}')
    for i in range(8): k(f'v_rcp_f32 {st_[2 * i]}, {st_[2 * i]}')
    for i in range(8): k(f'v_mul_f32 {st_[2 * i + 1]}, -{st_[2 * i + 1]}, {st_[2 * i]}')
    k('s_waitcnt vmcnt(0)')
    SP(14); lg.reset() if SP.on else None
    for i in range(16): k(f'v_lshlrev_b32 {xf[2 * i]}, 16, {x[i]}\nv_and_b32 {xf[2 * i + 1]}, 0xffff0000, {x[i]}')
    k(f'v_add_u32 {am}, {HB + 512}, {a4}')
    for j in range(16): k(f'v_pk_fma_f32 {hf.sub(2 * j, 2)}, {xf.sub(2 * j, 2)}, {st_.sub(2 * (j // 2), 2)}, {st_.sub(2 * (j // 2), 2)} op_sel:[0,0,1] op_sel_hi:[1,0,1]')
    lp, ok = k.label('gran'), k.label('got')
    k(f'{lp}:')
    k(f'v_cmp_ne_u32 vcc, 1, {mg[1]}\ns_cmp_eq_u64 vcc, 0\ns_cbranch_scc1 {ok}\ns_sleep 2')
    mod_loads()
    k(f's_add_u32 {cnt}, {cnt}, 1\ns_cmp_lt_u32 {cnt}, {SPIN_MAX}\ns_waitcnt vmcnt(0)\ns_cbranch_scc1 {lp}\ns_branch {END}\n{ok}:')
    for i in range(12): k(f'v_mov_b32_dpp {md_[i]}, {mg[0]} row_newbcast:{i} row_mask:0xf bank_mask:0xf')
    SP(5)
    for i in range(4):
        for j in range(4 * i, 4 * i + 4): k(f'v_pk_fma_f32 {hf.sub(2 * j, 2)}, {hf.sub(2 * j, 2)}, {md_.sub(4 + 2 * (j & 1), 2)}, {md_.sub(2 * (j & 1), 2)}')
        for c in range(4): k(f'v_cvt_pk_bf16_f32 {x[4 * i + c]}, {hf[8 * i + c]}, {hf[8 * i + 4 + c]}')
        for c in range(4): lg.op(f'ds_write_b32 {am}, {x[4 * i + c]} offset:{HSTR * c + 1024 * i}')
    st_.release()
    aA = kda[2]; aB = kda[3]
    k(f'v_bfe_u32 {t[0]}, {lane}, 2, 2\nv_mul_u32_u24 {aA}, 4160, {t[0]}\nv_and_b32 {t[0]}, 3, {lane}\nv_lshl_add_u32 {aA}, {t[0]}, 3, {aA}')
    k(f'v_lshlrev_b32 {t[0]}, 4, {q}\nv_sub_u32 {aA}, {aA}, {t[0]}\ns_add_u32 {st}, {wb}, 56\nv_add_u32 {aA}, {st}, {aA}')
    k(f's_mul_i32 {st}, {s_w}, {HSTR}\ns_add_u32 {st}, {st}, {HB + 480}\nv_lshl_add_u32 {aB}, {m}, 5, {t[0]}\nv_add_u32 {aB}, {st}, {aB}')
    lg.all(); k('s_barrier'); SP(6)
    fa2 = k.a(32, 4); fb2 = k.a(32, 4)
    sets = [(fa, fb), (fa2, fb2)]
    k(f'v_add_u32 {aB}, -448, {aB}')
    def reads(r_):
        A_, B_ = sets[r_ & 1]; out = []
        for i in range(8):
            out.append(f'ds_read_b128 {B_.sub(4 * i, 4)}, {aB} offset:{448 - 64 * r_ + 512 * i}')
            out.append(f'ds_read_b64_tr_b16 {A_.sub(4 * i, 2)}, {aA} offset:{64 * r_ + 8 + 512 * i}')
            out.append(f'ds_read_b64_tr_b16 {A_.sub(4 * i + 2, 2)}, {aA} offset:{64 * r_ + 512 * i}')
        return out
    jm = k.s(); l16 = k.v()
    k(f's_lshr_b32 {jm}, s2, 5\ns_sub_u32 {jm}, {jm}, 2\nv_lshlrev_b32 {l16}, 4, {lane}')
    pd = PairDma(k, s_w, jm, O_W1F, Rws, l16, W1_AT)
    early = [g for P_ in range(5) for g in pd.ops(P_)]
    flag_ld = f'buffer_load_dwordx2 {fl_v}, {z4[0]}, {Rdbg}, 0 offen offset:200 sc1'
    k(f'v_lshlrev_b32 {t[0]}, 3, {q}\nv_lshl_add_u32 {t[0]}, {m}, 5, {t[0]}\nv_add_u32 {t[0]}, {wb}, {t[0]}')
    dv = t.sub(4, 4)
    k(f's_lshl_b32 {st}, {sD[0]}, 16\ns_and_b32 {st2}, {sD[0]}, 0xffff0000\nv_mov_b32 {dv[0]}, {st}\nv_mov_b32 {dv[1]}, {st2}')
    k(f's_lshl_b32 {st}, {sD[1]}, 16\ns_and_b32 {st2}, {sD[1]}, 0xffff0000\nv_mov_b32 {dv[2]}, {st}\nv_mov_b32 {dv[3]}, {st2}')
    def y_out(tt):
        o = x.sub(2 * tt, 2)
        return [f'v_cvt_pk_bf16_f32 {o[0]}, {acc[4 * tt]}, {acc[4 * tt + 1]}', f'v_cvt_pk_bf16_f32 {o[1]}, {acc[4 * tt + 2]}, {acc[4 * tt + 3]}',
                f'ds_write_b64 {t[0]}, {o} offset:{512 * tt}']
    yq = []
    cur = [lg.op(x_) for x_ in reads(0)]
    for r_ in range(8):
        rd = reads(r_ + 1) if r_ < 7 else []
        A_, B_ = sets[r_ & 1]; nxt = []
        order = [(i, tt) for i in range(8) for tt in range(i, 8)] if r_ else sorted(((i, tt) for i in range(8) for tt in range(i, 8)), key=lambda p: (max(p[0], p[1] - p[0]), p))
        seen = set()
        if r_ == 1: k(flag_ld)
        if r_ == 3: k('s_waitcnt vmcnt(0)'); spin(0, flag_ld)
        for n_, (i, tt) in enumerate(order):
            lg.wait(max(cur[3 * i + 2], cur[3 * (tt - i)]))
            first = r_ == 0 and tt not in seen; seen.add(tt)
            k(f'v_mfma_f32_16x16x32_bf16 {acc.sub(4 * tt, 4)}, {A_.sub(4 * i, 4)}, {B_.sub(4 * (tt - i), 4)}, {"0" if first else acc.sub(4 * tt, 4)}')
            if rd: nxt.append(lg.op(rd.pop(0)))
            if r_ == 7:
                if i == tt and i: yq += y_out(i - 1)
                for _ in range(2):
                    if yq: x_ = yq.pop(0); lg.op(x_) if x_.startswith('ds_') else k(x_)
            if r_ >= 3 and n_ >= 24 and n_ % 3 == 0 and early:
                for x_ in early.pop(0): k(x_)
        cur = nxt
    assert not early
    SP(7)
    for x_ in yq + y_out(7): k(x_)
    k('s_waitcnt lgkmcnt(0)\ns_barrier')
    lg.reset()
    yp = fb.sub(0, 16); yf = acc; o = fa
    ids = [[lg.op(f'ds_read_b32 {yp[4 * i + c]}, {a4} offset:{WSTR * c + 1024 * i}') for c in range(4)] for i in range(4)]
    k(f's_lshl_b32 {st}, {cidx}, 14\ns_add_u32 {st}, {st}, {O_X2}')
    for i in range(4):
        lg.wait(ids[i][3])
        for c in range(4): k(f'v_lshlrev_b32 {yf[8 * i + c]}, 16, {yp[4 * i + c]}\nv_and_b32 {yf[8 * i + 4 + c]}, 0xffff0000, {yp[4 * i + c]}')
        for j in range(4 * i, 4 * i + 4): k(f'v_pk_fma_f32 {yf.sub(2 * j, 2)}, {hf.sub(2 * j, 2)}, {dv.sub(2 * (j & 1), 2)}, {yf.sub(2 * j, 2)}')
        for j in range(4 * i, 4 * i + 4): k(f'v_pk_fma_f32 {yf.sub(2 * j, 2)}, {yf.sub(2 * j, 2)}, {md_.sub(8 + 2 * (j & 1), 2)}, {xf.sub(2 * j, 2)}')
        for j in range(4): k(f'v_cvt_pk_bf16_f32 {o[4 * i + j]}, {yf[8 * i + 2 * j]}, {yf[8 * i + 2 * j + 1]}')
        k(f'buffer_store_dwordx4 {o.sub(4 * i, 4)}, {ag}, {Rws}, {st} offen sc1')
        if i < 3: k(f's_add_u32 {st}, {st}, 4096')
```

```python
from common import *

N_SIG = 64 + 45
BUF0, BUF1, SVEC = 0, 73728, 147456
K1_LDS = 147456 + 2560
SPIN_MAX = 40000

def vmaps():
    maps = [list(range(16))]
    for s in (1, 2, 3):
        m = list(maps[-1]); step = 1 << s
        new = [step * i for i in range(8, 16)]
        for j in range(16):
            if m[j] % step: m[j] = new.pop(0)
        assert not new
        maps.append(m)
    return maps

def service(k, P, lane, s_w, END, NEXT, SP, opt=()):
    vm, lg = trackers(k)
    Rws = k.s(4); Rdbg = k.s(4); RA = k.s(4); RB = k.s(4)
    srd(k, Rws, P['ws'], WS_USED); srd(k, Rdbg, P['dbg'], 256)
    z4 = k.v(4, 4); zero = z4.sub(0, 2); one = k.v(); l16 = k.v(); q = k.v(); m = k.v()
    fr = k.v(72, 4); sv = k.v(72, 4); acc = k.v(4, 4)
    sav = k.s(2); st = k.s(); cnt = k.s()
    jb = k.s(); modeB = k.s(); blkB = k.s(); srcB = k.s(); strB = k.s()
    L_mod, L_B, L_C = k.label('mod'), k.label('jobB'), k.label('jobC')
    k(f'v_lshrrev_b32 {q}, 4, {lane}\nv_and_b32 {m}, 15, {lane}\nv_lshlrev_b32 {l16}, 4, {lane}')
    cjs = {}
    def common():
        for i in range(4): k(f'v_mov_b32 {z4[i]}, 0')
        k(f'v_mov_b32 {one}, 1\ns_mov_b32 {cnt}, 0')
        k(f's_add_u32 {jb}, s2, 32')
        for lo, val in ((64, -64), (73, -58), (90, None), (91, -82), (97, None), (103, -7)):
            if val is None: k(f's_cmp_ge_u32 s2, {lo}\ns_cselect_b32 {jb}, 200, {jb}')
            else: k(f's_sub_u32 {blkB}, s2, {-val}\ns_cmp_ge_u32 s2, {lo}\ns_cselect_b32 {jb}, {blkB}, {jb}')
        srd(k, RB, P['wmod'], D * 3456 * 2)
        k(f's_mov_b32 {modeB}, 0\ns_cmp_ge_u32 {jb}, 9\ns_cselect_b32 {blkB}, 30, 45\ns_add_u32 {blkB}, {blkB}, {jb}\ns_mov_b32 {strB}, 6912')
        for mode, lo, ptr, nb, st_ in ((2, 15, 'w2', D * D * 2, 1152), (3, 24, 'w3', D * F * 2, 9216), (1, 96, 'w1', D * D * 2, 1152)):
            k(f's_sub_u32 {srcB}, {jb}, {lo}\ns_cmp_ge_u32 {jb}, {lo}')
            k(f's_cselect_b32 {blkB}, {srcB}, {blkB}\ns_cselect_b32 {modeB}, {mode}, {modeB}\ns_cselect_b32 {strB}, {st_}, {strB}')
            k(f's_cselect_b32 {RB[0]}, {P[ptr][0]}, {RB[0]}\ns_cselect_b32 {RB[1]}, {P[ptr][1]}, {RB[1]}\ns_cselect_b32 {RB[2]}, {nb}, {RB[2]}')
        k(f's_lshl_b32 {srcB}, {blkB}, 7')
    def signal(off, last):
        sk = k.label('notlast')
        k(f's_mov_b64 exec, 1\nv_mov_b32 {acc[0]}, 1\nbuffer_atomic_add {acc[0]}, {zero[0]}, {Rdbg}, {off} offen offset:64 sc0 sc1\ns_waitcnt vmcnt(0)')
        k(f'v_readfirstlane_b32 {st}, {acc[0]}\ns_cmp_lg_u32 {st}, {last}\ns_cbranch_scc1 {sk}')
        k(f'buffer_store_dword {one}, {zero[0]}, {Rdbg}, {off} offen offset:192 sc1\n{sk}:\ns_mov_b64 exec, -1')
    cj = ColJob(k, vm, lg, lane, s_w)
    L_w1 = k.label('w1')
    k(f's_cmp_ge_u32 s2, 103\ns_cbranch_scc1 {L_w1}\ns_cmp_ge_u32 s2, 64\ns_cbranch_scc1 {L_mod}')

    srd(k, RA, P['u'], L * D * 2)
    va = k.v(); vx = k.v(2); t = k.v(6); row = k.v(); s1 = k.s()
    k(f's_and_b32 {st}, {s_w}, 1\ns_lshl_b32 {s1}, s2, 1\ns_add_u32 {st}, {st}, {s1}\ns_lshl_b32 {st}, {st}, 4')
    k(f'v_and_b32 {t[0]}, 7, {m}\nv_lshrrev_b32 {t[2]}, 3, {m}\nv_lshl_add_u32 {t[5]}, {t[0]}, 1, {t[2]}\nv_add_u32 {row}, {st}, {t[5]}')
    k(f's_lshr_b32 {s1}, {s_w}, 1\ns_mul_i32 {st}, {s1}, 576\nv_mul_u32_u24 {va}, 1152, {row}\nv_lshl_add_u32 {va}, {q}, 4, {va}')
    for i in range(4): k(f'v_mov_b32 {z4[i]}, 0')
    k(f's_lshl_b32 {sav[0]}, s2, 8\ns_add_u32 {sav[0]}, {sav[0]}, {O_STATS}\ns_cmp_eq_u32 {s_w}, 0\ns_cselect_b32 {sav[0]}, {sav[0]}, {WS_USED}\ns_mov_b64 exec, 0xffff')
    k(f'buffer_store_dwordx4 {z4}, {l16}, {Rws}, {sav[0]} offen sc1\ns_mov_b64 exec, -1')
    k(f's_or_b32 {sav[0]}, s2, {s_w}\ns_cmp_eq_u32 {sav[0]}, 0\ns_mov_b32 {sav[0]}, {O_FW}\ns_cselect_b32 {sav[0]}, {sav[0]}, {WS_USED}')
    k(f'buffer_store_dwordx4 {z4}, {l16}, {Rws}, {sav[0]} offen sc1\nbuffer_store_dwordx4 {z4}, {l16}, {Rws}, {sav[0]} offen offset:1024 sc1\nbuffer_store_dwordx4 {z4}, {l16}, {Rws}, {sav[0]} offen offset:2048 sc1')
    ix = [vm.op(f'buffer_load_dwordx4 {fr.sub(4 * i, 4)}, {va}, {RA}, {st} offen offset:{64 * i}' + (' nt' if 'ntx' in opt else '')) for i in range(9)]
    pf = k.v(2); pfs = k.s(2)
    common()
    ones = sv.sub(40, 4); gacc = sv.sub(36, 4); arr = sv[44]; msk = [k.s(2) for _ in range(3)]
    sk = k.label('noarr')
    k(f's_cmp_lg_u32 {s_w}, 0\ns_cbranch_scc1 {sk}\ns_mov_b64 exec, 1\nv_mov_b32 {arr}, 1\ns_waitcnt vmcnt(9)\nbuffer_atomic_add {arr}, {zero[0]}, {Rdbg}, 0 offen offset:64 sc0 sc1\ns_mov_b64 exec, -1\n{sk}:')
    for i in range(4): k(f'v_mov_b32 {ones[i]}, 0x3f803f80')
    k(f'v_and_b32 {t[0]}, 3, {m}')
    for e in range(3): k(f'v_cmp_eq_u32 {msk[e]}, {e + 1}, {t[0]}')
    k(f's_lshl_b32 {st}, {s_w}, 8\ns_add_u32 {st}, {st}, {SVEC}\nv_lshl_add_u32 {t[3]}, {t[5]}, 2, {st}\nv_lshrrev_b32 {t[0]}, 2, {m}\nv_cmp_eq_u32 vcc, {t[0]}, {q}')
    k(f'v_add_u32 {t[4]}, 128, {t[3]}\nv_add_u32 {t[5]}, 192, {t[3]}\nv_cndmask_b32 {t[4]}, {t[5]}, {t[4]}, vcc')
    k(f'v_lshrrev_b32 {t[0]}, 3, {m}\nv_lshl_add_u32 {t[1]}, {q}, 1, {t[0]}\nv_lshlrev_b32 {vx[0]}, 14, {t[1]}\nv_sub_u32 {t[1]}, {row}, {t[0]}\nv_lshl_add_u32 {vx[0]}, {t[1]}, 3, {vx[0]}')
    k(f's_mul_i32 {s1}, {s1}, {9 * 131072}\ns_add_u32 {s1}, {s1}, {O_XT}\nv_cmp_eq_u32 vcc, 0, {t[0]}')
    dp = 'row_ror:8 row_mask:0xf bank_mask:0xf'
    for i in range(9):
        vm.wait(ix[i])
        if i == 0: SP(8)
        r_ = fr.sub(4 * i, 4); o = sv.sub(4 * i, 4)
        k(f'v_mfma_f32_16x16x32_bf16 {acc}, {ones}, {r_}, {"0" if i == 0 else acc}')
        k(f'v_cndmask_b32_dpp {o[0]}, {r_[2]}, {r_[0]}, vcc {dp}\nv_cndmask_b32_dpp {o[1]}, {r_[3]}, {r_[1]}, vcc {dp}\ns_not_b64 vcc, vcc')
        k(f'v_mfma_f32_16x16x32_bf16 {gacc}, {r_}, {r_}, {"0" if i == 0 else gacc}')
        k(f'v_cndmask_b32_dpp {o[2]}, {r_[0]}, {r_[2]}, vcc {dp}\nv_cndmask_b32_dpp {o[3]}, {r_[1]}, {r_[3]}, vcc {dp}\ns_not_b64 vcc, vcc')
        vm.op(f'buffer_store_dwordx4 {o}, {vx[0]}, {Rws}, {s1} offen sc1')
        if i < 8: k(f's_add_u32 {s1}, {s1}, 131072')
    SP(10)
    k(f'v_cndmask_b32 {t[0]}, {gacc[0]}, {gacc[1]}, {msk[0]}\nv_cndmask_b32 {t[0]}, {t[0]}, {gacc[2]}, {msk[1]}\nv_cndmask_b32 {t[0]}, {t[0]}, {gacc[3]}, {msk[2]}')
    k(f'ds_write_b32 {t[3]}, {acc[0]}\nds_write_b32 {t[4]}, {t[0]}\ns_waitcnt lgkmcnt(0)\ns_barrier')
    a, b = k.label('notw0'), k.label('sigd')
    k(f's_cmp_lg_u32 {s_w}, 0\ns_cbranch_scc1 {a}')
    k(f'v_and_b32 {t[1]}, 1, {q}\nv_lshlrev_b32 {t[1]}, 8, {t[1]}\nv_lshl_add_u32 {t[1]}, {m}, 2, {t[1]}\nv_add_u32 {t[1]}, {SVEC}, {t[1]}')
    k(f'ds_read2_b32 {t[2:4]}, {t[1]} offset0:0 offset1:32\nds_read2_b32 {t[4:6]}, {t[1]} offset0:128 offset1:160')
    sk = k.label('notlast')
    k(f's_waitcnt vmcnt(9)\nv_readfirstlane_b32 {st}, {arr}\ns_cmp_lg_u32 {st}, 102\ns_cbranch_scc1 {sk}')
    k(f's_mov_b64 exec, 1\nbuffer_store_dword {one}, {zero[0]}, {Rdbg}, 0 offen offset:192 sc1\ns_mov_b64 exec, -1\n{sk}:\ns_waitcnt lgkmcnt(0)')
    k(f'v_add_f32 {t[0]}, {t[2]}, {t[4]}\nv_add_f32 {t[2]}, {t[3]}, {t[5]}')
    sigma_bf16(k, t[0], t[2])
    k(f'v_cvt_pk_bf16_f32 {t[2]}, {t[0]}, {t[2]}\nv_mov_b32 {t[3]}, 1\nv_lshlrev_b32 {t[1]}, 3, {lane}\ns_lshl_b32 {st}, s2, 8\ns_add_u32 {st}, {st}, {O_STATS}')
    k(f'{a}:'); SP(14); k('s_waitcnt vmcnt(0)\ns_barrier'); vm.reset()
    k(f's_cmp_lg_u32 {s_w}, 0\ns_cbranch_scc1 {b}')
    k(f's_mov_b32 exec_hi, 0\nbuffer_store_dwordx2 {t[2:4]}, {t[1]}, {Rws}, {st} offen sc1\ns_mov_b64 exec, -1')
    k(f'{b}:'); SP(9)
    for x_ in msk: x_.release()
    code_prefetch(k, None, NEXT, END, 60000, 'v0', pf, pfs)
    cj.dma(RB, srcB, strB, BUF1, True)
    k(f's_lshl_b32 {st}, s2, 2\ns_add_u32 {st}, {st}, {s_w}\ns_lshl_b32 {st}, {st}, 10')
    k(f's_cmp_eq_u32 s2, {O_FW // 4096}\ns_cselect_b32 {st}, {WS_USED}, {st}\nbuffer_store_dwordx4 {z4}, {l16}, {Rws}, {st} offen sc1')
    sk = k.label('nopad')
    k(f's_cmp_lg_u32 {s_w}, 2\ns_cbranch_scc1 {sk}\ns_cmp_ge_u32 s2, 36\ns_cbranch_scc1 {sk}\ns_lshr_b32 {st}, s2, 1\ns_mul_i32 {st}, {st}, {GPL}\ns_bitcmp1_b32 s2, 0\ns_cselect_b32 {sav[0]}, {129 * 1024}, 0')
    k(f's_add_u32 {st}, {st}, {sav[0]}\ns_add_u32 {st}, {st}, {O_G}\nbuffer_store_dwordx4 {z4}, {l16}, {Rws}, {st} offen sc1\n{sk}:')
    k(f's_branch {L_B}')
    for x_ in (va, vx, t, row, s1): x_.release()

    def mod_tail(ids, s_blk, sig, gran=False):
        t = k.v(2); vg = k.v(); s1 = k.s()
        for s in range(18):
            if s % 2 == 0: lg.wait(ids[s + 1])
            k(f'v_mfma_f32_16x16x32_bf16 {acc}, {sv.sub(4 * s, 4)}, {fr.sub(4 * s, 4)}, {"0" if s == 0 else acc}')
        k(f's_lshl_b32 {s1}, {s_w}, 6\ns_add_u32 {s1}, {s1}, {SVEC + 2048}\nv_lshl_add_u32 {vg}, {m}, 2, {s1}')
        k(f'v_cvt_pk_bf16_f32 {t[0]}, {acc[0]}, {acc[0]}\nv_and_b32 {t[0]}, 0xffff0000, {t[0]}')
        k(f'v_add_f32 {t[1]}, 1.0, {t[0]}\nv_cvt_pk_bf16_f32 {t[1]}, {t[1]}, {t[1]}\nv_and_b32 {t[1]}, 0xffff0000, {t[1]}')
        k(f's_mov_b64 vcc, 0\ns_sub_u32 {s1}, {s_blk}, 9\ns_cmp_lt_u32 {s1}, 9\ns_cselect_b64 vcc, -1, vcc')
        k(f's_sub_u32 {s1}, {s_blk}, 36\ns_cmp_lt_u32 {s1}, 9\ns_cselect_b64 vcc, -1, vcc')
        k(f'v_cndmask_b32 {t[0]}, {t[0]}, {t[1]}, vcc\nds_write_b32 {vg}, {t[0]}\ns_waitcnt lgkmcnt(0)\ns_barrier'); lg.reset()
        a, b = k.label('notw0'), k.label('nob')
        k(f's_cmp_lg_u32 {s_w}, 0\ns_cbranch_scc1 {a}')
        k(f'v_lshlrev_b32 {vg}, 3, {lane}\nv_add_u32 {t[0]}, {SVEC + 2048}, {vg}\nds_read_b64 {t}, {t[0]}\ns_lshl_b32 {s1}, {s_blk}, 8\ns_add_u32 {s1}, {s1}, {O_MODF}')
        k(f's_mov_b32 exec_hi, 0')
        if gran:
            k(f's_lshl_b32 {sav[0]}, {s_blk}, 9\ns_add_u32 {sav[0]}, {sav[0]}, {O_MODG}\nv_mov_b32 {acc[1]}, 1\nv_mov_b32 {acc[3]}, 1\ns_waitcnt lgkmcnt(0)')
            k(f'v_mov_b32 {acc[0]}, {t[0]}\nv_mov_b32 {acc[2]}, {t[1]}\nbuffer_store_dwordx4 {acc}, {l16}, {Rws}, {sav[0]} offen sc1')
        k(f's_waitcnt lgkmcnt(0)\nbuffer_store_dwordx2 {t}, {vg}, {Rws}, {s1} offen sc1')
        if sig:
            k(f's_sub_u32 {s1}, {s_blk}, 27\ns_cmp_ge_u32 {s1}, 18\ns_cbranch_scc1 {a}')
            k(f'v_cvt_pk_bf16_f32 {acc[0]}, {t[0]}, {t[1]}\nv_lshrrev_b32 {vg}, 1, {vg}\ns_lshl_b32 {s1}, {s1}, 7\ns_add_u32 {s1}, {s1}, {O_MODB}')
            k(f'buffer_store_dword {acc[0]}, {vg}, {Rws}, {s1} offen sc1\ns_waitcnt vmcnt(0)')
            signal(12, 17)
        k(f'{a}:\ns_mov_b64 exec, -1')
        t.release(); vg.release(); s1.release()

    k(f'{L_mod}:')
    vm, lg = trackers(k); cj.vm, cj.lg = vm, lg
    blkA = k.s(); srcA = k.s(); strA = k.s(); Rc = k.s(4)
    srd(k, RA, P['wmod'], D * 3456 * 2); srd(k, Rc, P['c'], D * 2)
    k(f's_sub_u32 {blkA}, s2, 64')
    k(f's_lshl_b32 {srcA}, {blkA}, 7\ns_mov_b32 {strA}, 6912')
    t = k.v(8); vg = k.v()
    k(f'v_lshlrev_b32 {vg}, 3, v0')
    for i in range(4): k(f'v_mov_b32 {z4[i]}, 0')
    k(f's_lshl_b32 {st}, {blkA}, 9\ns_add_u32 {st}, {st}, {O_MODG}\ns_cmp_eq_u32 {s_w}, 0\ns_cselect_b32 {st}, {st}, {WS_USED}\ns_mov_b32 exec_hi, 0')
    icl = vm.op(f'buffer_store_dwordx4 {z4}, {l16}, {Rws}, {st} offen sc1')
    k('s_mov_b64 exec, -1')
    ic = vm.op(f'buffer_load_dwordx2 {t[0:2]}, {vg}, {Rc}, 0 offen')
    ia = cj.dma(RA, srcA, strA, BUF0, 'ntm' in opt)
    common()
    vm.wait(ic)
    sk = k.label('noarr')
    k(f's_cmp_lg_u32 {s_w}, 0\ns_cbranch_scc1 {sk}\ns_mov_b64 exec, 1\nv_mov_b32 {acc[1]}, 1\nbuffer_atomic_add {acc[1]}, {zero[0]}, {Rdbg}, 0 offen offset:64 sc0 sc1\ns_mov_b64 exec, -1\n{sk}:')
    k(f'v_lshlrev_b32 {t[2]}, 16, {t[0]}\nv_and_b32 {t[3]}, 0xffff0000, {t[0]}\nv_lshlrev_b32 {t[4]}, 16, {t[1]}\nv_and_b32 {t[5]}, 0xffff0000, {t[1]}')
    e = k.v(4)
    for i in range(4): k(f'v_mul_f32 {e[i]}, {fl(-LOG2E)}, {t[2 + i]}')
    for i in range(4): k(f'v_exp_f32 {e[i]}, {e[i]}')
    for i in range(4): k(f'v_add_f32 {e[i]}, 1.0, {e[i]}')
    for i in range(4): k(f'v_rcp_f32 {e[i]}, {e[i]}')
    for i in range(4): k(f'v_mul_f32 {e[i]}, {e[i]}, {t[2 + i]}')
    k(f'v_cvt_pk_bf16_f32 {t[0]}, {e[0]}, {e[1]}\nv_cvt_pk_bf16_f32 {t[1]}, {e[2]}, {e[3]}\nv_add_u32 {vg}, {SVEC}, {vg}')
    k(f'ds_write_b64 {vg}, {t[0:2]}\nv_lshlrev_b32 {vg}, 4, {q}\nv_add_u32 {vg}, {SVEC}, {vg}\ns_waitcnt lgkmcnt(0)\ns_barrier')
    for s in range(18): lg.op(f'ds_read_b128 {sv.sub(4 * s, 4)}, {vg} offset:{64 * s}')
    ad = cj.addr(BUF0)
    sk = k.label('notlast')
    k(f's_waitcnt vmcnt(0) lgkmcnt(0)\ns_cmp_lg_u32 {s_w}, 0\ns_cbranch_scc1 {sk}\nv_readfirstlane_b32 {st}, {acc[1]}\ns_cmp_lg_u32 {st}, 102\ns_cbranch_scc1 {sk}')
    k(f's_mov_b64 exec, 1\nbuffer_store_dword {one}, {zero[0]}, {Rdbg}, 0 offen offset:192 sc1\ns_mov_b64 exec, -1\n{sk}:\ns_barrier'); SP(10); vm.reset(); lg.reset()
    ids = cj.reads(ad, fr)
    sk = k.label('lateB')
    k(f's_cmp_lt_u32 {blkA}, 27\ns_cbranch_scc1 {sk}\ns_cmp_ge_u32 {jb}, 200\ns_cbranch_scc1 {sk}')
    cj.dma(RB, srcB, strB, BUF1)
    k(f'{sk}:')
    mod_tail(ids, blkA, True, True); SP(11)
    k(f's_cmp_ge_u32 {jb}, 200\ns_cbranch_scc1 {L_C}\ns_cmp_ge_u32 {blkA}, 27\ns_cbranch_scc1 {sk}_w')
    cj.dma(RB, srcB, strB, BUF1, True)
    k(f'{sk}_w:\ns_waitcnt vmcnt(0)\ns_branch {L_B}')
    e.release(); t.release(); vg.release()

    k(f'{L_w1}:')
    common()
    cj.dma(RB, srcB, strB, BUF1, 'nt1' in opt)
    k('s_waitcnt vmcnt(0)')

    k(f'{L_B}:')
    vm, lg = trackers(k); cj.vm, cj.lg = vm, lg
    k(f's_waitcnt vmcnt(1) lgkmcnt(0)\ns_barrier')
    SP(12)
    il = k.s(); k(f's_sub_u32 {il}, {modeB}, 1\ns_cmp_lt_u32 {il}, 2\ns_cselect_b32 {il}, 1, 0')
    ids = cj.read(BUF1, fr, s_il=il)
    notmod, nocenter = k.label('notmod'), k.label('nocenter')
    k(f's_cmp_lg_u32 {modeB}, 0\ns_cbranch_scc1 {notmod}')
    mod_tail(ids, blkB, True)
    k(f's_branch {L_C}\n{notmod}:')
    k('s_waitcnt lgkmcnt(0)'); lg.reset()
    k(f's_bitcmp0_b32 {modeB}, 0\ns_cbranch_scc1 {nocenter}')
    ones = sv.sub(0, 4); t = k.v(4); gof = k.v(4, 4)
    go2_ld = f'buffer_load_dwordx4 {gof}, {zero[0]}, {Rdbg}, 0 offen offset:192 sc1'
    k(go2_ld)
    for i in range(4): k(f'v_mov_b32 {ones[i]}, 0x3f803f80')
    for s in range(18): k(f'v_mfma_f32_16x16x32_bf16 {acc}, {ones}, {fr.sub(4 * s, 4)}, {"0" if s == 0 else acc}')
    nm = sv.sub(4, 2)
    k(f'v_mul_f32 {nm[0]}, {fl(-1 / 576)}, {acc[0]}')
    k(f's_mov_b32 {st}, 0x3f80\ns_mov_b32 {sav[0]}, 0x3f800000')
    tc = sv.sub(8, 16)
    for i in range(0, 72, 4):
        u = tc.sub(8 * ((i >> 2) & 1), 8)
        for e in range(4): k(f'v_dot2_f32_bf16 {u[2 * e]}, {fr[i + e]}, {st}, {nm[0]}\nv_dot2_f32_bf16 {u[2 * e + 1]}, {fr[i + e]}, {sav[0]}, {nm[0]}')
        if i:
            p = tc.sub(8 * (1 - ((i >> 2) & 1)), 8)
            for e in range(4): k(f'v_cvt_pk_bf16_f32 {fr[i - 4 + e]}, {p[2 * e]}, {p[2 * e + 1]}')
    for e in range(4): k(f'v_cvt_pk_bf16_f32 {fr[68 + e]}, {u[2 * e]}, {u[2 * e + 1]}')
    k(f'{nocenter}:')
    T = k.s(); j = k.s(); dst = k.s(); step = k.s(); rot = k.s()
    k(f's_lshl_b32 {T}, {blkB}, 2\ns_add_u32 {T}, {T}, {s_w}')
    k(f's_mul_hi_u32 {j}, {T}, {(1 << 32) // 6 + 1}\ns_mul_i32 {dst}, {j}, 6\ns_sub_u32 {dst}, {T}, {dst}\ns_lshl_b32 {dst}, {dst}, 10')
    k(f's_mul_i32 {step}, {j}, 110592\ns_add_u32 {dst}, {dst}, {step}')
    k(f's_mul_i32 {rot}, {j}, 3\ns_sub_u32 {rot}, 18, {rot}\ns_cmp_eq_u32 {rot}, 18\ns_cselect_b32 {rot}, 0, {rot}')
    k(f's_cmp_eq_u32 {modeB}, 1\ns_cselect_b32 {rot}, {rot}, 0\ns_cselect_b32 {step}, 0, {O_W2F - O_W1F}\ns_add_u32 {dst}, {dst}, {step}\ns_add_u32 {dst}, {dst}, {O_W1F}')
    k(f's_mul_i32 {j}, {T}, 18432\ns_add_u32 {j}, {j}, {O_W3F}')
    k(f's_cmp_ge_u32 {modeB}, 3\ns_cselect_b32 {dst}, {j}, {dst}\ns_cselect_b32 {step}, 1, 6\ns_lshl_b32 {step}, {step}, 10')
    notw1, L_st = k.label('notw1'), k.label('stored')
    k(f's_cmp_lg_u32 {modeB}, 1\ns_cbranch_scc1 {notw1}')
    cj.store(fr, None, Rws, dst, step, s_rot=rot)
    sk = k.label('nosig')
    k(f's_waitcnt vmcnt(0)\ns_barrier\ns_cmp_lg_u32 {s_w}, 0\ns_cbranch_scc1 {sk}')
    signal(8, 8)
    k(f'{sk}:'); SP(9)
    lp, ok = k.label('pollm'), k.label('gotm')
    k(f'{lp}:\ns_waitcnt vmcnt(0)\nv_and_b32 {gof[3]}, {gof[3]}, {gof[0]}\nv_readfirstlane_b32 {st}, {gof[3]}\ns_cmp_ge_u32 {st}, 1\ns_cbranch_scc1 {ok}')
    k(f's_sleep 2\n{go2_ld}\ns_add_u32 {cnt}, {cnt}, 1\ns_cmp_lt_u32 {cnt}, {SPIN_MAX}\ns_cbranch_scc1 {lp}\ns_branch {END}\n{ok}:'); vm.reset(); SP(11)
    k(f'v_and_b32 {t[0]}, 1, {m}\nv_xor_b32 {t[0]}, 1, {t[0]}\nv_mul_u32_u24 {t[0]}, 1152, {t[0]}\nv_lshl_add_u32 {t[0]}, {q}, 4, {t[0]}\ns_mov_b32 {st}, {O_MODB}')
    ids = [vm.op(f'buffer_load_dwordx4 {sv.sub(4 * s, 4)}, {t[0]}, {Rws}, {st} offen offset:{64 * s} sc1') for s in range(18)]
    k(f's_lshr_b32 {j}, {s_w}, 1\ns_lshl_b32 {j}, {j}, 7\ns_and_b32 {st}, {s_w}, 1\ns_lshl_b32 {st}, {st}, 4\ns_add_u32 {j}, {j}, {st}\ns_add_u32 {j}, {j}, {SVEC}')
    k(f'v_lshrrev_b32 {t[1]}, 2, {m}\nv_and_b32 {t[2]}, 3, {m}\nv_lshlrev_b32 {t[2]}, 2, {t[2]}\nv_lshl_add_u32 {t[1]}, {t[1]}, 5, {t[2]}\nv_add_u32 {t[1]}, {j}, {t[1]}')
    for s in range(18):
        vm.wait(ids[s])
        k(f'v_mfma_f32_16x16x32_bf16 {acc}, {sv.sub(4 * s, 4)}, {fr.sub(4 * s, 4)}, {"0" if s == 0 else acc}')
    k(f'ds_write2st64_b32 {t[1]}, {acc[0]}, {acc[1]} offset0:0 offset1:1\ns_waitcnt lgkmcnt(0)\ns_barrier\ns_cmp_lg_u32 {s_w}, 0\ns_cbranch_scc1 {L_st}')
    k(f'v_add_u32 {t[0]}, {SVEC}, {l16}\nds_read_b128 {acc}, {t[0]}\nv_mul_u32_u24 {t[1]}, 2304, {q}\nv_lshl_add_u32 {t[1]}, {m}, 4, {t[1]}')
    k(f's_lshl_b32 {j}, {blkB}, 8\ns_add_u32 {j}, {j}, {O_MODF + 6 * 2304}\ns_mov_b32 exec_hi, 0\ns_waitcnt lgkmcnt(0)')
    k(f'buffer_store_dwordx4 {acc}, {t[1]}, {Rws}, {j} offen sc1\ns_mov_b32 {j}, {O_FU}\ns_mov_b64 exec, 1\ns_waitcnt vmcnt(0)\nbuffer_atomic_add {one}, {zero[0]}, {Rws}, {j} offen sc1\ns_mov_b64 exec, -1')
    k(f'{L_st}:\ns_branch {L_C}')
    k(f'{notw1}:'); vm.reset()
    cj.store(fr, None, Rws, dst, step, s_rot=rot)
    k(f'{L_C}:'); SP(13)
    k(f's_branch {NEXT}')

TAB, KD = 0, 17408

def conv(k, P, lane, s_w, END, NEXT, dump, SP, opt=()):
    vm, lg = trackers(k)
    cidx = k.s(); s_d = k.s(); st = k.s(); st2 = k.s(); sav = k.s(2)
    k(f's_and_b32 {cidx}, s2, 7\ns_mul_i32 {cidx}, {cidx}, 18\ns_lshr_b32 {st}, s2, 3\ns_add_u32 {cidx}, {cidx}, {st}\ns_sub_u32 {cidx}, {cidx}, 14')
    k(f's_lshl_b32 {s_d}, {cidx}, 2\ns_add_u32 {s_d}, {s_d}, {s_w}\ns_lshl_b32 {st}, {cidx}, 3')
    sdt = k.s(2); sD = k.s(2)
    k(f's_load_dwordx2 {sdt}, {P["logdt"]}, {st}\ns_load_dwordx2 {sD}, {P["Dskip"]}, {st}')
    R = k.s(4); Rws = k.s(4); Rdbg = k.s(4)
    par = k.v(4); t = k.v(8); x = k.v(16)
    k(f'v_lshlrev_b32 {t[0]}, 2, {lane}\ns_lshl_b32 {st2}, {s_d}, 8')
    for i, n in enumerate(('logA', 'Aim', 'Cr', 'Ci')):
        srd(k, R, P[n], D * 128 * 2)
        ipar = vm.op(f'buffer_load_dword {par[i]}, {t[0]}, {R}, {st2} offen' + (' nt' if 'ntp' in opt else ''))
    srd(k, Rws, P['ws'], WS_USED); srd(k, Rdbg, P['dbg'], 256)
    wb = k.s(); k(f's_mul_i32 {wb}, {s_w}, {WSTR}')
    q = k.v(); m = k.v(); ag = k.v(); am = k.v(); a4 = k.v(); fl_v = k.v(2)
    k(f'v_lshrrev_b32 {q}, 4, {lane}\nv_and_b32 {m}, 15, {lane}')
    ga = k.v(32); cst = k.v()
    k(f's_add_u32 {st2}, {wb}, {KD - 2 * (134 * 128 - 128)}\nv_mov_b32 {cst}, {st2}')
    k(f'v_lshlrev_b32 {t[2]}, 3, {lane}\nv_cvt_f32_u32 {t[2]}, {t[2]}')
    for c in range(4):
        for e in range(0, 8, 2):
            k(f'v_add_f32 {t[4]}, {fl(512 * c + e)}, {t[2]}\nv_add_f32 {t[5]}, {fl(512 * c + e + 1)}, {t[2]}\nv_cvt_pk_bf16_f32 {t[4]}, {t[4]}, {t[5]}')
            k(f'v_mad_u32_u16 {ga[8 * c + e]}, {t[4]}, 2, {cst}\nv_mad_u32_u16 {ga[8 * c + e + 1]}, {t[4]}, 2, {cst} op_sel:[1,0,0,0]')
    k(f's_add_u32 {st2}, {wb}, {KD}\nv_lshl_add_u32 {t[4]}, {lane}, 4, {st2}\nv_cmp_gt_u32 vcc, 16, {lane}')
    for e in range(8): k(f'v_add_u32 {t[5]}, {2 * e}, {t[4]}\nv_cndmask_b32 {ga[e]}, {ga[e]}, {t[5]}, vcc')
    VM = vmaps()
    kda = k.v(4)
    k(f'v_lshlrev_b32 {t[2]}, 2, {m}')
    for s in range(4):
        lut = sum((VM[s][j] >> s) << (4 * j) for j in range(16))
        base = 0 if s == 0 else 128 + 128 * s
        k(f's_mov_b32 {sav[0]}, {lut & 0xffffffff}\ns_mov_b32 {sav[1]}, {lut >> 32}\nv_lshrrev_b64 {t[4:6]}, {t[2]}, {sav}\nv_and_b32 {t[4]}, 15, {t[4]}')
        k(f'v_lshl_add_u32 {t[4]}, {q}, 6, {t[4]}\ns_add_u32 {st2}, {wb}, {KD + 2 * base}\nv_lshl_add_u32 {kda[s]}, {t[4]}, 1, {st2}')
    cst.release()
    atw = k.v(); atr = k.v()
    k(f'v_lshl_add_u32 {atw}, {lane}, 3, {wb}\nv_mul_u32_u24 {atr}, 544, {m}\nv_lshl_add_u32 {atr}, {q}, 4, {atr}\nv_add_u32 {atr}, {wb}, {atr}')
    z4 = k.v(4)
    for i in range(4): k(f'v_mov_b32 {z4[i]}, 0')
    k(f'v_lshrrev_b32 {t[4]}, 5, v0\nv_mul_u32_u24 {t[4]}, {HSTR}, {t[4]}\nv_and_b32 {t[5]}, 31, v0\nv_lshl_add_u32 {t[4]}, {t[5]}, 4, {t[4]}\nv_add_u32 {t[4]}, {HB}, {t[4]}')
    k(f'v_cmp_gt_u32 vcc, 128, v0\ns_and_saveexec_b64 {sav}, vcc\nds_write_b128 {t[4]}, {z4}\ns_mov_b64 exec, {sav}')
    k('s_waitcnt lgkmcnt(0)')
    k(f's_lshl_b32 {st2}, {s_w}, 4\ns_lshr_b64 {sdt}, {sdt}, {st2}\ns_lshl_b32 {sdt[0]}, {sdt[0]}, 16')
    dt = k.v(); ks = k.v()
    k(f'v_mov_b32 {dt}, {fl(LOG2E)}\nv_mul_f32 {dt}, {sdt[0]}, {dt}\nv_exp_f32 {dt}, {dt}\nv_cvt_pk_bf16_f32 {dt}, {dt}, {dt}\nv_and_b32 {dt}, 0xffff0000, {dt}')
    SP(1); vm.wait(ipar); SP(2)
    pr = lambda: [k.v(2), k.v(2)]
    w1, w16, U = pr(), pr(), pr()
    er = k.v(2); rev = k.v(2)
    un = lambda d, s_, hi: f'v_and_b32 {d}, 0xffff0000, {s_}' if hi else f'v_lshlrev_b32 {d}, 16, {s_}'
    for md in range(2):
        k(un(er[md], par[0], md)); k(un(rev[md], par[1], md)); k(un(U[0][md], par[2], md)); k(un(U[1][md], par[3], md))
    for md in range(2): k(f'v_mul_f32 {er[md]}, {fl(LOG2E)}, {er[md]}')
    for md in range(2): k(f'v_exp_f32 {er[md]}, {er[md]}')
    k(f'v_max3_f32 {t[0]}, |{U[0][0]}|, |{U[0][1]}|, |{U[1][0]}|\nv_max_f32 {t[0]}, |{U[1][1]}|, {t[0]}')
    k(f'v_cvt_pk_bf16_f32 {t[1]}, {er[0]}, {er[1]}')
    for mm in ('quad_perm:[1,0,3,2]', 'quad_perm:[2,3,0,1]', 'row_half_mirror', 'row_mirror'):
        k(f'v_max_f32_dpp {t[0]}, {t[0]}, {t[0]} {mm} row_mask:0xf bank_mask:0xf')
    for md in range(2):
        k(un(er[md], t[1], md))
        k(f'v_mul_f32 {er[md]}, {er[md]}, {dt}\nv_mul_f32 {rev[md]}, {rev[md]}, {dt}')
        k(f'v_mul_f32 {er[md]}, {fl(-LOG2E)}, {er[md]}\nv_mul_f32 {rev[md]}, 0.15915494, {rev[md]}')
    k(f'v_readlane_b32 {st2}, {t[0]}, 0\nv_readlane_b32 {sav[0]}, {t[0]}, 16\nv_readlane_b32 {sav[1]}, {t[0]}, 32\nv_readlane_b32 {st}, {t[0]}, 48')
    k(f's_max_u32 {st2}, {st2}, {sav[0]}\ns_max_u32 {st}, {st}, {sav[1]}\ns_max_u32 {st2}, {st2}, {st}')
    for w_, mul in ((w1, None), (w16, '16.0')):
        for md in range(2):
            a, b = t[2 + md], t[4 + md]
            if mul: k(f'v_mul_f32 {a}, {fl(16.)}, {er[md]}\nv_mul_f32 {b}, {fl(16.)}, {rev[md]}\nv_fract_f32 {b}, {b}\nv_exp_f32 {a}, {a}')
            else: k(f'v_fract_f32 {b}, {rev[md]}\nv_exp_f32 {a}, {er[md]}')
            k(f'v_cos_f32 {w_[0][md]}, {b}\nv_sin_f32 {w_[1][md]}, {b}')
        for c in range(2): k(f'v_pk_mul_f32 {w_[c]}, {w_[c]}, {t[2:4]}')
    k(f'v_frexp_exp_i32_f32 {t[0]}, {st2}\nv_sub_u32 {t[1]}, 8, {t[0]}\nv_add_u32 {t[0]}, -7, {t[0]}\nv_ldexp_f32 {ks}, {dt}, {t[0]}')
    for md in range(2):
        for c in range(2): k(f'v_ldexp_f32 {U[c][md]}, {U[c][md]}, {t[1]}')
    er.release(); rev.release(); dt.release()
    tm = [k.v(2) for _ in range(4)]
    def cmul(d, z, s_, ta, tb):
        return [f'v_pk_mul_f32 {ta}, {z[1]}, {s_[1]}', f'v_pk_mul_f32 {tb}, {z[0]}, {s_[1]}',
                f'v_pk_fma_f32 {d[0]}, {z[0]}, {s_[0]}, {ta} neg_lo:[0,0,1] neg_hi:[0,0,1]', f'v_pk_fma_f32 {d[1]}, {z[1]}, {s_[0]}, {tb}']
    w32, w64, w128, w2, w4, w8, V = pr(), pr(), pr(), pr(), pr(), pr(), pr()
    for d_, s_ in ((w32, w16), (w64, w32), (w128, w64)):
        for x_ in cmul(d_, s_, s_, tm[0], tm[1]): k(x_)
    pv = [k.v(2), k.v(2)]; pu = [k.v(2), k.v(2)]
    fa = k.v(32, 4); fb = k.v(32, 4); kacc = k.v(16, 4)
    state = {'V': None, 'nv': 0, 'nu': 0}
    def v_entry(val, slot):
        out = []
        pk = pv[state['nv'] & 1]; state['nv'] += 1
        if val == 0:
            out += [f'v_mov_b32 {pk[0]}, 0x3c00', f'v_mov_b32 {pk[1]}, 0x3c00']
        else:
            if val == 1: cur = w1
            else:
                step = w1 if val <= 16 else w2 if val <= 32 else w4 if val <= 64 else w8
                cur = {2: w2, 4: w4, 8: w8}.get(val, V)
                out += cmul(cur, state['V'], step, tm[0], tm[1])
            state['V'] = cur
            out += [f'v_cvt_pk_f16_f32 {pk[md]}, {cur[0][md]}, {cur[1][md]}' for md in range(2)]
        out.append(('ds', f'ds_write_b64 {atw}, {pk} offset:{TAB + slot * 544}'))
        return out
    def u_entry(val, row):
        out = []
        pk = pu[state['nu'] & 1]; state['nu'] += 1
        if val:
            step = w16 if val <= 256 else w32 if val <= 512 else w64 if val <= 1024 else w128
            out += cmul(U, U, step, tm[2], tm[3])
        out += [f'v_cvt_pk_f16_f32 {pk[md]}, {U[0][md]}, -{U[1][md]}' for md in range(2)]
        out.append(('ds', f'ds_write_b64 {atw}, {pk} offset:{TAB + (16 + row) * 544}'))
        return out
    def put(x_):
        if isinstance(x_, tuple): return lg.op(x_[1])
        k(x_)
    pend = []
    flag_ld = f'buffer_load_dwordx2 {fl_v}, {z4[0]}, {Rdbg}, 0 offen offset:192 sc1'
    ifl = None
    for s in range(4):
        vs = sorted((VM[s][j], j) for j in range(16) if s == 0 or VM[s][j] != VM[s - 1][j])
        us = [16 * u for u in range(16)] if s == 0 else [(128 << s) + (16 << s) * u for u in range(9 if s == 3 else 8)]
        sv_ = [x_ for val, j in vs for x_ in v_entry(val, j)]
        su_ = [x_ for r_, val in enumerate(us) for x_ in u_entry(val, r_)]
        stream = interleave(sv_, su_)
        for n_, x_ in enumerate(stream):
            put(x_)
            if n_ == 27:
                while pend:
                    idr, mf = pend.pop(0); lg.wait(idr); k(mf)
            if s == 3 and n_ == 40: k(flag_ld)
        assert not pend
        for kk in range(8):
            lg.op(f'ds_read_b128 {fa.sub(4 * kk, 4)}, {atr} offset:{TAB + 16 * 544 + 64 * kk}')
            i_ = lg.op(f'ds_read_b128 {fb.sub(4 * kk, 4)}, {atr} offset:{TAB + 64 * kk}')
            ac = kacc.sub(4 * s, 4)
            pend.append((i_, f'v_mfma_f32_16x16x32_f16 {ac}, {fa.sub(4 * kk, 4)}, {fb.sub(4 * kk, 4)}, {"0" if kk == 0 else ac}'))
    for x_ in (w1, w16, w32, w64, w128, w2, w4, w8, V, U, tm, pv, pu):
        for y_ in x_: y_.release()
    md_ = k.v(16, 4); sg = md_; cnt = k.s(); mg = par.sub(0, 2); amg = par[2]
    k(f'v_lshrrev_b32 {amg}, 2, {m}\nv_min_u32 {amg}, 2, {amg}\nv_mul_u32_u24 {amg}, 4608, {amg}\nv_and_b32 {mg[0]}, 3, {m}\nv_lshl_add_u32 {amg}, {mg[0]}, 3, {amg}')
    def kd_out(s):
        ac = kacc.sub(4 * s, 4)
        for e in range(4): k(f'v_mul_f32 {ac[e]}, {ks}, {ac[e]}')
        k(f'v_cvt_pk_bf16_f32 {ac[0]}, {ac[0]}, {ac[1]}\nv_cvt_pk_bf16_f32 {ac[2]}, {ac[2]}, {ac[3]}')
        for e in range(4): lg.op(f'ds_write_b16{"_d16_hi" if e & 1 else ""} {kda[s]}, {ac[e & 2]} offset:{32 * e}')
    for s in range(3): kd_out(s)
    SP(3); lg.reset() if SP.on else None
    got = k.s()
    def x_loads():
        k(f's_lshl_b32 {st}, {cidx}, 14\ns_add_u32 {st}, {st}, {O_XT}')
        for i in range(4):
            k(f'buffer_load_dwordx4 {x.sub(4 * i, 4)}, {ag}, {Rws}, {st} offen sc1')
            if i < 3: k(f's_add_u32 {st}, {st}, 4096')
    def gran_loads():
        for i in range(4): k(f's_mov_b32 {st}, {O_STATS + 4096 * i}\nbuffer_load_dwordx4 {sg.sub(4 * i, 4)}, {ag}, {Rws}, {st} offen sc1')
        mod_loads()
    def gran_check():
        k(f's_waitcnt vmcnt(0)\nv_and_b32 {am}, {sg[1]}, {sg[3]}')
        for i in (5, 9, 13): k(f'v_bitop3_b32 {am}, {am}, {sg[i]}, {sg[i + 2]} bitop3:0x80')
        k(f'v_cmp_ne_u32 vcc, 1, {am}\ns_cmp_eq_u64 vcc, 0')
    def mod_loads():
        k(f's_lshl_b32 {st}, {cidx}, 5\ns_add_u32 {st}, {st}, {O_MODG}')
        k(f'buffer_load_dwordx2 {mg}, {amg}, {Rws}, {st} offen sc1')
    def spin(i, flag_ld):
        lp, ok = k.label('poll'), k.label('go')
        k(f'{lp}:\nv_readfirstlane_b32 {st}, {fl_v[i]}\ns_cmp_ge_u32 {st}, 1\ns_cbranch_scc1 {ok}')
        k(f's_sleep 4\n{flag_ld}\ns_add_u32 {cnt}, {cnt}, 1\ns_cmp_lt_u32 {cnt}, {SPIN_MAX}\ns_waitcnt vmcnt(0)\ns_cbranch_scc1 {lp}\ns_branch {END}\n{ok}:')
    k(f'v_lshlrev_b32 {ag}, 4, v0\nv_lshlrev_b32 {a4}, 2, v0\ns_mov_b32 {cnt}, 0\ns_waitcnt vmcnt(0)')
    spin(0, flag_ld)
    gran_loads()
    while pend:
        idr, mf = pend.pop(0); lg.wait(idr); k(mf)
    kd_out(3)
    kc = fa.sub(0, 16); pvv = fa.sub(16, 8)
    gid = [lg.op(f'ds_read_u16 {ga[e]}, {ga[e]}') for e in range(32)]
    aw = kda[0]; ap = kda[1]
    k(f'v_lshl_add_u32 {aw}, {lane}, 4, {wb}\nv_lshrrev_b32 {ap}, 1, {lane}\nv_mul_u32_u24 {ap}, 4160, {ap}\nv_and_b32 {t[1]}, 1, {lane}')
    k(f'v_lshl_add_u32 {ap}, {t[1]}, 4, {ap}\nv_add_u32 {ap}, {wb}, {ap}')
    k(f's_mov_b64 exec, 0xff'); lg.op(f'ds_write_b128 {ap}, {z4}'); k('s_mov_b64 exec, -1')
    for c in range(4):
        lg.wait(gid[8 * c + 7])
        for e in range(4): k(f'v_lshl_or_b32 {kc[4 * c + e]}, {ga[8 * c + 2 * e + 1]}, 16, {ga[8 * c + 2 * e]}')
        lg.op(f'ds_write_b128 {aw}, {kc.sub(4 * c, 4)} offset:{32 + 1024 * c}')
    ids = [lg.op(f'ds_read_b64 {pvv.sub(2 * c, 2)}, {aw} offset:{24 + 1024 * c}') for c in range(4)]
    late = k.label('late')
    gran_check()
    k(f's_cselect_b32 {got}, 1, 0\ns_cbranch_scc0 {late}')
    x_loads()
    k(f'{late}:')
    for c in range(4):
        lg.wait(ids[c])
        o = fb.sub(12 * (c & 1), 12); d_ = kc.sub(4 * c, 4); p0, p1 = pvv[2 * c], pvv[2 * c + 1]
        seq = [p0, p1, d_[0], d_[1], d_[2], d_[3]]
        o3 = o.sub(0, 4); o1 = o.sub(4, 4); o2 = o.sub(8, 4)
        for i in range(4): k(f'v_alignbit_b32 {o3[i]}, {seq[i + 1]}, {seq[i]}, 16')
        for i in range(3): k(f'v_mov_b32 {o1[i]}, {o3[i + 1]}')
        k(f'v_alignbit_b32 {o1[3]}, {seq[5]}, {seq[4]}, 16')
        for i in range(4): k(f'v_mov_b32 {o2[i]}, {seq[i + 1]}')
        for r_, oo in ((1, o1), (2, o2), (3, o3)): lg.op(f'ds_write_b128 {aw}, {oo} offset:{4160 * r_ + 32 + 1024 * c}')
    if dump:
        k(f's_lshl_b32 {st}, {s_d}, 12\ns_add_u32 {st}, {st}, {O_DBG}\nv_lshlrev_b32 {t[1]}, 4, {lane}')
        for c in range(4): vm.op(f'buffer_store_dwordx4 {kc.sub(4 * c, 4)}, {t[1]}, {Rws}, {st} offen offset:{1024 * c}')
    ga.release(); acc = k.v(32, 4); kacc.release(); ks.release(); atw.release(); atr.release()
    SP(4); lg.reset() if SP.on else None
    have = k.label('have')
    lp, ok = k.label('again'), k.label('rows')
    k(f's_cmp_lg_u32 {got}, 0\ns_cbranch_scc1 {have}\n{lp}:')
    gran_loads(); gran_check()
    k(f's_cbranch_scc1 {ok}\ns_sleep 2\ns_add_u32 {cnt}, {cnt}, 1\ns_cmp_lt_u32 {cnt}, {SPIN_MAX}\ns_cbranch_scc1 {lp}\ns_branch {END}\n{ok}:')
    x_loads()
    k(f'{have}:')
    xf = k.v(32); hf = k.v(32); st_ = k.v(16)
    for i in range(8): k(f'v_and_b32 {st_[2 * i]}, 0xffff0000, {sg[2 * i]}\nv_lshlrev_b32 {st_[2 * i + 1]}, 16, {sg[2 * i]}')
    for i in range(8): k(f'v_rcp_f32 {st_[2 * i]}, {st_[2 * i]}')
    for i in range(8): k(f'v_mul_f32 {st_[2 * i + 1]}, -{st_[2 * i + 1]}, {st_[2 * i]}')
    k('s_waitcnt vmcnt(0)')
    SP(14); lg.reset() if SP.on else None
    for i in range(16): k(f'v_lshlrev_b32 {xf[2 * i]}, 16, {x[i]}\nv_and_b32 {xf[2 * i + 1]}, 0xffff0000, {x[i]}')
    k(f'v_add_u32 {am}, {HB + 512}, {a4}')
    for j in range(16): k(f'v_pk_fma_f32 {hf.sub(2 * j, 2)}, {xf.sub(2 * j, 2)}, {st_.sub(2 * (j // 2), 2)}, {st_.sub(2 * (j // 2), 2)} op_sel:[0,0,1] op_sel_hi:[1,0,1]')
    lp, ok = k.label('gran'), k.label('got')
    k(f'{lp}:')
    k(f'v_cmp_ne_u32 vcc, 1, {mg[1]}\ns_cmp_eq_u64 vcc, 0\ns_cbranch_scc1 {ok}\ns_sleep 2')
    mod_loads()
    k(f's_add_u32 {cnt}, {cnt}, 1\ns_cmp_lt_u32 {cnt}, {SPIN_MAX}\ns_waitcnt vmcnt(0)\ns_cbranch_scc1 {lp}\ns_branch {END}\n{ok}:')
    for i in range(12): k(f'v_mov_b32_dpp {md_[i]}, {mg[0]} row_newbcast:{i} row_mask:0xf bank_mask:0xf')
    SP(5)
    for i in range(4):
        for j in range(4 * i, 4 * i + 4): k(f'v_pk_fma_f32 {hf.sub(2 * j, 2)}, {hf.sub(2 * j, 2)}, {md_.sub(4 + 2 * (j & 1), 2)}, {md_.sub(2 * (j & 1), 2)}')
        for c in range(4): k(f'v_cvt_pk_bf16_f32 {x[4 * i + c]}, {hf[8 * i + c]}, {hf[8 * i + 4 + c]}')
        for c in range(4): lg.op(f'ds_write_b32 {am}, {x[4 * i + c]} offset:{HSTR * c + 1024 * i}')
    st_.release()
    aA = kda[2]; aB = kda[3]
    k(f'v_bfe_u32 {t[0]}, {lane}, 2, 2\nv_mul_u32_u24 {aA}, 4160, {t[0]}\nv_and_b32 {t[0]}, 3, {lane}\nv_lshl_add_u32 {aA}, {t[0]}, 3, {aA}')
    k(f'v_lshlrev_b32 {t[0]}, 4, {q}\nv_sub_u32 {aA}, {aA}, {t[0]}\ns_add_u32 {st}, {wb}, 56\nv_add_u32 {aA}, {st}, {aA}')
    k(f's_mul_i32 {st}, {s_w}, {HSTR}\ns_add_u32 {st}, {st}, {HB + 480}\nv_lshl_add_u32 {aB}, {m}, 5, {t[0]}\nv_add_u32 {aB}, {st}, {aB}')
    lg.all(); k('s_barrier'); SP(6)
    fa2 = k.a(32, 4); fb2 = k.a(32, 4)
    sets = [(fa, fb), (fa2, fb2)]
    k(f'v_add_u32 {aB}, -448, {aB}')
    def reads(r_):
        A_, B_ = sets[r_ & 1]; out = []
        for i in range(8):
            out.append(f'ds_read_b128 {B_.sub(4 * i, 4)}, {aB} offset:{448 - 64 * r_ + 512 * i}')
            out.append(f'ds_read_b64_tr_b16 {A_.sub(4 * i, 2)}, {aA} offset:{64 * r_ + 8 + 512 * i}')
            out.append(f'ds_read_b64_tr_b16 {A_.sub(4 * i + 2, 2)}, {aA} offset:{64 * r_ + 512 * i}')
        return out
    jm = k.s(); l16 = k.v()
    k(f's_lshr_b32 {jm}, s2, 5\ns_sub_u32 {jm}, {jm}, 2\nv_lshlrev_b32 {l16}, 4, {lane}')
    pd = PairDma(k, s_w, jm, O_W1F, Rws, l16, W1_AT)
    early = [g for P_ in range(5) for g in pd.ops(P_)]
    flag_ld = f'buffer_load_dwordx2 {fl_v}, {z4[0]}, {Rdbg}, 0 offen offset:200 sc1'
    k(f'v_lshlrev_b32 {t[0]}, 3, {q}\nv_lshl_add_u32 {t[0]}, {m}, 5, {t[0]}\nv_add_u32 {t[0]}, {wb}, {t[0]}')
    dv = t.sub(4, 4)
    k(f's_lshl_b32 {st}, {sD[0]}, 16\ns_and_b32 {st2}, {sD[0]}, 0xffff0000\nv_mov_b32 {dv[0]}, {st}\nv_mov_b32 {dv[1]}, {st2}')
    k(f's_lshl_b32 {st}, {sD[1]}, 16\ns_and_b32 {st2}, {sD[1]}, 0xffff0000\nv_mov_b32 {dv[2]}, {st}\nv_mov_b32 {dv[3]}, {st2}')
    def y_out(tt):
        o = x.sub(2 * tt, 2)
        return [f'v_cvt_pk_bf16_f32 {o[0]}, {acc[4 * tt]}, {acc[4 * tt + 1]}', f'v_cvt_pk_bf16_f32 {o[1]}, {acc[4 * tt + 2]}, {acc[4 * tt + 3]}',
                f'ds_write_b64 {t[0]}, {o} offset:{512 * tt}']
    yq = []
    cur = [lg.op(x_) for x_ in reads(0)]
    for r_ in range(8):
        rd = reads(r_ + 1) if r_ < 7 else []
        A_, B_ = sets[r_ & 1]; nxt = []
        order = [(i, tt) for i in range(8) for tt in range(i, 8)] if r_ else sorted(((i, tt) for i in range(8) for tt in range(i, 8)), key=lambda p: (max(p[0], p[1] - p[0]), p))
        seen = set()
        if r_ == 4: k(flag_ld)
        if r_ == 5: k('s_waitcnt vmcnt(0)'); spin(0, flag_ld)
        for n_, (i, tt) in enumerate(order):
            lg.wait(max(cur[3 * i + 2], cur[3 * (tt - i)]))
            first = r_ == 0 and tt not in seen; seen.add(tt)
            k(f'v_mfma_f32_16x16x32_bf16 {acc.sub(4 * tt, 4)}, {A_.sub(4 * i, 4)}, {B_.sub(4 * (tt - i), 4)}, {"0" if first else acc.sub(4 * tt, 4)}')
            if rd: nxt.append(lg.op(rd.pop(0)))
            if r_ == 7:
                if i == tt and i: yq += y_out(i - 1)
                for _ in range(2):
                    if yq: x_ = yq.pop(0); lg.op(x_) if x_.startswith('ds_') else k(x_)
            if r_ >= 5 and n_ >= (24 if r_ < 7 else 0) and n_ % 2 == 0 and early:
                for x_ in early.pop(0): k(x_)
        cur = nxt
    assert not early
    SP(7)
    for x_ in yq + y_out(7): k(x_)
    k('s_waitcnt lgkmcnt(0)\ns_barrier')
    lg.reset()
    yp = fb.sub(0, 16); yf = acc; o = fa
    ids = [[lg.op(f'ds_read_b32 {yp[4 * i + c]}, {a4} offset:{WSTR * c + 1024 * i}') for c in range(4)] for i in range(4)]
    k(f's_lshl_b32 {st}, {cidx}, 14\ns_add_u32 {st}, {st}, {O_X2}')
    for i in range(4):
        lg.wait(ids[i][3])
        for c in range(4): k(f'v_lshlrev_b32 {yf[8 * i + c]}, 16, {yp[4 * i + c]}\nv_and_b32 {yf[8 * i + 4 + c]}, 0xffff0000, {yp[4 * i + c]}')
        for j in range(4 * i, 4 * i + 4): k(f'v_pk_fma_f32 {yf.sub(2 * j, 2)}, {hf.sub(2 * j, 2)}, {dv.sub(2 * (j & 1), 2)}, {yf.sub(2 * j, 2)}')
        for j in range(4 * i, 4 * i + 4): k(f'v_pk_fma_f32 {yf.sub(2 * j, 2)}, {yf.sub(2 * j, 2)}, {md_.sub(8 + 2 * (j & 1), 2)}, {xf.sub(2 * j, 2)}')
        for j in range(4): k(f'v_cvt_pk_bf16_f32 {o[4 * i + j]}, {yf[8 * i + 2 * j]}, {yf[8 * i + 2 * j + 1]}')
        k(f'buffer_store_dwordx4 {o.sub(4 * i, 4)}, {ag}, {Rws}, {st} offen sc1')
        if i < 3: k(f's_add_u32 {st}, {st}, 4096')
```

```python
from common import *

K2_LDS = LDS_BYTES
T_B, T_G, T_F = TABS, TABS + 3456, TABS + 6144
XBUF, HBUF = 0, 73728
X1C, PSTL = 147456, 147456 + 9216
SPIN_MAX = 40000
GC1 = -2.0 * LOG2E * 0.7978845608028654
GC2 = GC1 * 0.044715
PI = [0, 1, 2, 5, 6, 7, 9, 10, 11, 14, 15, 16, 3, 12, 4, 8, 13, 17]
MF = 'v_mfma_f32_16x16x32_bf16'

def un(d, s_, hi): return f'v_and_b32 {d}, 0xffff0000, {s_}' if hi else f'v_lshlrev_b32 {d}, 16, {s_}'

def gelu_consts(k, sig, c):
    k(f'v_mov_b32 {c[2]}, {sig}\nv_rcp_f32 {c[0]}, {sig}')
    k(f'v_mul_f32 {c[1]}, {c[0]}, {c[0]}\nv_mul_f32 {c[1]}, {c[1]}, {c[0]}')
    k(f'v_mul_f32 {c[0]}, {fl(GC1)}, {c[0]}\nv_mul_f32 {c[1]}, {fl(GC2)}, {c[1]}')

def phase2(k, P, lane, s_w, END, SP, opt=()):
    stamps = SP.on
    WFL = ' sc1'
    PFL = ' '.join(o[2:] for o in opt if o.startswith('p_')) or 'sc1'
    q = k.v(); m = k.v(); l16 = k.v(); one = k.v(); zero = k.v(); fv4 = k.v(8, 4)
    Rws = k.s(4); RG = k.s(4); RW = k.s(4)
    srd(k, RG, P['dbg'], 256)
    k('s_sub_u32 vcc_lo, s2, 103\ns_sub_u32 vcc_hi, s2, 7\ns_cmp_lt_u32 vcc_hi, 9\ns_cselect_b32 vcc_hi, 96, 0\ns_cmp_lt_u32 vcc_lo, 9\ns_cselect_b32 vcc_hi, -96, vcc_hi\ns_add_u32 s2, s2, vcc_hi')
    k(f'v_mov_b32 {one}, 1\nv_mov_b32 {zero}, 0')
    go_ld = f'buffer_load_dwordx4 {fv4[0:4]}, {zero}, {RG}, 0 offen offset:192 sc1'
    k(go_ld)
    k(f'v_lshrrev_b32 {q}, 4, {lane}\nv_and_b32 {m}, 15, {lane}\nv_lshlrev_b32 {l16}, 4, {lane}')
    rb = k.s(); jm = k.s(); mb = k.s(); fs = k.s(); st = k.s(); st1 = k.s(); sav = k.s(2); cnt = k.s(); mt = k.s()
    k(f's_and_b32 {st}, s2, 1\ns_lshl_b32 {mb}, {st}, 4\ns_bfe_u32 {st}, s2, 0x20001\ns_lshl_b32 {fs}, {st}, 1\ns_lshl_b32 {rb}, {st}, 2\ns_add_u32 {rb}, {rb}, {mb}')
    k(f's_bfe_u32 {st}, s2, 0x20003\ns_add_u32 {rb}, {rb}, {st}\ns_lshr_b32 {jm}, s2, 5\ns_sub_u32 {jm}, {jm}, 2')
    k(f's_bfe_u32 {st}, s2, 0x40003\ns_add_u32 {mb}, {mb}, {st}\ns_lshr_b32 {st}, s2, 7\ns_add_u32 {fs}, {fs}, {st}')
    if 'a4' in opt:
        k(f's_and_b32 {mb}, s2, 3\ns_lshl_b32 {mb}, {mb}, 3\ns_bfe_u32 {st}, s2, 0x30003\ns_add_u32 {mb}, {mb}, {st}')
        k(f's_bfe_u32 {fs}, s2, 0x10002\ns_lshl_b32 {fs}, {fs}, 2\ns_lshr_b32 {st}, s2, 6\ns_add_u32 {fs}, {fs}, {st}')
    if 'a1' in opt: k(f's_lshr_b32 {mb}, s2, 3\ns_and_b32 {fs}, s2, 7')
    if 'a8' in opt:
        k(f's_and_b32 {mb}, s2, 7\ns_lshl_b32 {mb}, {mb}, 2\ns_bfe_u32 {st}, s2, 0x20003\ns_add_u32 {mb}, {mb}, {st}\ns_lshr_b32 {fs}, s2, 5')
    k(f's_lshl_b32 {mt}, {rb}, 2\ns_add_u32 {mt}, {mt}, {s_w}\ns_mov_b32 {cnt}, 0')
    srd(k, Rws, P['ws'], WS_USED); srd(k, RW, P['ws'], WS_USED)
    vm, lg = trackers(k)
    def STAMP(i, g4=False):
        mode = 'g4st' if 'g4st' in opt else 'g3st' if 'g3st' in opt else False
        if stamps and (g4 == mode or (i not in (1, 2, 3, 4, 5) and not g4)): SP(i); lg.reset()
    def flag_add(s_idx, base):
        k(f's_lshl_b32 {st}, {s_idx}, 7\ns_add_u32 {st}, {st}, {base}\ns_mov_b64 exec, 1')
        vm.op(f'buffer_atomic_add {one}, {zero}, {Rws}, {st} offen sc1')
        k('s_mov_b64 exec, -1')
    def poll(vaddr, base, target, sleep=0, fv=None):
        own = fv is None; fv = fv or k.v(); lp, ok = k.label('poll'), k.label('ok')
        k(f's_mov_b32 {st1}, {base}\n{lp}:\nbuffer_load_dword {fv}, {vaddr}, {Rws}, {st1} offen sc1\ns_waitcnt vmcnt(0)')
        k(f'v_cmp_gt_u32 vcc, {target}, {fv}\ns_cmp_eq_u64 vcc, 0\ns_cbranch_scc1 {ok}')
        if sleep: k(f's_sleep {sleep}')
        k(f's_add_u32 {cnt}, {cnt}, 1\ns_cmp_lt_u32 {cnt}, {SPIN_MAX}\ns_cbranch_scc1 {lp}\ns_branch {END}\n{ok}:')
        vm.reset()
        if own: fv.release()
    W = [k.a(72, 4), k.a(72, 4)]; vo = [l16] + [k.v() for _ in range(4)]
    for g in range(1, 5): k(f'v_add_u32 {vo[g]}, {4096 * g}, {l16}')
    sn = k.s(); s4 = k.s()
    k(f's_lshl_b32 {sn}, {fs}, 2\ns_add_u32 {sn}, {sn}, {s_w}\ns_mul_i32 {sn}, {sn}, {9 * 18432}\ns_add_u32 {s4}, {sn}, {O_W4F}\ns_add_u32 {sn}, {sn}, {O_W3F}')
    wld = lambda r_, ks: f'buffer_load_dwordx4 {W[r_].sub(4 * ks, 4)}, {vo[ks // 4]}, {RW}, {sn} offen offset:{1024 * (ks % 4)}' + WFL
    sm = k.s(); so = k.s()
    k(f's_lshl_b32 {sm}, {s_w}, 10')
    def spin(ld, regs, sleep=16):
        lp, ok = k.label('spin'), k.label('up')
        k(f'{lp}:\ns_waitcnt vmcnt(0)')
        if len(regs) > 1: k(f'v_and_b32 {fv4[7]}, {regs[0]}, {regs[1]}')
        k(f'v_cmp_eq_u32 vcc, 0, {fv4[7] if len(regs) > 1 else regs[0]}\ns_cmp_eq_u64 vcc, 0\ns_cbranch_scc1 {ok}')
        k(f's_sleep {sleep}\n{ld}\ns_add_u32 {cnt}, {cnt}, 1\ns_cmp_lt_u32 {cnt}, {SPIN_MAX}\ns_cbranch_scc1 {lp}\ns_branch {END}\n{ok}:')
    RB = k.v(24, 4)
    keepV, keepA, keepS = list(k.V.free), list(k.A.free), list(k.S.free)
    XX = k.v(146, 2); t = k.v(8); row = k.v()
    pd1 = PairDma(k, s_w, jm, O_W1F, Rws, l16, W1_AT)
    k(f's_lshl_b32 {st}, {s_w}, 6\nv_add_u32 {t[2]}, {st}, {lane}')
    u_ = XX.sub(0, 4)
    def tab_src(d, u):
        k(f's_mul_i32 {st}, {jm}, 12\nv_cmp_le_u32 vcc, 72, {u}\nv_subrev_u32 {u_[0]}, 72, {u}\nv_cndmask_b32 {u_[0]}, {u}, {u_[0]}, vcc\nv_add_u32 {u_[0]}, {st}, {u_[0]}')
        k(f'v_mov_b32 {u_[2]}, {O_MODB + 1152}\nv_mov_b32 {u_[3]}, {O_MODB}\nv_cndmask_b32 {u_[2]}, {u_[2]}, {u_[3]}, vcc')
        k(f'v_cmp_le_u32 vcc, 72, {u_[0]}\nv_subrev_u32 {u_[1]}, 72, {u_[0]}\nv_cndmask_b32 {u_[0]}, {u_[0]}, {u_[1]}, vcc\nv_lshl_add_u32 {d}, {u_[0]}, 4, {u_[2]}')
        k(f's_mul_i32 {st}, {jm}, 24\ns_sub_u32 {st}, {st}, 144\nv_add_u32 {u_[0]}, {st}, {u}\nv_cmp_le_u32 vcc, 144, {u_[0]}\nv_subrev_u32 {u_[1]}, 144, {u_[0]}')
        k(f'v_cndmask_b32 {u_[0]}, {u_[0]}, {u_[1]}, vcc\nv_lshlrev_b32 {u_[0]}, 4, {u_[0]}\nv_add_u32 {u_[0]}, {O_MODF + 4 * 2304}, {u_[0]}')
        k(f'v_cmp_le_u32 vcc, 144, {u}\nv_cndmask_b32 {d}, {d}, {u_[0]}, vcc')
    tab_src(t[3], t[2])
    k(f'v_add_u32 {t[5]}, 256, {lane}')
    tab_src(t[4], t[5])
    k(f'v_mul_u32_u24 {t[5]}, 43691, {t[2]}\nv_lshrrev_b32 {t[5]}, 20, {t[5]}\nv_mul_u32_u24 {t[6]}, 120, {t[5]}')
    k(f'v_add_u32 {t[6]}, {t[6]}, {t[2]}\nv_lshlrev_b32 {t[6]}, 4, {t[6]}')
    pd = PairDma(k, s_w, jm, O_W2F, Rws, l16, W2_AT)
    k(f's_lshl_b32 {st}, {mt}, 4\nv_add_u32 {row}, {st}, {m}')
    k(f'v_lshlrev_b32 {t[0]}, 15, {q}\nv_lshl_add_u32 {t[0]}, {row}, 3, {t[0]}\nv_add_u32 {t[1]}, 0x4000, {t[0]}')
    ones = k.v(4, 4); sacc = k.v(4, 4); gacc = k.v(4, 4); tacc = k.v(4, 4); qacc = k.v(4, 4); acc = k.v(24, 4)
    for i in range(4): k(f'v_mov_b32 {ones[i]}, 0x3f803f80')
    msk = [k.s(2) for _ in range(3)]; bidx = k.v()
    k(f'v_and_b32 {t[2]}, 3, {m}')
    for e in range(3): k(f'v_cmp_eq_u32 {msk[e]}, {e + 1}, {t[2]}')
    aT = k.v(); aW = [l16, k.v(), k.v()]
    k(f'v_min_u32 {t[2]}, 2, {t[2]}\nv_mul_u32_u24 {aT}, 1152, {t[2]}\nv_lshl_add_u32 {aT}, {q}, 4, {aT}\nv_add_u32 {aT}, {T_B}, {aT}\nv_lshlrev_b32 {t[7]}, 5, {q}\nv_add_u32 {t[7]}, {T_G}, {t[7]}')
    k(f'v_lshrrev_b32 {t[2]}, 2, {m}\nv_lshl_add_u32 {t[2]}, {t[2]}, 4, {m}\nv_lshlrev_b32 {bidx}, 2, {t[2]}')
    k(f'v_add_u32 {aW[1]}, 0xf000, {l16}\nv_add_u32 {aW[2]}, 0x1e000, {l16}')
    k(f'v_lshlrev_b32 {t[2]}, 4, v0\nv_add_u32 {t[2]}, {T_B}, {t[2]}')
    spin(go_ld, [fv4[0]])
    k('s_waitcnt lgkmcnt(0)\ns_barrier')
    STAMP(15)
    NSH = 4
    na, nb = k.label('noarr'), k.label('notlast')
    k(f's_sub_u32 {st}, s2, 7\ns_cmp_lt_u32 {st}, 9\ns_cbranch_scc1 {na}')
    k(f's_cmp_lg_u32 {s_w}, 0\ns_cbranch_scc1 {na}\ns_lshr_b32 {st1}, s2, 3\ns_and_b32 {st1}, {st1}, {NSH - 1}\ns_lshl_b32 {st}, {st1}, 7\ns_add_u32 {st}, {st}, {O_FA}\ns_mov_b64 exec, 1')
    k(f'v_mov_b32 {fv4[4]}, 1\nbuffer_atomic_add {fv4[4]}, {zero}, {Rws}, {st} offen sc0 sc1\ns_cmp_eq_u32 {st1}, 0\ns_cselect_b32 {so}, 62, 63\ns_cmp_eq_u32 {st1}, 1\ns_cselect_b32 {so}, 55, {so}\ns_add_u32 {st1}, {st}, {O_FG - O_FA}\ns_waitcnt vmcnt(0)')
    k(f'v_readfirstlane_b32 {st}, {fv4[4]}\ns_cmp_lg_u32 {st}, {so}\ns_cbranch_scc1 {nb}')
    k(f'buffer_store_dword {one}, {zero}, {Rws}, {st1} offen sc1\n{nb}:\ns_mov_b64 exec, -1\n{na}:')
    go3_ld = f'buffer_load_dword {fv4[0]}, {fv4[5]}, {Rws}, 0 offen sc1'
    k(f'v_and_b32 {fv4[5]}, {NSH - 1}, {lane}\nv_lshlrev_b32 {fv4[5]}, 7, {fv4[5]}\nv_add_u32 {fv4[5]}, {O_FG}, {fv4[5]}')
    k('s_cmp_lt_u32 s2, 64\ns_cbranch_scc1 k2_idle')

    w0, w5, wj = k.label('havew1'), k.label('rest'), k.label('joined')
    spin(go_ld, [fv4[2], fv4[3]])
    k(f's_add_u32 m0, {sm}, {T_B + 1152}\nbuffer_load_dwordx4 {t[3]}, {Rws}, 0 offen sc1 lds')
    k(f's_mov_b32 m0, {T_B + 1152 + 4096}\ns_mov_b32 exec_hi, 0\nbuffer_load_dwordx4 {t[4]}, {Rws}, 0 offen sc1 lds\ns_mov_b64 exec, -1')
    k(f's_cmp_ge_u32 s2, 112\ns_cbranch_scc1 {w0}')
    for P_ in range(5):
        for g in pd1.ops(P_):
            for x_ in g: k(x_)
    k(f's_waitcnt vmcnt(0)\n{w0}:\ns_barrier\ns_cmp_eq_u32 {s_w}, 0\ns_cbranch_scc1 {w5}')
    k(f's_lshl_b32 {pd1.t}, {s_w}, 11\ns_sub_u32 {pd1.t}, {pd1.t}, 2048\ns_mul_i32 {pd1.src}, {jm}, 110592\ns_add_u32 {pd1.src}, {pd1.src}, {pd1.t}\ns_add_u32 {pd1.src}, {pd1.src}, {O_W1F + 61440}')
    for sl_i in range(10, 18):
        k(f's_add_u32 m0, {pd1.t}, {W1_AT[sl_i]}\nbuffer_load_dwordx4 {l16}, {Rws}, {pd1.src} offen sc1 lds')
        k(f'buffer_load_dwordx4 {l16}, {Rws}, {pd1.src} offen offset:1024 sc1 lds')
        if sl_i < 17: k(f's_add_u32 {pd1.src}, {pd1.src}, 6144')
    k(f'{w5}:')
    pd1.release()
    k(f'v_cmp_gt_u32 vcc, 72, v0\ns_and_saveexec_b64 {sav}, vcc\nds_write_b128 {t[2]}, {ones}\ns_mov_b64 exec, {sav}')
    w2ops = [g for P_ in range(9) for g in pd.ops(P_)]
    def w2dma():
        for x_ in w2ops.pop(0): vm.op(x_) if x_.startswith('buffer') else k(x_)
    ix = []
    def issue(i):
        vm.op(f'buffer_load_dwordx2 {XX.sub(4 * i, 2)}, {t[0]}, {Rws}, {st1} offen sc1')
        ix.append(vm.op(f'buffer_load_dwordx2 {XX.sub(4 * i + 2, 2)}, {t[1]}, {Rws}, {st1} offen sc1'))
        if i < 17: k(f's_add_u32 {st1}, {st1}, 131072')
        if i % 3 == 2 and i < 17: k(f's_cmp_eq_u32 {st1}, {O_X2 + 18 * 131072}\ns_cselect_b32 {st1}, {O_X2}, {st1}')
    lds_at = lambda a_: f'{aW[a_ // 0xf000]} offset:{a_ % 0xf000}'
    TF = W[1]; WR = [k.a(24, 4), k.a(24, 4)]
    def w_reads(i):
        return [f'ds_read_b128 {WR[i & 1].sub(4 * tt, 4)}, {lds_at(W1_AT[i] + 1024 * tt)}' for tt in range(6)]
    k(f's_cmp_lg_u32 {s_w}, 0\ns_cbranch_scc1 {wj}\n{go3_ld}')
    spin(go3_ld, [fv4[0]], 2)
    k(f'{wj}:\ns_mul_i32 {st1}, {jm}, {3 * 131072}\ns_add_u32 {st1}, {st1}, {O_X2}\ns_mul_i32 {so}, {jm}, 384\ns_add_u32 {so}, {so}, {O_MOD2}\ns_waitcnt vmcnt(16) lgkmcnt(0)\ns_barrier'); vm.reset(); lg.reset()
    STAMP(0)
    nis = 5
    for i in range(nis): issue(i)
    k(f's_mov_b32 {st}, {O_FU}')
    ifu = vm.op(f'buffer_load_dword {fv4[0]}, {zero}, {Rws}, {st} offen sc1')
    itf = [lg.op(f'ds_read_b128 {TF.sub(4 * i, 4)}, {aT} offset:{64 * i}') for i in range(18)]
    iwr = [lg.op(x_) for x_ in w_reads(0)]
    for i in range(18):
        lg.wait(itf[i]); k(f'{MF} {acc[4:8]}, {TF.sub(4 * i, 4)}, {TF.sub(4 * i, 4)}, {"0" if i == 0 else acc[4:8]}')
    cs = k.s(5, 1)
    for n_, (e, j_) in enumerate(((0, 1), (0, 2), (1, 1), (1, 2), (2, 2))): k(f'v_readlane_b32 {cs[n_]}, {acc[4 + e]}, {j_}')
    XG = [XX.sub(72, 4), XX.sub(76, 4)]; GT = [XX.sub(80, 8), XX.sub(88, 8)]; tv = XX.sub(96, 8)
    g_reads = lambda i: [f'ds_read_b128 {GT[i & 1].sub(4 * h, 4)}, {t[7]} offset:{128 * i + 16 * h}' for h in range(2)]
    def xg_ops(i):
        xs = XX.sub(4 * i, 4); g_ = GT[i & 1]
        return ([un(tv[e], xs[e >> 1], e & 1) for e in range(8)] + [f'v_mul_f32 {tv[e]}, {tv[e]}, {g_[e]}' for e in range(8)]
                + [f'v_cvt_pk_bf16_f32 {XG[i & 1][e]}, {tv[2 * e]}, {tv[2 * e + 1]}' for e in range(4)])
    ig0 = [lg.op(x_) for x_ in g_reads(0) + g_reads(1)]
    vm.wait(ix[0]); lg.wait(ig0[1])
    for x_ in xg_ops(0): k(x_)
    igt = ig0[3]; n2 = 0
    for i in range(18):
        if i == 9: vm.wait(itab)
        if i in (9, 13): k('s_barrier')
        if i == 1: STAMP(1)
        xg = XG[i & 1]; xr = XX.sub(4 * i, 4)
        c_ = lambda r_: '0' if i == 0 else r_
        M = [(0, f'{MF} {sacc}, {ones}, {xr}, {c_(sacc)}'), (0, f'{MF} {gacc}, {xr}, {xr}, {c_(gacc)}'),
             (0, f'{MF} {tacc}, {TF.sub(4 * i, 4)}, {xg}, {c_(tacc)}'), (0, f'{MF} {qacc}, {xg}, {xg}, {c_(qacc)}')]
        M += [(iwr[tt], f'{MF} {acc.sub(4 * tt, 4)}, {WR[i & 1].sub(4 * tt, 4)}, {xg}, {c_(acc.sub(4 * tt, 4))}') for tt in range(6)]
        Rd = w_reads(i + 1) if i < 17 else []
        V = xg_ops(i + 1) if i < 17 else []
        Gd = g_reads(i + 2) if i < 16 else []
        nxt = []
        for n_, (idr, mm) in enumerate(M):
            lg.wait(idr); k(mm)
            if Rd and n_ < 6: nxt.append(lg.op(Rd.pop(0)))
            if V and n_ == 0: vm.wait(ix[i + 1])
            if V and n_ == 4: lg.wait(igt)
            if Gd and n_ >= 8: ign = lg.op(Gd.pop(0))
            for _ in range(2):
                if V: k(V.pop(0))
        iwr = nxt
        if i < 16: igt = ign
        if i == 5:
            ok = k.label('uok'); lp = k.label('upoll')
            vm.wait(ifu)
            k(f'{lp}:\nv_cmp_gt_u32 vcc, 9, {fv4[0]}\ns_cmp_eq_u64 vcc, 0\ns_cbranch_scc1 {ok}\ns_mov_b32 {st}, {O_FU}\nbuffer_load_dword {fv4[0]}, {zero}, {Rws}, {st} offen sc1')
            k(f's_add_u32 {cnt}, {cnt}, 1\ns_cmp_lt_u32 {cnt}, {SPIN_MAX}\ns_waitcnt vmcnt(0)\ns_cbranch_scc1 {lp}\ns_branch {END}\n{ok}:')
            k(f's_add_u32 m0, {sm}, {T_F}')
            itab = vm.op(f'buffer_load_dwordx4 {t[6]}, {Rws}, {so} offen sc1 lds')
        if nis < 18:
            for _ in range(2 if nis < i + 9 else 1):
                if nis < 18: issue(nis); nis += 1
        else:
            for _ in range(3):
                if n2 < (18 if i < 13 else 27): w2dma(); n2 += 1
    assert n2 == 27
    STAMP(2)
    k.inject([lambda ks=ks: vm.op(wld(0, ks)) for ks in PI], 9)
    TB = [XX.sub(24, 16), XX.sub(40, 16)]; uu = XX.sub(56, 48)
    k(f'v_lshlrev_b32 {aT}, 5, {q}\nv_add_u32 {aT}, {T_F}, {aT}')
    tf_read = lambda dst, r_, e: f'ds_read_b128 {dst}, {aT} offset:{384 * r_ + 128 * (e >> 1) + 16 * (e & 1)}'
    def diag(d, g_):
        k(f'v_cndmask_b32 {d}, {g_[0]}, {g_[1]}, {msk[0]}\nv_cndmask_b32 {d}, {d}, {g_[2]}, {msk[1]}\nv_cndmask_b32 {d}, {d}, {g_[3]}, {msk[2]}')
        return lg.op(f'ds_bpermute_b32 {d}, {bidx}, {d}')
    i2 = diag(t[2], qacc); i1 = diag(t[1], gacc)
    iu = [lg.op(tf_read(uu.sub(24 * r_ + 4 * e, 4), 3 + r_, e)) for e in range(6) for r_ in range(2)]
    s1 = XX.sub(140, 2); gc = XX.sub(136, 4)
    k(f'v_mov_b32 {t[0]}, {sacc[0]}'); lg.wait(i1)
    sigma_bf16(k, t[0], t[1])
    k(f'v_cvt_pk_bf16_f32 {t[0]}, {t[0]}, {t[1]}\nv_and_b32 {s1[0]}, 0xffff0000, {t[0]}\nv_lshlrev_b32 {s1[1]}, 16, {t[0]}')
    k(f'v_rcp_f32 {s1[0]}, {s1[0]}\nv_mov_b32 {t[3]}, {cs[1]}\nv_mov_b32 {t[4]}, {cs[3]}\nv_mul_f32 {s1[1]}, -{s1[1]}, {s1[0]}')
    k(f'v_fma_f32 {t[3]}, {s1[1]}, {cs[0]}, {t[3]}\nv_fma_f32 {t[0]}, {s1[0]}, {tacc[0]}, {t[3]}')
    k(f'v_fma_f32 {t[3]}, {s1[1]}, {tacc[1]}, {tacc[2]}\nv_add_f32 {t[3]}, {t[3]}, {t[3]}\nv_fma_f32 {t[3]}, {s1[0]}, {t[2]}, {t[3]}')
    k(f'v_add_f32 {t[4]}, {t[4]}, {t[4]}\nv_fma_f32 {t[4]}, {s1[1]}, {cs[2]}, {t[4]}\nv_mov_b32 {t[5]}, {cs[4]}\nv_fma_f32 {t[4]}, {s1[1]}, {t[4]}, {t[5]}')
    k(f'v_fma_f32 {t[1]}, {s1[0]}, {t[3]}, {t[4]}')
    sigma_bf16(k, t[0], t[1])
    k(f'v_cvt_pk_bf16_f32 {t[1]}, {t[1]}, {t[1]}\nv_and_b32 {t[1]}, 0xffff0000, {t[1]}')
    gelu_consts(k, t[1], gc)
    k(f's_mul_i32 {st}, {jm}, {3 * GPL}\ns_lshl_b32 {so}, {mt}, 10\ns_add_u32 {st}, {st}, {so}\ns_add_u32 {st}, {st}, {O_G + 1024}')
    lg.all()
    for e in range(12): k(f'v_pk_fma_f32 {uu.sub(2 * e, 2)}, {uu.sub(2 * e, 2)}, {s1}, {uu.sub(24 + 2 * e, 2)} op_sel:[0,1,0] op_sel_hi:[1,1,1]')
    for e in range(12): k(f'v_pk_fma_f32 {acc.sub(2 * e, 2)}, {acc.sub(2 * e, 2)}, {s1}, {uu.sub(2 * e, 2)} op_sel_hi:[1,0,1]')
    tt_ = TB[0]; go = TB[1]
    for Pp in range(3):
        a = acc.sub(8 * Pp, 8); u = tt_.sub(0, 8)
        for e in range(4): k(f'v_pk_mul_f32 {u.sub(2 * e, 2)}, {a.sub(2 * e, 2)}, {a.sub(2 * e, 2)}')
        for e in range(4): k(f'v_pk_fma_f32 {u.sub(2 * e, 2)}, {u.sub(2 * e, 2)}, {gc[0:2]}, {gc[0:2]} op_sel:[0,1,0] op_sel_hi:[1,1,0]')
        for e in range(4): k(f'v_pk_mul_f32 {u.sub(2 * e, 2)}, {u.sub(2 * e, 2)}, {a.sub(2 * e, 2)}')
        for e in range(8): k(f'v_exp_f32 {u[e]}, {u[e]}')
        for e in range(4): k(f'v_pk_fma_f32 {u.sub(2 * e, 2)}, {u.sub(2 * e, 2)}, {gc[2:4]}, {gc[2:4]} op_sel_hi:[1,0,0]')
        for e in range(8): k(f'v_rcp_f32 {u[e]}, {u[e]}')
        for e in range(4): k(f'v_pk_mul_f32 {u.sub(2 * e, 2)}, {u.sub(2 * e, 2)}, {a.sub(2 * e, 2)}')
        o = go.sub(4 * Pp, 4)
        for e in range(4): k(f'v_cvt_pk_bf16_f32 {o[e]}, {u[2 * e]}, {u[2 * e + 1]}')
        if Pp == 2: k.flush_inject()
        ig = vm.op(f'buffer_store_dwordx4 {o}, {l16}, {Rws}, {st} offen sc1')
        if Pp < 2: k(f's_add_u32 {st}, {st}, {GPL}')
    h2f = uu.sub(0, 24); x2f = XX.sub(104, 24); gbv = RB
    xsrc = lambda e: XX[e >> 1]
    ig_ = [lg.op(tf_read(gbv.sub(4 * e, 4), 1, e)) for e in range(6)]
    is_ = [lg.op(tf_read(uu.sub(24 + 4 * e, 4), 0, e)) for e in range(6)]
    for e in range(24): k(un(x2f[e], xsrc(e), e & 1))
    dl = [XX[128 + i] for i in range(6)]
    k(f'v_cmp_gt_u32 vcc, 2, {q}')
    for g, dlt in enumerate((-1, 1, -2, 2)):
        k(f'v_add_u32 {dl[4]}, {16 + dlt}, {row}\nv_lshrrev_b32 {dl[5]}, 4, {dl[4]}\nv_and_b32 {dl[4]}, 15, {dl[4]}\nv_lshlrev_b32 {dl[4]}, 4, {dl[4]}')
        k(f'v_lshl_add_u32 {dl[4]}, {dl[5]}, 10, {dl[4]}\nv_lshl_add_u32 {dl[g]}, {q}, 8, {dl[4]}')
    k(f'v_cndmask_b32 {dl[4]}, {dl[1]}, {dl[0]}, vcc\nv_cndmask_b32 {dl[5]}, {dl[3]}, {dl[2]}, vcc')
    pa = XX[134]
    k(f'v_min_u32 {pa}, 2, {lane}\nv_add_u32 {pa}, {mt}, {pa}\nv_add_u32 {pa}, -1, {pa}\nv_max_i32 {pa}, 0, {pa}\nv_min_u32 {pa}, 127, {pa}\nv_lshlrev_b32 {pa}, 7, {pa}')
    vm.wait(ig)
    flag_add(mt, O_FC)
    STAMP(3)
    k(f's_add_u32 {sn}, {sn}, 18432')
    for e in range(12): k(f'v_pk_fma_f32 {h2f.sub(2 * e, 2)}, {x2f.sub(2 * e, 2)}, {s1}, {s1} op_sel:[0,0,1] op_sel_hi:[1,0,1]')
    lg.all()
    for e in range(12): k(f'v_pk_fma_f32 {h2f.sub(2 * e, 2)}, {h2f.sub(2 * e, 2)}, {gbv.sub(2 * e, 2)}, {uu.sub(24 + 2 * e, 2)}')
    NPRE = 5
    k('s_barrier')
    WP = [WR[0], WR[1], k.a(24, 4), k.a(24, 4), XX.sub(0, 24)]
    w2_addr = lambda i, tt: lds_at(W2_AT[i] + 1024 * tt)
    for i in range(NPRE):
        for tt in range(6): lg.op(f'ds_read_b128 {WP[i].sub(4 * tt, 4)}, {w2_addr(i, tt)}')
    poll(pa, O_FC, 6)
    STAMP(4)
    GF = TF
    sel = lambda s: dl[4] if s == 4 else dl[5] if s == 13 else dl[(2 * s) // 9]
    ig = []
    for s in range(18):
        k(f's_mov_b32 {st}, {O_G + s * GPL}')
        ig.append(vm.op(f'buffer_load_dwordx4 {GF.sub(4 * s, 4)}, {sel(s)}, {Rws}, {st} offen sc1'))
    lg.all()
    ird = {}
    for s in range(18):
        vm.wait(ig[s])
        wr = WP[s % NPRE]
        for tt in range(6):
            if s >= NPRE: lg.wait(ird[s, tt])
            k(f'{MF} {acc.sub(4 * tt, 4)}, {wr.sub(4 * tt, 4)}, {GF.sub(4 * s, 4)}, {"0" if s == 0 else acc.sub(4 * tt, 4)}')
            if s + NPRE < 18: ird[s + NPRE, tt] = lg.op(f'ds_read_b128 {wr.sub(4 * tt, 4)}, {w2_addr(s + NPRE, tt)}')
        vm.op(wld(1, s))
    lg.all()
    STAMP(5)
    aS = dl[1]
    k(f'v_lshrrev_b32 {t[0]}, 1, {q}')
    k(f'v_lshlrev_b32 {aS}, 6, {t[0]}\nv_lshl_add_u32 {aS}, {m}, 2, {aS}')
    k(f's_mul_i32 {st}, {rb}, 18\ns_mul_i32 {so}, {jm}, 3\ns_add_u32 {st}, {st}, {so}\ns_lshl_b32 {st}, {st}, 2\ns_add_u32 {st}, {st}, {s_w}\ns_lshl_b32 {st}, {st}, 10\ns_add_u32 {st}, {st}, {O_X1F}')
    for e in range(12): k(f'v_pk_add_f32 {h2f.sub(2 * e, 2)}, {h2f.sub(2 * e, 2)}, {acc.sub(2 * e, 2)}')
    for Pp in range(3):
        o = go.sub(4 * Pp, 4)
        for e in range(4): k(f'v_cvt_pk_bf16_f32 {o[e]}, {h2f[8 * Pp + 2 * e]}, {h2f[8 * Pp + 2 * e + 1]}')
        vm.op(f'buffer_store_dwordx4 {o}, {l16}, {Rws}, {st} offen sc1')
        if Pp < 2: k(f's_add_u32 {st}, {st}, 4096')
    k(f'v_pk_add_f32 {t[0:2]}, {h2f[0:2]}, {h2f[2:4]}\nv_pk_mul_f32 {t[2:4]}, {h2f[0:2]}, {h2f[0:2]}\nv_pk_fma_f32 {t[2:4]}, {h2f[2:4]}, {h2f[2:4]}, {t[2:4]}')
    for e in range(2, 12): k(f'v_pk_add_f32 {t[0:2]}, {t[0:2]}, {h2f.sub(2 * e, 2)}\nv_pk_fma_f32 {t[2:4]}, {h2f.sub(2 * e, 2)}, {h2f.sub(2 * e, 2)}, {t[2:4]}')
    k(f'v_add_f32 {t[0]}, {t[0]}, {t[1]}\nv_add_f32 {t[2]}, {t[2]}, {t[3]}\nv_permlane32_swap_b32 {t[0]}, {t[2]}\nv_add_f32 {t[0]}, {t[0]}, {t[2]}')
    k(f'v_mov_b32 {t[1]}, {t[0]}\nv_permlane16_swap_b32 {t[0]}, {t[1]}\nv_add_f32 {t[0]}, {t[0]}, {t[1]}')
    k(f's_mul_i32 {st}, {mt}, 6\ns_add_u32 {st}, {st}, {jm}\ns_lshl_b32 {st}, {st}, 7\ns_add_u32 {st}, {st}, {O_PST}\ns_mov_b32 exec_lo, 0xffff\ns_mov_b32 exec_hi, 0xffff')
    vm.op(f'buffer_store_dword {t[0]}, {aS}, {Rws}, {st} offen sc1')
    k('s_mov_b64 exec, -1')
    vm.all()
    flag_add(mt, O_FD)
    STAMP(6)
    k('s_branch k2_phase_e')
    k('k2_idle:')
    k.V.free, k.A.free, k.S.free = list(keepV), list(keepA), list(keepS)
    vm, lg = trackers(k)
    cj = ColJob(k, vm, lg, lane, s_w)
    fr = k.v(72, 4); sl = k.s(); dst = k.s(); job = k.s(); R4 = k.s(4)
    srd(k, R4, P['w4'], D * F * 2)
    fr2 = k.v(12, 4); part = k.s(); np_, dn = k.label('nopart'), k.label('w4done')
    k(f's_mul_hi_u32 {sl}, s2, {(1 << 32) // 9 + 1}\ns_mul_i32 {dst}, {sl}, 9\ns_sub_u32 {dst}, s2, {dst}\ns_lshl_b32 {dst}, {dst}, 7')
    k(f's_mul_i32 {st}, {sl}, {576 * 1152}\ns_add_u32 {dst}, {dst}, {st}\ns_mov_b32 {st}, 1152')
    cj.dma(R4, dst, st, 0, True)
    k(f's_mul_hi_u32 {job}, s2, {(1 << 32) // 6 + 1}\ns_mul_i32 {part}, {job}, 6\ns_sub_u32 {part}, s2, {part}\ns_cmp_ge_u32 s2, 48\ns_cbranch_scc1 {np_}')
    k(f's_mul_i32 {dst}, {part}, {96 * 1152}\ns_lshl_b32 {st}, {job}, 7\ns_add_u32 {dst}, {dst}, {st}\ns_add_u32 {dst}, {dst}, {7 * 576 * 1152 + 128}\ns_mov_b32 {st}, 1152')
    cj.dma(R4, dst, st, 73728, True, nks=3)
    k(f'{np_}:')
    ad = cj.addr(0, w4order=True); ad2 = cj.addr(73728, w4order=True)
    k('s_waitcnt vmcnt(0)\ns_barrier'); vm.reset()
    ids = cj.reads(ad, fr); ids2 = cj.reads(ad2, fr2, 3)
    k(f's_lshl_b32 {dst}, s2, 2\ns_add_u32 {dst}, {dst}, {s_w}\ns_mul_i32 {dst}, {dst}, 18432\ns_add_u32 {dst}, {dst}, {O_W4F}')
    cj.store(fr, ids, Rws, dst, 1024)
    k(f's_lshl_b32 {dst}, {job}, 2\ns_add_u32 {dst}, {dst}, {s_w}\ns_mul_i32 {dst}, {dst}, 18432\ns_mul_i32 {st}, {part}, 3072\ns_add_u32 {dst}, {dst}, {st}')
    k(f's_add_u32 {dst}, {dst}, {O_W4F + 256 * 18432}\ns_cmp_ge_u32 s2, 48\ns_cselect_b32 {dst}, {WS_USED}, {dst}')
    cj.store(fr2, ids2, Rws, dst, 1024, nks=3)
    vm.all()
    flag_add(sl, O_FW)
    k(f's_cmp_ge_u32 s2, 48\ns_cbranch_scc1 {dn}\ns_mov_b32 {sl}, 7')
    flag_add(sl, O_FW)
    k(f'{dn}:\n{go3_ld}')
    spin(go3_ld, [fv4[0]]); vm.reset()
    for r_ in range(2):
        for ks in PI: vm.op(wld(r_, ks))
        if r_ == 0: k(f's_add_u32 {sn}, {sn}, 18432')
    STAMP(14)
    k('k2_phase_e:')
    k.V.free, k.A.free, k.S.free = keepV, keepA, keepS
    vm, lg = trackers(k)
    vm.n = 1
    XA = k.a(112, 4); XV = k.v(176, 4)
    xf = lambda ks, t_: XA.sub(16 * ks + 4 * t_, 4) if 16 * ks + 4 * t_ < 112 else XV.sub(16 * ks + 4 * t_ - 112, 4)
    fv4.release()
    k(f's_add_u32 {sn}, {sn}, 18432')
    acc = [k.v(16, 4), k.v(16, 4)]
    t = acc[1].sub(0, 12); pa = k.v()
    k(f's_lshl_b32 {st}, {mb}, 2\nv_add_u32 {pa}, {st}, {lane}\ns_add_u32 {st}, {fs}, {(O_FW - O_FD) // 128}\nv_mov_b32 {t[0]}, {st}\nv_cmp_gt_u32 vcc, 4, {lane}')
    k(f'v_cndmask_b32 {pa}, {t[0]}, {pa}, vcc\nv_lshlrev_b32 {pa}, 7, {pa}\ns_cmp_eq_u32 {fs}, 7\ns_cselect_b32 {st}, 196, 36\nv_mov_b32 {t[0]}, {st}\nv_cndmask_b32 {t[0]}, {t[0]}, 6, vcc')
    k(f's_lshl_b32 {sm}, {s_w}, 10\ns_mul_i32 {so}, {mb}, 73728\ns_add_u32 {so}, {so}, {sm}\ns_add_u32 {so}, {so}, {O_X1F}')
    sk_ = k.label('nopoll')
    k(f's_cmp_lg_u32 {s_w}, 0\ns_cbranch_scc1 {sk_}')
    poll(pa, O_FD, t[0], sleep=1, fv=t[1])
    k(f'{sk_}:\ns_waitcnt vmcnt(0)\ns_barrier')
    STAMP(7)
    ixd = []; idv = {}
    def xdma(ks):
        k(f's_add_u32 m0, {sm}, {XBUF + 4096 * ks}\ns_add_u32 {st}, {so}, {4096 * ks}')
        ixd.append(vm.op(f'buffer_load_dwordx4 {l16}, {Rws}, {st} offen sc1 lds'))
    NX0 = 18 if 'xall' in opt else 10 if 'x10' in opt else 7
    for ks in PI[:NX0]: xdma(ks)
    k(f's_mul_i32 {st}, {mb}, 3072\ns_add_u32 {st}, {st}, {sm}\ns_add_u32 {st}, {st}, {O_PST}\ns_add_u32 m0, {sm}, {PSTL}')
    ipst = vm.op(f'buffer_load_dwordx4 {l16}, {Rws}, {st} offen sc1 lds')
    k(f'v_mul_u32_u24 {pa}, 768, {q}\nv_lshl_add_u32 {pa}, {m}, 2, {pa}\nv_add_u32 {pa}, {PSTL}, {pa}')
    aX = [l16, k.v()]; aHr = [k.v(), k.v()]; aH = [k.v(), k.v()]
    k(f'v_add_u32 {aX[1]}, 0x9000, {l16}\nv_add_u32 {aHr[0]}, {HBUF}, {l16}\nv_add_u32 {aHr[1]}, {HBUF + 0x9000}, {l16}')
    for h in range(2):
        k(f's_mul_i32 {st}, {s_w}, 9\ns_add_u32 {st}, {st}, {h}\ns_and_b32 {st1}, {st}, 1\ns_lshl_b32 {st1}, {st1}, 3\ns_lshr_b32 {st}, {st}, 1\ns_lshl_b32 {st}, {st}, 12')
        k(f's_add_u32 {st}, {st}, {st1}\nv_add_u32 {aH[h]}, {st}, {aHr[0]}')
    GC = [RB.sub(8 + 3 * i, 3) for i in range(4)]
    gt = RB.sub(0, 8); hp = [RB.sub(20, 2), RB.sub(22, 2)]
    def gelu_ops(a, ah):
        out = []
        for t_ in range(4):
            c = GC[t_]; x = [a[4 * t_ + e] for e in range(4)]; u = [gt[4 * (t_ & 1) + e] for e in range(4)]; o = hp[t_ & 1]
            out += [f'v_mul_f32 {u[e]}, {x[e]}, {x[e]}' for e in range(4)]
            out += [f'v_fma_f32 {u[e]}, {u[e]}, {c[1]}, {c[0]}' for e in range(4)]
            out += [f'v_mul_f32 {u[e]}, {u[e]}, {x[e]}' for e in range(4)]
            out += [f'v_exp_f32 {u[e]}, {u[e]}' for e in range(4)]
            out += [f'v_fma_f32 {u[e]}, {u[e]}, {c[2]}, {c[2]}' for e in range(4)]
            out += [f'v_rcp_f32 {u[e]}, {u[e]}' for e in range(4)]
            out += [f'v_mul_f32 {u[e]}, {u[e]}, {x[e]}' for e in range(4)]
            out += [f'v_cvt_pk_bf16_f32 {o[0]}, {u[0]}, {u[1]}', f'v_cvt_pk_bf16_f32 {o[1]}, {u[2]}, {u[3]}']
            out.append(f'ds_write_b64 {ah}, {o} offset:{1024 * t_}')
        return out
    def cost(x_):
        if isinstance(x_, tuple): return x_[0]
        return 2 if x_.startswith(('v_exp', 'v_rcp', 'ds_write')) else 1
    def emit(x_):
        if isinstance(x_, tuple): x_[1]()
        elif x_.startswith('ds_'): lg.op(x_)
        elif x_.startswith('buffer_'): vm.op(x_)
        else: k(x_)
    wid = {}; nw = {}; due = []
    from_lds = []; lid = {}
    def refill(r_):
        ks = due.pop()
        if from_lds: lid[r_, ks] = lg.op(f'ds_read_b128 {W[r_].sub(4 * ks, 4)}, {from_lds[0]} offset:{1024 * ks}'); nw[r_, ks] = 0
        else: nw[r_, ks] = vm.op(wld(r_, ks))
    def tile(a, r_, fill, steps=range(18), lead=2, pre=None, post=None, per_step=0, rate=None, load=True, at=None):
        steps = list(steps); nm = 4 * len(steps); n_ = 0; fill = list(fill); at = at or {}
        total = len(steps) * (1.5 + per_step) + sum(cost(x_) for x_ in fill)
        rate = rate or total / nm
        cum = 0
        for i in steps:
            ks = PI[i]
            if i in at: fill += at[i]; cum = max(cum, rate * n_ - 1)
            if pre: pre(i)
            if i % 2 == 0:
                n0 = len(k.l); vm.wait(max(wid.get((r_, PI[j]), 0) for j in (i, i + 1))); cum += len(k.l) - n0
            for t_ in range(4):
                k(f'{MF} {a.sub(4 * t_, 4)}, {W[r_].sub(4 * ks, 4)}, {xf(ks, t_)}, {"0" if i == 0 else a.sub(4 * t_, 4)}')
                n_ += 1
                nxt = 0
                if t_ == 0 and due: refill(r_); cum += 1
                if t_ == 3:
                    if load: due.append(ks)
                    if post: post(i)
                    cum += per_step
                    nxt = i % 2
                while n_ >= lead and fill and cum + nxt + cost(fill[0]) / 2 <= rate * n_: cum += cost(fill[0]); emit(fill.pop(0))
        for x_ in fill: emit(x_)
        if steps[-1] == 17 and due: refill(r_)
        if steps[-1] == 17: wid.update(nw); nw.clear()
    def frag_reads(base, i):
        ks = PI[i]
        return [lg.op(f'ds_read_b128 {xf(ks, t_)}, {base[ks // 9]} offset:{(ks % 9) * 4096 + 1024 * t_}') for t_ in range(4)]
    nxt_tile = lambda: k(f's_add_u32 {sn}, {sn}, 18432')
    rd = {}
    AH = 3 if 'ah3' in opt else 2
    XB = {0: 5, 3: 11, 9: 17} if 'xb3' in opt else {0: 3, 1: 6, 4: 11, 9: 17} if AH == 3 else {0: 2, 1: 6, 5: 11, 10: 17}
    def pre0(i):
        if i in XB: vm.wait(max(ixd[XB[i]], ipst if XB[i] == 17 else 0)); k('s_barrier')
        if i == 0:
            for j in range(AH): rd[j] = frag_reads(aX, j)
        if i + AH < 18: rd[i + AH] = frag_reads(aX, i + AH)
        lg.wait(rd[i][3])
    todo = [(0, lambda ks=ks: xdma(ks)) for ks in PI[NX0:]]
    todo += [(max(i, 9) if 'wlate' in opt else i, lambda ks=PI[i]: wid.__setitem__((0, ks, 'n'), vm.op(wld(0, ks)))) for i in range(18)]
    def post0(i):
        for _ in range(18 if i == 17 else 4 if i < 3 else 3):
            if todo and todo[0][0] <= i: todo.pop(0)[1]()
        if i == 10:
            for j in range(6): idv['p'] = lg.op(f'ds_read2_b32 {t.sub(2 * j, 2)}, {pa} offset0:{32 * j} offset1:{32 * j + 16}')
    class Rec:
        def __init__(self): self.l = []
        def __call__(self, x_): self.l += x_.split('\n')
    rec = Rec()
    for e in (0, 4, 8): rec(f'v_add_f32 {t[e]}, {t[e]}, {t[e + 2]}\nv_add_f32 {t[e + 1]}, {t[e + 1]}, {t[e + 3]}')
    for e in (4, 8): rec(f'v_add_f32 {t[0]}, {t[0]}, {t[e]}\nv_add_f32 {t[1]}, {t[1]}, {t[e + 1]}')
    sigma_bf16(rec, t[0], t[1])
    rec(f'v_cvt_pk_bf16_f32 {t[1]}, {t[1]}, {t[1]}\nv_and_b32 {t[1]}, 0xffff0000, {t[1]}\nv_lshlrev_b32 {t[2]}, 2, {m}')
    c1 = [(1, lambda: lg.wait(idv['p']))] + rec.l
    c1 += [(1, lambda i=i: idv.__setitem__('b', lg.op(f'ds_bpermute_b32 {t[4 + i]}, {t[2]}, {t[1]} offset:{64 * i}'))) for i in range(4)]
    rec = Rec()
    for i in range(4): gelu_consts(rec, t[4 + i], GC[i])
    c2 = [(1, lambda: lg.wait(idv['b']))] + [rec.l[6 * i + j] for j in range(6) for i in range(4)]
    tile(acc[0], 0, [], pre=pre0, post=post0, load=False, rate=2.0, at={12: c1, 16: c2})
    assert not todo
    for ks in range(18): wid[0, ks] = wid.pop((0, ks, 'n'))
    nxt_tile()
    STAMP(8)
    fa_ = k.v(); xc = k.v(3, 1)
    sS = k.s(); sM = k.s()
    k(f's_add_u32 {sS}, {s4}, {4 * 18432}\ns_mul_i32 {sM}, {s_w}, 18432')
    def check(idl, val, tgt, vaddr, base):
        ok = k.label('up'); d0 = None
        vm.wait(idl)
        k(f'v_cmp_gt_u32 vcc, {tgt}, {val}\ns_cmp_eq_u64 vcc, 0\ns_cbranch_scc1 {ok}')
        d0 = vm.done; poll(vaddr, base, tgt, fv=val); vm.done = d0
        k(f'{ok}:')
    STAGE = 'nostage' not in opt
    rd = {}
    for tt in range(1, 9):
        fill = gelu_ops(acc[1 - (tt & 1)], aH[1 - (tt & 1)]) + [f'v_add_u32 {aH[1 - (tt & 1)]}, 4096, {aH[1 - (tt & 1)]}']
        if 4 <= tt <= 7 and STAGE:
            if tt == 4: lg.all(); k('s_barrier')
            for n_, ks in enumerate(range((tt - 4) * 18 // 4, (tt - 3) * 18 // 4)):
                fill[10 + 26 * n_:10 + 26 * n_] = [f's_add_u32 m0, {sM}, {4096 * (ks // 4)}',
                    (1, lambda ks=ks: idv.__setitem__('stage', vm.op(f'buffer_load_dwordx4 {vo[ks // 4]}, {RW}, {sS} offen offset:{1024 * (ks % 4)} sc1 lds')))]
        if tt == 1:
            k(f's_lshr_b32 {so}, {fs}, 1\ns_mul_i32 {so}, {so}, 9\ns_and_b32 {st1}, {fs}, 1\ns_lshl_b32 {st1}, {st1}, 11\ns_lshr_b32 {sm}, {s_w}, 1\ns_lshl_b32 {sm}, {sm}, 8\ns_add_u32 {st1}, {st1}, {sm}')
            k(f's_and_b32 {sm}, {s_w}, 1\ns_lshl_b32 {sm}, {sm}, 3\ns_add_u32 {st1}, {st1}, {sm}\nv_lshrrev_b32 {xc[2]}, 1, {q}\nv_lshl_add_u32 {xc[0]}, {xc[2]}, 10, {st1}')
            k(f'v_lshl_add_u32 {xc[0]}, {m}, 4, {xc[0]}\nv_and_b32 {xc[2]}, 1, {q}\nv_lshl_add_u32 {xc[2]}, {xc[2]}, 2, {xc[0]}')
            for h in range(2):
                k(f's_add_u32 {st}, {so}, {h}\ns_and_b32 {sm}, {st}, 1\ns_lshl_b32 {sm}, {sm}, 9\ns_lshr_b32 {st}, {st}, 1\ns_lshl_b32 {st}, {st}, 12\ns_add_u32 {st}, {st}, {sm}\nv_add_u32 {xc[h]}, {st}, {xc[2]}')
            k(f's_mul_i32 {st}, {s_w}, 2304\ns_add_u32 {st}, {st}, {X1C}\nv_lshl_add_u32 {xc[2]}, {lane}, 2, {st}')
        if 1 <= tt <= 3:
            for t_ in range(3 * tt - 3, 3 * tt):
                def cp(t_=t_): idv['x'] = lg.op(f'ds_read_b32 {pa}, {xc[t_ & 1]} offset:{4096 * (t_ >> 1)}')
                def wr(t_=t_): lg.wait(idv['x']); lg.op(f'ds_write_b32 {xc[2]}, {pa} offset:{256 * t_}')
                n_ = 20 + 33 * (t_ % 3)
                fill[n_:n_] = [(1, cp)]; fill[n_ + 20:n_ + 20] = [(2, wr)]
        if tt == 7: k(f's_mov_b32 {sn}, {s4}')
        if tt in (1, 4, 7, 8): STAMP({1: 1, 4: 2, 7: 3, 8: 4}[tt], 'g3st')
        if tt < 8: tile(acc[tt & 1], tt & 1, fill)
        else:
            lg.all(); k('s_barrier')
            def post8(i):
                if i < 12: rd[i] = frag_reads(aHr, i)
            tile(acc[0], 0, fill, post=post8, per_step=2.7)
        nxt_tile()
    STAMP(9)
    k('s_waitcnt lgkmcnt(0)\ns_barrier'); lg.reset()
    for j in (12, 13): rd[j] = frag_reads(aHr, j)
    tile(acc[1], 1, gelu_ops(acc[0], aH[0]), steps=range(10), lead=1)
    lg.all(); k('s_barrier')
    for j in range(14, 18): rd[j] = frag_reads(aHr, j)
    tile(acc[1], 1, [], steps=range(10, 18), pre=lambda i: lg.wait(rd[i][3]) if i >= 14 else None)
    Rout = k.s(4)
    sp = k.s(); sq = k.s(); sf = k.s(); T0 = k.s(); sl_ = k.s(); po = [gt.sub(0, 4), gt.sub(4, 4)]
    aP, aR, aO = GC[0][0], GC[0][1], GC[0][2]; aL, aLr, aLg = GC[1][0], GC[1][1], GC[1][2]; aOw, aOr = GC[2][0], GC[2][1]; fv = pa; fpa = fa_
    u0, u1, u2 = hp[0][0], hp[0][1], hp[1][0]
    X2L, GBL, OUTB = HBUF, HBUF + 9216, HBUF + 13312
    sx_ = k.s(); mk = [k.s(2), k.s(2)]; own = [k.s(), k.s()]; sp1 = k.s(); OWN = 'noown' not in opt
    setup = f"""s_mov_b32 {Rout[0]}, {P['out'][0]}
s_mov_b32 {Rout[1]}, {P['out'][1]}
s_mov_b32 {Rout[2]}, {L * D * 2}
s_mov_b32 {Rout[3]}, 0x20000
s_lshl_b32 {st}, {fs}, 13
s_mul_i32 {sq}, {mb}, {9 * 65536}
s_add_u32 {sq}, {sq}, {st}
s_add_u32 {sq}, {sq}, {O_PART}
s_mul_i32 {sf}, {mb}, 36
s_lshr_b32 {T0}, {fs}, 1
s_add_u32 {st}, {sf}, {T0}
s_lshl_b32 {st}, {st}, 7
v_mov_b32 {fpa}, {st}
s_add_u32 {sf}, {sf}, {s_w}
s_lshl_b32 {sf}, {sf}, 7
s_add_u32 {sf}, {sf}, {O_FP}
s_mul_i32 {T0}, {T0}, 9
s_lshl_b32 {st}, {s_w}, 8
v_lshl_add_u32 {u0}, {m}, 4, {st}
v_lshl_add_u32 {aP}, {q}, 10, {u0}
v_and_b32 {u1}, 1, {q}
v_lshrrev_b32 {u2}, 1, {q}
v_lshl_add_u32 {u0}, {u2}, 4, {m}
v_lshlrev_b32 {aR}, 3, {u0}
v_lshl_add_u32 {aR}, {u1}, 2, {aR}
s_and_b32 {so}, {fs}, 1
s_lshl_b32 {st}, {mb}, 1
s_add_u32 {so}, {so}, {st}
s_lshl_b32 {so}, {so}, 8
s_lshl_b32 {st}, {s_w}, 14
s_add_u32 {so}, {so}, {st}
v_add_u32 {aR}, {so}, {aR}
s_mul_i32 {sx_}, {s_w}, 2304
s_add_u32 {sx_}, {sx_}, {X2L}
v_lshl_add_u32 {aLr}, {lane}, 2, {sx_}
s_mul_i32 {st}, {s_w}, 1040
s_add_u32 {st}, {st}, {GBL}
v_lshl_add_u32 {aLg}, {u1}, 3, {st}
v_mul_u32_u24 {aOw}, 304, {u0}
v_lshl_add_u32 {aOw}, {u1}, 2, {aOw}
s_lshl_b32 {st}, {s_w}, 3
s_add_u32 {st}, {st}, {OUTB}
v_add_u32 {aOw}, {st}, {aOw}
s_and_b32 {st}, {fs}, 3
s_lshl_b32 {so}, {st}, 4
s_lshl_b64 {mk[0]}, 0xffff, {so}
s_not_b64 {mk[0]}, {mk[0]}
s_cmp_ge_u32 {fs}, 4
s_cselect_b64 {mk[1]}, {mk[0]}, -1
s_cselect_b64 {mk[0]}, -1, {mk[0]}
s_lshl_b32 {st}, {fs}, 8
v_mul_u32_u24 {u0}, 18432, {q}
v_lshl_add_u32 {u0}, {m}, 4, {u0}
v_add_u32 {u0}, {st}, {u0}
v_add_u32 {u1}, {HBUF + 24576}, {l16}
s_lshl_b32 {st}, {s_w}, 1
s_cmp_eq_u32 {st}, {fs}
s_cselect_b64 vcc, -1, 0
s_cselect_b32 {own[0]}, 1, 0
v_cndmask_b32 {aH[0]}, {u1}, {u0}, vcc
s_add_u32 {st}, {st}, 1
s_cmp_eq_u32 {st}, {fs}
s_cselect_b64 vcc, -1, 0
s_cselect_b32 {own[1]}, 1, 0
v_cndmask_b32 {aH[1]}, {u1}, {u0}, vcc""".split('\n')
    k(f's_mul_i32 {sp}, {mb}, {9 * 65536}\ns_lshl_b32 {st}, {s_w}, 14\ns_add_u32 {sp}, {sp}, {st}\ns_lshl_b32 {st}, {fs}, 10\ns_add_u32 {sp}, {sp}, {st}\ns_add_u32 {sp}, {sp}, {O_PART}')
    k(f's_mov_b32 {sl_}, {sM}\nv_add_u32 {aL}, {sM}, {l16}')
    for x_ in (aHr[0], aHr[1], aX[1]): x_.release()
    k(f's_mov_b32 {sp1}, {sp}'); spp = [sp, sp1]
    ids = {}
    def S(t_, a, p):
        out = [f'v_cvt_pk_bf16_f32 {po[p][e]}, {a[8 * p + 2 * e]}, {a[8 * p + 2 * e + 1]}' for e in range(4)]
        if OWN and t_ == 2: out.append((2, lambda: k(f's_cmp_lg_u32 {own[p]}, 0\ns_cselect_b32 {spp[p]}, {WS_USED}, {spp[p]}')))
        out.append((1, lambda: ids.__setitem__(('S', t_), vm.op(f'buffer_store_dwordx4 {po[p]}, {vo[2 * p]}, {Rws}, {spp[p]} offen {PFL}'))))
        if OWN and t_ >= 2: out.append(f'ds_write_b128 {aH[p]}, {po[p]} offset:{2048 * t_}')
        return out + [f's_add_u32 {spp[p]}, {spp[p]}, 65536']
    def G(t_):
        def f():
            if t_ == 8: k(f's_add_u32 {sf}, {sf}, 4096')
            vm.wait(ids['S', t_])
            if OWN and t_ >= 2: lg.all()
            k('s_mov_b64 exec, 1')
            vm.op(f'buffer_atomic_add {one}, {zero}, {Rws}, {sf} offen offset:{512 * (t_ % 8)} sc1')
            k('s_mov_b64 exec, -1')
        return [(4, f)]
    def Lf(t_): return [f's_mov_b32 {st1}, {O_FP + 512 * t_}', (1, lambda: ids.__setitem__(('L', t_), vm.op(f'buffer_load_dword {fv}, {fpa}, {Rws}, {st1} offen sc1')))]
    def dma(lds, va, soff, mask):
        def f():
            if mask: k(f's_mov_b64 exec, {mask}')
            ids['d'] = vm.op(f'buffer_load_dwordx4 {va}, {Rws}, {soff} offen sc1 lds')
            if mask: k('s_mov_b64 exec, -1')
        return [f's_add_u32 m0, {sl_}, {lds}', (3 if mask else 1, f)]
    def C(t_):
        m_ = mk if OWN and t_ >= 2 else [None, None]
        return (dma(2048 * t_, aP, sq, m_[0]) + [f's_add_u32 {st}, {sq}, 4096'] + dma(2048 * t_ + 1024, aP, st, m_[1]) + [f's_add_u32 {sq}, {sq}, 65536']
                + [(0, lambda: ids.__setitem__(('C', t_), ids['d']))])
    def RS(t_): return [f's_add_u32 {st}, {T0}, {t_}', f's_lshl_b32 {st}, {st}, 16', f's_add_u32 {st}, {st}, {O_X2}', f's_add_u32 m0, {sx_}, {256 * t_}',
                        f'buffer_load_dword {aR}, {Rws}, {st} offen sc1 lds']
    def CK(t_): return [(4, lambda: check(ids['L', t_], fv, 8, fpa, O_FP + 512 * t_))]
    def R(t_, Dr, v):
        A_, B_, r_, g_ = Dr
        def rd_():
            vm.wait(ids['C', t_])
            lg.op(f'ds_read_b128 {A_}, {aL} offset:{2048 * t_}'); lg.op(f'ds_read_b128 {B_}, {aL} offset:{2048 * t_ + 1024}')
            lg.op(f'ds_read_b32 {r_[0]}, {aLr} offset:{256 * t_}'); lg.op(f'ds_read_b32 {r_[1]}, {xc[2]} offset:{256 * t_}'); ids['r', t_] = lg.op(f'ds_read_b64 {g_}, {aLg} offset:{64 * t_}')
        out = [(1, lambda: lg.wait(ids['r', t_]))]
        for d in range(4): out += [f'v_lshlrev_b32 {v[2 * d]}, 16, {A_[d]}', f'v_lshlrev_b32 {v[2 * d + 1]}, 16, {B_[d]}']
        for d in range(4): out += [f'v_and_b32 {A_[d]}, 0xffff0000, {A_[d]}', f'v_add_f32 {v[2 * d]}, {v[2 * d]}, {v[2 * d + 1]}', f'v_and_b32 {B_[d]}, 0xffff0000, {B_[d]}']
        out += [f'v_add_f32 {v[2 * d + 1]}, {A_[d]}, {B_[d]}' for d in range(4)]
        out += [f'v_permlane32_swap_b32 {v[e]}, {v[e + 4]}' for e in (0, 2, 1, 3)]
        out += [f'v_add_f32 {v[e]}, {v[e]}, {v[e + 4]}' for e in (0, 2, 1, 3)]
        out += [un(v[4 + e], r_[e >> 1], e & 1) for e in (2, 3)]
        out += [f'v_permlane16_swap_b32 {v[e]}, {v[e + 2]}' for e in range(2)]
        out += [un(v[4 + e], r_[e >> 1], e & 1) for e in (0, 1)]
        out += [f'v_add_f32 {v[e]}, {v[e]}, {v[e + 2]}' for e in range(2)]
        out += [f'v_add_f32 {v[e]}, {v[e]}, {v[e + 6]}' for e in range(2)]
        out += [f'v_fma_f32 {v[e]}, {v[e]}, {g_[e]}, {v[4 + e]}' for e in range(2)]
        out += [f'v_cvt_pk_bf16_f32 {v[4]}, {v[0]}, {v[1]}', f'ds_write_b32 {aOw}, {v[4]} offset:{32 * t_}']
        return [(6, rd_)], out
    SPOS = 9
    for tt in range(1, 9):
        nxt_tile()
        a_ = acc[tt & 1]
        at = {0: S(tt - 1, a_, 0), SPOS: S(tt - 1, a_, 1)}
        add = lambda i, ops: at.__setitem__(i, at.get(i, []) + ops)
        if tt == 1: add(2, setup)
        if tt == 2:
            k('s_barrier')
            add(2, [f's_lshl_b32 {st}, {T0}, 6', f's_add_u32 {st}, {st}, {O_MOD2 + 4608}', f's_lshl_b32 {so}, {s_w}, 10', f's_add_u32 m0, {so}, {GBL}',
                    f'buffer_load_dwordx4 {l16}, {Rws}, {st} offen sc1 lds'])
        if 2 <= tt <= 6: add(4, RS(2 * tt - 4) + (RS(2 * tt - 3) if tt < 6 else []))
        if 'sB' in opt:
            if tt in (3, 5, 6, 7, 8): add(6, G(tt - 2))
            if tt in (4, 6, 7, 8): add(15, Lf(tt - 3))
            if tt in (5, 7): add(12, CK(tt - 4) + C(tt - 5) + C(tt - 4))
            if tt == 8: add(12, CK(4) + C(4))
        elif 'sC' in opt:
            if tt in (4, 6, 7, 8): add(6, G(tt - 2))
            if tt in (6, 7, 8): add(15 if tt > 6 else 8, Lf({6: 2, 7: 4, 8: 5}[tt]))
            if tt == 7: add(1, CK(2) + C(0) + C(1) + C(2))
            if tt == 8: add(12, CK(4) + C(3) + C(4))
        else:
            if tt >= 2: add(6, G(tt - 2))
            if tt >= 4: add(12, CK(tt - 4) + C(tt - 4))
            if tt >= 3: add(15, Lf(tt - 3))
        if tt in (1, 4, 7, 8): STAMP({1: 1, 4: 2, 7: 3, 8: 4}[tt], 'g4st')
        if tt == 2 and STAGE: vm.wait(idv['stage']); from_lds.append(aL)
        tile(acc[1 - (tt & 1)], 1 - (tt & 1), [], rate=2.0, at=at, load=tt < 7)
        if tt == 2 and STAGE: from_lds.clear()
        if tt == 2: lg.all(); k('s_barrier')
    STAMP(10)
    XV.release()
    Dn = [[k.v(4, 2), k.v(4, 2), k.v(2), k.v(2)] for _ in range(9)]; v2 = k.v(8, 2)
    RR = [R(t_, Dn[t_], v2) for t_ in range(9)]
    seq = S(8, acc[1], 0) + S(8, acc[1], 1) + G(7) + CK(5) + C(5) + Lf(6)
    for t_ in range(3): seq += RR[t_][0]
    seq += RR[0][1] + G(8) + RR[1][1] + CK(6) + C(6) + Lf(7) + RR[3][0] + RR[4][0] + RR[2][1] + RR[3][1] + CK(7) + C(7) + Lf(8) + RR[5][0] + RR[4][1] + RR[5][1]
    for x_ in seq: emit(x_)
    u = k.v(3)
    k(f'v_mul_u32_u24 {u[0]}, 3641, v0\nv_lshrrev_b32 {u[0]}, 16, {u[0]}\nv_mul_u32_u24 {u[1]}, 18, {u[0]}\nv_sub_u32 {u[1]}, v0, {u[1]}\nv_lshlrev_b32 {u[1]}, 4, {u[1]}')
    k(f'v_mul_u32_u24 {aOr}, 304, {u[0]}\nv_add_u32 {aOr}, {aOr}, {u[1]}\nv_add_u32 {aOr}, {OUTB}, {aOr}\nv_mul_u32_u24 {aO}, 1152, {u[0]}\nv_add_u32 {aO}, {aO}, {u[1]}')
    k(f's_lshl_b32 {st}, {mb}, 1\ns_and_b32 {so}, {fs}, 1\ns_add_u32 {so}, {so}, {st}\ns_mul_i32 {so}, {so}, {32 * 1152}\ns_lshl_b32 {st}, {T0}, 5\ns_add_u32 {so}, {so}, {st}')
    for x_ in CK(8): emit(x_)
    STAMP(11)
    for x_ in C(8) + RR[6][0] + RR[7][0] + RR[6][1] + RR[7][1] + RR[8][0] + RR[8][1]: emit(x_)
    lg.all(); k('s_barrier')
    o4 = [Dn[0][0], Dn[0][1], Dn[1][0]]
    k(f'v_cmp_gt_u32 vcc, 252, v0\ns_and_b64 exec, exec, vcc')
    io = [lg.op(f'ds_read_b128 {o4[i]}, {aOr} offset:{14 * 304 * i}') for i in range(3)]
    for i in range(3):
        if i == 2: k(f's_cmp_ge_u32 {s_w}, 2\ns_cbranch_scc1 {END}\nv_cmp_gt_u32 vcc, 72, v0\ns_and_b64 exec, exec, vcc')
        lg.wait(io[i])
        k(f'buffer_store_dwordx4 {o4[i]}, {aO}, {Rout}, {so} offen' + (' sc1' if 'osc1' in opt else ' nt' if 'ont' in opt else ''))
        if i < 2: k(f's_add_u32 {so}, {so}, {14 * 1152}')
    STAMP(12)
```

```python
from common import *

N_SIG = 64 + 45
BUF0, BUF1, SVEC = 0, 73728, 147456
K1_LDS = 147456 + 2560
SPIN_MAX = 40000

def vmaps():
    maps = [list(range(16))]
    for s in (1, 2, 3):
        m = list(maps[-1]); step = 1 << s
        new = [step * i for i in range(8, 16)]
        for j in range(16):
            if m[j] % step: m[j] = new.pop(0)
        assert not new
        maps.append(m)
    return maps

def service(k, P, lane, s_w, END, NEXT, SP, opt=()):
    vm, lg = trackers(k)
    Rws = k.s(4); Rdbg = k.s(4); RA = k.s(4); RB = k.s(4)
    srd(k, Rws, P['ws'], WS_USED); srd(k, Rdbg, P['dbg'], 256)
    z4 = k.v(4, 4); zero = z4.sub(0, 2); one = k.v(); l16 = k.v(); q = k.v(); m = k.v()
    fr = k.v(72, 4); sv = k.v(72, 4); acc = k.v(4, 4)
    sav = k.s(2); st = k.s(); cnt = k.s()
    jb = k.s(); modeB = k.s(); blkB = k.s(); srcB = k.s(); strB = k.s()
    L_mod, L_B, L_C = k.label('mod'), k.label('jobB'), k.label('jobC')
    k(f'v_lshrrev_b32 {q}, 4, {lane}\nv_and_b32 {m}, 15, {lane}\nv_lshlrev_b32 {l16}, 4, {lane}')
    cjs = {}
    def common():
        for i in range(4): k(f'v_mov_b32 {z4[i]}, 0')
        k(f'v_mov_b32 {one}, 1\ns_mov_b32 {cnt}, 0')
        k(f's_add_u32 {jb}, s2, 32')
        for lo, val in ((64, -64), (73, -58), (90, None), (91, -82), (97, None), (103, -7)):
            if val is None: k(f's_cmp_ge_u32 s2, {lo}\ns_cselect_b32 {jb}, 200, {jb}')
            else: k(f's_sub_u32 {blkB}, s2, {-val}\ns_cmp_ge_u32 s2, {lo}\ns_cselect_b32 {jb}, {blkB}, {jb}')
        srd(k, RB, P['wmod'], D * 3456 * 2)
        k(f's_mov_b32 {modeB}, 0\ns_cmp_ge_u32 {jb}, 9\ns_cselect_b32 {blkB}, 30, 45\ns_add_u32 {blkB}, {blkB}, {jb}\ns_mov_b32 {strB}, 6912')
        for mode, lo, ptr, nb, st_ in ((2, 15, 'w2', D * D * 2, 1152), (3, 24, 'w3', D * F * 2, 9216), (1, 96, 'w1', D * D * 2, 1152)):
            k(f's_sub_u32 {srcB}, {jb}, {lo}\ns_cmp_ge_u32 {jb}, {lo}')
            k(f's_cselect_b32 {blkB}, {srcB}, {blkB}\ns_cselect_b32 {modeB}, {mode}, {modeB}\ns_cselect_b32 {strB}, {st_}, {strB}')
            k(f's_cselect_b32 {RB[0]}, {P[ptr][0]}, {RB[0]}\ns_cselect_b32 {RB[1]}, {P[ptr][1]}, {RB[1]}\ns_cselect_b32 {RB[2]}, {nb}, {RB[2]}')
        k(f's_lshl_b32 {srcB}, {blkB}, 7')
    def signal(off, last):
        sk = k.label('notlast')
        k(f's_mov_b64 exec, 1\nv_mov_b32 {acc[0]}, 1\nbuffer_atomic_add {acc[0]}, {zero[0]}, {Rdbg}, {off} offen offset:64 sc0 sc1\ns_waitcnt vmcnt(0)')
        k(f'v_readfirstlane_b32 {st}, {acc[0]}\ns_cmp_lg_u32 {st}, {last}\ns_cbranch_scc1 {sk}')
        k(f'buffer_store_dword {one}, {zero[0]}, {Rdbg}, {off} offen offset:192 sc1\n{sk}:\ns_mov_b64 exec, -1')
    cj = ColJob(k, vm, lg, lane, s_w)
    L_w1 = k.label('w1')
    k(f's_cmp_ge_u32 s2, 103\ns_cbranch_scc1 {L_w1}\ns_cmp_ge_u32 s2, 64\ns_cbranch_scc1 {L_mod}')

    srd(k, RA, P['u'], L * D * 2)
    va = k.v(); vx = k.v(2); t = k.v(6); row = k.v(); s1 = k.s()
    k(f's_and_b32 {st}, {s_w}, 1\ns_lshl_b32 {s1}, s2, 1\ns_add_u32 {st}, {st}, {s1}\ns_lshl_b32 {st}, {st}, 4')
    k(f'v_and_b32 {t[0]}, 7, {m}\nv_lshrrev_b32 {t[2]}, 3, {m}\nv_lshl_add_u32 {t[5]}, {t[0]}, 1, {t[2]}\nv_add_u32 {row}, {st}, {t[5]}')
    k(f's_lshr_b32 {s1}, {s_w}, 1\ns_mul_i32 {st}, {s1}, 576\nv_mul_u32_u24 {va}, 1152, {row}\nv_lshl_add_u32 {va}, {q}, 4, {va}')
    for i in range(4): k(f'v_mov_b32 {z4[i]}, 0')
    k(f's_lshl_b32 {sav[0]}, s2, 8\ns_add_u32 {sav[0]}, {sav[0]}, {O_STATS}\ns_cmp_eq_u32 {s_w}, 0\ns_cselect_b32 {sav[0]}, {sav[0]}, {WS_USED}\ns_mov_b64 exec, 0xffff')
    k(f'buffer_store_dwordx4 {z4}, {l16}, {Rws}, {sav[0]} offen sc1\ns_mov_b64 exec, -1')
    k(f's_or_b32 {sav[0]}, s2, {s_w}\ns_cmp_eq_u32 {sav[0]}, 0\ns_mov_b32 {sav[0]}, {O_FW}\ns_cselect_b32 {sav[0]}, {sav[0]}, {WS_USED}')
    k(f'buffer_store_dwordx4 {z4}, {l16}, {Rws}, {sav[0]} offen sc1\nbuffer_store_dwordx4 {z4}, {l16}, {Rws}, {sav[0]} offen offset:1024 sc1\nbuffer_store_dwordx4 {z4}, {l16}, {Rws}, {sav[0]} offen offset:2048 sc1')
    ix = [vm.op(f'buffer_load_dwordx4 {fr.sub(4 * i, 4)}, {va}, {RA}, {st} offen offset:{64 * i}' + (' nt' if 'ntx' in opt else '')) for i in range(9)]
    pf = k.v(2); pfs = k.s(2)
    common()
    ones = sv.sub(40, 4); gacc = sv.sub(36, 4); arr = sv[44]; msk = [k.s(2) for _ in range(3)]
    sk = k.label('noarr')
    k(f's_cmp_lg_u32 {s_w}, 0\ns_cbranch_scc1 {sk}\ns_mov_b64 exec, 1\nv_mov_b32 {arr}, 1\ns_waitcnt vmcnt(9)\nbuffer_atomic_add {arr}, {zero[0]}, {Rdbg}, 0 offen offset:64 sc0 sc1\ns_mov_b64 exec, -1\n{sk}:')
    for i in range(4): k(f'v_mov_b32 {ones[i]}, 0x3f803f80')
    k(f'v_and_b32 {t[0]}, 3, {m}')
    for e in range(3): k(f'v_cmp_eq_u32 {msk[e]}, {e + 1}, {t[0]}')
    k(f's_lshl_b32 {st}, {s_w}, 8\ns_add_u32 {st}, {st}, {SVEC}\nv_lshl_add_u32 {t[3]}, {t[5]}, 2, {st}\nv_lshrrev_b32 {t[0]}, 2, {m}\nv_cmp_eq_u32 vcc, {t[0]}, {q}')
    k(f'v_add_u32 {t[4]}, 128, {t[3]}\nv_add_u32 {t[5]}, 192, {t[3]}\nv_cndmask_b32 {t[4]}, {t[5]}, {t[4]}, vcc')
    k(f'v_lshrrev_b32 {t[0]}, 3, {m}\nv_lshl_add_u32 {t[1]}, {q}, 1, {t[0]}\nv_lshlrev_b32 {vx[0]}, 14, {t[1]}\nv_sub_u32 {t[1]}, {row}, {t[0]}\nv_lshl_add_u32 {vx[0]}, {t[1]}, 3, {vx[0]}')
    k(f's_mul_i32 {s1}, {s1}, {9 * 131072}\ns_add_u32 {s1}, {s1}, {O_XT}\nv_cmp_eq_u32 vcc, 0, {t[0]}')
    dp = 'row_ror:8 row_mask:0xf bank_mask:0xf'
    for i in range(9):
        vm.wait(ix[i])
        if i == 0: SP(8)
        r_ = fr.sub(4 * i, 4); o = sv.sub(4 * i, 4)
        k(f'v_mfma_f32_16x16x32_bf16 {acc}, {ones}, {r_}, {"0" if i == 0 else acc}')
        k(f'v_cndmask_b32_dpp {o[0]}, {r_[2]}, {r_[0]}, vcc {dp}\nv_cndmask_b32_dpp {o[1]}, {r_[3]}, {r_[1]}, vcc {dp}\ns_not_b64 vcc, vcc')
        k(f'v_mfma_f32_16x16x32_bf16 {gacc}, {r_}, {r_}, {"0" if i == 0 else gacc}')
        k(f'v_cndmask_b32_dpp {o[2]}, {r_[0]}, {r_[2]}, vcc {dp}\nv_cndmask_b32_dpp {o[3]}, {r_[1]}, {r_[3]}, vcc {dp}\ns_not_b64 vcc, vcc')
        vm.op(f'buffer_store_dwordx4 {o}, {vx[0]}, {Rws}, {s1} offen sc1')
        if i < 8: k(f's_add_u32 {s1}, {s1}, 131072')
    SP(10)
    k(f'v_cndmask_b32 {t[0]}, {gacc[0]}, {gacc[1]}, {msk[0]}\nv_cndmask_b32 {t[0]}, {t[0]}, {gacc[2]}, {msk[1]}\nv_cndmask_b32 {t[0]}, {t[0]}, {gacc[3]}, {msk[2]}')
    k(f'ds_write_b32 {t[3]}, {acc[0]}\nds_write_b32 {t[4]}, {t[0]}\ns_waitcnt lgkmcnt(0)\ns_barrier')
    a, b = k.label('notw0'), k.label('sigd')
    k(f's_cmp_lg_u32 {s_w}, 0\ns_cbranch_scc1 {a}')
    k(f'v_and_b32 {t[1]}, 1, {q}\nv_lshlrev_b32 {t[1]}, 8, {t[1]}\nv_lshl_add_u32 {t[1]}, {m}, 2, {t[1]}\nv_add_u32 {t[1]}, {SVEC}, {t[1]}')
    k(f'ds_read2_b32 {t[2:4]}, {t[1]} offset0:0 offset1:32\nds_read2_b32 {t[4:6]}, {t[1]} offset0:128 offset1:160')
    sk = k.label('notlast')
    k(f's_waitcnt vmcnt(9)\nv_readfirstlane_b32 {st}, {arr}\ns_cmp_lg_u32 {st}, 102\ns_cbranch_scc1 {sk}')
    k(f's_mov_b64 exec, 1\nbuffer_store_dword {one}, {zero[0]}, {Rdbg}, 0 offen offset:192 sc1\ns_mov_b64 exec, -1\n{sk}:\ns_waitcnt lgkmcnt(0)')
    k(f'v_add_f32 {t[0]}, {t[2]}, {t[4]}\nv_add_f32 {t[2]}, {t[3]}, {t[5]}')
    sigma_bf16(k, t[0], t[2])
    k(f'v_cvt_pk_bf16_f32 {t[2]}, {t[0]}, {t[2]}\nv_mov_b32 {t[3]}, 1\nv_lshlrev_b32 {t[1]}, 3, {lane}\ns_lshl_b32 {st}, s2, 8\ns_add_u32 {st}, {st}, {O_STATS}')
    k(f'{a}:'); SP(14); k('s_waitcnt vmcnt(0)\ns_barrier'); vm.reset()
    k(f's_cmp_lg_u32 {s_w}, 0\ns_cbranch_scc1 {b}')
    k(f's_mov_b32 exec_hi, 0\nbuffer_store_dwordx2 {t[2:4]}, {t[1]}, {Rws}, {st} offen sc1\ns_mov_b64 exec, -1')
    k(f'{b}:'); SP(9)
    for x_ in msk: x_.release()
    code_prefetch(k, None, NEXT, END, 60000, 'v0', pf, pfs)
    cj.dma(RB, srcB, strB, BUF1, True)
    k(f's_lshl_b32 {st}, s2, 2\ns_add_u32 {st}, {st}, {s_w}\ns_lshl_b32 {st}, {st}, 10')
    k(f's_cmp_eq_u32 s2, {O_FW // 4096}\ns_cselect_b32 {st}, {WS_USED}, {st}\nbuffer_store_dwordx4 {z4}, {l16}, {Rws}, {st} offen sc1')
    sk = k.label('nopad')
    k(f's_cmp_lg_u32 {s_w}, 2\ns_cbranch_scc1 {sk}\ns_cmp_ge_u32 s2, 36\ns_cbranch_scc1 {sk}\ns_lshr_b32 {st}, s2, 1\ns_mul_i32 {st}, {st}, {GPL}\ns_bitcmp1_b32 s2, 0\ns_cselect_b32 {sav[0]}, {129 * 1024}, 0')
    k(f's_add_u32 {st}, {st}, {sav[0]}\ns_add_u32 {st}, {st}, {O_G}\nbuffer_store_dwordx4 {z4}, {l16}, {Rws}, {st} offen sc1\n{sk}:')
    k(f's_branch {L_B}')
    for x_ in (va, vx, t, row, s1): x_.release()

    def mod_tail(ids, s_blk, sig, gran=False):
        t = k.v(2); vg = k.v(); s1 = k.s()
        for s in range(18):
            if s % 2 == 0: lg.wait(ids[s + 1])
            k(f'v_mfma_f32_16x16x32_bf16 {acc}, {sv.sub(4 * s, 4)}, {fr.sub(4 * s, 4)}, {"0" if s == 0 else acc}')
        k(f's_lshl_b32 {s1}, {s_w}, 6\ns_add_u32 {s1}, {s1}, {SVEC + 2048}\nv_lshl_add_u32 {vg}, {m}, 2, {s1}')
        k(f'v_cvt_pk_bf16_f32 {t[0]}, {acc[0]}, {acc[0]}\nv_and_b32 {t[0]}, 0xffff0000, {t[0]}')
        k(f'v_add_f32 {t[1]}, 1.0, {t[0]}\nv_cvt_pk_bf16_f32 {t[1]}, {t[1]}, {t[1]}\nv_and_b32 {t[1]}, 0xffff0000, {t[1]}')
        k(f's_mov_b64 vcc, 0\ns_sub_u32 {s1}, {s_blk}, 9\ns_cmp_lt_u32 {s1}, 9\ns_cselect_b64 vcc, -1, vcc')
        k(f's_sub_u32 {s1}, {s_blk}, 36\ns_cmp_lt_u32 {s1}, 9\ns_cselect_b64 vcc, -1, vcc')
        k(f'v_cndmask_b32 {t[0]}, {t[0]}, {t[1]}, vcc\nds_write_b32 {vg}, {t[0]}\ns_waitcnt lgkmcnt(0)\ns_barrier'); lg.reset()
        a, b = k.label('notw0'), k.label('nob')
        k(f's_cmp_lg_u32 {s_w}, 0\ns_cbranch_scc1 {a}')
        k(f'v_lshlrev_b32 {vg}, 3, {lane}\nv_add_u32 {t[0]}, {SVEC + 2048}, {vg}\nds_read_b64 {t}, {t[0]}\ns_lshl_b32 {s1}, {s_blk}, 8\ns_add_u32 {s1}, {s1}, {O_MODF}')
        k(f's_mov_b32 exec_hi, 0')
        if gran:
            k(f's_lshl_b32 {sav[0]}, {s_blk}, 9\ns_add_u32 {sav[0]}, {sav[0]}, {O_MODG}\nv_mov_b32 {acc[1]}, 1\nv_mov_b32 {acc[3]}, 1\ns_waitcnt lgkmcnt(0)')
            k(f'v_mov_b32 {acc[0]}, {t[0]}\nv_mov_b32 {acc[2]}, {t[1]}\nbuffer_store_dwordx4 {acc}, {l16}, {Rws}, {sav[0]} offen sc1')
        k(f's_waitcnt lgkmcnt(0)\nbuffer_store_dwordx2 {t}, {vg}, {Rws}, {s1} offen sc1')
        if sig:
            k(f's_sub_u32 {s1}, {s_blk}, 27\ns_cmp_ge_u32 {s1}, 18\ns_cbranch_scc1 {a}')
            k(f'v_cvt_pk_bf16_f32 {acc[0]}, {t[0]}, {t[1]}\nv_lshrrev_b32 {vg}, 1, {vg}\ns_lshl_b32 {s1}, {s1}, 7\ns_add_u32 {s1}, {s1}, {O_MODB}')
            k(f'buffer_store_dword {acc[0]}, {vg}, {Rws}, {s1} offen sc1\ns_waitcnt vmcnt(0)')
            signal(12, 17)
        k(f'{a}:\ns_mov_b64 exec, -1')
        t.release(); vg.release(); s1.release()

    k(f'{L_mod}:')
    vm, lg = trackers(k); cj.vm, cj.lg = vm, lg
    blkA = k.s(); srcA = k.s(); strA = k.s(); Rc = k.s(4)
    srd(k, RA, P['wmod'], D * 3456 * 2); srd(k, Rc, P['c'], D * 2)
    k(f's_sub_u32 {blkA}, s2, 64')
    k(f's_lshl_b32 {srcA}, {blkA}, 7\ns_mov_b32 {strA}, 6912')
    t = k.v(8); vg = k.v()
    k(f'v_lshlrev_b32 {vg}, 3, v0')
    for i in range(4): k(f'v_mov_b32 {z4[i]}, 0')
    k(f's_lshl_b32 {st}, {blkA}, 9\ns_add_u32 {st}, {st}, {O_MODG}\ns_cmp_eq_u32 {s_w}, 0\ns_cselect_b32 {st}, {st}, {WS_USED}\ns_mov_b32 exec_hi, 0')
    icl = vm.op(f'buffer_store_dwordx4 {z4}, {l16}, {Rws}, {st} offen sc1')
    k('s_mov_b64 exec, -1')
    ic = vm.op(f'buffer_load_dwordx2 {t[0:2]}, {vg}, {Rc}, 0 offen')
    ia = cj.dma(RA, srcA, strA, BUF0, 'ntm' in opt)
    common()
    vm.wait(ic)
    sk = k.label('noarr')
    k(f's_cmp_lg_u32 {s_w}, 0\ns_cbranch_scc1 {sk}\ns_mov_b64 exec, 1\nv_mov_b32 {acc[1]}, 1\nbuffer_atomic_add {acc[1]}, {zero[0]}, {Rdbg}, 0 offen offset:64 sc0 sc1\ns_mov_b64 exec, -1\n{sk}:')
    k(f'v_lshlrev_b32 {t[2]}, 16, {t[0]}\nv_and_b32 {t[3]}, 0xffff0000, {t[0]}\nv_lshlrev_b32 {t[4]}, 16, {t[1]}\nv_and_b32 {t[5]}, 0xffff0000, {t[1]}')
    e = k.v(4)
    for i in range(4): k(f'v_mul_f32 {e[i]}, {fl(-LOG2E)}, {t[2 + i]}')
    for i in range(4): k(f'v_exp_f32 {e[i]}, {e[i]}')
    for i in range(4): k(f'v_add_f32 {e[i]}, 1.0, {e[i]}')
    for i in range(4): k(f'v_rcp_f32 {e[i]}, {e[i]}')
    for i in range(4): k(f'v_mul_f32 {e[i]}, {e[i]}, {t[2 + i]}')
    k(f'v_cvt_pk_bf16_f32 {t[0]}, {e[0]}, {e[1]}\nv_cvt_pk_bf16_f32 {t[1]}, {e[2]}, {e[3]}\nv_add_u32 {vg}, {SVEC}, {vg}')
    k(f'ds_write_b64 {vg}, {t[0:2]}\nv_lshlrev_b32 {vg}, 4, {q}\nv_add_u32 {vg}, {SVEC}, {vg}\ns_waitcnt lgkmcnt(0)\ns_barrier')
    for s in range(18): lg.op(f'ds_read_b128 {sv.sub(4 * s, 4)}, {vg} offset:{64 * s}')
    ad = cj.addr(BUF0)
    sk = k.label('notlast')
    k(f's_waitcnt vmcnt(0) lgkmcnt(0)\ns_cmp_lg_u32 {s_w}, 0\ns_cbranch_scc1 {sk}\nv_readfirstlane_b32 {st}, {acc[1]}\ns_cmp_lg_u32 {st}, 102\ns_cbranch_scc1 {sk}')
    k(f's_mov_b64 exec, 1\nbuffer_store_dword {one}, {zero[0]}, {Rdbg}, 0 offen offset:192 sc1\ns_mov_b64 exec, -1\n{sk}:\ns_barrier'); SP(10); vm.reset(); lg.reset()
    ids = cj.reads(ad, fr)
    sk = k.label('lateB')
    k(f's_cmp_lt_u32 {blkA}, 27\ns_cbranch_scc1 {sk}\ns_cmp_ge_u32 {jb}, 200\ns_cbranch_scc1 {sk}')
    cj.dma(RB, srcB, strB, BUF1)
    k(f'{sk}:')
    mod_tail(ids, blkA, True, True); SP(11)
    k(f's_cmp_ge_u32 {jb}, 200\ns_cbranch_scc1 {L_C}\ns_cmp_ge_u32 {blkA}, 27\ns_cbranch_scc1 {sk}_w')
    cj.dma(RB, srcB, strB, BUF1, True)
    k(f'{sk}_w:\ns_waitcnt vmcnt(0)\ns_branch {L_B}')
    e.release(); t.release(); vg.release()

    k(f'{L_w1}:')
    common()
    cj.dma(RB, srcB, strB, BUF1, 'nt1' in opt)
    k('s_waitcnt vmcnt(0)')

    k(f'{L_B}:')
    vm, lg = trackers(k); cj.vm, cj.lg = vm, lg
    k(f's_waitcnt vmcnt(1) lgkmcnt(0)\ns_barrier')
    SP(12)
    il = k.s(); k(f's_sub_u32 {il}, {modeB}, 1\ns_cmp_lt_u32 {il}, 2\ns_cselect_b32 {il}, 1, 0')
    ids = cj.read(BUF1, fr, s_il=il)
    notmod, nocenter = k.label('notmod'), k.label('nocenter')
    k(f's_cmp_lg_u32 {modeB}, 0\ns_cbranch_scc1 {notmod}')
    mod_tail(ids, blkB, True)
    k(f's_branch {L_C}\n{notmod}:')
    k('s_waitcnt lgkmcnt(0)'); lg.reset()
    T = k.s(); j = k.s(); dst = k.s(); step = k.s(); rot = k.s()
    k(f's_lshl_b32 {T}, {blkB}, 2\ns_add_u32 {T}, {T}, {s_w}')
    k(f's_mul_hi_u32 {j}, {T}, {(1 << 32) // 6 + 1}\ns_mul_i32 {dst}, {j}, 6\ns_sub_u32 {dst}, {T}, {dst}\ns_lshl_b32 {dst}, {dst}, 10')
    k(f's_mul_i32 {step}, {j}, 110592\ns_add_u32 {dst}, {dst}, {step}')
    k(f's_mul_i32 {rot}, {j}, 3\ns_sub_u32 {rot}, 18, {rot}\ns_cmp_eq_u32 {rot}, 18\ns_cselect_b32 {rot}, 0, {rot}')
    k(f's_cmp_eq_u32 {modeB}, 1\ns_cselect_b32 {rot}, {rot}, 0\ns_cselect_b32 {step}, 0, {O_W2F - O_W1F}\ns_add_u32 {dst}, {dst}, {step}\ns_add_u32 {dst}, {dst}, {O_W1F}')
    k(f's_mul_i32 {j}, {T}, 18432\ns_add_u32 {j}, {j}, {O_W3F}')
    k(f's_cmp_ge_u32 {modeB}, 3\ns_cselect_b32 {dst}, {j}, {dst}\ns_cselect_b32 {step}, 1, 6\ns_lshl_b32 {step}, {step}, 10')
    L_st = k.label('stored')
    k(f's_bitcmp0_b32 {modeB}, 0\ns_cbranch_scc1 {nocenter}')
    ones = sv.sub(0, 4); t = k.v(4); gof = k.v(4, 4)
    go2_ld = f'buffer_load_dwordx4 {gof}, {zero[0]}, {Rdbg}, 0 offen offset:192 sc1'
    k(go2_ld)
    for i in range(4): k(f'v_mov_b32 {ones[i]}, 0x3f803f80')
    for s in range(18): k(f'v_mfma_f32_16x16x32_bf16 {acc}, {ones}, {fr.sub(4 * s, 4)}, {"0" if s == 0 else acc}')
    nm = sv.sub(4, 2)
    k(f'v_mul_f32 {nm[0]}, {fl(-1 / 576)}, {acc[0]}')
    k(f's_mov_b32 {st}, 0x3f80\ns_mov_b32 {sav[0]}, 0x3f800000')
    tc = sv.sub(8, 16)
    def put(i):
        k(f's_mul_i32 {j}, {rot}, {step}\ns_add_u32 {j}, {j}, {dst}\ns_add_u32 {rot}, {rot}, 1\ns_cmp_eq_u32 {rot}, 18\ns_cselect_b32 {rot}, 0, {rot}')
        k(f'buffer_store_dwordx4 {fr.sub(i, 4)}, {l16}, {Rws}, {j} offen sc1')
    for i in range(0, 72, 4):
        u = tc.sub(8 * ((i >> 2) & 1), 8)
        for e in range(4): k(f'v_dot2_f32_bf16 {u[2 * e]}, {fr[i + e]}, {st}, {nm[0]}\nv_dot2_f32_bf16 {u[2 * e + 1]}, {fr[i + e]}, {sav[0]}, {nm[0]}')
        if i:
            p = tc.sub(8 * (1 - ((i >> 2) & 1)), 8)
            for e in range(4): k(f'v_cvt_pk_bf16_f32 {fr[i - 4 + e]}, {p[2 * e]}, {p[2 * e + 1]}')
            put(i - 4)
    for e in range(4): k(f'v_cvt_pk_bf16_f32 {fr[68 + e]}, {u[2 * e]}, {u[2 * e + 1]}')
    put(68)
    k(f's_cmp_lg_u32 {modeB}, 1\ns_cbranch_scc1 {L_C}')
    sk = k.label('nosig')
    k(f's_waitcnt vmcnt(0)\ns_barrier\ns_cmp_lg_u32 {s_w}, 0\ns_cbranch_scc1 {sk}')
    signal(8, 8)
    k(f'{sk}:'); SP(9)
    lp, ok = k.label('pollm'), k.label('gotm')
    k(f'{lp}:\ns_waitcnt vmcnt(0)\nv_and_b32 {gof[3]}, {gof[3]}, {gof[0]}\nv_readfirstlane_b32 {st}, {gof[3]}\ns_cmp_ge_u32 {st}, 1\ns_cbranch_scc1 {ok}')
    k(f's_sleep 2\n{go2_ld}\ns_add_u32 {cnt}, {cnt}, 1\ns_cmp_lt_u32 {cnt}, {SPIN_MAX}\ns_cbranch_scc1 {lp}\ns_branch {END}\n{ok}:'); vm.reset(); SP(11)
    k(f'v_and_b32 {t[0]}, 1, {m}\nv_xor_b32 {t[0]}, 1, {t[0]}\nv_mul_u32_u24 {t[0]}, 1152, {t[0]}\nv_lshl_add_u32 {t[0]}, {q}, 4, {t[0]}\ns_mov_b32 {st}, {O_MODB}')
    ids = [vm.op(f'buffer_load_dwordx4 {sv.sub(4 * s, 4)}, {t[0]}, {Rws}, {st} offen offset:{64 * s} sc1') for s in range(18)]
    k(f's_lshr_b32 {j}, {s_w}, 1\ns_lshl_b32 {j}, {j}, 7\ns_and_b32 {st}, {s_w}, 1\ns_lshl_b32 {st}, {st}, 4\ns_add_u32 {j}, {j}, {st}\ns_add_u32 {j}, {j}, {SVEC}')
    k(f'v_lshrrev_b32 {t[1]}, 2, {m}\nv_and_b32 {t[2]}, 3, {m}\nv_lshlrev_b32 {t[2]}, 2, {t[2]}\nv_lshl_add_u32 {t[1]}, {t[1]}, 5, {t[2]}\nv_add_u32 {t[1]}, {j}, {t[1]}')
    for s in range(18):
        vm.wait(ids[s])
        k(f'v_mfma_f32_16x16x32_bf16 {acc}, {sv.sub(4 * s, 4)}, {fr.sub(4 * s, 4)}, {"0" if s == 0 else acc}')
    k(f'ds_write2st64_b32 {t[1]}, {acc[0]}, {acc[1]} offset0:0 offset1:1\ns_waitcnt lgkmcnt(0)\ns_barrier\ns_cmp_lg_u32 {s_w}, 0\ns_cbranch_scc1 {L_st}')
    k(f'v_add_u32 {t[0]}, {SVEC}, {l16}\nds_read_b128 {acc}, {t[0]}\nv_mul_u32_u24 {t[1]}, 2304, {q}\nv_lshl_add_u32 {t[1]}, {m}, 4, {t[1]}')
    k(f's_lshl_b32 {j}, {blkB}, 8\ns_add_u32 {j}, {j}, {O_MODF + 6 * 2304}\ns_mov_b32 exec_hi, 0\ns_waitcnt lgkmcnt(0)')
    k(f'buffer_store_dwordx4 {acc}, {t[1]}, {Rws}, {j} offen sc1\ns_mov_b32 {j}, {O_FU}\ns_mov_b64 exec, 1\ns_waitcnt vmcnt(0)\nbuffer_atomic_add {one}, {zero[0]}, {Rws}, {j} offen sc1\ns_mov_b64 exec, -1')
    k(f'{L_st}:\ns_branch {L_C}')
    k(f'{nocenter}:'); vm.reset()
    cj.store(fr, None, Rws, dst, step, s_rot=rot)
    k(f'{L_C}:'); SP(13)
    k(f's_branch {NEXT}')

TAB, KD = 0, 17410

def conv(k, P, lane, s_w, END, NEXT, dump, SP, opt=()):
    vm, lg = trackers(k)
    cidx = k.s(); s_d = k.s(); st = k.s(); st2 = k.s(); sav = k.s(2)
    k(f's_and_b32 {cidx}, s2, 7\ns_mul_i32 {cidx}, {cidx}, 18\ns_lshr_b32 {st}, s2, 3\ns_add_u32 {cidx}, {cidx}, {st}\ns_sub_u32 {cidx}, {cidx}, 14')
    k(f's_lshl_b32 {s_d}, {cidx}, 2\ns_add_u32 {s_d}, {s_d}, {s_w}\ns_lshl_b32 {st}, {cidx}, 3')
    sdt = k.s(2); sD = k.s(2)
    k(f's_load_dwordx2 {sdt}, {P["logdt"]}, {st}\ns_load_dwordx2 {sD}, {P["Dskip"]}, {st}')
    R = k.s(4); Rws = k.s(4); Rdbg = k.s(4)
    par = k.v(4); t = k.v(8); x = k.v(16)
    k(f'v_lshlrev_b32 {t[0]}, 2, {lane}\ns_lshl_b32 {st2}, {s_d}, 8')
    for i, n in enumerate(('logA', 'Aim', 'Cr', 'Ci')):
        srd(k, R, P[n], D * 128 * 2)
        ipar = vm.op(f'buffer_load_dword {par[i]}, {t[0]}, {R}, {st2} offen' + (' nt' if 'ntp' in opt else ''))
    srd(k, Rws, P['ws'], WS_USED); srd(k, Rdbg, P['dbg'], 256)
    wb = k.s(); k(f's_mul_i32 {wb}, {s_w}, {WSTR}')
    q = k.v(); m = k.v(); ag = k.v(); am = k.v(); a4 = k.v(); fl_v = k.v(2)
    k(f'v_lshrrev_b32 {q}, 4, {lane}\nv_and_b32 {m}, 15, {lane}')
    ga = k.v(32); cst = k.v()
    k(f's_add_u32 {st2}, {wb}, {KD - 2 * (134 * 128 - 128)}\nv_mov_b32 {cst}, {st2}')
    k(f'v_lshlrev_b32 {t[2]}, 3, {lane}\nv_cvt_f32_u32 {t[2]}, {t[2]}')
    for c in range(2):
        for e in range(0, 8, 2):
            k(f'v_add_f32 {t[4]}, {fl(512 * c + e)}, {t[2]}\nv_add_f32 {t[5]}, {fl(512 * c + e + 1)}, {t[2]}\nv_cvt_pk_bf16_f32 {t[4]}, {t[4]}, {t[5]}')
            k(f'v_mad_u32_u16 {ga[8 * c + e]}, {t[4]}, 2, {cst}\nv_mad_u32_u16 {ga[8 * c + e + 1]}, {t[4]}, 2, {cst} op_sel:[1,0,0,0]')
    k(f's_add_u32 {st2}, {wb}, {KD}\nv_lshl_add_u32 {t[4]}, {lane}, 4, {st2}\nv_cmp_gt_u32 vcc, 16, {lane}')
    for e in range(8): k(f'v_add_u32 {t[5]}, {2 * e}, {t[4]}\nv_cndmask_b32 {ga[e]}, {ga[e]}, {t[5]}, vcc')
    VM = vmaps()
    kda = k.v(4)
    k(f'v_lshlrev_b32 {t[2]}, 2, {m}')
    for s in range(4):
        lut = sum((VM[s][j] >> s) << (4 * j) for j in range(16))
        base = 0 if s == 0 else 128 + 128 * s
        k(f's_mov_b32 {sav[0]}, {lut & 0xffffffff}\ns_mov_b32 {sav[1]}, {lut >> 32}\nv_lshrrev_b64 {t[4:6]}, {t[2]}, {sav}\nv_and_b32 {t[4]}, 15, {t[4]}')
        k(f'v_lshl_add_u32 {t[4]}, {q}, 6, {t[4]}\ns_add_u32 {st2}, {wb}, {KD + 2 * base}\nv_lshl_add_u32 {kda[s]}, {t[4]}, 1, {st2}')
    cst.release()
    atw = k.v(); atr = k.v()
    k(f'v_lshl_add_u32 {atw}, {lane}, 3, {wb}\nv_mul_u32_u24 {atr}, 544, {m}\nv_lshl_add_u32 {atr}, {q}, 4, {atr}\nv_add_u32 {atr}, {wb}, {atr}')
    z4 = k.v(4)
    for i in range(4): k(f'v_mov_b32 {z4[i]}, 0')
    k(f'v_lshrrev_b32 {t[4]}, 5, v0\nv_mul_u32_u24 {t[4]}, {HSTR}, {t[4]}\nv_and_b32 {t[5]}, 31, v0\nv_lshl_add_u32 {t[4]}, {t[5]}, 4, {t[4]}\nv_add_u32 {t[4]}, {HB}, {t[4]}')
    k(f'v_cmp_gt_u32 vcc, 128, v0\ns_and_saveexec_b64 {sav}, vcc\nds_write_b128 {t[4]}, {z4}\ns_mov_b64 exec, {sav}')
    k('s_waitcnt lgkmcnt(0)')
    k(f's_lshl_b32 {st2}, {s_w}, 4\ns_lshr_b64 {sdt}, {sdt}, {st2}\ns_lshl_b32 {sdt[0]}, {sdt[0]}, 16')
    dt = k.v(); ks = k.v()
    k(f'v_mov_b32 {dt}, {fl(LOG2E)}\nv_mul_f32 {dt}, {sdt[0]}, {dt}\nv_exp_f32 {dt}, {dt}\nv_cvt_pk_bf16_f32 {dt}, {dt}, {dt}\nv_and_b32 {dt}, 0xffff0000, {dt}')
    SP(1); vm.wait(ipar); SP(2)
    pr = lambda: [k.v(2), k.v(2)]
    w1, w16, U = pr(), pr(), pr()
    er = k.v(2); rev = k.v(2)
    un = lambda d, s_, hi: f'v_and_b32 {d}, 0xffff0000, {s_}' if hi else f'v_lshlrev_b32 {d}, 16, {s_}'
    for md in range(2):
        k(un(er[md], par[0], md)); k(un(rev[md], par[1], md)); k(un(U[0][md], par[2], md)); k(un(U[1][md], par[3], md))
    for md in range(2): k(f'v_mul_f32 {er[md]}, {fl(LOG2E)}, {er[md]}')
    for md in range(2): k(f'v_exp_f32 {er[md]}, {er[md]}')
    k(f'v_max3_f32 {t[0]}, |{U[0][0]}|, |{U[0][1]}|, |{U[1][0]}|\nv_max_f32 {t[0]}, |{U[1][1]}|, {t[0]}')
    k(f'v_cvt_pk_bf16_f32 {t[1]}, {er[0]}, {er[1]}')
    for mm in ('quad_perm:[1,0,3,2]', 'quad_perm:[2,3,0,1]', 'row_half_mirror', 'row_mirror'):
        k(f'v_max_f32_dpp {t[0]}, {t[0]}, {t[0]} {mm} row_mask:0xf bank_mask:0xf')
    for md in range(2):
        k(un(er[md], t[1], md))
        k(f'v_mul_f32 {er[md]}, {er[md]}, {dt}\nv_mul_f32 {rev[md]}, {rev[md]}, {dt}')
        k(f'v_mul_f32 {er[md]}, {fl(-LOG2E)}, {er[md]}\nv_mul_f32 {rev[md]}, 0.15915494, {rev[md]}')
    k(f'v_readlane_b32 {st2}, {t[0]}, 0\nv_readlane_b32 {sav[0]}, {t[0]}, 16\nv_readlane_b32 {sav[1]}, {t[0]}, 32\nv_readlane_b32 {st}, {t[0]}, 48')
    k(f's_max_u32 {st2}, {st2}, {sav[0]}\ns_max_u32 {st}, {st}, {sav[1]}\ns_max_u32 {st2}, {st2}, {st}')
    for w_, mul in ((w1, None), (w16, '16.0')):
        for md in range(2):
            a, b = t[2 + md], t[4 + md]
            if mul: k(f'v_mul_f32 {a}, {fl(16.)}, {er[md]}\nv_mul_f32 {b}, {fl(16.)}, {rev[md]}\nv_fract_f32 {b}, {b}\nv_exp_f32 {a}, {a}')
            else: k(f'v_fract_f32 {b}, {rev[md]}\nv_exp_f32 {a}, {er[md]}')
            k(f'v_cos_f32 {w_[0][md]}, {b}\nv_sin_f32 {w_[1][md]}, {b}')
        for c in range(2): k(f'v_pk_mul_f32 {w_[c]}, {w_[c]}, {t[2:4]}')
    k(f'v_frexp_exp_i32_f32 {t[0]}, {st2}\nv_sub_u32 {t[1]}, 8, {t[0]}\nv_add_u32 {t[0]}, -7, {t[0]}\nv_ldexp_f32 {ks}, {dt}, {t[0]}')
    for md in range(2):
        for c in range(2): k(f'v_ldexp_f32 {U[c][md]}, {U[c][md]}, {t[1]}')
    er.release(); rev.release(); dt.release()
    tm = [k.v(2) for _ in range(4)]
    def cmul(d, z, s_, ta, tb):
        return [f'v_pk_mul_f32 {ta}, {z[1]}, {s_[1]}', f'v_pk_mul_f32 {tb}, {z[0]}, {s_[1]}',
                f'v_pk_fma_f32 {d[0]}, {z[0]}, {s_[0]}, {ta} neg_lo:[0,0,1] neg_hi:[0,0,1]', f'v_pk_fma_f32 {d[1]}, {z[1]}, {s_[0]}, {tb}']
    w32, w64, w128, w2, w4, w8, V = pr(), pr(), pr(), pr(), pr(), pr(), pr()
    for d_, s_ in ((w32, w16), (w64, w32), (w128, w64)):
        for x_ in cmul(d_, s_, s_, tm[0], tm[1]): k(x_)
    pv = [k.v(2), k.v(2)]; pu = [k.v(2), k.v(2)]
    fa = k.v(32, 4); fb = k.v(32, 4); kacc = k.v(16, 4)
    state = {'V': None, 'nv': 0, 'nu': 0}
    def v_entry(val, slot):
        out = []
        pk = pv[state['nv'] & 1]; state['nv'] += 1
        if val == 0:
            out += [f'v_mov_b32 {pk[0]}, 0x3c00', f'v_mov_b32 {pk[1]}, 0x3c00']
        else:
            if val == 1: cur = w1
            else:
                step = w1 if val <= 16 else w2 if val <= 32 else w4 if val <= 64 else w8
                cur = {2: w2, 4: w4, 8: w8}.get(val, V)
                out += cmul(cur, state['V'], step, tm[0], tm[1])
            state['V'] = cur
            out += [f'v_cvt_pk_f16_f32 {pk[md]}, {cur[0][md]}, {cur[1][md]}' for md in range(2)]
        out.append(('ds', f'ds_write_b64 {atw}, {pk} offset:{TAB + slot * 544}'))
        return out
    def u_entry(val, row):
        out = []
        pk = pu[state['nu'] & 1]; state['nu'] += 1
        if val:
            step = w16 if val <= 256 else w32 if val <= 512 else w64 if val <= 1024 else w128
            out += cmul(U, U, step, tm[2], tm[3])
        out += [f'v_cvt_pk_f16_f32 {pk[md]}, {U[0][md]}, -{U[1][md]}' for md in range(2)]
        out.append(('ds', f'ds_write_b64 {atw}, {pk} offset:{TAB + (16 + row) * 544}'))
        return out
    def put(x_):
        if isinstance(x_, tuple): return lg.op(x_[1])
        k(x_)
    pend = []
    flag_ld = f'buffer_load_dwordx2 {fl_v}, {z4[0]}, {Rdbg}, 0 offen offset:192 sc1'
    ifl = None
    for s in range(4):
        vs = sorted((VM[s][j], j) for j in range(16) if s == 0 or VM[s][j] != VM[s - 1][j])
        us = [16 * u for u in range(16)] if s == 0 else [(128 << s) + (16 << s) * u for u in range(9 if s == 3 else 8)]
        sv_ = [x_ for val, j in vs for x_ in v_entry(val, j)]
        su_ = [x_ for r_, val in enumerate(us) for x_ in u_entry(val, r_)]
        stream = interleave(sv_, su_)
        for n_, x_ in enumerate(stream):
            put(x_)
            if n_ == 27:
                while pend:
                    idr, mf = pend.pop(0); lg.wait(idr); k(mf)
            if s == 3 and n_ == 40: k(flag_ld)
        assert not pend
        for kk in range(8):
            lg.op(f'ds_read_b128 {fa.sub(4 * kk, 4)}, {atr} offset:{TAB + 16 * 544 + 64 * kk}')
            i_ = lg.op(f'ds_read_b128 {fb.sub(4 * kk, 4)}, {atr} offset:{TAB + 64 * kk}')
            ac = kacc.sub(4 * s, 4)
            pend.append((i_, f'v_mfma_f32_16x16x32_f16 {ac}, {fa.sub(4 * kk, 4)}, {fb.sub(4 * kk, 4)}, {"0" if kk == 0 else ac}'))
    for x_ in (w1, w16, w32, w64, w128, w2, w4, w8, V, U, tm, pv, pu):
        for y_ in x_: y_.release()
    md_ = k.v(16, 4); sg = md_; cnt = k.s(); mg = par.sub(0, 2); amg = par[2]
    k(f'v_lshrrev_b32 {amg}, 2, {m}\nv_min_u32 {amg}, 2, {amg}\nv_mul_u32_u24 {amg}, 4608, {amg}\nv_and_b32 {mg[0]}, 3, {m}\nv_lshl_add_u32 {amg}, {mg[0]}, 3, {amg}')
    def kd_out(s):
        ac = kacc.sub(4 * s, 4)
        for e in range(4): k(f'v_mul_f32 {ac[e]}, {ks}, {ac[e]}')
        k(f'v_cvt_pk_bf16_f32 {ac[0]}, {ac[0]}, {ac[1]}\nv_cvt_pk_bf16_f32 {ac[2]}, {ac[2]}, {ac[3]}')
        for e in range(4): lg.op(f'ds_write_b16{"_d16_hi" if e & 1 else ""} {kda[s]}, {ac[e & 2]} offset:{32 * e}')
    for s in range(3): kd_out(s)
    SP(3); lg.reset() if SP.on else None
    got = k.s()
    def x_loads():
        k(f's_lshl_b32 {st}, {cidx}, 14\ns_add_u32 {st}, {st}, {O_XT}')
        for i in range(4):
            k(f'buffer_load_dwordx4 {x.sub(4 * i, 4)}, {ag}, {Rws}, {st} offen sc1')
            if i < 3: k(f's_add_u32 {st}, {st}, 4096')
    def gran_loads():
        for i in range(4): k(f's_mov_b32 {st}, {O_STATS + 4096 * i}\nbuffer_load_dwordx4 {sg.sub(4 * i, 4)}, {ag}, {Rws}, {st} offen sc1')
        mod_loads()
    def gran_check():
        k(f's_waitcnt vmcnt(0)\nv_and_b32 {am}, {sg[1]}, {sg[3]}')
        for i in (5, 9, 13): k(f'v_bitop3_b32 {am}, {am}, {sg[i]}, {sg[i + 2]} bitop3:0x80')
        k(f'v_cmp_ne_u32 vcc, 1, {am}\ns_cmp_eq_u64 vcc, 0')
    def mod_loads():
        k(f's_lshl_b32 {st}, {cidx}, 5\ns_add_u32 {st}, {st}, {O_MODG}')
        k(f'buffer_load_dwordx2 {mg}, {amg}, {Rws}, {st} offen sc1')
    def spin(i, flag_ld):
        lp, ok = k.label('poll'), k.label('go')
        k(f'{lp}:\nv_readfirstlane_b32 {st}, {fl_v[i]}\ns_cmp_ge_u32 {st}, 1\ns_cbranch_scc1 {ok}')
        k(f's_sleep 4\n{flag_ld}\ns_add_u32 {cnt}, {cnt}, 1\ns_cmp_lt_u32 {cnt}, {SPIN_MAX}\ns_waitcnt vmcnt(0)\ns_cbranch_scc1 {lp}\ns_branch {END}\n{ok}:')
    k(f'v_lshlrev_b32 {ag}, 4, v0\nv_lshlrev_b32 {a4}, 2, v0\ns_mov_b32 {cnt}, 0\ns_waitcnt vmcnt(0)')
    spin(0, flag_ld)
    gran_loads()
    while pend:
        idr, mf = pend.pop(0); lg.wait(idr); k(mf)
    kd_out(3)
    kc = fa.sub(0, 16); pvv = fa.sub(16, 8)
    gid = [lg.op(f'ds_read_u16 {ga[e]}, {ga[e]}') for e in range(16)]
    k(f's_add_u32 {st}, {wb}, {KD + 1024}\nv_mov_b32 {ga[16]}, {st}')
    i0 = lg.op(f'ds_read_u16 {ga[16]}, {ga[16]}')
    aw = kda[0]; ap = kda[1]
    k(f'v_lshl_add_u32 {aw}, {lane}, 4, {wb}\nv_lshrrev_b32 {ap}, 1, {lane}\nv_mul_u32_u24 {ap}, 4160, {ap}\nv_and_b32 {t[1]}, 1, {lane}')
    k(f'v_lshl_add_u32 {ap}, {t[1]}, 4, {ap}\nv_add_u32 {ap}, {wb}, {ap}\nv_cmp_eq_u32 vcc, 0, {lane}')
    k(f's_mov_b64 exec, 0xff'); lg.op(f'ds_write_b128 {ap}, {z4}'); k('s_mov_b64 exec, -1')
    for c in range(3):
        if c < 2:
            lg.wait(gid[8 * c + 7])
            for e in range(4): k(f'v_lshl_or_b32 {kc[4 * c + e]}, {ga[8 * c + 2 * e + 1]}, 16, {ga[8 * c + 2 * e]}')
        else:
            lg.wait(i0)
            k(f'v_cndmask_b32 {kc[10]}, 0, {ga[16]}, vcc\nv_mov_b32 {kc[11]}, 0\nv_lshl_or_b32 {kc[8]}, {kc[10]}, 16, {kc[10]}\nv_mov_b32 {kc[9]}, {kc[8]}')
        lg.op(f'ds_write_b128 {aw}, {kc.sub(4 * c, 4)} offset:{32 + 1024 * c}')
    ids = [lg.op(f'ds_read_b64 {pvv.sub(2 * c, 2)}, {aw} offset:{24 + 1024 * c}') for c in range(3)]
    late = k.label('late')
    gran_check()
    k(f's_cselect_b32 {got}, 1, 0\ns_cbranch_scc0 {late}')
    x_loads()
    k(f'{late}:')
    for c in range(3):
        lg.wait(ids[c])
        o = fb.sub(12 * (c & 1), 12); d_ = kc.sub(4 * c, 4); p0, p1 = pvv[2 * c], pvv[2 * c + 1]
        seq = [p0, p1, d_[0], d_[1], d_[2], d_[3]]
        o3 = o.sub(0, 4); o1 = o.sub(4, 4); o2 = o.sub(8, 4)
        for i in range(4): k(f'v_alignbit_b32 {o3[i]}, {seq[i + 1]}, {seq[i]}, 16')
        for i in range(3): k(f'v_mov_b32 {o1[i]}, {o3[i + 1]}')
        k(f'v_alignbit_b32 {o1[3]}, {seq[5]}, {seq[4]}, 16')
        for i in range(4): k(f'v_mov_b32 {o2[i]}, {seq[i + 1]}')
        for r_, oo in ((1, o1), (2, o2), (3, o3)): lg.op(f'ds_write_b128 {aw}, {oo} offset:{4160 * r_ + 32 + 1024 * c}')
    if dump:
        k(f's_lshl_b32 {st}, {s_d}, 12\ns_add_u32 {st}, {st}, {O_DBG}\nv_lshlrev_b32 {t[1]}, 4, {lane}')
        for c in range(4): vm.op(f'buffer_store_dwordx4 {kc.sub(4 * c, 4)}, {t[1]}, {Rws}, {st} offen offset:{1024 * c}')
    ga.release(); acc = k.v(32, 4); kacc.release(); ks.release(); atw.release(); atr.release()
    SP(4); lg.reset() if SP.on else None
    have = k.label('have')
    lp, ok = k.label('again'), k.label('rows')
    k(f's_cmp_lg_u32 {got}, 0\ns_cbranch_scc1 {have}\n{lp}:')
    gran_loads(); gran_check()
    k(f's_cbranch_scc1 {ok}\ns_sleep 2\ns_add_u32 {cnt}, {cnt}, 1\ns_cmp_lt_u32 {cnt}, {SPIN_MAX}\ns_cbranch_scc1 {lp}\ns_branch {END}\n{ok}:')
    x_loads()
    k(f'{have}:')
    xf = k.v(32); hf = k.v(32); st_ = k.v(16)
    for i in range(8): k(f'v_and_b32 {st_[2 * i]}, 0xffff0000, {sg[2 * i]}\nv_lshlrev_b32 {st_[2 * i + 1]}, 16, {sg[2 * i]}')
    for i in range(8): k(f'v_rcp_f32 {st_[2 * i]}, {st_[2 * i]}')
    for i in range(8): k(f'v_mul_f32 {st_[2 * i + 1]}, -{st_[2 * i + 1]}, {st_[2 * i]}')
    k('s_waitcnt vmcnt(0)')
    SP(14); lg.reset() if SP.on else None
    for i in range(16): k(f'v_lshlrev_b32 {xf[2 * i]}, 16, {x[i]}\nv_and_b32 {xf[2 * i + 1]}, 0xffff0000, {x[i]}')
    k(f'v_add_u32 {am}, {HB + 512}, {a4}')
    for j in range(16): k(f'v_pk_fma_f32 {hf.sub(2 * j, 2)}, {xf.sub(2 * j, 2)}, {st_.sub(2 * (j // 2), 2)}, {st_.sub(2 * (j // 2), 2)} op_sel:[0,0,1] op_sel_hi:[1,0,1]')
    lp, ok = k.label('gran'), k.label('got')
    k(f'{lp}:')
    k(f'v_cmp_ne_u32 vcc, 1, {mg[1]}\ns_cmp_eq_u64 vcc, 0\ns_cbranch_scc1 {ok}\ns_sleep 2')
    mod_loads()
    k(f's_add_u32 {cnt}, {cnt}, 1\ns_cmp_lt_u32 {cnt}, {SPIN_MAX}\ns_waitcnt vmcnt(0)\ns_cbranch_scc1 {lp}\ns_branch {END}\n{ok}:')
    for i in range(12): k(f'v_mov_b32_dpp {md_[i]}, {mg[0]} row_newbcast:{i} row_mask:0xf bank_mask:0xf')
    SP(5)
    for i in range(4):
        for j in range(4 * i, 4 * i + 4): k(f'v_pk_fma_f32 {hf.sub(2 * j, 2)}, {hf.sub(2 * j, 2)}, {md_.sub(4 + 2 * (j & 1), 2)}, {md_.sub(2 * (j & 1), 2)}')
        for c in range(4): k(f'v_cvt_pk_bf16_f32 {x[4 * i + c]}, {hf[8 * i + c]}, {hf[8 * i + 4 + c]}')
        for c in range(4): lg.op(f'ds_write_b32 {am}, {x[4 * i + c]} offset:{HSTR * c + 1024 * i}')
    st_.release()
    aA = kda[2]; aB = kda[3]
    k(f'v_bfe_u32 {t[0]}, {lane}, 2, 2\nv_mul_u32_u24 {aA}, 4160, {t[0]}\nv_and_b32 {t[0]}, 3, {lane}\nv_lshl_add_u32 {aA}, {t[0]}, 3, {aA}')
    k(f'v_lshlrev_b32 {t[0]}, 4, {q}\nv_sub_u32 {aA}, {aA}, {t[0]}\ns_add_u32 {st}, {wb}, 56\nv_add_u32 {aA}, {st}, {aA}')
    k(f's_mul_i32 {st}, {s_w}, {HSTR}\ns_add_u32 {st}, {st}, {HB + 480}\nv_lshl_add_u32 {aB}, {m}, 5, {t[0]}\nv_add_u32 {aB}, {st}, {aB}')
    lg.all(); k('s_barrier'); SP(6)
    fa2 = k.a(32, 4); fb2 = k.a(32, 4)
    sets = [(fa, fb), (fa2, fb2)]
    k(f'v_add_u32 {aB}, -448, {aB}')
    def reads(r_):
        A_, B_ = sets[r_ & 1]; out = []
        for i in range(8):
            out.append((('B', i), f'ds_read_b128 {B_.sub(4 * i, 4)}, {aB} offset:{448 - 64 * r_ + 512 * i}'))
            if i < 4 or (i == 4 and r_ == 0):
                out.append((None, f'ds_read_b64_tr_b16 {A_.sub(4 * i, 2)}, {aA} offset:{64 * r_ + 8 + 512 * i}'))
                out.append((('A', i), f'ds_read_b64_tr_b16 {A_.sub(4 * i + 2, 2)}, {aA} offset:{64 * r_ + 512 * i}'))
        return out
    band = [fa.sub(24, 4), fa.sub(28, 4)]; Bt = [fa.sub(20, 4)] + [fa2.sub(16 + 4 * i, 4) for i in range(3)]; HF = k.a(32, 4)
    u_ = x.sub(0, 4); idf = {}
    far = {1: [f'v_lshlrev_b32 {u_[0]}, 3, {q}', f'v_sub_u32 {u_[0]}, {u_[0]}, {m}']}
    for bi, (lo, n) in enumerate(((4, 9), (5, 7))):
        for d in range(4):
            far[1] += [f'v_add_u32 {u_[1]}, {2 * d - lo}, {u_[0]}', f'v_add_u32 {u_[2]}, {2 * d + 1 - lo}, {u_[0]}', f'v_cmp_gt_u32 {sav}, {n}, {u_[1]}', f'v_cmp_gt_u32 vcc, {n}, {u_[2]}',
                       f'v_mov_b32 {u_[1]}, 0x3f80', f'v_mov_b32 {u_[2]}, 1.0', f'v_cndmask_b32 {u_[1]}, 0, {u_[1]}, {sav}', f'v_cndmask_b32 {u_[2]}, 0, {u_[2]}, vcc',
                       f'v_or_b32 {band[bi][d]}, {u_[1]}, {u_[2]}']
    far[2] = far[1][38:]; far[1] = far[1][:38]
    far[2] += [f'v_lshlrev_b32 {u_[0]}, 2, {q}', f'v_sub_u32 {u_[0]}, {m}, {u_[0]}', f's_add_u32 {st}, {wb}, {KD + 1026 - 12}', f'v_lshl_add_u32 {u_[3]}, {u_[0]}, 2, {st}']
    far[3] = [f'ds_read2_b32 {Bt[dl].sub(2 * h, 2)}, {u_[3]} offset0:{16 * dl + 2 * h} offset1:{16 * dl + 2 * h + 1}' for dl in range(4) for h in range(2)]
    far[3] += [f'ds_read_b128 {HF.sub(8 * T + 4 * e, 4)}, {aB} offset:{448 + 512 * T - 16 * (1 - e)}' for T in range(4) for e in range(2)]
    far[3].append(lambda: idf.__setitem__('r', lg.n))
    far[4] = [lambda: lg.wait(idf['r'])]
    for d in range(4): far[4] += [f'v_cmp_le_i32 vcc, {3 - d}, {u_[0]}', 's_nop 0', f'v_cndmask_b32 {Bt[0][d]}, 0, {Bt[0][d]}, vcc']
    E = [x.sub(0, 4), x.sub(4, 4)]; AT = [x.sub(8, 4), x.sub(12, 4)]
    MFB = 'v_mfma_f32_16x16x32_bf16'
    box = lambda T: [f'{MFB} {E[e]}, {HF.sub(8 * T + 4 * e, 4)}, {band[e]}, 0' for e in range(2)]
    pack = lambda T: [f'v_cvt_pk_bf16_f32 {AT[T & 1][i]}, {E[1][3 - i]}, {E[0][3 - i]}' for i in range(4)]
    apply_ = lambda T: [f'{MFB} {acc.sub(4 * tt, 4)}, {AT[T & 1]}, {Bt[tt - 4 - T]}, {acc.sub(4 * tt, 4)}' for tt in range(4 + T, 8)]
    farm = {(4, 12): box(0), (4, 17): pack(0), (4, 20): box(1) + apply_(0), (4, 25): pack(1),
            (5, 2): box(2) + apply_(1), (5, 7): pack(2), (5, 10): box(3) + apply_(2), (5, 15): pack(3), (5, 18): apply_(3)}
    jm = k.s(); l16 = k.v()
    k(f's_lshr_b32 {jm}, s2, 5\ns_sub_u32 {jm}, {jm}, 2\nv_lshlrev_b32 {l16}, 4, {lane}')
    pd = PairDma(k, s_w, jm, O_W1F, Rws, l16, W1_AT)
    early = [g for P_ in range(5) for g in pd.ops(P_)]
    flag_ld = f'buffer_load_dwordx2 {fl_v}, {z4[0]}, {Rdbg}, 0 offen offset:200 sc1'
    k(f'v_lshlrev_b32 {t[0]}, 3, {q}\nv_lshl_add_u32 {t[0]}, {m}, 5, {t[0]}\nv_add_u32 {t[0]}, {wb}, {t[0]}')
    dv = t.sub(4, 4)
    k(f's_lshl_b32 {st}, {sD[0]}, 16\ns_and_b32 {st2}, {sD[0]}, 0xffff0000\nv_mov_b32 {dv[0]}, {st}\nv_mov_b32 {dv[1]}, {st2}')
    k(f's_lshl_b32 {st}, {sD[1]}, 16\ns_and_b32 {st2}, {sD[1]}, 0xffff0000\nv_mov_b32 {dv[2]}, {st}\nv_mov_b32 {dv[3]}, {st2}')
    def y_out(tt):
        o = x.sub(2 * tt, 2)
        return [f'v_cvt_pk_bf16_f32 {o[0]}, {acc[4 * tt]}, {acc[4 * tt + 1]}', f'v_cvt_pk_bf16_f32 {o[1]}, {acc[4 * tt + 2]}, {acc[4 * tt + 3]}',
                f'ds_write_b64 {t[0]}, {o} offset:{512 * tt}']
    yq = []
    cur = {key: lg.op(x_) for key, x_ in reads(0)}
    for r_ in range(8):
        rd = reads(r_ + 1) if r_ < 7 else []
        A_, B_ = sets[r_ & 1]; nxt = {}
        order = [(i, tt) for i in range(5 if r_ == 0 else 4) for tt in range(i, 8)]
        if r_ == 0: order.sort(key=lambda p: (max(p[0], p[1] - p[0]), p))
        if r_ == 7: order.sort(key=lambda p: (p[1], p[0]))
        seen = set(); fq = list(far.get(r_, []))
        if r_ == 2: k(flag_ld)
        if r_ == 4: k('s_waitcnt vmcnt(0)'); spin(0, flag_ld)
        for n_, (i, tt) in enumerate(order):
            lg.wait(max(cur['A', i], cur['B', tt - i]))
            first = r_ == 0 and tt not in seen; seen.add(tt)
            k(f'v_mfma_f32_16x16x32_bf16 {acc.sub(4 * tt, 4)}, {A_.sub(4 * i, 4)}, {B_.sub(4 * (tt - i), 4)}, {"0" if first else acc.sub(4 * tt, 4)}')
            free = 2
            if rd: key, x_ = rd.pop(0); nxt[key] = lg.op(x_); free = 1
            if r_ == 3 and rd: free = 0
            for _ in range(free):
                if fq:
                    x_ = fq.pop(0)
                    x_() if callable(x_) else lg.op(x_) if x_.startswith('ds_') else k(x_)
            for x_ in farm.get((r_, n_), []): k(x_)
            if r_ == 7:
                if i == min(tt, 3) and tt: yq += y_out(tt - 1)
                for _ in range(2):
                    if yq: x_ = yq.pop(0); lg.op(x_) if x_.startswith('ds_') else k(x_)
            if r_ >= 4 and n_ % 6 == 4 and early:
                for x_ in early.pop(0): k(x_)
        for x_ in fq: x_() if callable(x_) else lg.op(x_) if x_.startswith('ds_') else k(x_)
        cur = nxt
    assert not early
    SP(7)
    for x_ in yq + y_out(7): k(x_)
    k('s_waitcnt lgkmcnt(0)\ns_barrier')
    lg.reset()
    yp = fb.sub(0, 16); yf = acc; o = fa
    ids = [[lg.op(f'ds_read_b32 {yp[4 * i + c]}, {a4} offset:{WSTR * c + 1024 * i}') for c in range(4)] for i in range(4)]
    k(f's_lshl_b32 {st}, {cidx}, 14\ns_add_u32 {st}, {st}, {O_X2}')
    for i in range(4):
        lg.wait(ids[i][3])
        for c in range(4): k(f'v_lshlrev_b32 {yf[8 * i + c]}, 16, {yp[4 * i + c]}\nv_and_b32 {yf[8 * i + 4 + c]}, 0xffff0000, {yp[4 * i + c]}')
        for j in range(4 * i, 4 * i + 4): k(f'v_pk_fma_f32 {yf.sub(2 * j, 2)}, {hf.sub(2 * j, 2)}, {dv.sub(2 * (j & 1), 2)}, {yf.sub(2 * j, 2)}')
        for j in range(4 * i, 4 * i + 4): k(f'v_pk_fma_f32 {yf.sub(2 * j, 2)}, {yf.sub(2 * j, 2)}, {md_.sub(8 + 2 * (j & 1), 2)}, {xf.sub(2 * j, 2)}')
        for j in range(4): k(f'v_cvt_pk_bf16_f32 {o[4 * i + j]}, {yf[8 * i + 2 * j]}, {yf[8 * i + 2 * j + 1]}')
        k(f'buffer_store_dwordx4 {o.sub(4 * i, 4)}, {ag}, {Rws}, {st} offen sc1')
        if i < 3: k(f's_add_u32 {st}, {st}, 4096')
```

```python
from common import *

K2_LDS = LDS_BYTES
T_B, T_G, T_F = TABS, TABS + 3456, TABS + 6144
XBUF, HBUF = 0, 73728
X1C, PSTL = 147456, 147456 + 9216
SPIN_MAX = 40000
GC1 = -2.0 * LOG2E * 0.7978845608028654
GC2 = GC1 * 0.044715
PI = [0, 1, 2, 5, 6, 7, 9, 10, 11, 14, 15, 16, 3, 12, 4, 8, 13, 17]
MF = 'v_mfma_f32_16x16x32_bf16'

def un(d, s_, hi): return f'v_and_b32 {d}, 0xffff0000, {s_}' if hi else f'v_lshlrev_b32 {d}, 16, {s_}'

def gelu_consts(k, sig, c):
    k(f'v_mov_b32 {c[2]}, {sig}\nv_rcp_f32 {c[0]}, {sig}')
    k(f'v_mul_f32 {c[1]}, {c[0]}, {c[0]}\nv_mul_f32 {c[1]}, {c[1]}, {c[0]}')
    k(f'v_mul_f32 {c[0]}, {fl(GC1)}, {c[0]}\nv_mul_f32 {c[1]}, {fl(GC2)}, {c[1]}')

def phase2(k, P, lane, s_w, END, SP, opt=()):
    stamps = SP.on
    WFL = ' sc1'
    PFL = ' '.join(o[2:] for o in opt if o.startswith('p_')) or 'sc1'
    q = k.v(); m = k.v(); l16 = k.v(); one = k.v(); zero = k.v(); fv4 = k.v(8, 4)
    Rws = k.s(4); RG = k.s(4); RW = k.s(4)
    srd(k, RG, P['dbg'], 256)
    k('s_sub_u32 vcc_lo, s2, 103\ns_sub_u32 vcc_hi, s2, 7\ns_cmp_lt_u32 vcc_hi, 9\ns_cselect_b32 vcc_hi, 96, 0\ns_cmp_lt_u32 vcc_lo, 9\ns_cselect_b32 vcc_hi, -96, vcc_hi\ns_add_u32 s2, s2, vcc_hi')
    k(f'v_mov_b32 {one}, 1\nv_mov_b32 {zero}, 0')
    go_ld = f'buffer_load_dwordx4 {fv4[0:4]}, {zero}, {RG}, 0 offen offset:192 sc1'
    k(go_ld)
    k(f'v_lshrrev_b32 {q}, 4, {lane}\nv_and_b32 {m}, 15, {lane}\nv_lshlrev_b32 {l16}, 4, {lane}')
    rb = k.s(); jm = k.s(); mb = k.s(); fs = k.s(); st = k.s(); st1 = k.s(); sav = k.s(2); cnt = k.s(); mt = k.s()
    k(f's_and_b32 {st}, s2, 1\ns_lshl_b32 {mb}, {st}, 4\ns_bfe_u32 {st}, s2, 0x20001\ns_lshl_b32 {fs}, {st}, 1\ns_lshl_b32 {rb}, {st}, 2\ns_add_u32 {rb}, {rb}, {mb}')
    k(f's_bfe_u32 {st}, s2, 0x20003\ns_add_u32 {rb}, {rb}, {st}\ns_lshr_b32 {jm}, s2, 5\ns_sub_u32 {jm}, {jm}, 2')
    k(f's_bfe_u32 {st}, s2, 0x40003\ns_add_u32 {mb}, {mb}, {st}\ns_lshr_b32 {st}, s2, 7\ns_add_u32 {fs}, {fs}, {st}')
    if 'a4' in opt:
        k(f's_and_b32 {mb}, s2, 3\ns_lshl_b32 {mb}, {mb}, 3\ns_bfe_u32 {st}, s2, 0x30003\ns_add_u32 {mb}, {mb}, {st}')
        k(f's_bfe_u32 {fs}, s2, 0x10002\ns_lshl_b32 {fs}, {fs}, 2\ns_lshr_b32 {st}, s2, 6\ns_add_u32 {fs}, {fs}, {st}')
    if 'a1' in opt: k(f's_lshr_b32 {mb}, s2, 3\ns_and_b32 {fs}, s2, 7')
    if 'a8' in opt:
        k(f's_and_b32 {mb}, s2, 7\ns_lshl_b32 {mb}, {mb}, 2\ns_bfe_u32 {st}, s2, 0x20003\ns_add_u32 {mb}, {mb}, {st}\ns_lshr_b32 {fs}, s2, 5')
    k(f's_lshl_b32 {mt}, {rb}, 2\ns_add_u32 {mt}, {mt}, {s_w}\ns_mov_b32 {cnt}, 0')
    srd(k, Rws, P['ws'], WS_USED); srd(k, RW, P['ws'], WS_USED)
    vm, lg = trackers(k)
    def STAMP(i, g4=False):
        mode = 'g4st' if 'g4st' in opt else 'g3st' if 'g3st' in opt else False
        if stamps and (g4 == mode or (i not in (1, 2, 3, 4, 5) and not g4)): SP(i); lg.reset()
    def flag_add(s_idx, base):
        k(f's_lshl_b32 {st}, {s_idx}, 7\ns_add_u32 {st}, {st}, {base}\ns_mov_b64 exec, 1')
        vm.op(f'buffer_atomic_add {one}, {zero}, {Rws}, {st} offen sc1')
        k('s_mov_b64 exec, -1')
    def poll(vaddr, base, target, sleep=0, fv=None):
        own = fv is None; fv = fv or k.v(); lp, ok = k.label('poll'), k.label('ok')
        k(f's_mov_b32 {st1}, {base}\n{lp}:\nbuffer_load_dword {fv}, {vaddr}, {Rws}, {st1} offen sc1\ns_waitcnt vmcnt(0)')
        k(f'v_cmp_gt_u32 vcc, {target}, {fv}\ns_cmp_eq_u64 vcc, 0\ns_cbranch_scc1 {ok}')
        if sleep: k(f's_sleep {sleep}')
        k(f's_add_u32 {cnt}, {cnt}, 1\ns_cmp_lt_u32 {cnt}, {SPIN_MAX}\ns_cbranch_scc1 {lp}\ns_branch {END}\n{ok}:')
        vm.reset()
        if own: fv.release()
    W = [k.a(72, 4), k.a(72, 4)]; vo = [l16] + [k.v() for _ in range(4)]
    for g in range(1, 5): k(f'v_add_u32 {vo[g]}, {4096 * g}, {l16}')
    sn = k.s(); s4 = k.s()
    k(f's_lshl_b32 {sn}, {fs}, 2\ns_add_u32 {sn}, {sn}, {s_w}\ns_mul_i32 {sn}, {sn}, {9 * 18432}\ns_add_u32 {s4}, {sn}, {O_W4F}\ns_add_u32 {sn}, {sn}, {O_W3F}')
    wld = lambda r_, ks: f'buffer_load_dwordx4 {W[r_].sub(4 * ks, 4)}, {vo[ks // 4]}, {RW}, {sn} offen offset:{1024 * (ks % 4)}' + WFL
    sm = k.s(); so = k.s()
    k(f's_lshl_b32 {sm}, {s_w}, 10')
    def spin(ld, regs, sleep=16):
        lp, ok = k.label('spin'), k.label('up')
        k(f'{lp}:\ns_waitcnt vmcnt(0)')
        if len(regs) > 1: k(f'v_and_b32 {fv4[7]}, {regs[0]}, {regs[1]}')
        k(f'v_cmp_eq_u32 vcc, 0, {fv4[7] if len(regs) > 1 else regs[0]}\ns_cmp_eq_u64 vcc, 0\ns_cbranch_scc1 {ok}')
        k(f's_sleep {sleep}\n{ld}\ns_add_u32 {cnt}, {cnt}, 1\ns_cmp_lt_u32 {cnt}, {SPIN_MAX}\ns_cbranch_scc1 {lp}\ns_branch {END}\n{ok}:')
    RB = k.v(24, 4)
    keepV, keepA, keepS = list(k.V.free), list(k.A.free), list(k.S.free)
    XX = k.v(146, 2); t = k.v(8); row = k.v()
    pd1 = PairDma(k, s_w, jm, O_W1F, Rws, l16, W1_AT)
    k(f's_lshl_b32 {st}, {s_w}, 6\nv_add_u32 {t[2]}, {st}, {lane}')
    u_ = XX.sub(0, 4)
    def tab_src(d, u):
        k(f's_mul_i32 {st}, {jm}, 12\nv_cmp_le_u32 vcc, 72, {u}\nv_subrev_u32 {u_[0]}, 72, {u}\nv_cndmask_b32 {u_[0]}, {u}, {u_[0]}, vcc\nv_add_u32 {u_[0]}, {st}, {u_[0]}')
        k(f'v_mov_b32 {u_[2]}, {O_MODB + 1152}\nv_mov_b32 {u_[3]}, {O_MODB}\nv_cndmask_b32 {u_[2]}, {u_[2]}, {u_[3]}, vcc')
        k(f'v_cmp_le_u32 vcc, 72, {u_[0]}\nv_subrev_u32 {u_[1]}, 72, {u_[0]}\nv_cndmask_b32 {u_[0]}, {u_[0]}, {u_[1]}, vcc\nv_lshl_add_u32 {d}, {u_[0]}, 4, {u_[2]}')
        k(f's_mul_i32 {st}, {jm}, 24\ns_sub_u32 {st}, {st}, 144\nv_add_u32 {u_[0]}, {st}, {u}\nv_cmp_le_u32 vcc, 144, {u_[0]}\nv_subrev_u32 {u_[1]}, 144, {u_[0]}')
        k(f'v_cndmask_b32 {u_[0]}, {u_[0]}, {u_[1]}, vcc\nv_lshlrev_b32 {u_[0]}, 4, {u_[0]}\nv_add_u32 {u_[0]}, {O_MODF + 4 * 2304}, {u_[0]}')
        k(f'v_cmp_le_u32 vcc, 144, {u}\nv_cndmask_b32 {d}, {d}, {u_[0]}, vcc')
    tab_src(t[3], t[2])
    k(f'v_add_u32 {t[5]}, 256, {lane}')
    tab_src(t[4], t[5])
    k(f'v_mul_u32_u24 {t[5]}, 43691, {t[2]}\nv_lshrrev_b32 {t[5]}, 20, {t[5]}\nv_mul_u32_u24 {t[6]}, 120, {t[5]}')
    k(f'v_add_u32 {t[6]}, {t[6]}, {t[2]}\nv_lshlrev_b32 {t[6]}, 4, {t[6]}')
    pd = PairDma(k, s_w, jm, O_W2F, Rws, l16, W2_AT)
    k(f's_lshl_b32 {st}, {mt}, 4\nv_add_u32 {row}, {st}, {m}')
    k(f'v_lshlrev_b32 {t[0]}, 15, {q}\nv_lshl_add_u32 {t[0]}, {row}, 3, {t[0]}\nv_add_u32 {t[1]}, 0x4000, {t[0]}')
    ones = k.v(4, 4); sacc = k.v(4, 4); gacc = k.v(4, 4); tacc = k.v(4, 4); qacc = k.v(4, 4); acc = k.v(24, 4)
    for i in range(4): k(f'v_mov_b32 {ones[i]}, 0x3f803f80')
    msk = [k.s(2) for _ in range(3)]; bidx = k.v()
    k(f'v_and_b32 {t[2]}, 3, {m}')
    for e in range(3): k(f'v_cmp_eq_u32 {msk[e]}, {e + 1}, {t[2]}')
    aT = k.v(); aW = [l16, k.v(), k.v()]
    k(f'v_min_u32 {t[2]}, 2, {t[2]}\nv_mul_u32_u24 {aT}, 1152, {t[2]}\nv_lshl_add_u32 {aT}, {q}, 4, {aT}\nv_add_u32 {aT}, {T_B}, {aT}\nv_lshlrev_b32 {t[7]}, 5, {q}\nv_add_u32 {t[7]}, {T_G}, {t[7]}')
    k(f'v_lshrrev_b32 {t[2]}, 2, {m}\nv_lshl_add_u32 {t[2]}, {t[2]}, 4, {m}\nv_lshlrev_b32 {bidx}, 2, {t[2]}')
    k(f'v_add_u32 {aW[1]}, 0xf000, {l16}\nv_add_u32 {aW[2]}, 0x1e000, {l16}')
    k(f'v_lshlrev_b32 {t[2]}, 4, v0\nv_add_u32 {t[2]}, {T_B}, {t[2]}')
    spin(go_ld, [fv4[0]])
    k('s_waitcnt lgkmcnt(0)\ns_barrier')
    STAMP(15)
    NSH = 4
    na, nb = k.label('noarr'), k.label('notlast')
    k(f's_sub_u32 {st}, s2, 7\ns_cmp_lt_u32 {st}, 9\ns_cbranch_scc1 {na}')
    k(f's_cmp_lg_u32 {s_w}, 0\ns_cbranch_scc1 {na}\ns_lshr_b32 {st1}, s2, 3\ns_and_b32 {st1}, {st1}, {NSH - 1}\ns_lshl_b32 {st}, {st1}, 7\ns_add_u32 {st}, {st}, {O_FA}\ns_mov_b64 exec, 1')
    k(f'v_mov_b32 {fv4[4]}, 1\nbuffer_atomic_add {fv4[4]}, {zero}, {Rws}, {st} offen sc0 sc1\ns_cmp_eq_u32 {st1}, 0\ns_cselect_b32 {so}, 62, 63\ns_cmp_eq_u32 {st1}, 1\ns_cselect_b32 {so}, 55, {so}\ns_add_u32 {st1}, {st}, {O_FG - O_FA}\ns_waitcnt vmcnt(0)')
    k(f'v_readfirstlane_b32 {st}, {fv4[4]}\ns_cmp_lg_u32 {st}, {so}\ns_cbranch_scc1 {nb}')
    k(f'buffer_store_dword {one}, {zero}, {Rws}, {st1} offen sc1\n{nb}:\ns_mov_b64 exec, -1\n{na}:')
    go3_ld = f'buffer_load_dword {fv4[0]}, {fv4[5]}, {Rws}, 0 offen sc1'
    k(f'v_and_b32 {fv4[5]}, {NSH - 1}, {lane}\nv_lshlrev_b32 {fv4[5]}, 7, {fv4[5]}\nv_add_u32 {fv4[5]}, {O_FG}, {fv4[5]}')
    k('s_cmp_lt_u32 s2, 64\ns_cbranch_scc1 k2_idle')

    w0, w5, wj = k.label('havew1'), k.label('rest'), k.label('joined')
    spin(go_ld, [fv4[2], fv4[3]])
    k(f's_add_u32 m0, {sm}, {T_B + 1152}\nbuffer_load_dwordx4 {t[3]}, {Rws}, 0 offen sc1 lds')
    k(f's_mov_b32 m0, {T_B + 1152 + 4096}\ns_mov_b32 exec_hi, 0\nbuffer_load_dwordx4 {t[4]}, {Rws}, 0 offen sc1 lds\ns_mov_b64 exec, -1')
    k(f's_cmp_ge_u32 s2, 112\ns_cbranch_scc1 {w0}')
    for P_ in range(5):
        for g in pd1.ops(P_):
            for x_ in g: k(x_)
    k(f's_waitcnt vmcnt(0)\n{w0}:\ns_barrier\ns_cmp_eq_u32 {s_w}, 0\ns_cbranch_scc1 {w5}')
    k(f's_lshl_b32 {pd1.t}, {s_w}, 11\ns_sub_u32 {pd1.t}, {pd1.t}, 2048\ns_mul_i32 {pd1.src}, {jm}, 110592\ns_add_u32 {pd1.src}, {pd1.src}, {pd1.t}\ns_add_u32 {pd1.src}, {pd1.src}, {O_W1F + 61440}')
    for sl_i in range(10, 18):
        k(f's_add_u32 m0, {pd1.t}, {W1_AT[sl_i]}\nbuffer_load_dwordx4 {l16}, {Rws}, {pd1.src} offen sc1 lds')
        k(f'buffer_load_dwordx4 {l16}, {Rws}, {pd1.src} offen offset:1024 sc1 lds')
        if sl_i < 17: k(f's_add_u32 {pd1.src}, {pd1.src}, 6144')
    k(f'{w5}:')
    pd1.release()
    k(f'v_cmp_gt_u32 vcc, 72, v0\ns_and_saveexec_b64 {sav}, vcc\nds_write_b128 {t[2]}, {ones}\ns_mov_b64 exec, {sav}')
    w2ops = [g for P_ in range(9) for g in pd.ops(P_)]
    def w2dma():
        for x_ in w2ops.pop(0): vm.op(x_) if x_.startswith('buffer') else k(x_)
    ix = []
    def issue(i):
        vm.op(f'buffer_load_dwordx2 {XX.sub(4 * i, 2)}, {t[0]}, {Rws}, {st1} offen sc1')
        ix.append(vm.op(f'buffer_load_dwordx2 {XX.sub(4 * i + 2, 2)}, {t[1]}, {Rws}, {st1} offen sc1'))
        if i < 17: k(f's_add_u32 {st1}, {st1}, 131072')
        if i % 3 == 2 and i < 17: k(f's_cmp_eq_u32 {st1}, {O_X2 + 18 * 131072}\ns_cselect_b32 {st1}, {O_X2}, {st1}')
    lds_at = lambda a_: f'{aW[a_ // 0xf000]} offset:{a_ % 0xf000}'
    TF = W[1]; WR = [k.a(24, 4), k.a(24, 4)]
    def w_reads(i):
        return [f'ds_read_b128 {WR[i & 1].sub(4 * tt, 4)}, {lds_at(W1_AT[i] + 1024 * tt)}' for tt in range(6)]
    k(f's_cmp_lg_u32 {s_w}, 0\ns_cbranch_scc1 {wj}\n{go3_ld}')
    spin(go3_ld, [fv4[0]], 2)
    k(f'{wj}:\ns_mul_i32 {st1}, {jm}, {3 * 131072}\ns_add_u32 {st1}, {st1}, {O_X2}\ns_mul_i32 {so}, {jm}, 384\ns_add_u32 {so}, {so}, {O_MOD2}\ns_waitcnt vmcnt(16) lgkmcnt(0)\ns_barrier'); vm.reset(); lg.reset()
    STAMP(0)
    nis = 5
    for i in range(nis): issue(i)
    k(f's_mov_b32 {st}, {O_FU}')
    ifu = vm.op(f'buffer_load_dword {fv4[0]}, {zero}, {Rws}, {st} offen sc1')
    itf = [lg.op(f'ds_read_b128 {TF.sub(4 * i, 4)}, {aT} offset:{64 * i}') for i in range(18)]
    iwr = [lg.op(x_) for x_ in w_reads(0)]
    for i in range(18):
        lg.wait(itf[i]); k(f'{MF} {acc[4:8]}, {TF.sub(4 * i, 4)}, {TF.sub(4 * i, 4)}, {"0" if i == 0 else acc[4:8]}')
    cs = k.s(5, 1)
    for n_, (e, j_) in enumerate(((0, 1), (0, 2), (1, 1), (1, 2), (2, 2))): k(f'v_readlane_b32 {cs[n_]}, {acc[4 + e]}, {j_}')
    XG = [XX.sub(72, 4), XX.sub(76, 4)]; GT = [XX.sub(80, 8), XX.sub(88, 8)]; tv = XX.sub(96, 8)
    g_reads = lambda i: [f'ds_read_b128 {GT[i & 1].sub(4 * h, 4)}, {t[7]} offset:{128 * i + 16 * h}' for h in range(2)]
    def xg_ops(i):
        xs = XX.sub(4 * i, 4); g_ = GT[i & 1]
        return ([un(tv[e], xs[e >> 1], e & 1) for e in range(8)] + [f'v_mul_f32 {tv[e]}, {tv[e]}, {g_[e]}' for e in range(8)]
                + [f'v_cvt_pk_bf16_f32 {XG[i & 1][e]}, {tv[2 * e]}, {tv[2 * e + 1]}' for e in range(4)])
    ig0 = [lg.op(x_) for x_ in g_reads(0) + g_reads(1)]
    vm.wait(ix[0]); lg.wait(ig0[1])
    for x_ in xg_ops(0): k(x_)
    igt = ig0[3]; n2 = 0
    for i in range(18):
        if i == 9: vm.wait(itab)
        if i in (9, 13): k('s_barrier')
        if i == 1: STAMP(1)
        xg = XG[i & 1]; xr = XX.sub(4 * i, 4)
        c_ = lambda r_: '0' if i == 0 else r_
        M = [(0, f'{MF} {sacc}, {ones}, {xr}, {c_(sacc)}'), (0, f'{MF} {gacc}, {xr}, {xr}, {c_(gacc)}'),
             (0, f'{MF} {tacc}, {TF.sub(4 * i, 4)}, {xg}, {c_(tacc)}'), (0, f'{MF} {qacc}, {xg}, {xg}, {c_(qacc)}')]
        M += [(iwr[tt], f'{MF} {acc.sub(4 * tt, 4)}, {WR[i & 1].sub(4 * tt, 4)}, {xg}, {c_(acc.sub(4 * tt, 4))}') for tt in range(6)]
        Rd = w_reads(i + 1) if i < 17 else []
        V = xg_ops(i + 1) if i < 17 else []
        Gd = g_reads(i + 2) if i < 16 else []
        nxt = []
        for n_, (idr, mm) in enumerate(M):
            lg.wait(idr); k(mm)
            if Rd and n_ < 6: nxt.append(lg.op(Rd.pop(0)))
            if V and n_ == 0: vm.wait(ix[i + 1])
            if V and n_ == 4: lg.wait(igt)
            if Gd and n_ >= 8: ign = lg.op(Gd.pop(0))
            for _ in range(2):
                if V: k(V.pop(0))
        iwr = nxt
        if i < 16: igt = ign
        if i == 5:
            ok = k.label('uok'); lp = k.label('upoll')
            vm.wait(ifu)
            k(f'{lp}:\nv_cmp_gt_u32 vcc, 9, {fv4[0]}\ns_cmp_eq_u64 vcc, 0\ns_cbranch_scc1 {ok}\ns_mov_b32 {st}, {O_FU}\nbuffer_load_dword {fv4[0]}, {zero}, {Rws}, {st} offen sc1')
            k(f's_add_u32 {cnt}, {cnt}, 1\ns_cmp_lt_u32 {cnt}, {SPIN_MAX}\ns_waitcnt vmcnt(0)\ns_cbranch_scc1 {lp}\ns_branch {END}\n{ok}:')
            k(f's_add_u32 m0, {sm}, {T_F}')
            itab = vm.op(f'buffer_load_dwordx4 {t[6]}, {Rws}, {so} offen sc1 lds')
        if nis < 18:
            for _ in range(2 if nis < i + 9 else 1):
                if nis < 18: issue(nis); nis += 1
        else:
            for _ in range(3):
                if n2 < (18 if i < 13 else 27): w2dma(); n2 += 1
    assert n2 == 27
    STAMP(2)
    k.inject([lambda ks=ks: vm.op(wld(0, ks)) for ks in PI], 9)
    TB = [XX.sub(24, 16), XX.sub(40, 16)]; uu = XX.sub(56, 48)
    k(f'v_lshlrev_b32 {aT}, 5, {q}\nv_add_u32 {aT}, {T_F}, {aT}')
    tf_read = lambda dst, r_, e: f'ds_read_b128 {dst}, {aT} offset:{384 * r_ + 128 * (e >> 1) + 16 * (e & 1)}'
    def diag(d, g_):
        k(f'v_cndmask_b32 {d}, {g_[0]}, {g_[1]}, {msk[0]}\nv_cndmask_b32 {d}, {d}, {g_[2]}, {msk[1]}\nv_cndmask_b32 {d}, {d}, {g_[3]}, {msk[2]}')
        return lg.op(f'ds_bpermute_b32 {d}, {bidx}, {d}')
    i2 = diag(t[2], qacc); i1 = diag(t[1], gacc)
    iu = [lg.op(tf_read(uu.sub(24 * r_ + 4 * e, 4), 3 + r_, e)) for e in range(6) for r_ in range(2)]
    s1 = XX.sub(140, 2); gc = XX.sub(136, 4)
    k(f'v_mov_b32 {t[0]}, {sacc[0]}'); lg.wait(i1)
    sigma_bf16(k, t[0], t[1])
    k(f'v_cvt_pk_bf16_f32 {t[0]}, {t[0]}, {t[1]}\nv_and_b32 {s1[0]}, 0xffff0000, {t[0]}\nv_lshlrev_b32 {s1[1]}, 16, {t[0]}')
    k(f'v_rcp_f32 {s1[0]}, {s1[0]}\nv_mov_b32 {t[3]}, {cs[1]}\nv_mov_b32 {t[4]}, {cs[3]}\nv_mul_f32 {s1[1]}, -{s1[1]}, {s1[0]}')
    k(f'v_fma_f32 {t[3]}, {s1[1]}, {cs[0]}, {t[3]}\nv_fma_f32 {t[0]}, {s1[0]}, {tacc[0]}, {t[3]}')
    k(f'v_fma_f32 {t[3]}, {s1[1]}, {tacc[1]}, {tacc[2]}\nv_add_f32 {t[3]}, {t[3]}, {t[3]}\nv_fma_f32 {t[3]}, {s1[0]}, {t[2]}, {t[3]}')
    k(f'v_add_f32 {t[4]}, {t[4]}, {t[4]}\nv_fma_f32 {t[4]}, {s1[1]}, {cs[2]}, {t[4]}\nv_mov_b32 {t[5]}, {cs[4]}\nv_fma_f32 {t[4]}, {s1[1]}, {t[4]}, {t[5]}')
    k(f'v_fma_f32 {t[1]}, {s1[0]}, {t[3]}, {t[4]}')
    sigma_bf16(k, t[0], t[1])
    k(f'v_cvt_pk_bf16_f32 {t[1]}, {t[1]}, {t[1]}\nv_and_b32 {t[1]}, 0xffff0000, {t[1]}')
    gelu_consts(k, t[1], gc)
    k(f's_mul_i32 {st}, {jm}, {3 * GPL}\ns_lshl_b32 {so}, {mt}, 10\ns_add_u32 {st}, {st}, {so}\ns_add_u32 {st}, {st}, {O_G + 1024}')
    lg.all()
    for e in range(12): k(f'v_pk_fma_f32 {uu.sub(2 * e, 2)}, {uu.sub(2 * e, 2)}, {s1}, {uu.sub(24 + 2 * e, 2)} op_sel:[0,1,0] op_sel_hi:[1,1,1]')
    for e in range(12): k(f'v_pk_fma_f32 {acc.sub(2 * e, 2)}, {acc.sub(2 * e, 2)}, {s1}, {uu.sub(2 * e, 2)} op_sel_hi:[1,0,1]')
    tt_ = TB[0]; go = TB[1]
    for Pp in range(3):
        a = acc.sub(8 * Pp, 8); u = tt_.sub(0, 8)
        for e in range(4): k(f'v_pk_mul_f32 {u.sub(2 * e, 2)}, {a.sub(2 * e, 2)}, {a.sub(2 * e, 2)}')
        for e in range(4): k(f'v_pk_fma_f32 {u.sub(2 * e, 2)}, {u.sub(2 * e, 2)}, {gc[0:2]}, {gc[0:2]} op_sel:[0,1,0] op_sel_hi:[1,1,0]')
        for e in range(4): k(f'v_pk_mul_f32 {u.sub(2 * e, 2)}, {u.sub(2 * e, 2)}, {a.sub(2 * e, 2)}')
        for e in range(8): k(f'v_exp_f32 {u[e]}, {u[e]}')
        for e in range(4): k(f'v_pk_fma_f32 {u.sub(2 * e, 2)}, {u.sub(2 * e, 2)}, {gc[2:4]}, {gc[2:4]} op_sel_hi:[1,0,0]')
        for e in range(8): k(f'v_rcp_f32 {u[e]}, {u[e]}')
        for e in range(4): k(f'v_pk_mul_f32 {u.sub(2 * e, 2)}, {u.sub(2 * e, 2)}, {a.sub(2 * e, 2)}')
        o = go.sub(4 * Pp, 4)
        for e in range(4): k(f'v_cvt_pk_bf16_f32 {o[e]}, {u[2 * e]}, {u[2 * e + 1]}')
        if Pp == 2: k.flush_inject()
        ig = vm.op(f'buffer_store_dwordx4 {o}, {l16}, {Rws}, {st} offen sc1')
        if Pp < 2: k(f's_add_u32 {st}, {st}, {GPL}')
    h2f = uu.sub(0, 24); x2f = XX.sub(104, 24); gbv = RB
    xsrc = lambda e: XX[e >> 1]
    ig_ = [lg.op(tf_read(gbv.sub(4 * e, 4), 1, e)) for e in range(6)]
    is_ = [lg.op(tf_read(uu.sub(24 + 4 * e, 4), 0, e)) for e in range(6)]
    for e in range(24): k(un(x2f[e], xsrc(e), e & 1))
    dl = [XX[128 + i] for i in range(6)]
    k(f'v_cmp_gt_u32 vcc, 2, {q}')
    for g, dlt in enumerate((-1, 1, -2, 2)):
        k(f'v_add_u32 {dl[4]}, {16 + dlt}, {row}\nv_lshrrev_b32 {dl[5]}, 4, {dl[4]}\nv_and_b32 {dl[4]}, 15, {dl[4]}\nv_lshlrev_b32 {dl[4]}, 4, {dl[4]}')
        k(f'v_lshl_add_u32 {dl[4]}, {dl[5]}, 10, {dl[4]}\nv_lshl_add_u32 {dl[g]}, {q}, 8, {dl[4]}')
    k(f'v_cndmask_b32 {dl[4]}, {dl[1]}, {dl[0]}, vcc\nv_cndmask_b32 {dl[5]}, {dl[3]}, {dl[2]}, vcc')
    pa = XX[134]
    k(f'v_min_u32 {pa}, 2, {lane}\nv_add_u32 {pa}, {mt}, {pa}\nv_add_u32 {pa}, -1, {pa}\nv_max_i32 {pa}, 0, {pa}\nv_min_u32 {pa}, 127, {pa}\nv_lshlrev_b32 {pa}, 7, {pa}')
    vm.wait(ig)
    flag_add(mt, O_FC)
    STAMP(3)
    k(f's_add_u32 {sn}, {sn}, 18432')
    for e in range(12): k(f'v_pk_fma_f32 {h2f.sub(2 * e, 2)}, {x2f.sub(2 * e, 2)}, {s1}, {s1} op_sel:[0,0,1] op_sel_hi:[1,0,1]')
    lg.all()
    for e in range(12): k(f'v_pk_fma_f32 {h2f.sub(2 * e, 2)}, {h2f.sub(2 * e, 2)}, {gbv.sub(2 * e, 2)}, {uu.sub(24 + 2 * e, 2)}')
    NPRE = 5
    k('s_barrier')
    WP = [WR[0], WR[1], k.a(24, 4), k.a(24, 4), XX.sub(0, 24)]
    w2_addr = lambda i, tt: lds_at(W2_AT[i] + 1024 * tt)
    for i in range(NPRE):
        for tt in range(6): lg.op(f'ds_read_b128 {WP[i].sub(4 * tt, 4)}, {w2_addr(i, tt)}')
    poll(pa, O_FC, 6)
    STAMP(4)
    GF = TF
    sel = lambda s: dl[4] if s == 4 else dl[5] if s == 13 else dl[(2 * s) // 9]
    ig = []
    for s in range(18):
        k(f's_mov_b32 {st}, {O_G + s * GPL}')
        ig.append(vm.op(f'buffer_load_dwordx4 {GF.sub(4 * s, 4)}, {sel(s)}, {Rws}, {st} offen sc1'))
    lg.all()
    ird = {}
    for s in range(18):
        vm.wait(ig[s])
        wr = WP[s % NPRE]
        for tt in range(6):
            if s >= NPRE: lg.wait(ird[s, tt])
            k(f'{MF} {acc.sub(4 * tt, 4)}, {wr.sub(4 * tt, 4)}, {GF.sub(4 * s, 4)}, {"0" if s == 0 else acc.sub(4 * tt, 4)}')
            if s + NPRE < 18: ird[s + NPRE, tt] = lg.op(f'ds_read_b128 {wr.sub(4 * tt, 4)}, {w2_addr(s + NPRE, tt)}')
        vm.op(wld(1, s))
    lg.all()
    STAMP(5)
    aS = dl[1]
    k(f'v_lshrrev_b32 {t[0]}, 1, {q}')
    k(f'v_lshlrev_b32 {aS}, 6, {t[0]}\nv_lshl_add_u32 {aS}, {m}, 2, {aS}')
    k(f's_mul_i32 {st}, {rb}, 18\ns_mul_i32 {so}, {jm}, 3\ns_add_u32 {st}, {st}, {so}\ns_lshl_b32 {st}, {st}, 2\ns_add_u32 {st}, {st}, {s_w}\ns_lshl_b32 {st}, {st}, 10\ns_add_u32 {st}, {st}, {O_X1F}')
    for e in range(12): k(f'v_pk_add_f32 {h2f.sub(2 * e, 2)}, {h2f.sub(2 * e, 2)}, {acc.sub(2 * e, 2)}')
    for Pp in range(3):
        o = go.sub(4 * Pp, 4)
        for e in range(4): k(f'v_cvt_pk_bf16_f32 {o[e]}, {h2f[8 * Pp + 2 * e]}, {h2f[8 * Pp + 2 * e + 1]}')
        vm.op(f'buffer_store_dwordx4 {o}, {l16}, {Rws}, {st} offen sc1')
        if Pp < 2: k(f's_add_u32 {st}, {st}, 4096')
    k(f'v_pk_add_f32 {t[0:2]}, {h2f[0:2]}, {h2f[2:4]}\nv_pk_mul_f32 {t[2:4]}, {h2f[0:2]}, {h2f[0:2]}\nv_pk_fma_f32 {t[2:4]}, {h2f[2:4]}, {h2f[2:4]}, {t[2:4]}')
    for e in range(2, 12): k(f'v_pk_add_f32 {t[0:2]}, {t[0:2]}, {h2f.sub(2 * e, 2)}\nv_pk_fma_f32 {t[2:4]}, {h2f.sub(2 * e, 2)}, {h2f.sub(2 * e, 2)}, {t[2:4]}')
    k(f'v_add_f32 {t[0]}, {t[0]}, {t[1]}\nv_add_f32 {t[2]}, {t[2]}, {t[3]}\nv_permlane32_swap_b32 {t[0]}, {t[2]}\nv_add_f32 {t[0]}, {t[0]}, {t[2]}')
    k(f'v_mov_b32 {t[1]}, {t[0]}\nv_permlane16_swap_b32 {t[0]}, {t[1]}\nv_add_f32 {t[0]}, {t[0]}, {t[1]}')
    k(f's_mul_i32 {st}, {mt}, 6\ns_add_u32 {st}, {st}, {jm}\ns_lshl_b32 {st}, {st}, 7\ns_add_u32 {st}, {st}, {O_PST}\ns_mov_b32 exec_lo, 0xffff\ns_mov_b32 exec_hi, 0xffff')
    vm.op(f'buffer_store_dword {t[0]}, {aS}, {Rws}, {st} offen sc1')
    k('s_mov_b64 exec, -1')
    vm.all()
    flag_add(mt, O_FD)
    STAMP(6)
    k('s_branch k2_phase_e')
    k('k2_idle:')
    k.V.free, k.A.free, k.S.free = list(keepV), list(keepA), list(keepS)
    vm, lg = trackers(k)
    cj = ColJob(k, vm, lg, lane, s_w)
    fr = k.v(72, 4); sl = k.s(); dst = k.s(); job = k.s(); R4 = k.s(4)
    srd(k, R4, P['w4'], D * F * 2)
    fr2 = k.v(12, 4); part = k.s(); np_, dn = k.label('nopart'), k.label('w4done')
    k(f's_mul_hi_u32 {sl}, s2, {(1 << 32) // 9 + 1}\ns_mul_i32 {dst}, {sl}, 9\ns_sub_u32 {dst}, s2, {dst}\ns_lshl_b32 {dst}, {dst}, 7')
    k(f's_mul_i32 {st}, {sl}, {576 * 1152}\ns_add_u32 {dst}, {dst}, {st}\ns_mov_b32 {st}, 1152')
    cj.dma(R4, dst, st, 0, True)
    k(f's_mul_hi_u32 {job}, s2, {(1 << 32) // 6 + 1}\ns_mul_i32 {part}, {job}, 6\ns_sub_u32 {part}, s2, {part}\ns_cmp_ge_u32 s2, 48\ns_cbranch_scc1 {np_}')
    k(f's_mul_i32 {dst}, {part}, {96 * 1152}\ns_lshl_b32 {st}, {job}, 7\ns_add_u32 {dst}, {dst}, {st}\ns_add_u32 {dst}, {dst}, {7 * 576 * 1152 + 128}\ns_mov_b32 {st}, 1152')
    cj.dma(R4, dst, st, 73728, True, nks=3)
    k(f'{np_}:')
    ad = cj.addr(0, w4order=True); ad2 = cj.addr(73728, w4order=True)
    k('s_waitcnt vmcnt(0)\ns_barrier'); vm.reset()
    ids = cj.reads(ad, fr); ids2 = cj.reads(ad2, fr2, 3)
    k(f's_lshl_b32 {dst}, s2, 2\ns_add_u32 {dst}, {dst}, {s_w}\ns_mul_i32 {dst}, {dst}, 18432\ns_add_u32 {dst}, {dst}, {O_W4F}')
    cj.store(fr, ids, Rws, dst, 1024)
    k(f's_lshl_b32 {dst}, {job}, 2\ns_add_u32 {dst}, {dst}, {s_w}\ns_mul_i32 {dst}, {dst}, 18432\ns_mul_i32 {st}, {part}, 3072\ns_add_u32 {dst}, {dst}, {st}')
    k(f's_add_u32 {dst}, {dst}, {O_W4F + 256 * 18432}\ns_cmp_ge_u32 s2, 48\ns_cselect_b32 {dst}, {WS_USED}, {dst}')
    cj.store(fr2, ids2, Rws, dst, 1024, nks=3)
    vm.all()
    flag_add(sl, O_FW)
    k(f's_cmp_ge_u32 s2, 48\ns_cbranch_scc1 {dn}\ns_mov_b32 {sl}, 7')
    flag_add(sl, O_FW)
    k(f'{dn}:\n{go3_ld}')
    spin(go3_ld, [fv4[0]]); vm.reset()
    for r_ in range(2):
        for ks in PI: vm.op(wld(r_, ks))
        if r_ == 0: k(f's_add_u32 {sn}, {sn}, 18432')
    STAMP(14)
    k('k2_phase_e:')
    k.V.free, k.A.free, k.S.free = keepV, keepA, keepS
    vm, lg = trackers(k)
    vm.n = 1
    XA = k.a(112, 4); XV = k.v(176, 4)
    xf = lambda ks, t_: XA.sub(16 * ks + 4 * t_, 4) if 16 * ks + 4 * t_ < 112 else XV.sub(16 * ks + 4 * t_ - 112, 4)
    fv4.release()
    k(f's_add_u32 {sn}, {sn}, 18432')
    acc = [k.v(16, 4), k.v(16, 4)]
    t = acc[1].sub(0, 12); pa = k.v()
    k(f's_lshl_b32 {st}, {mb}, 2\nv_add_u32 {pa}, {st}, {lane}\ns_add_u32 {st}, {fs}, {(O_FW - O_FD) // 128}\nv_mov_b32 {t[0]}, {st}\nv_cmp_gt_u32 vcc, 4, {lane}')
    k(f'v_cndmask_b32 {pa}, {t[0]}, {pa}, vcc\nv_lshlrev_b32 {pa}, 7, {pa}\ns_cmp_eq_u32 {fs}, 7\ns_cselect_b32 {st}, 196, 36\nv_mov_b32 {t[0]}, {st}\nv_cndmask_b32 {t[0]}, {t[0]}, 6, vcc')
    k(f's_lshl_b32 {sm}, {s_w}, 10\ns_mul_i32 {so}, {mb}, 73728\ns_add_u32 {so}, {so}, {sm}\ns_add_u32 {so}, {so}, {O_X1F}')
    sk_ = k.label('nopoll')
    k(f's_cmp_lg_u32 {s_w}, 0\ns_cbranch_scc1 {sk_}')
    poll(pa, O_FD, t[0], sleep=1, fv=t[1])
    k(f'{sk_}:\ns_waitcnt vmcnt(0)\ns_barrier')
    STAMP(7)
    ixd = []; idv = {}
    def xdma(ks):
        k(f's_add_u32 m0, {sm}, {XBUF + 4096 * ks}\ns_add_u32 {st}, {so}, {4096 * ks}')
        ixd.append(vm.op(f'buffer_load_dwordx4 {l16}, {Rws}, {st} offen sc1 lds'))
    NX0 = 18 if 'xall' in opt else 10 if 'x10' in opt else 7
    for ks in PI[:NX0]: xdma(ks)
    k(f's_mul_i32 {st}, {mb}, 3072\ns_add_u32 {st}, {st}, {sm}\ns_add_u32 {st}, {st}, {O_PST}\ns_add_u32 m0, {sm}, {PSTL}')
    ipst = vm.op(f'buffer_load_dwordx4 {l16}, {Rws}, {st} offen sc1 lds')
    k(f'v_mul_u32_u24 {pa}, 768, {q}\nv_lshl_add_u32 {pa}, {m}, 2, {pa}\nv_add_u32 {pa}, {PSTL}, {pa}')
    aX = [l16, k.v()]; aHr = [k.v(), k.v()]; aH = [k.v(), k.v()]
    k(f'v_add_u32 {aX[1]}, 0x9000, {l16}\nv_add_u32 {aHr[0]}, {HBUF}, {l16}\nv_add_u32 {aHr[1]}, {HBUF + 0x9000}, {l16}')
    for h in range(2):
        k(f's_mul_i32 {st}, {s_w}, 9\ns_add_u32 {st}, {st}, {h}\ns_and_b32 {st1}, {st}, 1\ns_lshl_b32 {st1}, {st1}, 3\ns_lshr_b32 {st}, {st}, 1\ns_lshl_b32 {st}, {st}, 12')
        k(f's_add_u32 {st}, {st}, {st1}\nv_add_u32 {aH[h]}, {st}, {aHr[0]}')
    GC = [RB.sub(8 + 3 * i, 3) for i in range(4)]
    gt = RB.sub(0, 8); hp = [RB.sub(20, 2), RB.sub(22, 2)]
    def gelu_ops(a, ah):
        out = []
        for t_ in range(4):
            c = GC[t_]; x = [a[4 * t_ + e] for e in range(4)]; u = [gt[4 * (t_ & 1) + e] for e in range(4)]; o = hp[t_ & 1]
            out += [f'v_mul_f32 {u[e]}, {x[e]}, {x[e]}' for e in range(4)]
            out += [f'v_fma_f32 {u[e]}, {u[e]}, {c[1]}, {c[0]}' for e in range(4)]
            out += [f'v_mul_f32 {u[e]}, {u[e]}, {x[e]}' for e in range(4)]
            out += [f'v_exp_f32 {u[e]}, {u[e]}' for e in range(4)]
            out += [f'v_fma_f32 {u[e]}, {u[e]}, {c[2]}, {c[2]}' for e in range(4)]
            out += [f'v_rcp_f32 {u[e]}, {u[e]}' for e in range(4)]
            out += [f'v_mul_f32 {u[e]}, {u[e]}, {x[e]}' for e in range(4)]
            out += [f'v_cvt_pk_bf16_f32 {o[0]}, {u[0]}, {u[1]}', f'v_cvt_pk_bf16_f32 {o[1]}, {u[2]}, {u[3]}']
            out.append(f'ds_write_b64 {ah}, {o} offset:{1024 * t_}')
        return out
    def cost(x_):
        if isinstance(x_, tuple): return x_[0]
        return 2 if x_.startswith(('v_exp', 'v_rcp', 'ds_write')) else 1
    def emit(x_):
        if isinstance(x_, tuple): x_[1]()
        elif x_.startswith('ds_'): lg.op(x_)
        elif x_.startswith('buffer_'): vm.op(x_)
        else: k(x_)
    wid = {}; nw = {}; due = []
    from_lds = []; lid = {}
    def refill(r_):
        ks = due.pop()
        if from_lds: lid[r_, ks] = lg.op(f'ds_read_b128 {W[r_].sub(4 * ks, 4)}, {from_lds[0]} offset:{1024 * ks}'); nw[r_, ks] = 0
        else: nw[r_, ks] = vm.op(wld(r_, ks))
    def tile(a, r_, fill, steps=range(18), lead=2, pre=None, post=None, per_step=0, rate=None, load=True, at=None):
        steps = list(steps); nm = 4 * len(steps); n_ = 0; fill = list(fill); at = at or {}
        total = len(steps) * (1.5 + per_step) + sum(cost(x_) for x_ in fill)
        rate = rate or total / nm
        cum = 0
        for i in steps:
            ks = PI[i]
            if i in at: fill += at[i]; cum = max(cum, rate * n_ - 1)
            if pre: pre(i)
            if i % 2 == 0:
                n0 = len(k.l); vm.wait(max(wid.get((r_, PI[j]), 0) for j in (i, i + 1))); cum += len(k.l) - n0
            for t_ in range(4):
                k(f'{MF} {a.sub(4 * t_, 4)}, {W[r_].sub(4 * ks, 4)}, {xf(ks, t_)}, {"0" if i == 0 else a.sub(4 * t_, 4)}')
                n_ += 1
                nxt = 0
                if t_ == 0 and due: refill(r_); cum += 1
                if t_ == 3:
                    if load: due.append(ks)
                    if post: post(i)
                    cum += per_step
                    nxt = i % 2
                while n_ >= lead and fill and cum + nxt + cost(fill[0]) / 2 <= rate * n_: cum += cost(fill[0]); emit(fill.pop(0))
        for x_ in fill: emit(x_)
        if steps[-1] == 17 and due: refill(r_)
        if steps[-1] == 17: wid.update(nw); nw.clear()
    def frag_reads(base, i):
        ks = PI[i]
        return [lg.op(f'ds_read_b128 {xf(ks, t_)}, {base[ks // 9]} offset:{(ks % 9) * 4096 + 1024 * t_}') for t_ in range(4)]
    nxt_tile = lambda: k(f's_add_u32 {sn}, {sn}, 18432')
    rd = {}
    AH = 3 if 'ah3' in opt else 2
    XB = {0: 5, 3: 11, 9: 17} if 'xb3' in opt else {0: 3, 1: 6, 4: 11, 9: 17} if AH == 3 else {0: 2, 1: 6, 5: 11, 10: 17}
    def pre0(i):
        if i in XB: vm.wait(max(ixd[XB[i]], ipst if XB[i] == 17 else 0)); k('s_barrier')
        if i == 0:
            for j in range(AH): rd[j] = frag_reads(aX, j)
        if i + AH < 18: rd[i + AH] = frag_reads(aX, i + AH)
        lg.wait(rd[i][3])
    todo = [(0, lambda ks=ks: xdma(ks)) for ks in PI[NX0:]]
    todo += [(max(i, 9) if 'wlate' in opt else i, lambda ks=PI[i]: wid.__setitem__((0, ks, 'n'), vm.op(wld(0, ks)))) for i in range(18)]
    def post0(i):
        for _ in range(18 if i == 17 else 4 if i < 3 else 3):
            if todo and todo[0][0] <= i: todo.pop(0)[1]()
        if i == 10:
            for j in range(6): idv['p'] = lg.op(f'ds_read2_b32 {t.sub(2 * j, 2)}, {pa} offset0:{32 * j} offset1:{32 * j + 16}')
    class Rec:
        def __init__(self): self.l = []
        def __call__(self, x_): self.l += x_.split('\n')
    rec = Rec()
    for e in (0, 4, 8): rec(f'v_add_f32 {t[e]}, {t[e]}, {t[e + 2]}\nv_add_f32 {t[e + 1]}, {t[e + 1]}, {t[e + 3]}')
    for e in (4, 8): rec(f'v_add_f32 {t[0]}, {t[0]}, {t[e]}\nv_add_f32 {t[1]}, {t[1]}, {t[e + 1]}')
    sigma_bf16(rec, t[0], t[1])
    rec(f'v_cvt_pk_bf16_f32 {t[1]}, {t[1]}, {t[1]}\nv_and_b32 {t[1]}, 0xffff0000, {t[1]}\nv_lshlrev_b32 {t[2]}, 2, {m}')
    c1 = [(1, lambda: lg.wait(idv['p']))] + rec.l
    c1 += [(1, lambda i=i: idv.__setitem__('b', lg.op(f'ds_bpermute_b32 {t[4 + i]}, {t[2]}, {t[1]} offset:{64 * i}'))) for i in range(4)]
    rec = Rec()
    for i in range(4): gelu_consts(rec, t[4 + i], GC[i])
    c2 = [(1, lambda: lg.wait(idv['b']))] + [rec.l[6 * i + j] for j in range(6) for i in range(4)]
    tile(acc[0], 0, [], pre=pre0, post=post0, load=False, rate=2.0, at={12: c1, 16: c2})
    assert not todo
    for ks in range(18): wid[0, ks] = wid.pop((0, ks, 'n'))
    nxt_tile()
    STAMP(8)
    fa_ = k.v(); xc = k.v(3, 1)
    sS = k.s(); sM = k.s()
    k(f's_add_u32 {sS}, {s4}, {4 * 18432}\ns_mul_i32 {sM}, {s_w}, 18432')
    def check(idl, val, tgt, vaddr, base):
        ok = k.label('up'); d0 = None
        vm.wait(idl)
        k(f'v_cmp_gt_u32 vcc, {tgt}, {val}\ns_cmp_eq_u64 vcc, 0\ns_cbranch_scc1 {ok}')
        d0 = vm.done; poll(vaddr, base, tgt, fv=val); vm.done = d0
        k(f'{ok}:')
    STAGE = 'nostage' not in opt
    rd = {}
    for tt in range(1, 9):
        fill = gelu_ops(acc[1 - (tt & 1)], aH[1 - (tt & 1)]) + [f'v_add_u32 {aH[1 - (tt & 1)]}, 4096, {aH[1 - (tt & 1)]}']
        if 4 <= tt <= 7 and STAGE:
            if tt == 4: lg.all(); k('s_barrier')
            for n_, ks in enumerate(range((tt - 4) * 18 // 4, (tt - 3) * 18 // 4)):
                fill[10 + 26 * n_:10 + 26 * n_] = [f's_add_u32 m0, {sM}, {4096 * (ks // 4)}',
                    (1, lambda ks=ks: idv.__setitem__('stage', vm.op(f'buffer_load_dwordx4 {vo[ks // 4]}, {RW}, {sS} offen offset:{1024 * (ks % 4)} sc1 lds')))]
        if tt == 1:
            k(f's_lshr_b32 {so}, {fs}, 1\ns_mul_i32 {so}, {so}, 9\ns_and_b32 {st1}, {fs}, 1\ns_lshl_b32 {st1}, {st1}, 11\ns_lshr_b32 {sm}, {s_w}, 1\ns_lshl_b32 {sm}, {sm}, 8\ns_add_u32 {st1}, {st1}, {sm}')
            k(f's_and_b32 {sm}, {s_w}, 1\ns_lshl_b32 {sm}, {sm}, 3\ns_add_u32 {st1}, {st1}, {sm}\nv_lshrrev_b32 {xc[2]}, 1, {q}\nv_lshl_add_u32 {xc[0]}, {xc[2]}, 10, {st1}')
            k(f'v_lshl_add_u32 {xc[0]}, {m}, 4, {xc[0]}\nv_and_b32 {xc[2]}, 1, {q}\nv_lshl_add_u32 {xc[2]}, {xc[2]}, 2, {xc[0]}')
            for h in range(2):
                k(f's_add_u32 {st}, {so}, {h}\ns_and_b32 {sm}, {st}, 1\ns_lshl_b32 {sm}, {sm}, 9\ns_lshr_b32 {st}, {st}, 1\ns_lshl_b32 {st}, {st}, 12\ns_add_u32 {st}, {st}, {sm}\nv_add_u32 {xc[h]}, {st}, {xc[2]}')
            k(f's_mul_i32 {st}, {s_w}, 2304\ns_add_u32 {st}, {st}, {X1C}\nv_lshl_add_u32 {xc[2]}, {lane}, 2, {st}')
        if 1 <= tt <= 3:
            for t_ in range(3 * tt - 3, 3 * tt):
                def cp(t_=t_): idv['x'] = lg.op(f'ds_read_b32 {pa}, {xc[t_ & 1]} offset:{4096 * (t_ >> 1)}')
                def wr(t_=t_): lg.wait(idv['x']); lg.op(f'ds_write_b32 {xc[2]}, {pa} offset:{256 * t_}')
                n_ = 20 + 33 * (t_ % 3)
                fill[n_:n_] = [(1, cp)]; fill[n_ + 20:n_ + 20] = [(2, wr)]
        if tt == 7: k(f's_mov_b32 {sn}, {s4}')
        if tt in (1, 4, 7, 8): STAMP({1: 1, 4: 2, 7: 3, 8: 4}[tt], 'g3st')
        if tt < 8: tile(acc[tt & 1], tt & 1, fill)
        else:
            lg.all(); k('s_barrier')
            def post8(i):
                if i < 12: rd[i] = frag_reads(aHr, i)
            tile(acc[0], 0, fill, post=post8, per_step=2.7)
        nxt_tile()
    STAMP(9)
    k('s_waitcnt lgkmcnt(0)\ns_barrier'); lg.reset()
    for j in (12, 13): rd[j] = frag_reads(aHr, j)
    tile(acc[1], 1, gelu_ops(acc[0], aH[0]), steps=range(10), lead=1)
    lg.all(); k('s_barrier')
    for j in range(14, 18): rd[j] = frag_reads(aHr, j)
    tile(acc[1], 1, [], steps=range(10, 18), pre=lambda i: lg.wait(rd[i][3]) if i >= 14 else None)
    Rout = k.s(4)
    sp = k.s(); sq = k.s(); sf = k.s(); T0 = k.s(); sl_ = k.s(); po = [gt.sub(0, 4), gt.sub(4, 4)]
    aP, aR, aO = GC[0][0], GC[0][1], GC[0][2]; aL, aLr, aLg = GC[1][0], GC[1][1], GC[1][2]; aOw, aOr = GC[2][0], GC[2][1]; fv = pa; fpa = fa_
    u0, u1, u2 = hp[0][0], hp[0][1], hp[1][0]
    X2L, GBL, OUTB = HBUF, HBUF + 9216, HBUF + 13312
    sx_ = k.s(); mk = [k.s(2), k.s(2)]; own = [k.s(), k.s()]; sp1 = k.s(); OWN = 'noown' not in opt
    setup = f"""s_mov_b32 {Rout[0]}, {P['out'][0]}
s_mov_b32 {Rout[1]}, {P['out'][1]}
s_mov_b32 {Rout[2]}, {L * D * 2}
s_mov_b32 {Rout[3]}, 0x20000
s_lshl_b32 {st}, {fs}, 13
s_mul_i32 {sq}, {mb}, {9 * 65536}
s_add_u32 {sq}, {sq}, {st}
s_add_u32 {sq}, {sq}, {O_PART}
s_mul_i32 {sf}, {mb}, 36
s_lshr_b32 {T0}, {fs}, 1
s_add_u32 {st}, {sf}, {T0}
s_lshl_b32 {st}, {st}, 7
v_mov_b32 {fpa}, {st}
s_add_u32 {sf}, {sf}, {s_w}
s_lshl_b32 {sf}, {sf}, 7
s_add_u32 {sf}, {sf}, {O_FP}
s_mul_i32 {T0}, {T0}, 9
s_lshl_b32 {st}, {s_w}, 8
v_lshl_add_u32 {u0}, {m}, 4, {st}
v_lshl_add_u32 {aP}, {q}, 10, {u0}
v_and_b32 {u1}, 1, {q}
v_lshrrev_b32 {u2}, 1, {q}
v_lshl_add_u32 {u0}, {u2}, 4, {m}
v_lshlrev_b32 {aR}, 3, {u0}
v_lshl_add_u32 {aR}, {u1}, 2, {aR}
s_and_b32 {so}, {fs}, 1
s_lshl_b32 {st}, {mb}, 1
s_add_u32 {so}, {so}, {st}
s_lshl_b32 {so}, {so}, 8
s_lshl_b32 {st}, {s_w}, 14
s_add_u32 {so}, {so}, {st}
v_add_u32 {aR}, {so}, {aR}
s_mul_i32 {sx_}, {s_w}, 2304
s_add_u32 {sx_}, {sx_}, {X2L}
v_lshl_add_u32 {aLr}, {lane}, 2, {sx_}
s_mul_i32 {st}, {s_w}, 1040
s_add_u32 {st}, {st}, {GBL}
v_lshl_add_u32 {aLg}, {u1}, 3, {st}
v_mul_u32_u24 {aOw}, 304, {u0}
v_lshl_add_u32 {aOw}, {u1}, 2, {aOw}
s_lshl_b32 {st}, {s_w}, 3
s_add_u32 {st}, {st}, {OUTB}
v_add_u32 {aOw}, {st}, {aOw}
s_and_b32 {st}, {fs}, 3
s_lshl_b32 {so}, {st}, 4
s_lshl_b64 {mk[0]}, 0xffff, {so}
s_not_b64 {mk[0]}, {mk[0]}
s_cmp_ge_u32 {fs}, 4
s_cselect_b64 {mk[1]}, {mk[0]}, -1
s_cselect_b64 {mk[0]}, -1, {mk[0]}
s_lshl_b32 {st}, {fs}, 8
v_mul_u32_u24 {u0}, 18432, {q}
v_lshl_add_u32 {u0}, {m}, 4, {u0}
v_add_u32 {u0}, {st}, {u0}
v_add_u32 {u1}, {HBUF + 24576}, {l16}
s_lshl_b32 {st}, {s_w}, 1
s_cmp_eq_u32 {st}, {fs}
s_cselect_b64 vcc, -1, 0
s_cselect_b32 {own[0]}, 1, 0
v_cndmask_b32 {aH[0]}, {u1}, {u0}, vcc
s_add_u32 {st}, {st}, 1
s_cmp_eq_u32 {st}, {fs}
s_cselect_b64 vcc, -1, 0
s_cselect_b32 {own[1]}, 1, 0
v_cndmask_b32 {aH[1]}, {u1}, {u0}, vcc""".split('\n')
    k(f's_mul_i32 {sp}, {mb}, {9 * 65536}\ns_lshl_b32 {st}, {s_w}, 14\ns_add_u32 {sp}, {sp}, {st}\ns_lshl_b32 {st}, {fs}, 10\ns_add_u32 {sp}, {sp}, {st}\ns_add_u32 {sp}, {sp}, {O_PART}')
    k(f's_mov_b32 {sl_}, {sM}\nv_add_u32 {aL}, {sM}, {l16}')
    for x_ in (aHr[0], aHr[1], aX[1]): x_.release()
    k(f's_mov_b32 {sp1}, {sp}'); spp = [sp, sp1]
    ids = {}
    def S(t_, a, p):
        out = [f'v_cvt_pk_bf16_f32 {po[p][e]}, {a[8 * p + 2 * e]}, {a[8 * p + 2 * e + 1]}' for e in range(4)]
        if OWN and t_ == 2: out.append((2, lambda: k(f's_cmp_lg_u32 {own[p]}, 0\ns_cselect_b32 {spp[p]}, {WS_USED}, {spp[p]}')))
        out.append((1, lambda: ids.__setitem__(('S', t_), vm.op(f'buffer_store_dwordx4 {po[p]}, {vo[2 * p]}, {Rws}, {spp[p]} offen {PFL}'))))
        if OWN and t_ >= 2: out.append(f'ds_write_b128 {aH[p]}, {po[p]} offset:{2048 * t_}')
        return out + [f's_add_u32 {spp[p]}, {spp[p]}, 65536']
    def G(t_):
        def f():
            if t_ == 8: k(f's_add_u32 {sf}, {sf}, 4096')
            vm.wait(ids['S', t_])
            if OWN and t_ >= 2: lg.all()
            k('s_mov_b64 exec, 1')
            vm.op(f'buffer_atomic_add {one}, {zero}, {Rws}, {sf} offen offset:{512 * (t_ % 8)} sc1')
            k('s_mov_b64 exec, -1')
        return [(4, f)]
    def Lf(t_): return [f's_mov_b32 {st1}, {O_FP + 512 * t_}', (1, lambda: ids.__setitem__(('L', t_), vm.op(f'buffer_load_dword {fv}, {fpa}, {Rws}, {st1} offen sc1')))]
    def dma(lds, va, soff, mask):
        def f():
            if mask: k(f's_mov_b64 exec, {mask}')
            ids['d'] = vm.op(f'buffer_load_dwordx4 {va}, {Rws}, {soff} offen sc1 lds')
            if mask: k('s_mov_b64 exec, -1')
        return [f's_add_u32 m0, {sl_}, {lds}', (3 if mask else 1, f)]
    def C(t_):
        m_ = mk if OWN and t_ >= 2 else [None, None]
        return (dma(2048 * t_, aP, sq, m_[0]) + [f's_add_u32 {st}, {sq}, 4096'] + dma(2048 * t_ + 1024, aP, st, m_[1]) + [f's_add_u32 {sq}, {sq}, 65536']
                + [(0, lambda: ids.__setitem__(('C', t_), ids['d']))])
    def RS(t_): return [f's_add_u32 {st}, {T0}, {t_}', f's_lshl_b32 {st}, {st}, 16', f's_add_u32 {st}, {st}, {O_X2}', f's_add_u32 m0, {sx_}, {256 * t_}',
                        f'buffer_load_dword {aR}, {Rws}, {st} offen sc1 lds']
    def CK(t_): return [(4, lambda: check(ids['L', t_], fv, 8, fpa, O_FP + 512 * t_))]
    def R(t_, Dr, v):
        A_, B_, r_, g_ = Dr
        def rd_():
            vm.wait(ids['C', t_])
            lg.op(f'ds_read_b128 {A_}, {aL} offset:{2048 * t_}'); lg.op(f'ds_read_b128 {B_}, {aL} offset:{2048 * t_ + 1024}')
            lg.op(f'ds_read_b32 {r_[0]}, {aLr} offset:{256 * t_}'); lg.op(f'ds_read_b32 {r_[1]}, {xc[2]} offset:{256 * t_}'); ids['r', t_] = lg.op(f'ds_read_b64 {g_}, {aLg} offset:{64 * t_}')
        out = [(1, lambda: lg.wait(ids['r', t_]))]
        for d in range(4): out += [f'v_lshlrev_b32 {v[2 * d]}, 16, {A_[d]}', f'v_lshlrev_b32 {v[2 * d + 1]}, 16, {B_[d]}']
        for d in range(4): out += [f'v_and_b32 {A_[d]}, 0xffff0000, {A_[d]}', f'v_add_f32 {v[2 * d]}, {v[2 * d]}, {v[2 * d + 1]}', f'v_and_b32 {B_[d]}, 0xffff0000, {B_[d]}']
        out += [f'v_add_f32 {v[2 * d + 1]}, {A_[d]}, {B_[d]}' for d in range(4)]
        out += [f'v_permlane32_swap_b32 {v[e]}, {v[e + 4]}' for e in (0, 2, 1, 3)]
        out += [f'v_add_f32 {v[e]}, {v[e]}, {v[e + 4]}' for e in (0, 2, 1, 3)]
        out += [un(v[4 + e], r_[e >> 1], e & 1) for e in (2, 3)]
        out += [f'v_permlane16_swap_b32 {v[e]}, {v[e + 2]}' for e in range(2)]
        out += [un(v[4 + e], r_[e >> 1], e & 1) for e in (0, 1)]
        out += [f'v_add_f32 {v[e]}, {v[e]}, {v[e + 2]}' for e in range(2)]
        out += [f'v_add_f32 {v[e]}, {v[e]}, {v[e + 6]}' for e in range(2)]
        out += [f'v_fma_f32 {v[e]}, {v[e]}, {g_[e]}, {v[4 + e]}' for e in range(2)]
        out += [f'v_cvt_pk_bf16_f32 {v[4]}, {v[0]}, {v[1]}', f'ds_write_b32 {aOw}, {v[4]} offset:{32 * t_}']
        return [(6, rd_)], out
    SPOS = 9
    for tt in range(1, 9):
        nxt_tile()
        a_ = acc[tt & 1]
        at = {0: S(tt - 1, a_, 0), SPOS: S(tt - 1, a_, 1)}
        add = lambda i, ops: at.__setitem__(i, at.get(i, []) + ops)
        if tt == 1: add(2, setup)
        if tt == 2:
            k('s_barrier')
            add(2, [f's_lshl_b32 {st}, {T0}, 6', f's_add_u32 {st}, {st}, {O_MOD2 + 4608}', f's_lshl_b32 {so}, {s_w}, 10', f's_add_u32 m0, {so}, {GBL}',
                    f'buffer_load_dwordx4 {l16}, {Rws}, {st} offen sc1 lds'])
        if 2 <= tt <= 6: add(4, RS(2 * tt - 4) + (RS(2 * tt - 3) if tt < 6 else []))
        if tt >= 2: add(6, G(tt - 2))
        if 'newtail' not in opt:
            if tt >= 4: add(12, CK(tt - 4) + C(tt - 4))
            if tt >= 3: add(15, Lf(tt - 3))
        else:
            if 4 <= tt <= 7: add(12, CK(tt - 4) + C(tt - 4))
            if 3 <= tt <= 7: add(15, Lf(tt - 3))
            if tt == 8: add(1, CK(4) + C(4) + Lf(5)); add(11, CK(5) + C(5)); add(14, Lf(6)); add(17, G(7))
        if tt in (1, 4, 7, 8): STAMP({1: 1, 4: 2, 7: 3, 8: 4}[tt], 'g4st')
        if tt == 2 and STAGE: vm.wait(idv['stage']); from_lds.append(aL)
        if 'w8late' in opt and tt == 7:
            k(f's_sub_u32 {sn}, {sn}, 18432')
            for i_ in range(9): add(i_, [(1, lambda ks=ks: wid.__setitem__((1, ks), vm.op(wld(1, ks)))) for ks in PI[2 * i_:2 * i_ + 2]])
        tile(acc[1 - (tt & 1)], 1 - (tt & 1), [], rate=2.0, at=at, load=tt < (6 if 'w8late' in opt else 7))
        if tt == 2 and STAGE: from_lds.clear()
        if tt == 2: lg.all(); k('s_barrier')
    STAMP(10)
    XV.release()
    Dn = [[k.v(4, 2), k.v(4, 2), k.v(2), k.v(2)] for _ in range(9)]; v2 = k.v(8, 2)
    RR = [R(t_, Dn[t_], v2) for t_ in range(9)]
    if 'newtail' not in opt:
        seq = S(8, acc[1], 0) + S(8, acc[1], 1) + G(7) + CK(5) + C(5) + Lf(6)
        for t_ in range(3): seq += RR[t_][0]
        seq += RR[0][1] + G(8) + RR[1][1] + CK(6) + C(6) + Lf(7) + RR[3][0] + RR[4][0] + RR[2][1] + RR[3][1] + CK(7) + C(7) + Lf(8) + RR[5][0] + RR[4][1] + RR[5][1]
        last = C(8) + RR[6][0] + RR[7][0] + RR[6][1] + RR[7][1] + RR[8][0] + RR[8][1]
    else:
        seq = S(8, acc[1], 0) + S(8, acc[1], 1) + CK(6) + C(6) + Lf(7)
        for t_ in range(5): seq += RR[t_][0]
        seq += RR[0][1] + RR[1][1] + RR[2][1] + G(8) + CK(7) + C(7) + RR[3][1] + RR[4][1] + Lf(8) + RR[5][0] + RR[6][0] + RR[5][1] + RR[6][1]
        last = C(8) + RR[7][0] + RR[7][1] + RR[8][0] + RR[8][1]
    for x_ in seq: emit(x_)
    u = k.v(3)
    k(f'v_mul_u32_u24 {u[0]}, 3641, v0\nv_lshrrev_b32 {u[0]}, 16, {u[0]}\nv_mul_u32_u24 {u[1]}, 18, {u[0]}\nv_sub_u32 {u[1]}, v0, {u[1]}\nv_lshlrev_b32 {u[1]}, 4, {u[1]}')
    k(f'v_mul_u32_u24 {aOr}, 304, {u[0]}\nv_add_u32 {aOr}, {aOr}, {u[1]}\nv_add_u32 {aOr}, {OUTB}, {aOr}\nv_mul_u32_u24 {aO}, 1152, {u[0]}\nv_add_u32 {aO}, {aO}, {u[1]}')
    k(f's_lshl_b32 {st}, {mb}, 1\ns_and_b32 {so}, {fs}, 1\ns_add_u32 {so}, {so}, {st}\ns_mul_i32 {so}, {so}, {32 * 1152}\ns_lshl_b32 {st}, {T0}, 5\ns_add_u32 {so}, {so}, {st}')
    for x_ in CK(8): emit(x_)
    STAMP(11)
    for x_ in last: emit(x_)
    lg.all(); k('s_barrier')
    o4 = [Dn[0][0], Dn[0][1], Dn[1][0]]
    k(f'v_cmp_gt_u32 vcc, 252, v0\ns_and_b64 exec, exec, vcc')
    io = [lg.op(f'ds_read_b128 {o4[i]}, {aOr} offset:{14 * 304 * i}') for i in range(3)]
    for i in range(3):
        if i == 2: k(f's_cmp_ge_u32 {s_w}, 2\ns_cbranch_scc1 {END}\nv_cmp_gt_u32 vcc, 72, v0\ns_and_b64 exec, exec, vcc')
        lg.wait(io[i])
        k(f'buffer_store_dwordx4 {o4[i]}, {aO}, {Rout}, {so} offen' + (' sc1' if 'osc1' in opt else ' nt' if 'ont' in opt else ''))
        if i < 2: k(f's_add_u32 {so}, {so}, {14 * 1152}')
    STAMP(12)
```

```python
from common import *

K2_LDS = LDS_BYTES
T_B, T_G, T_F = TABS, TABS + 3456, TABS + 6144
XBUF, HBUF = 0, 73728
X1C, PSTL = 147456, 147456 + 9216
SPIN_MAX = 40000
GC1 = -2.0 * LOG2E * 0.7978845608028654
GC2 = GC1 * 0.044715
PI = [0, 1, 2, 5, 6, 7, 9, 10, 11, 14, 15, 16, 3, 12, 4, 8, 13, 17]
MF = 'v_mfma_f32_16x16x32_bf16'

def un(d, s_, hi): return f'v_and_b32 {d}, 0xffff0000, {s_}' if hi else f'v_lshlrev_b32 {d}, 16, {s_}'

def gelu_consts(k, sig, c):
    k(f'v_mov_b32 {c[2]}, {sig}\nv_rcp_f32 {c[0]}, {sig}')
    k(f'v_mul_f32 {c[1]}, {c[0]}, {c[0]}\nv_mul_f32 {c[1]}, {c[1]}, {c[0]}')
    k(f'v_mul_f32 {c[0]}, {fl(GC1)}, {c[0]}\nv_mul_f32 {c[1]}, {fl(GC2)}, {c[1]}')

def phase2(k, P, lane, s_w, END, SP, opt=()):
    stamps = SP.on
    WFL = ' sc1'
    PFL = ' '.join(o[2:] for o in opt if o.startswith('p_')) or 'sc1'
    q = k.v(); m = k.v(); l16 = k.v(); one = k.v(); zero = k.v(); fv4 = k.v(8, 4)
    Rws = k.s(4); RG = k.s(4); RW = k.s(4)
    srd(k, RG, P['dbg'], 256)
    k('s_sub_u32 vcc_lo, s2, 103\ns_sub_u32 vcc_hi, s2, 7\ns_cmp_lt_u32 vcc_hi, 9\ns_cselect_b32 vcc_hi, 96, 0\ns_cmp_lt_u32 vcc_lo, 9\ns_cselect_b32 vcc_hi, -96, vcc_hi\ns_add_u32 s2, s2, vcc_hi')
    k(f'v_mov_b32 {one}, 1\nv_mov_b32 {zero}, 0')
    go_ld = f'buffer_load_dwordx4 {fv4[0:4]}, {zero}, {RG}, 0 offen offset:192 sc1'
    k(go_ld)
    k(f'v_lshrrev_b32 {q}, 4, {lane}\nv_and_b32 {m}, 15, {lane}\nv_lshlrev_b32 {l16}, 4, {lane}')
    rb = k.s(); jm = k.s(); mb = k.s(); fs = k.s(); st = k.s(); st1 = k.s(); sav = k.s(2); cnt = k.s(); mt = k.s()
    k(f's_and_b32 {st}, s2, 1\ns_lshl_b32 {mb}, {st}, 4\ns_bfe_u32 {st}, s2, 0x20001\ns_lshl_b32 {fs}, {st}, 1\ns_lshl_b32 {rb}, {st}, 2\ns_add_u32 {rb}, {rb}, {mb}')
    k(f's_bfe_u32 {st}, s2, 0x20003\ns_add_u32 {rb}, {rb}, {st}\ns_lshr_b32 {jm}, s2, 5\ns_sub_u32 {jm}, {jm}, 2')
    k(f's_bfe_u32 {st}, s2, 0x40003\ns_add_u32 {mb}, {mb}, {st}\ns_lshr_b32 {st}, s2, 7\ns_add_u32 {fs}, {fs}, {st}')
    if 'a4' in opt:
        k(f's_and_b32 {mb}, s2, 3\ns_lshl_b32 {mb}, {mb}, 3\ns_bfe_u32 {st}, s2, 0x30003\ns_add_u32 {mb}, {mb}, {st}')
        k(f's_bfe_u32 {fs}, s2, 0x10002\ns_lshl_b32 {fs}, {fs}, 2\ns_lshr_b32 {st}, s2, 6\ns_add_u32 {fs}, {fs}, {st}')
    if 'a1' in opt: k(f's_lshr_b32 {mb}, s2, 3\ns_and_b32 {fs}, s2, 7')
    if 'a8' in opt:
        k(f's_and_b32 {mb}, s2, 7\ns_lshl_b32 {mb}, {mb}, 2\ns_bfe_u32 {st}, s2, 0x20003\ns_add_u32 {mb}, {mb}, {st}\ns_lshr_b32 {fs}, s2, 5')
    k(f's_lshl_b32 {mt}, {rb}, 2\ns_add_u32 {mt}, {mt}, {s_w}\ns_mov_b32 {cnt}, 0')
    srd(k, Rws, P['ws'], WS_USED); srd(k, RW, P['ws'], WS_USED)
    vm, lg = trackers(k)
    def STAMP(i, g4=False):
        mode = 'g4st' if 'g4st' in opt else 'g3st' if 'g3st' in opt else False
        if stamps and (g4 == mode or (i not in (1, 2, 3, 4, 5) and not g4)): SP(i); lg.reset()
    def flag_add(s_idx, base):
        k(f's_lshl_b32 {st}, {s_idx}, 7\ns_add_u32 {st}, {st}, {base}\ns_mov_b64 exec, 1')
        vm.op(f'buffer_atomic_add {one}, {zero}, {Rws}, {st} offen sc1')
        k('s_mov_b64 exec, -1')
    def poll(vaddr, base, target, sleep=0, fv=None):
        own = fv is None; fv = fv or k.v(); lp, ok = k.label('poll'), k.label('ok')
        k(f's_mov_b32 {st1}, {base}\n{lp}:\nbuffer_load_dword {fv}, {vaddr}, {Rws}, {st1} offen sc1\ns_waitcnt vmcnt(0)')
        k(f'v_cmp_gt_u32 vcc, {target}, {fv}\ns_cmp_eq_u64 vcc, 0\ns_cbranch_scc1 {ok}')
        if sleep: k(f's_sleep {sleep}')
        k(f's_add_u32 {cnt}, {cnt}, 1\ns_cmp_lt_u32 {cnt}, {SPIN_MAX}\ns_cbranch_scc1 {lp}\ns_branch {END}\n{ok}:')
        vm.reset()
        if own: fv.release()
    W = [k.a(72, 4), k.a(72, 4)]; vo = [l16] + [k.v() for _ in range(4)]
    for g in range(1, 5): k(f'v_add_u32 {vo[g]}, {4096 * g}, {l16}')
    sn = k.s(); s4 = k.s()
    k(f's_lshl_b32 {sn}, {fs}, 2\ns_add_u32 {sn}, {sn}, {s_w}\ns_mul_i32 {sn}, {sn}, {9 * 18432}\ns_add_u32 {s4}, {sn}, {O_W4F}\ns_add_u32 {sn}, {sn}, {O_W3F}')
    wld = lambda r_, ks: f'buffer_load_dwordx4 {W[r_].sub(4 * ks, 4)}, {vo[ks // 4]}, {RW}, {sn} offen offset:{1024 * (ks % 4)}' + WFL
    sm = k.s(); so = k.s()
    k(f's_lshl_b32 {sm}, {s_w}, 10')
    def spin(ld, regs, sleep=16):
        lp, ok = k.label('spin'), k.label('up')
        k(f'{lp}:\ns_waitcnt vmcnt(0)')
        if len(regs) > 1: k(f'v_and_b32 {fv4[7]}, {regs[0]}, {regs[1]}')
        k(f'v_cmp_eq_u32 vcc, 0, {fv4[7] if len(regs) > 1 else regs[0]}\ns_cmp_eq_u64 vcc, 0\ns_cbranch_scc1 {ok}')
        k(f's_sleep {sleep}\n{ld}\ns_add_u32 {cnt}, {cnt}, 1\ns_cmp_lt_u32 {cnt}, {SPIN_MAX}\ns_cbranch_scc1 {lp}\ns_branch {END}\n{ok}:')
    RB = k.v(24, 4)
    keepV, keepA, keepS = list(k.V.free), list(k.A.free), list(k.S.free)
    XX = k.v(146, 2); t = k.v(8); row = k.v()
    pd1 = PairDma(k, s_w, jm, O_W1F, Rws, l16, W1_AT)
    k(f's_lshl_b32 {st}, {s_w}, 6\nv_add_u32 {t[2]}, {st}, {lane}')
    u_ = XX.sub(0, 4)
    def tab_src(d, u):
        k(f's_mul_i32 {st}, {jm}, 12\nv_cmp_le_u32 vcc, 72, {u}\nv_subrev_u32 {u_[0]}, 72, {u}\nv_cndmask_b32 {u_[0]}, {u}, {u_[0]}, vcc\nv_add_u32 {u_[0]}, {st}, {u_[0]}')
        k(f'v_mov_b32 {u_[2]}, {O_MODB + 1152}\nv_mov_b32 {u_[3]}, {O_MODB}\nv_cndmask_b32 {u_[2]}, {u_[2]}, {u_[3]}, vcc')
        k(f'v_cmp_le_u32 vcc, 72, {u_[0]}\nv_subrev_u32 {u_[1]}, 72, {u_[0]}\nv_cndmask_b32 {u_[0]}, {u_[0]}, {u_[1]}, vcc\nv_lshl_add_u32 {d}, {u_[0]}, 4, {u_[2]}')
        k(f's_mul_i32 {st}, {jm}, 24\ns_sub_u32 {st}, {st}, 144\nv_add_u32 {u_[0]}, {st}, {u}\nv_cmp_le_u32 vcc, 144, {u_[0]}\nv_subrev_u32 {u_[1]}, 144, {u_[0]}')
        k(f'v_cndmask_b32 {u_[0]}, {u_[0]}, {u_[1]}, vcc\nv_lshlrev_b32 {u_[0]}, 4, {u_[0]}\nv_add_u32 {u_[0]}, {O_MODF + 4 * 2304}, {u_[0]}')
        k(f'v_cmp_le_u32 vcc, 144, {u}\nv_cndmask_b32 {d}, {d}, {u_[0]}, vcc')
    tab_src(t[3], t[2])
    k(f'v_add_u32 {t[5]}, 256, {lane}')
    tab_src(t[4], t[5])
    k(f'v_mul_u32_u24 {t[5]}, 43691, {t[2]}\nv_lshrrev_b32 {t[5]}, 20, {t[5]}\nv_mul_u32_u24 {t[6]}, 120, {t[5]}')
    k(f'v_add_u32 {t[6]}, {t[6]}, {t[2]}\nv_lshlrev_b32 {t[6]}, 4, {t[6]}')
    pd = PairDma(k, s_w, jm, O_W2F, Rws, l16, W2_AT)
    k(f's_lshl_b32 {st}, {mt}, 4\nv_add_u32 {row}, {st}, {m}')
    k(f'v_lshlrev_b32 {t[0]}, 15, {q}\nv_lshl_add_u32 {t[0]}, {row}, 3, {t[0]}\nv_add_u32 {t[1]}, 0x4000, {t[0]}')
    ones = k.v(4, 4); sacc = k.v(4, 4); gacc = k.v(4, 4); tacc = k.v(4, 4); qacc = k.v(4, 4); acc = k.v(24, 4)
    for i in range(4): k(f'v_mov_b32 {ones[i]}, 0x3f803f80')
    msk = [k.s(2) for _ in range(3)]; bidx = k.v()
    k(f'v_and_b32 {t[2]}, 3, {m}')
    for e in range(3): k(f'v_cmp_eq_u32 {msk[e]}, {e + 1}, {t[2]}')
    aT = k.v(); aW = [l16, k.v(), k.v()]
    k(f'v_min_u32 {t[2]}, 2, {t[2]}\nv_mul_u32_u24 {aT}, 1152, {t[2]}\nv_lshl_add_u32 {aT}, {q}, 4, {aT}\nv_add_u32 {aT}, {T_B}, {aT}\nv_lshlrev_b32 {t[7]}, 5, {q}\nv_add_u32 {t[7]}, {T_G}, {t[7]}')
    k(f'v_lshrrev_b32 {t[2]}, 2, {m}\nv_lshl_add_u32 {t[2]}, {t[2]}, 4, {m}\nv_lshlrev_b32 {bidx}, 2, {t[2]}')
    k(f'v_add_u32 {aW[1]}, 0xf000, {l16}\nv_add_u32 {aW[2]}, 0x1e000, {l16}')
    k(f'v_lshlrev_b32 {t[2]}, 4, v0\nv_add_u32 {t[2]}, {T_B}, {t[2]}')
    spin(go_ld, [fv4[0]])
    k('s_waitcnt lgkmcnt(0)\ns_barrier')
    STAMP(15)
    NSH = 4
    na, nb = k.label('noarr'), k.label('notlast')
    k(f's_sub_u32 {st}, s2, 7\ns_cmp_lt_u32 {st}, 9\ns_cbranch_scc1 {na}')
    k(f's_cmp_lg_u32 {s_w}, 0\ns_cbranch_scc1 {na}\ns_lshr_b32 {st1}, s2, 3\ns_and_b32 {st1}, {st1}, {NSH - 1}\ns_lshl_b32 {st}, {st1}, 7\ns_add_u32 {st}, {st}, {O_FA}\ns_mov_b64 exec, 1')
    k(f'v_mov_b32 {fv4[4]}, 1\nbuffer_atomic_add {fv4[4]}, {zero}, {Rws}, {st} offen sc0 sc1\ns_cmp_eq_u32 {st1}, 0\ns_cselect_b32 {so}, 62, 63\ns_cmp_eq_u32 {st1}, 1\ns_cselect_b32 {so}, 55, {so}\ns_add_u32 {st1}, {st}, {O_FG - O_FA}\ns_waitcnt vmcnt(0)')
    k(f'v_readfirstlane_b32 {st}, {fv4[4]}\ns_cmp_lg_u32 {st}, {so}\ns_cbranch_scc1 {nb}')
    k(f'buffer_store_dword {one}, {zero}, {Rws}, {st1} offen sc1\n{nb}:\ns_mov_b64 exec, -1\n{na}:')
    go3_ld = f'buffer_load_dword {fv4[0]}, {fv4[5]}, {Rws}, 0 offen sc1'
    k(f'v_and_b32 {fv4[5]}, {NSH - 1}, {lane}\nv_lshlrev_b32 {fv4[5]}, 7, {fv4[5]}\nv_add_u32 {fv4[5]}, {O_FG}, {fv4[5]}')
    k('s_cmp_lt_u32 s2, 64\ns_cbranch_scc1 k2_idle')

    w0, w5, wj = k.label('havew1'), k.label('rest'), k.label('joined')
    spin(go_ld, [fv4[2], fv4[3]])
    k(f's_add_u32 m0, {sm}, {T_B + 1152}\nbuffer_load_dwordx4 {t[3]}, {Rws}, 0 offen sc1 lds')
    k(f's_mov_b32 m0, {T_B + 1152 + 4096}\ns_mov_b32 exec_hi, 0\nbuffer_load_dwordx4 {t[4]}, {Rws}, 0 offen sc1 lds\ns_mov_b64 exec, -1')
    k(f's_cmp_ge_u32 s2, 112\ns_cbranch_scc1 {w0}')
    for P_ in range(5):
        for g in pd1.ops(P_):
            for x_ in g: k(x_)
    k(f's_waitcnt vmcnt(0)\n{w0}:\ns_barrier\ns_cmp_eq_u32 {s_w}, 0\ns_cbranch_scc1 {w5}')
    k(f's_lshl_b32 {pd1.t}, {s_w}, 11\ns_sub_u32 {pd1.t}, {pd1.t}, 2048\ns_mul_i32 {pd1.src}, {jm}, 110592\ns_add_u32 {pd1.src}, {pd1.src}, {pd1.t}\ns_add_u32 {pd1.src}, {pd1.src}, {O_W1F + 61440}')
    for sl_i in range(10, 18):
        k(f's_add_u32 m0, {pd1.t}, {W1_AT[sl_i]}\nbuffer_load_dwordx4 {l16}, {Rws}, {pd1.src} offen sc1 lds')
        k(f'buffer_load_dwordx4 {l16}, {Rws}, {pd1.src} offen offset:1024 sc1 lds')
        if sl_i < 17: k(f's_add_u32 {pd1.src}, {pd1.src}, 6144')
    k(f'{w5}:')
    pd1.release()
    k(f'v_cmp_gt_u32 vcc, 72, v0\ns_and_saveexec_b64 {sav}, vcc\nds_write_b128 {t[2]}, {ones}\ns_mov_b64 exec, {sav}')
    w2ops = [g for P_ in range(9) for g in pd.ops(P_)]
    def w2dma():
        for x_ in w2ops.pop(0): vm.op(x_) if x_.startswith('buffer') else k(x_)
    ix = []
    def issue(i):
        vm.op(f'buffer_load_dwordx2 {XX.sub(4 * i, 2)}, {t[0]}, {Rws}, {st1} offen sc1')
        ix.append(vm.op(f'buffer_load_dwordx2 {XX.sub(4 * i + 2, 2)}, {t[1]}, {Rws}, {st1} offen sc1'))
        if i < 17: k(f's_add_u32 {st1}, {st1}, 131072')
        if i % 3 == 2 and i < 17: k(f's_cmp_eq_u32 {st1}, {O_X2 + 18 * 131072}\ns_cselect_b32 {st1}, {O_X2}, {st1}')
    lds_at = lambda a_: f'{aW[a_ // 0xf000]} offset:{a_ % 0xf000}'
    TF = W[1]; WR = [k.a(24, 4), k.a(24, 4)]
    def w_reads(i):
        return [f'ds_read_b128 {WR[i & 1].sub(4 * tt, 4)}, {lds_at(W1_AT[i] + 1024 * tt)}' for tt in range(6)]
    k(f's_cmp_lg_u32 {s_w}, 0\ns_cbranch_scc1 {wj}\n{go3_ld}')
    spin(go3_ld, [fv4[0]], 2)
    k(f'{wj}:\ns_mul_i32 {st1}, {jm}, {3 * 131072}\ns_add_u32 {st1}, {st1}, {O_X2}\ns_mul_i32 {so}, {jm}, 384\ns_add_u32 {so}, {so}, {O_MOD2}\ns_waitcnt vmcnt(16) lgkmcnt(0)\ns_barrier'); vm.reset(); lg.reset()
    STAMP(0)
    nis = 5
    for i in range(nis): issue(i)
    k(f's_mov_b32 {st}, {O_FU}')
    ifu = vm.op(f'buffer_load_dword {fv4[0]}, {zero}, {Rws}, {st} offen sc1')
    itf = [lg.op(f'ds_read_b128 {TF.sub(4 * i, 4)}, {aT} offset:{64 * i}') for i in range(18)]
    iwr = [lg.op(x_) for x_ in w_reads(0)]
    for i in range(18):
        lg.wait(itf[i]); k(f'{MF} {acc[4:8]}, {TF.sub(4 * i, 4)}, {TF.sub(4 * i, 4)}, {"0" if i == 0 else acc[4:8]}')
    cs = k.s(5, 1)
    for n_, (e, j_) in enumerate(((0, 1), (0, 2), (1, 1), (1, 2), (2, 2))): k(f'v_readlane_b32 {cs[n_]}, {acc[4 + e]}, {j_}')
    XG = [XX.sub(72, 4), XX.sub(76, 4)]; GT = [XX.sub(80, 8), XX.sub(88, 8)]; tv = XX.sub(96, 8)
    g_reads = lambda i: [f'ds_read_b128 {GT[i & 1].sub(4 * h, 4)}, {t[7]} offset:{128 * i + 16 * h}' for h in range(2)]
    def xg_ops(i):
        xs = XX.sub(4 * i, 4); g_ = GT[i & 1]
        return ([un(tv[e], xs[e >> 1], e & 1) for e in range(8)] + [f'v_mul_f32 {tv[e]}, {tv[e]}, {g_[e]}' for e in range(8)]
                + [f'v_cvt_pk_bf16_f32 {XG[i & 1][e]}, {tv[2 * e]}, {tv[2 * e + 1]}' for e in range(4)])
    ig0 = [lg.op(x_) for x_ in g_reads(0) + g_reads(1)]
    vm.wait(ix[0]); lg.wait(ig0[1])
    for x_ in xg_ops(0): k(x_)
    igt = ig0[3]; n2 = 0
    for i in range(18):
        if i == 9: vm.wait(itab)
        if i in (9, 13): k('s_barrier')
        if i == 1: STAMP(1)
        xg = XG[i & 1]; xr = XX.sub(4 * i, 4)
        c_ = lambda r_: '0' if i == 0 else r_
        M = [(0, f'{MF} {sacc}, {ones}, {xr}, {c_(sacc)}'), (0, f'{MF} {gacc}, {xr}, {xr}, {c_(gacc)}'),
             (0, f'{MF} {tacc}, {TF.sub(4 * i, 4)}, {xg}, {c_(tacc)}'), (0, f'{MF} {qacc}, {xg}, {xg}, {c_(qacc)}')]
        M += [(iwr[tt], f'{MF} {acc.sub(4 * tt, 4)}, {WR[i & 1].sub(4 * tt, 4)}, {xg}, {c_(acc.sub(4 * tt, 4))}') for tt in range(6)]
        Rd = w_reads(i + 1) if i < 17 else []
        V = xg_ops(i + 1) if i < 17 else []
        Gd = g_reads(i + 2) if i < 16 else []
        nxt = []
        for n_, (idr, mm) in enumerate(M):
            lg.wait(idr); k(mm)
            if Rd and n_ < 6: nxt.append(lg.op(Rd.pop(0)))
            if V and n_ == 0: vm.wait(ix[i + 1])
            if V and n_ == 4: lg.wait(igt)
            if Gd and n_ >= 8: ign = lg.op(Gd.pop(0))
            for _ in range(2):
                if V: k(V.pop(0))
        iwr = nxt
        if i < 16: igt = ign
        if i == 5:
            ok = k.label('uok'); lp = k.label('upoll')
            vm.wait(ifu)
            k(f'{lp}:\nv_cmp_gt_u32 vcc, 9, {fv4[0]}\ns_cmp_eq_u64 vcc, 0\ns_cbranch_scc1 {ok}\ns_mov_b32 {st}, {O_FU}\nbuffer_load_dword {fv4[0]}, {zero}, {Rws}, {st} offen sc1')
            k(f's_add_u32 {cnt}, {cnt}, 1\ns_cmp_lt_u32 {cnt}, {SPIN_MAX}\ns_waitcnt vmcnt(0)\ns_cbranch_scc1 {lp}\ns_branch {END}\n{ok}:')
            k(f's_add_u32 m0, {sm}, {T_F}')
            itab = vm.op(f'buffer_load_dwordx4 {t[6]}, {Rws}, {so} offen sc1 lds')
        if nis < 18:
            for _ in range(2 if nis < i + 9 else 1):
                if nis < 18: issue(nis); nis += 1
        else:
            for _ in range(3):
                if n2 < (18 if i < 13 else 27): w2dma(); n2 += 1
    assert n2 == 27
    STAMP(2)
    k.inject([lambda ks=ks: vm.op(wld(0, ks)) for ks in PI], 9)
    TB = [XX.sub(24, 16), XX.sub(40, 16)]; uu = XX.sub(56, 48)
    k(f'v_lshlrev_b32 {aT}, 5, {q}\nv_add_u32 {aT}, {T_F}, {aT}')
    tf_read = lambda dst, r_, e: f'ds_read_b128 {dst}, {aT} offset:{384 * r_ + 128 * (e >> 1) + 16 * (e & 1)}'
    def diag(d, g_):
        k(f'v_cndmask_b32 {d}, {g_[0]}, {g_[1]}, {msk[0]}\nv_cndmask_b32 {d}, {d}, {g_[2]}, {msk[1]}\nv_cndmask_b32 {d}, {d}, {g_[3]}, {msk[2]}')
        return lg.op(f'ds_bpermute_b32 {d}, {bidx}, {d}')
    i2 = diag(t[2], qacc); i1 = diag(t[1], gacc)
    iu = [lg.op(tf_read(uu.sub(24 * r_ + 4 * e, 4), 3 + r_, e)) for e in range(6) for r_ in range(2)]
    s1 = XX.sub(140, 2); gc = XX.sub(136, 4)
    k(f'v_mov_b32 {t[0]}, {sacc[0]}'); lg.wait(i1)
    sigma_bf16(k, t[0], t[1])
    k(f'v_cvt_pk_bf16_f32 {t[0]}, {t[0]}, {t[1]}\nv_and_b32 {s1[0]}, 0xffff0000, {t[0]}\nv_lshlrev_b32 {s1[1]}, 16, {t[0]}')
    k(f'v_rcp_f32 {s1[0]}, {s1[0]}\nv_mov_b32 {t[3]}, {cs[1]}\nv_mov_b32 {t[4]}, {cs[3]}\nv_mul_f32 {s1[1]}, -{s1[1]}, {s1[0]}')
    k(f'v_fma_f32 {t[3]}, {s1[1]}, {cs[0]}, {t[3]}\nv_fma_f32 {t[0]}, {s1[0]}, {tacc[0]}, {t[3]}')
    k(f'v_fma_f32 {t[3]}, {s1[1]}, {tacc[1]}, {tacc[2]}\nv_add_f32 {t[3]}, {t[3]}, {t[3]}\nv_fma_f32 {t[3]}, {s1[0]}, {t[2]}, {t[3]}')
    k(f'v_add_f32 {t[4]}, {t[4]}, {t[4]}\nv_fma_f32 {t[4]}, {s1[1]}, {cs[2]}, {t[4]}\nv_mov_b32 {t[5]}, {cs[4]}\nv_fma_f32 {t[4]}, {s1[1]}, {t[4]}, {t[5]}')
    k(f'v_fma_f32 {t[1]}, {s1[0]}, {t[3]}, {t[4]}')
    sigma_bf16(k, t[0], t[1])
    k(f'v_cvt_pk_bf16_f32 {t[1]}, {t[1]}, {t[1]}\nv_and_b32 {t[1]}, 0xffff0000, {t[1]}')
    gelu_consts(k, t[1], gc)
    k(f's_mul_i32 {st}, {jm}, {3 * GPL}\ns_lshl_b32 {so}, {mt}, 10\ns_add_u32 {st}, {st}, {so}\ns_add_u32 {st}, {st}, {O_G + 1024}')
    lg.all()
    for e in range(12): k(f'v_pk_fma_f32 {uu.sub(2 * e, 2)}, {uu.sub(2 * e, 2)}, {s1}, {uu.sub(24 + 2 * e, 2)} op_sel:[0,1,0] op_sel_hi:[1,1,1]')
    for e in range(12): k(f'v_pk_fma_f32 {acc.sub(2 * e, 2)}, {acc.sub(2 * e, 2)}, {s1}, {uu.sub(2 * e, 2)} op_sel_hi:[1,0,1]')
    tt_ = TB[0]; go = TB[1]
    for Pp in range(3):
        a = acc.sub(8 * Pp, 8); u = tt_.sub(0, 8)
        for e in range(4): k(f'v_pk_mul_f32 {u.sub(2 * e, 2)}, {a.sub(2 * e, 2)}, {a.sub(2 * e, 2)}')
        for e in range(4): k(f'v_pk_fma_f32 {u.sub(2 * e, 2)}, {u.sub(2 * e, 2)}, {gc[0:2]}, {gc[0:2]} op_sel:[0,1,0] op_sel_hi:[1,1,0]')
        for e in range(4): k(f'v_pk_mul_f32 {u.sub(2 * e, 2)}, {u.sub(2 * e, 2)}, {a.sub(2 * e, 2)}')
        for e in range(8): k(f'v_exp_f32 {u[e]}, {u[e]}')
        for e in range(4): k(f'v_pk_fma_f32 {u.sub(2 * e, 2)}, {u.sub(2 * e, 2)}, {gc[2:4]}, {gc[2:4]} op_sel_hi:[1,0,0]')
        for e in range(8): k(f'v_rcp_f32 {u[e]}, {u[e]}')
        for e in range(4): k(f'v_pk_mul_f32 {u.sub(2 * e, 2)}, {u.sub(2 * e, 2)}, {a.sub(2 * e, 2)}')
        o = go.sub(4 * Pp, 4)
        for e in range(4): k(f'v_cvt_pk_bf16_f32 {o[e]}, {u[2 * e]}, {u[2 * e + 1]}')
        if Pp == 2: k.flush_inject()
        ig = vm.op(f'buffer_store_dwordx4 {o}, {l16}, {Rws}, {st} offen sc1')
        if Pp < 2: k(f's_add_u32 {st}, {st}, {GPL}')
    h2f = uu.sub(0, 24); x2f = XX.sub(104, 24); gbv = RB
    xsrc = lambda e: XX[e >> 1]
    ig_ = [lg.op(tf_read(gbv.sub(4 * e, 4), 1, e)) for e in range(6)]
    is_ = [lg.op(tf_read(uu.sub(24 + 4 * e, 4), 0, e)) for e in range(6)]
    for e in range(24): k(un(x2f[e], xsrc(e), e & 1))
    dl = [XX[128 + i] for i in range(6)]
    k(f'v_cmp_gt_u32 vcc, 2, {q}')
    for g, dlt in enumerate((-1, 1, -2, 2)):
        k(f'v_add_u32 {dl[4]}, {16 + dlt}, {row}\nv_lshrrev_b32 {dl[5]}, 4, {dl[4]}\nv_and_b32 {dl[4]}, 15, {dl[4]}\nv_lshlrev_b32 {dl[4]}, 4, {dl[4]}')
        k(f'v_lshl_add_u32 {dl[4]}, {dl[5]}, 10, {dl[4]}\nv_lshl_add_u32 {dl[g]}, {q}, 8, {dl[4]}')
    k(f'v_cndmask_b32 {dl[4]}, {dl[1]}, {dl[0]}, vcc\nv_cndmask_b32 {dl[5]}, {dl[3]}, {dl[2]}, vcc')
    pa = XX[134]
    k(f'v_min_u32 {pa}, 2, {lane}\nv_add_u32 {pa}, {mt}, {pa}\nv_add_u32 {pa}, -1, {pa}\nv_max_i32 {pa}, 0, {pa}\nv_min_u32 {pa}, 127, {pa}\nv_lshlrev_b32 {pa}, 7, {pa}')
    vm.wait(ig)
    flag_add(mt, O_FC)
    STAMP(3)
    k(f's_add_u32 {sn}, {sn}, 18432')
    for e in range(12): k(f'v_pk_fma_f32 {h2f.sub(2 * e, 2)}, {x2f.sub(2 * e, 2)}, {s1}, {s1} op_sel:[0,0,1] op_sel_hi:[1,0,1]')
    lg.all()
    for e in range(12): k(f'v_pk_fma_f32 {h2f.sub(2 * e, 2)}, {h2f.sub(2 * e, 2)}, {gbv.sub(2 * e, 2)}, {uu.sub(24 + 2 * e, 2)}')
    NPRE = 5
    k('s_barrier')
    WP = [WR[0], WR[1], k.a(24, 4), k.a(24, 4), XX.sub(0, 24)]
    w2_addr = lambda i, tt: lds_at(W2_AT[i] + 1024 * tt)
    for i in range(NPRE):
        for tt in range(6): lg.op(f'ds_read_b128 {WP[i].sub(4 * tt, 4)}, {w2_addr(i, tt)}')
    poll(pa, O_FC, 6)
    STAMP(4)
    GF = TF
    sel = lambda s: dl[4] if s == 4 else dl[5] if s == 13 else dl[(2 * s) // 9]
    ig = []
    for s in range(18):
        k(f's_mov_b32 {st}, {O_G + s * GPL}')
        ig.append(vm.op(f'buffer_load_dwordx4 {GF.sub(4 * s, 4)}, {sel(s)}, {Rws}, {st} offen sc1'))
    lg.all()
    ird = {}
    for s in range(18):
        vm.wait(ig[s])
        wr = WP[s % NPRE]
        for tt in range(6):
            if s >= NPRE: lg.wait(ird[s, tt])
            k(f'{MF} {acc.sub(4 * tt, 4)}, {wr.sub(4 * tt, 4)}, {GF.sub(4 * s, 4)}, {"0" if s == 0 else acc.sub(4 * tt, 4)}')
            if s + NPRE < 18: ird[s + NPRE, tt] = lg.op(f'ds_read_b128 {wr.sub(4 * tt, 4)}, {w2_addr(s + NPRE, tt)}')
        vm.op(wld(1, s))
    lg.all()
    STAMP(5)
    aS = dl[1]
    k(f'v_lshrrev_b32 {t[0]}, 1, {q}')
    k(f'v_lshlrev_b32 {aS}, 6, {t[0]}\nv_lshl_add_u32 {aS}, {m}, 2, {aS}')
    k(f's_mul_i32 {st}, {rb}, 18\ns_mul_i32 {so}, {jm}, 3\ns_add_u32 {st}, {st}, {so}\ns_lshl_b32 {st}, {st}, 2\ns_add_u32 {st}, {st}, {s_w}\ns_lshl_b32 {st}, {st}, 10\ns_add_u32 {st}, {st}, {O_X1F}')
    for e in range(12): k(f'v_pk_add_f32 {h2f.sub(2 * e, 2)}, {h2f.sub(2 * e, 2)}, {acc.sub(2 * e, 2)}')
    for Pp in range(3):
        o = go.sub(4 * Pp, 4)
        for e in range(4): k(f'v_cvt_pk_bf16_f32 {o[e]}, {h2f[8 * Pp + 2 * e]}, {h2f[8 * Pp + 2 * e + 1]}')
        vm.op(f'buffer_store_dwordx4 {o}, {l16}, {Rws}, {st} offen sc1')
        if Pp < 2: k(f's_add_u32 {st}, {st}, 4096')
    k(f'v_pk_add_f32 {t[0:2]}, {h2f[0:2]}, {h2f[2:4]}\nv_pk_mul_f32 {t[2:4]}, {h2f[0:2]}, {h2f[0:2]}\nv_pk_fma_f32 {t[2:4]}, {h2f[2:4]}, {h2f[2:4]}, {t[2:4]}')
    for e in range(2, 12): k(f'v_pk_add_f32 {t[0:2]}, {t[0:2]}, {h2f.sub(2 * e, 2)}\nv_pk_fma_f32 {t[2:4]}, {h2f.sub(2 * e, 2)}, {h2f.sub(2 * e, 2)}, {t[2:4]}')
    k(f'v_add_f32 {t[0]}, {t[0]}, {t[1]}\nv_add_f32 {t[2]}, {t[2]}, {t[3]}\nv_permlane32_swap_b32 {t[0]}, {t[2]}\nv_add_f32 {t[0]}, {t[0]}, {t[2]}')
    k(f'v_mov_b32 {t[1]}, {t[0]}\nv_permlane16_swap_b32 {t[0]}, {t[1]}\nv_add_f32 {t[0]}, {t[0]}, {t[1]}')
    k(f's_mul_i32 {st}, {mt}, 6\ns_add_u32 {st}, {st}, {jm}\ns_lshl_b32 {st}, {st}, 7\ns_add_u32 {st}, {st}, {O_PST}\ns_mov_b32 exec_lo, 0xffff\ns_mov_b32 exec_hi, 0xffff')
    vm.op(f'buffer_store_dword {t[0]}, {aS}, {Rws}, {st} offen sc1')
    k('s_mov_b64 exec, -1')
    vm.all()
    flag_add(mt, O_FD)
    STAMP(6)
    k('s_branch k2_phase_e')
    k('k2_idle:')
    k.V.free, k.A.free, k.S.free = list(keepV), list(keepA), list(keepS)
    vm, lg = trackers(k)
    cj = ColJob(k, vm, lg, lane, s_w)
    fr = k.v(72, 4); sl = k.s(); dst = k.s(); job = k.s(); R4 = k.s(4)
    srd(k, R4, P['w4'], D * F * 2)
    fr2 = k.v(12, 4); part = k.s(); np_, dn = k.label('nopart'), k.label('w4done')
    k(f's_mul_hi_u32 {sl}, s2, {(1 << 32) // 9 + 1}\ns_mul_i32 {dst}, {sl}, 9\ns_sub_u32 {dst}, s2, {dst}\ns_lshl_b32 {dst}, {dst}, 7')
    k(f's_mul_i32 {st}, {sl}, {576 * 1152}\ns_add_u32 {dst}, {dst}, {st}\ns_mov_b32 {st}, 1152')
    cj.dma(R4, dst, st, 0, True)
    k(f's_mul_hi_u32 {job}, s2, {(1 << 32) // 6 + 1}\ns_mul_i32 {part}, {job}, 6\ns_sub_u32 {part}, s2, {part}\ns_cmp_ge_u32 s2, 48\ns_cbranch_scc1 {np_}')
    k(f's_mul_i32 {dst}, {part}, {96 * 1152}\ns_lshl_b32 {st}, {job}, 7\ns_add_u32 {dst}, {dst}, {st}\ns_add_u32 {dst}, {dst}, {7 * 576 * 1152 + 128}\ns_mov_b32 {st}, 1152')
    cj.dma(R4, dst, st, 73728, True, nks=3)
    k(f'{np_}:')
    ad = cj.addr(0, w4order=True); ad2 = cj.addr(73728, w4order=True)
    k('s_waitcnt vmcnt(0)\ns_barrier'); vm.reset()
    ids = cj.reads(ad, fr); ids2 = cj.reads(ad2, fr2, 3)
    k(f's_lshl_b32 {dst}, s2, 2\ns_add_u32 {dst}, {dst}, {s_w}\ns_mul_i32 {dst}, {dst}, 18432\ns_add_u32 {dst}, {dst}, {O_W4F}')
    cj.store(fr, ids, Rws, dst, 1024)
    k(f's_lshl_b32 {dst}, {job}, 2\ns_add_u32 {dst}, {dst}, {s_w}\ns_mul_i32 {dst}, {dst}, 18432\ns_mul_i32 {st}, {part}, 3072\ns_add_u32 {dst}, {dst}, {st}')
    k(f's_add_u32 {dst}, {dst}, {O_W4F + 256 * 18432}\ns_cmp_ge_u32 s2, 48\ns_cselect_b32 {dst}, {WS_USED}, {dst}')
    cj.store(fr2, ids2, Rws, dst, 1024, nks=3)
    vm.all()
    flag_add(sl, O_FW)
    k(f's_cmp_ge_u32 s2, 48\ns_cbranch_scc1 {dn}\ns_mov_b32 {sl}, 7')
    flag_add(sl, O_FW)
    k(f'{dn}:\n{go3_ld}')
    spin(go3_ld, [fv4[0]]); vm.reset()
    for r_ in range(2):
        for ks in PI: vm.op(wld(r_, ks))
        if r_ == 0: k(f's_add_u32 {sn}, {sn}, 18432')
    STAMP(14)
    k('k2_phase_e:')
    k.V.free, k.A.free, k.S.free = keepV, keepA, keepS
    vm, lg = trackers(k)
    vm.n = 1
    XA = k.a(112, 4); XV = k.v(176, 4)
    xf = lambda ks, t_: XA.sub(16 * ks + 4 * t_, 4) if 16 * ks + 4 * t_ < 112 else XV.sub(16 * ks + 4 * t_ - 112, 4)
    fv4.release()
    k(f's_add_u32 {sn}, {sn}, 18432')
    acc = [k.v(16, 4), k.v(16, 4)]
    t = acc[1].sub(0, 12); pa = k.v()
    k(f's_lshl_b32 {st}, {mb}, 2\nv_add_u32 {pa}, {st}, {lane}\ns_add_u32 {st}, {fs}, {(O_FW - O_FD) // 128}\nv_mov_b32 {t[0]}, {st}\nv_cmp_gt_u32 vcc, 4, {lane}')
    k(f'v_cndmask_b32 {pa}, {t[0]}, {pa}, vcc\nv_lshlrev_b32 {pa}, 7, {pa}\ns_cmp_eq_u32 {fs}, 7\ns_cselect_b32 {st}, 196, 36\nv_mov_b32 {t[0]}, {st}\nv_cndmask_b32 {t[0]}, {t[0]}, 6, vcc')
    k(f's_lshl_b32 {sm}, {s_w}, 10\ns_mul_i32 {so}, {mb}, 73728\ns_add_u32 {so}, {so}, {sm}\ns_add_u32 {so}, {so}, {O_X1F}')
    sk_ = k.label('nopoll')
    here = k.label('pc')
    k(f's_getpc_b64 {sav}\n{here}:\nv_subrev_u32 {t[2]}, 64, v0\nv_lshlrev_b32 {t[2]}, 7, {t[2]}\nv_min_u32 {t[2]}, {END}-{here}, {t[2]}')
    k(f's_cmp_eq_u32 {s_w}, 0\ns_cbranch_scc1 {sk_}_p\nglobal_load_dword {t[3]}, {t[2]}, {sav}\nv_add_u32 {t[2]}, 0x6000, {t[2]}\nv_min_u32 {t[2]}, {END}-{here}, {t[2]}')
    k(f'global_load_dword {t[3]}, {t[2]}, {sav}\ns_branch {sk_}\n{sk_}_p:')
    poll(pa, O_FD, t[0], sleep=1, fv=t[1])
    k(f'{sk_}:\ns_waitcnt vmcnt(0)\ns_barrier')
    STAMP(7)
    ixd = []; idv = {}
    def xdma(ks):
        k(f's_add_u32 m0, {sm}, {XBUF + 4096 * ks}\ns_add_u32 {st}, {so}, {4096 * ks}')
        ixd.append(vm.op(f'buffer_load_dwordx4 {l16}, {Rws}, {st} offen sc1 lds'))
    NX0 = 18 if 'xall' in opt else 10 if 'x10' in opt else 7
    for ks in PI[:NX0]: xdma(ks)
    k(f's_mul_i32 {st}, {mb}, 3072\ns_add_u32 {st}, {st}, {sm}\ns_add_u32 {st}, {st}, {O_PST}\ns_add_u32 m0, {sm}, {PSTL}')
    ipst = vm.op(f'buffer_load_dwordx4 {l16}, {Rws}, {st} offen sc1 lds')
    k(f'v_mul_u32_u24 {pa}, 768, {q}\nv_lshl_add_u32 {pa}, {m}, 2, {pa}\nv_add_u32 {pa}, {PSTL}, {pa}')
    aX = [l16, k.v()]; aHr = [k.v(), k.v()]; aH = [k.v(), k.v()]
    k(f'v_add_u32 {aX[1]}, 0x9000, {l16}\nv_add_u32 {aHr[0]}, {HBUF}, {l16}\nv_add_u32 {aHr[1]}, {HBUF + 0x9000}, {l16}')
    for h in range(2):
        k(f's_mul_i32 {st}, {s_w}, 9\ns_add_u32 {st}, {st}, {h}\ns_and_b32 {st1}, {st}, 1\ns_lshl_b32 {st1}, {st1}, 3\ns_lshr_b32 {st}, {st}, 1\ns_lshl_b32 {st}, {st}, 12')
        k(f's_add_u32 {st}, {st}, {st1}\nv_add_u32 {aH[h]}, {st}, {aHr[0]}')
    GC = [RB.sub(8 + 3 * i, 3) for i in range(4)]
    gt = RB.sub(0, 8); hp = [RB.sub(20, 2), RB.sub(22, 2)]
    def gelu_ops(a, ah):
        out = []
        for t_ in range(4):
            c = GC[t_]; x = [a[4 * t_ + e] for e in range(4)]; u = [gt[4 * (t_ & 1) + e] for e in range(4)]; o = hp[t_ & 1]
            out += [f'v_mul_f32 {u[e]}, {x[e]}, {x[e]}' for e in range(4)]
            out += [f'v_fma_f32 {u[e]}, {u[e]}, {c[1]}, {c[0]}' for e in range(4)]
            out += [f'v_mul_f32 {u[e]}, {u[e]}, {x[e]}' for e in range(4)]
            out += [f'v_exp_f32 {u[e]}, {u[e]}' for e in range(4)]
            out += [f'v_fma_f32 {u[e]}, {u[e]}, {c[2]}, {c[2]}' for e in range(4)]
            out += [f'v_rcp_f32 {u[e]}, {u[e]}' for e in range(4)]
            out += [f'v_mul_f32 {u[e]}, {u[e]}, {x[e]}' for e in range(4)]
            out += [f'v_cvt_pk_bf16_f32 {o[0]}, {u[0]}, {u[1]}', f'v_cvt_pk_bf16_f32 {o[1]}, {u[2]}, {u[3]}']
            out.append(f'ds_write_b64 {ah}, {o} offset:{1024 * t_}')
        return out
    def cost(x_):
        if isinstance(x_, tuple): return x_[0]
        return 2 if x_.startswith(('v_exp', 'v_rcp', 'ds_write')) else 1
    def emit(x_):
        if isinstance(x_, tuple): x_[1]()
        elif x_.startswith('ds_'): lg.op(x_)
        elif x_.startswith('buffer_'): vm.op(x_)
        else: k(x_)
    wid = {}; nw = {}; due = []
    from_lds = []; lid = {}
    def refill(r_):
        ks = due.pop()
        if from_lds: lid[r_, ks] = lg.op(f'ds_read_b128 {W[r_].sub(4 * ks, 4)}, {from_lds[0]} offset:{1024 * ks}'); nw[r_, ks] = 0
        else: nw[r_, ks] = vm.op(wld(r_, ks))
    def tile(a, r_, fill, steps=range(18), lead=2, pre=None, post=None, per_step=0, rate=None, load=True, at=None):
        steps = list(steps); nm = 4 * len(steps); n_ = 0; fill = list(fill); at = at or {}
        total = len(steps) * (1.5 + per_step) + sum(cost(x_) for x_ in fill)
        rate = rate or total / nm
        cum = 0
        for i in steps:
            ks = PI[i]
            if i in at: fill += at[i]; cum = max(cum, rate * n_ - 1)
            if pre: pre(i)
            if i % 2 == 0:
                n0 = len(k.l); vm.wait(max(wid.get((r_, PI[j]), 0) for j in (i, i + 1))); cum += len(k.l) - n0
            for t_ in range(4):
                k(f'{MF} {a.sub(4 * t_, 4)}, {W[r_].sub(4 * ks, 4)}, {xf(ks, t_)}, {"0" if i == 0 else a.sub(4 * t_, 4)}')
                n_ += 1
                nxt = 0
                if t_ == 0 and due: refill(r_); cum += 1
                if t_ == 3:
                    if load: due.append(ks)
                    if post: post(i)
                    cum += per_step
                    nxt = i % 2
                while n_ >= lead and fill and cum + nxt + cost(fill[0]) / 2 <= rate * n_: cum += cost(fill[0]); emit(fill.pop(0))
        for x_ in fill: emit(x_)
        if steps[-1] == 17 and due: refill(r_)
        if steps[-1] == 17: wid.update(nw); nw.clear()
    def frag_reads(base, i):
        ks = PI[i]
        return [lg.op(f'ds_read_b128 {xf(ks, t_)}, {base[ks // 9]} offset:{(ks % 9) * 4096 + 1024 * t_}') for t_ in range(4)]
    nxt_tile = lambda: k(f's_add_u32 {sn}, {sn}, 18432')
    rd = {}
    AH = 3 if 'ah3' in opt else 2
    XB = {0: 5, 3: 11, 9: 17} if 'xb3' in opt else {0: 3, 1: 6, 4: 11, 9: 17} if AH == 3 else {0: 2, 1: 6, 5: 11, 10: 17}
    def pre0(i):
        if i in XB: vm.wait(max(ixd[XB[i]], ipst if XB[i] == 17 else 0)); k('s_barrier')
        if i == 0:
            for j in range(AH): rd[j] = frag_reads(aX, j)
        if i + AH < 18: rd[i + AH] = frag_reads(aX, i + AH)
        lg.wait(rd[i][3])
    todo = [(0, lambda ks=ks: xdma(ks)) for ks in PI[NX0:]]
    todo += [(max(i, 9) if 'wlate' in opt else i, lambda ks=PI[i]: wid.__setitem__((0, ks, 'n'), vm.op(wld(0, ks)))) for i in range(18)]
    def post0(i):
        for _ in range(18 if i == 17 else 4 if i < 3 else 3):
            if todo and todo[0][0] <= i: todo.pop(0)[1]()
        if i == 10:
            for j in range(6): idv['p'] = lg.op(f'ds_read2_b32 {t.sub(2 * j, 2)}, {pa} offset0:{32 * j} offset1:{32 * j + 16}')
    class Rec:
        def __init__(self): self.l = []
        def __call__(self, x_): self.l += x_.split('\n')
    rec = Rec()
    for e in (0, 4, 8): rec(f'v_add_f32 {t[e]}, {t[e]}, {t[e + 2]}\nv_add_f32 {t[e + 1]}, {t[e + 1]}, {t[e + 3]}')
    for e in (4, 8): rec(f'v_add_f32 {t[0]}, {t[0]}, {t[e]}\nv_add_f32 {t[1]}, {t[1]}, {t[e + 1]}')
    sigma_bf16(rec, t[0], t[1])
    rec(f'v_cvt_pk_bf16_f32 {t[1]}, {t[1]}, {t[1]}\nv_and_b32 {t[1]}, 0xffff0000, {t[1]}\nv_lshlrev_b32 {t[2]}, 2, {m}')
    c1 = [(1, lambda: lg.wait(idv['p']))] + rec.l
    c1 += [(1, lambda i=i: idv.__setitem__('b', lg.op(f'ds_bpermute_b32 {t[4 + i]}, {t[2]}, {t[1]} offset:{64 * i}'))) for i in range(4)]
    rec = Rec()
    for i in range(4): gelu_consts(rec, t[4 + i], GC[i])
    c2 = [(1, lambda: lg.wait(idv['b']))] + [rec.l[6 * i + j] for j in range(6) for i in range(4)]
    tile(acc[0], 0, [], pre=pre0, post=post0, load=False, rate=2.0, at={12: c1, 16: c2})
    assert not todo
    for ks in range(18): wid[0, ks] = wid.pop((0, ks, 'n'))
    nxt_tile()
    STAMP(8)
    fa_ = k.v(); xc = k.v(3, 1)
    sS = k.s(); sM = k.s()
    k(f's_add_u32 {sS}, {s4}, {4 * 18432}\ns_mul_i32 {sM}, {s_w}, 18432')
    def check(idl, val, tgt, vaddr, base):
        ok = k.label('up'); d0 = None
        vm.wait(idl)
        k(f'v_cmp_gt_u32 vcc, {tgt}, {val}\ns_cmp_eq_u64 vcc, 0\ns_cbranch_scc1 {ok}')
        d0 = vm.done; poll(vaddr, base, tgt, fv=val); vm.done = d0
        k(f'{ok}:')
    STAGE = 'nostage' not in opt
    rd = {}
    for tt in range(1, 9):
        fill = gelu_ops(acc[1 - (tt & 1)], aH[1 - (tt & 1)]) + [f'v_add_u32 {aH[1 - (tt & 1)]}, 4096, {aH[1 - (tt & 1)]}']
        if 4 <= tt <= 7 and STAGE:
            if tt == 4: lg.all(); k('s_barrier')
            for n_, ks in enumerate(range((tt - 4) * 18 // 4, (tt - 3) * 18 // 4)):
                fill[10 + 26 * n_:10 + 26 * n_] = [f's_add_u32 m0, {sM}, {4096 * (ks // 4)}',
                    (1, lambda ks=ks: idv.__setitem__('stage', vm.op(f'buffer_load_dwordx4 {vo[ks // 4]}, {RW}, {sS} offen offset:{1024 * (ks % 4)} sc1 lds')))]
        if tt == 1:
            k(f's_lshr_b32 {so}, {fs}, 1\ns_mul_i32 {so}, {so}, 9\ns_and_b32 {st1}, {fs}, 1\ns_lshl_b32 {st1}, {st1}, 11\ns_lshr_b32 {sm}, {s_w}, 1\ns_lshl_b32 {sm}, {sm}, 8\ns_add_u32 {st1}, {st1}, {sm}')
            k(f's_and_b32 {sm}, {s_w}, 1\ns_lshl_b32 {sm}, {sm}, 3\ns_add_u32 {st1}, {st1}, {sm}\nv_lshrrev_b32 {xc[2]}, 1, {q}\nv_lshl_add_u32 {xc[0]}, {xc[2]}, 10, {st1}')
            k(f'v_lshl_add_u32 {xc[0]}, {m}, 4, {xc[0]}\nv_and_b32 {xc[2]}, 1, {q}\nv_lshl_add_u32 {xc[2]}, {xc[2]}, 2, {xc[0]}')
            for h in range(2):
                k(f's_add_u32 {st}, {so}, {h}\ns_and_b32 {sm}, {st}, 1\ns_lshl_b32 {sm}, {sm}, 9\ns_lshr_b32 {st}, {st}, 1\ns_lshl_b32 {st}, {st}, 12\ns_add_u32 {st}, {st}, {sm}\nv_add_u32 {xc[h]}, {st}, {xc[2]}')
            k(f's_mul_i32 {st}, {s_w}, 2304\ns_add_u32 {st}, {st}, {X1C}\nv_lshl_add_u32 {xc[2]}, {lane}, 2, {st}')
        if 1 <= tt <= 3:
            for t_ in range(3 * tt - 3, 3 * tt):
                def cp(t_=t_): idv['x'] = lg.op(f'ds_read_b32 {pa}, {xc[t_ & 1]} offset:{4096 * (t_ >> 1)}')
                def wr(t_=t_): lg.wait(idv['x']); lg.op(f'ds_write_b32 {xc[2]}, {pa} offset:{256 * t_}')
                n_ = 20 + 33 * (t_ % 3)
                fill[n_:n_] = [(1, cp)]; fill[n_ + 20:n_ + 20] = [(2, wr)]
        if tt == 7: k(f's_mov_b32 {sn}, {s4}')
        if tt in (1, 4, 7, 8): STAMP({1: 1, 4: 2, 7: 3, 8: 4}[tt], 'g3st')
        if tt < 8: tile(acc[tt & 1], tt & 1, fill)
        else:
            lg.all(); k('s_barrier')
            def post8(i):
                if i < 12: rd[i] = frag_reads(aHr, i)
            tile(acc[0], 0, fill, post=post8, per_step=2.7)
        nxt_tile()
    STAMP(9)
    k('s_waitcnt lgkmcnt(0)\ns_barrier'); lg.reset()
    for j in (12, 13): rd[j] = frag_reads(aHr, j)
    tile(acc[1], 1, gelu_ops(acc[0], aH[0]), steps=range(10), lead=1)
    lg.all(); k('s_barrier')
    for j in range(14, 18): rd[j] = frag_reads(aHr, j)
    tile(acc[1], 1, [], steps=range(10, 18), pre=lambda i: lg.wait(rd[i][3]) if i >= 14 else None)
    Rout = k.s(4)
    sp = k.s(); sq = k.s(); sf = k.s(); T0 = k.s(); sl_ = k.s(); po = [gt.sub(0, 4), gt.sub(4, 4)]
    aP, aR, aO = GC[0][0], GC[0][1], GC[0][2]; aL, aLr, aLg = GC[1][0], GC[1][1], GC[1][2]; aOw, aOr = GC[2][0], GC[2][1]; fv = pa; fpa = fa_
    u0, u1, u2 = hp[0][0], hp[0][1], hp[1][0]
    X2L, GBL, OUTB = HBUF, HBUF + 9216, HBUF + 13312
    sx_ = k.s(); mk = [k.s(2), k.s(2)]; own = [k.s(), k.s()]; sp1 = k.s(); OWN = 'noown' not in opt
    setup = f"""s_mov_b32 {Rout[0]}, {P['out'][0]}
s_mov_b32 {Rout[1]}, {P['out'][1]}
s_mov_b32 {Rout[2]}, {L * D * 2}
s_mov_b32 {Rout[3]}, 0x20000
s_lshl_b32 {st}, {fs}, 13
s_mul_i32 {sq}, {mb}, {9 * 65536}
s_add_u32 {sq}, {sq}, {st}
s_add_u32 {sq}, {sq}, {O_PART}
s_mul_i32 {sf}, {mb}, 36
s_lshr_b32 {T0}, {fs}, 1
s_add_u32 {st}, {sf}, {T0}
s_lshl_b32 {st}, {st}, 7
v_mov_b32 {fpa}, {st}
s_add_u32 {sf}, {sf}, {s_w}
s_lshl_b32 {sf}, {sf}, 7
s_add_u32 {sf}, {sf}, {O_FP}
s_mul_i32 {T0}, {T0}, 9
s_lshl_b32 {st}, {s_w}, 8
v_lshl_add_u32 {u0}, {m}, 4, {st}
v_lshl_add_u32 {aP}, {q}, 10, {u0}
v_and_b32 {u1}, 1, {q}
v_lshrrev_b32 {u2}, 1, {q}
v_lshl_add_u32 {u0}, {u2}, 4, {m}
v_lshlrev_b32 {aR}, 3, {u0}
v_lshl_add_u32 {aR}, {u1}, 2, {aR}
s_and_b32 {so}, {fs}, 1
s_lshl_b32 {st}, {mb}, 1
s_add_u32 {so}, {so}, {st}
s_lshl_b32 {so}, {so}, 8
s_lshl_b32 {st}, {s_w}, 14
s_add_u32 {so}, {so}, {st}
v_add_u32 {aR}, {so}, {aR}
s_mul_i32 {sx_}, {s_w}, 2304
s_add_u32 {sx_}, {sx_}, {X2L}
v_lshl_add_u32 {aLr}, {lane}, 2, {sx_}
s_mul_i32 {st}, {s_w}, 1040
s_add_u32 {st}, {st}, {GBL}
v_lshl_add_u32 {aLg}, {u1}, 3, {st}
v_mul_u32_u24 {aOw}, 304, {u0}
v_lshl_add_u32 {aOw}, {u1}, 2, {aOw}
s_lshl_b32 {st}, {s_w}, 3
s_add_u32 {st}, {st}, {OUTB}
v_add_u32 {aOw}, {st}, {aOw}
s_and_b32 {st}, {fs}, 3
s_lshl_b32 {so}, {st}, 4
s_lshl_b64 {mk[0]}, 0xffff, {so}
s_not_b64 {mk[0]}, {mk[0]}
s_cmp_ge_u32 {fs}, 4
s_cselect_b64 {mk[1]}, {mk[0]}, -1
s_cselect_b64 {mk[0]}, -1, {mk[0]}
s_lshl_b32 {st}, {fs}, 8
v_mul_u32_u24 {u0}, 18432, {q}
v_lshl_add_u32 {u0}, {m}, 4, {u0}
v_add_u32 {u0}, {st}, {u0}
v_add_u32 {u1}, {HBUF + 24576}, {l16}
s_lshl_b32 {st}, {s_w}, 1
s_cmp_eq_u32 {st}, {fs}
s_cselect_b64 vcc, -1, 0
s_cselect_b32 {own[0]}, 1, 0
v_cndmask_b32 {aH[0]}, {u1}, {u0}, vcc
s_add_u32 {st}, {st}, 1
s_cmp_eq_u32 {st}, {fs}
s_cselect_b64 vcc, -1, 0
s_cselect_b32 {own[1]}, 1, 0
v_cndmask_b32 {aH[1]}, {u1}, {u0}, vcc""".split('\n')
    k(f's_mul_i32 {sp}, {mb}, {9 * 65536}\ns_lshl_b32 {st}, {s_w}, 14\ns_add_u32 {sp}, {sp}, {st}\ns_lshl_b32 {st}, {fs}, 10\ns_add_u32 {sp}, {sp}, {st}\ns_add_u32 {sp}, {sp}, {O_PART}')
    k(f's_mov_b32 {sl_}, {sM}\nv_add_u32 {aL}, {sM}, {l16}')
    for x_ in (aHr[0], aHr[1], aX[1]): x_.release()
    k(f's_mov_b32 {sp1}, {sp}'); spp = [sp, sp1]
    ids = {}
    def S(t_, a, p):
        out = [f'v_cvt_pk_bf16_f32 {po[p][e]}, {a[8 * p + 2 * e]}, {a[8 * p + 2 * e + 1]}' for e in range(4)]
        if OWN and t_ == 2: out.append((2, lambda: k(f's_cmp_lg_u32 {own[p]}, 0\ns_cselect_b32 {spp[p]}, {WS_USED}, {spp[p]}')))
        out.append((1, lambda: ids.__setitem__(('S', t_), vm.op(f'buffer_store_dwordx4 {po[p]}, {vo[2 * p]}, {Rws}, {spp[p]} offen {PFL}'))))
        if OWN and t_ >= 2: out.append(f'ds_write_b128 {aH[p]}, {po[p]} offset:{2048 * t_}')
        return out + [f's_add_u32 {spp[p]}, {spp[p]}, 65536']
    def G(t_):
        def f():
            if t_ == 8: k(f's_add_u32 {sf}, {sf}, 4096')
            vm.wait(ids['S', t_])
            if OWN and t_ >= 2: lg.all()
            k('s_mov_b64 exec, 1')
            vm.op(f'buffer_atomic_add {one}, {zero}, {Rws}, {sf} offen offset:{512 * (t_ % 8)} sc1')
            k('s_mov_b64 exec, -1')
        return [(4, f)]
    def Lf(t_): return [f's_mov_b32 {st1}, {O_FP + 512 * t_}', (1, lambda: ids.__setitem__(('L', t_), vm.op(f'buffer_load_dword {fv}, {fpa}, {Rws}, {st1} offen sc1')))]
    def dma(lds, va, soff, mask):
        def f():
            if mask: k(f's_mov_b64 exec, {mask}')
            ids['d'] = vm.op(f'buffer_load_dwordx4 {va}, {Rws}, {soff} offen sc1 lds')
            if mask: k('s_mov_b64 exec, -1')
        return [f's_add_u32 m0, {sl_}, {lds}', (3 if mask else 1, f)]
    def C(t_):
        m_ = mk if OWN and t_ >= 2 else [None, None]
        return (dma(2048 * t_, aP, sq, m_[0]) + [f's_add_u32 {st}, {sq}, 4096'] + dma(2048 * t_ + 1024, aP, st, m_[1]) + [f's_add_u32 {sq}, {sq}, 65536']
                + [(0, lambda: ids.__setitem__(('C', t_), ids['d']))])
    def RS(t_): return [f's_add_u32 {st}, {T0}, {t_}', f's_lshl_b32 {st}, {st}, 16', f's_add_u32 {st}, {st}, {O_X2}', f's_add_u32 m0, {sx_}, {256 * t_}',
                        f'buffer_load_dword {aR}, {Rws}, {st} offen sc1 lds']
    def CK(t_): return [(4, lambda: check(ids['L', t_], fv, 8, fpa, O_FP + 512 * t_))]
    def R(t_, Dr, v):
        A_, B_, r_, g_ = Dr
        def rd_():
            vm.wait(ids['C', t_])
            lg.op(f'ds_read_b128 {A_}, {aL} offset:{2048 * t_}'); lg.op(f'ds_read_b128 {B_}, {aL} offset:{2048 * t_ + 1024}')
            lg.op(f'ds_read_b32 {r_[0]}, {aLr} offset:{256 * t_}'); lg.op(f'ds_read_b32 {r_[1]}, {xc[2]} offset:{256 * t_}'); ids['r', t_] = lg.op(f'ds_read_b64 {g_}, {aLg} offset:{64 * t_}')
        out = [(1, lambda: lg.wait(ids['r', t_]))]
        for d in range(4): out += [f'v_lshlrev_b32 {v[2 * d]}, 16, {A_[d]}', f'v_lshlrev_b32 {v[2 * d + 1]}, 16, {B_[d]}']
        for d in range(4): out += [f'v_and_b32 {A_[d]}, 0xffff0000, {A_[d]}', f'v_add_f32 {v[2 * d]}, {v[2 * d]}, {v[2 * d + 1]}', f'v_and_b32 {B_[d]}, 0xffff0000, {B_[d]}']
        out += [f'v_add_f32 {v[2 * d + 1]}, {A_[d]}, {B_[d]}' for d in range(4)]
        out += [f'v_permlane32_swap_b32 {v[e]}, {v[e + 4]}' for e in (0, 2, 1, 3)]
        out += [f'v_add_f32 {v[e]}, {v[e]}, {v[e + 4]}' for e in (0, 2, 1, 3)]
        out += [un(v[4 + e], r_[e >> 1], e & 1) for e in (2, 3)]
        out += [f'v_permlane16_swap_b32 {v[e]}, {v[e + 2]}' for e in range(2)]
        out += [un(v[4 + e], r_[e >> 1], e & 1) for e in (0, 1)]
        out += [f'v_add_f32 {v[e]}, {v[e]}, {v[e + 2]}' for e in range(2)]
        out += [f'v_add_f32 {v[e]}, {v[e]}, {v[e + 6]}' for e in range(2)]
        out += [f'v_fma_f32 {v[e]}, {v[e]}, {g_[e]}, {v[4 + e]}' for e in range(2)]
        out += [f'v_cvt_pk_bf16_f32 {v[4]}, {v[0]}, {v[1]}', f'ds_write_b32 {aOw}, {v[4]} offset:{32 * t_}']
        return [(6, rd_)], out
    SPOS = 9
    for tt in range(1, 9):
        nxt_tile()
        a_ = acc[tt & 1]
        at = {0: S(tt - 1, a_, 0), SPOS: S(tt - 1, a_, 1)}
        add = lambda i, ops: at.__setitem__(i, at.get(i, []) + ops)
        if tt == 1: add(2, setup)
        if tt == 2:
            k('s_barrier')
            add(2, [f's_lshl_b32 {st}, {T0}, 6', f's_add_u32 {st}, {st}, {O_MOD2 + 4608}', f's_lshl_b32 {so}, {s_w}, 10', f's_add_u32 m0, {so}, {GBL}',
                    f'buffer_load_dwordx4 {l16}, {Rws}, {st} offen sc1 lds'])
        if 2 <= tt <= 6: add(4, RS(2 * tt - 4) + (RS(2 * tt - 3) if tt < 6 else []))
        if tt >= 2: add(6, G(tt - 2))
        if 'newtail' not in opt:
            if tt >= 4: add(12, CK(tt - 4) + C(tt - 4))
            if tt >= 3: add(15, Lf(tt - 3))
        else:
            if 4 <= tt <= 7: add(12, CK(tt - 4) + C(tt - 4))
            if 3 <= tt <= 7: add(15, Lf(tt - 3))
            if tt == 8: add(1, CK(4) + C(4) + Lf(5)); add(11, CK(5) + C(5)); add(14, Lf(6)); add(17, G(7))
        if tt in (1, 4, 7, 8): STAMP({1: 1, 4: 2, 7: 3, 8: 4}[tt], 'g4st')
        if tt == 2 and STAGE: vm.wait(idv['stage']); from_lds.append(aL)
        if 'w8late' in opt and tt == 7:
            k(f's_sub_u32 {sn}, {sn}, 18432')
            for i_ in range(9): add(i_, [(1, lambda ks=ks: wid.__setitem__((1, ks), vm.op(wld(1, ks)))) for ks in PI[2 * i_:2 * i_ + 2]])
        tile(acc[1 - (tt & 1)], 1 - (tt & 1), [], rate=2.0, at=at, load=tt < (6 if 'w8late' in opt else 7))
        if tt == 2 and STAGE: from_lds.clear()
        if tt == 2: lg.all(); k('s_barrier')
    STAMP(10)
    XV.release()
    Dn = [[k.v(4, 2), k.v(4, 2), k.v(2), k.v(2)] for _ in range(9)]; v2 = k.v(8, 2)
    RR = [R(t_, Dn[t_], v2) for t_ in range(9)]
    if 'newtail' not in opt:
        seq = S(8, acc[1], 0) + S(8, acc[1], 1) + G(7) + CK(5) + C(5) + Lf(6)
        for t_ in range(3): seq += RR[t_][0]
        seq += RR[0][1] + G(8) + RR[1][1] + CK(6) + C(6) + Lf(7) + RR[3][0] + RR[4][0] + RR[2][1] + RR[3][1] + CK(7) + C(7) + Lf(8) + RR[5][0] + RR[4][1] + RR[5][1]
        last = C(8) + RR[6][0] + RR[7][0] + RR[6][1] + RR[7][1] + RR[8][0] + RR[8][1]
    else:
        seq = S(8, acc[1], 0) + S(8, acc[1], 1) + CK(6) + C(6) + Lf(7)
        for t_ in range(5): seq += RR[t_][0]
        seq += RR[0][1] + RR[1][1] + RR[2][1] + G(8) + CK(7) + C(7) + RR[3][1] + RR[4][1] + Lf(8) + RR[5][0] + RR[6][0] + RR[5][1] + RR[6][1]
        last = C(8) + RR[7][0] + RR[7][1] + RR[8][0] + RR[8][1]
    for x_ in seq: emit(x_)
    u = k.v(3)
    k(f'v_mul_u32_u24 {u[0]}, 3641, v0\nv_lshrrev_b32 {u[0]}, 16, {u[0]}\nv_mul_u32_u24 {u[1]}, 18, {u[0]}\nv_sub_u32 {u[1]}, v0, {u[1]}\nv_lshlrev_b32 {u[1]}, 4, {u[1]}')
    k(f'v_mul_u32_u24 {aOr}, 304, {u[0]}\nv_add_u32 {aOr}, {aOr}, {u[1]}\nv_add_u32 {aOr}, {OUTB}, {aOr}\nv_mul_u32_u24 {aO}, 1152, {u[0]}\nv_add_u32 {aO}, {aO}, {u[1]}')
    k(f's_lshl_b32 {st}, {mb}, 1\ns_and_b32 {so}, {fs}, 1\ns_add_u32 {so}, {so}, {st}\ns_mul_i32 {so}, {so}, {32 * 1152}\ns_lshl_b32 {st}, {T0}, 5\ns_add_u32 {so}, {so}, {st}')
    for x_ in CK(8): emit(x_)
    STAMP(11)
    for x_ in last: emit(x_)
    lg.all(); k('s_barrier')
    o4 = [Dn[0][0], Dn[0][1], Dn[1][0]]
    k(f'v_cmp_gt_u32 vcc, 252, v0\ns_and_b64 exec, exec, vcc')
    io = [lg.op(f'ds_read_b128 {o4[i]}, {aOr} offset:{14 * 304 * i}') for i in range(3)]
    for i in range(3):
        if i == 2: k(f's_cmp_ge_u32 {s_w}, 2\ns_cbranch_scc1 {END}\nv_cmp_gt_u32 vcc, 72, v0\ns_and_b64 exec, exec, vcc')
        lg.wait(io[i])
        k(f'buffer_store_dwordx4 {o4[i]}, {aO}, {Rout}, {so} offen' + (' sc1' if 'osc1' in opt else ' nt' if 'ont' in opt else ''))
        if i < 2: k(f's_add_u32 {so}, {so}, {14 * 1152}')
    STAMP(12)
```

```python
from dsl import Kern, Reg, module
import struct

L, D, F = 2048, 576, 4608
NAME = 'adaLN_cond__ssm_conv_s4d__mixer_s_mlp__prompt'

O_FC    = 0x0000
O_FD    = 0x4000
O_FR    = 0x8000
O_FW    = 0x9000
O_FA    = 0x9400
O_FG    = 0x9800
O_FU    = 0x9A00
O_FP    = 0xA000
FLAG_BYTES = 0x40000
O_STATS = 0x40000
O_MODF  = 0x44000
O_MOD2  = O_MODF + 3 * 2304
O_MODB  = 0x49000
O_MODG  = 0x4A000
O_PST   = 0x50000
GPL = 130 * 1024
O_XT    = 0x100000
O_X2    = 0x3200000
O_G     = 0x400000
O_X1F   = 0x700000
O_RES   = 0xA00000
O_W1F   = 0xF00000
O_W2F   = 0x1000000
O_W3F   = 0x1100000
O_W4F   = 0x1700000
O_PART  = 0x2000000
O_DBG   = 0x3800000
WS_USED = 0x4000000

def f2u(x): return struct.unpack('<I', struct.pack('<f', x))[0]
def fl(x): return '0x%08x' % f2u(x)
POISON = 0xffffffff
RETRY_MAX = 2000
LOG2E = 1.4426950408889634

class Trk:
    def __init__(self, k, cnt, mx): self.k = k; self.cnt = cnt; self.mx = mx; self.n = 0; self.done = 0
    def op(self, s):
        self.k(s); self.n += 1; return self.n
    def wait(self, idx):
        if idx <= self.done: return
        left = min(self.n - idx, self.mx)
        self.k('s_waitcnt %s(%d)' % (self.cnt, left)); self.done = self.n - left
    def all(self): self.wait(self.n)
    def reset(self): self.done = self.n

def trackers(k): return Trk(k, 'vmcnt', 63), Trk(k, 'lgkmcnt', 15)

def srd(k, dst, ptr, nbytes, off=0):
    if off:
        k(f's_add_u32 {dst[0]}, {ptr[0]}, {off}\ns_addc_u32 {dst[1]}, {ptr[1]}, 0')
    else:
        k(f's_mov_b32 {dst[0]}, {ptr[0]}\ns_mov_b32 {dst[1]}, {ptr[1]}')
    k(f's_mov_b32 {dst[2]}, {nbytes}\ns_mov_b32 {dst[3]}, 0x20000')

def kernargs(k):
    a = k.s(16, 4); b = k.s(16, 4); c = k.s(2)
    k(f's_load_dwordx16 {a}, s[0:1], 0\ns_load_dwordx16 {b}, s[0:1], 64\ns_load_dwordx2 {c}, s[0:1], 128')
    names = ['u', 'logA', 'Aim', 'Cr', 'Ci', 'logdt', 'Dskip', 'Bx']
    P = {n: a.sub(2 * i, 2) for i, n in enumerate(names)}
    names = ['w1', 'w2', 'w3', 'w4', 'c', 'wmod', 'out', 'dbg']
    P.update({n: b.sub(2 * i, 2) for i, n in enumerate(names)})
    P['ws'] = c
    P['_blocks'] = (a, b)
    return P

def code_prefetch(k, vm, lo, hi, nbytes, tid, tmp, sp, back=False):
    here = k.label('pc')
    k(f's_getpc_b64 {sp}\n{here}:')
    if back: k(f's_sub_u32 {sp[0]}, {sp[0]}, {here}-{lo}\ns_subb_u32 {sp[1]}, {sp[1]}, 0')
    else: k(f's_add_u32 {sp[0]}, {sp[0]}, {lo}-{here}\ns_addc_u32 {sp[1]}, {sp[1]}, 0')
    k(f'v_lshlrev_b32 {tmp[0]}, 7, {tid}')
    k(f'v_min_u32 {tmp[0]}, {hi}-{lo}-4, {tmp[0]}')
    n = (nbytes + 32767) // 32768
    for i in range(n):
        x = f'global_load_dword {tmp[1]}, {tmp[0]}, {sp}'
        vm.op(x) if vm else k(x)
        if i + 1 < n:
            k(f'v_add_u32 {tmp[0]}, 0x8000, {tmp[0]}\nv_min_u32 {tmp[0]}, {hi}-{lo}-4, {tmp[0]}')

def interleave(*streams):
    out = []; n = max(len(s) for s in streams)
    for i in range(n):
        for s in streams:
            if i < len(s): out.append(s[i])
    return out

class ColJob:
    def __init__(self, k, vm, lg, lane, s_w):
        self.k, self.vm, self.lg, self.lane, self.s_w = k, vm, lg, lane, s_w
        k_ = k
        self.row = k.v(); self.chunk = k.v(); t = k.v(2)
        k_(f'v_lshrrev_b32 {self.row}, 3, {lane}')
        k_(f'v_bfe_u32 {t[0]}, {lane}, 5, 1\ns_and_b32 vcc_lo, {s_w}, 1\nv_xor_b32 {t[0]}, vcc_lo, {t[0]}')
        k_(f'v_bfe_u32 {t[1]}, {lane}, 4, 1\nv_lshl_or_b32 {t[0]}, {t[0]}, 1, {t[1]}')
        k_(f'v_lshlrev_b32 {t[0]}, 1, {t[0]}\nv_and_b32 {t[1]}, 7, {lane}\nv_xor_b32 {t[0]}, {t[0]}, {t[1]}')
        k_(f'v_lshlrev_b32 {self.chunk}, 4, {t[0]}')
        t.release()
    def dma(self, R, s_src, s_stride, buf, nt=False, nks=18):
        k = self.k
        va = k.v(); so = k.s(); st = k.s(); sm = k.s()
        k(f'v_mad_u32_u24 {va}, {self.row}, {s_stride}, {self.chunk}')
        k(f's_lshl_b32 {st}, {s_stride}, 3\ns_mul_i32 {so}, {st}, {self.s_w}\ns_add_u32 {so}, {so}, {s_src}\ns_lshl_b32 {st}, {st}, 2')
        k(f's_lshl_b32 {sm}, {self.s_w}, 10')
        last = None
        for i in range(nks):
            k(f's_add_u32 m0, {sm}, {buf + i * 4096}')
            last = self.vm.op(f'buffer_load_dwordx4 {va}, {R}, {so} offen {"nt " if nt else ""}lds')
            if i < nks - 1: k(f's_add_u32 {so}, {so}, {st}')
        va.release(); so.release(); st.release(); sm.release()
        return last
    def read(self, buf, fr, **kw):
        return self.reads(self.addr(buf, **kw), fr)
    def addr(self, buf, w4order=False, s_il=None, s_w4=None):
        k, lane = self.k, self.lane
        ad = k.v(4); q = k.v(); r = k.v(); c = k.v(); un = k.v(); wi = k.v(); t = k.v(2)
        k(f'v_lshrrev_b32 {q}, 4, {lane}\nv_bfe_u32 {r}, {lane}, 2, 2\nv_and_b32 {c}, 3, {lane}')
        k(f'v_mov_b32 {un}, {self.s_w}\nv_lshlrev_b32 {wi}, 3, {c}')
        if s_il is not None:
            st = k.s()
            k(f's_and_b32 {st}, {self.s_w}, 2\nv_lshrrev_b32 {t[0]}, 1, {c}\nv_add_u32 {t[0]}, {st}, {t[0]}')
            k(f's_and_b32 {st}, {self.s_w}, 1\ns_lshl_b32 {st}, {st}, 3\nv_and_b32 {t[1]}, 1, {c}\nv_lshl_add_u32 {t[1]}, {t[1]}, 4, {st}')
            k(f's_cmp_lg_u32 {s_il}, 0\ns_cselect_b64 vcc, -1, 0')
            k(f'v_cndmask_b32 {un}, {un}, {t[0]}, vcc\nv_cndmask_b32 {wi}, {wi}, {t[1]}, vcc')
            st.release()
        for h in range(2):
            kl = ad[h]
            if w4order: k(f'v_lshl_add_u32 {kl}, {q}, 2, {r}\nv_add_u32 {kl}, {16 * h}, {kl}')
            else: k(f'v_lshl_add_u32 {kl}, {q}, 3, {r}\nv_add_u32 {kl}, {4 * h}, {kl}')
            if s_w4 is not None:
                k(f'v_lshl_add_u32 {t[0]}, {q}, 2, {r}\nv_add_u32 {t[0]}, {16 * h}, {t[0]}\ns_cmp_eq_u32 {s_w4}, 4\ns_cselect_b64 vcc, -1, 0\nv_cndmask_b32 {kl}, {kl}, {t[0]}, vcc')
            k(f'v_lshrrev_b32 {t[0]}, 1, {kl}\nv_xor_b32 {t[0]}, {t[0]}, {kl}\nv_bfe_u32 {t[0]}, {t[0]}, 2, 1')
            k(f'v_bfe_u32 {t[1]}, {kl}, 1, 1\nv_lshl_or_b32 {t[0]}, {t[0]}, 1, {t[1]}\nv_xor_b32 {t[0]}, {t[0]}, {un}')
            k(f'v_lshl_add_u32 {t[0]}, {t[0]}, 5, {wi}\nv_lshl_add_u32 {kl}, {kl}, 7, {t[0]}')
            k(f'v_add_u32 {kl}, {buf}, {kl}\nv_add_u32 {ad[2 + h]}, 0x9000, {kl}')
        for x in (q, r, c, un, wi, t): x.release()
        return ad
    def reads(self, ad, fr, nks=18):
        ids = []
        for s in range(nks):
            for h in range(2):
                a = ad[h] if s < 9 else ad[2 + h]
                i = self.lg.op(f'ds_read_b64_tr_b16 {fr.sub(4 * s + 2 * h, 2)}, {a} offset:{(s % 9) * 4096}')
            ids.append(i)
        ad.release()
        return ids
    def store(self, fr, ids, Rws, s_dst, s_step, s_rot=None, flags='sc1', nks=18):
        k = self.k
        va = k.v(); so = k.s(); sl = k.s()
        k(f'v_lshlrev_b32 {va}, 4, {self.lane}')
        if s_rot is not None: k(f's_mov_b32 {sl}, {s_rot}')
        else: k(f's_mov_b32 {so}, {s_dst}')
        for s in range(nks):
            if s_rot is not None:
                k(f's_mul_i32 {so}, {sl}, {s_step}\ns_add_u32 {so}, {so}, {s_dst}')
                k(f's_add_u32 {sl}, {sl}, 1\ns_cmp_eq_u32 {sl}, 18\ns_cselect_b32 {sl}, 0, {sl}')
            if ids: self.lg.wait(ids[s])
            self.vm.op(f'buffer_store_dwordx4 {fr.sub(4 * s, 4)}, {va}, {Rws}, {so} offen {flags}')
            if s_rot is None and s < nks - 1: k(f's_add_u32 {so}, {so}, {s_step}')
        va.release(); so.release(); sl.release()

class Stamper:
    def __init__(self, k, on, area, t=None):
        self.k = k; self.on = on; self.area = area
        if isinstance(on, tuple): self.t = None
        elif on: self.r = k.s(16, 1); self.t = t or k.s(2)
    def __call__(self, i):
        if isinstance(self.on, tuple):
            if self.on[:2] == (self.area, i):
                sk = self.k.label('noprobe')
                self.k(f's_sub_u32 s96, s2, {self.on[2]}\ns_cmp_ge_u32 s96, {self.on[3] - self.on[2]}\ns_cbranch_scc1 {sk}\ns_memrealtime s[98:99]\n{sk}:')
            if self.on[:2] == (self.area, i) or i != 0: self.k('s_waitcnt lgkmcnt(0)')
        elif self.on:
            self.k(f'{"s_memtime" if self.on == 2 else "s_memrealtime"} {self.t}\ns_waitcnt lgkmcnt(0)\ns_mov_b32 {self.r[i]}, {self.t[0]}')
    def init(self):
        if self.on and not isinstance(self.on, tuple):
            for i in range(16): self.k(f's_mov_b32 {self.r[i]}, 0')
    def flush(self):
        if not self.on: return
        k = self.k; t = self.t; done = k.label('stamped')
        k(f's_waitcnt vmcnt(0) lgkmcnt(0)\ns_mov_b64 exec, -1\nv_mov_b32 v1, 0\nv_cmp_eq_u32 vcc, 0, v0\ns_and_b64 exec, exec, vcc\ns_cbranch_execz {done}')
        k(f's_load_dwordx2 {t}, s[0:1], 128\ns_lshl_b32 vcc_lo, s2, 6\ns_add_u32 vcc_lo, vcc_lo, {O_DBG + 0x400000 + self.area * 256 * 64}\nv_mov_b32 v1, vcc_lo\ns_waitcnt lgkmcnt(0)')
        for i in range(16): k(f'v_mov_b32 v2, {self.r[i]}\nglobal_store_dword v1, v2, {t} offset:{4 * i}')
        k(f'{done}:')

def sigma_bf16(k, mean, var):
    k(f'v_mul_f32 {mean}, {fl(1 / 576)}, {mean}\nv_mul_f32 {var}, {fl(1 / 576)}, {var}')
    k(f'v_fma_f32 {var}, -{mean}, {mean}, {var}\nv_max_f32 {var}, 0, {var}')
    k(f'v_cvt_pk_bf16_f32 {var}, {var}, {var}\nv_and_b32 {var}, 0xffff0000, {var}\nv_add_f32 {var}, {fl(1e-5)}, {var}')
    k(f'v_cvt_pk_bf16_f32 {var}, {var}, {var}\nv_and_b32 {var}, 0xffff0000, {var}\nv_sqrt_f32 {var}, {var}')


LDS_BYTES = 163840
WSTR, HB, HSTR = 19072, 4 * 19072, 4608
FREE0 = HB + 4 * HSTR
W1_AT = [FREE0 + 6144 * i for i in range(11)] + [HB + 6144 * i for i in range(3)] + [WSTR * i + 12288 for i in range(4)]
W2_AT = [WSTR * (i // 2) + 6144 * (i % 2) for i in range(6)] + W1_AT[:12]
TABS = 3 * WSTR

class PairDma:
    def __init__(self, k, s_w, s_jm, base, R, l16, at):
        self.k, self.R, self.l16, self.at = k, R, l16, at
        self.src = k.s(); self.wh = k.s(); self.wl = k.s(); self.t = k.s()
        k(f's_mul_i32 {self.src}, {s_jm}, 110592\ns_mul_i32 {self.t}, {s_w}, 3072\ns_add_u32 {self.src}, {self.src}, {self.t}\ns_add_u32 {self.src}, {self.src}, {base}')
        k(f's_lshr_b32 {self.wh}, {s_w}, 1\ns_mul_i32 {self.wl}, {s_w}, 3072')
    def ops(self, P):
        c0, c1 = self.at[2 * P], self.at[2 * P + 1]
        ld = lambda i: f'buffer_load_dwordx4 {self.l16}, {self.R}, {self.src} offen offset:{1024 * i} sc1 lds'
        head = [f's_mul_i32 {self.t}, {self.wh}, {c1 - c0 - 6144}', f's_add_u32 {self.t}, {self.t}, {self.wl}', f's_add_u32 m0, {self.t}, {c0}'] if c1 - c0 != 6144 else [f's_add_u32 m0, {self.wl}, {c0}']
        return [head + [ld(0)], [ld(1)], [ld(2), f's_add_u32 {self.src}, {self.src}, 12288']]
    def release(self):
        for x in (self.src, self.wh, self.wl, self.t): x.release()

def retry(k, lp, body, cnt, END, limit, inline=False):
    slow = k.label('slow')
    if inline:
        k(f's_cbranch_scc1 {slow}')
        body() if callable(body) else k(body)
        k(f's_add_u32 {cnt}, {cnt}, 1\ns_cmp_lt_u32 {cnt}, {limit}\ns_cbranch_scc1 {lp}\ns_branch {END}\n{slow}:')
        return
    k(f's_cbranch_scc0 {slow}')
    with k.ool():
        k(f'{slow}:')
        body() if callable(body) else k(body)
        k(f's_add_u32 {cnt}, {cnt}, 1\ns_cmp_lt_u32 {cnt}, {limit}\ns_cbranch_scc1 {lp}\ns_branch {END}')
```

```python
import re

TRANS = ('v_exp_f32', 'v_log_f32', 'v_rcp_f32', 'v_rsq_f32', 'v_sqrt_f32', 'v_sin_f32', 'v_cos_f32', 'v_rcp_iflag_f32')
NOREG_S = ('s_waitcnt', 's_barrier', 's_nop', 's_sleep', 's_setprio', 's_endpgm', 's_branch', 's_cbranch')

def regs_of(tok):
    tok = tok.strip()
    if tok.startswith('-'): tok = tok[1:]
    m = re.fullmatch(r'abs\((.*)\)|\|(.*)\|', tok)
    if m: tok = m.group(1) or m.group(2)
    m = re.fullmatch(r'([vas])(\d+)', tok)
    if m: return [(m.group(1), int(m.group(2)))]
    m = re.fullmatch(r'([vas])\[(\d+):(\d+)\]', tok)
    if m: return [(m.group(1), i) for i in range(int(m.group(2)), int(m.group(3)) + 1)]
    if tok == 'vcc': return [('x', 'vcc')]
    if tok == 'exec': return [('x', 'exec')]
    if tok == 'm0': return [('x', 'm0')]
    return []

class Ins:
    def __init__(self, text):
        self.text = text
        self.label = text[:-1] if text.endswith(':') else None
        self.directive = text.startswith('.')
        self.w = []; self.r = []; self.cls = 'other'; self.op = ''
        if self.label or self.directive: return
        body = text.split(';')[0].strip()
        parts = body.split(None, 1)
        op = self.op = parts[0]
        rest = parts[1] if len(parts) > 1 else ''
        toks = [t.strip() for t in re.split(r',(?![^\[]*\])', rest)] if rest else []
        mods = ''
        if toks:
            last = toks[-1].split(None, 1)
            if len(last) > 1 and not toks[-1].startswith('vmcnt') and not toks[-1].startswith('lgkmcnt'):
                toks[-1] = last[0]; mods = last[1]
        self.mods = mods; self.toks = toks
        R = [regs_of(t) for t in toks]
        flat = lambda L: [x for l in L for x in l]
        self.srcA = self.srcC = []
        if op.startswith('v_mfma'):
            self.cls = 'mfma'; self.w = R[0]; self.r = flat(R[1:]); self.srcAB = R[1] + R[2]; self.srcC = R[3]
            self.passes = 8 if '32x32' in op else 4
        elif op.startswith('v_'):
            self.cls = 'valu'
            self.trans = any(op.startswith(t) for t in TRANS)
            self.dpp = ('dpp' in op) or any(k in mods for k in ('quad_perm', 'row_', 'wave_'))
            self.dot = op.startswith('v_dot')
            if 'permlane' in op and 'swap' in op:
                self.w = R[0] + R[1]; self.r = R[0] + R[1]
            elif op.startswith('v_add_co') or op.startswith('v_sub_co') or op.startswith('v_addc_co'):
                self.w = R[0] + R[1]; self.r = flat(R[2:])
            else:
                self.w = R[0]; self.r = flat(R[1:])
                if op.startswith(('v_fmac', 'v_dot2c', 'v_pk_fmac', 'v_writelane')) or self.dpp: self.r = self.r + R[0]
        elif op.startswith('ds_'):
            self.cls = 'ds'
            if op.startswith(('ds_read', 'ds_bpermute', 'ds_swizzle', 'ds_permute')):
                self.w = R[0]; self.r = flat(R[1:])
            else: self.r = flat(R)
        elif op.startswith(('buffer_', 'global_')):
            self.cls = 'vmem'
            self.lds = bool(re.search(r'\blds\b', mods))
            if op in ('buffer_inv', 'buffer_wbl2'): pass
            elif 'load' in op and not self.lds:
                self.w = R[0]; self.r = flat(R[1:])
            elif 'atomic' in op and 'sc0' in mods:
                self.w = R[0]; self.r = flat(R)
            else:
                self.r = flat(R)
                if self.lds: self.r = self.r + [('x', 'm0')]
            self.wide_data = []
            if 'store' in op and ('x4' in op or 'x3' in op):
                self.wide_data = R[0] if op.startswith('buffer_') else R[1]
        elif op.startswith(('s_load', 's_memtime', 's_memrealtime', 's_buffer_load')):
            self.cls = 'smem'; self.w = R[0]; self.r = flat(R[1:])
        elif op.startswith('s_'):
            self.cls = 'salu'
            if op.startswith(NOREG_S): pass
            elif op.startswith(('s_cmp', 's_bitcmp')): self.r = flat(R)
            elif 'saveexec' in op: self.w = R[0] + [('x', 'exec')]; self.r = flat(R[1:]) + [('x', 'exec')]
            else: self.w = R[0]; self.r = flat(R[1:])
    def states(self):
        if self.label or self.directive: return 0
        if self.op == 's_nop': return int(self.toks[0], 0) + 1
        return 1
    def target(self):
        if self.op.startswith(('s_branch', 's_cbranch')): return self.toks[0]
        return None

def need(p, c):
    n = 0
    W = set(p.w); cr = set(c.r); cw = set(c.w)
    isv = lambda x: x[0] in 'va'
    if p.cls == 'valu':
        vw = {x for x in W if isv(x)}; sw = W - vw
        if c.cls == 'mfma' and vw & cr: n = max(n, 2)
        if c.cls == 'valu':
            if p.trans and not c.trans and vw & cr: n = max(n, 1)
            if c.dpp and vw & cr: n = max(n, 2)
            if 'permlane' in c.op and vw & cr: n = max(n, 2)
            if c.op.startswith(('v_readlane', 'v_readfirstlane')) and vw & cr: n = max(n, 1)
            if sw & cr: n = max(n, 4 if c.op.startswith(('v_readlane', 'v_writelane')) else 2)
            if p.dot and vw & (cr | cw):
                same_c = c.op == p.op and not (vw & set(regs_of(c.toks[1]) + regs_of(c.toks[2])))
                if not same_c: n = max(n, 3)
            if ('op_sel' in p.mods and not p.op.startswith('v_pk_')) and vw & (cr | cw): n = max(n, 1)
        if p.dot and c.cls != 'valu' and vw & (cr | cw): n = max(n, 3)
        if c.cls == 'vmem' and sw & cr: n = max(n, 5)
        if c.cls in ('salu', 'smem') and sw & cr: n = max(n, 1)
    if p.cls == 'mfma':
        P = p.passes
        if c.cls == 'mfma':
            if W & set(c.srcAB): n = max(n, P + 4)
            if W & set(c.srcC):
                if not (list(p.w) == list(c.srcC) and p.passes == c.passes): n = max(n, P + 2)
            elif W & cw: n = max(n, P + 4)
        elif W & (cr | cw): n = max(n, P + 4)
        if c.cls == 'valu' and set(p.srcC) & cw: n = max(n, P - 1)
    if p.cls == 'salu' and ('x', 'm0') in W and c.cls in ('vmem', 'ds') and ('x', 'm0') in cr: n = max(n, 1)
    if p.cls == 'vmem' and p.wide_data and set(p.wide_data) & cw: n = max(n, 2 if c.cls == 'valu' else 1)
    return n

def insert_nops(lines):
    ins = [Ins(x) for x in lines]
    total = 0
    i = 0
    while i < len(ins):
        c = ins[i]
        if c.label or c.directive or c.cls == 'other': i += 1; continue
        worst = 0
        labels = None
        stack = [(i - 1, 0)]; seen = {}
        while stack:
            j, d = stack.pop()
            while j >= 0 and d < 20:
                if seen.get(j, 99) <= d: break
                seen[j] = d
                p = ins[j]
                if p.label:
                    if labels is None:
                        labels = {}
                        for t, x in enumerate(ins):
                            tg = x.target() if not (x.label or x.directive) else None
                            if tg: labels.setdefault(tg, []).append(t)
                    for t in labels.get(p.label, []): stack.append((t, d))
                    k = j - 1
                    while k >= 0 and (ins[k].directive): k -= 1
                    if k >= 0 and not ins[k].label and ins[k].op in ('s_branch', 's_endpgm'): break
                    j -= 1; continue
                if p.directive: j -= 1; continue
                worst = max(worst, need(p, c) - d)
                d += p.states(); j -= 1
        if worst > 0:
            ins.insert(i, Ins('s_nop %d' % (worst - 1))); total += worst; i += 1
        i += 1
    return [x.text for x in ins], total

def lint_waits(lines, name=''):
    ins = [Ins(x) for x in lines]
    pos = {x.label: i for i, x in enumerate(ins) if x.label}
    errs = []
    def run(seq, vm, lg):
        for i in seq:
            c = ins[i]
            if c.label or c.directive: continue
            if c.op == 's_waitcnt':
                m = re.search(r'vmcnt\((\d+)\)', c.text)
                if m:
                    n = int(m.group(1)); assert n <= 63, c.text
                    if len(vm) > n: del vm[:len(vm) - n]
                m = re.search(r'lgkmcnt\((\d+)\)', c.text)
                if m:
                    n = int(m.group(1)); assert n <= 15, c.text
                    if n == 0: lg.clear()
                    elif not any(k == 'smem' for k, _ in lg) and len(lg) > n: del lg[:len(lg) - n]
                continue
            touched = set(c.r) | set(c.w)
            d16 = c.cls in ('ds', 'vmem') and 'd16' in c.op
            for q in (vm, lg):
                for kind, dst in q:
                    hit = touched & dst
                    if hit and d16 and kind == c.cls and not (set(c.r) & dst): continue
                    if hit and kind == c.cls and not (set(c.r) & dst): continue
                    if hit: errs.append('%s: line %d "%s" touches pending %s %s' % (name, i, c.text, kind, sorted(hit)[:2]))
            if c.cls == 'vmem': vm.append(('vmem', set(c.w)))
            elif c.cls == 'ds': lg.append(('ds', set(c.w)))
            elif c.cls == 'smem': lg.append(('smem', set(c.w)))
    vm, lg = [], []
    i = 0
    for i, c in enumerate(ins):
        if c.label and i > 0 and not ins[i - 1].label and not ins[i - 1].directive and ins[i - 1].op in ('s_branch', 's_endpgm'):
            vm.clear(); lg.clear()
        run([i], vm, lg)
        tg = None if (c.label or c.directive) else c.target()
        if tg in pos and pos[tg] < i:
            stop = next((j for j in range(pos[tg], i) if not (ins[j].label or ins[j].directive) and ins[j].op in ('s_branch', 's_endpgm')), i)
            run(range(pos[tg], min(stop, pos[tg] + 600)), list(vm), list(lg))
    return sorted(set(errs))

class Pool:
    def __init__(self, kind, lo, hi):
        self.kind = kind; self.free = [True] * hi; self.lo = lo; self.hi = hi; self.top = lo
        for i in range(lo): self.free[i] = False
    def get(self, n=1, align=None):
        align = align or (1 if n == 1 else (2 if self.kind != 's' or n == 2 else 4))
        i = (self.lo + align - 1) // align * align
        while i + n <= self.hi:
            if all(self.free[i:i + n]):
                for j in range(i, i + n): self.free[j] = False
                self.top = max(self.top, i + n)
                return Reg(self.kind, i, n, self)
            i += align
        raise RuntimeError('out of %s registers (%d)' % (self.kind, n))

class Reg:
    def __init__(self, kind, i, n, pool=None):
        self.kind = kind; self.i = i; self.n = n; self.pool = pool
    def __str__(self):
        return '%s%d' % (self.kind, self.i) if self.n == 1 else '%s[%d:%d]' % (self.kind, self.i, self.i + self.n - 1)
    __repr__ = __str__
    def __format__(self, spec): return str(self)
    def __getitem__(self, k):
        if isinstance(k, slice):
            a = k.start or 0; b = self.n if k.stop is None else k.stop
            assert 0 <= a < b <= self.n, (a, b, self.n)
            return Reg(self.kind, self.i + a, b - a)
        assert 0 <= k < self.n, (k, self.n)
        return Reg(self.kind, self.i + k, 1)
    def sub(self, k, n): return self[k:k + n]
    def release(self):
        for j in range(self.i, self.i + self.n):
            assert not self.pool.free[j]
            self.pool.free[j] = True

class Kern:
    def __init__(self, name, nv=256, na=0):
        self.name = name; self.l = []; self._lab = 0
        self.V = Pool('v', 1, nv); self.A = Pool('a', 0, max(na, 1)); self.S = Pool('s', 3, 100)
        self.na = na; self.inj = None; self.deferred = []
    def __call__(self, s=''):
        for x in s.split('\n'):
            x = x.strip()
            if not x: continue
            self.l.append(x)
            if self.inj and x.startswith('v_'):
                self.injn += 1
                if self.injn % self.every == 0:
                    f = self.inj.pop(0); pend, self.inj = self.inj, None; f(); self.inj = pend
    def ool(self):
        k = self
        class C:
            def __enter__(c): c.save, c.inj = k.l, k.inj; k.l = []; k.inj = None
            def __exit__(c, *a): k.deferred += k.l; k.l, k.inj = c.save, c.inj
        return C()
    def inject(self, fns, every):
        self.inj = list(fns); self.every = every; self.injn = 0
    def flush_inject(self):
        pend, self.inj = self.inj or [], None
        for f in pend: f()
    def v(self, n=1, align=None): return self.V.get(n, align)
    def a(self, n=1, align=None): return self.A.get(n, align)
    def s(self, n=1, align=None): return self.S.get(n, align)
    def label(self, base='L'):
        self._lab += 1
        return '%s_%s_%d' % (base, self.name.replace('_kernel', ''), self._lab)
    def finish(self):
        self.l += self.deferred; self.deferred = []
        self.l, nn = insert_nops(self.l)
        errs = lint_waits(self.l, self.name)
        for e in errs[:30]: print('LINT', e)
        self.nops = nn
        return errs
    def body(self):
        o = ['.globl %s' % self.name, '.p2align 8', '.type %s,@function' % self.name, '%s:' % self.name]
        for x in self.l: o.append(x if x.endswith(':') else '    ' + x)
        return '\n'.join(o) + '\n'
    def counts(self):
        acc = max(4, (self.V.top + 3) // 4 * 4)
        nfv = acc + self.A.top if self.na else self.V.top
        return acc, nfv
    def desc(self, ka):
        acc, nfv = self.counts()
        o = ['.p2align 6', '.amdhsa_kernel %s' % self.name,
             '  .amdhsa_next_free_vgpr %d' % nfv, '  .amdhsa_next_free_sgpr 102',
             '  .amdhsa_accum_offset %d' % acc, '  .amdhsa_group_segment_fixed_size 0',
             '  .amdhsa_kernarg_size %d' % ka, '  .amdhsa_user_sgpr_count 2',
             '  .amdhsa_user_sgpr_kernarg_segment_ptr 1', '  .amdhsa_system_sgpr_workgroup_id_x 1',
             '  .amdhsa_float_denorm_mode_32 3', '.end_amdhsa_kernel']
        return '\n'.join(o) + '\n'

def module(kernels, ka, header=''):
    s = header + '.amdgcn_target "amdgcn-amd-amdhsa--gfx950"\n.text\n'
    for k in kernels: s += k.body()
    s += '.section .rodata,"a"\n'
    for k in kernels: s += k.desc(ka)
    return s
```

```python
import sys, re
from common import *
import k1, k2
KN = NAME + '_kernel'
def build(stamps=False, dump=False, opt=()):
    k = Kern(KN, nv=256, na=256)
    END, NEXT = 'all_done', 'phase2'
    k(f's_cmp_ge_u32 s2, 256\\ns_cbranch_scc1 exit\\nk1_top:'.replace('\\n', '\n'))
    if isinstance(stamps, tuple): k.S.free[96] = k.S.free[98] = k.S.free[99] = False; k('s_memrealtime s[98:99]')
    if 'rot' in opt: k('s_add_u32 s2, s2, 112'); k('s_and_b32 s2, s2, 255')
    S1 = Stamper(k, stamps, 1); S1.init(); S1(0)
    P = kernargs(k)
    lane = k.v(); s_w = k.s()
    pf = k.v(2); pfs = k.s(2)
    code_prefetch(k, None, 'k1_top', NEXT, 32768, 'v0', pf, pfs, back=True)
    k(f'v_lshrrev_b32 {lane}, 6, v0')
    k(f'v_readfirstlane_b32 {s_w}, {lane}')
    k(f'v_and_b32 {lane}, 63, v0')
    k('s_waitcnt lgkmcnt(0)'); k('s_cmp_ge_u32 s2, 112'); k('s_cbranch_scc1 k1_conv')
    st = lambda: (list(k.V.free), list(k.A.free), list(k.S.free))
    def rs(x): k.V.free, k.A.free, k.S.free = [list(y) for y in x]
    base = st()
    k1.service(k, P, lane, s_w, END, NEXT, S1, opt)
    rs(base); k('k1_conv:')
    k1.conv(k, P, lane, s_w, END, NEXT, dump, S1, opt)
    rs(base); k(f'{NEXT}:'); S1(15)
    a, b = P['_blocks']
    a.release(); pf.release(); pfs.release()
    for i in list(range(0, 6)) + list(range(8, 12)): k.S.free[b.i + i] = True
    S2 = Stamper(k, stamps, 0, t=S1.t if stamps else None); S2.init()
    k2.phase2(k, P, lane, s_w, END, S2, opt)
    k(f'{END}:')
    if isinstance(stamps, tuple):
        k('s_waitcnt vmcnt(0)'); S2(13)
        k('probe_w:'); k('s_memrealtime s[4:5]'); k('s_waitcnt lgkmcnt(0)'); k('s_sub_u32 s4, s4, s98'); k('s_cmp_lt_u32 s4, 6000'); k('s_cbranch_scc1 probe_w')
    elif stamps:
        k('s_waitcnt vmcnt(0)'); S2(13); S2.flush(); S1.flush()
    k('exit:'); k('s_endpgm')
    k.finish()
    ref = open('cdna_kernels/%s.s.ref' % NAME).read().split('\n')
    hdr = [l for l in ref if l.startswith(';') and '@launch' not in l and 'Override' not in l and 'grid=ceil' not in l]
    hdr = '\n'.join(hdr) + '\n; @launch grid=(256,1,1) block=(256,1,1) lds=%d\n' % k2.K2_LDS
    print('lines', len(k.l), 'nops', k.nops, 'regs', k.counts(), 'sgpr', k.S.top)
    return module([k], 136, hdr)
if __name__ == '__main__' and len(sys.argv) > 1 and sys.argv[1] == 'probe':
    for o in sys.argv[2:]:
        a_, i_, lo, hi = (o.split('_') + ['0', '256'])[:4]; open('probe_%s.s' % o, 'w').write(build(stamps=({'k1': 1, 'k2': 0}[a_], int(i_), int(lo), int(hi))))
elif __name__ == '__main__' and len(sys.argv) > 1:
    for o in sys.argv[1:]:
        for suf, stp in (('', 0), ('_dbg', 1), ('_clk', 2)): open('v_%s%s.s' % (o, suf), 'w').write(build(stamps=stp, opt=o.split('+')))
elif __name__ == '__main__':
    a_, b_, s = build(stamps=1), build(stamps=2), build()
    open('full_dbg.s', 'w').write(a_); open('full_clk.s', 'w').write(b_)
    open('full.s', 'w').write(s)
```

```python
from common import *

N_SIG = 64 + 45
BUF0, BUF1, SVEC = 0, 73728, 147456
K1_LDS = 147456 + 2560
SPIN_MAX = 40000

def vmaps():
    maps = [list(range(16))]
    for s in (1, 2, 3):
        m = list(maps[-1]); step = 1 << s
        new = [step * i for i in range(8, 16)]
        for j in range(16):
            if m[j] % step: m[j] = new.pop(0)
        assert not new
        maps.append(m)
    return maps

def service(k, P, lane, s_w, END, NEXT, SP, opt=()):
    vm, lg = trackers(k)
    Rws = k.s(4); Rdbg = k.s(4); RA = k.s(4); RB = k.s(4)
    srd(k, Rws, P['ws'], WS_USED); srd(k, Rdbg, P['dbg'], 256)
    z4 = k.v(4, 4); zero = z4.sub(0, 2); one = k.v(); l16 = k.v(); q = k.v(); m = k.v()
    fr = k.v(72, 4); sv = k.v(72, 4); acc = k.v(4, 4)
    sav = k.s(2); st = k.s(); cnt = k.s()
    jb = k.s(); modeB = k.s(); blkB = k.s(); srcB = k.s(); strB = k.s()
    L_mod, L_B, L_C = k.label('mod'), k.label('jobB'), k.label('jobC')
    k(f'v_lshrrev_b32 {q}, 4, {lane}\nv_and_b32 {m}, 15, {lane}\nv_lshlrev_b32 {l16}, 4, {lane}')
    cjs = {}
    def common():
        for i in range(4): k(f'v_mov_b32 {z4[i]}, 0')
        k(f'v_mov_b32 {one}, 1\ns_mov_b32 {cnt}, 0')
        k(f's_add_u32 {jb}, s2, 32')
        for lo, val in ((64, -64), (73, -58), (90, None), (91, -82), (97, None), (103, -7)):
            if val is None: k(f's_cmp_ge_u32 s2, {lo}\ns_cselect_b32 {jb}, 200, {jb}')
            else: k(f's_sub_u32 {blkB}, s2, {-val}\ns_cmp_ge_u32 s2, {lo}\ns_cselect_b32 {jb}, {blkB}, {jb}')
        srd(k, RB, P['wmod'], D * 3456 * 2)
        k(f's_mov_b32 {modeB}, 0\ns_cmp_ge_u32 {jb}, 9\ns_cselect_b32 {blkB}, 30, 45\ns_add_u32 {blkB}, {blkB}, {jb}\ns_mov_b32 {strB}, 6912')
        for mode, lo, ptr, nb, st_ in ((2, 15, 'w2', D * D * 2, 1152), (3, 24, 'w3', D * F * 2, 9216), (1, 96, 'w1', D * D * 2, 1152)):
            k(f's_sub_u32 {srcB}, {jb}, {lo}\ns_cmp_ge_u32 {jb}, {lo}')
            k(f's_cselect_b32 {blkB}, {srcB}, {blkB}\ns_cselect_b32 {modeB}, {mode}, {modeB}\ns_cselect_b32 {strB}, {st_}, {strB}')
            k(f's_cselect_b32 {RB[0]}, {P[ptr][0]}, {RB[0]}\ns_cselect_b32 {RB[1]}, {P[ptr][1]}, {RB[1]}\ns_cselect_b32 {RB[2]}, {nb}, {RB[2]}')
        k(f's_lshl_b32 {srcB}, {blkB}, 7')
    def signal(off, last):
        sk = k.label('notlast')
        k(f's_mov_b64 exec, 1\nv_mov_b32 {acc[0]}, 1\nbuffer_atomic_add {acc[0]}, {zero[0]}, {Rdbg}, {off} offen offset:64 sc0 sc1\ns_waitcnt vmcnt(0)')
        k(f'v_readfirstlane_b32 {st}, {acc[0]}\ns_cmp_lg_u32 {st}, {last}\ns_cbranch_scc1 {sk}')
        k(f'buffer_store_dword {one}, {zero[0]}, {Rdbg}, {off} offen offset:192 sc1\n{sk}:\ns_mov_b64 exec, -1')
    cj = ColJob(k, vm, lg, lane, s_w)
    L_w1 = k.label('w1')
    k(f's_cmp_ge_u32 s2, 103\ns_cbranch_scc1 {L_w1}\ns_cmp_ge_u32 s2, 64\ns_cbranch_scc1 {L_mod}')

    srd(k, RA, P['u'], L * D * 2)
    va = k.v(); vx = k.v(2); t = k.v(6); row = k.v(); s1 = k.s()
    k(f's_and_b32 {st}, {s_w}, 1\ns_lshl_b32 {s1}, s2, 1\ns_add_u32 {st}, {st}, {s1}\ns_lshl_b32 {st}, {st}, 4')
    k(f'v_and_b32 {t[0]}, 7, {m}\nv_lshrrev_b32 {t[2]}, 3, {m}\nv_lshl_add_u32 {t[5]}, {t[0]}, 1, {t[2]}\nv_add_u32 {row}, {st}, {t[5]}')
    k(f's_lshr_b32 {s1}, {s_w}, 1\ns_mul_i32 {st}, {s1}, 576\nv_mul_u32_u24 {va}, 1152, {row}\nv_lshl_add_u32 {va}, {q}, 4, {va}')
    for i in range(4): k(f'v_mov_b32 {z4[i]}, 0')
    k(f's_lshl_b32 {sav[0]}, s2, 8\ns_add_u32 {sav[0]}, {sav[0]}, {O_STATS}\ns_cmp_eq_u32 {s_w}, 0\ns_cselect_b32 {sav[0]}, {sav[0]}, {WS_USED}\ns_mov_b64 exec, 0xffff')
    k(f'buffer_store_dwordx4 {z4}, {l16}, {Rws}, {sav[0]} offen sc1\ns_mov_b64 exec, -1')
    k(f's_or_b32 {sav[0]}, s2, {s_w}\ns_cmp_eq_u32 {sav[0]}, 0\ns_mov_b32 {sav[0]}, {O_FW}\ns_cselect_b32 {sav[0]}, {sav[0]}, {WS_USED}')
    k(f'buffer_store_dwordx4 {z4}, {l16}, {Rws}, {sav[0]} offen sc1\nbuffer_store_dwordx4 {z4}, {l16}, {Rws}, {sav[0]} offen offset:1024 sc1\nbuffer_store_dwordx4 {z4}, {l16}, {Rws}, {sav[0]} offen offset:2048 sc1')
    ix = [vm.op(f'buffer_load_dwordx4 {fr.sub(4 * i, 4)}, {va}, {RA}, {st} offen offset:{64 * i}' + (' nt' if 'ntx' in opt else '')) for i in range(9)]
    pf = k.v(2); pfs = k.s(2)
    common()
    ones = sv.sub(40, 4); gacc = sv.sub(36, 4); arr = sv[44]; msk = [k.s(2) for _ in range(3)]
    sk = k.label('noarr')
    k(f's_cmp_lg_u32 {s_w}, 0\ns_cbranch_scc1 {sk}\ns_mov_b64 exec, 1\nv_mov_b32 {arr}, 1\ns_waitcnt vmcnt(9)\nbuffer_atomic_add {arr}, {zero[0]}, {Rdbg}, 0 offen offset:64 sc0 sc1\ns_mov_b64 exec, -1\n{sk}:')
    for i in range(4): k(f'v_mov_b32 {ones[i]}, 0x3f803f80')
    k(f'v_and_b32 {t[0]}, 3, {m}')
    for e in range(3): k(f'v_cmp_eq_u32 {msk[e]}, {e + 1}, {t[0]}')
    k(f's_lshl_b32 {st}, {s_w}, 8\ns_add_u32 {st}, {st}, {SVEC}\nv_lshl_add_u32 {t[3]}, {t[5]}, 2, {st}\nv_lshrrev_b32 {t[0]}, 2, {m}\nv_cmp_eq_u32 vcc, {t[0]}, {q}')
    k(f'v_add_u32 {t[4]}, 128, {t[3]}\nv_add_u32 {t[5]}, 192, {t[3]}\nv_cndmask_b32 {t[4]}, {t[5]}, {t[4]}, vcc')
    k(f'v_lshrrev_b32 {t[0]}, 3, {m}\nv_lshl_add_u32 {t[1]}, {q}, 1, {t[0]}\nv_lshlrev_b32 {vx[0]}, 14, {t[1]}\nv_sub_u32 {t[1]}, {row}, {t[0]}\nv_lshl_add_u32 {vx[0]}, {t[1]}, 3, {vx[0]}')
    k(f's_mul_i32 {s1}, {s1}, {9 * 131072}\ns_add_u32 {s1}, {s1}, {O_XT}\nv_cmp_eq_u32 vcc, 0, {t[0]}')
    dp = 'row_ror:8 row_mask:0xf bank_mask:0xf'
    for i in range(9):
        vm.wait(ix[i])
        if i == 0: SP(8)
        r_ = fr.sub(4 * i, 4); o = sv.sub(4 * i, 4)
        k(f'v_mfma_f32_16x16x32_bf16 {acc}, {ones}, {r_}, {"0" if i == 0 else acc}')
        k(f'v_cndmask_b32_dpp {o[0]}, {r_[2]}, {r_[0]}, vcc {dp}\nv_cndmask_b32_dpp {o[1]}, {r_[3]}, {r_[1]}, vcc {dp}\ns_not_b64 vcc, vcc')
        k(f'v_mfma_f32_16x16x32_bf16 {gacc}, {r_}, {r_}, {"0" if i == 0 else gacc}')
        k(f'v_cndmask_b32_dpp {o[2]}, {r_[0]}, {r_[2]}, vcc {dp}\nv_cndmask_b32_dpp {o[3]}, {r_[1]}, {r_[3]}, vcc {dp}\ns_not_b64 vcc, vcc')
        vm.op(f'buffer_store_dwordx4 {o}, {vx[0]}, {Rws}, {s1} offen sc1')
        if i < 8: k(f's_add_u32 {s1}, {s1}, 131072')
    SP(10)
    k(f'v_cndmask_b32 {t[0]}, {gacc[0]}, {gacc[1]}, {msk[0]}\nv_cndmask_b32 {t[0]}, {t[0]}, {gacc[2]}, {msk[1]}\nv_cndmask_b32 {t[0]}, {t[0]}, {gacc[3]}, {msk[2]}')
    k(f'ds_write_b32 {t[3]}, {acc[0]}\nds_write_b32 {t[4]}, {t[0]}\ns_waitcnt lgkmcnt(0)\ns_barrier')
    a, b = k.label('notw0'), k.label('sigd')
    k(f's_cmp_lg_u32 {s_w}, 0\ns_cbranch_scc1 {a}')
    k(f'v_and_b32 {t[1]}, 1, {q}\nv_lshlrev_b32 {t[1]}, 8, {t[1]}\nv_lshl_add_u32 {t[1]}, {m}, 2, {t[1]}\nv_add_u32 {t[1]}, {SVEC}, {t[1]}')
    k(f'ds_read2_b32 {t[2:4]}, {t[1]} offset0:0 offset1:32\nds_read2_b32 {t[4:6]}, {t[1]} offset0:128 offset1:160')
    sk = k.label('notlast')
    k(f's_waitcnt vmcnt(9)\nv_readfirstlane_b32 {st}, {arr}\ns_cmp_lg_u32 {st}, 102\ns_cbranch_scc1 {sk}')
    k(f's_mov_b64 exec, 1\nbuffer_store_dword {one}, {zero[0]}, {Rdbg}, 0 offen offset:192 sc1\ns_mov_b64 exec, -1\n{sk}:\ns_waitcnt lgkmcnt(0)')
    k(f'v_add_f32 {t[0]}, {t[2]}, {t[4]}\nv_add_f32 {t[2]}, {t[3]}, {t[5]}')
    sigma_bf16(k, t[0], t[2])
    k(f'v_cvt_pk_bf16_f32 {t[2]}, {t[0]}, {t[2]}\nv_mov_b32 {t[3]}, 1\nv_lshlrev_b32 {t[1]}, 3, {lane}\ns_lshl_b32 {st}, s2, 8\ns_add_u32 {st}, {st}, {O_STATS}')
    k(f'{a}:'); SP(14); k('s_waitcnt vmcnt(0)\ns_barrier'); vm.reset()
    k(f's_cmp_lg_u32 {s_w}, 0\ns_cbranch_scc1 {b}')
    k(f's_mov_b32 exec_hi, 0\nbuffer_store_dwordx2 {t[2:4]}, {t[1]}, {Rws}, {st} offen sc1\ns_mov_b64 exec, -1')
    k(f'{b}:'); SP(9)
    for x_ in msk: x_.release()
    code_prefetch(k, None, NEXT, 'code_end', 65536, 'v0', pf, pfs, back=True)
    cj.dma(RB, srcB, strB, BUF1, True)
    k(f's_lshl_b32 {st}, s2, 2\ns_add_u32 {st}, {st}, {s_w}\ns_lshl_b32 {st}, {st}, 10')
    k(f's_cmp_eq_u32 s2, {O_FW // 4096}\ns_cselect_b32 {st}, {WS_USED}, {st}\nbuffer_store_dwordx4 {z4}, {l16}, {Rws}, {st} offen sc1')
    sk = k.label('nopad')
    k(f's_cmp_lg_u32 {s_w}, 2\ns_cbranch_scc1 {sk}\ns_cmp_ge_u32 s2, 36\ns_cbranch_scc1 {sk}\ns_lshr_b32 {st}, s2, 1\ns_mul_i32 {st}, {st}, {GPL}\ns_bitcmp1_b32 s2, 0\ns_cselect_b32 {sav[0]}, {129 * 1024}, 0')
    k(f's_add_u32 {st}, {st}, {sav[0]}\ns_add_u32 {st}, {st}, {O_G}\nbuffer_store_dwordx4 {z4}, {l16}, {Rws}, {st} offen sc1\n{sk}:')
    k(f's_branch {L_B}')
    for x_ in (va, vx, t, row, s1): x_.release()

    def mod_tail(ids, s_blk, sig, gran=False):
        t = k.v(2); vg = k.v(); s1 = k.s()
        for s in range(18):
            if s % 2 == 0: lg.wait(ids[s + 1])
            k(f'v_mfma_f32_16x16x32_bf16 {acc}, {sv.sub(4 * s, 4)}, {fr.sub(4 * s, 4)}, {"0" if s == 0 else acc}')
        k(f's_lshl_b32 {s1}, {s_w}, 6\ns_add_u32 {s1}, {s1}, {SVEC + 2048}\nv_lshl_add_u32 {vg}, {m}, 2, {s1}')
        k(f'v_cvt_pk_bf16_f32 {t[0]}, {acc[0]}, {acc[0]}\nv_and_b32 {t[0]}, 0xffff0000, {t[0]}')
        k(f'v_add_f32 {t[1]}, 1.0, {t[0]}\nv_cvt_pk_bf16_f32 {t[1]}, {t[1]}, {t[1]}\nv_and_b32 {t[1]}, 0xffff0000, {t[1]}')
        k(f's_mov_b64 vcc, 0\ns_sub_u32 {s1}, {s_blk}, 9\ns_cmp_lt_u32 {s1}, 9\ns_cselect_b64 vcc, -1, vcc')
        k(f's_sub_u32 {s1}, {s_blk}, 36\ns_cmp_lt_u32 {s1}, 9\ns_cselect_b64 vcc, -1, vcc')
        k(f'v_cndmask_b32 {t[0]}, {t[0]}, {t[1]}, vcc\nds_write_b32 {vg}, {t[0]}\ns_waitcnt lgkmcnt(0)\ns_barrier'); lg.reset()
        a, b = k.label('notw0'), k.label('nob')
        k(f's_cmp_lg_u32 {s_w}, 0\ns_cbranch_scc1 {a}')
        k(f'v_lshlrev_b32 {vg}, 3, {lane}\nv_add_u32 {t[0]}, {SVEC + 2048}, {vg}\nds_read_b64 {t}, {t[0]}\ns_lshl_b32 {s1}, {s_blk}, 8\ns_add_u32 {s1}, {s1}, {O_MODF}')
        k(f's_mov_b32 exec_hi, 0')
        if gran:
            k(f's_lshl_b32 {sav[0]}, {s_blk}, 9\ns_add_u32 {sav[0]}, {sav[0]}, {O_MODG}\nv_mov_b32 {acc[1]}, 1\nv_mov_b32 {acc[3]}, 1\ns_waitcnt lgkmcnt(0)')
            k(f'v_mov_b32 {acc[0]}, {t[0]}\nv_mov_b32 {acc[2]}, {t[1]}\nbuffer_store_dwordx4 {acc}, {l16}, {Rws}, {sav[0]} offen sc1')
        k(f's_waitcnt lgkmcnt(0)\nbuffer_store_dwordx2 {t}, {vg}, {Rws}, {s1} offen sc1')
        if sig:
            k(f's_sub_u32 {s1}, {s_blk}, 27\ns_cmp_ge_u32 {s1}, 18\ns_cbranch_scc1 {a}')
            k(f'v_cvt_pk_bf16_f32 {acc[0]}, {t[0]}, {t[1]}\nv_lshrrev_b32 {vg}, 1, {vg}\ns_lshl_b32 {s1}, {s1}, 7\ns_add_u32 {s1}, {s1}, {O_MODB}')
            k(f'buffer_store_dword {acc[0]}, {vg}, {Rws}, {s1} offen sc1\ns_waitcnt vmcnt(0)')
            signal(12, 17)
        k(f'{a}:\ns_mov_b64 exec, -1')
        t.release(); vg.release(); s1.release()

    k(f'{L_mod}:')
    vm, lg = trackers(k); cj.vm, cj.lg = vm, lg
    blkA = k.s(); srcA = k.s(); strA = k.s(); Rc = k.s(4)
    srd(k, RA, P['wmod'], D * 3456 * 2); srd(k, Rc, P['c'], D * 2)
    k(f's_sub_u32 {blkA}, s2, 64')
    k(f's_lshl_b32 {srcA}, {blkA}, 7\ns_mov_b32 {strA}, 6912')
    t = k.v(8); vg = k.v()
    k(f'v_lshlrev_b32 {vg}, 3, v0')
    for i in range(4): k(f'v_mov_b32 {z4[i]}, 0')
    k(f's_lshl_b32 {st}, {blkA}, 9\ns_add_u32 {st}, {st}, {O_MODG}\ns_cmp_eq_u32 {s_w}, 0\ns_cselect_b32 {st}, {st}, {WS_USED}\ns_mov_b32 exec_hi, 0')
    icl = vm.op(f'buffer_store_dwordx4 {z4}, {l16}, {Rws}, {st} offen sc1')
    k('s_mov_b64 exec, -1')
    ic = vm.op(f'buffer_load_dwordx2 {t[0:2]}, {vg}, {Rc}, 0 offen')
    ia = cj.dma(RA, srcA, strA, BUF0, 'ntm' in opt)
    common()
    vm.wait(ic)
    sk = k.label('noarr')
    k(f's_cmp_lg_u32 {s_w}, 0\ns_cbranch_scc1 {sk}\ns_mov_b64 exec, 1\nv_mov_b32 {acc[1]}, 1\nbuffer_atomic_add {acc[1]}, {zero[0]}, {Rdbg}, 0 offen offset:64 sc0 sc1\ns_mov_b64 exec, -1\n{sk}:')
    k(f'v_lshlrev_b32 {t[2]}, 16, {t[0]}\nv_and_b32 {t[3]}, 0xffff0000, {t[0]}\nv_lshlrev_b32 {t[4]}, 16, {t[1]}\nv_and_b32 {t[5]}, 0xffff0000, {t[1]}')
    e = k.v(4)
    for i in range(4): k(f'v_mul_f32 {e[i]}, {fl(-LOG2E)}, {t[2 + i]}')
    for i in range(4): k(f'v_exp_f32 {e[i]}, {e[i]}')
    for i in range(4): k(f'v_add_f32 {e[i]}, 1.0, {e[i]}')
    for i in range(4): k(f'v_rcp_f32 {e[i]}, {e[i]}')
    for i in range(4): k(f'v_mul_f32 {e[i]}, {e[i]}, {t[2 + i]}')
    k(f'v_cvt_pk_bf16_f32 {t[0]}, {e[0]}, {e[1]}\nv_cvt_pk_bf16_f32 {t[1]}, {e[2]}, {e[3]}\nv_add_u32 {vg}, {SVEC}, {vg}')
    k(f'ds_write_b64 {vg}, {t[0:2]}\nv_lshlrev_b32 {vg}, 4, {q}\nv_add_u32 {vg}, {SVEC}, {vg}\ns_waitcnt lgkmcnt(0)\ns_barrier')
    for s in range(18): lg.op(f'ds_read_b128 {sv.sub(4 * s, 4)}, {vg} offset:{64 * s}')
    ad = cj.addr(BUF0)
    sk = k.label('notlast')
    k(f's_waitcnt vmcnt(0) lgkmcnt(0)\ns_cmp_lg_u32 {s_w}, 0\ns_cbranch_scc1 {sk}\nv_readfirstlane_b32 {st}, {acc[1]}\ns_cmp_lg_u32 {st}, 102\ns_cbranch_scc1 {sk}')
    k(f's_mov_b64 exec, 1\nbuffer_store_dword {one}, {zero[0]}, {Rdbg}, 0 offen offset:192 sc1\ns_mov_b64 exec, -1\n{sk}:\ns_barrier'); SP(10); vm.reset(); lg.reset()
    ids = cj.reads(ad, fr)
    sk = k.label('lateB')
    k(f's_cmp_lt_u32 {blkA}, 27\ns_cbranch_scc1 {sk}\ns_cmp_ge_u32 {jb}, 200\ns_cbranch_scc1 {sk}')
    cj.dma(RB, srcB, strB, BUF1)
    k(f'{sk}:')
    mod_tail(ids, blkA, True, True); SP(11)
    k(f's_cmp_ge_u32 {jb}, 200\ns_cbranch_scc1 {L_C}\ns_cmp_ge_u32 {blkA}, 27\ns_cbranch_scc1 {sk}_w')
    cj.dma(RB, srcB, strB, BUF1, True)
    k(f'{sk}_w:\ns_waitcnt vmcnt(0)\ns_branch {L_B}')
    e.release(); t.release(); vg.release()

    k(f'{L_w1}:')
    common()
    cj.dma(RB, srcB, strB, BUF1, 'nt1' in opt)
    k('s_waitcnt vmcnt(0)')

    k(f'{L_B}:')
    vm, lg = trackers(k); cj.vm, cj.lg = vm, lg
    k(f's_waitcnt vmcnt(1) lgkmcnt(0)\ns_barrier')
    SP(12)
    il = k.s(); k(f's_sub_u32 {il}, {modeB}, 1\ns_cmp_lt_u32 {il}, 2\ns_cselect_b32 {il}, 1, 0')
    ids = cj.read(BUF1, fr, s_il=il)
    notmod, nocenter = k.label('notmod'), k.label('nocenter')
    k(f's_cmp_lg_u32 {modeB}, 0\ns_cbranch_scc1 {notmod}')
    mod_tail(ids, blkB, True)
    k(f's_branch {L_C}\n{notmod}:')
    k('s_waitcnt lgkmcnt(0)'); lg.reset()
    T = k.s(); j = k.s(); dst = k.s(); step = k.s(); rot = k.s()
    k(f's_lshl_b32 {T}, {blkB}, 2\ns_add_u32 {T}, {T}, {s_w}')
    k(f's_mul_hi_u32 {j}, {T}, {(1 << 32) // 6 + 1}\ns_mul_i32 {dst}, {j}, 6\ns_sub_u32 {dst}, {T}, {dst}\ns_lshl_b32 {dst}, {dst}, 10')
    k(f's_mul_i32 {step}, {j}, 110592\ns_add_u32 {dst}, {dst}, {step}')
    k(f's_mul_i32 {rot}, {j}, 3\ns_sub_u32 {rot}, 18, {rot}\ns_cmp_eq_u32 {rot}, 18\ns_cselect_b32 {rot}, 0, {rot}')
    k(f's_cmp_eq_u32 {modeB}, 1\ns_cselect_b32 {rot}, {rot}, 0\ns_cselect_b32 {step}, 0, {O_W2F - O_W1F}\ns_add_u32 {dst}, {dst}, {step}\ns_add_u32 {dst}, {dst}, {O_W1F}')
    k(f's_mul_i32 {j}, {T}, 18432\ns_add_u32 {j}, {j}, {O_W3F}')
    k(f's_cmp_ge_u32 {modeB}, 3\ns_cselect_b32 {dst}, {j}, {dst}\ns_cselect_b32 {step}, 1, 6\ns_lshl_b32 {step}, {step}, 10')
    L_st = k.label('stored')
    k(f's_bitcmp0_b32 {modeB}, 0\ns_cbranch_scc1 {nocenter}')
    ones = sv.sub(0, 4); t = k.v(4); gof = k.v(4, 4)
    go2_ld = f'buffer_load_dwordx4 {gof}, {zero[0]}, {Rdbg}, 0 offen offset:192 sc1'
    k(go2_ld)
    for i in range(4): k(f'v_mov_b32 {ones[i]}, 0x3f803f80')
    for s in range(18): k(f'v_mfma_f32_16x16x32_bf16 {acc}, {ones}, {fr.sub(4 * s, 4)}, {"0" if s == 0 else acc}')
    nm = sv.sub(4, 2)
    k(f'v_mul_f32 {nm[0]}, {fl(-1 / 576)}, {acc[0]}')
    k(f's_mov_b32 {st}, 0x3f80\ns_mov_b32 {sav[0]}, 0x3f800000')
    tc = sv.sub(8, 16)
    def put(i):
        k(f's_mul_i32 {j}, {rot}, {step}\ns_add_u32 {j}, {j}, {dst}\ns_add_u32 {rot}, {rot}, 1\ns_cmp_eq_u32 {rot}, 18\ns_cselect_b32 {rot}, 0, {rot}')
        k(f'buffer_store_dwordx4 {fr.sub(i, 4)}, {l16}, {Rws}, {j} offen sc1')
    for i in range(0, 72, 4):
        u = tc.sub(8 * ((i >> 2) & 1), 8)
        for e in range(4): k(f'v_dot2_f32_bf16 {u[2 * e]}, {fr[i + e]}, {st}, {nm[0]}\nv_dot2_f32_bf16 {u[2 * e + 1]}, {fr[i + e]}, {sav[0]}, {nm[0]}')
        if i:
            p = tc.sub(8 * (1 - ((i >> 2) & 1)), 8)
            for e in range(4): k(f'v_cvt_pk_bf16_f32 {fr[i - 4 + e]}, {p[2 * e]}, {p[2 * e + 1]}')
            put(i - 4)
    for e in range(4): k(f'v_cvt_pk_bf16_f32 {fr[68 + e]}, {u[2 * e]}, {u[2 * e + 1]}')
    put(68)
    k(f's_cmp_lg_u32 {modeB}, 1\ns_cbranch_scc1 {L_C}')
    sk = k.label('nosig')
    k(f's_waitcnt vmcnt(0)\ns_barrier\ns_cmp_lg_u32 {s_w}, 0\ns_cbranch_scc1 {sk}')
    signal(8, 8)
    k(f'{sk}:'); SP(9)
    lp, ok = k.label('pollm'), k.label('gotm')
    k(f'{lp}:\ns_waitcnt vmcnt(0)\nv_and_b32 {gof[3]}, {gof[3]}, {gof[0]}\nv_readfirstlane_b32 {st}, {gof[3]}\ns_cmp_ge_u32 {st}, 1\ns_cbranch_scc1 {ok}')
    k(f's_sleep 2\n{go2_ld}\ns_add_u32 {cnt}, {cnt}, 1\ns_cmp_lt_u32 {cnt}, {SPIN_MAX}\ns_cbranch_scc1 {lp}\ns_branch {END}\n{ok}:'); vm.reset(); SP(11)
    k(f'v_and_b32 {t[0]}, 1, {m}\nv_xor_b32 {t[0]}, 1, {t[0]}\nv_mul_u32_u24 {t[0]}, 1152, {t[0]}\nv_lshl_add_u32 {t[0]}, {q}, 4, {t[0]}\ns_mov_b32 {st}, {O_MODB}')
    ids = [vm.op(f'buffer_load_dwordx4 {sv.sub(4 * s, 4)}, {t[0]}, {Rws}, {st} offen offset:{64 * s} sc1') for s in range(18)]
    k(f's_lshr_b32 {j}, {s_w}, 1\ns_lshl_b32 {j}, {j}, 7\ns_and_b32 {st}, {s_w}, 1\ns_lshl_b32 {st}, {st}, 4\ns_add_u32 {j}, {j}, {st}\ns_add_u32 {j}, {j}, {SVEC}')
    k(f'v_lshrrev_b32 {t[1]}, 2, {m}\nv_and_b32 {t[2]}, 3, {m}\nv_lshlrev_b32 {t[2]}, 2, {t[2]}\nv_lshl_add_u32 {t[1]}, {t[1]}, 5, {t[2]}\nv_add_u32 {t[1]}, {j}, {t[1]}')
    for s in range(18):
        vm.wait(ids[s])
        k(f'v_mfma_f32_16x16x32_bf16 {acc}, {sv.sub(4 * s, 4)}, {fr.sub(4 * s, 4)}, {"0" if s == 0 else acc}')
    k(f'ds_write2st64_b32 {t[1]}, {acc[0]}, {acc[1]} offset0:0 offset1:1\ns_waitcnt lgkmcnt(0)\ns_barrier\ns_cmp_lg_u32 {s_w}, 0\ns_cbranch_scc1 {L_st}')
    k(f'v_add_u32 {t[0]}, {SVEC}, {l16}\nds_read_b128 {acc}, {t[0]}\nv_mul_u32_u24 {t[1]}, 2304, {q}\nv_lshl_add_u32 {t[1]}, {m}, 4, {t[1]}')
    k(f's_lshl_b32 {j}, {blkB}, 8\ns_add_u32 {j}, {j}, {O_MODF + 6 * 2304}\ns_mov_b32 exec_hi, 0\ns_waitcnt lgkmcnt(0)')
    k(f'buffer_store_dwordx4 {acc}, {t[1]}, {Rws}, {j} offen sc1\ns_mov_b32 {j}, {O_FU}\ns_mov_b64 exec, 1\ns_waitcnt vmcnt(0)\nbuffer_atomic_add {one}, {zero[0]}, {Rws}, {j} offen sc1\ns_mov_b64 exec, -1')
    k(f'{L_st}:\ns_branch {L_C}')
    k(f'{nocenter}:'); vm.reset()
    cj.store(fr, None, Rws, dst, step, s_rot=rot)
    k(f'{L_C}:'); SP(13)
    k(f's_branch {NEXT}')

TAB, KD = 0, 17410

def conv(k, P, lane, s_w, END, NEXT, dump, SP, opt=()):
    vm, lg = trackers(k)
    cidx = k.s(); s_d = k.s(); st = k.s(); st2 = k.s(); sav = k.s(2)
    k(f's_and_b32 {cidx}, s2, 7\ns_mul_i32 {cidx}, {cidx}, 18\ns_lshr_b32 {st}, s2, 3\ns_add_u32 {cidx}, {cidx}, {st}\ns_sub_u32 {cidx}, {cidx}, 14')
    k(f's_lshl_b32 {s_d}, {cidx}, 2\ns_add_u32 {s_d}, {s_d}, {s_w}\ns_lshl_b32 {st}, {cidx}, 3')
    sdt = k.s(2); sD = k.s(2)
    k(f's_load_dwordx2 {sdt}, {P["logdt"]}, {st}\ns_load_dwordx2 {sD}, {P["Dskip"]}, {st}')
    R = k.s(4); Rws = k.s(4); Rdbg = k.s(4)
    par = k.v(4); t = k.v(8); x = k.v(16)
    k(f'v_lshlrev_b32 {t[0]}, 2, {lane}\ns_lshl_b32 {st2}, {s_d}, 8')
    for i, n in enumerate(('logA', 'Aim', 'Cr', 'Ci')):
        srd(k, R, P[n], D * 128 * 2)
        ipar = vm.op(f'buffer_load_dword {par[i]}, {t[0]}, {R}, {st2} offen' + (' nt' if 'ntp' in opt else ''))
    srd(k, Rws, P['ws'], WS_USED); srd(k, Rdbg, P['dbg'], 256)
    wb = k.s(); k(f's_mul_i32 {wb}, {s_w}, {WSTR}')
    q = k.v(); m = k.v(); ag = k.v(); am = k.v(); a4 = k.v(); fl_v = k.v(2)
    k(f'v_lshrrev_b32 {q}, 4, {lane}\nv_and_b32 {m}, 15, {lane}')
    ga = k.v(32); cst = k.v()
    k(f's_add_u32 {st2}, {wb}, {KD - 2 * (134 * 128 - 128)}\nv_mov_b32 {cst}, {st2}')
    k(f'v_lshlrev_b32 {t[2]}, 3, {lane}\nv_cvt_f32_u32 {t[2]}, {t[2]}')
    for c in range(2):
        for e in range(0, 8, 2):
            k(f'v_add_f32 {t[4]}, {fl(512 * c + e)}, {t[2]}\nv_add_f32 {t[5]}, {fl(512 * c + e + 1)}, {t[2]}\nv_cvt_pk_bf16_f32 {t[4]}, {t[4]}, {t[5]}')
            k(f'v_mad_u32_u16 {ga[8 * c + e]}, {t[4]}, 2, {cst}\nv_mad_u32_u16 {ga[8 * c + e + 1]}, {t[4]}, 2, {cst} op_sel:[1,0,0,0]')
    k(f's_add_u32 {st2}, {wb}, {KD}\nv_lshl_add_u32 {t[4]}, {lane}, 4, {st2}\nv_cmp_gt_u32 vcc, 16, {lane}')
    for e in range(8): k(f'v_add_u32 {t[5]}, {2 * e}, {t[4]}\nv_cndmask_b32 {ga[e]}, {ga[e]}, {t[5]}, vcc')
    VM = vmaps()
    kda = k.v(4)
    k(f'v_lshlrev_b32 {t[2]}, 2, {m}')
    for s in range(4):
        lut = sum((VM[s][j] >> s) << (4 * j) for j in range(16))
        base = 0 if s == 0 else 128 + 128 * s
        k(f's_mov_b32 {sav[0]}, {lut & 0xffffffff}\ns_mov_b32 {sav[1]}, {lut >> 32}\nv_lshrrev_b64 {t[4:6]}, {t[2]}, {sav}\nv_and_b32 {t[4]}, 15, {t[4]}')
        k(f'v_lshl_add_u32 {t[4]}, {q}, 6, {t[4]}\ns_add_u32 {st2}, {wb}, {KD + 2 * base}\nv_lshl_add_u32 {kda[s]}, {t[4]}, 1, {st2}')
    cst.release()
    atw = k.v(); atr = k.v()
    k(f'v_lshl_add_u32 {atw}, {lane}, 3, {wb}\nv_mul_u32_u24 {atr}, 544, {m}\nv_lshl_add_u32 {atr}, {q}, 4, {atr}\nv_add_u32 {atr}, {wb}, {atr}')
    z4 = k.v(4)
    for i in range(4): k(f'v_mov_b32 {z4[i]}, 0')
    k(f'v_lshrrev_b32 {t[4]}, 5, v0\nv_mul_u32_u24 {t[4]}, {HSTR}, {t[4]}\nv_and_b32 {t[5]}, 31, v0\nv_lshl_add_u32 {t[4]}, {t[5]}, 4, {t[4]}\nv_add_u32 {t[4]}, {HB}, {t[4]}')
    k(f'v_cmp_gt_u32 vcc, 128, v0\ns_and_saveexec_b64 {sav}, vcc\nds_write_b128 {t[4]}, {z4}\ns_mov_b64 exec, {sav}')
    k('s_waitcnt lgkmcnt(0)')
    k(f's_lshl_b32 {st2}, {s_w}, 4\ns_lshr_b64 {sdt}, {sdt}, {st2}\ns_lshl_b32 {sdt[0]}, {sdt[0]}, 16')
    dt = k.v(); ks = k.v()
    k(f'v_mov_b32 {dt}, {fl(LOG2E)}\nv_mul_f32 {dt}, {sdt[0]}, {dt}\nv_exp_f32 {dt}, {dt}\nv_cvt_pk_bf16_f32 {dt}, {dt}, {dt}\nv_and_b32 {dt}, 0xffff0000, {dt}')
    SP(1); vm.wait(ipar); SP(2)
    pr = lambda: [k.v(2), k.v(2)]
    w1, w16, U = pr(), pr(), pr()
    er = k.v(2); rev = k.v(2)
    un = lambda d, s_, hi: f'v_and_b32 {d}, 0xffff0000, {s_}' if hi else f'v_lshlrev_b32 {d}, 16, {s_}'
    for md in range(2):
        k(un(er[md], par[0], md)); k(un(rev[md], par[1], md)); k(un(U[0][md], par[2], md)); k(un(U[1][md], par[3], md))
    for md in range(2): k(f'v_mul_f32 {er[md]}, {fl(LOG2E)}, {er[md]}')
    for md in range(2): k(f'v_exp_f32 {er[md]}, {er[md]}')
    k(f'v_max3_f32 {t[0]}, |{U[0][0]}|, |{U[0][1]}|, |{U[1][0]}|\nv_max_f32 {t[0]}, |{U[1][1]}|, {t[0]}')
    k(f'v_cvt_pk_bf16_f32 {t[1]}, {er[0]}, {er[1]}')
    for mm in ('quad_perm:[1,0,3,2]', 'quad_perm:[2,3,0,1]', 'row_half_mirror', 'row_mirror'):
        k(f'v_max_f32_dpp {t[0]}, {t[0]}, {t[0]} {mm} row_mask:0xf bank_mask:0xf')
    for md in range(2):
        k(un(er[md], t[1], md))
        k(f'v_mul_f32 {er[md]}, {er[md]}, {dt}\nv_mul_f32 {rev[md]}, {rev[md]}, {dt}')
        k(f'v_mul_f32 {er[md]}, {fl(-LOG2E)}, {er[md]}\nv_mul_f32 {rev[md]}, 0.15915494, {rev[md]}')
    k(f'v_readlane_b32 {st2}, {t[0]}, 0\nv_readlane_b32 {sav[0]}, {t[0]}, 16\nv_readlane_b32 {sav[1]}, {t[0]}, 32\nv_readlane_b32 {st}, {t[0]}, 48')
    k(f's_max_u32 {st2}, {st2}, {sav[0]}\ns_max_u32 {st}, {st}, {sav[1]}\ns_max_u32 {st2}, {st2}, {st}')
    for w_, mul in ((w1, None), (w16, '16.0')):
        for md in range(2):
            a, b = t[2 + md], t[4 + md]
            if mul: k(f'v_mul_f32 {a}, {fl(16.)}, {er[md]}\nv_mul_f32 {b}, {fl(16.)}, {rev[md]}\nv_fract_f32 {b}, {b}\nv_exp_f32 {a}, {a}')
            else: k(f'v_fract_f32 {b}, {rev[md]}\nv_exp_f32 {a}, {er[md]}')
            k(f'v_cos_f32 {w_[0][md]}, {b}\nv_sin_f32 {w_[1][md]}, {b}')
        for c in range(2): k(f'v_pk_mul_f32 {w_[c]}, {w_[c]}, {t[2:4]}')
    k(f'v_frexp_exp_i32_f32 {t[0]}, {st2}\nv_sub_u32 {t[1]}, 8, {t[0]}\nv_add_u32 {t[0]}, -7, {t[0]}\nv_ldexp_f32 {ks}, {dt}, {t[0]}')
    for md in range(2):
        for c in range(2): k(f'v_ldexp_f32 {U[c][md]}, {U[c][md]}, {t[1]}')
    er.release(); rev.release(); dt.release()
    tm = [k.v(2) for _ in range(4)]
    def cmul(d, z, s_, ta, tb):
        return [f'v_pk_mul_f32 {ta}, {z[1]}, {s_[1]}', f'v_pk_mul_f32 {tb}, {z[0]}, {s_[1]}',
                f'v_pk_fma_f32 {d[0]}, {z[0]}, {s_[0]}, {ta} neg_lo:[0,0,1] neg_hi:[0,0,1]', f'v_pk_fma_f32 {d[1]}, {z[1]}, {s_[0]}, {tb}']
    w32, w64, w128, w2, w4, w8, V = pr(), pr(), pr(), pr(), pr(), pr(), pr()
    for d_, s_ in ((w32, w16), (w64, w32), (w128, w64)):
        for x_ in cmul(d_, s_, s_, tm[0], tm[1]): k(x_)
    pv = [k.v(2), k.v(2)]; pu = [k.v(2), k.v(2)]
    fa = k.v(32, 4); fb = k.v(32, 4); kacc = k.v(16, 4)
    state = {'V': None, 'nv': 0, 'nu': 0}
    def v_entry(val, slot):
        out = []
        pk = pv[state['nv'] & 1]; state['nv'] += 1
        if val == 0:
            out += [f'v_mov_b32 {pk[0]}, 0x3c00', f'v_mov_b32 {pk[1]}, 0x3c00']
        else:
            if val == 1: cur = w1
            else:
                step = w1 if val <= 16 else w2 if val <= 32 else w4 if val <= 64 else w8
                cur = {2: w2, 4: w4, 8: w8}.get(val, V)
                out += cmul(cur, state['V'], step, tm[0], tm[1])
            state['V'] = cur
            out += [f'v_cvt_pk_f16_f32 {pk[md]}, {cur[0][md]}, {cur[1][md]}' for md in range(2)]
        out.append(('ds', f'ds_write_b64 {atw}, {pk} offset:{TAB + slot * 544}'))
        return out
    def u_entry(val, row):
        out = []
        pk = pu[state['nu'] & 1]; state['nu'] += 1
        if val:
            step = w16 if val <= 256 else w32 if val <= 512 else w64 if val <= 1024 else w128
            out += cmul(U, U, step, tm[2], tm[3])
        out += [f'v_cvt_pk_f16_f32 {pk[md]}, {U[0][md]}, -{U[1][md]}' for md in range(2)]
        out.append(('ds', f'ds_write_b64 {atw}, {pk} offset:{TAB + (16 + row) * 544}'))
        return out
    def put(x_):
        if isinstance(x_, tuple): return lg.op(x_[1])
        k(x_)
    pend = []
    flag_ld = f'buffer_load_dwordx2 {fl_v}, {z4[0]}, {Rdbg}, 0 offen offset:192 sc1'
    ifl = None
    for s in range(4):
        vs = sorted((VM[s][j], j) for j in range(16) if s == 0 or VM[s][j] != VM[s - 1][j])
        us = [16 * u for u in range(16)] if s == 0 else [(128 << s) + (16 << s) * u for u in range(9 if s == 3 else 8)]
        sv_ = [x_ for val, j in vs for x_ in v_entry(val, j)]
        su_ = [x_ for r_, val in enumerate(us) for x_ in u_entry(val, r_)]
        stream = interleave(sv_, su_)
        for n_, x_ in enumerate(stream):
            put(x_)
            if n_ == 27:
                while pend:
                    idr, mf = pend.pop(0); lg.wait(idr); k(mf)
            if s == 3 and n_ == 40: k(flag_ld)
        assert not pend
        for kk in range(8):
            lg.op(f'ds_read_b128 {fa.sub(4 * kk, 4)}, {atr} offset:{TAB + 16 * 544 + 64 * kk}')
            i_ = lg.op(f'ds_read_b128 {fb.sub(4 * kk, 4)}, {atr} offset:{TAB + 64 * kk}')
            ac = kacc.sub(4 * s, 4)
            pend.append((i_, f'v_mfma_f32_16x16x32_f16 {ac}, {fa.sub(4 * kk, 4)}, {fb.sub(4 * kk, 4)}, {"0" if kk == 0 else ac}'))
    for x_ in (w1, w16, w32, w64, w128, w2, w4, w8, V, U, tm, pv, pu):
        for y_ in x_: y_.release()
    md_ = k.v(16, 4); sg = md_; cnt = k.s(); mg = par.sub(0, 2); amg = par[2]
    k(f'v_lshrrev_b32 {amg}, 2, {m}\nv_min_u32 {amg}, 2, {amg}\nv_mul_u32_u24 {amg}, 4608, {amg}\nv_and_b32 {mg[0]}, 3, {m}\nv_lshl_add_u32 {amg}, {mg[0]}, 3, {amg}')
    def kd_out(s):
        ac = kacc.sub(4 * s, 4)
        for e in range(4): k(f'v_mul_f32 {ac[e]}, {ks}, {ac[e]}')
        k(f'v_cvt_pk_bf16_f32 {ac[0]}, {ac[0]}, {ac[1]}\nv_cvt_pk_bf16_f32 {ac[2]}, {ac[2]}, {ac[3]}')
        for e in range(4): lg.op(f'ds_write_b16{"_d16_hi" if e & 1 else ""} {kda[s]}, {ac[e & 2]} offset:{32 * e}')
    for s in range(3): kd_out(s)
    SP(3); lg.reset() if SP.on else None
    got = k.s()
    def x_loads():
        k(f's_lshl_b32 {st}, {cidx}, 14\ns_add_u32 {st}, {st}, {O_XT}')
        for i in range(4):
            k(f'buffer_load_dwordx4 {x.sub(4 * i, 4)}, {ag}, {Rws}, {st} offen sc1')
            if i < 3: k(f's_add_u32 {st}, {st}, 4096')
    def gran_loads():
        for i in range(4): k(f's_mov_b32 {st}, {O_STATS + 4096 * i}\nbuffer_load_dwordx4 {sg.sub(4 * i, 4)}, {ag}, {Rws}, {st} offen sc1')
        mod_loads()
    def gran_check():
        k(f's_waitcnt vmcnt(0)\nv_and_b32 {am}, {sg[1]}, {sg[3]}')
        for i in (5, 9, 13): k(f'v_bitop3_b32 {am}, {am}, {sg[i]}, {sg[i + 2]} bitop3:0x80')
        k(f'v_cmp_ne_u32 vcc, 1, {am}\ns_cmp_eq_u64 vcc, 0')
    def mod_loads():
        k(f's_lshl_b32 {st}, {cidx}, 5\ns_add_u32 {st}, {st}, {O_MODG}')
        k(f'buffer_load_dwordx2 {mg}, {amg}, {Rws}, {st} offen sc1')
    def spin(i, flag_ld):
        lp = k.label('poll')
        k(f'{lp}:\nv_readfirstlane_b32 {st}, {fl_v[i]}\ns_cmp_ge_u32 {st}, 1')
        retry(k, lp, f's_sleep 4\n{flag_ld}\ns_waitcnt vmcnt(0)', cnt, END, SPIN_MAX)
    k(f'v_lshlrev_b32 {ag}, 4, v0\nv_lshlrev_b32 {a4}, 2, v0\ns_mov_b32 {cnt}, 0\ns_waitcnt vmcnt(0)')
    spin(0, flag_ld)
    gran_loads()
    while pend:
        idr, mf = pend.pop(0); lg.wait(idr); k(mf)
    kd_out(3)
    kc = fa.sub(0, 16); pvv = fa.sub(16, 8)
    gid = [lg.op(f'ds_read_u16 {ga[e]}, {ga[e]}') for e in range(16)]
    k(f's_add_u32 {st}, {wb}, {KD + 1024}\nv_mov_b32 {ga[16]}, {st}')
    i0 = lg.op(f'ds_read_u16 {ga[16]}, {ga[16]}')
    aw = kda[0]; ap = kda[1]
    k(f'v_lshl_add_u32 {aw}, {lane}, 4, {wb}\nv_lshrrev_b32 {ap}, 1, {lane}\nv_mul_u32_u24 {ap}, 4160, {ap}\nv_and_b32 {t[1]}, 1, {lane}')
    k(f'v_lshl_add_u32 {ap}, {t[1]}, 4, {ap}\nv_add_u32 {ap}, {wb}, {ap}\nv_cmp_eq_u32 vcc, 0, {lane}')
    k(f's_mov_b64 exec, 0xff'); lg.op(f'ds_write_b128 {ap}, {z4}'); k('s_mov_b64 exec, -1')
    for c in range(3):
        if c < 2:
            lg.wait(gid[8 * c + 7])
            for e in range(4): k(f'v_lshl_or_b32 {kc[4 * c + e]}, {ga[8 * c + 2 * e + 1]}, 16, {ga[8 * c + 2 * e]}')
        else:
            lg.wait(i0)
            k(f'v_cndmask_b32 {kc[10]}, 0, {ga[16]}, vcc\nv_mov_b32 {kc[11]}, 0\nv_lshl_or_b32 {kc[8]}, {kc[10]}, 16, {kc[10]}\nv_mov_b32 {kc[9]}, {kc[8]}')
        lg.op(f'ds_write_b128 {aw}, {kc.sub(4 * c, 4)} offset:{32 + 1024 * c}')
    ids = [lg.op(f'ds_read_b64 {pvv.sub(2 * c, 2)}, {aw} offset:{24 + 1024 * c}') for c in range(3)]
    late = k.label('late')
    gran_check()
    k(f's_cselect_b32 {got}, 1, 0\ns_cbranch_scc0 {late}')
    x_loads()
    k(f'{late}:')
    for c in range(3):
        lg.wait(ids[c])
        o = fb.sub(12 * (c & 1), 12); d_ = kc.sub(4 * c, 4); p0, p1 = pvv[2 * c], pvv[2 * c + 1]
        seq = [p0, p1, d_[0], d_[1], d_[2], d_[3]]
        o3 = o.sub(0, 4); o1 = o.sub(4, 4); o2 = o.sub(8, 4)
        for i in range(4): k(f'v_alignbit_b32 {o3[i]}, {seq[i + 1]}, {seq[i]}, 16')
        for i in range(3): k(f'v_mov_b32 {o1[i]}, {o3[i + 1]}')
        k(f'v_alignbit_b32 {o1[3]}, {seq[5]}, {seq[4]}, 16')
        for i in range(4): k(f'v_mov_b32 {o2[i]}, {seq[i + 1]}')
        for r_, oo in ((1, o1), (2, o2), (3, o3)): lg.op(f'ds_write_b128 {aw}, {oo} offset:{4160 * r_ + 32 + 1024 * c}')
    if dump:
        k(f's_lshl_b32 {st}, {s_d}, 12\ns_add_u32 {st}, {st}, {O_DBG}\nv_lshlrev_b32 {t[1]}, 4, {lane}')
        for c in range(4): vm.op(f'buffer_store_dwordx4 {kc.sub(4 * c, 4)}, {t[1]}, {Rws}, {st} offen offset:{1024 * c}')
    ga.release(); acc = k.v(32, 4); kacc.release(); ks.release(); atw.release(); atr.release()
    SP(4); lg.reset() if SP.on else None
    have = k.label('have')
    lp, ok = k.label('again'), k.label('rows')
    k(f's_cmp_eq_u32 {got}, 0\ns_cbranch_scc1 {lp}')
    with k.ool():
        k(f'{lp}:')
        gran_loads(); gran_check()
        k(f's_cbranch_scc1 {ok}\ns_sleep 2\ns_add_u32 {cnt}, {cnt}, 1\ns_cmp_lt_u32 {cnt}, {SPIN_MAX}\ns_cbranch_scc1 {lp}\ns_branch {END}\n{ok}:')
        x_loads()
        k(f's_branch {have}')
    k(f'{have}:')
    xf = k.v(32); hf = k.v(32); st_ = k.v(16)
    for i in range(8): k(f'v_and_b32 {st_[2 * i]}, 0xffff0000, {sg[2 * i]}\nv_lshlrev_b32 {st_[2 * i + 1]}, 16, {sg[2 * i]}')
    for i in range(8): k(f'v_rcp_f32 {st_[2 * i]}, {st_[2 * i]}')
    for i in range(8): k(f'v_mul_f32 {st_[2 * i + 1]}, -{st_[2 * i + 1]}, {st_[2 * i]}')
    k('s_waitcnt vmcnt(0)')
    SP(14); lg.reset() if SP.on else None
    for i in range(16): k(f'v_lshlrev_b32 {xf[2 * i]}, 16, {x[i]}\nv_and_b32 {xf[2 * i + 1]}, 0xffff0000, {x[i]}')
    k(f'v_add_u32 {am}, {HB + 512}, {a4}')
    for j in range(16): k(f'v_pk_fma_f32 {hf.sub(2 * j, 2)}, {xf.sub(2 * j, 2)}, {st_.sub(2 * (j // 2), 2)}, {st_.sub(2 * (j // 2), 2)} op_sel:[0,0,1] op_sel_hi:[1,0,1]')
    lp, ok = k.label('gran'), k.label('got')
    k(f'{lp}:')
    k(f'v_cmp_ne_u32 vcc, 1, {mg[1]}\ns_cmp_eq_u64 vcc, 0')
    retry(k, lp, lambda: (k('s_sleep 2'), mod_loads(), k('s_waitcnt vmcnt(0)')), cnt, END, SPIN_MAX)
    for i in range(12): k(f'v_mov_b32_dpp {md_[i]}, {mg[0]} row_newbcast:{i} row_mask:0xf bank_mask:0xf')
    SP(5)
    for i in range(4):
        for j in range(4 * i, 4 * i + 4): k(f'v_pk_fma_f32 {hf.sub(2 * j, 2)}, {hf.sub(2 * j, 2)}, {md_.sub(4 + 2 * (j & 1), 2)}, {md_.sub(2 * (j & 1), 2)}')
        for c in range(4): k(f'v_cvt_pk_bf16_f32 {x[4 * i + c]}, {hf[8 * i + c]}, {hf[8 * i + 4 + c]}')
        for c in range(4): lg.op(f'ds_write_b32 {am}, {x[4 * i + c]} offset:{HSTR * c + 1024 * i}')
    st_.release()
    aA = kda[2]; aB = kda[3]
    k(f'v_bfe_u32 {t[0]}, {lane}, 2, 2\nv_mul_u32_u24 {aA}, 4160, {t[0]}\nv_and_b32 {t[0]}, 3, {lane}\nv_lshl_add_u32 {aA}, {t[0]}, 3, {aA}')
    k(f'v_lshlrev_b32 {t[0]}, 4, {q}\nv_sub_u32 {aA}, {aA}, {t[0]}\ns_add_u32 {st}, {wb}, 56\nv_add_u32 {aA}, {st}, {aA}')
    k(f's_mul_i32 {st}, {s_w}, {HSTR}\ns_add_u32 {st}, {st}, {HB + 480}\nv_lshl_add_u32 {aB}, {m}, 5, {t[0]}\nv_add_u32 {aB}, {st}, {aB}')
    lg.all(); k('s_barrier'); SP(6)
    fa2 = k.a(32, 4); fb2 = k.a(32, 4)
    sets = [(fa, fb), (fa2, fb2)]
    k(f'v_add_u32 {aB}, -448, {aB}')
    def reads(r_):
        A_, B_ = sets[r_ & 1]; out = []
        for i in range(8):
            out.append((('B', i), f'ds_read_b128 {B_.sub(4 * i, 4)}, {aB} offset:{448 - 64 * r_ + 512 * i}'))
            if i < 4 or (i == 4 and r_ == 0):
                out.append((None, f'ds_read_b64_tr_b16 {A_.sub(4 * i, 2)}, {aA} offset:{64 * r_ + 8 + 512 * i}'))
                out.append((('A', i), f'ds_read_b64_tr_b16 {A_.sub(4 * i + 2, 2)}, {aA} offset:{64 * r_ + 512 * i}'))
        return out
    band = [fa.sub(24, 4), fa.sub(28, 4)]; Bt = [fa.sub(20, 4)] + [fa2.sub(16 + 4 * i, 4) for i in range(3)]; HF = k.a(32, 4)
    u_ = x.sub(0, 4); idf = {}
    far = {1: [f'v_lshlrev_b32 {u_[0]}, 3, {q}', f'v_sub_u32 {u_[0]}, {u_[0]}, {m}']}
    for bi, (lo, n) in enumerate(((4, 9), (5, 7))):
        for d in range(4):
            far[1] += [f'v_add_u32 {u_[1]}, {2 * d - lo}, {u_[0]}', f'v_add_u32 {u_[2]}, {2 * d + 1 - lo}, {u_[0]}', f'v_cmp_gt_u32 {sav}, {n}, {u_[1]}', f'v_cmp_gt_u32 vcc, {n}, {u_[2]}',
                       f'v_mov_b32 {u_[1]}, 0x3f80', f'v_mov_b32 {u_[2]}, 1.0', f'v_cndmask_b32 {u_[1]}, 0, {u_[1]}, {sav}', f'v_cndmask_b32 {u_[2]}, 0, {u_[2]}, vcc',
                       f'v_or_b32 {band[bi][d]}, {u_[1]}, {u_[2]}']
    far[2] = far[1][38:]; far[1] = far[1][:38]
    far[2] += [f'v_lshlrev_b32 {u_[0]}, 2, {q}', f'v_sub_u32 {u_[0]}, {m}, {u_[0]}', f's_add_u32 {st}, {wb}, {KD + 1026 - 12}', f'v_lshl_add_u32 {u_[3]}, {u_[0]}, 2, {st}']
    far[3] = [f'ds_read2_b32 {Bt[dl].sub(2 * h, 2)}, {u_[3]} offset0:{16 * dl + 2 * h} offset1:{16 * dl + 2 * h + 1}' for dl in range(4) for h in range(2)]
    far[3] += [f'ds_read_b128 {HF.sub(8 * T + 4 * e, 4)}, {aB} offset:{448 + 512 * T - 16 * (1 - e)}' for T in range(4) for e in range(2)]
    far[3].append(lambda: idf.__setitem__('r', lg.n))
    far[4] = [lambda: lg.wait(idf['r'])]
    for d in range(4): far[4] += [f'v_cmp_le_i32 vcc, {3 - d}, {u_[0]}', 's_nop 0', f'v_cndmask_b32 {Bt[0][d]}, 0, {Bt[0][d]}, vcc']
    E = [x.sub(0, 4), x.sub(4, 4)]; AT = [x.sub(8, 4), x.sub(12, 4)]
    MFB = 'v_mfma_f32_16x16x32_bf16'
    box = lambda T: [f'{MFB} {E[e]}, {HF.sub(8 * T + 4 * e, 4)}, {band[e]}, 0' for e in range(2)]
    pack = lambda T: [f'v_cvt_pk_bf16_f32 {AT[T & 1][i]}, {E[1][3 - i]}, {E[0][3 - i]}' for i in range(4)]
    apply_ = lambda T: [f'{MFB} {acc.sub(4 * tt, 4)}, {AT[T & 1]}, {Bt[tt - 4 - T]}, {acc.sub(4 * tt, 4)}' for tt in range(4 + T, 8)]
    farm = {(4, 12): box(0), (4, 17): pack(0), (4, 20): box(1) + apply_(0), (4, 25): pack(1),
            (5, 2): box(2) + apply_(1), (5, 7): pack(2), (5, 10): box(3) + apply_(2), (5, 15): pack(3), (5, 18): apply_(3)}
    jm = k.s(); l16 = k.v()
    k(f's_lshr_b32 {jm}, s2, 5\ns_sub_u32 {jm}, {jm}, 2\nv_lshlrev_b32 {l16}, 4, {lane}')
    pd = PairDma(k, s_w, jm, O_W1F, Rws, l16, W1_AT)
    early = [g for P_ in range(5) for g in pd.ops(P_)]
    flag_ld = f'buffer_load_dwordx2 {fl_v}, {z4[0]}, {Rdbg}, 0 offen offset:200 sc1'
    k(f'v_lshlrev_b32 {t[0]}, 3, {q}\nv_lshl_add_u32 {t[0]}, {m}, 5, {t[0]}\nv_add_u32 {t[0]}, {wb}, {t[0]}')
    dv = t.sub(4, 4)
    k(f's_lshl_b32 {st}, {sD[0]}, 16\ns_and_b32 {st2}, {sD[0]}, 0xffff0000\nv_mov_b32 {dv[0]}, {st}\nv_mov_b32 {dv[1]}, {st2}')
    k(f's_lshl_b32 {st}, {sD[1]}, 16\ns_and_b32 {st2}, {sD[1]}, 0xffff0000\nv_mov_b32 {dv[2]}, {st}\nv_mov_b32 {dv[3]}, {st2}')
    def y_out(tt):
        o = x.sub(2 * tt, 2)
        return [f'v_cvt_pk_bf16_f32 {o[0]}, {acc[4 * tt]}, {acc[4 * tt + 1]}', f'v_cvt_pk_bf16_f32 {o[1]}, {acc[4 * tt + 2]}, {acc[4 * tt + 3]}',
                f'ds_write_b64 {t[0]}, {o} offset:{512 * tt}']
    yq = []
    cur = {key: lg.op(x_) for key, x_ in reads(0)}
    for r_ in range(8):
        rd = reads(r_ + 1) if r_ < 7 else []
        A_, B_ = sets[r_ & 1]; nxt = {}
        order = [(i, tt) for i in range(5 if r_ == 0 else 4) for tt in range(i, 8)]
        if r_ == 0: order.sort(key=lambda p: (max(p[0], p[1] - p[0]), p))
        if r_ == 7: order.sort(key=lambda p: (p[1], p[0]))
        seen = set(); fq = list(far.get(r_, []))
        if r_ == 2: k(flag_ld)
        if r_ == 4: k('s_waitcnt vmcnt(0)'); spin(0, flag_ld)
        for n_, (i, tt) in enumerate(order):
            lg.wait(max(cur['A', i], cur['B', tt - i]))
            first = r_ == 0 and tt not in seen; seen.add(tt)
            k(f'v_mfma_f32_16x16x32_bf16 {acc.sub(4 * tt, 4)}, {A_.sub(4 * i, 4)}, {B_.sub(4 * (tt - i), 4)}, {"0" if first else acc.sub(4 * tt, 4)}')
            free = 2
            if rd: key, x_ = rd.pop(0); nxt[key] = lg.op(x_); free = 1
            if r_ == 3 and rd: free = 0
            for _ in range(free):
                if fq:
                    x_ = fq.pop(0)
                    x_() if callable(x_) else lg.op(x_) if x_.startswith('ds_') else k(x_)
            for x_ in farm.get((r_, n_), []): k(x_)
            if r_ == 7:
                if i == min(tt, 3) and tt: yq += y_out(tt - 1)
                for _ in range(2):
                    if yq: x_ = yq.pop(0); lg.op(x_) if x_.startswith('ds_') else k(x_)
            if r_ >= 4 and n_ % 6 == 4 and early:
                for x_ in early.pop(0): k(x_)
        for x_ in fq: x_() if callable(x_) else lg.op(x_) if x_.startswith('ds_') else k(x_)
        cur = nxt
    assert not early
    SP(7)
    for x_ in yq + y_out(7): k(x_)
    k('s_waitcnt lgkmcnt(0)\ns_barrier')
    lg.reset()
    yp = fb.sub(0, 16); yf = acc; o = fa
    ids = [[lg.op(f'ds_read_b32 {yp[4 * i + c]}, {a4} offset:{WSTR * c + 1024 * i}') for c in range(4)] for i in range(4)]
    k(f's_lshl_b32 {st}, {cidx}, 14\ns_add_u32 {st}, {st}, {O_X2}')
    for i in range(4):
        lg.wait(ids[i][3])
        for c in range(4): k(f'v_lshlrev_b32 {yf[8 * i + c]}, 16, {yp[4 * i + c]}\nv_and_b32 {yf[8 * i + 4 + c]}, 0xffff0000, {yp[4 * i + c]}')
        for j in range(4 * i, 4 * i + 4): k(f'v_pk_fma_f32 {yf.sub(2 * j, 2)}, {hf.sub(2 * j, 2)}, {dv.sub(2 * (j & 1), 2)}, {yf.sub(2 * j, 2)}')
        for j in range(4 * i, 4 * i + 4): k(f'v_pk_fma_f32 {yf.sub(2 * j, 2)}, {yf.sub(2 * j, 2)}, {md_.sub(8 + 2 * (j & 1), 2)}, {xf.sub(2 * j, 2)}')
        for j in range(4): k(f'v_cvt_pk_bf16_f32 {o[4 * i + j]}, {yf[8 * i + 2 * j]}, {yf[8 * i + 2 * j + 1]}')
        k(f'buffer_store_dwordx4 {o.sub(4 * i, 4)}, {ag}, {Rws}, {st} offen sc1')
        if i < 3: k(f's_add_u32 {st}, {st}, 4096')
```

```python
from common import *

K2_LDS = LDS_BYTES
T_B, T_G, T_F = TABS, TABS + 3456, TABS + 6144
XBUF, HBUF = 0, 73728
X1C, PSTL = 147456, 147456 + 9216
SPIN_MAX = 40000
GC1 = -2.0 * LOG2E * 0.7978845608028654
GC2 = GC1 * 0.044715
PI = [0, 1, 2, 5, 6, 7, 9, 10, 11, 14, 15, 16, 3, 12, 4, 8, 13, 17]
MF = 'v_mfma_f32_16x16x32_bf16'

def un(d, s_, hi): return f'v_and_b32 {d}, 0xffff0000, {s_}' if hi else f'v_lshlrev_b32 {d}, 16, {s_}'

def gelu_consts(k, sig, c):
    k(f'v_mov_b32 {c[2]}, {sig}\nv_rcp_f32 {c[0]}, {sig}')
    k(f'v_mul_f32 {c[1]}, {c[0]}, {c[0]}\nv_mul_f32 {c[1]}, {c[1]}, {c[0]}')
    k(f'v_mul_f32 {c[0]}, {fl(GC1)}, {c[0]}\nv_mul_f32 {c[1]}, {fl(GC2)}, {c[1]}')

def phase2(k, P, lane, s_w, END, SP, opt=()):
    stamps = SP.on
    WFL = ' sc1'
    PFL = ' '.join(o[2:] for o in opt if o.startswith('p_')) or 'sc1'
    q = k.v(); m = k.v(); l16 = k.v(); one = k.v(); zero = k.v(); fv4 = k.v(8, 4)
    Rws = k.s(4); RG = k.s(4); RW = k.s(4)
    srd(k, RG, P['dbg'], 256)
    k('s_sub_u32 vcc_lo, s2, 103\ns_sub_u32 vcc_hi, s2, 7\ns_cmp_lt_u32 vcc_hi, 9\ns_cselect_b32 vcc_hi, 96, 0\ns_cmp_lt_u32 vcc_lo, 9\ns_cselect_b32 vcc_hi, -96, vcc_hi\ns_add_u32 s2, s2, vcc_hi')
    k(f'v_mov_b32 {one}, 1\nv_mov_b32 {zero}, 0')
    go_ld = f'buffer_load_dwordx4 {fv4[0:4]}, {zero}, {RG}, 0 offen offset:192 sc1'
    k(go_ld)
    k(f'v_lshrrev_b32 {q}, 4, {lane}\nv_and_b32 {m}, 15, {lane}\nv_lshlrev_b32 {l16}, 4, {lane}')
    rb = k.s(); jm = k.s(); mb = k.s(); fs = k.s(); st = k.s(); st1 = k.s(); sav = k.s(2); cnt = k.s(); mt = k.s()
    k(f's_and_b32 {st}, s2, 1\ns_lshl_b32 {mb}, {st}, 4\ns_bfe_u32 {st}, s2, 0x20001\ns_lshl_b32 {fs}, {st}, 1\ns_lshl_b32 {rb}, {st}, 2\ns_add_u32 {rb}, {rb}, {mb}')
    k(f's_bfe_u32 {st}, s2, 0x20003\ns_add_u32 {rb}, {rb}, {st}\ns_lshr_b32 {jm}, s2, 5\ns_sub_u32 {jm}, {jm}, 2')
    k(f's_bfe_u32 {st}, s2, 0x40003\ns_add_u32 {mb}, {mb}, {st}\ns_lshr_b32 {st}, s2, 7\ns_add_u32 {fs}, {fs}, {st}')
    if 'a4' in opt:
        k(f's_and_b32 {mb}, s2, 3\ns_lshl_b32 {mb}, {mb}, 3\ns_bfe_u32 {st}, s2, 0x30003\ns_add_u32 {mb}, {mb}, {st}')
        k(f's_bfe_u32 {fs}, s2, 0x10002\ns_lshl_b32 {fs}, {fs}, 2\ns_lshr_b32 {st}, s2, 6\ns_add_u32 {fs}, {fs}, {st}')
    if 'a1' in opt: k(f's_lshr_b32 {mb}, s2, 3\ns_and_b32 {fs}, s2, 7')
    if 'a8' in opt:
        k(f's_and_b32 {mb}, s2, 7\ns_lshl_b32 {mb}, {mb}, 2\ns_bfe_u32 {st}, s2, 0x20003\ns_add_u32 {mb}, {mb}, {st}\ns_lshr_b32 {fs}, s2, 5')
    k(f's_lshl_b32 {mt}, {rb}, 2\ns_add_u32 {mt}, {mt}, {s_w}\ns_mov_b32 {cnt}, 0')
    srd(k, Rws, P['ws'], WS_USED); srd(k, RW, P['ws'], WS_USED)
    vm, lg = trackers(k)
    def STAMP(i, g4=False):
        mode = 'g4st' if 'g4st' in opt else 'g3st' if 'g3st' in opt else False
        if stamps and (g4 == mode or (i not in (1, 2, 3, 4, 5) and not g4)): SP(i); lg.reset()
    def flag_add(s_idx, base):
        k(f's_lshl_b32 {st}, {s_idx}, 7\ns_add_u32 {st}, {st}, {base}\ns_mov_b64 exec, 1')
        vm.op(f'buffer_atomic_add {one}, {zero}, {Rws}, {st} offen sc1')
        k('s_mov_b64 exec, -1')
    def poll(vaddr, base, target, sleep=0, fv=None):
        own = fv is None; fv = fv or k.v(); lp, ok = k.label('poll'), k.label('ok')
        k(f's_mov_b32 {st1}, {base}\n{lp}:\nbuffer_load_dword {fv}, {vaddr}, {Rws}, {st1} offen sc1\ns_waitcnt vmcnt(0)')
        k(f'v_cmp_gt_u32 vcc, {target}, {fv}\ns_cmp_eq_u64 vcc, 0')
        retry(k, lp, f's_sleep {sleep}' if sleep else '', cnt, END, SPIN_MAX, inline=True)
        vm.reset()
        if own: fv.release()
    W = [k.a(72, 4), k.a(72, 4)]; vo = [l16] + [k.v() for _ in range(4)]
    for g in range(1, 5): k(f'v_add_u32 {vo[g]}, {4096 * g}, {l16}')
    sn = k.s(); s4 = k.s()
    k(f's_lshl_b32 {sn}, {fs}, 2\ns_add_u32 {sn}, {sn}, {s_w}\ns_mul_i32 {sn}, {sn}, {9 * 18432}\ns_add_u32 {s4}, {sn}, {O_W4F}\ns_add_u32 {sn}, {sn}, {O_W3F}')
    wld = lambda r_, ks: f'buffer_load_dwordx4 {W[r_].sub(4 * ks, 4)}, {vo[ks // 4]}, {RW}, {sn} offen offset:{1024 * (ks % 4)}' + WFL
    sm = k.s(); so = k.s()
    k(f's_lshl_b32 {sm}, {s_w}, 10')
    def spin(ld, regs, sleep=16):
        lp, ok = k.label('spin'), k.label('up')
        k(f'{lp}:\ns_waitcnt vmcnt(0)')
        if len(regs) > 1: k(f'v_and_b32 {fv4[7]}, {regs[0]}, {regs[1]}')
        k(f'v_cmp_eq_u32 vcc, 0, {fv4[7] if len(regs) > 1 else regs[0]}\ns_cmp_eq_u64 vcc, 0')
        retry(k, lp, f's_sleep {sleep}\n{ld}', cnt, END, SPIN_MAX, inline=sleep < 16)
    RB = k.v(24, 4)
    keepV, keepA, keepS = list(k.V.free), list(k.A.free), list(k.S.free)
    XX = k.v(146, 2); t = k.v(8); row = k.v()
    pd1 = PairDma(k, s_w, jm, O_W1F, Rws, l16, W1_AT)
    k(f's_lshl_b32 {st}, {s_w}, 6\nv_add_u32 {t[2]}, {st}, {lane}')
    u_ = XX.sub(0, 4)
    def tab_src(d, u):
        k(f's_mul_i32 {st}, {jm}, 12\nv_cmp_le_u32 vcc, 72, {u}\nv_subrev_u32 {u_[0]}, 72, {u}\nv_cndmask_b32 {u_[0]}, {u}, {u_[0]}, vcc\nv_add_u32 {u_[0]}, {st}, {u_[0]}')
        k(f'v_mov_b32 {u_[2]}, {O_MODB + 1152}\nv_mov_b32 {u_[3]}, {O_MODB}\nv_cndmask_b32 {u_[2]}, {u_[2]}, {u_[3]}, vcc')
        k(f'v_cmp_le_u32 vcc, 72, {u_[0]}\nv_subrev_u32 {u_[1]}, 72, {u_[0]}\nv_cndmask_b32 {u_[0]}, {u_[0]}, {u_[1]}, vcc\nv_lshl_add_u32 {d}, {u_[0]}, 4, {u_[2]}')
        k(f's_mul_i32 {st}, {jm}, 24\ns_sub_u32 {st}, {st}, 144\nv_add_u32 {u_[0]}, {st}, {u}\nv_cmp_le_u32 vcc, 144, {u_[0]}\nv_subrev_u32 {u_[1]}, 144, {u_[0]}')
        k(f'v_cndmask_b32 {u_[0]}, {u_[0]}, {u_[1]}, vcc\nv_lshlrev_b32 {u_[0]}, 4, {u_[0]}\nv_add_u32 {u_[0]}, {O_MODF + 4 * 2304}, {u_[0]}')
        k(f'v_cmp_le_u32 vcc, 144, {u}\nv_cndmask_b32 {d}, {d}, {u_[0]}, vcc')
    tab_src(t[3], t[2])
    k(f'v_add_u32 {t[5]}, 256, {lane}')
    tab_src(t[4], t[5])
    k(f'v_mul_u32_u24 {t[5]}, 43691, {t[2]}\nv_lshrrev_b32 {t[5]}, 20, {t[5]}\nv_mul_u32_u24 {t[6]}, 120, {t[5]}')
    k(f'v_add_u32 {t[6]}, {t[6]}, {t[2]}\nv_lshlrev_b32 {t[6]}, 4, {t[6]}')
    pd = PairDma(k, s_w, jm, O_W2F, Rws, l16, W2_AT)
    k(f's_lshl_b32 {st}, {mt}, 4\nv_add_u32 {row}, {st}, {m}')
    k(f'v_lshlrev_b32 {t[0]}, 15, {q}\nv_lshl_add_u32 {t[0]}, {row}, 3, {t[0]}\nv_add_u32 {t[1]}, 0x4000, {t[0]}')
    ones = k.v(4, 4); sacc = k.v(4, 4); gacc = k.v(4, 4); tacc = k.v(4, 4); qacc = k.v(4, 4); acc = k.v(24, 4)
    for i in range(4): k(f'v_mov_b32 {ones[i]}, 0x3f803f80')
    msk = [k.s(2) for _ in range(3)]; bidx = k.v()
    k(f'v_and_b32 {t[2]}, 3, {m}')
    for e in range(3): k(f'v_cmp_eq_u32 {msk[e]}, {e + 1}, {t[2]}')
    aT = k.v(); aW = [l16, k.v(), k.v()]
    k(f'v_min_u32 {t[2]}, 2, {t[2]}\nv_mul_u32_u24 {aT}, 1152, {t[2]}\nv_lshl_add_u32 {aT}, {q}, 4, {aT}\nv_add_u32 {aT}, {T_B}, {aT}\nv_lshlrev_b32 {t[7]}, 5, {q}\nv_add_u32 {t[7]}, {T_G}, {t[7]}')
    k(f'v_lshrrev_b32 {t[2]}, 2, {m}\nv_lshl_add_u32 {t[2]}, {t[2]}, 4, {m}\nv_lshlrev_b32 {bidx}, 2, {t[2]}')
    k(f'v_add_u32 {aW[1]}, 0xf000, {l16}\nv_add_u32 {aW[2]}, 0x1e000, {l16}')
    k(f'v_lshlrev_b32 {t[2]}, 4, v0\nv_add_u32 {t[2]}, {T_B}, {t[2]}')
    spin(go_ld, [fv4[0]])
    k('s_waitcnt lgkmcnt(0)\ns_barrier')
    STAMP(15)
    NSH = 4
    na, nb = k.label('noarr'), k.label('notlast')
    k(f's_sub_u32 {st}, s2, 7\ns_cmp_lt_u32 {st}, 9\ns_cbranch_scc1 {na}')
    k(f's_cmp_lg_u32 {s_w}, 0\ns_cbranch_scc1 {na}\ns_lshr_b32 {st1}, s2, 3\ns_and_b32 {st1}, {st1}, {NSH - 1}\ns_lshl_b32 {st}, {st1}, 7\ns_add_u32 {st}, {st}, {O_FA}\ns_mov_b64 exec, 1')
    k(f'v_mov_b32 {fv4[4]}, 1\nbuffer_atomic_add {fv4[4]}, {zero}, {Rws}, {st} offen sc0 sc1\ns_cmp_eq_u32 {st1}, 0\ns_cselect_b32 {so}, 62, 63\ns_cmp_eq_u32 {st1}, 1\ns_cselect_b32 {so}, 55, {so}\ns_add_u32 {st1}, {st}, {O_FG - O_FA}\ns_waitcnt vmcnt(0)')
    k(f'v_readfirstlane_b32 {st}, {fv4[4]}\ns_cmp_lg_u32 {st}, {so}\ns_cbranch_scc1 {nb}')
    k(f'buffer_store_dword {one}, {zero}, {Rws}, {st1} offen sc1\n{nb}:\ns_mov_b64 exec, -1\n{na}:')
    go3_ld = f'buffer_load_dword {fv4[0]}, {fv4[5]}, {Rws}, 0 offen sc1'
    k(f'v_and_b32 {fv4[5]}, {NSH - 1}, {lane}\nv_lshlrev_b32 {fv4[5]}, 7, {fv4[5]}\nv_add_u32 {fv4[5]}, {O_FG}, {fv4[5]}')
    k('s_cmp_lt_u32 s2, 64\ns_cbranch_scc1 k2_idle')

    w0, w5, wj = k.label('havew1'), k.label('rest'), k.label('joined')
    spin(go_ld, [fv4[2], fv4[3]])
    k(f's_add_u32 m0, {sm}, {T_B + 1152}\nbuffer_load_dwordx4 {t[3]}, {Rws}, 0 offen sc1 lds')
    k(f's_mov_b32 m0, {T_B + 1152 + 4096}\ns_mov_b32 exec_hi, 0\nbuffer_load_dwordx4 {t[4]}, {Rws}, 0 offen sc1 lds\ns_mov_b64 exec, -1')
    k(f's_cmp_lt_u32 s2, 112\ns_cbranch_scc1 {w0}_x')
    with k.ool():
        k(f'{w0}_x:')
        for P_ in range(5):
            for g in pd1.ops(P_):
                for x_ in g: k(x_)
        k(f's_waitcnt vmcnt(0)\ns_branch {w0}')
    k(f'{w0}:\ns_barrier\ns_cmp_eq_u32 {s_w}, 0\ns_cbranch_scc1 {w5}')
    k(f's_lshl_b32 {pd1.t}, {s_w}, 11\ns_sub_u32 {pd1.t}, {pd1.t}, 2048\ns_mul_i32 {pd1.src}, {jm}, 110592\ns_add_u32 {pd1.src}, {pd1.src}, {pd1.t}\ns_add_u32 {pd1.src}, {pd1.src}, {O_W1F + 61440}')
    for sl_i in range(10, 18):
        k(f's_add_u32 m0, {pd1.t}, {W1_AT[sl_i]}\nbuffer_load_dwordx4 {l16}, {Rws}, {pd1.src} offen sc1 lds')
        k(f'buffer_load_dwordx4 {l16}, {Rws}, {pd1.src} offen offset:1024 sc1 lds')
        if sl_i < 17: k(f's_add_u32 {pd1.src}, {pd1.src}, 6144')
    k(f'{w5}:')
    pd1.release()
    k(f'v_cmp_gt_u32 vcc, 72, v0\ns_and_saveexec_b64 {sav}, vcc\nds_write_b128 {t[2]}, {ones}\ns_mov_b64 exec, {sav}')
    w2ops = [g for P_ in range(9) for g in pd.ops(P_)]
    def w2dma():
        for x_ in w2ops.pop(0): vm.op(x_) if x_.startswith('buffer') else k(x_)
    ix = []
    def issue(i):
        vm.op(f'buffer_load_dwordx2 {XX.sub(4 * i, 2)}, {t[0]}, {Rws}, {st1} offen sc1')
        ix.append(vm.op(f'buffer_load_dwordx2 {XX.sub(4 * i + 2, 2)}, {t[1]}, {Rws}, {st1} offen sc1'))
        if i < 17: k(f's_add_u32 {st1}, {st1}, 131072')
        if i % 3 == 2 and i < 17: k(f's_cmp_eq_u32 {st1}, {O_X2 + 18 * 131072}\ns_cselect_b32 {st1}, {O_X2}, {st1}')
    lds_at = lambda a_: f'{aW[a_ // 0xf000]} offset:{a_ % 0xf000}'
    TF = W[1]; WR = [k.a(24, 4), k.a(24, 4)]
    def w_reads(i):
        return [f'ds_read_b128 {WR[i & 1].sub(4 * tt, 4)}, {lds_at(W1_AT[i] + 1024 * tt)}' for tt in range(6)]
    k(f's_cmp_lg_u32 {s_w}, 0\ns_cbranch_scc1 {wj}\n{go3_ld}')
    spin(go3_ld, [fv4[0]], 2)
    k(f'{wj}:\ns_mul_i32 {st1}, {jm}, {3 * 131072}\ns_add_u32 {st1}, {st1}, {O_X2}\ns_mul_i32 {so}, {jm}, 384\ns_add_u32 {so}, {so}, {O_MOD2}\ns_waitcnt vmcnt(16) lgkmcnt(0)\ns_barrier'); vm.reset(); lg.reset()
    STAMP(0)
    nis = 5
    for i in range(nis): issue(i)
    k(f's_mov_b32 {st}, {O_FU}')
    ifu = vm.op(f'buffer_load_dword {fv4[0]}, {zero}, {Rws}, {st} offen sc1')
    itf = [lg.op(f'ds_read_b128 {TF.sub(4 * i, 4)}, {aT} offset:{64 * i}') for i in range(18)]
    iwr = [lg.op(x_) for x_ in w_reads(0)]
    for i in range(18):
        lg.wait(itf[i]); k(f'{MF} {acc[4:8]}, {TF.sub(4 * i, 4)}, {TF.sub(4 * i, 4)}, {"0" if i == 0 else acc[4:8]}')
    cs = k.s(5, 1)
    for n_, (e, j_) in enumerate(((0, 1), (0, 2), (1, 1), (1, 2), (2, 2))): k(f'v_readlane_b32 {cs[n_]}, {acc[4 + e]}, {j_}')
    XG = [XX.sub(72, 4), XX.sub(76, 4)]; GT = [XX.sub(80, 8), XX.sub(88, 8)]; tv = XX.sub(96, 8)
    g_reads = lambda i: [f'ds_read_b128 {GT[i & 1].sub(4 * h, 4)}, {t[7]} offset:{128 * i + 16 * h}' for h in range(2)]
    def xg_ops(i):
        xs = XX.sub(4 * i, 4); g_ = GT[i & 1]
        return ([un(tv[e], xs[e >> 1], e & 1) for e in range(8)] + [f'v_mul_f32 {tv[e]}, {tv[e]}, {g_[e]}' for e in range(8)]
                + [f'v_cvt_pk_bf16_f32 {XG[i & 1][e]}, {tv[2 * e]}, {tv[2 * e + 1]}' for e in range(4)])
    ig0 = [lg.op(x_) for x_ in g_reads(0) + g_reads(1)]
    vm.wait(ix[0]); lg.wait(ig0[1])
    for x_ in xg_ops(0): k(x_)
    igt = ig0[3]; n2 = 0
    for i in range(18):
        if i == 9: vm.wait(itab)
        if i in (9, 13): k('s_barrier')
        if i == 1: STAMP(1)
        xg = XG[i & 1]; xr = XX.sub(4 * i, 4)
        c_ = lambda r_: '0' if i == 0 else r_
        M = [(0, f'{MF} {sacc}, {ones}, {xr}, {c_(sacc)}'), (0, f'{MF} {gacc}, {xr}, {xr}, {c_(gacc)}'),
             (0, f'{MF} {tacc}, {TF.sub(4 * i, 4)}, {xg}, {c_(tacc)}'), (0, f'{MF} {qacc}, {xg}, {xg}, {c_(qacc)}')]
        M += [(iwr[tt], f'{MF} {acc.sub(4 * tt, 4)}, {WR[i & 1].sub(4 * tt, 4)}, {xg}, {c_(acc.sub(4 * tt, 4))}') for tt in range(6)]
        Rd = w_reads(i + 1) if i < 17 else []
        V = xg_ops(i + 1) if i < 17 else []
        Gd = g_reads(i + 2) if i < 16 else []
        nxt = []
        for n_, (idr, mm) in enumerate(M):
            lg.wait(idr); k(mm)
            if Rd and n_ < 6: nxt.append(lg.op(Rd.pop(0)))
            if V and n_ == 0: vm.wait(ix[i + 1])
            if V and n_ == 4: lg.wait(igt)
            if Gd and n_ >= 8: ign = lg.op(Gd.pop(0))
            for _ in range(2):
                if V: k(V.pop(0))
        iwr = nxt
        if i < 16: igt = ign
        if i == 5:
            ok = k.label('uok'); lp = k.label('upoll')
            vm.wait(ifu)
            k(f'{lp}:\nv_cmp_gt_u32 vcc, 9, {fv4[0]}\ns_cmp_eq_u64 vcc, 0')
            retry(k, lp, f's_mov_b32 {st}, {O_FU}\nbuffer_load_dword {fv4[0]}, {zero}, {Rws}, {st} offen sc1\ns_waitcnt vmcnt(0)', cnt, END, SPIN_MAX)
            k(f's_add_u32 m0, {sm}, {T_F}')
            itab = vm.op(f'buffer_load_dwordx4 {t[6]}, {Rws}, {so} offen sc1 lds')
        if nis < 18:
            for _ in range(2 if nis < i + 9 else 1):
                if nis < 18: issue(nis); nis += 1
        else:
            for _ in range(3):
                if n2 < (18 if i < 13 else 27): w2dma(); n2 += 1
    assert n2 == 27
    STAMP(2)
    k.inject([lambda ks=ks: vm.op(wld(0, ks)) for ks in PI], 9)
    TB = [XX.sub(24, 16), XX.sub(40, 16)]; uu = XX.sub(56, 48)
    k(f'v_lshlrev_b32 {aT}, 5, {q}\nv_add_u32 {aT}, {T_F}, {aT}')
    tf_read = lambda dst, r_, e: f'ds_read_b128 {dst}, {aT} offset:{384 * r_ + 128 * (e >> 1) + 16 * (e & 1)}'
    def diag(d, g_):
        k(f'v_cndmask_b32 {d}, {g_[0]}, {g_[1]}, {msk[0]}\nv_cndmask_b32 {d}, {d}, {g_[2]}, {msk[1]}\nv_cndmask_b32 {d}, {d}, {g_[3]}, {msk[2]}')
        return lg.op(f'ds_bpermute_b32 {d}, {bidx}, {d}')
    i2 = diag(t[2], qacc); i1 = diag(t[1], gacc)
    iu = [lg.op(tf_read(uu.sub(24 * r_ + 4 * e, 4), 3 + r_, e)) for e in range(6) for r_ in range(2)]
    s1 = XX.sub(140, 2); gc = XX.sub(136, 4)
    k(f'v_mov_b32 {t[0]}, {sacc[0]}'); lg.wait(i1)
    sigma_bf16(k, t[0], t[1])
    k(f'v_cvt_pk_bf16_f32 {t[0]}, {t[0]}, {t[1]}\nv_and_b32 {s1[0]}, 0xffff0000, {t[0]}\nv_lshlrev_b32 {s1[1]}, 16, {t[0]}')
    k(f'v_rcp_f32 {s1[0]}, {s1[0]}\nv_mov_b32 {t[3]}, {cs[1]}\nv_mov_b32 {t[4]}, {cs[3]}\nv_mul_f32 {s1[1]}, -{s1[1]}, {s1[0]}')
    k(f'v_fma_f32 {t[3]}, {s1[1]}, {cs[0]}, {t[3]}\nv_fma_f32 {t[0]}, {s1[0]}, {tacc[0]}, {t[3]}')
    k(f'v_fma_f32 {t[3]}, {s1[1]}, {tacc[1]}, {tacc[2]}\nv_add_f32 {t[3]}, {t[3]}, {t[3]}\nv_fma_f32 {t[3]}, {s1[0]}, {t[2]}, {t[3]}')
    k(f'v_add_f32 {t[4]}, {t[4]}, {t[4]}\nv_fma_f32 {t[4]}, {s1[1]}, {cs[2]}, {t[4]}\nv_mov_b32 {t[5]}, {cs[4]}\nv_fma_f32 {t[4]}, {s1[1]}, {t[4]}, {t[5]}')
    k(f'v_fma_f32 {t[1]}, {s1[0]}, {t[3]}, {t[4]}')
    sigma_bf16(k, t[0], t[1])
    k(f'v_cvt_pk_bf16_f32 {t[1]}, {t[1]}, {t[1]}\nv_and_b32 {t[1]}, 0xffff0000, {t[1]}')
    gelu_consts(k, t[1], gc)
    k(f's_mul_i32 {st}, {jm}, {3 * GPL}\ns_lshl_b32 {so}, {mt}, 10\ns_add_u32 {st}, {st}, {so}\ns_add_u32 {st}, {st}, {O_G + 1024}')
    lg.all()
    for e in range(12): k(f'v_pk_fma_f32 {uu.sub(2 * e, 2)}, {uu.sub(2 * e, 2)}, {s1}, {uu.sub(24 + 2 * e, 2)} op_sel:[0,1,0] op_sel_hi:[1,1,1]')
    for e in range(12): k(f'v_pk_fma_f32 {acc.sub(2 * e, 2)}, {acc.sub(2 * e, 2)}, {s1}, {uu.sub(2 * e, 2)} op_sel_hi:[1,0,1]')
    tt_ = TB[0]; go = TB[1]
    for Pp in range(3):
        a = acc.sub(8 * Pp, 8); u = tt_.sub(0, 8)
        for e in range(4): k(f'v_pk_mul_f32 {u.sub(2 * e, 2)}, {a.sub(2 * e, 2)}, {a.sub(2 * e, 2)}')
        for e in range(4): k(f'v_pk_fma_f32 {u.sub(2 * e, 2)}, {u.sub(2 * e, 2)}, {gc[0:2]}, {gc[0:2]} op_sel:[0,1,0] op_sel_hi:[1,1,0]')
        for e in range(4): k(f'v_pk_mul_f32 {u.sub(2 * e, 2)}, {u.sub(2 * e, 2)}, {a.sub(2 * e, 2)}')
        for e in range(8): k(f'v_exp_f32 {u[e]}, {u[e]}')
        for e in range(4): k(f'v_pk_fma_f32 {u.sub(2 * e, 2)}, {u.sub(2 * e, 2)}, {gc[2:4]}, {gc[2:4]} op_sel_hi:[1,0,0]')
        for e in range(8): k(f'v_rcp_f32 {u[e]}, {u[e]}')
        for e in range(4): k(f'v_pk_mul_f32 {u.sub(2 * e, 2)}, {u.sub(2 * e, 2)}, {a.sub(2 * e, 2)}')
        o = go.sub(4 * Pp, 4)
        for e in range(4): k(f'v_cvt_pk_bf16_f32 {o[e]}, {u[2 * e]}, {u[2 * e + 1]}')
        if Pp == 2: k.flush_inject()
        ig = vm.op(f'buffer_store_dwordx4 {o}, {l16}, {Rws}, {st} offen sc1')
        if Pp < 2: k(f's_add_u32 {st}, {st}, {GPL}')
    h2f = uu.sub(0, 24); x2f = XX.sub(104, 24); gbv = RB
    xsrc = lambda e: XX[e >> 1]
    ig_ = [lg.op(tf_read(gbv.sub(4 * e, 4), 1, e)) for e in range(6)]
    is_ = [lg.op(tf_read(uu.sub(24 + 4 * e, 4), 0, e)) for e in range(6)]
    for e in range(24): k(un(x2f[e], xsrc(e), e & 1))
    dl = [XX[128 + i] for i in range(6)]
    k(f'v_cmp_gt_u32 vcc, 2, {q}')
    for g, dlt in enumerate((-1, 1, -2, 2)):
        k(f'v_add_u32 {dl[4]}, {16 + dlt}, {row}\nv_lshrrev_b32 {dl[5]}, 4, {dl[4]}\nv_and_b32 {dl[4]}, 15, {dl[4]}\nv_lshlrev_b32 {dl[4]}, 4, {dl[4]}')
        k(f'v_lshl_add_u32 {dl[4]}, {dl[5]}, 10, {dl[4]}\nv_lshl_add_u32 {dl[g]}, {q}, 8, {dl[4]}')
    k(f'v_cndmask_b32 {dl[4]}, {dl[1]}, {dl[0]}, vcc\nv_cndmask_b32 {dl[5]}, {dl[3]}, {dl[2]}, vcc')
    pa = XX[134]
    k(f'v_min_u32 {pa}, 2, {lane}\nv_add_u32 {pa}, {mt}, {pa}\nv_add_u32 {pa}, -1, {pa}\nv_max_i32 {pa}, 0, {pa}\nv_min_u32 {pa}, 127, {pa}\nv_lshlrev_b32 {pa}, 7, {pa}')
    vm.wait(ig)
    flag_add(mt, O_FC)
    STAMP(3)
    k(f's_add_u32 {sn}, {sn}, 18432')
    for e in range(12): k(f'v_pk_fma_f32 {h2f.sub(2 * e, 2)}, {x2f.sub(2 * e, 2)}, {s1}, {s1} op_sel:[0,0,1] op_sel_hi:[1,0,1]')
    lg.all()
    for e in range(12): k(f'v_pk_fma_f32 {h2f.sub(2 * e, 2)}, {h2f.sub(2 * e, 2)}, {gbv.sub(2 * e, 2)}, {uu.sub(24 + 2 * e, 2)}')
    NPRE = 5
    k('s_barrier')
    WP = [WR[0], WR[1], k.a(24, 4), k.a(24, 4), XX.sub(0, 24)]
    w2_addr = lambda i, tt: lds_at(W2_AT[i] + 1024 * tt)
    for i in range(NPRE):
        for tt in range(6): lg.op(f'ds_read_b128 {WP[i].sub(4 * tt, 4)}, {w2_addr(i, tt)}')
    poll(pa, O_FC, 6)
    STAMP(4)
    GF = TF
    sel = lambda s: dl[4] if s == 4 else dl[5] if s == 13 else dl[(2 * s) // 9]
    ig = []
    for s in range(18):
        k(f's_mov_b32 {st}, {O_G + s * GPL}')
        ig.append(vm.op(f'buffer_load_dwordx4 {GF.sub(4 * s, 4)}, {sel(s)}, {Rws}, {st} offen sc1'))
    lg.all()
    ird = {}
    for s in range(18):
        vm.wait(ig[s])
        wr = WP[s % NPRE]
        for tt in range(6):
            if s >= NPRE: lg.wait(ird[s, tt])
            k(f'{MF} {acc.sub(4 * tt, 4)}, {wr.sub(4 * tt, 4)}, {GF.sub(4 * s, 4)}, {"0" if s == 0 else acc.sub(4 * tt, 4)}')
            if s + NPRE < 18: ird[s + NPRE, tt] = lg.op(f'ds_read_b128 {wr.sub(4 * tt, 4)}, {w2_addr(s + NPRE, tt)}')
        vm.op(wld(1, s))
    lg.all()
    STAMP(5)
    aS = dl[1]
    k(f'v_lshrrev_b32 {t[0]}, 1, {q}')
    k(f'v_lshlrev_b32 {aS}, 6, {t[0]}\nv_lshl_add_u32 {aS}, {m}, 2, {aS}')
    k(f's_mul_i32 {st}, {rb}, 18\ns_mul_i32 {so}, {jm}, 3\ns_add_u32 {st}, {st}, {so}\ns_lshl_b32 {st}, {st}, 2\ns_add_u32 {st}, {st}, {s_w}\ns_lshl_b32 {st}, {st}, 10\ns_add_u32 {st}, {st}, {O_X1F}')
    for e in range(12): k(f'v_pk_add_f32 {h2f.sub(2 * e, 2)}, {h2f.sub(2 * e, 2)}, {acc.sub(2 * e, 2)}')
    for Pp in range(3):
        o = go.sub(4 * Pp, 4)
        for e in range(4): k(f'v_cvt_pk_bf16_f32 {o[e]}, {h2f[8 * Pp + 2 * e]}, {h2f[8 * Pp + 2 * e + 1]}')
        vm.op(f'buffer_store_dwordx4 {o}, {l16}, {Rws}, {st} offen sc1')
        if Pp < 2: k(f's_add_u32 {st}, {st}, 4096')
    k(f'v_pk_add_f32 {t[0:2]}, {h2f[0:2]}, {h2f[2:4]}\nv_pk_mul_f32 {t[2:4]}, {h2f[0:2]}, {h2f[0:2]}\nv_pk_fma_f32 {t[2:4]}, {h2f[2:4]}, {h2f[2:4]}, {t[2:4]}')
    for e in range(2, 12): k(f'v_pk_add_f32 {t[0:2]}, {t[0:2]}, {h2f.sub(2 * e, 2)}\nv_pk_fma_f32 {t[2:4]}, {h2f.sub(2 * e, 2)}, {h2f.sub(2 * e, 2)}, {t[2:4]}')
    k(f'v_add_f32 {t[0]}, {t[0]}, {t[1]}\nv_add_f32 {t[2]}, {t[2]}, {t[3]}\nv_permlane32_swap_b32 {t[0]}, {t[2]}\nv_add_f32 {t[0]}, {t[0]}, {t[2]}')
    k(f'v_mov_b32 {t[1]}, {t[0]}\nv_permlane16_swap_b32 {t[0]}, {t[1]}\nv_add_f32 {t[0]}, {t[0]}, {t[1]}')
    k(f's_mul_i32 {st}, {mt}, 6\ns_add_u32 {st}, {st}, {jm}\ns_lshl_b32 {st}, {st}, 7\ns_add_u32 {st}, {st}, {O_PST}\ns_mov_b32 exec_lo, 0xffff\ns_mov_b32 exec_hi, 0xffff')
    vm.op(f'buffer_store_dword {t[0]}, {aS}, {Rws}, {st} offen sc1')
    k('s_mov_b64 exec, -1')
    vm.all()
    flag_add(mt, O_FD)
    STAMP(6)
    ool_ = k.ool(); ool_.__enter__()
    k('k2_idle:')
    k.V.free, k.A.free, k.S.free = list(keepV), list(keepA), list(keepS)
    vm, lg = trackers(k)
    cj = ColJob(k, vm, lg, lane, s_w)
    fr = k.v(72, 4); sl = k.s(); dst = k.s(); job = k.s(); R4 = k.s(4)
    srd(k, R4, P['w4'], D * F * 2)
    fr2 = k.v(12, 4); part = k.s(); np_, dn = k.label('nopart'), k.label('w4done')
    k(f's_mul_hi_u32 {sl}, s2, {(1 << 32) // 9 + 1}\ns_mul_i32 {dst}, {sl}, 9\ns_sub_u32 {dst}, s2, {dst}\ns_lshl_b32 {dst}, {dst}, 7')
    k(f's_mul_i32 {st}, {sl}, {576 * 1152}\ns_add_u32 {dst}, {dst}, {st}\ns_mov_b32 {st}, 1152')
    cj.dma(R4, dst, st, 0, True)
    k(f's_mul_hi_u32 {job}, s2, {(1 << 32) // 6 + 1}\ns_mul_i32 {part}, {job}, 6\ns_sub_u32 {part}, s2, {part}\ns_cmp_ge_u32 s2, 48\ns_cbranch_scc1 {np_}')
    k(f's_mul_i32 {dst}, {part}, {96 * 1152}\ns_lshl_b32 {st}, {job}, 7\ns_add_u32 {dst}, {dst}, {st}\ns_add_u32 {dst}, {dst}, {7 * 576 * 1152 + 128}\ns_mov_b32 {st}, 1152')
    cj.dma(R4, dst, st, 73728, True, nks=3)
    k(f'{np_}:')
    ad = cj.addr(0, w4order=True); ad2 = cj.addr(73728, w4order=True)
    k('s_waitcnt vmcnt(0)\ns_barrier'); vm.reset()
    ids = cj.reads(ad, fr); ids2 = cj.reads(ad2, fr2, 3)
    k(f's_lshl_b32 {dst}, s2, 2\ns_add_u32 {dst}, {dst}, {s_w}\ns_mul_i32 {dst}, {dst}, 18432\ns_add_u32 {dst}, {dst}, {O_W4F}')
    cj.store(fr, ids, Rws, dst, 1024)
    k(f's_lshl_b32 {dst}, {job}, 2\ns_add_u32 {dst}, {dst}, {s_w}\ns_mul_i32 {dst}, {dst}, 18432\ns_mul_i32 {st}, {part}, 3072\ns_add_u32 {dst}, {dst}, {st}')
    k(f's_add_u32 {dst}, {dst}, {O_W4F + 256 * 18432}\ns_cmp_ge_u32 s2, 48\ns_cselect_b32 {dst}, {WS_USED}, {dst}')
    cj.store(fr2, ids2, Rws, dst, 1024, nks=3)
    vm.all()
    flag_add(sl, O_FW)
    k(f's_cmp_ge_u32 s2, 48\ns_cbranch_scc1 {dn}\ns_mov_b32 {sl}, 7')
    flag_add(sl, O_FW)
    k(f'{dn}:\n{go3_ld}')
    spin(go3_ld, [fv4[0]]); vm.reset()
    for r_ in range(2):
        for ks in PI: vm.op(wld(r_, ks))
        if r_ == 0: k(f's_add_u32 {sn}, {sn}, 18432')
    STAMP(14)
    k('s_branch k2_phase_e'); ool_.__exit__()
    k('k2_phase_e:')
    k.V.free, k.A.free, k.S.free = keepV, keepA, keepS
    vm, lg = trackers(k)
    vm.n = 1
    XA = k.a(112, 4); XV = k.v(176, 4)
    xf = lambda ks, t_: XA.sub(16 * ks + 4 * t_, 4) if 16 * ks + 4 * t_ < 112 else XV.sub(16 * ks + 4 * t_ - 112, 4)
    fv4.release()
    k(f's_add_u32 {sn}, {sn}, 18432')
    acc = [k.v(16, 4), k.v(16, 4)]
    t = acc[1].sub(0, 12); pa = k.v()
    k(f's_lshl_b32 {st}, {mb}, 2\nv_add_u32 {pa}, {st}, {lane}\ns_add_u32 {st}, {fs}, {(O_FW - O_FD) // 128}\nv_mov_b32 {t[0]}, {st}\nv_cmp_gt_u32 vcc, 4, {lane}')
    k(f'v_cndmask_b32 {pa}, {t[0]}, {pa}, vcc\nv_lshlrev_b32 {pa}, 7, {pa}\ns_cmp_eq_u32 {fs}, 7\ns_cselect_b32 {st}, 196, 36\nv_mov_b32 {t[0]}, {st}\nv_cndmask_b32 {t[0]}, {t[0]}, 6, vcc')
    k(f's_lshl_b32 {sm}, {s_w}, 10\ns_mul_i32 {so}, {mb}, 73728\ns_add_u32 {so}, {so}, {sm}\ns_add_u32 {so}, {so}, {O_X1F}')
    sk_ = k.label('nopoll')
    if 'norefresh' not in opt:
        here = k.label('pc')
        k(f's_getpc_b64 {sav}\n{here}:\nv_subrev_u32 {t[2]}, 64, v0\nv_lshlrev_b32 {t[2]}, 7, {t[2]}\nv_min_u32 {t[2]}, {END}-{here}, {t[2]}')
        k(f's_cmp_eq_u32 {s_w}, 0\ns_cbranch_scc1 {sk_}_p\nglobal_load_dword {t[3]}, {t[2]}, {sav}\nv_add_u32 {t[2]}, 0x6000, {t[2]}\nv_min_u32 {t[2]}, {END}-{here}, {t[2]}')
        k(f'global_load_dword {t[3]}, {t[2]}, {sav}\ns_branch {sk_}\n{sk_}_p:')
    else: k(f's_cmp_lg_u32 {s_w}, 0\ns_cbranch_scc1 {sk_}')
    poll(pa, O_FD, t[0], sleep=1, fv=t[1])
    k(f'{sk_}:\ns_waitcnt vmcnt(0)\ns_barrier')
    STAMP(7)
    for o in opt:
        if o.startswith('pad'):
            k('.p2align 6')
            for _ in range(int(o[3:])): k('s_nop 0')
    ixd = []; idv = {}
    def xdma(ks):
        k(f's_add_u32 m0, {sm}, {XBUF + 4096 * ks}\ns_add_u32 {st}, {so}, {4096 * ks}')
        ixd.append(vm.op(f'buffer_load_dwordx4 {l16}, {Rws}, {st} offen sc1 lds'))
    NX0 = 18 if 'xall' in opt else 10 if 'x10' in opt else 7
    for ks in PI[:NX0]: xdma(ks)
    k(f's_mul_i32 {st}, {mb}, 3072\ns_add_u32 {st}, {st}, {sm}\ns_add_u32 {st}, {st}, {O_PST}\ns_add_u32 m0, {sm}, {PSTL}')
    ipst = vm.op(f'buffer_load_dwordx4 {l16}, {Rws}, {st} offen sc1 lds')
    k(f'v_mul_u32_u24 {pa}, 768, {q}\nv_lshl_add_u32 {pa}, {m}, 2, {pa}\nv_add_u32 {pa}, {PSTL}, {pa}')
    aX = [l16, k.v()]; aHr = [k.v(), k.v()]; aH = [k.v(), k.v()]
    k(f'v_add_u32 {aX[1]}, 0x9000, {l16}\nv_add_u32 {aHr[0]}, {HBUF}, {l16}\nv_add_u32 {aHr[1]}, {HBUF + 0x9000}, {l16}')
    for h in range(2):
        k(f's_mul_i32 {st}, {s_w}, 9\ns_add_u32 {st}, {st}, {h}\ns_and_b32 {st1}, {st}, 1\ns_lshl_b32 {st1}, {st1}, 3\ns_lshr_b32 {st}, {st}, 1\ns_lshl_b32 {st}, {st}, 12')
        k(f's_add_u32 {st}, {st}, {st1}\nv_add_u32 {aH[h]}, {st}, {aHr[0]}')
    GC = [RB.sub(8 + 3 * i, 3) for i in range(4)]
    gt = RB.sub(0, 8); hp = [RB.sub(20, 2), RB.sub(22, 2)]
    def gelu_ops(a, ah):
        out = []
        for t_ in range(4):
            c = GC[t_]; x = [a[4 * t_ + e] for e in range(4)]; u = [gt[4 * (t_ & 1) + e] for e in range(4)]; o = hp[t_ & 1]
            out += [f'v_mul_f32 {u[e]}, {x[e]}, {x[e]}' for e in range(4)]
            out += [f'v_fma_f32 {u[e]}, {u[e]}, {c[1]}, {c[0]}' for e in range(4)]
            out += [f'v_mul_f32 {u[e]}, {u[e]}, {x[e]}' for e in range(4)]
            out += [f'v_exp_f32 {u[e]}, {u[e]}' for e in range(4)]
            out += [f'v_fma_f32 {u[e]}, {u[e]}, {c[2]}, {c[2]}' for e in range(4)]
            out += [f'v_rcp_f32 {u[e]}, {u[e]}' for e in range(4)]
            out += [f'v_mul_f32 {u[e]}, {u[e]}, {x[e]}' for e in range(4)]
            out += [f'v_cvt_pk_bf16_f32 {o[0]}, {u[0]}, {u[1]}', f'v_cvt_pk_bf16_f32 {o[1]}, {u[2]}, {u[3]}']
            out.append(f'ds_write_b64 {ah}, {o} offset:{1024 * t_}')
        return out
    def cost(x_):
        if isinstance(x_, tuple): return x_[0]
        return 2 if x_.startswith(('v_exp', 'v_rcp', 'ds_write')) else 1
    def emit(x_):
        if isinstance(x_, tuple): x_[1]()
        elif x_.startswith('ds_'): lg.op(x_)
        elif x_.startswith('buffer_'): vm.op(x_)
        else: k(x_)
    wid = {}; nw = {}; due = []
    from_lds = []; lid = {}
    def refill(r_):
        ks = due.pop()
        if from_lds: lid[r_, ks] = lg.op(f'ds_read_b128 {W[r_].sub(4 * ks, 4)}, {from_lds[0]} offset:{1024 * ks}'); nw[r_, ks] = 0
        else: nw[r_, ks] = vm.op(wld(r_, ks))
    def tile(a, r_, fill, steps=range(18), lead=2, pre=None, post=None, per_step=0, rate=None, load=True, at=None):
        steps = list(steps); nm = 4 * len(steps); n_ = 0; fill = list(fill); at = at or {}
        total = len(steps) * (1.5 + per_step) + sum(cost(x_) for x_ in fill)
        rate = rate or total / nm
        cum = 0
        for i in steps:
            ks = PI[i]
            if i in at: fill += at[i]; cum = max(cum, rate * n_ - 1)
            if pre: pre(i)
            if i % 2 == 0:
                n0 = len(k.l); vm.wait(max(wid.get((r_, PI[j]), 0) for j in (i, i + 1))); cum += len(k.l) - n0
            for t_ in range(4):
                k(f'{MF} {a.sub(4 * t_, 4)}, {W[r_].sub(4 * ks, 4)}, {xf(ks, t_)}, {"0" if i == 0 else a.sub(4 * t_, 4)}')
                n_ += 1
                nxt = 0
                if t_ == 0 and due: refill(r_); cum += 1
                if t_ == 3:
                    if load: due.append(ks)
                    if post: post(i)
                    cum += per_step
                    nxt = i % 2
                while n_ >= lead and fill and cum + nxt + cost(fill[0]) / 2 <= rate * n_: cum += cost(fill[0]); emit(fill.pop(0))
        for x_ in fill: emit(x_)
        if steps[-1] == 17 and due: refill(r_)
        if steps[-1] == 17: wid.update(nw); nw.clear()
    def frag_reads(base, i):
        ks = PI[i]
        return [lg.op(f'ds_read_b128 {xf(ks, t_)}, {base[ks // 9]} offset:{(ks % 9) * 4096 + 1024 * t_}') for t_ in range(4)]
    nxt_tile = lambda: k(f's_add_u32 {sn}, {sn}, 18432')
    rd = {}
    AH = 3 if 'ah3' in opt else 2
    XB = {0: 5, 3: 11, 9: 17} if 'xb3' in opt else {0: 3, 1: 6, 4: 11, 9: 17} if AH == 3 else {0: 2, 1: 6, 5: 11, 10: 17}
    def pre0(i):
        if i in XB: vm.wait(max(ixd[XB[i]], ipst if XB[i] == 17 else 0)); k('s_barrier')
        if i == 0:
            for j in range(AH): rd[j] = frag_reads(aX, j)
        if i + AH < 18: rd[i + AH] = frag_reads(aX, i + AH)
        lg.wait(rd[i][3])
    todo = [(0, lambda ks=ks: xdma(ks)) for ks in PI[NX0:]]
    todo += [(max(i, 9) if 'wlate' in opt else i, lambda ks=PI[i]: wid.__setitem__((0, ks, 'n'), vm.op(wld(0, ks)))) for i in range(18)]
    def post0(i):
        for _ in range(18 if i == 17 else 4 if i < 3 else 3):
            if todo and todo[0][0] <= i: todo.pop(0)[1]()
        if i == 10:
            for j in range(6): idv['p'] = lg.op(f'ds_read2_b32 {t.sub(2 * j, 2)}, {pa} offset0:{32 * j} offset1:{32 * j + 16}')
    class Rec:
        def __init__(self): self.l = []
        def __call__(self, x_): self.l += x_.split('\n')
    rec = Rec()
    for e in (0, 4, 8): rec(f'v_add_f32 {t[e]}, {t[e]}, {t[e + 2]}\nv_add_f32 {t[e + 1]}, {t[e + 1]}, {t[e + 3]}')
    for e in (4, 8): rec(f'v_add_f32 {t[0]}, {t[0]}, {t[e]}\nv_add_f32 {t[1]}, {t[1]}, {t[e + 1]}')
    sigma_bf16(rec, t[0], t[1])
    rec(f'v_cvt_pk_bf16_f32 {t[1]}, {t[1]}, {t[1]}\nv_and_b32 {t[1]}, 0xffff0000, {t[1]}\nv_lshlrev_b32 {t[2]}, 2, {m}')
    c1 = [(1, lambda: lg.wait(idv['p']))] + rec.l
    c1 += [(1, lambda i=i: idv.__setitem__('b', lg.op(f'ds_bpermute_b32 {t[4 + i]}, {t[2]}, {t[1]} offset:{64 * i}'))) for i in range(4)]
    rec = Rec()
    for i in range(4): gelu_consts(rec, t[4 + i], GC[i])
    c2 = [(1, lambda: lg.wait(idv['b']))] + [rec.l[6 * i + j] for j in range(6) for i in range(4)]
    tile(acc[0], 0, [], pre=pre0, post=post0, load=False, rate=2.0, at={12: c1, 16: c2})
    assert not todo
    for ks in range(18): wid[0, ks] = wid.pop((0, ks, 'n'))
    nxt_tile()
    STAMP(8)
    fa_ = k.v(); xc = k.v(3, 1)
    sS = k.s(); sM = k.s()
    k(f's_add_u32 {sS}, {s4}, {4 * 18432}\ns_mul_i32 {sM}, {s_w}, 18432')
    def check(idl, val, tgt, vaddr, base, inline=False):
        lp = k.label('chk')
        vm.wait(idl)
        k(f'{lp}:\nv_cmp_gt_u32 vcc, {tgt}, {val}\ns_cmp_eq_u64 vcc, 0')
        retry(k, lp, f's_mov_b32 {st1}, {base}\nbuffer_load_dword {val}, {vaddr}, {Rws}, {st1} offen sc1\ns_waitcnt vmcnt(0)', cnt, END, SPIN_MAX, inline)
    STAGE = 'nostage' not in opt
    rd = {}
    for tt in range(1, 9):
        fill = gelu_ops(acc[1 - (tt & 1)], aH[1 - (tt & 1)]) + [f'v_add_u32 {aH[1 - (tt & 1)]}, 4096, {aH[1 - (tt & 1)]}']
        if 4 <= tt <= 7 and STAGE:
            if tt == 4: lg.all(); k('s_barrier')
            for n_, ks in enumerate(range((tt - 4) * 18 // 4, (tt - 3) * 18 // 4)):
                fill[10 + 26 * n_:10 + 26 * n_] = [f's_add_u32 m0, {sM}, {4096 * (ks // 4)}',
                    (1, lambda ks=ks: idv.__setitem__('stage', vm.op(f'buffer_load_dwordx4 {vo[ks // 4]}, {RW}, {sS} offen offset:{1024 * (ks % 4)} sc1 lds')))]
        if tt == 1:
            k(f's_lshr_b32 {so}, {fs}, 1\ns_mul_i32 {so}, {so}, 9\ns_and_b32 {st1}, {fs}, 1\ns_lshl_b32 {st1}, {st1}, 11\ns_lshr_b32 {sm}, {s_w}, 1\ns_lshl_b32 {sm}, {sm}, 8\ns_add_u32 {st1}, {st1}, {sm}')
            k(f's_and_b32 {sm}, {s_w}, 1\ns_lshl_b32 {sm}, {sm}, 3\ns_add_u32 {st1}, {st1}, {sm}\nv_lshrrev_b32 {xc[2]}, 1, {q}\nv_lshl_add_u32 {xc[0]}, {xc[2]}, 10, {st1}')
            k(f'v_lshl_add_u32 {xc[0]}, {m}, 4, {xc[0]}\nv_and_b32 {xc[2]}, 1, {q}\nv_lshl_add_u32 {xc[2]}, {xc[2]}, 2, {xc[0]}')
            for h in range(2):
                k(f's_add_u32 {st}, {so}, {h}\ns_and_b32 {sm}, {st}, 1\ns_lshl_b32 {sm}, {sm}, 9\ns_lshr_b32 {st}, {st}, 1\ns_lshl_b32 {st}, {st}, 12\ns_add_u32 {st}, {st}, {sm}\nv_add_u32 {xc[h]}, {st}, {xc[2]}')
            k(f's_mul_i32 {st}, {s_w}, 2304\ns_add_u32 {st}, {st}, {X1C}\nv_lshl_add_u32 {xc[2]}, {lane}, 2, {st}')
        if 1 <= tt <= 3:
            for t_ in range(3 * tt - 3, 3 * tt):
                def cp(t_=t_): idv['x'] = lg.op(f'ds_read_b32 {pa}, {xc[t_ & 1]} offset:{4096 * (t_ >> 1)}')
                def wr(t_=t_): lg.wait(idv['x']); lg.op(f'ds_write_b32 {xc[2]}, {pa} offset:{256 * t_}')
                n_ = 20 + 33 * (t_ % 3)
                fill[n_:n_] = [(1, cp)]; fill[n_ + 20:n_ + 20] = [(2, wr)]
        if tt == 7: k(f's_mov_b32 {sn}, {s4}')
        if tt in (1, 4, 7, 8): STAMP({1: 1, 4: 2, 7: 3, 8: 4}[tt], 'g3st')
        if tt < 8: tile(acc[tt & 1], tt & 1, fill)
        else:
            lg.all(); k('s_barrier')
            def post8(i):
                if i < 12: rd[i] = frag_reads(aHr, i)
            tile(acc[0], 0, fill, post=post8, per_step=2.7)
        nxt_tile()
    STAMP(9)
    k('s_waitcnt lgkmcnt(0)\ns_barrier'); lg.reset()
    for j in (12, 13): rd[j] = frag_reads(aHr, j)
    tile(acc[1], 1, gelu_ops(acc[0], aH[0]), steps=range(10), lead=1)
    lg.all(); k('s_barrier')
    for j in range(14, 18): rd[j] = frag_reads(aHr, j)
    tile(acc[1], 1, [], steps=range(10, 18), pre=lambda i: lg.wait(rd[i][3]) if i >= 14 else None)
    Rout = k.s(4)
    sp = k.s(); sq = k.s(); sf = k.s(); T0 = k.s(); sl_ = k.s(); po = [gt.sub(0, 4), gt.sub(4, 4)]
    aP, aR, aO = GC[0][0], GC[0][1], GC[0][2]; aL, aLr, aLg = GC[1][0], GC[1][1], GC[1][2]; aOw, aOr = GC[2][0], GC[2][1]; fv = pa; fpa = fa_
    u0, u1, u2 = hp[0][0], hp[0][1], hp[1][0]
    X2L, GBL, OUTB = HBUF, HBUF + 9216, HBUF + 13312
    sx_ = k.s(); mk = [k.s(2), k.s(2)]; own = [k.s(), k.s()]; sp1 = k.s(); OWN = 'noown' not in opt
    setup = f"""s_mov_b32 {Rout[0]}, {P['out'][0]}
s_mov_b32 {Rout[1]}, {P['out'][1]}
s_mov_b32 {Rout[2]}, {L * D * 2}
s_mov_b32 {Rout[3]}, 0x20000
s_lshl_b32 {st}, {fs}, 13
s_mul_i32 {sq}, {mb}, {9 * 65536}
s_add_u32 {sq}, {sq}, {st}
s_add_u32 {sq}, {sq}, {O_PART}
s_mul_i32 {sf}, {mb}, 36
s_lshr_b32 {T0}, {fs}, 1
s_add_u32 {st}, {sf}, {T0}
s_lshl_b32 {st}, {st}, 7
v_mov_b32 {fpa}, {st}
s_add_u32 {sf}, {sf}, {s_w}
s_lshl_b32 {sf}, {sf}, 7
s_add_u32 {sf}, {sf}, {O_FP}
s_mul_i32 {T0}, {T0}, 9
s_lshl_b32 {st}, {s_w}, 8
v_lshl_add_u32 {u0}, {m}, 4, {st}
v_lshl_add_u32 {aP}, {q}, 10, {u0}
v_and_b32 {u1}, 1, {q}
v_lshrrev_b32 {u2}, 1, {q}
v_lshl_add_u32 {u0}, {u2}, 4, {m}
v_lshlrev_b32 {aR}, 3, {u0}
v_lshl_add_u32 {aR}, {u1}, 2, {aR}
s_and_b32 {so}, {fs}, 1
s_lshl_b32 {st}, {mb}, 1
s_add_u32 {so}, {so}, {st}
s_lshl_b32 {so}, {so}, 8
s_lshl_b32 {st}, {s_w}, 14
s_add_u32 {so}, {so}, {st}
v_add_u32 {aR}, {so}, {aR}
s_mul_i32 {sx_}, {s_w}, 2304
s_add_u32 {sx_}, {sx_}, {X2L}
v_lshl_add_u32 {aLr}, {lane}, 2, {sx_}
s_mul_i32 {st}, {s_w}, 1040
s_add_u32 {st}, {st}, {GBL}
v_lshl_add_u32 {aLg}, {u1}, 3, {st}
v_mul_u32_u24 {aOw}, 304, {u0}
v_lshl_add_u32 {aOw}, {u1}, 2, {aOw}
s_lshl_b32 {st}, {s_w}, 3
s_add_u32 {st}, {st}, {OUTB}
v_add_u32 {aOw}, {st}, {aOw}
s_and_b32 {st}, {fs}, 3
s_lshl_b32 {so}, {st}, 4
s_lshl_b64 {mk[0]}, 0xffff, {so}
s_not_b64 {mk[0]}, {mk[0]}
s_cmp_ge_u32 {fs}, 4
s_cselect_b64 {mk[1]}, {mk[0]}, -1
s_cselect_b64 {mk[0]}, -1, {mk[0]}
s_lshl_b32 {st}, {fs}, 8
v_mul_u32_u24 {u0}, 18432, {q}
v_lshl_add_u32 {u0}, {m}, 4, {u0}
v_add_u32 {u0}, {st}, {u0}
v_add_u32 {u1}, {HBUF + 24576}, {l16}
s_lshl_b32 {st}, {s_w}, 1
s_cmp_eq_u32 {st}, {fs}
s_cselect_b64 vcc, -1, 0
s_cselect_b32 {own[0]}, 1, 0
v_cndmask_b32 {aH[0]}, {u1}, {u0}, vcc
s_add_u32 {st}, {st}, 1
s_cmp_eq_u32 {st}, {fs}
s_cselect_b64 vcc, -1, 0
s_cselect_b32 {own[1]}, 1, 0
v_cndmask_b32 {aH[1]}, {u1}, {u0}, vcc""".split('\n')
    k(f's_mul_i32 {sp}, {mb}, {9 * 65536}\ns_lshl_b32 {st}, {s_w}, 14\ns_add_u32 {sp}, {sp}, {st}\ns_lshl_b32 {st}, {fs}, 10\ns_add_u32 {sp}, {sp}, {st}\ns_add_u32 {sp}, {sp}, {O_PART}')
    k(f's_mov_b32 {sl_}, {sM}\nv_add_u32 {aL}, {sM}, {l16}')
    for x_ in (aHr[0], aHr[1], aX[1]): x_.release()
    k(f's_mov_b32 {sp1}, {sp}'); spp = [sp, sp1]
    ids = {}
    def S(t_, a, p):
        out = [f'v_cvt_pk_bf16_f32 {po[p][e]}, {a[8 * p + 2 * e]}, {a[8 * p + 2 * e + 1]}' for e in range(4)]
        if OWN and t_ == 2: out.append((2, lambda: k(f's_cmp_lg_u32 {own[p]}, 0\ns_cselect_b32 {spp[p]}, {WS_USED}, {spp[p]}')))
        out.append((1, lambda: ids.__setitem__(('S', t_), vm.op(f'buffer_store_dwordx4 {po[p]}, {vo[2 * p]}, {Rws}, {spp[p]} offen {PFL}'))))
        if OWN and t_ >= 2: out.append(f'ds_write_b128 {aH[p]}, {po[p]} offset:{2048 * t_}')
        return out + [f's_add_u32 {spp[p]}, {spp[p]}, 65536']
    def G(t_):
        def f():
            if t_ == 8: k(f's_add_u32 {sf}, {sf}, 4096')
            vm.wait(ids['S', t_])
            if OWN and t_ >= 2: lg.all()
            k('s_mov_b64 exec, 1')
            vm.op(f'buffer_atomic_add {one}, {zero}, {Rws}, {sf} offen offset:{512 * (t_ % 8)} sc1')
            k('s_mov_b64 exec, -1')
        return [(4, f)]
    def Lf(t_): return [f's_mov_b32 {st1}, {O_FP + 512 * t_}', (1, lambda: ids.__setitem__(('L', t_), vm.op(f'buffer_load_dword {fv}, {fpa}, {Rws}, {st1} offen sc1')))]
    def dma(lds, va, soff, mask):
        def f():
            if mask: k(f's_mov_b64 exec, {mask}')
            ids['d'] = vm.op(f'buffer_load_dwordx4 {va}, {Rws}, {soff} offen sc1 lds')
            if mask: k('s_mov_b64 exec, -1')
        return [f's_add_u32 m0, {sl_}, {lds}', (3 if mask else 1, f)]
    def C(t_):
        m_ = mk if OWN and t_ >= 2 else [None, None]
        return (dma(2048 * t_, aP, sq, m_[0]) + [f's_add_u32 {st}, {sq}, 4096'] + dma(2048 * t_ + 1024, aP, st, m_[1]) + [f's_add_u32 {sq}, {sq}, 65536']
                + [(0, lambda: ids.__setitem__(('C', t_), ids['d']))])
    def RS(t_): return [f's_add_u32 {st}, {T0}, {t_}', f's_lshl_b32 {st}, {st}, 16', f's_add_u32 {st}, {st}, {O_X2}', f's_add_u32 m0, {sx_}, {256 * t_}',
                        f'buffer_load_dword {aR}, {Rws}, {st} offen sc1 lds']
    def CK(t_): return [(4, lambda: check(ids['L', t_], fv, 8, fpa, O_FP + 512 * t_, t_ >= (7 if 'ck7' in opt else 8)))]
    def R(t_, Dr, v):
        A_, B_, r_, g_ = Dr
        def rd_():
            vm.wait(ids['C', t_])
            lg.op(f'ds_read_b128 {A_}, {aL} offset:{2048 * t_}'); lg.op(f'ds_read_b128 {B_}, {aL} offset:{2048 * t_ + 1024}')
            lg.op(f'ds_read_b32 {r_[0]}, {aLr} offset:{256 * t_}'); lg.op(f'ds_read_b32 {r_[1]}, {xc[2]} offset:{256 * t_}'); ids['r', t_] = lg.op(f'ds_read_b64 {g_}, {aLg} offset:{64 * t_}')
        out = [(1, lambda: lg.wait(ids['r', t_]))]
        for d in range(4): out += [f'v_lshlrev_b32 {v[2 * d]}, 16, {A_[d]}', f'v_lshlrev_b32 {v[2 * d + 1]}, 16, {B_[d]}']
        for d in range(4): out += [f'v_and_b32 {A_[d]}, 0xffff0000, {A_[d]}', f'v_add_f32 {v[2 * d]}, {v[2 * d]}, {v[2 * d + 1]}', f'v_and_b32 {B_[d]}, 0xffff0000, {B_[d]}']
        out += [f'v_add_f32 {v[2 * d + 1]}, {A_[d]}, {B_[d]}' for d in range(4)]
        out += [f'v_permlane32_swap_b32 {v[e]}, {v[e + 4]}' for e in (0, 2, 1, 3)]
        out += [f'v_add_f32 {v[e]}, {v[e]}, {v[e + 4]}' for e in (0, 2, 1, 3)]
        out += [un(v[4 + e], r_[e >> 1], e & 1) for e in (2, 3)]
        out += [f'v_permlane16_swap_b32 {v[e]}, {v[e + 2]}' for e in range(2)]
        out += [un(v[4 + e], r_[e >> 1], e & 1) for e in (0, 1)]
        out += [f'v_add_f32 {v[e]}, {v[e]}, {v[e + 2]}' for e in range(2)]
        out += [f'v_add_f32 {v[e]}, {v[e]}, {v[e + 6]}' for e in range(2)]
        out += [f'v_fma_f32 {v[e]}, {v[e]}, {g_[e]}, {v[4 + e]}' for e in range(2)]
        out += [f'v_cvt_pk_bf16_f32 {v[4]}, {v[0]}, {v[1]}', f'ds_write_b32 {aOw}, {v[4]} offset:{32 * t_}']
        return [(6, rd_)], out
    SPOS = 9
    for tt in range(1, 9):
        nxt_tile()
        a_ = acc[tt & 1]
        at = {0: S(tt - 1, a_, 0), SPOS: S(tt - 1, a_, 1)}
        add = lambda i, ops: at.__setitem__(i, at.get(i, []) + ops)
        if tt == 1: add(2, setup)
        if tt == 2:
            k('s_barrier')
            add(2, [f's_lshl_b32 {st}, {T0}, 6', f's_add_u32 {st}, {st}, {O_MOD2 + 4608}', f's_lshl_b32 {so}, {s_w}, 10', f's_add_u32 m0, {so}, {GBL}',
                    f'buffer_load_dwordx4 {l16}, {Rws}, {st} offen sc1 lds'])
        if 2 <= tt <= 6: add(4, RS(2 * tt - 4) + (RS(2 * tt - 3) if tt < 6 else []))
        if tt >= 2: add(6, G(tt - 2))
        if 'newtail' not in opt:
            if tt >= 4: add(12, CK(tt - 4) + C(tt - 4))
            if tt >= 3: add(15, Lf(tt - 3))
        else:
            if 4 <= tt <= 7: add(12, CK(tt - 4) + C(tt - 4))
            if 3 <= tt <= 7: add(15, Lf(tt - 3))
            if tt == 8: add(1, CK(4) + C(4) + Lf(5)); add(11, CK(5) + C(5)); add(14, Lf(6)); add(17, G(7))
        if tt in (1, 4, 7, 8): STAMP({1: 1, 4: 2, 7: 3, 8: 4}[tt], 'g4st')
        if tt == 2 and STAGE: vm.wait(idv['stage']); from_lds.append(aL)
        if 'w8late' in opt and tt == 7:
            k(f's_sub_u32 {sn}, {sn}, 18432')
            for i_ in range(9): add(i_, [(1, lambda ks=ks: wid.__setitem__((1, ks), vm.op(wld(1, ks)))) for ks in PI[2 * i_:2 * i_ + 2]])
        tile(acc[1 - (tt & 1)], 1 - (tt & 1), [], rate=2.0, at=at, load=tt < (6 if 'w8late' in opt else 7))
        if tt == 2 and STAGE: from_lds.clear()
        if tt == 2: lg.all(); k('s_barrier')
    STAMP(10)
    XV.release()
    Dn = [[k.v(4, 2), k.v(4, 2), k.v(2), k.v(2)] for _ in range(9)]; v2 = k.v(8, 2)
    RR = [R(t_, Dn[t_], v2) for t_ in range(9)]
    if 'newtail' not in opt:
        seq = S(8, acc[1], 0) + S(8, acc[1], 1) + G(7) + CK(5) + C(5) + Lf(6)
        for t_ in range(3): seq += RR[t_][0]
        seq += RR[0][1] + G(8) + RR[1][1] + CK(6) + C(6) + Lf(7) + RR[3][0] + RR[4][0] + RR[2][1] + RR[3][1] + CK(7) + C(7) + Lf(8) + RR[5][0] + RR[4][1] + RR[5][1]
        last = C(8) + RR[6][0] + RR[7][0] + RR[6][1] + RR[7][1] + RR[8][0] + RR[8][1]
    else:
        seq = S(8, acc[1], 0) + S(8, acc[1], 1) + CK(6) + C(6) + Lf(7)
        for t_ in range(5): seq += RR[t_][0]
        seq += RR[0][1] + RR[1][1] + RR[2][1] + G(8) + CK(7) + C(7) + RR[3][1] + RR[4][1] + Lf(8) + RR[5][0] + RR[6][0] + RR[5][1] + RR[6][1]
        last = C(8) + RR[7][0] + RR[7][1] + RR[8][0] + RR[8][1]
    for x_ in seq: emit(x_)
    u = k.v(3)
    k(f'v_mul_u32_u24 {u[0]}, 3641, v0\nv_lshrrev_b32 {u[0]}, 16, {u[0]}\nv_mul_u32_u24 {u[1]}, 18, {u[0]}\nv_sub_u32 {u[1]}, v0, {u[1]}\nv_lshlrev_b32 {u[1]}, 4, {u[1]}')
    k(f'v_mul_u32_u24 {aOr}, 304, {u[0]}\nv_add_u32 {aOr}, {aOr}, {u[1]}\nv_add_u32 {aOr}, {OUTB}, {aOr}\nv_mul_u32_u24 {aO}, 1152, {u[0]}\nv_add_u32 {aO}, {aO}, {u[1]}')
    k(f's_lshl_b32 {st}, {mb}, 1\ns_and_b32 {so}, {fs}, 1\ns_add_u32 {so}, {so}, {st}\ns_mul_i32 {so}, {so}, {32 * 1152}\ns_lshl_b32 {st}, {T0}, 5\ns_add_u32 {so}, {so}, {st}')
    for x_ in CK(8): emit(x_)
    STAMP(11)
    for x_ in last: emit(x_)
    lg.all(); k('s_barrier')
    o4 = [Dn[0][0], Dn[0][1], Dn[1][0]]
    k(f'v_cmp_gt_u32 vcc, 252, v0\ns_and_b64 exec, exec, vcc')
    io = [lg.op(f'ds_read_b128 {o4[i]}, {aOr} offset:{14 * 304 * i}') for i in range(3)]
    for i in range(3):
        if i == 2: k(f's_cmp_ge_u32 {s_w}, 2\ns_cbranch_scc1 {END}\nv_cmp_gt_u32 vcc, 72, v0\ns_and_b64 exec, exec, vcc')
        lg.wait(io[i])
        k(f'buffer_store_dwordx4 {o4[i]}, {aO}, {Rout}, {so} offen' + (' sc1' if 'osc1' in opt else ' nt' if 'ont' in opt else ''))
        if i < 2: k(f's_add_u32 {so}, {so}, {14 * 1152}')
    STAMP(12)
```

```python
import sys, re
from common import *
import k1, k2, align
KN = NAME + '_kernel'
def build(stamps=False, dump=False, opt=()):
    k = Kern(KN, nv=256, na=256)
    END, NEXT = 'all_done', 'phase2'
    k(f's_cmp_ge_u32 s2, 256\\ns_cbranch_scc1 exit\\nk1_top:'.replace('\\n', '\n'))
    if isinstance(stamps, tuple): k.S.free[96] = k.S.free[98] = k.S.free[99] = False; k('s_memrealtime s[98:99]')
    if 'rot' in opt: k('s_add_u32 s2, s2, 112'); k('s_and_b32 s2, s2, 255')
    S1 = Stamper(k, stamps, 1); S1.init(); S1(0)
    P = kernargs(k)
    lane = k.v(); s_w = k.s()
    pf = k.v(2); pfs = k.s(2)
    k(f's_getpc_b64 {pfs}'); k('pc_here:'); k('s_cmp_ge_u32 s2, 112'); k('s_cselect_b32 vcc_lo, 0, k1_service-pc_here')
    k(f's_add_u32 {pfs[0]}, {pfs[0]}, vcc_lo'); k(f's_addc_u32 {pfs[1]}, {pfs[1]}, 0')
    k(f'v_lshlrev_b32 {pf[0]}, 7, v0'); k(f'v_min_u32 {pf[0]}, code_end-k1_service-4, {pf[0]}'); k(f'global_load_dword {pf[1]}, {pf[0]}, {pfs}')
    k(f'v_lshrrev_b32 {lane}, 6, v0')
    k(f'v_readfirstlane_b32 {s_w}, {lane}')
    k(f'v_and_b32 {lane}, 63, v0')
    k('s_waitcnt lgkmcnt(0)'); k('s_cmp_lt_u32 s2, 112'); k('s_cbranch_scc1 k1_service')
    st = lambda: (list(k.V.free), list(k.A.free), list(k.S.free))
    def rs(x): k.V.free, k.A.free, k.S.free = [list(y) for y in x]
    base = st()
    with k.ool():
        k('k1_service:')
        k1.service(k, P, lane, s_w, END, NEXT, S1, opt)
    rs(base); k('k1_conv:')
    k1.conv(k, P, lane, s_w, END, NEXT, dump, S1, opt)
    rs(base); k(f'{NEXT}:'); S1(15)
    a, b = P['_blocks']
    a.release(); pf.release(); pfs.release()
    for i in list(range(0, 6)) + list(range(8, 12)): k.S.free[b.i + i] = True
    S2 = Stamper(k, stamps, 0, t=S1.t if stamps else None); S2.init()
    k2.phase2(k, P, lane, s_w, END, S2, opt)
    k(f'{END}:')
    if isinstance(stamps, tuple):
        k('s_waitcnt vmcnt(0)'); S2(13)
        k('probe_w:'); k('s_memrealtime s[4:5]'); k('s_waitcnt lgkmcnt(0)'); k('s_sub_u32 s4, s4, s98'); k('s_cmp_lt_u32 s4, 6000'); k('s_cbranch_scc1 probe_w')
    elif stamps:
        k('s_waitcnt vmcnt(0)'); S2(13); S2.flush(); S1.flush()
    k('exit:'); k('s_endpgm')
    with k.ool(): k('code_end:'); k('s_endpgm')
    k.finish()
    ref = open('cdna_kernels/%s.s.ref' % NAME).read().split('\n')
    hdr = [l for l in ref if l.startswith(';') and '@launch' not in l and 'Override' not in l and 'grid=ceil' not in l]
    hdr = '\n'.join(hdr) + '\n; @launch grid=(256,1,1) block=(256,1,1) lds=%d\n' % k2.K2_LDS
    print('lines', len(k.l), 'nops', k.nops, 'regs', k.counts(), 'sgpr', k.S.top)
    s = module([k], 136, hdr)
    return align.align(s) if 'align' in opt else s
if __name__ == '__main__' and len(sys.argv) > 1 and sys.argv[1] == 'probe':
    for o in sys.argv[2:]:
        a_, i_, lo, hi = (o.split('_') + ['0', '256'])[:4]; open('probe_%s.s' % o, 'w').write(build(stamps=({'k1': 1, 'k2': 0}[a_], int(i_), int(lo), int(hi))))
elif __name__ == '__main__' and len(sys.argv) > 1:
    for o in sys.argv[1:]:
        for suf, stp in (('', 0), ('_dbg', 1), ('_clk', 2)): open('v_%s%s.s' % (o, suf), 'w').write(build(stamps=stp, opt=o.split('+')))
elif __name__ == '__main__':
    a_, b_, s = build(stamps=1), build(stamps=2), build()
    open('full_dbg.s', 'w').write(a_); open('full_clk.s', 'w').write(b_)
    open('full.s', 'w').write(s)
    open('cdna_kernels/%s.s' % NAME, 'w').write(s)
```
